```python
import torch

def _softmax(x, axis=-1):
    return torch.softmax(x, dim=axis)
def _gelu(x):
    return torch.nn.functional.gelu(x, approximate="tanh")
def _silu(x):
    return torch.nn.functional.silu(x)
def _sigmoid(x):
    return torch.sigmoid(x)
def _layernorm(x, axis=-1, eps=1e-5):
    m = x.mean(dim=axis, keepdim=True)
    v = x.var(dim=axis, keepdim=True, unbiased=False)
    return (x - m) / torch.sqrt(v + eps)
def _scatter_add(tgt, idx, src, axis=0):
    return tgt.clone().index_add_(axis, idx, src)
def _segment_sum(src, seg, n):
    out = torch.zeros((n,) + src.shape[1:], dtype=src.dtype)
    return out.index_add_(0, seg, src)
def _pad(x, pw):
    flat = tuple(v for pair in reversed(pw) for v in pair)
    return torch.nn.functional.pad(x, flat)

kernel_name = 'recurrent_scan__linear_kernel_hedgehog__dense_activation_silu__prompt'

def setup_inputs():

    _w = (lambda a: (lambda t: t.to(torch.bfloat16) if t.is_floating_point() else t)(torch.as_tensor(a)))
    def _A_setup():
        B, S, D, H = 1, 2048, 448, 16
        Dh = D // H
        return {
            "x": _w((lambda *s: torch.randn(*s, dtype=torch.bfloat16) * 0.05)(B, S, D)),
            "wqkv": _w((lambda *s: torch.randn(*s, dtype=torch.bfloat16) * 0.4)(D, 3 * D)),
            "w_phi": _w((lambda *s: torch.randn(*s, dtype=torch.bfloat16) * 0.4)(H, Dh, Dh) * (Dh ** -0.5)),
            "wo": _w((lambda *s: torch.randn(*s, dtype=torch.bfloat16) * 0.2)(D, D)),
        }
    _A_in = _A_setup()

    def _B_setup():
        B, S, D, F = 1, 2048, 448, 1792
        return {
            "x": _w((lambda *s: torch.randn(*s, dtype=torch.bfloat16) * 0.05)(B, S, D)),
            "w1": _w((lambda *s: torch.randn(*s, dtype=torch.bfloat16) * 0.4)(D, F) * (D ** -0.5)),
            "w2": _w((lambda *s: torch.randn(*s, dtype=torch.bfloat16) * 0.1)(F, D) * (F ** -0.5)),
        }
    _B_in = _B_setup()

    return {
        "A_x": _A_in["x"],
        "A_wqkv": _A_in["wqkv"],
        "A_w_phi": _A_in["w_phi"],
        "A_wo": _A_in["wo"],
        "B_x": _B_in["x"],
        "B_w1": _B_in["w1"],
        "B_w2": _B_in["w2"],
    }

def reference(A_x, A_wqkv, A_w_phi, A_wo, B_x, B_w1, B_w2):
    def _A_ref(x, wqkv, w_phi, wo):
        B, S, D = x.shape
        H = 16; Dh = D // H
        qkv = (lambda x, *d: x.permute(*d))((x @ wqkv).reshape(B, S, 3, H, Dh), 2, 0, 3, 1, 4)
        q, k, v = qkv[0], qkv[1], qkv[2]
        pq = torch.einsum("bhsd,hdf->bhsf", q, w_phi)
        pk = torch.einsum("bhsd,hdf->bhsf", k, w_phi)
        phi_q = torch.concatenate([_softmax(pq, axis=-1), _softmax(-pq, axis=-1)], axis=-1)
        phi_k = torch.concatenate([_softmax(pk, axis=-1), _softmax(-pk, axis=-1)], axis=-1)
        kv = torch.einsum("bhsf,bhsd->bhfd", phi_k, v)
        z  = torch.einsum("bhsf->bhf", phi_k)
        num = torch.einsum("bhqf,bhfd->bhqd", phi_q, kv)
        den = torch.einsum("bhqf,bhf->bhq", phi_q, z)[..., None] + 1e-6
        o = num / den
        return (lambda x, *d: x.permute(*d))(o, 0, 2, 1, 3).reshape(B, S, D) @ wo

    def _B_ref(x, w1, w2):
        h = torch.einsum("bsd,df->bsf", x, w1)
        h = _silu(h)
        out = torch.einsum("bsf,fd->bsd", h, w2)
        return out

    x = A_x
    xn = _layernorm(x, axis=-1)
    s = _A_ref(xn, A_wqkv, A_w_phi, A_wo)
    g = _silu(_B_ref(xn, B_w1, B_w2))
    return x + s * g
```

```python
import re
from contextlib import contextmanager

REG_RE = re.compile(r'\b([vas])(?:(\d+)\b|\[(\d+):(\d+)\])')
TRANS = ('v_exp_f32', 'v_log_f32', 'v_rcp_f32', 'v_rsq_f32', 'v_sqrt_f32', 'v_sin_f32', 'v_cos_f32', 'v_rcp_iflag_f32')


def regs_of(tok):
    out = []
    for m in REG_RE.finditer(tok):
        k = m.group(1)
        if m.group(2) is not None:
            out.append(k + m.group(2))
        else:
            out += [k + str(i) for i in range(int(m.group(3)), int(m.group(4)) + 1)]
    for w in ('vcc', 'exec', 'm0'):
        if re.search(r'\b' + w + r'(_lo|_hi)?\b', tok):
            out.append(w)
    return out


def split_ops(s):
    ops, depth, cur = [], 0, ''
    for ch in s:
        if ch == '[':
            depth += 1
        if ch == ']':
            depth -= 1
        if ch == ',' and depth == 0:
            ops.append(cur.strip())
            cur = ''
        else:
            cur += ch
    if cur.strip():
        ops.append(cur.strip())
    return ops


class Instr:
    __slots__ = ('text', 'op', 'dst', 'src', 'kind', 'needs', 'srcA', 'srcB', 'srcC', 'wide', 'data', 'cost', 'done', 'comment', 'nstates')

    def __init__(self, text, needs=()):
        self.text = text
        self.needs = list(needs)
        self.srcA = self.srcB = self.srcC = ()
        self.wide = False
        self.data = ()
        self.done = False
        body = text.split(';')[0].strip()
        if body.endswith(':'):
            self.op, self.kind, self.dst, self.src, self.cost, self.nstates = body, 'label', set(), set(), 0, 0
            return
        parts = body.split(None, 1)
        op = parts[0]
        rest = parts[1] if len(parts) > 1 else ''
        self.op = op
        ops = split_ops(rest)
        R = [regs_of(re.sub(r'(op_sel|op_sel_hi|neg_lo|neg_hi|offset|offset0|offset1|bitop3):\S+', '', o)) for o in ops]
        dst, src = set(), set()
        self.nstates = 1
        self.cost = 4
        if op.startswith('v_mfma'):
            self.kind = 'mfma'
            dst = set(R[0]); self.srcA = tuple(R[1]); self.srcB = tuple(R[2]); self.srcC = tuple(R[3])
            src = set(R[1]) | set(R[2]) | set(R[3])
            self.cost = 8
        elif op.startswith('v_'):
            self.kind = 'trans' if op.replace('_e32', '').replace('_e64', '') in TRANS else 'valu'
            if self.kind == 'trans':
                self.cost = 8
            if op.startswith('v_permlane32_swap') or op.startswith('v_permlane16_swap') or op.startswith('v_swap'):
                dst = set(R[0]) | set(R[1]); src = set(dst)
            elif op.startswith('v_cmp'):
                dst = set(R[0]); src = set(sum(R[1:], []))
                if op.startswith('v_cmpx'):
                    dst.add('exec')
            elif op.startswith(('v_add_co', 'v_sub_co', 'v_addc_co', 'v_subb_co', 'v_subrev_co', 'v_mad_u64', 'v_div_scale')):
                dst = set(R[0]) | set(R[1]); src = set(sum(R[2:], []))
            else:
                dst = set(R[0]); src = set(sum(R[1:], []))
                if op.startswith(('v_fmac', 'v_dot2c', 'v_pk_fmac', 'v_writelane', 'v_mac')):
                    src |= dst
                if op.startswith('v_cndmask') and len(ops) == 3:
                    src.add('vcc')
        elif op.startswith(('buffer_load', 'global_load')):
            is_lds = bool(re.search(r'\blds\b', rest)) or 'load_lds' in op
            if is_lds:
                self.kind = 'dma'; src = set(sum(R, [])) | {'m0'}
            else:
                self.kind = 'vload'; dst = set(R[0]); src = set(sum(R[1:], []))
                if 'd16' in op:
                    src |= dst
        elif op.startswith(('buffer_store', 'global_store', 'buffer_atomic', 'global_atomic')):
            self.kind = 'vstore'
            src = set(sum(R, []))
            d = R[0] if op.startswith('buffer') else R[1]
            self.data = tuple(d)
            self.wide = op.endswith(('x3', 'x4'))
            if 'atomic' in op and re.search(r'\bsc0\b', rest):
                raise ValueError('returning atomics: handle manually')
        elif op.startswith('buffer_inv') or op.startswith('buffer_wbl2'):
            self.kind = 'vstore'
        elif op.startswith('ds_read') or '_rtn_' in op or op.startswith('ds_bpermute') or op.startswith('ds_swizzle') or op.startswith('ds_permute'):
            self.kind = 'dsread'; dst = set(R[0]); src = set(sum(R[1:], []))
        elif op.startswith('ds_'):
            self.kind = 'dswrite'; src = set(sum(R, []))
        elif op.startswith(('s_load', 's_memtime', 's_memrealtime', 's_buffer_load')):
            self.kind = 'smem'; dst = set(R[0]); src = set(sum(R[1:], []))
        elif op == 's_waitcnt':
            self.kind = 'wait'
        elif op == 's_barrier':
            self.kind = 'barrier'
        elif op == 's_nop':
            self.kind = 'nop'; self.nstates = int(ops[0], 0) + 1; self.cost = 4 * self.nstates
        elif op.startswith(('s_branch', 's_cbranch', 's_endpgm', 's_setpc', 's_swappc')):
            self.kind = 'branch'; src = set(sum(R, []))
        elif op.startswith('s_'):
            self.kind = 'salu'
            if op.startswith(('s_cmp', 's_bitcmp', 's_sleep', 's_setprio')):
                src = set(sum(R, []))
            else:
                dst = set(R[0]) if R else set(); src = set(sum(R[1:], []))
                if 'saveexec' in op:
                    dst.add('exec'); src.add('exec')
                if op.startswith(('s_addk', 's_mulk', 's_bitset')):
                    src |= dst
        elif op.startswith('.'):
            self.kind = 'directive'; self.cost = 0; self.nstates = 0
        else:
            raise ValueError('unknown op ' + op)
        self.dst, self.src = dst, src


def is_valu(i):
    return i.kind in ('valu', 'trans')


class Gen:
    def __init__(self):
        self.stack = [[]]

    @property
    def cur(self):
        return self.stack[-1]

    def I(self, text, needs=()):
        ins = Instr(text, needs)
        self.cur.append(ins)
        return ins

    def label(self, name):
        return self.I(name + ':')

    @contextmanager
    def capture(self):
        lst = []
        self.stack.append(lst)
        try:
            yield lst
        finally:
            self.stack.pop()

    def extend(self, lst):
        self.cur.extend(lst)

    @staticmethod
    def insert_waits(code):
        out = []
        vm, lg = [], []
        pend = {}

        def retire(q, n):
            while len(q) > n:
                x = q.pop(0)
                x.done = True
                for r in x.dst:
                    if pend.get(r) is x:
                        del pend[r]

        for ins in code:
            if ins.kind == 'untracked':
                out.append(ins)
                continue
            if ins.kind == 'wait':
                m = re.search(r'vmcnt\((\d+)\)', ins.text)
                if m:
                    retire(vm, int(m.group(1)))
                m = re.search(r'lgkmcnt\((\d+)\)', ins.text)
                if m:
                    n = int(m.group(1))
                    if n == 0 or not any(x.kind == 'smem' for x in lg):
                        retire(lg, n)
                out.append(ins)
                continue
            need = [d for d in ins.needs if not d.done]
            for r in (ins.src | ins.dst):
                if r in pend:
                    need.append(pend[r])
            nvm, nlg = None, None
            for d in need:
                if d in vm:
                    n = len(vm) - 1 - vm.index(d)
                    nvm = n if nvm is None else min(nvm, n)
                elif d in lg:
                    n = len(lg) - 1 - lg.index(d)
                    if any(x.kind == 'smem' for x in lg):
                        n = 0
                    nlg = n if nlg is None else min(nlg, n)
                else:
                    raise ValueError('dependency on an instruction not yet issued: %s  <- %s' % (ins.text, d.text))
            if nvm is not None or nlg is not None:
                t = 's_waitcnt'
                if nvm is not None:
                    nvm = min(nvm, 63); t += ' vmcnt(%d)' % nvm; retire(vm, nvm)
                if nlg is not None:
                    nlg = min(nlg, 15); t += ' lgkmcnt(%d)' % nlg; retire(lg, nlg)
                out.append(Instr(t))
            out.append(ins)
            if ins.kind in ('vload', 'vstore', 'dma'):
                vm.append(ins)
                assert len(vm) <= 63 + 64, 'too many vm outstanding'
                for r in ins.dst:
                    pend[r] = ins
            elif ins.kind in ('dsread', 'dswrite', 'smem'):
                lg.append(ins)
                for r in ins.dst:
                    pend[r] = ins
            else:
                ins.done = True
        return out

    @staticmethod
    def hazard_need(p, c):
        n = 0
        pv = is_valu(p)
        cv = is_valu(c)
        cmem = c.kind in ('vload', 'vstore', 'dma', 'dsread', 'dswrite')
        if pv:
            pd = p.dst
            vg = {r for r in pd if r[0] in 'va' and r != 'vcc'}
            sg = {r for r in pd if r[0] == 's' or r == 'vcc'}
            if vg:
                if c.kind == 'mfma' and vg & c.src:
                    n = max(n, 2)
                if cv and c.op.startswith('v_permlane') and vg & c.src:
                    n = max(n, 2)
                if cv and c.op.startswith(('v_readfirstlane', 'v_readlane')) and vg & c.src:
                    n = max(n, 1)
                if cv and ('dpp' in c.text or 'row_' in c.text or 'quad_perm' in c.text) and vg & c.src:
                    n = max(n, 2)
                if p.kind == 'trans' and cv and vg & c.src:
                    n = max(n, 1)
                if p.op.startswith('v_dot') and (cv or cmem or c.kind == 'mfma'):
                    if c.op != p.op and vg & (c.src | c.dst):
                        n = max(n, 3)
                    elif c.op == p.op and vg & set(sum([regs_of(o) for o in split_ops(c.text.split(None, 1)[1])[1:3]], [])):
                        n = max(n, 3)
            if sg:
                if cv and sg & c.src:
                    n = max(n, 4 if c.op.startswith(('v_readlane', 'v_writelane')) else 2)
                if c.kind in ('vload', 'vstore', 'dma') and sg & c.src:
                    n = max(n, 5)
                if c.kind in ('salu', 'branch', 'smem') and sg & c.src:
                    n = max(n, 1)
            if 'exec' in pd:
                n = max(n, 5)
        if p.kind == 'mfma':
            pas = 4 if '16x16x32' in p.op else 8
            D = p.dst
            big = {4: 8, 8: 12}[pas]
            if c.kind == 'mfma':
                if D & (set(c.srcA) | set(c.srcB)):
                    n = max(n, big)
                if D & set(c.srcC):
                    same = (set(c.srcC) == D and c.op == p.op)
                    if not same:
                        n = max(n, big - 2)
                elif D & c.dst:
                    n = max(n, big - 2)
            elif cv or cmem:
                if D & (c.src | c.dst):
                    n = max(n, big)
            if cv and set(p.srcC) & c.dst:
                n = max(n, {4: 3, 8: 7}[pas])
            if c.kind in ('dsread', 'vload') and set(p.srcC) & c.dst:
                n = max(n, {4: 3, 8: 7}[pas])
        if p.kind == 'salu' and 'm0' in p.dst and c.kind == 'dma':
            n = max(n, 1)
        if p.kind == 'vstore' and p.wide and set(p.data) & c.dst:
            n = max(n, 2)
        return n

    @staticmethod
    def insert_nops(code):
        out = []
        for ins in code:
            if ins.kind in ('label', 'directive'):
                out.append(ins)
                continue
            need = 0
            dist = 0
            for p in reversed(out):
                if dist >= 14:
                    break
                if p.kind in ('label', 'directive'):
                    continue
                h = Gen.hazard_need(p, ins)
                if h - dist > need:
                    need = h - dist
                dist += p.nstates
            while need > 0:
                k = min(need, 16)
                out.append(Instr('s_nop %d' % (k - 1)))
                need -= k
            out.append(ins)
        return out

    def finish(self, code=None):
        code = self.cur if code is None else code
        code = self.insert_waits(code)
        code = self.insert_nops(code)
        return code


def render(code):
    lines = []
    for i in code:
        if i.kind == 'label':
            lines.append(i.text)
        else:
            lines.append('    ' + i.text)
    return '\n'.join(lines)


def interleave(main, fill, budget=24, start=0):
    out = []
    fi = 0
    for gi, g in enumerate(main):
        out.extend(g)
        if gi < start:
            continue
        c = sum(x.cost for x in g if x.kind != 'mfma')
        while fi < len(fill) and c + fill[fi].cost <= budget:
            out.append(fill[fi]); c += fill[fi].cost; fi += 1
    return out, fill[fi:]


def vr(a, n=1):
    return 'v%d' % a if n == 1 else 'v[%d:%d]' % (a, a + n - 1)


def ar(a, n=1):
    return 'a%d' % a if n == 1 else 'a[%d:%d]' % (a, a + n - 1)


def sr(a, n=1):
    return 's%d' % a if n == 1 else 's[%d:%d]' % (a, a + n - 1)
```

```python
import numpy as np
LOG2E = 1.4426950408889634
HSCALE = -LOG2E
WS_H = 0
WS_O = 8 << 20
WS_KV = 10 << 20
WS_FLAG = 11 << 20
WS_KVD = WS_FLAG + 16384
WS_KVZ = WS_FLAG + 24576
WS_RS = WS_FLAG + 65536
WS_STAMP = 12 << 20
WS_BYTES = 16 << 20
KV_H0 = [0, 3, 6, 9, 11, 13]
KV_NH = [3, 3, 3, 2, 2, 3]
def role(b):
    xcd = b & 7; j = b >> 3; q = xcd >> 1; s4 = j >> 3
    rb = (xcd & 1) * 8 + (j & 7)
    if s4 < 2: return (0, 2 * q + s4, rb)
    if s4 == 2: return (1, [0, 1, 2, 4][q], rb)
    if ((j >> 2) & 1) == (q >> 1): return (2, q & 1, rb)
    return (1, [3, 5][q & 1], rb)
def print_stamps(st):
    import json, os
    names = json.load(open(os.environ.get('STN', os.path.join(os.path.dirname(__file__), 'stamp_names.json'))))
    it, nb, nw, n = st.shape
    typ = np.array([role(b)[0] for b in range(256)])
    rt0 = st[:, :, :, 0]; rt1 = st[:, :, :, n - 1]
    base = rt0.min(axis=(1, 2), keepdims=True)
    print('start skew ns: med %.0f max %.0f ; end: med %.0f max %.0f' % (
        np.median((rt0 - base).max(axis=(1, 2))) * 10, ((rt0 - base).max()) * 10,
        np.median(np.median(rt1 - base, axis=(1, 2))) * 10, np.median((rt1 - base).max(axis=(1, 2))) * 10))
    for key in sorted(names):
        t = int(key[0]);
        sel = st[:, typ == t]
        if len(key) > 1:
            ch = int(key[1]); sel = sel[:, :, 4 * ch:4 * ch + 4]
        print('type', key)
        for i in range(2, n - 1):
            d = sel[:, :, :, i] - sel[:, :, :, 1]
            ok = sel[:, :, :, i] > 0
            if not ok.any(): continue
            dd = d[ok]
            nm = names[key][i] if i < len(names[key]) else ''
            dl = (sel[:, :, :, i] - sel[:, :, :, i - 1])[ok & (sel[:, :, :, i - 1] > 0)]
            print('   stamp %2d %-14s med %7.0f  p10 %7.0f  p90 %7.0f max %7.0f   delta med %6.0f' % (i, nm, np.median(dd), np.percentile(dd, 10), np.percentile(dd, 90), dd.max(), np.median(dl) if len(dl) else -1))
```

```python
import sys, json, struct, os
from asmgen import *
import layout as L
EXP = os.environ.get('EXP', '').split(',')
NAME = 'recurrent_scan__linear_kernel_hedgehog__dense_activation_silu__prompt'
def f32(x): return '0x%08x' % struct.unpack('<I', struct.pack('<f', x))[0]

S_X, S_W, S_PHI, S_WO, S_W2, S_OUT, S_DBG, S_WS = 36, 40, 44, 48, 52, 56, 60, 64
S_MASK, S_WAVE, S_IDX, S_RB, S_TYPE = 3, 4, 5, 6, 7
S_XS, S_WSO, S_EX56 = 12, 13, 14
S_MW, S_MX, S_ROW, S_NONCE = 32, 33, 34, 35
S_RT, S_CH = 68, 69
S_ST = 70
S_RG, S_CG, S_BSO, S_STA, S_A0, S_A1, S_OSO, S_NH, S_H0 = 16, 17, 18, 19, 20, 21, 22, 23, 24
S_L2E = 26
S_HIM = 28
STG = 45056; WPART = 16384
L_CS = 3 * STG
L_CP = L_CS + 1024
L_WPHI = L_CP + 8192
L_SHX = L_WPHI
L_PHI = 0
L_V = L_CP
L_STA = 57344
L_WO = 0
L_KVQ = 0
L_KVF = 65536
NV = 144
ACC, WF, XF, ST, CS, AX, AW, AS, DX, DW = 0, 64, 96, 104, 108, 112, 116, 120, 122, 124
TMP = 128; DB = 139; VLANE = 140; VL16 = 141; BT = 142

class K:
    def __init__(self, stamps):
        self.g = Gen(); self.use_stamps = stamps; self.nst = 0; self.names = {}; self.keys = ['0', '10', '11', '2']
    def I(self, t, needs=()): return self.g.I(t, needs)
    def U(self, t):
        x = self.g.I(t); x.kind = 'untracked'; return x
    def stamp(self, name, real=False):
        if not self.use_stamps: return
        i = self.nst; self.nst += 1
        assert i < 15, name
        for k in self.keys: self.names.setdefault(k, {})[i] = name
        self.I('%s %s' % ('s_memrealtime' if real else 's_memtime', sr(S_ST + 2 * i, 2)))
    def write_stamps(self, total=16):
        if not self.use_stamps: return
        I = self.I
        I('s_memrealtime %s' % sr(S_ST + 2 * (total - 1), 2))
        I('s_waitcnt lgkmcnt(0)')
        I('s_lshl_b32 s8, s2, 3'); I('s_add_u32 s8, s8, s%d' % S_WAVE); I('s_lshl_b32 s8, s8, 7')
        I('s_add_u32 s8, s8, %d' % L.WS_STAMP)
        I('v_mov_b32 v2, 0')
        I('s_mov_b64 exec, 1')
        for i in range(total):
            I('v_mov_b32 v0, s%d' % (S_ST + 2 * i)); I('v_mov_b32 v1, s%d' % (S_ST + 2 * i + 1))
            I('buffer_store_dwordx2 v[0:1], v2, %s, s8 offen offset:%d' % (sr(S_WS, 4), 8 * i))
        I('s_mov_b64 exec, -1')
    def srd(self, d, base, nbytes):
        I = self.I
        I('s_mov_b32 s%d, s%d' % (d, base)); I('s_and_b32 s%d, s%d, 0xffff' % (d + 1, base + 1))
        I('s_mov_b32 s%d, %d' % (d + 2, nbytes)); I('s_mov_b32 s%d, 0x20000' % (d + 3))

    def prologue(self):
        I = self.I
        I('s_cmp_ge_u32 s2, 256'); I('s_cbranch_scc1 L_end')
        I('s_load_dwordx16 s[16:31], s[0:1], 0'); I('s_load_dwordx4 s[32:35], s[0:1], 64')
        I('s_getpc_b64 s[8:9]')
        self.g.label('L_pc')
        I('v_lshlrev_b32 v1, 7, v0')
        I('v_min_u32 v1, L_end-L_pc, v1')
        I('global_load_dword a0, v1, s[8:9]')
        if self.use_stamps:
            for i in range(16): I('s_mov_b64 %s, 0' % sr(S_ST + 2 * i, 2))
        self.stamp('rt0', True); self.stamp('t0')
        I('v_lshrrev_b32 v1, 6, v0'); I('v_and_b32 v0, 63, v0')
        I('v_readfirstlane_b32 s%d, v1' % S_WAVE)
        I('v_mov_b32 v%d, v0' % VLANE); I('v_lshlrev_b32 v%d, 4, v0' % VL16)
        I('s_and_b32 s8, s2, 7'); I('s_lshr_b32 s9, s2, 3')
        I('s_and_b32 s10, s8, 1'); I('s_lshl_b32 s10, s10, 3'); I('s_and_b32 s11, s9, 7'); I('s_add_u32 s%d, s10, s11' % S_RB)
        I('s_lshr_b32 s8, s8, 1'); I('s_lshr_b32 s10, s9, 3')
        I('s_lshl_b32 s11, s8, 2'); I('s_add_u32 s12, s11, s10')
        I('s_mov_b32 s%d, 0' % S_TYPE); I('s_lshl_b32 s%d, s8, 1' % S_IDX); I('s_add_u32 s%d, s%d, s10' % (S_IDX, S_IDX))
        I('s_cmp_lt_u32 s10, 2'); I('s_cbranch_scc1 L_role')
        I('s_mov_b32 s%d, 1' % S_TYPE); I('s_lshr_b32 s%d, 0x4210, s11' % S_IDX); I('s_and_b32 s%d, s%d, 15' % (S_IDX, S_IDX))
        I('s_cmp_eq_u32 s10, 2'); I('s_cbranch_scc1 L_role')
        I('s_and_b32 s13, s8, 1'); I('s_lshl_b32 s%d, s13, 1' % S_IDX); I('s_add_u32 s%d, s%d, 3' % (S_IDX, S_IDX))
        I('s_bfe_u32 s11, s9, 0x10002'); I('s_lshr_b32 s8, s8, 1'); I('s_cmp_lg_u32 s11, s8'); I('s_cbranch_scc1 L_role')
        I('s_mov_b32 s%d, 2' % S_TYPE); I('s_mov_b32 s%d, s13' % S_IDX)
        self.g.label('L_role')
        I('s_lshl_b32 s8, s%d, 4' % S_RB); I('s_add_u32 s8, s8, s12'); I('s_lshl_b32 s8, s8, 3'); I('s_add_u32 s11, s8, s%d' % S_WAVE)
        I('s_mov_b32 s%d, -1' % S_EX56); I('s_mov_b32 s%d, 0x00ffffff' % (S_EX56 + 1))
        I('s_and_b32 s%d, s%d, 3' % (S_RT, S_WAVE)); I('s_lshr_b32 s%d, s%d, 2' % (S_CH, S_WAVE))
        I('s_mov_b32 s%d, 0xffff0000' % S_MASK)
        I('v_lshrrev_b32 v2, 3, v0'); I('v_mul_u32_u24 v2, 896, v2')
        I('v_lshrrev_b32 v3, 4, v0'); I('v_and_b32 v4, 7, v0'); I('v_xor_b32 v4, v4, v3')
        I('v_lshl_add_u32 v%d, v4, 4, v2' % DX)
        I('v_xor_b32 v4, 4, v4'); I('v_lshl_add_u32 v%d, v4, 4, v2' % (DX + 1)); I('v_add_u32 v%d, %d, v%d' % (DX + 1, 8 * 896 - 1024, DX + 1))
        I('s_lshl_b32 s8, s%d, 3' % S_RB); I('s_add_u32 s8, s8, s%d' % S_WAVE); I('s_mul_i32 s%d, s8, %d' % (S_XS, 16 * 896))
        I('v_cmp_lt_u32 vcc, 27, v0'); I('v_subrev_u32 v7, 28, v0'); I('v_cndmask_b32 v7, v0, v7, vcc'); I('v_cndmask_b32 v6, 0, 1, vcc')
        I('v_cmp_gt_u32 vcc, 56, v0'); I('v_mov_b32 v5, 0x7fffffff'); I('v_cndmask_b32 v5, v5, v%d, vcc' % VL16)
        I('s_waitcnt lgkmcnt(0)')
        self.srd(S_X, 16, 2048 * 896)
        self.srd(S_WS, 34, L.WS_BYTES); self.srd(S_DBG, 32, 256)
        I('s_mov_b32 s%d, s11' % S_ROW)
        I('s_lshl_b32 s%d, s%d, 11' % (S_MX, S_WAVE))
        I('s_mul_i32 s%d, s%d, %d' % (S_MW, S_WAVE, 8 * 448)); I('s_add_u32 s%d, s%d, %d' % (S_MW, S_MW, WPART))

    def start_stream(self, gpitch):
        I = self.I
        for i in range(1, 4): I('v_add_u32 v%d, %d, v%d' % (DW + i, i * (2 * gpitch - 896), DW))
        I('s_mul_i32 s8, s%d, %d' % (S_WAVE, 8 * gpitch)); I('s_add_u32 s%d, s%d, s8' % (S_WSO, S_WSO))
        d = {}
        grps, d[0] = self.stage_dma(0, gpitch)
        for gp in grps: self.g.extend(gp)
        I('s_mul_i32 s8, s%d, 896' % S_ROW)
        I('buffer_load_dwordx4 %s, v5, %s, s8 offen' % (vr(XF, 4), sr(S_X, 4)))
        lab = 'L_nonon%d' % len(self.g.cur) + str(gpitch) + self.tagbase
        I('s_or_b32 s8, s2, s%d' % S_WAVE); I('s_cmp_lg_u32 s8, 0'); I('s_cbranch_scc1 %s' % lab)
        self.U('s_memrealtime s[8:9]'); self.U('s_waitcnt lgkmcnt(0)'); I('s_or_b32 s8, s8, 1'); I('v_mov_b32 v8, s8'); I('v_mov_b32 v9, 0')
        I('s_mov_b64 exec, 1'); self.U('buffer_store_dword v8, v9, %s, 0 offen sc1' % sr(S_DBG, 4)); I('s_mov_b64 exec, -1')
        self.g.label(lab)
        grps, d[1] = self.stage_dma(1, gpitch)
        for gp in grps: self.g.extend(gp)
        return d

    def late_srds(self):
        I = self.I
        self.srd(S_PHI, 20, 16 * 28 * 28 * 2); self.srd(S_WO, 22, 448 * 896); self.srd(S_W2, 28, 1792 * 896)
        self.srd(S_OUT, 30, 2048 * 896)
        I('s_mov_b32 s%d, %s' % (S_L2E, f32(L.LOG2E))); I('s_mov_b32 s%d, %s' % (S_L2E + 1, f32(L.LOG2E)))
        I('s_mov_b32 s%d, 0' % S_HIM); I('s_mov_b32 s%d, -1' % (S_HIM + 1))
        I('s_mov_b32 s31, 0')

    def p2_setup(self):
        I = self.I; T = TMP
        I('s_lshr_b32 s9, s2, 3'); I('s_and_b32 s8, s9, 3'); I('s_add_u32 s8, s8, 24'); I('s_cmp_lt_u32 s9, 24'); I('s_cselect_b32 s9, s9, s8')
        I('s_mul_i32 s8, s9, 37'); I('s_lshr_b32 s8, s8, 8'); I('s_mul_i32 s10, s8, 7'); I('s_sub_u32 s%d, s9, s10' % S_CG)
        I('s_and_b32 s10, s2, 7'); I('s_lshl_b32 s10, s10, 2'); I('s_add_u32 s%d, s10, s8' % S_RG)
        I('s_mul_i32 s%d, s%d, %d' % (S_BSO, S_WAVE, 224 * 896)); I('s_lshl_b32 s8, s%d, 7' % S_CG); I('s_add_u32 s%d, s%d, s8' % (S_BSO, S_BSO))
        I('s_lshl_b32 s%d, s%d, 12' % (S_STA, S_WAVE)); I('s_add_u32 s%d, s%d, %d' % (S_STA, S_STA, L_STA))
        I('v_lshrrev_b32 v%d, 3, v0' % T); I('v_mul_u32_u24 v%d, 896, v%d' % (T, T))
        I('v_lshrrev_b32 v%d, 2, v0' % (T + 1)); I('v_and_b32 v%d, 4, v%d' % (T + 1, T + 1)); I('v_and_b32 v%d, 7, v0' % (T + 2))
        I('v_xor_b32 v%d, v%d, v%d' % (T + 1, T + 1, T + 2)); I('v_lshl_add_u32 v%d, v%d, 4, v%d' % (DB, T + 1, T))
        I('v_lshrrev_b32 v%d, 5, v0' % T); I('v_lshlrev_b32 v%d, 2, v%d' % (T, T)); I('v_bfe_u32 v%d, v0, 2, 2' % (T + 1)); I('v_add_u32 v%d, v%d, v%d' % (T, T, T + 1))
        I('v_lshlrev_b32 v%d, 7, v%d' % (T, T)); I('v_add_u32 v%d, s%d, v%d' % (T, S_STA, T))
        I('v_and_b32 v%d, 3, v0' % (T + 1)); I('v_lshlrev_b32 v%d, 3, v%d' % (T + 1, T + 1))
        I('v_and_b32 v%d, 16, v0' % (T + 2)); I('v_lshl_add_u32 v%d, v%d, 1, v%d' % (T + 1, T + 2, T + 1))
        I('v_and_b32 v%d, 8, v0' % (T + 2)); I('v_lshlrev_b32 v%d, 3, v%d' % (T + 2, T + 2)); I('v_xor_b32 v%d, v%d, v%d' % (T + 1, T + 1, T + 2))
        I('s_and_b32 s8, s%d, 1' % S_WAVE); I('s_lshl_b32 s8, s8, 6'); I('s_lshl_b32 s9, s%d, 5' % S_CH); I('s_or_b32 s8, s8, s9')
        I('v_xor_b32 v%d, s8, v%d' % (T + 1, T + 1)); I('v_add_u32 v%d, v%d, v%d' % (BT, T, T + 1))
        I('v_xor_b32 v%d, 64, v%d' % (T + 1, T + 1)); I('v_add_u32 v%d, v%d, v%d' % (BT + 1, T, T + 1))

    SLOTOFF = [0, 2048, 32768, 34816]
    def b_dma(self, k, needs=()):
        g = self.g; I = self.I; so = self.SLOTOFF[k % 4]; grps = []
        for h in range(2):
            with g.capture() as a:
                I('s_add_u32 m0, s%d, %d' % (S_STA, so + 1024 * h)); I('s_add_u32 s8, s%d, %d' % (S_BSO, (16 * k + 8 * h) * 896))
                I('buffer_load_dwordx4 v%d, %s, s8 offen lds' % (DB, sr(S_W2, 4)), needs=needs)
            grps.append(a)
        self.bdma[k] = [x for gp in grps for x in gp if x.kind == 'dma']
        return grps
    def b_read(self, k):
        so = self.SLOTOFF[k % 4]; out = []
        for b in range(2):
            for h in range(2):
                out.append(Instr('ds_read_b64_tr_b16 %s, v%d offset:%d' % (ar(8 * k + 4 * b + 2 * h, 2), BT + b, so + 1024 * h), needs=self.bdma[k]))
        self.bread[k] = out
        return out
    def b_tasks(self, k0, k1):
        t = []
        for k in range(k0, k1):
            t.append(self.b_read(k))
            if k + 4 < 14: t += self.b_dma(k + 4, needs=self.bread[k])
        return t

    def stage_dma(self, st, gpitch):
        g = self.g; I = self.I; base = (st % 3) * STG
        grps = []
        for i in range(4):
            with g.capture() as a:
                if i == 0: I('s_add_u32 m0, s%d, %d' % (S_MW, base))
                else: I('s_add_u32 m0, s%d, %d' % (S_MW, base))
                I('s_mov_b64 exec, %s' % sr(S_EX56, 2))
                I('buffer_load_dwordx4 v%d, %s, s%d offen offset:%d lds' % (DW + i, sr(S_W, 4), S_WSO, 896 * i))
                I('s_mov_b64 exec, -1')
                if i == 3: I('s_add_u32 s%d, s%d, %d' % (S_WSO, S_WSO, 64 * gpitch))
            grps.append(a)
        for i in range(2):
            with g.capture() as a:
                I('s_add_u32 m0, s%d, %d' % (S_MX, base)); I('s_nop 0')
                I('buffer_load_dwordx4 v%d, %s, s%d offen offset:%d lds' % (DX + i, sr(S_X, 4), S_XS, 1024 * i))
                if i == 1: I('s_add_u32 s%d, s%d, 128' % (S_XS, S_XS))
            grps.append(a)
        return grps, [x for gp in grps for x in gp if x.kind == 'dma']

    def read_addrs(self, clamp, shared=False):
        I = self.I; T = TMP
        I('v_and_b32 v%d, 31, v0' % T); I('v_lshlrev_b32 v%d, 7, v%d' % (T, T)); I('s_lshl_b32 s8, s%d, 12' % S_RT); I('v_add_u32 v%d, s8, v%d' % (T, T))
        I('v_lshrrev_b32 v%d, 5, v0' % (T + 1)); I('v_bfe_u32 v%d, v0, 1, 3' % (T + 2)); I('v_xor_b32 v%d, v%d, v%d' % (T + 2, T + 2, T + 1))
        I('v_lshlrev_b32 v%d, 3, v%d' % (T + 3, T + 1)); I('v_bfe_u32 v%d, v0, 2, 2' % (T + 4)); I('v_add_u32 v%d, v%d, v%d' % (T + 3, T + 3, T + 4))
        I('v_mul_u32_u24 v%d, 448, v%d' % (T + 3, T + 3))
        I('v_bfe_u32 v%d, v0, 4, 1' % (T + 4)); I('v_and_b32 v%d, 3, v0' % (T + 5)); I('v_lshl_add_u32 v%d, v%d, 2, v%d' % (T + 4, T + 4, T + 5))
        if shared:
            I('s_lshl_b32 s8, s%d, 2' % S_CH); I('v_xor_b32 v%d, s8, v%d' % (T + 6, T + 4)); I('v_lshl_add_u32 v%d, v%d, 3, v%d' % (T + 6, T + 6, T + 3))
            I('v_add_u32 v%d, %d, v%d' % (T + 6, WPART + 384, T + 6))
        if clamp: I('v_min_u32 v%d, 6, v%d' % (T + 4, T + 4))
        I('v_lshl_add_u32 v%d, v%d, 3, v%d' % (T + 3, T + 4, T + 3))
        I('v_add_u32 v%d, s10, v%d' % (T + 3, T + 3))
        for i in range(4):
            I('s_add_u32 s8, s%d, s%d' % (S_RT, S_CH)); I('s_add_u32 s8, s8, %d' % i); I('s_and_b32 s8, s8, 3')
            I('s_lshl_b32 s9, s8, 1'); I('v_xor_b32 v%d, s9, v%d' % (T + 5, T + 2)); I('v_lshl_add_u32 v%d, v%d, 4, v%d' % (AX + i, T + 5, T))
            I('s_mul_i32 s9, s8, 7168'); I('v_add_u32 v%d, s9, v%d' % (AW + i, T + 3))
            if shared and i in (0, 2): I('v_add_u32 v%d, s9, v%d' % (AS + i // 2, T + 6))

    def row_stats(self):
        I = self.I; S, Q = ST, ST + 1
        I('s_mov_b32 s8, 0x3f803f80')
        I('v_dot2_f32_bf16 v%d, v%d, s8, 0' % (S, XF)); I('v_dot2_f32_bf16 v%d, v%d, v%d, 0' % (Q, XF, XF))
        for q in range(1, 4):
            I('v_dot2_f32_bf16 v%d, v%d, s8, v%d' % (S, XF + q, S)); I('v_dot2_f32_bf16 v%d, v%d, v%d, v%d' % (Q, XF + q, XF + q, Q))
        for m in ('row_shr:1', 'row_shr:2', 'row_shr:4', 'row_shr:8'):
            for r in (S, Q): I('v_add_f32_dpp v%d, v%d, v%d %s row_mask:0xf bank_mask:0xf bound_ctrl:0' % (r, r, r, m))
        for m, rm in (('row_bcast:15', '0xa'), ('row_bcast:31', '0xc')):
            for r in (S, Q): I('v_add_f32_dpp v%d, v%d, v%d %s row_mask:%s bank_mask:0xf' % (r, r, r, m, rm))
        I('v_mul_f32 v%d, %s, v%d' % (S, f32(1.0 / 448), S)); I('v_mul_f32 v%d, %s, v%d' % (Q, f32(1.0 / 448), Q))
        I('v_fma_f32 v%d, -v%d, v%d, v%d' % (Q, S, S, Q)); I('v_max_f32 v%d, 0, v%d' % (Q, Q))
        def rbf(r):
            I('v_cvt_pk_bf16_f32 v%d, v%d, v%d' % (r, r, r)); I('v_lshlrev_b32 v%d, 16, v%d' % (r, r))
        rbf(S); rbf(Q)
        I('v_add_f32 v%d, %s, v%d' % (Q, f32(1e-5), Q)); rbf(Q)
        I('v_sqrt_f32 v%d, v%d' % (Q, Q)); rbf(Q)
        I('v_rcp_f32 v%d, v%d' % (Q, Q))
        I('v_sub_f32 v%d, 0, v%d' % (S, S))

    def nonce_issue(self):
        self.I('v_mov_b32 v%d, 0' % (ST + 3))
        return self.I('buffer_load_dword v%d, v%d, %s, 0 offen sc1' % (ST + 2, ST + 3, sr(S_DBG, 4)))
    def nonce_get_publish(self, tag):
        I = self.I; U = self.U
        I('v_readfirstlane_b32 s%d, v%d' % (S_NONCE, ST + 2))
        I('s_cmp_lg_u32 s%d, 0' % S_NONCE); I('s_cbranch_scc1 L_gotn%s' % tag)
        self.g.label('L_spinn%s' % tag)
        U('buffer_load_dword v%d, v%d, %s, 0 offen sc1' % (ST + 2, ST + 3, sr(S_DBG, 4)))
        U('s_waitcnt vmcnt(0)')
        I('v_readfirstlane_b32 s%d, v%d' % (S_NONCE, ST + 2)); I('s_nop 1')
        I('s_cmp_lg_u32 s%d, 0' % S_NONCE); I('s_cbranch_scc1 L_gotn%s' % tag)
        self.spin_tail('L_spinn%s' % tag)
        self.g.label('L_gotn%s' % tag)
        I('v_mov_b32 v%d, s%d' % (ST + 2, S_NONCE)); I('v_mov_b32 v%d, s%d' % (ST + 3, S_NONCE))
        I('s_lshl_b32 s8, s%d, 4' % S_ROW); I('s_add_u32 s8, s8, %d' % L.WS_RS); I('v_mov_b32 v%d, 0' % (TMP + 8))
        I('s_mov_b32 exec_lo, 0'); I('s_mov_b32 exec_hi, 0x80000000')
        I('buffer_store_dwordx4 %s, v%d, %s, s8 offen sc1' % (vr(ST, 4), TMP + 8, sr(S_WS, 4)))
        I('s_mov_b64 exec, -1')
    def rs_issue(self):
        I = self.I
        I('s_lshl_b32 s8, s%d, 2' % S_RB); I('s_add_u32 s8, s8, s%d' % S_RT); I('s_lshl_b32 s8, s8, 9'); I('s_add_u32 s%d, s8, %d' % (S_ROW, L.WS_RS))
        I('v_and_b32 v%d, 31, v%d' % (DX, VLANE)); I('v_lshlrev_b32 v%d, 4, v%d' % (DX, DX))
        return I('buffer_load_dwordx4 %s, v%d, %s, s%d offen sc1' % (vr(ST, 4), DX, sr(S_WS, 4), S_ROW))
    def rs_get(self, tag, scale):
        I = self.I; U = self.U
        I('v_cmp_ne_u32 vcc, s%d, v%d' % (S_NONCE, ST + 2)); I('s_nop 1'); I('s_cbranch_vccz L_gotr%s' % tag)
        self.g.label('L_spinr%s' % tag)
        U('buffer_load_dwordx4 %s, v%d, %s, s%d offen sc1' % (vr(ST, 4), DX, sr(S_WS, 4), S_ROW))
        U('s_waitcnt vmcnt(0)')
        I('v_cmp_ne_u32 vcc, s%d, v%d' % (S_NONCE, ST + 2)); I('s_nop 1'); I('s_cbranch_vccz L_gotr%s' % tag)
        self.spin_tail('L_spinr%s' % tag)
        self.g.label('L_gotr%s' % tag)
        I('v_mov_b32 v%d, v%d' % (ST + 2, ST)); I('v_mov_b32 v%d, v%d' % (ST + 3, ST))
        I('v_mul_f32 v%d, %s, v%d' % (ST, f32(scale), ST + 1)); I('v_mov_b32 v%d, v%d' % (ST + 1, ST))
    def publish(self, soff_s, tmp):
        I = self.I
        I('v_mov_b32 v%d, s%d' % (tmp, S_NONCE)); I('v_mov_b32 v%d, 0' % (tmp + 1)); I('s_mov_b64 exec, 1')
        x = I('buffer_store_dword v%d, v%d, %s, s%d offen sc1' % (tmp, tmp + 1, sr(S_WS, 4), soff_s))
        I('s_mov_b64 exec, -1')
        return x
    def poll(self, tag, voff, soff_s, tmp):
        I = self.I; U = self.U
        self.g.label('L_poll%s' % tag)
        U('buffer_load_dword v%d, v%d, %s, s%d offen sc1' % (tmp, voff, sr(S_WS, 4), soff_s))
        I('s_waitcnt vmcnt(0)')
        I('v_cmp_ne_u32 vcc, s%d, v%d' % (S_NONCE, tmp)); I('s_nop 1'); I('s_cbranch_vccz L_polld%s' % tag)
        self.spin_tail('L_poll%s' % tag)
        self.g.label('L_polld%s' % tag)
    def spin_tail(self, lab):
        I = self.I
        I('s_add_u32 s31, s31, 1'); I('s_cmp_lt_u32 s31, 0x8000'); I('s_cbranch_scc1 %s' % lab)

    def gemm(self, tiles, gpitch, dms, tag, hooks):
        g = self.g; I = self.I
        dmas = dict(dms)
        for i in range(4): I('v_mov_b32 v%d, 0' % (CS + i))
        NF, LOOK = 8, 4
        seq = [(ks, cc) for ks in range(28) for cc in range(len(tiles[ks & 3]['t']))]
        def wread(n):
            ks, cc = seq[n]; a = WF + 4 * (n % NF); c, areg, off = tiles[ks & 3]['t'][cc]
            return [Instr('ds_read_b64_tr_b16 %s, v%d offset:%d' % (vr(a + 2 * h, 2), areg, off + h * 4 * 448)) for h in range(2)]
        def xread(ks):
            return [Instr('ds_read_b128 %s, v%d' % (vr(XF + 4 * (ks % 2), 4), AX + (ks & 3)))]
        aregs = sorted(set(list(range(AX, AX + 4)) + [t[1] for p in tiles for t in p['t']]))
        def adv(st):
            d = STG if st % 3 else -2 * STG
            return [Instr('v_add_u32 v%d, %d, v%d' % (r, d, r)) if d > 0 else Instr('v_subrev_u32 v%d, %d, v%d' % (r, -d, r)) for r in aregs]
        tc = [0]
        def cs_ops(r, c):
            t = TMP + 2 * (tc[0] % 4); tc[0] += 1
            return [Instr('v_lshlrev_b32 v%d, 16, v%d' % (t, r)), Instr('v_and_b32 v%d, s%d, v%d' % (t + 1, S_MASK, r)),
                    Instr('v_add_f32 v%d, v%d, v%d' % (CS + c, CS + c, t)), Instr('v_add_f32 v%d, v%d, v%d' % (CS + c, CS + c, t + 1))]
        I('s_barrier', needs=dmas[0])
        self.stamp('bar0')
        g.extend(xread(0))
        for n in range(LOOK): g.extend(wread(n))
        self.nonce_issue()
        pend, dmas[2] = self.stage_dma(2, gpitch)
        started = set(); xr = 0; cfill = []
        for n, (ks, cc) in enumerate(seq):
            p = tiles[ks & 3]; c = p['t'][cc][0]; a = WF + 4 * (n % NF); xf = XF + 4 * (ks % 2)
            I('v_mfma_f32_32x32x16_bf16 %s, %s, %s, %s' % (vr(ACC + 16 * c, 16), vr(a, 4), vr(xf, 4), vr(ACC + 16 * c, 16) if c in started else '0'))
            started.add(c)
            nn = n + LOOK
            if nn < len(seq):
                ks2, cc2 = seq[nn]
                if cc2 == 0 and ks2 & 3 == 0:
                    st2 = ks2 >> 2
                    assert xr == ks2 - 1
                    g.extend(adv(st2))
                    if st2 == 1: self.nonce_get_publish(tag)
                    if st2 == 6: self.rs_issue()
                    if st2 in hooks.get('pre', {}): hooks['pre'][st2]()
                    I('s_waitcnt lgkmcnt(0)')
                    I('s_barrier', needs=dmas[st2])
                    if st2 + 2 < 7:
                        newg, dmas[st2 + 2] = self.stage_dma(st2 + 2, gpitch); pend += newg
                    if st2 in hooks.get('post', {}): pend += hooks['post'][st2]()
                g.extend(wread(nn))
            if xr == ks and ks + 1 < 28 and (nn >= len(seq) or seq[min(nn, len(seq) - 1)][0] >= ks + 1):
                g.extend(xread(ks + 1)); xr = ks + 1
            if cc == 0 and p['cs']: cfill = [cs_ops(a + q, c) for q in range(4)]
            if cfill:
                g.extend(cfill.pop(0))
                if cc == len(p['t']) - 1:
                    for x in cfill: g.extend(x)
                    cfill = []
            if pend and (n % 2 == 0 or len(pend) > 6): g.extend(pend.pop(0))
        for x in pend: g.extend(x)
        self.stamp('loopend')

    def finish_stats(self, cp_tiles, scale, tile0_s, tag, before_b1=None, after_b1=None):
        I = self.I; T = TMP
        I('s_lshl_b32 s8, s%d, 10' % tile0_s); I('s_lshl_b32 s9, s%d, 8' % S_RT); I('s_add_u32 s8, s8, s9'); I('s_add_u32 s8, s8, %d' % L_CP)
        I('v_lshlrev_b32 v%d, 2, v%d' % (T, VLANE)); I('v_add_u32 v%d, s8, v%d' % (T + 1, T))
        wr = [I('ds_write_b32 v%d, v%d offset:%d' % (T + 1, CS + c, 1024 * c)) for c in cp_tiles]
        if before_b1: wr += before_b1()
        I('s_lshl_b32 s8, s%d, 10' % S_WAVE); I('s_add_u32 s8, s8, %d' % L_CP); I('v_add_u32 v%d, s8, v%d' % (T + 1, T))
        I('s_barrier', needs=wr)
        for r in range(4): I('ds_read_b32 v%d, v%d offset:%d' % (CS + r, T + 1, 256 * r))
        if after_b1: after_b1()
        I('s_lshl_b32 s8, s%d, 7' % S_WAVE); I('s_add_u32 s8, s8, %d' % L_CS); I('v_and_b32 v%d, 124, v%d' % (T, T)); I('v_add_u32 v%d, s8, v%d' % (T, T))
        I('v_add_f32 v%d, v%d, v%d' % (CS, CS, CS + 1)); I('v_add_f32 v%d, v%d, v%d' % (CS + 2, CS + 2, CS + 3)); I('v_add_f32 v%d, v%d, v%d' % (CS, CS, CS + 2))
        I('v_mov_b32 v%d, v%d' % (CS + 1, CS)); I('v_permlane32_swap_b32 v%d, v%d' % (CS, CS + 1)); I('v_add_f32 v%d, v%d, v%d' % (CS, CS, CS + 1))
        w2 = I('ds_write_b32 v%d, v%d' % (T, CS))
        self.rs_get(tag, scale)
        I('v_lshrrev_b32 v%d, 5, v%d' % (T, VLANE)); I('v_lshlrev_b32 v%d, 4, v%d' % (T, T))
        I('s_lshl_b32 s8, s%d, 7' % tile0_s); I('s_add_u32 s8, s8, %d' % L_CS); I('v_add_u32 v%d, s8, v%d' % (AX, T))
        I('s_barrier', needs=[w2])
        self.stamp('stats')
    def cs_read(self, off, dst, nq=4, areg=AX):
        return [self.I('ds_read_b128 %s, v%d offset:%d' % (vr(dst + 4 * q, 4), areg, off + 32 * q)) for q in range(nq)]

    def with_bg(self, fn, tasks, every):
        with self.g.capture() as body:
            fn()
        out = []; tasks = list(tasks); cnt = 0
        for x in body:
            out.append(x); cnt += 1
            if tasks and cnt >= every and x.kind in ('valu', 'trans') and not (x.dst & {'vcc'}):
                out += tasks.pop(0); cnt = 0
        for t in tasks: out += t
        self.g.extend(out)

    def ffn(self):
        I = self.I; g = self.g
        self.tagbase = 'f'
        self.srd(S_W, 26, 448 * 3584)
        I('v_mul_u32_u24 v6, 3584, v6'); I('v_lshl_add_u32 v%d, v7, 4, v6' % DW)
        I('s_mul_i32 s%d, s%d, 448' % (S_WSO, S_IDX))
        dms = self.start_stream(3584)
        I('s_mul_i32 s10, s%d, 192' % S_CH); I('s_add_u32 s10, s10, %d' % WPART)
        self.read_addrs(False, shared=True)
        self.late_srds(); self.p2_setup()
        self.row_stats()
        own = lambda i, o: [(c, AW + i, 64 * c) for c in o]
        tiles = [dict(t=[(3, AS, 0)] + own(0, [0, 1, 2]), cs=True), dict(t=own(1, [0, 1, 2]), cs=True),
                 dict(t=own(2, [1, 2, 0]) + [(3, AS + 1, 0)], cs=True), dict(t=own(3, [2, 0, 1]), cs=True)]
        self.bdma, self.bread = {}, {}
        self.gemm(tiles, 3584, dms, 'f', dict(post={5: lambda: self.b_dma(0) + self.b_dma(1), 6: lambda: self.b_dma(2) + self.b_dma(3)}))
        I('s_mul_i32 s11, s%d, 3' % S_CH)
        SH = ACC + 48
        def before_b1():
            T = TMP
            I('s_add_u32 s8, s%d, 6' % S_CH); I('s_lshl_b32 s8, s8, 10'); I('s_lshl_b32 s9, s%d, 8' % S_RT); I('s_add_u32 s8, s8, s9'); I('s_add_u32 s8, s8, %d' % L_CP)
            I('v_add_u32 v%d, s8, v%d' % (T + 2, T))
            w = [I('ds_write_b32 v%d, v%d' % (T + 2, CS + 3))]
            I('s_xor_b32 s8, s%d, 4' % S_WAVE); I('s_lshl_b32 s8, s8, 11'); I('s_add_u32 s8, s8, %d' % L_SHX); I('v_add_u32 v%d, s8, v%d' % (T + 2, VL16))
            w += [I('ds_write_b128 v%d, %s offset:%d' % (T + 2, vr(SH + 8 + 4 * q, 4), 1024 * q)) for q in range(2)]
            I('s_lshl_b32 s8, s%d, 11' % S_WAVE); I('s_add_u32 s8, s8, %d' % L_SHX); I('v_add_u32 v%d, s8, v%d' % (T + 2, VL16))
            return w
        def after_b1():
            for q in range(2): I('ds_read_b128 %s, v%d offset:%d' % (vr(SH + 8 + 4 * q, 4), TMP + 2, 1024 * q))
        self.finish_stats([0, 1, 2], -L.LOG2E, 11, 'f', before_b1, after_b1)
        I('s_lshl_b32 s8, s%d, 2' % S_RB); I('s_add_u32 s8, s8, s%d' % S_RT); I('s_mul_i32 s9, s8, %d' % (112 * 1024))
        I('s_mul_i32 s10, s%d, %d' % (S_IDX, 14 * 1024)); I('s_add_u32 s9, s9, s10')
        I('s_mul_i32 s10, s%d, 6144' % S_CH); I('s_add_u32 s10, s9, s10')
        I('s_lshl_b32 s11, s%d, 10' % S_CH); I('s_add_u32 s9, s9, s11'); I('s_add_u32 s9, s9, %d' % (12 * 1024))
        I('s_mul_i32 s11, s%d, 320' % S_CH); I('v_subrev_u32 v%d, s11, v%d' % (AX + 1, AX))
        CB = [64, 80]
        def epi():
            self.cs_read(0, CB[0])
            units = [(c, u) for c in range(3) for u in range(2)] + [(3, 0)]
            for idx, (c, u) in enumerate(units):
                if u == 0 and c < 2: self.cs_read(128 * (c + 1), CB[(c + 1) & 1])
                if u == 0 and c == 2: self.cs_read(768, CB[1], nq=2, areg=AX + 1)
                A = ACC + 16 * c + 8 * u; C = CB[c & 1] + 8 * u; T = [96, 128][idx & 1]; P = [116, 120][idx & 1]
                if c == 3:
                    for j in range(0, 8, 2): I('v_pk_add_f32 %s, %s, %s' % (vr(A + j, 2), vr(A + j, 2), vr(A + 8 + j, 2)))
                for j in range(0, 8, 2): I('v_pk_fma_f32 %s, %s, %s, %s' % (vr(A + j, 2), vr(C + j, 2), vr(ST + 2, 2), vr(A + j, 2)))
                for j in range(0, 8, 2): I('v_pk_mul_f32 %s, %s, %s' % (vr(A + j, 2), vr(A + j, 2), vr(ST, 2)))
                for j in range(8): I('v_exp_f32 v%d, v%d' % (T + j, A + j))
                for j in range(0, 8, 2): I('v_pk_add_f32 %s, %s, 1.0 op_sel_hi:[1,0]' % (vr(T + j, 2), vr(T + j, 2)))
                for j in range(8): I('v_rcp_f32 v%d, v%d' % (T + j, T + j))
                for j in range(0, 8, 2): I('v_pk_mul_f32 %s, %s, %s' % (vr(T + j, 2), vr(T + j, 2), vr(A + j, 2)))
                for j in range(0, 8, 2): I('v_cvt_pk_bf16_f32 v%d, v%d, v%d' % (P + j // 2, T + j, T + j + 1))
                if idx == 4: I('s_add_u32 s10, s10, 4096')
                if c < 3: I('buffer_store_dwordx4 %s, v%d, %s, s10 offen offset:%d sc1' % (vr(P, 4), VL16, sr(S_WS, 4), (idx % 4) * 1024))
                else: I('buffer_store_dwordx4 %s, v%d, %s, s9 offen sc1' % (vr(P, 4), VL16, sr(S_WS, 4)))
        self.with_bg(epi, self.b_tasks(0, 6), 14)
        self.stamp('epi')
        I('s_lshl_b32 s8, s%d, 1' % S_RB); I('s_lshr_b32 s9, s%d, 1' % S_RT); I('s_add_u32 s8, s8, s9'); I('s_lshl_b32 s8, s8, 8')
        I('s_and_b32 s9, s%d, 1' % S_RT); I('s_lshl_b32 s9, s9, 6'); I('s_add_u32 s8, s8, s9')
        I('s_lshl_b32 s9, s%d, 3' % S_IDX); I('s_add_u32 s8, s8, s9'); I('s_lshl_b32 s9, s%d, 2' % S_CH); I('s_add_u32 s8, s8, s9'); I('s_add_u32 s11, s8, %d' % L.WS_FLAG)
        I('s_waitcnt vmcnt(0)')
        self.publish(11, TMP)
        self.stamp('pub')
        for t in self.b_tasks(6, 14): g.extend(t)
        I('s_branch L_p2') if 'nop2' not in EXP else None

    def correct(self, A, C, last):
        I = self.I
        for j in range(0, 16, 2): I('v_pk_fma_f32 %s, %s, %s, %s' % (vr(A + j, 2), vr(C + j, 2), vr(ST + 2, 2), vr(A + j, 2)))
        for j in range(0, 12, 2): I('v_pk_mul_f32 %s, %s, %s' % (vr(A + j, 2), vr(A + j, 2), vr(ST, 2)))
        for j in (12, 14):
            if last == 'z': I('v_pk_mul_f32 %s, %s, %s op_sel_hi:[1,0]' % (vr(A + j, 2), vr(A + j, 2), vr(CS, 2)))
            else: I('v_pk_fma_f32 %s, %s, %s, %s op_sel:[0,0,1] op_sel_hi:[1,0,1]' % (vr(A + j, 2), vr(A + j, 2), vr(CS, 2), vr(CS, 2)))
    def mask_consts(self):
        I = self.I
        I('v_cndmask_b32 v%d, v%d, 0, %s' % (CS, ST, sr(S_HIM, 2))); I('v_cndmask_b32 v%d, 0, 1.0, %s' % (CS + 1, sr(S_HIM, 2)))
    def softmax_unit(self, A, C, WP):
        I = self.I
        K8, EP, EN, M = 94, 78 + 2, 112 + 2, TMP
        EP, EN = 80, 112
        K8 = 96
        self.correct(A, C, 'z')
        for j in range(8): I('v_cvt_pk_bf16_f32 v%d, v%d, v%d' % (K8 + j, A + 2 * j, A + 2 * j + 1))
        I('v_mfma_f32_32x32x16_bf16 %s, %s, %s, 0' % (vr(A, 16), ar(WP, 4), vr(K8, 4)))
        I('v_mfma_f32_32x32x16_bf16 %s, %s, %s, %s' % (vr(A, 16), ar(WP + 4, 4), vr(K8 + 4, 4), vr(A, 16)))
        mx, nm, t, u = M, M + 1, M + 2, M + 4
        I('v_max3_f32 v%d, v%d, v%d, v%d' % (mx, A, A + 1, A + 2)); I('v_max3_f32 v%d, -v%d, -v%d, -v%d' % (nm, A, A + 1, A + 2))
        for j in range(3, 15, 2):
            I('v_max3_f32 v%d, v%d, v%d, v%d' % (mx, mx, A + j, A + j + 1)); I('v_max3_f32 v%d, v%d, -v%d, -v%d' % (nm, nm, A + j, A + j + 1))
        I('v_max_f32 v%d, v%d, v%d' % (mx, mx, A + 15)); I('v_max_f32 v%d, -v%d, v%d' % (nm, A + 15, nm))
        I('v_permlane32_swap_b32 v%d, v%d' % (mx, nm)); I('v_max_f32 v%d, v%d, v%d' % (t, mx, nm))
        I('v_mul_f32 v%d, %s, v%d' % (t, f32(-L.LOG2E), t)); I('v_mov_b32 v%d, v%d' % (u, t)); I('v_permlane32_swap_b32 v%d, v%d' % (t, u))
        I('v_mov_b32 v%d, 0xff800000' % mx)
        I('v_cndmask_b32 v%d, v%d, v%d, %s' % (t + 1, t, mx, sr(S_HIM, 2))); I('v_cndmask_b32 v%d, v%d, v%d, %s' % (u + 1, u, mx, sr(S_HIM, 2)))
        for j in range(0, 16, 2):
            sel = 'op_sel_hi:[1,1,0]' if j < 12 else 'op_sel:[0,0,1] op_sel_hi:[1,1,1]'
            I('v_pk_fma_f32 %s, %s, %s, %s %s' % (vr(EP + j, 2), vr(A + j, 2), sr(S_L2E, 2), vr(t, 2), sel))
            I('v_pk_fma_f32 %s, %s, %s, %s %s neg_lo:[1,0,0] neg_hi:[1,0,0]' % (vr(EN + j, 2), vr(A + j, 2), sr(S_L2E, 2), vr(u, 2), sel))
        for j in range(16): I('v_exp_f32 v%d, v%d' % (EP + j, EP + j)); I('v_exp_f32 v%d, v%d' % (EN + j, EN + j))
        sp, sn = M + 6, M + 8
        I('v_pk_add_f32 %s, %s, %s' % (vr(sp, 2), vr(EP, 2), vr(EP + 2, 2))); I('v_pk_add_f32 %s, %s, %s' % (vr(sn, 2), vr(EN, 2), vr(EN + 2, 2)))
        for j in range(4, 16, 2):
            I('v_pk_add_f32 %s, %s, %s' % (vr(sp, 2), vr(sp, 2), vr(EP + j, 2))); I('v_pk_add_f32 %s, %s, %s' % (vr(sn, 2), vr(sn, 2), vr(EN + j, 2)))
        I('v_add_f32 v%d, v%d, v%d' % (sp, sp, sp + 1)); I('v_add_f32 v%d, v%d, v%d' % (sn, sn, sn + 1))
        I('v_permlane32_swap_b32 v%d, v%d' % (sp, sn)); I('v_add_f32 v%d, v%d, v%d' % (t, sp, sn)); I('v_rcp_f32 v%d, v%d' % (t, t))
        I('v_mov_b32 v%d, v%d' % (u, t)); I('v_permlane32_swap_b32 v%d, v%d' % (t, u))
        for j in range(0, 16, 2):
            I('v_pk_mul_f32 %s, %s, %s op_sel_hi:[1,0]' % (vr(EP + j, 2), vr(EP + j, 2), vr(t, 2)))
            I('v_pk_mul_f32 %s, %s, %s op_sel_hi:[1,0]' % (vr(EN + j, 2), vr(EN + j, 2), vr(u, 2)))
        for j in range(8):
            I('v_cvt_pk_bf16_f32 v%d, v%d, v%d' % (A + j, EP + 2 * j, EP + 2 * j + 1)); I('v_cvt_pk_bf16_f32 v%d, v%d, v%d' % (A + 8 + j, EN + 2 * j, EN + 2 * j + 1))

    def wphi_dma(self, n, head0_s):
        I = self.I; out = []
        I('s_mul_i32 s8, s%d, 1568' % head0_s); I('s_lshl_b32 s9, s%d, 10' % S_WAVE); I('s_add_u32 s8, s8, s9'); I('s_add_u32 s9, s9, %d' % L_WPHI)
        for i in range(n):
            I('s_add_u32 m0, s9, %d' % (8192 * i)); I('s_add_u32 s10, s8, %d' % (8192 * i))
            out.append(I('buffer_load_dwordx4 v%d, %s, s10 offen lds' % (VL16, sr(S_PHI, 4))))
        return out
    def wphi_read(self, nheads, hoff_s, WP):
        I = self.I; T = TMP + 9
        I('v_lshrrev_b32 v%d, 5, v%d' % (T, VLANE)); I('v_lshlrev_b32 v%d, 2, v%d' % (T, T)); I('v_bfe_u32 v%d, v%d, 2, 2' % (T + 1, VLANE)); I('v_add_u32 v%d, v%d, v%d' % (T, T, T + 1))
        I('v_mul_u32_u24 v%d, 56, v%d' % (T, T)); I('v_add_u32 v%d, s%d, v%d' % (T, hoff_s, T))
        I('v_bfe_u32 v%d, v%d, 4, 1' % (T + 1, VLANE)); I('v_lshlrev_b32 v%d, 2, v%d' % (T + 1, T + 1)); I('v_and_or_b32 v%d, v%d, 3, v%d' % (T + 1, VLANE, T + 1))
        I('v_min_u32 v%d, 6, v%d' % (T + 1, T + 1)); I('v_lshl_add_u32 v%d, v%d, 3, v%d' % (T, T + 1, T))
        for i in range(nheads):
            for s in range(2):
                for h in range(2):
                    I('ds_read_b64_tr_b16 %s, v%d offset:%d' % (ar(WP + 8 * i + 4 * s + 2 * h, 2), T, i * 1568 + (16 * s + 8 * h) * 56))

    def kv_common(self):
        I = self.I; g = self.g
        self.tagbase = 'k'
        self.srd(S_W, 18, 448 * 2688)
        I('s_lshl_b32 s8, s%d, 2' % S_IDX); I('s_lshr_b32 s9, 0xdb9630, s8'); I('s_and_b32 s9, s9, 15')
        I('s_lshr_b32 s10, 0x322333, s8'); I('s_and_b32 s10, s10, 15')
        I('s_mul_i32 s11, s9, 56'); I('s_and_b32 s%d, s11, -16' % S_WSO); I('s_and_b32 s11, s11, 8')
        I('s_mul_i32 s8, s10, 3'); I('s_add_u32 s8, s8, 1')
        I('v_cmp_lt_u32 vcc, 13, v7'); I('v_subrev_u32 v8, 14, v7'); I('v_cndmask_b32 v8, v7, v8, vcc'); I('v_min_u32 v8, s8, v8')
        I('v_mov_b32 v9, 896'); I('v_mov_b32 v10, 1792'); I('v_cndmask_b32 v9, v9, v10, vcc')
        I('v_mul_u32_u24 v6, 2688, v6'); I('v_add_u32 v6, v6, v9'); I('v_lshl_add_u32 v%d, v8, 4, v6' % DW)
        I('s_mov_b32 s0, s9'); I('s_mov_b32 s1, s10'); I('s_mov_b32 s%d, s11' % S_NONCE)
        dms = self.start_stream(2688)
        I('s_mul_i32 s10, s%d, 224' % S_CH); I('s_add_u32 s10, s10, s%d' % S_NONCE); I('s_add_u32 s10, s10, %d' % WPART)
        self.read_addrs(True)
        self.late_srds(); self.p2_setup()
        I('s_mov_b32 s%d, s0' % S_H0); I('s_mov_b32 s%d, s1' % S_NH)
        wp = self.wphi_dma(1, S_H0)
        I('s_cmp_lg_u32 s%d, 0' % S_RB); I('s_cbranch_scc1 L_nozero')
        for i in range(4): I('v_mov_b32 v%d, 0' % (TMP + i))
        I('s_lshl_b32 s8, s%d, 13' % S_H0); I('s_lshl_b32 s9, s%d, 10' % S_WAVE); I('s_add_u32 s8, s8, s9'); I('s_add_u32 s8, s8, %d' % L.WS_KV)
        self.U('buffer_store_dwordx4 %s, v%d, %s, s8 offen sc1' % (vr(TMP, 4), VL16, sr(S_WS, 4)))
        I('s_add_u32 s8, s8, 8192'); self.U('buffer_store_dwordx4 %s, v%d, %s, s8 offen sc1' % (vr(TMP, 4), VL16, sr(S_WS, 4)))
        I('s_add_u32 s8, s8, 8192'); I('s_cmp_eq_u32 s%d, 3' % S_NH); I('s_cselect_b32 s8, s8, 0x7f000000')
        self.U('buffer_store_dwordx4 %s, v%d, %s, s8 offen sc1' % (vr(TMP, 4), VL16, sr(S_WS, 4))); I('s_nop 1')
        self.g.label('L_nozero')
        self.row_stats()
        rot = lambda i: [((i + cc) % 3, AW + i, 56 * ((i + cc) % 3)) for cc in range(3)]
        tiles = [dict(t=rot(i), cs=(i < 3)) for i in range(4)]
        self.bdma, self.bread = {}, {}
        def pre2():
            pass
        def post2():
            with g.capture() as a:
                I('s_or_b32 s8, s%d, s%d' % (S_RB, S_WAVE)); I('s_cmp_lg_u32 s8, 0'); I('s_cbranch_scc1 L_nozf')
                I('s_lshl_b32 s8, s%d, 2' % S_IDX); I('s_add_u32 s8, s8, %d' % L.WS_KVZ)
                self.publish(8, TMP + 8).kind = 'untracked'
                self.g.label('L_nozf')
                I('s_mov_b32 s8, %d' % L_WPHI)
                self.wphi_read(3, 8, 88)
            return [a]
        self.gemm(tiles, 2688, dms, 'k', dict(post={2: post2, 5: lambda: self.b_dma(0) + self.b_dma(1), 6: lambda: self.b_dma(2) + self.b_dma(3)}))
        I('s_lshl_b32 s11, s%d, 2' % S_CH)
        self.finish_stats([0, 1, 2], 1.0, 11, 'k')
        self.mask_consts()
        T = AX + 1
        I('v_and_b32 v%d, 31, v%d' % (T, VLANE)); I('v_lshlrev_b32 v%d, 6, v%d' % (T, T)); I('s_lshl_b32 s8, s%d, 11' % S_RT); I('v_add_u32 v%d, s8, v%d' % (T, T))
        I('v_bfe_u32 v%d, v%d, 1, 2' % (TMP, VLANE)); I('v_lshl_add_u32 v%d, v%d, 4, v%d' % (CS + 2, TMP, T))
        I('v_lshrrev_b32 v%d, 5, v%d' % (CS + 3, VLANE))
        I('s_cmp_eq_u32 s%d, 1' % S_CH); I('s_cbranch_scc1 L_kv_v')

    def kv_k(self):
        I = self.I
        I('v_lshl_add_u32 v%d, v%d, 13, v%d' % (CS + 2, CS + 3, CS + 2))
        I('v_mov_b32 v%d, v%d' % (CS + 3, AX))
        wr = []
        def body():
            for i in range(3):
                self.cs_read(128 * i, 64, areg=CS + 3)
                self.softmax_unit(ACC + 16 * i, 64, 88 + 8 * i)
                for q in range(4):
                    I('v_xor_b32 v%d, %d, v%d' % (TMP, 16 * q, CS + 2))
                    wr.append(I('ds_write_b128 v%d, %s offset:%d' % (TMP, vr(ACC + 16 * i + 4 * q, 4), L_PHI + 16384 * i)))
        self.with_bg(body, self.b_tasks(0, 7), 24)
        self.stamp('soft')
        self.kv_tail(wr, 7)
    def kv_v(self):
        I = self.I
        I('v_lshl_add_u32 v%d, v%d, 3, v%d' % (CS + 2, CS + 3, CS + 2)); I('v_add_u32 v%d, %d, v%d' % (CS + 2, L_V, CS + 2))
        wr = []
        for i in range(3):
            A = ACC + 16 * i
            self.cs_read(128 * i, 64)
            self.correct(A, 64, 'one')
            for j in range(8): I('v_cvt_pk_bf16_f32 v%d, v%d, v%d' % (A + j, A + 2 * j, A + 2 * j + 1))
            for q in range(4):
                I('v_xor_b32 v%d, %d, v%d' % (TMP, 16 * q, CS + 2))
                wr.append(I('ds_write_b64 v%d, %s offset:%d' % (TMP, vr(A + 2 * q, 2), 8192 * i)))
        for t in self.b_tasks(0, 7): self.g.extend(t)
        self.stamp('soft')
        self.kv_tail(wr, 7)
    def kv_tail(self, wr, kb):
        I = self.I; g = self.g; tg = self.uid()
        T = TMP
        I('v_lshrrev_b32 v%d, 5, v%d' % (T, VLANE)); I('v_bfe_u32 v%d, v%d, 2, 2' % (T + 1, VLANE)); I('v_lshl_add_u32 v%d, v%d, 2, v%d' % (T, T, T + 1))
        I('v_lshrrev_b32 v%d, 1, v%d' % (T + 1, T))
        I('v_bfe_u32 v%d, v%d, 4, 1' % (T + 2, VLANE)); I('v_bfe_u32 v%d, v%d, 1, 1' % (T + 3, VLANE)); I('v_lshl_add_u32 v%d, v%d, 1, v%d' % (T + 2, T + 2, T + 3))
        I('v_xor_b32 v%d, v%d, v%d' % (T + 1, T + 1, T + 2)); I('v_lshlrev_b32 v%d, 6, v%d' % (T, T)); I('v_lshl_add_u32 v%d, v%d, 4, v%d' % (T, T + 1, T))
        I('v_and_b32 v%d, 1, v%d' % (T + 1, VLANE)); I('v_lshl_add_u32 v%d, v%d, 3, v%d' % (T, T + 1, T))
        I('s_lshl_b32 s8, s%d, 13' % S_WAVE); I('v_add_u32 v%d, s8, v%d' % (T + 1, T))
        I('s_lshr_b32 s9, s%d, 1' % S_WAVE); I('s_lshl_b32 s8, s9, 13'); I('s_add_u32 s8, s8, %d' % L_V); I('v_add_u32 v%d, s8, v%d' % (T, T))
        I('v_lshrrev_b32 v%d, 5, v%d' % (T + 2, VLANE)); I('v_lshlrev_b32 v%d, 10, v%d' % (T + 2, T + 2)); I('v_and_b32 v%d, 31, v%d' % (T + 3, VLANE))
        I('v_lshl_add_u32 v%d, v%d, 2, v%d' % (T + 2, T + 3, T + 2))
        I('s_add_u32 s9, s9, s%d' % S_H0); I('s_lshl_b32 s9, s9, 13'); I('s_and_b32 s8, s%d, 1' % S_WAVE); I('s_lshl_b32 s8, s8, 7'); I('s_add_u32 s9, s9, s8')
        I('s_add_u32 s9, s9, %d' % L.WS_KV); I('s_add_u32 s10, s9, 4096')
        I('s_lshl_b32 s11, s%d, 2' % S_IDX); I('s_add_u32 s11, s11, %d' % L.WS_KVZ); I('v_mov_b32 v%d, 0' % (T + 4))
        I('s_waitcnt vmcnt(0) lgkmcnt(0)')
        I('s_barrier')
        I('s_lshl_b32 s8, s%d, 1' % S_NH); I('s_cmp_ge_u32 s%d, s8' % S_WAVE); I('s_cbranch_scc1 L_nokv%s' % tg)
        with g.capture() as unit:
            def rd(s):
                b = 64 + 8 * (s % 4)
                for h in range(2):
                    I('ds_read_b64_tr_b16 %s, v%d offset:%d' % (vr(b + 2 * h, 2), T, (16 * s + 8 * h) * 64))
                    I('ds_read_b64_tr_b16 %s, v%d offset:%d' % (vr(b + 4 + 2 * h, 2), T + 1, (16 * s + 8 * h) * 64))
            for s in range(3): rd(s)
            for s in range(8):
                if s + 3 < 8: rd(s + 3)
                b = 64 + 8 * (s % 4)
                I('v_mfma_f32_32x32x16_bf16 %s, %s, %s, %s' % (vr(ACC, 16), vr(b, 4), vr(b + 4, 4), vr(ACC, 16) if s else '0'))
            self.poll('z' + tg, T + 4, 11, T + 5)
            for r in range(16):
                d = (r & 3) + 8 * (r >> 2)
                I('buffer_atomic_add_f32 v%d, v%d, %s, s%d offen offset:%d' % (ACC + r, T + 2, sr(S_WS, 4), 9 if d < 16 else 10, (d % 16) * 256))
            I('s_waitcnt vmcnt(0) lgkmcnt(0)')
        g.extend(unit)
        self.g.label('L_nokv%s' % tg)
        I('s_barrier')
        self.stamp('kvdone')
        I('s_cmp_lg_u32 s%d, 0' % S_WAVE); I('s_cbranch_scc1 L_nokf%s' % tg)
        I('s_lshl_b32 s8, s%d, 7' % S_IDX); I('s_lshl_b32 s9, s%d, 2' % S_RB); I('s_add_u32 s8, s8, s9'); I('s_add_u32 s8, s8, %d' % L.WS_KVD)
        self.publish(8, T).kind = 'untracked'
        self.g.label('L_nokf%s' % tg)
        for t in self.b_tasks(kb, 14): g.extend(t)
        if 'nop2' not in EXP: I('s_branch L_p2')
    _uid = 0
    def uid(self):
        K._uid += 1
        return str(K._uid)

    def q(self):
        I = self.I; g = self.g
        self.tagbase = 'q'
        self.srd(S_W, 18, 448 * 2688)
        I('v_mul_u32_u24 v6, 2688, v6'); I('v_lshl_add_u32 v%d, v7, 4, v6' % DW)
        I('s_mul_i32 s%d, s%d, 448' % (S_WSO, S_IDX))
        dms = self.start_stream(2688)
        I('s_mul_i32 s10, s%d, 224' % S_CH); I('s_add_u32 s10, s10, %d' % WPART)
        self.read_addrs(True)
        self.late_srds()
        I('s_lshl_b32 s%d, s%d, 3' % (S_H0, S_IDX))
        self.wphi_dma(2, S_H0)
        self.row_stats()
        tiles = [dict(t=[((i + cc) % 4, AW + i, 56 * ((i + cc) % 4)) for cc in range(4)], cs=True) for i in range(4)]
        def post2():
            with g.capture() as a:
                I('s_mul_i32 s8, s%d, %d' % (S_CH, 4 * 1568)); I('s_add_u32 s8, s8, %d' % L_WPHI)
                self.wphi_read(4, 8, 0)
            return [a]
        self.gemm(tiles, 2688, dms, 'q', dict(post={2: post2}))
        I('s_lshl_b32 s11, s%d, 2' % S_CH)
        self.finish_stats([0, 1, 2, 3], 1.0, 11, 'q')
        self.mask_consts()
        I('v_mov_b32 v%d, v%d' % (CS + 3, AX))
        for i in range(4):
            self.cs_read(128 * i, 64, areg=CS + 3)
            self.softmax_unit(ACC + 16 * i, 64, 8 * i)
        self.stamp('soft')
        T = TMP
        I('v_lshrrev_b32 v%d, 4, v%d' % (T, VLANE)); I('s_lshl_b32 s8, s%d, 1' % S_IDX); I('v_add_u32 v%d, s8, v%d' % (T, T))
        I('s_mul_i32 s8, s%d, 3' % S_IDX); I('s_add_u32 s8, s8, 2'); I('v_min_u32 v%d, s8, v%d' % (T, T))
        I('v_and_b32 v%d, 15, v%d' % (T + 1, VLANE)); I('v_lshlrev_b32 v%d, 2, v%d' % (T + 1, T + 1)); I('v_lshl_add_u32 v%d, v%d, 7, v%d' % (T, T, T + 1))
        I('s_mov_b32 s11, %d' % L.WS_KVD)
        I('v_lshrrev_b32 v%d, 3, v%d' % (T + 2, VLANE)); I('v_lshlrev_b32 v%d, 8, v%d' % (T + 2, T + 2))
        I('v_lshrrev_b32 v%d, 4, v%d' % (T + 3, VLANE)); I('v_and_b32 v%d, 7, v%d' % (T + 4, VLANE)); I('v_xor_b32 v%d, v%d, v%d' % (T + 3, T + 3, T + 4))
        I('v_lshl_add_u32 v%d, v%d, 4, v%d' % (T + 4, T + 3, T + 2)); I('v_xor_b32 v%d, 64, v%d' % (T + 5, T + 4))
        I('s_add_u32 s8, s%d, s%d' % (S_H0, S_WAVE)); I('s_lshl_b32 s8, s8, 13'); I('s_add_u32 s8, s8, %d' % L.WS_KV)
        I('s_lshl_b32 s9, s%d, 13' % S_WAVE)
        I('v_bfe_u32 v%d, v%d, 3, 2' % (T + 2, VLANE)); I('v_lshlrev_b32 v%d, 2, v%d' % (T + 2, T + 2)); I('v_and_or_b32 v%d, v%d, 3, v%d' % (T + 2, VLANE, T + 2))
        I('v_bfe_u32 v%d, v%d, 2, 1' % (T + 3, VLANE)); I('v_mul_u32_u24 v%d, 14, v%d' % (T + 3, T + 3)); I('v_add_u32 v%d, v%d, v%d' % (T + 3, T + 3, T + 2))
        I('v_cmp_gt_u32 vcc, 14, v%d' % (T + 2)); I('v_cndmask_b32 v%d, 28, v%d, vcc' % (T + 3, T + 3))
        I('v_bfe_u32 v%d, v%d, 1, 3' % (T + 2, T + 3)); I('v_lshlrev_b32 v%d, 4, v%d' % (T + 2, T + 2))
        I('v_and_b32 v%d, 32, v%d' % (T + 6, VLANE)); I('v_add_u32 v%d, v%d, v%d' % (T + 3, T + 3, T + 6)); I('v_lshl_add_u32 v%d, v%d, 7, v%d' % (T + 2, T + 3, T + 2))
        I('v_add_u32 v%d, s9, v%d' % (T + 2, T + 2))
        self.poll('kv', T, 11, T + 1)
        self.stamp('kvok')
        dm = []
        for i in range(8):
            I('s_add_u32 m0, s9, %d' % (L_KVQ + 1024 * i)); I('s_add_u32 s10, s8, %d' % ((i & 3) * 2048 + (i >> 2) * 128))
            dm.append(I('buffer_load_dwordx4 v%d, %s, s10 offen sc1 lds' % (T + 4 + (i & 1), sr(S_WS, 4))))
        for c in range(8):
            I('v_xor_b32 v%d, %d, v%d' % (T + 6 + (c & 1), 16 * c, T + 2))
            I('ds_read_b128 %s, v%d' % (vr(64 + 4 * c, 4), T + 6 + (c & 1)), needs=dm)
        for j in range(16): I('v_cvt_pk_bf16_f32 v%d, v%d, v%d' % (96 + j, 64 + 2 * j, 64 + 2 * j + 1))
        I('s_lshl_b32 s8, s%d, 12' % S_WAVE); I('s_add_u32 s8, s8, %d' % L_KVF); I('v_add_u32 v%d, s8, v%d' % (T, VL16))
        wr = [I('ds_write_b128 v%d, %s offset:%d' % (T, vr(96 + 4 * s, 4), 1024 * s)) for s in range(4)]
        I('s_lshl_b32 s8, s%d, 14' % S_CH); I('s_add_u32 s8, s8, %d' % L_KVF); I('v_add_u32 v%d, s8, v%d' % (T, VL16))
        I('s_barrier', needs=wr)
        for i in range(4):
            for s in range(4): I('ds_read_b128 %s, v%d offset:%d' % (ar(32 + 16 * i + 4 * s, 4), T, 4096 * i + 1024 * s))
        I('s_lshl_b32 s8, s%d, 2' % S_RB); I('s_add_u32 s8, s8, s%d' % S_RT); I('s_mul_i32 s8, s8, 28'); I('s_mul_i32 s9, s%d, 14' % S_IDX); I('s_add_u32 s8, s8, s9')
        I('s_mul_i32 s9, s%d, 7' % S_CH); I('s_add_u32 s8, s8, s9'); I('s_lshl_b32 s8, s8, 10'); I('s_add_u32 s8, s8, %d' % L.WS_O); I('s_add_u32 s9, s8, 4096')
        N = [64, 80]; O = 96
        for i in range(4):
            for s in range(4):
                I('v_mfma_f32_32x32x16_bf16 %s, %s, %s, %s' % (vr(N[i & 1], 16), ar(32 + 16 * i + 4 * s, 4), vr(ACC + 16 * i + 4 * s, 4), vr(N[i & 1], 16) if s else '0'))
            if i >= 1: self.o_fin(N[(i - 1) & 1], O + 7 * (i - 1))
        self.o_fin(N[1], O + 21)
        for f in range(7):
            I('buffer_store_dwordx4 %s, v%d, %s, s%d offen offset:%d sc1' % (vr(O + 4 * f, 4), VL16, sr(S_WS, 4), 8 if f < 4 else 9, (f % 4) * 1024))
        I('s_lshl_b32 s8, s%d, 1' % S_RB); I('s_lshr_b32 s9, s%d, 1' % S_RT); I('s_add_u32 s8, s8, s9'); I('s_lshl_b32 s8, s8, 8')
        I('s_and_b32 s9, s%d, 1' % S_RT); I('s_lshl_b32 s9, s9, 4'); I('s_add_u32 s8, s8, s9')
        I('s_lshl_b32 s9, s%d, 3' % S_IDX); I('s_add_u32 s8, s8, s9'); I('s_lshl_b32 s9, s%d, 2' % S_CH); I('s_add_u32 s8, s8, s9'); I('s_add_u32 s11, s8, %d' % (L.WS_FLAG + 128))
        I('s_waitcnt vmcnt(0)')
        self.publish(11, TMP)
        self.stamp('opub')
        I('s_waitcnt vmcnt(0)')
    def o_fin(self, N, O):
        I = self.I; t = TMP + 8
        I('v_add_f32 v%d, %s, v%d' % (t, f32(1e-6), N + 14)); I('v_rcp_f32 v%d, v%d' % (t, t))
        for j in range(0, 14, 2): I('v_pk_mul_f32 %s, %s, %s op_sel_hi:[1,0]' % (vr(N + j, 2), vr(N + j, 2), vr(t, 2)))
        for j in range(7): I('v_cvt_pk_bf16_f32 v%d, v%d, v%d' % (O + j, N + 2 * j, N + 2 * j + 1))

    def phase2(self):
        I = self.I; g = self.g; T = 128
        I('s_waitcnt vmcnt(0) lgkmcnt(0)')
        self.nst = 9
        self.stamp('p2start')
        I('s_mul_i32 s8, s%d, %d' % (S_WAVE, 56 * 896)); I('s_lshl_b32 s9, s%d, 7' % S_CG); I('s_add_u32 s8, s8, s9'); I('s_mul_i32 s9, s%d, %d' % (S_WAVE, 56 * 128))
        wod = []
        for i in range(7):
            I('s_add_u32 m0, s9, %d' % (L_WO + 1024 * i)); I('s_add_u32 s10, s8, %d' % (8 * 896 * i))
            wod.append(I('buffer_load_dwordx4 v%d, %s, s10 offen lds' % (DB, sr(S_WO, 4))))
        I('s_bfe_u32 s11, s%d, 0x10001' % S_WAVE)
        I('s_lshl_b32 s8, s%d, 1' % S_RG); I('s_add_u32 s8, s8, s11')
        I('s_mul_i32 s%d, s8, 112' % S_A0); I('s_xor_b32 s9, s8, 1'); I('s_mul_i32 s%d, s9, 112' % S_A1)
        I('s_mul_i32 s9, s%d, 14' % S_WAVE); I('s_add_u32 s%d, s%d, s9' % (S_A0, S_A0)); I('s_add_u32 s%d, s%d, s9' % (S_A1, S_A1))
        I('s_lshl_b32 s%d, s%d, 10' % (S_A0, S_A0)); I('s_lshl_b32 s%d, s%d, 10' % (S_A1, S_A1))
        I('s_mul_i32 s%d, s8, 28' % S_OSO); I('s_mul_i32 s9, s%d, 14' % S_CH); I('s_add_u32 s%d, s%d, s9' % (S_OSO, S_OSO)); I('s_lshl_b32 s%d, s%d, 10' % (S_OSO, S_OSO))
        I('s_add_u32 s%d, s%d, %d' % (S_OSO, S_OSO, L.WS_O))
        XO, XR = T + 2, T + 4
        I('v_and_b32 v%d, 31, v%d' % (T, VLANE)); I('v_mul_u32_u24 v%d, 896, v%d' % (T, T)); I('v_lshrrev_b32 v%d, 5, v%d' % (T + 1, VLANE)); I('v_lshl_add_u32 v%d, v%d, 4, v%d' % (XO, T + 1, T))
        I('s_mul_i32 s8, s8, %d' % (32 * 896)); I('s_lshl_b32 s9, s%d, 7' % S_CG); I('s_add_u32 s8, s8, s9')
        I('s_and_b32 s9, s%d, 1' % S_WAVE); I('s_lshl_b32 s9, s9, 6'); I('s_add_u32 s8, s8, s9'); I('s_lshl_b32 s9, s%d, 5' % S_CH); I('s_add_u32 s25, s8, s9')
        I('buffer_load_dwordx4 %s, v%d, %s, s25 offen' % (vr(XR, 4), XO, sr(S_X, 4)))
        I('v_and_b32 v%d, 1, v%d' % (T, VLANE)); I('v_bfe_u32 v%d, v%d, 1, 1' % (T + 1, VLANE)); I('v_lshl_add_u32 v%d, v%d, 4, v%d' % (T + 1, T + 1, T)); I('v_lshlrev_b32 v%d, 2, v%d' % (T + 1, T + 1))
        I('v_lshlrev_b32 v%d, 2, v%d' % (T + 3, T))
        I('s_lshl_b32 s8, s%d, 8' % S_RG); I('s_add_u32 s8, s8, %d' % L.WS_FLAG); I('s_lshl_b32 s9, s%d, 3' % S_WAVE); I('s_add_u32 s9, s9, s8')
        I('s_lshl_b32 s11, s11, 4'); I('s_add_u32 s8, s8, s11'); I('s_lshl_b32 s11, s%d, 3' % S_CH); I('s_add_u32 s8, s8, s11'); I('s_add_u32 s24, s8, 128')
        WA = T + 8
        I('v_lshrrev_b32 v%d, 5, v%d' % (T, VLANE)); I('v_bfe_u32 v%d, v%d, 3, 1' % (WA, VLANE)); I('v_xor_b32 v%d, v%d, v%d' % (WA, WA, T))
        I('v_mul_u32_u24 v%d, 14, v%d' % (WA + 1, T)); I('v_bfe_u32 v%d, v%d, 2, 2' % (WA + 2, VLANE)); I('v_add_u32 v%d, v%d, v%d' % (WA + 1, WA + 1, WA + 2))
        I('v_lshlrev_b32 v%d, 7, v%d' % (WA + 1, WA + 1)); I('v_lshl_add_u32 v%d, v%d, 6, v%d' % (WA, WA, WA + 1))
        I('v_and_b32 v%d, 3, v%d' % (WA + 1, VLANE)); I('v_lshl_add_u32 v%d, v%d, 3, v%d' % (WA, WA + 1, WA))
        I('v_and_b32 v%d, 16, v%d' % (WA + 1, VLANE)); I('v_lshl_add_u32 v%d, v%d, 1, v%d' % (WA, WA + 1, WA))
        I('s_and_b32 s8, s%d, 1' % S_WAVE); I('s_lshl_b32 s8, s8, 6'); I('s_lshl_b32 s10, s%d, 5' % S_CH); I('s_or_b32 s8, s8, s10'); I('v_xor_b32 v%d, s8, v%d' % (WA, WA))
        I('s_mul_i32 s8, s%d, %d' % (S_CH, 224 * 128)); I('v_add_u32 v%d, s8, v%d' % (WA, WA))
        I('v_xor_b32 v%d, 64, v%d' % (WA + 1, WA))
        I('v_add_u32 v%d, %d, v%d' % (WA + 2, 14 * 128, WA + 1)); I('v_and_b32 v%d, 8, v%d' % (T, VLANE)); I('v_cmp_eq_u32 vcc, 0, v%d' % T); I('v_cndmask_b32 v%d, v%d, v%d, vcc' % (WA + 2, WA + 2, WA))
        self.poll('h', T + 1, 9, T)
        self.stamp('hok')
        I('s_barrier')
        RING = 64; NR = 16
        frs = [('h', k, a) for k in range(14) for a in range(2)] + [('o', kk, 0) for kk in range(14)]
        def load(n):
            kind, k, a = frs[n]; r = RING + 4 * (n % NR)
            if kind == 'h':
                s = S_A1 if a else S_A0
                x = I('buffer_load_dwordx4 %s, v%d, %s, s%d offen offset:%d sc1' % (vr(r, 4), VL16, sr(S_WS, 4), s, (k % 4) * 1024))
                if k % 4 == 3: I('s_add_u32 s%d, s%d, 4096' % (s, s))
            else:
                if k == 0: self.poll('o', T + 3, 24, T)
                I('buffer_load_dwordx4 %s, v%d, %s, s%d offen offset:%d sc1' % (vr(r, 4), VL16, sr(S_WS, 4), S_OSO, (k % 4) * 1024))
                if k % 4 == 3: I('s_add_u32 s%d, s%d, 4096' % (S_OSO, S_OSO))
        def wo_read(kk):
            G, f = divmod(kk, 7)
            for pp in range(2):
                p = 4 * f + 2 * pp; hl = 4 * G + p // 7; i = p % 7
                areg = WA + 2 if i == 6 else WA + (i & 1)
                I('ds_read_b64_tr_b16 %s, v%d offset:%d' % (ar(4 * kk + 2 * pp, 2), areg, L_WO + (28 * hl + 2 * i) * 128))
        for n in range(NR): load(n)
        nl = NR
        for k in range(14):
            for a in range(2):
                n = 2 * k + a; r = RING + 4 * (n % NR)
                for b in range(2):
                    I('v_mfma_f32_32x32x16_bf16 %s, %s, %s, %s' % (vr(16 * (2 * a + b), 16), ar(8 * k + 4 * b, 4), vr(r, 4), vr(16 * (2 * a + b), 16) if k else '0'))
                if nl < 28: load(nl); nl += 1
            if k >= 7:
                wo_read(2 * (k - 7)); wo_read(2 * (k - 7) + 1)
            if k == 11:
                pass
        self.stamp('gdone')
        while nl < 42: load(nl); nl += 1
        I('s_waitcnt lgkmcnt(0)')
        I('s_barrier')
        I('s_lshl_b32 s8, s%d, 14' % S_WAVE); I('v_add_u32 v%d, s8, v%d' % (T, VL16))
        wr = []
        with g.capture() as wlist:
            for sp in range(1, 8):
                tau, eta = sp & 3, sp >> 2
                I('v_xor_b32 v%d, %d, v%d' % (T + 1 - 0, sp << 14, T))
                for q in range(2):
                    wr.append(I('ds_write_b128 v%d, %s offset:%d' % (T + 1, vr(16 * tau + 8 * eta + 4 * q, 4), 2048 * sp + 1024 * q)))
        SA = 56
        wl = list(wlist)
        for kk in range(14):
            n = 28 + kk; r = RING + 4 * (n % NR)
            I('v_mfma_f32_32x32x16_bf16 %s, %s, %s, %s' % (ar(SA, 16), ar(4 * kk, 4), vr(r, 4), ar(SA, 16) if kk else '0'))
            if kk & 1 == 0:
                g.extend(wl[:3]); wl = wl[3:]
        g.extend(wl)
        I('v_xor_b32 v%d, %d, v%d' % (T + 1, 4 << 14, T))
        for q in range(2): wr.append(I('ds_write_b128 v%d, %s offset:%d' % (T + 1, ar(SA + 8 + 4 * q, 4), 1024 * q)))
        for j in range(8): I('v_accvgpr_read_b32 v%d, a%d' % (16 + j, SA + j))
        I('s_barrier', needs=wr)
        self.stamp('xchg')
        for sp in range(8):
            for q in range(2): I('ds_read_b128 %s, v%d offset:%d' % (vr(64 + 8 * sp + 4 * q, 4), T, 2048 * sp + 1024 * q))
        for j in range(0, 8, 2): I('v_pk_add_f32 %s, %s, %s' % (vr(16 + j, 2), vr(16 + j, 2), vr(64 + j, 2)))
        for sp in range(1, 8):
            for j in range(0, 8, 2): I('v_pk_add_f32 %s, %s, %s' % (vr(j, 2), vr(j, 2), vr(64 + 8 * sp + j, 2)))
        for j in range(8): I('v_exp_f32 v%d, v%d' % (24 + j, j))
        for j in range(0, 8, 2): I('v_pk_add_f32 %s, %s, 1.0 op_sel_hi:[1,0]' % (vr(24 + j, 2), vr(24 + j, 2)))
        for j in range(8): I('v_rcp_f32 v%d, v%d' % (24 + j, 24 + j))
        I('s_mov_b32 s8, %s' % f32(-1.0 / L.LOG2E)); I('s_mov_b32 s9, s8')
        for j in range(0, 8, 2): I('v_pk_mul_f32 %s, %s, %s' % (vr(j, 2), vr(j, 2), vr(16 + j, 2)))
        for j in range(0, 8, 2): I('v_pk_mul_f32 %s, %s, s[8:9]' % (vr(24 + j, 2), vr(24 + j, 2)))
        for j in range(0, 8, 2): I('v_pk_mul_f32 %s, %s, %s' % (vr(j, 2), vr(j, 2), vr(24 + j, 2)))
        for j in range(4): I('v_lshlrev_b32 v%d, 16, v%d' % (32 + 2 * j, XR + j)); I('v_and_b32 v%d, s%d, v%d' % (33 + 2 * j, S_MASK, XR + j))
        for j in range(4): I('v_permlane32_swap_b32 v%d, v%d' % (j, 4 + j))
        for j in range(0, 8, 2): I('v_pk_add_f32 %s, %s, %s' % (vr(j, 2), vr(j, 2), vr(32 + j, 2)))
        for j in range(4): I('v_cvt_pk_bf16_f32 v%d, v%d, v%d' % (40 + j, 2 * j, 2 * j + 1))
        I('buffer_store_dwordx4 v[40:43], v%d, %s, s25 offen' % (XO, sr(S_OUT, 4)))
        self.stamp('final')

    def path(self, prefix, fn, label, keys):
        self.keys = keys
        with self.g.capture() as body:
            if label: self.g.label(label)
            fn()
        allp = [x for p in prefix for x in p]
        for x in allp: x.done = False
        full = self.g.finish(allp + body)
        if label:
            idx = next(i for i, x in enumerate(full) if x.kind == 'label' and x.text == label + ':')
            return full[idx:], body
        return full, body

    def build(self):
        I = self.I
        with self.g.capture() as pro:
            self.prologue()
            I('s_cmp_eq_u32 s%d, 1' % S_TYPE); I('s_cbranch_scc1 L_kv'); I('s_cmp_eq_u32 s%d, 2' % S_TYPE); I('s_cbranch_scc1 L_q')
        n0 = self.nst
        def endp():
            self.write_stamps(); I('s_endpgm')
        def ffn():
            self.ffn()
            if 'nop2' in EXP: I('s_waitcnt vmcnt(0) lgkmcnt(0)'); endp()
        out, _ = self.path([pro], ffn, None, ['0'])
        self.nst = n0
        code, kvc = self.path([pro], self.kv_common, 'L_kv', ['10', '11'])
        n1 = self.nst
        save = (dict(self.bdma), dict(self.bread))
        def kk():
            self.kv_k()
            if 'nop2' in EXP: I('s_waitcnt vmcnt(0) lgkmcnt(0)'); endp()
        def kvv():
            self.kv_v()
            if 'nop2' in EXP: I('s_waitcnt vmcnt(0) lgkmcnt(0)'); endp()
        c2, _ = self.path([pro, kvc], kk, 'L_kv_k', ['10'])
        self.nst = n1; self.bdma, self.bread = dict(save[0]), dict(save[1])
        c3, _ = self.path([pro, kvc], kvv, 'L_kv_v', ['11'])
        out += code + c2 + c3
        self.nst = n0
        def qq():
            self.q(); endp()
        c4, _ = self.path([pro], qq, 'L_q', ['2'])
        out += c4
        def p2():
            self.phase2(); endp()
        if 'nop2' not in EXP:
            c5, _ = self.path([], p2, 'L_p2', ['0', '10', '11'])
            out += c5
        with self.g.capture() as tail:
            self.g.label('L_end'); I('s_endpgm')
        return out + tail

HEADER = open('cdna_kernels/%s.s.ref' % NAME).read().split('; Override launch')[0]
def wrap(code, launch):
    return HEADER + launch + '''
.amdgcn_target "amdgcn-amd-amdhsa--gfx950"
.text
.globl %(n)s_kernel
.p2align 8
.type %(n)s_kernel,@function
%(n)s_kernel:
%(body)s
.section .rodata,"a"
.p2align 6
.amdhsa_kernel %(n)s_kernel
  .amdhsa_next_free_vgpr 256
  .amdhsa_next_free_sgpr 102
  .amdhsa_accum_offset %(nv)d
  .amdhsa_group_segment_fixed_size 0
  .amdhsa_kernarg_size 80
  .amdhsa_user_sgpr_count 2
  .amdhsa_user_sgpr_kernarg_segment_ptr 1
  .amdhsa_system_sgpr_workgroup_id_x 1
.end_amdhsa_kernel
''' % dict(n=NAME, body=render(code), nv=NV)

if __name__ == '__main__':
    stamps = '--stamps' in sys.argv
    k = K(stamps)
    code = k.build()
    open(sys.argv[1], 'w').write(wrap(code, '; @launch grid=(256,1,1) block=(512,1,1) lds=163840'))
    json.dump({t: [d.get(i, '') for i in range(16)] for t, d in k.names.items()} if stamps else {}, open(sys.argv[1][:-2] + '.json', 'w'))
    print('instructions', len(code), 'nops', sum(1 for i in code if i.kind == 'nop'))
```

```python
import numpy as np
LOG2E = 1.4426950408889634
HSCALE = -LOG2E
WS_H = 0
WS_O = 8 << 20
WS_KV = 10 << 20
WS_FLAG = 11 << 20
FSTR = 4352
WS_FO = WS_FLAG + 0x48000
WS_KVD = WS_FLAG + 0x50000
WS_KVZ = WS_FLAG + 0x58000
WS_RS = WS_FLAG + 0x60000
WS_SL = 13 << 20
WS_KF = 10 << 20
WS_STAMP = 12 << 20
WS_BYTES = 16 << 20
KV_H0 = [0, 3, 6, 9, 11, 13]
KV_NH = [3, 3, 3, 2, 2, 3]
def role(b):
    xcd = b & 7; j = b >> 3; q = xcd >> 1; s4 = j >> 3
    rb = (xcd & 1) * 8 + (j & 7)
    if s4 < 2: return (0, 2 * q + s4, rb)
    if s4 == 2: return (1, [0, 1, 2, 4][q], rb)
    if ((j >> 2) & 1) == (q >> 1): return (2, q & 1, rb)
    return (1, [3, 5][q & 1], rb)
def print_stamps(st):
    import json, os
    names = json.load(open(os.environ.get('STN', os.path.join(os.path.dirname(__file__), 'stamp_names.json'))))
    it, nb, nw, n = st.shape
    typ = np.array([role(b)[0] for b in range(256)])
    rt0 = st[:, :, :, 0]; rt1 = st[:, :, :, n - 1]
    base = rt0.min(axis=(1, 2), keepdims=True)
    print('start skew ns: med %.0f max %.0f ; end: med %.0f max %.0f' % (
        np.median((rt0 - base).max(axis=(1, 2))) * 10, ((rt0 - base).max()) * 10,
        np.median(np.median(rt1 - base, axis=(1, 2))) * 10, np.median((rt1 - base).max(axis=(1, 2))) * 10))
    last = np.where(st[:, :, :, 2:n - 1] > 0, st[:, :, :, 2:n - 1], 0).max(axis=3)
    clk = (last - st[:, :, :, 1]) / np.maximum(rt1 - rt0, 1) / 10.0
    print('clock GHz (approx): med %.3f' % np.median(clk), ' per-xcd start offset ns:', ' '.join('%d' % (np.median((rt0 - base)[:, x::8]) * 10) for x in range(8)))
    for key in sorted(names):
        t = int(key[0]);
        sel = st[:, typ == t]
        if len(key) > 1:
            ch = int(key[1]); sel = sel[:, :, 4 * ch:4 * ch + 4]
        print('type', key)
        for i in range(2, n - 1):
            d = sel[:, :, :, i] - sel[:, :, :, 1]
            ok = sel[:, :, :, i] > 0
            if not ok.any(): continue
            dd = d[ok]
            nm = names[key][i] if i < len(names[key]) else ''
            dl = (sel[:, :, :, i] - sel[:, :, :, i - 1])[ok & (sel[:, :, :, i - 1] > 0)]
            print('   stamp %2d %-14s med %7.0f  p10 %7.0f  p90 %7.0f max %7.0f   delta med %6.0f' % (i, nm, np.median(dd), np.percentile(dd, 10), np.percentile(dd, 90), dd.max(), np.median(dl) if len(dl) else -1))

def print_detail(st, slots):
    it, nb, nw, n = st.shape
    base = st[:, :, :, 0].min(axis=(1, 2), keepdims=True)
    clk = 2.1
    off = (st[:, :, :, 0] - base) * 10 * clk
    for sl in slots:
        v = np.where(st[:, :, :, sl] > 0, st[:, :, :, sl] - st[:, :, :, 1] + off, np.nan)
        print('slot', sl, 'per-xcd median / max (last iter):', ' '.join('%d/%d' % (np.nanmedian(v[-1, x::8]), np.nanmax(v[-1, x::8])) for x in range(8)))
        w = np.nanmax(v[-1], axis=1)
        idx = np.argsort(-np.nan_to_num(w))[:12]
        print('   worst WGs:', ' '.join('b%d(x%d,%s,w%d):%d' % (b, b & 7, role(b), np.nanargmax(v[-1, b]), w[b]) for b in idx))
```

```python
import sys, json, struct, os
from asmgen import *
import layout as L
EXP = os.environ.get('EXP', '').split(',')
SLEEP = int(os.environ.get('SLEEP', '4'))
BCHK = int(os.environ.get('BCHK', '7'))
NAME = 'recurrent_scan__linear_kernel_hedgehog__dense_activation_silu__prompt'
def f32(x): return '0x%08x' % struct.unpack('<I', struct.pack('<f', x))[0]

S_X, S_W, S_PHI, S_WO, S_W2, S_OUT, S_DBG, S_WS = 36, 40, 44, 48, 52, 56, 60, 64
S_MASK, S_WAVE, S_IDX, S_RB, S_TYPE = 3, 4, 5, 6, 7
S_XS, S_WSO, S_EX56 = 12, 13, 14
S_MW, S_MX, S_ROW, S_NONCE = 32, 33, 34, 35
S_RT, S_CH = 68, 69
S_ST = 70
S_RG, S_CG, S_BSO, S_STA, S_A0, S_A1, S_OSO, S_NH, S_H0 = 16, 17, 18, 19, 20, 21, 22, 23, 24
S_ST4 = 25
S_L2E = 26
S_HIM = 28
STG = 45056; WPART = 16384
L_CS = 3 * STG
L_CP = L_CS + 1024
L_WPHI = L_CP + 8192
L_SHX = L_WPHI
L_CNT = L_CS
L_PHI = 0
L_V = L_CP
L_STA = 57344
L_WO = 0
L_KVQ = 0
L_KVF = 65536
NV = 144
ACC, WF, XF, ST, CS, AX, AW, AS, DX, DW = 0, 64, 96, 104, 108, 112, 116, 120, 122, 124
PFA = 136; TMP = 128; P2T = 128; BT2 = 118; DB = 139; VLANE = 140; VL16 = 141; BT = 142

class K:
    def __init__(self, stamps):
        self.g = Gen(); self.use_stamps = stamps; self.nst = 0; self.names = {}; self.keys = ['0', '10', '11', '2']
    def I(self, t, needs=()): return self.g.I(t, needs)
    def U(self, t):
        x = self.g.I(t); x.kind = 'untracked'; return x
    def stamp(self, name, real=False):
        if not self.use_stamps: return
        i = self.nst
        if i >= 15: return
        self.nst += 1
        for k in self.keys: self.names.setdefault(k, {})[i] = name
        self.I('%s %s' % ('s_memrealtime' if real else 's_memtime', sr(S_ST + 2 * i, 2)))
    def write_stamps(self, total=16):
        if not self.use_stamps: return
        I = self.I
        I('s_memrealtime %s' % sr(S_ST + 2 * (total - 1), 2))
        I('s_waitcnt lgkmcnt(0)')
        I('s_lshl_b32 s8, s2, 3'); I('s_add_u32 s8, s8, s%d' % S_WAVE); I('s_lshl_b32 s8, s8, 7')
        I('s_add_u32 s8, s8, %d' % L.WS_STAMP)
        I('v_mov_b32 v2, 0')
        I('s_mov_b64 exec, 1')
        for i in range(total):
            I('v_mov_b32 v0, s%d' % (S_ST + 2 * i)); I('v_mov_b32 v1, s%d' % (S_ST + 2 * i + 1))
            I('buffer_store_dwordx2 v[0:1], v2, %s, s8 offen offset:%d' % (sr(S_WS, 4), 8 * i))
        I('s_mov_b64 exec, -1')
    def srd(self, d, base, nbytes):
        I = self.I
        I('s_mov_b32 s%d, s%d' % (d, base)); I('s_and_b32 s%d, s%d, 0xffff' % (d + 1, base + 1))
        I('s_mov_b32 s%d, %d' % (d + 2, nbytes)); I('s_mov_b32 s%d, 0x20000' % (d + 3))

    def prologue(self):
        I = self.I
        I('s_cmp_ge_u32 s2, 256'); I('s_cbranch_scc1 L_end')
        I('s_load_dwordx16 s[16:31], s[0:1], 0'); I('s_load_dwordx4 s[32:35], s[0:1], 64')
        I('s_getpc_b64 s[8:9]')
        self.g.label('L_pc')
        I('v_cmp_le_u32 vcc, 448, v0'); I('s_cbranch_vccz L_nopf')
        I('s_bfe_u32 s10, s2, 0x30003'); I('s_lshl_b32 s10, s10, 13')
        I('v_and_b32 v1, 63, v0'); I('v_lshlrev_b32 v1, 7, v1'); I('v_add_u32 v1, s10, v1')
        I('v_min_u32 v1, L_end-L_pc, v1')
        self.U('global_load_dword a80, v1, s[8:9]')
        self.g.label('L_nopf')
        if self.use_stamps:
            for i in range(16): I('s_mov_b64 %s, 0' % sr(S_ST + 2 * i, 2))
        self.stamp('rt0', True); self.stamp('t0')
        I('v_lshrrev_b32 v1, 6, v0'); I('v_and_b32 v0, 63, v0')
        I('v_readfirstlane_b32 s%d, v1' % S_WAVE)
        I('v_mov_b32 v%d, v0' % VLANE); I('v_lshlrev_b32 v%d, 4, v0' % VL16)
        I('s_and_b32 s8, s2, 7'); I('s_lshr_b32 s9, s2, 3')
        I('s_and_b32 s10, s8, 1'); I('s_lshl_b32 s10, s10, 3'); I('s_and_b32 s11, s9, 7'); I('s_add_u32 s%d, s10, s11' % S_RB)
        I('s_lshr_b32 s8, s8, 1'); I('s_lshr_b32 s10, s9, 3')
        I('s_lshl_b32 s11, s8, 2'); I('s_add_u32 s12, s11, s10')
        I('s_mov_b32 s%d, 0' % S_TYPE); I('s_lshl_b32 s%d, s8, 1' % S_IDX); I('s_add_u32 s%d, s%d, s10' % (S_IDX, S_IDX))
        I('s_cmp_lt_u32 s10, 2'); I('s_cbranch_scc1 L_role')
        I('s_mov_b32 s%d, 1' % S_TYPE); I('s_lshr_b32 s%d, 0x4210, s11' % S_IDX); I('s_and_b32 s%d, s%d, 15' % (S_IDX, S_IDX))
        I('s_cmp_eq_u32 s10, 2'); I('s_cbranch_scc1 L_role')
        I('s_and_b32 s13, s8, 1'); I('s_lshl_b32 s%d, s13, 1' % S_IDX); I('s_add_u32 s%d, s%d, 3' % (S_IDX, S_IDX))
        I('s_bfe_u32 s11, s9, 0x10002'); I('s_lshr_b32 s8, s8, 1'); I('s_cmp_lg_u32 s11, s8'); I('s_cbranch_scc1 L_role')
        I('s_mov_b32 s%d, 2' % S_TYPE); I('s_mov_b32 s%d, s13' % S_IDX)
        self.g.label('L_role')
        I('s_lshl_b32 s8, s%d, 4' % S_RB); I('s_add_u32 s8, s8, s12'); I('s_lshl_b32 s8, s8, 3'); I('s_add_u32 s11, s8, s%d' % S_WAVE)
        I('s_mov_b32 s%d, -1' % S_EX56); I('s_mov_b32 s%d, 0x00ffffff' % (S_EX56 + 1))
        I('s_and_b32 s%d, s%d, 3' % (S_RT, S_WAVE)); I('s_lshr_b32 s%d, s%d, 2' % (S_CH, S_WAVE))
        I('s_mov_b32 s%d, 0xffff0000' % S_MASK)
        I('v_lshrrev_b32 v2, 3, v0'); I('v_mul_u32_u24 v2, 896, v2')
        I('v_lshrrev_b32 v3, 4, v0'); I('v_and_b32 v4, 7, v0'); I('v_xor_b32 v4, v4, v3')
        I('v_lshl_add_u32 v%d, v4, 4, v2' % DX)
        I('v_xor_b32 v4, 4, v4'); I('v_lshl_add_u32 v%d, v4, 4, v2' % (DX + 1)); I('v_add_u32 v%d, %d, v%d' % (DX + 1, 8 * 896 - 1024, DX + 1))
        I('s_lshl_b32 s8, s%d, 3' % S_RB); I('s_add_u32 s8, s8, s%d' % S_WAVE); I('s_mul_i32 s%d, s8, %d' % (S_XS, 16 * 896))
        I('v_cmp_lt_u32 vcc, 27, v0'); I('v_subrev_u32 v7, 28, v0'); I('v_cndmask_b32 v7, v0, v7, vcc'); I('v_cndmask_b32 v6, 0, 1, vcc')
        I('v_cmp_gt_u32 vcc, 56, v0'); I('v_mov_b32 v5, 0x7fffffff'); I('v_cndmask_b32 v5, v5, v%d, vcc' % VL16)
        I('s_waitcnt lgkmcnt(0)')
        if 'start' in EXP: self.stamp('karg')
        self.srd(S_X, 16, 2048 * 896)
        self.srd(S_WS, 34, L.WS_BYTES); self.srd(S_DBG, 32, 256)
        I('s_mov_b32 s%d, s11' % S_ROW)
        I('s_lshl_b32 s%d, s%d, 11' % (S_MX, S_WAVE))
        I('s_mul_i32 s%d, s%d, %d' % (S_MW, S_WAVE, 8 * 448)); I('s_add_u32 s%d, s%d, %d' % (S_MW, S_MW, WPART))

    def start_stream(self, gpitch):
        I = self.I
        for i in range(1, 4): I('v_add_u32 v%d, %d, v%d' % (DW + i, i * (2 * gpitch - 896), DW))
        I('s_mul_i32 s8, s%d, %d' % (S_WAVE, 8 * gpitch)); I('s_add_u32 s%d, s%d, s8' % (S_WSO, S_WSO))
        d = {}
        grps, d[0] = self.stage_dma(0, gpitch)
        for gp in grps: self.g.extend(gp)
        I('s_mul_i32 s8, s%d, 896' % S_ROW)
        I('buffer_load_dwordx4 %s, v5, %s, s8 offen' % (vr(XF, 4), sr(S_X, 4)))
        lab = 'L_nonon' + self.tagbase
        I('s_or_b32 s8, s2, s%d' % S_WAVE); I('s_cmp_lg_u32 s8, 0'); I('s_cbranch_scc1 %s' % lab)
        self.U('s_memrealtime s[8:9]'); self.U('s_waitcnt lgkmcnt(0)'); I('s_or_b32 s8, s8, 1'); I('v_mov_b32 v8, s8'); I('v_mov_b32 v9, 0')
        I('s_mov_b64 exec, 1'); self.U('buffer_store_dword v8, v9, %s, 0 offen sc1' % sr(S_DBG, 4)); I('s_mov_b64 exec, -1')
        self.g.label(lab)
        if 'start' in EXP: self.stamp('s0iss')
        self.mall_addr()
        return d
    def mall_addr(self):
        I = self.I
        segs = [(16, 7, 2, 5, 2048 * 896), (18, 4, 128 * 21, 4, 448 * 2688), (26, 5, 128 * 28, 5, 448 * 3584), (28, 7, 0, 7, 1792 * 896), (22, 2, 0, 2, 448 * 896)]
        I('s_lshl_b32 s8, s2, 3'); I('s_add_u32 s8, s8, s%d' % S_WAVE)
        lo = 0
        for i, (sb, mul, first, n, size) in enumerate(segs):
            I('s_mul_i32 s9, s8, %d' % mul); I('s_add_i32 s9, s9, %d' % (first - lo))
            I('v_add_u32 v10, s9, v0'); I('v_lshlrev_b32 v10, 7, v10'); I('v_min_u32 v10, %d, v10' % (size - 4))
            if i == 0:
                I('v_mov_b32 v11, v10'); I('v_mov_b32 v8, s%d' % sb); I('v_mov_b32 v9, s%d' % (sb + 1))
            else:
                I('v_cmp_le_u32 vcc, %d, v0' % lo); I('v_mov_b32 v12, s%d' % sb); I('v_mov_b32 v13, s%d' % (sb + 1))
                I('v_cndmask_b32 v11, v11, v10, vcc'); I('v_cndmask_b32 v8, v8, v12, vcc'); I('v_cndmask_b32 v9, v9, v13, vcc')
            lo += n
        I('v_add_co_u32 v%d, vcc, v8, v11' % PFA); I('v_addc_co_u32 v%d, vcc, 0, v9, vcc' % (PFA + 1))
    def mall_issue(self, part):
        if 'nomall' in EXP: return []
        I = self.I
        with self.g.capture() as a:
            I('s_mov_b64 exec, %d' % ([0x3fff, 0x7fc000][part]))
            I('global_load_dword a%d, %s, off' % (80 + part, vr(PFA, 2)))
            I('s_mov_b64 exec, -1')
        return [a]
    def stream2(self, d, gpitch):
        I = self.I; lab = 'L_notl' + self.tagbase
        I('s_cmp_lg_u32 s%d, 6' % S_WAVE); I('s_cbranch_scc1 %s' % lab)
        I('v_mov_b32 v8, 0'); I('s_mov_b64 exec, 1')
        for sd in (S_W2, S_WO, S_OUT): self.U('buffer_load_dword a80, v8, %s, 0 offen' % sr(sd, 4))
        I('s_mov_b64 exec, -1')
        self.g.label(lab)
        if 'start' in EXP: self.stamp('setup')
        I('s_barrier')
        grps, d[1] = self.stage_dma(1, gpitch)
        for gp in grps + self.mall_issue(0): self.g.extend(gp)
        if 'start' in EXP: self.stamp('s1iss')

    def late_srds(self):
        I = self.I
        self.srd(S_PHI, 20, 16 * 28 * 28 * 2); self.srd(S_WO, 22, 448 * 896); self.srd(S_W2, 28, 1792 * 896)
        self.srd(S_OUT, 30, 2048 * 896)
        I('s_mov_b32 s%d, %s' % (S_L2E, f32(L.LOG2E))); I('s_mov_b32 s%d, %s' % (S_L2E + 1, f32(L.LOG2E)))
        I('s_mov_b32 s%d, 0' % S_HIM); I('s_mov_b32 s%d, -1' % (S_HIM + 1))
        I('s_mov_b32 s31, 0')

    def p2_setup(self):
        I = self.I; T = TMP
        I('s_lshr_b32 s9, s2, 3'); I('s_and_b32 s8, s9, 3'); I('s_add_u32 s8, s8, 24'); I('s_cmp_lt_u32 s9, 24'); I('s_cselect_b32 s9, s9, s8')
        I('s_mul_i32 s8, s9, 37'); I('s_lshr_b32 s8, s8, 8'); I('s_mul_i32 s10, s8, 7'); I('s_sub_u32 s%d, s9, s10' % S_CG)
        I('s_and_b32 s10, s2, 7'); I('s_lshl_b32 s10, s10, 2'); I('s_add_u32 s%d, s10, s8' % S_RG)
        I('s_mul_i32 s%d, s%d, %d' % (S_BSO, S_WAVE, 224 * 896)); I('s_lshl_b32 s8, s%d, 7' % S_CG); I('s_add_u32 s%d, s%d, s8' % (S_BSO, S_BSO))
        I('s_lshl_b32 s%d, s%d, 12' % (S_STA, S_WAVE)); I('s_add_u32 s%d, s%d, %d' % (S_STA, S_STA, L_STA))
        I('v_lshrrev_b32 v%d, 3, v0' % T); I('v_mul_u32_u24 v%d, 896, v%d' % (T, T))
        I('v_lshrrev_b32 v%d, 2, v0' % (T + 1)); I('v_and_b32 v%d, 4, v%d' % (T + 1, T + 1)); I('v_and_b32 v%d, 7, v0' % (T + 2))
        I('v_xor_b32 v%d, v%d, v%d' % (T + 1, T + 1, T + 2)); I('v_lshl_add_u32 v%d, v%d, 4, v%d' % (DB, T + 1, T))
        I('v_lshrrev_b32 v%d, 5, v0' % T); I('v_lshlrev_b32 v%d, 2, v%d' % (T, T)); I('v_bfe_u32 v%d, v0, 2, 2' % (T + 1)); I('v_add_u32 v%d, v%d, v%d' % (T, T, T + 1))
        I('v_lshlrev_b32 v%d, 7, v%d' % (T, T)); I('v_add_u32 v%d, s%d, v%d' % (T, S_STA, T))
        I('v_and_b32 v%d, 3, v0' % (T + 1)); I('v_lshlrev_b32 v%d, 3, v%d' % (T + 1, T + 1))
        I('v_and_b32 v%d, 16, v0' % (T + 2)); I('v_lshl_add_u32 v%d, v%d, 1, v%d' % (T + 1, T + 2, T + 1))
        I('v_and_b32 v%d, 8, v0' % (T + 2)); I('v_lshlrev_b32 v%d, 3, v%d' % (T + 2, T + 2)); I('v_xor_b32 v%d, v%d, v%d' % (T + 1, T + 1, T + 2))
        I('s_and_b32 s8, s%d, 1' % S_WAVE); I('s_lshl_b32 s8, s8, 6'); I('s_lshl_b32 s9, s%d, 5' % S_CH); I('s_or_b32 s8, s8, s9')
        I('v_xor_b32 v%d, s8, v%d' % (T + 1, T + 1)); I('v_add_u32 v%d, v%d, v%d' % (BT, T, T + 1))
        I('v_xor_b32 v%d, 64, v%d' % (T + 1, T + 1)); I('v_add_u32 v%d, v%d, v%d' % (BT + 1, T, T + 1))

    def slot4_setup(self):
        I = self.I
        I('s_mul_i32 s%d, s%d, %d' % (S_ST4, S_CH, 122880 - 49152)); I('s_lshl_b32 s8, s%d, 11' % S_RT); I('s_add_u32 s%d, s%d, s8' % (S_ST4, S_ST4))
        I('s_add_u32 s%d, s%d, 49152' % (S_ST4, S_ST4)); I('s_sub_u32 s8, s%d, s%d' % (S_ST4, S_STA))
        for b in range(2): I('v_add_u32 v%d, s8, v%d' % (BT2 + b, BT + b))
    def wo_dma(self):
        g = self.g; I = self.I; grps = []
        with g.capture() as a:
            I('s_mul_i32 s0, s%d, %d' % (S_WAVE, 56 * 896)); I('s_lshl_b32 s1, s%d, 7' % S_CG); I('s_add_u32 s0, s0, s1'); I('s_mul_i32 s1, s%d, %d' % (S_WAVE, 56 * 128))
        for i in range(7):
            with g.capture() as b:
                I('s_add_u32 m0, s1, %d' % (L_WO + 1024 * i)); I('s_add_u32 s8, s0, %d' % (8 * 896 * i))
                I('buffer_load_dwordx4 v%d, %s, s8 offen lds' % (DB, sr(S_WO, 4)))
            grps.append((a if i == 0 else []) + b)
        return grps
    SLOTS = [(0, BT), (2048, BT), (32768, BT), (34816, BT), (None, BT2)]
    def b_dma(self, k, needs=()):
        g = self.g; I = self.I; so = self.SLOTS[k % self.nslot][0]; grps = []
        for h in range(2):
            with g.capture() as a:
                I('s_add_u32 m0, s%d, %d' % (S_STA, so + 1024 * h) if so is not None else 's_add_u32 m0, s%d, %d' % (S_ST4, 1024 * h))
                I('s_add_u32 s8, s%d, %d' % (S_BSO, (16 * k + 8 * h) * 896))
                I('buffer_load_dwordx4 v%d, %s, s8 offen lds' % (DB, sr(S_W2, 4)), needs=needs)
            grps.append(a)
        self.bdma[k] = [x for gp in grps for x in gp if x.kind == 'dma']
        return grps
    def b_read(self, k):
        so, reg = self.SLOTS[k % self.nslot]; out = []
        if so is None: so = 0
        for b in range(2):
            for h in range(2):
                out.append(Instr('ds_read_b64_tr_b16 %s, v%d offset:%d' % (ar(8 * k + 4 * b + 2 * h, 2), reg + b, so + 1024 * h), needs=self.bdma[k]))
        self.bread[k] = out
        return out
    def b_tasks(self, k0, k1):
        t = [self.b_read(k) for k in range(k0, k1)]
        for k in range(k0, k1):
            if k + self.nslot < 14: t += self.b_dma(k + self.nslot, needs=self.bread[k])
        return t

    def stage_dma(self, st, gpitch):
        g = self.g; I = self.I; base = (st % 3) * STG
        grps = []
        for i in range(4):
            with g.capture() as a:
                if i == 0: I('s_add_u32 m0, s%d, %d' % (S_MW, base))
                else: I('s_add_u32 m0, s%d, %d' % (S_MW, base))
                I('s_mov_b64 exec, %s' % sr(S_EX56, 2))
                I('buffer_load_dwordx4 v%d, %s, s%d offen offset:%d lds' % (DW + i, sr(S_W, 4), S_WSO, 896 * i))
                I('s_mov_b64 exec, -1')
                if i == 3: I('s_add_u32 s%d, s%d, %d' % (S_WSO, S_WSO, 64 * gpitch))
            grps.append(a)
        for i in range(2):
            with g.capture() as a:
                I('s_add_u32 m0, s%d, %d' % (S_MX, base)); I('s_nop 0')
                I('buffer_load_dwordx4 v%d, %s, s%d offen offset:%d lds' % (DX + i, sr(S_X, 4), S_XS, 1024 * i))
                if i == 1: I('s_add_u32 s%d, s%d, 128' % (S_XS, S_XS))
            grps.append(a)
        return grps, [x for gp in grps for x in gp if x.kind == 'dma']

    def read_addrs(self, clamp, shared=False):
        I = self.I; T = TMP
        I('v_and_b32 v%d, 31, v0' % T); I('v_lshlrev_b32 v%d, 7, v%d' % (T, T)); I('s_lshl_b32 s8, s%d, 12' % S_RT); I('v_add_u32 v%d, s8, v%d' % (T, T))
        I('v_lshrrev_b32 v%d, 5, v0' % (T + 1)); I('v_bfe_u32 v%d, v0, 1, 3' % (T + 2)); I('v_xor_b32 v%d, v%d, v%d' % (T + 2, T + 2, T + 1))
        I('v_lshlrev_b32 v%d, 3, v%d' % (T + 3, T + 1)); I('v_bfe_u32 v%d, v0, 2, 2' % (T + 4)); I('v_add_u32 v%d, v%d, v%d' % (T + 3, T + 3, T + 4))
        I('v_mul_u32_u24 v%d, 448, v%d' % (T + 3, T + 3))
        I('v_bfe_u32 v%d, v0, 4, 1' % (T + 4)); I('v_and_b32 v%d, 3, v0' % (T + 5)); I('v_lshl_add_u32 v%d, v%d, 2, v%d' % (T + 4, T + 4, T + 5))
        if shared:
            I('s_lshl_b32 s8, s%d, 2' % S_CH); I('v_xor_b32 v%d, s8, v%d' % (T + 6, T + 4)); I('v_lshl_add_u32 v%d, v%d, 3, v%d' % (T + 6, T + 6, T + 3))
            I('v_add_u32 v%d, %d, v%d' % (T + 6, WPART + 384, T + 6))
        if clamp: I('v_min_u32 v%d, 6, v%d' % (T + 4, T + 4))
        I('v_lshl_add_u32 v%d, v%d, 3, v%d' % (T + 3, T + 4, T + 3))
        I('v_add_u32 v%d, s10, v%d' % (T + 3, T + 3))
        for i in range(4):
            I('s_add_u32 s8, s%d, s%d' % (S_RT, S_CH)); I('s_add_u32 s8, s8, %d' % i); I('s_and_b32 s8, s8, 3')
            I('s_lshl_b32 s9, s8, 1'); I('v_xor_b32 v%d, s9, v%d' % (T + 5, T + 2)); I('v_lshl_add_u32 v%d, v%d, 4, v%d' % (AX + i, T + 5, T))
            I('s_mul_i32 s9, s8, 7168'); I('v_add_u32 v%d, s9, v%d' % (AW + i, T + 3))
            if shared and i in (0, 2): I('v_add_u32 v%d, s9, v%d' % (AS + i // 2, T + 6))

    def row_stats(self):
        I = self.I; S, Q = ST, ST + 1
        I('s_mov_b32 s8, 0x3f803f80')
        I('v_dot2_f32_bf16 v%d, v%d, s8, 0' % (S, XF)); I('v_dot2_f32_bf16 v%d, v%d, v%d, 0' % (Q, XF, XF))
        for q in range(1, 4):
            I('v_dot2_f32_bf16 v%d, v%d, s8, v%d' % (S, XF + q, S)); I('v_dot2_f32_bf16 v%d, v%d, v%d, v%d' % (Q, XF + q, XF + q, Q))
        for m in ('row_shr:1', 'row_shr:2', 'row_shr:4', 'row_shr:8'):
            for r in (S, Q): I('v_add_f32_dpp v%d, v%d, v%d %s row_mask:0xf bank_mask:0xf bound_ctrl:0' % (r, r, r, m))
        for m, rm in (('row_bcast:15', '0xa'), ('row_bcast:31', '0xc')):
            for r in (S, Q): I('v_add_f32_dpp v%d, v%d, v%d %s row_mask:%s bank_mask:0xf' % (r, r, r, m, rm))
        I('v_mul_f32 v%d, %s, v%d' % (S, f32(1.0 / 448), S)); I('v_mul_f32 v%d, %s, v%d' % (Q, f32(1.0 / 448), Q))
        I('v_fma_f32 v%d, -v%d, v%d, v%d' % (Q, S, S, Q)); I('v_max_f32 v%d, 0, v%d' % (Q, Q))
        def rbf(r):
            I('v_cvt_pk_bf16_f32 v%d, v%d, v%d' % (r, r, r)); I('v_lshlrev_b32 v%d, 16, v%d' % (r, r))
        rbf(S); rbf(Q)
        I('v_add_f32 v%d, %s, v%d' % (Q, f32(1e-5), Q)); rbf(Q)
        I('v_sqrt_f32 v%d, v%d' % (Q, Q)); rbf(Q)
        I('v_rcp_f32 v%d, v%d' % (Q, Q))
        I('v_sub_f32 v%d, 0, v%d' % (S, S))

    def nonce_issue(self):
        self.I('v_mov_b32 v%d, 0' % (ST + 3))
        return self.I('buffer_load_dword v%d, v%d, %s, 0 offen sc1' % (ST + 2, ST + 3, sr(S_DBG, 4)))
    def nonce_get_publish(self, tag):
        I = self.I; U = self.U
        I('v_readfirstlane_b32 s%d, v%d' % (S_NONCE, ST + 2))
        I('s_cmp_lg_u32 s%d, 0' % S_NONCE); I('s_cbranch_scc1 L_gotn%s' % tag)
        self.g.label('L_spinn%s' % tag)
        U('buffer_load_dword v%d, v%d, %s, 0 offen sc1' % (ST + 2, ST + 3, sr(S_DBG, 4)))
        U('s_waitcnt vmcnt(0)')
        I('v_readfirstlane_b32 s%d, v%d' % (S_NONCE, ST + 2)); I('s_nop 1')
        I('s_cmp_lg_u32 s%d, 0' % S_NONCE); I('s_cbranch_scc1 L_gotn%s' % tag)
        self.spin_tail('L_spinn%s' % tag)
        self.g.label('L_gotn%s' % tag)
        I('v_mov_b32 v%d, s%d' % (ST + 2, S_NONCE)); I('v_mov_b32 v%d, s%d' % (ST + 3, S_NONCE))
        I('s_lshl_b32 s8, s%d, 4' % S_ROW); I('s_add_u32 s8, s8, %d' % L.WS_RS); I('v_mov_b32 v%d, 0' % (TMP + 8))
        I('s_mov_b32 exec_lo, 0'); I('s_mov_b32 exec_hi, 0x80000000')
        I('buffer_store_dwordx4 %s, v%d, %s, s8 offen sc1' % (vr(ST, 4), TMP + 8, sr(S_WS, 4)))
        I('s_mov_b64 exec, -1')
    def rs_issue(self):
        I = self.I
        I('s_lshl_b32 s8, s%d, 2' % S_RB); I('s_add_u32 s8, s8, s%d' % S_RT); I('s_lshl_b32 s8, s8, 9'); I('s_add_u32 s%d, s8, %d' % (S_ROW, L.WS_RS))
        I('v_and_b32 v%d, 31, v%d' % (DX, VLANE)); I('v_lshlrev_b32 v%d, 4, v%d' % (DX, DX))
        return I('buffer_load_dwordx4 %s, v%d, %s, s%d offen sc1' % (vr(ST, 4), DX, sr(S_WS, 4), S_ROW))
    def rs_get(self, tag, scale):
        I = self.I; U = self.U
        I('v_cmp_ne_u32 vcc, s%d, v%d' % (S_NONCE, ST + 2)); I('s_nop 1'); I('s_cbranch_vccz L_gotr%s' % tag)
        self.g.label('L_spinr%s' % tag)
        U('buffer_load_dwordx4 %s, v%d, %s, s%d offen sc1' % (vr(ST, 4), DX, sr(S_WS, 4), S_ROW))
        U('s_waitcnt vmcnt(0)')
        I('v_cmp_ne_u32 vcc, s%d, v%d' % (S_NONCE, ST + 2)); I('s_nop 1'); I('s_cbranch_vccz L_gotr%s' % tag)
        self.spin_tail('L_spinr%s' % tag)
        self.g.label('L_gotr%s' % tag)
        for q in range(4): I('v_cvt_pk_bf16_f32 v%d, v%d, v%d' % (XF + q, ST, ST))
        I('v_mul_f32 v%d, %s, v%d' % (ST, f32(scale), ST + 1))
    def publish(self, soff_s, tmp, needs=()):
        I = self.I
        I('v_mov_b32 v%d, s%d' % (tmp, S_NONCE)); I('v_mov_b32 v%d, 0' % (tmp + 1)); I('s_mov_b64 exec, 1')
        x = I('buffer_store_dword v%d, v%d, %s, s%d offen sc1' % (tmp, tmp + 1, sr(S_WS, 4), soff_s), needs=needs)
        I('s_mov_b64 exec, -1')
        return x
    def poll(self, tag, voff, soff_s, tmp):
        I = self.I; U = self.U
        self.g.label('L_poll%s' % tag)
        U('buffer_load_dword v%d, v%d, %s, s%d offen sc1' % (tmp, voff, sr(S_WS, 4), soff_s))
        I('s_waitcnt vmcnt(0)')
        I('v_cmp_ne_u32 vcc, s%d, v%d' % (S_NONCE, tmp)); I('s_nop 1'); I('s_cbranch_vccz L_polld%s' % tag)
        self.spin_tail('L_poll%s' % tag)
        self.g.label('L_polld%s' % tag)
    def poll_issue(self, voff, soff_s, tmp):
        return self.I('buffer_load_dword v%d, v%d, %s, s%d offen sc1' % (tmp, voff, sr(S_WS, 4), soff_s))
    def poll_check(self, tag, voff, soff_s, tmp):
        I = self.I; U = self.U
        if 'nopoll' in EXP and tag in 'AB': return
        I('v_cmp_ne_u32 vcc, s%d, v%d' % (S_NONCE, tmp)); I('s_nop 1'); I('s_cbranch_vccz L_polld%s' % tag)
        self.g.label('L_poll%s' % tag)
        U('buffer_load_dword v%d, v%d, %s, s%d offen sc1' % (tmp, voff, sr(S_WS, 4), soff_s)); U('s_waitcnt vmcnt(0)')
        I('v_cmp_ne_u32 vcc, s%d, v%d' % (S_NONCE, tmp)); I('s_nop 1'); I('s_cbranch_vccz L_polld%s' % tag)
        self.spin_tail('L_poll%s' % tag)
        self.g.label('L_polld%s' % tag)
    def spin_tail(self, lab):
        I = self.I
        I('s_sleep %d' % SLEEP); I('s_add_u32 s31, s31, 1'); I('s_cmp_lt_u32 s31, 0x8000'); I('s_cbranch_scc1 %s' % lab)

    def l2pf(self, st):
        if 'nopf' in EXP: return []
        I = self.I; lab = 'L_pf%s%d' % (self.tagbase, st)
        with self.g.capture() as a:
            I('s_min_u32 s8, s%d, 6' % S_WAVE); I('s_cmp_lg_u32 s8, %d' % st); I('s_cbranch_scc1 %s' % lab)
            I('s_lshr_b32 s8, s2, 3'); I('s_lshl_b32 s8, s8, 3'); I('s_add_u32 s8, s8, s%d' % S_WAVE); I('s_lshl_b32 s8, s8, 13')
            I('v_lshlrev_b32 v%d, 7, v%d' % (TMP + 8, VLANE))
            self.U('buffer_load_dword a80, v%d, %s, s8 offen' % (TMP + 8, sr(S_W2, 4)))
            I('s_sub_u32 s8, s8, %d' % (196 * 8192)); I('s_cbranch_scc1 %s' % lab)
            self.U('buffer_load_dword a80, v%d, %s, s8 offen' % (TMP + 8, sr(S_WO, 4)))
            self.g.label(lab)
        return [a]

    def gemm(self, tiles, gpitch, dms, tag, hooks):
        g = self.g; I = self.I
        dmas = dict(dms)
        for i in range(4): I('v_mov_b32 v%d, 0' % (CS + i))
        NF, LOOK = 8, 4
        seq = [(ks, cc) for ks in range(28) for cc in range(len(tiles[ks & 3]['t']))]
        def wread(n):
            ks, cc = seq[n]; a = WF + 4 * (n % NF); c, areg, off = tiles[ks & 3]['t'][cc]
            return [Instr('ds_read_b64_tr_b16 %s, v%d offset:%d' % (vr(a + 2 * h, 2), areg, off + h * 4 * 448)) for h in range(2)]
        def xread(ks):
            return [Instr('ds_read_b128 %s, v%d' % (vr(XF + 4 * (ks % 2), 4), AX + (ks & 3)))]
        aregs = sorted(set(list(range(AX, AX + 4)) + [t[1] for p in tiles for t in p['t']]))
        def adv(st):
            d = STG if st % 3 else -2 * STG
            return [Instr('v_add_u32 v%d, %d, v%d' % (r, d, r)) if d > 0 else Instr('v_subrev_u32 v%d, %d, v%d' % (r, -d, r)) for r in aregs]
        tc = [0]
        def cs_ops(r, c):
            t = TMP + 2 * (tc[0] % 4); tc[0] += 1
            return [Instr('v_lshlrev_b32 v%d, 16, v%d' % (t, r)), Instr('v_and_b32 v%d, s%d, v%d' % (t + 1, S_MASK, r)),
                    Instr('v_add_f32 v%d, v%d, v%d' % (CS + c, CS + c, t)), Instr('v_add_f32 v%d, v%d, v%d' % (CS + c, CS + c, t + 1))]
        I('s_barrier', needs=dmas[0])
        self.stamp('bar0')
        g.extend(xread(0))
        for n in range(LOOK): g.extend(wread(n))
        self.nonce_issue()
        pend, dmas[2] = self.stage_dma(2, gpitch)
        pend = self.mall_issue(1) + pend
        started = set(); xr = 0; cfill = []
        for n, (ks, cc) in enumerate(seq):
            p = tiles[ks & 3]; c = p['t'][cc][0]; a = WF + 4 * (n % NF); xf = XF + 4 * (ks % 2)
            I('v_mfma_f32_32x32x16_bf16 %s, %s, %s, %s' % (vr(ACC + 16 * c, 16), vr(a, 4), vr(xf, 4), vr(ACC + 16 * c, 16) if c in started else '0'))
            started.add(c)
            nn = n + LOOK
            if nn < len(seq):
                ks2, cc2 = seq[nn]
                if cc2 == 0 and ks2 & 3 == 0:
                    st2 = ks2 >> 2
                    assert xr == ks2 - 1
                    g.extend(adv(st2))
                    if st2 == 1: self.nonce_get_publish(tag)
                    if st2 == 6: self.rs_issue()
                    if st2 in hooks.get('pre', {}): hooks['pre'][st2]()
                    if 'stg' in EXP and st2 in (2, 4): self.stamp('preB%d' % st2)
                    I('s_waitcnt lgkmcnt(0)')
                    if 'stg' in EXP and st2 in (2, 4): I('s_nop 0', needs=dmas[st2]); self.stamp('vmB%d' % st2); I('s_waitcnt lgkmcnt(0)')
                    I('s_barrier', needs=dmas[st2])
                    if 'stg' in EXP: self.stamp('B%d' % st2)
                    if st2 + 2 < 7:
                        newg, dmas[st2 + 2] = self.stage_dma(st2 + 2, gpitch); pend += newg
                    if st2 in hooks.get('post', {}): pend += hooks['post'][st2]()
                g.extend(wread(nn))
            if xr == ks and ks + 1 < 28 and (nn >= len(seq) or seq[min(nn, len(seq) - 1)][0] >= ks + 1):
                g.extend(xread(ks + 1)); xr = ks + 1
            if cc == 0 and p['cs']: cfill = [cs_ops(a + q, c) for q in range(4)]
            if cfill:
                g.extend(cfill.pop(0))
                if cc == len(p['t']) - 1:
                    for x in cfill: g.extend(x)
                    cfill = []
            if pend and (n % 2 == 0 or len(pend) > 6): g.extend(pend.pop(0))
        for x in pend: g.extend(x)
        self.stamp('loopend')

    def finish_stats(self, tl, scale, tag, before_b1=None, after_b1=None):
        I = self.I; T = TMP
        I('s_lshl_b32 s9, s%d, 2' % S_RT); I('v_add_u32 v%d, s9, v%d' % (T, VL16))
        bases = {}
        for c, sb, off in tl:
            if sb not in bases:
                bases[sb] = T + 1 + 2 * len(bases)
                I('v_add_u32 v%d, s%d, v%d' % (bases[sb], sb, T)); I('v_add_u32 v%d, s%d, v%d' % (bases[sb] + 1, sb, VL16))
        wr = []
        for c, sb, off in tl:
            t = T + 6 + (c & 1)
            I('v_cvt_pk_bf16_f32 v%d, v%d, v%d' % (t, CS + c, CS + c)); I('v_and_b32 v%d, s%d, v%d' % (t, S_MASK, t))
            I('v_sub_f32 v%d, v%d, v%d' % (t, CS + c, t)); I('v_cvt_pk_bf16_f32 v%d, v%d, v%d' % (CS + c, t, CS + c))
            wr.append(I('ds_write_b32 v%d, v%d offset:%d' % (bases[sb], CS + c, off)))
        if before_b1: wr += before_b1()
        self.rs_get(tag, scale)
        I('s_barrier', needs=wr)
        for c, sb, off in tl: I('ds_read_b128 %s, v%d offset:%d' % (vr(WF + 4 * c, 4), bases[sb] + 1, off))
        if after_b1: after_b1()
        for c, sb, off in tl:
            I('v_mfma_f32_32x32x16_bf16 %s, %s, %s, %s' % (vr(ACC + 16 * c, 16), vr(WF + 4 * c, 4), vr(XF, 4), vr(ACC + 16 * c, 16)))
        if 'stg' in EXP: self.stamp = lambda *a, **k: None
        self.stamp('stats')

    def with_bg(self, fn, tasks, every):
        with self.g.capture() as body:
            fn()
        out = []; tasks = list(tasks); cnt = 0
        for x in body:
            out.append(x); cnt += 1
            if tasks and cnt >= every and x.kind in ('valu', 'trans') and not (x.dst & {'vcc'}):
                out += tasks.pop(0); cnt = 0
        for t in tasks: out += t
        self.g.extend(out)

    def ffn(self):
        I = self.I; g = self.g
        self.tagbase = 'f'
        self.srd(S_W, 26, 448 * 3584)
        I('v_mul_u32_u24 v6, 3584, v6'); I('v_lshl_add_u32 v%d, v7, 4, v6' % DW)
        I('s_mul_i32 s%d, s%d, 448' % (S_WSO, S_IDX))
        dms = self.start_stream(3584)
        I('s_mul_i32 s10, s%d, 192' % S_CH); I('s_add_u32 s10, s10, %d' % WPART)
        self.read_addrs(False, shared=True)
        self.late_srds(); self.p2_setup()
        self.stream2(dms, 3584)
        self.row_stats()
        own = lambda i, o: [(c, AW + i, 64 * c) for c in o]
        tiles = [dict(t=[(3, AS, 0)] + own(0, [0, 1, 2]), cs=True), dict(t=own(1, [0, 1, 2]), cs=True),
                 dict(t=own(2, [1, 2, 0]) + [(3, AS + 1, 0)], cs=True), dict(t=own(3, [2, 0, 1]), cs=True)]
        self.bdma, self.bread = {}, {}; self.nslot = 5
        self.gemm(tiles, 3584, dms, 'f', self.bhooks())
        I('s_mul_i32 s10, s%d, 3072' % S_CH); I('s_add_u32 s10, s10, %d' % L_CP)
        I('s_lshl_b32 s11, s%d, 10' % S_CH); I('s_add_u32 s11, s11, %d' % (L_CP + 6144))
        I('v_mul_f32 v%d, 0.5, v%d' % (CS + 3, CS + 3))
        self.slot4_setup()
        self.finish_stats([(0, 10, 0), (1, 10, 1024), (2, 10, 2048), (3, 11, 0)], -L.LOG2E, 'f')
        SH = ACC + 48; T = TMP
        I('s_xor_b32 s8, s%d, 4' % S_WAVE); I('s_lshl_b32 s8, s8, 11'); I('s_add_u32 s8, s8, %d' % L_SHX); I('v_add_u32 v%d, s8, v%d' % (AX, VL16))
        I('s_lshl_b32 s8, s%d, 11' % S_WAVE); I('s_add_u32 s8, s8, %d' % L_SHX); I('v_add_u32 v%d, s8, v%d' % (AX + 1, VL16))
        I('s_lshl_b32 s8, s%d, 2' % S_RB); I('s_add_u32 s8, s8, s%d' % S_RT); I('s_mul_i32 s9, s8, %d' % (112 * 1024))
        I('s_mul_i32 s10, s%d, %d' % (S_IDX, 14 * 1024)); I('s_add_u32 s9, s9, s10')
        I('s_mul_i32 s10, s%d, 6144' % S_CH); I('s_add_u32 s10, s9, s10')
        I('s_lshl_b32 s11, s%d, 10' % S_CH); I('s_add_u32 s9, s9, s11'); I('s_add_u32 s9, s9, %d' % (12 * 1024))
        shw = [I('ds_write_b128 v%d, %s offset:%d' % (AX, vr(SH + 8 + 4 * q, 4), 1024 * q)) for q in range(2)]
        stores = []
        def unit(idx):
            c, u = divmod(idx, 2)
            A = ACC + 16 * c + 8 * u; T = [64, 72][idx & 1]; P = [80, 84][idx & 1]
            if c == 3:
                for j in range(0, 8, 2): I('v_pk_add_f32 %s, %s, %s' % (vr(A + j, 2), vr(A + j, 2), vr(A + 8 + j, 2)))
            for j in range(0, 8, 2): I('v_pk_mul_f32 %s, %s, %s op_sel_hi:[1,0]' % (vr(A + j, 2), vr(A + j, 2), vr(ST, 2)))
            for j in range(8): I('v_exp_f32 v%d, v%d' % (T + j, A + j))
            for j in range(0, 8, 2): I('v_pk_add_f32 %s, %s, 1.0 op_sel_hi:[1,0]' % (vr(T + j, 2), vr(T + j, 2)))
            for j in range(8): I('v_rcp_f32 v%d, v%d' % (T + j, T + j))
            for j in range(0, 8, 2): I('v_pk_mul_f32 %s, %s, %s' % (vr(T + j, 2), vr(T + j, 2), vr(A + j, 2)))
            for j in range(0, 8, 2): I('v_cvt_pk_bf16_f32 v%d, v%d, v%d' % (P + j // 2, T + j, T + j + 1))
            if idx == 4: I('s_add_u32 s10, s10, 4096')
            if c < 3: stores.append(I('buffer_store_dwordx4 %s, v%d, %s, s10 offen offset:%d sc1' % (vr(P, 4), VL16, sr(S_WS, 4), (idx % 4) * 1024)))
            else: stores.append(I('buffer_store_dwordx4 %s, v%d, %s, s9 offen sc1' % (vr(P, 4), VL16, sr(S_WS, 4))))
        self.with_bg(lambda: unit(0), self.b_dma(4) + [sum([self.b_read(k) for k in range(4)], [])] + self.b_dma(5, needs=self.bread[0]), 6)
        rf = []
        for k in range(1, 4): rf += self.b_dma(k + 5, needs=self.bread[k])
        self.with_bg(lambda: (unit(1), unit(2)), rf, 10)
        I('s_barrier', needs=shw)
        for q in range(2): I('ds_read_b128 %s, v%d offset:%d' % (vr(SH + 8 + 4 * q, 4), AX + 1, 1024 * q))
        self.with_bg(lambda: (unit(3), unit(4)), self.b_tasks(4, 6), 10)
        self.with_bg(lambda: (unit(5), unit(6)), self.b_tasks(6, 9), 8)
        self.stamp('epi')
        I('s_lshl_b32 s8, s%d, 2' % S_RB); I('s_add_u32 s8, s8, s%d' % S_RT); I('s_lshl_b32 s8, s8, 3'); I('s_add_u32 s8, s8, s%d' % S_IDX)
        I('s_lshl_b32 s8, s8, 1'); I('s_add_u32 s8, s8, s%d' % S_CH); I('s_lshl_b32 s8, s8, 8'); I('s_add_u32 s11, s8, %d' % L.WS_FLAG)
        I('s_add_u32 s10, s11, 128')
        self.publish(11, TMP, needs=stores[:4])
        self.stamp('pubA')
        self.p2_pre()
        pa = self.poll_issue(P2T + 1, 9, P2T)
        self.publish(10, 96, needs=stores)
        self.stamp('pubB')
        for t in self.b_tasks(9, 14): g.extend(t)
        I('s_waitcnt lgkmcnt(0)'); I('s_nop 0', needs=[pa])
        I('s_branch L_p2')

    def bhooks(self, extra=None):
        post = {5: lambda: self.b_dma(0) + self.b_dma(1), 6: lambda: self.b_dma(2) + self.b_dma(3)}
        if extra: post.update(extra)
        return dict(post=post)

    def pack_k(self, A, K8):
        I = self.I
        for j in range(8): I('v_cvt_pk_bf16_f32 v%d, v%d, v%d' % (K8 + j, A + 2 * j, A + 2 * j + 1))
        for j in (6, 7): I('v_cndmask_b32 v%d, v%d, 0, %s' % (K8 + j, K8 + j, sr(S_HIM, 2)))
    def phi_mfma(self, A, K8, WP):
        I = self.I
        I('v_mfma_f32_32x32x16_bf16 %s, %s, %s, 0' % (vr(A, 16), ar(WP, 4), vr(K8, 4)))
        I('v_mfma_f32_32x32x16_bf16 %s, %s, %s, %s' % (vr(A, 16), ar(WP + 4, 4), vr(K8 + 4, 4), vr(A, 16)))
    def softmax_unit(self, A, sreg=None):
        I = self.I
        EP, EN, M = 64, 80, TMP
        mx, nm, t, u = M, M + 1, M + 2, M + 4
        I('v_mov_b32 v%d, 0xff800000' % (M + 10))
        m2, n2 = M + 6, M + 7
        for (a, b, o) in ((mx, nm, 0), (m2, n2, 8)):
            I('v_max3_f32 v%d, v%d, v%d, v%d' % (a, A + o, A + o + 1, A + o + 2)); I('v_max3_f32 v%d, -v%d, -v%d, -v%d' % (b, A + o, A + o + 1, A + o + 2))
        for j in (3, 5):
            for (a, b, o) in ((mx, nm, 0), (m2, n2, 8)):
                I('v_max3_f32 v%d, v%d, v%d, v%d' % (a, a, A + o + j, A + o + j + 1)); I('v_max3_f32 v%d, v%d, -v%d, -v%d' % (b, b, A + o + j, A + o + j + 1))
        I('v_max3_f32 v%d, v%d, v%d, v%d' % (m2, m2, A + 7, A + 15)); I('v_max3_f32 v%d, v%d, -v%d, -v%d' % (n2, n2, A + 7, A + 15))
        I('v_max_f32 v%d, v%d, v%d' % (mx, mx, m2)); I('v_max_f32 v%d, v%d, v%d' % (nm, nm, n2))
        I('v_permlane32_swap_b32 v%d, v%d' % (mx, nm)); I('v_max_f32 v%d, v%d, v%d' % (t, mx, nm))
        I('v_mul_f32 v%d, -v%d, v%d' % (t, ST, t)); I('v_mov_b32 v%d, v%d' % (u, t)); I('v_permlane32_swap_b32 v%d, v%d' % (t, u))
        I('v_cndmask_b32 v%d, v%d, v%d, %s' % (t + 1, t, M + 10, sr(S_HIM, 2))); I('v_cndmask_b32 v%d, v%d, v%d, %s' % (u + 1, u, M + 10, sr(S_HIM, 2)))
        for j in range(0, 16, 2):
            sel = 'op_sel_hi:[1,0,0]' if j < 12 else 'op_sel:[0,0,1] op_sel_hi:[1,0,1]'
            I('v_pk_fma_f32 %s, %s, %s, %s %s' % (vr(EP + j, 2), vr(A + j, 2), vr(ST, 2), vr(t, 2), sel))
            I('v_pk_fma_f32 %s, %s, %s, %s %s neg_lo:[1,0,0] neg_hi:[1,0,0]' % (vr(EN + j, 2), vr(A + j, 2), vr(ST, 2), vr(u, 2), sel))
        for j in range(16): I('v_exp_f32 v%d, v%d' % (EP + j, EP + j)); I('v_exp_f32 v%d, v%d' % (EN + j, EN + j))
        sp, sn = M + 6, M + 8
        I('v_pk_add_f32 %s, %s, %s' % (vr(sp, 2), vr(EP, 2), vr(EP + 2, 2))); I('v_pk_add_f32 %s, %s, %s' % (vr(sn, 2), vr(EN, 2), vr(EN + 2, 2)))
        for j in range(4, 16, 2):
            I('v_pk_add_f32 %s, %s, %s' % (vr(sp, 2), vr(sp, 2), vr(EP + j, 2))); I('v_pk_add_f32 %s, %s, %s' % (vr(sn, 2), vr(sn, 2), vr(EN + j, 2)))
        I('v_add_f32 v%d, v%d, v%d' % (sp, sp, sp + 1)); I('v_add_f32 v%d, v%d, v%d' % (sn, sn, sn + 1))
        I('v_permlane32_swap_b32 v%d, v%d' % (sp, sn)); I('v_add_f32 v%d, v%d, v%d' % (t, sp, sn))
        if sreg is None:
            I('v_rcp_f32 v%d, v%d' % (t, t)); I('v_mov_b32 v%d, v%d' % (u, t)); I('v_permlane32_swap_b32 v%d, v%d' % (t, u))
            for j in range(0, 16, 2):
                I('v_pk_mul_f32 %s, %s, %s op_sel_hi:[1,0]' % (vr(EP + j, 2), vr(EP + j, 2), vr(t, 2)))
                I('v_pk_mul_f32 %s, %s, %s op_sel_hi:[1,0]' % (vr(EN + j, 2), vr(EN + j, 2), vr(u, 2)))
            for j in range(8):
                I('v_cvt_pk_bf16_f32 v%d, v%d, v%d' % (A + j, EP + 2 * j, EP + 2 * j + 1)); I('v_cvt_pk_bf16_f32 v%d, v%d, v%d' % (A + 8 + j, EN + 2 * j, EN + 2 * j + 1))
        else:
            I('v_mov_b32 v%d, v%d' % (u, t))
            for j in range(2): I('v_cvt_pk_bf16_f32 v%d, v%d, v%d' % (A + j, EP + 2 * j, EP + 2 * j + 1))
            I('v_permlane32_swap_b32 v%d, v%d' % (t, u)); I('v_rcp_f32 v%d, v%d' % (u, u))
            for j in range(2, 8): I('v_cvt_pk_bf16_f32 v%d, v%d, v%d' % (A + j, EP + 2 * j, EP + 2 * j + 1))
            I('v_mul_f32 v%d, v%d, v%d' % (u, u, t)); I('v_mov_b32 v%d, v%d' % (sreg, t))
            for j in range(0, 16, 2): I('v_pk_mul_f32 %s, %s, %s op_sel_hi:[1,0]' % (vr(EN + j, 2), vr(EN + j, 2), vr(u, 2)))
            for j in range(8): I('v_cvt_pk_bf16_f32 v%d, v%d, v%d' % (A + 8 + j, EN + 2 * j, EN + 2 * j + 1))

    def wphi_dma(self, n, head0_s):
        I = self.I; out = []
        I('s_mul_i32 s8, s%d, 1568' % head0_s); I('s_lshl_b32 s9, s%d, 10' % S_WAVE); I('s_add_u32 s8, s8, s9'); I('s_add_u32 s9, s9, %d' % L_WPHI)
        for i in range(n):
            I('s_add_u32 m0, s9, %d' % (8192 * i)); I('s_add_u32 s10, s8, %d' % (8192 * i))
            out.append(I('buffer_load_dwordx4 v%d, %s, s10 offen lds' % (VL16, sr(S_PHI, 4))))
        return out
    def wphi_read(self, nheads, hoff_s, WP):
        I = self.I; T = TMP + 9
        I('v_lshrrev_b32 v%d, 5, v%d' % (T, VLANE)); I('v_lshlrev_b32 v%d, 2, v%d' % (T, T)); I('v_bfe_u32 v%d, v%d, 2, 2' % (T + 1, VLANE)); I('v_add_u32 v%d, v%d, v%d' % (T, T, T + 1))
        I('v_mul_u32_u24 v%d, 56, v%d' % (T, T)); I('v_add_u32 v%d, s%d, v%d' % (T, hoff_s, T))
        I('v_bfe_u32 v%d, v%d, 4, 1' % (T + 1, VLANE)); I('v_lshlrev_b32 v%d, 2, v%d' % (T + 1, T + 1)); I('v_and_or_b32 v%d, v%d, 3, v%d' % (T + 1, VLANE, T + 1))
        I('v_min_u32 v%d, 6, v%d' % (T + 1, T + 1)); I('v_lshl_add_u32 v%d, v%d, 3, v%d' % (T, T + 1, T))
        for i in range(nheads):
            for s in range(2):
                for h in range(2):
                    I('ds_read_b64_tr_b16 %s, v%d offset:%d' % (ar(WP + 8 * i + 4 * s + 2 * h, 2), T, i * 1568 + (16 * s + 8 * h) * 56))

    def kv_common(self):
        I = self.I; g = self.g
        self.tagbase = 'k'
        self.srd(S_W, 18, 448 * 2688)
        I('s_lshl_b32 s8, s%d, 2' % S_IDX); I('s_lshr_b32 s9, 0xdb9630, s8'); I('s_and_b32 s9, s9, 15')
        I('s_lshr_b32 s10, 0x322333, s8'); I('s_and_b32 s10, s10, 15')
        I('s_mul_i32 s11, s9, 56'); I('s_and_b32 s%d, s11, -16' % S_WSO); I('s_and_b32 s11, s11, 8')
        I('s_mul_i32 s8, s10, 3'); I('s_add_u32 s8, s8, 1')
        I('v_cmp_lt_u32 vcc, 13, v7'); I('v_subrev_u32 v8, 14, v7'); I('v_cndmask_b32 v8, v7, v8, vcc'); I('v_min_u32 v8, s8, v8')
        I('v_mov_b32 v9, 896'); I('v_mov_b32 v10, 1792'); I('v_cndmask_b32 v9, v9, v10, vcc')
        I('v_mul_u32_u24 v6, 2688, v6'); I('v_add_u32 v6, v6, v9'); I('v_lshl_add_u32 v%d, v8, 4, v6' % DW)
        I('s_mov_b32 s0, s9'); I('s_mov_b32 s1, s10'); I('s_mov_b32 s%d, s11' % S_NONCE)
        dms = self.start_stream(2688)
        I('s_mul_i32 s10, s%d, 224' % S_CH); I('s_add_u32 s10, s10, s%d' % S_NONCE); I('s_add_u32 s10, s10, %d' % WPART)
        self.read_addrs(True)
        self.late_srds(); self.p2_setup()
        I('s_mov_b32 s%d, s0' % S_H0); I('s_mov_b32 s%d, s1' % S_NH)
        self.stream2(dms, 2688)
        wp = self.wphi_dma(1, S_H0)
        I('v_mov_b32 v8, 0'); I('v_mov_b32 v9, %d' % L_CNT); I('ds_write_b32 v9, v8')
        I('s_cmp_lg_u32 s%d, 0' % S_RB); I('s_cbranch_scc1 L_nozero')
        for i in range(4): I('v_mov_b32 v%d, 0' % (TMP + i))
        I('s_lshl_b32 s8, s%d, 13' % S_H0); I('s_lshl_b32 s9, s%d, 10' % S_WAVE); I('s_add_u32 s8, s8, s9'); I('s_add_u32 s8, s8, %d' % L.WS_KV)
        self.U('buffer_store_dwordx4 %s, v%d, %s, s8 offen sc1' % (vr(TMP, 4), VL16, sr(S_WS, 4)))
        I('s_add_u32 s8, s8, 8192'); self.U('buffer_store_dwordx4 %s, v%d, %s, s8 offen sc1' % (vr(TMP, 4), VL16, sr(S_WS, 4)))
        I('s_add_u32 s8, s8, 8192'); I('s_cmp_eq_u32 s%d, 3' % S_NH); I('s_cselect_b32 s8, s8, 0x7f000000')
        self.U('buffer_store_dwordx4 %s, v%d, %s, s8 offen sc1' % (vr(TMP, 4), VL16, sr(S_WS, 4))); I('s_nop 1')
        self.g.label('L_nozero')
        self.row_stats()
        rot = lambda i: [((i + cc) % 3, AW + i, 56 * ((i + cc) % 3)) for cc in range(3)]
        tiles = [dict(t=rot(i), cs=(i < 3)) for i in range(4)]
        self.bdma, self.bread = {}, {}; self.nslot = 5
        def pre2():
            pass
        def post2():
            with g.capture() as a:
                I('s_or_b32 s8, s%d, s%d' % (S_RB, S_WAVE)); I('s_cmp_lg_u32 s8, 0'); I('s_cbranch_scc1 L_nozf')
                I('s_lshl_b32 s8, s%d, 2' % S_IDX); I('s_add_u32 s8, s8, %d' % L.WS_KVZ)
                self.publish(8, TMP + 8).kind = 'untracked'
                self.g.label('L_nozf')
                I('s_mov_b32 s8, %d' % L_WPHI)
                self.wphi_read(3, 8, 88)
            return [a]
        self.gemm(tiles, 2688, dms, 'k', self.bhooks({2: post2}))
        I('s_lshl_b32 s10, s%d, 12' % S_CH); I('s_add_u32 s10, s10, %d' % L_CP)
        self.finish_stats([(0, 10, 0), (1, 10, 1024), (2, 10, 2048)], L.LOG2E, 'k')
        self.slot4_setup()
        T = TMP
        I('v_and_b32 v%d, 31, v%d' % (T, VLANE)); I('v_lshlrev_b32 v%d, 6, v%d' % (T, T)); I('s_lshl_b32 s8, s%d, 11' % S_RT); I('v_add_u32 v%d, s8, v%d' % (T, T))
        I('v_bfe_u32 v%d, v%d, 1, 2' % (T + 1, VLANE)); I('v_lshl_add_u32 v%d, v%d, 4, v%d' % (CS + 2, T + 1, T))
        I('v_lshrrev_b32 v%d, 5, v%d' % (CS + 3, VLANE))
        I('v_lshl_add_u32 v%d, v%d, 13, v%d' % (AX, CS + 3, CS + 2))
        for q in range(1, 4): I('v_xor_b32 v%d, %d, v%d' % (AX + q, 16 * q, AX))
        I('s_lshl_b32 s8, s%d, 11' % S_RT); I('s_add_u32 s8, s8, %d' % (L_PHI + 16384)); I('v_add_u32 v%d, s8, v%d' % (AW, VL16))
        U = 120
        I('v_bfe_u32 v%d, v%d, 2, 2' % (T + 1, VLANE)); I('v_lshl_add_u32 v%d, v%d, 2, v%d' % (T, CS + 3, T + 1))
        I('v_lshrrev_b32 v%d, 1, v%d' % (T + 1, T))
        I('v_bfe_u32 v%d, v%d, 4, 1' % (T + 2, VLANE)); I('v_bfe_u32 v%d, v%d, 1, 1' % (T + 3, VLANE)); I('v_lshl_add_u32 v%d, v%d, 1, v%d' % (T + 2, T + 2, T + 3))
        I('v_xor_b32 v%d, v%d, v%d' % (T + 1, T + 1, T + 2)); I('v_lshlrev_b32 v%d, 6, v%d' % (T, T)); I('v_lshl_add_u32 v%d, v%d, 4, v%d' % (T, T + 1, T))
        I('v_and_b32 v%d, 1, v%d' % (T + 1, VLANE)); I('v_lshl_add_u32 v%d, v%d, 3, v%d' % (T, T + 1, T))
        I('s_and_b32 s8, s%d, 2' % S_RT); I('s_cmp_eq_u32 s%d, 0' % S_CH); I('s_cselect_b32 s8, 1, s8')
        I('s_and_b32 s9, s%d, 1' % S_RT)
        I('s_lshl_b32 s10, s8, 1'); I('s_add_u32 s10, s10, s9'); I('s_lshl_b32 s10, s10, 13'); I('v_add_u32 v%d, s10, v%d' % (U + 1, T))
        I('s_lshl_b32 s10, s8, 13'); I('s_add_u32 s10, s10, %d' % L_V); I('v_add_u32 v%d, s10, v%d' % (U, T))
        I('v_lshlrev_b32 v%d, 10, v%d' % (U + 2, CS + 3)); I('v_and_b32 v%d, 31, v%d' % (T + 3, VLANE)); I('v_lshl_add_u32 v%d, v%d, 2, v%d' % (U + 2, T + 3, U + 2))
        I('s_add_u32 s10, s8, s%d' % S_H0); I('s_lshl_b32 s10, s10, 13'); I('s_lshl_b32 s9, s9, 7'); I('s_add_u32 s10, s10, s9'); I('s_add_u32 s0, s10, %d' % L.WS_KV)
        I('s_cmp_lt_u32 s8, s%d' % S_NH); I('s_cselect_b32 s1, 1, 0')
        I('s_lshr_b32 s9, s%d, 1' % S_WAVE); I('s_cmp_eq_u32 s9, 1'); I('s_cselect_b32 s1, 0, s1')
        I('s_lshl_b32 s11, s%d, 2' % S_IDX); I('s_add_u32 s11, s11, %d' % L.WS_KVZ); I('v_mov_b32 v123, 0')
        self.poll_issue(123, 11, 124)
        I('s_cmp_eq_u32 s%d, 1' % S_CH); I('s_cbranch_scc1 L_kv_v')

    def phi_write(self, A, i):
        return [self.I('ds_write_b128 v%d, %s offset:%d' % (AX + q, vr(A + 4 * q, 4), L_PHI + 16384 * i)) for q in range(4)]

    def kv_unit_tail(self, tg, rdk):
        I = self.I; g = self.g; U = 120
        I('s_waitcnt lgkmcnt(0)')
        I('s_cmp_eq_u32 s1, 0'); I('s_cbranch_scc1 L_nounit%s' % tg)
        def rd(s):
            b = 64 + 8 * (s % 4)
            for h in range(2):
                I('ds_read_b64_tr_b16 %s, v%d offset:%d' % (vr(b + 2 * h, 2), U, (16 * s + 8 * h) * 64))
                I('ds_read_b64_tr_b16 %s, v%d offset:%d' % (vr(b + 4 + 2 * h, 2), U + 1, (16 * s + 8 * h) * 64))
        D = ACC + 48
        for s in range(3): rd(s)
        for s in range(8):
            if s + 3 < 8: rd(s + 3)
            b = 64 + 8 * (s % 4)
            I('v_mfma_f32_32x32x16_bf16 %s, %s, %s, %s' % (vr(D, 16), vr(b, 4), vr(b + 4, 4), vr(D, 16) if s else '0'))
        I('s_add_u32 s10, s0, 4096')
        I('s_nop 7'); I('s_nop 3')
        for r in range(16):
            d = (r & 3) + 8 * (r >> 2)
            if r == 13: I('s_mov_b32 exec_hi, 0')
            self.U('buffer_atomic_add_f32 v%d, v%d, %s, s%d offen offset:%d' % (D + r, U + 2, sr(S_WS, 4), 0 if d < 16 else 10, (d % 16) * 256))
        I('s_mov_b64 exec, -1')
        self.g.label('L_nounit%s' % tg)
    def kv_done(self, tg, rdk):
        I = self.I; g = self.g
        self.stamp('units')
        I('s_lshl_b32 s8, s%d, 4' % S_IDX); I('s_add_u32 s8, s8, s%d' % S_RB); I('s_lshl_b32 s8, s8, 7'); I('s_add_u32 s10, s8, %d' % L.WS_KVD)
        for t in [self.b_read(k) for k in range(4)]: g.extend(t)
        self.p2_pre()
        I('v_mov_b32 v96, 1'); I('v_mov_b32 v97, %d' % L_CNT)
        I('s_waitcnt vmcnt(0)')
        I('s_mov_b64 exec, 1'); I('ds_add_rtn_u32 v96, v97, v96'); I('s_mov_b64 exec, -1')
        I('v_readfirstlane_b32 s8, v96'); I('s_cmp_lg_u32 s8, 7'); I('s_cbranch_scc1 L_nokf%s' % tg)
        self.publish(10, 96).kind = 'untracked'
        self.g.label('L_nokf%s' % tg)
        self.stamp('kvdone')
        for k in range(4, 9):
            for t in self.b_dma(k): g.extend(t)
        for t in self.b_tasks(4, 9): g.extend(t)
        pa = self.poll_issue(P2T + 1, 9, P2T)
        for t in self.b_tasks(9, 14): g.extend(t)
        I('s_waitcnt vmcnt(0) lgkmcnt(0)')
        I('s_branch L_p2')

    def kv_k(self):
        I = self.I; g = self.g
        self.pack_k(ACC + 32, 96)
        wr = [I('ds_write_b128 v%d, %s offset:%d' % (AW, vr(96 + 4 * q, 4), 1024 * q)) for q in range(2)]
        self.pack_k(ACC, 64); self.phi_mfma(ACC, 64, 88)
        self.pack_k(ACC + 16, 72); self.phi_mfma(ACC + 16, 72, 96)
        I('s_barrier', needs=wr)
        self.stamp('ba')
        self.softmax_unit(ACC)
        I('s_barrier', needs=self.phi_write(ACC, 0))
        self.softmax_unit(ACC + 16)
        self.poll_check('zk', 123, 11, 124)
        I('s_barrier', needs=self.phi_write(ACC + 16, 1))
        self.kv_unit_tail('k', 9)
        self.kv_done('k', 9)

    def kv_v(self):
        I = self.I; g = self.g; T = TMP
        I('v_lshl_add_u32 v%d, v%d, 3, v%d' % (T, CS + 3, CS + 2)); I('v_add_u32 v%d, %d, v%d' % (T, L_V, T))
        for q in range(1, 4): I('v_xor_b32 v%d, %d, v%d' % (T + q, 16 * q, T))
        I('v_cndmask_b32 v%d, v%d, 0, %s' % (CS, ST + 1, sr(S_HIM, 2))); I('v_cndmask_b32 v%d, 0, 1.0, %s' % (CS + 1, sr(S_HIM, 2)))
        wr = []
        I('s_barrier')
        self.stamp('ba')
        for q in range(2): I('ds_read_b128 %s, v%d offset:%d' % (vr(96 + 4 * q, 4), AW, 1024 * q))
        for i in range(3):
            A = ACC + 16 * i
            for j in range(0, 12, 2): I('v_pk_mul_f32 %s, %s, %s op_sel:[0,1] op_sel_hi:[1,1]' % (vr(A + j, 2), vr(A + j, 2), vr(ST, 2)))
            for j in (12, 14): I('v_pk_fma_f32 %s, %s, %s, %s op_sel:[0,0,1] op_sel_hi:[1,0,1]' % (vr(A + j, 2), vr(A + j, 2), vr(CS, 2), vr(CS, 2)))
            for j in range(8): I('v_cvt_pk_bf16_f32 v%d, v%d, v%d' % (A + j, A + 2 * j, A + 2 * j + 1))
            for q in range(4): wr.append(I('ds_write_b64 v%d, %s offset:%d' % (T + q, vr(A + 2 * q, 2), 8192 * i)))
            if i == 0: self.phi_mfma(ACC + 48, 96, 104)
        self.softmax_unit(ACC + 48)
        self.poll_check('zv', 123, 11, 124)
        I('s_barrier', needs=wr + self.phi_write(ACC + 48, 2))
        self.kv_unit_tail('v', 9)
        I('s_barrier')
        self.kv_done('v', 9)
    _uid = 0
    def uid(self):
        K._uid += 1
        return str(K._uid)

    def q(self):
        I = self.I; g = self.g
        self.tagbase = 'q'
        self.srd(S_W, 18, 448 * 2688)
        I('v_mul_u32_u24 v6, 2688, v6'); I('v_lshl_add_u32 v%d, v7, 4, v6' % DW)
        I('s_mul_i32 s%d, s%d, 448' % (S_WSO, S_IDX))
        dms = self.start_stream(2688)
        I('s_mul_i32 s10, s%d, 224' % S_CH); I('s_add_u32 s10, s10, %d' % WPART)
        self.read_addrs(True)
        self.late_srds()
        I('s_lshl_b32 s%d, s%d, 3' % (S_H0, S_IDX))
        self.stream2(dms, 2688)
        self.wphi_dma(2, S_H0)
        self.row_stats()
        tiles = [dict(t=[((i + cc) % 4, AW + i, 56 * ((i + cc) % 4)) for cc in range(4)], cs=True) for i in range(4)]
        def post2():
            with g.capture() as a:
                I('s_mul_i32 s8, s%d, %d' % (S_CH, 4 * 1568)); I('s_add_u32 s8, s8, %d' % L_WPHI)
                self.wphi_read(4, 8, 0)
            return [a]
        self.gemm(tiles, 2688, dms, 'q', dict(post={2: post2}))
        I('s_lshl_b32 s10, s%d, 12' % S_CH); I('s_add_u32 s10, s10, %d' % L_CP)
        self.finish_stats([(c, 10, 1024 * c) for c in range(4)], L.LOG2E, 'q')
        for i in range(4):
            self.pack_k(ACC + 16 * i, 80 + 8 * (i & 1)); self.phi_mfma(ACC + 16 * i, 80 + 8 * (i & 1), 8 * i)
        for i in range(4): self.softmax_unit(ACC + 16 * i, sreg=124 + i)
        self.stamp('soft')
        T = TMP
        I('v_lshrrev_b32 v%d, 4, v%d' % (T, VLANE)); I('s_lshl_b32 s8, s%d, 1' % S_IDX); I('v_add_u32 v%d, s8, v%d' % (T, T))
        I('s_mul_i32 s8, s%d, 3' % S_IDX); I('s_add_u32 s8, s8, 2'); I('v_min_u32 v%d, s8, v%d' % (T, T))
        I('v_and_b32 v%d, 15, v%d' % (T + 1, VLANE)); I('v_lshl_add_u32 v%d, v%d, 4, v%d' % (T, T, T + 1)); I('v_lshlrev_b32 v%d, 7, v%d' % (T, T))
        I('s_mov_b32 s11, %d' % L.WS_KVD)
        I('v_lshrrev_b32 v%d, 3, v%d' % (T + 2, VLANE)); I('v_lshlrev_b32 v%d, 8, v%d' % (T + 2, T + 2))
        I('v_lshrrev_b32 v%d, 4, v%d' % (T + 3, VLANE)); I('v_and_b32 v%d, 7, v%d' % (T + 4, VLANE)); I('v_xor_b32 v%d, v%d, v%d' % (T + 3, T + 3, T + 4))
        I('v_lshl_add_u32 v%d, v%d, 4, v%d' % (T + 4, T + 3, T + 2)); I('v_xor_b32 v%d, 64, v%d' % (T + 5, T + 4))
        I('s_add_u32 s8, s%d, s%d' % (S_H0, S_WAVE)); I('s_lshl_b32 s8, s8, 13'); I('s_add_u32 s8, s8, %d' % L.WS_KV)
        I('s_lshl_b32 s9, s%d, 13' % S_WAVE)
        I('v_bfe_u32 v%d, v%d, 3, 2' % (T + 2, VLANE)); I('v_lshlrev_b32 v%d, 2, v%d' % (T + 2, T + 2)); I('v_and_or_b32 v%d, v%d, 3, v%d' % (T + 2, VLANE, T + 2))
        I('v_bfe_u32 v%d, v%d, 2, 1' % (T + 3, VLANE)); I('v_mul_u32_u24 v%d, 14, v%d' % (T + 3, T + 3)); I('v_add_u32 v%d, v%d, v%d' % (T + 3, T + 3, T + 2))
        I('v_cmp_gt_u32 vcc, 14, v%d' % (T + 2)); I('v_cndmask_b32 v%d, 28, v%d, vcc' % (T + 3, T + 3))
        I('v_bfe_u32 v%d, v%d, 1, 3' % (T + 2, T + 3)); I('v_lshlrev_b32 v%d, 4, v%d' % (T + 2, T + 2))
        I('v_and_b32 v%d, 32, v%d' % (T + 6, VLANE)); I('v_add_u32 v%d, v%d, v%d' % (T + 3, T + 3, T + 6)); I('v_lshl_add_u32 v%d, v%d, 7, v%d' % (T + 2, T + 3, T + 2))
        I('v_add_u32 v%d, s9, v%d' % (T + 2, T + 2))
        I('s_cmp_lg_u32 s%d, 0' % S_WAVE); I('s_cbranch_scc1 L_polldkv')
        self.g.label('L_pollkv')
        self.U('buffer_load_dword v64, v%d, %s, s11 offen sc1' % (T, sr(S_WS, 4))); self.U('s_waitcnt vmcnt(0)')
        I('v_cmp_ne_u32 vcc, s%d, v64' % S_NONCE); I('s_nop 1'); I('s_cbranch_vccz L_polldkv')
        self.spin_tail('L_pollkv')
        self.g.label('L_polldkv')
        I('s_barrier')
        self.stamp('kvok')
        dm = []
        for i in range(8):
            I('s_add_u32 m0, s9, %d' % (L_KVQ + 1024 * i)); I('s_add_u32 s10, s8, %d' % ((i & 3) * 2048 + (i >> 2) * 128))
            dm.append(I('buffer_load_dwordx4 v%d, %s, s10 offen sc1 lds' % (T + 4 + (i & 1), sr(S_WS, 4))))
        for c in range(8):
            I('v_xor_b32 v%d, %d, v%d' % (T + 6 + (c & 1), 16 * c, T + 2))
            I('ds_read_b128 %s, v%d' % (vr(64 + 4 * c, 4), T + 6 + (c & 1)), needs=dm)
        for j in range(16): I('v_cvt_pk_bf16_f32 v%d, v%d, v%d' % (96 + j, 64 + 2 * j, 64 + 2 * j + 1))
        I('s_lshl_b32 s8, s%d, 12' % S_WAVE); I('s_add_u32 s8, s8, %d' % L_KVF); I('v_add_u32 v%d, s8, v%d' % (T, VL16))
        wr = [I('ds_write_b128 v%d, %s offset:%d' % (T, vr(96 + 4 * s, 4), 1024 * s)) for s in range(4)]
        I('s_lshl_b32 s8, s%d, 14' % S_CH); I('s_add_u32 s8, s8, %d' % L_KVF); I('v_add_u32 v%d, s8, v%d' % (T, VL16))
        I('s_barrier', needs=wr)
        for i in range(4):
            for s in range(4): I('ds_read_b128 %s, v%d offset:%d' % (ar(32 + 16 * i + 4 * s, 4), T, 4096 * i + 1024 * s))
        I('s_lshl_b32 s8, s%d, 2' % S_RB); I('s_add_u32 s8, s8, s%d' % S_RT); I('s_mul_i32 s8, s8, 28'); I('s_mul_i32 s9, s%d, 14' % S_IDX); I('s_add_u32 s8, s8, s9')
        I('s_mul_i32 s9, s%d, 7' % S_CH); I('s_add_u32 s8, s8, s9'); I('s_lshl_b32 s8, s8, 10'); I('s_add_u32 s8, s8, %d' % L.WS_O); I('s_add_u32 s9, s8, 4096')
        N = [64, 80]; O = 96
        for i in range(4):
            for s in range(4):
                I('v_mfma_f32_32x32x16_bf16 %s, %s, %s, %s' % (vr(N[i & 1], 16), ar(32 + 16 * i + 4 * s, 4), vr(ACC + 16 * i + 4 * s, 4), vr(N[i & 1], 16) if s else '0'))
            if i >= 1: self.o_fin(N[(i - 1) & 1], O + 7 * (i - 1), 124 + i - 1)
        self.o_fin(N[1], O + 21, 127)
        for f in range(7):
            I('buffer_store_dwordx4 %s, v%d, %s, s%d offen offset:%d sc1' % (vr(O + 4 * f, 4), VL16, sr(S_WS, 4), 8 if f < 4 else 9, (f % 4) * 1024))
        I('s_lshl_b32 s8, s%d, 2' % S_RB); I('s_add_u32 s8, s8, s%d' % S_RT); I('s_lshl_b32 s8, s8, 1'); I('s_add_u32 s8, s8, s%d' % S_IDX)
        I('s_lshl_b32 s8, s8, 1'); I('s_add_u32 s8, s8, s%d' % S_CH); I('s_lshl_b32 s8, s8, 7'); I('s_add_u32 s11, s8, %d' % L.WS_FO)
        I('s_waitcnt vmcnt(0)')
        self.publish(11, TMP)
        self.stamp('opub')
        I('s_waitcnt vmcnt(0)')
    def o_fin(self, N, O, sreg):
        I = self.I; t = TMP + 8
        I('v_fmac_f32 v%d, %s, v%d' % (N + 14, f32(1e-6), sreg)); I('v_rcp_f32 v%d, v%d' % (t, N + 14))
        for j in range(0, 14, 2): I('v_pk_mul_f32 %s, %s, %s op_sel_hi:[1,0]' % (vr(N + j, 2), vr(N + j, 2), vr(t, 2)))
        for j in range(7): I('v_cvt_pk_bf16_f32 v%d, v%d, v%d' % (O + j, N + 2 * j, N + 2 * j + 1))

    def p2_pre(self):
        I = self.I; T = P2T
        I('s_bfe_u32 s11, s%d, 0x10001' % S_WAVE)
        I('s_lshl_b32 s8, s%d, 1' % S_RG); I('s_add_u32 s8, s8, s11')
        I('s_mul_i32 s%d, s8, 112' % S_A0); I('s_xor_b32 s9, s8, 1'); I('s_mul_i32 s%d, s9, 112' % S_A1)
        I('s_mul_i32 s9, s%d, 14' % S_WAVE); I('s_add_u32 s%d, s%d, s9' % (S_A0, S_A0)); I('s_add_u32 s%d, s%d, s9' % (S_A1, S_A1))
        I('s_lshl_b32 s%d, s%d, 10' % (S_A0, S_A0)); I('s_lshl_b32 s%d, s%d, 10' % (S_A1, S_A1))
        I('s_mul_i32 s%d, s8, 28' % S_OSO); I('s_mul_i32 s9, s%d, 14' % S_CH); I('s_add_u32 s%d, s%d, s9' % (S_OSO, S_OSO)); I('s_lshl_b32 s%d, s%d, 10' % (S_OSO, S_OSO))
        I('s_add_u32 s%d, s%d, %d' % (S_OSO, S_OSO, L.WS_O))
        XO = T + 2
        I('v_and_b32 v%d, 31, v%d' % (T, VLANE)); I('v_mul_u32_u24 v%d, 896, v%d' % (T, T)); I('v_lshrrev_b32 v%d, 5, v%d' % (T + 1, VLANE)); I('v_lshl_add_u32 v%d, v%d, 4, v%d' % (XO, T + 1, T))
        I('s_mul_i32 s8, s8, %d' % (32 * 896)); I('s_lshl_b32 s9, s%d, 7' % S_CG); I('s_add_u32 s8, s8, s9')
        I('s_and_b32 s9, s%d, 1' % S_WAVE); I('s_lshl_b32 s9, s9, 6'); I('s_add_u32 s8, s8, s9'); I('s_lshl_b32 s9, s%d, 5' % S_CH); I('s_add_u32 s30, s8, s9')
        WA = T + 8
        I('v_lshrrev_b32 v%d, 5, v%d' % (T, VLANE)); I('v_bfe_u32 v%d, v%d, 3, 1' % (WA, VLANE)); I('v_xor_b32 v%d, v%d, v%d' % (WA, WA, T))
        I('v_mul_u32_u24 v%d, 14, v%d' % (WA + 1, T)); I('v_bfe_u32 v%d, v%d, 2, 2' % (WA + 2, VLANE)); I('v_add_u32 v%d, v%d, v%d' % (WA + 1, WA + 1, WA + 2))
        I('v_lshlrev_b32 v%d, 7, v%d' % (WA + 1, WA + 1)); I('v_lshl_add_u32 v%d, v%d, 6, v%d' % (WA, WA, WA + 1))
        I('v_and_b32 v%d, 3, v%d' % (WA + 1, VLANE)); I('v_lshl_add_u32 v%d, v%d, 3, v%d' % (WA, WA + 1, WA))
        I('v_and_b32 v%d, 16, v%d' % (WA + 1, VLANE)); I('v_lshl_add_u32 v%d, v%d, 1, v%d' % (WA, WA + 1, WA))
        I('s_and_b32 s8, s%d, 1' % S_WAVE); I('s_lshl_b32 s8, s8, 6'); I('s_lshl_b32 s29, s%d, 5' % S_CH); I('s_or_b32 s8, s8, s29'); I('v_xor_b32 v%d, s8, v%d' % (WA, WA))
        I('s_mul_i32 s8, s%d, %d' % (S_CH, 224 * 128)); I('v_add_u32 v%d, s8, v%d' % (WA, WA))
        I('v_xor_b32 v%d, 64, v%d' % (WA + 1, WA))
        I('v_add_u32 v%d, %d, v%d' % (WA + 2, 14 * 128, WA + 1)); I('v_and_b32 v%d, 8, v%d' % (T, VLANE)); I('v_cmp_eq_u32 vcc, 0, v%d' % T); I('v_cndmask_b32 v%d, v%d, v%d, vcc' % (WA + 2, WA + 2, WA))
        I('v_and_b32 v%d, 1, v%d' % (T, VLANE)); I('v_bfe_u32 v%d, v%d, 1, 1' % (T + 1, VLANE)); I('v_lshl_add_u32 v%d, v%d, 4, v%d' % (T + 1, T + 1, T)); I('v_lshlrev_b32 v%d, 8, v%d' % (T + 1, T + 1))
        I('v_and_b32 v%d, 7, v%d' % (T + 3, VLANE)); I('v_lshlrev_b32 v%d, 7, v%d' % (T + 3, T + 3))
        I('s_lshl_b32 s8, s%d, 13' % S_RG); I('s_lshl_b32 s9, s%d, 9' % S_WAVE); I('s_add_u32 s9, s9, s8'); I('s_add_u32 s9, s9, %d' % L.WS_FLAG)
        I('s_add_u32 s27, s9, 128'); I('s_mov_b32 s26, s9')
        I('s_lshl_b32 s8, s%d, 10' % S_RG); I('s_add_u32 s28, s8, %d' % L.WS_FO)

    def phase2(self):
        I = self.I; g = self.g; T = P2T
        XO, XR, WA = T + 2, T + 4, T + 8
        self.nst = 8
        if 'start' in EXP or 'stg' in EXP: self.nst = 15
        self.stamp('p2start')
        self.poll_check('A', T + 1, 26, T)
        self.stamp('hok')
        RING = 64; NR = 16
        korder = [0, 1, 2, 3, 6, 7, 8, 9, 4, 5, 10, 11, 12, 13]
        frs = [('h', k, a) for k in korder for a in range(2)] + [('o', kk, 0) for kk in range(14)]
        def load(n):
            kind, k, a = frs[n]; r = RING + 4 * (n % NR)
            base = (S_A1 if a else S_A0) if kind == 'h' else S_OSO
            if k >= 4:
                I('s_add_u32 s8, s%d, %d' % (base, (k // 4) * 4096)); base = 8
            I('buffer_load_dwordx4 %s, v%d, %s, s%d offen offset:%d%s' % (vr(r, 4), VL16, sr(S_WS, 4), base, (k % 4) * 1024, ' sc1' if 'asc1' in EXP else ''))
        def wo_read(kk, dst):
            G, f = divmod(kk, 7)
            for pp in range(2):
                p = 4 * f + 2 * pp; hl = 4 * G + p // 7; i = p % 7
                areg = WA + 2 if i == 6 else WA + (i & 1)
                I('ds_read_b64_tr_b16 %s, v%d offset:%d' % (ar(dst + 2 * pp, 2), areg, L_WO + (28 * hl + 2 * i) * 128))
        for n in range(NR):
            load(n)
            if n == BCHK: self.poll_issue(T + 1, 27, T)
        nl = NR
        wodst = {}; wog = []
        for ki, k in enumerate(korder):
            for a in range(2):
                n = 2 * ki + a; r = RING + 4 * (n % NR)
                for b in range(2):
                    I('v_mfma_f32_32x32x16_bf16 %s, %s, %s, %s' % (vr(16 * (2 * a + b), 16), ar(8 * k + 4 * b, 4), vr(r, 4), vr(16 * (2 * a + b), 16) if ki else '0'))
                if nl == 16:
                    if n < BCHK: continue
                    self.poll_check('B', T + 1, 27, T)
                while nl < 28 and nl - NR <= n:
                    load(nl); nl += 1
                    if nl == 28: I('buffer_load_dwordx4 %s, v%d, %s, s30 offen' % (vr(XR, 4), XO, sr(S_X, 4)))
            if ki == 1 and 'st2' in EXP: self.stamp('preW1')
            if ki == 8 and 'st2' in EXP: self.stamp('preW2')
            if ki == 1:
                I('s_barrier')
                wog = self.wo_dma(); wod = [x for gp in wog for x in gp if x.kind == 'dma']
            if ki >= 1 and wog:
                for t in wog[:2]: g.extend(t)
                wog = wog[2:]
            if ki == 8: I('s_barrier', needs=wod)
            if ki >= 9:
                for e in range(3):
                    kk = 3 * (ki - 9) + e
                    if kk < 14:
                        wodst[kk] = 8 * korder[kk // 2] + 4 * (kk & 1)
                        wo_read(kk, wodst[kk])
        self.stamp('gdone')
        I('s_waitcnt lgkmcnt(0)')
        I('s_barrier')
        I('s_lshl_b32 s8, s%d, 14' % S_WAVE); I('v_add_u32 v%d, s8, v%d' % (T, VL16))
        wr = []
        for sp in range(1, 8):
            tau, eta = sp & 3, sp >> 2
            I('v_xor_b32 v%d, %d, v%d' % (T + 1, sp << 14, T))
            for q in range(2):
                wr.append(I('ds_write_b128 v%d, %s offset:%d' % (T + 1, vr(16 * tau + 8 * eta + 4 * q, 4), 2048 * sp + 1024 * q)))
        I('s_cmp_lg_u32 s%d, 0' % S_WAVE); I('s_cbranch_scc1 L_polldO')
        self.g.label('L_pollO')
        self.U('buffer_load_dword v%d, v%d, %s, s28 offen sc1' % (WA, T + 3, sr(S_WS, 4))); self.U('s_waitcnt vmcnt(0)')
        I('v_cmp_ne_u32 vcc, s%d, v%d' % (S_NONCE, WA)); I('s_nop 1'); I('s_cbranch_vccz L_polldO')
        self.spin_tail('L_pollO')
        self.g.label('L_polldO')
        I('s_barrier', needs=wr)
        self.stamp('ook')
        while nl < 42: load(nl); nl += 1
        for sp in range(1, 8):
            for q in range(2): I('ds_read_b128 %s, v%d offset:%d' % (vr(8 * sp + 4 * q, 4), T, 2048 * sp + 1024 * q))
        for j in range(0, 8, 2): I('v_pk_add_f32 %s, %s, %s' % (vr(j, 2), vr(j, 2), vr(8 + j, 2)))
        for sp in (2, 4, 6):
            for j in range(0, 8, 2): I('v_pk_add_f32 %s, %s, %s' % (vr(8 * sp + j, 2), vr(8 * sp + j, 2), vr(8 * sp + 8 + j, 2)))
        for j in range(0, 8, 2): I('v_pk_add_f32 %s, %s, %s' % (vr(j, 2), vr(j, 2), vr(16 + j, 2)))
        for j in range(0, 8, 2): I('v_pk_add_f32 %s, %s, %s' % (vr(32 + j, 2), vr(32 + j, 2), vr(48 + j, 2)))
        for j in range(0, 8, 2): I('v_pk_add_f32 %s, %s, %s' % (vr(j, 2), vr(j, 2), vr(32 + j, 2)))
        for j in range(8): I('v_exp_f32 v%d, v%d' % (24 + j, j))
        for j in range(0, 8, 2): I('v_pk_add_f32 %s, %s, 1.0 op_sel_hi:[1,0]' % (vr(24 + j, 2), vr(24 + j, 2)))
        for j in range(8): I('v_rcp_f32 v%d, v%d' % (24 + j, 24 + j))
        I('s_mov_b32 s8, %s' % f32(-1.0 / L.LOG2E)); I('s_mov_b32 s9, s8')
        for j in range(0, 8, 2): I('v_pk_mul_f32 %s, %s, s[8:9]' % (vr(j, 2), vr(j, 2)))
        for j in range(0, 8, 2): I('v_pk_mul_f32 %s, %s, %s' % (vr(j, 2), vr(j, 2), vr(24 + j, 2)))
        for j in range(4): I('v_lshlrev_b32 v%d, 16, v%d' % (32 + 2 * j, XR + j)); I('v_and_b32 v%d, s%d, v%d' % (33 + 2 * j, S_MASK, XR + j))
        I('v_xor_b32 v%d, %d, v%d' % (T + 1, 4 << 14, T))
        SA = 48
        for kk in range(14):
            n = 28 + kk; r = RING + 4 * (n % NR)
            I('v_mfma_f32_32x32x16_bf16 %s, %s, %s, %s' % (vr(SA, 16), ar(wodst[kk], 4), vr(r, 4), vr(SA, 16) if kk else '0'))
        wr = [I('ds_write_b128 v%d, %s offset:%d' % (T + 1, vr(SA + 8 + 4 * q, 4), 1024 * q)) for q in range(2)]
        I('s_barrier', needs=wr)
        self.stamp('xchg')
        for q in range(2): I('ds_read_b128 %s, v%d offset:%d' % (vr(16 + 4 * q, 4), T, 1024 * q))
        for j in range(0, 8, 2): I('v_pk_add_f32 %s, %s, %s' % (vr(16 + j, 2), vr(16 + j, 2), vr(SA + j, 2)))
        for j in range(0, 8, 2): I('v_pk_mul_f32 %s, %s, %s' % (vr(j, 2), vr(j, 2), vr(16 + j, 2)))
        for j in range(4): I('v_permlane32_swap_b32 v%d, v%d' % (j, 4 + j))
        for j in range(0, 8, 2): I('v_pk_add_f32 %s, %s, %s' % (vr(j, 2), vr(j, 2), vr(32 + j, 2)))
        for j in range(4): I('v_cvt_pk_bf16_f32 v%d, v%d, v%d' % (40 + j, 2 * j, 2 * j + 1))
        I('buffer_store_dwordx4 v[40:43], v%d, %s, s30 offen' % (XO, sr(S_OUT, 4)))
        if 'st2' not in EXP: self.stamp('final')

    def xfilter(self, body):
        out = []
        for x in body:
            if 'nosc1st' in EXP and x.op.startswith('buffer_store_dwordx4') and 'sc1' in x.text and 'v141' in x.text: x.text = x.text.replace(' sc1', '')
            if 'nost' in EXP and x.op.startswith('buffer_store_dwordx4') and 'v141' in x.text: x.text = 's_nop 0'
            if 'nob' in EXP and x.kind == 'dma' and 's[52:55]' in x.text: x.text = 's_nop 0'
            if 'noatom' in EXP and 'atomic' in x.op: x.text = 's_nop 0'
            if 'ntst' in EXP and x.op.startswith('buffer_store_dwordx4') and 'sc1' in x.text and 'v141' in x.text: x.text = x.text.replace(' sc1', ' sc0 sc1')
            out.append(x)
        return out
    def path(self, prefix, fn, label, keys):
        self.keys = keys
        if 'stamp' in self.__dict__: del self.__dict__['stamp']
        with self.g.capture() as body:
            if label: self.g.label(label)
            fn()
        self.xfilter(body)
        allp = [x for p in prefix for x in p]
        for x in allp: x.done = False
        full = self.g.finish(allp + body)
        if label:
            idx = next(i for i, x in enumerate(full) if x.kind == 'label' and x.text == label + ':')
            return full[idx:], body
        return full, body

    def build(self):
        I = self.I
        with self.g.capture() as pro:
            self.prologue()
            I('s_cmp_eq_u32 s%d, 1' % S_TYPE); I('s_cbranch_scc1 L_kv'); I('s_cmp_eq_u32 s%d, 2' % S_TYPE); I('s_cbranch_scc1 L_q')
        n0 = self.nst
        def endp():
            self.write_stamps(); I('s_endpgm')
        def ffn():
            self.ffn()
        out, _ = self.path([pro], ffn, None, ['0'])
        self.nst = n0
        code, kvc = self.path([pro], self.kv_common, 'L_kv', ['10', '11'])
        n1 = self.nst
        save = (dict(self.bdma), dict(self.bread))
        def kk():
            self.kv_k()
        def kvv():
            self.kv_v()
        c2, _ = self.path([pro, kvc], kk, 'L_kv_k', ['10'])
        self.nst = n1; self.bdma, self.bread = dict(save[0]), dict(save[1])
        c3, _ = self.path([pro, kvc], kvv, 'L_kv_v', ['11'])
        out += code + c2 + c3
        self.nst = n0
        def qq():
            self.q(); endp()
        c4, _ = self.path([pro], qq, 'L_q', ['2'])
        out += c4
        def p2():
            self.phase2(); endp()
        if 'nop2' not in EXP:
            c5, _ = self.path([], p2, 'L_p2', ['0', '10', '11'])
            out += c5
        with self.g.capture() as tail:
            self.g.label('L_end'); I('s_endpgm')
        return out + tail

HEADER = open('cdna_kernels/%s.s.ref' % NAME).read().split('; Override launch')[0]
def wrap(code, launch):
    return HEADER + launch + '''
.amdgcn_target "amdgcn-amd-amdhsa--gfx950"
.text
.globl %(n)s_kernel
.p2align 8
.type %(n)s_kernel,@function
%(n)s_kernel:
%(body)s
.section .rodata,"a"
.p2align 6
.amdhsa_kernel %(n)s_kernel
  .amdhsa_next_free_vgpr 256
  .amdhsa_next_free_sgpr 102
  .amdhsa_accum_offset %(nv)d
  .amdhsa_group_segment_fixed_size 0
  .amdhsa_kernarg_size 80
  .amdhsa_user_sgpr_count 2
  .amdhsa_user_sgpr_kernarg_segment_ptr 1
  .amdhsa_system_sgpr_workgroup_id_x 1
.end_amdhsa_kernel
''' % dict(n=NAME, body=render(code), nv=NV)

if __name__ == '__main__':
    stamps = '--stamps' in sys.argv
    k = K(stamps)
    code = k.build()
    open(sys.argv[1], 'w').write(wrap(code, '; @launch grid=(256,1,1) block=(512,1,1) lds=163840'))
    json.dump({t: [d.get(i, '') for i in range(16)] for t, d in k.names.items()} if stamps else {}, open(sys.argv[1][:-2] + '.json', 'w'))
    print('instructions', len(code), 'nops', sum(1 for i in code if i.kind == 'nop'))
```

```python
import sys, json, struct, os
from asmgen import *
import layout as L
EXP = os.environ.get('EXP', '').split(',')
SLEEP = int(os.environ.get('SLEEP', '4'))
BCHK = int(os.environ.get('BCHK', '7'))
W1K = int(os.environ.get('W1K', '3'))
PF0 = int(os.environ.get('PF0', '2'))
QSL = int(os.environ.get('QSL', '6'))
NST = int(os.environ.get('NST', '3')); MST = int(os.environ.get('MST', '1'))
ATOM = 'atom' in EXP
NAME = 'recurrent_scan__linear_kernel_hedgehog__dense_activation_silu__prompt'
def f32(x): return '0x%08x' % struct.unpack('<I', struct.pack('<f', x))[0]

S_X, S_W, S_PHI, S_WO, S_W2, S_OUT, S_DBG, S_WS = 36, 40, 44, 48, 52, 56, 60, 64
S_MASK, S_WAVE, S_IDX, S_RB, S_TYPE = 3, 4, 5, 6, 7
S_XS, S_WSO, S_EX56 = 12, 13, 14
S_MW, S_MX, S_ROW, S_NONCE = 32, 33, 34, 35
S_RT, S_CH = 68, 69
S_ST = 70
S_RG, S_CG, S_BSO, S_STA, S_A0, S_A1, S_OSO, S_NH, S_H0 = 16, 17, 18, 19, 20, 21, 22, 23, 24
S_ST4 = 25
S_L2E = 26
S_HIM = 28
STG = 45056; WPART = 16384
L_CNT = 3 * STG
L_CP = 122880
L_WPHI = 144384
L_SHX = L_WPHI
L_PHI = 0
L_V = 136192
L_STA = 57344
L_WO = 0
L_KVQ = 0
L_KVF = 65536
L_XG = 65536
L_O = 0
L_XS = 131072
KORD = [0, 1, 2, 3, 4, 5, 12, 6, 7, 8, 9, 10, 11, 13]
NV = 144
ACC, WF, XF, ST, CS, AX, AW, AS, DX, DW = 0, 64, 96, 104, 108, 112, 116, 120, 122, 124
PFA = 136; TMP = 128; P2T = 128; BT2 = 126; DB = 139; VLANE = 140; VL16 = 141; BT = 142

class K:
    def __init__(self, stamps):
        self.g = Gen(); self.use_stamps = stamps; self.nst = 0; self.names = {}; self.keys = ['0', '10', '11', '2']
    def I(self, t, needs=()): return self.g.I(t, needs)
    def U(self, t):
        x = self.g.I(t); x.kind = 'untracked'; return x
    def stamp(self, name, real=False):
        if not self.use_stamps: return
        i = self.nst
        if i >= 15: return
        self.nst += 1
        for k in self.keys: self.names.setdefault(k, {})[i] = name
        self.I('%s %s' % ('s_memrealtime' if real else 's_memtime', sr(S_ST + 2 * i, 2)))
    def write_stamps(self, total=16):
        if not self.use_stamps: return
        I = self.I
        I('s_memrealtime %s' % sr(S_ST + 2 * (total - 1), 2))
        I('s_waitcnt lgkmcnt(0)')
        I('s_lshl_b32 s8, s2, 3'); I('s_add_u32 s8, s8, s%d' % S_WAVE); I('s_lshl_b32 s8, s8, 7')
        I('s_add_u32 s8, s8, %d' % L.WS_STAMP)
        I('v_mov_b32 v2, 0')
        I('s_mov_b64 exec, 1')
        for i in range(total):
            I('v_mov_b32 v0, s%d' % (S_ST + 2 * i)); I('v_mov_b32 v1, s%d' % (S_ST + 2 * i + 1))
            I('buffer_store_dwordx2 v[0:1], v2, %s, s8 offen offset:%d' % (sr(S_WS, 4), 8 * i))
        I('s_mov_b64 exec, -1')
    def srd(self, d, base, nbytes):
        I = self.I
        I('s_mov_b32 s%d, s%d' % (d, base)); I('s_and_b32 s%d, s%d, 0xffff' % (d + 1, base + 1))
        I('s_mov_b32 s%d, %d' % (d + 2, nbytes)); I('s_mov_b32 s%d, 0x20000' % (d + 3))

    def prologue(self):
        I = self.I
        I('s_cmp_ge_u32 s2, 256'); I('s_cbranch_scc1 L_end')
        I('s_load_dwordx16 s[16:31], s[0:1], 0'); I('s_load_dwordx4 s[32:35], s[0:1], 64')
        I('s_getpc_b64 s[8:9]')
        self.g.label('L_pc')
        I('v_cmp_le_u32 vcc, 448, v0'); I('s_cbranch_vccz L_nopf')
        I('s_bfe_u32 s10, s2, 0x30003'); I('s_lshl_b32 s10, s10, 13')
        I('v_and_b32 v1, 63, v0'); I('v_lshlrev_b32 v1, 7, v1'); I('v_add_u32 v1, s10, v1')
        I('v_min_u32 v1, L_end-L_pc, v1')
        self.U('global_load_dword a80, v1, s[8:9]')
        self.g.label('L_nopf')
        if self.use_stamps:
            for i in range(16): I('s_mov_b64 %s, 0' % sr(S_ST + 2 * i, 2))
        self.stamp('rt0', True); self.stamp('t0')
        I('v_lshrrev_b32 v1, 6, v0'); I('v_and_b32 v0, 63, v0')
        I('v_readfirstlane_b32 s%d, v1' % S_WAVE)
        I('v_mov_b32 v%d, v0' % VLANE); I('v_lshlrev_b32 v%d, 4, v0' % VL16)
        I('s_and_b32 s8, s2, 7'); I('s_lshr_b32 s9, s2, 3')
        I('s_and_b32 s10, s8, 1'); I('s_lshl_b32 s10, s10, 3'); I('s_and_b32 s11, s9, 7'); I('s_add_u32 s%d, s10, s11' % S_RB)
        I('s_lshr_b32 s8, s8, 1'); I('s_lshr_b32 s10, s9, 3')
        I('s_lshl_b32 s11, s8, 2'); I('s_add_u32 s12, s11, s10')
        I('s_mov_b32 s%d, 0' % S_TYPE); I('s_lshl_b32 s%d, s8, 1' % S_IDX); I('s_add_u32 s%d, s%d, s10' % (S_IDX, S_IDX))
        I('s_cmp_lt_u32 s10, 2'); I('s_cbranch_scc1 L_role')
        I('s_mov_b32 s%d, 1' % S_TYPE); I('s_lshr_b32 s%d, 0x4210, s11' % S_IDX); I('s_and_b32 s%d, s%d, 15' % (S_IDX, S_IDX))
        I('s_cmp_eq_u32 s10, 2'); I('s_cbranch_scc1 L_role')
        I('s_and_b32 s13, s8, 1'); I('s_lshl_b32 s%d, s13, 1' % S_IDX); I('s_add_u32 s%d, s%d, 3' % (S_IDX, S_IDX))
        I('s_bfe_u32 s11, s9, 0x10002'); I('s_lshr_b32 s8, s8, 1'); I('s_cmp_lg_u32 s11, s8'); I('s_cbranch_scc1 L_role')
        I('s_mov_b32 s%d, 2' % S_TYPE); I('s_mov_b32 s%d, s13' % S_IDX)
        self.g.label('L_role')
        I('s_lshl_b32 s8, s%d, 4' % S_RB); I('s_add_u32 s8, s8, s12'); I('s_lshl_b32 s8, s8, 3'); I('s_add_u32 s11, s8, s%d' % S_WAVE)
        I('s_mov_b32 s%d, -1' % S_EX56); I('s_mov_b32 s%d, 0x00ffffff' % (S_EX56 + 1))
        I('s_and_b32 s%d, s%d, 3' % (S_RT, S_WAVE)); I('s_lshr_b32 s%d, s%d, 2' % (S_CH, S_WAVE))
        I('s_mov_b32 s%d, 0xffff0000' % S_MASK)
        I('v_lshrrev_b32 v2, 3, v0'); I('v_mul_u32_u24 v2, 896, v2')
        I('v_lshrrev_b32 v3, 4, v0'); I('v_and_b32 v4, 7, v0'); I('v_xor_b32 v4, v4, v3')
        I('v_lshl_add_u32 v%d, v4, 4, v2' % DX)
        I('v_xor_b32 v4, 4, v4'); I('v_lshl_add_u32 v%d, v4, 4, v2' % (DX + 1)); I('v_add_u32 v%d, %d, v%d' % (DX + 1, 8 * 896 - 1024, DX + 1))
        I('s_lshl_b32 s8, s%d, 3' % S_RB); I('s_add_u32 s8, s8, s%d' % S_WAVE); I('s_mul_i32 s%d, s8, %d' % (S_XS, 16 * 896))
        I('v_cmp_lt_u32 vcc, 27, v0'); I('v_subrev_u32 v7, 28, v0'); I('v_cndmask_b32 v7, v0, v7, vcc'); I('v_cndmask_b32 v6, 0, 1, vcc')
        I('v_cmp_gt_u32 vcc, 56, v0'); I('v_mov_b32 v5, 0x7fffffff'); I('v_cndmask_b32 v5, v5, v%d, vcc' % VL16)
        I('s_waitcnt lgkmcnt(0)')
        if 'start' in EXP: self.stamp('karg')
        self.srd(S_X, 16, 2048 * 896)
        self.srd(S_WS, 34, L.WS_BYTES); self.srd(S_DBG, 32, 256)
        I('s_mov_b32 s%d, s11' % S_ROW)
        I('s_lshl_b32 s%d, s%d, 11' % (S_MX, S_WAVE))
        I('s_mul_i32 s%d, s%d, %d' % (S_MW, S_WAVE, 8 * 448)); I('s_add_u32 s%d, s%d, %d' % (S_MW, S_MW, WPART))

    def start_stream(self, gpitch):
        I = self.I
        for i in range(1, 4): I('v_add_u32 v%d, %d, v%d' % (DW + i, i * (2 * gpitch - 896), DW))
        I('s_mul_i32 s8, s%d, %d' % (S_WAVE, 8 * gpitch)); I('s_add_u32 s%d, s%d, s8' % (S_WSO, S_WSO))
        d = {}
        if 'start' in EXP: self.stamp('pre_s0')
        grps, d[0] = self.stage_dma(0, gpitch)
        for gp in grps: self.g.extend(gp)
        I('s_mul_i32 s8, s%d, 896' % S_ROW)
        I('buffer_load_dwordx4 %s, v5, %s, s8 offen' % (vr(XF, 4), sr(S_X, 4)))
        self.s0pos = len(self.g.cur)
        lab = 'L_nonon' + self.tagbase
        I('s_or_b32 s8, s2, s%d' % S_WAVE); I('s_cmp_lg_u32 s8, 0'); I('s_cbranch_scc1 %s' % lab)
        self.U('s_memrealtime s[8:9]'); self.U('s_waitcnt lgkmcnt(0)'); I('s_or_b32 s8, s8, 1'); I('v_mov_b32 v8, s8'); I('v_mov_b32 v9, 0')
        I('s_mov_b64 exec, 1'); self.U('buffer_store_dword v8, v9, %s, 0 offen sc1' % sr(S_DBG, 4)); I('s_mov_b64 exec, -1')
        self.g.label(lab)
        if 'start' in EXP: self.stamp('s0iss')
        return d
    def mall_addr(self):
        I = self.I
        segs = [(16, 7, 2, 5, 2048 * 896), (18, 4, 128 * 21, 4, 448 * 2688), (26, 5, 128 * 28, 5, 448 * 3584), (28, 7, 0, 7, 1792 * 896), (22, 2, 0, 2, 448 * 896)]
        I('s_lshl_b32 s8, s2, 3'); I('s_add_u32 s8, s8, s%d' % S_WAVE)
        lo = 0
        for i, (sb, mul, first, n, size) in enumerate(segs):
            I('s_mul_i32 s9, s8, %d' % mul); I('s_add_i32 s9, s9, %d' % (first - lo))
            I('v_add_u32 v10, s9, v0'); I('v_lshlrev_b32 v10, 7, v10'); I('v_min_u32 v10, %d, v10' % (size - 4))
            if i == 0:
                I('v_mov_b32 v11, v10'); I('v_mov_b32 v8, s%d' % sb); I('v_mov_b32 v9, s%d' % (sb + 1))
            else:
                I('v_cmp_le_u32 vcc, %d, v0' % lo); I('v_mov_b32 v12, s%d' % sb); I('v_mov_b32 v13, s%d' % (sb + 1))
                I('v_cndmask_b32 v11, v11, v10, vcc'); I('v_cndmask_b32 v8, v8, v12, vcc'); I('v_cndmask_b32 v9, v9, v13, vcc')
            lo += n
        I('v_add_co_u32 v%d, vcc, v8, v11' % PFA); I('v_addc_co_u32 v%d, vcc, 0, v9, vcc' % (PFA + 1))
    def mall_issue(self, part):
        if 'nomall' in EXP: return []
        I = self.I
        with self.g.capture() as a:
            I('s_mov_b64 exec, %d' % ([0x3fff, 0x7fc000][part]))
            I('global_load_dword a%d, %s, off' % (80 + part, vr(PFA, 2)))
            I('s_mov_b64 exec, -1')
        return [a]
    def pre_loop(self):
        self.mall_addr()
        if 't0late' not in EXP:
            for gp in self.mall_issue(0): self.g.extend(gp)
        if 'start' in EXP: self.stamp('setup')
        self.row_stats()
    def chunks(self, fn, n=10):
        with self.g.capture() as body:
            fn()
        out = []; cur = []
        for i, x in enumerate(body):
            cur.append(x)
            nxt = body[i + 1] if i + 1 < len(body) else None
            safe = nxt is not None and not (nxt.op.startswith(('s_cselect', 's_cbranch', 's_addc', 's_subb', 'v_cndmask', 'v_addc')) or nxt.kind in ('dma', 'label')) \
                and not x.op.startswith(('s_cmp', 'v_cmp')) and 'm0' not in x.dst
            if len(cur) >= n and safe: out.append(cur); cur = []
        if cur: out.append(cur)
        return out

    def late_srds(self):
        I = self.I
        self.srd(S_PHI, 20, 16 * 28 * 28 * 2); self.srd(S_WO, 22, 448 * 896); self.srd(S_W2, 28, 1792 * 896)
        self.srd(S_OUT, 30, 2048 * 896)
        I('s_mov_b32 s%d, %s' % (S_L2E, f32(L.LOG2E))); I('s_mov_b32 s%d, %s' % (S_L2E + 1, f32(L.LOG2E)))
        I('s_mov_b32 s%d, 0' % S_HIM); I('s_mov_b32 s%d, -1' % (S_HIM + 1))
        I('s_mov_b32 s31, 0')

    def late_group(self, p2, extra=None):
        with self.g.capture() as a:
            self.late_srds()
            if extra: extra()
        self.p2flag = p2
        return a
    def p2_setup(self):
        I = self.I; T = TMP + 8
        I('s_lshr_b32 s9, s2, 3'); I('s_and_b32 s8, s9, 3'); I('s_add_u32 s8, s8, 24'); I('s_cmp_lt_u32 s9, 24'); I('s_cselect_b32 s9, s9, s8')
        I('s_mul_i32 s8, s9, 37'); I('s_lshr_b32 s8, s8, 8'); I('s_mul_i32 s10, s8, 7'); I('s_sub_u32 s%d, s9, s10' % S_CG)
        I('s_and_b32 s10, s2, 7'); I('s_lshl_b32 s10, s10, 2'); I('s_add_u32 s%d, s10, s8' % S_RG)
        I('s_mul_i32 s%d, s%d, %d' % (S_BSO, S_WAVE, 224 * 896)); I('s_lshl_b32 s8, s%d, 7' % S_CG); I('s_add_u32 s%d, s%d, s8' % (S_BSO, S_BSO))
        I('s_lshl_b32 s%d, s%d, 12' % (S_STA, S_WAVE)); I('s_add_u32 s%d, s%d, %d' % (S_STA, S_STA, L_STA))
        I('v_lshrrev_b32 v%d, 3, v140' % T); I('v_mul_u32_u24 v%d, 896, v%d' % (T, T))
        I('v_lshrrev_b32 v%d, 2, v140' % (T + 1)); I('v_and_b32 v%d, 4, v%d' % (T + 1, T + 1)); I('v_and_b32 v%d, 7, v140' % (T + 2))
        I('v_xor_b32 v%d, v%d, v%d' % (T + 1, T + 1, T + 2)); I('v_lshl_add_u32 v%d, v%d, 4, v%d' % (DB, T + 1, T))
        I('v_lshrrev_b32 v%d, 5, v140' % T); I('v_lshlrev_b32 v%d, 2, v%d' % (T, T)); I('v_bfe_u32 v%d, v140, 2, 2' % (T + 1)); I('v_add_u32 v%d, v%d, v%d' % (T, T, T + 1))
        I('v_lshlrev_b32 v%d, 7, v%d' % (T, T)); I('v_add_u32 v%d, s%d, v%d' % (T, S_STA, T))
        I('v_and_b32 v%d, 3, v140' % (T + 1)); I('v_lshlrev_b32 v%d, 3, v%d' % (T + 1, T + 1))
        I('v_and_b32 v%d, 16, v140' % (T + 2)); I('v_lshl_add_u32 v%d, v%d, 1, v%d' % (T + 1, T + 2, T + 1))
        I('v_and_b32 v%d, 8, v140' % (T + 2)); I('v_lshlrev_b32 v%d, 3, v%d' % (T + 2, T + 2)); I('v_xor_b32 v%d, v%d, v%d' % (T + 1, T + 1, T + 2))
        I('v_add_u32 v%d, v%d, v%d' % (BT, T, T + 1))
        I('v_xor_b32 v%d, 64, v%d' % (T + 1, T + 1)); I('v_add_u32 v%d, v%d, v%d' % (BT + 1, T, T + 1))

    def slot4_setup(self):
        I = self.I
        I('s_lshl_b32 s%d, s%d, 11' % (S_ST4, S_WAVE)); I('s_add_u32 s%d, s%d, %d' % (S_ST4, S_ST4, L_SHX)); I('s_sub_u32 s8, s%d, s%d' % (S_ST4, S_STA))
        for b in range(2): I('v_add_u32 v%d, s8, v%d' % (BT2 + b, BT + b))
    def wo_dma(self):
        g = self.g; I = self.I; grps = []
        with g.capture() as a:
            I('s_mul_i32 s23, s%d, %d' % (S_WAVE, 56 * 896)); I('s_lshl_b32 s24, s%d, 7' % S_CG); I('s_add_u32 s23, s23, s24'); I('s_mul_i32 s24, s%d, %d' % (S_WAVE, 56 * 128))
        for i in range(7):
            with g.capture() as b:
                I('s_add_u32 m0, s24, %d' % (L_WO + 1024 * i)); I('s_add_u32 s8, s23, %d' % (8 * 896 * i))
                I('buffer_load_dwordx4 v%d, %s, s8 offen lds' % (DB, sr(S_WO, 4)))
            grps.append((a if i == 0 else []) + b)
        return grps
    SLOTS = [(0, BT), (2048, BT), (32768, BT), (34816, BT), (None, BT2)]
    def b_dma(self, k, needs=()):
        g = self.g; I = self.I; so = self.SLOTS[k % self.nslot][0]; grps = []
        for h in range(2):
            with g.capture() as a:
                I('s_add_u32 m0, s%d, %d' % (S_STA, so + 1024 * h) if so is not None else 's_add_u32 m0, s%d, %d' % (S_ST4, 1024 * h))
                I('s_add_u32 s8, s%d, %d' % (S_BSO, (16 * KORD[k] + 8 * h) * 896))
                I('buffer_load_dwordx4 v%d, %s, s8 offen lds' % (DB, sr(S_W2, 4)), needs=needs)
            grps.append(a)
        self.bdma[k] = [x for gp in grps for x in gp if x.kind == 'dma']
        return grps
    def b_read(self, k):
        so, reg = self.SLOTS[k % self.nslot]; out = []
        if so is None: so = 0
        for b in range(2):
            for h in range(2):
                out.append(Instr('ds_read_b64_tr_b16 %s, v%d offset:%d' % (ar(8 * k + 4 * b + 2 * h, 2), reg + b, so + 1024 * h), needs=self.bdma[k]))
        self.bread[k] = out
        return out
    def b_tasks(self, k0, k1):
        t = [self.b_read(k) for k in range(k0, k1)]
        for k in range(k0, k1):
            if k + self.nslot < 14: t += self.b_dma(k + self.nslot, needs=self.bread[k])
        return t

    def stage_dma(self, st, gpitch):
        g = self.g; I = self.I; base = (st % 3) * STG
        grps = []
        for i in range(4):
            with g.capture() as a:
                if i == 0: I('s_add_u32 m0, s%d, %d' % (S_MW, base))
                else: I('s_add_u32 m0, s%d, %d' % (S_MW, base))
                I('s_mov_b64 exec, %s' % sr(S_EX56, 2))
                I('buffer_load_dwordx4 v%d, %s, s%d offen offset:%d lds' % (DW + i, sr(S_W, 4), S_WSO, 896 * i))
                I('s_mov_b64 exec, -1')
                if i == 3: I('s_add_u32 s%d, s%d, %d' % (S_WSO, S_WSO, 64 * gpitch))
            grps.append(a)
        for i in range(2):
            with g.capture() as a:
                I('s_add_u32 m0, s%d, %d' % (S_MX, base)); I('s_nop 0')
                I('buffer_load_dwordx4 v%d, %s, s%d offen offset:%d lds' % (DX + i, sr(S_X, 4), S_XS, 1024 * i))
                if i == 1: I('s_add_u32 s%d, s%d, 128' % (S_XS, S_XS))
            grps.append(a)
        return grps, [x for gp in grps for x in gp if x.kind == 'dma']

    def read_addrs(self, clamp, shared=False):
        I = self.I; T = TMP
        I('v_and_b32 v%d, 31, v0' % T); I('v_lshlrev_b32 v%d, 7, v%d' % (T, T)); I('s_lshl_b32 s8, s%d, 12' % S_RT); I('v_add_u32 v%d, s8, v%d' % (T, T))
        I('v_lshrrev_b32 v%d, 5, v0' % (T + 1)); I('v_bfe_u32 v%d, v0, 1, 3' % (T + 2)); I('v_xor_b32 v%d, v%d, v%d' % (T + 2, T + 2, T + 1))
        I('v_lshlrev_b32 v%d, 3, v%d' % (T + 3, T + 1)); I('v_bfe_u32 v%d, v0, 2, 2' % (T + 4)); I('v_add_u32 v%d, v%d, v%d' % (T + 3, T + 3, T + 4))
        I('v_mul_u32_u24 v%d, 448, v%d' % (T + 3, T + 3))
        I('v_bfe_u32 v%d, v0, 4, 1' % (T + 4)); I('v_and_b32 v%d, 3, v0' % (T + 5)); I('v_lshl_add_u32 v%d, v%d, 2, v%d' % (T + 4, T + 4, T + 5))
        if shared:
            I('s_lshl_b32 s8, s%d, 2' % S_CH); I('v_xor_b32 v%d, s8, v%d' % (T + 6, T + 4)); I('v_lshl_add_u32 v%d, v%d, 3, v%d' % (T + 6, T + 6, T + 3))
            I('v_add_u32 v%d, %d, v%d' % (T + 6, WPART + 384, T + 6))
        if clamp: I('v_min_u32 v%d, 6, v%d' % (T + 4, T + 4))
        I('v_lshl_add_u32 v%d, v%d, 3, v%d' % (T + 3, T + 4, T + 3))
        I('v_add_u32 v%d, s10, v%d' % (T + 3, T + 3))
        for i in range(4):
            I('s_add_u32 s8, s%d, s%d' % (S_RT, S_CH)); I('s_add_u32 s8, s8, %d' % i); I('s_and_b32 s8, s8, 3')
            I('s_lshl_b32 s9, s8, 1'); I('v_xor_b32 v%d, s9, v%d' % (T + 5, T + 2)); I('v_lshl_add_u32 v%d, v%d, 4, v%d' % (AX + i, T + 5, T))
            I('s_mul_i32 s9, s8, 7168'); I('v_add_u32 v%d, s9, v%d' % (AW + i, T + 3))
            if shared and i in (0, 2): I('v_add_u32 v%d, s9, v%d' % (AS + i // 2, T + 6))

    def row_stats(self):
        I = self.I; S, Q = ST, ST + 1
        I('s_mov_b32 s8, 0x3f803f80')
        I('v_dot2_f32_bf16 v%d, v%d, s8, 0' % (S, XF)); I('v_dot2_f32_bf16 v%d, v%d, v%d, 0' % (Q, XF, XF))
        for q in range(1, 4):
            I('v_dot2_f32_bf16 v%d, v%d, s8, v%d' % (S, XF + q, S)); I('v_dot2_f32_bf16 v%d, v%d, v%d, v%d' % (Q, XF + q, XF + q, Q))
        for m in ('row_shr:1', 'row_shr:2', 'row_shr:4', 'row_shr:8'):
            for r in (S, Q): I('v_add_f32_dpp v%d, v%d, v%d %s row_mask:0xf bank_mask:0xf bound_ctrl:0' % (r, r, r, m))
        for m, rm in (('row_bcast:15', '0xa'), ('row_bcast:31', '0xc')):
            for r in (S, Q): I('v_add_f32_dpp v%d, v%d, v%d %s row_mask:%s bank_mask:0xf' % (r, r, r, m, rm))
        I('v_mul_f32 v%d, %s, v%d' % (S, f32(1.0 / 448), S)); I('v_mul_f32 v%d, %s, v%d' % (Q, f32(1.0 / 448), Q))
        I('v_fma_f32 v%d, -v%d, v%d, v%d' % (Q, S, S, Q)); I('v_max_f32 v%d, 0, v%d' % (Q, Q))
        def rbf(r):
            I('v_cvt_pk_bf16_f32 v%d, v%d, v%d' % (r, r, r)); I('v_lshlrev_b32 v%d, 16, v%d' % (r, r))
        rbf(S); rbf(Q)
        I('v_add_f32 v%d, %s, v%d' % (Q, f32(1e-5), Q)); rbf(Q)
        I('v_sqrt_f32 v%d, v%d' % (Q, Q)); rbf(Q)
        I('v_rcp_f32 v%d, v%d' % (Q, Q))
        I('v_sub_f32 v%d, 0, v%d' % (S, S))

    def nonce_issue(self):
        self.I('v_mov_b32 v%d, 0' % (ST + 3))
        return self.I('buffer_load_dword v%d, v%d, %s, 0 offen sc1' % (ST + 2, ST + 3, sr(S_DBG, 4)))
    def nonce_get_publish(self, tag):
        I = self.I; U = self.U
        I('v_readfirstlane_b32 s%d, v%d' % (S_NONCE, ST + 2))
        I('s_cmp_lg_u32 s%d, 0' % S_NONCE); I('s_cbranch_scc1 L_gotn%s' % tag)
        self.g.label('L_spinn%s' % tag)
        U('buffer_load_dword v%d, v%d, %s, 0 offen sc1' % (ST + 2, ST + 3, sr(S_DBG, 4)))
        U('s_waitcnt vmcnt(0)')
        I('v_readfirstlane_b32 s%d, v%d' % (S_NONCE, ST + 2)); I('s_nop 1')
        I('s_cmp_lg_u32 s%d, 0' % S_NONCE); I('s_cbranch_scc1 L_gotn%s' % tag)
        self.spin_tail('L_spinn%s' % tag)
        self.g.label('L_gotn%s' % tag)
        I('v_mov_b32 v%d, s%d' % (ST + 2, S_NONCE)); I('v_mov_b32 v%d, s%d' % (ST + 3, S_NONCE))
        I('s_lshl_b32 s8, s%d, 4' % S_ROW); I('s_add_u32 s8, s8, %d' % L.WS_RS); I('v_mov_b32 v%d, 0' % (TMP + 8))
        I('s_mov_b32 exec_lo, 0'); I('s_mov_b32 exec_hi, 0x80000000')
        I('buffer_store_dwordx4 %s, v%d, %s, s8 offen sc1' % (vr(ST, 4), TMP + 8, sr(S_WS, 4)))
        I('s_mov_b64 exec, -1')
    def rs_issue(self):
        I = self.I
        I('s_lshl_b32 s8, s%d, 2' % S_RB); I('s_add_u32 s8, s8, s%d' % S_RT); I('s_lshl_b32 s8, s8, 9'); I('s_add_u32 s%d, s8, %d' % (S_ROW, L.WS_RS))
        I('v_and_b32 v%d, 31, v%d' % (DX, VLANE)); I('v_lshlrev_b32 v%d, 4, v%d' % (DX, DX))
        return I('buffer_load_dwordx4 %s, v%d, %s, s%d offen sc1' % (vr(ST, 4), DX, sr(S_WS, 4), S_ROW))
    def rs_get(self, tag, scale):
        I = self.I; U = self.U
        I('v_cmp_ne_u32 vcc, s%d, v%d' % (S_NONCE, ST + 2)); I('s_nop 1'); I('s_cbranch_vccz L_gotr%s' % tag)
        self.g.label('L_spinr%s' % tag)
        U('buffer_load_dwordx4 %s, v%d, %s, s%d offen sc1' % (vr(ST, 4), DX, sr(S_WS, 4), S_ROW))
        U('s_waitcnt vmcnt(0)')
        I('v_cmp_ne_u32 vcc, s%d, v%d' % (S_NONCE, ST + 2)); I('s_nop 1'); I('s_cbranch_vccz L_gotr%s' % tag)
        self.spin_tail('L_spinr%s' % tag)
        self.g.label('L_gotr%s' % tag)
        for q in range(4): I('v_cvt_pk_bf16_f32 v%d, v%d, v%d' % (XF + q, ST, ST))
        I('v_mul_f32 v%d, %s, v%d' % (ST, f32(scale), ST + 1))
    def publish(self, soff_s, tmp, needs=()):
        I = self.I
        I('v_mov_b32 v%d, s%d' % (tmp, S_NONCE)); I('v_mov_b32 v%d, 0' % (tmp + 1)); I('s_mov_b64 exec, 1')
        x = I('buffer_store_dword v%d, v%d, %s, s%d offen sc1' % (tmp, tmp + 1, sr(S_WS, 4), soff_s), needs=needs)
        I('s_mov_b64 exec, -1')
        return x
    def poll(self, tag, voff, soff_s, tmp):
        I = self.I; U = self.U
        self.g.label('L_poll%s' % tag)
        U('buffer_load_dword v%d, v%d, %s, s%d offen sc1' % (tmp, voff, sr(S_WS, 4), soff_s))
        I('s_waitcnt vmcnt(0)')
        I('v_cmp_ne_u32 vcc, s%d, v%d' % (S_NONCE, tmp)); I('s_nop 1'); I('s_cbranch_vccz L_polld%s' % tag)
        self.spin_tail('L_poll%s' % tag)
        self.g.label('L_polld%s' % tag)
    def poll_issue(self, voff, soff_s, tmp):
        return self.I('buffer_load_dword v%d, v%d, %s, s%d offen sc1' % (tmp, voff, sr(S_WS, 4), soff_s))
    def poll_check(self, tag, voff, soff_s, tmp):
        I = self.I; U = self.U
        if 'nopoll' in EXP and tag in 'AB': return
        I('v_cmp_ne_u32 vcc, s%d, v%d' % (S_NONCE, tmp)); I('s_nop 1'); I('s_cbranch_vccz L_polld%s' % tag)
        self.g.label('L_poll%s' % tag)
        U('buffer_load_dword v%d, v%d, %s, s%d offen sc1' % (tmp, voff, sr(S_WS, 4), soff_s)); U('s_waitcnt vmcnt(0)')
        I('v_cmp_ne_u32 vcc, s%d, v%d' % (S_NONCE, tmp)); I('s_nop 1'); I('s_cbranch_vccz L_polld%s' % tag)
        self.spin_tail('L_poll%s' % tag)
        self.g.label('L_polld%s' % tag)
    def spin_tail(self, lab, sl=None):
        I = self.I
        I('s_sleep %d' % (sl or SLEEP)); I('s_add_u32 s31, s31, 1'); I('s_cmp_lt_u32 s31, 0x8000'); I('s_cbranch_scc1 %s' % lab)

    def l2pf(self, st):
        if 'l2pf' not in EXP: return []
        I = self.I; lab = 'L_pf%s%d' % (self.tagbase, st)
        with self.g.capture() as a:
            I('s_lshr_b32 s8, s%d, 1' % S_WAVE); I('s_cmp_lg_u32 s8, %d' % (st - PF0)); I('s_cbranch_scc1 %s' % lab)
            I('s_lshr_b32 s8, s2, 3'); I('s_lshl_b32 s8, s8, 3'); I('s_add_u32 s8, s8, s%d' % S_WAVE); I('s_lshl_b32 s8, s8, 13')
            I('v_lshlrev_b32 v%d, 7, v%d' % (TMP + 8, VLANE))
            self.U('buffer_load_dword a80, v%d, %s, s8 offen' % (TMP + 8, sr(S_W2, 4)))
            I('s_sub_u32 s8, s8, %d' % (196 * 8192)); I('s_cbranch_scc1 %s' % lab)
            self.U('buffer_load_dword a80, v%d, %s, s8 offen' % (TMP + 8, sr(S_WO, 4)))
            self.g.label(lab)
        return [a]

    def code_pf(self, tg, tmp, dst):
        if 'nocpf' in EXP: return []
        I = self.I
        with self.g.capture() as a:
            I('s_getpc_b64 s[8:9]'); self.g.label('L_cpf%s' % tg)
            I('s_sub_u32 s8, s8, L_cpf%s-L_pc' % tg); I('s_subb_u32 s9, s9, 0')
            I('s_bfe_u32 s10, s2, 0x20003'); I('s_lshl_b32 s10, s10, 3'); I('s_add_u32 s10, s10, s%d' % S_WAVE); I('s_lshl_b32 s10, s10, 11')
            I('v_lshlrev_b32 v%d, 7, v%d' % (tmp, VLANE)); I('v_add_u32 v%d, s10, v%d' % (tmp, tmp)); I('v_min_u32 v%d, L_end-L_pc, v%d' % (tmp, tmp))
            I('s_mov_b64 exec, 0xffff')
            I('global_load_dword %s, v%d, s[8:9]' % (dst, tmp))
            I('s_mov_b64 exec, -1')
        return [a]

    def gemm(self, tiles, gpitch, dms, tag, hooks):
        g = self.g; I = self.I
        dmas = dict(dms)
        for i in range(4): I('v_mov_b32 v%d, 0' % (CS + i))
        NF, LOOK = 8, 4
        seq = [(ks, cc) for ks in range(28) for cc in range(len(tiles[ks & 3]['t']))]
        def wread(n):
            ks, cc = seq[n]; a = WF + 4 * (n % NF); c, areg, off = tiles[ks & 3]['t'][cc]
            return [Instr('ds_read_b64_tr_b16 %s, v%d offset:%d' % (vr(a + 2 * h, 2), areg, off + h * 4 * 448)) for h in range(2)]
        def xread(ks):
            return [Instr('ds_read_b128 %s, v%d' % (vr(XF + 4 * (ks % 2), 4), AX + (ks & 3)))]
        aregs = sorted(set(list(range(AX, AX + 4)) + [t[1] for p in tiles for t in p['t']]))
        def adv(st):
            d = STG if st % 3 else -2 * STG
            return [Instr('v_add_u32 v%d, %d, v%d' % (r, d, r)) if d > 0 else Instr('v_subrev_u32 v%d, %d, v%d' % (r, -d, r)) for r in aregs]
        tc = [0]
        def cs_ops(r, c):
            t = TMP + 2 * (tc[0] % 4); tc[0] += 1
            return [Instr('v_lshlrev_b32 v%d, 16, v%d' % (t, r)), Instr('v_and_b32 v%d, s%d, v%d' % (t + 1, S_MASK, r)),
                    Instr('v_add_f32 v%d, v%d, v%d' % (CS + c, CS + c, t)), Instr('v_add_f32 v%d, v%d, v%d' % (CS + c, CS + c, t + 1))]
        if 'start' in EXP:
            self.stamp('rowst'); I('s_nop 0', needs=dmas[0]); self.stamp('s0arr'); I('s_waitcnt lgkmcnt(0)')
        BAR0 = len(g.cur)
        I('s_barrier', needs=dmas[0])
        self.stamp('bar0')
        g.extend(xread(0))
        for n in range(LOOK): g.extend(wread(n))
        g1, dmas[1] = self.stage_dma(1, gpitch)
        NPRE = int(os.environ.get('NPRE', '2'))
        pend, dmas[2] = self.stage_dma(2, gpitch)
        pend = g1[NPRE:] + (self.mall_issue(0) if 't0late' in EXP else []) + self.early + pend
        if 'sbar' in EXP: g.cur[self.s0pos:self.s0pos] = [Instr('s_barrier')] + [x for gp in g1[:NPRE] for x in gp]
        else: g.cur[BAR0:BAR0] = [x for gp in g1[:NPRE] for x in gp]
        started = set(); xr = 0; cfill = []
        for n, (ks, cc) in enumerate(seq):
            p = tiles[ks & 3]; c = p['t'][cc][0]; a = WF + 4 * (n % NF); xf = XF + 4 * (ks % 2)
            I('v_mfma_f32_32x32x16_bf16 %s, %s, %s, %s' % (vr(ACC + 16 * c, 16), vr(a, 4), vr(xf, 4), vr(ACC + 16 * c, 16) if c in started else '0'))
            started.add(c)
            nn = n + LOOK
            if nn < len(seq):
                ks2, cc2 = seq[nn]
                if cc2 == 0 and ks2 & 3 == 0:
                    st2 = ks2 >> 2
                    assert xr == ks2 - 1
                    g.extend(adv(st2))
                    if st2 == NST: self.nonce_get_publish(tag)
                    if st2 == 6: self.rs_issue()
                    if st2 in hooks.get('pre', {}): hooks['pre'][st2]()
                    if 'stg' in EXP and st2 in (2, 4): self.stamp('preB%d' % st2)
                    I('s_waitcnt lgkmcnt(0)')
                    if 'stg' in EXP and st2 in (2, 4): I('s_nop 0', needs=dmas[st2]); self.stamp('vmB%d' % st2); I('s_waitcnt lgkmcnt(0)')
                    I('s_barrier', needs=dmas[st2])
                    if 'stg' in EXP: self.stamp('B%d' % st2)
                    if st2 == NST - 1:
                        with g.capture() as grp_: self.nonce_issue()
                        pend += [grp_]
                    if st2 == MST: pend += self.mall_issue(1)
                    if st2 + 2 < 7:
                        newg, dmas[st2 + 2] = self.stage_dma(st2 + 2, gpitch); pend += newg
                    if st2 == 3 and self.p2flag:
                        with g.capture() as grp_: self.p2_setup()
                        pend += [grp_]
                    if PF0 <= st2 < PF0 + 4: pend += self.l2pf(st2)
                    if st2 == 4: pend += self.code_pf(tag, TMP + 8, 'a82')
                    if st2 in hooks.get('post', {}): pend += hooks['post'][st2]()
                g.extend(wread(nn))
            if xr == ks and ks + 1 < 28 and (nn >= len(seq) or seq[min(nn, len(seq) - 1)][0] >= ks + 1):
                g.extend(xread(ks + 1)); xr = ks + 1
            if cc == 0 and p['cs']: cfill = [cs_ops(a + q, c) for q in range(4)]
            if cfill:
                g.extend(cfill.pop(0))
                if cc == len(p['t']) - 1:
                    for x in cfill: g.extend(x)
                    cfill = []
            if pend and (n % 2 == 0 or len(pend) > 5): g.extend(pend.pop(0))
        for x in pend: g.extend(x)
        self.stamp('loopend')

    def finish_stats(self, tl, scale, tag, before_b1=None, after_b1=None):
        I = self.I; T = TMP
        I('s_lshl_b32 s9, s%d, 2' % S_RT); I('v_add_u32 v%d, s9, v%d' % (T, VL16))
        bases = {}
        for c, sb, off in tl:
            if sb not in bases:
                bases[sb] = T + 1 + 2 * len(bases)
                I('v_add_u32 v%d, s%d, v%d' % (bases[sb], sb, T)); I('v_add_u32 v%d, s%d, v%d' % (bases[sb] + 1, sb, VL16))
        wr = []
        for c, sb, off in tl:
            t = T + 6 + (c & 1)
            I('v_cvt_pk_bf16_f32 v%d, v%d, v%d' % (t, CS + c, CS + c)); I('v_and_b32 v%d, s%d, v%d' % (t, S_MASK, t))
            I('v_sub_f32 v%d, v%d, v%d' % (t, CS + c, t)); I('v_cvt_pk_bf16_f32 v%d, v%d, v%d' % (CS + c, t, CS + c))
            wr.append(I('ds_write_b32 v%d, v%d offset:%d' % (bases[sb], CS + c, off)))
        if before_b1: wr += before_b1()
        self.rs_get(tag, scale)
        I('s_barrier', needs=wr)
        for c, sb, off in tl: I('ds_read_b128 %s, v%d offset:%d' % (vr(WF + 4 * c, 4), bases[sb] + 1, off))
        if after_b1: after_b1()
        for c, sb, off in tl:
            I('v_mfma_f32_32x32x16_bf16 %s, %s, %s, %s' % (vr(ACC + 16 * c, 16), vr(WF + 4 * c, 4), vr(XF, 4), vr(ACC + 16 * c, 16)))
        if 'stg' in EXP: self.stamp = lambda *a, **k: None
        self.stamp('stats')

    def with_bg(self, fn, tasks, every):
        with self.g.capture() as body:
            fn()
        out = []; tasks = list(tasks); cnt = 0
        for x in body:
            out.append(x); cnt += 1
            if tasks and cnt >= every and x.kind in ('valu', 'trans') and not (x.dst & {'vcc'}):
                out += tasks.pop(0); cnt = 0
        for t in tasks: out += t
        self.g.extend(out)

    def ffn(self):
        I = self.I; g = self.g
        self.tagbase = 'f'
        self.srd(S_W, 26, 448 * 3584)
        I('v_mul_u32_u24 v6, 3584, v6'); I('v_lshl_add_u32 v%d, v7, 4, v6' % DW)
        I('s_mul_i32 s%d, s%d, 448' % (S_WSO, S_IDX))
        dms = self.start_stream(3584)
        I('s_mul_i32 s10, s%d, 192' % S_CH); I('s_add_u32 s10, s10, %d' % WPART)
        self.read_addrs(False, shared=True)
        self.pre_loop()
        self.early = [self.late_group(True)]
        own = lambda i, o: [(c, AW + i, 64 * c) for c in o]
        tiles = [dict(t=[(3, AS, 0)] + own(0, [0, 1, 2]), cs=True), dict(t=own(1, [0, 1, 2]), cs=True),
                 dict(t=own(2, [1, 2, 0]) + [(3, AS + 1, 0)], cs=True), dict(t=own(3, [2, 0, 1]), cs=True)]
        self.bdma, self.bread = {}, {}; self.nslot = 5
        self.gemm(tiles, 3584, dms, 'f', self.bhooks())
        I('s_mul_i32 s10, s%d, 3072' % S_CH); I('s_add_u32 s10, s10, %d' % L_CP)
        I('s_lshl_b32 s11, s%d, 10' % S_CH); I('s_add_u32 s11, s11, %d' % (L_CP + 6144))
        self.slot4_setup()
        SH = ACC + 48; X8 = 116
        def before_b1():
            I('s_xor_b32 s8, s%d, 4' % S_WAVE); I('s_lshl_b32 s8, s8, 11'); I('s_add_u32 s8, s8, %d' % L_SHX); I('v_add_u32 v%d, s8, v%d' % (AX, VL16))
            I('s_lshl_b32 s8, s%d, 11' % S_WAVE); I('s_add_u32 s8, s8, %d' % L_SHX); I('v_add_u32 v%d, s8, v%d' % (AX + 1, VL16))
            return [I('ds_write_b128 v%d, %s offset:%d' % (AX, vr(SH + 8 + 4 * q, 4), 1024 * q)) for q in range(2)]
        shr = []
        def after_b1():
            for q in range(2): shr.append(I('ds_read_b128 %s, v%d offset:%d' % (vr(X8 + 4 * q, 4), AX + 1, 1024 * q)))
        self.finish_stats([(0, 10, 0), (1, 10, 1024), (2, 10, 2048), (3, 11, 0)], -L.LOG2E, 'f', before_b1, after_b1)
        I('s_lshl_b32 s8, s%d, 2' % S_RB); I('s_add_u32 s8, s8, s%d' % S_RT); I('s_mul_i32 s9, s8, %d' % (112 * 1024))
        I('s_lshl_b32 s8, s8, 3'); I('s_add_u32 s8, s8, s%d' % S_IDX); I('s_lshl_b32 s8, s8, 1'); I('s_add_u32 s8, s8, s%d' % S_CH)
        I('s_lshl_b32 s8, s8, 7'); I('s_add_u32 s0, s8, %d' % L.WS_FLAG)
        I('s_mul_i32 s10, s%d, %d' % (S_IDX, 14 * 1024)); I('s_add_u32 s9, s9, s10')
        I('s_mul_i32 s10, s%d, 6144' % S_CH); I('s_add_u32 s10, s9, s10')
        I('s_lshl_b32 s11, s%d, 10' % S_CH); I('s_add_u32 s9, s9, s11'); I('s_add_u32 s1, s9, %d' % (12 * 1024))
        stores = []
        def unit(idx):
            c, u = divmod(idx, 2)
            A = ACC + 16 * c + 8 * u; T = [64, 72][idx & 1]; P = [80, 84][idx & 1]
            if 'noprio' not in EXP:
                lab = 'L_fp%d' % idx
                I('s_setprio 0'); I('s_cmp_eq_u32 s%d, %d' % (S_CH, idx & 1)); I('s_cbranch_scc1 %s' % lab); I('s_setprio 1'); self.g.label(lab)
            if c == 3:
                for j in range(0, 8, 2): I('v_pk_add_f32 %s, %s, %s' % (vr(A + j, 2), vr(A + j, 2), vr(X8 + j, 2)))
            for j in range(0, 8, 2): I('v_pk_mul_f32 %s, %s, %s op_sel_hi:[1,0]' % (vr(A + j, 2), vr(A + j, 2), vr(ST, 2)))
            for j in range(8): I('v_exp_f32 v%d, v%d' % (T + j, A + j))
            for j in range(0, 8, 2): I('v_pk_add_f32 %s, %s, 1.0 op_sel_hi:[1,0]' % (vr(T + j, 2), vr(T + j, 2)))
            for j in range(8): I('v_rcp_f32 v%d, v%d' % (T + j, T + j))
            for j in range(0, 8, 2): I('v_pk_mul_f32 %s, %s, %s' % (vr(T + j, 2), vr(T + j, 2), vr(A + j, 2)))
            for j in range(0, 8, 2): I('v_cvt_pk_bf16_f32 v%d, v%d, v%d' % (P + j // 2, T + j, T + j + 1))
            if idx == 4: I('s_add_u32 s10, s10, 4096')
            if c < 3: stores.append(I('buffer_store_dwordx4 %s, v%d, %s, s10 offen offset:%d sc1' % (vr(P, 4), VL16, sr(S_WS, 4), (idx % 4) * 1024)))
            else: stores.append(I('buffer_store_dwordx4 %s, v%d, %s, s1 offen sc1' % (vr(P, 4), VL16, sr(S_WS, 4))))
        self.with_bg(lambda: [unit(i) for i in range(6)], self.b_round1(shr) + self.wo_dma(), int(os.environ.get('FBG', '11')))
        unit(6)
        I('s_setprio 0')
        self.stamp('epi')
        self.p2_pre()
        bt = self.b_tasks(4, 9)
        for t in bt[:5]: g.extend(t)
        self.publish(0, 96, needs=stores)
        self.stamp('pub')
        I('s_barrier')
        for t in bt[5:11]: g.extend(t)
        pa = self.poll_issue(P2T + 1, 26, P2T)
        for t in bt[11:]: g.extend(t)
        I('s_waitcnt lgkmcnt(0)'); I('s_nop 0', needs=[pa])
        I('s_branch L_p2')

    def b_round1(self, need4=None):
        t = [sum([self.b_read(k) for k in range(4)], [])]
        if need4 is not None: t += self.b_dma(4, needs=need4)
        for k in range(4): t += self.b_dma(k + 5, needs=self.bread[k])
        return t

    def bhooks(self, extra=None):
        post = {5: lambda: self.b_dma(0) + self.b_dma(1), 6: lambda: self.b_dma(2) + self.b_dma(3)}
        if extra: post.update(extra)
        return dict(post=post)

    def pack_k(self, A, K8):
        I = self.I
        for j in range(8): I('v_cvt_pk_bf16_f32 v%d, v%d, v%d' % (K8 + j, A + 2 * j, A + 2 * j + 1))
        for j in (6, 7): I('v_cndmask_b32 v%d, v%d, 0, %s' % (K8 + j, K8 + j, sr(S_HIM, 2)))
    def half_units(self, As, neg):
        I = self.I; M = 64; n = '-' if neg else ''; nm = ' neg_lo:[1,0,0] neg_hi:[1,0,0]' if neg else ''
        def each(f):
            for i, A in enumerate(As): f(A, M + 6 * i)
        I('v_mov_b32 v%d, 0xff800000' % (TMP + 10))
        each(lambda A, m: (I('v_max3_f32 v%d, %sv%d, %sv%d, %sv%d' % (m, n, A, n, A + 1, n, A + 2)), I('v_max3_f32 v%d, %sv%d, %sv%d, %sv%d' % (m + 1, n, A + 8, n, A + 9, n, A + 10))))
        for j in (3, 5): each(lambda A, m: (I('v_max3_f32 v%d, v%d, %sv%d, %sv%d' % (m, m, n, A + j, n, A + j + 1)), I('v_max3_f32 v%d, v%d, %sv%d, %sv%d' % (m + 1, m + 1, n, A + 8 + j, n, A + 9 + j))))
        each(lambda A, m: I('v_max3_f32 v%d, v%d, %sv%d, %sv%d' % (m + 1, m + 1, n, A + 7, n, A + 15)))
        each(lambda A, m: I('v_max_f32 v%d, v%d, v%d' % (m, m, m + 1)))
        each(lambda A, m: I('v_mov_b32 v%d, v%d' % (m + 1, m)))
        each(lambda A, m: I('v_permlane32_swap_b32 v%d, v%d' % (m, m + 1)))
        each(lambda A, m: I('v_max_f32 v%d, v%d, v%d' % (m, m, m + 1)))
        each(lambda A, m: I('v_mul_f32 v%d, -v%d, v%d' % (m, ST, m)))
        each(lambda A, m: I('v_cndmask_b32 v%d, v%d, v%d, %s' % (m + 1, m, TMP + 10, sr(S_HIM, 2))))
        for j in range(0, 16, 2):
            sel = 'op_sel_hi:[1,0,0]' if j < 12 else 'op_sel:[0,0,1] op_sel_hi:[1,0,1]'
            each(lambda A, m: I('v_pk_fma_f32 %s, %s, %s, %s %s%s' % (vr(A + j, 2), vr(A + j, 2), vr(ST, 2), vr(m, 2), sel, nm)))
        for j in range(16): each(lambda A, m: I('v_exp_f32 v%d, v%d' % (A + j, A + j)))
        each(lambda A, m: (I('v_pk_add_f32 %s, %s, %s' % (vr(m + 2, 2), vr(A, 2), vr(A + 2, 2))), I('v_pk_add_f32 %s, %s, %s' % (vr(m + 4, 2), vr(A + 8, 2), vr(A + 10, 2)))))
        for j in (4, 6): each(lambda A, m: (I('v_pk_add_f32 %s, %s, %s' % (vr(m + 2, 2), vr(m + 2, 2), vr(A + j, 2))), I('v_pk_add_f32 %s, %s, %s' % (vr(m + 4, 2), vr(m + 4, 2), vr(A + 8 + j, 2)))))
        each(lambda A, m: I('v_pk_add_f32 %s, %s, %s' % (vr(m + 2, 2), vr(m + 2, 2), vr(m + 4, 2))))
        each(lambda A, m: I('v_add_f32 v%d, v%d, v%d' % (m, m + 2, m + 3)))
        each(lambda A, m: I('v_mov_b32 v%d, v%d' % (m + 1, m)))
        each(lambda A, m: I('v_permlane32_swap_b32 v%d, v%d' % (m, m + 1)))
        each(lambda A, m: I('v_add_f32 v%d, v%d, v%d' % (m, m, m + 1)))
        each(lambda A, m: I('v_rcp_f32 v%d, v%d' % (m, m)))
        for j in range(0, 16, 2): each(lambda A, m: I('v_pk_mul_f32 %s, %s, %s op_sel_hi:[1,0]' % (vr(A + j, 2), vr(A + j, 2), vr(m, 2))))
        for j in range(8): each(lambda A, m: I('v_cvt_pk_bf16_f32 v%d, v%d, v%d' % (A + j, A + 2 * j, A + 2 * j + 1)))
    def phi_mfma(self, A, K8, WP):
        I = self.I
        I('v_mfma_f32_32x32x16_bf16 %s, %s, %s, 0' % (vr(A, 16), ar(WP, 4), vr(K8, 4)))
        I('v_mfma_f32_32x32x16_bf16 %s, %s, %s, %s' % (vr(A, 16), ar(WP + 4, 4), vr(K8 + 4, 4), vr(A, 16)))
    def softmax_unit(self, A, sreg=None):
        I = self.I
        EP, EN, M = 64, 80, TMP
        mx, nm, t, u = M, M + 1, M + 2, M + 4
        I('v_mov_b32 v%d, 0xff800000' % (M + 10))
        m2, n2 = M + 6, M + 7
        for (a, b, o) in ((mx, nm, 0), (m2, n2, 8)):
            I('v_max3_f32 v%d, v%d, v%d, v%d' % (a, A + o, A + o + 1, A + o + 2)); I('v_max3_f32 v%d, -v%d, -v%d, -v%d' % (b, A + o, A + o + 1, A + o + 2))
        for j in (3, 5):
            for (a, b, o) in ((mx, nm, 0), (m2, n2, 8)):
                I('v_max3_f32 v%d, v%d, v%d, v%d' % (a, a, A + o + j, A + o + j + 1)); I('v_max3_f32 v%d, v%d, -v%d, -v%d' % (b, b, A + o + j, A + o + j + 1))
        I('v_max3_f32 v%d, v%d, v%d, v%d' % (m2, m2, A + 7, A + 15)); I('v_max3_f32 v%d, v%d, -v%d, -v%d' % (n2, n2, A + 7, A + 15))
        I('v_max_f32 v%d, v%d, v%d' % (mx, mx, m2)); I('v_max_f32 v%d, v%d, v%d' % (nm, nm, n2))
        I('v_permlane32_swap_b32 v%d, v%d' % (mx, nm)); I('v_max_f32 v%d, v%d, v%d' % (t, mx, nm))
        I('v_mul_f32 v%d, -v%d, v%d' % (t, ST, t)); I('v_mov_b32 v%d, v%d' % (u, t)); I('v_permlane32_swap_b32 v%d, v%d' % (t, u))
        I('v_cndmask_b32 v%d, v%d, v%d, %s' % (t + 1, t, M + 10, sr(S_HIM, 2))); I('v_cndmask_b32 v%d, v%d, v%d, %s' % (u + 1, u, M + 10, sr(S_HIM, 2)))
        for j in range(0, 16, 2):
            sel = 'op_sel_hi:[1,0,0]' if j < 12 else 'op_sel:[0,0,1] op_sel_hi:[1,0,1]'
            I('v_pk_fma_f32 %s, %s, %s, %s %s' % (vr(EP + j, 2), vr(A + j, 2), vr(ST, 2), vr(t, 2), sel))
            I('v_pk_fma_f32 %s, %s, %s, %s %s neg_lo:[1,0,0] neg_hi:[1,0,0]' % (vr(EN + j, 2), vr(A + j, 2), vr(ST, 2), vr(u, 2), sel))
        for j in range(16): I('v_exp_f32 v%d, v%d' % (EP + j, EP + j)); I('v_exp_f32 v%d, v%d' % (EN + j, EN + j))
        sp, sn = M + 6, M + 8
        I('v_pk_add_f32 %s, %s, %s' % (vr(sp, 2), vr(EP, 2), vr(EP + 2, 2))); I('v_pk_add_f32 %s, %s, %s' % (vr(sn, 2), vr(EN, 2), vr(EN + 2, 2)))
        for j in range(4, 16, 2):
            I('v_pk_add_f32 %s, %s, %s' % (vr(sp, 2), vr(sp, 2), vr(EP + j, 2))); I('v_pk_add_f32 %s, %s, %s' % (vr(sn, 2), vr(sn, 2), vr(EN + j, 2)))
        I('v_add_f32 v%d, v%d, v%d' % (sp, sp, sp + 1)); I('v_add_f32 v%d, v%d, v%d' % (sn, sn, sn + 1))
        I('v_permlane32_swap_b32 v%d, v%d' % (sp, sn)); I('v_add_f32 v%d, v%d, v%d' % (t, sp, sn))
        if sreg is None:
            I('v_rcp_f32 v%d, v%d' % (t, t)); I('v_mov_b32 v%d, v%d' % (u, t)); I('v_permlane32_swap_b32 v%d, v%d' % (t, u))
            for j in range(0, 16, 2):
                I('v_pk_mul_f32 %s, %s, %s op_sel_hi:[1,0]' % (vr(EP + j, 2), vr(EP + j, 2), vr(t, 2)))
                I('v_pk_mul_f32 %s, %s, %s op_sel_hi:[1,0]' % (vr(EN + j, 2), vr(EN + j, 2), vr(u, 2)))
            for j in range(8):
                I('v_cvt_pk_bf16_f32 v%d, v%d, v%d' % (A + j, EP + 2 * j, EP + 2 * j + 1)); I('v_cvt_pk_bf16_f32 v%d, v%d, v%d' % (A + 8 + j, EN + 2 * j, EN + 2 * j + 1))
        else:
            I('v_mov_b32 v%d, v%d' % (u, t))
            for j in range(2): I('v_cvt_pk_bf16_f32 v%d, v%d, v%d' % (A + j, EP + 2 * j, EP + 2 * j + 1))
            I('v_permlane32_swap_b32 v%d, v%d' % (t, u)); I('v_rcp_f32 v%d, v%d' % (u, u))
            for j in range(2, 8): I('v_cvt_pk_bf16_f32 v%d, v%d, v%d' % (A + j, EP + 2 * j, EP + 2 * j + 1))
            I('v_mul_f32 v%d, v%d, v%d' % (u, u, t)); I('v_mov_b32 v%d, v%d' % (sreg, t))
            for j in range(0, 16, 2): I('v_pk_mul_f32 %s, %s, %s op_sel_hi:[1,0]' % (vr(EN + j, 2), vr(EN + j, 2), vr(u, 2)))
            for j in range(8): I('v_cvt_pk_bf16_f32 v%d, v%d, v%d' % (A + 8 + j, EN + 2 * j, EN + 2 * j + 1))

    def wphi_dma(self, n, head0_s):
        I = self.I; out = []
        I('s_mul_i32 s8, s%d, 1568' % head0_s); I('s_lshl_b32 s9, s%d, 10' % S_WAVE); I('s_add_u32 s8, s8, s9'); I('s_add_u32 s9, s9, %d' % L_WPHI)
        for i in range(n):
            I('s_add_u32 m0, s9, %d' % (8192 * i)); I('s_add_u32 s10, s8, %d' % (8192 * i))
            out.append(I('buffer_load_dwordx4 v%d, %s, s10 offen lds' % (VL16, sr(S_PHI, 4))))
        return out
    def wphi_read(self, nheads, hoff_s, WP):
        I = self.I; T = TMP + 9
        I('v_lshrrev_b32 v%d, 5, v%d' % (T, VLANE)); I('v_lshlrev_b32 v%d, 2, v%d' % (T, T)); I('v_bfe_u32 v%d, v%d, 2, 2' % (T + 1, VLANE)); I('v_add_u32 v%d, v%d, v%d' % (T, T, T + 1))
        I('v_mul_u32_u24 v%d, 56, v%d' % (T, T)); I('v_add_u32 v%d, s%d, v%d' % (T, hoff_s, T))
        I('v_bfe_u32 v%d, v%d, 4, 1' % (T + 1, VLANE)); I('v_lshlrev_b32 v%d, 2, v%d' % (T + 1, T + 1)); I('v_and_or_b32 v%d, v%d, 3, v%d' % (T + 1, VLANE, T + 1))
        I('v_min_u32 v%d, 6, v%d' % (T + 1, T + 1)); I('v_lshl_add_u32 v%d, v%d, 3, v%d' % (T, T + 1, T))
        for i in range(nheads):
            for s in range(2):
                for h in range(2):
                    I('ds_read_b64_tr_b16 %s, v%d offset:%d' % (ar(WP + 8 * i + 4 * s + 2 * h, 2), T, i * 1568 + (16 * s + 8 * h) * 56))

    def kv_common(self):
        I = self.I; g = self.g
        self.tagbase = 'k'
        self.srd(S_W, 18, 448 * 2688)
        I('s_lshl_b32 s8, s%d, 2' % S_IDX); I('s_lshr_b32 s9, 0xdb9630, s8'); I('s_and_b32 s9, s9, 15')
        I('s_lshr_b32 s10, 0x322333, s8'); I('s_and_b32 s10, s10, 15')
        I('s_mul_i32 s11, s9, 56'); I('s_and_b32 s%d, s11, -16' % S_WSO); I('s_and_b32 s11, s11, 8')
        I('s_mul_i32 s8, s10, 3'); I('s_add_u32 s8, s8, 1')
        I('v_cmp_lt_u32 vcc, 13, v7'); I('v_subrev_u32 v8, 14, v7'); I('v_cndmask_b32 v8, v7, v8, vcc'); I('v_min_u32 v8, s8, v8')
        I('v_mov_b32 v9, 896'); I('v_mov_b32 v10, 1792'); I('v_cndmask_b32 v9, v9, v10, vcc')
        I('v_mul_u32_u24 v6, 2688, v6'); I('v_add_u32 v6, v6, v9'); I('v_lshl_add_u32 v%d, v8, 4, v6' % DW)
        I('s_mov_b32 s0, s9'); I('s_mov_b32 s1, s10'); I('s_mov_b32 s%d, s11' % S_NONCE)
        dms = self.start_stream(2688)
        I('s_mul_i32 s10, s%d, 224' % S_CH); I('s_add_u32 s10, s10, s%d' % S_NONCE); I('s_add_u32 s10, s10, %d' % WPART)
        self.read_addrs(True)
        self.pre_loop()
        def kvx():
            I('s_mov_b32 s%d, s0' % S_H0); I('s_mov_b32 s%d, s1' % S_NH)
            self.wphi_dma(1, S_H0)
            if ATOM:
                I('s_cmp_lg_u32 s%d, 0' % S_RB); I('s_cbranch_scc1 L_nozero')
                Z = TMP + 4
                for i in range(4): I('v_mov_b32 v%d, 0' % (Z + i))
                I('s_lshl_b32 s8, s%d, 13' % S_H0); I('s_lshl_b32 s9, s%d, 10' % S_WAVE); I('s_add_u32 s8, s8, s9'); I('s_add_u32 s8, s8, %d' % L.WS_KV)
                self.U('buffer_store_dwordx4 %s, v%d, %s, s8 offen sc1' % (vr(Z, 4), VL16, sr(S_WS, 4)))
                I('s_add_u32 s8, s8, 8192'); self.U('buffer_store_dwordx4 %s, v%d, %s, s8 offen sc1' % (vr(Z, 4), VL16, sr(S_WS, 4)))
                I('s_add_u32 s8, s8, 8192'); I('s_cmp_eq_u32 s%d, 3' % S_NH); I('s_cselect_b32 s8, s8, 0x7f000000')
                self.U('buffer_store_dwordx4 %s, v%d, %s, s8 offen sc1' % (vr(Z, 4), VL16, sr(S_WS, 4))); I('s_nop 1')
                self.g.label('L_nozero')
        self.early = [self.late_group(True, kvx)]
        rot = lambda i: [((i + cc) % 3, AW + i, 56 * ((i + cc) % 3)) for cc in range(3)]
        tiles = [dict(t=rot(i), cs=(i < 3)) for i in range(4)]
        self.bdma, self.bread = {}, {}; self.nslot = 5
        def pre2():
            pass
        def post2():
            with g.capture() as a:
                I('s_mov_b32 s8, %d' % L_WPHI)
                self.wphi_read(3, 8, 88)
            return [a]
        def post3():
            with g.capture() as a:
                I('s_or_b32 s8, s%d, s%d' % (S_RB, S_WAVE)); I('s_cmp_lg_u32 s8, 0'); I('s_cbranch_scc1 L_nozf')
                I('s_lshl_b32 s8, s%d, 7' % S_IDX); I('s_add_u32 s8, s8, %d' % (L.WS_KVZ + 0x4000))
                self.publish(8, TMP + 8).kind = 'untracked'
                self.g.label('L_nozf')
            return [a]
        self.gemm(tiles, 2688, dms, 'k', self.bhooks({2: post2, NST: post3} if ATOM else {2: post2}))
        I('s_lshl_b32 s10, s%d, 12' % S_CH); I('s_add_u32 s10, s10, %d' % L_CP)
        self.finish_stats([(0, 10, 0), (1, 10, 1024), (2, 10, 2048)], L.LOG2E, 'k')
        self.slot4_setup()
        T = TMP
        I('v_and_b32 v%d, 31, v%d' % (T, VLANE)); I('v_lshlrev_b32 v%d, 6, v%d' % (T, T)); I('s_lshl_b32 s8, s%d, 11' % S_RT); I('v_add_u32 v%d, s8, v%d' % (T, T))
        I('v_bfe_u32 v%d, v%d, 1, 2' % (T + 1, VLANE)); I('v_lshl_add_u32 v%d, v%d, 4, v%d' % (CS + 2, T + 1, T))
        I('v_lshrrev_b32 v%d, 5, v%d' % (CS + 3, VLANE))
        I('v_lshl_add_u32 v%d, v%d, 13, v%d' % (AX, CS + 3, CS + 2)); I('s_lshl_b32 s9, s%d, 5' % S_CH); I('v_xor_b32 v%d, s9, v%d' % (AX, AX))
        I('v_xor_b32 v%d, 16, v%d' % (AX + 1, AX))
        I('s_add_u32 s8, s8, %d' % L_V); I('v_add_u32 v%d, s8, v%d' % (AW, VL16))
        if ATOM:
            I('s_lshl_b32 s11, s%d, 7' % S_IDX); I('s_add_u32 s11, s11, %d' % (L.WS_KVZ + 0x4000)); I('v_mov_b32 v123, 0')
            self.poll_issue(123, 11, 124)
        I('s_cmp_eq_u32 s%d, 1' % S_CH); I('s_cbranch_scc1 L_kv_v')

    def kv_rest(self, tg, As, wr):
        I = self.I; g = self.g; U = 120; T = TMP
        self.with_bg(lambda: self.half_units(As, tg == 'v'), self.b_round1(), int(os.environ.get('KBG', '20')))
        for i, A in enumerate(As):
            wr += [I('ds_write_b128 v%d, %s offset:%d' % (AX + q, vr(A + 4 * q, 4), L_PHI + 16384 * i)) for q in range(2)]
        I('v_bfe_u32 v%d, v%d, 2, 2' % (T + 1, VLANE)); I('v_lshl_add_u32 v%d, v%d, 2, v%d' % (T, CS + 3, T + 1))
        I('v_lshrrev_b32 v%d, 1, v%d' % (T + 1, T))
        I('v_bfe_u32 v%d, v%d, 4, 1' % (T + 2, VLANE)); I('v_bfe_u32 v%d, v%d, 1, 1' % (T + 3, VLANE)); I('v_lshl_add_u32 v%d, v%d, 1, v%d' % (T + 2, T + 2, T + 3))
        I('v_xor_b32 v%d, v%d, v%d' % (T + 1, T + 1, T + 2)); I('v_lshlrev_b32 v%d, 6, v%d' % (T, T)); I('v_lshl_add_u32 v%d, v%d, 4, v%d' % (T, T + 1, T))
        I('v_and_b32 v%d, 1, v%d' % (T + 1, VLANE)); I('v_lshl_add_u32 v%d, v%d, 3, v%d' % (T, T + 1, T))
        I('s_lshl_b32 s10, s%d, 13' % S_WAVE); I('v_add_u32 v%d, s10, v%d' % (U + 1, T))
        I('s_lshr_b32 s9, s%d, 1' % S_WAVE); I('s_lshl_b32 s10, s9, 13'); I('s_add_u32 s10, s10, %d' % L_V); I('v_add_u32 v%d, s10, v%d' % (U, T))
        I('s_lshl_b32 s10, s%d, 1' % S_H0); I('s_add_u32 s10, s10, s%d' % S_WAVE); I('s_lshl_b32 s10, s10, 6'); I('s_add_u32 s10, s10, s%d' % S_RB)
        I('s_lshl_b32 s10, s10, 10'); I('s_add_u32 s0, s10, %d' % L.WS_SL)
        if ATOM:
            I('v_lshlrev_b32 v%d, 10, v%d' % (U + 2, CS + 3)); I('v_and_b32 v%d, 31, v%d' % (T + 3, VLANE)); I('v_lshl_add_u32 v%d, v%d, 2, v%d' % (U + 2, T + 3, U + 2))
            I('s_add_u32 s10, s9, s%d' % S_H0); I('s_lshl_b32 s10, s10, 13'); I('s_and_b32 s8, s%d, 1' % S_WAVE); I('s_lshl_b32 s8, s8, 7'); I('s_add_u32 s10, s10, s8')
            I('s_add_u32 s0, s10, %d' % L.WS_KV); I('s_add_u32 s10, s0, 4096')
            self.poll_check('z' + tg, 123, 11, 124)
        I('s_lshl_b32 s8, s%d, 4' % S_IDX); I('s_add_u32 s8, s8, s%d' % S_RB); I('s_lshl_b32 s8, s8, 7'); I('s_add_u32 s1, s8, %d' % L.WS_KVZ)
        I('s_waitcnt lgkmcnt(0)')
        I('s_barrier')
        self.stamp('bb')
        I('s_cmp_ge_u32 s9, s%d' % S_NH); I('s_cbranch_scc1 L_nounit%s' % tg)
        def rd(s):
            b = 64 + 8 * (s % 4)
            for h in range(2):
                I('ds_read_b64_tr_b16 %s, v%d offset:%d' % (vr(b + 2 * h, 2), U + (0 if ATOM else 1), (16 * s + 8 * h) * 64))
                I('ds_read_b64_tr_b16 %s, v%d offset:%d' % (vr(b + 4 + 2 * h, 2), U + (1 if ATOM else 0), (16 * s + 8 * h) * 64))
        D = ACC
        for s in range(3): rd(s)
        for s in range(8):
            if s + 3 < 8: rd(s + 3)
            b = 64 + 8 * (s % 4)
            I('v_mfma_f32_32x32x16_bf16 %s, %s, %s, %s' % (vr(D, 16), vr(b, 4), vr(b + 4, 4), vr(D, 16) if s else '0'))
        if ATOM:
            I('s_nop 7'); I('s_nop 4')
            for r in range(16):
                d = (r & 3) + 8 * (r >> 2)
                if r == 13: I('s_mov_b32 exec_hi, 0')
                self.U('buffer_atomic_add_f32 v%d, v%d, %s, s%d offen offset:%d' % (D + r, U + 2, sr(S_WS, 4), 0 if d < 16 else 10, (d % 16) * 256))
            I('s_mov_b64 exec, -1')
        for Q in range(0 if ATOM else 4):
            if Q == 0: I('s_nop 7'); I('s_nop 3')
            if Q: I('s_add_u32 s0, s0, 16384')
            self.U('buffer_store_dwordx4 %s, v%d, %s, s0 offen sc1' % (vr(D + 4 * Q, 4), VL16, sr(S_WS, 4)))
        self.g.label('L_nounit%s' % tg)
        I('s_waitcnt vmcnt(0)')
        I('s_barrier')
        I('s_cmp_lg_u32 s%d, 7' % S_WAVE); I('s_cbranch_scc1 L_nokf%s' % tg)
        self.publish(1, 96).kind = 'untracked'
        self.g.label('L_nokf%s' % tg)
        self.stamp('units')
        for t in self.b_dma(4) + self.b_tasks(5, 9): g.extend(t)
        self.p2_pre()
        pa = self.poll_issue(P2T + 1, 26, P2T)
        for t in self.wo_dma() + self.b_tasks(4, 5): g.extend(t)
        I('s_waitcnt lgkmcnt(0)'); I('s_nop 0', needs=[pa])
        I('s_branch L_p2')

    def kv_k(self):
        I = self.I; g = self.g
        wr = []
        for i in range(3):
            N = 64 + 8 * i
            self.pack_k(ACC + 16 * i, N)
            wr += [I('ds_write_b128 v%d, %s offset:%d' % (AW, vr(N + 4 * q, 4), 8192 * i + 1024 * q)) for q in range(2)]
            self.phi_mfma(ACC + 16 * i, N, 88 + 8 * i)
        I('s_barrier', needs=wr)
        self.kv_rest('k', [ACC, ACC + 16, ACC + 32], [])

    def kv_v(self):
        I = self.I; g = self.g; T = TMP
        I('v_lshl_add_u32 v%d, v%d, 3, v%d' % (T, CS + 3, CS + 2)); I('v_add_u32 v%d, %d, v%d' % (T, L_V, T))
        for q in range(1, 4): I('v_xor_b32 v%d, %d, v%d' % (T + q, 16 * q, T))
        I('v_cndmask_b32 v%d, v%d, 0, %s' % (CS, ST + 1, sr(S_HIM, 2))); I('v_cndmask_b32 v%d, 0, 1.0, %s' % (CS + 1, sr(S_HIM, 2)))
        PV = [48, 56, 96]
        for i in range(3):
            A = ACC + 16 * i
            for j in range(0, 12, 2): I('v_pk_mul_f32 %s, %s, %s op_sel:[0,1] op_sel_hi:[1,1]' % (vr(A + j, 2), vr(A + j, 2), vr(ST, 2)))
            for j in (12, 14): I('v_pk_fma_f32 %s, %s, %s, %s op_sel:[0,0,1] op_sel_hi:[1,0,1]' % (vr(A + j, 2), vr(A + j, 2), vr(CS, 2), vr(CS, 2)))
            for j in range(8): I('v_cvt_pk_bf16_f32 v%d, v%d, v%d' % (PV[i] + j, A + 2 * j, A + 2 * j + 1))
        I('s_barrier')
        rd = [I('ds_read_b128 %s, v%d offset:%d' % (vr(64 + 8 * i + 4 * q, 4), AW, 8192 * i + 1024 * q)) for i in range(3) for q in range(2)]
        wr = []
        for i in range(3):
            self.phi_mfma(ACC + 16 * i, 64 + 8 * i, 88 + 8 * i)
            wr += [I('ds_write_b64 v%d, %s offset:%d' % (T + q, vr(PV[i] + 2 * q, 2), 8192 * i), needs=rd[2 * i:2 * i + 2]) for q in range(4)]
        self.kv_rest('v', [ACC, ACC + 16, ACC + 32], wr)
    _uid = 0
    def uid(self):
        K._uid += 1
        return str(K._uid)

    def q(self):
        I = self.I; g = self.g
        self.tagbase = 'q'
        self.srd(S_W, 18, 448 * 2688)
        I('v_mul_u32_u24 v6, 2688, v6'); I('v_lshl_add_u32 v%d, v7, 4, v6' % DW)
        I('s_mul_i32 s%d, s%d, 448' % (S_WSO, S_IDX))
        dms = self.start_stream(2688)
        I('s_mul_i32 s10, s%d, 224' % S_CH); I('s_add_u32 s10, s10, %d' % WPART)
        self.read_addrs(True)
        self.pre_loop()
        def qx():
            I('s_lshl_b32 s%d, s%d, 3' % (S_H0, S_IDX))
            self.wphi_dma(2, S_H0)
        self.early = [self.late_group(False, qx)]
        tiles = [dict(t=[((i + cc) % 4, AW + i, 56 * ((i + cc) % 4)) for cc in range(4)], cs=True) for i in range(4)]
        def post2():
            with g.capture() as a:
                I('s_mul_i32 s8, s%d, %d' % (S_CH, 4 * 1568)); I('s_add_u32 s8, s8, %d' % L_WPHI)
                self.wphi_read(4, 8, 0)
            return [a]
        self.gemm(tiles, 2688, dms, 'q', dict(post={2: post2}))
        I('s_lshl_b32 s10, s%d, 12' % S_CH); I('s_add_u32 s10, s10, %d' % L_CP)
        self.finish_stats([(c, 10, 1024 * c) for c in range(4)], L.LOG2E, 'q')
        for i in range(4):
            self.pack_k(ACC + 16 * i, 80 + 8 * (i & 1)); self.phi_mfma(ACC + 16 * i, 80 + 8 * (i & 1), 8 * i)
        for i in range(4): self.softmax_unit(ACC + 16 * i, sreg=124 + i)
        self.stamp('soft')
        if 'noq' in EXP: return
        T = TMP
        if 'lat' in EXP:
            I('s_lshl_b32 s8, s2, 3'); I('s_add_u32 s8, s8, s%d' % S_WAVE); I('s_lshl_b32 s8, s8, 9'); I('s_add_u32 s8, s8, %d' % (15 << 20)); I('v_mov_b32 v%d, 0' % T)
            for rep_ in range(2):
                I('buffer_load_dword v%d, v%d, %s, s8 offen offset:%d sc1' % (T + 1, T, sr(S_WS, 4), 256 * rep_)); I('s_waitcnt vmcnt(0)'); self.stamp('miss')
                I('buffer_load_dword v%d, v%d, %s, s8 offen offset:%d sc1' % (T + 1, T, sr(S_WS, 4), 256 * rep_)); I('s_waitcnt vmcnt(0)'); self.stamp('l2hit')
                I('buffer_store_dword v%d, v%d, %s, s8 offen offset:%d sc1' % (T + 1, T, sr(S_WS, 4), 128 + 256 * rep_)); I('s_waitcnt vmcnt(0)'); self.stamp('st')
            self.nst = 15
        if ATOM:
            T = TMP
            I('v_lshrrev_b32 v%d, 4, v%d' % (T, VLANE)); I('s_lshl_b32 s8, s%d, 1' % S_IDX); I('v_add_u32 v%d, s8, v%d' % (T, T))
            I('s_mul_i32 s8, s%d, 3' % S_IDX); I('s_add_u32 s8, s8, 2'); I('v_min_u32 v%d, s8, v%d' % (T, T))
            I('v_and_b32 v%d, 15, v%d' % (T + 1, VLANE)); I('v_lshl_add_u32 v%d, v%d, 4, v%d' % (T, T, T + 1)); I('v_lshlrev_b32 v%d, 7, v%d' % (T, T))
            I('s_mov_b32 s11, %d' % L.WS_KVZ)
            I('v_lshrrev_b32 v%d, 3, v%d' % (T + 2, VLANE)); I('v_lshlrev_b32 v%d, 8, v%d' % (T + 2, T + 2))
            I('v_lshrrev_b32 v%d, 4, v%d' % (T + 3, VLANE)); I('v_and_b32 v%d, 7, v%d' % (T + 4, VLANE)); I('v_xor_b32 v%d, v%d, v%d' % (T + 3, T + 3, T + 4))
            I('v_lshl_add_u32 v%d, v%d, 4, v%d' % (T + 4, T + 3, T + 2)); I('v_xor_b32 v%d, 64, v%d' % (T + 5, T + 4))
            I('s_add_u32 s8, s%d, s%d' % (S_H0, S_WAVE)); I('s_lshl_b32 s8, s8, 13'); I('s_add_u32 s8, s8, %d' % L.WS_KV)
            I('s_lshl_b32 s9, s%d, 13' % S_WAVE)
            I('v_bfe_u32 v%d, v%d, 3, 2' % (T + 2, VLANE)); I('v_lshlrev_b32 v%d, 2, v%d' % (T + 2, T + 2)); I('v_and_or_b32 v%d, v%d, 3, v%d' % (T + 2, VLANE, T + 2))
            I('v_bfe_u32 v%d, v%d, 2, 1' % (T + 3, VLANE)); I('v_mul_u32_u24 v%d, 14, v%d' % (T + 3, T + 3)); I('v_add_u32 v%d, v%d, v%d' % (T + 3, T + 3, T + 2))
            I('v_cmp_gt_u32 vcc, 14, v%d' % (T + 2)); I('v_cndmask_b32 v%d, 28, v%d, vcc' % (T + 3, T + 3))
            I('v_bfe_u32 v%d, v%d, 1, 3' % (T + 2, T + 3)); I('v_lshlrev_b32 v%d, 4, v%d' % (T + 2, T + 2))
            I('v_and_b32 v%d, 32, v%d' % (T + 6, VLANE)); I('v_add_u32 v%d, v%d, v%d' % (T + 3, T + 3, T + 6)); I('v_lshl_add_u32 v%d, v%d, 7, v%d' % (T + 2, T + 3, T + 2))
            I('v_add_u32 v%d, s9, v%d' % (T + 2, T + 2))
            I('s_cmp_lg_u32 s%d, 0' % S_WAVE); I('s_cbranch_scc1 L_polldkv')
            self.g.label('L_pollkv')
            self.U('buffer_load_dword v64, v%d, %s, s11 offen sc1' % (T, sr(S_WS, 4))); self.U('s_waitcnt vmcnt(0)')
            I('v_cmp_ne_u32 vcc, s%d, v64' % S_NONCE); I('s_nop 1'); I('s_cbranch_vccz L_polldkv')
            self.spin_tail('L_pollkv', QSL)
            self.g.label('L_polldkv')
            I('s_barrier')
            self.stamp('kvok')
            dm = []
            for i in range(8):
                I('s_add_u32 m0, s9, %d' % (L_KVQ + 1024 * i)); I('s_add_u32 s10, s8, %d' % ((i & 3) * 2048 + (i >> 2) * 128))
                dm.append(I('buffer_load_dwordx4 v%d, %s, s10 offen sc1 lds' % (T + 4 + (i & 1), sr(S_WS, 4))))
            for c in range(8):
                I('v_xor_b32 v%d, %d, v%d' % (T + 6 + (c & 1), 16 * c, T + 2))
                I('ds_read_b128 %s, v%d' % (vr(64 + 4 * c, 4), T + 6 + (c & 1)), needs=dm)
            I('s_waitcnt lgkmcnt(0)'); self.stamp('kvld')
            for j in range(16): I('v_cvt_pk_bf16_f32 v%d, v%d, v%d' % (96 + j, 64 + 2 * j, 64 + 2 * j + 1))
            I('s_lshl_b32 s8, s%d, 12' % S_WAVE); I('s_add_u32 s8, s8, %d' % L_KVF); I('v_add_u32 v%d, s8, v%d' % (T, VL16))
            wr = [I('ds_write_b128 v%d, %s offset:%d' % (T, vr(96 + 4 * s, 4), 1024 * s)) for s in range(4)]
            I('s_lshl_b32 s8, s%d, 14' % S_CH); I('s_add_u32 s8, s8, %d' % L_KVF); I('v_add_u32 v%d, s8, v%d' % (T, VL16))
            qbar = lambda: (I('s_barrier', needs=wr), [I('ds_read_b128 %s, v%d offset:%d' % (ar(32 + 16 * i + 4 * s, 4), T, 4096 * i + 1024 * s)) for i in range(4) for s in range(4)])
        else:
            I('v_bfe_u32 v%d, v%d, 3, 2' % (T + 2, VLANE)); I('v_lshlrev_b32 v%d, 2, v%d' % (T + 2, T + 2)); I('v_and_or_b32 v%d, v%d, 3, v%d' % (T + 2, VLANE, T + 2))
            I('v_bfe_u32 v%d, v%d, 2, 1' % (T + 3, VLANE)); I('v_mul_u32_u24 v%d, 14, v%d' % (T + 3, T + 3)); I('v_add_u32 v%d, v%d, v%d' % (T + 3, T + 3, T + 2))
            I('v_cmp_gt_u32 vcc, 14, v%d' % (T + 2)); I('v_cndmask_b32 v%d, 28, v%d, vcc' % (T + 3, T + 3))
            I('v_and_b32 v%d, 32, v%d' % (T + 2, VLANE)); I('v_lshlrev_b32 v%d, 6, v%d' % (T + 2, T + 2)); I('v_lshl_add_u32 v%d, v%d, 4, v%d' % (T + 2, T + 3, T + 2))
            I('s_lshl_b32 s8, s%d, 14' % S_CH); I('v_add_u32 v%d, s8, v%d' % (T + 2, T + 2))
            I('v_and_b32 v%d, 15, v%d' % (T, VLANE)); I('v_lshlrev_b32 v%d, 7, v%d' % (T, T))
            I('v_and_b32 v%d, 7, v%d' % (T + 3, VLANE)); I('v_lshlrev_b32 v%d, 7, v%d' % (T + 3, T + 3))
            I('s_cmp_lg_u32 s%d, 0' % S_CH); I('s_cbranch_scc1 L_noreduce')
            I('s_lshl_b32 s8, s%d, 1' % S_RB); I('s_add_u32 s8, s8, s%d' % S_IDX); I('s_lshl_b32 s8, s8, 2'); I('s_add_u32 s11, s8, s%d' % S_RT)
            I('s_lshl_b32 s0, s11, 14'); I('s_add_u32 s0, s0, %d' % L.WS_SL)
            I('s_mov_b32 s8, 0x22111000'); I('s_mov_b32 s9, 0x55544332'); I('s_lshl_b32 s10, s%d, 2' % S_RB); I('s_lshr_b64 s[8:9], s[8:9], s10'); I('s_and_b32 s8, s8, 15')
            I('s_lshl_b32 s8, s8, 11'); I('s_add_u32 s1, s8, %d' % L.WS_KVZ)
            self.g.label('L_red_poll')
            self.U('buffer_load_dword v%d, v%d, %s, s1 offen sc1' % (T + 1, T, sr(S_WS, 4))); self.U('s_waitcnt vmcnt(0)')
            I('v_cmp_ne_u32 vcc, s%d, v%d' % (S_NONCE, T + 1)); I('s_nop 1'); I('s_cbranch_vccz L_red_load')
            self.spin_tail('L_red_poll', QSL)
            self.g.label('L_red_load')
            R = 64
            def src(i): return (64 + 4 * i) if i < 15 else T + 4
            for i in range(16):
                if i % 4 == 0: I('s_add_u32 s8, s0, %d' % (1024 * i))
                I('buffer_load_dwordx4 %s, v%d, %s, s8 offen offset:%d' % (vr(src(i), 4), VL16, sr(S_WS, 4), 1024 * (i % 4)))
            I('s_lshl_b32 s8, s11, 9'); I('s_add_u32 s8, s8, %d' % L.WS_KF); I('s_lshl_b32 s9, s11, 7'); I('s_add_u32 s9, s9, %d' % L.WS_KVD)
            for i in range(2, 16):
                for j in (0, 2): I('v_pk_add_f32 %s, %s, %s' % (vr(R + 4 * (i & 1) + j, 2), vr(R + 4 * (i & 1) + j, 2), vr(src(i) + j, 2)))
            for j in (0, 2): I('v_pk_add_f32 %s, %s, %s' % (vr(R + j, 2), vr(R + j, 2), vr(R + 4 + j, 2)))
            I('v_cvt_pk_bf16_f32 v68, v64, v65'); I('v_cvt_pk_bf16_f32 v69, v66, v67')
            I('v_mov_b32 v72, v68'); I('v_mov_b32 v73, v69')
            I('v_permlane32_swap_b32 v72, v70'); I('v_permlane32_swap_b32 v73, v71')
            I('s_mov_b32 exec_hi, 0')
            I('buffer_store_dwordx4 v[68:71], v%d, %s, s8 offen sc1' % (VL16, sr(S_WS, 4)))
            I('s_mov_b64 exec, -1')
            self.stamp('red')
            I('s_waitcnt vmcnt(0)')
            self.publish(9, 72).kind = 'untracked'
            self.g.label('L_noreduce')
            I('s_add_u32 s10, s%d, s%d' % (S_H0, S_WAVE)); I('s_lshl_b32 s11, s10, 10'); I('s_add_u32 s11, s11, %d' % L.WS_KVD)
            I('s_lshl_b32 s10, s10, 12'); I('s_add_u32 s10, s10, %d' % L.WS_KF); I('s_lshl_b32 m0, s%d, 12' % S_WAVE)
            self.g.label('L_pollkv')
            self.U('buffer_load_dword v64, v%d, %s, s11 offen sc1' % (T + 3, sr(S_WS, 4))); self.U('s_waitcnt vmcnt(0)')
            I('v_cmp_ne_u32 vcc, s%d, v64' % S_NONCE); I('s_nop 1'); I('s_cbranch_vccz L_polldkv')
            self.spin_tail('L_pollkv', QSL)
            self.g.label('L_polldkv')
            self.nst = 7
            self.stamp('kvok')
            dm = [I('buffer_load_dwordx4 v%d, %s, s10 offen offset:%d lds' % (VL16, sr(S_WS, 4), 1024 * i)) for i in range(4)]
            qbar = lambda: (I('s_barrier', needs=dm), [I('ds_read_b128 %s, v%d offset:%d' % (ar(32 + 16 * i + 4 * sf, 4), T + 2, 4096 * i + 512 * sf)) for i in range(4) for sf in range(4)])
        I('s_lshl_b32 s8, s%d, 2' % S_RB); I('s_add_u32 s8, s8, s%d' % S_RT); I('s_mul_i32 s8, s8, 28'); I('s_mul_i32 s9, s%d, 14' % S_IDX); I('s_add_u32 s8, s8, s9')
        I('s_mul_i32 s9, s%d, 7' % S_CH); I('s_add_u32 s8, s8, s9'); I('s_lshl_b32 s8, s8, 10'); I('s_add_u32 s8, s8, %d' % L.WS_O); I('s_add_u32 s9, s8, 4096')
        qbar()
        N = [64, 80]; O = 96
        def ost(f): I('buffer_store_dwordx4 %s, v%d, %s, s%d offen offset:%d sc1' % (vr(O + 4 * f, 4), VL16, sr(S_WS, 4), 8 if f < 4 else 9, (f % 4) * 1024))
        done = 0
        for i in range(5):
            if i < 4:
                for s in range(4):
                    I('v_mfma_f32_32x32x16_bf16 %s, %s, %s, %s' % (vr(N[i & 1], 16), ar(32 + 16 * i + 4 * s, 4), vr(ACC + 16 * i + 4 * s, 4), vr(N[i & 1], 16) if s else '0'))
            if i >= 1:
                self.o_fin(N[(i - 1) & 1], O + 7 * (i - 1), 124 + i - 1)
                while 4 * (done + 1) <= 7 * i: ost(done); done += 1
        self.stamp('ocomp')
        I('s_lshl_b32 s8, s%d, 2' % S_RB); I('s_add_u32 s8, s8, s%d' % S_RT); I('s_lshl_b32 s8, s8, 1'); I('s_add_u32 s8, s8, s%d' % S_IDX)
        I('s_lshl_b32 s8, s8, 1'); I('s_add_u32 s8, s8, s%d' % S_CH); I('s_lshl_b32 s8, s8, 7'); I('s_add_u32 s11, s8, %d' % L.WS_FO)
        I('s_waitcnt vmcnt(0)')
        self.publish(11, TMP)
        self.stamp('opub')
        I('s_waitcnt vmcnt(0)')
    def o_fin(self, N, O, sreg):
        I = self.I; t = TMP + 8
        I('v_fmac_f32 v%d, %s, v%d' % (N + 14, f32(1e-6), sreg)); I('v_rcp_f32 v%d, v%d' % (t, N + 14))
        for j in range(0, 14, 2): I('v_pk_mul_f32 %s, %s, %s op_sel_hi:[1,0]' % (vr(N + j, 2), vr(N + j, 2), vr(t, 2)))
        for j in range(7): I('v_cvt_pk_bf16_f32 v%d, v%d, v%d' % (O + j, N + 2 * j, N + 2 * j + 1))

    def p2_pre(self):
        I = self.I; T = P2T
        I('s_lshl_b32 s8, s%d, 1' % S_RG)
        I('s_mul_i32 s%d, s8, 112' % S_A0); I('s_mul_i32 s9, s%d, 14' % S_WAVE); I('s_add_u32 s%d, s%d, s9' % (S_A0, S_A0)); I('s_lshl_b32 s%d, s%d, 10' % (S_A0, S_A0))
        I('s_add_u32 s%d, s%d, %d' % (S_A1, S_A0, 112 * 1024))
        I('s_mul_i32 s%d, s8, 28' % S_OSO); I('s_mul_i32 s9, s%d, 7' % S_WAVE); I('s_add_u32 s%d, s%d, s9' % (S_OSO, S_OSO)); I('s_lshl_b32 s%d, s%d, 10' % (S_OSO, S_OSO))
        I('s_add_u32 s%d, s%d, %d' % (S_OSO, S_OSO, L.WS_O))
        XO = T + 2
        I('v_lshrrev_b32 v%d, 3, v%d' % (T, VLANE)); I('v_mul_u32_u24 v%d, 896, v%d' % (T, T)); I('v_and_b32 v%d, 7, v%d' % (T + 3, VLANE)); I('v_lshl_add_u32 v%d, v%d, 4, v%d' % (XO, T + 3, T))
        I('s_lshl_b32 s9, s%d, 3' % S_RG); I('s_add_u32 s9, s9, s%d' % S_WAVE); I('s_mul_i32 s9, s9, %d' % (8 * 896)); I('s_lshl_b32 s11, s%d, 7' % S_CG); I('s_add_u32 s30, s9, s11')
        I('v_lshlrev_b32 v%d, 7, v%d' % (T + 3, T + 3))
        WA = T + 8
        I('v_lshrrev_b32 v%d, 5, v%d' % (T, VLANE)); I('v_bfe_u32 v%d, v%d, 3, 1' % (WA, VLANE)); I('v_xor_b32 v%d, v%d, v%d' % (WA, WA, T))
        I('v_mul_u32_u24 v%d, 14, v%d' % (WA + 1, T)); I('v_bfe_u32 v%d, v%d, 2, 2' % (WA + 2, VLANE)); I('v_add_u32 v%d, v%d, v%d' % (WA + 1, WA + 1, WA + 2))
        I('v_lshlrev_b32 v%d, 7, v%d' % (WA + 1, WA + 1)); I('v_lshl_add_u32 v%d, v%d, 6, v%d' % (WA, WA, WA + 1))
        I('v_and_b32 v%d, 3, v%d' % (WA + 1, VLANE)); I('v_lshl_add_u32 v%d, v%d, 3, v%d' % (WA, WA + 1, WA))
        I('v_and_b32 v%d, 16, v%d' % (WA + 1, VLANE)); I('v_lshl_add_u32 v%d, v%d, 1, v%d' % (WA, WA + 1, WA))
        I('s_and_b32 s9, s%d, 1' % S_WAVE); I('s_lshl_b32 s9, s9, 6'); I('v_xor_b32 v%d, s9, v%d' % (WA, WA))
        I('s_mul_i32 s9, s%d, %d' % (S_CH, 224 * 128)); I('v_add_u32 v%d, s9, v%d' % (WA, WA))
        I('v_xor_b32 v%d, 64, v%d' % (WA + 1, WA))
        I('v_add_u32 v%d, %d, v%d' % (WA + 2, 14 * 128, WA + 1)); I('v_and_b32 v%d, 8, v%d' % (T, VLANE)); I('v_cmp_eq_u32 vcc, 0, v%d' % T); I('v_cndmask_b32 v%d, v%d, v%d, vcc' % (WA + 2, WA + 2, WA))
        I('v_and_b32 v%d, 1, v%d' % (T + 1, VLANE)); I('v_lshlrev_b32 v%d, 11, v%d' % (T + 1, T + 1)); I('v_and_b32 v%d, 2, v%d' % (T, VLANE)); I('v_lshl_add_u32 v%d, v%d, 6, v%d' % (T + 1, T, T + 1))
        I('s_lshl_b32 s8, s%d, 12' % S_RG); I('s_lshl_b32 s9, s%d, 8' % S_WAVE); I('s_add_u32 s9, s9, s8'); I('s_add_u32 s26, s9, %d' % L.WS_FLAG)
        I('s_add_u32 s27, s26, 128')
        I('s_lshl_b32 s8, s%d, 10' % S_RG); I('s_add_u32 s28, s8, %d' % L.WS_FO)

    def phase2(self):
        I = self.I; g = self.g; T = P2T
        XO, XR, WA = T + 2, T + 4, T + 8
        self.nst = 8
        if 'start' in EXP or 'stg' in EXP: self.nst = 15
        self.stamp('p2start')
        self.poll_check('A', T + 1, 26, T)
        self.stamp('hok')
        RING = 64; NR = 15
        self.bdma = {k: [] for k in range(14)}
        def load(n):
            ki, a = divmod(n, 2); k = KORD[ki]; r = RING + 4 * (n % NR)
            base = S_A1 if a else S_A0
            if k >= 4:
                I('s_add_u32 s8, s%d, %d' % (base, (k // 4) * 4096)); base = 8
            I('buffer_load_dwordx4 %s, v%d, %s, s%d offen offset:%d' % (vr(r, 4), VL16, sr(S_WS, 4), base, (k % 4) * 1024))
        def wo_read(kk, dst):
            G, f = divmod(kk, 7)
            for pp in range(2):
                p = 4 * f + 2 * pp; hl = 4 * G + p // 7; i = p % 7
                areg = WA + 2 if i == 6 else WA + (i & 1)
                I('ds_read_b64_tr_b16 %s, v%d offset:%d' % (ar(dst + 2 * pp, 2), areg, L_WO + (28 * hl + 2 * i) * 128))
        for n in range(NR): load(n)
        for t in self.code_pf('p2', XR, 'v%d' % (XR + 1)): g.extend(t)
        nl = NR
        for ki in range(14):
            for a in range(2):
                n = 2 * ki + a; r = RING + 4 * (n % NR)
                for b in range(2):
                    I('v_mfma_f32_32x32x16_bf16 %s, %s, %s, %s' % (vr(16 * (2 * a + b), 16), ar(8 * ki + 4 * b, 4), vr(r, 4), vr(16 * (2 * a + b), 16) if ki else '0'))
                if nl < 28:
                    load(nl); nl += 1
                    if nl == 28: I('buffer_load_dwordx4 %s, v%d, %s, s30 offen' % (vr(XR, 4), XO, sr(S_X, 4)))
            if ki == 0:
                for k in range(9, 14): g.extend(self.b_read(k))
            if ki == 6: I('s_waitcnt lgkmcnt(0)'); I('s_barrier')
            if ki >= 7:
                for kk in (2 * (ki - 7), 2 * (ki - 7) + 1): wo_read(kk, 4 * kk)
        self.stamp('gdone')
        EW = 64
        I('v_and_b32 v%d, 31, v%d' % (T, VLANE)); I('v_lshlrev_b32 v%d, 7, v%d' % (T, T)); I('v_and_b32 v%d, 7, v%d' % (T + 1, VLANE)); I('v_lshl_add_u32 v%d, v%d, 4, v%d' % (T, T + 1, T))
        I('v_lshrrev_b32 v%d, 5, v%d' % (T + 1, VLANE)); I('v_lshl_add_u32 v%d, v%d, 3, v%d' % (T, T + 1, T))
        I('s_lshl_b32 s8, s%d, 13' % S_WAVE); I('s_add_u32 s8, s8, %d' % L_XG); I('v_add_u32 v%d, s8, v%d' % (EW, T))
        wr = []
        for b in range(2):
            for Q in range(4):
                if 4 * b + Q: I('v_xor_b32 v%d, %d, v%d' % (EW + 4 * b + Q, 16 * (4 * b + Q), EW))
                for a in range(2):
                    t = 16 * (2 * a + b)
                    for j in (2 * Q, 2 * Q + 1): I('v_cvt_pk_bf16_f32 v%d, v%d, v%d' % (t + j, t + 2 * j, t + 2 * j + 1))
                    wr.append(I('ds_write_b64 v%d, %s offset:%d' % (EW + 4 * b + Q, vr(t + 2 * Q, 2), 4096 * a)))
        SW = 72
        I('s_lshl_b32 s8, s%d, 13' % S_CH); I('s_bfe_u32 s9, s%d, 0x10001' % S_WAVE); I('s_lshl_b32 s10, s9, 12'); I('s_add_u32 s8, s8, s10'); I('s_add_u32 s8, s8, %d' % L_XS)
        I('v_add_u32 v%d, s8, v%d' % (SW, T)); I('s_and_b32 s8, s%d, 1' % S_WAVE); I('s_lshl_b32 s8, s8, 6'); I('v_xor_b32 v%d, s8, v%d' % (SW, SW))
        for q in range(1, 4): I('v_xor_b32 v%d, %d, v%d' % (SW + q, 16 * q, SW))
        I('s_mul_i32 s9, s9, 28'); I('s_mul_i32 s8, s%d, 14' % S_CH); I('s_add_u32 s9, s9, s8'); I('s_lshl_b32 s9, s9, 10')
        I('v_add_u32 v%d, s9, v%d' % (T + 1, VL16))
        I('v_lshrrev_b32 v%d, 3, v%d' % (T, VLANE)); I('v_and_b32 v%d, 7, v%d' % (124, VLANE)); I('v_xor_b32 v124, v124, v%d' % T)
        I('v_lshlrev_b32 v%d, 7, v%d' % (T, T)); I('v_lshl_add_u32 v%d, v124, 4, v%d' % (T, T)); I('s_lshl_b32 s8, s%d, 10' % S_WAVE); I('s_add_u32 s8, s8, %d' % L_XG)
        I('v_add_u32 v124, s8, v%d' % T); I('v_add_u32 v125, %d, v124' % (L_XS - L_XG))
        I('s_mul_i32 s9, s%d, 7168' % S_WAVE)
        I('s_waitcnt lgkmcnt(0)')
        I('s_barrier')
        self.stamp('e2')
        for src in range(8): I('ds_read_b128 %s, v124 offset:%d' % (vr(8 + 4 * src, 4), 8192 * src))
        def opoll(tag, spin):
            I('s_cmp_lg_u32 s%d, %d' % (S_WAVE, 9 if 'noq' in EXP else 0)); I('s_cbranch_scc1 L_polld%s' % tag)
            self.g.label('L_poll%s' % tag)
            self.U('buffer_load_dword v%d, v%d, %s, s28 offen sc1' % (WA, T + 3, sr(S_WS, 4))); self.U('s_waitcnt vmcnt(0)')
            I('v_cmp_ne_u32 vcc, s%d, v%d' % (S_NONCE, WA)); I('s_nop 1'); I('s_cbranch_vccz L_polld%s' % tag)
            self.spin_tail('L_poll%s' % tag, 4)
            self.g.label('L_polld%s' % tag)
        I('s_mov_b32 s10, 0x00003f80'); I('s_mov_b32 s11, 0x3f800000')
        for j in range(4): I('v_lshlrev_b32 v%d, 16, v%d' % (76 + 2 * j, XR + j)); I('v_and_b32 v%d, s%d, v%d' % (77 + 2 * j, S_MASK, XR + j))
        for src in range(8):
            for j in range(4):
                I('v_dot2_f32_bf16 v%d, v%d, s10, %s' % (2 * j, 8 + 4 * src + j, 'v%d' % (2 * j) if src else '0'))
                I('v_dot2_f32_bf16 v%d, v%d, s11, %s' % (2 * j + 1, 8 + 4 * src + j, 'v%d' % (2 * j + 1) if src else '0'))
        def silu():
            for j in range(8): I('v_exp_f32 v%d, v%d' % (8 + j, j))
            for j in range(0, 8, 2): I('v_pk_add_f32 %s, %s, 1.0 op_sel_hi:[1,0]' % (vr(8 + j, 2), vr(8 + j, 2)))
            for j in range(8): I('v_rcp_f32 v%d, v%d' % (8 + j, 8 + j))
            I('s_mov_b32 s26, %s' % f32(-1.0 / L.LOG2E)); I('s_mov_b32 s27, s26')
            for j in range(0, 8, 2): I('v_pk_mul_f32 %s, %s, s[26:27]' % (vr(j, 2), vr(j, 2)))
            for j in range(0, 8, 2): I('v_pk_mul_f32 %s, %s, %s' % (vr(j, 2), vr(j, 2), vr(8 + j, 2)))
        opoll('O', True)
        I('s_barrier')
        self.stamp('ook')
        od = []
        for i in range(7):
            if i == 0 or i == 4:
                I('s_add_u32 m0, s9, %d' % (L_O + 1024 * i)); I('s_add_u32 s8, s%d, %d' % (S_OSO, 1024 * i))
            od.append(I('buffer_load_dwordx4 v%d, %s, s8 offen offset:%d lds' % (VL16, sr(S_WS, 4), 1024 * (i % 4))))
        silu()
        I('s_barrier', needs=od)
        self.stamp('e3')
        OF = 84; SA = 48
        def ord_(kk): I('ds_read_b128 %s, v%d offset:%d' % (vr(OF + 4 * (kk % 10), 4), T + 1, 1024 * kk))
        for kk in range(8): ord_(kk)
        for kk in range(14):
            I('v_mfma_f32_32x32x16_bf16 %s, %s, %s, %s' % (vr(SA, 16), ar(4 * kk, 4), vr(OF + 4 * (kk % 10), 4), vr(SA, 16) if kk else '0'))
            if kk + 8 < 14: ord_(kk + 8)
        wr = []
        for q in range(4):
            for j in (2 * q, 2 * q + 1): I('v_cvt_pk_bf16_f32 v%d, v%d, v%d' % (SA + j, SA + 2 * j, SA + 2 * j + 1))
            wr.append(I('ds_write_b64 v%d, %s' % (SW + q, vr(SA + 2 * q, 2))))
        I('s_barrier', needs=wr)
        for h in range(2): I('ds_read_b128 %s, v125 offset:%d' % (vr(16 + 4 * h, 4), 8192 * h))
        for h in range(2):
            for j in range(4):
                I('v_dot2_f32_bf16 v%d, v%d, s10, %s' % (24 + 2 * j, 16 + 4 * h + j, 'v%d' % (24 + 2 * j) if h else '0'))
                I('v_dot2_f32_bf16 v%d, v%d, s11, %s' % (25 + 2 * j, 16 + 4 * h + j, 'v%d' % (25 + 2 * j) if h else '0'))
        for j in range(0, 8, 2): I('v_pk_fma_f32 %s, %s, %s, %s' % (vr(j, 2), vr(j, 2), vr(24 + j, 2), vr(76 + j, 2)))
        for j in range(4): I('v_cvt_pk_bf16_f32 v%d, v%d, v%d' % (40 + j, 2 * j, 2 * j + 1))
        I('buffer_store_dwordx4 v[40:43], v%d, %s, s30 offen' % (XO, sr(S_OUT, 4)))
        self.stamp('final')

    def xfilter(self, body):
        out = []
        for x in body:
            if 'nosc1st' in EXP and x.op.startswith('buffer_store_dwordx4') and 'sc1' in x.text and 'v141' in x.text: x.text = x.text.replace(' sc1', '')
            if 'nost' in EXP and x.op.startswith('buffer_store_dwordx4') and 'v141' in x.text: x.text = 's_nop 0'
            if 'nob' in EXP and x.kind == 'dma' and 's[52:55]' in x.text: x.text = 's_nop 0'
            if 'sysp' in EXP and x.op == 'buffer_load_dword' and x.text.endswith('sc1') and 's[64:67]' in x.text: x.text = x.text.replace(' sc1', ' sc0 sc1')
            if 'nowo' in EXP and x.kind == 'dma' and 's[48:51]' in x.text: x.text = 's_nop 0'
            if 'noatom' in EXP and 'atomic' in x.op: x.text = 's_nop 0'
            if 'ntst' in EXP and x.op.startswith('buffer_store_dwordx4') and 'sc1' in x.text and 'v141' in x.text: x.text = x.text.replace(' sc1', ' sc0 sc1')
            out.append(x)
        return out
    def path(self, prefix, fn, label, keys):
        self.keys = keys
        if 'stamp' in self.__dict__: del self.__dict__['stamp']
        with self.g.capture() as body:
            if label: self.g.label(label)
            fn()
        self.xfilter(body)
        allp = [x for p in prefix for x in p]
        for x in allp: x.done = False
        full = self.g.finish(allp + body)
        if label:
            idx = next(i for i, x in enumerate(full) if x.kind == 'label' and x.text == label + ':')
            return full[idx:], body
        return full, body

    def build(self):
        I = self.I
        with self.g.capture() as pro:
            self.prologue()
            I('s_cmp_eq_u32 s%d, 1' % S_TYPE); I('s_cbranch_scc1 L_kv'); I('s_cmp_eq_u32 s%d, 2' % S_TYPE); I('s_cbranch_scc1 L_q')
        n0 = self.nst
        def endp():
            self.write_stamps(); I('s_endpgm')
        def ffn():
            self.ffn()
        out, _ = self.path([pro], ffn, None, ['0'])
        self.nst = n0
        code, kvc = self.path([pro], self.kv_common, 'L_kv', ['10', '11'])
        n1 = self.nst
        save = (dict(self.bdma), dict(self.bread))
        def kk():
            self.kv_k()
        def kvv():
            self.kv_v()
        c2, _ = self.path([pro, kvc], kk, 'L_kv_k', ['10'])
        self.nst = n1; self.bdma, self.bread = dict(save[0]), dict(save[1])
        c3, _ = self.path([pro, kvc], kvv, 'L_kv_v', ['11'])
        out += code + c2 + c3
        self.nst = n0
        def qq():
            self.q(); endp()
        c4, _ = self.path([pro], qq, 'L_q', ['2'])
        out += c4
        def p2():
            self.phase2(); endp()
        if 'nop2' not in EXP:
            c5, _ = self.path([], p2, 'L_p2', ['0', '10', '11'])
            out += c5
        with self.g.capture() as tail:
            self.g.label('L_end'); I('s_endpgm')
        return out + tail

HEADER = open('cdna_kernels/%s.s.ref' % NAME).read().split('; Override launch')[0]
def wrap(code, launch):
    return HEADER + launch + '''
.amdgcn_target "amdgcn-amd-amdhsa--gfx950"
.text
.globl %(n)s_kernel
.p2align 8
.type %(n)s_kernel,@function
%(n)s_kernel:
%(body)s
.section .rodata,"a"
.p2align 6
.amdhsa_kernel %(n)s_kernel
  .amdhsa_next_free_vgpr 256
  .amdhsa_next_free_sgpr 102
  .amdhsa_accum_offset %(nv)d
  .amdhsa_group_segment_fixed_size 0
  .amdhsa_kernarg_size 80
  .amdhsa_user_sgpr_count 2
  .amdhsa_user_sgpr_kernarg_segment_ptr 1
  .amdhsa_system_sgpr_workgroup_id_x 1
.end_amdhsa_kernel
''' % dict(n=NAME, body=render(code), nv=NV)

if __name__ == '__main__':
    stamps = '--stamps' in sys.argv
    k = K(stamps)
    code = k.build()
    open(sys.argv[1], 'w').write(wrap(code, '; @launch grid=(256,1,1) block=(512,1,1) lds=163840'))
    json.dump({t: [d.get(i, '') for i in range(16)] for t, d in k.names.items()} if stamps else {}, open(sys.argv[1][:-2] + '.json', 'w'))
    print('instructions', len(code), 'nops', sum(1 for i in code if i.kind == 'nop'))
```

```python
import sys, json, struct, os
from asmgen import *
import layout as L
EXP = os.environ.get('EXP', '').split(',')
SLEEP = int(os.environ.get('SLEEP', '4'))
BCHK = int(os.environ.get('BCHK', '7'))
W1K = int(os.environ.get('W1K', '3'))
PF0 = int(os.environ.get('PF0', '2'))
QSL = int(os.environ.get('QSL', '6'))
NST = int(os.environ.get('NST', '3')); MST = int(os.environ.get('MST', '1'))
ATOM = 'atom' in EXP
NAME = 'recurrent_scan__linear_kernel_hedgehog__dense_activation_silu__prompt'
def f32(x): return '0x%08x' % struct.unpack('<I', struct.pack('<f', x))[0]

S_X, S_W, S_PHI, S_WO, S_W2, S_OUT, S_DBG, S_WS = 36, 40, 44, 48, 52, 56, 60, 64
S_MASK, S_WAVE, S_IDX, S_RB, S_TYPE = 3, 4, 5, 6, 7
S_XS, S_WSO, S_EX56 = 12, 13, 14
S_MW, S_MX, S_ROW, S_NONCE = 32, 33, 34, 35
S_RT, S_CH = 68, 69
S_ST = 70
S_RG, S_CG, S_BSO, S_STA, S_A0, S_A1, S_OSO, S_NH, S_H0 = 16, 17, 18, 19, 20, 21, 22, 23, 24
S_ST4 = 25
S_L2E = 26
S_HIM = 28
STG = 45056; WPART = 16384
L_CNT = 3 * STG
L_CP = 122880
L_WPHI = 144384
L_SHX = L_WPHI
L_PHI = 0
L_V = 136192
L_STA = 57344
L_WO = 0
L_KVQ = 0
L_KVF = 65536
L_XG = 65536
L_O = 0
L_XS = 131072
KORD = [0, 1, 2, 3, 4, 5, 12, 6, 7, 8, 9, 10, 11, 13]
NV = 144
ACC, WF, XF, ST, CS, AX, AW, AS, DX, DW = 0, 64, 96, 104, 108, 112, 116, 120, 122, 124
PFA = 136; TMP = 128; P2T = 128; BT2 = 126; DB = 139; VLANE = 140; VL16 = 141; BT = 142

class K:
    def __init__(self, stamps):
        self.g = Gen(); self.use_stamps = stamps; self.nst = 0; self.names = {}; self.keys = ['0', '10', '11', '2']
    def I(self, t, needs=()): return self.g.I(t, needs)
    def U(self, t):
        x = self.g.I(t); x.kind = 'untracked'; return x
    def stamp(self, name, real=False):
        if 'dbgt' in EXP and name in ('bar0', 'loopend', 'gdone', 'opub', 'ook'):
            r = {'bar0': [78], 'loopend': [80], 'gdone': [82], 'ook': [84], 'opub': [82, 84]}[name]
            for x in r: self.I('s_memtime s[%d:%d]' % (x, x + 1))
        if not self.use_stamps: return
        i = self.nst
        if i >= 15: return
        self.nst += 1
        for k in self.keys: self.names.setdefault(k, {})[i] = name
        self.I('%s %s' % ('s_memrealtime' if real else 's_memtime', sr(S_ST + 2 * i, 2)))
    def write_stamps(self, total=16):
        if 'dbgt' in EXP:
            I = self.I
            I('s_memrealtime s[74:75]'); I('s_memtime s[76:77]'); I('s_waitcnt vmcnt(0) lgkmcnt(0)')
            I('s_mov_b64 exec, 1'); I('v_mov_b32 v2, 0')
            I('v_mov_b32 v0, s70'); I('buffer_atomic_umax v0, v2, %s, 0 offen offset:8' % sr(S_DBG, 4))
            I('s_not_b32 s8, s70'); I('v_mov_b32 v1, s8'); I('buffer_atomic_umax v1, v2, %s, 0 offen offset:12' % sr(S_DBG, 4))
            I('v_mov_b32 v3, s74'); I('buffer_atomic_umax v3, v2, %s, 0 offen offset:16' % sr(S_DBG, 4))
            I('s_sub_u32 s8, s76, s72'); I('v_mov_b32 v4, s8'); I('buffer_atomic_umax v4, v2, %s, 0 offen offset:20' % sr(S_DBG, 4))
            I('s_sub_u32 s8, s74, s70'); I('v_mov_b32 v5, s8'); I('buffer_atomic_umax v5, v2, %s, 0 offen offset:24' % sr(S_DBG, 4))
            for k, so in enumerate((78, 80, 82, 84)):
                I('s_sub_u32 s8, s%d, s72' % so); I('v_mov_b32 v%d, s8' % (6 + k)); I('buffer_atomic_umax v%d, v2, %s, 0 offen offset:%d' % (6 + k, sr(S_DBG, 4), 28 + 4 * k))
            I('s_waitcnt vmcnt(0)')
            return
        if not self.use_stamps: return
        I = self.I
        I('s_memrealtime %s' % sr(S_ST + 2 * (total - 1), 2))
        I('s_waitcnt lgkmcnt(0)')
        I('s_lshl_b32 s8, s2, 3'); I('s_add_u32 s8, s8, s%d' % S_WAVE); I('s_lshl_b32 s8, s8, 7')
        I('s_add_u32 s8, s8, %d' % L.WS_STAMP)
        I('v_mov_b32 v2, 0')
        I('s_mov_b64 exec, 1')
        for i in range(total):
            I('v_mov_b32 v0, s%d' % (S_ST + 2 * i)); I('v_mov_b32 v1, s%d' % (S_ST + 2 * i + 1))
            I('buffer_store_dwordx2 v[0:1], v2, %s, s8 offen offset:%d' % (sr(S_WS, 4), 8 * i))
        I('s_mov_b64 exec, -1')
    def srd(self, d, base, nbytes):
        I = self.I
        I('s_mov_b32 s%d, s%d' % (d, base)); I('s_and_b32 s%d, s%d, 0xffff' % (d + 1, base + 1))
        I('s_mov_b32 s%d, %d' % (d + 2, nbytes)); I('s_mov_b32 s%d, 0x20000' % (d + 3))

    def prologue(self):
        I = self.I
        I('s_cmp_ge_u32 s2, 256'); I('s_cbranch_scc1 L_end')
        I('s_load_dwordx16 s[16:31], s[0:1], 0'); I('s_load_dwordx4 s[32:35], s[0:1], 64')
        I('s_getpc_b64 s[8:9]')
        self.g.label('L_pc')
        I('v_cmp_le_u32 vcc, 448, v0'); I('s_cbranch_vccz L_nopf')
        I('s_bfe_u32 s10, s2, 0x30003'); I('s_lshl_b32 s10, s10, 13')
        I('v_and_b32 v1, 63, v0'); I('v_lshlrev_b32 v1, 7, v1'); I('v_add_u32 v1, s10, v1')
        I('v_min_u32 v1, L_end-L_pc, v1')
        self.U('global_load_dword a80, v1, s[8:9]')
        self.g.label('L_nopf')
        if self.use_stamps:
            for i in range(16): I('s_mov_b64 %s, 0' % sr(S_ST + 2 * i, 2))
        self.stamp('rt0', True); self.stamp('t0')
        if 'dbgt' in EXP: I('s_memrealtime s[70:71]'); I('s_memtime s[72:73]')
        I('v_lshrrev_b32 v1, 6, v0'); I('v_and_b32 v0, 63, v0')
        I('v_readfirstlane_b32 s%d, v1' % S_WAVE)
        I('v_mov_b32 v%d, v0' % VLANE); I('v_lshlrev_b32 v%d, 4, v0' % VL16)
        I('s_and_b32 s8, s2, 7'); I('s_lshr_b32 s9, s2, 3')
        I('s_and_b32 s10, s8, 1'); I('s_lshl_b32 s10, s10, 3'); I('s_and_b32 s11, s9, 7'); I('s_add_u32 s%d, s10, s11' % S_RB)
        I('s_lshr_b32 s8, s8, 1'); I('s_lshr_b32 s10, s9, 3')
        I('s_lshl_b32 s11, s8, 2'); I('s_add_u32 s12, s11, s10')
        I('s_mov_b32 s%d, 0' % S_TYPE); I('s_lshl_b32 s%d, s8, 1' % S_IDX); I('s_add_u32 s%d, s%d, s10' % (S_IDX, S_IDX))
        I('s_cmp_lt_u32 s10, 2'); I('s_cbranch_scc1 L_role')
        I('s_mov_b32 s%d, 1' % S_TYPE); I('s_lshr_b32 s%d, 0x4210, s11' % S_IDX); I('s_and_b32 s%d, s%d, 15' % (S_IDX, S_IDX))
        I('s_cmp_eq_u32 s10, 2'); I('s_cbranch_scc1 L_role')
        I('s_and_b32 s13, s8, 1'); I('s_lshl_b32 s%d, s13, 1' % S_IDX); I('s_add_u32 s%d, s%d, 3' % (S_IDX, S_IDX))
        I('s_bfe_u32 s11, s9, 0x10002'); I('s_lshr_b32 s8, s8, 1'); I('s_cmp_lg_u32 s11, s8'); I('s_cbranch_scc1 L_role')
        I('s_mov_b32 s%d, 2' % S_TYPE); I('s_mov_b32 s%d, s13' % S_IDX)
        self.g.label('L_role')
        I('s_lshl_b32 s8, s%d, 4' % S_RB); I('s_add_u32 s8, s8, s12'); I('s_lshl_b32 s8, s8, 3'); I('s_add_u32 s11, s8, s%d' % S_WAVE)
        I('s_mov_b32 s%d, -1' % S_EX56); I('s_mov_b32 s%d, 0x00ffffff' % (S_EX56 + 1))
        I('s_and_b32 s%d, s%d, 3' % (S_RT, S_WAVE)); I('s_lshr_b32 s%d, s%d, 2' % (S_CH, S_WAVE))
        I('s_mov_b32 s%d, 0xffff0000' % S_MASK)
        I('v_lshrrev_b32 v2, 3, v0'); I('v_mul_u32_u24 v2, 896, v2')
        I('v_lshrrev_b32 v3, 4, v0'); I('v_and_b32 v4, 7, v0'); I('v_xor_b32 v4, v4, v3')
        I('v_lshl_add_u32 v%d, v4, 4, v2' % DX)
        I('v_xor_b32 v4, 4, v4'); I('v_lshl_add_u32 v%d, v4, 4, v2' % (DX + 1)); I('v_add_u32 v%d, %d, v%d' % (DX + 1, 8 * 896 - 1024, DX + 1))
        I('s_lshl_b32 s8, s%d, 3' % S_RB); I('s_add_u32 s8, s8, s%d' % S_WAVE); I('s_mul_i32 s%d, s8, %d' % (S_XS, 16 * 896))
        I('v_cmp_lt_u32 vcc, 27, v0'); I('v_subrev_u32 v7, 28, v0'); I('v_cndmask_b32 v7, v0, v7, vcc'); I('v_cndmask_b32 v6, 0, 1, vcc')
        I('v_cmp_gt_u32 vcc, 56, v0'); I('v_mov_b32 v5, 0x7fffffff'); I('v_cndmask_b32 v5, v5, v%d, vcc' % VL16)
        I('s_waitcnt lgkmcnt(0)')
        if 'start' in EXP: self.stamp('karg')
        self.srd(S_X, 16, 2048 * 896)
        self.srd(S_WS, 34, L.WS_BYTES); self.srd(S_DBG, 32, 256)
        I('s_mov_b32 s%d, s11' % S_ROW)
        I('s_lshl_b32 s%d, s%d, 11' % (S_MX, S_WAVE))
        I('s_mul_i32 s%d, s%d, %d' % (S_MW, S_WAVE, 8 * 448)); I('s_add_u32 s%d, s%d, %d' % (S_MW, S_MW, WPART))

    def start_stream(self, gpitch):
        I = self.I
        for i in range(1, 4): I('v_add_u32 v%d, %d, v%d' % (DW + i, i * (2 * gpitch - 896), DW))
        I('s_mul_i32 s8, s%d, %d' % (S_WAVE, 8 * gpitch)); I('s_add_u32 s%d, s%d, s8' % (S_WSO, S_WSO))
        d = {}
        if 'start' in EXP: self.stamp('pre_s0')
        grps, d[0] = self.stage_dma(0, gpitch)
        for gp in grps: self.g.extend(gp)
        I('s_mul_i32 s8, s%d, 896' % S_ROW)
        I('buffer_load_dwordx4 %s, v5, %s, s8 offen' % (vr(XF, 4), sr(S_X, 4)))
        self.s0pos = len(self.g.cur)
        lab = 'L_nonon' + self.tagbase
        I('s_or_b32 s8, s2, s%d' % S_WAVE); I('s_cmp_lg_u32 s8, 0'); I('s_cbranch_scc1 %s' % lab)
        self.U('s_memrealtime s[8:9]'); self.U('s_waitcnt lgkmcnt(0)'); I('s_or_b32 s8, s8, 1'); I('v_mov_b32 v8, s8'); I('v_mov_b32 v9, 0')
        I('s_mov_b64 exec, 1'); self.U('buffer_store_dword v8, v9, %s, 0 offen sc1' % sr(S_DBG, 4)); I('s_mov_b64 exec, -1')
        self.g.label(lab)
        if 'start' in EXP: self.stamp('s0iss')
        return d
    def mall_addr(self):
        I = self.I
        segs = [(16, 7, 2, 5, 2048 * 896), (18, 4, 128 * 21, 4, 448 * 2688), (26, 5, 128 * 28, 5, 448 * 3584), (28, 7, 0, 7, 1792 * 896), (22, 2, 0, 2, 448 * 896)]
        I('s_lshl_b32 s8, s2, 3'); I('s_add_u32 s8, s8, s%d' % S_WAVE)
        lo = 0
        for i, (sb, mul, first, n, size) in enumerate(segs):
            I('s_mul_i32 s9, s8, %d' % mul); I('s_add_i32 s9, s9, %d' % (first - lo))
            I('v_add_u32 v10, s9, v0'); I('v_lshlrev_b32 v10, 7, v10'); I('v_min_u32 v10, %d, v10' % (size - 4))
            if i == 0:
                I('v_mov_b32 v11, v10'); I('v_mov_b32 v8, s%d' % sb); I('v_mov_b32 v9, s%d' % (sb + 1))
            else:
                I('v_cmp_le_u32 vcc, %d, v0' % lo); I('v_mov_b32 v12, s%d' % sb); I('v_mov_b32 v13, s%d' % (sb + 1))
                I('v_cndmask_b32 v11, v11, v10, vcc'); I('v_cndmask_b32 v8, v8, v12, vcc'); I('v_cndmask_b32 v9, v9, v13, vcc')
            lo += n
        I('v_add_co_u32 v%d, vcc, v8, v11' % PFA); I('v_addc_co_u32 v%d, vcc, 0, v9, vcc' % (PFA + 1))
    def mall_issue(self, part):
        if 'nomall' in EXP: return []
        I = self.I
        with self.g.capture() as a:
            I('s_mov_b64 exec, %d' % ([0x3fff, 0x7fc000][part]))
            I('global_load_dword a%d, %s, off' % (80 + part, vr(PFA, 2)))
            I('s_mov_b64 exec, -1')
        return [a]
    def pre_loop(self):
        self.mall_addr()
        if 't0late' not in EXP:
            for gp in self.mall_issue(0): self.g.extend(gp)
        if 'start' in EXP: self.stamp('setup')
        self.row_stats()
    def chunks(self, fn, n=10):
        with self.g.capture() as body:
            fn()
        out = []; cur = []
        for i, x in enumerate(body):
            cur.append(x)
            nxt = body[i + 1] if i + 1 < len(body) else None
            safe = nxt is not None and not (nxt.op.startswith(('s_cselect', 's_cbranch', 's_addc', 's_subb', 'v_cndmask', 'v_addc')) or nxt.kind in ('dma', 'label')) \
                and not x.op.startswith(('s_cmp', 'v_cmp')) and 'm0' not in x.dst
            if len(cur) >= n and safe: out.append(cur); cur = []
        if cur: out.append(cur)
        return out

    def late_srds(self):
        I = self.I
        self.srd(S_PHI, 20, 16 * 28 * 28 * 2); self.srd(S_WO, 22, 448 * 896); self.srd(S_W2, 28, 1792 * 896)
        self.srd(S_OUT, 30, 2048 * 896)
        I('s_mov_b32 s%d, %s' % (S_L2E, f32(L.LOG2E))); I('s_mov_b32 s%d, %s' % (S_L2E + 1, f32(L.LOG2E)))
        I('s_mov_b32 s%d, 0' % S_HIM); I('s_mov_b32 s%d, -1' % (S_HIM + 1))
        I('s_mov_b32 s31, 0')

    def late_group(self, p2, extra=None):
        with self.g.capture() as a:
            self.late_srds()
            if extra: extra()
        self.p2flag = p2
        return a
    def p2_setup(self):
        I = self.I; T = TMP + 8
        I('s_lshr_b32 s9, s2, 3'); I('s_and_b32 s8, s9, 3'); I('s_add_u32 s8, s8, 24'); I('s_cmp_lt_u32 s9, 24'); I('s_cselect_b32 s9, s9, s8')
        I('s_mul_i32 s8, s9, 37'); I('s_lshr_b32 s8, s8, 8'); I('s_mul_i32 s10, s8, 7'); I('s_sub_u32 s%d, s9, s10' % S_CG)
        I('s_and_b32 s10, s2, 7'); I('s_lshl_b32 s10, s10, 2'); I('s_add_u32 s%d, s10, s8' % S_RG)
        I('s_mul_i32 s%d, s%d, %d' % (S_BSO, S_WAVE, 224 * 896)); I('s_lshl_b32 s8, s%d, 7' % S_CG); I('s_add_u32 s%d, s%d, s8' % (S_BSO, S_BSO))
        I('s_lshl_b32 s%d, s%d, 12' % (S_STA, S_WAVE)); I('s_add_u32 s%d, s%d, %d' % (S_STA, S_STA, L_STA))
        I('v_lshrrev_b32 v%d, 3, v140' % T); I('v_mul_u32_u24 v%d, 896, v%d' % (T, T))
        I('v_lshrrev_b32 v%d, 2, v140' % (T + 1)); I('v_and_b32 v%d, 4, v%d' % (T + 1, T + 1)); I('v_and_b32 v%d, 7, v140' % (T + 2))
        I('v_xor_b32 v%d, v%d, v%d' % (T + 1, T + 1, T + 2)); I('v_lshl_add_u32 v%d, v%d, 4, v%d' % (DB, T + 1, T))
        I('v_lshrrev_b32 v%d, 5, v140' % T); I('v_lshlrev_b32 v%d, 2, v%d' % (T, T)); I('v_bfe_u32 v%d, v140, 2, 2' % (T + 1)); I('v_add_u32 v%d, v%d, v%d' % (T, T, T + 1))
        I('v_lshlrev_b32 v%d, 7, v%d' % (T, T)); I('v_add_u32 v%d, s%d, v%d' % (T, S_STA, T))
        I('v_and_b32 v%d, 3, v140' % (T + 1)); I('v_lshlrev_b32 v%d, 3, v%d' % (T + 1, T + 1))
        I('v_and_b32 v%d, 16, v140' % (T + 2)); I('v_lshl_add_u32 v%d, v%d, 1, v%d' % (T + 1, T + 2, T + 1))
        I('v_and_b32 v%d, 8, v140' % (T + 2)); I('v_lshlrev_b32 v%d, 3, v%d' % (T + 2, T + 2)); I('v_xor_b32 v%d, v%d, v%d' % (T + 1, T + 1, T + 2))
        I('v_add_u32 v%d, v%d, v%d' % (BT, T, T + 1))
        I('v_xor_b32 v%d, 64, v%d' % (T + 1, T + 1)); I('v_add_u32 v%d, v%d, v%d' % (BT + 1, T, T + 1))

    def slot4_setup(self):
        I = self.I
        I('s_lshl_b32 s%d, s%d, 11' % (S_ST4, S_WAVE)); I('s_add_u32 s%d, s%d, %d' % (S_ST4, S_ST4, L_SHX)); I('s_sub_u32 s8, s%d, s%d' % (S_ST4, S_STA))
        for b in range(2): I('v_add_u32 v%d, s8, v%d' % (BT2 + b, BT + b))
    def wo_dma(self):
        g = self.g; I = self.I; grps = []
        with g.capture() as a:
            I('s_mul_i32 s23, s%d, %d' % (S_WAVE, 56 * 896)); I('s_lshl_b32 s24, s%d, 7' % S_CG); I('s_add_u32 s23, s23, s24'); I('s_mul_i32 s24, s%d, %d' % (S_WAVE, 56 * 128))
        for i in range(7):
            with g.capture() as b:
                I('s_add_u32 m0, s24, %d' % (L_WO + 1024 * i)); I('s_add_u32 s8, s23, %d' % (8 * 896 * i))
                I('buffer_load_dwordx4 v%d, %s, s8 offen lds' % (DB, sr(S_WO, 4)))
            grps.append((a if i == 0 else []) + b)
        return grps
    SLOTS = [(0, BT), (2048, BT), (32768, BT), (34816, BT), (None, BT2)]
    def b_dma(self, k, needs=()):
        g = self.g; I = self.I; so = self.SLOTS[k % self.nslot][0]; grps = []
        for h in range(2):
            with g.capture() as a:
                I('s_add_u32 m0, s%d, %d' % (S_STA, so + 1024 * h) if so is not None else 's_add_u32 m0, s%d, %d' % (S_ST4, 1024 * h))
                I('s_add_u32 s8, s%d, %d' % (S_BSO, (16 * KORD[k] + 8 * h) * 896))
                I('buffer_load_dwordx4 v%d, %s, s8 offen lds' % (DB, sr(S_W2, 4)), needs=needs)
            grps.append(a)
        self.bdma[k] = [x for gp in grps for x in gp if x.kind == 'dma']
        return grps
    def b_read(self, k):
        so, reg = self.SLOTS[k % self.nslot]; out = []
        if so is None: so = 0
        for b in range(2):
            for h in range(2):
                out.append(Instr('ds_read_b64_tr_b16 %s, v%d offset:%d' % (ar(8 * k + 4 * b + 2 * h, 2), reg + b, so + 1024 * h), needs=self.bdma[k]))
        self.bread[k] = out
        return out
    def b_tasks(self, k0, k1):
        t = [self.b_read(k) for k in range(k0, k1)]
        for k in range(k0, k1):
            if k + self.nslot < 14: t += self.b_dma(k + self.nslot, needs=self.bread[k])
        return t

    def stage_dma(self, st, gpitch):
        g = self.g; I = self.I; base = (st % 3) * STG
        grps = []
        for i in range(4):
            with g.capture() as a:
                if i == 0: I('s_add_u32 m0, s%d, %d' % (S_MW, base))
                else: I('s_add_u32 m0, s%d, %d' % (S_MW, base))
                I('s_mov_b64 exec, %s' % sr(S_EX56, 2))
                I('buffer_load_dwordx4 v%d, %s, s%d offen offset:%d lds' % (DW + i, sr(S_W, 4), S_WSO, 896 * i))
                I('s_mov_b64 exec, -1')
                if i == 3: I('s_add_u32 s%d, s%d, %d' % (S_WSO, S_WSO, 64 * gpitch))
            grps.append(a)
        for i in range(2):
            with g.capture() as a:
                I('s_add_u32 m0, s%d, %d' % (S_MX, base)); I('s_nop 0')
                I('buffer_load_dwordx4 v%d, %s, s%d offen offset:%d lds' % (DX + i, sr(S_X, 4), S_XS, 1024 * i))
                if i == 1: I('s_add_u32 s%d, s%d, 128' % (S_XS, S_XS))
            grps.append(a)
        return grps, [x for gp in grps for x in gp if x.kind == 'dma']

    def read_addrs(self, clamp, shared=False):
        I = self.I; T = TMP
        I('v_and_b32 v%d, 31, v0' % T); I('v_lshlrev_b32 v%d, 7, v%d' % (T, T)); I('s_lshl_b32 s8, s%d, 12' % S_RT); I('v_add_u32 v%d, s8, v%d' % (T, T))
        I('v_lshrrev_b32 v%d, 5, v0' % (T + 1)); I('v_bfe_u32 v%d, v0, 1, 3' % (T + 2)); I('v_xor_b32 v%d, v%d, v%d' % (T + 2, T + 2, T + 1))
        I('v_lshlrev_b32 v%d, 3, v%d' % (T + 3, T + 1)); I('v_bfe_u32 v%d, v0, 2, 2' % (T + 4)); I('v_add_u32 v%d, v%d, v%d' % (T + 3, T + 3, T + 4))
        I('v_mul_u32_u24 v%d, 448, v%d' % (T + 3, T + 3))
        I('v_bfe_u32 v%d, v0, 4, 1' % (T + 4)); I('v_and_b32 v%d, 3, v0' % (T + 5)); I('v_lshl_add_u32 v%d, v%d, 2, v%d' % (T + 4, T + 4, T + 5))
        if shared:
            I('s_lshl_b32 s8, s%d, 2' % S_CH); I('v_xor_b32 v%d, s8, v%d' % (T + 6, T + 4)); I('v_lshl_add_u32 v%d, v%d, 3, v%d' % (T + 6, T + 6, T + 3))
            I('v_add_u32 v%d, %d, v%d' % (T + 6, WPART + 384, T + 6))
        if clamp: I('v_min_u32 v%d, 6, v%d' % (T + 4, T + 4))
        I('v_lshl_add_u32 v%d, v%d, 3, v%d' % (T + 3, T + 4, T + 3))
        I('v_add_u32 v%d, s10, v%d' % (T + 3, T + 3))
        for i in range(4):
            I('s_add_u32 s8, s%d, s%d' % (S_RT, S_CH)); I('s_add_u32 s8, s8, %d' % i); I('s_and_b32 s8, s8, 3')
            I('s_lshl_b32 s9, s8, 1'); I('v_xor_b32 v%d, s9, v%d' % (T + 5, T + 2)); I('v_lshl_add_u32 v%d, v%d, 4, v%d' % (AX + i, T + 5, T))
            I('s_mul_i32 s9, s8, 7168'); I('v_add_u32 v%d, s9, v%d' % (AW + i, T + 3))
            if shared and i in (0, 2): I('v_add_u32 v%d, s9, v%d' % (AS + i // 2, T + 6))

    def row_stats(self):
        I = self.I; S, Q = ST, ST + 1
        I('s_mov_b32 s8, 0x3f803f80')
        I('v_dot2_f32_bf16 v%d, v%d, s8, 0' % (S, XF)); I('v_dot2_f32_bf16 v%d, v%d, v%d, 0' % (Q, XF, XF))
        for q in range(1, 4):
            I('v_dot2_f32_bf16 v%d, v%d, s8, v%d' % (S, XF + q, S)); I('v_dot2_f32_bf16 v%d, v%d, v%d, v%d' % (Q, XF + q, XF + q, Q))
        for m in ('row_shr:1', 'row_shr:2', 'row_shr:4', 'row_shr:8'):
            for r in (S, Q): I('v_add_f32_dpp v%d, v%d, v%d %s row_mask:0xf bank_mask:0xf bound_ctrl:0' % (r, r, r, m))
        for m, rm in (('row_bcast:15', '0xa'), ('row_bcast:31', '0xc')):
            for r in (S, Q): I('v_add_f32_dpp v%d, v%d, v%d %s row_mask:%s bank_mask:0xf' % (r, r, r, m, rm))
        I('v_mul_f32 v%d, %s, v%d' % (S, f32(1.0 / 448), S)); I('v_mul_f32 v%d, %s, v%d' % (Q, f32(1.0 / 448), Q))
        I('v_fma_f32 v%d, -v%d, v%d, v%d' % (Q, S, S, Q)); I('v_max_f32 v%d, 0, v%d' % (Q, Q))
        def rbf(r):
            I('v_cvt_pk_bf16_f32 v%d, v%d, v%d' % (r, r, r)); I('v_lshlrev_b32 v%d, 16, v%d' % (r, r))
        rbf(S); rbf(Q)
        I('v_add_f32 v%d, %s, v%d' % (Q, f32(1e-5), Q)); rbf(Q)
        I('v_sqrt_f32 v%d, v%d' % (Q, Q)); rbf(Q)
        I('v_rcp_f32 v%d, v%d' % (Q, Q))
        I('v_sub_f32 v%d, 0, v%d' % (S, S))

    def nonce_issue(self):
        self.I('v_mov_b32 v%d, 0' % (ST + 3))
        return self.I('buffer_load_dword v%d, v%d, %s, 0 offen sc1' % (ST + 2, ST + 3, sr(S_DBG, 4)))
    def nonce_get_publish(self, tag):
        I = self.I; U = self.U
        I('v_readfirstlane_b32 s%d, v%d' % (S_NONCE, ST + 2))
        I('s_cmp_lg_u32 s%d, 0' % S_NONCE); I('s_cbranch_scc1 L_gotn%s' % tag)
        self.g.label('L_spinn%s' % tag)
        U('buffer_load_dword v%d, v%d, %s, 0 offen sc1' % (ST + 2, ST + 3, sr(S_DBG, 4)))
        U('s_waitcnt vmcnt(0)')
        I('v_readfirstlane_b32 s%d, v%d' % (S_NONCE, ST + 2)); I('s_nop 1')
        I('s_cmp_lg_u32 s%d, 0' % S_NONCE); I('s_cbranch_scc1 L_gotn%s' % tag)
        self.spin_tail('L_spinn%s' % tag)
        self.g.label('L_gotn%s' % tag)
        I('v_mov_b32 v%d, s%d' % (ST + 2, S_NONCE)); I('v_mov_b32 v%d, s%d' % (ST + 3, S_NONCE))
        I('s_lshl_b32 s8, s%d, 4' % S_ROW); I('s_add_u32 s8, s8, %d' % L.WS_RS); I('v_mov_b32 v%d, 0' % (TMP + 8))
        I('s_mov_b32 exec_lo, 0'); I('s_mov_b32 exec_hi, 0x80000000')
        I('buffer_store_dwordx4 %s, v%d, %s, s8 offen sc1' % (vr(ST, 4), TMP + 8, sr(S_WS, 4)))
        I('s_mov_b64 exec, -1')
    def rs_issue(self):
        I = self.I
        I('s_lshl_b32 s8, s%d, 2' % S_RB); I('s_add_u32 s8, s8, s%d' % S_RT); I('s_lshl_b32 s8, s8, 9'); I('s_add_u32 s%d, s8, %d' % (S_ROW, L.WS_RS))
        I('v_and_b32 v%d, 31, v%d' % (DX, VLANE)); I('v_lshlrev_b32 v%d, 4, v%d' % (DX, DX))
        return I('buffer_load_dwordx4 %s, v%d, %s, s%d offen sc1' % (vr(ST, 4), DX, sr(S_WS, 4), S_ROW))
    def rs_get(self, tag, scale):
        I = self.I; U = self.U
        I('v_cmp_ne_u32 vcc, s%d, v%d' % (S_NONCE, ST + 2)); I('s_nop 1'); I('s_cbranch_vccz L_gotr%s' % tag)
        self.g.label('L_spinr%s' % tag)
        U('buffer_load_dwordx4 %s, v%d, %s, s%d offen sc1' % (vr(ST, 4), DX, sr(S_WS, 4), S_ROW))
        U('s_waitcnt vmcnt(0)')
        I('v_cmp_ne_u32 vcc, s%d, v%d' % (S_NONCE, ST + 2)); I('s_nop 1'); I('s_cbranch_vccz L_gotr%s' % tag)
        self.spin_tail('L_spinr%s' % tag)
        self.g.label('L_gotr%s' % tag)
        for q in range(4): I('v_cvt_pk_bf16_f32 v%d, v%d, v%d' % (XF + q, ST, ST))
        I('v_mul_f32 v%d, %s, v%d' % (ST, f32(scale), ST + 1))
    def publish(self, soff_s, tmp, needs=()):
        I = self.I
        I('v_mov_b32 v%d, s%d' % (tmp, S_NONCE)); I('v_mov_b32 v%d, 0' % (tmp + 1)); I('s_mov_b64 exec, 1')
        x = I('buffer_store_dword v%d, v%d, %s, s%d offen sc1' % (tmp, tmp + 1, sr(S_WS, 4), soff_s), needs=needs)
        I('s_mov_b64 exec, -1')
        return x
    def poll(self, tag, voff, soff_s, tmp):
        I = self.I; U = self.U
        self.g.label('L_poll%s' % tag)
        U('buffer_load_dword v%d, v%d, %s, s%d offen sc1' % (tmp, voff, sr(S_WS, 4), soff_s))
        I('s_waitcnt vmcnt(0)')
        I('v_cmp_ne_u32 vcc, s%d, v%d' % (S_NONCE, tmp)); I('s_nop 1'); I('s_cbranch_vccz L_polld%s' % tag)
        self.spin_tail('L_poll%s' % tag)
        self.g.label('L_polld%s' % tag)
    def poll_issue(self, voff, soff_s, tmp):
        return self.I('buffer_load_dword v%d, v%d, %s, s%d offen sc1' % (tmp, voff, sr(S_WS, 4), soff_s))
    def poll_check(self, tag, voff, soff_s, tmp):
        I = self.I; U = self.U
        if 'nopoll' in EXP and tag in 'AB': return
        I('v_cmp_ne_u32 vcc, s%d, v%d' % (S_NONCE, tmp)); I('s_nop 1'); I('s_cbranch_vccz L_polld%s' % tag)
        self.g.label('L_poll%s' % tag)
        U('buffer_load_dword v%d, v%d, %s, s%d offen sc1' % (tmp, voff, sr(S_WS, 4), soff_s)); U('s_waitcnt vmcnt(0)')
        I('v_cmp_ne_u32 vcc, s%d, v%d' % (S_NONCE, tmp)); I('s_nop 1'); I('s_cbranch_vccz L_polld%s' % tag)
        self.spin_tail('L_poll%s' % tag)
        self.g.label('L_polld%s' % tag)
    def spin_tail(self, lab, sl=None):
        I = self.I
        I('s_sleep %d' % (sl or SLEEP)); I('s_add_u32 s31, s31, 1'); I('s_cmp_lt_u32 s31, 0x8000'); I('s_cbranch_scc1 %s' % lab)

    def l2pf(self, st):
        if 'l2pf' not in EXP: return []
        I = self.I; lab = 'L_pf%s%d' % (self.tagbase, st)
        with self.g.capture() as a:
            I('s_lshr_b32 s8, s%d, 1' % S_WAVE); I('s_cmp_lg_u32 s8, %d' % (st - PF0)); I('s_cbranch_scc1 %s' % lab)
            I('s_lshr_b32 s8, s2, 3'); I('s_lshl_b32 s8, s8, 3'); I('s_add_u32 s8, s8, s%d' % S_WAVE); I('s_lshl_b32 s8, s8, 13')
            I('v_lshlrev_b32 v%d, 7, v%d' % (TMP + 8, VLANE))
            self.U('buffer_load_dword a80, v%d, %s, s8 offen' % (TMP + 8, sr(S_W2, 4)))
            I('s_sub_u32 s8, s8, %d' % (196 * 8192)); I('s_cbranch_scc1 %s' % lab)
            self.U('buffer_load_dword a80, v%d, %s, s8 offen' % (TMP + 8, sr(S_WO, 4)))
            self.g.label(lab)
        return [a]

    def code_pf(self, tg, tmp, dst):
        if 'nocpf' in EXP: return []
        I = self.I
        with self.g.capture() as a:
            I('s_getpc_b64 s[8:9]'); self.g.label('L_cpf%s' % tg)
            I('s_sub_u32 s8, s8, L_cpf%s-L_pc' % tg); I('s_subb_u32 s9, s9, 0')
            I('s_bfe_u32 s10, s2, 0x20003'); I('s_lshl_b32 s10, s10, 3'); I('s_add_u32 s10, s10, s%d' % S_WAVE); I('s_lshl_b32 s10, s10, 11')
            I('v_lshlrev_b32 v%d, 7, v%d' % (tmp, VLANE)); I('v_add_u32 v%d, s10, v%d' % (tmp, tmp)); I('v_min_u32 v%d, L_end-L_pc, v%d' % (tmp, tmp))
            I('s_mov_b64 exec, 0xffff')
            I('global_load_dword %s, v%d, s[8:9]' % (dst, tmp))
            I('s_mov_b64 exec, -1')
        return [a]

    def gemm(self, tiles, gpitch, dms, tag, hooks):
        g = self.g; I = self.I
        dmas = dict(dms)
        for i in range(4): I('v_mov_b32 v%d, 0' % (CS + i))
        NF, LOOK = 8, 4
        seq = [(ks, cc) for ks in range(28) for cc in range(len(tiles[ks & 3]['t']))]
        def wread(n):
            ks, cc = seq[n]; a = WF + 4 * (n % NF); c, areg, off = tiles[ks & 3]['t'][cc]
            return [Instr('ds_read_b64_tr_b16 %s, v%d offset:%d' % (vr(a + 2 * h, 2), areg, off + h * 4 * 448)) for h in range(2)]
        def xread(ks):
            return [Instr('ds_read_b128 %s, v%d' % (vr(XF + 4 * (ks % 2), 4), AX + (ks & 3)))]
        aregs = sorted(set(list(range(AX, AX + 4)) + [t[1] for p in tiles for t in p['t']]))
        def adv(st):
            d = STG if st % 3 else -2 * STG
            return [Instr('v_add_u32 v%d, %d, v%d' % (r, d, r)) if d > 0 else Instr('v_subrev_u32 v%d, %d, v%d' % (r, -d, r)) for r in aregs]
        tc = [0]
        def cs_ops(r, c):
            t = TMP + 2 * (tc[0] % 4); tc[0] += 1
            return [Instr('v_lshlrev_b32 v%d, 16, v%d' % (t, r)), Instr('v_and_b32 v%d, s%d, v%d' % (t + 1, S_MASK, r)),
                    Instr('v_add_f32 v%d, v%d, v%d' % (CS + c, CS + c, t)), Instr('v_add_f32 v%d, v%d, v%d' % (CS + c, CS + c, t + 1))]
        if 'start' in EXP:
            self.stamp('rowst'); I('s_nop 0', needs=dmas[0]); self.stamp('s0arr'); I('s_waitcnt lgkmcnt(0)')
        BAR0 = len(g.cur)
        I('s_barrier', needs=dmas[0])
        self.stamp('bar0')
        g.extend(xread(0))
        for n in range(LOOK): g.extend(wread(n))
        g1, dmas[1] = self.stage_dma(1, gpitch)
        NPRE = int(os.environ.get('NPRE', '2'))
        pend, dmas[2] = self.stage_dma(2, gpitch)
        pend = g1[NPRE:] + (self.mall_issue(0) if 't0late' in EXP else []) + self.early + pend
        if 'sbar' in EXP: g.cur[self.s0pos:self.s0pos] = [Instr('s_barrier')] + [x for gp in g1[:NPRE] for x in gp]
        else: g.cur[BAR0:BAR0] = [x for gp in g1[:NPRE] for x in gp]
        started = set(); xr = 0; cfill = []
        for n, (ks, cc) in enumerate(seq):
            p = tiles[ks & 3]; c = p['t'][cc][0]; a = WF + 4 * (n % NF); xf = XF + 4 * (ks % 2)
            I('v_mfma_f32_32x32x16_bf16 %s, %s, %s, %s' % (vr(ACC + 16 * c, 16), vr(a, 4), vr(xf, 4), vr(ACC + 16 * c, 16) if c in started else '0'))
            started.add(c)
            nn = n + LOOK
            if nn < len(seq):
                ks2, cc2 = seq[nn]
                if cc2 == 0 and ks2 & 3 == 0:
                    st2 = ks2 >> 2
                    assert xr == ks2 - 1
                    g.extend(adv(st2))
                    if st2 == NST: self.nonce_get_publish(tag)
                    if st2 == 6: self.rs_issue()
                    if st2 in hooks.get('pre', {}): hooks['pre'][st2]()
                    if 'stg' in EXP and st2 in (2, 4): self.stamp('preB%d' % st2)
                    I('s_waitcnt lgkmcnt(0)')
                    if 'stg' in EXP and st2 in (2, 4): I('s_nop 0', needs=dmas[st2]); self.stamp('vmB%d' % st2); I('s_waitcnt lgkmcnt(0)')
                    I('s_barrier', needs=dmas[st2])
                    if 'stg' in EXP: self.stamp('B%d' % st2)
                    if st2 == NST - 1:
                        with g.capture() as grp_: self.nonce_issue()
                        pend += [grp_]
                    if st2 == MST: pend += self.mall_issue(1)
                    if st2 + 2 < 7:
                        newg, dmas[st2 + 2] = self.stage_dma(st2 + 2, gpitch); pend += newg
                    if st2 == 3 and self.p2flag:
                        with g.capture() as grp_: self.p2_setup()
                        pend += [grp_]
                    if PF0 <= st2 < PF0 + 4: pend += self.l2pf(st2)
                    if st2 == 4: pend += self.code_pf(tag, TMP + 8, 'a82')
                    if st2 in hooks.get('post', {}): pend += hooks['post'][st2]()
                g.extend(wread(nn))
            if xr == ks and ks + 1 < 28 and (nn >= len(seq) or seq[min(nn, len(seq) - 1)][0] >= ks + 1):
                g.extend(xread(ks + 1)); xr = ks + 1
            if cc == 0 and p['cs']: cfill = [cs_ops(a + q, c) for q in range(4)]
            if cfill:
                g.extend(cfill.pop(0))
                if cc == len(p['t']) - 1:
                    for x in cfill: g.extend(x)
                    cfill = []
            if pend and (n % 2 == 0 or len(pend) > 5): g.extend(pend.pop(0))
        for x in pend: g.extend(x)
        self.stamp('loopend')

    def finish_stats(self, tl, scale, tag, before_b1=None, after_b1=None):
        I = self.I; T = TMP
        I('s_lshl_b32 s9, s%d, 2' % S_RT); I('v_add_u32 v%d, s9, v%d' % (T, VL16))
        bases = {}
        for c, sb, off in tl:
            if sb not in bases:
                bases[sb] = T + 1 + 2 * len(bases)
                I('v_add_u32 v%d, s%d, v%d' % (bases[sb], sb, T)); I('v_add_u32 v%d, s%d, v%d' % (bases[sb] + 1, sb, VL16))
        wr = []
        for c, sb, off in tl:
            t = T + 6 + (c & 1)
            I('v_cvt_pk_bf16_f32 v%d, v%d, v%d' % (t, CS + c, CS + c)); I('v_and_b32 v%d, s%d, v%d' % (t, S_MASK, t))
            I('v_sub_f32 v%d, v%d, v%d' % (t, CS + c, t)); I('v_cvt_pk_bf16_f32 v%d, v%d, v%d' % (CS + c, t, CS + c))
            wr.append(I('ds_write_b32 v%d, v%d offset:%d' % (bases[sb], CS + c, off)))
        if before_b1: wr += before_b1()
        self.rs_get(tag, scale)
        I('s_barrier', needs=wr)
        for c, sb, off in tl: I('ds_read_b128 %s, v%d offset:%d' % (vr(WF + 4 * c, 4), bases[sb] + 1, off))
        if after_b1: after_b1()
        for c, sb, off in tl:
            I('v_mfma_f32_32x32x16_bf16 %s, %s, %s, %s' % (vr(ACC + 16 * c, 16), vr(WF + 4 * c, 4), vr(XF, 4), vr(ACC + 16 * c, 16)))
        if 'stg' in EXP: self.stamp = lambda *a, **k: None
        self.stamp('stats')

    def with_bg(self, fn, tasks, every):
        with self.g.capture() as body:
            fn()
        out = []; tasks = list(tasks); cnt = 0
        for x in body:
            out.append(x); cnt += 1
            if tasks and cnt >= every and x.kind in ('valu', 'trans') and not (x.dst & {'vcc'}):
                out += tasks.pop(0); cnt = 0
        for t in tasks: out += t
        self.g.extend(out)

    def ffn(self):
        I = self.I; g = self.g
        self.tagbase = 'f'
        self.srd(S_W, 26, 448 * 3584)
        I('v_mul_u32_u24 v6, 3584, v6'); I('v_lshl_add_u32 v%d, v7, 4, v6' % DW)
        I('s_mul_i32 s%d, s%d, 448' % (S_WSO, S_IDX))
        dms = self.start_stream(3584)
        I('s_mul_i32 s10, s%d, 192' % S_CH); I('s_add_u32 s10, s10, %d' % WPART)
        self.read_addrs(False, shared=True)
        self.pre_loop()
        self.early = [self.late_group(True)]
        own = lambda i, o: [(c, AW + i, 64 * c) for c in o]
        tiles = [dict(t=[(3, AS, 0)] + own(0, [0, 1, 2]), cs=True), dict(t=own(1, [0, 1, 2]), cs=True),
                 dict(t=own(2, [1, 2, 0]) + [(3, AS + 1, 0)], cs=True), dict(t=own(3, [2, 0, 1]), cs=True)]
        self.bdma, self.bread = {}, {}; self.nslot = 5
        self.gemm(tiles, 3584, dms, 'f', self.bhooks())
        I('s_mul_i32 s10, s%d, 3072' % S_CH); I('s_add_u32 s10, s10, %d' % L_CP)
        I('s_lshl_b32 s11, s%d, 10' % S_CH); I('s_add_u32 s11, s11, %d' % (L_CP + 6144))
        self.slot4_setup()
        SH = ACC + 48; X8 = 116
        def before_b1():
            I('s_xor_b32 s8, s%d, 4' % S_WAVE); I('s_lshl_b32 s8, s8, 11'); I('s_add_u32 s8, s8, %d' % L_SHX); I('v_add_u32 v%d, s8, v%d' % (AX, VL16))
            I('s_lshl_b32 s8, s%d, 11' % S_WAVE); I('s_add_u32 s8, s8, %d' % L_SHX); I('v_add_u32 v%d, s8, v%d' % (AX + 1, VL16))
            return [I('ds_write_b128 v%d, %s offset:%d' % (AX, vr(SH + 8 + 4 * q, 4), 1024 * q)) for q in range(2)]
        shr = []
        def after_b1():
            for q in range(2): shr.append(I('ds_read_b128 %s, v%d offset:%d' % (vr(X8 + 4 * q, 4), AX + 1, 1024 * q)))
        self.finish_stats([(0, 10, 0), (1, 10, 1024), (2, 10, 2048), (3, 11, 0)], -L.LOG2E, 'f', before_b1, after_b1)
        I('s_lshl_b32 s8, s%d, 2' % S_RB); I('s_add_u32 s8, s8, s%d' % S_RT); I('s_mul_i32 s9, s8, %d' % (112 * 1024))
        I('s_lshl_b32 s8, s8, 3'); I('s_add_u32 s8, s8, s%d' % S_IDX); I('s_lshl_b32 s8, s8, 1'); I('s_add_u32 s8, s8, s%d' % S_CH)
        I('s_lshl_b32 s8, s8, 7'); I('s_add_u32 s0, s8, %d' % L.WS_FLAG)
        I('s_mul_i32 s10, s%d, %d' % (S_IDX, 14 * 1024)); I('s_add_u32 s9, s9, s10')
        I('s_mul_i32 s10, s%d, 6144' % S_CH); I('s_add_u32 s10, s9, s10')
        I('s_lshl_b32 s11, s%d, 10' % S_CH); I('s_add_u32 s9, s9, s11'); I('s_add_u32 s1, s9, %d' % (12 * 1024))
        stores = []
        def unit(idx):
            c, u = divmod(idx, 2)
            A = ACC + 16 * c + 8 * u; T = [64, 72][idx & 1]; P = [80, 84][idx & 1]
            if 'noprio' not in EXP:
                lab = 'L_fp%d' % idx
                I('s_setprio 0'); I('s_cmp_eq_u32 s%d, %d' % (S_CH, idx & 1)); I('s_cbranch_scc1 %s' % lab); I('s_setprio 1'); self.g.label(lab)
            if c == 3:
                for j in range(0, 8, 2): I('v_pk_add_f32 %s, %s, %s' % (vr(A + j, 2), vr(A + j, 2), vr(X8 + j, 2)))
            for j in range(0, 8, 2): I('v_pk_mul_f32 %s, %s, %s op_sel_hi:[1,0]' % (vr(A + j, 2), vr(A + j, 2), vr(ST, 2)))
            for j in range(8): I('v_exp_f32 v%d, v%d' % (T + j, A + j))
            for j in range(0, 8, 2): I('v_pk_add_f32 %s, %s, 1.0 op_sel_hi:[1,0]' % (vr(T + j, 2), vr(T + j, 2)))
            for j in range(8): I('v_rcp_f32 v%d, v%d' % (T + j, T + j))
            for j in range(0, 8, 2): I('v_pk_mul_f32 %s, %s, %s' % (vr(T + j, 2), vr(T + j, 2), vr(A + j, 2)))
            for j in range(0, 8, 2): I('v_cvt_pk_bf16_f32 v%d, v%d, v%d' % (P + j // 2, T + j, T + j + 1))
            if idx == 4: I('s_add_u32 s10, s10, 4096')
            if c < 3: stores.append(I('buffer_store_dwordx4 %s, v%d, %s, s10 offen offset:%d sc1' % (vr(P, 4), VL16, sr(S_WS, 4), (idx % 4) * 1024)))
            else: stores.append(I('buffer_store_dwordx4 %s, v%d, %s, s1 offen sc1' % (vr(P, 4), VL16, sr(S_WS, 4))))
        self.with_bg(lambda: [unit(i) for i in range(6)], self.b_round1(shr) + self.wo_dma(), int(os.environ.get('FBG', '11')))
        unit(6)
        I('s_setprio 0')
        self.stamp('epi')
        self.p2_pre()
        bt = self.b_tasks(4, 9)
        for t in bt[:5]: g.extend(t)
        self.publish(0, 96, needs=stores)
        self.stamp('pub')
        I('s_barrier')
        for t in bt[5:11]: g.extend(t)
        pa = self.poll_issue(P2T + 1, 26, P2T)
        for t in bt[11:]: g.extend(t)
        I('s_waitcnt lgkmcnt(0)'); I('s_nop 0', needs=[pa])
        I('s_branch L_p2')

    def b_round1(self, need4=None):
        t = [sum([self.b_read(k) for k in range(4)], [])]
        if need4 is not None: t += self.b_dma(4, needs=need4)
        for k in range(4): t += self.b_dma(k + 5, needs=self.bread[k])
        return t

    def bhooks(self, extra=None):
        post = {5: lambda: self.b_dma(0) + self.b_dma(1), 6: lambda: self.b_dma(2) + self.b_dma(3)}
        if extra: post.update(extra)
        return dict(post=post)

    def pack_k(self, A, K8):
        I = self.I
        for j in range(8): I('v_cvt_pk_bf16_f32 v%d, v%d, v%d' % (K8 + j, A + 2 * j, A + 2 * j + 1))
        for j in (6, 7): I('v_cndmask_b32 v%d, v%d, 0, %s' % (K8 + j, K8 + j, sr(S_HIM, 2)))
    def half_units(self, As, neg):
        I = self.I; M = 64; n = '-' if neg else ''; nm = ' neg_lo:[1,0,0] neg_hi:[1,0,0]' if neg else ''
        def each(f):
            for i, A in enumerate(As): f(A, M + 6 * i)
        I('v_mov_b32 v%d, 0xff800000' % (TMP + 10))
        each(lambda A, m: (I('v_max3_f32 v%d, %sv%d, %sv%d, %sv%d' % (m, n, A, n, A + 1, n, A + 2)), I('v_max3_f32 v%d, %sv%d, %sv%d, %sv%d' % (m + 1, n, A + 8, n, A + 9, n, A + 10))))
        for j in (3, 5): each(lambda A, m: (I('v_max3_f32 v%d, v%d, %sv%d, %sv%d' % (m, m, n, A + j, n, A + j + 1)), I('v_max3_f32 v%d, v%d, %sv%d, %sv%d' % (m + 1, m + 1, n, A + 8 + j, n, A + 9 + j))))
        each(lambda A, m: I('v_max3_f32 v%d, v%d, %sv%d, %sv%d' % (m + 1, m + 1, n, A + 7, n, A + 15)))
        each(lambda A, m: I('v_max_f32 v%d, v%d, v%d' % (m, m, m + 1)))
        each(lambda A, m: I('v_mov_b32 v%d, v%d' % (m + 1, m)))
        each(lambda A, m: I('v_permlane32_swap_b32 v%d, v%d' % (m, m + 1)))
        each(lambda A, m: I('v_max_f32 v%d, v%d, v%d' % (m, m, m + 1)))
        each(lambda A, m: I('v_mul_f32 v%d, -v%d, v%d' % (m, ST, m)))
        each(lambda A, m: I('v_cndmask_b32 v%d, v%d, v%d, %s' % (m + 1, m, TMP + 10, sr(S_HIM, 2))))
        for j in range(0, 16, 2):
            sel = 'op_sel_hi:[1,0,0]' if j < 12 else 'op_sel:[0,0,1] op_sel_hi:[1,0,1]'
            each(lambda A, m: I('v_pk_fma_f32 %s, %s, %s, %s %s%s' % (vr(A + j, 2), vr(A + j, 2), vr(ST, 2), vr(m, 2), sel, nm)))
        for j in range(16): each(lambda A, m: I('v_exp_f32 v%d, v%d' % (A + j, A + j)))
        each(lambda A, m: (I('v_pk_add_f32 %s, %s, %s' % (vr(m + 2, 2), vr(A, 2), vr(A + 2, 2))), I('v_pk_add_f32 %s, %s, %s' % (vr(m + 4, 2), vr(A + 8, 2), vr(A + 10, 2)))))
        for j in (4, 6): each(lambda A, m: (I('v_pk_add_f32 %s, %s, %s' % (vr(m + 2, 2), vr(m + 2, 2), vr(A + j, 2))), I('v_pk_add_f32 %s, %s, %s' % (vr(m + 4, 2), vr(m + 4, 2), vr(A + 8 + j, 2)))))
        each(lambda A, m: I('v_pk_add_f32 %s, %s, %s' % (vr(m + 2, 2), vr(m + 2, 2), vr(m + 4, 2))))
        each(lambda A, m: I('v_add_f32 v%d, v%d, v%d' % (m, m + 2, m + 3)))
        each(lambda A, m: I('v_mov_b32 v%d, v%d' % (m + 1, m)))
        each(lambda A, m: I('v_permlane32_swap_b32 v%d, v%d' % (m, m + 1)))
        each(lambda A, m: I('v_add_f32 v%d, v%d, v%d' % (m, m, m + 1)))
        each(lambda A, m: I('v_rcp_f32 v%d, v%d' % (m, m)))
        for j in range(0, 16, 2): each(lambda A, m: I('v_pk_mul_f32 %s, %s, %s op_sel_hi:[1,0]' % (vr(A + j, 2), vr(A + j, 2), vr(m, 2))))
        for j in range(8): each(lambda A, m: I('v_cvt_pk_bf16_f32 v%d, v%d, v%d' % (A + j, A + 2 * j, A + 2 * j + 1)))
    def phi_mfma(self, A, K8, WP):
        I = self.I
        I('v_mfma_f32_32x32x16_bf16 %s, %s, %s, 0' % (vr(A, 16), ar(WP, 4), vr(K8, 4)))
        I('v_mfma_f32_32x32x16_bf16 %s, %s, %s, %s' % (vr(A, 16), ar(WP + 4, 4), vr(K8 + 4, 4), vr(A, 16)))
    def softmax_unit(self, A, sreg=None):
        I = self.I
        EP, EN, M = 64, 80, TMP
        mx, nm, t, u = M, M + 1, M + 2, M + 4
        I('v_mov_b32 v%d, 0xff800000' % (M + 10))
        m2, n2 = M + 6, M + 7
        for (a, b, o) in ((mx, nm, 0), (m2, n2, 8)):
            I('v_max3_f32 v%d, v%d, v%d, v%d' % (a, A + o, A + o + 1, A + o + 2)); I('v_max3_f32 v%d, -v%d, -v%d, -v%d' % (b, A + o, A + o + 1, A + o + 2))
        for j in (3, 5):
            for (a, b, o) in ((mx, nm, 0), (m2, n2, 8)):
                I('v_max3_f32 v%d, v%d, v%d, v%d' % (a, a, A + o + j, A + o + j + 1)); I('v_max3_f32 v%d, v%d, -v%d, -v%d' % (b, b, A + o + j, A + o + j + 1))
        I('v_max3_f32 v%d, v%d, v%d, v%d' % (m2, m2, A + 7, A + 15)); I('v_max3_f32 v%d, v%d, -v%d, -v%d' % (n2, n2, A + 7, A + 15))
        I('v_max_f32 v%d, v%d, v%d' % (mx, mx, m2)); I('v_max_f32 v%d, v%d, v%d' % (nm, nm, n2))
        I('v_permlane32_swap_b32 v%d, v%d' % (mx, nm)); I('v_max_f32 v%d, v%d, v%d' % (t, mx, nm))
        I('v_mul_f32 v%d, -v%d, v%d' % (t, ST, t)); I('v_mov_b32 v%d, v%d' % (u, t)); I('v_permlane32_swap_b32 v%d, v%d' % (t, u))
        I('v_cndmask_b32 v%d, v%d, v%d, %s' % (t + 1, t, M + 10, sr(S_HIM, 2))); I('v_cndmask_b32 v%d, v%d, v%d, %s' % (u + 1, u, M + 10, sr(S_HIM, 2)))
        for j in range(0, 16, 2):
            sel = 'op_sel_hi:[1,0,0]' if j < 12 else 'op_sel:[0,0,1] op_sel_hi:[1,0,1]'
            I('v_pk_fma_f32 %s, %s, %s, %s %s' % (vr(EP + j, 2), vr(A + j, 2), vr(ST, 2), vr(t, 2), sel))
            I('v_pk_fma_f32 %s, %s, %s, %s %s neg_lo:[1,0,0] neg_hi:[1,0,0]' % (vr(EN + j, 2), vr(A + j, 2), vr(ST, 2), vr(u, 2), sel))
        for j in range(16): I('v_exp_f32 v%d, v%d' % (EP + j, EP + j)); I('v_exp_f32 v%d, v%d' % (EN + j, EN + j))
        sp, sn = M + 6, M + 8
        I('v_pk_add_f32 %s, %s, %s' % (vr(sp, 2), vr(EP, 2), vr(EP + 2, 2))); I('v_pk_add_f32 %s, %s, %s' % (vr(sn, 2), vr(EN, 2), vr(EN + 2, 2)))
        for j in range(4, 16, 2):
            I('v_pk_add_f32 %s, %s, %s' % (vr(sp, 2), vr(sp, 2), vr(EP + j, 2))); I('v_pk_add_f32 %s, %s, %s' % (vr(sn, 2), vr(sn, 2), vr(EN + j, 2)))
        I('v_add_f32 v%d, v%d, v%d' % (sp, sp, sp + 1)); I('v_add_f32 v%d, v%d, v%d' % (sn, sn, sn + 1))
        I('v_permlane32_swap_b32 v%d, v%d' % (sp, sn)); I('v_add_f32 v%d, v%d, v%d' % (t, sp, sn))
        if sreg is None:
            I('v_rcp_f32 v%d, v%d' % (t, t)); I('v_mov_b32 v%d, v%d' % (u, t)); I('v_permlane32_swap_b32 v%d, v%d' % (t, u))
            for j in range(0, 16, 2):
                I('v_pk_mul_f32 %s, %s, %s op_sel_hi:[1,0]' % (vr(EP + j, 2), vr(EP + j, 2), vr(t, 2)))
                I('v_pk_mul_f32 %s, %s, %s op_sel_hi:[1,0]' % (vr(EN + j, 2), vr(EN + j, 2), vr(u, 2)))
            for j in range(8):
                I('v_cvt_pk_bf16_f32 v%d, v%d, v%d' % (A + j, EP + 2 * j, EP + 2 * j + 1)); I('v_cvt_pk_bf16_f32 v%d, v%d, v%d' % (A + 8 + j, EN + 2 * j, EN + 2 * j + 1))
        else:
            I('v_mov_b32 v%d, v%d' % (u, t))
            for j in range(2): I('v_cvt_pk_bf16_f32 v%d, v%d, v%d' % (A + j, EP + 2 * j, EP + 2 * j + 1))
            I('v_permlane32_swap_b32 v%d, v%d' % (t, u)); I('v_rcp_f32 v%d, v%d' % (u, u))
            for j in range(2, 8): I('v_cvt_pk_bf16_f32 v%d, v%d, v%d' % (A + j, EP + 2 * j, EP + 2 * j + 1))
            I('v_mul_f32 v%d, v%d, v%d' % (u, u, t)); I('v_mov_b32 v%d, v%d' % (sreg, t))
            for j in range(0, 16, 2): I('v_pk_mul_f32 %s, %s, %s op_sel_hi:[1,0]' % (vr(EN + j, 2), vr(EN + j, 2), vr(u, 2)))
            for j in range(8): I('v_cvt_pk_bf16_f32 v%d, v%d, v%d' % (A + 8 + j, EN + 2 * j, EN + 2 * j + 1))

    def wphi_dma(self, n, head0_s):
        I = self.I; out = []
        I('s_mul_i32 s8, s%d, 1568' % head0_s); I('s_lshl_b32 s9, s%d, 10' % S_WAVE); I('s_add_u32 s8, s8, s9'); I('s_add_u32 s9, s9, %d' % L_WPHI)
        for i in range(n):
            I('s_add_u32 m0, s9, %d' % (8192 * i)); I('s_add_u32 s10, s8, %d' % (8192 * i))
            out.append(I('buffer_load_dwordx4 v%d, %s, s10 offen lds' % (VL16, sr(S_PHI, 4))))
        return out
    def wphi_read(self, nheads, hoff_s, WP):
        I = self.I; T = TMP + 9
        I('v_lshrrev_b32 v%d, 5, v%d' % (T, VLANE)); I('v_lshlrev_b32 v%d, 2, v%d' % (T, T)); I('v_bfe_u32 v%d, v%d, 2, 2' % (T + 1, VLANE)); I('v_add_u32 v%d, v%d, v%d' % (T, T, T + 1))
        I('v_mul_u32_u24 v%d, 56, v%d' % (T, T)); I('v_add_u32 v%d, s%d, v%d' % (T, hoff_s, T))
        I('v_bfe_u32 v%d, v%d, 4, 1' % (T + 1, VLANE)); I('v_lshlrev_b32 v%d, 2, v%d' % (T + 1, T + 1)); I('v_and_or_b32 v%d, v%d, 3, v%d' % (T + 1, VLANE, T + 1))
        I('v_min_u32 v%d, 6, v%d' % (T + 1, T + 1)); I('v_lshl_add_u32 v%d, v%d, 3, v%d' % (T, T + 1, T))
        for i in range(nheads):
            for s in range(2):
                for h in range(2):
                    I('ds_read_b64_tr_b16 %s, v%d offset:%d' % (ar(WP + 8 * i + 4 * s + 2 * h, 2), T, i * 1568 + (16 * s + 8 * h) * 56))

    def kv_common(self):
        I = self.I; g = self.g
        self.tagbase = 'k'
        self.srd(S_W, 18, 448 * 2688)
        I('s_lshl_b32 s8, s%d, 2' % S_IDX); I('s_lshr_b32 s9, 0xdb9630, s8'); I('s_and_b32 s9, s9, 15')
        I('s_lshr_b32 s10, 0x322333, s8'); I('s_and_b32 s10, s10, 15')
        I('s_mul_i32 s11, s9, 56'); I('s_and_b32 s%d, s11, -16' % S_WSO); I('s_and_b32 s11, s11, 8')
        I('s_mul_i32 s8, s10, 3'); I('s_add_u32 s8, s8, 1')
        I('v_cmp_lt_u32 vcc, 13, v7'); I('v_subrev_u32 v8, 14, v7'); I('v_cndmask_b32 v8, v7, v8, vcc'); I('v_min_u32 v8, s8, v8')
        I('v_mov_b32 v9, 896'); I('v_mov_b32 v10, 1792'); I('v_cndmask_b32 v9, v9, v10, vcc')
        I('v_mul_u32_u24 v6, 2688, v6'); I('v_add_u32 v6, v6, v9'); I('v_lshl_add_u32 v%d, v8, 4, v6' % DW)
        I('s_mov_b32 s0, s9'); I('s_mov_b32 s1, s10'); I('s_mov_b32 s%d, s11' % S_NONCE)
        dms = self.start_stream(2688)
        I('s_mul_i32 s10, s%d, 224' % S_CH); I('s_add_u32 s10, s10, s%d' % S_NONCE); I('s_add_u32 s10, s10, %d' % WPART)
        self.read_addrs(True)
        self.pre_loop()
        def kvx():
            I('s_mov_b32 s%d, s0' % S_H0); I('s_mov_b32 s%d, s1' % S_NH)
            self.wphi_dma(1, S_H0)
            if ATOM:
                I('s_cmp_lg_u32 s%d, 0' % S_RB); I('s_cbranch_scc1 L_nozero')
                Z = TMP + 4
                for i in range(4): I('v_mov_b32 v%d, 0' % (Z + i))
                I('s_lshl_b32 s8, s%d, 13' % S_H0); I('s_lshl_b32 s9, s%d, 10' % S_WAVE); I('s_add_u32 s8, s8, s9'); I('s_add_u32 s8, s8, %d' % L.WS_KV)
                self.U('buffer_store_dwordx4 %s, v%d, %s, s8 offen sc1' % (vr(Z, 4), VL16, sr(S_WS, 4)))
                I('s_add_u32 s8, s8, 8192'); self.U('buffer_store_dwordx4 %s, v%d, %s, s8 offen sc1' % (vr(Z, 4), VL16, sr(S_WS, 4)))
                I('s_add_u32 s8, s8, 8192'); I('s_cmp_eq_u32 s%d, 3' % S_NH); I('s_cselect_b32 s8, s8, 0x7f000000')
                self.U('buffer_store_dwordx4 %s, v%d, %s, s8 offen sc1' % (vr(Z, 4), VL16, sr(S_WS, 4))); I('s_nop 1')
                self.g.label('L_nozero')
        self.early = [self.late_group(True, kvx)]
        rot = lambda i: [((i + cc) % 3, AW + i, 56 * ((i + cc) % 3)) for cc in range(3)]
        tiles = [dict(t=rot(i), cs=(i < 3)) for i in range(4)]
        self.bdma, self.bread = {}, {}; self.nslot = 5
        def pre2():
            pass
        def post2():
            with g.capture() as a:
                I('s_mov_b32 s8, %d' % L_WPHI)
                self.wphi_read(3, 8, 88)
            return [a]
        def post3():
            with g.capture() as a:
                I('s_or_b32 s8, s%d, s%d' % (S_RB, S_WAVE)); I('s_cmp_lg_u32 s8, 0'); I('s_cbranch_scc1 L_nozf')
                I('s_lshl_b32 s8, s%d, 7' % S_IDX); I('s_add_u32 s8, s8, %d' % (L.WS_KVZ + 0x4000))
                self.publish(8, TMP + 8).kind = 'untracked'
                self.g.label('L_nozf')
            return [a]
        self.gemm(tiles, 2688, dms, 'k', self.bhooks({2: post2, NST: post3} if ATOM else {2: post2}))
        I('s_lshl_b32 s10, s%d, 12' % S_CH); I('s_add_u32 s10, s10, %d' % L_CP)
        self.finish_stats([(0, 10, 0), (1, 10, 1024), (2, 10, 2048)], L.LOG2E, 'k')
        self.slot4_setup()
        T = TMP
        I('v_and_b32 v%d, 31, v%d' % (T, VLANE)); I('v_lshlrev_b32 v%d, 6, v%d' % (T, T)); I('s_lshl_b32 s8, s%d, 11' % S_RT); I('v_add_u32 v%d, s8, v%d' % (T, T))
        I('v_bfe_u32 v%d, v%d, 1, 2' % (T + 1, VLANE)); I('v_lshl_add_u32 v%d, v%d, 4, v%d' % (CS + 2, T + 1, T))
        I('v_lshrrev_b32 v%d, 5, v%d' % (CS + 3, VLANE))
        I('v_lshl_add_u32 v%d, v%d, 13, v%d' % (AX, CS + 3, CS + 2)); I('s_lshl_b32 s9, s%d, 5' % S_CH); I('v_xor_b32 v%d, s9, v%d' % (AX, AX))
        I('v_xor_b32 v%d, 16, v%d' % (AX + 1, AX))
        I('s_add_u32 s8, s8, %d' % L_V); I('v_add_u32 v%d, s8, v%d' % (AW, VL16))
        if ATOM:
            I('s_lshl_b32 s11, s%d, 7' % S_IDX); I('s_add_u32 s11, s11, %d' % (L.WS_KVZ + 0x4000)); I('v_mov_b32 v123, 0')
            self.poll_issue(123, 11, 124)
        I('s_cmp_eq_u32 s%d, 1' % S_CH); I('s_cbranch_scc1 L_kv_v')

    def kv_rest(self, tg, As, wr):
        I = self.I; g = self.g; U = 120; T = TMP
        self.with_bg(lambda: self.half_units(As, tg == 'v'), self.b_round1(), int(os.environ.get('KBG', '20')))
        for i, A in enumerate(As):
            wr += [I('ds_write_b128 v%d, %s offset:%d' % (AX + q, vr(A + 4 * q, 4), L_PHI + 16384 * i)) for q in range(2)]
        I('v_bfe_u32 v%d, v%d, 2, 2' % (T + 1, VLANE)); I('v_lshl_add_u32 v%d, v%d, 2, v%d' % (T, CS + 3, T + 1))
        I('v_lshrrev_b32 v%d, 1, v%d' % (T + 1, T))
        I('v_bfe_u32 v%d, v%d, 4, 1' % (T + 2, VLANE)); I('v_bfe_u32 v%d, v%d, 1, 1' % (T + 3, VLANE)); I('v_lshl_add_u32 v%d, v%d, 1, v%d' % (T + 2, T + 2, T + 3))
        I('v_xor_b32 v%d, v%d, v%d' % (T + 1, T + 1, T + 2)); I('v_lshlrev_b32 v%d, 6, v%d' % (T, T)); I('v_lshl_add_u32 v%d, v%d, 4, v%d' % (T, T + 1, T))
        I('v_and_b32 v%d, 1, v%d' % (T + 1, VLANE)); I('v_lshl_add_u32 v%d, v%d, 3, v%d' % (T, T + 1, T))
        I('s_lshl_b32 s10, s%d, 13' % S_WAVE); I('v_add_u32 v%d, s10, v%d' % (U + 1, T))
        I('s_lshr_b32 s9, s%d, 1' % S_WAVE); I('s_lshl_b32 s10, s9, 13'); I('s_add_u32 s10, s10, %d' % L_V); I('v_add_u32 v%d, s10, v%d' % (U, T))
        I('s_lshl_b32 s10, s%d, 1' % S_H0); I('s_add_u32 s10, s10, s%d' % S_WAVE); I('s_lshl_b32 s10, s10, 6'); I('s_add_u32 s10, s10, s%d' % S_RB)
        I('s_lshl_b32 s10, s10, 10'); I('s_add_u32 s0, s10, %d' % L.WS_SL)
        if ATOM:
            I('v_lshlrev_b32 v%d, 10, v%d' % (U + 2, CS + 3)); I('v_and_b32 v%d, 31, v%d' % (T + 3, VLANE)); I('v_lshl_add_u32 v%d, v%d, 2, v%d' % (U + 2, T + 3, U + 2))
            I('s_add_u32 s10, s9, s%d' % S_H0); I('s_lshl_b32 s10, s10, 13'); I('s_and_b32 s8, s%d, 1' % S_WAVE); I('s_lshl_b32 s8, s8, 7'); I('s_add_u32 s10, s10, s8')
            I('s_add_u32 s0, s10, %d' % L.WS_KV); I('s_add_u32 s10, s0, 4096')
            self.poll_check('z' + tg, 123, 11, 124)
        I('s_lshl_b32 s8, s%d, 4' % S_IDX); I('s_add_u32 s8, s8, s%d' % S_RB); I('s_lshl_b32 s8, s8, 7'); I('s_add_u32 s1, s8, %d' % L.WS_KVZ)
        I('s_waitcnt lgkmcnt(0)')
        I('s_barrier')
        self.stamp('bb')
        I('s_cmp_ge_u32 s9, s%d' % S_NH); I('s_cbranch_scc1 L_nounit%s' % tg)
        def rd(s):
            b = 64 + 8 * (s % 4)
            for h in range(2):
                I('ds_read_b64_tr_b16 %s, v%d offset:%d' % (vr(b + 2 * h, 2), U + (0 if ATOM else 1), (16 * s + 8 * h) * 64))
                I('ds_read_b64_tr_b16 %s, v%d offset:%d' % (vr(b + 4 + 2 * h, 2), U + (1 if ATOM else 0), (16 * s + 8 * h) * 64))
        D = ACC
        for s in range(3): rd(s)
        for s in range(8):
            if s + 3 < 8: rd(s + 3)
            b = 64 + 8 * (s % 4)
            I('v_mfma_f32_32x32x16_bf16 %s, %s, %s, %s' % (vr(D, 16), vr(b, 4), vr(b + 4, 4), vr(D, 16) if s else '0'))
        if ATOM:
            I('s_nop 7'); I('s_nop 4')
            for r in range(16):
                d = (r & 3) + 8 * (r >> 2)
                if r == 13: I('s_mov_b32 exec_hi, 0')
                self.U('buffer_atomic_add_f32 v%d, v%d, %s, s%d offen offset:%d' % (D + r, U + 2, sr(S_WS, 4), 0 if d < 16 else 10, (d % 16) * 256))
            I('s_mov_b64 exec, -1')
        for Q in range(0 if ATOM else 4):
            if Q == 0: I('s_nop 7'); I('s_nop 3')
            if Q: I('s_add_u32 s0, s0, 16384')
            self.U('buffer_store_dwordx4 %s, v%d, %s, s0 offen sc1' % (vr(D + 4 * Q, 4), VL16, sr(S_WS, 4)))
        self.g.label('L_nounit%s' % tg)
        I('s_waitcnt vmcnt(0)')
        I('s_barrier')
        I('s_cmp_lg_u32 s%d, 7' % S_WAVE); I('s_cbranch_scc1 L_nokf%s' % tg)
        self.publish(1, 96).kind = 'untracked'
        self.g.label('L_nokf%s' % tg)
        self.stamp('units')
        for t in self.b_dma(4) + self.b_tasks(5, 9): g.extend(t)
        self.p2_pre()
        pa = self.poll_issue(P2T + 1, 26, P2T)
        for t in self.wo_dma() + self.b_tasks(4, 5): g.extend(t)
        I('s_waitcnt lgkmcnt(0)'); I('s_nop 0', needs=[pa])
        I('s_branch L_p2')

    def kv_k(self):
        I = self.I; g = self.g
        wr = []
        for i in range(3):
            N = 64 + 8 * i
            self.pack_k(ACC + 16 * i, N)
            wr += [I('ds_write_b128 v%d, %s offset:%d' % (AW, vr(N + 4 * q, 4), 8192 * i + 1024 * q)) for q in range(2)]
            self.phi_mfma(ACC + 16 * i, N, 88 + 8 * i)
        I('s_barrier', needs=wr)
        self.kv_rest('k', [ACC, ACC + 16, ACC + 32], [])

    def kv_v(self):
        I = self.I; g = self.g; T = TMP
        I('v_lshl_add_u32 v%d, v%d, 3, v%d' % (T, CS + 3, CS + 2)); I('v_add_u32 v%d, %d, v%d' % (T, L_V, T))
        for q in range(1, 4): I('v_xor_b32 v%d, %d, v%d' % (T + q, 16 * q, T))
        I('v_cndmask_b32 v%d, v%d, 0, %s' % (CS, ST + 1, sr(S_HIM, 2))); I('v_cndmask_b32 v%d, 0, 1.0, %s' % (CS + 1, sr(S_HIM, 2)))
        PV = [48, 56, 96]
        for i in range(3):
            A = ACC + 16 * i
            for j in range(0, 12, 2): I('v_pk_mul_f32 %s, %s, %s op_sel:[0,1] op_sel_hi:[1,1]' % (vr(A + j, 2), vr(A + j, 2), vr(ST, 2)))
            for j in (12, 14): I('v_pk_fma_f32 %s, %s, %s, %s op_sel:[0,0,1] op_sel_hi:[1,0,1]' % (vr(A + j, 2), vr(A + j, 2), vr(CS, 2), vr(CS, 2)))
            for j in range(8): I('v_cvt_pk_bf16_f32 v%d, v%d, v%d' % (PV[i] + j, A + 2 * j, A + 2 * j + 1))
        I('s_barrier')
        rd = [I('ds_read_b128 %s, v%d offset:%d' % (vr(64 + 8 * i + 4 * q, 4), AW, 8192 * i + 1024 * q)) for i in range(3) for q in range(2)]
        wr = []
        for i in range(3):
            self.phi_mfma(ACC + 16 * i, 64 + 8 * i, 88 + 8 * i)
            wr += [I('ds_write_b64 v%d, %s offset:%d' % (T + q, vr(PV[i] + 2 * q, 2), 8192 * i), needs=rd[2 * i:2 * i + 2]) for q in range(4)]
        self.kv_rest('v', [ACC, ACC + 16, ACC + 32], wr)
    _uid = 0
    def uid(self):
        K._uid += 1
        return str(K._uid)

    def q(self):
        I = self.I; g = self.g
        self.tagbase = 'q'
        self.srd(S_W, 18, 448 * 2688)
        I('v_mul_u32_u24 v6, 2688, v6'); I('v_lshl_add_u32 v%d, v7, 4, v6' % DW)
        I('s_mul_i32 s%d, s%d, 448' % (S_WSO, S_IDX))
        dms = self.start_stream(2688)
        I('s_mul_i32 s10, s%d, 224' % S_CH); I('s_add_u32 s10, s10, %d' % WPART)
        self.read_addrs(True)
        self.pre_loop()
        def qx():
            I('s_lshl_b32 s%d, s%d, 3' % (S_H0, S_IDX))
            self.wphi_dma(2, S_H0)
        self.early = [self.late_group(False, qx)]
        tiles = [dict(t=[((i + cc) % 4, AW + i, 56 * ((i + cc) % 4)) for cc in range(4)], cs=True) for i in range(4)]
        def post2():
            with g.capture() as a:
                I('s_mul_i32 s8, s%d, %d' % (S_CH, 4 * 1568)); I('s_add_u32 s8, s8, %d' % L_WPHI)
                self.wphi_read(4, 8, 0)
            return [a]
        self.gemm(tiles, 2688, dms, 'q', dict(post={2: post2}))
        I('s_lshl_b32 s10, s%d, 12' % S_CH); I('s_add_u32 s10, s10, %d' % L_CP)
        self.finish_stats([(c, 10, 1024 * c) for c in range(4)], L.LOG2E, 'q')
        for i in range(4):
            self.pack_k(ACC + 16 * i, 80 + 8 * (i & 1)); self.phi_mfma(ACC + 16 * i, 80 + 8 * (i & 1), 8 * i)
        for i in range(4): self.softmax_unit(ACC + 16 * i, sreg=124 + i)
        self.stamp('soft')
        if 'noq' in EXP: return
        T = TMP
        if 'lat' in EXP:
            I('s_lshl_b32 s8, s2, 3'); I('s_add_u32 s8, s8, s%d' % S_WAVE); I('s_lshl_b32 s8, s8, 9'); I('s_add_u32 s8, s8, %d' % (15 << 20)); I('v_mov_b32 v%d, 0' % T)
            for rep_ in range(2):
                I('buffer_load_dword v%d, v%d, %s, s8 offen offset:%d sc1' % (T + 1, T, sr(S_WS, 4), 256 * rep_)); I('s_waitcnt vmcnt(0)'); self.stamp('miss')
                I('buffer_load_dword v%d, v%d, %s, s8 offen offset:%d sc1' % (T + 1, T, sr(S_WS, 4), 256 * rep_)); I('s_waitcnt vmcnt(0)'); self.stamp('l2hit')
                I('buffer_store_dword v%d, v%d, %s, s8 offen offset:%d sc1' % (T + 1, T, sr(S_WS, 4), 128 + 256 * rep_)); I('s_waitcnt vmcnt(0)'); self.stamp('st')
            self.nst = 15
        if ATOM:
            T = TMP
            I('v_lshrrev_b32 v%d, 4, v%d' % (T, VLANE)); I('s_lshl_b32 s8, s%d, 1' % S_IDX); I('v_add_u32 v%d, s8, v%d' % (T, T))
            I('s_mul_i32 s8, s%d, 3' % S_IDX); I('s_add_u32 s8, s8, 2'); I('v_min_u32 v%d, s8, v%d' % (T, T))
            I('v_and_b32 v%d, 15, v%d' % (T + 1, VLANE)); I('v_lshl_add_u32 v%d, v%d, 4, v%d' % (T, T, T + 1)); I('v_lshlrev_b32 v%d, 7, v%d' % (T, T))
            I('s_mov_b32 s11, %d' % L.WS_KVZ)
            I('v_lshrrev_b32 v%d, 3, v%d' % (T + 2, VLANE)); I('v_lshlrev_b32 v%d, 8, v%d' % (T + 2, T + 2))
            I('v_lshrrev_b32 v%d, 4, v%d' % (T + 3, VLANE)); I('v_and_b32 v%d, 7, v%d' % (T + 4, VLANE)); I('v_xor_b32 v%d, v%d, v%d' % (T + 3, T + 3, T + 4))
            I('v_lshl_add_u32 v%d, v%d, 4, v%d' % (T + 4, T + 3, T + 2)); I('v_xor_b32 v%d, 64, v%d' % (T + 5, T + 4))
            I('s_add_u32 s8, s%d, s%d' % (S_H0, S_WAVE)); I('s_lshl_b32 s8, s8, 13'); I('s_add_u32 s8, s8, %d' % L.WS_KV)
            I('s_lshl_b32 s9, s%d, 13' % S_WAVE)
            I('v_bfe_u32 v%d, v%d, 3, 2' % (T + 2, VLANE)); I('v_lshlrev_b32 v%d, 2, v%d' % (T + 2, T + 2)); I('v_and_or_b32 v%d, v%d, 3, v%d' % (T + 2, VLANE, T + 2))
            I('v_bfe_u32 v%d, v%d, 2, 1' % (T + 3, VLANE)); I('v_mul_u32_u24 v%d, 14, v%d' % (T + 3, T + 3)); I('v_add_u32 v%d, v%d, v%d' % (T + 3, T + 3, T + 2))
            I('v_cmp_gt_u32 vcc, 14, v%d' % (T + 2)); I('v_cndmask_b32 v%d, 28, v%d, vcc' % (T + 3, T + 3))
            I('v_bfe_u32 v%d, v%d, 1, 3' % (T + 2, T + 3)); I('v_lshlrev_b32 v%d, 4, v%d' % (T + 2, T + 2))
            I('v_and_b32 v%d, 32, v%d' % (T + 6, VLANE)); I('v_add_u32 v%d, v%d, v%d' % (T + 3, T + 3, T + 6)); I('v_lshl_add_u32 v%d, v%d, 7, v%d' % (T + 2, T + 3, T + 2))
            I('v_add_u32 v%d, s9, v%d' % (T + 2, T + 2))
            I('s_cmp_lg_u32 s%d, 0' % S_WAVE); I('s_cbranch_scc1 L_polldkv')
            self.g.label('L_pollkv')
            self.U('buffer_load_dword v64, v%d, %s, s11 offen sc1' % (T, sr(S_WS, 4))); self.U('s_waitcnt vmcnt(0)')
            I('v_cmp_ne_u32 vcc, s%d, v64' % S_NONCE); I('s_nop 1'); I('s_cbranch_vccz L_polldkv')
            self.spin_tail('L_pollkv', QSL)
            self.g.label('L_polldkv')
            I('s_barrier')
            self.stamp('kvok')
            dm = []
            for i in range(8):
                I('s_add_u32 m0, s9, %d' % (L_KVQ + 1024 * i)); I('s_add_u32 s10, s8, %d' % ((i & 3) * 2048 + (i >> 2) * 128))
                dm.append(I('buffer_load_dwordx4 v%d, %s, s10 offen sc1 lds' % (T + 4 + (i & 1), sr(S_WS, 4))))
            for c in range(8):
                I('v_xor_b32 v%d, %d, v%d' % (T + 6 + (c & 1), 16 * c, T + 2))
                I('ds_read_b128 %s, v%d' % (vr(64 + 4 * c, 4), T + 6 + (c & 1)), needs=dm)
            I('s_waitcnt lgkmcnt(0)'); self.stamp('kvld')
            for j in range(16): I('v_cvt_pk_bf16_f32 v%d, v%d, v%d' % (96 + j, 64 + 2 * j, 64 + 2 * j + 1))
            I('s_lshl_b32 s8, s%d, 12' % S_WAVE); I('s_add_u32 s8, s8, %d' % L_KVF); I('v_add_u32 v%d, s8, v%d' % (T, VL16))
            wr = [I('ds_write_b128 v%d, %s offset:%d' % (T, vr(96 + 4 * s, 4), 1024 * s)) for s in range(4)]
            I('s_lshl_b32 s8, s%d, 14' % S_CH); I('s_add_u32 s8, s8, %d' % L_KVF); I('v_add_u32 v%d, s8, v%d' % (T, VL16))
            qbar = lambda: (I('s_barrier', needs=wr), [I('ds_read_b128 %s, v%d offset:%d' % (ar(32 + 16 * i + 4 * s, 4), T, 4096 * i + 1024 * s)) for i in range(4) for s in range(4)])
        else:
            I('v_bfe_u32 v%d, v%d, 3, 2' % (T + 2, VLANE)); I('v_lshlrev_b32 v%d, 2, v%d' % (T + 2, T + 2)); I('v_and_or_b32 v%d, v%d, 3, v%d' % (T + 2, VLANE, T + 2))
            I('v_bfe_u32 v%d, v%d, 2, 1' % (T + 3, VLANE)); I('v_mul_u32_u24 v%d, 14, v%d' % (T + 3, T + 3)); I('v_add_u32 v%d, v%d, v%d' % (T + 3, T + 3, T + 2))
            I('v_cmp_gt_u32 vcc, 14, v%d' % (T + 2)); I('v_cndmask_b32 v%d, 28, v%d, vcc' % (T + 3, T + 3))
            I('v_and_b32 v%d, 32, v%d' % (T + 2, VLANE)); I('v_lshlrev_b32 v%d, 6, v%d' % (T + 2, T + 2)); I('v_lshl_add_u32 v%d, v%d, 4, v%d' % (T + 2, T + 3, T + 2))
            I('s_lshl_b32 s8, s%d, 14' % S_CH); I('v_add_u32 v%d, s8, v%d' % (T + 2, T + 2))
            I('v_and_b32 v%d, 15, v%d' % (T, VLANE)); I('v_lshlrev_b32 v%d, 7, v%d' % (T, T))
            I('v_and_b32 v%d, 7, v%d' % (T + 3, VLANE)); I('v_lshlrev_b32 v%d, 7, v%d' % (T + 3, T + 3))
            I('s_cmp_lg_u32 s%d, 0' % S_CH); I('s_cbranch_scc1 L_noreduce')
            I('s_lshl_b32 s8, s%d, 1' % S_RB); I('s_add_u32 s8, s8, s%d' % S_IDX); I('s_lshl_b32 s8, s8, 2'); I('s_add_u32 s11, s8, s%d' % S_RT)
            I('s_lshl_b32 s0, s11, 14'); I('s_add_u32 s0, s0, %d' % L.WS_SL)
            I('s_mov_b32 s8, 0x22111000'); I('s_mov_b32 s9, 0x55544332'); I('s_lshl_b32 s10, s%d, 2' % S_RB); I('s_lshr_b64 s[8:9], s[8:9], s10'); I('s_and_b32 s8, s8, 15')
            I('s_lshl_b32 s8, s8, 11'); I('s_add_u32 s1, s8, %d' % L.WS_KVZ)
            self.g.label('L_red_poll')
            self.U('buffer_load_dword v%d, v%d, %s, s1 offen sc1' % (T + 1, T, sr(S_WS, 4))); self.U('s_waitcnt vmcnt(0)')
            I('v_cmp_ne_u32 vcc, s%d, v%d' % (S_NONCE, T + 1)); I('s_nop 1'); I('s_cbranch_vccz L_red_load')
            self.spin_tail('L_red_poll', QSL)
            self.g.label('L_red_load')
            R = 64
            def src(i): return (64 + 4 * i) if i < 15 else T + 4
            for i in range(16):
                if i % 4 == 0: I('s_add_u32 s8, s0, %d' % (1024 * i))
                I('buffer_load_dwordx4 %s, v%d, %s, s8 offen offset:%d' % (vr(src(i), 4), VL16, sr(S_WS, 4), 1024 * (i % 4)))
            I('s_lshl_b32 s8, s11, 9'); I('s_add_u32 s8, s8, %d' % L.WS_KF); I('s_lshl_b32 s9, s11, 7'); I('s_add_u32 s9, s9, %d' % L.WS_KVD)
            for i in range(2, 16):
                for j in (0, 2): I('v_pk_add_f32 %s, %s, %s' % (vr(R + 4 * (i & 1) + j, 2), vr(R + 4 * (i & 1) + j, 2), vr(src(i) + j, 2)))
            for j in (0, 2): I('v_pk_add_f32 %s, %s, %s' % (vr(R + j, 2), vr(R + j, 2), vr(R + 4 + j, 2)))
            I('v_cvt_pk_bf16_f32 v68, v64, v65'); I('v_cvt_pk_bf16_f32 v69, v66, v67')
            I('v_mov_b32 v72, v68'); I('v_mov_b32 v73, v69')
            I('v_permlane32_swap_b32 v72, v70'); I('v_permlane32_swap_b32 v73, v71')
            I('s_mov_b32 exec_hi, 0')
            I('buffer_store_dwordx4 v[68:71], v%d, %s, s8 offen sc1' % (VL16, sr(S_WS, 4)))
            I('s_mov_b64 exec, -1')
            self.stamp('red')
            I('s_waitcnt vmcnt(0)')
            self.publish(9, 72).kind = 'untracked'
            self.g.label('L_noreduce')
            I('s_add_u32 s10, s%d, s%d' % (S_H0, S_WAVE)); I('s_lshl_b32 s11, s10, 10'); I('s_add_u32 s11, s11, %d' % L.WS_KVD)
            I('s_lshl_b32 s10, s10, 12'); I('s_add_u32 s10, s10, %d' % L.WS_KF); I('s_lshl_b32 m0, s%d, 12' % S_WAVE)
            self.g.label('L_pollkv')
            self.U('buffer_load_dword v64, v%d, %s, s11 offen sc1' % (T + 3, sr(S_WS, 4))); self.U('s_waitcnt vmcnt(0)')
            I('v_cmp_ne_u32 vcc, s%d, v64' % S_NONCE); I('s_nop 1'); I('s_cbranch_vccz L_polldkv')
            self.spin_tail('L_pollkv', QSL)
            self.g.label('L_polldkv')
            self.nst = 7
            self.stamp('kvok')
            dm = [I('buffer_load_dwordx4 v%d, %s, s10 offen offset:%d lds' % (VL16, sr(S_WS, 4), 1024 * i)) for i in range(4)]
            qbar = lambda: (I('s_barrier', needs=dm), [I('ds_read_b128 %s, v%d offset:%d' % (ar(32 + 16 * i + 4 * sf, 4), T + 2, 4096 * i + 512 * sf)) for i in range(4) for sf in range(4)])
        I('s_lshl_b32 s8, s%d, 2' % S_RB); I('s_add_u32 s8, s8, s%d' % S_RT); I('s_mul_i32 s8, s8, 28'); I('s_mul_i32 s9, s%d, 14' % S_IDX); I('s_add_u32 s8, s8, s9')
        I('s_mul_i32 s9, s%d, 7' % S_CH); I('s_add_u32 s8, s8, s9'); I('s_lshl_b32 s8, s8, 10'); I('s_add_u32 s8, s8, %d' % L.WS_O); I('s_add_u32 s9, s8, 4096')
        qbar()
        N = [64, 80]; O = 96
        def ost(f): I('buffer_store_dwordx4 %s, v%d, %s, s%d offen offset:%d sc1' % (vr(O + 4 * f, 4), VL16, sr(S_WS, 4), 8 if f < 4 else 9, (f % 4) * 1024))
        done = 0
        for i in range(5):
            if i < 4:
                for s in range(4):
                    I('v_mfma_f32_32x32x16_bf16 %s, %s, %s, %s' % (vr(N[i & 1], 16), ar(32 + 16 * i + 4 * s, 4), vr(ACC + 16 * i + 4 * s, 4), vr(N[i & 1], 16) if s else '0'))
            if i >= 1:
                self.o_fin(N[(i - 1) & 1], O + 7 * (i - 1), 124 + i - 1)
                while 4 * (done + 1) <= 7 * i: ost(done); done += 1
        self.stamp('ocomp')
        I('s_lshl_b32 s8, s%d, 2' % S_RB); I('s_add_u32 s8, s8, s%d' % S_RT); I('s_lshl_b32 s8, s8, 1'); I('s_add_u32 s8, s8, s%d' % S_IDX)
        I('s_lshl_b32 s8, s8, 1'); I('s_add_u32 s8, s8, s%d' % S_CH); I('s_lshl_b32 s8, s8, 7'); I('s_add_u32 s11, s8, %d' % L.WS_FO)
        I('s_waitcnt vmcnt(0)')
        self.publish(11, TMP)
        self.stamp('opub')
        I('s_waitcnt vmcnt(0)')
    def o_fin(self, N, O, sreg):
        I = self.I; t = TMP + 8
        I('v_fmac_f32 v%d, %s, v%d' % (N + 14, f32(1e-6), sreg)); I('v_rcp_f32 v%d, v%d' % (t, N + 14))
        for j in range(0, 14, 2): I('v_pk_mul_f32 %s, %s, %s op_sel_hi:[1,0]' % (vr(N + j, 2), vr(N + j, 2), vr(t, 2)))
        for j in range(7): I('v_cvt_pk_bf16_f32 v%d, v%d, v%d' % (O + j, N + 2 * j, N + 2 * j + 1))

    def p2_pre(self):
        I = self.I; T = P2T
        I('s_lshl_b32 s8, s%d, 1' % S_RG)
        I('s_mul_i32 s%d, s8, 112' % S_A0); I('s_mul_i32 s9, s%d, 14' % S_WAVE); I('s_add_u32 s%d, s%d, s9' % (S_A0, S_A0)); I('s_lshl_b32 s%d, s%d, 10' % (S_A0, S_A0))
        I('s_add_u32 s%d, s%d, %d' % (S_A1, S_A0, 112 * 1024))
        I('s_mul_i32 s%d, s8, 28' % S_OSO); I('s_mul_i32 s9, s%d, 7' % S_WAVE); I('s_add_u32 s%d, s%d, s9' % (S_OSO, S_OSO)); I('s_lshl_b32 s%d, s%d, 10' % (S_OSO, S_OSO))
        I('s_add_u32 s%d, s%d, %d' % (S_OSO, S_OSO, L.WS_O))
        XO = T + 2
        I('v_lshrrev_b32 v%d, 3, v%d' % (T, VLANE)); I('v_mul_u32_u24 v%d, 896, v%d' % (T, T)); I('v_and_b32 v%d, 7, v%d' % (T + 3, VLANE)); I('v_lshl_add_u32 v%d, v%d, 4, v%d' % (XO, T + 3, T))
        I('s_lshl_b32 s9, s%d, 3' % S_RG); I('s_add_u32 s9, s9, s%d' % S_WAVE); I('s_mul_i32 s9, s9, %d' % (8 * 896)); I('s_lshl_b32 s11, s%d, 7' % S_CG); I('s_add_u32 s30, s9, s11')
        I('v_lshlrev_b32 v%d, 7, v%d' % (T + 3, T + 3))
        WA = T + 8
        I('v_lshrrev_b32 v%d, 5, v%d' % (T, VLANE)); I('v_bfe_u32 v%d, v%d, 3, 1' % (WA, VLANE)); I('v_xor_b32 v%d, v%d, v%d' % (WA, WA, T))
        I('v_mul_u32_u24 v%d, 14, v%d' % (WA + 1, T)); I('v_bfe_u32 v%d, v%d, 2, 2' % (WA + 2, VLANE)); I('v_add_u32 v%d, v%d, v%d' % (WA + 1, WA + 1, WA + 2))
        I('v_lshlrev_b32 v%d, 7, v%d' % (WA + 1, WA + 1)); I('v_lshl_add_u32 v%d, v%d, 6, v%d' % (WA, WA, WA + 1))
        I('v_and_b32 v%d, 3, v%d' % (WA + 1, VLANE)); I('v_lshl_add_u32 v%d, v%d, 3, v%d' % (WA, WA + 1, WA))
        I('v_and_b32 v%d, 16, v%d' % (WA + 1, VLANE)); I('v_lshl_add_u32 v%d, v%d, 1, v%d' % (WA, WA + 1, WA))
        I('s_and_b32 s9, s%d, 1' % S_WAVE); I('s_lshl_b32 s9, s9, 6'); I('v_xor_b32 v%d, s9, v%d' % (WA, WA))
        I('s_mul_i32 s9, s%d, %d' % (S_CH, 224 * 128)); I('v_add_u32 v%d, s9, v%d' % (WA, WA))
        I('v_xor_b32 v%d, 64, v%d' % (WA + 1, WA))
        I('v_add_u32 v%d, %d, v%d' % (WA + 2, 14 * 128, WA + 1)); I('v_and_b32 v%d, 8, v%d' % (T, VLANE)); I('v_cmp_eq_u32 vcc, 0, v%d' % T); I('v_cndmask_b32 v%d, v%d, v%d, vcc' % (WA + 2, WA + 2, WA))
        I('v_and_b32 v%d, 1, v%d' % (T + 1, VLANE)); I('v_lshlrev_b32 v%d, 11, v%d' % (T + 1, T + 1)); I('v_and_b32 v%d, 2, v%d' % (T, VLANE)); I('v_lshl_add_u32 v%d, v%d, 6, v%d' % (T + 1, T, T + 1))
        I('s_lshl_b32 s8, s%d, 12' % S_RG); I('s_lshl_b32 s9, s%d, 8' % S_WAVE); I('s_add_u32 s9, s9, s8'); I('s_add_u32 s26, s9, %d' % L.WS_FLAG)
        I('s_add_u32 s27, s26, 128')
        I('s_lshl_b32 s8, s%d, 10' % S_RG); I('s_add_u32 s28, s8, %d' % L.WS_FO)

    def phase2(self):
        I = self.I; g = self.g; T = P2T
        XO, XR, WA = T + 2, T + 4, T + 8
        self.nst = 8
        if 'start' in EXP or 'stg' in EXP: self.nst = 15
        self.stamp('p2start')
        self.poll_check('A', T + 1, 26, T)
        self.stamp('hok')
        RING = 64; NR = 15
        self.bdma = {k: [] for k in range(14)}
        def load(n):
            ki, a = divmod(n, 2); k = KORD[ki]; r = RING + 4 * (n % NR)
            base = S_A1 if a else S_A0
            if k >= 4:
                I('s_add_u32 s8, s%d, %d' % (base, (k // 4) * 4096)); base = 8
            I('buffer_load_dwordx4 %s, v%d, %s, s%d offen offset:%d' % (vr(r, 4), VL16, sr(S_WS, 4), base, (k % 4) * 1024))
        def wo_read(kk, dst):
            G, f = divmod(kk, 7)
            for pp in range(2):
                p = 4 * f + 2 * pp; hl = 4 * G + p // 7; i = p % 7
                areg = WA + 2 if i == 6 else WA + (i & 1)
                I('ds_read_b64_tr_b16 %s, v%d offset:%d' % (ar(dst + 2 * pp, 2), areg, L_WO + (28 * hl + 2 * i) * 128))
        for n in range(NR): load(n)
        for t in self.code_pf('p2', XR, 'v%d' % (XR + 1)): g.extend(t)
        nl = NR
        for ki in range(14):
            for a in range(2):
                n = 2 * ki + a; r = RING + 4 * (n % NR)
                for b in range(2):
                    I('v_mfma_f32_32x32x16_bf16 %s, %s, %s, %s' % (vr(16 * (2 * a + b), 16), ar(8 * ki + 4 * b, 4), vr(r, 4), vr(16 * (2 * a + b), 16) if ki else '0'))
                if nl < 28:
                    load(nl); nl += 1
                    if nl == 28: I('buffer_load_dwordx4 %s, v%d, %s, s30 offen' % (vr(XR, 4), XO, sr(S_X, 4)))
            if ki == 0:
                for k in range(9, 14): g.extend(self.b_read(k))
            if ki == 6: I('s_waitcnt lgkmcnt(0)'); I('s_barrier')
            if ki >= 7:
                for kk in (2 * (ki - 7), 2 * (ki - 7) + 1): wo_read(kk, 4 * kk)
        self.stamp('gdone')
        EW = 64
        I('v_and_b32 v%d, 31, v%d' % (T, VLANE)); I('v_lshlrev_b32 v%d, 7, v%d' % (T, T)); I('v_and_b32 v%d, 7, v%d' % (T + 1, VLANE)); I('v_lshl_add_u32 v%d, v%d, 4, v%d' % (T, T + 1, T))
        I('v_lshrrev_b32 v%d, 5, v%d' % (T + 1, VLANE)); I('v_lshl_add_u32 v%d, v%d, 3, v%d' % (T, T + 1, T))
        I('s_lshl_b32 s8, s%d, 13' % S_WAVE); I('s_add_u32 s8, s8, %d' % L_XG); I('v_add_u32 v%d, s8, v%d' % (EW, T))
        wr = []
        for b in range(2):
            for Q in range(4):
                if 4 * b + Q: I('v_xor_b32 v%d, %d, v%d' % (EW + 4 * b + Q, 16 * (4 * b + Q), EW))
                for a in range(2):
                    t = 16 * (2 * a + b)
                    for j in (2 * Q, 2 * Q + 1): I('v_cvt_pk_bf16_f32 v%d, v%d, v%d' % (t + j, t + 2 * j, t + 2 * j + 1))
                    wr.append(I('ds_write_b64 v%d, %s offset:%d' % (EW + 4 * b + Q, vr(t + 2 * Q, 2), 4096 * a)))
        SW = 72
        I('s_lshl_b32 s8, s%d, 13' % S_CH); I('s_bfe_u32 s9, s%d, 0x10001' % S_WAVE); I('s_lshl_b32 s10, s9, 12'); I('s_add_u32 s8, s8, s10'); I('s_add_u32 s8, s8, %d' % L_XS)
        I('v_add_u32 v%d, s8, v%d' % (SW, T)); I('s_and_b32 s8, s%d, 1' % S_WAVE); I('s_lshl_b32 s8, s8, 6'); I('v_xor_b32 v%d, s8, v%d' % (SW, SW))
        for q in range(1, 4): I('v_xor_b32 v%d, %d, v%d' % (SW + q, 16 * q, SW))
        I('s_mul_i32 s9, s9, 28'); I('s_mul_i32 s8, s%d, 14' % S_CH); I('s_add_u32 s9, s9, s8'); I('s_lshl_b32 s9, s9, 10')
        I('v_add_u32 v%d, s9, v%d' % (T + 1, VL16))
        I('v_lshrrev_b32 v%d, 3, v%d' % (T, VLANE)); I('v_and_b32 v%d, 7, v%d' % (124, VLANE)); I('v_xor_b32 v124, v124, v%d' % T)
        I('v_lshlrev_b32 v%d, 7, v%d' % (T, T)); I('v_lshl_add_u32 v%d, v124, 4, v%d' % (T, T)); I('s_lshl_b32 s8, s%d, 10' % S_WAVE); I('s_add_u32 s8, s8, %d' % L_XG)
        I('v_add_u32 v124, s8, v%d' % T); I('v_add_u32 v125, %d, v124' % (L_XS - L_XG))
        I('s_mul_i32 s9, s%d, 7168' % S_WAVE)
        I('s_waitcnt lgkmcnt(0)')
        I('s_barrier')
        self.stamp('e2')
        for src in range(8): I('ds_read_b128 %s, v124 offset:%d' % (vr(8 + 4 * src, 4), 8192 * src))
        def opoll(tag, spin):
            I('s_cmp_lg_u32 s%d, %d' % (S_WAVE, 9 if 'noq' in EXP else 0)); I('s_cbranch_scc1 L_polld%s' % tag)
            self.g.label('L_poll%s' % tag)
            self.U('buffer_load_dword v%d, v%d, %s, s28 offen sc1' % (WA, T + 3, sr(S_WS, 4))); self.U('s_waitcnt vmcnt(0)')
            I('v_cmp_ne_u32 vcc, s%d, v%d' % (S_NONCE, WA)); I('s_nop 1'); I('s_cbranch_vccz L_polld%s' % tag)
            self.spin_tail('L_poll%s' % tag, 4)
            self.g.label('L_polld%s' % tag)
        I('s_mov_b32 s10, 0x00003f80'); I('s_mov_b32 s11, 0x3f800000')
        for j in range(4): I('v_lshlrev_b32 v%d, 16, v%d' % (76 + 2 * j, XR + j)); I('v_and_b32 v%d, s%d, v%d' % (77 + 2 * j, S_MASK, XR + j))
        for src in range(8):
            for j in range(4):
                I('v_dot2_f32_bf16 v%d, v%d, s10, %s' % (2 * j, 8 + 4 * src + j, 'v%d' % (2 * j) if src else '0'))
                I('v_dot2_f32_bf16 v%d, v%d, s11, %s' % (2 * j + 1, 8 + 4 * src + j, 'v%d' % (2 * j + 1) if src else '0'))
        def silu():
            for j in range(8): I('v_exp_f32 v%d, v%d' % (8 + j, j))
            for j in range(0, 8, 2): I('v_pk_add_f32 %s, %s, 1.0 op_sel_hi:[1,0]' % (vr(8 + j, 2), vr(8 + j, 2)))
            for j in range(8): I('v_rcp_f32 v%d, v%d' % (8 + j, 8 + j))
            I('s_mov_b32 s26, %s' % f32(-1.0 / L.LOG2E)); I('s_mov_b32 s27, s26')
            for j in range(0, 8, 2): I('v_pk_mul_f32 %s, %s, s[26:27]' % (vr(j, 2), vr(j, 2)))
            for j in range(0, 8, 2): I('v_pk_mul_f32 %s, %s, %s' % (vr(j, 2), vr(j, 2), vr(8 + j, 2)))
        opoll('O', True)
        I('s_barrier')
        self.stamp('ook')
        od = []
        for i in range(7):
            if i == 0 or i == 4:
                I('s_add_u32 m0, s9, %d' % (L_O + 1024 * i)); I('s_add_u32 s8, s%d, %d' % (S_OSO, 1024 * i))
            od.append(I('buffer_load_dwordx4 v%d, %s, s8 offen offset:%d lds' % (VL16, sr(S_WS, 4), 1024 * (i % 4))))
        silu()
        I('s_barrier', needs=od)
        self.stamp('e3')
        OF = 84; SA = 48
        def ord_(kk): I('ds_read_b128 %s, v%d offset:%d' % (vr(OF + 4 * (kk % 10), 4), T + 1, 1024 * kk))
        for kk in range(8): ord_(kk)
        for kk in range(14):
            I('v_mfma_f32_32x32x16_bf16 %s, %s, %s, %s' % (vr(SA, 16), ar(4 * kk, 4), vr(OF + 4 * (kk % 10), 4), vr(SA, 16) if kk else '0'))
            if kk + 8 < 14: ord_(kk + 8)
        wr = []
        for q in range(4):
            for j in (2 * q, 2 * q + 1): I('v_cvt_pk_bf16_f32 v%d, v%d, v%d' % (SA + j, SA + 2 * j, SA + 2 * j + 1))
            wr.append(I('ds_write_b64 v%d, %s' % (SW + q, vr(SA + 2 * q, 2))))
        I('s_barrier', needs=wr)
        for h in range(2): I('ds_read_b128 %s, v125 offset:%d' % (vr(16 + 4 * h, 4), 8192 * h))
        for h in range(2):
            for j in range(4):
                I('v_dot2_f32_bf16 v%d, v%d, s10, %s' % (24 + 2 * j, 16 + 4 * h + j, 'v%d' % (24 + 2 * j) if h else '0'))
                I('v_dot2_f32_bf16 v%d, v%d, s11, %s' % (25 + 2 * j, 16 + 4 * h + j, 'v%d' % (25 + 2 * j) if h else '0'))
        for j in range(0, 8, 2): I('v_pk_fma_f32 %s, %s, %s, %s' % (vr(j, 2), vr(j, 2), vr(24 + j, 2), vr(76 + j, 2)))
        for j in range(4): I('v_cvt_pk_bf16_f32 v%d, v%d, v%d' % (40 + j, 2 * j, 2 * j + 1))
        I('buffer_store_dwordx4 v[40:43], v%d, %s, s30 offen' % (XO, sr(S_OUT, 4)))
        self.stamp('final')

    def xfilter(self, body):
        out = []
        for x in body:
            if 'nosc1st' in EXP and x.op.startswith('buffer_store_dwordx4') and 'sc1' in x.text and 'v141' in x.text: x.text = x.text.replace(' sc1', '')
            if 'nost' in EXP and x.op.startswith('buffer_store_dwordx4') and 'v141' in x.text: x.text = 's_nop 0'
            if 'nob' in EXP and x.kind == 'dma' and 's[52:55]' in x.text: x.text = 's_nop 0'
            if 'sysp' in EXP and x.op == 'buffer_load_dword' and x.text.endswith('sc1') and 's[64:67]' in x.text: x.text = x.text.replace(' sc1', ' sc0 sc1')
            if 'nowo' in EXP and x.kind == 'dma' and 's[48:51]' in x.text: x.text = 's_nop 0'
            if 'noatom' in EXP and 'atomic' in x.op: x.text = 's_nop 0'
            if 'ntst' in EXP and x.op.startswith('buffer_store_dwordx4') and 'sc1' in x.text and 'v141' in x.text: x.text = x.text.replace(' sc1', ' sc0 sc1')
            out.append(x)
        return out
    def path(self, prefix, fn, label, keys):
        self.keys = keys
        if 'stamp' in self.__dict__: del self.__dict__['stamp']
        with self.g.capture() as body:
            if label: self.g.label(label)
            fn()
        self.xfilter(body)
        allp = [x for p in prefix for x in p]
        for x in allp: x.done = False
        full = self.g.finish(allp + body)
        if label:
            idx = next(i for i, x in enumerate(full) if x.kind == 'label' and x.text == label + ':')
            return full[idx:], body
        return full, body

    def build(self):
        I = self.I
        with self.g.capture() as pro:
            self.prologue()
            I('s_cmp_eq_u32 s%d, 1' % S_TYPE); I('s_cbranch_scc1 L_kv'); I('s_cmp_eq_u32 s%d, 2' % S_TYPE); I('s_cbranch_scc1 L_q')
        n0 = self.nst
        def endp():
            self.write_stamps(); I('s_endpgm')
        def ffn():
            self.ffn()
        out, _ = self.path([pro], ffn, None, ['0'])
        self.nst = n0
        code, kvc = self.path([pro], self.kv_common, 'L_kv', ['10', '11'])
        n1 = self.nst
        save = (dict(self.bdma), dict(self.bread))
        def kk():
            self.kv_k()
        def kvv():
            self.kv_v()
        c2, _ = self.path([pro, kvc], kk, 'L_kv_k', ['10'])
        self.nst = n1; self.bdma, self.bread = dict(save[0]), dict(save[1])
        c3, _ = self.path([pro, kvc], kvv, 'L_kv_v', ['11'])
        out += code + c2 + c3
        self.nst = n0
        def qq():
            self.q(); endp()
        c4, _ = self.path([pro], qq, 'L_q', ['2'])
        out += c4
        def p2():
            self.phase2(); endp()
        if 'nop2' not in EXP:
            c5, _ = self.path([], p2, 'L_p2', ['0', '10', '11'])
            out += c5
        with self.g.capture() as tail:
            self.g.label('L_end'); I('s_endpgm')
        return out + tail

HEADER = open('cdna_kernels/%s.s.ref' % NAME).read().split('; Override launch')[0]
def wrap(code, launch):
    return HEADER + launch + '''
.amdgcn_target "amdgcn-amd-amdhsa--gfx950"
.text
.globl %(n)s_kernel
.p2align 8
.type %(n)s_kernel,@function
%(n)s_kernel:
%(body)s
.section .rodata,"a"
.p2align 6
.amdhsa_kernel %(n)s_kernel
  .amdhsa_next_free_vgpr 256
  .amdhsa_next_free_sgpr 102
  .amdhsa_accum_offset %(nv)d
  .amdhsa_group_segment_fixed_size 0
  .amdhsa_kernarg_size 80
  .amdhsa_user_sgpr_count 2
  .amdhsa_user_sgpr_kernarg_segment_ptr 1
  .amdhsa_system_sgpr_workgroup_id_x 1
.end_amdhsa_kernel
''' % dict(n=NAME, body=render(code), nv=NV)

if __name__ == '__main__':
    stamps = '--stamps' in sys.argv
    k = K(stamps)
    code = k.build()
    open(sys.argv[1], 'w').write(wrap(code, '; @launch grid=(256,1,1) block=(512,1,1) lds=163840'))
    json.dump({t: [d.get(i, '') for i in range(16)] for t, d in k.names.items()} if stamps else {}, open(sys.argv[1][:-2] + '.json', 'w'))
    print('instructions', len(code), 'nops', sum(1 for i in code if i.kind == 'nop'))
```

```python
import sys, json, struct, os
from asmgen import *
import layout as L
EXP = os.environ.get('EXP', '').split(',')
SLEEP = int(os.environ.get('SLEEP', '4'))
BCHK = int(os.environ.get('BCHK', '7'))
W1K = int(os.environ.get('W1K', '3'))
PF0 = int(os.environ.get('PF0', '2'))
QSL = int(os.environ.get('QSL', '6'))
NST = int(os.environ.get('NST', '3')); MST = int(os.environ.get('MST', '1'))
ATOM = True
S_FA, S_FO, S_XO = 98, 99, 100
STASH = 72
NAME = 'recurrent_scan__linear_kernel_hedgehog__dense_activation_silu__prompt'
def f32(x): return '0x%08x' % struct.unpack('<I', struct.pack('<f', x))[0]

S_X, S_W, S_PHI, S_WO, S_W2, S_OUT, S_DBG, S_WS = 36, 40, 44, 48, 52, 56, 60, 64
S_MASK, S_WAVE, S_IDX, S_RB, S_TYPE = 3, 4, 5, 6, 7
S_XS, S_WSO, S_EX56 = 12, 13, 14
S_MW, S_MX, S_ROW, S_NONCE = 32, 33, 34, 35
S_RT, S_CH = 68, 69
S_ST = 70
S_RG, S_CG, S_BSO, S_STA, S_A0, S_A1, S_OSO, S_NH, S_H0 = 16, 17, 18, 19, 20, 21, 22, 23, 24
S_ST4 = 25
S_L2E = 26
S_HIM = 28
STG = 45056; WPART = 16384
L_CNT = 3 * STG
L_CP = 122880
L_WPHI = 144384
L_SHX = L_WPHI
L_PHI = 0
L_V = 136192
L_STA = 57344
L_WO = 0
L_KVQ = 0
L_KVF = 65536
L_XG = 65536
L_O = 0
L_XS = 131072
KORD = [0, 1, 2, 3, 4, 5, 12, 6, 7, 8, 9, 10, 11, 13]
NV = 144
ACC, WF, XF, ST, CS, AX, AW, AS, DX, DW = 0, 64, 96, 104, 108, 112, 116, 120, 122, 124
PFA = 136; TMP = 128; P2T = 128; BT2 = 126; DB = 139; VLANE = 140; VL16 = 141; BT = 142

class K:
    def __init__(self, stamps):
        self.g = Gen(); self.use_stamps = stamps; self.nst = 0; self.names = {}; self.keys = ['0', '10', '11', '2']
    def I(self, t, needs=()): return self.g.I(t, needs)
    def U(self, t):
        x = self.g.I(t); x.kind = 'untracked'; return x
    def stamp(self, name, real=False):
        if 'dbgt' in EXP and name in ('bar0', 'loopend', 'gdone', 'opub', 'ook'):
            r = {'bar0': [78], 'loopend': [80], 'gdone': [82], 'ook': [84], 'opub': [82, 84]}[name]
            for x in r: self.I('s_memtime s[%d:%d]' % (x, x + 1))
        if not self.use_stamps: return
        i = self.nst
        if i >= 13: return
        self.nst += 1
        for k in self.keys: self.names.setdefault(k, {})[i] = name
        self.I('%s %s' % ('s_memrealtime' if real else 's_memtime', sr(S_ST + 2 * i, 2)))
    def write_stamps(self, total=14):
        if 'dbgt' in EXP:
            I = self.I
            I('s_memrealtime s[74:75]'); I('s_memtime s[76:77]'); I('s_waitcnt vmcnt(0) lgkmcnt(0)')
            I('s_mov_b64 exec, 1'); I('v_mov_b32 v2, 0')
            I('v_mov_b32 v0, s70'); I('buffer_atomic_umax v0, v2, %s, 0 offen offset:8' % sr(S_DBG, 4))
            I('s_not_b32 s8, s70'); I('v_mov_b32 v1, s8'); I('buffer_atomic_umax v1, v2, %s, 0 offen offset:12' % sr(S_DBG, 4))
            I('v_mov_b32 v3, s74'); I('buffer_atomic_umax v3, v2, %s, 0 offen offset:16' % sr(S_DBG, 4))
            I('s_sub_u32 s8, s76, s72'); I('v_mov_b32 v4, s8'); I('buffer_atomic_umax v4, v2, %s, 0 offen offset:20' % sr(S_DBG, 4))
            I('s_sub_u32 s8, s74, s70'); I('v_mov_b32 v5, s8'); I('buffer_atomic_umax v5, v2, %s, 0 offen offset:24' % sr(S_DBG, 4))
            for k, so in enumerate((78, 80, 82, 84)):
                I('s_sub_u32 s8, s%d, s72' % so); I('v_mov_b32 v%d, s8' % (6 + k)); I('buffer_atomic_umax v%d, v2, %s, 0 offen offset:%d' % (6 + k, sr(S_DBG, 4), 28 + 4 * k))
            I('s_waitcnt vmcnt(0)')
            return
        if not self.use_stamps: return
        I = self.I
        I('s_memrealtime %s' % sr(S_ST + 2 * (total - 1), 2))
        I('s_waitcnt lgkmcnt(0)')
        I('s_lshl_b32 s8, s2, 3'); I('s_add_u32 s8, s8, s%d' % S_WAVE); I('s_lshl_b32 s8, s8, 7')
        I('s_add_u32 s8, s8, %d' % L.WS_STAMP)
        I('v_mov_b32 v2, 0')
        I('s_mov_b64 exec, 1')
        for i in range(total):
            I('v_mov_b32 v0, s%d' % (S_ST + 2 * i)); I('v_mov_b32 v1, s%d' % (S_ST + 2 * i + 1))
            I('buffer_store_dwordx2 v[0:1], v2, %s, s8 offen offset:%d' % (sr(S_WS, 4), 8 * i))
        I('s_mov_b64 exec, -1')
    def srd(self, d, base, nbytes):
        I = self.I
        I('s_mov_b32 s%d, s%d' % (d, base)); I('s_and_b32 s%d, s%d, 0xffff' % (d + 1, base + 1))
        I('s_mov_b32 s%d, %d' % (d + 2, nbytes)); I('s_mov_b32 s%d, 0x20000' % (d + 3))

    def prologue(self):
        I = self.I
        I('s_cmp_ge_u32 s2, 256'); I('s_cbranch_scc1 L_end')
        I('s_load_dwordx16 s[16:31], s[0:1], 0'); I('s_load_dwordx4 s[32:35], s[0:1], 64')
        if 'anti' in EXP:
            I('s_lshr_b32 s8, s2, 5'); I('s_and_b32 s9, s2, 31'); I('s_lshl_b32 s9, s9, 3'); I('s_or_b32 s2, s8, s9')
        I('s_getpc_b64 s[8:9]')
        self.g.label('L_pc')
        I('v_cmp_le_u32 vcc, 448, v0'); I('s_cbranch_vccz L_nopf')
        I('s_bfe_u32 s10, s2, 0x30003'); I('s_lshl_b32 s10, s10, 13')
        I('v_and_b32 v1, 63, v0'); I('v_lshlrev_b32 v1, 7, v1'); I('v_add_u32 v1, s10, v1')
        I('v_min_u32 v1, L_end-L_pc, v1')
        self.U('global_load_dword a80, v1, s[8:9]')
        self.g.label('L_nopf')
        if self.use_stamps:
            for i in range(14): I('s_mov_b64 %s, 0' % sr(S_ST + 2 * i, 2))
        self.stamp('rt0', True); self.stamp('t0')
        if 'dbgt' in EXP: I('s_memrealtime s[70:71]'); I('s_memtime s[72:73]')
        I('v_lshrrev_b32 v1, 6, v0'); I('v_and_b32 v0, 63, v0')
        I('v_readfirstlane_b32 s%d, v1' % S_WAVE)
        I('v_mov_b32 v%d, v0' % VLANE); I('v_lshlrev_b32 v%d, 4, v0' % VL16)
        I('s_and_b32 s8, s2, 7'); I('s_lshr_b32 s9, s2, 3')
        I('s_and_b32 s10, s8, 1'); I('s_lshl_b32 s10, s10, 3'); I('s_and_b32 s11, s9, 7'); I('s_add_u32 s%d, s10, s11' % S_RB)
        I('s_lshr_b32 s8, s8, 1'); I('s_lshr_b32 s10, s9, 3')
        I('s_lshl_b32 s11, s8, 2'); I('s_add_u32 s12, s11, s10')
        I('s_mov_b32 s%d, 0' % S_TYPE); I('s_lshl_b32 s%d, s8, 1' % S_IDX); I('s_add_u32 s%d, s%d, s10' % (S_IDX, S_IDX))
        I('s_cmp_lt_u32 s10, 2'); I('s_cbranch_scc1 L_role')
        I('s_mov_b32 s%d, 1' % S_TYPE); I('s_lshr_b32 s%d, 0x4210, s11' % S_IDX); I('s_and_b32 s%d, s%d, 15' % (S_IDX, S_IDX))
        I('s_cmp_eq_u32 s10, 2'); I('s_cbranch_scc1 L_role')
        I('s_and_b32 s13, s8, 1'); I('s_lshl_b32 s%d, s13, 1' % S_IDX); I('s_add_u32 s%d, s%d, 3' % (S_IDX, S_IDX))
        I('s_bfe_u32 s11, s9, 0x10002'); I('s_lshr_b32 s8, s8, 1'); I('s_cmp_lg_u32 s11, s8'); I('s_cbranch_scc1 L_role')
        I('s_mov_b32 s%d, 2' % S_TYPE); I('s_mov_b32 s%d, s13' % S_IDX)
        self.g.label('L_role')
        I('s_lshl_b32 s8, s%d, 4' % S_RB); I('s_add_u32 s8, s8, s12'); I('s_lshl_b32 s8, s8, 3'); I('s_add_u32 s11, s8, s%d' % S_WAVE)
        I('s_mov_b32 s%d, -1' % S_EX56); I('s_mov_b32 s%d, 0x00ffffff' % (S_EX56 + 1))
        I('s_and_b32 s%d, s%d, 3' % (S_RT, S_WAVE)); I('s_lshr_b32 s%d, s%d, 2' % (S_CH, S_WAVE))
        I('s_mov_b32 s%d, 0xffff0000' % S_MASK)
        I('v_lshrrev_b32 v2, 3, v0'); I('v_mul_u32_u24 v2, 896, v2')
        I('v_lshrrev_b32 v3, 4, v0'); I('v_and_b32 v4, 7, v0'); I('v_xor_b32 v4, v4, v3')
        I('v_lshl_add_u32 v%d, v4, 4, v2' % DX)
        I('v_xor_b32 v4, 4, v4'); I('v_lshl_add_u32 v%d, v4, 4, v2' % (DX + 1)); I('v_add_u32 v%d, %d, v%d' % (DX + 1, 8 * 896 - 1024, DX + 1))
        I('s_lshl_b32 s8, s%d, 3' % S_RB); I('s_add_u32 s8, s8, s%d' % S_WAVE); I('s_mul_i32 s%d, s8, %d' % (S_XS, 16 * 896))
        I('v_cmp_lt_u32 vcc, 27, v0'); I('v_subrev_u32 v7, 28, v0'); I('v_cndmask_b32 v7, v0, v7, vcc'); I('v_cndmask_b32 v6, 0, 1, vcc')
        I('v_cmp_gt_u32 vcc, 56, v0'); I('v_mov_b32 v5, 0x7fffffff'); I('v_cndmask_b32 v5, v5, v%d, vcc' % VL16)
        I('s_waitcnt lgkmcnt(0)')
        if 'start' in EXP: self.stamp('karg')
        self.srd(S_X, 16, 2048 * 896)
        self.srd(S_WS, 34, L.WS_BYTES); self.srd(S_DBG, 32, 256)
        I('s_mov_b32 s%d, s11' % S_ROW)
        I('s_lshl_b32 s%d, s%d, 11' % (S_MX, S_WAVE))
        I('s_mul_i32 s%d, s%d, %d' % (S_MW, S_WAVE, 8 * 448)); I('s_add_u32 s%d, s%d, %d' % (S_MW, S_MW, WPART))

    def start_stream(self, gpitch):
        I = self.I
        for i in range(1, 4): I('v_add_u32 v%d, %d, v%d' % (DW + i, i * (2 * gpitch - 896), DW))
        I('s_mul_i32 s8, s%d, %d' % (S_WAVE, 8 * gpitch)); I('s_add_u32 s%d, s%d, s8' % (S_WSO, S_WSO))
        d = {}
        if 'start' in EXP: self.stamp('pre_s0')
        grps, d[0] = self.stage_dma(0, gpitch)
        for gp in grps: self.g.extend(gp)
        I('s_mul_i32 s8, s%d, 896' % S_ROW)
        I('buffer_load_dwordx4 %s, v5, %s, s8 offen' % (vr(XF, 4), sr(S_X, 4)))
        self.s0pos = len(self.g.cur)
        lab = 'L_nonon' + self.tagbase
        I('s_or_b32 s8, s2, s%d' % S_WAVE); I('s_cmp_lg_u32 s8, 0'); I('s_cbranch_scc1 %s' % lab)
        self.U('s_memrealtime s[8:9]'); self.U('s_waitcnt lgkmcnt(0)'); I('s_or_b32 s8, s8, 1'); I('v_mov_b32 v8, s8'); I('v_mov_b32 v9, 0')
        I('s_mov_b64 exec, 1'); self.U('buffer_store_dword v8, v9, %s, 0 offen sc1' % sr(S_DBG, 4)); I('s_mov_b64 exec, -1')
        self.g.label(lab)
        if 'start' in EXP: self.stamp('s0iss')
        return d
    def mall_addr(self):
        I = self.I
        segs = [(16, 7, 2, 5, 2048 * 896), (18, 4, 128 * 21, 4, 448 * 2688), (26, 5, 128 * 28, 5, 448 * 3584), (28, 7, 0, 7, 1792 * 896), (22, 2, 0, 2, 448 * 896)]
        I('s_lshl_b32 s8, s2, 3'); I('s_add_u32 s8, s8, s%d' % S_WAVE)
        lo = 0
        for i, (sb, mul, first, n, size) in enumerate(segs):
            I('s_mul_i32 s9, s8, %d' % mul); I('s_add_i32 s9, s9, %d' % (first - lo))
            I('v_add_u32 v10, s9, v0'); I('v_lshlrev_b32 v10, 7, v10'); I('v_min_u32 v10, %d, v10' % (size - 4))
            if i == 0:
                I('v_mov_b32 v11, v10'); I('v_mov_b32 v8, s%d' % sb); I('v_mov_b32 v9, s%d' % (sb + 1))
            else:
                I('v_cmp_le_u32 vcc, %d, v0' % lo); I('v_mov_b32 v12, s%d' % sb); I('v_mov_b32 v13, s%d' % (sb + 1))
                I('v_cndmask_b32 v11, v11, v10, vcc'); I('v_cndmask_b32 v8, v8, v12, vcc'); I('v_cndmask_b32 v9, v9, v13, vcc')
            lo += n
        I('v_add_co_u32 v%d, vcc, v8, v11' % PFA); I('v_addc_co_u32 v%d, vcc, 0, v9, vcc' % (PFA + 1))
    def mall_issue(self, part):
        if 'nomall' in EXP: return []
        I = self.I
        with self.g.capture() as a:
            I('s_mov_b64 exec, %d' % ([0x3fff, 0x7fc000][part]))
            I('global_load_dword a%d, %s, off' % (80 + part, vr(PFA, 2)))
            I('s_mov_b64 exec, -1')
        return [a]
    def pre_loop(self):
        self.mall_addr()
        if 't0late' not in EXP:
            for gp in self.mall_issue(0): self.g.extend(gp)
        if 'start' in EXP: self.stamp('setup')
        self.row_stats()
    def chunks(self, fn, n=10):
        with self.g.capture() as body:
            fn()
        out = []; cur = []
        for i, x in enumerate(body):
            cur.append(x)
            nxt = body[i + 1] if i + 1 < len(body) else None
            safe = nxt is not None and not (nxt.op.startswith(('s_cselect', 's_cbranch', 's_addc', 's_subb', 'v_cndmask', 'v_addc')) or nxt.kind in ('dma', 'label')) \
                and not x.op.startswith(('s_cmp', 'v_cmp')) and 'm0' not in x.dst
            if len(cur) >= n and safe: out.append(cur); cur = []
        if cur: out.append(cur)
        return out

    def late_srds(self):
        I = self.I
        self.srd(S_PHI, 20, 16 * 28 * 28 * 2); self.srd(S_WO, 22, 448 * 896); self.srd(S_W2, 28, 1792 * 896)
        self.srd(S_OUT, 30, 2048 * 896)
        I('s_mov_b32 s%d, %s' % (S_L2E, f32(L.LOG2E))); I('s_mov_b32 s%d, %s' % (S_L2E + 1, f32(L.LOG2E)))
        I('s_mov_b32 s%d, 0' % S_HIM); I('s_mov_b32 s%d, -1' % (S_HIM + 1))
        I('s_mov_b32 s31, 0')

    def late_group(self, p2, extra=None):
        with self.g.capture() as a:
            self.late_srds()
            if extra: extra()
        self.p2flag = p2
        return a
    def p2_setup(self):
        I = self.I; T = TMP + 8
        I('s_lshr_b32 s9, s2, 3'); I('s_and_b32 s8, s9, 3'); I('s_add_u32 s8, s8, 24'); I('s_cmp_lt_u32 s9, 24'); I('s_cselect_b32 s9, s9, s8')
        I('s_mul_i32 s8, s9, 37'); I('s_lshr_b32 s8, s8, 8'); I('s_mul_i32 s10, s8, 7'); I('s_sub_u32 s%d, s9, s10' % S_CG)
        I('s_and_b32 s10, s2, 7'); I('s_lshl_b32 s10, s10, 2'); I('s_add_u32 s%d, s10, s8' % S_RG)
        I('s_mul_i32 s%d, s%d, %d' % (S_BSO, S_WAVE, 224 * 896)); I('s_lshl_b32 s8, s%d, 7' % S_CG); I('s_add_u32 s%d, s%d, s8' % (S_BSO, S_BSO))
        I('s_lshl_b32 s%d, s%d, 12' % (S_STA, S_WAVE)); I('s_add_u32 s%d, s%d, %d' % (S_STA, S_STA, L_STA))
        I('v_lshrrev_b32 v%d, 3, v140' % T); I('v_mul_u32_u24 v%d, 896, v%d' % (T, T))
        I('v_lshrrev_b32 v%d, 2, v140' % (T + 1)); I('v_and_b32 v%d, 4, v%d' % (T + 1, T + 1)); I('v_and_b32 v%d, 7, v140' % (T + 2))
        I('v_xor_b32 v%d, v%d, v%d' % (T + 1, T + 1, T + 2)); I('v_lshl_add_u32 v%d, v%d, 4, v%d' % (DB, T + 1, T))
        I('v_lshrrev_b32 v%d, 5, v140' % T); I('v_lshlrev_b32 v%d, 2, v%d' % (T, T)); I('v_bfe_u32 v%d, v140, 2, 2' % (T + 1)); I('v_add_u32 v%d, v%d, v%d' % (T, T, T + 1))
        I('v_lshlrev_b32 v%d, 7, v%d' % (T, T)); I('v_add_u32 v%d, s%d, v%d' % (T, S_STA, T))
        I('v_and_b32 v%d, 3, v140' % (T + 1)); I('v_lshlrev_b32 v%d, 3, v%d' % (T + 1, T + 1))
        I('v_and_b32 v%d, 16, v140' % (T + 2)); I('v_lshl_add_u32 v%d, v%d, 1, v%d' % (T + 1, T + 2, T + 1))
        I('v_and_b32 v%d, 8, v140' % (T + 2)); I('v_lshlrev_b32 v%d, 3, v%d' % (T + 2, T + 2)); I('v_xor_b32 v%d, v%d, v%d' % (T + 1, T + 1, T + 2))
        I('v_add_u32 v%d, v%d, v%d' % (BT, T, T + 1))
        I('v_xor_b32 v%d, 64, v%d' % (T + 1, T + 1)); I('v_add_u32 v%d, v%d, v%d' % (BT + 1, T, T + 1))

    def slot4_setup(self):
        I = self.I
        I('s_lshl_b32 s%d, s%d, 11' % (S_ST4, S_WAVE)); I('s_add_u32 s%d, s%d, %d' % (S_ST4, S_ST4, L_SHX)); I('s_sub_u32 s8, s%d, s%d' % (S_ST4, S_STA))
        for b in range(2): I('v_add_u32 v%d, s8, v%d' % (BT2 + b, BT + b))
    def wo_dma(self):
        g = self.g; I = self.I; grps = []
        with g.capture() as a:
            I('s_mul_i32 s23, s%d, %d' % (S_WAVE, 56 * 896)); I('s_lshl_b32 s24, s%d, 7' % S_CG); I('s_add_u32 s23, s23, s24'); I('s_mul_i32 s24, s%d, %d' % (S_WAVE, 56 * 128))
        for i in range(7):
            with g.capture() as b:
                I('s_add_u32 m0, s24, %d' % (L_WO + 1024 * i)); I('s_add_u32 s8, s23, %d' % (8 * 896 * i))
                I('buffer_load_dwordx4 v%d, %s, s8 offen lds' % (DB, sr(S_WO, 4)))
            grps.append((a if i == 0 else []) + b)
        return grps
    SLOTS = [(0, BT), (2048, BT), (32768, BT), (34816, BT), (None, BT2)]
    def b_dma(self, k, needs=()):
        g = self.g; I = self.I; so = self.SLOTS[k % self.nslot][0]; grps = []
        for h in range(2):
            with g.capture() as a:
                I('s_add_u32 m0, s%d, %d' % (S_STA, so + 1024 * h) if so is not None else 's_add_u32 m0, s%d, %d' % (S_ST4, 1024 * h))
                I('s_add_u32 s8, s%d, %d' % (S_BSO, (16 * KORD[k] + 8 * h) * 896))
                I('buffer_load_dwordx4 v%d, %s, s8 offen lds' % (DB, sr(S_W2, 4)), needs=needs)
            grps.append(a)
        self.bdma[k] = [x for gp in grps for x in gp if x.kind == 'dma']
        return grps
    def b_read(self, k):
        so, reg = self.SLOTS[k % self.nslot]; out = []
        if so is None: so = 0
        for b in range(2):
            for h in range(2):
                out.append(Instr('ds_read_b64_tr_b16 %s, v%d offset:%d' % (ar(8 * k + 4 * b + 2 * h, 2), reg + b, so + 1024 * h), needs=self.bdma[k]))
        self.bread[k] = out
        return out
    def b_tasks(self, k0, k1):
        t = [self.b_read(k) for k in range(k0, k1)]
        for k in range(k0, k1):
            if k + self.nslot < 14: t += self.b_dma(k + self.nslot, needs=self.bread[k])
        return t

    def stage_dma(self, st, gpitch):
        g = self.g; I = self.I; base = (st % 3) * STG
        grps = []
        for i in range(4):
            with g.capture() as a:
                if i == 0: I('s_add_u32 m0, s%d, %d' % (S_MW, base))
                else: I('s_add_u32 m0, s%d, %d' % (S_MW, base))
                I('s_mov_b64 exec, %s' % sr(S_EX56, 2))
                I('buffer_load_dwordx4 v%d, %s, s%d offen offset:%d lds' % (DW + i, sr(S_W, 4), S_WSO, 896 * i))
                I('s_mov_b64 exec, -1')
                if i == 3: I('s_add_u32 s%d, s%d, %d' % (S_WSO, S_WSO, 64 * gpitch))
            grps.append(a)
        for i in range(2):
            with g.capture() as a:
                I('s_add_u32 m0, s%d, %d' % (S_MX, base)); I('s_nop 0')
                I('buffer_load_dwordx4 v%d, %s, s%d offen offset:%d lds' % (DX + i, sr(S_X, 4), S_XS, 1024 * i))
                if i == 1: I('s_add_u32 s%d, s%d, 128' % (S_XS, S_XS))
            grps.append(a)
        return grps, [x for gp in grps for x in gp if x.kind == 'dma']

    def read_addrs(self, clamp, shared=False):
        I = self.I; T = TMP
        I('v_and_b32 v%d, 31, v0' % T); I('v_lshlrev_b32 v%d, 7, v%d' % (T, T)); I('s_lshl_b32 s8, s%d, 12' % S_RT); I('v_add_u32 v%d, s8, v%d' % (T, T))
        I('v_lshrrev_b32 v%d, 5, v0' % (T + 1)); I('v_bfe_u32 v%d, v0, 1, 3' % (T + 2)); I('v_xor_b32 v%d, v%d, v%d' % (T + 2, T + 2, T + 1))
        I('v_lshlrev_b32 v%d, 3, v%d' % (T + 3, T + 1)); I('v_bfe_u32 v%d, v0, 2, 2' % (T + 4)); I('v_add_u32 v%d, v%d, v%d' % (T + 3, T + 3, T + 4))
        I('v_mul_u32_u24 v%d, 448, v%d' % (T + 3, T + 3))
        I('v_bfe_u32 v%d, v0, 4, 1' % (T + 4)); I('v_and_b32 v%d, 3, v0' % (T + 5)); I('v_lshl_add_u32 v%d, v%d, 2, v%d' % (T + 4, T + 4, T + 5))
        if shared:
            I('s_lshl_b32 s8, s%d, 2' % S_CH); I('v_xor_b32 v%d, s8, v%d' % (T + 6, T + 4)); I('v_lshl_add_u32 v%d, v%d, 3, v%d' % (T + 6, T + 6, T + 3))
            I('v_add_u32 v%d, %d, v%d' % (T + 6, WPART + 384, T + 6))
        if clamp: I('v_min_u32 v%d, 6, v%d' % (T + 4, T + 4))
        I('v_lshl_add_u32 v%d, v%d, 3, v%d' % (T + 3, T + 4, T + 3))
        I('v_add_u32 v%d, s10, v%d' % (T + 3, T + 3))
        for i in range(4):
            I('s_add_u32 s8, s%d, s%d' % (S_RT, S_CH)); I('s_add_u32 s8, s8, %d' % i); I('s_and_b32 s8, s8, 3')
            I('s_lshl_b32 s9, s8, 1'); I('v_xor_b32 v%d, s9, v%d' % (T + 5, T + 2)); I('v_lshl_add_u32 v%d, v%d, 4, v%d' % (AX + i, T + 5, T))
            I('s_mul_i32 s9, s8, 7168'); I('v_add_u32 v%d, s9, v%d' % (AW + i, T + 3))
            if shared and i in (0, 2): I('v_add_u32 v%d, s9, v%d' % (AS + i // 2, T + 6))

    def row_stats(self):
        I = self.I; S, Q = ST, ST + 1
        I('s_mov_b32 s8, 0x3f803f80')
        I('v_dot2_f32_bf16 v%d, v%d, s8, 0' % (S, XF)); I('v_dot2_f32_bf16 v%d, v%d, v%d, 0' % (Q, XF, XF))
        for q in range(1, 4):
            I('v_dot2_f32_bf16 v%d, v%d, s8, v%d' % (S, XF + q, S)); I('v_dot2_f32_bf16 v%d, v%d, v%d, v%d' % (Q, XF + q, XF + q, Q))
        for m in ('row_shr:1', 'row_shr:2', 'row_shr:4', 'row_shr:8'):
            for r in (S, Q): I('v_add_f32_dpp v%d, v%d, v%d %s row_mask:0xf bank_mask:0xf bound_ctrl:0' % (r, r, r, m))
        for m, rm in (('row_bcast:15', '0xa'), ('row_bcast:31', '0xc')):
            for r in (S, Q): I('v_add_f32_dpp v%d, v%d, v%d %s row_mask:%s bank_mask:0xf' % (r, r, r, m, rm))
        I('v_mul_f32 v%d, %s, v%d' % (S, f32(1.0 / 448), S)); I('v_mul_f32 v%d, %s, v%d' % (Q, f32(1.0 / 448), Q))
        I('v_fma_f32 v%d, -v%d, v%d, v%d' % (Q, S, S, Q)); I('v_max_f32 v%d, 0, v%d' % (Q, Q))
        def rbf(r):
            I('v_cvt_pk_bf16_f32 v%d, v%d, v%d' % (r, r, r)); I('v_lshlrev_b32 v%d, 16, v%d' % (r, r))
        rbf(S); rbf(Q)
        I('v_add_f32 v%d, %s, v%d' % (Q, f32(1e-5), Q)); rbf(Q)
        I('v_sqrt_f32 v%d, v%d' % (Q, Q)); rbf(Q)
        I('v_rcp_f32 v%d, v%d' % (Q, Q))
        I('v_sub_f32 v%d, 0, v%d' % (S, S))

    def nonce_issue(self):
        self.I('v_mov_b32 v%d, 0' % (ST + 3))
        return self.I('buffer_load_dword v%d, v%d, %s, 0 offen sc1' % (ST + 2, ST + 3, sr(S_DBG, 4)))
    def nonce_get_publish(self, tag):
        I = self.I; U = self.U
        I('v_readfirstlane_b32 s%d, v%d' % (S_NONCE, ST + 2))
        I('s_cmp_lg_u32 s%d, 0' % S_NONCE); I('s_cbranch_scc1 L_gotn%s' % tag)
        self.g.label('L_spinn%s' % tag)
        U('buffer_load_dword v%d, v%d, %s, 0 offen sc1' % (ST + 2, ST + 3, sr(S_DBG, 4)))
        U('s_waitcnt vmcnt(0)')
        I('v_readfirstlane_b32 s%d, v%d' % (S_NONCE, ST + 2)); I('s_nop 1')
        I('s_cmp_lg_u32 s%d, 0' % S_NONCE); I('s_cbranch_scc1 L_gotn%s' % tag)
        self.spin_tail('L_spinn%s' % tag)
        self.g.label('L_gotn%s' % tag)
        I('v_mov_b32 v%d, s%d' % (ST + 2, S_NONCE)); I('v_mov_b32 v%d, s%d' % (ST + 3, S_NONCE))
        I('s_lshl_b32 s8, s%d, 4' % S_ROW); I('s_add_u32 s8, s8, %d' % L.WS_RS); I('v_mov_b32 v%d, 0' % (TMP + 8))
        I('s_mov_b32 exec_lo, 0'); I('s_mov_b32 exec_hi, 0x80000000')
        I('buffer_store_dwordx4 %s, v%d, %s, s8 offen sc1' % (vr(ST, 4), TMP + 8, sr(S_WS, 4)))
        I('s_mov_b64 exec, -1')
    def rs_issue(self):
        I = self.I
        I('s_lshl_b32 s8, s%d, 2' % S_RB); I('s_add_u32 s8, s8, s%d' % S_RT); I('s_lshl_b32 s8, s8, 9'); I('s_add_u32 s%d, s8, %d' % (S_ROW, L.WS_RS))
        I('v_and_b32 v%d, 31, v%d' % (DX, VLANE)); I('v_lshlrev_b32 v%d, 4, v%d' % (DX, DX))
        return I('buffer_load_dwordx4 %s, v%d, %s, s%d offen sc1' % (vr(ST, 4), DX, sr(S_WS, 4), S_ROW))
    def rs_get(self, tag, scale):
        I = self.I; U = self.U
        I('v_cmp_ne_u32 vcc, s%d, v%d' % (S_NONCE, ST + 2)); I('s_nop 1'); I('s_cbranch_vccz L_gotr%s' % tag)
        self.g.label('L_spinr%s' % tag)
        U('buffer_load_dwordx4 %s, v%d, %s, s%d offen sc1' % (vr(ST, 4), DX, sr(S_WS, 4), S_ROW))
        U('s_waitcnt vmcnt(0)')
        I('v_cmp_ne_u32 vcc, s%d, v%d' % (S_NONCE, ST + 2)); I('s_nop 1'); I('s_cbranch_vccz L_gotr%s' % tag)
        self.spin_tail('L_spinr%s' % tag)
        self.g.label('L_gotr%s' % tag)
        for q in range(4): I('v_cvt_pk_bf16_f32 v%d, v%d, v%d' % (XF + q, ST, ST))
        I('v_mul_f32 v%d, %s, v%d' % (ST, f32(scale), ST + 1))
    def publish(self, soff_s, tmp, needs=()):
        I = self.I
        I('v_mov_b32 v%d, s%d' % (tmp, S_NONCE)); I('v_mov_b32 v%d, 0' % (tmp + 1)); I('s_mov_b64 exec, 1')
        x = I('buffer_store_dword v%d, v%d, %s, s%d offen sc1' % (tmp, tmp + 1, sr(S_WS, 4), soff_s), needs=needs)
        I('s_mov_b64 exec, -1')
        return x
    def poll(self, tag, voff, soff_s, tmp):
        I = self.I; U = self.U
        self.g.label('L_poll%s' % tag)
        U('buffer_load_dword v%d, v%d, %s, s%d offen sc1' % (tmp, voff, sr(S_WS, 4), soff_s))
        I('s_waitcnt vmcnt(0)')
        I('v_cmp_ne_u32 vcc, s%d, v%d' % (S_NONCE, tmp)); I('s_nop 1'); I('s_cbranch_vccz L_polld%s' % tag)
        self.spin_tail('L_poll%s' % tag)
        self.g.label('L_polld%s' % tag)
    def poll_issue(self, voff, soff_s, tmp):
        return self.I('buffer_load_dword v%d, v%d, %s, s%d offen sc1' % (tmp, voff, sr(S_WS, 4), soff_s))
    def poll_check(self, tag, voff, soff_s, tmp):
        I = self.I; U = self.U
        if 'nopoll' in EXP and tag in 'AB': return
        I('v_cmp_ne_u32 vcc, s%d, v%d' % (S_NONCE, tmp)); I('s_nop 1'); I('s_cbranch_vccz L_polld%s' % tag)
        self.g.label('L_poll%s' % tag)
        U('buffer_load_dword v%d, v%d, %s, s%d offen sc1' % (tmp, voff, sr(S_WS, 4), soff_s)); U('s_waitcnt vmcnt(0)')
        I('v_cmp_ne_u32 vcc, s%d, v%d' % (S_NONCE, tmp)); I('s_nop 1'); I('s_cbranch_vccz L_polld%s' % tag)
        self.spin_tail('L_poll%s' % tag)
        self.g.label('L_polld%s' % tag)
    def spin_tail(self, lab, sl=None):
        I = self.I
        I('s_sleep %d' % (sl or SLEEP)); I('s_add_u32 s31, s31, 1'); I('s_cmp_lt_u32 s31, 0x8000'); I('s_cbranch_scc1 %s' % lab)

    def l2pf(self, st):
        if 'l2pf' not in EXP: return []
        I = self.I; lab = 'L_pf%s%d' % (self.tagbase, st)
        with self.g.capture() as a:
            I('s_lshr_b32 s8, s%d, 1' % S_WAVE); I('s_cmp_lg_u32 s8, %d' % (st - PF0)); I('s_cbranch_scc1 %s' % lab)
            I('s_lshr_b32 s8, s2, 3'); I('s_lshl_b32 s8, s8, 3'); I('s_add_u32 s8, s8, s%d' % S_WAVE); I('s_lshl_b32 s8, s8, 13')
            I('v_lshlrev_b32 v%d, 7, v%d' % (TMP + 8, VLANE))
            self.U('buffer_load_dword a80, v%d, %s, s8 offen' % (TMP + 8, sr(S_W2, 4)))
            I('s_sub_u32 s8, s8, %d' % (196 * 8192)); I('s_cbranch_scc1 %s' % lab)
            self.U('buffer_load_dword a80, v%d, %s, s8 offen' % (TMP + 8, sr(S_WO, 4)))
            self.g.label(lab)
        return [a]

    def code_pf(self, tg, tmp, dst):
        if 'nocpf' in EXP: return []
        I = self.I
        with self.g.capture() as a:
            I('s_getpc_b64 s[8:9]'); self.g.label('L_cpf%s' % tg)
            I('s_sub_u32 s8, s8, L_cpf%s-L_pc' % tg); I('s_subb_u32 s9, s9, 0')
            I('s_bfe_u32 s10, s2, 0x20003'); I('s_lshl_b32 s10, s10, 3'); I('s_add_u32 s10, s10, s%d' % S_WAVE); I('s_lshl_b32 s10, s10, 11')
            I('v_lshlrev_b32 v%d, 7, v%d' % (tmp, VLANE)); I('v_add_u32 v%d, s10, v%d' % (tmp, tmp)); I('v_min_u32 v%d, L_end-L_pc, v%d' % (tmp, tmp))
            I('s_mov_b64 exec, 0xffff')
            I('global_load_dword %s, v%d, s[8:9]' % (dst, tmp))
            I('s_mov_b64 exec, -1')
        return [a]

    def gemm(self, tiles, gpitch, dms, tag, hooks):
        g = self.g; I = self.I
        dmas = dict(dms)
        for i in range(4): I('v_mov_b32 v%d, 0' % (CS + i))
        NF, LOOK = 8, 4
        seq = [(ks, cc) for ks in range(28) for cc in range(len(tiles[ks & 3]['t']))]
        def wread(n):
            ks, cc = seq[n]; a = WF + 4 * (n % NF); c, areg, off = tiles[ks & 3]['t'][cc]
            return [Instr('ds_read_b64_tr_b16 %s, v%d offset:%d' % (vr(a + 2 * h, 2), areg, off + h * 4 * 448)) for h in range(2)]
        def xread(ks):
            return [Instr('ds_read_b128 %s, v%d' % (vr(XF + 4 * (ks % 2), 4), AX + (ks & 3)))]
        aregs = sorted(set(list(range(AX, AX + 4)) + [t[1] for p in tiles for t in p['t']]))
        def adv(st):
            d = STG if st % 3 else -2 * STG
            return [Instr('v_add_u32 v%d, %d, v%d' % (r, d, r)) if d > 0 else Instr('v_subrev_u32 v%d, %d, v%d' % (r, -d, r)) for r in aregs]
        tc = [0]
        def cs_ops(r, c):
            t = TMP + 2 * (tc[0] % 4); tc[0] += 1
            return [Instr('v_lshlrev_b32 v%d, 16, v%d' % (t, r)), Instr('v_and_b32 v%d, s%d, v%d' % (t + 1, S_MASK, r)),
                    Instr('v_add_f32 v%d, v%d, v%d' % (CS + c, CS + c, t)), Instr('v_add_f32 v%d, v%d, v%d' % (CS + c, CS + c, t + 1))]
        if 'start' in EXP:
            self.stamp('rowst'); I('s_nop 0', needs=dmas[0]); self.stamp('s0arr'); I('s_waitcnt lgkmcnt(0)')
        BAR0 = len(g.cur)
        I('s_barrier', needs=dmas[0])
        self.stamp('bar0')
        g.extend(xread(0))
        for n in range(LOOK): g.extend(wread(n))
        g1, dmas[1] = self.stage_dma(1, gpitch)
        NPRE = int(os.environ.get('NPRE', '2'))
        pend, dmas[2] = self.stage_dma(2, gpitch)
        pend = g1[NPRE:] + (self.mall_issue(0) if 't0late' in EXP else []) + self.early + pend
        if 'sbar' in EXP: g.cur[self.s0pos:self.s0pos] = [Instr('s_barrier')] + [x for gp in g1[:NPRE] for x in gp]
        else: g.cur[BAR0:BAR0] = [x for gp in g1[:NPRE] for x in gp]
        started = set(); xr = 0; cfill = []
        for n, (ks, cc) in enumerate(seq):
            p = tiles[ks & 3]; c = p['t'][cc][0]; a = WF + 4 * (n % NF); xf = XF + 4 * (ks % 2)
            I('v_mfma_f32_32x32x16_bf16 %s, %s, %s, %s' % (vr(ACC + 16 * c, 16), vr(a, 4), vr(xf, 4), vr(ACC + 16 * c, 16) if c in started else '0'))
            started.add(c)
            nn = n + LOOK
            if nn < len(seq):
                ks2, cc2 = seq[nn]
                if cc2 == 0 and ks2 & 3 == 0:
                    st2 = ks2 >> 2
                    assert xr == ks2 - 1
                    g.extend(adv(st2))
                    if st2 == NST: self.nonce_get_publish(tag)
                    if st2 == 6: self.rs_issue()
                    if st2 in hooks.get('pre', {}): hooks['pre'][st2]()
                    if 'stg' in EXP and st2 in (2, 4): self.stamp('preB%d' % st2)
                    I('s_waitcnt lgkmcnt(0)')
                    if 'stg' in EXP and st2 in (2, 4): I('s_nop 0', needs=dmas[st2]); self.stamp('vmB%d' % st2); I('s_waitcnt lgkmcnt(0)')
                    I('s_barrier', needs=dmas[st2])
                    if 'stg' in EXP: self.stamp('B%d' % st2)
                    if st2 == NST - 1:
                        with g.capture() as grp_: self.nonce_issue()
                        pend += [grp_]
                    if st2 == MST: pend += self.mall_issue(1)
                    if st2 + 2 < 7:
                        newg, dmas[st2 + 2] = self.stage_dma(st2 + 2, gpitch); pend += newg
                    if st2 == 3 and self.p2flag:
                        with g.capture() as grp_: self.p2_setup()
                        pend += [grp_]
                    if st2 == 5 and self.p2flag: pend += self.p2_pre()
                    if PF0 <= st2 < PF0 + 4: pend += self.l2pf(st2)
                    if st2 == 4: pend += self.code_pf(tag, TMP + 8, 'a82')
                    if st2 in hooks.get('post', {}): pend += hooks['post'][st2]()
                g.extend(wread(nn))
            if xr == ks and ks + 1 < 28 and (nn >= len(seq) or seq[min(nn, len(seq) - 1)][0] >= ks + 1):
                g.extend(xread(ks + 1)); xr = ks + 1
            if cc == 0 and p['cs']: cfill = [cs_ops(a + q, c) for q in range(4)]
            if cfill:
                g.extend(cfill.pop(0))
                if cc == len(p['t']) - 1:
                    for x in cfill: g.extend(x)
                    cfill = []
            if pend and (n % 2 == 0 or len(pend) > 5): g.extend(pend.pop(0))
        for x in pend: g.extend(x)
        self.stamp('loopend')

    def finish_stats(self, tl, scale, tag, before_b1=None, after_b1=None):
        I = self.I; T = TMP
        I('s_lshl_b32 s9, s%d, 2' % S_RT); I('v_add_u32 v%d, s9, v%d' % (T, VL16))
        bases = {}
        for c, sb, off in tl:
            if sb not in bases:
                bases[sb] = T + 1 + 2 * len(bases)
                I('v_add_u32 v%d, s%d, v%d' % (bases[sb], sb, T)); I('v_add_u32 v%d, s%d, v%d' % (bases[sb] + 1, sb, VL16))
        wr = []
        for c, sb, off in tl:
            t = T + 6 + (c & 1)
            I('v_cvt_pk_bf16_f32 v%d, v%d, v%d' % (t, CS + c, CS + c)); I('v_and_b32 v%d, s%d, v%d' % (t, S_MASK, t))
            I('v_sub_f32 v%d, v%d, v%d' % (t, CS + c, t)); I('v_cvt_pk_bf16_f32 v%d, v%d, v%d' % (CS + c, t, CS + c))
            wr.append(I('ds_write_b32 v%d, v%d offset:%d' % (bases[sb], CS + c, off)))
        if before_b1: wr += before_b1() or []
        self.rs_get(tag, scale)
        I('s_barrier', needs=wr)
        for c, sb, off in tl: I('ds_read_b128 %s, v%d offset:%d' % (vr(WF + 4 * c, 4), bases[sb] + 1, off))
        if after_b1: after_b1()
        for c, sb, off in tl:
            I('v_mfma_f32_32x32x16_bf16 %s, %s, %s, %s' % (vr(ACC + 16 * c, 16), vr(WF + 4 * c, 4), vr(XF, 4), vr(ACC + 16 * c, 16)))
        if 'stg' in EXP: self.stamp = lambda *a, **k: None
        self.stamp('stats')

    def with_bg(self, fn, tasks, every):
        with self.g.capture() as body:
            fn()
        out = []; tasks = list(tasks); cnt = 0
        for x in body:
            out.append(x); cnt += 1
            if tasks and cnt >= every and x.kind in ('valu', 'trans') and not (x.dst & {'vcc'}):
                out += tasks.pop(0); cnt = 0
        for t in tasks: out += t
        self.g.extend(out)

    def ffn(self):
        I = self.I; g = self.g
        self.tagbase = 'f'
        self.srd(S_W, 26, 448 * 3584)
        I('v_mul_u32_u24 v6, 3584, v6'); I('v_lshl_add_u32 v%d, v7, 4, v6' % DW)
        I('s_mul_i32 s%d, s%d, 448' % (S_WSO, S_IDX))
        dms = self.start_stream(3584)
        I('s_mul_i32 s10, s%d, 192' % S_CH); I('s_add_u32 s10, s10, %d' % WPART)
        self.read_addrs(False, shared=True)
        self.pre_loop()
        self.early = [self.late_group(True)]
        own = lambda i, o: [(c, AW + i, 64 * c) for c in o]
        tiles = [dict(t=[(3, AS, 0)] + own(0, [0, 1, 2]), cs=True), dict(t=own(1, [0, 1, 2]), cs=True),
                 dict(t=own(2, [1, 2, 0]) + [(3, AS + 1, 0)], cs=True), dict(t=own(3, [2, 0, 1]), cs=True)]
        self.bdma, self.bread = {}, {}; self.nslot = 5
        self.gemm(tiles, 3584, dms, 'f', self.bhooks())
        I('s_mul_i32 s10, s%d, 3072' % S_CH); I('s_add_u32 s10, s10, %d' % L_CP)
        I('s_lshl_b32 s11, s%d, 10' % S_CH); I('s_add_u32 s11, s11, %d' % (L_CP + 6144))
        self.slot4_setup()
        SH = ACC + 48; X8 = 116
        def before_b1():
            I('s_xor_b32 s8, s%d, 4' % S_WAVE); I('s_lshl_b32 s8, s8, 11'); I('s_add_u32 s8, s8, %d' % L_SHX); I('v_add_u32 v%d, s8, v%d' % (AX, VL16))
            I('s_lshl_b32 s8, s%d, 11' % S_WAVE); I('s_add_u32 s8, s8, %d' % L_SHX); I('v_add_u32 v%d, s8, v%d' % (AX + 1, VL16))
            return [I('ds_write_b128 v%d, %s offset:%d' % (AX, vr(SH + 8 + 4 * q, 4), 1024 * q)) for q in range(2)]
        shr = []
        def after_b1():
            for q in range(2): shr.append(I('ds_read_b128 %s, v%d offset:%d' % (vr(X8 + 4 * q, 4), AX + 1, 1024 * q)))
        self.finish_stats([(0, 10, 0), (1, 10, 1024), (2, 10, 2048), (3, 11, 0)], -L.LOG2E, 'f', before_b1, after_b1)
        I('s_lshl_b32 s8, s%d, 2' % S_RB); I('s_add_u32 s8, s8, s%d' % S_RT); I('s_mul_i32 s9, s8, %d' % (112 * 1024))
        I('s_lshl_b32 s8, s8, 3'); I('s_add_u32 s8, s8, s%d' % S_IDX); I('s_lshl_b32 s8, s8, 1'); I('s_add_u32 s8, s8, s%d' % S_CH)
        I('s_lshl_b32 s8, s8, 7'); I('s_add_u32 s0, s8, %d' % L.WS_FLAG)
        I('s_mul_i32 s10, s%d, %d' % (S_IDX, 14 * 1024)); I('s_add_u32 s9, s9, s10')
        I('s_mul_i32 s10, s%d, 6144' % S_CH); I('s_add_u32 s10, s9, s10')
        I('s_lshl_b32 s11, s%d, 10' % S_CH); I('s_add_u32 s9, s9, s11'); I('s_add_u32 s1, s9, %d' % (12 * 1024))
        stores = []
        def unit(idx):
            c, u = divmod(idx, 2)
            A = ACC + 16 * c + 8 * u; T = [64, 72][idx & 1]; P = [80, 84][idx & 1]
            if 'noprio' not in EXP:
                lab = 'L_fp%d' % idx
                I('s_setprio 0'); I('s_cmp_eq_u32 s%d, %d' % (S_CH, idx & 1)); I('s_cbranch_scc1 %s' % lab); I('s_setprio 1'); self.g.label(lab)
            if c == 3:
                for j in range(0, 8, 2): I('v_pk_add_f32 %s, %s, %s' % (vr(A + j, 2), vr(A + j, 2), vr(X8 + j, 2)))
            for j in range(0, 8, 2): I('v_pk_mul_f32 %s, %s, %s op_sel_hi:[1,0]' % (vr(A + j, 2), vr(A + j, 2), vr(ST, 2)))
            for j in range(8): I('v_exp_f32 v%d, v%d' % (T + j, A + j))
            for j in range(0, 8, 2): I('v_pk_add_f32 %s, %s, 1.0 op_sel_hi:[1,0]' % (vr(T + j, 2), vr(T + j, 2)))
            for j in range(8): I('v_rcp_f32 v%d, v%d' % (T + j, T + j))
            for j in range(0, 8, 2): I('v_pk_mul_f32 %s, %s, %s' % (vr(T + j, 2), vr(T + j, 2), vr(A + j, 2)))
            for j in range(0, 8, 2): I('v_cvt_pk_bf16_f32 v%d, v%d, v%d' % (P + j // 2, T + j, T + j + 1))
            if idx == 4: I('s_add_u32 s10, s10, 4096')
            if c < 3: stores.append(I('buffer_store_dwordx4 %s, v%d, %s, s10 offen offset:%d sc1' % (vr(P, 4), VL16, sr(S_WS, 4), (idx % 4) * 1024)))
            else: stores.append(I('buffer_store_dwordx4 %s, v%d, %s, s1 offen sc1' % (vr(P, 4), VL16, sr(S_WS, 4))))
        self.with_bg(lambda: [unit(i) for i in range(6)], self.b_round1(shr) + ([] if 'wolate' in EXP else self.wo_dma()), int(os.environ.get('FBG', '11')))
        unit(6)
        I('s_setprio 0')
        self.stamp('epi')
        self.p2_enter()
        bt = self.b_tasks(4, 9)
        for t in bt[:5]: g.extend(t)
        self.publish(0, 96, needs=stores)
        self.stamp('pub')
        if 'nofh' not in EXP: I('s_barrier')
        for t in bt[5:11]: g.extend(t)
        pa = self.poll_issue(P2T + 1, S_FA, P2T)
        for t in bt[11:] + (self.wo_dma() if 'wolate' in EXP else []): g.extend(t)
        I('s_waitcnt lgkmcnt(0)'); I('s_nop 0', needs=[pa])
        I('s_branch L_p2')

    def b_round1(self, need4=None):
        t = [sum([self.b_read(k) for k in range(4)], [])]
        if need4 is not None: t += self.b_dma(4, needs=need4)
        for k in range(4): t += self.b_dma(k + 5, needs=self.bread[k])
        return t

    def bhooks(self, extra=None):
        post = {5: lambda: self.b_dma(0) + self.b_dma(1), 6: lambda: self.b_dma(2) + self.b_dma(3)}
        if extra: post.update(extra)
        return dict(post=post)

    def pack_k(self, A, K8):
        I = self.I
        for j in range(8): I('v_cvt_pk_bf16_f32 v%d, v%d, v%d' % (K8 + j, A + 2 * j, A + 2 * j + 1))
        for j in (6, 7): I('v_cndmask_b32 v%d, v%d, 0, %s' % (K8 + j, K8 + j, sr(S_HIM, 2)))
    def half_units(self, As, neg):
        I = self.I; M = 64; n = '-' if neg else ''; nm = ' neg_lo:[1,0,0] neg_hi:[1,0,0]' if neg else ''
        def each(f):
            for i, A in enumerate(As): f(A, M + 6 * i)
        I('v_mov_b32 v%d, 0xff800000' % (TMP + 10))
        each(lambda A, m: (I('v_max3_f32 v%d, %sv%d, %sv%d, %sv%d' % (m, n, A, n, A + 1, n, A + 2)), I('v_max3_f32 v%d, %sv%d, %sv%d, %sv%d' % (m + 1, n, A + 8, n, A + 9, n, A + 10))))
        for j in (3, 5): each(lambda A, m: (I('v_max3_f32 v%d, v%d, %sv%d, %sv%d' % (m, m, n, A + j, n, A + j + 1)), I('v_max3_f32 v%d, v%d, %sv%d, %sv%d' % (m + 1, m + 1, n, A + 8 + j, n, A + 9 + j))))
        each(lambda A, m: I('v_max3_f32 v%d, v%d, %sv%d, %sv%d' % (m + 1, m + 1, n, A + 7, n, A + 15)))
        each(lambda A, m: I('v_max_f32 v%d, v%d, v%d' % (m, m, m + 1)))
        each(lambda A, m: I('v_mov_b32 v%d, v%d' % (m + 1, m)))
        each(lambda A, m: I('v_permlane32_swap_b32 v%d, v%d' % (m, m + 1)))
        each(lambda A, m: I('v_max_f32 v%d, v%d, v%d' % (m, m, m + 1)))
        each(lambda A, m: I('v_mul_f32 v%d, -v%d, v%d' % (m, ST, m)))
        each(lambda A, m: I('v_cndmask_b32 v%d, v%d, v%d, %s' % (m + 1, m, TMP + 10, sr(S_HIM, 2))))
        for j in range(0, 16, 2):
            sel = 'op_sel_hi:[1,0,0]' if j < 12 else 'op_sel:[0,0,1] op_sel_hi:[1,0,1]'
            each(lambda A, m: I('v_pk_fma_f32 %s, %s, %s, %s %s%s' % (vr(A + j, 2), vr(A + j, 2), vr(ST, 2), vr(m, 2), sel, nm)))
        for j in range(16): each(lambda A, m: I('v_exp_f32 v%d, v%d' % (A + j, A + j)))
        each(lambda A, m: (I('v_pk_add_f32 %s, %s, %s' % (vr(m + 2, 2), vr(A, 2), vr(A + 2, 2))), I('v_pk_add_f32 %s, %s, %s' % (vr(m + 4, 2), vr(A + 8, 2), vr(A + 10, 2)))))
        for j in (4, 6): each(lambda A, m: (I('v_pk_add_f32 %s, %s, %s' % (vr(m + 2, 2), vr(m + 2, 2), vr(A + j, 2))), I('v_pk_add_f32 %s, %s, %s' % (vr(m + 4, 2), vr(m + 4, 2), vr(A + 8 + j, 2)))))
        each(lambda A, m: I('v_pk_add_f32 %s, %s, %s' % (vr(m + 2, 2), vr(m + 2, 2), vr(m + 4, 2))))
        each(lambda A, m: I('v_add_f32 v%d, v%d, v%d' % (m, m + 2, m + 3)))
        each(lambda A, m: I('v_mov_b32 v%d, v%d' % (m + 1, m)))
        each(lambda A, m: I('v_permlane32_swap_b32 v%d, v%d' % (m, m + 1)))
        each(lambda A, m: I('v_add_f32 v%d, v%d, v%d' % (m, m, m + 1)))
        each(lambda A, m: I('v_rcp_f32 v%d, v%d' % (m, m)))
        for j in range(0, 16, 2): each(lambda A, m: I('v_pk_mul_f32 %s, %s, %s op_sel_hi:[1,0]' % (vr(A + j, 2), vr(A + j, 2), vr(m, 2))))
        for j in range(8): each(lambda A, m: I('v_cvt_pk_bf16_f32 v%d, v%d, v%d' % (A + j, A + 2 * j, A + 2 * j + 1)))
    def phi_mfma(self, A, K8, WP):
        I = self.I
        I('v_mfma_f32_32x32x16_bf16 %s, %s, %s, 0' % (vr(A, 16), ar(WP, 4), vr(K8, 4)))
        I('v_mfma_f32_32x32x16_bf16 %s, %s, %s, %s' % (vr(A, 16), ar(WP + 4, 4), vr(K8 + 4, 4), vr(A, 16)))
    def softmax_unit(self, A, sreg=None):
        I = self.I
        EP, EN, M = 64, 80, TMP
        mx, nm, t, u = M, M + 1, M + 2, M + 4
        I('v_mov_b32 v%d, 0xff800000' % (M + 10))
        m2, n2 = M + 6, M + 7
        for (a, b, o) in ((mx, nm, 0), (m2, n2, 8)):
            I('v_max3_f32 v%d, v%d, v%d, v%d' % (a, A + o, A + o + 1, A + o + 2)); I('v_max3_f32 v%d, -v%d, -v%d, -v%d' % (b, A + o, A + o + 1, A + o + 2))
        for j in (3, 5):
            for (a, b, o) in ((mx, nm, 0), (m2, n2, 8)):
                I('v_max3_f32 v%d, v%d, v%d, v%d' % (a, a, A + o + j, A + o + j + 1)); I('v_max3_f32 v%d, v%d, -v%d, -v%d' % (b, b, A + o + j, A + o + j + 1))
        I('v_max3_f32 v%d, v%d, v%d, v%d' % (m2, m2, A + 7, A + 15)); I('v_max3_f32 v%d, v%d, -v%d, -v%d' % (n2, n2, A + 7, A + 15))
        I('v_max_f32 v%d, v%d, v%d' % (mx, mx, m2)); I('v_max_f32 v%d, v%d, v%d' % (nm, nm, n2))
        I('v_permlane32_swap_b32 v%d, v%d' % (mx, nm)); I('v_max_f32 v%d, v%d, v%d' % (t, mx, nm))
        I('v_mul_f32 v%d, -v%d, v%d' % (t, ST, t)); I('v_mov_b32 v%d, v%d' % (u, t)); I('v_permlane32_swap_b32 v%d, v%d' % (t, u))
        I('v_cndmask_b32 v%d, v%d, v%d, %s' % (t + 1, t, M + 10, sr(S_HIM, 2))); I('v_cndmask_b32 v%d, v%d, v%d, %s' % (u + 1, u, M + 10, sr(S_HIM, 2)))
        for j in range(0, 16, 2):
            sel = 'op_sel_hi:[1,0,0]' if j < 12 else 'op_sel:[0,0,1] op_sel_hi:[1,0,1]'
            I('v_pk_fma_f32 %s, %s, %s, %s %s' % (vr(EP + j, 2), vr(A + j, 2), vr(ST, 2), vr(t, 2), sel))
            I('v_pk_fma_f32 %s, %s, %s, %s %s neg_lo:[1,0,0] neg_hi:[1,0,0]' % (vr(EN + j, 2), vr(A + j, 2), vr(ST, 2), vr(u, 2), sel))
        for j in range(16): I('v_exp_f32 v%d, v%d' % (EP + j, EP + j)); I('v_exp_f32 v%d, v%d' % (EN + j, EN + j))
        sp, sn = M + 6, M + 8
        I('v_pk_add_f32 %s, %s, %s' % (vr(sp, 2), vr(EP, 2), vr(EP + 2, 2))); I('v_pk_add_f32 %s, %s, %s' % (vr(sn, 2), vr(EN, 2), vr(EN + 2, 2)))
        for j in range(4, 16, 2):
            I('v_pk_add_f32 %s, %s, %s' % (vr(sp, 2), vr(sp, 2), vr(EP + j, 2))); I('v_pk_add_f32 %s, %s, %s' % (vr(sn, 2), vr(sn, 2), vr(EN + j, 2)))
        I('v_add_f32 v%d, v%d, v%d' % (sp, sp, sp + 1)); I('v_add_f32 v%d, v%d, v%d' % (sn, sn, sn + 1))
        I('v_permlane32_swap_b32 v%d, v%d' % (sp, sn)); I('v_add_f32 v%d, v%d, v%d' % (t, sp, sn))
        if sreg is None:
            I('v_rcp_f32 v%d, v%d' % (t, t)); I('v_mov_b32 v%d, v%d' % (u, t)); I('v_permlane32_swap_b32 v%d, v%d' % (t, u))
            for j in range(0, 16, 2):
                I('v_pk_mul_f32 %s, %s, %s op_sel_hi:[1,0]' % (vr(EP + j, 2), vr(EP + j, 2), vr(t, 2)))
                I('v_pk_mul_f32 %s, %s, %s op_sel_hi:[1,0]' % (vr(EN + j, 2), vr(EN + j, 2), vr(u, 2)))
            for j in range(8):
                I('v_cvt_pk_bf16_f32 v%d, v%d, v%d' % (A + j, EP + 2 * j, EP + 2 * j + 1)); I('v_cvt_pk_bf16_f32 v%d, v%d, v%d' % (A + 8 + j, EN + 2 * j, EN + 2 * j + 1))
        else:
            I('v_mov_b32 v%d, v%d' % (u, t))
            for j in range(2): I('v_cvt_pk_bf16_f32 v%d, v%d, v%d' % (A + j, EP + 2 * j, EP + 2 * j + 1))
            I('v_permlane32_swap_b32 v%d, v%d' % (t, u)); I('v_rcp_f32 v%d, v%d' % (u, u))
            for j in range(2, 8): I('v_cvt_pk_bf16_f32 v%d, v%d, v%d' % (A + j, EP + 2 * j, EP + 2 * j + 1))
            I('v_mul_f32 v%d, v%d, v%d' % (u, u, t)); I('v_mov_b32 v%d, v%d' % (sreg, t))
            for j in range(0, 16, 2): I('v_pk_mul_f32 %s, %s, %s op_sel_hi:[1,0]' % (vr(EN + j, 2), vr(EN + j, 2), vr(u, 2)))
            for j in range(8): I('v_cvt_pk_bf16_f32 v%d, v%d, v%d' % (A + 8 + j, EN + 2 * j, EN + 2 * j + 1))

    def wphi_dma(self, n, head0_s):
        I = self.I; out = []
        I('s_mul_i32 s8, s%d, 1568' % head0_s); I('s_lshl_b32 s9, s%d, 10' % S_WAVE); I('s_add_u32 s8, s8, s9'); I('s_add_u32 s9, s9, %d' % L_WPHI)
        for i in range(n):
            I('s_add_u32 m0, s9, %d' % (8192 * i)); I('s_add_u32 s10, s8, %d' % (8192 * i))
            out.append(I('buffer_load_dwordx4 v%d, %s, s10 offen lds' % (VL16, sr(S_PHI, 4))))
        return out
    def wphi_read(self, nheads, hoff_s, WP):
        I = self.I; T = TMP + 9
        I('v_lshrrev_b32 v%d, 5, v%d' % (T, VLANE)); I('v_lshlrev_b32 v%d, 2, v%d' % (T, T)); I('v_bfe_u32 v%d, v%d, 2, 2' % (T + 1, VLANE)); I('v_add_u32 v%d, v%d, v%d' % (T, T, T + 1))
        I('v_mul_u32_u24 v%d, 56, v%d' % (T, T)); I('v_add_u32 v%d, s%d, v%d' % (T, hoff_s, T))
        I('v_bfe_u32 v%d, v%d, 4, 1' % (T + 1, VLANE)); I('v_lshlrev_b32 v%d, 2, v%d' % (T + 1, T + 1)); I('v_and_or_b32 v%d, v%d, 3, v%d' % (T + 1, VLANE, T + 1))
        I('v_min_u32 v%d, 6, v%d' % (T + 1, T + 1)); I('v_lshl_add_u32 v%d, v%d, 3, v%d' % (T, T + 1, T))
        for i in range(nheads):
            for s in range(2):
                for h in range(2):
                    I('ds_read_b64_tr_b16 %s, v%d offset:%d' % (ar(WP + 8 * i + 4 * s + 2 * h, 2), T, i * 1568 + (16 * s + 8 * h) * 56))

    def kv_common(self):
        I = self.I; g = self.g
        self.tagbase = 'k'
        self.srd(S_W, 18, 448 * 2688)
        I('s_lshl_b32 s8, s%d, 2' % S_IDX); I('s_lshr_b32 s9, 0xdb9630, s8'); I('s_and_b32 s9, s9, 15')
        I('s_lshr_b32 s10, 0x322333, s8'); I('s_and_b32 s10, s10, 15')
        I('s_mul_i32 s11, s9, 56'); I('s_and_b32 s%d, s11, -16' % S_WSO); I('s_and_b32 s11, s11, 8')
        I('s_mul_i32 s8, s10, 3'); I('s_add_u32 s8, s8, 1')
        I('v_cmp_lt_u32 vcc, 13, v7'); I('v_subrev_u32 v8, 14, v7'); I('v_cndmask_b32 v8, v7, v8, vcc'); I('v_min_u32 v8, s8, v8')
        I('v_mov_b32 v9, 896'); I('v_mov_b32 v10, 1792'); I('v_cndmask_b32 v9, v9, v10, vcc')
        I('v_mul_u32_u24 v6, 2688, v6'); I('v_add_u32 v6, v6, v9'); I('v_lshl_add_u32 v%d, v8, 4, v6' % DW)
        I('s_mov_b32 s0, s9'); I('s_mov_b32 s1, s10'); I('s_mov_b32 s%d, s11' % S_NONCE)
        dms = self.start_stream(2688)
        I('s_mul_i32 s10, s%d, 224' % S_CH); I('s_add_u32 s10, s10, s%d' % S_NONCE); I('s_add_u32 s10, s10, %d' % WPART)
        self.read_addrs(True)
        self.pre_loop()
        def kvx():
            I('s_mov_b32 s%d, s0' % S_H0); I('s_mov_b32 s%d, s1' % S_NH)
            self.wphi_dma(1, S_H0)
            if ATOM:
                I('s_cmp_lg_u32 s%d, 0' % S_RB); I('s_cbranch_scc1 L_nozero')
                Z = TMP + 4
                for i in range(4): I('v_mov_b32 v%d, 0' % (Z + i))
                I('s_lshl_b32 s8, s%d, 13' % S_H0); I('s_lshl_b32 s9, s%d, 10' % S_WAVE); I('s_add_u32 s8, s8, s9'); I('s_add_u32 s8, s8, %d' % L.WS_KV)
                self.U('buffer_store_dwordx4 %s, v%d, %s, s8 offen sc1' % (vr(Z, 4), VL16, sr(S_WS, 4)))
                I('s_add_u32 s8, s8, 8192'); self.U('buffer_store_dwordx4 %s, v%d, %s, s8 offen sc1' % (vr(Z, 4), VL16, sr(S_WS, 4)))
                I('s_add_u32 s8, s8, 8192'); I('s_cmp_eq_u32 s%d, 3' % S_NH); I('s_cselect_b32 s8, s8, 0x7f000000')
                self.U('buffer_store_dwordx4 %s, v%d, %s, s8 offen sc1' % (vr(Z, 4), VL16, sr(S_WS, 4))); I('s_nop 1')
                self.g.label('L_nozero')
        self.early = [self.late_group(True, kvx)]
        rot = lambda i: [((i + cc) % 3, AW + i, 56 * ((i + cc) % 3)) for cc in range(3)]
        tiles = [dict(t=rot(i), cs=(i < 3)) for i in range(4)]
        self.bdma, self.bread = {}, {}; self.nslot = 5
        def pre2():
            pass
        def post2():
            with g.capture() as a:
                I('s_mov_b32 s8, %d' % L_WPHI)
                self.wphi_read(3, 8, 88)
            return [a]
        def post3():
            with g.capture() as a:
                I('s_or_b32 s8, s%d, s%d' % (S_RB, S_WAVE)); I('s_cmp_lg_u32 s8, 0'); I('s_cbranch_scc1 L_nozf')
                I('s_lshl_b32 s8, s%d, 7' % S_IDX); I('s_add_u32 s8, s8, %d' % (L.WS_KVZ + 0x4000))
                self.publish(8, TMP + 8).kind = 'untracked'
                self.g.label('L_nozf')
            return [a]
        PW, HO, UA, VW, ZV = 48, 50, 51, 54, 58
        self.kvr = (PW, HO, UA, VW, ZV)
        def post4():
            A, B, C = TMP + 8, TMP + 9, TMP + 10; out = []
            with g.capture() as a:
                I('v_and_b32 v%d, 31, v%d' % (A, VLANE)); I('v_lshlrev_b32 v%d, 6, v%d' % (A, A)); I('s_lshl_b32 s8, s%d, 11' % S_RT); I('v_add_u32 v%d, s8, v%d' % (A, A))
                I('v_bfe_u32 v%d, v%d, 1, 2' % (B, VLANE)); I('v_lshl_add_u32 v%d, v%d, 4, v%d' % (A, B, A))
                I('v_lshrrev_b32 v%d, 5, v%d' % (B, VLANE))
                I('v_lshl_add_u32 v%d, v%d, 13, v%d' % (PW, B, A)); I('s_lshl_b32 s9, s%d, 5' % S_CH); I('v_xor_b32 v%d, s9, v%d' % (PW, PW)); I('v_xor_b32 v%d, 16, v%d' % (PW + 1, PW))
                I('s_add_u32 s8, s8, %d' % L_V); I('v_add_u32 v%d, s8, v%d' % (HO, VL16))
                I('v_lshl_add_u32 v%d, v%d, 3, v%d' % (VW, B, A)); I('v_add_u32 v%d, %d, v%d' % (VW, L_V, VW))
                for q in range(1, 4): I('v_xor_b32 v%d, %d, v%d' % (VW + q, 16 * q, VW))
                I('v_lshlrev_b32 v%d, 10, v%d' % (UA + 2, B)); I('v_and_b32 v%d, 31, v%d' % (A, VLANE)); I('v_lshl_add_u32 v%d, v%d, 2, v%d' % (UA + 2, A, UA + 2))
            out.append(a)
            with g.capture() as a:
                I('v_lshrrev_b32 v%d, 5, v%d' % (A, VLANE)); I('v_bfe_u32 v%d, v%d, 2, 2' % (B, VLANE)); I('v_lshl_add_u32 v%d, v%d, 2, v%d' % (A, A, B))
                I('v_bfe_u32 v%d, v%d, 4, 1' % (B, VLANE)); I('v_bfe_u32 v%d, v%d, 1, 1' % (C, VLANE)); I('v_lshl_add_u32 v%d, v%d, 1, v%d' % (B, B, C))
                I('v_lshrrev_b32 v%d, 1, v%d' % (C, A)); I('v_xor_b32 v%d, v%d, v%d' % (B, B, C)); I('v_lshlrev_b32 v%d, 6, v%d' % (A, A)); I('v_lshl_add_u32 v%d, v%d, 4, v%d' % (A, B, A))
                I('v_and_b32 v%d, 1, v%d' % (B, VLANE)); I('v_lshl_add_u32 v%d, v%d, 3, v%d' % (A, B, A))
                I('s_lshl_b32 s10, s%d, 13' % S_WAVE); I('v_add_u32 v%d, s10, v%d' % (UA + 1, A))
                I('s_lshr_b32 s9, s%d, 1' % S_WAVE); I('s_lshl_b32 s10, s9, 13'); I('s_add_u32 s10, s10, %d' % L_V); I('v_add_u32 v%d, s10, v%d' % (UA, A))
                I('s_add_u32 s10, s9, s%d' % S_H0); I('s_lshl_b32 s10, s10, 13'); I('s_and_b32 s8, s%d, 1' % S_WAVE); I('s_lshl_b32 s8, s8, 7'); I('s_add_u32 s10, s10, s8')
                I('s_add_u32 s0, s10, %d' % L.WS_KV)
                I('s_cmp_lt_u32 s9, s%d' % S_NH); I('s_cselect_b32 s%d, 1, 0' % S_NH)
                I('s_lshl_b32 s8, s%d, 4' % S_IDX); I('s_add_u32 s8, s8, s%d' % S_RB); I('s_lshl_b32 s8, s8, 7'); I('s_add_u32 s1, s8, %d' % L.WS_KVZ)
                I('s_lshl_b32 s%d, s%d, 7' % (S_H0, S_IDX)); I('s_add_u32 s%d, s%d, %d' % (S_H0, S_H0, L.WS_KVZ + 0x4000)); I('v_mov_b32 v%d, 0' % ZV)
                I('v_mov_b32 v%d, %d' % (A, L_CNT)); I('ds_write_b32 v%d, v%d' % (A, ZV))
            out.append(a)
            return out
        hk = self.bhooks({2: post2, NST: post3, 4: post4})
        p6 = hk['post'][6]
        def post6():
            with g.capture() as a: self.poll_issue(ZV, S_H0, ZV + 1)
            return [a] + p6()
        hk['post'][6] = post6
        self.gemm(tiles, 2688, dms, 'k', hk)
        I('s_lshl_b32 s10, s%d, 12' % S_CH); I('s_add_u32 s10, s10, %d' % L_CP)
        self.finish_stats([(0, 10, 0), (1, 10, 1024), (2, 10, 2048)], L.LOG2E, 'k', self.slot4_setup)
        I('s_cmp_eq_u32 s%d, 1' % S_CH); I('s_cbranch_scc1 L_kv_v')

    def kv_rest(self, tg, As, wr):
        I = self.I; g = self.g; PW, HO, U, VW, ZV = self.kvr
        self.with_bg(lambda: self.half_units(As, tg == 'v'), self.b_round1(), int(os.environ.get('KBG', '14')))
        for i, A in enumerate(As):
            wr += [I('ds_write_b128 v%d, %s offset:%d' % (PW + q, vr(A + 4 * q, 4), L_PHI + 16384 * i)) for q in range(2)]
        self.poll_check('z' + tg, ZV, S_H0, ZV + 1)
        for k in range(5, 9): g.extend(self.b_read(k))
        I('s_add_u32 s10, s0, 4096')
        I('s_waitcnt lgkmcnt(0)')
        I('s_barrier')
        self.stamp('bb')
        I('s_cmp_eq_u32 s%d, 0' % S_NH); I('s_cbranch_scc1 L_nounit%s' % tg)
        if 'uprio' in EXP and tg == 'v': I('s_setprio 3')
        def rd(s):
            b = 64 + 8 * (s % 4)
            for h in range(2):
                I('ds_read_b64_tr_b16 %s, v%d offset:%d' % (vr(b + 2 * h, 2), U, (16 * s + 8 * h) * 64))
                I('ds_read_b64_tr_b16 %s, v%d offset:%d' % (vr(b + 4 + 2 * h, 2), U + 1, (16 * s + 8 * h) * 64))
        D = ACC
        for s in range(3): rd(s)
        for s in range(8):
            if s + 3 < 8: rd(s + 3)
            b = 64 + 8 * (s % 4)
            I('v_mfma_f32_32x32x16_bf16 %s, %s, %s, %s' % (vr(D, 16), vr(b, 4), vr(b + 4, 4), vr(D, 16) if s else '0'))
        I('s_nop 7'); I('s_nop 4')
        for r in range(16):
            d = (r & 3) + 8 * (r >> 2)
            if r == 13: I('s_mov_b32 exec_hi, 0')
            self.U('buffer_atomic_add_f32 v%d, v%d, %s, s%d offen offset:%d' % (D + r, U + 2, sr(S_WS, 4), 0 if d < 16 else 10, (d % 16) * 256))
        I('s_mov_b64 exec, -1')
        self.g.label('L_nounit%s' % tg)
        if 'khold' in EXP:
            I('s_waitcnt vmcnt(0)')
        I('s_barrier')
        if 'khold' in EXP:
            I('s_cmp_lg_u32 s%d, 7' % S_WAVE); I('s_cbranch_scc1 L_nokf%s' % tg)
            self.publish(1, 96).kind = 'untracked'
            self.g.label('L_nokf%s' % tg)
            self.stamp('kvdone')
        I('s_setprio 0')
        nb = int(os.environ.get('KVB', '10'))
        bulk = self.b_dma(4)
        for k in range(5, 9): bulk += self.b_dma(k + 5)
        bulk += self.wo_dma()
        for t in bulk[:nb]: g.extend(t)
        self.p2_enter()
        if 'khold' not in EXP:
            I('v_mov_b32 v96, 1'); I('v_mov_b32 v97, %d' % L_CNT)
            I('s_waitcnt vmcnt(%d)' % nb)
            I('s_mov_b64 exec, 1'); I('ds_add_rtn_u32 v96, v97, v96'); I('s_mov_b64 exec, -1')
            I('v_readfirstlane_b32 s8, v96'); I('s_cmp_lg_u32 s8, 7'); I('s_cbranch_scc1 L_nokf%s' % tg)
            self.publish(1, 96).kind = 'untracked'
            self.g.label('L_nokf%s' % tg)
            self.stamp('kvdone')
        for t in bulk[nb:12] if nb < 12 else []: g.extend(t)
        pa = self.poll_issue(P2T + 1, S_FA, P2T)
        for t in bulk[max(nb, 12):] + self.b_tasks(4, 5): g.extend(t)
        I('s_waitcnt lgkmcnt(0)'); I('s_nop 0', needs=[pa])
        I('s_branch L_p2')

    def kv_k(self):
        I = self.I; g = self.g; PW, HO, U, VW, ZV = self.kvr
        wr = []
        for i in range(3):
            N = 80 + 8 * i
            self.pack_k(ACC + 16 * i, N)
            wr += [I('ds_write_b128 v%d, %s offset:%d' % (HO, vr(N + 4 * q, 4), 8192 * i + 1024 * q)) for q in range(2)]
        I('s_barrier', needs=wr)
        for i in range(3): self.phi_mfma(ACC + 16 * i, 80 + 8 * i, 88 + 8 * i)
        self.kv_rest('k', [ACC, ACC + 16, ACC + 32], [])

    def kv_v(self):
        I = self.I; g = self.g; PW, HO, U, VW, ZV = self.kvr
        I('v_cndmask_b32 v%d, v%d, 0, %s' % (CS, ST + 1, sr(S_HIM, 2))); I('v_cndmask_b32 v%d, 0, 1.0, %s' % (CS + 1, sr(S_HIM, 2)))
        PV = [88, 96, 112]
        def vpath(i):
            A = ACC + 16 * i
            for j in range(0, 12, 2): I('v_pk_mul_f32 %s, %s, %s op_sel:[0,1] op_sel_hi:[1,1]' % (vr(A + j, 2), vr(A + j, 2), vr(ST, 2)))
            for j in (12, 14): I('v_pk_fma_f32 %s, %s, %s, %s op_sel:[0,0,1] op_sel_hi:[1,0,1]' % (vr(A + j, 2), vr(A + j, 2), vr(CS, 2), vr(CS, 2)))
            for j in range(8): I('v_cvt_pk_bf16_f32 v%d, v%d, v%d' % (PV[i] + j, A + 2 * j, A + 2 * j + 1))
        vpath(0); vpath(1)
        I('s_barrier')
        rd = [I('ds_read_b128 %s, v%d offset:%d' % (vr(64 + 8 * i + 4 * q, 4), HO, 8192 * i + 1024 * q)) for i in range(3) for q in range(2)]
        vpath(2)
        wr = []
        for i in range(3):
            self.phi_mfma(ACC + 16 * i, 64 + 8 * i, 88 + 8 * i)
            wr += [I('ds_write_b64 v%d, %s offset:%d' % (VW + q, vr(PV[i] + 2 * q, 2), 8192 * i), needs=rd[2 * i:2 * i + 2]) for q in range(4)]
        self.kv_rest('v', [ACC, ACC + 16, ACC + 32], wr)
    _uid = 0
    def uid(self):
        K._uid += 1
        return str(K._uid)

    def q(self):
        I = self.I; g = self.g
        self.tagbase = 'q'
        self.srd(S_W, 18, 448 * 2688)
        I('v_mul_u32_u24 v6, 2688, v6'); I('v_lshl_add_u32 v%d, v7, 4, v6' % DW)
        I('s_mul_i32 s%d, s%d, 448' % (S_WSO, S_IDX))
        dms = self.start_stream(2688)
        I('s_mul_i32 s10, s%d, 224' % S_CH); I('s_add_u32 s10, s10, %d' % WPART)
        self.read_addrs(True)
        self.pre_loop()
        def qx():
            I('s_lshl_b32 s%d, s%d, 3' % (S_H0, S_IDX))
            self.wphi_dma(2, S_H0)
        self.early = [self.late_group(False, qx)]
        tiles = [dict(t=[((i + cc) % 4, AW + i, 56 * ((i + cc) % 4)) for cc in range(4)], cs=True) for i in range(4)]
        def post2():
            with g.capture() as a:
                I('s_mul_i32 s8, s%d, %d' % (S_CH, 4 * 1568)); I('s_add_u32 s8, s8, %d' % L_WPHI)
                self.wphi_read(4, 8, 0)
            return [a]
        self.gemm(tiles, 2688, dms, 'q', dict(post={2: post2}))
        I('s_lshl_b32 s10, s%d, 12' % S_CH); I('s_add_u32 s10, s10, %d' % L_CP)
        self.finish_stats([(c, 10, 1024 * c) for c in range(4)], L.LOG2E, 'q')
        for i in range(4):
            self.pack_k(ACC + 16 * i, 80 + 8 * (i & 1)); self.phi_mfma(ACC + 16 * i, 80 + 8 * (i & 1), 8 * i)
        for i in range(4): self.softmax_unit(ACC + 16 * i, sreg=124 + i)
        self.stamp('soft')
        if 'noq' in EXP: return
        T = TMP
        if 'lat' in EXP:
            I('s_lshl_b32 s8, s2, 3'); I('s_add_u32 s8, s8, s%d' % S_WAVE); I('s_lshl_b32 s8, s8, 9'); I('s_add_u32 s8, s8, %d' % (15 << 20)); I('v_mov_b32 v%d, 0' % T)
            for rep_ in range(2):
                I('buffer_load_dword v%d, v%d, %s, s8 offen offset:%d sc1' % (T + 1, T, sr(S_WS, 4), 256 * rep_)); I('s_waitcnt vmcnt(0)'); self.stamp('miss')
                I('buffer_load_dword v%d, v%d, %s, s8 offen offset:%d sc1' % (T + 1, T, sr(S_WS, 4), 256 * rep_)); I('s_waitcnt vmcnt(0)'); self.stamp('l2hit')
                I('buffer_store_dword v%d, v%d, %s, s8 offen offset:%d sc1' % (T + 1, T, sr(S_WS, 4), 128 + 256 * rep_)); I('s_waitcnt vmcnt(0)'); self.stamp('st')
            self.nst = 15
        if ATOM:
            T = TMP
            I('v_lshrrev_b32 v%d, 4, v%d' % (T, VLANE)); I('s_lshl_b32 s8, s%d, 1' % S_IDX); I('v_add_u32 v%d, s8, v%d' % (T, T))
            I('s_mul_i32 s8, s%d, 3' % S_IDX); I('s_add_u32 s8, s8, 2'); I('v_min_u32 v%d, s8, v%d' % (T, T))
            I('v_and_b32 v%d, 15, v%d' % (T + 1, VLANE)); I('v_lshl_add_u32 v%d, v%d, 4, v%d' % (T, T, T + 1)); I('v_lshlrev_b32 v%d, 7, v%d' % (T, T))
            I('s_mov_b32 s11, %d' % L.WS_KVZ)
            I('v_lshrrev_b32 v%d, 3, v%d' % (T + 2, VLANE)); I('v_lshlrev_b32 v%d, 8, v%d' % (T + 2, T + 2))
            I('v_lshrrev_b32 v%d, 4, v%d' % (T + 3, VLANE)); I('v_and_b32 v%d, 7, v%d' % (T + 4, VLANE)); I('v_xor_b32 v%d, v%d, v%d' % (T + 3, T + 3, T + 4))
            I('v_lshl_add_u32 v%d, v%d, 4, v%d' % (T + 4, T + 3, T + 2)); I('v_xor_b32 v%d, 64, v%d' % (T + 5, T + 4))
            I('s_add_u32 s8, s%d, s%d' % (S_H0, S_WAVE)); I('s_lshl_b32 s8, s8, 13'); I('s_add_u32 s8, s8, %d' % L.WS_KV)
            I('s_lshl_b32 s9, s%d, 13' % S_WAVE)
            I('v_bfe_u32 v%d, v%d, 3, 2' % (T + 2, VLANE)); I('v_lshlrev_b32 v%d, 2, v%d' % (T + 2, T + 2)); I('v_and_or_b32 v%d, v%d, 3, v%d' % (T + 2, VLANE, T + 2))
            I('v_bfe_u32 v%d, v%d, 2, 1' % (T + 3, VLANE)); I('v_mul_u32_u24 v%d, 14, v%d' % (T + 3, T + 3)); I('v_add_u32 v%d, v%d, v%d' % (T + 3, T + 3, T + 2))
            I('v_cmp_gt_u32 vcc, 14, v%d' % (T + 2)); I('v_cndmask_b32 v%d, 28, v%d, vcc' % (T + 3, T + 3))
            I('v_bfe_u32 v%d, v%d, 1, 3' % (T + 2, T + 3)); I('v_lshlrev_b32 v%d, 4, v%d' % (T + 2, T + 2))
            I('v_and_b32 v%d, 32, v%d' % (T + 6, VLANE)); I('v_add_u32 v%d, v%d, v%d' % (T + 3, T + 3, T + 6)); I('v_lshl_add_u32 v%d, v%d, 7, v%d' % (T + 2, T + 3, T + 2))
            I('v_add_u32 v%d, s9, v%d' % (T + 2, T + 2))
            I('s_cmp_lg_u32 s%d, 0' % S_WAVE); I('s_cbranch_scc1 L_polldkv')
            self.g.label('L_pollkv')
            self.U('buffer_load_dword v64, v%d, %s, s11 offen sc1' % (T, sr(S_WS, 4))); self.U('s_waitcnt vmcnt(0)')
            I('v_cmp_ne_u32 vcc, s%d, v64' % S_NONCE); I('s_nop 1'); I('s_cbranch_vccz L_polldkv')
            self.spin_tail('L_pollkv', QSL)
            self.g.label('L_polldkv')
            I('s_barrier')
            self.stamp('kvok')
            dm = []
            for i in range(8):
                I('s_add_u32 m0, s9, %d' % (L_KVQ + 1024 * i)); I('s_add_u32 s10, s8, %d' % ((i & 3) * 2048 + (i >> 2) * 128))
                dm.append(I('buffer_load_dwordx4 v%d, %s, s10 offen sc1 lds' % (T + 4 + (i & 1), sr(S_WS, 4))))
            for c in range(8):
                I('v_xor_b32 v%d, %d, v%d' % (T + 6 + (c & 1), 16 * c, T + 2))
                I('ds_read_b128 %s, v%d' % (vr(64 + 4 * c, 4), T + 6 + (c & 1)), needs=dm)
            I('s_waitcnt lgkmcnt(0)'); self.stamp('kvld')
            for j in range(16): I('v_cvt_pk_bf16_f32 v%d, v%d, v%d' % (96 + j, 64 + 2 * j, 64 + 2 * j + 1))
            I('s_lshl_b32 s8, s%d, 12' % S_WAVE); I('s_add_u32 s8, s8, %d' % L_KVF); I('v_add_u32 v%d, s8, v%d' % (T, VL16))
            wr = [I('ds_write_b128 v%d, %s offset:%d' % (T, vr(96 + 4 * s, 4), 1024 * s)) for s in range(4)]
            I('s_lshl_b32 s8, s%d, 14' % S_CH); I('s_add_u32 s8, s8, %d' % L_KVF); I('v_add_u32 v%d, s8, v%d' % (T, VL16))
            qbar = lambda: (I('s_barrier', needs=wr), [I('ds_read_b128 %s, v%d offset:%d' % (ar(32 + 16 * i + 4 * s, 4), T, 4096 * i + 1024 * s)) for i in range(4) for s in range(4)])
        else:
            I('v_bfe_u32 v%d, v%d, 3, 2' % (T + 2, VLANE)); I('v_lshlrev_b32 v%d, 2, v%d' % (T + 2, T + 2)); I('v_and_or_b32 v%d, v%d, 3, v%d' % (T + 2, VLANE, T + 2))
            I('v_bfe_u32 v%d, v%d, 2, 1' % (T + 3, VLANE)); I('v_mul_u32_u24 v%d, 14, v%d' % (T + 3, T + 3)); I('v_add_u32 v%d, v%d, v%d' % (T + 3, T + 3, T + 2))
            I('v_cmp_gt_u32 vcc, 14, v%d' % (T + 2)); I('v_cndmask_b32 v%d, 28, v%d, vcc' % (T + 3, T + 3))
            I('v_and_b32 v%d, 32, v%d' % (T + 2, VLANE)); I('v_lshlrev_b32 v%d, 6, v%d' % (T + 2, T + 2)); I('v_lshl_add_u32 v%d, v%d, 4, v%d' % (T + 2, T + 3, T + 2))
            I('s_lshl_b32 s8, s%d, 14' % S_CH); I('v_add_u32 v%d, s8, v%d' % (T + 2, T + 2))
            I('v_and_b32 v%d, 15, v%d' % (T, VLANE)); I('v_lshlrev_b32 v%d, 7, v%d' % (T, T))
            I('v_and_b32 v%d, 7, v%d' % (T + 3, VLANE)); I('v_lshlrev_b32 v%d, 7, v%d' % (T + 3, T + 3))
            I('s_cmp_lg_u32 s%d, 0' % S_CH); I('s_cbranch_scc1 L_noreduce')
            I('s_lshl_b32 s8, s%d, 1' % S_RB); I('s_add_u32 s8, s8, s%d' % S_IDX); I('s_lshl_b32 s8, s8, 2'); I('s_add_u32 s11, s8, s%d' % S_RT)
            I('s_lshl_b32 s0, s11, 14'); I('s_add_u32 s0, s0, %d' % L.WS_SL)
            I('s_mov_b32 s8, 0x22111000'); I('s_mov_b32 s9, 0x55544332'); I('s_lshl_b32 s10, s%d, 2' % S_RB); I('s_lshr_b64 s[8:9], s[8:9], s10'); I('s_and_b32 s8, s8, 15')
            I('s_lshl_b32 s8, s8, 11'); I('s_add_u32 s1, s8, %d' % L.WS_KVZ)
            self.g.label('L_red_poll')
            self.U('buffer_load_dword v%d, v%d, %s, s1 offen sc1' % (T + 1, T, sr(S_WS, 4))); self.U('s_waitcnt vmcnt(0)')
            I('v_cmp_ne_u32 vcc, s%d, v%d' % (S_NONCE, T + 1)); I('s_nop 1'); I('s_cbranch_vccz L_red_load')
            self.spin_tail('L_red_poll', QSL)
            self.g.label('L_red_load')
            R = 64
            def src(i): return (64 + 4 * i) if i < 15 else T + 4
            for i in range(16):
                if i % 4 == 0: I('s_add_u32 s8, s0, %d' % (1024 * i))
                I('buffer_load_dwordx4 %s, v%d, %s, s8 offen offset:%d' % (vr(src(i), 4), VL16, sr(S_WS, 4), 1024 * (i % 4)))
            I('s_lshl_b32 s8, s11, 9'); I('s_add_u32 s8, s8, %d' % L.WS_KF); I('s_lshl_b32 s9, s11, 7'); I('s_add_u32 s9, s9, %d' % L.WS_KVD)
            for i in range(2, 16):
                for j in (0, 2): I('v_pk_add_f32 %s, %s, %s' % (vr(R + 4 * (i & 1) + j, 2), vr(R + 4 * (i & 1) + j, 2), vr(src(i) + j, 2)))
            for j in (0, 2): I('v_pk_add_f32 %s, %s, %s' % (vr(R + j, 2), vr(R + j, 2), vr(R + 4 + j, 2)))
            I('v_cvt_pk_bf16_f32 v68, v64, v65'); I('v_cvt_pk_bf16_f32 v69, v66, v67')
            I('v_mov_b32 v72, v68'); I('v_mov_b32 v73, v69')
            I('v_permlane32_swap_b32 v72, v70'); I('v_permlane32_swap_b32 v73, v71')
            I('s_mov_b32 exec_hi, 0')
            I('buffer_store_dwordx4 v[68:71], v%d, %s, s8 offen sc1' % (VL16, sr(S_WS, 4)))
            I('s_mov_b64 exec, -1')
            self.stamp('red')
            I('s_waitcnt vmcnt(0)')
            self.publish(9, 72).kind = 'untracked'
            self.g.label('L_noreduce')
            I('s_add_u32 s10, s%d, s%d' % (S_H0, S_WAVE)); I('s_lshl_b32 s11, s10, 10'); I('s_add_u32 s11, s11, %d' % L.WS_KVD)
            I('s_lshl_b32 s10, s10, 12'); I('s_add_u32 s10, s10, %d' % L.WS_KF); I('s_lshl_b32 m0, s%d, 12' % S_WAVE)
            self.g.label('L_pollkv')
            self.U('buffer_load_dword v64, v%d, %s, s11 offen sc1' % (T + 3, sr(S_WS, 4))); self.U('s_waitcnt vmcnt(0)')
            I('v_cmp_ne_u32 vcc, s%d, v64' % S_NONCE); I('s_nop 1'); I('s_cbranch_vccz L_polldkv')
            self.spin_tail('L_pollkv', QSL)
            self.g.label('L_polldkv')
            self.nst = 7
            self.stamp('kvok')
            dm = [I('buffer_load_dwordx4 v%d, %s, s10 offen offset:%d lds' % (VL16, sr(S_WS, 4), 1024 * i)) for i in range(4)]
            qbar = lambda: (I('s_barrier', needs=dm), [I('ds_read_b128 %s, v%d offset:%d' % (ar(32 + 16 * i + 4 * sf, 4), T + 2, 4096 * i + 512 * sf)) for i in range(4) for sf in range(4)])
        I('s_lshl_b32 s8, s%d, 2' % S_RB); I('s_add_u32 s8, s8, s%d' % S_RT); I('s_mul_i32 s8, s8, 28'); I('s_mul_i32 s9, s%d, 14' % S_IDX); I('s_add_u32 s8, s8, s9')
        I('s_mul_i32 s9, s%d, 7' % S_CH); I('s_add_u32 s8, s8, s9'); I('s_lshl_b32 s8, s8, 10'); I('s_add_u32 s8, s8, %d' % L.WS_O); I('s_add_u32 s9, s8, 4096')
        qbar()
        N = [64, 80]; O = 96
        def ost(f): I('buffer_store_dwordx4 %s, v%d, %s, s%d offen offset:%d sc1' % (vr(O + 4 * f, 4), VL16, sr(S_WS, 4), 8 if f < 4 else 9, (f % 4) * 1024))
        done = 0
        for i in range(5):
            if i < 4:
                for s in range(4):
                    I('v_mfma_f32_32x32x16_bf16 %s, %s, %s, %s' % (vr(N[i & 1], 16), ar(32 + 16 * i + 4 * s, 4), vr(ACC + 16 * i + 4 * s, 4), vr(N[i & 1], 16) if s else '0'))
            if i >= 1:
                self.o_fin(N[(i - 1) & 1], O + 7 * (i - 1), 124 + i - 1)
                while 4 * (done + 1) <= 7 * i: ost(done); done += 1
        self.stamp('ocomp')
        I('s_lshl_b32 s8, s%d, 2' % S_RB); I('s_add_u32 s8, s8, s%d' % S_RT); I('s_lshl_b32 s8, s8, 1'); I('s_add_u32 s8, s8, s%d' % S_IDX)
        I('s_lshl_b32 s8, s8, 1'); I('s_add_u32 s8, s8, s%d' % S_CH); I('s_lshl_b32 s8, s8, 7'); I('s_add_u32 s11, s8, %d' % L.WS_FO)
        I('s_waitcnt vmcnt(0)')
        self.publish(11, TMP)
        self.stamp('opub')
        I('s_waitcnt vmcnt(0)')
    def o_fin(self, N, O, sreg):
        I = self.I; t = TMP + 8
        I('v_fmac_f32 v%d, %s, v%d' % (N + 14, f32(1e-6), sreg)); I('v_rcp_f32 v%d, v%d' % (t, N + 14))
        for j in range(0, 14, 2): I('v_pk_mul_f32 %s, %s, %s op_sel_hi:[1,0]' % (vr(N + j, 2), vr(N + j, 2), vr(t, 2)))
        for j in range(7): I('v_cvt_pk_bf16_f32 v%d, v%d, v%d' % (O + j, N + 2 * j, N + 2 * j + 1))

    def p2_pre(self):
        I = self.I; g = self.g; A, B, C = TMP + 8, TMP + 9, TMP + 10; out = []
        def st(i, r): I('v_accvgpr_write_b32 a%d, v%d' % (STASH + i, r))
        with g.capture() as a:
            I('s_lshl_b32 s8, s%d, 1' % S_RG)
            I('s_mul_i32 s%d, s8, 112' % S_A0); I('s_mul_i32 s9, s%d, 14' % S_WAVE); I('s_add_u32 s%d, s%d, s9' % (S_A0, S_A0)); I('s_lshl_b32 s%d, s%d, 10' % (S_A0, S_A0))
            I('s_add_u32 s%d, s%d, %d' % (S_A1, S_A0, 112 * 1024))
            I('s_mul_i32 s%d, s8, 28' % S_OSO); I('s_mul_i32 s9, s%d, 7' % S_WAVE); I('s_add_u32 s%d, s%d, s9' % (S_OSO, S_OSO)); I('s_lshl_b32 s%d, s%d, 10' % (S_OSO, S_OSO))
            I('s_add_u32 s%d, s%d, %d' % (S_OSO, S_OSO, L.WS_O))
            I('v_lshrrev_b32 v%d, 3, v%d' % (A, VLANE)); I('v_mul_u32_u24 v%d, 896, v%d' % (A, A)); I('v_and_b32 v%d, 7, v%d' % (B, VLANE)); I('v_lshl_add_u32 v%d, v%d, 4, v%d' % (A, B, A))
            I('v_lshlrev_b32 v%d, 7, v%d' % (B, B)); st(1, A); st(2, B)
        out.append(a)
        with g.capture() as a:
            I('s_lshl_b32 s9, s%d, 3' % S_RG); I('s_add_u32 s9, s9, s%d' % S_WAVE); I('s_mul_i32 s9, s9, %d' % (8 * 896)); I('s_lshl_b32 s8, s%d, 7' % S_CG); I('s_add_u32 s%d, s9, s8' % S_XO)
            I('s_lshl_b32 s8, s%d, 12' % S_RG); I('s_lshl_b32 s9, s%d, 8' % S_WAVE); I('s_add_u32 s9, s9, s8'); I('s_add_u32 s%d, s9, %d' % (S_FA, L.WS_FLAG))
            I('s_lshl_b32 s8, s%d, 10' % S_RG); I('s_add_u32 s%d, s8, %d' % (S_FO, L.WS_FO))
            I('v_and_b32 v%d, 1, v%d' % (A, VLANE)); I('v_lshlrev_b32 v%d, 11, v%d' % (A, A)); I('v_and_b32 v%d, 2, v%d' % (B, VLANE)); I('v_lshl_add_u32 v%d, v%d, 6, v%d' % (A, B, A)); st(0, A)
        out.append(a)
        with g.capture() as a:
            I('v_lshrrev_b32 v%d, 5, v%d' % (C, VLANE)); I('v_bfe_u32 v%d, v%d, 3, 1' % (A, VLANE)); I('v_xor_b32 v%d, v%d, v%d' % (A, A, C))
            I('v_mul_u32_u24 v%d, 14, v%d' % (B, C)); I('v_bfe_u32 v%d, v%d, 2, 2' % (C, VLANE)); I('v_add_u32 v%d, v%d, v%d' % (B, B, C))
            I('v_lshlrev_b32 v%d, 7, v%d' % (B, B)); I('v_lshl_add_u32 v%d, v%d, 6, v%d' % (A, A, B))
            I('v_and_b32 v%d, 3, v%d' % (B, VLANE)); I('v_lshl_add_u32 v%d, v%d, 3, v%d' % (A, B, A))
            I('v_and_b32 v%d, 16, v%d' % (B, VLANE)); I('v_lshl_add_u32 v%d, v%d, 1, v%d' % (A, B, A))
            I('s_and_b32 s9, s%d, 1' % S_WAVE); I('s_lshl_b32 s9, s9, 6'); I('v_xor_b32 v%d, s9, v%d' % (A, A))
            I('s_mul_i32 s9, s%d, %d' % (S_CH, 224 * 128)); I('v_add_u32 v%d, s9, v%d' % (A, A))
            I('v_xor_b32 v%d, 64, v%d' % (B, A)); st(3, A); st(4, B)
            I('v_add_u32 v%d, %d, v%d' % (B, 14 * 128, B)); I('v_and_b32 v%d, 8, v%d' % (C, VLANE)); I('v_cmp_eq_u32 vcc, 0, v%d' % C); I('v_cndmask_b32 v%d, v%d, v%d, vcc' % (B, B, A)); st(5, B)
        out.append(a)
        return out
    def p2_enter(self):
        T = P2T
        for i, r in enumerate((T + 1, T + 2, T + 3, T + 8, T + 9, T + 10)): self.I('v_accvgpr_read_b32 v%d, a%d' % (r, STASH + i))

    def phase2(self):
        I = self.I; g = self.g; T = P2T
        XO, XR, WA = T + 2, T + 4, T + 8
        self.nst = 7
        if 'start' in EXP or 'stg' in EXP: self.nst = 15
        self.poll_check('A', T + 1, S_FA, T)
        self.stamp('hok')
        RING = 64; NR = 15
        self.bdma = {k: [] for k in range(14)}
        def load(n):
            ki, a = divmod(n, 2); k = KORD[ki]; r = RING + 4 * (n % NR)
            base = S_A1 if a else S_A0
            if k >= 4:
                I('s_add_u32 s8, s%d, %d' % (base, (k // 4) * 4096)); base = 8
            I('buffer_load_dwordx4 %s, v%d, %s, s%d offen offset:%d' % (vr(r, 4), VL16, sr(S_WS, 4), base, (k % 4) * 1024))
        def wo_read(kk, dst):
            G, f = divmod(kk, 7)
            for pp in range(2):
                p = 4 * f + 2 * pp; hl = 4 * G + p // 7; i = p % 7
                areg = WA + 2 if i == 6 else WA + (i & 1)
                I('ds_read_b64_tr_b16 %s, v%d offset:%d' % (ar(dst + 2 * pp, 2), areg, L_WO + (28 * hl + 2 * i) * 128))
        EWB, SWB, ORD, GRD, SRD_ = 124, 125, 126, 127, 139
        def tail_addr():
            A, B = 142, 143
            I('v_and_b32 v%d, 31, v%d' % (A, VLANE)); I('v_lshlrev_b32 v%d, 7, v%d' % (A, A)); I('v_and_b32 v%d, 7, v%d' % (B, VLANE)); I('v_lshl_add_u32 v%d, v%d, 4, v%d' % (A, B, A))
            I('v_lshrrev_b32 v%d, 5, v%d' % (B, VLANE)); I('v_lshl_add_u32 v%d, v%d, 3, v%d' % (A, B, A))
            I('s_lshl_b32 s8, s%d, 13' % S_WAVE); I('s_add_u32 s8, s8, %d' % L_XG); I('v_add_u32 v%d, s8, v%d' % (EWB, A))
            I('s_lshl_b32 s8, s%d, 13' % S_CH); I('s_bfe_u32 s9, s%d, 0x10001' % S_WAVE); I('s_lshl_b32 s10, s9, 12'); I('s_add_u32 s8, s8, s10'); I('s_add_u32 s8, s8, %d' % L_XS)
            I('v_add_u32 v%d, s8, v%d' % (SWB, A)); I('s_and_b32 s8, s%d, 1' % S_WAVE); I('s_lshl_b32 s8, s8, 6'); I('v_xor_b32 v%d, s8, v%d' % (SWB, SWB))
            I('s_mul_i32 s9, s9, 28'); I('s_mul_i32 s8, s%d, 14' % S_CH); I('s_add_u32 s9, s9, s8'); I('s_lshl_b32 s9, s9, 10')
            I('v_add_u32 v%d, s9, v%d' % (ORD, VL16))
            I('v_lshrrev_b32 v%d, 3, v%d' % (A, VLANE)); I('v_and_b32 v%d, 7, v%d' % (B, VLANE)); I('v_xor_b32 v%d, v%d, v%d' % (B, B, A))
            I('v_lshlrev_b32 v%d, 7, v%d' % (A, A)); I('v_lshl_add_u32 v%d, v%d, 4, v%d' % (A, B, A)); I('s_lshl_b32 s8, s%d, 10' % S_WAVE); I('s_add_u32 s8, s8, %d' % L_XG)
            I('v_add_u32 v%d, s8, v%d' % (GRD, A)); I('v_add_u32 v%d, %d, v%d' % (SRD_, L_XS - L_XG, GRD))
            I('s_mul_i32 s23, s%d, 7168' % S_WAVE); I('v_mov_b32 v142, %d' % L_CNT)
            I('s_mov_b32 s10, 0x00003f80'); I('s_mov_b32 s11, 0x3f800000'); I('s_mov_b32 s26, %s' % f32(-1.0 / L.LOG2E)); I('s_mov_b32 s27, s26')
        for n in range(NR): load(n)
        for t in self.code_pf('p2', XR, 'v%d' % (XR + 1)): g.extend(t)
        nl = NR
        for ki in range(14):
            for a in range(2):
                n = 2 * ki + a; r = RING + 4 * (n % NR)
                for b in range(2):
                    I('v_mfma_f32_32x32x16_bf16 %s, %s, %s, %s' % (vr(16 * (2 * a + b), 16), ar(8 * ki + 4 * b, 4), vr(r, 4), vr(16 * (2 * a + b), 16) if ki else '0'))
                if nl < 28:
                    load(nl); nl += 1
                    if nl == 28: I('buffer_load_dwordx4 %s, v%d, %s, s100 offen' % (vr(XR, 4), XO, sr(S_X, 4)))
            if ki == 0:
                for k in range(9, 14): g.extend(self.b_read(k))
            if ki == 2: tail_addr()
            if ki == 12:
                I('s_cmp_lg_u32 s%d, 0' % S_WAVE); I('s_cbranch_scc1 L_noe1')
                self.U('buffer_load_dword v%d, v%d, %s, s99 offen sc1' % (T, T + 3, sr(S_WS, 4)))
                self.g.label('L_noe1')
            if ki == 6: I('s_waitcnt lgkmcnt(0)'); I('s_barrier')
            if ki >= 7:
                for kk in (2 * (ki - 7), 2 * (ki - 7) + 1): wo_read(kk, 4 * kk)
        self.stamp('gdone')
        EW = 64
        wr = []
        for b in range(2):
            for Q in range(4):
                I('v_xor_b32 v%d, %d, v%d' % (EW + 4 * b + Q, 16 * (4 * b + Q), EWB))
                for a in range(2):
                    t = 16 * (2 * a + b)
                    for j in (2 * Q, 2 * Q + 1): I('v_cvt_pk_bf16_f32 v%d, v%d, v%d' % (t + j, t + 2 * j, t + 2 * j + 1))
                    wr.append(I('ds_write_b64 v%d, %s offset:%d' % (EW + 4 * b + Q, vr(t + 2 * Q, 2), 4096 * a)))
        I('s_cmp_lg_u32 s%d, 0' % S_WAVE); I('s_cbranch_scc1 L_noe2')
        self.U('s_waitcnt vmcnt(0)')
        I('v_cmp_ne_u32 vcc, s%d, v%d' % (S_NONCE, T)); I('s_nop 1'); I('s_cmp_eq_u64 vcc, 0'); I('s_cselect_b32 s8, 1, 0'); I('v_mov_b32 v143, s8')
        self.U('ds_write_b32 v142, v143')
        self.g.label('L_noe2')
        I('s_waitcnt lgkmcnt(0)')
        I('s_barrier')
        self.stamp('e2')
        I('ds_read_b32 v143, v142')
        for src in range(8): I('ds_read_b128 %s, v%d offset:%d' % (vr(8 + 4 * src, 4), GRD, 8192 * src))
        for j in range(4): I('v_lshlrev_b32 v%d, 16, v%d' % (76 + 2 * j, XR + j)); I('v_and_b32 v%d, s%d, v%d' % (77 + 2 * j, S_MASK, XR + j))
        I('s_add_u32 s24, s%d, 4096' % S_OSO)
        I('v_readfirstlane_b32 s9, v143')
        def odma():
            for i in range(7):
                if i == 0 or i == 4: I('s_add_u32 m0, s23, %d' % (L_O + 1024 * i)); I('s_nop 0')
                self.U('buffer_load_dwordx4 v%d, %s, s%d offen offset:%d lds' % (VL16, sr(S_WS, 4), S_OSO if i < 4 else 24, 1024 * (i % 4)))
        I('s_cmp_eq_u32 s9, 0'); I('s_cbranch_scc1 L_olate1')
        odma()
        self.g.label('L_olate1')
        for src in range(8):
            for j in range(4):
                I('v_dot2_f32_bf16 v%d, v%d, s10, %s' % (2 * j, 8 + 4 * src + j, 'v%d' % (2 * j) if src else '0'))
                I('v_dot2_f32_bf16 v%d, v%d, s11, %s' % (2 * j + 1, 8 + 4 * src + j, 'v%d' % (2 * j + 1) if src else '0'))
        I('s_cmp_lg_u32 s9, 0'); I('s_cbranch_scc1 L_oearly')
        I('s_cmp_lg_u32 s%d, %d' % (S_WAVE, 9 if 'noq' in EXP else 0)); I('s_cbranch_scc1 L_polldO')
        self.g.label('L_pollO')
        self.U('buffer_load_dword v%d, v%d, %s, s99 offen sc1' % (WA, T + 3, sr(S_WS, 4))); self.U('s_waitcnt vmcnt(0)')
        I('v_cmp_ne_u32 vcc, s%d, v%d' % (S_NONCE, WA)); I('s_nop 1'); I('s_cbranch_vccz L_polldO')
        self.spin_tail('L_pollO', 3)
        self.g.label('L_polldO')
        I('s_barrier')
        odma()
        self.g.label('L_oearly')
        self.stamp('ook')
        for j in range(8): I('v_exp_f32 v%d, v%d' % (8 + j, j))
        SW = 72
        for q in range(4): I('v_xor_b32 v%d, %d, v%d' % (SW + q, 16 * q, SWB))
        for j in range(0, 8, 2): I('v_pk_add_f32 %s, %s, 1.0 op_sel_hi:[1,0]' % (vr(8 + j, 2), vr(8 + j, 2)))
        for j in range(8): I('v_rcp_f32 v%d, v%d' % (8 + j, 8 + j))
        for j in range(0, 8, 2): I('v_pk_mul_f32 %s, %s, s[26:27]' % (vr(j, 2), vr(j, 2)))
        for j in range(0, 8, 2): I('v_pk_mul_f32 %s, %s, %s' % (vr(j, 2), vr(j, 2), vr(8 + j, 2)))
        I('s_waitcnt vmcnt(0)')
        I('s_barrier')
        self.stamp('e3')
        OF = 84; SA = 48
        def ord_(kk): I('ds_read_b128 %s, v%d offset:%d' % (vr(OF + 4 * (kk % 10), 4), ORD, 1024 * kk))
        for kk in range(8): ord_(kk)
        for kk in range(14):
            I('v_mfma_f32_32x32x16_bf16 %s, %s, %s, %s' % (vr(SA, 16), ar(4 * kk, 4), vr(OF + 4 * (kk % 10), 4), vr(SA, 16) if kk else '0'))
            if kk + 8 < 14: ord_(kk + 8)
        wr = []
        for q in range(4):
            for j in (2 * q, 2 * q + 1): I('v_cvt_pk_bf16_f32 v%d, v%d, v%d' % (SA + j, SA + 2 * j, SA + 2 * j + 1))
            wr.append(I('ds_write_b64 v%d, %s' % (SW + q, vr(SA + 2 * q, 2))))
        I('s_barrier', needs=wr)
        for h in range(2): I('ds_read_b128 %s, v%d offset:%d' % (vr(16 + 4 * h, 4), SRD_, 8192 * h))
        for h in range(2):
            for j in range(4):
                I('v_dot2_f32_bf16 v%d, v%d, s10, %s' % (24 + 2 * j, 16 + 4 * h + j, 'v%d' % (24 + 2 * j) if h else '0'))
                I('v_dot2_f32_bf16 v%d, v%d, s11, %s' % (25 + 2 * j, 16 + 4 * h + j, 'v%d' % (25 + 2 * j) if h else '0'))
        for j in range(0, 8, 2): I('v_pk_fma_f32 %s, %s, %s, %s' % (vr(j, 2), vr(j, 2), vr(24 + j, 2), vr(76 + j, 2)))
        for j in range(4): I('v_cvt_pk_bf16_f32 v%d, v%d, v%d' % (40 + j, 2 * j, 2 * j + 1))
        I('buffer_store_dwordx4 v[40:43], v%d, %s, s100 offen%s' % (XO, sr(S_OUT, 4), os.environ.get('OUTF', '')))
        self.stamp('final')

    def xfilter(self, body):
        out = []
        for x in body:
            if 'nosc1st' in EXP and x.op.startswith('buffer_store_dwordx4') and 'sc1' in x.text and 'v141' in x.text: x.text = x.text.replace(' sc1', '')
            if 'nost' in EXP and x.op.startswith('buffer_store_dwordx4') and 'v141' in x.text: x.text = 's_nop 0'
            if 'nob' in EXP and x.kind == 'dma' and 's[52:55]' in x.text: x.text = 's_nop 0'
            if 'sysp' in EXP and x.op == 'buffer_load_dword' and x.text.endswith('sc1') and 's[64:67]' in x.text: x.text = x.text.replace(' sc1', ' sc0 sc1')
            if 'nowo' in EXP and x.kind == 'dma' and 's[48:51]' in x.text: x.text = 's_nop 0'
            if 'noatom' in EXP and 'atomic' in x.op: x.text = 's_nop 0'
            if 'ntst' in EXP and x.op.startswith('buffer_store_dwordx4') and 'sc1' in x.text and 'v141' in x.text: x.text = x.text.replace(' sc1', ' sc0 sc1')
            out.append(x)
        return out
    def path(self, prefix, fn, label, keys):
        self.keys = keys
        if 'stamp' in self.__dict__: del self.__dict__['stamp']
        with self.g.capture() as body:
            if label: self.g.label(label)
            fn()
        self.xfilter(body)
        allp = [x for p in prefix for x in p]
        for x in allp: x.done = False
        full = self.g.finish(allp + body)
        if label:
            idx = next(i for i, x in enumerate(full) if x.kind == 'label' and x.text == label + ':')
            return full[idx:], body
        return full, body

    def build(self):
        I = self.I
        with self.g.capture() as pro:
            self.prologue()
            I('s_cmp_eq_u32 s%d, 1' % S_TYPE); I('s_cbranch_scc1 L_kv'); I('s_cmp_eq_u32 s%d, 2' % S_TYPE); I('s_cbranch_scc1 L_q')
        n0 = self.nst
        def endp():
            self.write_stamps(); I('s_endpgm')
        def ffn():
            self.ffn()
        out, _ = self.path([pro], ffn, None, ['0'])
        self.nst = n0
        code, kvc = self.path([pro], self.kv_common, 'L_kv', ['10', '11'])
        n1 = self.nst
        save = (dict(self.bdma), dict(self.bread))
        def kk():
            self.kv_k()
        def kvv():
            self.kv_v()
        c2, _ = self.path([pro, kvc], kk, 'L_kv_k', ['10'])
        self.nst = n1; self.bdma, self.bread = dict(save[0]), dict(save[1])
        c3, _ = self.path([pro, kvc], kvv, 'L_kv_v', ['11'])
        out += code + c2 + c3
        self.nst = n0
        def qq():
            self.q(); endp()
        c4, _ = self.path([pro], qq, 'L_q', ['2'])
        out += c4
        def p2():
            self.phase2(); endp()
        if 'nop2' not in EXP:
            c5, _ = self.path([], p2, 'L_p2', ['0', '10', '11'])
            out += c5
        with self.g.capture() as tail:
            self.g.label('L_end'); I('s_endpgm')
        return out + tail

HEADER = open('cdna_kernels/%s.s.ref' % NAME).read().split('; Override launch')[0]
def wrap(code, launch):
    return HEADER + launch + '''
.amdgcn_target "amdgcn-amd-amdhsa--gfx950"
.text
.globl %(n)s_kernel
.p2align 8
.type %(n)s_kernel,@function
%(n)s_kernel:
%(body)s
.section .rodata,"a"
.p2align 6
.amdhsa_kernel %(n)s_kernel
  .amdhsa_next_free_vgpr 256
  .amdhsa_next_free_sgpr 102
  .amdhsa_accum_offset %(nv)d
  .amdhsa_group_segment_fixed_size 0
  .amdhsa_kernarg_size 80
  .amdhsa_user_sgpr_count 2
  .amdhsa_user_sgpr_kernarg_segment_ptr 1
  .amdhsa_system_sgpr_workgroup_id_x 1
.end_amdhsa_kernel
''' % dict(n=NAME, body=render(code), nv=NV)

if __name__ == '__main__':
    stamps = '--stamps' in sys.argv
    k = K(stamps)
    code = k.build()
    open(sys.argv[1], 'w').write(wrap(code, '; @launch grid=(256,1,1) block=(512,1,1) lds=163840'))
    json.dump({t: [d.get(i, '') for i in range(16)] for t, d in k.names.items()} if stamps else {}, open(sys.argv[1][:-2] + '.json', 'w'))
    print('instructions', len(code), 'nops', sum(1 for i in code if i.kind == 'nop'))
```

```python
import numpy as np
LOG2E = 1.4426950408889634
HSCALE = -LOG2E
WS_H = 0
WS_O = 8 << 20
WS_KV = 10 << 20
WS_FLAG = 11 << 20
FSTR = 4352
WS_FO = WS_FLAG + 0x48000
WS_KVD = WS_FLAG + 0x50000
WS_KVZ = WS_FLAG + 0x58000
WS_RS = WS_FLAG + 0x60000
WS_SL = 13 << 20
WS_KF = 10 << 20
WS_CSG = WS_FLAG + 0x80000
WS_CSF = WS_FLAG + 0x70000
WS_STAMP = 12 << 20
WS_BYTES = 16 << 20
KV_H0 = [0, 3, 6, 9, 11, 13]
KV_NH = [3, 3, 3, 2, 2, 3]
def role(b):
    xcd = b & 7; j = b >> 3; q = xcd >> 1; s4 = j >> 3
    rb = (xcd & 1) * 8 + (j & 7)
    if s4 < 2: return (0, 2 * q + s4, rb)
    if s4 == 2: return (1, [0, 1, 2, 4][q], rb)
    if ((j >> 2) & 1) == (q >> 1): return (2, q & 1, rb)
    return (1, [3, 5][q & 1], rb)
def print_stamps(st):
    import json, os
    names = json.load(open(os.environ.get('STN', os.path.join(os.path.dirname(__file__), 'stamp_names.json'))))
    it, nb, nw, n = st.shape
    typ = np.array([role(b)[0] for b in range(256)])
    rt0 = st[:, :, :, 0]; rt1 = st[:, :, :, n - 1]
    base = rt0.min(axis=(1, 2), keepdims=True)
    print('start skew ns: med %.0f max %.0f ; end: med %.0f max %.0f' % (
        np.median((rt0 - base).max(axis=(1, 2))) * 10, ((rt0 - base).max()) * 10,
        np.median(np.median(rt1 - base, axis=(1, 2))) * 10, np.median((rt1 - base).max(axis=(1, 2))) * 10))
    last = np.where(st[:, :, :, 2:n - 1] > 0, st[:, :, :, 2:n - 1], 0).max(axis=3)
    clk = (last - st[:, :, :, 1]) / np.maximum(rt1 - rt0, 1) / 10.0
    print('clock GHz (approx): med %.3f' % np.median(clk), ' per-xcd start offset ns:', ' '.join('%d' % (np.median((rt0 - base)[:, x::8]) * 10) for x in range(8)))
    xb = rt0.reshape(it, 32, 8, nw).min(axis=(1, 3), keepdims=True)
    print('start offset by j within xcd (ns):', ' '.join('%d' % v for v in np.median((rt0.reshape(it, 32, 8, nw) - xb).max(axis=3), axis=(0, 2)) * 10))
    for key in sorted(names):
        t = int(key[0]);
        sel = st[:, typ == t]
        if len(key) > 1:
            ch = int(key[1]); sel = sel[:, :, 4 * ch:4 * ch + 4]
        print('type', key)
        for i in range(2, n - 1):
            d = sel[:, :, :, i] - sel[:, :, :, 1]
            ok = sel[:, :, :, i] > 0
            if not ok.any(): continue
            dd = d[ok]
            nm = names[key][i] if i < len(names[key]) else ''
            dl = (sel[:, :, :, i] - sel[:, :, :, i - 1])[ok & (sel[:, :, :, i - 1] > 0)]
            print('   stamp %2d %-14s med %7.0f  p10 %7.0f  p90 %7.0f max %7.0f   delta med %6.0f' % (i, nm, np.median(dd), np.percentile(dd, 10), np.percentile(dd, 90), dd.max(), np.median(dl) if len(dl) else -1))

def print_detail(st, slots):
    it, nb, nw, n = st.shape
    base = st[:, :, :, 0].min(axis=(1, 2), keepdims=True)
    clk = 2.1
    off = (st[:, :, :, 0] - base) * 10 * clk
    for sl in slots:
        v = np.where(st[:, :, :, sl] > 0, st[:, :, :, sl] - st[:, :, :, 1] + off, np.nan)
        print('slot', sl, 'per-xcd median / max (last iter):', ' '.join('%d/%d' % (np.nanmedian(v[-1, x::8]), np.nanmax(v[-1, x::8])) for x in range(8)))
        w = np.nanmax(v[-1], axis=1)
        idx = np.argsort(-np.nan_to_num(w))[:12]
        print('   worst WGs:', ' '.join('b%d(x%d,%s,w%d):%d' % (b, b & 7, role(b), np.nanargmax(v[-1, b]), w[b]) for b in idx))
```

```python
import sys, json, struct, os
from asmgen import *
import layout as L
EXP = os.environ.get('EXP', '').split(',')
SLEEP = int(os.environ.get('SLEEP', '4'))
BCHK = int(os.environ.get('BCHK', '7'))
W1K = int(os.environ.get('W1K', '3'))
PF0 = int(os.environ.get('PF0', '2'))
QSL = int(os.environ.get('QSL', '6'))
NST = int(os.environ.get('NST', '3')); MST = int(os.environ.get('MST', '1'))
ATOM = True
S_FA, S_FO, S_XO, S_SC, S_C1, S_C2, S_C3 = 98, 99, 100, 11, 96, 97, 25
RA, RB_ = [int(x) for x in os.environ.get('R1', '1,2').split(',')]
RC, RD = [int(x) for x in os.environ.get('R2', '2,4').split(',')]
STASH = 72; CSA = 32; DB2 = 125; S_CSB, S_R0 = 30, 101
assert int(os.environ.get('MST', '1')) <= 1
CST = int(os.environ.get('CST', '0'))
NAME = 'recurrent_scan__linear_kernel_hedgehog__dense_activation_silu__prompt'
def f32(x): return '0x%08x' % struct.unpack('<I', struct.pack('<f', x))[0]

S_X, S_W, S_PHI, S_WO, S_W2, S_OUT, S_DBG, S_WS = 36, 40, 44, 48, 52, 56, 60, 64
S_MASK, S_WAVE, S_IDX, S_RB, S_TYPE = 3, 4, 5, 6, 7
S_XS, S_WSO, S_EX56 = 12, 13, 14
S_MW, S_MX, S_ROW, S_NONCE = 32, 33, 34, 35
S_RT, S_CH = 68, 69
S_ST = 70
S_RG, S_CG, S_BSO, S_STA, S_A0, S_A1, S_OSO, S_NH, S_H0 = 16, 17, 18, 19, 20, 21, 22, 23, 24
S_ST4 = 25
S_L2E = 26
S_HIM = 28
STG = 45056; WPART = 16384
L_CNT = 3 * STG
L_CP = 136192
L_WPHI = 144384
L_SHX = L_WPHI
L_PHI = 0
L_V = 136192
L_STA = 57344
L_WO = 0
L_CX = 135168
L_KVQ = 0
L_KVF = 65536
L_XG = 65536
L_O = 0
L_XS = 131072
KORD = list(range(14))
NV = 144
ACC, WF, XF, ST, CS, AX, AW, AS, DX, DW = 0, 64, 96, 104, 108, 112, 116, 120, 122, 124
PFA = 136; TMP = 128; P2T = 128; BT2 = 126; DB = 139; VLANE = 140; VL16 = 141; BT = 142

class K:
    def __init__(self, stamps):
        self.g = Gen(); self.use_stamps = stamps; self.nst = 0; self.names = {}; self.keys = ['0', '10', '11', '2']
    def I(self, t, needs=()): return self.g.I(t, needs)
    def U(self, t):
        x = self.g.I(t); x.kind = 'untracked'; return x
    def stamp(self, name, real=False):
        if 'dbgt' in EXP and name in ('bar0', 'loopend', 'gdone', 'opub', 'ook'):
            r = {'bar0': [78], 'loopend': [80], 'gdone': [82], 'ook': [84], 'opub': [82, 84]}[name]
            for x in r: self.I('s_memtime s[%d:%d]' % (x, x + 1))
        if not self.use_stamps: return
        i = self.nst
        if i >= 12: return
        self.nst += 1
        for k in self.keys: self.names.setdefault(k, {})[i] = name
        self.I('%s %s' % ('s_memrealtime' if real else 's_memtime', sr(S_ST + 2 * i, 2)))
    def write_stamps(self, total=13):
        if 'dbgt' in EXP:
            I = self.I
            I('s_memrealtime s[74:75]'); I('s_memtime s[76:77]'); I('s_waitcnt vmcnt(0) lgkmcnt(0)')
            I('s_mov_b64 exec, 1'); I('v_mov_b32 v2, 0')
            I('v_mov_b32 v0, s70'); I('buffer_atomic_umax v0, v2, %s, 0 offen offset:8' % sr(S_DBG, 4))
            I('s_not_b32 s8, s70'); I('v_mov_b32 v1, s8'); I('buffer_atomic_umax v1, v2, %s, 0 offen offset:12' % sr(S_DBG, 4))
            I('v_mov_b32 v3, s74'); I('buffer_atomic_umax v3, v2, %s, 0 offen offset:16' % sr(S_DBG, 4))
            I('s_sub_u32 s8, s76, s72'); I('v_mov_b32 v4, s8'); I('buffer_atomic_umax v4, v2, %s, 0 offen offset:20' % sr(S_DBG, 4))
            I('s_sub_u32 s8, s74, s70'); I('v_mov_b32 v5, s8'); I('buffer_atomic_umax v5, v2, %s, 0 offen offset:24' % sr(S_DBG, 4))
            for k, so in enumerate((78, 80, 82, 84)):
                I('s_sub_u32 s8, s%d, s72' % so); I('v_mov_b32 v%d, s8' % (6 + k)); I('buffer_atomic_umax v%d, v2, %s, 0 offen offset:%d' % (6 + k, sr(S_DBG, 4), 28 + 4 * k))
            I('s_waitcnt vmcnt(0)')
            return
        if not self.use_stamps: return
        I = self.I
        I('s_memrealtime %s' % sr(S_ST + 2 * (total - 1), 2))
        I('s_waitcnt lgkmcnt(0)')
        I('s_lshl_b32 s8, s2, 3'); I('s_add_u32 s8, s8, s%d' % S_WAVE); I('s_lshl_b32 s8, s8, 7')
        I('s_add_u32 s8, s8, %d' % L.WS_STAMP)
        I('v_mov_b32 v2, 0')
        I('s_mov_b64 exec, 1')
        for i in range(total):
            I('v_mov_b32 v0, s%d' % (S_ST + 2 * i)); I('v_mov_b32 v1, s%d' % (S_ST + 2 * i + 1))
            I('buffer_store_dwordx2 v[0:1], v2, %s, s8 offen offset:%d' % (sr(S_WS, 4), 8 * i))
        I('s_mov_b64 exec, -1')
    def srd(self, d, base, nbytes):
        I = self.I
        I('s_mov_b32 s%d, s%d' % (d, base)); I('s_and_b32 s%d, s%d, 0xffff' % (d + 1, base + 1))
        I('s_mov_b32 s%d, %d' % (d + 2, nbytes)); I('s_mov_b32 s%d, 0x20000' % (d + 3))

    def prologue(self):
        I = self.I
        I('s_cmp_ge_u32 s2, 256'); I('s_cbranch_scc1 L_end')
        I('s_load_dwordx16 s[16:31], s[0:1], 0'); I('s_load_dwordx4 s[32:35], s[0:1], 64')
        if 'anti' in EXP:
            I('s_lshr_b32 s8, s2, 5'); I('s_and_b32 s9, s2, 31'); I('s_lshl_b32 s9, s9, 3'); I('s_or_b32 s2, s8, s9')
        I('s_getpc_b64 s[8:9]')
        self.g.label('L_pc')
        I('v_cmp_le_u32 vcc, 448, v0'); I('s_cbranch_vccz L_nopf')
        I('s_bfe_u32 s10, s2, 0x30003'); I('s_lshl_b32 s10, s10, 13')
        I('v_and_b32 v1, 63, v0'); I('v_lshlrev_b32 v1, 7, v1'); I('v_add_u32 v1, s10, v1')
        I('v_min_u32 v1, L_end-L_pc, v1')
        self.U('global_load_dword a80, v1, s[8:9]')
        self.g.label('L_nopf')
        if self.use_stamps:
            for i in range(13): I('s_mov_b64 %s, 0' % sr(S_ST + 2 * i, 2))
        self.stamp('rt0', True); self.stamp('t0')
        if 'dbgt' in EXP: I('s_memrealtime s[70:71]'); I('s_memtime s[72:73]')
        I('v_lshrrev_b32 v1, 6, v0'); I('v_and_b32 v0, 63, v0')
        I('v_readfirstlane_b32 s%d, v1' % S_WAVE)
        I('v_mov_b32 v%d, v0' % VLANE); I('v_lshlrev_b32 v%d, 4, v0' % VL16)
        I('s_and_b32 s8, s2, 7'); I('s_lshr_b32 s9, s2, 3')
        I('s_and_b32 s10, s8, 1'); I('s_lshl_b32 s10, s10, 3'); I('s_and_b32 s11, s9, 7'); I('s_add_u32 s%d, s10, s11' % S_RB)
        I('s_lshr_b32 s8, s8, 1'); I('s_lshr_b32 s10, s9, 3')
        I('s_lshl_b32 s11, s8, 2'); I('s_add_u32 s12, s11, s10')
        I('s_mov_b32 s%d, 0' % S_TYPE); I('s_lshl_b32 s%d, s8, 1' % S_IDX); I('s_add_u32 s%d, s%d, s10' % (S_IDX, S_IDX))
        I('s_cmp_lt_u32 s10, 2'); I('s_cbranch_scc1 L_role')
        I('s_mov_b32 s%d, 1' % S_TYPE); I('s_lshr_b32 s%d, 0x4210, s11' % S_IDX); I('s_and_b32 s%d, s%d, 15' % (S_IDX, S_IDX))
        I('s_cmp_eq_u32 s10, 2'); I('s_cbranch_scc1 L_role')
        I('s_and_b32 s13, s8, 1'); I('s_lshl_b32 s%d, s13, 1' % S_IDX); I('s_add_u32 s%d, s%d, 3' % (S_IDX, S_IDX))
        I('s_bfe_u32 s11, s9, 0x10002'); I('s_lshr_b32 s8, s8, 1'); I('s_cmp_lg_u32 s11, s8'); I('s_cbranch_scc1 L_role')
        I('s_mov_b32 s%d, 2' % S_TYPE); I('s_mov_b32 s%d, s13' % S_IDX)
        self.g.label('L_role')
        I('s_lshl_b32 s8, s%d, 4' % S_RB); I('s_add_u32 s8, s8, s12'); I('s_lshl_b32 s8, s8, 3'); I('s_add_u32 s11, s8, s%d' % S_WAVE)
        I('s_mov_b32 s%d, -1' % S_EX56); I('s_mov_b32 s%d, 0x00ffffff' % (S_EX56 + 1))
        I('s_and_b32 s%d, s%d, 3' % (S_RT, S_WAVE)); I('s_lshr_b32 s%d, s%d, 2' % (S_CH, S_WAVE))
        I('s_mov_b32 s%d, 0xffff0000' % S_MASK)
        I('v_lshrrev_b32 v2, 3, v0'); I('v_mul_u32_u24 v2, 896, v2')
        I('v_lshrrev_b32 v3, 4, v0'); I('v_and_b32 v4, 7, v0'); I('v_xor_b32 v4, v4, v3')
        I('v_lshl_add_u32 v%d, v4, 4, v2' % DX)
        I('v_xor_b32 v4, 4, v4'); I('v_lshl_add_u32 v%d, v4, 4, v2' % (DX + 1)); I('v_add_u32 v%d, %d, v%d' % (DX + 1, 8 * 896 - 1024, DX + 1))
        I('s_lshl_b32 s8, s%d, 3' % S_RB); I('s_add_u32 s8, s8, s%d' % S_WAVE); I('s_mul_i32 s%d, s8, %d' % (S_XS, 16 * 896))
        I('v_cmp_lt_u32 vcc, 27, v0'); I('v_subrev_u32 v7, 28, v0'); I('v_cndmask_b32 v7, v0, v7, vcc'); I('v_cndmask_b32 v6, 0, 1, vcc')
        I('v_cmp_gt_u32 vcc, 56, v0'); I('v_mov_b32 v5, 0x7fffffff'); I('v_cndmask_b32 v5, v5, v%d, vcc' % VL16)
        I('s_waitcnt lgkmcnt(0)')
        if 'start' in EXP: self.stamp('karg')
        self.srd(S_X, 16, 2048 * 896)
        self.srd(S_WS, 34, L.WS_BYTES); self.srd(S_DBG, 32, 256)
        I('s_mov_b32 s%d, s11' % S_ROW)
        I('s_lshl_b32 s%d, s%d, 11' % (S_MX, S_WAVE))
        I('s_mul_i32 s%d, s%d, %d' % (S_MW, S_WAVE, 8 * 448)); I('s_add_u32 s%d, s%d, %d' % (S_MW, S_MW, WPART))

    def start_stream(self, gpitch):
        I = self.I
        for i in range(1, 4): I('v_add_u32 v%d, %d, v%d' % (DW + i, i * (2 * gpitch - 896), DW))
        I('s_mul_i32 s8, s%d, %d' % (S_WAVE, 8 * gpitch)); I('s_add_u32 s%d, s%d, s8' % (S_WSO, S_WSO))
        self.gpitch = gpitch
        d = {}
        if 'start' in EXP: self.stamp('pre_s0')
        grps, d[0] = self.stage_dma(0, gpitch)
        for gp in grps: self.g.extend(gp)
        I('s_mul_i32 s8, s%d, 896' % S_ROW)
        I('buffer_load_dwordx4 %s, v5, %s, s8 offen' % (vr(XF, 4), sr(S_X, 4)))
        I('s_cmp_ge_u32 s%d, 7' % S_RB); I('s_cbranch_scc1 L_nocx%s' % self.tagbase)
        I('s_sub_u32 s8, s%d, 1' % S_RB); I('s_mul_i32 s8, s8, %d' % (64 * gpitch)); I('s_add_u32 s8, s8, s%d' % S_WSO)
        I('s_add_u32 m0, s%d, %d' % (S_MW, L_CX - WPART)); I('s_mov_b64 exec, %s' % sr(S_EX56, 2))
        for j in range(4): self.U('buffer_load_dwordx4 v%d, %s, s8 offen offset:%d lds' % (DW + j, sr(S_W, 4), 896 * j))
        I('s_mov_b64 exec, -1')
        self.g.label('L_nocx%s' % self.tagbase)
        lab = 'L_nonon' + self.tagbase
        I('s_or_b32 s8, s2, s%d' % S_WAVE); I('s_cmp_lg_u32 s8, 0'); I('s_cbranch_scc1 %s' % lab)
        self.U('s_memrealtime s[8:9]'); self.U('s_waitcnt lgkmcnt(0)'); I('s_or_b32 s8, s8, 1'); I('v_mov_b32 v8, s8'); I('v_mov_b32 v9, 0')
        I('s_mov_b64 exec, 1'); self.U('buffer_store_dword v8, v9, %s, 0 offen sc1' % sr(S_DBG, 4)); I('s_mov_b64 exec, -1')
        self.g.label(lab)
        if 'start' in EXP: self.stamp('s0iss')
        return d
    def mall_addr(self):
        I = self.I
        segs = [(16, 7, 2, 5, 2048 * 896), (18, 4, 128 * 21, 4, 448 * 2688), (26, 5, 128 * 28, 5, 448 * 3584), (28, 7, 0, 7, 1792 * 896), (22, 2, 0, 2, 448 * 896)]
        I('s_lshl_b32 s8, s2, 3'); I('s_add_u32 s8, s8, s%d' % S_WAVE)
        lo = 0
        for i, (sb, mul, first, n, size) in enumerate(segs):
            I('s_mul_i32 s9, s8, %d' % mul); I('s_add_i32 s9, s9, %d' % (first - lo))
            I('v_add_u32 v10, s9, v0'); I('v_lshlrev_b32 v10, 7, v10'); I('v_min_u32 v10, %d, v10' % (size - 4))
            if i == 0:
                I('v_mov_b32 v11, v10'); I('v_mov_b32 v8, s%d' % sb); I('v_mov_b32 v9, s%d' % (sb + 1))
            else:
                I('v_cmp_le_u32 vcc, %d, v0' % lo); I('v_mov_b32 v12, s%d' % sb); I('v_mov_b32 v13, s%d' % (sb + 1))
                I('v_cndmask_b32 v11, v11, v10, vcc'); I('v_cndmask_b32 v8, v8, v12, vcc'); I('v_cndmask_b32 v9, v9, v13, vcc')
            lo += n
        I('v_add_co_u32 v%d, vcc, v8, v11' % PFA); I('v_addc_co_u32 v%d, vcc, 0, v9, vcc' % (PFA + 1))
    def mall_issue(self, part):
        if 'nomall' in EXP: return []
        I = self.I
        with self.g.capture() as a:
            I('s_mov_b64 exec, %d' % ([0x3fff, 0x7fc000][part]))
            I('global_load_dword a%d, %s, off' % (80 + part, vr(PFA, 2)))
            I('s_mov_b64 exec, -1')
        return [a]
    def pre_loop(self, p2, idx0, extra=None, late=None):
        I = self.I; g = self.g
        self.mall_addr()
        self.late_srds()
        if p2:
            self.p2_setup()
            for gp in self.p2_pre(): g.extend(gp)
        I('s_add_u32 s8, s%d, %d' % (S_IDX, idx0)); I('s_lshl_b32 s8, s8, 14'); I('s_add_u32 s%d, s8, %d' % (S_CSB, L.WS_CSG))
        if extra: extra()
        if 'start' in EXP: self.stamp('setup')
        self.s0pos = len(g.cur)
        if 'not0' not in EXP:
            for gp in self.mall_issue(0): g.extend(gp)
        if late: late()
        self.row_stats()
    def chunks(self, fn, n=10):
        with self.g.capture() as body:
            fn()
        out = []; cur = []
        for i, x in enumerate(body):
            cur.append(x)
            nxt = body[i + 1] if i + 1 < len(body) else None
            safe = nxt is not None and not (nxt.op.startswith(('s_cselect', 's_cbranch', 's_addc', 's_subb', 'v_cndmask', 'v_addc')) or nxt.kind in ('dma', 'label')) \
                and not x.op.startswith(('s_cmp', 'v_cmp')) and 'm0' not in x.dst
            if len(cur) >= n and safe: out.append(cur); cur = []
        if cur: out.append(cur)
        return out

    def late_srds(self):
        I = self.I
        self.srd(S_PHI, 20, 16 * 28 * 28 * 2); self.srd(S_WO, 22, 448 * 896); self.srd(S_W2, 28, 1792 * 896)
        self.srd(S_OUT, 30, 2048 * 896)
        I('s_mov_b32 s%d, %s' % (S_L2E, f32(L.LOG2E))); I('s_mov_b32 s%d, %s' % (S_L2E + 1, f32(L.LOG2E)))
        I('s_mov_b32 s%d, 0' % S_HIM); I('s_mov_b32 s%d, -1' % (S_HIM + 1))
        I('s_mov_b32 s31, 0')

    def late_group(self, p2, extra=None):
        with self.g.capture() as a:
            self.late_srds()
            if extra: extra()
        self.p2flag = p2
        return a
    def p2_setup(self):
        I = self.I; T = 64
        I('s_lshr_b32 s9, s2, 3'); I('s_and_b32 s8, s9, 3'); I('s_add_u32 s8, s8, 24'); I('s_cmp_lt_u32 s9, 24'); I('s_cselect_b32 s9, s9, s8')
        I('s_mul_i32 s8, s9, 37'); I('s_lshr_b32 s8, s8, 8'); I('s_mul_i32 s10, s8, 7'); I('s_sub_u32 s%d, s9, s10' % S_CG)
        I('s_and_b32 s10, s2, 7'); I('s_lshl_b32 s10, s10, 2'); I('s_add_u32 s%d, s10, s8' % S_RG)
        I('s_mul_i32 s%d, s%d, %d' % (S_BSO, S_WAVE, 224 * 896)); I('s_lshl_b32 s8, s%d, 7' % S_CG); I('s_add_u32 s%d, s%d, s8' % (S_BSO, S_BSO))
        I('s_lshl_b32 s%d, s%d, 12' % (S_STA, S_WAVE)); I('s_add_u32 s%d, s%d, %d' % (S_STA, S_STA, L_STA))
        I('v_lshrrev_b32 v%d, 3, v140' % T); I('v_mul_u32_u24 v%d, 896, v%d' % (T, T))
        I('v_lshrrev_b32 v%d, 2, v140' % (T + 1)); I('v_and_b32 v%d, 4, v%d' % (T + 1, T + 1)); I('v_and_b32 v%d, 7, v140' % (T + 2))
        I('v_xor_b32 v%d, v%d, v%d' % (T + 1, T + 1, T + 2)); I('v_lshl_add_u32 v%d, v%d, 4, v%d' % (DB, T + 1, T))
        I('v_lshrrev_b32 v%d, 5, v140' % T); I('v_lshlrev_b32 v%d, 2, v%d' % (T, T)); I('v_bfe_u32 v%d, v140, 2, 2' % (T + 1)); I('v_add_u32 v%d, v%d, v%d' % (T, T, T + 1))
        I('v_lshlrev_b32 v%d, 7, v%d' % (T, T)); I('v_add_u32 v%d, s%d, v%d' % (T, S_STA, T))
        I('v_and_b32 v%d, 3, v140' % (T + 1)); I('v_lshlrev_b32 v%d, 3, v%d' % (T + 1, T + 1))
        I('v_and_b32 v%d, 16, v140' % (T + 2)); I('v_lshl_add_u32 v%d, v%d, 1, v%d' % (T + 1, T + 2, T + 1))
        I('v_and_b32 v%d, 8, v140' % (T + 2)); I('v_lshlrev_b32 v%d, 3, v%d' % (T + 2, T + 2)); I('v_xor_b32 v%d, v%d, v%d' % (T + 1, T + 1, T + 2))
        I('v_add_u32 v%d, v%d, v%d' % (BT, T, T + 1))
        I('v_xor_b32 v%d, 64, v%d' % (T + 1, T + 1)); I('v_add_u32 v%d, v%d, v%d' % (BT + 1, T, T + 1))

    def slot4_setup(self):
        I = self.I
        I('s_lshl_b32 s%d, s%d, 11' % (S_ST4, S_WAVE)); I('s_add_u32 s%d, s%d, %d' % (S_ST4, S_ST4, L_SHX)); I('s_sub_u32 s8, s%d, s%d' % (S_ST4, S_STA))
        for b in range(2): I('v_add_u32 v%d, s8, v%d' % (BT2 + b, BT + b))
    def wo_dma(self):
        g = self.g; I = self.I; grps = []
        with g.capture() as a:
            I('s_mul_i32 s23, s%d, %d' % (S_WAVE, 56 * 896)); I('s_lshl_b32 s24, s%d, 7' % S_CG); I('s_add_u32 s23, s23, s24'); I('s_mul_i32 s24, s%d, %d' % (S_WAVE, 56 * 128))
        for i in range(0, 7, 2):
            with g.capture() as b:
                I('s_add_u32 m0, s24, %d' % (L_WO + 1024 * i)); I('s_add_u32 s8, s23, %d' % (8 * 896 * i))
                I('buffer_load_dwordx4 v%d, %s, s8 offen lds' % (DB, sr(S_WO, 4)))
                if i + 1 < 7: I('buffer_load_dwordx4 v%d, %s, s8 offen offset:1024 lds' % (DB2, sr(S_WO, 4)))
            grps.append((a if i == 0 else []) + b)
        return grps
    SLOTS = [(0, BT), (2048, BT), (32768, BT), (34816, BT), (None, BT2)]
    def b_dma(self, k, needs=()):
        g = self.g; I = self.I; so = self.SLOTS[k % self.nslot][0]; grps = []
        with g.capture() as a:
            I('s_add_u32 m0, s%d, %d' % (S_STA, so) if so is not None else 's_mov_b32 m0, s%d' % S_ST4)
            I('s_add_u32 s8, s%d, %d' % (S_BSO, 16 * k * 896))
            I('buffer_load_dwordx4 v%d, %s, s8 offen lds' % (DB, sr(S_W2, 4)), needs=needs)
            I('buffer_load_dwordx4 v%d, %s, s8 offen offset:1024 lds' % (DB2, sr(S_W2, 4)))
        grps.append(a)
        self.bdma[k] = [x for gp in grps for x in gp if x.kind == 'dma']
        return grps
    def b_read(self, k):
        so, reg = self.SLOTS[k % self.nslot]; out = []
        if so is None: so = 0
        for b in range(2):
            for h in range(2):
                out.append(Instr('ds_read_b64_tr_b16 %s, v%d offset:%d' % (ar(8 * k + 4 * b + 2 * h, 2), reg + b, so + 1024 * h), needs=self.bdma[k]))
        self.bread[k] = out
        return out
    def b_tasks(self, k0, k1):
        t = [self.b_read(k) for k in range(k0, k1)]
        for k in range(k0, k1):
            if k + self.nslot < 14: t += self.b_dma(k + self.nslot, needs=self.bread[k])
        return t

    def stage_dma(self, st, gpitch):
        g = self.g; I = self.I; base = (st % 3) * STG
        grps = []
        for i in range(0, 4, 2):
            with g.capture() as a:
                if i == 0: I('s_add_u32 m0, s%d, %d' % (S_MW, base))
                I('s_mov_b64 exec, %s' % sr(S_EX56, 2))
                for j in (i, i + 1): I('buffer_load_dwordx4 v%d, %s, s%d offen offset:%d lds' % (DW + j, sr(S_W, 4), S_WSO, 896 * j))
                I('s_mov_b64 exec, -1')
            grps.append(a)
        with g.capture() as a:
            I('s_add_u32 m0, s%d, %d' % (S_MX, base)); I('s_add_u32 s%d, s%d, %d' % (S_WSO, S_WSO, 64 * gpitch))
            for i in range(2): I('buffer_load_dwordx4 v%d, %s, s%d offen offset:%d lds' % (DX + i, sr(S_X, 4), S_XS, 1024 * i))
            I('s_add_u32 s%d, s%d, 128' % (S_XS, S_XS))
        grps.append(a)
        return grps, [x for gp in grps for x in gp if x.kind == 'dma']

    def read_addrs(self, clamp, shared=False):
        I = self.I; T = TMP
        I('v_and_b32 v%d, 31, v0' % T); I('v_lshlrev_b32 v%d, 7, v%d' % (T, T)); I('s_lshl_b32 s8, s%d, 12' % S_RT); I('v_add_u32 v%d, s8, v%d' % (T, T))
        I('v_lshrrev_b32 v%d, 5, v0' % (T + 1)); I('v_bfe_u32 v%d, v0, 1, 3' % (T + 2)); I('v_xor_b32 v%d, v%d, v%d' % (T + 2, T + 2, T + 1))
        I('v_lshlrev_b32 v%d, 3, v%d' % (T + 3, T + 1)); I('v_bfe_u32 v%d, v0, 2, 2' % (T + 4)); I('v_add_u32 v%d, v%d, v%d' % (T + 3, T + 3, T + 4))
        I('v_mul_u32_u24 v%d, 448, v%d' % (T + 3, T + 3))
        I('v_bfe_u32 v%d, v0, 4, 1' % (T + 4)); I('v_and_b32 v%d, 3, v0' % (T + 5)); I('v_lshl_add_u32 v%d, v%d, 2, v%d' % (T + 4, T + 4, T + 5))
        if shared:
            I('s_lshl_b32 s8, s%d, 2' % S_CH); I('v_xor_b32 v%d, s8, v%d' % (T + 6, T + 4)); I('v_lshl_add_u32 v%d, v%d, 3, v%d' % (T + 6, T + 6, T + 3))
            I('v_add_u32 v%d, %d, v%d' % (T + 6, WPART + 384, T + 6))
        if clamp: I('v_min_u32 v%d, 6, v%d' % (T + 4, T + 4))
        if shared:
            I('s_cmp_eq_u32 s%d, 7' % S_WAVE); I('s_cselect_b32 s8, 4, 0'); I('v_xor_b32 v%d, s8, v%d' % (CS + 3, T + 4))
            I('s_min_u32 s9, s%d, 6' % S_WAVE); I('s_lshl_b32 s9, s9, 6'); I('s_add_u32 s9, s9, %d' % L_CX)
        else:
            I('v_mov_b32 v%d, v%d' % (CS + 3, T + 4)); I('s_mul_i32 s9, s%d, 56' % S_RT); I('s_add_u32 s9, s9, s10'); I('s_add_u32 s9, s9, %d' % (L_CX - WPART))
        I('v_lshl_add_u32 v%d, v%d, 3, v%d' % (CS + 3, CS + 3, T + 3)); I('v_add_u32 v%d, s9, v%d' % (CS + 3, CS + 3))
        I('v_lshl_add_u32 v%d, v%d, 3, v%d' % (T + 3, T + 4, T + 3))
        I('v_add_u32 v%d, s10, v%d' % (T + 3, T + 3))
        for i in range(4):
            I('s_add_u32 s8, s%d, s%d' % (S_RT, S_CH)); I('s_add_u32 s8, s8, %d' % i); I('s_and_b32 s8, s8, 3')
            I('s_lshl_b32 s9, s8, 1'); I('v_xor_b32 v%d, s9, v%d' % (T + 5, T + 2)); I('v_lshl_add_u32 v%d, v%d, 4, v%d' % (AX + i, T + 5, T))
            I('s_mul_i32 s9, s8, 7168'); I('v_add_u32 v%d, s9, v%d' % (AW + i, T + 3))
            if shared and i in (0, 2): I('v_add_u32 v%d, s9, v%d' % (AS + i // 2, T + 6))

    def row_stats(self):
        I = self.I; S, Q = ST, ST + 1
        I('s_mov_b32 s8, 0x3f803f80')
        I('v_dot2_f32_bf16 v%d, v%d, s8, 0' % (S, XF)); I('v_dot2_f32_bf16 v%d, v%d, v%d, 0' % (Q, XF, XF))
        for q in range(1, 4):
            I('v_dot2_f32_bf16 v%d, v%d, s8, v%d' % (S, XF + q, S)); I('v_dot2_f32_bf16 v%d, v%d, v%d, v%d' % (Q, XF + q, XF + q, Q))
        for m in ('row_shr:1', 'row_shr:2', 'row_shr:4', 'row_shr:8'):
            for r in (S, Q): I('v_add_f32_dpp v%d, v%d, v%d %s row_mask:0xf bank_mask:0xf bound_ctrl:0' % (r, r, r, m))
        for m, rm in (('row_bcast:15', '0xa'), ('row_bcast:31', '0xc')):
            for r in (S, Q): I('v_add_f32_dpp v%d, v%d, v%d %s row_mask:%s bank_mask:0xf' % (r, r, r, m, rm))
        I('v_mul_f32 v%d, %s, v%d' % (S, f32(1.0 / 448), S)); I('v_mul_f32 v%d, %s, v%d' % (Q, f32(1.0 / 448), Q))
        I('v_fma_f32 v%d, -v%d, v%d, v%d' % (Q, S, S, Q)); I('v_max_f32 v%d, 0, v%d' % (Q, Q))
        def rbf(r):
            I('v_cvt_pk_bf16_f32 v%d, v%d, v%d' % (r, r, r)); I('v_lshlrev_b32 v%d, 16, v%d' % (r, r))
        rbf(S); rbf(Q)
        I('v_add_f32 v%d, %s, v%d' % (Q, f32(1e-5), Q)); rbf(Q)
        I('v_sqrt_f32 v%d, v%d' % (Q, Q)); rbf(Q)
        I('v_rcp_f32 v%d, v%d' % (Q, Q))
        I('v_sub_f32 v%d, 0, v%d' % (S, S))

    def nonce_issue(self):
        self.I('v_mov_b32 v%d, 0' % (ST + 3))
        return self.I('buffer_load_dword v%d, v%d, %s, 0 offen sc1' % (ST + 2, ST + 3, sr(S_DBG, 4)))
    def nonce_get_publish(self, tag):
        I = self.I; U = self.U
        I('v_readfirstlane_b32 s%d, v%d' % (S_NONCE, ST + 2))
        I('s_cmp_lg_u32 s%d, 0' % S_NONCE); I('s_cbranch_scc1 L_gotn%s' % tag)
        self.g.label('L_spinn%s' % tag)
        U('buffer_load_dword v%d, v%d, %s, 0 offen sc1' % (ST + 2, ST + 3, sr(S_DBG, 4)))
        U('s_waitcnt vmcnt(0)')
        I('v_readfirstlane_b32 s%d, v%d' % (S_NONCE, ST + 2)); I('s_nop 1')
        I('s_cmp_lg_u32 s%d, 0' % S_NONCE); I('s_cbranch_scc1 L_gotn%s' % tag)
        self.spin_tail('L_spinn%s' % tag)
        self.g.label('L_gotn%s' % tag)
        I('v_mov_b32 v%d, s%d' % (ST + 2, S_NONCE)); I('v_mov_b32 v%d, s%d' % (ST + 3, S_NONCE))
        I('s_lshl_b32 s8, s%d, 4' % S_ROW); I('s_add_u32 s8, s8, %d' % L.WS_RS); I('v_mov_b32 v%d, 0' % (TMP + 8))
        I('s_mov_b32 exec_lo, 0'); I('s_mov_b32 exec_hi, 0x80000000')
        I('buffer_store_dwordx4 %s, v%d, %s, s8 offen sc1' % (vr(ST, 4), TMP + 8, sr(S_WS, 4)))
        I('s_mov_b64 exec, -1')
    def rs_issue(self):
        I = self.I
        I('s_lshl_b32 s8, s%d, 2' % S_RB); I('s_add_u32 s8, s8, s%d' % S_RT); I('s_lshl_b32 s8, s8, 9'); I('s_add_u32 s%d, s8, %d' % (S_ROW, L.WS_RS))
        I('v_and_b32 v%d, 31, v%d' % (DX, VLANE)); I('v_lshlrev_b32 v%d, 4, v%d' % (DX, DX))
        return I('buffer_load_dwordx4 %s, v%d, %s, s%d offen sc1' % (vr(ST, 4), DX, sr(S_WS, 4), S_ROW))
    def rs_get(self, tag, scale):
        I = self.I; U = self.U
        I('v_cmp_ne_u32 vcc, s%d, v%d' % (S_NONCE, ST + 2)); I('s_nop 1'); I('s_cbranch_vccz L_gotr%s' % tag)
        self.g.label('L_spinr%s' % tag)
        U('buffer_load_dwordx4 %s, v%d, %s, s%d offen sc1' % (vr(ST, 4), DX, sr(S_WS, 4), S_ROW))
        U('s_waitcnt vmcnt(0)')
        I('v_cmp_ne_u32 vcc, s%d, v%d' % (S_NONCE, ST + 2)); I('s_nop 1'); I('s_cbranch_vccz L_gotr%s' % tag)
        self.spin_tail('L_spinr%s' % tag)
        self.g.label('L_gotr%s' % tag)
        for q in range(4): I('v_cvt_pk_bf16_f32 v%d, v%d, v%d' % (XF + q, ST, ST))
        I('v_mul_f32 v%d, %s, v%d' % (ST, f32(scale), ST + 1))
    def publish(self, soff_s, tmp, needs=()):
        I = self.I
        I('v_mov_b32 v%d, s%d' % (tmp, S_NONCE)); I('v_mov_b32 v%d, 0' % (tmp + 1)); I('s_mov_b64 exec, 1')
        x = I('buffer_store_dword v%d, v%d, %s, s%d offen sc1' % (tmp, tmp + 1, sr(S_WS, 4), soff_s), needs=needs)
        I('s_mov_b64 exec, -1')
        return x
    def poll(self, tag, voff, soff_s, tmp):
        I = self.I; U = self.U
        self.g.label('L_poll%s' % tag)
        U('buffer_load_dword v%d, v%d, %s, s%d offen sc1' % (tmp, voff, sr(S_WS, 4), soff_s))
        I('s_waitcnt vmcnt(0)')
        I('v_cmp_ne_u32 vcc, s%d, v%d' % (S_NONCE, tmp)); I('s_nop 1'); I('s_cbranch_vccz L_polld%s' % tag)
        self.spin_tail('L_poll%s' % tag)
        self.g.label('L_polld%s' % tag)
    def poll_issue(self, voff, soff_s, tmp):
        return self.I('buffer_load_dword v%d, v%d, %s, s%d offen sc1' % (tmp, voff, sr(S_WS, 4), soff_s))
    def poll_check(self, tag, voff, soff_s, tmp):
        I = self.I; U = self.U
        if 'nopoll' in EXP and tag in 'AB': return
        I('v_cmp_ne_u32 vcc, s%d, v%d' % (S_NONCE, tmp)); I('s_nop 1'); I('s_cbranch_vccz L_polld%s' % tag)
        self.g.label('L_poll%s' % tag)
        U('buffer_load_dword v%d, v%d, %s, s%d offen sc1' % (tmp, voff, sr(S_WS, 4), soff_s)); U('s_waitcnt vmcnt(0)')
        I('v_cmp_ne_u32 vcc, s%d, v%d' % (S_NONCE, tmp)); I('s_nop 1'); I('s_cbranch_vccz L_polld%s' % tag)
        self.spin_tail('L_poll%s' % tag)
        self.g.label('L_polld%s' % tag)
    def spin_tail(self, lab, sl=None):
        I = self.I
        I('s_sleep %d' % (sl or SLEEP)); I('s_add_u32 s31, s31, 1'); I('s_cmp_lt_u32 s31, 0x8000'); I('s_cbranch_scc1 %s' % lab)

    def l2pf(self, st):
        if 'l2pf' not in EXP: return []
        I = self.I; lab = 'L_pf%s%d' % (self.tagbase, st)
        with self.g.capture() as a:
            I('s_lshr_b32 s8, s%d, 1' % S_WAVE); I('s_cmp_lg_u32 s8, %d' % (st - PF0)); I('s_cbranch_scc1 %s' % lab)
            I('s_lshr_b32 s8, s2, 3'); I('s_lshl_b32 s8, s8, 3'); I('s_add_u32 s8, s8, s%d' % S_WAVE); I('s_lshl_b32 s8, s8, 13')
            I('v_lshlrev_b32 v%d, 7, v%d' % (TMP + 8, VLANE))
            self.U('buffer_load_dword a80, v%d, %s, s8 offen' % (TMP + 8, sr(S_W2, 4)))
            I('s_sub_u32 s8, s8, %d' % (196 * 8192)); I('s_cbranch_scc1 %s' % lab)
            self.U('buffer_load_dword a80, v%d, %s, s8 offen' % (TMP + 8, sr(S_WO, 4)))
            self.g.label(lab)
        return [a]

    def code_pf(self, tg, tmp, dst):
        if 'nocpf' in EXP: return []
        I = self.I
        with self.g.capture() as a:
            I('s_getpc_b64 s[8:9]'); self.g.label('L_cpf%s' % tg)
            I('s_sub_u32 s8, s8, L_cpf%s-L_pc' % tg); I('s_subb_u32 s9, s9, 0')
            I('s_bfe_u32 s10, s2, 0x20003'); I('s_lshl_b32 s10, s10, 3'); I('s_add_u32 s10, s10, s%d' % S_WAVE); I('s_lshl_b32 s10, s10, 11')
            I('v_lshlrev_b32 v%d, 7, v%d' % (tmp, VLANE)); I('v_add_u32 v%d, s10, v%d' % (tmp, tmp)); I('v_min_u32 v%d, L_end-L_pc, v%d' % (tmp, tmp))
            I('s_mov_b64 exec, 0xffff')
            I('global_load_dword %s, v%d, s[8:9]' % (dst, tmp))
            I('s_mov_b64 exec, -1')
        return [a]

    def gemm(self, tiles, gpitch, dms, tag, hooks, tl):
        g = self.g; I = self.I
        dmas = dict(dms)
        NF, LOOK = 8, 4
        seq = [(ks, cc) for ks in range(28) for cc in range(len(tiles[ks & 3]['t']))]
        def wread(n):
            ks, cc = seq[n]; a = WF + 4 * (n % NF); c, areg, off = tiles[ks & 3]['t'][cc]
            return [Instr('ds_read_b64_tr_b16 %s, v%d offset:%d' % (vr(a + 2 * h, 2), areg, off + h * 4 * 448)) for h in range(2)]
        def xread(ks):
            return [Instr('ds_read_b128 %s, v%d' % (vr(XF + 4 * (ks % 2), 4), AX + (ks & 3)))]
        aregs = sorted(set(list(range(AX, AX + 4)) + [t[1] for p in tiles for t in p['t']]))
        def adv(st):
            d = STG if st % 3 else -2 * STG
            return [Instr('v_add_u32 v%d, %d, v%d' % (r, d, r)) if d > 0 else Instr('v_subrev_u32 v%d, %d, v%d' % (r, -d, r)) for r in aregs]
        tc = [0]
        def cs_ops(r, c):
            t = TMP + 2 * (tc[0] % 4); tc[0] += 1
            return [Instr('v_lshlrev_b32 v%d, 16, v%d' % (t, r)), Instr('v_and_b32 v%d, s%d, v%d' % (t + 1, S_MASK, r)),
                    Instr('v_add_f32 v%d, v%d, v%d' % (CS + c, CS + c, t)), Instr('v_add_f32 v%d, v%d, v%d' % (CS + c, CS + c, t + 1))]
        if 'start' in EXP:
            self.stamp('rowst'); I('s_nop 0', needs=dmas[0]); self.stamp('s0arr'); I('s_waitcnt lgkmcnt(0)')
        BAR0 = len(g.cur)
        I('s_barrier', needs=dmas[0])
        self.stamp('bar0')
        g.extend(xread(0))
        first = [wread(n) for n in range(LOOK)]
        for x in first: g.extend(x)
        g1, dmas[1] = self.stage_dma(1, gpitch)
        pend, dmas[2] = self.stage_dma(2, gpitch)
        g.cur[self.s0pos:self.s0pos] = [Instr('s_barrier')] + [x for gp in g1 for x in gp]
        wrd = {}
        cs = {}
        def cs_make():
            with g.capture() as a:
                T = TMP
                I('s_cmp_ge_u32 s%d, 7' % S_RB); I('s_cbranch_scc1 L_nocm%s' % tag)
                I('s_mov_b32 s9, 0x3f803f80')
                for half in range(2):
                    for k2 in range(2):
                        for h in range(2): self.U('ds_read_b64_tr_b16 %s, v%d offset:%d' % (vr(T + 4 * k2 + 2 * h, 2), CS + 3, (2 * half + k2) * 7168 + h * 1792))
                    self.U('s_waitcnt lgkmcnt(0)')
                    for q in range(8): I('v_dot2_f32_bf16 v%d, v%d, s9, %s' % (CS + (q & 1), T + q, 'v%d' % (CS + (q & 1)) if half or q > 1 else '0'))
                I('s_lshl_b32 s8, s%d, 11' % S_WAVE); I('s_add_u32 s8, s8, s%d' % S_CSB); I('s_lshr_b32 s9, s%d, 2' % S_RB); I('s_lshl_b32 s9, s9, 10'); I('s_add_u32 s8, s8, s9')
                I('s_and_b32 s9, s%d, 3' % S_RB); I('s_lshl_b32 s9, s9, 2'); I('s_add_u32 s8, s8, s9')
                I('v_add_f32 v%d, v%d, v%d' % (CS, CS, CS + 1))
                I('v_cvt_pk_bf16_f32 v%d, v%d, v%d' % (T, CS, CS)); I('v_and_b32 v%d, s%d, v%d' % (T, S_MASK, T))
                I('v_sub_f32 v%d, v%d, v%d' % (T, CS, T)); I('v_cvt_pk_bf16_f32 v%d, v%d, v%d' % (CS, T, CS))
                self.U('buffer_store_dword v%d, v%d, %s, s8 offen sc1' % (CS, VL16, sr(S_WS, 4)))
                self.g.label('L_nocm%s' % tag)
            return [a]
        def cs_flag():
            with g.capture() as a:
                I('s_cmp_lt_u32 s%d, 7' % S_RB); I('s_cselect_b32 s8, s%d, 1' % S_WAVE); I('s_cmp_lg_u32 s8, 0'); I('s_cbranch_scc1 L_nocf%s' % tag)
                I('s_sub_u32 s8, s%d, %d' % (S_CSB, L.WS_CSG)); I('s_lshr_b32 s8, s8, 4'); I('s_lshl_b32 s9, s%d, 7' % S_RB); I('s_add_u32 s8, s8, s9'); I('s_add_u32 s8, s8, %d' % L.WS_CSF)
                self.publish(8, TMP).kind = 'untracked'
                self.g.label('L_nocf%s' % tag)
            return [a]
        def cs_poll():
            with g.capture() as a:
                I('s_sub_u32 s10, s%d, %d' % (S_CSB, L.WS_CSG)); I('s_lshr_b32 s10, s10, 4'); I('s_add_u32 s%d, s10, %d' % (S_R0, L.WS_CSF))
                I('v_and_b32 v%d, 7, v%d' % (CS, VLANE)); I('v_min_u32 v%d, 6, v%d' % (CS, CS)); I('v_lshlrev_b32 v%d, 7, v%d' % (CS, CS))
                self.poll_issue(CS, S_R0, CS + 1)
            return [a]
        def cs_load():
            with g.capture() as a:
                for c, mul, add in tl:
                    I('s_mul_i32 s8, s%d, %d' % (S_CH, mul * 2048)); I('s_add_u32 s8, s8, s%d' % S_CSB); I('s_add_u32 s8, s8, %d' % (add * 2048))
                    for h in range(2): I('buffer_load_dwordx4 %s, v%d, %s, s8 offen offset:%d sc1' % (ar(CSA + 8 * c + 4 * h, 4), VL16, sr(S_WS, 4), 1024 * h))
            return [a]
        for n in range(LOOK): wrd[n] = first[n]
        started = set(); xr = 0; cfill = []
        for n, (ks, cc) in enumerate(seq):
            p = tiles[ks & 3]; c = p['t'][cc][0]; a = WF + 4 * (n % NF); xf = XF + 4 * (ks % 2)
            I('v_mfma_f32_32x32x16_bf16 %s, %s, %s, %s' % (vr(ACC + 16 * c, 16), vr(a, 4), vr(xf, 4), vr(ACC + 16 * c, 16) if c in started else '0'),
              needs=wrd.get(n + 1, []) if n % 2 == 0 else [])
            started.add(c)
            nn = n + LOOK
            if nn < len(seq):
                ks2, cc2 = seq[nn]
                if cc2 == 0 and ks2 & 3 == 0:
                    st2 = ks2 >> 2
                    assert xr == ks2 - 1
                    g.extend(adv(st2))
                    if st2 == NST: self.nonce_get_publish(tag)
                    if st2 == 6: self.poll_check('c' + tag, CS, S_R0, CS + 1); self.rs_issue()
                    if st2 in hooks.get('pre', {}): hooks['pre'][st2]()
                    if 'stg' in EXP and st2 in (2, 3, 6): self.stamp('preB%d' % st2)
                    I('s_waitcnt lgkmcnt(0)')
                    I('s_barrier', needs=dmas[st2])
                    if 'stg' in EXP: self.stamp('B%d' % st2)
                    if st2 == 1:
                        with g.capture() as grp_: self.nonce_issue()
                        pend += [grp_]
                    if st2 == 1: pend += cs_make()
                    if st2 == 3: pend += cs_flag()
                    if st2 == 5: pend += cs_poll()
                    if st2 == 6: pend += cs_load()
                    if st2 in self.pre_post: pend += self.pre_post[st2]()
                    if st2 + 2 < 7:
                        newg, dmas[st2 + 2] = self.stage_dma(st2 + 2, gpitch); pend += newg
                    if st2 == MST: pend += self.mall_issue(1)
                    if st2 in hooks.get('post', {}): pend += hooks['post'][st2]()
                wrd[nn] = wread(nn); g.extend(wrd[nn])
            if xr == ks and ks + 1 < 28 and (nn >= len(seq) or seq[min(nn, len(seq) - 1)][0] >= ks + 1):
                g.extend(xread(ks + 1)); xr = ks + 1
            if pend and (n % 3 == 0 or len(pend) > 3): g.extend(pend.pop(0))
        for x in pend: g.extend(x)
        self.stamp('loopend')

    def finish_stats(self, tl, scale, tag, before_b1=None, after_b1=None):
        I = self.I
        wr = []
        if before_b1: wr += before_b1() or []
        self.rs_get(tag, scale)
        for c, mul, add in tl: I('v_accvgpr_write_b32 a%d, 0' % (CSA + 8 * c + 7))
        for h in range(2):
            for c, mul, add in tl:
                I('v_mfma_f32_32x32x16_bf16 %s, %s, %s, %s' % (vr(ACC + 16 * c, 16), ar(CSA + 8 * c + 4 * h, 4), vr(XF, 4), vr(ACC + 16 * c, 16)))
        I('s_barrier', needs=wr)
        if after_b1: after_b1()
        if 'stg' in EXP: self.stamp = lambda *a, **k: None
        self.stamp('stats')

    def with_bg(self, fn, tasks, every):
        with self.g.capture() as body:
            fn()
        out = []; tasks = list(tasks); cnt = 0
        for x in body:
            out.append(x); cnt += 1
            if tasks and cnt >= every and x.kind in ('valu', 'trans') and not (x.dst & {'vcc'}):
                out += tasks.pop(0); cnt = 0
        for t in tasks: out += t
        self.g.extend(out)

    def ffn(self):
        I = self.I; g = self.g
        self.tagbase = 'f'
        self.srd(S_W, 26, 448 * 3584)
        I('v_mul_u32_u24 v6, 3584, v6'); I('v_lshl_add_u32 v%d, v7, 4, v6' % DW)
        I('s_mul_i32 s%d, s%d, 448' % (S_WSO, S_IDX))
        dms = self.start_stream(3584)
        I('s_mul_i32 s10, s%d, 192' % S_CH); I('s_add_u32 s10, s10, %d' % WPART)
        self.read_addrs(False, shared=True)
        self.pre_loop(True, 0); self.pre_post = {}
        own = lambda i, o: [(c, AW + i, 64 * c) for c in o]
        tiles = [dict(t=[(3, AS, 0)] + own(0, [0, 1, 2]), cs=True), dict(t=own(1, [0, 1, 2]), cs=True),
                 dict(t=own(2, [1, 2, 0]) + [(3, AS + 1, 0)], cs=True), dict(t=own(3, [2, 0, 1]), cs=True)]
        self.bdma, self.bread = {}, {}; self.nslot = 5
        tl = [(0, 3, 0), (1, 3, 1), (2, 3, 2), (3, 1, 6)]
        self.gemm(tiles, 3584, dms, 'f', self.bhooks(), tl)
        self.slot4_setup()
        SH = ACC + 48; X8 = 116
        def before_b1():
            I('s_xor_b32 s8, s%d, 4' % S_WAVE); I('s_lshl_b32 s8, s8, 11'); I('s_add_u32 s8, s8, %d' % L_SHX); I('v_add_u32 v%d, s8, v%d' % (AX, VL16))
            I('s_lshl_b32 s8, s%d, 11' % S_WAVE); I('s_add_u32 s8, s8, %d' % L_SHX); I('v_add_u32 v%d, s8, v%d' % (AX + 1, VL16))
            return [I('ds_write_b128 v%d, %s offset:%d' % (AX, vr(SH + 8 + 4 * q, 4), 1024 * q)) for q in range(2)]
        shr = []
        def after_b1():
            for q in range(2): shr.append(I('ds_read_b128 %s, v%d offset:%d' % (vr(X8 + 4 * q, 4), AX + 1, 1024 * q)))
        self.finish_stats(tl, -L.LOG2E, 'f', before_b1, after_b1)
        I('s_lshl_b32 s8, s%d, 2' % S_RB); I('s_add_u32 s8, s8, s%d' % S_RT); I('s_mul_i32 s9, s8, %d' % (112 * 1024))
        I('s_lshl_b32 s8, s8, 3'); I('s_add_u32 s8, s8, s%d' % S_IDX); I('s_lshl_b32 s8, s8, 1'); I('s_add_u32 s8, s8, s%d' % S_CH)
        I('s_lshl_b32 s8, s8, 7'); I('s_add_u32 s0, s8, %d' % L.WS_FLAG)
        I('s_mul_i32 s10, s%d, %d' % (S_IDX, 14 * 1024)); I('s_add_u32 s9, s9, s10')
        I('s_mul_i32 s10, s%d, 6144' % S_CH); I('s_add_u32 s10, s9, s10')
        I('s_lshl_b32 s11, s%d, 10' % S_CH); I('s_add_u32 s9, s9, s11'); I('s_add_u32 s1, s9, %d' % (12 * 1024))
        stores = []
        def unit(idx):
            c, u = divmod(idx, 2)
            A = ACC + 16 * c + 8 * u; T = [64, 72][idx & 1]; P = [80, 84][idx & 1]
            if 'noprio' not in EXP:
                lab = 'L_fp%d' % idx
                I('s_setprio 0'); I('s_cmp_eq_u32 s%d, %d' % (S_CH, idx & 1)); I('s_cbranch_scc1 %s' % lab); I('s_setprio 1'); self.g.label(lab)
            if c == 3:
                for j in range(0, 8, 2): I('v_pk_add_f32 %s, %s, %s' % (vr(A + j, 2), vr(A + j, 2), vr(X8 + j, 2)))
            for j in range(0, 8, 2): I('v_pk_mul_f32 %s, %s, %s op_sel_hi:[1,0]' % (vr(A + j, 2), vr(A + j, 2), vr(ST, 2)))
            for j in range(8): I('v_exp_f32 v%d, v%d' % (T + j, A + j))
            for j in range(0, 8, 2): I('v_pk_add_f32 %s, %s, 1.0 op_sel_hi:[1,0]' % (vr(T + j, 2), vr(T + j, 2)))
            for j in range(8): I('v_rcp_f32 v%d, v%d' % (T + j, T + j))
            for j in range(0, 8, 2): I('v_pk_mul_f32 %s, %s, %s' % (vr(T + j, 2), vr(T + j, 2), vr(A + j, 2)))
            for j in range(0, 8, 2): I('v_cvt_pk_bf16_f32 v%d, v%d, v%d' % (P + j // 2, T + j, T + j + 1))
            if idx == 4: I('s_add_u32 s10, s10, 4096')
            if c < 3: stores.append(I('buffer_store_dwordx4 %s, v%d, %s, s10 offen offset:%d sc1' % (vr(P, 4), VL16, sr(S_WS, 4), (idx % 4) * 1024)))
            else: stores.append(I('buffer_store_dwordx4 %s, v%d, %s, s1 offen sc1' % (vr(P, 4), VL16, sr(S_WS, 4))))
        self.with_bg(lambda: [unit(i) for i in range(6)], self.b_round1(shr) + ([] if 'wolate' in EXP else self.wo_dma()), int(os.environ.get('FBG', '11')))
        unit(6)
        I('s_setprio 0')
        self.stamp('epi')
        self.p2_enter()
        bt = self.b_tasks(4, 9)
        for t in bt[:5]: g.extend(t)
        self.publish(0, 96, needs=stores)
        self.stamp('pub')
        if 'nofh' not in EXP: I('s_barrier')
        for t in bt[5:8]: g.extend(t)
        pa = self.poll_issue(P2T + 1, S_FA, P2T)
        for t in bt[8:] + (self.wo_dma() if 'wolate' in EXP else []): g.extend(t)
        I('s_waitcnt lgkmcnt(0)'); I('s_nop 0', needs=[pa])
        I('s_branch L_p2')

    def b_round1(self, need4=None):
        t = [sum([self.b_read(k) for k in range(4)], [])]
        if need4 is not None: t += self.b_dma(4, needs=need4)
        for k in range(4): t += self.b_dma(k + 5, needs=self.bread[k])
        return t

    def bhooks(self, extra=None):
        post = {5: lambda: [[Instr('v_add_u32 v%d, %d, v%d' % (DB2, 8 * 896 - 1024, DB))]] + self.b_dma(0) + self.b_dma(1), 6: lambda: self.b_dma(2) + self.b_dma(3)}
        if extra: post.update(extra)
        return dict(post=post)

    def pack_k(self, A, K8):
        I = self.I
        for j in range(8): I('v_cvt_pk_bf16_f32 v%d, v%d, v%d' % (K8 + j, A + 2 * j, A + 2 * j + 1))
        for j in (6, 7): I('v_cndmask_b32 v%d, v%d, 0, %s' % (K8 + j, K8 + j, sr(S_HIM, 2)))
    def half_units(self, As, neg):
        I = self.I; M = 64; n = '-' if neg else ''; nm = ' neg_lo:[1,0,0] neg_hi:[1,0,0]' if neg else ''
        def each(f):
            for i, A in enumerate(As): f(A, M + 6 * i)
        I('v_mov_b32 v%d, 0xff800000' % (TMP + 10))
        each(lambda A, m: (I('v_max3_f32 v%d, %sv%d, %sv%d, %sv%d' % (m, n, A, n, A + 1, n, A + 2)), I('v_max3_f32 v%d, %sv%d, %sv%d, %sv%d' % (m + 1, n, A + 8, n, A + 9, n, A + 10))))
        for j in (3, 5): each(lambda A, m: (I('v_max3_f32 v%d, v%d, %sv%d, %sv%d' % (m, m, n, A + j, n, A + j + 1)), I('v_max3_f32 v%d, v%d, %sv%d, %sv%d' % (m + 1, m + 1, n, A + 8 + j, n, A + 9 + j))))
        each(lambda A, m: I('v_max3_f32 v%d, v%d, %sv%d, %sv%d' % (m + 1, m + 1, n, A + 7, n, A + 15)))
        each(lambda A, m: I('v_max_f32 v%d, v%d, v%d' % (m, m, m + 1)))
        each(lambda A, m: I('v_mov_b32 v%d, v%d' % (m + 1, m)))
        each(lambda A, m: I('v_permlane32_swap_b32 v%d, v%d' % (m, m + 1)))
        each(lambda A, m: I('v_max_f32 v%d, v%d, v%d' % (m, m, m + 1)))
        each(lambda A, m: I('v_mul_f32 v%d, -v%d, v%d' % (m, ST, m)))
        each(lambda A, m: I('v_cndmask_b32 v%d, v%d, v%d, %s' % (m + 1, m, TMP + 10, sr(S_HIM, 2))))
        for j in range(0, 16, 2):
            sel = 'op_sel_hi:[1,0,0]' if j < 12 else 'op_sel:[0,0,1] op_sel_hi:[1,0,1]'
            each(lambda A, m: I('v_pk_fma_f32 %s, %s, %s, %s %s%s' % (vr(A + j, 2), vr(A + j, 2), vr(ST, 2), vr(m, 2), sel, nm)))
        for j in range(16): each(lambda A, m: I('v_exp_f32 v%d, v%d' % (A + j, A + j)))
        each(lambda A, m: (I('v_pk_add_f32 %s, %s, %s' % (vr(m + 2, 2), vr(A, 2), vr(A + 2, 2))), I('v_pk_add_f32 %s, %s, %s' % (vr(m + 4, 2), vr(A + 8, 2), vr(A + 10, 2)))))
        for j in (4, 6): each(lambda A, m: (I('v_pk_add_f32 %s, %s, %s' % (vr(m + 2, 2), vr(m + 2, 2), vr(A + j, 2))), I('v_pk_add_f32 %s, %s, %s' % (vr(m + 4, 2), vr(m + 4, 2), vr(A + 8 + j, 2)))))
        each(lambda A, m: I('v_pk_add_f32 %s, %s, %s' % (vr(m + 2, 2), vr(m + 2, 2), vr(m + 4, 2))))
        each(lambda A, m: I('v_add_f32 v%d, v%d, v%d' % (m, m + 2, m + 3)))
        each(lambda A, m: I('v_mov_b32 v%d, v%d' % (m + 1, m)))
        each(lambda A, m: I('v_permlane32_swap_b32 v%d, v%d' % (m, m + 1)))
        each(lambda A, m: I('v_add_f32 v%d, v%d, v%d' % (m, m, m + 1)))
        each(lambda A, m: I('v_rcp_f32 v%d, v%d' % (m, m)))
        for j in range(0, 16, 2): each(lambda A, m: I('v_pk_mul_f32 %s, %s, %s op_sel_hi:[1,0]' % (vr(A + j, 2), vr(A + j, 2), vr(m, 2))))
        for j in range(8): each(lambda A, m: I('v_cvt_pk_bf16_f32 v%d, v%d, v%d' % (A + j, A + 2 * j, A + 2 * j + 1)))
    def phi_mfma(self, A, K8, WP):
        I = self.I
        I('v_mfma_f32_32x32x16_bf16 %s, %s, %s, 0' % (vr(A, 16), ar(WP, 4), vr(K8, 4)))
        I('v_mfma_f32_32x32x16_bf16 %s, %s, %s, %s' % (vr(A, 16), ar(WP + 4, 4), vr(K8 + 4, 4), vr(A, 16)))
    def softmax_unit(self, A, sreg=None):
        I = self.I
        EP, EN, M = 64, 80, TMP
        mx, nm, t, u = M, M + 1, M + 2, M + 4
        I('v_mov_b32 v%d, 0xff800000' % (M + 10))
        m2, n2 = M + 6, M + 7
        for (a, b, o) in ((mx, nm, 0), (m2, n2, 8)):
            I('v_max3_f32 v%d, v%d, v%d, v%d' % (a, A + o, A + o + 1, A + o + 2)); I('v_max3_f32 v%d, -v%d, -v%d, -v%d' % (b, A + o, A + o + 1, A + o + 2))
        for j in (3, 5):
            for (a, b, o) in ((mx, nm, 0), (m2, n2, 8)):
                I('v_max3_f32 v%d, v%d, v%d, v%d' % (a, a, A + o + j, A + o + j + 1)); I('v_max3_f32 v%d, v%d, -v%d, -v%d' % (b, b, A + o + j, A + o + j + 1))
        I('v_max3_f32 v%d, v%d, v%d, v%d' % (m2, m2, A + 7, A + 15)); I('v_max3_f32 v%d, v%d, -v%d, -v%d' % (n2, n2, A + 7, A + 15))
        I('v_max_f32 v%d, v%d, v%d' % (mx, mx, m2)); I('v_max_f32 v%d, v%d, v%d' % (nm, nm, n2))
        I('v_permlane32_swap_b32 v%d, v%d' % (mx, nm)); I('v_max_f32 v%d, v%d, v%d' % (t, mx, nm))
        I('v_mul_f32 v%d, -v%d, v%d' % (t, ST, t)); I('v_mov_b32 v%d, v%d' % (u, t)); I('v_permlane32_swap_b32 v%d, v%d' % (t, u))
        I('v_cndmask_b32 v%d, v%d, v%d, %s' % (t + 1, t, M + 10, sr(S_HIM, 2))); I('v_cndmask_b32 v%d, v%d, v%d, %s' % (u + 1, u, M + 10, sr(S_HIM, 2)))
        for j in range(0, 16, 2):
            sel = 'op_sel_hi:[1,0,0]' if j < 12 else 'op_sel:[0,0,1] op_sel_hi:[1,0,1]'
            I('v_pk_fma_f32 %s, %s, %s, %s %s' % (vr(EP + j, 2), vr(A + j, 2), vr(ST, 2), vr(t, 2), sel))
            I('v_pk_fma_f32 %s, %s, %s, %s %s neg_lo:[1,0,0] neg_hi:[1,0,0]' % (vr(EN + j, 2), vr(A + j, 2), vr(ST, 2), vr(u, 2), sel))
        for j in range(16): I('v_exp_f32 v%d, v%d' % (EP + j, EP + j)); I('v_exp_f32 v%d, v%d' % (EN + j, EN + j))
        sp, sn = M + 6, M + 8
        I('v_pk_add_f32 %s, %s, %s' % (vr(sp, 2), vr(EP, 2), vr(EP + 2, 2))); I('v_pk_add_f32 %s, %s, %s' % (vr(sn, 2), vr(EN, 2), vr(EN + 2, 2)))
        for j in range(4, 16, 2):
            I('v_pk_add_f32 %s, %s, %s' % (vr(sp, 2), vr(sp, 2), vr(EP + j, 2))); I('v_pk_add_f32 %s, %s, %s' % (vr(sn, 2), vr(sn, 2), vr(EN + j, 2)))
        I('v_add_f32 v%d, v%d, v%d' % (sp, sp, sp + 1)); I('v_add_f32 v%d, v%d, v%d' % (sn, sn, sn + 1))
        I('v_permlane32_swap_b32 v%d, v%d' % (sp, sn)); I('v_add_f32 v%d, v%d, v%d' % (t, sp, sn))
        if sreg is None:
            I('v_rcp_f32 v%d, v%d' % (t, t)); I('v_mov_b32 v%d, v%d' % (u, t)); I('v_permlane32_swap_b32 v%d, v%d' % (t, u))
            for j in range(0, 16, 2):
                I('v_pk_mul_f32 %s, %s, %s op_sel_hi:[1,0]' % (vr(EP + j, 2), vr(EP + j, 2), vr(t, 2)))
                I('v_pk_mul_f32 %s, %s, %s op_sel_hi:[1,0]' % (vr(EN + j, 2), vr(EN + j, 2), vr(u, 2)))
            for j in range(8):
                I('v_cvt_pk_bf16_f32 v%d, v%d, v%d' % (A + j, EP + 2 * j, EP + 2 * j + 1)); I('v_cvt_pk_bf16_f32 v%d, v%d, v%d' % (A + 8 + j, EN + 2 * j, EN + 2 * j + 1))
        else:
            I('v_mov_b32 v%d, v%d' % (u, t))
            for j in range(2): I('v_cvt_pk_bf16_f32 v%d, v%d, v%d' % (A + j, EP + 2 * j, EP + 2 * j + 1))
            I('v_permlane32_swap_b32 v%d, v%d' % (t, u)); I('v_rcp_f32 v%d, v%d' % (u, u))
            for j in range(2, 8): I('v_cvt_pk_bf16_f32 v%d, v%d, v%d' % (A + j, EP + 2 * j, EP + 2 * j + 1))
            I('v_mul_f32 v%d, v%d, v%d' % (u, u, t)); I('v_mov_b32 v%d, v%d' % (sreg, t))
            for j in range(0, 16, 2): I('v_pk_mul_f32 %s, %s, %s op_sel_hi:[1,0]' % (vr(EN + j, 2), vr(EN + j, 2), vr(u, 2)))
            for j in range(8): I('v_cvt_pk_bf16_f32 v%d, v%d, v%d' % (A + 8 + j, EN + 2 * j, EN + 2 * j + 1))

    def wphi_dma(self, n, head0_s):
        I = self.I; out = []
        I('s_mul_i32 s8, s%d, 1568' % head0_s); I('s_lshl_b32 s9, s%d, 10' % S_WAVE); I('s_add_u32 s8, s8, s9'); I('s_add_u32 s9, s9, %d' % L_WPHI)
        for i in range(n):
            I('s_add_u32 m0, s9, %d' % (8192 * i)); I('s_add_u32 s10, s8, %d' % (8192 * i))
            out.append(I('buffer_load_dwordx4 v%d, %s, s10 offen lds' % (VL16, sr(S_PHI, 4))))
        return out
    def wphi_read(self, nheads, hoff_s, WP):
        I = self.I; T = TMP + 9
        I('v_lshrrev_b32 v%d, 5, v%d' % (T, VLANE)); I('v_lshlrev_b32 v%d, 2, v%d' % (T, T)); I('v_bfe_u32 v%d, v%d, 2, 2' % (T + 1, VLANE)); I('v_add_u32 v%d, v%d, v%d' % (T, T, T + 1))
        I('v_mul_u32_u24 v%d, 56, v%d' % (T, T)); I('v_add_u32 v%d, s%d, v%d' % (T, hoff_s, T))
        I('v_bfe_u32 v%d, v%d, 4, 1' % (T + 1, VLANE)); I('v_lshlrev_b32 v%d, 2, v%d' % (T + 1, T + 1)); I('v_and_or_b32 v%d, v%d, 3, v%d' % (T + 1, VLANE, T + 1))
        I('v_min_u32 v%d, 6, v%d' % (T + 1, T + 1)); I('v_lshl_add_u32 v%d, v%d, 3, v%d' % (T, T + 1, T))
        for i in range(nheads):
            for s in range(2):
                for h in range(2):
                    I('ds_read_b64_tr_b16 %s, v%d offset:%d' % (ar(WP + 8 * i + 4 * s + 2 * h, 2), T, i * 1568 + (16 * s + 8 * h) * 56))

    def kv_common(self):
        I = self.I; g = self.g
        self.tagbase = 'k'
        self.srd(S_W, 18, 448 * 2688)
        I('s_lshl_b32 s8, s%d, 2' % S_IDX); I('s_lshr_b32 s9, 0xdb9630, s8'); I('s_and_b32 s9, s9, 15')
        I('s_lshr_b32 s10, 0x322333, s8'); I('s_and_b32 s10, s10, 15')
        I('s_mul_i32 s11, s9, 56'); I('s_and_b32 s%d, s11, -16' % S_WSO); I('s_and_b32 s11, s11, 8')
        I('s_mul_i32 s8, s10, 3'); I('s_add_u32 s8, s8, 1')
        I('v_cmp_lt_u32 vcc, 13, v7'); I('v_subrev_u32 v8, 14, v7'); I('v_cndmask_b32 v8, v7, v8, vcc'); I('v_min_u32 v8, s8, v8')
        I('v_mov_b32 v9, 896'); I('v_mov_b32 v10, 1792'); I('v_cndmask_b32 v9, v9, v10, vcc')
        I('v_mul_u32_u24 v6, 2688, v6'); I('v_add_u32 v6, v6, v9'); I('v_lshl_add_u32 v%d, v8, 4, v6' % DW)
        I('s_mov_b32 s0, s9'); I('s_mov_b32 s1, s10'); I('s_mov_b32 s%d, s11' % S_NONCE)
        dms = self.start_stream(2688)
        I('s_mul_i32 s10, s%d, 224' % S_CH); I('s_add_u32 s10, s10, s%d' % S_NONCE); I('s_add_u32 s10, s10, %d' % WPART)
        self.read_addrs(True)
        PW, HO, UA, VW, ZV = 48, 50, 51, 54, 58
        def kvx():
            I('s_mov_b32 s%d, s0' % S_H0); I('s_mov_b32 s%d, s1' % S_NH)
        def kvl():
            I('s_mov_b32 s%d, s%d' % (S_R0, S_H0))
            if ATOM:
                I('s_cmp_lg_u32 s%d, 0' % S_RB); I('s_cbranch_scc1 L_nozero')
                Z = 68
                for i in range(4): I('v_mov_b32 v%d, 0' % (Z + i))
                I('s_lshl_b32 s8, s%d, 13' % S_H0); I('s_lshl_b32 s9, s%d, 10' % S_WAVE); I('s_add_u32 s8, s8, s9'); I('s_add_u32 s8, s8, %d' % L.WS_KV)
                self.U('buffer_store_dwordx4 %s, v%d, %s, s8 offen sc1' % (vr(Z, 4), VL16, sr(S_WS, 4)))
                I('s_add_u32 s8, s8, 8192'); self.U('buffer_store_dwordx4 %s, v%d, %s, s8 offen sc1' % (vr(Z, 4), VL16, sr(S_WS, 4)))
                I('s_add_u32 s8, s8, 8192'); I('s_cmp_eq_u32 s%d, 3' % S_NH); I('s_cselect_b32 s8, s8, 0x7f000000')
                self.U('buffer_store_dwordx4 %s, v%d, %s, s8 offen sc1' % (vr(Z, 4), VL16, sr(S_WS, 4))); I('s_nop 1')
                self.g.label('L_nozero')
            for gp in post4(): g.extend(gp)
        kv_pre = lambda: self.pre_loop(True, 8, kvx, kvl)
        rot = lambda i: [((i + cc) % 3, AW + i, 56 * ((i + cc) % 3)) for cc in range(3)]
        tiles = [dict(t=rot(i), cs=(i < 3)) for i in range(4)]
        self.bdma, self.bread = {}, {}; self.nslot = 5
        def pre2():
            pass
        def post2():
            with g.capture() as a:
                I('s_mov_b32 s8, %d' % L_WPHI)
                self.wphi_read(3, 8, 88)
            return [a]
        def post3():
            with g.capture() as a:
                I('s_or_b32 s8, s%d, s%d' % (S_RB, S_WAVE)); I('s_cmp_lg_u32 s8, 0'); I('s_cbranch_scc1 L_nozf')
                I('s_lshl_b32 s8, s%d, 7' % S_IDX); I('s_add_u32 s8, s8, %d' % (L.WS_KVZ + 0x4000))
                self.publish(8, TMP + 8).kind = 'untracked'
                self.g.label('L_nozf')
            return [a]
        self.kvr = (PW, HO, UA, VW, ZV)
        def post4():
            A, B, C = 64, 65, 66; out = []
            with g.capture() as a:
                I('v_and_b32 v%d, 31, v%d' % (A, VLANE)); I('v_lshlrev_b32 v%d, 6, v%d' % (A, A)); I('s_lshl_b32 s8, s%d, 11' % S_RT); I('v_add_u32 v%d, s8, v%d' % (A, A))
                I('v_bfe_u32 v%d, v%d, 1, 2' % (B, VLANE)); I('v_lshl_add_u32 v%d, v%d, 4, v%d' % (A, B, A))
                I('v_lshrrev_b32 v%d, 5, v%d' % (B, VLANE))
                I('v_lshl_add_u32 v%d, v%d, 13, v%d' % (PW, B, A)); I('s_lshl_b32 s9, s%d, 5' % S_CH); I('v_xor_b32 v%d, s9, v%d' % (PW, PW)); I('v_xor_b32 v%d, 16, v%d' % (PW + 1, PW))
                I('s_add_u32 s8, s8, %d' % L_V); I('v_add_u32 v%d, s8, v%d' % (HO, VL16))
                I('v_lshl_add_u32 v%d, v%d, 3, v%d' % (VW, B, A)); I('v_add_u32 v%d, %d, v%d' % (VW, L_V, VW))
                for q in range(1, 4): I('v_xor_b32 v%d, %d, v%d' % (VW + q, 16 * q, VW))
                I('v_lshlrev_b32 v%d, 10, v%d' % (UA + 2, B)); I('v_and_b32 v%d, 31, v%d' % (A, VLANE)); I('v_lshl_add_u32 v%d, v%d, 2, v%d' % (UA + 2, A, UA + 2))
            out.append(a)
            with g.capture() as a:
                I('v_lshrrev_b32 v%d, 5, v%d' % (A, VLANE)); I('v_bfe_u32 v%d, v%d, 2, 2' % (B, VLANE)); I('v_lshl_add_u32 v%d, v%d, 2, v%d' % (A, A, B))
                I('v_bfe_u32 v%d, v%d, 4, 1' % (B, VLANE)); I('v_bfe_u32 v%d, v%d, 1, 1' % (C, VLANE)); I('v_lshl_add_u32 v%d, v%d, 1, v%d' % (B, B, C))
                I('v_lshrrev_b32 v%d, 1, v%d' % (C, A)); I('v_xor_b32 v%d, v%d, v%d' % (B, B, C)); I('v_lshlrev_b32 v%d, 6, v%d' % (A, A)); I('v_lshl_add_u32 v%d, v%d, 4, v%d' % (A, B, A))
                I('v_and_b32 v%d, 1, v%d' % (B, VLANE)); I('v_lshl_add_u32 v%d, v%d, 3, v%d' % (A, B, A))
                I('s_lshl_b32 s10, s%d, 13' % S_WAVE); I('v_add_u32 v%d, s10, v%d' % (UA + 1, A))
                I('s_lshr_b32 s9, s%d, 1' % S_WAVE); I('s_lshl_b32 s10, s9, 13'); I('s_add_u32 s10, s10, %d' % L_V); I('v_add_u32 v%d, s10, v%d' % (UA, A))
                I('s_add_u32 s10, s9, s%d' % S_H0); I('s_lshl_b32 s10, s10, 13'); I('s_and_b32 s8, s%d, 1' % S_WAVE); I('s_lshl_b32 s8, s8, 7'); I('s_add_u32 s10, s10, s8')
                I('s_add_u32 s0, s10, %d' % L.WS_KV)
                I('s_cmp_lt_u32 s9, s%d' % S_NH); I('s_cselect_b32 s%d, 1, 0' % S_NH)
                I('s_lshl_b32 s8, s%d, 4' % S_IDX); I('s_add_u32 s8, s8, s%d' % S_RB); I('s_lshl_b32 s8, s8, 7'); I('s_add_u32 s1, s8, %d' % L.WS_KVZ)
                I('s_lshl_b32 s%d, s%d, 7' % (S_H0, S_IDX)); I('s_add_u32 s%d, s%d, %d' % (S_H0, S_H0, L.WS_KVZ + 0x4000)); I('v_mov_b32 v%d, 0' % ZV)
            out.append(a)
            return out
        kv_pre()
        def wpd():
            with g.capture() as a: self.wphi_dma(1, S_R0)
            return [a]
        self.pre_post = {2: wpd}
        hk = self.bhooks({4: post2, NST: post3})
        p6 = hk['post'][6]
        def post6():
            with g.capture() as a: self.poll_issue(ZV, S_H0, ZV + 1)
            return [a] + p6()
        hk['post'][6] = post6
        tl = [(c, 4, c) for c in range(3)]
        self.gemm(tiles, 2688, dms, 'k', hk, tl)
        self.finish_stats(tl, L.LOG2E, 'k', self.slot4_setup)
        I('s_cmp_eq_u32 s%d, 1' % S_CH); I('s_cbranch_scc1 L_kv_v')

    def kv_rest(self, tg, As, wr):
        I = self.I; g = self.g; PW, HO, U, VW, ZV = self.kvr
        self.with_bg(lambda: self.half_units(As, tg == 'v'), self.b_round1(), int(os.environ.get('KBG', '14')))
        for i, A in enumerate(As):
            wr += [I('ds_write_b128 v%d, %s offset:%d' % (PW + q, vr(A + 4 * q, 4), L_PHI + 16384 * i)) for q in range(2)]
        self.poll_check('z' + tg, ZV, S_H0, ZV + 1)
        for k in range(5, 9): g.extend(self.b_read(k))
        I('s_add_u32 s10, s0, 4096')
        I('s_waitcnt lgkmcnt(0)')
        I('s_barrier')
        self.stamp('bb')
        I('s_cmp_eq_u32 s%d, 0' % S_NH); I('s_cbranch_scc1 L_nounit%s' % tg)
        if 'uprio' in EXP and tg == 'v': I('s_setprio 3')
        def rd(s):
            b = 64 + 8 * (s % 4)
            for h in range(2):
                I('ds_read_b64_tr_b16 %s, v%d offset:%d' % (vr(b + 2 * h, 2), U, (16 * s + 8 * h) * 64))
                I('ds_read_b64_tr_b16 %s, v%d offset:%d' % (vr(b + 4 + 2 * h, 2), U + 1, (16 * s + 8 * h) * 64))
        D = ACC
        for s in range(3): rd(s)
        for s in range(8):
            if s + 3 < 8: rd(s + 3)
            b = 64 + 8 * (s % 4)
            I('v_mfma_f32_32x32x16_bf16 %s, %s, %s, %s' % (vr(D, 16), vr(b, 4), vr(b + 4, 4), vr(D, 16) if s else '0'))
        I('s_nop 7'); I('s_nop 4')
        for r in range(16):
            d = (r & 3) + 8 * (r >> 2)
            if r == 14: I('s_mov_b32 exec_hi, 0')
            self.U('buffer_atomic_add_f32 v%d, v%d, %s, s%d offen offset:%d' % (D + r, U + 2, sr(S_WS, 4), 0 if d < 16 else 10, (d % 16) * 256))
        I('s_mov_b64 exec, -1')
        self.g.label('L_nounit%s' % tg)
        I('s_waitcnt vmcnt(0)')
        I('s_barrier')
        if True:
            I('s_cmp_lg_u32 s%d, 7' % S_WAVE); I('s_cbranch_scc1 L_nokf%s' % tg)
            self.publish(1, 96).kind = 'untracked'
            self.g.label('L_nokf%s' % tg)
            self.stamp('kvdone')
        I('s_setprio 0')
        bulk = self.b_dma(4)
        for k in range(5, 9): bulk += self.b_dma(k + 5)
        bulk += self.wo_dma()
        for t in bulk[:6]: g.extend(t)
        self.p2_enter()
        pa = self.poll_issue(P2T + 1, S_FA, P2T)
        for t in bulk[6:] + self.b_tasks(4, 5): g.extend(t)
        I('s_waitcnt lgkmcnt(0)'); I('s_nop 0', needs=[pa])
        I('s_branch L_p2')

    def kv_k(self):
        I = self.I; g = self.g; PW, HO, U, VW, ZV = self.kvr
        wr = []
        for i in range(3):
            N = 80 + 8 * i
            self.pack_k(ACC + 16 * i, N)
            wr += [I('ds_write_b128 v%d, %s offset:%d' % (HO, vr(N + 4 * q, 4), 8192 * i + 1024 * q)) for q in range(2)]
        I('s_barrier', needs=wr)
        for i in range(3): self.phi_mfma(ACC + 16 * i, 80 + 8 * i, 88 + 8 * i)
        self.kv_rest('k', [ACC, ACC + 16, ACC + 32], [])

    def kv_v(self):
        I = self.I; g = self.g; PW, HO, U, VW, ZV = self.kvr
        I('v_cndmask_b32 v%d, v%d, 0, %s' % (CS, ST + 1, sr(S_HIM, 2))); I('v_cndmask_b32 v%d, 0, 1.0, %s' % (CS + 1, sr(S_HIM, 2)))
        PV = [88, 96, 112]
        def vpath(i):
            A = ACC + 16 * i
            for j in range(0, 12, 2): I('v_pk_mul_f32 %s, %s, %s op_sel:[0,1] op_sel_hi:[1,1]' % (vr(A + j, 2), vr(A + j, 2), vr(ST, 2)))
            for j in (12, 14): I('v_pk_fma_f32 %s, %s, %s, %s op_sel:[0,0,1] op_sel_hi:[1,0,1]' % (vr(A + j, 2), vr(A + j, 2), vr(CS, 2), vr(CS, 2)))
            for j in range(8): I('v_cvt_pk_bf16_f32 v%d, v%d, v%d' % (PV[i] + j, A + 2 * j, A + 2 * j + 1))
        vpath(0); vpath(1)
        I('s_barrier')
        rd = [I('ds_read_b128 %s, v%d offset:%d' % (vr(64 + 8 * i + 4 * q, 4), HO, 8192 * i + 1024 * q)) for i in range(3) for q in range(2)]
        vpath(2)
        wr = []
        for i in range(3):
            self.phi_mfma(ACC + 16 * i, 64 + 8 * i, 88 + 8 * i)
            wr += [I('ds_write_b64 v%d, %s offset:%d' % (VW + q, vr(PV[i] + 2 * q, 2), 8192 * i), needs=rd[2 * i:2 * i + 2]) for q in range(4)]
        self.kv_rest('v', [ACC, ACC + 16, ACC + 32], wr)
    _uid = 0
    def uid(self):
        K._uid += 1
        return str(K._uid)

    def q(self):
        I = self.I; g = self.g
        self.tagbase = 'q'
        self.srd(S_W, 18, 448 * 2688)
        I('v_mul_u32_u24 v6, 2688, v6'); I('v_lshl_add_u32 v%d, v7, 4, v6' % DW)
        I('s_mul_i32 s%d, s%d, 448' % (S_WSO, S_IDX))
        dms = self.start_stream(2688)
        I('s_mul_i32 s10, s%d, 224' % S_CH); I('s_add_u32 s10, s10, %d' % WPART)
        self.read_addrs(True)
        self.pre_loop(False, 14, lambda: I('s_lshl_b32 s%d, s%d, 3' % (S_H0, S_IDX)))
        def wpd():
            with g.capture() as a: self.wphi_dma(2, S_H0)
            return [a]
        self.pre_post = {2: wpd}
        tiles = [dict(t=[((i + cc) % 4, AW + i, 56 * ((i + cc) % 4)) for cc in range(4)], cs=True) for i in range(4)]
        def post2():
            with g.capture() as a:
                I('s_mul_i32 s8, s%d, %d' % (S_CH, 4 * 1568)); I('s_add_u32 s8, s8, %d' % L_WPHI)
                self.wphi_read(4, 8, 0)
            return [a]
        tl = [(c, 4, c) for c in range(4)]
        self.gemm(tiles, 2688, dms, 'q', dict(post={4: post2}), tl)
        self.finish_stats(tl, L.LOG2E, 'q')
        for i in range(4):
            self.pack_k(ACC + 16 * i, 80 + 8 * (i & 1)); self.phi_mfma(ACC + 16 * i, 80 + 8 * (i & 1), 8 * i)
        for i in range(4): self.softmax_unit(ACC + 16 * i, sreg=124 + i)
        self.stamp('soft')
        if 'noq' in EXP: return
        T = TMP
        if 'lat' in EXP:
            I('s_lshl_b32 s8, s2, 3'); I('s_add_u32 s8, s8, s%d' % S_WAVE); I('s_lshl_b32 s8, s8, 9'); I('s_add_u32 s8, s8, %d' % (15 << 20)); I('v_mov_b32 v%d, 0' % T)
            for rep_ in range(2):
                I('buffer_load_dword v%d, v%d, %s, s8 offen offset:%d sc1' % (T + 1, T, sr(S_WS, 4), 256 * rep_)); I('s_waitcnt vmcnt(0)'); self.stamp('miss')
                I('buffer_load_dword v%d, v%d, %s, s8 offen offset:%d sc1' % (T + 1, T, sr(S_WS, 4), 256 * rep_)); I('s_waitcnt vmcnt(0)'); self.stamp('l2hit')
                I('buffer_store_dword v%d, v%d, %s, s8 offen offset:%d sc1' % (T + 1, T, sr(S_WS, 4), 128 + 256 * rep_)); I('s_waitcnt vmcnt(0)'); self.stamp('st')
            self.nst = 15
        if ATOM:
            T = TMP
            I('v_lshrrev_b32 v%d, 4, v%d' % (T, VLANE)); I('s_lshl_b32 s8, s%d, 1' % S_IDX); I('v_add_u32 v%d, s8, v%d' % (T, T))
            I('s_mul_i32 s8, s%d, 3' % S_IDX); I('s_add_u32 s8, s8, 2'); I('v_min_u32 v%d, s8, v%d' % (T, T))
            I('v_and_b32 v%d, 15, v%d' % (T + 1, VLANE)); I('v_lshl_add_u32 v%d, v%d, 4, v%d' % (T, T, T + 1)); I('v_lshlrev_b32 v%d, 7, v%d' % (T, T))
            I('s_mov_b32 s11, %d' % L.WS_KVZ)
            I('v_lshrrev_b32 v%d, 3, v%d' % (T + 2, VLANE)); I('v_and_b32 v%d, 7, v%d' % (T + 3, VLANE)); I('v_lshlrev_b32 v%d, 4, v%d' % (T + 4, T + 3)); I('v_lshl_add_u32 v%d, v%d, 8, v%d' % (T + 4, T + 2, T + 4))
            I('s_add_u32 s8, s%d, s%d' % (S_H0, S_WAVE)); I('s_lshl_b32 s8, s8, 13'); I('s_add_u32 s0, s8, %d' % L.WS_KV); I('s_add_u32 s1, s0, 4096')
            I('v_lshrrev_b32 v%d, 1, v%d' % (T + 5, T + 3)); I('v_lshlrev_b32 v%d, 10, v%d' % (T + 5, T + 5)); I('v_and_b32 v%d, 1, v%d' % (T + 3, T + 3)); I('v_lshl_add_u32 v%d, v%d, 3, v%d' % (T + 5, T + 3, T + 5))
            I('s_lshl_b32 s8, s%d, 12' % S_WAVE); I('v_add_u32 v%d, s8, v%d' % (T + 5, T + 5))
            WA4 = 112
            for i in range(4):
                a, b, c_ = T + 6, T + 7, T + 3
                I('v_add_u32 v%d, %d, v%d' % (a, 8 * i, T + 2))
                I('v_cmp_lt_u32 vcc, 13, v%d' % a); I('v_subrev_u32 v%d, 14, v%d' % (b, a)); I('v_cndmask_b32 v%d, v%d, v%d, vcc' % (b, a, b)); I('v_cndmask_b32 v%d, 0, 4, vcc' % c_)
                if i == 3:
                    I('v_cmp_lt_u32 vcc, 27, v%d' % a); I('v_and_b32 v%d, 1, v%d' % (T + 8, a)); I('v_lshlrev_b32 v%d, 2, v%d' % (T + 8, T + 8)); I('v_cndmask_b32 v%d, v%d, v%d, vcc' % (c_, c_, T + 8))
                    I('v_bfe_u32 v%d, v%d, 1, 1' % (T + 8, a)); I('v_add_u32 v%d, 14, v%d' % (T + 8, T + 8)); I('v_cndmask_b32 v%d, v%d, v%d, vcc' % (b, b, T + 8))
                I('v_and_or_b32 v%d, v%d, 3, v%d' % (c_, b, c_)); I('v_lshrrev_b32 v%d, 2, v%d' % (b, b)); I('v_lshl_add_u32 v%d, v%d, 3, v%d' % (c_, b, c_))
                I('v_lshl_add_u32 v%d, v%d, 4, v%d' % (WA4 + i, c_, T + 5))
            I('s_lshl_b32 s8, s%d, 14' % S_CH); I('v_add_u32 v%d, s8, v%d' % (T + 2, VL16))
            self.q_scalars()
            I('s_cmp_lg_u32 s%d, 0' % S_WAVE); I('s_cbranch_scc1 L_polldkv')
            self.g.label('L_pollkv')
            self.U('buffer_load_dword v64, v%d, %s, s11 offen sc1' % (T, sr(S_WS, 4))); self.U('s_waitcnt vmcnt(0)')
            I('v_cmp_ne_u32 vcc, s%d, v64' % S_NONCE); I('s_nop 1'); I('s_cbranch_vccz L_polldkv')
            self.spin_tail('L_pollkv', QSL)
            self.g.label('L_polldkv')
            I('s_barrier')
            self.stamp('kvok')
            for i in range(8):
                I('buffer_load_dwordx4 %s, v%d, %s, s%d offen offset:%d sc1' % (vr(64 + 4 * i, 4), T + 4, sr(S_WS, 4), (i >> 1) & 1, (i & 1) * 2048 + (i >> 2) * 128))
            wr = []
            for i in range(8):
                I('v_cvt_pk_bf16_f32 v%d, v%d, v%d' % (64 + 4 * i, 64 + 4 * i, 65 + 4 * i)); I('v_cvt_pk_bf16_f32 v%d, v%d, v%d' % (65 + 4 * i, 66 + 4 * i, 67 + 4 * i))
                wr.append(I('ds_write_b64 v%d, %s offset:%d' % (WA4 + (i & 3), vr(64 + 4 * i, 2), 512 * (i >> 2))))
            self.stamp('kvld')
            qbar = lambda: (I('s_barrier', needs=wr), [I('ds_read_b128 %s, v%d offset:%d' % (ar(32 + 16 * i + 4 * s, 4), T + 2, 4096 * i + 1024 * s)) for i in range(4) for s in range(4)])
        else:
            I('v_bfe_u32 v%d, v%d, 3, 2' % (T + 2, VLANE)); I('v_lshlrev_b32 v%d, 2, v%d' % (T + 2, T + 2)); I('v_and_or_b32 v%d, v%d, 3, v%d' % (T + 2, VLANE, T + 2))
            I('v_bfe_u32 v%d, v%d, 2, 1' % (T + 3, VLANE)); I('v_mul_u32_u24 v%d, 14, v%d' % (T + 3, T + 3)); I('v_add_u32 v%d, v%d, v%d' % (T + 3, T + 3, T + 2))
            I('v_cmp_gt_u32 vcc, 14, v%d' % (T + 2)); I('v_cndmask_b32 v%d, 28, v%d, vcc' % (T + 3, T + 3))
            I('v_and_b32 v%d, 32, v%d' % (T + 2, VLANE)); I('v_lshlrev_b32 v%d, 6, v%d' % (T + 2, T + 2)); I('v_lshl_add_u32 v%d, v%d, 4, v%d' % (T + 2, T + 3, T + 2))
            I('s_lshl_b32 s8, s%d, 14' % S_CH); I('v_add_u32 v%d, s8, v%d' % (T + 2, T + 2))
            I('v_and_b32 v%d, 15, v%d' % (T, VLANE)); I('v_lshlrev_b32 v%d, 7, v%d' % (T, T))
            I('v_and_b32 v%d, 7, v%d' % (T + 3, VLANE)); I('v_lshlrev_b32 v%d, 7, v%d' % (T + 3, T + 3))
            I('s_cmp_lg_u32 s%d, 0' % S_CH); I('s_cbranch_scc1 L_noreduce')
            I('s_lshl_b32 s8, s%d, 1' % S_RB); I('s_add_u32 s8, s8, s%d' % S_IDX); I('s_lshl_b32 s8, s8, 2'); I('s_add_u32 s11, s8, s%d' % S_RT)
            I('s_lshl_b32 s0, s11, 14'); I('s_add_u32 s0, s0, %d' % L.WS_SL)
            I('s_mov_b32 s8, 0x22111000'); I('s_mov_b32 s9, 0x55544332'); I('s_lshl_b32 s10, s%d, 2' % S_RB); I('s_lshr_b64 s[8:9], s[8:9], s10'); I('s_and_b32 s8, s8, 15')
            I('s_lshl_b32 s8, s8, 11'); I('s_add_u32 s1, s8, %d' % L.WS_KVZ)
            self.g.label('L_red_poll')
            self.U('buffer_load_dword v%d, v%d, %s, s1 offen sc1' % (T + 1, T, sr(S_WS, 4))); self.U('s_waitcnt vmcnt(0)')
            I('v_cmp_ne_u32 vcc, s%d, v%d' % (S_NONCE, T + 1)); I('s_nop 1'); I('s_cbranch_vccz L_red_load')
            self.spin_tail('L_red_poll', QSL)
            self.g.label('L_red_load')
            R = 64
            def src(i): return (64 + 4 * i) if i < 15 else T + 4
            for i in range(16):
                if i % 4 == 0: I('s_add_u32 s8, s0, %d' % (1024 * i))
                I('buffer_load_dwordx4 %s, v%d, %s, s8 offen offset:%d' % (vr(src(i), 4), VL16, sr(S_WS, 4), 1024 * (i % 4)))
            I('s_lshl_b32 s8, s11, 9'); I('s_add_u32 s8, s8, %d' % L.WS_KF); I('s_lshl_b32 s9, s11, 7'); I('s_add_u32 s9, s9, %d' % L.WS_KVD)
            for i in range(2, 16):
                for j in (0, 2): I('v_pk_add_f32 %s, %s, %s' % (vr(R + 4 * (i & 1) + j, 2), vr(R + 4 * (i & 1) + j, 2), vr(src(i) + j, 2)))
            for j in (0, 2): I('v_pk_add_f32 %s, %s, %s' % (vr(R + j, 2), vr(R + j, 2), vr(R + 4 + j, 2)))
            I('v_cvt_pk_bf16_f32 v68, v64, v65'); I('v_cvt_pk_bf16_f32 v69, v66, v67')
            I('v_mov_b32 v72, v68'); I('v_mov_b32 v73, v69')
            I('v_permlane32_swap_b32 v72, v70'); I('v_permlane32_swap_b32 v73, v71')
            I('s_mov_b32 exec_hi, 0')
            I('buffer_store_dwordx4 v[68:71], v%d, %s, s8 offen sc1' % (VL16, sr(S_WS, 4)))
            I('s_mov_b64 exec, -1')
            self.stamp('red')
            I('s_waitcnt vmcnt(0)')
            self.publish(9, 72).kind = 'untracked'
            self.g.label('L_noreduce')
            I('s_add_u32 s10, s%d, s%d' % (S_H0, S_WAVE)); I('s_lshl_b32 s11, s10, 10'); I('s_add_u32 s11, s11, %d' % L.WS_KVD)
            I('s_lshl_b32 s10, s10, 12'); I('s_add_u32 s10, s10, %d' % L.WS_KF); I('s_lshl_b32 m0, s%d, 12' % S_WAVE)
            self.g.label('L_pollkv')
            self.U('buffer_load_dword v64, v%d, %s, s11 offen sc1' % (T + 3, sr(S_WS, 4))); self.U('s_waitcnt vmcnt(0)')
            I('v_cmp_ne_u32 vcc, s%d, v64' % S_NONCE); I('s_nop 1'); I('s_cbranch_vccz L_polldkv')
            self.spin_tail('L_pollkv', QSL)
            self.g.label('L_polldkv')
            self.nst = 7
            self.stamp('kvok')
            dm = [I('buffer_load_dwordx4 v%d, %s, s10 offen offset:%d lds' % (VL16, sr(S_WS, 4), 1024 * i)) for i in range(4)]
            qbar = lambda: (I('s_barrier', needs=dm), [I('ds_read_b128 %s, v%d offset:%d' % (ar(32 + 16 * i + 4 * sf, 4), T + 2, 4096 * i + 512 * sf)) for i in range(4) for sf in range(4)])
        qbar()
        N = [64, 80, ACC, ACC + 16]; O = 96
        def ost(f): I('buffer_store_dwordx4 %s, v%d, %s, s%d offen offset:%d sc1' % (vr(O + 4 * f, 4), VL16, sr(S_WS, 4), 20 if f < 4 else 21, (f % 4) * 1024))
        def mm(i):
            for s in range(4):
                I('v_mfma_f32_32x32x16_bf16 %s, %s, %s, %s' % (vr(N[i], 16), ar(32 + 16 * i + 4 * s, 4), vr(ACC + 16 * i + 4 * s, 4), vr(N[i], 16) if s else '0'))
        done = 0
        mm(0); mm(1)
        for i in range(4):
            with g.capture() as fin: self.o_fin(N[i], O + 7 * i, 124 + i)
            if i + 2 < 4:
                with g.capture() as m4: mm(i + 2)
                k = len(fin) // 4
                for j in range(4): g.extend([m4[j]] + fin[j * k:(j + 1) * k if j < 3 else None])
            else: g.extend(fin)
            while 4 * (done + 1) <= 7 * (i + 1): ost(done); done += 1
        self.stamp('ocomp')
        I('s_waitcnt vmcnt(0)')
        self.publish(22, TMP)
        self.stamp('opub')
        I('s_waitcnt vmcnt(0)')
    def q_scalars(self):
        I = self.I
        I('s_lshl_b32 s8, s%d, 2' % S_RB); I('s_add_u32 s10, s8, s%d' % S_RT); I('s_mul_i32 s8, s10, 28'); I('s_mul_i32 s9, s%d, 14' % S_IDX); I('s_add_u32 s8, s8, s9')
        I('s_mul_i32 s9, s%d, 7' % S_CH); I('s_add_u32 s8, s8, s9'); I('s_lshl_b32 s8, s8, 10'); I('s_add_u32 s20, s8, %d' % L.WS_O); I('s_add_u32 s21, s20, 4096')
        I('s_lshl_b32 s8, s10, 1'); I('s_add_u32 s8, s8, s%d' % S_IDX)
        I('s_lshl_b32 s8, s8, 1'); I('s_add_u32 s8, s8, s%d' % S_CH); I('s_lshl_b32 s8, s8, 7'); I('s_add_u32 s22, s8, %d' % L.WS_FO)
    def o_fin(self, N, O, sreg):
        I = self.I; t = TMP + 8
        I('v_fmac_f32 v%d, %s, v%d' % (N + 14, f32(1e-6), sreg)); I('v_rcp_f32 v%d, v%d' % (t, N + 14))
        for j in range(14): I('v_mul_f32 v%d, v%d, v%d' % (N + j, N + j, t))
        for j in range(7): I('v_cvt_pk_bf16_f32 v%d, v%d, v%d' % (O + j, N + 2 * j, N + 2 * j + 1))

    def p2_pre(self):
        I = self.I; g = self.g; A, B, C = 64, 65, 66; out = []
        def st(i, r): I('v_accvgpr_write_b32 a%d, v%d' % (STASH + i, r))
        with g.capture() as a:
            I('s_lshl_b32 s8, s%d, 1' % S_RG)
            I('s_mul_i32 s%d, s8, 112' % S_A0); I('s_mul_i32 s9, s%d, 14' % S_WAVE); I('s_add_u32 s%d, s%d, s9' % (S_A0, S_A0)); I('s_lshl_b32 s%d, s%d, 10' % (S_A0, S_A0))
            I('s_add_u32 s%d, s%d, %d' % (S_A1, S_A0, 112 * 1024))
            I('s_mul_i32 s%d, s8, 28' % S_OSO); I('s_mul_i32 s9, s%d, 7' % S_WAVE); I('s_add_u32 s%d, s%d, s9' % (S_OSO, S_OSO)); I('s_lshl_b32 s%d, s%d, 10' % (S_OSO, S_OSO))
            I('s_add_u32 s%d, s%d, %d' % (S_OSO, S_OSO, L.WS_O))
            I('v_lshrrev_b32 v%d, 3, v%d' % (A, VLANE)); I('v_mul_u32_u24 v%d, 896, v%d' % (A, A)); I('v_and_b32 v%d, 7, v%d' % (B, VLANE)); I('v_lshl_add_u32 v%d, v%d, 4, v%d' % (A, B, A))
            I('v_lshlrev_b32 v%d, 7, v%d' % (B, B)); st(1, A); st(2, B)
        out.append(a)
        with g.capture() as a:
            I('s_lshl_b32 s9, s%d, 3' % S_RG); I('s_add_u32 s9, s9, s%d' % S_WAVE); I('s_mul_i32 s9, s9, %d' % (8 * 896)); I('s_lshl_b32 s8, s%d, 7' % S_CG); I('s_add_u32 s%d, s9, s8' % S_XO)
            I('s_lshl_b32 s8, s%d, 12' % S_RG); I('s_lshl_b32 s9, s%d, 8' % S_WAVE); I('s_add_u32 s9, s9, s8'); I('s_add_u32 s%d, s9, %d' % (S_FA, L.WS_FLAG))
            I('s_lshl_b32 s8, s%d, 10' % S_RG); I('s_add_u32 s%d, s8, %d' % (S_FO, L.WS_FO))
            I('v_and_b32 v%d, 1, v%d' % (A, VLANE)); I('v_lshlrev_b32 v%d, 11, v%d' % (A, A)); I('v_and_b32 v%d, 2, v%d' % (B, VLANE)); I('v_lshl_add_u32 v%d, v%d, 6, v%d' % (A, B, A)); st(0, A)
        out.append(a)
        with g.capture() as a:
            I('v_lshrrev_b32 v%d, 5, v%d' % (C, VLANE)); I('v_bfe_u32 v%d, v%d, 3, 1' % (A, VLANE)); I('v_xor_b32 v%d, v%d, v%d' % (A, A, C))
            I('v_mul_u32_u24 v%d, 14, v%d' % (B, C)); I('v_bfe_u32 v%d, v%d, 2, 2' % (C, VLANE)); I('v_add_u32 v%d, v%d, v%d' % (B, B, C))
            I('v_lshlrev_b32 v%d, 7, v%d' % (B, B)); I('v_lshl_add_u32 v%d, v%d, 6, v%d' % (A, A, B))
            I('v_and_b32 v%d, 3, v%d' % (B, VLANE)); I('v_lshl_add_u32 v%d, v%d, 3, v%d' % (A, B, A))
            I('v_and_b32 v%d, 16, v%d' % (B, VLANE)); I('v_lshl_add_u32 v%d, v%d, 1, v%d' % (A, B, A))
            I('s_and_b32 s9, s%d, 1' % S_WAVE); I('s_lshl_b32 s9, s9, 6'); I('v_xor_b32 v%d, s9, v%d' % (A, A))
            I('s_mul_i32 s9, s%d, %d' % (S_CH, 224 * 128)); I('v_add_u32 v%d, s9, v%d' % (A, A))
            I('v_xor_b32 v%d, 64, v%d' % (B, A)); st(3, A); st(4, B)
            I('v_add_u32 v%d, %d, v%d' % (B, 14 * 128, B)); I('v_and_b32 v%d, 8, v%d' % (C, VLANE)); I('v_cmp_eq_u32 vcc, 0, v%d' % C); I('v_cndmask_b32 v%d, v%d, v%d, vcc' % (B, B, A)); st(5, B)
        out.append(a)
        return out
    def p2_enter(self):
        T = P2T
        for i, r in enumerate((T + 1, T + 2, T + 3, T + 8, T + 9, T + 10)): self.I('v_accvgpr_read_b32 v%d, a%d' % (r, STASH + i))

    def phase2(self):
        I = self.I; g = self.g; T = P2T
        XO, XR, WA = T + 2, T + 4, T + 8
        self.nst = 7
        if 'start' in EXP or 'stg' in EXP: self.nst = 15
        self.poll_check('A', T + 1, S_FA, T)
        self.stamp('hok')
        RING = 64; NR = 15
        self.bdma = {k: [] for k in range(14)}
        def load(n):
            k, a = divmod(n, 2); r = RING + 4 * (n % NR); base = S_A1 if a else S_A0
            I('buffer_load_dwordx4 %s, v%d, %s, s%d offen offset:%d' % (vr(r, 4), VL16, sr(S_WS, 4), base, (k % 4) * 1024))
            if k % 4 == 3: I('s_add_u32 s%d, s%d, 4096' % (base, base))
        def wo_read(kk, dst):
            G, f = divmod(kk, 7)
            for pp in range(2):
                p = 4 * f + 2 * pp; hl = 4 * G + p // 7; i = p % 7
                areg = WA + 2 if i == 6 else WA + (i & 1)
                I('ds_read_b64_tr_b16 %s, v%d offset:%d' % (ar(dst + 2 * pp, 2), areg, L_WO + (28 * hl + 2 * i) * 128))
        EWB, SWB, ORD, GRD, SRD_ = 124, 125, 126, 127, 139
        def tail_addr():
            A, B = 142, 143
            I('v_and_b32 v%d, 31, v%d' % (A, VLANE)); I('v_lshlrev_b32 v%d, 7, v%d' % (A, A)); I('v_and_b32 v%d, 7, v%d' % (B, VLANE)); I('v_lshl_add_u32 v%d, v%d, 4, v%d' % (A, B, A))
            I('v_lshrrev_b32 v%d, 5, v%d' % (B, VLANE)); I('v_lshl_add_u32 v%d, v%d, 3, v%d' % (A, B, A))
            I('s_lshl_b32 s8, s%d, 13' % S_WAVE); I('s_add_u32 s8, s8, %d' % L_XG); I('v_add_u32 v%d, s8, v%d' % (EWB, A))
            I('s_lshl_b32 s8, s%d, 13' % S_CH); I('s_bfe_u32 s9, s%d, 0x10001' % S_WAVE); I('s_lshl_b32 s10, s9, 12'); I('s_add_u32 s8, s8, s10'); I('s_add_u32 s8, s8, %d' % L_XS)
            I('v_add_u32 v%d, s8, v%d' % (SWB, A)); I('s_and_b32 s8, s%d, 1' % S_WAVE); I('s_lshl_b32 s8, s8, 6'); I('v_xor_b32 v%d, s8, v%d' % (SWB, SWB))
            I('s_mul_i32 s9, s9, 28'); I('s_mul_i32 s8, s%d, 14' % S_CH); I('s_add_u32 s9, s9, s8'); I('s_lshl_b32 s9, s9, 10')
            I('v_add_u32 v%d, s9, v%d' % (ORD, VL16))
            I('v_lshrrev_b32 v%d, 3, v%d' % (A, VLANE)); I('v_and_b32 v%d, 7, v%d' % (B, VLANE)); I('v_xor_b32 v%d, v%d, v%d' % (B, B, A))
            I('v_lshlrev_b32 v%d, 7, v%d' % (A, A)); I('v_lshl_add_u32 v%d, v%d, 4, v%d' % (A, B, A)); I('s_lshl_b32 s8, s%d, 10' % S_WAVE); I('s_add_u32 s8, s8, %d' % L_XG)
            I('v_add_u32 v%d, s8, v%d' % (GRD, A)); I('v_add_u32 v%d, %d, v%d' % (SRD_, L_XS - L_XG, GRD))
            I('s_mul_i32 s23, s%d, 7168' % S_WAVE); I('v_mov_b32 v142, %d' % L_CNT)
            I('s_mov_b32 s10, 0x00003f80'); I('s_mov_b32 s11, 0x3f800000'); I('s_mov_b32 s26, %s' % f32(-1.0 / L.LOG2E)); I('s_mov_b32 s27, s26')
        for n in range(NR): load(n)
        nl = NR
        for ki in range(14):
            for a in range(2):
                n = 2 * ki + a; r = RING + 4 * (n % NR)
                for b in range(2):
                    I('v_mfma_f32_32x32x16_bf16 %s, %s, %s, %s' % (vr(16 * (2 * a + b), 16), ar(8 * ki + 4 * b, 4), vr(r, 4), vr(16 * (2 * a + b), 16) if ki else '0'))
                if nl < 28:
                    load(nl); nl += 1
                    if nl == 28: I('buffer_load_dwordx4 %s, v%d, %s, s100 offen' % (vr(XR, 4), XO, sr(S_X, 4)))
            if ki == 0:
                for k in range(9, 14): g.extend(self.b_read(k))
            if ki == 2: tail_addr()
            if ki == 12:
                I('s_cmp_lg_u32 s%d, 0' % S_WAVE); I('s_cbranch_scc1 L_noe1')
                self.U('buffer_load_dword v%d, v%d, %s, s99 offen sc1' % (T, T + 3, sr(S_WS, 4)))
                self.g.label('L_noe1')
            if ki == 6: I('s_waitcnt lgkmcnt(0)'); I('s_barrier')
            if ki >= 7:
                for kk in (2 * (ki - 7), 2 * (ki - 7) + 1): wo_read(kk, 4 * kk)
        self.stamp('gdone')
        EW = 64
        wr = []
        for b in range(2):
            for Q in range(4):
                I('v_xor_b32 v%d, %d, v%d' % (EW + 4 * b + Q, 16 * (4 * b + Q), EWB))
                for a in range(2):
                    t = 16 * (2 * a + b)
                    for j in (2 * Q, 2 * Q + 1): I('v_cvt_pk_bf16_f32 v%d, v%d, v%d' % (t + j, t + 2 * j, t + 2 * j + 1))
                    wr.append(I('ds_write_b64 v%d, %s offset:%d' % (EW + 4 * b + Q, vr(t + 2 * Q, 2), 4096 * a)))
        I('s_cmp_lg_u32 s%d, 0' % S_WAVE); I('s_cbranch_scc1 L_noe2')
        self.U('s_waitcnt vmcnt(0)')
        I('v_cmp_ne_u32 vcc, s%d, v%d' % (S_NONCE, T)); I('s_nop 1'); I('s_cmp_eq_u64 vcc, 0'); I('s_cselect_b32 s8, 1, 0'); I('v_mov_b32 v143, s8')
        self.U('ds_write_b32 v142, v143')
        self.g.label('L_noe2')
        I('s_waitcnt lgkmcnt(0)')
        I('s_barrier')
        self.stamp('e2')
        I('ds_read_b32 v143, v142')
        for src in range(8): I('ds_read_b128 %s, v%d offset:%d' % (vr(8 + 4 * src, 4), GRD, 8192 * src))
        for j in range(4): I('v_lshlrev_b32 v%d, 16, v%d' % (76 + 2 * j, XR + j)); I('v_and_b32 v%d, s%d, v%d' % (77 + 2 * j, S_MASK, XR + j))
        I('s_add_u32 s24, s%d, 4096' % S_OSO)
        I('v_readfirstlane_b32 s9, v143')
        def odma():
            for i in range(7):
                if i == 0 or i == 4: I('s_add_u32 m0, s23, %d' % (L_O + 1024 * i)); I('s_nop 0')
                self.U('buffer_load_dwordx4 v%d, %s, s%d offen offset:%d lds' % (VL16, sr(S_WS, 4), S_OSO if i < 4 else 24, 1024 * (i % 4)))
        I('s_cmp_eq_u32 s9, 0'); I('s_cbranch_scc1 L_olate1')
        odma()
        self.g.label('L_olate1')
        for src in range(8):
            for j in range(4):
                I('v_dot2_f32_bf16 v%d, v%d, s10, %s' % (2 * j, 8 + 4 * src + j, 'v%d' % (2 * j) if src else '0'))
                I('v_dot2_f32_bf16 v%d, v%d, s11, %s' % (2 * j + 1, 8 + 4 * src + j, 'v%d' % (2 * j + 1) if src else '0'))
        I('s_cmp_lg_u32 s9, 0'); I('s_cbranch_scc1 L_oearly')
        I('s_cmp_lg_u32 s%d, %d' % (S_WAVE, 9 if 'noq' in EXP else 0)); I('s_cbranch_scc1 L_polldO')
        self.g.label('L_pollO')
        self.U('buffer_load_dword v%d, v%d, %s, s99 offen sc1' % (WA, T + 3, sr(S_WS, 4))); self.U('s_waitcnt vmcnt(0)')
        I('v_cmp_ne_u32 vcc, s%d, v%d' % (S_NONCE, WA)); I('s_nop 1'); I('s_cbranch_vccz L_polldO')
        self.spin_tail('L_pollO', 3)
        self.g.label('L_polldO')
        I('s_barrier')
        odma()
        self.g.label('L_oearly')
        self.stamp('ook')
        for j in range(8): I('v_exp_f32 v%d, v%d' % (8 + j, j))
        SW = 72
        for q in range(4): I('v_xor_b32 v%d, %d, v%d' % (SW + q, 16 * q, SWB))
        for j in range(0, 8, 2): I('v_pk_add_f32 %s, %s, 1.0 op_sel_hi:[1,0]' % (vr(8 + j, 2), vr(8 + j, 2)))
        for j in range(8): I('v_rcp_f32 v%d, v%d' % (8 + j, 8 + j))
        for j in range(0, 8, 2): I('v_pk_mul_f32 %s, %s, s[26:27]' % (vr(j, 2), vr(j, 2)))
        for j in range(0, 8, 2): I('v_pk_mul_f32 %s, %s, %s' % (vr(j, 2), vr(j, 2), vr(8 + j, 2)))
        I('s_waitcnt vmcnt(0)')
        I('s_barrier')
        self.stamp('e3')
        OF = 84; SA = 48
        def ord_(kk): I('ds_read_b128 %s, v%d offset:%d' % (vr(OF + 4 * (kk % 10), 4), ORD, 1024 * kk))
        for kk in range(8): ord_(kk)
        for kk in range(14):
            I('v_mfma_f32_32x32x16_bf16 %s, %s, %s, %s' % (vr(SA, 16), ar(4 * kk, 4), vr(OF + 4 * (kk % 10), 4), vr(SA, 16) if kk else '0'))
            if kk + 8 < 14: ord_(kk + 8)
        wr = []
        for q in range(4):
            for j in (2 * q, 2 * q + 1): I('v_cvt_pk_bf16_f32 v%d, v%d, v%d' % (SA + j, SA + 2 * j, SA + 2 * j + 1))
            wr.append(I('ds_write_b64 v%d, %s' % (SW + q, vr(SA + 2 * q, 2))))
        I('s_barrier', needs=wr)
        for h in range(2): I('ds_read_b128 %s, v%d offset:%d' % (vr(16 + 4 * h, 4), SRD_, 8192 * h))
        for h in range(2):
            for j in range(4):
                I('v_dot2_f32_bf16 v%d, v%d, s10, %s' % (24 + 2 * j, 16 + 4 * h + j, 'v%d' % (24 + 2 * j) if h else '0'))
                I('v_dot2_f32_bf16 v%d, v%d, s11, %s' % (25 + 2 * j, 16 + 4 * h + j, 'v%d' % (25 + 2 * j) if h else '0'))
        for j in range(0, 8, 2): I('v_pk_fma_f32 %s, %s, %s, %s' % (vr(j, 2), vr(j, 2), vr(24 + j, 2), vr(76 + j, 2)))
        for j in range(4): I('v_cvt_pk_bf16_f32 v%d, v%d, v%d' % (40 + j, 2 * j, 2 * j + 1))
        I('buffer_store_dwordx4 v[40:43], v%d, %s, s100 offen%s' % (XO, sr(S_OUT, 4), os.environ.get('OUTF', '')))
        self.stamp('final')

    def xfilter(self, body):
        out = []
        for x in body:
            if 'nosc1st' in EXP and x.op.startswith('buffer_store_dwordx4') and 'sc1' in x.text and 'v141' in x.text: x.text = x.text.replace(' sc1', '')
            if 'nost' in EXP and x.op.startswith('buffer_store_dwordx4') and 'v141' in x.text: x.text = 's_nop 0'
            if 'nob' in EXP and x.kind == 'dma' and 's[52:55]' in x.text: x.text = 's_nop 0'
            if 'sysp' in EXP and x.op == 'buffer_load_dword' and x.text.endswith('sc1') and 's[64:67]' in x.text: x.text = x.text.replace(' sc1', ' sc0 sc1')
            if 'nowo' in EXP and x.kind == 'dma' and 's[48:51]' in x.text: x.text = 's_nop 0'
            if 'noatom' in EXP and 'atomic' in x.op: x.text = 's_nop 0'
            if 'ntst' in EXP and x.op.startswith('buffer_store_dwordx4') and 'sc1' in x.text and 'v141' in x.text: x.text = x.text.replace(' sc1', ' sc0 sc1')
            out.append(x)
        return out
    def path(self, prefix, fn, label, keys):
        self.keys = keys
        if 'stamp' in self.__dict__: del self.__dict__['stamp']
        with self.g.capture() as body:
            if label: self.g.label(label)
            fn()
        self.xfilter(body)
        allp = [x for p in prefix for x in p]
        for x in allp: x.done = False
        full = self.g.finish(allp + body)
        if label:
            idx = next(i for i, x in enumerate(full) if x.kind == 'label' and x.text == label + ':')
            return full[idx:], body
        return full, body

    def build(self):
        I = self.I
        with self.g.capture() as pro:
            self.prologue()
            I('s_cmp_eq_u32 s%d, 1' % S_TYPE); I('s_cbranch_scc1 L_kv'); I('s_cmp_eq_u32 s%d, 2' % S_TYPE); I('s_cbranch_scc1 L_q')
        n0 = self.nst
        def endp():
            self.write_stamps(); I('s_endpgm')
        def ffn():
            self.ffn()
        out, _ = self.path([pro], ffn, None, ['0'])
        self.nst = n0
        code, kvc = self.path([pro], self.kv_common, 'L_kv', ['10', '11'])
        n1 = self.nst
        save = (dict(self.bdma), dict(self.bread))
        def kk():
            self.kv_k()
        def kvv():
            self.kv_v()
        c2, _ = self.path([pro, kvc], kk, 'L_kv_k', ['10'])
        self.nst = n1; self.bdma, self.bread = dict(save[0]), dict(save[1])
        c3, _ = self.path([pro, kvc], kvv, 'L_kv_v', ['11'])
        out += code + c2 + c3
        self.nst = n0
        def qq():
            self.q(); endp()
        c4, _ = self.path([pro], qq, 'L_q', ['2'])
        out += c4
        def p2():
            self.phase2(); endp()
        if 'nop2' not in EXP:
            c5, _ = self.path([], p2, 'L_p2', ['0', '10', '11'])
            out += c5
        with self.g.capture() as tail:
            self.g.label('L_end'); I('s_endpgm')
        return out + tail

HEADER = open('cdna_kernels/%s.s.ref' % NAME).read().split('; Override launch')[0]
def wrap(code, launch):
    return HEADER + launch + '''
.amdgcn_target "amdgcn-amd-amdhsa--gfx950"
.text
.globl %(n)s_kernel
.p2align 8
.type %(n)s_kernel,@function
%(n)s_kernel:
%(body)s
.section .rodata,"a"
.p2align 6
.amdhsa_kernel %(n)s_kernel
  .amdhsa_next_free_vgpr 256
  .amdhsa_next_free_sgpr 102
  .amdhsa_accum_offset %(nv)d
  .amdhsa_group_segment_fixed_size 0
  .amdhsa_kernarg_size 80
  .amdhsa_user_sgpr_count 2
  .amdhsa_user_sgpr_kernarg_segment_ptr 1
  .amdhsa_system_sgpr_workgroup_id_x 1
.end_amdhsa_kernel
''' % dict(n=NAME, body=render(code), nv=NV)

if __name__ == '__main__':
    stamps = '--stamps' in sys.argv
    k = K(stamps)
    code = k.build()
    open(sys.argv[1], 'w').write(wrap(code, '; @launch grid=(256,1,1) block=(512,1,1) lds=163840'))
    json.dump({t: [d.get(i, '') for i in range(16)] for t, d in k.names.items()} if stamps else {}, open(sys.argv[1][:-2] + '.json', 'w'))
    print('instructions', len(code), 'nops', sum(1 for i in code if i.kind == 'nop'))
```

```python
import sys, json, struct, os
from asmgen import *
import layout as L
EXP = os.environ.get('EXP', '').split(',')
SLEEP = int(os.environ.get('SLEEP', '4'))
BCHK = int(os.environ.get('BCHK', '7'))
W1K = int(os.environ.get('W1K', '3'))
PF0 = int(os.environ.get('PF0', '2'))
QSL = int(os.environ.get('QSL', '6'))
NST = int(os.environ.get('NST', '3')); MST = int(os.environ.get('MST', '1'))
ATOM = True
S_FA, S_FO, S_XO, S_SC, S_C1, S_C2, S_C3 = 98, 99, 100, 11, 96, 97, 25
RA, RB_ = [int(x) for x in os.environ.get('R1', '1,2').split(',')]
RC, RD = [int(x) for x in os.environ.get('R2', '2,4').split(',')]
STASH = 72; CSA = 32; DB2 = 125; S_CSB, S_R0 = 30, 101
assert int(os.environ.get('MST', '1')) <= 1
CST = int(os.environ.get('CST', '0'))
NAME = 'recurrent_scan__linear_kernel_hedgehog__dense_activation_silu__prompt'
def f32(x): return '0x%08x' % struct.unpack('<I', struct.pack('<f', x))[0]

S_X, S_W, S_PHI, S_WO, S_W2, S_OUT, S_DBG, S_WS = 36, 40, 44, 48, 52, 56, 60, 64
S_MASK, S_WAVE, S_IDX, S_RB, S_TYPE = 3, 4, 5, 6, 7
S_XS, S_WSO, S_EX56 = 12, 13, 14
S_MW, S_MX, S_ROW, S_NONCE = 32, 33, 34, 35
S_RT, S_CH = 68, 69
S_ST = 70
S_RG, S_CG, S_BSO, S_STA, S_A0, S_A1, S_OSO, S_NH, S_H0 = 16, 17, 18, 19, 20, 21, 22, 23, 24
S_ST4 = 25
S_L2E = 26
S_HIM = 28
STG = 45056; WPART = 16384
L_CNT = 3 * STG
L_CP = 136192
L_WPHI = 144384
L_SHX = L_WPHI
L_PHI = 0
L_V = 136192
L_STA = 57344
L_WO = 0
L_CX = 135168
L_KVQ = 0
L_KVF = 65536
L_XG = 65536
L_O = 0
L_XS = 131072
KORD = list(range(14))
NV = 144
ACC, WF, XF, ST, CS, AX, AW, AS, DX, DW = 0, 64, 96, 104, 108, 112, 116, 120, 122, 124
PFA = 136; TMP = 128; P2T = 128; BT2 = 126; DB = 139; VLANE = 140; VL16 = 141; BT = 142

class K:
    def __init__(self, stamps):
        self.g = Gen(); self.use_stamps = stamps; self.nst = 0; self.names = {}; self.keys = ['0', '10', '11', '2']
    def I(self, t, needs=()): return self.g.I(t, needs)
    def U(self, t):
        x = self.g.I(t); x.kind = 'untracked'; return x
    def stamp(self, name, real=False):
        if 'dbgt' in EXP and name in ('bar0', 'loopend', 'gdone', 'opub', 'ook'):
            r = {'bar0': [78], 'loopend': [80], 'gdone': [82], 'ook': [84], 'opub': [82, 84]}[name]
            for x in r: self.I('s_memtime s[%d:%d]' % (x, x + 1))
        if not self.use_stamps: return
        i = self.nst
        if i >= 12: return
        self.nst += 1
        for k in self.keys: self.names.setdefault(k, {})[i] = name
        self.I('%s %s' % ('s_memrealtime' if real else 's_memtime', sr(S_ST + 2 * i, 2)))
    def write_stamps(self, total=13):
        if 'dbgt' in EXP:
            I = self.I
            I('s_memrealtime s[74:75]'); I('s_memtime s[76:77]'); I('s_waitcnt vmcnt(0) lgkmcnt(0)')
            I('s_mov_b64 exec, 1'); I('v_mov_b32 v2, 0')
            I('v_mov_b32 v0, s70'); I('buffer_atomic_umax v0, v2, %s, 0 offen offset:8' % sr(S_DBG, 4))
            I('s_not_b32 s8, s70'); I('v_mov_b32 v1, s8'); I('buffer_atomic_umax v1, v2, %s, 0 offen offset:12' % sr(S_DBG, 4))
            I('v_mov_b32 v3, s74'); I('buffer_atomic_umax v3, v2, %s, 0 offen offset:16' % sr(S_DBG, 4))
            I('s_sub_u32 s8, s76, s72'); I('v_mov_b32 v4, s8'); I('buffer_atomic_umax v4, v2, %s, 0 offen offset:20' % sr(S_DBG, 4))
            I('s_sub_u32 s8, s74, s70'); I('v_mov_b32 v5, s8'); I('buffer_atomic_umax v5, v2, %s, 0 offen offset:24' % sr(S_DBG, 4))
            for k, so in enumerate((78, 80, 82, 84)):
                I('s_sub_u32 s8, s%d, s72' % so); I('v_mov_b32 v%d, s8' % (6 + k)); I('buffer_atomic_umax v%d, v2, %s, 0 offen offset:%d' % (6 + k, sr(S_DBG, 4), 28 + 4 * k))
            I('s_waitcnt vmcnt(0)')
            return
        if not self.use_stamps: return
        I = self.I
        I('s_memrealtime %s' % sr(S_ST + 2 * (total - 1), 2))
        I('s_waitcnt lgkmcnt(0)')
        I('s_lshl_b32 s8, s2, 3'); I('s_add_u32 s8, s8, s%d' % S_WAVE); I('s_lshl_b32 s8, s8, 7')
        I('s_add_u32 s8, s8, %d' % L.WS_STAMP)
        I('v_mov_b32 v2, 0')
        I('s_mov_b64 exec, 1')
        for i in range(total):
            I('v_mov_b32 v0, s%d' % (S_ST + 2 * i)); I('v_mov_b32 v1, s%d' % (S_ST + 2 * i + 1))
            I('buffer_store_dwordx2 v[0:1], v2, %s, s8 offen offset:%d' % (sr(S_WS, 4), 8 * i))
        I('s_mov_b64 exec, -1')
    def srd(self, d, base, nbytes):
        I = self.I
        I('s_mov_b32 s%d, s%d' % (d, base)); I('s_and_b32 s%d, s%d, 0xffff' % (d + 1, base + 1))
        I('s_mov_b32 s%d, %d' % (d + 2, nbytes)); I('s_mov_b32 s%d, 0x20000' % (d + 3))

    def prologue(self):
        I = self.I
        I('s_cmp_ge_u32 s2, 256'); I('s_cbranch_scc1 L_end')
        I('s_load_dwordx16 s[16:31], s[0:1], 0'); I('s_load_dwordx4 s[32:35], s[0:1], 64')
        if 'anti' in EXP:
            I('s_lshr_b32 s8, s2, 5'); I('s_and_b32 s9, s2, 31'); I('s_lshl_b32 s9, s9, 3'); I('s_or_b32 s2, s8, s9')
        I('s_getpc_b64 s[8:9]')
        self.g.label('L_pc')
        I('v_cmp_le_u32 vcc, %d, v0' % (1024 if 'nocp0' in EXP else 448)); I('s_cbranch_vccz L_nopf')
        I('s_bfe_u32 s10, s2, 0x30003'); I('s_lshl_b32 s10, s10, 13')
        I('v_and_b32 v1, 63, v0'); I('v_lshlrev_b32 v1, 7, v1'); I('v_add_u32 v1, s10, v1')
        I('v_min_u32 v1, L_end-L_pc, v1')
        self.U('global_load_dword a80, v1, s[8:9]')
        self.g.label('L_nopf')
        if self.use_stamps:
            for i in range(13): I('s_mov_b64 %s, 0' % sr(S_ST + 2 * i, 2))
        self.stamp('rt0', True); self.stamp('t0')
        if 'dbgt' in EXP: I('s_memrealtime s[70:71]'); I('s_memtime s[72:73]')
        I('v_lshrrev_b32 v1, 6, v0'); I('v_and_b32 v0, 63, v0')
        I('v_readfirstlane_b32 s%d, v1' % S_WAVE)
        I('v_mov_b32 v%d, v0' % VLANE); I('v_lshlrev_b32 v%d, 4, v0' % VL16)
        I('s_and_b32 s8, s2, 7'); I('s_lshr_b32 s9, s2, 3')
        I('s_and_b32 s10, s8, 1'); I('s_lshl_b32 s10, s10, 3'); I('s_and_b32 s11, s9, 7'); I('s_add_u32 s%d, s10, s11' % S_RB)
        I('s_lshr_b32 s8, s8, 1'); I('s_lshr_b32 s10, s9, 3')
        I('s_lshl_b32 s11, s8, 2'); I('s_add_u32 s12, s11, s10')
        I('s_mov_b32 s%d, 0' % S_TYPE); I('s_lshl_b32 s%d, s8, 1' % S_IDX); I('s_add_u32 s%d, s%d, s10' % (S_IDX, S_IDX))
        I('s_cmp_lt_u32 s10, 2'); I('s_cbranch_scc1 L_role')
        I('s_mov_b32 s%d, 1' % S_TYPE); I('s_lshr_b32 s%d, 0x4210, s11' % S_IDX); I('s_and_b32 s%d, s%d, 15' % (S_IDX, S_IDX))
        I('s_cmp_eq_u32 s10, 2'); I('s_cbranch_scc1 L_role')
        I('s_and_b32 s13, s8, 1'); I('s_lshl_b32 s%d, s13, 1' % S_IDX); I('s_add_u32 s%d, s%d, 3' % (S_IDX, S_IDX))
        I('s_bfe_u32 s11, s9, 0x10002'); I('s_lshr_b32 s8, s8, 1'); I('s_cmp_lg_u32 s11, s8'); I('s_cbranch_scc1 L_role')
        I('s_mov_b32 s%d, 2' % S_TYPE); I('s_mov_b32 s%d, s13' % S_IDX)
        self.g.label('L_role')
        I('s_lshl_b32 s8, s%d, 4' % S_RB); I('s_add_u32 s8, s8, s12'); I('s_lshl_b32 s8, s8, 3'); I('s_add_u32 s11, s8, s%d' % S_WAVE)
        I('s_mov_b32 s%d, -1' % S_EX56); I('s_mov_b32 s%d, 0x00ffffff' % (S_EX56 + 1))
        I('s_and_b32 s%d, s%d, 3' % (S_RT, S_WAVE)); I('s_lshr_b32 s%d, s%d, 2' % (S_CH, S_WAVE))
        I('s_mov_b32 s%d, 0xffff0000' % S_MASK)
        I('v_lshrrev_b32 v2, 3, v0'); I('v_mul_u32_u24 v2, 896, v2')
        I('v_lshrrev_b32 v3, 4, v0'); I('v_and_b32 v4, 7, v0'); I('v_xor_b32 v4, v4, v3')
        I('v_lshl_add_u32 v%d, v4, 4, v2' % DX)
        I('v_xor_b32 v4, 4, v4'); I('v_lshl_add_u32 v%d, v4, 4, v2' % (DX + 1)); I('v_add_u32 v%d, %d, v%d' % (DX + 1, 8 * 896 - 1024, DX + 1))
        I('s_lshl_b32 s8, s%d, 3' % S_RB); I('s_add_u32 s8, s8, s%d' % S_WAVE); I('s_mul_i32 s%d, s8, %d' % (S_XS, 16 * 896))
        I('v_cmp_lt_u32 vcc, 27, v0'); I('v_subrev_u32 v7, 28, v0'); I('v_cndmask_b32 v7, v0, v7, vcc'); I('v_cndmask_b32 v6, 0, 1, vcc')
        I('v_cmp_gt_u32 vcc, 56, v0'); I('v_mov_b32 v5, 0x7fffffff'); I('v_cndmask_b32 v5, v5, v%d, vcc' % VL16)
        I('s_waitcnt lgkmcnt(0)')
        if 'start' in EXP: self.stamp('karg')
        self.srd(S_X, 16, 2048 * 896)
        self.srd(S_WS, 34, L.WS_BYTES); self.srd(S_DBG, 32, 256)
        I('s_mov_b32 s%d, s11' % S_ROW)
        I('s_lshl_b32 s%d, s%d, 11' % (S_MX, S_WAVE))
        I('s_mul_i32 s%d, s%d, %d' % (S_MW, S_WAVE, 8 * 448)); I('s_add_u32 s%d, s%d, %d' % (S_MW, S_MW, WPART))

    def start_stream(self, gpitch):
        I = self.I
        for i in range(1, 4): I('v_add_u32 v%d, %d, v%d' % (DW + i, i * (2 * gpitch - 896), DW))
        I('s_mul_i32 s8, s%d, %d' % (S_WAVE, 8 * gpitch)); I('s_add_u32 s%d, s%d, s8' % (S_WSO, S_WSO))
        self.gpitch = gpitch
        d = {}
        if 'start' in EXP: self.stamp('pre_s0')
        grps, d[0] = self.stage_dma(0, gpitch)
        for gp in grps: self.g.extend(gp)
        I('s_mul_i32 s8, s%d, 896' % S_ROW)
        I('buffer_load_dwordx4 %s, v5, %s, s8 offen' % (vr(XF, 4), sr(S_X, 4)))
        I('s_cmp_ge_u32 s%d, 7' % S_RB); I('s_cbranch_scc1 L_nocx%s' % self.tagbase)
        I('s_sub_u32 s8, s%d, 1' % S_RB); I('s_mul_i32 s8, s8, %d' % (64 * gpitch)); I('s_add_u32 s8, s8, s%d' % S_WSO)
        I('s_add_u32 m0, s%d, %d' % (S_MW, L_CX - WPART)); I('s_mov_b64 exec, %s' % sr(S_EX56, 2))
        for j in range(4): self.U('buffer_load_dwordx4 v%d, %s, s8 offen offset:%d lds' % (DW + j, sr(S_W, 4), 896 * j))
        I('s_mov_b64 exec, -1')
        self.g.label('L_nocx%s' % self.tagbase)
        lab = 'L_nonon' + self.tagbase
        I('s_or_b32 s8, s2, s%d' % S_WAVE); I('s_cmp_lg_u32 s8, 0'); I('s_cbranch_scc1 %s' % lab)
        self.U('s_memrealtime s[8:9]'); self.U('s_waitcnt lgkmcnt(0)'); I('s_or_b32 s8, s8, 1'); I('v_mov_b32 v8, s8'); I('v_mov_b32 v9, 0')
        I('s_mov_b64 exec, 1'); self.U('buffer_store_dword v8, v9, %s, 0 offen sc1' % sr(S_DBG, 4)); I('s_mov_b64 exec, -1')
        self.g.label(lab)
        if 'start' in EXP: self.stamp('s0iss')
        return d
    def mall_addr(self):
        I = self.I
        segs = [(16, 7, 2, 5, 2048 * 896), (18, 4, 128 * 21, 4, 448 * 2688), (26, 5, 128 * 28, 5, 448 * 3584), (28, 7, 0, 7, 1792 * 896), (22, 2, 0, 2, 448 * 896)]
        I('s_lshl_b32 s8, s2, 3'); I('s_add_u32 s8, s8, s%d' % S_WAVE)
        lo = 0
        for i, (sb, mul, first, n, size) in enumerate(segs):
            I('s_mul_i32 s9, s8, %d' % mul); I('s_add_i32 s9, s9, %d' % (first - lo))
            I('v_add_u32 v10, s9, v0'); I('v_lshlrev_b32 v10, 7, v10'); I('v_min_u32 v10, %d, v10' % (size - 4))
            if i == 0:
                I('v_mov_b32 v11, v10'); I('v_mov_b32 v8, s%d' % sb); I('v_mov_b32 v9, s%d' % (sb + 1))
            else:
                I('v_cmp_le_u32 vcc, %d, v0' % lo); I('v_mov_b32 v12, s%d' % sb); I('v_mov_b32 v13, s%d' % (sb + 1))
                I('v_cndmask_b32 v11, v11, v10, vcc'); I('v_cndmask_b32 v8, v8, v12, vcc'); I('v_cndmask_b32 v9, v9, v13, vcc')
            lo += n
        I('v_add_co_u32 v%d, vcc, v8, v11' % PFA); I('v_addc_co_u32 v%d, vcc, 0, v9, vcc' % (PFA + 1))
    def mall_issue(self, part):
        if 'nomall' in EXP: return []
        I = self.I
        with self.g.capture() as a:
            I('s_mov_b64 exec, %d' % ([0x3fff, 0x7fc000][part]))
            I('global_load_dword a%d, %s, off' % (80 + part, vr(PFA, 2)))
            I('s_mov_b64 exec, -1')
        return [a]
    def pre_loop(self, p2, idx0, extra=None, late=None):
        I = self.I; g = self.g
        self.mall_addr()
        self.late_srds()
        if p2:
            self.p2_setup()
            for gp in self.p2_pre(): g.extend(gp)
        I('s_add_u32 s8, s%d, %d' % (S_IDX, idx0)); I('s_lshl_b32 s8, s8, 14'); I('s_add_u32 s%d, s8, %d' % (S_CSB, L.WS_CSG))
        if extra: extra()
        if 'start' in EXP: self.stamp('setup')
        self.s0pos = len(g.cur)
        if 'not0' not in EXP:
            for gp in self.mall_issue(0): g.extend(gp)
        if 'tlb' in EXP or 'tlbf' in EXP:
            lab = 'L_notl' + self.tagbase
            I('s_cmp_lg_u32 s%d, 6' % S_WAVE); I('s_cbranch_scc1 %s' % lab)
            if 'tlbf' in EXP:
                I('v_lshlrev_b32 v8, 17, v0'); I('v_add_u32 v8, 114688, v8')
                self.U('buffer_load_dword a83, v8, %s, 0 offen' % sr(S_WS, 4))
                I('v_add_u32 v8, %d, v8' % (L.WS_O - 114688 + 57344)); I('s_mov_b64 exec, 0xffff')
                self.U('buffer_load_dword a83, v8, %s, 0 offen' % sr(S_WS, 4))
                I('v_lshlrev_b32 v8, 17, v0'); I('s_mov_b64 exec, 0x3fff')
                self.U('buffer_load_dword a83, v8, %s, 0 offen' % sr(S_OUT, 4))
                I('v_mov_b32 v8, %d' % ((10 << 20) + 0x30000)); I('s_mov_b64 exec, 1')
                self.U('buffer_load_dword a83, v8, %s, 0 offen' % sr(S_WS, 4))
            else:
                I('v_lshlrev_b32 v8, 21, v0'); I('v_add_u32 v8, %d, v8' % (0x30000 + 57344 - 0x30000 + 0x20000 * 2 + 57344)); I('s_mov_b64 exec, 0x3f')
                self.U('buffer_load_dword a83, v8, %s, 0 offen' % sr(S_WS, 4))
                I('s_mov_b64 exec, 1'); I('v_mov_b32 v8, 0')
                self.U('buffer_load_dword a83, v8, %s, 0 offen' % sr(S_OUT, 4))
                self.U('buffer_load_dword a83, v8, %s, 0 offen' % sr(S_PHI, 4))
            I('s_mov_b64 exec, -1')
            self.g.label(lab)
        if 't1now' in EXP:
            for gp in self.mall_issue(1): g.extend(gp)
        if late: late()
        self.row_stats()
    def chunks(self, fn, n=10):
        with self.g.capture() as body:
            fn()
        out = []; cur = []
        for i, x in enumerate(body):
            cur.append(x)
            nxt = body[i + 1] if i + 1 < len(body) else None
            safe = nxt is not None and not (nxt.op.startswith(('s_cselect', 's_cbranch', 's_addc', 's_subb', 'v_cndmask', 'v_addc')) or nxt.kind in ('dma', 'label')) \
                and not x.op.startswith(('s_cmp', 'v_cmp')) and 'm0' not in x.dst
            if len(cur) >= n and safe: out.append(cur); cur = []
        if cur: out.append(cur)
        return out

    def late_srds(self):
        I = self.I
        self.srd(S_PHI, 20, 16 * 28 * 28 * 2); self.srd(S_WO, 22, 448 * 896); self.srd(S_W2, 28, 1792 * 896)
        self.srd(S_OUT, 30, 2048 * 896)
        I('s_mov_b32 s%d, %s' % (S_L2E, f32(L.LOG2E))); I('s_mov_b32 s%d, %s' % (S_L2E + 1, f32(L.LOG2E)))
        I('s_mov_b32 s%d, 0' % S_HIM); I('s_mov_b32 s%d, -1' % (S_HIM + 1))
        I('s_mov_b32 s31, 0')

    def late_group(self, p2, extra=None):
        with self.g.capture() as a:
            self.late_srds()
            if extra: extra()
        self.p2flag = p2
        return a
    def p2_setup(self):
        I = self.I; T = 64
        I('s_lshr_b32 s9, s2, 3'); I('s_and_b32 s8, s9, 3'); I('s_add_u32 s8, s8, 24'); I('s_cmp_lt_u32 s9, 24'); I('s_cselect_b32 s9, s9, s8')
        I('s_mul_i32 s8, s9, 37'); I('s_lshr_b32 s8, s8, 8'); I('s_mul_i32 s10, s8, 7'); I('s_sub_u32 s%d, s9, s10' % S_CG)
        I('s_and_b32 s10, s2, 7'); I('s_lshl_b32 s10, s10, 2'); I('s_add_u32 s%d, s10, s8' % S_RG)
        I('s_mul_i32 s%d, s%d, %d' % (S_BSO, S_WAVE, 224 * 896)); I('s_lshl_b32 s8, s%d, 7' % S_CG); I('s_add_u32 s%d, s%d, s8' % (S_BSO, S_BSO))
        I('s_lshl_b32 s%d, s%d, 12' % (S_STA, S_WAVE)); I('s_add_u32 s%d, s%d, %d' % (S_STA, S_STA, L_STA))
        I('v_lshrrev_b32 v%d, 3, v140' % T); I('v_mul_u32_u24 v%d, 896, v%d' % (T, T))
        I('v_lshrrev_b32 v%d, 2, v140' % (T + 1)); I('v_and_b32 v%d, 4, v%d' % (T + 1, T + 1)); I('v_and_b32 v%d, 7, v140' % (T + 2))
        I('v_xor_b32 v%d, v%d, v%d' % (T + 1, T + 1, T + 2)); I('v_lshl_add_u32 v%d, v%d, 4, v%d' % (DB, T + 1, T))
        I('v_lshrrev_b32 v%d, 5, v140' % T); I('v_lshlrev_b32 v%d, 2, v%d' % (T, T)); I('v_bfe_u32 v%d, v140, 2, 2' % (T + 1)); I('v_add_u32 v%d, v%d, v%d' % (T, T, T + 1))
        I('v_lshlrev_b32 v%d, 7, v%d' % (T, T)); I('v_add_u32 v%d, s%d, v%d' % (T, S_STA, T))
        I('v_and_b32 v%d, 3, v140' % (T + 1)); I('v_lshlrev_b32 v%d, 3, v%d' % (T + 1, T + 1))
        I('v_and_b32 v%d, 16, v140' % (T + 2)); I('v_lshl_add_u32 v%d, v%d, 1, v%d' % (T + 1, T + 2, T + 1))
        I('v_and_b32 v%d, 8, v140' % (T + 2)); I('v_lshlrev_b32 v%d, 3, v%d' % (T + 2, T + 2)); I('v_xor_b32 v%d, v%d, v%d' % (T + 1, T + 1, T + 2))
        I('v_add_u32 v%d, v%d, v%d' % (BT, T, T + 1))
        I('v_xor_b32 v%d, 64, v%d' % (T + 1, T + 1)); I('v_add_u32 v%d, v%d, v%d' % (BT + 1, T, T + 1))

    def slot4_setup(self):
        I = self.I
        I('s_lshl_b32 s%d, s%d, 11' % (S_ST4, S_WAVE)); I('s_add_u32 s%d, s%d, %d' % (S_ST4, S_ST4, L_SHX)); I('s_sub_u32 s8, s%d, s%d' % (S_ST4, S_STA))
        for b in range(2): I('v_add_u32 v%d, s8, v%d' % (BT2 + b, BT + b))
    def wo_dma(self):
        g = self.g; I = self.I; grps = []
        with g.capture() as a:
            I('s_mul_i32 s23, s%d, %d' % (S_WAVE, 56 * 896)); I('s_lshl_b32 s24, s%d, 7' % S_CG); I('s_add_u32 s23, s23, s24'); I('s_mul_i32 s24, s%d, %d' % (S_WAVE, 56 * 128))
        for i in range(0, 7, 2):
            with g.capture() as b:
                I('s_add_u32 m0, s24, %d' % (L_WO + 1024 * i)); I('s_add_u32 s8, s23, %d' % (8 * 896 * i))
                I('buffer_load_dwordx4 v%d, %s, s8 offen lds' % (DB, sr(S_WO, 4)))
                if i + 1 < 7: I('buffer_load_dwordx4 v%d, %s, s8 offen offset:1024 lds' % (DB2, sr(S_WO, 4)))
            grps.append((a if i == 0 else []) + b)
        return grps
    SLOTS = [(0, BT), (2048, BT), (32768, BT), (34816, BT), (None, BT2)]
    def b_dma(self, k, needs=()):
        g = self.g; I = self.I; so = self.SLOTS[k % self.nslot][0]; grps = []
        with g.capture() as a:
            I('s_add_u32 m0, s%d, %d' % (S_STA, so) if so is not None else 's_mov_b32 m0, s%d' % S_ST4)
            I('s_add_u32 s8, s%d, %d' % (S_BSO, 16 * k * 896))
            I('buffer_load_dwordx4 v%d, %s, s8 offen lds' % (DB, sr(S_W2, 4)), needs=needs)
            I('buffer_load_dwordx4 v%d, %s, s8 offen offset:1024 lds' % (DB2, sr(S_W2, 4)))
        grps.append(a)
        self.bdma[k] = [x for gp in grps for x in gp if x.kind == 'dma']
        return grps
    def b_read(self, k):
        so, reg = self.SLOTS[k % self.nslot]; out = []
        if so is None: so = 0
        for b in range(2):
            for h in range(2):
                out.append(Instr('ds_read_b64_tr_b16 %s, v%d offset:%d' % (ar(8 * k + 4 * b + 2 * h, 2), reg + b, so + 1024 * h), needs=self.bdma[k]))
        self.bread[k] = out
        return out
    def b_tasks(self, k0, k1):
        t = [self.b_read(k) for k in range(k0, k1)]
        for k in range(k0, k1):
            if k + self.nslot < 14: t += self.b_dma(k + self.nslot, needs=self.bread[k])
        return t

    def stage_dma(self, st, gpitch):
        g = self.g; I = self.I; base = (st % 3) * STG
        grps = []
        for i in range(0, 4, 2):
            with g.capture() as a:
                if i == 0: I('s_add_u32 m0, s%d, %d' % (S_MW, base))
                I('s_mov_b64 exec, %s' % sr(S_EX56, 2))
                for j in (i, i + 1): I('buffer_load_dwordx4 v%d, %s, s%d offen offset:%d lds' % (DW + j, sr(S_W, 4), S_WSO, 896 * j))
                I('s_mov_b64 exec, -1')
            grps.append(a)
        with g.capture() as a:
            I('s_add_u32 m0, s%d, %d' % (S_MX, base)); I('s_add_u32 s%d, s%d, %d' % (S_WSO, S_WSO, 64 * gpitch))
            for i in range(2): I('buffer_load_dwordx4 v%d, %s, s%d offen offset:%d lds' % (DX + i, sr(S_X, 4), S_XS, 1024 * i))
            I('s_add_u32 s%d, s%d, 128' % (S_XS, S_XS))
        grps.append(a)
        return grps, [x for gp in grps for x in gp if x.kind == 'dma']

    def read_addrs(self, clamp, shared=False):
        I = self.I; T = TMP
        I('v_and_b32 v%d, 31, v0' % T); I('v_lshlrev_b32 v%d, 7, v%d' % (T, T)); I('s_lshl_b32 s8, s%d, 12' % S_RT); I('v_add_u32 v%d, s8, v%d' % (T, T))
        I('v_lshrrev_b32 v%d, 5, v0' % (T + 1)); I('v_bfe_u32 v%d, v0, 1, 3' % (T + 2)); I('v_xor_b32 v%d, v%d, v%d' % (T + 2, T + 2, T + 1))
        I('v_lshlrev_b32 v%d, 3, v%d' % (T + 3, T + 1)); I('v_bfe_u32 v%d, v0, 2, 2' % (T + 4)); I('v_add_u32 v%d, v%d, v%d' % (T + 3, T + 3, T + 4))
        I('v_mul_u32_u24 v%d, 448, v%d' % (T + 3, T + 3))
        I('v_bfe_u32 v%d, v0, 4, 1' % (T + 4)); I('v_and_b32 v%d, 3, v0' % (T + 5)); I('v_lshl_add_u32 v%d, v%d, 2, v%d' % (T + 4, T + 4, T + 5))
        if shared:
            I('s_lshl_b32 s8, s%d, 2' % S_CH); I('v_xor_b32 v%d, s8, v%d' % (T + 6, T + 4)); I('v_lshl_add_u32 v%d, v%d, 3, v%d' % (T + 6, T + 6, T + 3))
            I('v_add_u32 v%d, %d, v%d' % (T + 6, WPART + 384, T + 6))
        if clamp: I('v_min_u32 v%d, 6, v%d' % (T + 4, T + 4))
        if shared:
            I('s_cmp_eq_u32 s%d, 7' % S_WAVE); I('s_cselect_b32 s8, 4, 0'); I('v_xor_b32 v%d, s8, v%d' % (CS + 3, T + 4))
            I('s_min_u32 s9, s%d, 6' % S_WAVE); I('s_lshl_b32 s9, s9, 6'); I('s_add_u32 s9, s9, %d' % L_CX)
        else:
            I('v_mov_b32 v%d, v%d' % (CS + 3, T + 4)); I('s_mul_i32 s9, s%d, 56' % S_RT); I('s_add_u32 s9, s9, s10'); I('s_add_u32 s9, s9, %d' % (L_CX - WPART))
        I('v_lshl_add_u32 v%d, v%d, 3, v%d' % (CS + 3, CS + 3, T + 3)); I('v_add_u32 v%d, s9, v%d' % (CS + 3, CS + 3))
        I('v_lshl_add_u32 v%d, v%d, 3, v%d' % (T + 3, T + 4, T + 3))
        I('v_add_u32 v%d, s10, v%d' % (T + 3, T + 3))
        for i in range(4):
            I('s_add_u32 s8, s%d, s%d' % (S_RT, S_CH)); I('s_add_u32 s8, s8, %d' % i); I('s_and_b32 s8, s8, 3')
            I('s_lshl_b32 s9, s8, 1'); I('v_xor_b32 v%d, s9, v%d' % (T + 5, T + 2)); I('v_lshl_add_u32 v%d, v%d, 4, v%d' % (AX + i, T + 5, T))
            I('s_mul_i32 s9, s8, 7168'); I('v_add_u32 v%d, s9, v%d' % (AW + i, T + 3))
            if shared and i in (0, 2): I('v_add_u32 v%d, s9, v%d' % (AS + i // 2, T + 6))

    def row_stats(self):
        I = self.I; S, Q = ST, ST + 1
        I('s_mov_b32 s8, 0x3f803f80')
        I('v_dot2_f32_bf16 v%d, v%d, s8, 0' % (S, XF)); I('v_dot2_f32_bf16 v%d, v%d, v%d, 0' % (Q, XF, XF))
        for q in range(1, 4):
            I('v_dot2_f32_bf16 v%d, v%d, s8, v%d' % (S, XF + q, S)); I('v_dot2_f32_bf16 v%d, v%d, v%d, v%d' % (Q, XF + q, XF + q, Q))
        for m in ('row_shr:1', 'row_shr:2', 'row_shr:4', 'row_shr:8'):
            for r in (S, Q): I('v_add_f32_dpp v%d, v%d, v%d %s row_mask:0xf bank_mask:0xf bound_ctrl:0' % (r, r, r, m))
        for m, rm in (('row_bcast:15', '0xa'), ('row_bcast:31', '0xc')):
            for r in (S, Q): I('v_add_f32_dpp v%d, v%d, v%d %s row_mask:%s bank_mask:0xf' % (r, r, r, m, rm))
        I('v_mul_f32 v%d, %s, v%d' % (S, f32(1.0 / 448), S)); I('v_mul_f32 v%d, %s, v%d' % (Q, f32(1.0 / 448), Q))
        I('v_fma_f32 v%d, -v%d, v%d, v%d' % (Q, S, S, Q)); I('v_max_f32 v%d, 0, v%d' % (Q, Q))
        def rbf(r):
            I('v_cvt_pk_bf16_f32 v%d, v%d, v%d' % (r, r, r)); I('v_lshlrev_b32 v%d, 16, v%d' % (r, r))
        rbf(S); rbf(Q)
        I('v_add_f32 v%d, %s, v%d' % (Q, f32(1e-5), Q)); rbf(Q)
        I('v_sqrt_f32 v%d, v%d' % (Q, Q)); rbf(Q)
        I('v_rcp_f32 v%d, v%d' % (Q, Q))
        I('v_sub_f32 v%d, 0, v%d' % (S, S))

    def nonce_issue(self):
        self.I('v_mov_b32 v%d, 0' % (ST + 3))
        return self.I('buffer_load_dword v%d, v%d, %s, 0 offen sc1' % (ST + 2, ST + 3, sr(S_DBG, 4)))
    def nonce_get_publish(self, tag):
        I = self.I; U = self.U
        I('v_readfirstlane_b32 s%d, v%d' % (S_NONCE, ST + 2))
        I('s_cmp_lg_u32 s%d, 0' % S_NONCE); I('s_cbranch_scc1 L_gotn%s' % tag)
        self.g.label('L_spinn%s' % tag)
        U('buffer_load_dword v%d, v%d, %s, 0 offen sc1' % (ST + 2, ST + 3, sr(S_DBG, 4)))
        U('s_waitcnt vmcnt(0)')
        I('v_readfirstlane_b32 s%d, v%d' % (S_NONCE, ST + 2)); I('s_nop 1')
        I('s_cmp_lg_u32 s%d, 0' % S_NONCE); I('s_cbranch_scc1 L_gotn%s' % tag)
        self.spin_tail('L_spinn%s' % tag)
        self.g.label('L_gotn%s' % tag)
        I('v_mov_b32 v%d, s%d' % (ST + 2, S_NONCE)); I('v_mov_b32 v%d, s%d' % (ST + 3, S_NONCE))
        I('s_lshl_b32 s8, s%d, 4' % S_ROW); I('s_add_u32 s8, s8, %d' % L.WS_RS); I('v_mov_b32 v%d, 0' % (TMP + 8))
        I('s_mov_b32 exec_lo, 0'); I('s_mov_b32 exec_hi, 0x80000000')
        I('buffer_store_dwordx4 %s, v%d, %s, s8 offen sc1' % (vr(ST, 4), TMP + 8, sr(S_WS, 4)))
        I('s_mov_b64 exec, -1')
    def rs_issue(self):
        I = self.I
        I('s_lshl_b32 s8, s%d, 2' % S_RB); I('s_add_u32 s8, s8, s%d' % S_RT); I('s_lshl_b32 s8, s8, 9'); I('s_add_u32 s%d, s8, %d' % (S_ROW, L.WS_RS))
        I('v_and_b32 v%d, 31, v%d' % (DX, VLANE)); I('v_lshlrev_b32 v%d, 4, v%d' % (DX, DX))
        return I('buffer_load_dwordx4 %s, v%d, %s, s%d offen sc1' % (vr(ST, 4), DX, sr(S_WS, 4), S_ROW))
    def rs_get(self, tag, scale):
        I = self.I; U = self.U
        I('v_cmp_ne_u32 vcc, s%d, v%d' % (S_NONCE, ST + 2)); I('s_nop 1'); I('s_cbranch_vccz L_gotr%s' % tag)
        self.g.label('L_spinr%s' % tag)
        U('buffer_load_dwordx4 %s, v%d, %s, s%d offen sc1' % (vr(ST, 4), DX, sr(S_WS, 4), S_ROW))
        U('s_waitcnt vmcnt(0)')
        I('v_cmp_ne_u32 vcc, s%d, v%d' % (S_NONCE, ST + 2)); I('s_nop 1'); I('s_cbranch_vccz L_gotr%s' % tag)
        self.spin_tail('L_spinr%s' % tag)
        self.g.label('L_gotr%s' % tag)
        for q in range(4): I('v_cvt_pk_bf16_f32 v%d, v%d, v%d' % (XF + q, ST, ST))
        I('v_mul_f32 v%d, %s, v%d' % (ST, f32(scale), ST + 1))
    def publish(self, soff_s, tmp, needs=()):
        I = self.I
        I('v_mov_b32 v%d, s%d' % (tmp, S_NONCE)); I('v_mov_b32 v%d, 0' % (tmp + 1)); I('s_mov_b64 exec, 1')
        x = I('buffer_store_dword v%d, v%d, %s, s%d offen sc1' % (tmp, tmp + 1, sr(S_WS, 4), soff_s), needs=needs)
        I('s_mov_b64 exec, -1')
        return x
    def poll(self, tag, voff, soff_s, tmp):
        I = self.I; U = self.U
        self.g.label('L_poll%s' % tag)
        U('buffer_load_dword v%d, v%d, %s, s%d offen sc1' % (tmp, voff, sr(S_WS, 4), soff_s))
        I('s_waitcnt vmcnt(0)')
        I('v_cmp_ne_u32 vcc, s%d, v%d' % (S_NONCE, tmp)); I('s_nop 1'); I('s_cbranch_vccz L_polld%s' % tag)
        self.spin_tail('L_poll%s' % tag)
        self.g.label('L_polld%s' % tag)
    def poll_issue(self, voff, soff_s, tmp):
        return self.I('buffer_load_dword v%d, v%d, %s, s%d offen sc1' % (tmp, voff, sr(S_WS, 4), soff_s))
    def poll_check(self, tag, voff, soff_s, tmp):
        I = self.I; U = self.U
        if 'nopoll' in EXP and tag in 'AB': return
        I('v_cmp_ne_u32 vcc, s%d, v%d' % (S_NONCE, tmp)); I('s_nop 1'); I('s_cbranch_vccz L_polld%s' % tag)
        self.g.label('L_poll%s' % tag)
        U('buffer_load_dword v%d, v%d, %s, s%d offen sc1' % (tmp, voff, sr(S_WS, 4), soff_s)); U('s_waitcnt vmcnt(0)')
        I('v_cmp_ne_u32 vcc, s%d, v%d' % (S_NONCE, tmp)); I('s_nop 1'); I('s_cbranch_vccz L_polld%s' % tag)
        self.spin_tail('L_poll%s' % tag)
        self.g.label('L_polld%s' % tag)
    def spin_tail(self, lab, sl=None):
        I = self.I
        I('s_sleep %d' % (sl or SLEEP)); I('s_add_u32 s31, s31, 1'); I('s_cmp_lt_u32 s31, 0x8000'); I('s_cbranch_scc1 %s' % lab)

    def l2pf(self, st):
        if 'l2pf' not in EXP: return []
        I = self.I; lab = 'L_pf%s%d' % (self.tagbase, st)
        with self.g.capture() as a:
            I('s_lshr_b32 s8, s%d, 1' % S_WAVE); I('s_cmp_lg_u32 s8, %d' % (st - PF0)); I('s_cbranch_scc1 %s' % lab)
            I('s_lshr_b32 s8, s2, 3'); I('s_lshl_b32 s8, s8, 3'); I('s_add_u32 s8, s8, s%d' % S_WAVE); I('s_lshl_b32 s8, s8, 13')
            I('v_lshlrev_b32 v%d, 7, v%d' % (TMP + 8, VLANE))
            self.U('buffer_load_dword a80, v%d, %s, s8 offen' % (TMP + 8, sr(S_W2, 4)))
            I('s_sub_u32 s8, s8, %d' % (196 * 8192)); I('s_cbranch_scc1 %s' % lab)
            self.U('buffer_load_dword a80, v%d, %s, s8 offen' % (TMP + 8, sr(S_WO, 4)))
            self.g.label(lab)
        return [a]

    def code_pf(self, tg, tmp, dst):
        if 'nocpf' in EXP: return []
        I = self.I
        with self.g.capture() as a:
            I('s_getpc_b64 s[8:9]'); self.g.label('L_cpf%s' % tg)
            I('s_sub_u32 s8, s8, L_cpf%s-L_pc' % tg); I('s_subb_u32 s9, s9, 0')
            I('s_bfe_u32 s10, s2, 0x20003'); I('s_lshl_b32 s10, s10, 3'); I('s_add_u32 s10, s10, s%d' % S_WAVE); I('s_lshl_b32 s10, s10, 11')
            I('v_lshlrev_b32 v%d, 7, v%d' % (tmp, VLANE)); I('v_add_u32 v%d, s10, v%d' % (tmp, tmp)); I('v_min_u32 v%d, L_end-L_pc, v%d' % (tmp, tmp))
            I('s_mov_b64 exec, 0xffff')
            I('global_load_dword %s, v%d, s[8:9]' % (dst, tmp))
            I('s_mov_b64 exec, -1')
        return [a]

    def gemm(self, tiles, gpitch, dms, tag, hooks, tl):
        g = self.g; I = self.I
        dmas = dict(dms)
        NF, LOOK = 8, 4
        seq = [(ks, cc) for ks in range(28) for cc in range(len(tiles[ks & 3]['t']))]
        def wread(n):
            ks, cc = seq[n]; a = WF + 4 * (n % NF); c, areg, off = tiles[ks & 3]['t'][cc]
            return [Instr('ds_read_b64_tr_b16 %s, v%d offset:%d' % (vr(a + 2 * h, 2), areg, off + h * 4 * 448)) for h in range(2)]
        def xread(ks):
            return [Instr('ds_read_b128 %s, v%d' % (vr(XF + 4 * (ks % 2), 4), AX + (ks & 3)))]
        aregs = sorted(set(list(range(AX, AX + 4)) + [t[1] for p in tiles for t in p['t']]))
        def adv(st):
            d = STG if st % 3 else -2 * STG
            return [Instr('v_add_u32 v%d, %d, v%d' % (r, d, r)) if d > 0 else Instr('v_subrev_u32 v%d, %d, v%d' % (r, -d, r)) for r in aregs]
        tc = [0]
        def cs_ops(r, c):
            t = TMP + 2 * (tc[0] % 4); tc[0] += 1
            return [Instr('v_lshlrev_b32 v%d, 16, v%d' % (t, r)), Instr('v_and_b32 v%d, s%d, v%d' % (t + 1, S_MASK, r)),
                    Instr('v_add_f32 v%d, v%d, v%d' % (CS + c, CS + c, t)), Instr('v_add_f32 v%d, v%d, v%d' % (CS + c, CS + c, t + 1))]
        if 'start' in EXP:
            self.stamp('rowst'); I('s_nop 0', needs=dmas[0]); self.stamp('s0arr'); I('s_waitcnt lgkmcnt(0)')
        BAR0 = len(g.cur)
        I('s_barrier', needs=dmas[0])
        self.stamp('bar0')
        g.extend(xread(0))
        first = [wread(n) for n in range(LOOK)]
        for x in first: g.extend(x)
        g1, dmas[1] = self.stage_dma(1, gpitch)
        pend, dmas[2] = self.stage_dma(2, gpitch)
        g.cur[self.s0pos:self.s0pos] = [Instr('s_barrier')] + [x for gp in g1 for x in gp]
        if 't1b0' in EXP: pend += self.mall_issue(1)
        wrd = {}
        cs = {}
        def cs_make():
            with g.capture() as a:
                T = TMP
                I('s_cmp_ge_u32 s%d, 7' % S_RB); I('s_cbranch_scc1 L_nocm%s' % tag)
                I('s_mov_b32 s9, 0x3f803f80')
                for half in range(2):
                    for k2 in range(2):
                        for h in range(2): self.U('ds_read_b64_tr_b16 %s, v%d offset:%d' % (vr(T + 4 * k2 + 2 * h, 2), CS + 3, (2 * half + k2) * 7168 + h * 1792))
                    self.U('s_waitcnt lgkmcnt(0)')
                    for q in range(8): I('v_dot2_f32_bf16 v%d, v%d, s9, %s' % (CS + (q & 1), T + q, 'v%d' % (CS + (q & 1)) if half or q > 1 else '0'))
                I('s_lshl_b32 s8, s%d, 11' % S_WAVE); I('s_add_u32 s8, s8, s%d' % S_CSB); I('s_lshr_b32 s9, s%d, 2' % S_RB); I('s_lshl_b32 s9, s9, 10'); I('s_add_u32 s8, s8, s9')
                I('s_and_b32 s9, s%d, 3' % S_RB); I('s_lshl_b32 s9, s9, 2'); I('s_add_u32 s8, s8, s9')
                I('v_add_f32 v%d, v%d, v%d' % (CS, CS, CS + 1))
                I('v_cvt_pk_bf16_f32 v%d, v%d, v%d' % (T, CS, CS)); I('v_and_b32 v%d, s%d, v%d' % (T, S_MASK, T))
                I('v_sub_f32 v%d, v%d, v%d' % (T, CS, T)); I('v_cvt_pk_bf16_f32 v%d, v%d, v%d' % (CS, T, CS))
                self.U('buffer_store_dword v%d, v%d, %s, s8 offen sc1' % (CS, VL16, sr(S_WS, 4)))
                self.g.label('L_nocm%s' % tag)
            return [a]
        def cs_flag():
            with g.capture() as a:
                I('s_cmp_lt_u32 s%d, 7' % S_RB); I('s_cselect_b32 s8, s%d, 1' % S_WAVE); I('s_cmp_lg_u32 s8, 0'); I('s_cbranch_scc1 L_nocf%s' % tag)
                I('s_sub_u32 s8, s%d, %d' % (S_CSB, L.WS_CSG)); I('s_lshr_b32 s8, s8, 4'); I('s_lshl_b32 s9, s%d, 7' % S_RB); I('s_add_u32 s8, s8, s9'); I('s_add_u32 s8, s8, %d' % L.WS_CSF)
                self.publish(8, TMP).kind = 'untracked'
                self.g.label('L_nocf%s' % tag)
            return [a]
        def cs_poll():
            with g.capture() as a:
                I('s_sub_u32 s10, s%d, %d' % (S_CSB, L.WS_CSG)); I('s_lshr_b32 s10, s10, 4'); I('s_add_u32 s%d, s10, %d' % (S_R0, L.WS_CSF))
                I('v_and_b32 v%d, 7, v%d' % (CS, VLANE)); I('v_min_u32 v%d, 6, v%d' % (CS, CS)); I('v_lshlrev_b32 v%d, 7, v%d' % (CS, CS))
                self.poll_issue(CS, S_R0, CS + 1)
            return [a]
        def cs_load():
            with g.capture() as a:
                for c, mul, add in tl:
                    I('s_mul_i32 s8, s%d, %d' % (S_CH, mul * 2048)); I('s_add_u32 s8, s8, s%d' % S_CSB); I('s_add_u32 s8, s8, %d' % (add * 2048))
                    for h in range(2): I('buffer_load_dwordx4 %s, v%d, %s, s8 offen offset:%d sc1' % (ar(CSA + 8 * c + 4 * h, 4), VL16, sr(S_WS, 4), 1024 * h))
            return [a]
        for n in range(LOOK): wrd[n] = first[n]
        started = set(); xr = 0; cfill = []
        for n, (ks, cc) in enumerate(seq):
            p = tiles[ks & 3]; c = p['t'][cc][0]; a = WF + 4 * (n % NF); xf = XF + 4 * (ks % 2)
            I('v_mfma_f32_32x32x16_bf16 %s, %s, %s, %s' % (vr(ACC + 16 * c, 16), vr(a, 4), vr(xf, 4), vr(ACC + 16 * c, 16) if c in started else '0'),
              needs=wrd.get(n + 1, []) if n % 2 == 0 else [])
            started.add(c)
            nn = n + LOOK
            if nn < len(seq):
                ks2, cc2 = seq[nn]
                if cc2 == 0 and ks2 & 3 == 0:
                    st2 = ks2 >> 2
                    assert xr == ks2 - 1
                    g.extend(adv(st2))
                    if st2 == NST: self.nonce_get_publish(tag)
                    if st2 == 6: self.poll_check('c' + tag, CS, S_R0, CS + 1); self.rs_issue()
                    if st2 in hooks.get('pre', {}): hooks['pre'][st2]()
                    if 'stg' in EXP and st2 in (2, 3, 6): self.stamp('preB%d' % st2)
                    I('s_waitcnt lgkmcnt(0)')
                    I('s_barrier', needs=dmas[st2])
                    if 'stg' in EXP: self.stamp('B%d' % st2)
                    if st2 == 1:
                        with g.capture() as grp_: self.nonce_issue()
                        pend += [grp_]
                    if st2 == 1: pend += cs_make()
                    if st2 == 3: pend += cs_flag()
                    if st2 == 5: pend += cs_poll()
                    if st2 == 6: pend += cs_load()
                    if st2 in self.pre_post: pend += self.pre_post[st2]()
                    if st2 + 2 < 7:
                        newg, dmas[st2 + 2] = self.stage_dma(st2 + 2, gpitch); pend += newg
                    if st2 == MST and 't1now' not in EXP and 't1b0' not in EXP: pend += self.mall_issue(1)
                    if st2 in hooks.get('post', {}): pend += hooks['post'][st2]()
                wrd[nn] = wread(nn); g.extend(wrd[nn])
            if xr == ks and ks + 1 < 28 and (nn >= len(seq) or seq[min(nn, len(seq) - 1)][0] >= ks + 1):
                g.extend(xread(ks + 1)); xr = ks + 1
            if pend and (n % 3 == 0 or len(pend) > 3): g.extend(pend.pop(0))
        for x in pend: g.extend(x)
        self.stamp('loopend')

    def finish_stats(self, tl, scale, tag, before_b1=None, after_b1=None):
        I = self.I
        wr = []
        if before_b1: wr += before_b1() or []
        self.rs_get(tag, scale)
        for c, mul, add in tl: I('v_accvgpr_write_b32 a%d, 0' % (CSA + 8 * c + 7))
        for h in range(2):
            for c, mul, add in tl:
                I('v_mfma_f32_32x32x16_bf16 %s, %s, %s, %s' % (vr(ACC + 16 * c, 16), ar(CSA + 8 * c + 4 * h, 4), vr(XF, 4), vr(ACC + 16 * c, 16)))
        I('s_barrier', needs=wr)
        if after_b1: after_b1()
        if 'stg' in EXP: self.stamp = lambda *a, **k: None
        self.stamp('stats')

    def with_bg(self, fn, tasks, every):
        with self.g.capture() as body:
            fn()
        out = []; tasks = list(tasks); cnt = 0
        for x in body:
            out.append(x); cnt += 1
            if tasks and cnt >= every and x.kind in ('valu', 'trans') and not (x.dst & {'vcc'}):
                out += tasks.pop(0); cnt = 0
        for t in tasks: out += t
        self.g.extend(out)

    def ffn(self):
        I = self.I; g = self.g
        self.tagbase = 'f'
        self.srd(S_W, 26, 448 * 3584)
        I('v_mul_u32_u24 v6, 3584, v6'); I('v_lshl_add_u32 v%d, v7, 4, v6' % DW)
        I('s_mul_i32 s%d, s%d, 448' % (S_WSO, S_IDX))
        dms = self.start_stream(3584)
        I('s_mul_i32 s10, s%d, 192' % S_CH); I('s_add_u32 s10, s10, %d' % WPART)
        self.read_addrs(False, shared=True)
        self.pre_loop(True, 0); self.pre_post = {}
        own = lambda i, o: [(c, AW + i, 64 * c) for c in o]
        tiles = [dict(t=[(3, AS, 0)] + own(0, [0, 1, 2]), cs=True), dict(t=own(1, [0, 1, 2]), cs=True),
                 dict(t=own(2, [1, 2, 0]) + [(3, AS + 1, 0)], cs=True), dict(t=own(3, [2, 0, 1]), cs=True)]
        self.bdma, self.bread = {}, {}; self.nslot = 5
        tl = [(0, 3, 0), (1, 3, 1), (2, 3, 2), (3, 1, 6)]
        self.gemm(tiles, 3584, dms, 'f', self.bhooks(), tl)
        self.slot4_setup()
        SH = ACC + 48; X8 = 116
        def before_b1():
            I('s_xor_b32 s8, s%d, 4' % S_WAVE); I('s_lshl_b32 s8, s8, 11'); I('s_add_u32 s8, s8, %d' % L_SHX); I('v_add_u32 v%d, s8, v%d' % (AX, VL16))
            I('s_lshl_b32 s8, s%d, 11' % S_WAVE); I('s_add_u32 s8, s8, %d' % L_SHX); I('v_add_u32 v%d, s8, v%d' % (AX + 1, VL16))
            return [I('ds_write_b128 v%d, %s offset:%d' % (AX, vr(SH + 8 + 4 * q, 4), 1024 * q)) for q in range(2)]
        shr = []
        def after_b1():
            for q in range(2): shr.append(I('ds_read_b128 %s, v%d offset:%d' % (vr(X8 + 4 * q, 4), AX + 1, 1024 * q)))
        self.finish_stats(tl, -L.LOG2E, 'f', before_b1, after_b1)
        I('s_lshl_b32 s8, s%d, 2' % S_RB); I('s_add_u32 s8, s8, s%d' % S_RT); I('s_lshl_b32 s9, s8, 17')
        I('s_lshl_b32 s8, s8, 3'); I('s_add_u32 s8, s8, s%d' % S_IDX); I('s_lshl_b32 s8, s8, 1'); I('s_add_u32 s8, s8, s%d' % S_CH)
        I('s_lshl_b32 s8, s8, 7'); I('s_add_u32 s0, s8, %d' % L.WS_FLAG)
        I('s_mul_i32 s10, s%d, %d' % (S_IDX, 14 * 1024)); I('s_add_u32 s9, s9, s10')
        I('s_mul_i32 s10, s%d, 6144' % S_CH); I('s_add_u32 s10, s9, s10')
        I('s_lshl_b32 s11, s%d, 10' % S_CH); I('s_add_u32 s9, s9, s11'); I('s_add_u32 s1, s9, %d' % (12 * 1024))
        stores = []
        def unit(idx):
            c, u = divmod(idx, 2)
            A = ACC + 16 * c + 8 * u; T = [64, 72][idx & 1]; P = [80, 84][idx & 1]
            if 'noprio' not in EXP:
                lab = 'L_fp%d' % idx
                I('s_setprio 0'); I('s_cmp_eq_u32 s%d, %d' % (S_CH, idx & 1)); I('s_cbranch_scc1 %s' % lab); I('s_setprio 1'); self.g.label(lab)
            if c == 3:
                for j in range(0, 8, 2): I('v_pk_add_f32 %s, %s, %s' % (vr(A + j, 2), vr(A + j, 2), vr(X8 + j, 2)))
            for j in range(0, 8, 2): I('v_pk_mul_f32 %s, %s, %s op_sel_hi:[1,0]' % (vr(A + j, 2), vr(A + j, 2), vr(ST, 2)))
            for j in range(8): I('v_exp_f32 v%d, v%d' % (T + j, A + j))
            for j in range(0, 8, 2): I('v_pk_add_f32 %s, %s, 1.0 op_sel_hi:[1,0]' % (vr(T + j, 2), vr(T + j, 2)))
            for j in range(8): I('v_rcp_f32 v%d, v%d' % (T + j, T + j))
            for j in range(0, 8, 2): I('v_pk_mul_f32 %s, %s, %s' % (vr(T + j, 2), vr(T + j, 2), vr(A + j, 2)))
            for j in range(0, 8, 2): I('v_cvt_pk_bf16_f32 v%d, v%d, v%d' % (P + j // 2, T + j, T + j + 1))
            if idx == 4: I('s_add_u32 s10, s10, 4096')
            if c < 3: stores.append(I('buffer_store_dwordx4 %s, v%d, %s, s10 offen offset:%d sc1' % (vr(P, 4), VL16, sr(S_WS, 4), (idx % 4) * 1024)))
            else: stores.append(I('buffer_store_dwordx4 %s, v%d, %s, s1 offen sc1' % (vr(P, 4), VL16, sr(S_WS, 4))))
        self.with_bg(lambda: [unit(i) for i in range(6)], self.b_round1(shr) + ([] if 'wolate' in EXP else self.wo_dma()), int(os.environ.get('FBG', '11')))
        unit(6)
        I('s_setprio 0')
        self.stamp('epi')
        self.p2_enter()
        bt = self.b_tasks(4, 9)
        for t in bt[:5]: g.extend(t)
        self.publish(0, 96, needs=stores)
        self.stamp('pub')
        if 'nofh' not in EXP: I('s_barrier')
        for t in bt[5:8]: g.extend(t)
        pa = self.poll_issue(P2T + 1, S_FA, P2T)
        for t in bt[8:] + (self.wo_dma() if 'wolate' in EXP else []): g.extend(t)
        I('s_waitcnt lgkmcnt(0)'); I('s_nop 0', needs=[pa])
        I('s_branch L_p2')

    def b_round1(self, need4=None):
        t = [sum([self.b_read(k) for k in range(4)], [])]
        if need4 is not None: t += self.b_dma(4, needs=need4)
        for k in range(4): t += self.b_dma(k + 5, needs=self.bread[k])
        return t

    def bhooks(self, extra=None):
        post = {5: lambda: [[Instr('v_add_u32 v%d, %d, v%d' % (DB2, 8 * 896 - 1024, DB))]] + self.b_dma(0) + self.b_dma(1), 6: lambda: self.b_dma(2) + self.b_dma(3)}
        if extra: post.update(extra)
        return dict(post=post)

    def pack_k(self, A, K8):
        I = self.I
        for j in range(8): I('v_cvt_pk_bf16_f32 v%d, v%d, v%d' % (K8 + j, A + 2 * j, A + 2 * j + 1))
        for j in (6, 7): I('v_cndmask_b32 v%d, v%d, 0, %s' % (K8 + j, K8 + j, sr(S_HIM, 2)))
    def half_units(self, As, neg):
        I = self.I; M = 64; n = '-' if neg else ''; nm = ' neg_lo:[1,0,0] neg_hi:[1,0,0]' if neg else ''
        def each(f):
            for i, A in enumerate(As): f(A, M + 6 * i)
        I('v_mov_b32 v%d, 0xff800000' % (TMP + 10))
        each(lambda A, m: (I('v_max3_f32 v%d, %sv%d, %sv%d, %sv%d' % (m, n, A, n, A + 1, n, A + 2)), I('v_max3_f32 v%d, %sv%d, %sv%d, %sv%d' % (m + 1, n, A + 8, n, A + 9, n, A + 10))))
        for j in (3, 5): each(lambda A, m: (I('v_max3_f32 v%d, v%d, %sv%d, %sv%d' % (m, m, n, A + j, n, A + j + 1)), I('v_max3_f32 v%d, v%d, %sv%d, %sv%d' % (m + 1, m + 1, n, A + 8 + j, n, A + 9 + j))))
        each(lambda A, m: I('v_max3_f32 v%d, v%d, %sv%d, %sv%d' % (m + 1, m + 1, n, A + 7, n, A + 15)))
        each(lambda A, m: I('v_max_f32 v%d, v%d, v%d' % (m, m, m + 1)))
        each(lambda A, m: I('v_mov_b32 v%d, v%d' % (m + 1, m)))
        each(lambda A, m: I('v_permlane32_swap_b32 v%d, v%d' % (m, m + 1)))
        each(lambda A, m: I('v_max_f32 v%d, v%d, v%d' % (m, m, m + 1)))
        each(lambda A, m: I('v_mul_f32 v%d, -v%d, v%d' % (m, ST, m)))
        each(lambda A, m: I('v_cndmask_b32 v%d, v%d, v%d, %s' % (m + 1, m, TMP + 10, sr(S_HIM, 2))))
        for j in range(0, 16, 2):
            sel = 'op_sel_hi:[1,0,0]' if j < 12 else 'op_sel:[0,0,1] op_sel_hi:[1,0,1]'
            each(lambda A, m: I('v_pk_fma_f32 %s, %s, %s, %s %s%s' % (vr(A + j, 2), vr(A + j, 2), vr(ST, 2), vr(m, 2), sel, nm)))
        for j in range(16): each(lambda A, m: I('v_exp_f32 v%d, v%d' % (A + j, A + j)))
        each(lambda A, m: (I('v_pk_add_f32 %s, %s, %s' % (vr(m + 2, 2), vr(A, 2), vr(A + 2, 2))), I('v_pk_add_f32 %s, %s, %s' % (vr(m + 4, 2), vr(A + 8, 2), vr(A + 10, 2)))))
        for j in (4, 6): each(lambda A, m: (I('v_pk_add_f32 %s, %s, %s' % (vr(m + 2, 2), vr(m + 2, 2), vr(A + j, 2))), I('v_pk_add_f32 %s, %s, %s' % (vr(m + 4, 2), vr(m + 4, 2), vr(A + 8 + j, 2)))))
        each(lambda A, m: I('v_pk_add_f32 %s, %s, %s' % (vr(m + 2, 2), vr(m + 2, 2), vr(m + 4, 2))))
        each(lambda A, m: I('v_add_f32 v%d, v%d, v%d' % (m, m + 2, m + 3)))
        each(lambda A, m: I('v_mov_b32 v%d, v%d' % (m + 1, m)))
        each(lambda A, m: I('v_permlane32_swap_b32 v%d, v%d' % (m, m + 1)))
        each(lambda A, m: I('v_add_f32 v%d, v%d, v%d' % (m, m, m + 1)))
        each(lambda A, m: I('v_rcp_f32 v%d, v%d' % (m, m)))
        for j in range(0, 16, 2): each(lambda A, m: I('v_pk_mul_f32 %s, %s, %s op_sel_hi:[1,0]' % (vr(A + j, 2), vr(A + j, 2), vr(m, 2))))
        for j in range(8): each(lambda A, m: I('v_cvt_pk_bf16_f32 v%d, v%d, v%d' % (A + j, A + 2 * j, A + 2 * j + 1)))
    def phi_mfma(self, A, K8, WP):
        I = self.I
        I('v_mfma_f32_32x32x16_bf16 %s, %s, %s, 0' % (vr(A, 16), ar(WP, 4), vr(K8, 4)))
        I('v_mfma_f32_32x32x16_bf16 %s, %s, %s, %s' % (vr(A, 16), ar(WP + 4, 4), vr(K8 + 4, 4), vr(A, 16)))
    def softmax_unit(self, A, sreg=None):
        I = self.I
        EP, EN, M = 64, 80, TMP
        mx, nm, t, u = M, M + 1, M + 2, M + 4
        I('v_mov_b32 v%d, 0xff800000' % (M + 10))
        m2, n2 = M + 6, M + 7
        for (a, b, o) in ((mx, nm, 0), (m2, n2, 8)):
            I('v_max3_f32 v%d, v%d, v%d, v%d' % (a, A + o, A + o + 1, A + o + 2)); I('v_max3_f32 v%d, -v%d, -v%d, -v%d' % (b, A + o, A + o + 1, A + o + 2))
        for j in (3, 5):
            for (a, b, o) in ((mx, nm, 0), (m2, n2, 8)):
                I('v_max3_f32 v%d, v%d, v%d, v%d' % (a, a, A + o + j, A + o + j + 1)); I('v_max3_f32 v%d, v%d, -v%d, -v%d' % (b, b, A + o + j, A + o + j + 1))
        I('v_max3_f32 v%d, v%d, v%d, v%d' % (m2, m2, A + 7, A + 15)); I('v_max3_f32 v%d, v%d, -v%d, -v%d' % (n2, n2, A + 7, A + 15))
        I('v_max_f32 v%d, v%d, v%d' % (mx, mx, m2)); I('v_max_f32 v%d, v%d, v%d' % (nm, nm, n2))
        I('v_permlane32_swap_b32 v%d, v%d' % (mx, nm)); I('v_max_f32 v%d, v%d, v%d' % (t, mx, nm))
        I('v_mul_f32 v%d, -v%d, v%d' % (t, ST, t)); I('v_mov_b32 v%d, v%d' % (u, t)); I('v_permlane32_swap_b32 v%d, v%d' % (t, u))
        I('v_cndmask_b32 v%d, v%d, v%d, %s' % (t + 1, t, M + 10, sr(S_HIM, 2))); I('v_cndmask_b32 v%d, v%d, v%d, %s' % (u + 1, u, M + 10, sr(S_HIM, 2)))
        for j in range(0, 16, 2):
            sel = 'op_sel_hi:[1,0,0]' if j < 12 else 'op_sel:[0,0,1] op_sel_hi:[1,0,1]'
            I('v_pk_fma_f32 %s, %s, %s, %s %s' % (vr(EP + j, 2), vr(A + j, 2), vr(ST, 2), vr(t, 2), sel))
            I('v_pk_fma_f32 %s, %s, %s, %s %s neg_lo:[1,0,0] neg_hi:[1,0,0]' % (vr(EN + j, 2), vr(A + j, 2), vr(ST, 2), vr(u, 2), sel))
        for j in range(16): I('v_exp_f32 v%d, v%d' % (EP + j, EP + j)); I('v_exp_f32 v%d, v%d' % (EN + j, EN + j))
        sp, sn = M + 6, M + 8
        I('v_pk_add_f32 %s, %s, %s' % (vr(sp, 2), vr(EP, 2), vr(EP + 2, 2))); I('v_pk_add_f32 %s, %s, %s' % (vr(sn, 2), vr(EN, 2), vr(EN + 2, 2)))
        for j in range(4, 16, 2):
            I('v_pk_add_f32 %s, %s, %s' % (vr(sp, 2), vr(sp, 2), vr(EP + j, 2))); I('v_pk_add_f32 %s, %s, %s' % (vr(sn, 2), vr(sn, 2), vr(EN + j, 2)))
        I('v_add_f32 v%d, v%d, v%d' % (sp, sp, sp + 1)); I('v_add_f32 v%d, v%d, v%d' % (sn, sn, sn + 1))
        I('v_permlane32_swap_b32 v%d, v%d' % (sp, sn)); I('v_add_f32 v%d, v%d, v%d' % (t, sp, sn))
        if sreg is None:
            I('v_rcp_f32 v%d, v%d' % (t, t)); I('v_mov_b32 v%d, v%d' % (u, t)); I('v_permlane32_swap_b32 v%d, v%d' % (t, u))
            for j in range(0, 16, 2):
                I('v_pk_mul_f32 %s, %s, %s op_sel_hi:[1,0]' % (vr(EP + j, 2), vr(EP + j, 2), vr(t, 2)))
                I('v_pk_mul_f32 %s, %s, %s op_sel_hi:[1,0]' % (vr(EN + j, 2), vr(EN + j, 2), vr(u, 2)))
            for j in range(8):
                I('v_cvt_pk_bf16_f32 v%d, v%d, v%d' % (A + j, EP + 2 * j, EP + 2 * j + 1)); I('v_cvt_pk_bf16_f32 v%d, v%d, v%d' % (A + 8 + j, EN + 2 * j, EN + 2 * j + 1))
        else:
            I('v_mov_b32 v%d, v%d' % (u, t))
            for j in range(2): I('v_cvt_pk_bf16_f32 v%d, v%d, v%d' % (A + j, EP + 2 * j, EP + 2 * j + 1))
            I('v_permlane32_swap_b32 v%d, v%d' % (t, u)); I('v_rcp_f32 v%d, v%d' % (u, u))
            for j in range(2, 8): I('v_cvt_pk_bf16_f32 v%d, v%d, v%d' % (A + j, EP + 2 * j, EP + 2 * j + 1))
            I('v_mul_f32 v%d, v%d, v%d' % (u, u, t)); I('v_mov_b32 v%d, v%d' % (sreg, t))
            for j in range(0, 16, 2): I('v_pk_mul_f32 %s, %s, %s op_sel_hi:[1,0]' % (vr(EN + j, 2), vr(EN + j, 2), vr(u, 2)))
            for j in range(8): I('v_cvt_pk_bf16_f32 v%d, v%d, v%d' % (A + 8 + j, EN + 2 * j, EN + 2 * j + 1))

    def wphi_dma(self, n, head0_s):
        I = self.I; out = []
        I('s_mul_i32 s8, s%d, 1568' % head0_s); I('s_lshl_b32 s9, s%d, 10' % S_WAVE); I('s_add_u32 s8, s8, s9'); I('s_add_u32 s9, s9, %d' % L_WPHI)
        for i in range(n):
            I('s_add_u32 m0, s9, %d' % (8192 * i)); I('s_add_u32 s10, s8, %d' % (8192 * i))
            out.append(I('buffer_load_dwordx4 v%d, %s, s10 offen lds' % (VL16, sr(S_PHI, 4))))
        return out
    def wphi_read(self, nheads, hoff_s, WP):
        I = self.I; T = TMP + 9
        I('v_lshrrev_b32 v%d, 5, v%d' % (T, VLANE)); I('v_lshlrev_b32 v%d, 2, v%d' % (T, T)); I('v_bfe_u32 v%d, v%d, 2, 2' % (T + 1, VLANE)); I('v_add_u32 v%d, v%d, v%d' % (T, T, T + 1))
        I('v_mul_u32_u24 v%d, 56, v%d' % (T, T)); I('v_add_u32 v%d, s%d, v%d' % (T, hoff_s, T))
        I('v_bfe_u32 v%d, v%d, 4, 1' % (T + 1, VLANE)); I('v_lshlrev_b32 v%d, 2, v%d' % (T + 1, T + 1)); I('v_and_or_b32 v%d, v%d, 3, v%d' % (T + 1, VLANE, T + 1))
        I('v_min_u32 v%d, 6, v%d' % (T + 1, T + 1)); I('v_lshl_add_u32 v%d, v%d, 3, v%d' % (T, T + 1, T))
        for i in range(nheads):
            for s in range(2):
                for h in range(2):
                    I('ds_read_b64_tr_b16 %s, v%d offset:%d' % (ar(WP + 8 * i + 4 * s + 2 * h, 2), T, i * 1568 + (16 * s + 8 * h) * 56))

    def kv_common(self):
        I = self.I; g = self.g
        self.tagbase = 'k'
        self.srd(S_W, 18, 448 * 2688)
        I('s_lshl_b32 s8, s%d, 2' % S_IDX); I('s_lshr_b32 s9, 0xdb9630, s8'); I('s_and_b32 s9, s9, 15')
        I('s_lshr_b32 s10, 0x322333, s8'); I('s_and_b32 s10, s10, 15')
        I('s_mul_i32 s11, s9, 56'); I('s_and_b32 s%d, s11, -16' % S_WSO); I('s_and_b32 s11, s11, 8')
        I('s_mul_i32 s8, s10, 3'); I('s_add_u32 s8, s8, 1')
        I('v_cmp_lt_u32 vcc, 13, v7'); I('v_subrev_u32 v8, 14, v7'); I('v_cndmask_b32 v8, v7, v8, vcc'); I('v_min_u32 v8, s8, v8')
        I('v_mov_b32 v9, 896'); I('v_mov_b32 v10, 1792'); I('v_cndmask_b32 v9, v9, v10, vcc')
        I('v_mul_u32_u24 v6, 2688, v6'); I('v_add_u32 v6, v6, v9'); I('v_lshl_add_u32 v%d, v8, 4, v6' % DW)
        I('s_mov_b32 s0, s9'); I('s_mov_b32 s1, s10'); I('s_mov_b32 s%d, s11' % S_NONCE)
        dms = self.start_stream(2688)
        I('s_mul_i32 s10, s%d, 224' % S_CH); I('s_add_u32 s10, s10, s%d' % S_NONCE); I('s_add_u32 s10, s10, %d' % WPART)
        self.read_addrs(True)
        PW, HO, UA, VW, ZV = 48, 50, 51, 54, 58
        def kvx():
            I('s_mov_b32 s%d, s0' % S_H0); I('s_mov_b32 s%d, s1' % S_NH)
        def kvl():
            I('s_mov_b32 s%d, s%d' % (S_R0, S_H0))
            if ATOM:
                I('s_cmp_lg_u32 s%d, 0' % S_RB); I('s_cbranch_scc1 L_nozero')
                Z = 68
                for i in range(4): I('v_mov_b32 v%d, 0' % (Z + i))
                I('s_lshl_b32 s8, s%d, 13' % S_H0); I('s_lshl_b32 s9, s%d, 10' % S_WAVE); I('s_add_u32 s8, s8, s9'); I('s_add_u32 s8, s8, %d' % L.WS_KV)
                self.U('buffer_store_dwordx4 %s, v%d, %s, s8 offen sc1' % (vr(Z, 4), VL16, sr(S_WS, 4)))
                I('s_add_u32 s8, s8, 8192'); self.U('buffer_store_dwordx4 %s, v%d, %s, s8 offen sc1' % (vr(Z, 4), VL16, sr(S_WS, 4)))
                I('s_add_u32 s8, s8, 8192'); I('s_cmp_eq_u32 s%d, 3' % S_NH); I('s_cselect_b32 s8, s8, 0x7f000000')
                self.U('buffer_store_dwordx4 %s, v%d, %s, s8 offen sc1' % (vr(Z, 4), VL16, sr(S_WS, 4))); I('s_nop 1')
                self.g.label('L_nozero')
            for gp in post4(): g.extend(gp)
        kv_pre = lambda: self.pre_loop(True, 8, kvx, kvl)
        rot = lambda i: [((i + cc) % 3, AW + i, 56 * ((i + cc) % 3)) for cc in range(3)]
        tiles = [dict(t=rot(i), cs=(i < 3)) for i in range(4)]
        self.bdma, self.bread = {}, {}; self.nslot = 5
        def pre2():
            pass
        def post2():
            with g.capture() as a:
                I('s_mov_b32 s8, %d' % L_WPHI)
                self.wphi_read(3, 8, 88)
            return [a]
        def post3():
            with g.capture() as a:
                I('s_or_b32 s8, s%d, s%d' % (S_RB, S_WAVE)); I('s_cmp_lg_u32 s8, 0'); I('s_cbranch_scc1 L_nozf')
                I('s_lshl_b32 s8, s%d, 7' % S_IDX); I('s_add_u32 s8, s8, %d' % (L.WS_KVZ + 0x4000))
                self.publish(8, TMP + 8).kind = 'untracked'
                self.g.label('L_nozf')
            return [a]
        self.kvr = (PW, HO, UA, VW, ZV)
        def post4():
            A, B, C = 64, 65, 66; out = []
            with g.capture() as a:
                I('v_and_b32 v%d, 31, v%d' % (A, VLANE)); I('v_lshlrev_b32 v%d, 6, v%d' % (A, A)); I('s_lshl_b32 s8, s%d, 11' % S_RT); I('v_add_u32 v%d, s8, v%d' % (A, A))
                I('v_bfe_u32 v%d, v%d, 1, 2' % (B, VLANE)); I('v_lshl_add_u32 v%d, v%d, 4, v%d' % (A, B, A))
                I('v_lshrrev_b32 v%d, 5, v%d' % (B, VLANE))
                I('v_lshl_add_u32 v%d, v%d, 13, v%d' % (PW, B, A)); I('s_lshl_b32 s9, s%d, 5' % S_CH); I('v_xor_b32 v%d, s9, v%d' % (PW, PW)); I('v_xor_b32 v%d, 16, v%d' % (PW + 1, PW))
                I('s_add_u32 s8, s8, %d' % L_V); I('v_add_u32 v%d, s8, v%d' % (HO, VL16))
                I('v_lshl_add_u32 v%d, v%d, 3, v%d' % (VW, B, A)); I('v_add_u32 v%d, %d, v%d' % (VW, L_V, VW))
                for q in range(1, 4): I('v_xor_b32 v%d, %d, v%d' % (VW + q, 16 * q, VW))
                I('v_lshlrev_b32 v%d, 10, v%d' % (UA + 2, B)); I('v_and_b32 v%d, 31, v%d' % (A, VLANE)); I('v_lshl_add_u32 v%d, v%d, 2, v%d' % (UA + 2, A, UA + 2))
            out.append(a)
            with g.capture() as a:
                I('v_lshrrev_b32 v%d, 5, v%d' % (A, VLANE)); I('v_bfe_u32 v%d, v%d, 2, 2' % (B, VLANE)); I('v_lshl_add_u32 v%d, v%d, 2, v%d' % (A, A, B))
                I('v_bfe_u32 v%d, v%d, 4, 1' % (B, VLANE)); I('v_bfe_u32 v%d, v%d, 1, 1' % (C, VLANE)); I('v_lshl_add_u32 v%d, v%d, 1, v%d' % (B, B, C))
                I('v_lshrrev_b32 v%d, 1, v%d' % (C, A)); I('v_xor_b32 v%d, v%d, v%d' % (B, B, C)); I('v_lshlrev_b32 v%d, 6, v%d' % (A, A)); I('v_lshl_add_u32 v%d, v%d, 4, v%d' % (A, B, A))
                I('v_and_b32 v%d, 1, v%d' % (B, VLANE)); I('v_lshl_add_u32 v%d, v%d, 3, v%d' % (A, B, A))
                I('s_lshl_b32 s10, s%d, 13' % S_WAVE); I('v_add_u32 v%d, s10, v%d' % (UA + 1, A))
                I('s_lshr_b32 s9, s%d, 1' % S_WAVE); I('s_lshl_b32 s10, s9, 13'); I('s_add_u32 s10, s10, %d' % L_V); I('v_add_u32 v%d, s10, v%d' % (UA, A))
                I('s_add_u32 s10, s9, s%d' % S_H0); I('s_lshl_b32 s10, s10, 13'); I('s_and_b32 s8, s%d, 1' % S_WAVE); I('s_lshl_b32 s8, s8, 7'); I('s_add_u32 s10, s10, s8')
                I('s_add_u32 s0, s10, %d' % L.WS_KV)
                I('s_cmp_lt_u32 s9, s%d' % S_NH); I('s_cselect_b32 s%d, 1, 0' % S_NH)
                I('s_lshl_b32 s8, s%d, 4' % S_IDX); I('s_add_u32 s8, s8, s%d' % S_RB); I('s_lshl_b32 s8, s8, 7'); I('s_add_u32 s1, s8, %d' % L.WS_KVZ)
                I('s_lshl_b32 s%d, s%d, 7' % (S_H0, S_IDX)); I('s_add_u32 s%d, s%d, %d' % (S_H0, S_H0, L.WS_KVZ + 0x4000)); I('v_mov_b32 v%d, 0' % ZV)
            out.append(a)
            return out
        kv_pre()
        def wpd():
            with g.capture() as a: self.wphi_dma(1, S_R0)
            return [a]
        self.pre_post = {2: wpd}
        hk = self.bhooks({4: post2, NST: post3})
        p6 = hk['post'][6]
        def post6():
            with g.capture() as a: self.poll_issue(ZV, S_H0, ZV + 1)
            return [a] + p6()
        hk['post'][6] = post6
        tl = [(c, 4, c) for c in range(3)]
        self.gemm(tiles, 2688, dms, 'k', hk, tl)
        self.finish_stats(tl, L.LOG2E, 'k', self.slot4_setup)
        I('s_cmp_eq_u32 s%d, 1' % S_CH); I('s_cbranch_scc1 L_kv_v')

    def kv_rest(self, tg, As, wr):
        I = self.I; g = self.g; PW, HO, U, VW, ZV = self.kvr
        self.with_bg(lambda: self.half_units(As, tg == 'v'), self.b_round1(), int(os.environ.get('KBG', '14')))
        for i, A in enumerate(As):
            wr += [I('ds_write_b128 v%d, %s offset:%d' % (PW + q, vr(A + 4 * q, 4), L_PHI + 16384 * i)) for q in range(2)]
        self.poll_check('z' + tg, ZV, S_H0, ZV + 1)
        for k in range(5, 9): g.extend(self.b_read(k))
        I('s_add_u32 s10, s0, 4096')
        I('s_waitcnt lgkmcnt(0)')
        I('s_barrier')
        self.stamp('bb')
        I('s_cmp_eq_u32 s%d, 0' % S_NH); I('s_cbranch_scc1 L_nounit%s' % tg)
        if 'uprio' in EXP and tg == 'v': I('s_setprio 3')
        def rd(s):
            b = 64 + 8 * (s % 4)
            for h in range(2):
                I('ds_read_b64_tr_b16 %s, v%d offset:%d' % (vr(b + 2 * h, 2), U, (16 * s + 8 * h) * 64))
                I('ds_read_b64_tr_b16 %s, v%d offset:%d' % (vr(b + 4 + 2 * h, 2), U + 1, (16 * s + 8 * h) * 64))
        D = ACC
        for s in range(3): rd(s)
        for s in range(8):
            if s + 3 < 8: rd(s + 3)
            b = 64 + 8 * (s % 4)
            I('v_mfma_f32_32x32x16_bf16 %s, %s, %s, %s' % (vr(D, 16), vr(b, 4), vr(b + 4, 4), vr(D, 16) if s else '0'))
        I('s_nop 7'); I('s_nop 4')
        for r in range(16):
            d = (r & 3) + 8 * (r >> 2)
            if r == 14: I('s_mov_b32 exec_hi, 0')
            self.U('buffer_atomic_add_f32 v%d, v%d, %s, s%d offen offset:%d' % (D + r, U + 2, sr(S_WS, 4), 0 if d < 16 else 10, (d % 16) * 256))
        I('s_mov_b64 exec, -1')
        self.g.label('L_nounit%s' % tg)
        I('s_waitcnt vmcnt(0)')
        I('s_barrier')
        if True:
            I('s_cmp_lg_u32 s%d, 7' % S_WAVE); I('s_cbranch_scc1 L_nokf%s' % tg)
            self.publish(1, 96).kind = 'untracked'
            self.g.label('L_nokf%s' % tg)
            self.stamp('kvdone')
        I('s_setprio 0')
        bulk = self.b_dma(4)
        for k in range(5, 9): bulk += self.b_dma(k + 5)
        bulk += self.wo_dma()
        for t in bulk[:6]: g.extend(t)
        self.p2_enter()
        pa = self.poll_issue(P2T + 1, S_FA, P2T)
        for t in bulk[6:] + self.b_tasks(4, 5): g.extend(t)
        I('s_waitcnt lgkmcnt(0)'); I('s_nop 0', needs=[pa])
        I('s_branch L_p2')

    def kv_k(self):
        I = self.I; g = self.g; PW, HO, U, VW, ZV = self.kvr
        wr = []
        for i in range(3):
            N = 80 + 8 * i
            self.pack_k(ACC + 16 * i, N)
            wr += [I('ds_write_b128 v%d, %s offset:%d' % (HO, vr(N + 4 * q, 4), 8192 * i + 1024 * q)) for q in range(2)]
        I('s_barrier', needs=wr)
        for i in range(3): self.phi_mfma(ACC + 16 * i, 80 + 8 * i, 88 + 8 * i)
        self.kv_rest('k', [ACC, ACC + 16, ACC + 32], [])

    def kv_v(self):
        I = self.I; g = self.g; PW, HO, U, VW, ZV = self.kvr
        I('v_cndmask_b32 v%d, v%d, 0, %s' % (CS, ST + 1, sr(S_HIM, 2))); I('v_cndmask_b32 v%d, 0, 1.0, %s' % (CS + 1, sr(S_HIM, 2)))
        PV = [88, 96, 112]
        def vpath(i):
            A = ACC + 16 * i
            for j in range(0, 12, 2): I('v_pk_mul_f32 %s, %s, %s op_sel:[0,1] op_sel_hi:[1,1]' % (vr(A + j, 2), vr(A + j, 2), vr(ST, 2)))
            for j in (12, 14): I('v_pk_fma_f32 %s, %s, %s, %s op_sel:[0,0,1] op_sel_hi:[1,0,1]' % (vr(A + j, 2), vr(A + j, 2), vr(CS, 2), vr(CS, 2)))
            for j in range(8): I('v_cvt_pk_bf16_f32 v%d, v%d, v%d' % (PV[i] + j, A + 2 * j, A + 2 * j + 1))
        vpath(0); vpath(1)
        I('s_barrier')
        rd = [I('ds_read_b128 %s, v%d offset:%d' % (vr(64 + 8 * i + 4 * q, 4), HO, 8192 * i + 1024 * q)) for i in range(3) for q in range(2)]
        vpath(2)
        wr = []
        for i in range(3):
            self.phi_mfma(ACC + 16 * i, 64 + 8 * i, 88 + 8 * i)
            wr += [I('ds_write_b64 v%d, %s offset:%d' % (VW + q, vr(PV[i] + 2 * q, 2), 8192 * i), needs=rd[2 * i:2 * i + 2]) for q in range(4)]
        self.kv_rest('v', [ACC, ACC + 16, ACC + 32], wr)
    _uid = 0
    def uid(self):
        K._uid += 1
        return str(K._uid)

    def q(self):
        I = self.I; g = self.g
        self.tagbase = 'q'
        self.srd(S_W, 18, 448 * 2688)
        I('v_mul_u32_u24 v6, 2688, v6'); I('v_lshl_add_u32 v%d, v7, 4, v6' % DW)
        I('s_mul_i32 s%d, s%d, 448' % (S_WSO, S_IDX))
        dms = self.start_stream(2688)
        I('s_mul_i32 s10, s%d, 224' % S_CH); I('s_add_u32 s10, s10, %d' % WPART)
        self.read_addrs(True)
        self.pre_loop(False, 14, lambda: I('s_lshl_b32 s%d, s%d, 3' % (S_H0, S_IDX)))
        def wpd():
            with g.capture() as a: self.wphi_dma(2, S_H0)
            return [a]
        self.pre_post = {2: wpd}
        tiles = [dict(t=[((i + cc) % 4, AW + i, 56 * ((i + cc) % 4)) for cc in range(4)], cs=True) for i in range(4)]
        def post2():
            with g.capture() as a:
                I('s_mul_i32 s8, s%d, %d' % (S_CH, 4 * 1568)); I('s_add_u32 s8, s8, %d' % L_WPHI)
                self.wphi_read(4, 8, 0)
            return [a]
        tl = [(c, 4, c) for c in range(4)]
        self.gemm(tiles, 2688, dms, 'q', dict(post={4: post2}), tl)
        self.finish_stats(tl, L.LOG2E, 'q')
        for i in range(4):
            self.pack_k(ACC + 16 * i, 80 + 8 * (i & 1)); self.phi_mfma(ACC + 16 * i, 80 + 8 * (i & 1), 8 * i)
        for i in range(4): self.softmax_unit(ACC + 16 * i, sreg=124 + i)
        self.stamp('soft')
        if 'noq' in EXP: return
        T = TMP
        if 'lat' in EXP:
            I('s_lshl_b32 s8, s2, 3'); I('s_add_u32 s8, s8, s%d' % S_WAVE); I('s_lshl_b32 s8, s8, 9'); I('s_add_u32 s8, s8, %d' % (15 << 20)); I('v_mov_b32 v%d, 0' % T)
            for rep_ in range(2):
                I('buffer_load_dword v%d, v%d, %s, s8 offen offset:%d sc1' % (T + 1, T, sr(S_WS, 4), 256 * rep_)); I('s_waitcnt vmcnt(0)'); self.stamp('miss')
                I('buffer_load_dword v%d, v%d, %s, s8 offen offset:%d sc1' % (T + 1, T, sr(S_WS, 4), 256 * rep_)); I('s_waitcnt vmcnt(0)'); self.stamp('l2hit')
                I('buffer_store_dword v%d, v%d, %s, s8 offen offset:%d sc1' % (T + 1, T, sr(S_WS, 4), 128 + 256 * rep_)); I('s_waitcnt vmcnt(0)'); self.stamp('st')
            self.nst = 15
        if 'qpf' in EXP:
            I('s_and_b32 s8, s2, 7'); I('s_lshl_b32 s8, s8, 2'); I('s_bfe_u32 s9, s2, 0x20003'); I('s_add_u32 s8, s8, s9')
            I('s_lshl_b32 s9, s8, 12'); I('s_lshl_b32 s10, s%d, 8' % S_WAVE); I('s_add_u32 s9, s9, s10'); I('s_add_u32 s11, s9, %d' % L.WS_FLAG)
            I('v_and_b32 v%d, 1, v%d' % (T, VLANE)); I('v_lshlrev_b32 v%d, 11, v%d' % (T, T)); I('v_and_b32 v%d, 2, v%d' % (T + 1, VLANE)); I('v_lshl_add_u32 v%d, v%d, 6, v%d' % (T, T + 1, T))
            I('s_lshl_b32 s8, s8, 8'); I('s_mul_i32 s9, s%d, 14' % S_WAVE); I('s_add_u32 s8, s8, s9'); I('s_lshl_b32 s10, s8, 10'); I('s_add_u32 s9, s10, %d' % (128 * 1024))
            I('v_lshlrev_b32 v%d, 7, v%d' % (T + 2, VLANE)); I('v_add_u32 v%d, 8192, v%d' % (T + 3, T + 2))
            self.g.label('L_qpf')
            self.U('buffer_load_dword v%d, v%d, %s, s11 offen sc1' % (T + 1, T, sr(S_WS, 4))); self.U('s_waitcnt vmcnt(0)')
            I('v_cmp_ne_u32 vcc, s%d, v%d' % (S_NONCE, T + 1)); I('s_nop 1'); I('s_cbranch_vccz L_qpfd')
            self.spin_tail('L_qpf', QSL)
            self.g.label('L_qpfd')
            for so in (10, 9): I('buffer_load_dword a100, v%d, %s, s%d offen' % (T + 2, sr(S_WS, 4), so)).dst = set()
            I('s_mov_b32 exec_hi, 0xffff')
            for so in (10, 9): I('buffer_load_dword a100, v%d, %s, s%d offen' % (T + 3, sr(S_WS, 4), so)).dst = set()
            I('s_mov_b64 exec, -1')
        if ATOM:
            T = TMP
            I('v_lshrrev_b32 v%d, 4, v%d' % (T, VLANE)); I('s_lshl_b32 s8, s%d, 1' % S_IDX); I('v_add_u32 v%d, s8, v%d' % (T, T))
            I('s_mul_i32 s8, s%d, 3' % S_IDX); I('s_add_u32 s8, s8, 2'); I('v_min_u32 v%d, s8, v%d' % (T, T))
            I('v_and_b32 v%d, 15, v%d' % (T + 1, VLANE)); I('v_lshl_add_u32 v%d, v%d, 4, v%d' % (T, T, T + 1)); I('v_lshlrev_b32 v%d, 7, v%d' % (T, T))
            I('s_mov_b32 s11, %d' % L.WS_KVZ)
            I('v_lshrrev_b32 v%d, 3, v%d' % (T + 2, VLANE)); I('v_and_b32 v%d, 7, v%d' % (T + 3, VLANE)); I('v_lshlrev_b32 v%d, 4, v%d' % (T + 4, T + 3)); I('v_lshl_add_u32 v%d, v%d, 8, v%d' % (T + 4, T + 2, T + 4))
            I('s_add_u32 s8, s%d, s%d' % (S_H0, S_WAVE)); I('s_lshl_b32 s8, s8, 13'); I('s_add_u32 s0, s8, %d' % L.WS_KV); I('s_add_u32 s1, s0, 4096')
            I('v_lshrrev_b32 v%d, 1, v%d' % (T + 5, T + 3)); I('v_lshlrev_b32 v%d, 10, v%d' % (T + 5, T + 5)); I('v_and_b32 v%d, 1, v%d' % (T + 3, T + 3)); I('v_lshl_add_u32 v%d, v%d, 3, v%d' % (T + 5, T + 3, T + 5))
            I('s_lshl_b32 s8, s%d, 12' % S_WAVE); I('v_add_u32 v%d, s8, v%d' % (T + 5, T + 5))
            WA4 = 112
            for i in range(4):
                a, b, c_ = T + 6, T + 7, T + 3
                I('v_add_u32 v%d, %d, v%d' % (a, 8 * i, T + 2))
                I('v_cmp_lt_u32 vcc, 13, v%d' % a); I('v_subrev_u32 v%d, 14, v%d' % (b, a)); I('v_cndmask_b32 v%d, v%d, v%d, vcc' % (b, a, b)); I('v_cndmask_b32 v%d, 0, 4, vcc' % c_)
                if i == 3:
                    I('v_cmp_lt_u32 vcc, 27, v%d' % a); I('v_and_b32 v%d, 1, v%d' % (T + 8, a)); I('v_lshlrev_b32 v%d, 2, v%d' % (T + 8, T + 8)); I('v_cndmask_b32 v%d, v%d, v%d, vcc' % (c_, c_, T + 8))
                    I('v_bfe_u32 v%d, v%d, 1, 1' % (T + 8, a)); I('v_add_u32 v%d, 14, v%d' % (T + 8, T + 8)); I('v_cndmask_b32 v%d, v%d, v%d, vcc' % (b, b, T + 8))
                I('v_and_or_b32 v%d, v%d, 3, v%d' % (c_, b, c_)); I('v_lshrrev_b32 v%d, 2, v%d' % (b, b)); I('v_lshl_add_u32 v%d, v%d, 3, v%d' % (c_, b, c_))
                I('v_lshl_add_u32 v%d, v%d, 4, v%d' % (WA4 + i, c_, T + 5))
            I('s_lshl_b32 s8, s%d, 14' % S_CH); I('v_add_u32 v%d, s8, v%d' % (T + 2, VL16))
            self.q_scalars()
            I('s_cmp_lg_u32 s%d, 0' % S_WAVE); I('s_cbranch_scc1 L_polldkv')
            self.g.label('L_pollkv')
            self.U('buffer_load_dword v64, v%d, %s, s11 offen sc1' % (T, sr(S_WS, 4))); self.U('s_waitcnt vmcnt(0)')
            I('v_cmp_ne_u32 vcc, s%d, v64' % S_NONCE); I('s_nop 1'); I('s_cbranch_vccz L_polldkv')
            self.spin_tail('L_pollkv', QSL)
            self.g.label('L_polldkv')
            I('s_barrier')
            self.stamp('kvok')
            for i in range(8):
                I('buffer_load_dwordx4 %s, v%d, %s, s%d offen offset:%d sc1' % (vr(64 + 4 * i, 4), T + 4, sr(S_WS, 4), (i >> 1) & 1, (i & 1) * 2048 + (i >> 2) * 128))
            wr = []
            for i in range(8):
                I('v_cvt_pk_bf16_f32 v%d, v%d, v%d' % (64 + 4 * i, 64 + 4 * i, 65 + 4 * i)); I('v_cvt_pk_bf16_f32 v%d, v%d, v%d' % (65 + 4 * i, 66 + 4 * i, 67 + 4 * i))
                wr.append(I('ds_write_b64 v%d, %s offset:%d' % (WA4 + (i & 3), vr(64 + 4 * i, 2), 512 * (i >> 2))))
            self.stamp('kvld')
            qbar = lambda: (I('s_barrier', needs=wr), [I('ds_read_b128 %s, v%d offset:%d' % (ar(32 + 16 * i + 4 * s, 4), T + 2, 4096 * i + 1024 * s)) for i in range(4) for s in range(4)])
        else:
            I('v_bfe_u32 v%d, v%d, 3, 2' % (T + 2, VLANE)); I('v_lshlrev_b32 v%d, 2, v%d' % (T + 2, T + 2)); I('v_and_or_b32 v%d, v%d, 3, v%d' % (T + 2, VLANE, T + 2))
            I('v_bfe_u32 v%d, v%d, 2, 1' % (T + 3, VLANE)); I('v_mul_u32_u24 v%d, 14, v%d' % (T + 3, T + 3)); I('v_add_u32 v%d, v%d, v%d' % (T + 3, T + 3, T + 2))
            I('v_cmp_gt_u32 vcc, 14, v%d' % (T + 2)); I('v_cndmask_b32 v%d, 28, v%d, vcc' % (T + 3, T + 3))
            I('v_and_b32 v%d, 32, v%d' % (T + 2, VLANE)); I('v_lshlrev_b32 v%d, 6, v%d' % (T + 2, T + 2)); I('v_lshl_add_u32 v%d, v%d, 4, v%d' % (T + 2, T + 3, T + 2))
            I('s_lshl_b32 s8, s%d, 14' % S_CH); I('v_add_u32 v%d, s8, v%d' % (T + 2, T + 2))
            I('v_and_b32 v%d, 15, v%d' % (T, VLANE)); I('v_lshlrev_b32 v%d, 7, v%d' % (T, T))
            I('v_and_b32 v%d, 7, v%d' % (T + 3, VLANE)); I('v_lshlrev_b32 v%d, 7, v%d' % (T + 3, T + 3))
            I('s_cmp_lg_u32 s%d, 0' % S_CH); I('s_cbranch_scc1 L_noreduce')
            I('s_lshl_b32 s8, s%d, 1' % S_RB); I('s_add_u32 s8, s8, s%d' % S_IDX); I('s_lshl_b32 s8, s8, 2'); I('s_add_u32 s11, s8, s%d' % S_RT)
            I('s_lshl_b32 s0, s11, 14'); I('s_add_u32 s0, s0, %d' % L.WS_SL)
            I('s_mov_b32 s8, 0x22111000'); I('s_mov_b32 s9, 0x55544332'); I('s_lshl_b32 s10, s%d, 2' % S_RB); I('s_lshr_b64 s[8:9], s[8:9], s10'); I('s_and_b32 s8, s8, 15')
            I('s_lshl_b32 s8, s8, 11'); I('s_add_u32 s1, s8, %d' % L.WS_KVZ)
            self.g.label('L_red_poll')
            self.U('buffer_load_dword v%d, v%d, %s, s1 offen sc1' % (T + 1, T, sr(S_WS, 4))); self.U('s_waitcnt vmcnt(0)')
            I('v_cmp_ne_u32 vcc, s%d, v%d' % (S_NONCE, T + 1)); I('s_nop 1'); I('s_cbranch_vccz L_red_load')
            self.spin_tail('L_red_poll', QSL)
            self.g.label('L_red_load')
            R = 64
            def src(i): return (64 + 4 * i) if i < 15 else T + 4
            for i in range(16):
                if i % 4 == 0: I('s_add_u32 s8, s0, %d' % (1024 * i))
                I('buffer_load_dwordx4 %s, v%d, %s, s8 offen offset:%d' % (vr(src(i), 4), VL16, sr(S_WS, 4), 1024 * (i % 4)))
            I('s_lshl_b32 s8, s11, 9'); I('s_add_u32 s8, s8, %d' % L.WS_KF); I('s_lshl_b32 s9, s11, 7'); I('s_add_u32 s9, s9, %d' % L.WS_KVD)
            for i in range(2, 16):
                for j in (0, 2): I('v_pk_add_f32 %s, %s, %s' % (vr(R + 4 * (i & 1) + j, 2), vr(R + 4 * (i & 1) + j, 2), vr(src(i) + j, 2)))
            for j in (0, 2): I('v_pk_add_f32 %s, %s, %s' % (vr(R + j, 2), vr(R + j, 2), vr(R + 4 + j, 2)))
            I('v_cvt_pk_bf16_f32 v68, v64, v65'); I('v_cvt_pk_bf16_f32 v69, v66, v67')
            I('v_mov_b32 v72, v68'); I('v_mov_b32 v73, v69')
            I('v_permlane32_swap_b32 v72, v70'); I('v_permlane32_swap_b32 v73, v71')
            I('s_mov_b32 exec_hi, 0')
            I('buffer_store_dwordx4 v[68:71], v%d, %s, s8 offen sc1' % (VL16, sr(S_WS, 4)))
            I('s_mov_b64 exec, -1')
            self.stamp('red')
            I('s_waitcnt vmcnt(0)')
            self.publish(9, 72).kind = 'untracked'
            self.g.label('L_noreduce')
            I('s_add_u32 s10, s%d, s%d' % (S_H0, S_WAVE)); I('s_lshl_b32 s11, s10, 10'); I('s_add_u32 s11, s11, %d' % L.WS_KVD)
            I('s_lshl_b32 s10, s10, 12'); I('s_add_u32 s10, s10, %d' % L.WS_KF); I('s_lshl_b32 m0, s%d, 12' % S_WAVE)
            self.g.label('L_pollkv')
            self.U('buffer_load_dword v64, v%d, %s, s11 offen sc1' % (T + 3, sr(S_WS, 4))); self.U('s_waitcnt vmcnt(0)')
            I('v_cmp_ne_u32 vcc, s%d, v64' % S_NONCE); I('s_nop 1'); I('s_cbranch_vccz L_polldkv')
            self.spin_tail('L_pollkv', QSL)
            self.g.label('L_polldkv')
            self.nst = 7
            self.stamp('kvok')
            dm = [I('buffer_load_dwordx4 v%d, %s, s10 offen offset:%d lds' % (VL16, sr(S_WS, 4), 1024 * i)) for i in range(4)]
            qbar = lambda: (I('s_barrier', needs=dm), [I('ds_read_b128 %s, v%d offset:%d' % (ar(32 + 16 * i + 4 * sf, 4), T + 2, 4096 * i + 512 * sf)) for i in range(4) for sf in range(4)])
        qbar()
        N = [64, 80, ACC, ACC + 16]; O = 96
        def ost(f): I('buffer_store_dwordx4 %s, v%d, %s, s%d offen offset:%d sc1' % (vr(O + 4 * f, 4), VL16, sr(S_WS, 4), 20 if f < 4 else 21, (f % 4) * 1024))
        def mm(i):
            for s in range(4):
                I('v_mfma_f32_32x32x16_bf16 %s, %s, %s, %s' % (vr(N[i], 16), ar(32 + 16 * i + 4 * s, 4), vr(ACC + 16 * i + 4 * s, 4), vr(N[i], 16) if s else '0'))
        done = 0
        mm(0); mm(1)
        for i in range(4):
            with g.capture() as fin: self.o_fin(N[i], O + 7 * i, 124 + i)
            if i + 2 < 4:
                with g.capture() as m4: mm(i + 2)
                k = len(fin) // 4
                for j in range(4): g.extend([m4[j]] + fin[j * k:(j + 1) * k if j < 3 else None])
            else: g.extend(fin)
            while 4 * (done + 1) <= 7 * (i + 1): ost(done); done += 1
        self.stamp('ocomp')
        I('s_waitcnt vmcnt(0)')
        self.publish(22, TMP)
        self.stamp('opub')
        I('s_waitcnt vmcnt(0)')
    def q_scalars(self):
        I = self.I
        I('s_lshl_b32 s8, s%d, 2' % S_RB); I('s_add_u32 s10, s8, s%d' % S_RT); I('s_and_b32 s9, s10, 1'); I('s_mul_i32 s9, s9, 28'); I('s_lshr_b32 s8, s10, 1'); I('s_lshl_b32 s8, s8, 6'); I('s_add_u32 s8, s8, s9'); I('s_mul_i32 s9, s%d, 14' % S_IDX); I('s_add_u32 s8, s8, s9')
        I('s_mul_i32 s9, s%d, 7' % S_CH); I('s_add_u32 s8, s8, s9'); I('s_lshl_b32 s8, s8, 10'); I('s_add_u32 s20, s8, %d' % L.WS_O); I('s_add_u32 s21, s20, 4096')
        I('s_lshl_b32 s8, s10, 1'); I('s_add_u32 s8, s8, s%d' % S_IDX)
        I('s_lshl_b32 s8, s8, 1'); I('s_add_u32 s8, s8, s%d' % S_CH); I('s_lshl_b32 s8, s8, 7'); I('s_add_u32 s22, s8, %d' % L.WS_FO)
    def o_fin(self, N, O, sreg):
        I = self.I; t = TMP + 8
        I('v_fmac_f32 v%d, %s, v%d' % (N + 14, f32(1e-6), sreg)); I('v_rcp_f32 v%d, v%d' % (t, N + 14))
        for j in range(14): I('v_mul_f32 v%d, v%d, v%d' % (N + j, N + j, t))
        for j in range(7): I('v_cvt_pk_bf16_f32 v%d, v%d, v%d' % (O + j, N + 2 * j, N + 2 * j + 1))

    def p2_pre(self):
        I = self.I; g = self.g; A, B, C = 64, 65, 66; out = []
        def st(i, r): I('v_accvgpr_write_b32 a%d, v%d' % (STASH + i, r))
        with g.capture() as a:
            I('s_lshl_b32 s8, s%d, 1' % S_RG)
            I('s_lshl_b32 s%d, s8, 7' % S_A0); I('s_mul_i32 s9, s%d, 14' % S_WAVE); I('s_add_u32 s%d, s%d, s9' % (S_A0, S_A0)); I('s_lshl_b32 s%d, s%d, 10' % (S_A0, S_A0))
            I('s_add_u32 s%d, s%d, %d' % (S_A1, S_A0, 128 * 1024))
            I('s_lshl_b32 s%d, s8, 5' % S_OSO); I('s_mul_i32 s9, s%d, 7' % S_WAVE); I('s_add_u32 s%d, s%d, s9' % (S_OSO, S_OSO)); I('s_lshl_b32 s%d, s%d, 10' % (S_OSO, S_OSO))
            I('s_add_u32 s%d, s%d, %d' % (S_OSO, S_OSO, L.WS_O))
            I('v_lshrrev_b32 v%d, 3, v%d' % (A, VLANE)); I('v_mul_u32_u24 v%d, 896, v%d' % (A, A)); I('v_and_b32 v%d, 7, v%d' % (B, VLANE)); I('v_lshl_add_u32 v%d, v%d, 4, v%d' % (A, B, A))
            I('v_lshlrev_b32 v%d, 7, v%d' % (B, B)); st(1, A); st(2, B)
        out.append(a)
        with g.capture() as a:
            I('s_lshl_b32 s9, s%d, 3' % S_RG); I('s_add_u32 s9, s9, s%d' % S_WAVE); I('s_mul_i32 s9, s9, %d' % (8 * 896)); I('s_lshl_b32 s8, s%d, 7' % S_CG); I('s_add_u32 s%d, s9, s8' % S_XO)
            I('s_lshl_b32 s8, s%d, 12' % S_RG); I('s_lshl_b32 s9, s%d, 8' % S_WAVE); I('s_add_u32 s9, s9, s8'); I('s_add_u32 s%d, s9, %d' % (S_FA, L.WS_FLAG))
            I('s_lshl_b32 s8, s%d, 10' % S_RG); I('s_add_u32 s%d, s8, %d' % (S_FO, L.WS_FO))
            I('v_and_b32 v%d, 1, v%d' % (A, VLANE)); I('v_lshlrev_b32 v%d, 11, v%d' % (A, A)); I('v_and_b32 v%d, 2, v%d' % (B, VLANE)); I('v_lshl_add_u32 v%d, v%d, 6, v%d' % (A, B, A)); st(0, A)
        out.append(a)
        with g.capture() as a:
            I('v_lshrrev_b32 v%d, 5, v%d' % (C, VLANE)); I('v_bfe_u32 v%d, v%d, 3, 1' % (A, VLANE)); I('v_xor_b32 v%d, v%d, v%d' % (A, A, C))
            I('v_mul_u32_u24 v%d, 14, v%d' % (B, C)); I('v_bfe_u32 v%d, v%d, 2, 2' % (C, VLANE)); I('v_add_u32 v%d, v%d, v%d' % (B, B, C))
            I('v_lshlrev_b32 v%d, 7, v%d' % (B, B)); I('v_lshl_add_u32 v%d, v%d, 6, v%d' % (A, A, B))
            I('v_and_b32 v%d, 3, v%d' % (B, VLANE)); I('v_lshl_add_u32 v%d, v%d, 3, v%d' % (A, B, A))
            I('v_and_b32 v%d, 16, v%d' % (B, VLANE)); I('v_lshl_add_u32 v%d, v%d, 1, v%d' % (A, B, A))
            I('s_and_b32 s9, s%d, 1' % S_WAVE); I('s_lshl_b32 s9, s9, 6'); I('v_xor_b32 v%d, s9, v%d' % (A, A))
            I('s_mul_i32 s9, s%d, %d' % (S_CH, 224 * 128)); I('v_add_u32 v%d, s9, v%d' % (A, A))
            I('v_xor_b32 v%d, 64, v%d' % (B, A)); st(3, A); st(4, B)
            I('v_add_u32 v%d, %d, v%d' % (B, 14 * 128, B)); I('v_and_b32 v%d, 8, v%d' % (C, VLANE)); I('v_cmp_eq_u32 vcc, 0, v%d' % C); I('v_cndmask_b32 v%d, v%d, v%d, vcc' % (B, B, A)); st(5, B)
        out.append(a)
        return out
    def p2_enter(self):
        T = P2T
        for i, r in enumerate((T + 1, T + 2, T + 3, T + 8, T + 9, T + 10)): self.I('v_accvgpr_read_b32 v%d, a%d' % (r, STASH + i))

    def phase2(self):
        I = self.I; g = self.g; T = P2T
        XO, XR, WA = T + 2, T + 4, T + 8
        self.nst = 7
        if 'start' in EXP or 'stg' in EXP: self.nst = 15
        self.poll_check('A', T + 1, S_FA, T)
        self.stamp('hok')
        RING = 64; NR = 15
        self.bdma = {k: [] for k in range(14)}
        def load(n):
            k, a = divmod(n, 2); r = RING + 4 * (n % NR); base = S_A1 if a else S_A0
            I('buffer_load_dwordx4 %s, v%d, %s, s%d offen offset:%d' % (vr(r, 4), VL16, sr(S_WS, 4), base, (k % 4) * 1024))
            if k % 4 == 3: I('s_add_u32 s%d, s%d, 4096' % (base, base))
        def wo_read(kk, dst):
            G, f = divmod(kk, 7)
            for pp in range(2):
                p = 4 * f + 2 * pp; hl = 4 * G + p // 7; i = p % 7
                areg = WA + 2 if i == 6 else WA + (i & 1)
                I('ds_read_b64_tr_b16 %s, v%d offset:%d' % (ar(dst + 2 * pp, 2), areg, L_WO + (28 * hl + 2 * i) * 128))
        EWB, SWB, ORD, GRD, SRD_ = 124, 125, 126, 127, 139
        def tail_addr():
            A, B = 142, 143
            I('v_and_b32 v%d, 31, v%d' % (A, VLANE)); I('v_lshlrev_b32 v%d, 7, v%d' % (A, A)); I('v_and_b32 v%d, 7, v%d' % (B, VLANE)); I('v_lshl_add_u32 v%d, v%d, 4, v%d' % (A, B, A))
            I('v_lshrrev_b32 v%d, 5, v%d' % (B, VLANE)); I('v_lshl_add_u32 v%d, v%d, 3, v%d' % (A, B, A))
            I('s_lshl_b32 s8, s%d, 13' % S_WAVE); I('s_add_u32 s8, s8, %d' % L_XG); I('v_add_u32 v%d, s8, v%d' % (EWB, A))
            I('s_lshl_b32 s8, s%d, 13' % S_CH); I('s_bfe_u32 s9, s%d, 0x10001' % S_WAVE); I('s_lshl_b32 s10, s9, 12'); I('s_add_u32 s8, s8, s10'); I('s_add_u32 s8, s8, %d' % L_XS)
            I('v_add_u32 v%d, s8, v%d' % (SWB, A)); I('s_and_b32 s8, s%d, 1' % S_WAVE); I('s_lshl_b32 s8, s8, 6'); I('v_xor_b32 v%d, s8, v%d' % (SWB, SWB))
            I('s_mul_i32 s9, s9, 28'); I('s_mul_i32 s8, s%d, 14' % S_CH); I('s_add_u32 s9, s9, s8'); I('s_lshl_b32 s9, s9, 10')
            I('v_add_u32 v%d, s9, v%d' % (ORD, VL16))
            I('v_lshrrev_b32 v%d, 3, v%d' % (A, VLANE)); I('v_and_b32 v%d, 7, v%d' % (B, VLANE)); I('v_xor_b32 v%d, v%d, v%d' % (B, B, A))
            I('v_lshlrev_b32 v%d, 7, v%d' % (A, A)); I('v_lshl_add_u32 v%d, v%d, 4, v%d' % (A, B, A)); I('s_lshl_b32 s8, s%d, 10' % S_WAVE); I('s_add_u32 s8, s8, %d' % L_XG)
            I('v_add_u32 v%d, s8, v%d' % (GRD, A)); I('v_add_u32 v%d, %d, v%d' % (SRD_, L_XS - L_XG, GRD))
            I('s_mul_i32 s23, s%d, 7168' % S_WAVE); I('v_mov_b32 v142, %d' % L_CNT)
            I('s_mov_b32 s10, 0x00003f80'); I('s_mov_b32 s11, 0x3f800000'); I('s_mov_b32 s26, %s' % f32(-1.0 / L.LOG2E)); I('s_mov_b32 s27, s26')
        for n in range(NR): load(n)
        nl = NR
        for ki in range(14):
            for a in range(2):
                n = 2 * ki + a; r = RING + 4 * (n % NR)
                for b in range(2):
                    I('v_mfma_f32_32x32x16_bf16 %s, %s, %s, %s' % (vr(16 * (2 * a + b), 16), ar(8 * ki + 4 * b, 4), vr(r, 4), vr(16 * (2 * a + b), 16) if ki else '0'))
                if nl < 28:
                    load(nl); nl += 1
                    if nl == 28: I('buffer_load_dwordx4 %s, v%d, %s, s100 offen' % (vr(XR, 4), XO, sr(S_X, 4)))
            if ki == 0:
                for k in range(9, 14): g.extend(self.b_read(k))
            if ki == 2: tail_addr()
            if ki == 12:
                I('s_cmp_lg_u32 s%d, 0' % S_WAVE); I('s_cbranch_scc1 L_noe1')
                self.U('buffer_load_dword v%d, v%d, %s, s99 offen sc1' % (T, T + 3, sr(S_WS, 4)))
                self.g.label('L_noe1')
            if ki == 6: I('s_waitcnt lgkmcnt(0)'); I('s_barrier')
            if ki >= 7:
                for kk in (2 * (ki - 7), 2 * (ki - 7) + 1): wo_read(kk, 4 * kk)
        self.stamp('gdone')
        EW = 64
        wr = []
        for b in range(2):
            for Q in range(4):
                I('v_xor_b32 v%d, %d, v%d' % (EW + 4 * b + Q, 16 * (4 * b + Q), EWB))
                for a in range(2):
                    t = 16 * (2 * a + b)
                    for j in (2 * Q, 2 * Q + 1): I('v_cvt_pk_bf16_f32 v%d, v%d, v%d' % (t + j, t + 2 * j, t + 2 * j + 1))
                    wr.append(I('ds_write_b64 v%d, %s offset:%d' % (EW + 4 * b + Q, vr(t + 2 * Q, 2), 4096 * a)))
        I('s_cmp_lg_u32 s%d, 0' % S_WAVE); I('s_cbranch_scc1 L_noe2')
        self.U('s_waitcnt vmcnt(0)')
        I('v_cmp_ne_u32 vcc, s%d, v%d' % (S_NONCE, T)); I('s_nop 1'); I('s_cmp_eq_u64 vcc, 0'); I('s_cselect_b32 s8, 1, 0'); I('v_mov_b32 v143, s8')
        self.U('ds_write_b32 v142, v143')
        self.g.label('L_noe2')
        I('s_waitcnt lgkmcnt(0)')
        I('s_barrier')
        self.stamp('e2')
        I('ds_read_b32 v143, v142')
        for src in range(8): I('ds_read_b128 %s, v%d offset:%d' % (vr(8 + 4 * src, 4), GRD, 8192 * src))
        for j in range(4): I('v_lshlrev_b32 v%d, 16, v%d' % (76 + 2 * j, XR + j)); I('v_and_b32 v%d, s%d, v%d' % (77 + 2 * j, S_MASK, XR + j))
        I('s_add_u32 s24, s%d, 4096' % S_OSO)
        I('v_readfirstlane_b32 s9, v143')
        def odma():
            for i in range(7):
                if i == 0 or i == 4: I('s_add_u32 m0, s23, %d' % (L_O + 1024 * i)); I('s_nop 0')
                self.U('buffer_load_dwordx4 v%d, %s, s%d offen offset:%d lds' % (VL16, sr(S_WS, 4), S_OSO if i < 4 else 24, 1024 * (i % 4)))
        I('s_cmp_eq_u32 s9, 0'); I('s_cbranch_scc1 L_olate1')
        odma()
        self.g.label('L_olate1')
        for src in range(8):
            for j in range(4):
                I('v_dot2_f32_bf16 v%d, v%d, s10, %s' % (2 * j, 8 + 4 * src + j, 'v%d' % (2 * j) if src else '0'))
                I('v_dot2_f32_bf16 v%d, v%d, s11, %s' % (2 * j + 1, 8 + 4 * src + j, 'v%d' % (2 * j + 1) if src else '0'))
        I('s_cmp_lg_u32 s9, 0'); I('s_cbranch_scc1 L_oearly')
        I('s_cmp_lg_u32 s%d, %d' % (S_WAVE, 9 if 'noq' in EXP else 0)); I('s_cbranch_scc1 L_polldO')
        self.g.label('L_pollO')
        self.U('buffer_load_dword v%d, v%d, %s, s99 offen sc1' % (WA, T + 3, sr(S_WS, 4))); self.U('s_waitcnt vmcnt(0)')
        I('v_cmp_ne_u32 vcc, s%d, v%d' % (S_NONCE, WA)); I('s_nop 1'); I('s_cbranch_vccz L_polldO')
        self.spin_tail('L_pollO', 3)
        self.g.label('L_polldO')
        I('s_barrier')
        odma()
        self.g.label('L_oearly')
        self.stamp('ook')
        for j in range(8): I('v_exp_f32 v%d, v%d' % (8 + j, j))
        SW = 72
        for q in range(4): I('v_xor_b32 v%d, %d, v%d' % (SW + q, 16 * q, SWB))
        for j in range(0, 8, 2): I('v_pk_add_f32 %s, %s, 1.0 op_sel_hi:[1,0]' % (vr(8 + j, 2), vr(8 + j, 2)))
        for j in range(8): I('v_rcp_f32 v%d, v%d' % (8 + j, 8 + j))
        for j in range(0, 8, 2): I('v_pk_mul_f32 %s, %s, s[26:27]' % (vr(j, 2), vr(j, 2)))
        for j in range(0, 8, 2): I('v_pk_mul_f32 %s, %s, %s' % (vr(j, 2), vr(j, 2), vr(8 + j, 2)))
        I('s_waitcnt vmcnt(0)')
        I('s_barrier')
        self.stamp('e3')
        OF = 84; SA = 48
        def ord_(kk): I('ds_read_b128 %s, v%d offset:%d' % (vr(OF + 4 * (kk % 10), 4), ORD, 1024 * kk))
        for kk in range(8): ord_(kk)
        for kk in range(14):
            I('v_mfma_f32_32x32x16_bf16 %s, %s, %s, %s' % (vr(SA, 16), ar(4 * kk, 4), vr(OF + 4 * (kk % 10), 4), vr(SA, 16) if kk else '0'))
            if kk + 8 < 14: ord_(kk + 8)
        wr = []
        for q in range(4):
            for j in (2 * q, 2 * q + 1): I('v_cvt_pk_bf16_f32 v%d, v%d, v%d' % (SA + j, SA + 2 * j, SA + 2 * j + 1))
            wr.append(I('ds_write_b64 v%d, %s' % (SW + q, vr(SA + 2 * q, 2))))
        I('s_barrier', needs=wr)
        for h in range(2): I('ds_read_b128 %s, v%d offset:%d' % (vr(16 + 4 * h, 4), SRD_, 8192 * h))
        for h in range(2):
            for j in range(4):
                I('v_dot2_f32_bf16 v%d, v%d, s10, %s' % (24 + 2 * j, 16 + 4 * h + j, 'v%d' % (24 + 2 * j) if h else '0'))
                I('v_dot2_f32_bf16 v%d, v%d, s11, %s' % (25 + 2 * j, 16 + 4 * h + j, 'v%d' % (25 + 2 * j) if h else '0'))
        for j in range(0, 8, 2): I('v_pk_fma_f32 %s, %s, %s, %s' % (vr(j, 2), vr(j, 2), vr(24 + j, 2), vr(76 + j, 2)))
        for j in range(4): I('v_cvt_pk_bf16_f32 v%d, v%d, v%d' % (40 + j, 2 * j, 2 * j + 1))
        I('buffer_store_dwordx4 v[40:43], v%d, %s, s100 offen%s' % (XO, sr(S_OUT, 4), os.environ.get('OUTF', '')))
        self.stamp('final')

    def xfilter(self, body):
        out = []
        for x in body:
            if 'nosc1st' in EXP and x.op.startswith('buffer_store_dwordx4') and 'sc1' in x.text and 'v141' in x.text: x.text = x.text.replace(' sc1', '')
            if 'nost' in EXP and x.op.startswith('buffer_store_dwordx4') and 'v141' in x.text: x.text = 's_nop 0'
            if 'nob' in EXP and x.kind == 'dma' and 's[52:55]' in x.text: x.text = 's_nop 0'
            if 'sysp' in EXP and x.op == 'buffer_load_dword' and x.text.endswith('sc1') and 's[64:67]' in x.text: x.text = x.text.replace(' sc1', ' sc0 sc1')
            if 'nowo' in EXP and x.kind == 'dma' and 's[48:51]' in x.text: x.text = 's_nop 0'
            if 'noatom' in EXP and 'atomic' in x.op: x.text = 's_nop 0'
            if 'ntst' in EXP and x.op.startswith('buffer_store_dwordx4') and 'sc1' in x.text and 'v141' in x.text: x.text = x.text.replace(' sc1', ' sc0 sc1')
            out.append(x)
        return out
    def path(self, prefix, fn, label, keys):
        self.keys = keys
        if 'stamp' in self.__dict__: del self.__dict__['stamp']
        with self.g.capture() as body:
            if label: self.g.label(label)
            fn()
        self.xfilter(body)
        allp = [x for p in prefix for x in p]
        for x in allp: x.done = False
        full = self.g.finish(allp + body)
        if label:
            idx = next(i for i, x in enumerate(full) if x.kind == 'label' and x.text == label + ':')
            return full[idx:], body
        return full, body

    def build(self):
        I = self.I
        with self.g.capture() as pro:
            self.prologue()
            I('s_cmp_eq_u32 s%d, 1' % S_TYPE); I('s_cbranch_scc1 L_kv'); I('s_cmp_eq_u32 s%d, 2' % S_TYPE); I('s_cbranch_scc1 L_q')
        n0 = self.nst
        def endp():
            self.write_stamps(); I('s_endpgm')
        def ffn():
            self.ffn()
        out, _ = self.path([pro], ffn, None, ['0'])
        self.nst = n0
        code, kvc = self.path([pro], self.kv_common, 'L_kv', ['10', '11'])
        n1 = self.nst
        save = (dict(self.bdma), dict(self.bread))
        def kk():
            self.kv_k()
        def kvv():
            self.kv_v()
        c2, _ = self.path([pro, kvc], kk, 'L_kv_k', ['10'])
        self.nst = n1; self.bdma, self.bread = dict(save[0]), dict(save[1])
        c3, _ = self.path([pro, kvc], kvv, 'L_kv_v', ['11'])
        out += code + c2 + c3
        self.nst = n0
        def qq():
            self.q(); endp()
        c4, _ = self.path([pro], qq, 'L_q', ['2'])
        out += c4
        def p2():
            self.phase2(); endp()
        if 'nop2' not in EXP:
            c5, _ = self.path([], p2, 'L_p2', ['0', '10', '11'])
            out += c5
        with self.g.capture() as tail:
            self.g.label('L_end'); I('s_endpgm')
        return out + tail

HEADER = open('cdna_kernels/%s.s.ref' % NAME).read().split('; Override launch')[0]
def wrap(code, launch):
    return HEADER + launch + '''
.amdgcn_target "amdgcn-amd-amdhsa--gfx950"
.text
.globl %(n)s_kernel
.p2align 8
.type %(n)s_kernel,@function
%(n)s_kernel:
%(body)s
.section .rodata,"a"
.p2align 6
.amdhsa_kernel %(n)s_kernel
  .amdhsa_next_free_vgpr 256
  .amdhsa_next_free_sgpr 102
  .amdhsa_accum_offset %(nv)d
  .amdhsa_group_segment_fixed_size 0
  .amdhsa_kernarg_size 80
  .amdhsa_user_sgpr_count 2
  .amdhsa_user_sgpr_kernarg_segment_ptr 1
  .amdhsa_system_sgpr_workgroup_id_x 1
.end_amdhsa_kernel
''' % dict(n=NAME, body=render(code), nv=NV)

if __name__ == '__main__':
    stamps = '--stamps' in sys.argv
    k = K(stamps)
    code = k.build()
    open(sys.argv[1], 'w').write(wrap(code, '; @launch grid=(256,1,1) block=(512,1,1) lds=163840'))
    json.dump({t: [d.get(i, '') for i in range(16)] for t, d in k.names.items()} if stamps else {}, open(sys.argv[1][:-2] + '.json', 'w'))
    print('instructions', len(code), 'nops', sum(1 for i in code if i.kind == 'nop'))
```

```python
import sys, json, struct, os
from asmgen import *
import layout as L
EXP = os.environ.get('EXP', '').split(',')
SLEEP = int(os.environ.get('SLEEP', '4'))
BCHK = int(os.environ.get('BCHK', '7'))
W1K = int(os.environ.get('W1K', '3'))
PF0 = int(os.environ.get('PF0', '2'))
QSL = int(os.environ.get('QSL', '6'))
NST = int(os.environ.get('NST', '3')); MST = int(os.environ.get('MST', '1'))
ATOM = True
S_FA, S_FO, S_XO, S_SC, S_C1, S_C2, S_C3 = 98, 99, 100, 11, 96, 97, 25
RA, RB_ = [int(x) for x in os.environ.get('R1', '1,2').split(',')]
RC, RD = [int(x) for x in os.environ.get('R2', '2,4').split(',')]
STASH = 72; CSA = 32; DB2 = 125; S_CSB, S_R0 = 30, 101
assert int(os.environ.get('MST', '1')) <= 1
CST = int(os.environ.get('CST', '0'))
NAME = 'recurrent_scan__linear_kernel_hedgehog__dense_activation_silu__prompt'
def f32(x): return '0x%08x' % struct.unpack('<I', struct.pack('<f', x))[0]

S_X, S_W, S_PHI, S_WO, S_W2, S_OUT, S_DBG, S_WS = 36, 40, 44, 48, 52, 56, 60, 64
S_MASK, S_WAVE, S_IDX, S_RB, S_TYPE = 3, 4, 5, 6, 7
S_XS, S_WSO, S_EX56 = 12, 13, 14
S_MW, S_MX, S_ROW, S_NONCE = 32, 33, 34, 35
S_RT, S_CH = 68, 69
S_ST = 70
S_RG, S_CG, S_BSO, S_STA, S_A0, S_A1, S_OSO, S_NH, S_H0 = 16, 17, 18, 19, 20, 21, 22, 23, 24
S_ST4 = 25
S_L2E = 26
S_HIM = 28
STG = 45056; WPART = 16384
L_CNT = 3 * STG
L_CP = 136192
L_WPHI = 144384
L_SHX = L_WPHI
L_PHI = 0
L_V = 136192
L_STA = 57344
L_WO = 0
L_KC = 131072
L_CX = 135168
L_KVQ = 0
L_KVF = 65536
L_XG = 65536
L_O = 0
L_XS = 131072
KORD = list(range(14))
NV = 144
ACC, WF, XF, ST, CS, AX, AW, AS, DX, DW = 0, 64, 96, 104, 108, 112, 116, 120, 122, 124
PFA = 136; TMP = 128; P2T = 128; BT2 = 126; DB = 139; VLANE = 140; VL16 = 141; BT = 142

class K:
    def __init__(self, stamps):
        self.g = Gen(); self.use_stamps = stamps; self.nst = 0; self.names = {}; self.keys = ['0', '10', '11', '2']
    def I(self, t, needs=()): return self.g.I(t, needs)
    def U(self, t):
        x = self.g.I(t); x.kind = 'untracked'; return x
    def stamp(self, name, real=False):
        if os.environ.get('DLY') == name and (not os.environ.get('DLK') or os.environ['DLK'] in self.keys): self.I('s_sleep %s' % os.environ.get('DLN', '32'))
        if 'dbgt' in EXP and name in ('bar0', 'loopend', 'gdone', 'opub', 'ook'):
            r = {'bar0': [78], 'loopend': [80], 'gdone': [82], 'ook': [84], 'opub': [82, 84]}[name]
            for x in r: self.I('s_memtime s[%d:%d]' % (x, x + 1))
        if not self.use_stamps: return
        i = self.nst
        if i >= 12: return
        self.nst += 1
        for k in self.keys: self.names.setdefault(k, {})[i] = name
        self.I('%s %s' % ('s_memrealtime' if real else 's_memtime', sr(S_ST + 2 * i, 2)))
    def write_stamps(self, total=13):
        if 'dbgt' in EXP:
            I = self.I
            I('s_memrealtime s[74:75]'); I('s_memtime s[76:77]'); I('s_waitcnt vmcnt(0) lgkmcnt(0)')
            I('s_mov_b64 exec, 1'); I('v_mov_b32 v2, 0')
            I('v_mov_b32 v0, s70'); I('buffer_atomic_umax v0, v2, %s, 0 offen offset:8' % sr(S_DBG, 4))
            I('s_not_b32 s8, s70'); I('v_mov_b32 v1, s8'); I('buffer_atomic_umax v1, v2, %s, 0 offen offset:12' % sr(S_DBG, 4))
            I('v_mov_b32 v3, s74'); I('buffer_atomic_umax v3, v2, %s, 0 offen offset:16' % sr(S_DBG, 4))
            I('s_sub_u32 s8, s76, s72'); I('v_mov_b32 v4, s8'); I('buffer_atomic_umax v4, v2, %s, 0 offen offset:20' % sr(S_DBG, 4))
            I('s_sub_u32 s8, s74, s70'); I('v_mov_b32 v5, s8'); I('buffer_atomic_umax v5, v2, %s, 0 offen offset:24' % sr(S_DBG, 4))
            for k, so in enumerate((78, 80, 82, 84)):
                I('s_sub_u32 s8, s%d, s72' % so); I('v_mov_b32 v%d, s8' % (6 + k)); I('buffer_atomic_umax v%d, v2, %s, 0 offen offset:%d' % (6 + k, sr(S_DBG, 4), 28 + 4 * k))
            I('s_waitcnt vmcnt(0)')
            return
        if not self.use_stamps: return
        I = self.I
        I('s_memrealtime %s' % sr(S_ST + 2 * (total - 1), 2))
        I('s_waitcnt lgkmcnt(0)')
        I('s_lshl_b32 s8, s2, 3'); I('s_add_u32 s8, s8, s%d' % S_WAVE); I('s_lshl_b32 s8, s8, 7')
        I('s_add_u32 s8, s8, %d' % L.WS_STAMP)
        I('v_mov_b32 v2, 0')
        I('s_mov_b64 exec, 1')
        for i in range(total):
            I('v_mov_b32 v0, s%d' % (S_ST + 2 * i)); I('v_mov_b32 v1, s%d' % (S_ST + 2 * i + 1))
            I('buffer_store_dwordx2 v[0:1], v2, %s, s8 offen offset:%d' % (sr(S_WS, 4), 8 * i))
        I('s_mov_b64 exec, -1')
    def srd(self, d, base, nbytes):
        I = self.I
        I('s_mov_b32 s%d, s%d' % (d, base)); I('s_and_b32 s%d, s%d, 0xffff' % (d + 1, base + 1))
        I('s_mov_b32 s%d, %d' % (d + 2, nbytes)); I('s_mov_b32 s%d, 0x20000' % (d + 3))

    def prologue(self):
        I = self.I
        I('s_cmp_ge_u32 s2, 256'); I('s_cbranch_scc1 L_end')
        I('s_load_dwordx16 s[16:31], s[0:1], 0'); I('s_load_dwordx4 s[32:35], s[0:1], 64')
        if 'anti' in EXP:
            I('s_lshr_b32 s8, s2, 5'); I('s_and_b32 s9, s2, 31'); I('s_lshl_b32 s9, s9, 3'); I('s_or_b32 s2, s8, s9')
        I('s_getpc_b64 s[8:9]')
        self.g.label('L_pc')
        I('v_cmp_le_u32 vcc, %d, v0' % (1024 if 'nocp0' in EXP else 448)); I('s_cbranch_vccz L_nopf')
        I('s_bfe_u32 s10, s2, 0x30003'); I('s_lshl_b32 s10, s10, 13')
        I('v_and_b32 v1, 63, v0'); I('v_lshlrev_b32 v1, 7, v1'); I('v_add_u32 v1, s10, v1')
        I('v_min_u32 v1, L_end-L_pc, v1')
        self.U('global_load_dword a80, v1, s[8:9]')
        self.g.label('L_nopf')
        if self.use_stamps:
            for i in range(13): I('s_mov_b64 %s, 0' % sr(S_ST + 2 * i, 2))
        self.stamp('rt0', True); self.stamp('t0')
        if 'dbgt' in EXP: I('s_memrealtime s[70:71]'); I('s_memtime s[72:73]')
        I('v_lshrrev_b32 v1, 6, v0'); I('v_and_b32 v0, 63, v0')
        I('v_readfirstlane_b32 s%d, v1' % S_WAVE)
        I('v_mov_b32 v%d, v0' % VLANE); I('v_lshlrev_b32 v%d, 4, v0' % VL16)
        I('s_and_b32 s8, s2, 7'); I('s_lshr_b32 s9, s2, 3')
        I('s_and_b32 s10, s8, 1'); I('s_lshl_b32 s10, s10, 3'); I('s_and_b32 s11, s9, 7'); I('s_add_u32 s%d, s10, s11' % S_RB)
        I('s_lshr_b32 s8, s8, 1'); I('s_lshr_b32 s10, s9, 3')
        I('s_lshl_b32 s11, s8, 2'); I('s_add_u32 s12, s11, s10')
        I('s_mov_b32 s%d, 0' % S_TYPE); I('s_lshl_b32 s%d, s8, 1' % S_IDX); I('s_add_u32 s%d, s%d, s10' % (S_IDX, S_IDX))
        I('s_cmp_lt_u32 s10, 2'); I('s_cbranch_scc1 L_role')
        I('s_mov_b32 s%d, 1' % S_TYPE); I('s_lshr_b32 s%d, 0x4210, s11' % S_IDX); I('s_and_b32 s%d, s%d, 15' % (S_IDX, S_IDX))
        I('s_cmp_eq_u32 s10, 2'); I('s_cbranch_scc1 L_role')
        I('s_and_b32 s13, s8, 1'); I('s_lshl_b32 s%d, s13, 1' % S_IDX); I('s_add_u32 s%d, s%d, 3' % (S_IDX, S_IDX))
        I('s_bfe_u32 s11, s9, 0x10002'); I('s_lshr_b32 s8, s8, 1'); I('s_cmp_lg_u32 s11, s8'); I('s_cbranch_scc1 L_role')
        I('s_mov_b32 s%d, 2' % S_TYPE); I('s_mov_b32 s%d, s13' % S_IDX)
        self.g.label('L_role')
        I('s_lshl_b32 s8, s%d, 4' % S_RB); I('s_add_u32 s8, s8, s12'); I('s_lshl_b32 s8, s8, 3'); I('s_add_u32 s11, s8, s%d' % S_WAVE)
        I('s_mov_b32 s%d, -1' % S_EX56); I('s_mov_b32 s%d, 0x00ffffff' % (S_EX56 + 1))
        I('s_and_b32 s%d, s%d, 3' % (S_RT, S_WAVE)); I('s_lshr_b32 s%d, s%d, 2' % (S_CH, S_WAVE))
        I('s_mov_b32 s%d, 0xffff0000' % S_MASK)
        I('v_lshrrev_b32 v2, 3, v0'); I('v_mul_u32_u24 v2, 896, v2')
        I('v_lshrrev_b32 v3, 4, v0'); I('v_and_b32 v4, 7, v0'); I('v_xor_b32 v4, v4, v3')
        I('v_lshl_add_u32 v%d, v4, 4, v2' % DX)
        I('v_xor_b32 v4, 4, v4'); I('v_lshl_add_u32 v%d, v4, 4, v2' % (DX + 1)); I('v_add_u32 v%d, %d, v%d' % (DX + 1, 8 * 896 - 1024, DX + 1))
        I('s_lshl_b32 s8, s%d, 3' % S_RB); I('s_add_u32 s8, s8, s%d' % S_WAVE); I('s_mul_i32 s%d, s8, %d' % (S_XS, 16 * 896))
        I('v_cmp_lt_u32 vcc, 27, v0'); I('v_subrev_u32 v7, 28, v0'); I('v_cndmask_b32 v7, v0, v7, vcc'); I('v_cndmask_b32 v6, 0, 1, vcc')
        I('v_cmp_gt_u32 vcc, 56, v0'); I('v_mov_b32 v5, 0x7fffffff'); I('v_cndmask_b32 v5, v5, v%d, vcc' % VL16)
        I('s_waitcnt lgkmcnt(0)')
        if 'start' in EXP: self.stamp('karg')
        self.srd(S_X, 16, 2048 * 896)
        self.srd(S_WS, 34, L.WS_BYTES); self.srd(S_DBG, 32, 256)
        I('s_mov_b32 s%d, s11' % S_ROW)
        I('s_lshl_b32 s%d, s%d, 11' % (S_MX, S_WAVE))
        I('s_mul_i32 s%d, s%d, %d' % (S_MW, S_WAVE, 8 * 448)); I('s_add_u32 s%d, s%d, %d' % (S_MW, S_MW, WPART))

    def start_stream(self, gpitch):
        I = self.I
        for i in range(1, 4): I('v_add_u32 v%d, %d, v%d' % (DW + i, i * (2 * gpitch - 896), DW))
        I('s_mul_i32 s8, s%d, %d' % (S_WAVE, 8 * gpitch)); I('s_add_u32 s%d, s%d, s8' % (S_WSO, S_WSO))
        self.gpitch = gpitch
        d = {}
        if 'start' in EXP: self.stamp('pre_s0')
        grps, d[0] = self.stage_dma(0, gpitch)
        for gp in grps: self.g.extend(gp)
        I('s_mul_i32 s8, s%d, 896' % S_ROW)
        I('buffer_load_dwordx4 %s, v5, %s, s8 offen' % (vr(XF, 4), sr(S_X, 4)))
        I('s_cmp_ge_u32 s%d, 7' % S_RB); I('s_cbranch_scc1 L_nocx%s' % self.tagbase)
        I('s_sub_u32 s8, s%d, 1' % S_RB); I('s_mul_i32 s8, s8, %d' % (64 * gpitch)); I('s_add_u32 s8, s8, s%d' % S_WSO)
        I('s_add_u32 m0, s%d, %d' % (S_MW, L_CX - WPART)); I('s_mov_b64 exec, %s' % sr(S_EX56, 2))
        for j in range(4): self.U('buffer_load_dwordx4 v%d, %s, s8 offen offset:%d lds' % (DW + j, sr(S_W, 4), 896 * j))
        I('s_mov_b64 exec, -1')
        self.g.label('L_nocx%s' % self.tagbase)
        lab = 'L_nonon' + self.tagbase
        I('s_or_b32 s8, s2, s%d' % S_WAVE); I('s_cmp_lg_u32 s8, 0'); I('s_cbranch_scc1 %s' % lab)
        self.U('s_memrealtime s[8:9]'); self.U('s_waitcnt lgkmcnt(0)'); I('s_or_b32 s8, s8, 1'); I('v_mov_b32 v8, s8'); I('v_mov_b32 v9, 0')
        I('s_mov_b64 exec, 1'); self.U('buffer_store_dword v8, v9, %s, 0 offen sc1' % sr(S_DBG, 4)); I('s_mov_b64 exec, -1')
        self.g.label(lab)
        if 'start' in EXP: self.stamp('s0iss')
        return d
    def mall_addr(self):
        I = self.I
        segs = [(16, 7, 2, 5, 2048 * 896), (18, 4, 128 * 21, 4, 448 * 2688), (26, 5, 128 * 28, 5, 448 * 3584), (28, 7, 0, 7, 1792 * 896), (22, 2, 0, 2, 448 * 896)]
        I('s_lshl_b32 s8, s2, 3'); I('s_add_u32 s8, s8, s%d' % S_WAVE)
        lo = 0
        for i, (sb, mul, first, n, size) in enumerate(segs):
            I('s_mul_i32 s9, s8, %d' % mul); I('s_add_i32 s9, s9, %d' % (first - lo))
            I('v_add_u32 v10, s9, v0'); I('v_lshlrev_b32 v10, 7, v10'); I('v_min_u32 v10, %d, v10' % (size - 4))
            if i == 0:
                I('v_mov_b32 v11, v10'); I('v_mov_b32 v8, s%d' % sb); I('v_mov_b32 v9, s%d' % (sb + 1))
            else:
                I('v_cmp_le_u32 vcc, %d, v0' % lo); I('v_mov_b32 v12, s%d' % sb); I('v_mov_b32 v13, s%d' % (sb + 1))
                I('v_cndmask_b32 v11, v11, v10, vcc'); I('v_cndmask_b32 v8, v8, v12, vcc'); I('v_cndmask_b32 v9, v9, v13, vcc')
            lo += n
        I('v_add_co_u32 v%d, vcc, v8, v11' % PFA); I('v_addc_co_u32 v%d, vcc, 0, v9, vcc' % (PFA + 1))
    def mall_issue(self, part):
        if 'nomall' in EXP: return []
        I = self.I
        with self.g.capture() as a:
            I('s_mov_b64 exec, %d' % ([0x3fff, 0x7fc000][part]))
            I('global_load_dword a%d, %s, off' % (80 + part, vr(PFA, 2)))
            I('s_mov_b64 exec, -1')
        return [a]
    def pre_loop(self, p2, idx0, extra=None, late=None):
        I = self.I; g = self.g
        self.mall_addr()
        self.late_srds()
        if p2:
            self.p2_setup()
            for gp in self.p2_pre(): g.extend(gp)
        I('s_add_u32 s8, s%d, %d' % (S_IDX, idx0)); I('s_lshl_b32 s8, s8, 14'); I('s_add_u32 s%d, s8, %d' % (S_CSB, L.WS_CSG))
        if extra: extra()
        if 'start' in EXP: self.stamp('setup')
        self.s0pos = len(g.cur)
        if 'not0' not in EXP:
            for gp in self.mall_issue(0): g.extend(gp)
        if late: late()
        self.row_stats()
    def chunks(self, fn, n=10):
        with self.g.capture() as body:
            fn()
        out = []; cur = []
        for i, x in enumerate(body):
            cur.append(x)
            nxt = body[i + 1] if i + 1 < len(body) else None
            safe = nxt is not None and not (nxt.op.startswith(('s_cselect', 's_cbranch', 's_addc', 's_subb', 'v_cndmask', 'v_addc')) or nxt.kind in ('dma', 'label')) \
                and not x.op.startswith(('s_cmp', 'v_cmp')) and 'm0' not in x.dst
            if len(cur) >= n and safe: out.append(cur); cur = []
        if cur: out.append(cur)
        return out

    def late_srds(self):
        I = self.I
        self.srd(S_PHI, 20, 16 * 28 * 28 * 2); self.srd(S_WO, 22, 448 * 896); self.srd(S_W2, 28, 1792 * 896)
        self.srd(S_OUT, 30, 2048 * 896)
        I('s_mov_b32 s%d, %s' % (S_L2E, f32(L.LOG2E))); I('s_mov_b32 s%d, %s' % (S_L2E + 1, f32(L.LOG2E)))
        I('s_mov_b32 s%d, 0' % S_HIM); I('s_mov_b32 s%d, -1' % (S_HIM + 1))
        I('s_mov_b32 s31, 0')

    def late_group(self, p2, extra=None):
        with self.g.capture() as a:
            self.late_srds()
            if extra: extra()
        self.p2flag = p2
        return a
    def p2_setup(self):
        I = self.I; T = 64
        I('s_lshr_b32 s9, s2, 3'); I('s_and_b32 s8, s9, 3'); I('s_add_u32 s8, s8, 24'); I('s_cmp_lt_u32 s9, 24'); I('s_cselect_b32 s9, s9, s8')
        I('s_mul_i32 s8, s9, 37'); I('s_lshr_b32 s8, s8, 8'); I('s_mul_i32 s10, s8, 7'); I('s_sub_u32 s%d, s9, s10' % S_CG)
        I('s_and_b32 s10, s2, 7'); I('s_lshl_b32 s10, s10, 2'); I('s_add_u32 s%d, s10, s8' % S_RG)
        I('s_mul_i32 s%d, s%d, %d' % (S_BSO, S_WAVE, 224 * 896)); I('s_lshl_b32 s8, s%d, 7' % S_CG); I('s_add_u32 s%d, s%d, s8' % (S_BSO, S_BSO))
        I('s_lshl_b32 s%d, s%d, 12' % (S_STA, S_WAVE)); I('s_add_u32 s%d, s%d, %d' % (S_STA, S_STA, L_STA))
        I('v_lshrrev_b32 v%d, 3, v140' % T); I('v_mul_u32_u24 v%d, 896, v%d' % (T, T))
        I('v_lshrrev_b32 v%d, 2, v140' % (T + 1)); I('v_and_b32 v%d, 4, v%d' % (T + 1, T + 1)); I('v_and_b32 v%d, 7, v140' % (T + 2))
        I('v_xor_b32 v%d, v%d, v%d' % (T + 1, T + 1, T + 2)); I('v_lshl_add_u32 v%d, v%d, 4, v%d' % (DB, T + 1, T))
        I('v_lshrrev_b32 v%d, 5, v140' % T); I('v_lshlrev_b32 v%d, 2, v%d' % (T, T)); I('v_bfe_u32 v%d, v140, 2, 2' % (T + 1)); I('v_add_u32 v%d, v%d, v%d' % (T, T, T + 1))
        I('v_lshlrev_b32 v%d, 7, v%d' % (T, T)); I('v_add_u32 v%d, s%d, v%d' % (T, S_STA, T))
        I('v_and_b32 v%d, 3, v140' % (T + 1)); I('v_lshlrev_b32 v%d, 3, v%d' % (T + 1, T + 1))
        I('v_and_b32 v%d, 16, v140' % (T + 2)); I('v_lshl_add_u32 v%d, v%d, 1, v%d' % (T + 1, T + 2, T + 1))
        I('v_and_b32 v%d, 8, v140' % (T + 2)); I('v_lshlrev_b32 v%d, 3, v%d' % (T + 2, T + 2)); I('v_xor_b32 v%d, v%d, v%d' % (T + 1, T + 1, T + 2))
        I('v_add_u32 v%d, v%d, v%d' % (BT, T, T + 1))
        I('v_xor_b32 v%d, 64, v%d' % (T + 1, T + 1)); I('v_add_u32 v%d, v%d, v%d' % (BT + 1, T, T + 1))

    def slot4_setup(self):
        I = self.I
        I('s_lshl_b32 s%d, s%d, 11' % (S_ST4, S_WAVE)); I('s_add_u32 s%d, s%d, %d' % (S_ST4, S_ST4, L_SHX)); I('s_sub_u32 s8, s%d, s%d' % (S_ST4, S_STA))
        for b in range(2): I('v_add_u32 v%d, s8, v%d' % (BT2 + b, BT + b))
    def wo_dma(self):
        g = self.g; I = self.I; grps = []
        with g.capture() as a:
            I('s_mul_i32 s23, s%d, %d' % (S_WAVE, 56 * 896)); I('s_lshl_b32 s24, s%d, 7' % S_CG); I('s_add_u32 s23, s23, s24'); I('s_mul_i32 s24, s%d, %d' % (S_WAVE, 56 * 128))
        for i in range(0, 7, 2):
            with g.capture() as b:
                I('s_add_u32 m0, s24, %d' % (L_WO + 1024 * i)); I('s_add_u32 s8, s23, %d' % (8 * 896 * i))
                I('buffer_load_dwordx4 v%d, %s, s8 offen lds' % (DB, sr(S_WO, 4)))
                if i + 1 < 7: I('buffer_load_dwordx4 v%d, %s, s8 offen offset:1024 lds' % (DB2, sr(S_WO, 4)))
            grps.append((a if i == 0 else []) + b)
        return grps
    SLOTS = [(0, BT), (2048, BT), (32768, BT), (34816, BT), (None, BT2)]
    def b_dma(self, k, needs=()):
        g = self.g; I = self.I; so = self.SLOTS[k % self.nslot][0]; grps = []
        with g.capture() as a:
            I('s_add_u32 m0, s%d, %d' % (S_STA, so) if so is not None else 's_mov_b32 m0, s%d' % S_ST4)
            I('s_add_u32 s8, s%d, %d' % (S_BSO, 16 * k * 896))
            I('buffer_load_dwordx4 v%d, %s, s8 offen lds' % (DB, sr(S_W2, 4)), needs=needs)
            I('buffer_load_dwordx4 v%d, %s, s8 offen offset:1024 lds' % (DB2, sr(S_W2, 4)))
        grps.append(a)
        self.bdma[k] = [x for gp in grps for x in gp if x.kind == 'dma']
        return grps
    def b_read(self, k):
        so, reg = self.SLOTS[k % self.nslot]; out = []
        if so is None: so = 0
        for b in range(2):
            for h in range(2):
                out.append(Instr('ds_read_b64_tr_b16 %s, v%d offset:%d' % (ar(8 * k + 4 * b + 2 * h, 2), reg + b, so + 1024 * h), needs=self.bdma[k]))
        self.bread[k] = out
        return out
    def b_tasks(self, k0, k1):
        t = [self.b_read(k) for k in range(k0, k1)]
        for k in range(k0, k1):
            if k + self.nslot < 14: t += self.b_dma(k + self.nslot, needs=self.bread[k])
        return t

    def stage_dma(self, st, gpitch):
        g = self.g; I = self.I; base = (st % 3) * STG
        grps = []
        for i in range(0, 4, 2):
            with g.capture() as a:
                if i == 0: I('s_add_u32 m0, s%d, %d' % (S_MW, base))
                I('s_mov_b64 exec, %s' % sr(S_EX56, 2))
                for j in (i, i + 1): I('buffer_load_dwordx4 v%d, %s, s%d offen offset:%d lds' % (DW + j, sr(S_W, 4), S_WSO, 896 * j))
                I('s_mov_b64 exec, -1')
            grps.append(a)
        with g.capture() as a:
            I('s_add_u32 m0, s%d, %d' % (S_MX, base)); I('s_add_u32 s%d, s%d, %d' % (S_WSO, S_WSO, 64 * gpitch))
            for i in range(2): I('buffer_load_dwordx4 v%d, %s, s%d offen offset:%d lds' % (DX + i, sr(S_X, 4), S_XS, 1024 * i))
            I('s_add_u32 s%d, s%d, 128' % (S_XS, S_XS))
        grps.append(a)
        return grps, [x for gp in grps for x in gp if x.kind == 'dma']

    def read_addrs(self, clamp, shared=False):
        I = self.I; T = TMP
        I('v_and_b32 v%d, 31, v0' % T); I('v_lshlrev_b32 v%d, 7, v%d' % (T, T)); I('s_lshl_b32 s8, s%d, 12' % S_RT); I('v_add_u32 v%d, s8, v%d' % (T, T))
        I('v_lshrrev_b32 v%d, 5, v0' % (T + 1)); I('v_bfe_u32 v%d, v0, 1, 3' % (T + 2)); I('v_xor_b32 v%d, v%d, v%d' % (T + 2, T + 2, T + 1))
        I('v_lshlrev_b32 v%d, 3, v%d' % (T + 3, T + 1)); I('v_bfe_u32 v%d, v0, 2, 2' % (T + 4)); I('v_add_u32 v%d, v%d, v%d' % (T + 3, T + 3, T + 4))
        I('v_mul_u32_u24 v%d, 448, v%d' % (T + 3, T + 3))
        I('v_bfe_u32 v%d, v0, 4, 1' % (T + 4)); I('v_and_b32 v%d, 3, v0' % (T + 5)); I('v_lshl_add_u32 v%d, v%d, 2, v%d' % (T + 4, T + 4, T + 5))
        if shared:
            I('s_lshl_b32 s8, s%d, 2' % S_CH); I('v_xor_b32 v%d, s8, v%d' % (T + 6, T + 4)); I('v_lshl_add_u32 v%d, v%d, 3, v%d' % (T + 6, T + 6, T + 3))
            I('v_add_u32 v%d, %d, v%d' % (T + 6, WPART + 384, T + 6))
        if clamp: I('v_min_u32 v%d, 6, v%d' % (T + 4, T + 4))
        if shared:
            I('s_cmp_eq_u32 s%d, 7' % S_WAVE); I('s_cselect_b32 s8, 4, 0'); I('v_xor_b32 v%d, s8, v%d' % (CS + 3, T + 4))
            I('s_min_u32 s9, s%d, 6' % S_WAVE); I('s_lshl_b32 s9, s9, 6'); I('s_add_u32 s9, s9, %d' % L_CX)
        else:
            I('v_mov_b32 v%d, v%d' % (CS + 3, T + 4)); I('s_mul_i32 s9, s%d, 56' % S_RT); I('s_add_u32 s9, s9, s10'); I('s_add_u32 s9, s9, %d' % (L_CX - WPART))
        I('v_lshl_add_u32 v%d, v%d, 3, v%d' % (CS + 3, CS + 3, T + 3)); I('v_add_u32 v%d, s9, v%d' % (CS + 3, CS + 3))
        I('v_lshl_add_u32 v%d, v%d, 3, v%d' % (T + 3, T + 4, T + 3))
        I('v_add_u32 v%d, s10, v%d' % (T + 3, T + 3))
        for i in range(4):
            I('s_add_u32 s8, s%d, s%d' % (S_RT, S_CH)); I('s_add_u32 s8, s8, %d' % i); I('s_and_b32 s8, s8, 3')
            I('s_lshl_b32 s9, s8, 1'); I('v_xor_b32 v%d, s9, v%d' % (T + 5, T + 2)); I('v_lshl_add_u32 v%d, v%d, 4, v%d' % (AX + i, T + 5, T))
            I('s_mul_i32 s9, s8, 7168'); I('v_add_u32 v%d, s9, v%d' % (AW + i, T + 3))
            if shared and i in (0, 2): I('v_add_u32 v%d, s9, v%d' % (AS + i // 2, T + 6))

    def row_stats(self):
        I = self.I; S, Q = ST, ST + 1
        I('s_mov_b32 s8, 0x3f803f80')
        I('v_dot2_f32_bf16 v%d, v%d, s8, 0' % (S, XF)); I('v_dot2_f32_bf16 v%d, v%d, v%d, 0' % (Q, XF, XF))
        for q in range(1, 4):
            I('v_dot2_f32_bf16 v%d, v%d, s8, v%d' % (S, XF + q, S)); I('v_dot2_f32_bf16 v%d, v%d, v%d, v%d' % (Q, XF + q, XF + q, Q))
        for m in ('row_shr:1', 'row_shr:2', 'row_shr:4', 'row_shr:8'):
            for r in (S, Q): I('v_add_f32_dpp v%d, v%d, v%d %s row_mask:0xf bank_mask:0xf bound_ctrl:0' % (r, r, r, m))
        for m, rm in (('row_bcast:15', '0xa'), ('row_bcast:31', '0xc')):
            for r in (S, Q): I('v_add_f32_dpp v%d, v%d, v%d %s row_mask:%s bank_mask:0xf' % (r, r, r, m, rm))
        I('v_mul_f32 v%d, %s, v%d' % (S, f32(1.0 / 448), S)); I('v_mul_f32 v%d, %s, v%d' % (Q, f32(1.0 / 448), Q))
        I('v_fma_f32 v%d, -v%d, v%d, v%d' % (Q, S, S, Q)); I('v_max_f32 v%d, 0, v%d' % (Q, Q))
        def rbf(r):
            I('v_cvt_pk_bf16_f32 v%d, v%d, v%d' % (r, r, r)); I('v_lshlrev_b32 v%d, 16, v%d' % (r, r))
        rbf(S); rbf(Q)
        I('v_add_f32 v%d, %s, v%d' % (Q, f32(1e-5), Q)); rbf(Q)
        I('v_sqrt_f32 v%d, v%d' % (Q, Q)); rbf(Q)
        I('v_rcp_f32 v%d, v%d' % (Q, Q))
        I('v_sub_f32 v%d, 0, v%d' % (S, S))

    def nonce_issue(self):
        self.I('v_mov_b32 v%d, 0' % (ST + 3))
        return self.I('buffer_load_dword v%d, v%d, %s, 0 offen sc1' % (ST + 2, ST + 3, sr(S_DBG, 4)))
    def nonce_get_publish(self, tag):
        I = self.I; U = self.U
        I('v_readfirstlane_b32 s%d, v%d' % (S_NONCE, ST + 2))
        I('s_cmp_lg_u32 s%d, 0' % S_NONCE); I('s_cbranch_scc1 L_gotn%s' % tag)
        self.g.label('L_spinn%s' % tag)
        U('buffer_load_dword v%d, v%d, %s, 0 offen sc1' % (ST + 2, ST + 3, sr(S_DBG, 4)))
        U('s_waitcnt vmcnt(0)')
        I('v_readfirstlane_b32 s%d, v%d' % (S_NONCE, ST + 2)); I('s_nop 1')
        I('s_cmp_lg_u32 s%d, 0' % S_NONCE); I('s_cbranch_scc1 L_gotn%s' % tag)
        self.spin_tail('L_spinn%s' % tag)
        self.g.label('L_gotn%s' % tag)
        I('v_mov_b32 v%d, s%d' % (ST + 2, S_NONCE)); I('v_mov_b32 v%d, s%d' % (ST + 3, S_NONCE))
        I('s_lshl_b32 s8, s%d, 4' % S_ROW); I('s_add_u32 s8, s8, %d' % L.WS_RS); I('v_mov_b32 v%d, 0' % (TMP + 8))
        I('s_mov_b32 exec_lo, 0'); I('s_mov_b32 exec_hi, 0x80000000')
        I('buffer_store_dwordx4 %s, v%d, %s, s8 offen sc1' % (vr(ST, 4), TMP + 8, sr(S_WS, 4)))
        I('s_mov_b64 exec, -1')
    def rs_issue(self):
        I = self.I
        I('s_lshl_b32 s8, s%d, 2' % S_RB); I('s_add_u32 s8, s8, s%d' % S_RT); I('s_lshl_b32 s8, s8, 9'); I('s_add_u32 s%d, s8, %d' % (S_ROW, L.WS_RS))
        I('v_and_b32 v%d, 31, v%d' % (DX, VLANE)); I('v_lshlrev_b32 v%d, 4, v%d' % (DX, DX))
        return I('buffer_load_dwordx4 %s, v%d, %s, s%d offen sc1' % (vr(ST, 4), DX, sr(S_WS, 4), S_ROW))
    def rs_get(self, tag, scale):
        I = self.I; U = self.U
        I('v_cmp_ne_u32 vcc, s%d, v%d' % (S_NONCE, ST + 2)); I('s_nop 1'); I('s_cbranch_vccz L_gotr%s' % tag)
        self.g.label('L_spinr%s' % tag)
        U('buffer_load_dwordx4 %s, v%d, %s, s%d offen sc1' % (vr(ST, 4), DX, sr(S_WS, 4), S_ROW))
        U('s_waitcnt vmcnt(0)')
        I('v_cmp_ne_u32 vcc, s%d, v%d' % (S_NONCE, ST + 2)); I('s_nop 1'); I('s_cbranch_vccz L_gotr%s' % tag)
        self.spin_tail('L_spinr%s' % tag)
        self.g.label('L_gotr%s' % tag)
        for q in range(4): I('v_cvt_pk_bf16_f32 v%d, v%d, v%d' % (XF + q, ST, ST))
        I('v_mul_f32 v%d, %s, v%d' % (ST, f32(scale), ST + 1))
    def publish(self, soff_s, tmp, needs=()):
        I = self.I
        I('v_mov_b32 v%d, s%d' % (tmp, S_NONCE)); I('v_mov_b32 v%d, 0' % (tmp + 1)); I('s_mov_b64 exec, 1')
        x = I('buffer_store_dword v%d, v%d, %s, s%d offen sc1' % (tmp, tmp + 1, sr(S_WS, 4), soff_s), needs=needs)
        I('s_mov_b64 exec, -1')
        return x
    def poll(self, tag, voff, soff_s, tmp):
        I = self.I; U = self.U
        self.g.label('L_poll%s' % tag)
        U('buffer_load_dword v%d, v%d, %s, s%d offen sc1' % (tmp, voff, sr(S_WS, 4), soff_s))
        I('s_waitcnt vmcnt(0)')
        I('v_cmp_ne_u32 vcc, s%d, v%d' % (S_NONCE, tmp)); I('s_nop 1'); I('s_cbranch_vccz L_polld%s' % tag)
        self.spin_tail('L_poll%s' % tag)
        self.g.label('L_polld%s' % tag)
    def poll_issue(self, voff, soff_s, tmp):
        return self.I('buffer_load_dword v%d, v%d, %s, s%d offen sc1' % (tmp, voff, sr(S_WS, 4), soff_s))
    def poll_check(self, tag, voff, soff_s, tmp):
        I = self.I; U = self.U
        if 'nopoll' in EXP and tag in 'AB': return
        I('v_cmp_ne_u32 vcc, s%d, v%d' % (S_NONCE, tmp)); I('s_nop 1'); I('s_cbranch_vccz L_polld%s' % tag)
        self.g.label('L_poll%s' % tag)
        U('buffer_load_dword v%d, v%d, %s, s%d offen sc1' % (tmp, voff, sr(S_WS, 4), soff_s)); U('s_waitcnt vmcnt(0)')
        I('v_cmp_ne_u32 vcc, s%d, v%d' % (S_NONCE, tmp)); I('s_nop 1'); I('s_cbranch_vccz L_polld%s' % tag)
        self.spin_tail('L_poll%s' % tag)
        self.g.label('L_polld%s' % tag)
    def spin_tail(self, lab, sl=None):
        I = self.I
        I('s_sleep %d' % (sl or SLEEP)); I('s_add_u32 s31, s31, 1'); I('s_cmp_lt_u32 s31, 0x8000'); I('s_cbranch_scc1 %s' % lab)

    def l2pf(self, st):
        if 'l2pf' not in EXP: return []
        I = self.I; lab = 'L_pf%s%d' % (self.tagbase, st)
        with self.g.capture() as a:
            I('s_lshr_b32 s8, s%d, 1' % S_WAVE); I('s_cmp_lg_u32 s8, %d' % (st - PF0)); I('s_cbranch_scc1 %s' % lab)
            I('s_lshr_b32 s8, s2, 3'); I('s_lshl_b32 s8, s8, 3'); I('s_add_u32 s8, s8, s%d' % S_WAVE); I('s_lshl_b32 s8, s8, 13')
            I('v_lshlrev_b32 v%d, 7, v%d' % (TMP + 8, VLANE))
            self.U('buffer_load_dword a80, v%d, %s, s8 offen' % (TMP + 8, sr(S_W2, 4)))
            I('s_sub_u32 s8, s8, %d' % (196 * 8192)); I('s_cbranch_scc1 %s' % lab)
            self.U('buffer_load_dword a80, v%d, %s, s8 offen' % (TMP + 8, sr(S_WO, 4)))
            self.g.label(lab)
        return [a]

    def code_pf(self, tg, tmp, dst):
        if 'nocpf' in EXP: return []
        I = self.I
        with self.g.capture() as a:
            I('s_getpc_b64 s[8:9]'); self.g.label('L_cpf%s' % tg)
            I('s_sub_u32 s8, s8, L_cpf%s-L_pc' % tg); I('s_subb_u32 s9, s9, 0')
            I('s_bfe_u32 s10, s2, 0x20003'); I('s_lshl_b32 s10, s10, 3'); I('s_add_u32 s10, s10, s%d' % S_WAVE); I('s_lshl_b32 s10, s10, 11')
            I('v_lshlrev_b32 v%d, 7, v%d' % (tmp, VLANE)); I('v_add_u32 v%d, s10, v%d' % (tmp, tmp)); I('v_min_u32 v%d, L_end-L_pc, v%d' % (tmp, tmp))
            I('s_mov_b64 exec, 0xffff')
            I('global_load_dword %s, v%d, s[8:9]' % (dst, tmp))
            I('s_mov_b64 exec, -1')
        return [a]

    def gemm(self, tiles, gpitch, dms, tag, hooks, tl):
        g = self.g; I = self.I
        dmas = dict(dms)
        NF, LOOK = 8, 4
        seq = [(ks, cc) for ks in range(28) for cc in range(len(tiles[ks & 3]['t']))]
        def wread(n):
            ks, cc = seq[n]; a = WF + 4 * (n % NF); c, areg, off = tiles[ks & 3]['t'][cc]
            return [Instr('ds_read_b64_tr_b16 %s, v%d offset:%d' % (vr(a + 2 * h, 2), areg, off + h * 4 * 448)) for h in range(2)]
        def xread(ks):
            return [Instr('ds_read_b128 %s, v%d' % (vr(XF + 4 * (ks % 2), 4), AX + (ks & 3)))]
        aregs = sorted(set(list(range(AX, AX + 4)) + [t[1] for p in tiles for t in p['t']]))
        def adv(st):
            d = STG if st % 3 else -2 * STG
            return [Instr('v_add_u32 v%d, %d, v%d' % (r, d, r)) if d > 0 else Instr('v_subrev_u32 v%d, %d, v%d' % (r, -d, r)) for r in aregs]
        tc = [0]
        def cs_ops(r, c):
            t = TMP + 2 * (tc[0] % 4); tc[0] += 1
            return [Instr('v_lshlrev_b32 v%d, 16, v%d' % (t, r)), Instr('v_and_b32 v%d, s%d, v%d' % (t + 1, S_MASK, r)),
                    Instr('v_add_f32 v%d, v%d, v%d' % (CS + c, CS + c, t)), Instr('v_add_f32 v%d, v%d, v%d' % (CS + c, CS + c, t + 1))]
        if 'start' in EXP:
            self.stamp('rowst'); I('s_nop 0', needs=dmas[0]); self.stamp('s0arr'); I('s_waitcnt lgkmcnt(0)')
        BAR0 = len(g.cur)
        I('s_barrier', needs=dmas[0])
        self.stamp('bar0')
        g.extend(xread(0))
        first = [wread(n) for n in range(LOOK)]
        for x in first: g.extend(x)
        g1, dmas[1] = self.stage_dma(1, gpitch)
        pend, dmas[2] = self.stage_dma(2, gpitch)
        g.cur[self.s0pos:self.s0pos] = [Instr('s_barrier')] + [x for gp in g1 for x in gp]
        wrd = {}
        cs = {}
        def cs_make():
            with g.capture() as a:
                T = TMP
                I('s_cmp_ge_u32 s%d, 7' % S_RB); I('s_cbranch_scc1 L_nocm%s' % tag)
                I('s_mov_b32 s9, 0x3f803f80')
                for half in range(2):
                    for k2 in range(2):
                        for h in range(2): self.U('ds_read_b64_tr_b16 %s, v%d offset:%d' % (vr(T + 4 * k2 + 2 * h, 2), CS + 3, (2 * half + k2) * 7168 + h * 1792))
                    self.U('s_waitcnt lgkmcnt(0)')
                    for q in range(8): I('v_dot2_f32_bf16 v%d, v%d, s9, %s' % (CS + (q & 1), T + q, 'v%d' % (CS + (q & 1)) if half or q > 1 else '0'))
                I('s_lshl_b32 s8, s%d, 11' % S_WAVE); I('s_add_u32 s8, s8, s%d' % S_CSB); I('s_lshr_b32 s9, s%d, 2' % S_RB); I('s_lshl_b32 s9, s9, 10'); I('s_add_u32 s8, s8, s9')
                I('s_and_b32 s9, s%d, 3' % S_RB); I('s_lshl_b32 s9, s9, 2'); I('s_add_u32 s8, s8, s9')
                I('v_add_f32 v%d, v%d, v%d' % (CS, CS, CS + 1))
                I('v_cvt_pk_bf16_f32 v%d, v%d, v%d' % (T, CS, CS)); I('v_and_b32 v%d, s%d, v%d' % (T, S_MASK, T))
                I('v_sub_f32 v%d, v%d, v%d' % (T, CS, T)); I('v_cvt_pk_bf16_f32 v%d, v%d, v%d' % (CS, T, CS))
                self.U('buffer_store_dword v%d, v%d, %s, s8 offen sc1' % (CS, VL16, sr(S_WS, 4)))
                self.g.label('L_nocm%s' % tag)
            return [a]
        def cs_flag():
            with g.capture() as a:
                I('s_cmp_lt_u32 s%d, 7' % S_RB); I('s_cselect_b32 s8, s%d, 1' % S_WAVE); I('s_cmp_lg_u32 s8, 0'); I('s_cbranch_scc1 L_nocf%s' % tag)
                I('s_sub_u32 s8, s%d, %d' % (S_CSB, L.WS_CSG)); I('s_lshr_b32 s8, s8, 4'); I('s_lshl_b32 s9, s%d, 7' % S_RB); I('s_add_u32 s8, s8, s9'); I('s_add_u32 s8, s8, %d' % L.WS_CSF)
                self.publish(8, TMP).kind = 'untracked'
                self.g.label('L_nocf%s' % tag)
            return [a]
        def cs_poll():
            with g.capture() as a:
                I('s_sub_u32 s10, s%d, %d' % (S_CSB, L.WS_CSG)); I('s_lshr_b32 s10, s10, 4'); I('s_add_u32 s%d, s10, %d' % (S_R0, L.WS_CSF))
                I('v_and_b32 v%d, 7, v%d' % (CS, VLANE)); I('v_min_u32 v%d, 6, v%d' % (CS, CS)); I('v_lshlrev_b32 v%d, 7, v%d' % (CS, CS))
                self.poll_issue(CS, S_R0, CS + 1)
            return [a]
        def cs_load():
            with g.capture() as a:
                for c, mul, add in tl:
                    I('s_mul_i32 s8, s%d, %d' % (S_CH, mul * 2048)); I('s_add_u32 s8, s8, s%d' % S_CSB); I('s_add_u32 s8, s8, %d' % (add * 2048))
                    for h in range(2): I('buffer_load_dwordx4 %s, v%d, %s, s8 offen offset:%d sc1' % (ar(CSA + 8 * c + 4 * h, 4), VL16, sr(S_WS, 4), 1024 * h))
            return [a]
        for n in range(LOOK): wrd[n] = first[n]
        started = set(); xr = 0; cfill = []
        for n, (ks, cc) in enumerate(seq):
            p = tiles[ks & 3]; c = p['t'][cc][0]; a = WF + 4 * (n % NF); xf = XF + 4 * (ks % 2)
            I('v_mfma_f32_32x32x16_bf16 %s, %s, %s, %s' % (vr(ACC + 16 * c, 16), vr(a, 4), vr(xf, 4), vr(ACC + 16 * c, 16) if c in started else '0'),
              needs=wrd.get(n + 1, []) if n % 2 == 0 else [])
            started.add(c)
            nn = n + LOOK
            if nn < len(seq):
                ks2, cc2 = seq[nn]
                if cc2 == 0 and ks2 & 3 == 0:
                    st2 = ks2 >> 2
                    assert xr == ks2 - 1
                    g.extend(adv(st2))
                    if st2 == NST: self.nonce_get_publish(tag)
                    if st2 == 6: self.poll_check('c' + tag, CS, S_R0, CS + 1); self.rs_issue()
                    if st2 in hooks.get('pre', {}): hooks['pre'][st2]()
                    if 'stg' in EXP and st2 in (2, 3, 6): self.stamp('preB%d' % st2)
                    I('s_waitcnt lgkmcnt(0)')
                    I('s_barrier', needs=dmas[st2])
                    if 'stg' in EXP: self.stamp('B%d' % st2)
                    if st2 == 1:
                        with g.capture() as grp_: self.nonce_issue()
                        pend += [grp_]
                    if st2 == 1: pend += cs_make()
                    if st2 == 3: pend += cs_flag()
                    if st2 == 5: pend += cs_poll()
                    if st2 == 6: pend += cs_load()
                    if st2 in self.pre_post: pend += self.pre_post[st2]()
                    if st2 + 2 < 7:
                        newg, dmas[st2 + 2] = self.stage_dma(st2 + 2, gpitch); pend += newg
                    if st2 == MST: pend += self.mall_issue(1)
                    if st2 in hooks.get('post', {}): pend += hooks['post'][st2]()
                wrd[nn] = wread(nn); g.extend(wrd[nn])
            if xr == ks and ks + 1 < 28 and (nn >= len(seq) or seq[min(nn, len(seq) - 1)][0] >= ks + 1):
                g.extend(xread(ks + 1)); xr = ks + 1
            if pend and (n % 3 == 0 or len(pend) > 3): g.extend(pend.pop(0))
        for x in pend: g.extend(x)
        self.stamp('loopend')

    def finish_stats(self, tl, scale, tag, before_b1=None, after_b1=None):
        I = self.I
        wr = []
        if before_b1: wr += before_b1() or []
        self.rs_get(tag, scale)
        for c, mul, add in tl: I('v_accvgpr_write_b32 a%d, 0' % (CSA + 8 * c + 7))
        for h in range(2):
            for c, mul, add in tl:
                I('v_mfma_f32_32x32x16_bf16 %s, %s, %s, %s' % (vr(ACC + 16 * c, 16), ar(CSA + 8 * c + 4 * h, 4), vr(XF, 4), vr(ACC + 16 * c, 16)))
        I('s_barrier', needs=wr)
        if after_b1: after_b1()
        if 'stg' in EXP: self.stamp = lambda *a, **k: None
        self.stamp('stats')

    def with_bg(self, fn, tasks, every):
        with self.g.capture() as body:
            fn()
        out = []; tasks = list(tasks); cnt = 0
        for x in body:
            out.append(x); cnt += 1
            if tasks and cnt >= every and x.kind in ('valu', 'trans') and not (x.dst & {'vcc'}):
                out += tasks.pop(0); cnt = 0
        for t in tasks: out += t
        self.g.extend(out)

    def ffn(self):
        I = self.I; g = self.g
        self.tagbase = 'f'
        self.srd(S_W, 26, 448 * 3584)
        I('v_mul_u32_u24 v6, 3584, v6'); I('v_lshl_add_u32 v%d, v7, 4, v6' % DW)
        I('s_mul_i32 s%d, s%d, 448' % (S_WSO, S_IDX))
        dms = self.start_stream(3584)
        I('s_mul_i32 s10, s%d, 192' % S_CH); I('s_add_u32 s10, s10, %d' % WPART)
        self.read_addrs(False, shared=True)
        self.pre_loop(True, 0); self.pre_post = {}
        own = lambda i, o: [(c, AW + i, 64 * c) for c in o]
        tiles = [dict(t=[(3, AS, 0)] + own(0, [0, 1, 2]), cs=True), dict(t=own(1, [0, 1, 2]), cs=True),
                 dict(t=own(2, [1, 2, 0]) + [(3, AS + 1, 0)], cs=True), dict(t=own(3, [2, 0, 1]), cs=True)]
        self.bdma, self.bread = {}, {}; self.nslot = 5
        tl = [(0, 3, 0), (1, 3, 1), (2, 3, 2), (3, 1, 6)]
        self.gemm(tiles, 3584, dms, 'f', self.bhooks(), tl)
        self.slot4_setup()
        SH = ACC + 48; X8 = 116
        def before_b1():
            I('s_xor_b32 s8, s%d, 4' % S_WAVE); I('s_lshl_b32 s8, s8, 11'); I('s_add_u32 s8, s8, %d' % L_SHX); I('v_add_u32 v%d, s8, v%d' % (AX, VL16))
            I('s_lshl_b32 s8, s%d, 11' % S_WAVE); I('s_add_u32 s8, s8, %d' % L_SHX); I('v_add_u32 v%d, s8, v%d' % (AX + 1, VL16))
            return [I('ds_write_b128 v%d, %s offset:%d' % (AX, vr(SH + 8 + 4 * q, 4), 1024 * q)) for q in range(2)]
        shr = []
        def after_b1():
            for q in range(2): shr.append(I('ds_read_b128 %s, v%d offset:%d' % (vr(X8 + 4 * q, 4), AX + 1, 1024 * q)))
        self.finish_stats(tl, -L.LOG2E, 'f', before_b1, after_b1)
        I('s_lshl_b32 s8, s%d, 2' % S_RB); I('s_add_u32 s8, s8, s%d' % S_RT); I('s_mul_i32 s9, s8, %d' % (112 * 1024))
        I('s_lshl_b32 s8, s8, 3'); I('s_add_u32 s8, s8, s%d' % S_IDX); I('s_lshl_b32 s8, s8, 1'); I('s_add_u32 s8, s8, s%d' % S_CH)
        I('s_lshl_b32 s8, s8, 7'); I('s_add_u32 s0, s8, %d' % L.WS_FLAG)
        I('s_mul_i32 s10, s%d, %d' % (S_IDX, 14 * 1024)); I('s_add_u32 s9, s9, s10')
        I('s_mul_i32 s10, s%d, 6144' % S_CH); I('s_add_u32 s10, s9, s10')
        I('s_lshl_b32 s11, s%d, 10' % S_CH); I('s_add_u32 s9, s9, s11'); I('s_add_u32 s1, s9, %d' % (12 * 1024))
        stores = []
        def unit(idx):
            c, u = divmod(idx, 2)
            A = ACC + 16 * c + 8 * u; T = [64, 72][idx & 1]; P = [80, 84][idx & 1]
            if 'noprio' not in EXP:
                lab = 'L_fp%d' % idx
                I('s_setprio 0'); I('s_cmp_eq_u32 s%d, %d' % (S_CH, idx & 1)); I('s_cbranch_scc1 %s' % lab); I('s_setprio 1'); self.g.label(lab)
            if c == 3:
                for j in range(0, 8, 2): I('v_pk_add_f32 %s, %s, %s' % (vr(A + j, 2), vr(A + j, 2), vr(X8 + j, 2)))
            for j in range(0, 8, 2): I('v_pk_mul_f32 %s, %s, %s op_sel_hi:[1,0]' % (vr(A + j, 2), vr(A + j, 2), vr(ST, 2)))
            for j in range(8): I('v_exp_f32 v%d, v%d' % (T + j, A + j))
            for j in range(0, 8, 2): I('v_pk_add_f32 %s, %s, 1.0 op_sel_hi:[1,0]' % (vr(T + j, 2), vr(T + j, 2)))
            for j in range(8): I('v_rcp_f32 v%d, v%d' % (T + j, T + j))
            for j in range(0, 8, 2): I('v_pk_mul_f32 %s, %s, %s' % (vr(T + j, 2), vr(T + j, 2), vr(A + j, 2)))
            for j in range(0, 8, 2): I('v_cvt_pk_bf16_f32 v%d, v%d, v%d' % (P + j // 2, T + j, T + j + 1))
            if idx == 4: I('s_add_u32 s10, s10, 4096')
            if c < 3: stores.append(I('buffer_store_dwordx4 %s, v%d, %s, s10 offen offset:%d sc1' % (vr(P, 4), VL16, sr(S_WS, 4), (idx % 4) * 1024)))
            else: stores.append(I('buffer_store_dwordx4 %s, v%d, %s, s1 offen sc1' % (vr(P, 4), VL16, sr(S_WS, 4))))
        self.with_bg(lambda: [unit(i) for i in range(6)], self.b_round1(shr) + ([] if 'wolate' in EXP else self.wo_dma()), int(os.environ.get('FBG', '11')))
        unit(6)
        I('s_setprio 0')
        self.stamp('epi')
        self.p2_enter()
        bt = self.b_tasks(4, 9)
        for t in bt[:5]: g.extend(t)
        self.publish(0, 96, needs=stores)
        self.stamp('pub')
        if 'nofh' not in EXP: I('s_barrier')
        for t in bt[5:8]: g.extend(t)
        pa = self.poll_issue(P2T + 1, S_FA, P2T)
        for t in bt[8:] + (self.wo_dma() if 'wolate' in EXP else []): g.extend(t)
        I('s_waitcnt lgkmcnt(0)'); I('s_nop 0', needs=[pa])
        I('s_branch L_p2')

    def b_round1(self, need4=None):
        t = [sum([self.b_read(k) for k in range(4)], [])]
        if need4 is not None: t += self.b_dma(4, needs=need4)
        for k in range(4): t += self.b_dma(k + 5, needs=self.bread[k])
        return t

    def bhooks(self, extra=None):
        post = {5: lambda: [[Instr('v_add_u32 v%d, %d, v%d' % (DB2, 8 * 896 - 1024, DB))]] + self.b_dma(0) + self.b_dma(1), 6: lambda: self.b_dma(2) + self.b_dma(3)}
        if extra: post.update(extra)
        return dict(post=post)

    def pack_k(self, A, K8):
        I = self.I
        for j in range(8): I('v_cvt_pk_bf16_f32 v%d, v%d, v%d' % (K8 + j, A + 2 * j, A + 2 * j + 1))
        for j in (6, 7): I('v_cndmask_b32 v%d, v%d, 0, %s' % (K8 + j, K8 + j, sr(S_HIM, 2)))
    def half_units(self, As, neg):
        I = self.I; M = 64; n = '-' if neg else ''; nm = ' neg_lo:[1,0,0] neg_hi:[1,0,0]' if neg else ''
        def each(f):
            for i, A in enumerate(As): f(A, M + 6 * i)
        I('v_mov_b32 v%d, 0xff800000' % (TMP + 10))
        each(lambda A, m: (I('v_max3_f32 v%d, %sv%d, %sv%d, %sv%d' % (m, n, A, n, A + 1, n, A + 2)), I('v_max3_f32 v%d, %sv%d, %sv%d, %sv%d' % (m + 1, n, A + 8, n, A + 9, n, A + 10))))
        for j in (3, 5): each(lambda A, m: (I('v_max3_f32 v%d, v%d, %sv%d, %sv%d' % (m, m, n, A + j, n, A + j + 1)), I('v_max3_f32 v%d, v%d, %sv%d, %sv%d' % (m + 1, m + 1, n, A + 8 + j, n, A + 9 + j))))
        each(lambda A, m: I('v_max3_f32 v%d, v%d, %sv%d, %sv%d' % (m + 1, m + 1, n, A + 7, n, A + 15)))
        each(lambda A, m: I('v_max_f32 v%d, v%d, v%d' % (m, m, m + 1)))
        each(lambda A, m: I('v_mov_b32 v%d, v%d' % (m + 1, m)))
        each(lambda A, m: I('v_permlane32_swap_b32 v%d, v%d' % (m, m + 1)))
        each(lambda A, m: I('v_max_f32 v%d, v%d, v%d' % (m, m, m + 1)))
        each(lambda A, m: I('v_mul_f32 v%d, -v%d, v%d' % (m, ST, m)))
        each(lambda A, m: I('v_cndmask_b32 v%d, v%d, v%d, %s' % (m + 1, m, TMP + 10, sr(S_HIM, 2))))
        for j in range(0, 16, 2):
            sel = 'op_sel_hi:[1,0,0]' if j < 12 else 'op_sel:[0,0,1] op_sel_hi:[1,0,1]'
            each(lambda A, m: I('v_pk_fma_f32 %s, %s, %s, %s %s%s' % (vr(A + j, 2), vr(A + j, 2), vr(ST, 2), vr(m, 2), sel, nm)))
        for j in range(16): each(lambda A, m: I('v_exp_f32 v%d, v%d' % (A + j, A + j)))
        each(lambda A, m: (I('v_pk_add_f32 %s, %s, %s' % (vr(m + 2, 2), vr(A, 2), vr(A + 2, 2))), I('v_pk_add_f32 %s, %s, %s' % (vr(m + 4, 2), vr(A + 8, 2), vr(A + 10, 2)))))
        for j in (4, 6): each(lambda A, m: (I('v_pk_add_f32 %s, %s, %s' % (vr(m + 2, 2), vr(m + 2, 2), vr(A + j, 2))), I('v_pk_add_f32 %s, %s, %s' % (vr(m + 4, 2), vr(m + 4, 2), vr(A + 8 + j, 2)))))
        each(lambda A, m: I('v_pk_add_f32 %s, %s, %s' % (vr(m + 2, 2), vr(m + 2, 2), vr(m + 4, 2))))
        each(lambda A, m: I('v_add_f32 v%d, v%d, v%d' % (m, m + 2, m + 3)))
        each(lambda A, m: I('v_mov_b32 v%d, v%d' % (m + 1, m)))
        each(lambda A, m: I('v_permlane32_swap_b32 v%d, v%d' % (m, m + 1)))
        each(lambda A, m: I('v_add_f32 v%d, v%d, v%d' % (m, m, m + 1)))
        each(lambda A, m: I('v_rcp_f32 v%d, v%d' % (m, m)))
        for j in range(0, 16, 2): each(lambda A, m: I('v_pk_mul_f32 %s, %s, %s op_sel_hi:[1,0]' % (vr(A + j, 2), vr(A + j, 2), vr(m, 2))))
        for j in range(8): each(lambda A, m: I('v_cvt_pk_bf16_f32 v%d, v%d, v%d' % (A + j, A + 2 * j, A + 2 * j + 1)))
    def phi_mfma(self, A, K8, WP):
        I = self.I
        I('v_mfma_f32_32x32x16_bf16 %s, %s, %s, 0' % (vr(A, 16), ar(WP, 4), vr(K8, 4)))
        I('v_mfma_f32_32x32x16_bf16 %s, %s, %s, %s' % (vr(A, 16), ar(WP + 4, 4), vr(K8 + 4, 4), vr(A, 16)))
    def softmax_unit(self, A, sreg=None):
        I = self.I
        EP, EN, M = 64, 80, TMP
        mx, nm, t, u = M, M + 1, M + 2, M + 4
        I('v_mov_b32 v%d, 0xff800000' % (M + 10))
        m2, n2 = M + 6, M + 7
        for (a, b, o) in ((mx, nm, 0), (m2, n2, 8)):
            I('v_max3_f32 v%d, v%d, v%d, v%d' % (a, A + o, A + o + 1, A + o + 2)); I('v_max3_f32 v%d, -v%d, -v%d, -v%d' % (b, A + o, A + o + 1, A + o + 2))
        for j in (3, 5):
            for (a, b, o) in ((mx, nm, 0), (m2, n2, 8)):
                I('v_max3_f32 v%d, v%d, v%d, v%d' % (a, a, A + o + j, A + o + j + 1)); I('v_max3_f32 v%d, v%d, -v%d, -v%d' % (b, b, A + o + j, A + o + j + 1))
        I('v_max3_f32 v%d, v%d, v%d, v%d' % (m2, m2, A + 7, A + 15)); I('v_max3_f32 v%d, v%d, -v%d, -v%d' % (n2, n2, A + 7, A + 15))
        I('v_max_f32 v%d, v%d, v%d' % (mx, mx, m2)); I('v_max_f32 v%d, v%d, v%d' % (nm, nm, n2))
        I('v_permlane32_swap_b32 v%d, v%d' % (mx, nm)); I('v_max_f32 v%d, v%d, v%d' % (t, mx, nm))
        I('v_mul_f32 v%d, -v%d, v%d' % (t, ST, t)); I('v_mov_b32 v%d, v%d' % (u, t)); I('v_permlane32_swap_b32 v%d, v%d' % (t, u))
        I('v_cndmask_b32 v%d, v%d, v%d, %s' % (t + 1, t, M + 10, sr(S_HIM, 2))); I('v_cndmask_b32 v%d, v%d, v%d, %s' % (u + 1, u, M + 10, sr(S_HIM, 2)))
        for j in range(0, 16, 2):
            sel = 'op_sel_hi:[1,0,0]' if j < 12 else 'op_sel:[0,0,1] op_sel_hi:[1,0,1]'
            I('v_pk_fma_f32 %s, %s, %s, %s %s' % (vr(EP + j, 2), vr(A + j, 2), vr(ST, 2), vr(t, 2), sel))
            I('v_pk_fma_f32 %s, %s, %s, %s %s neg_lo:[1,0,0] neg_hi:[1,0,0]' % (vr(EN + j, 2), vr(A + j, 2), vr(ST, 2), vr(u, 2), sel))
        for j in range(16): I('v_exp_f32 v%d, v%d' % (EP + j, EP + j)); I('v_exp_f32 v%d, v%d' % (EN + j, EN + j))
        sp, sn = M + 6, M + 8
        I('v_pk_add_f32 %s, %s, %s' % (vr(sp, 2), vr(EP, 2), vr(EP + 2, 2))); I('v_pk_add_f32 %s, %s, %s' % (vr(sn, 2), vr(EN, 2), vr(EN + 2, 2)))
        for j in range(4, 16, 2):
            I('v_pk_add_f32 %s, %s, %s' % (vr(sp, 2), vr(sp, 2), vr(EP + j, 2))); I('v_pk_add_f32 %s, %s, %s' % (vr(sn, 2), vr(sn, 2), vr(EN + j, 2)))
        I('v_add_f32 v%d, v%d, v%d' % (sp, sp, sp + 1)); I('v_add_f32 v%d, v%d, v%d' % (sn, sn, sn + 1))
        I('v_permlane32_swap_b32 v%d, v%d' % (sp, sn)); I('v_add_f32 v%d, v%d, v%d' % (t, sp, sn))
        if sreg is None:
            I('v_rcp_f32 v%d, v%d' % (t, t)); I('v_mov_b32 v%d, v%d' % (u, t)); I('v_permlane32_swap_b32 v%d, v%d' % (t, u))
            for j in range(0, 16, 2):
                I('v_pk_mul_f32 %s, %s, %s op_sel_hi:[1,0]' % (vr(EP + j, 2), vr(EP + j, 2), vr(t, 2)))
                I('v_pk_mul_f32 %s, %s, %s op_sel_hi:[1,0]' % (vr(EN + j, 2), vr(EN + j, 2), vr(u, 2)))
            for j in range(8):
                I('v_cvt_pk_bf16_f32 v%d, v%d, v%d' % (A + j, EP + 2 * j, EP + 2 * j + 1)); I('v_cvt_pk_bf16_f32 v%d, v%d, v%d' % (A + 8 + j, EN + 2 * j, EN + 2 * j + 1))
        else:
            I('v_mov_b32 v%d, v%d' % (u, t))
            for j in range(2): I('v_cvt_pk_bf16_f32 v%d, v%d, v%d' % (A + j, EP + 2 * j, EP + 2 * j + 1))
            I('v_permlane32_swap_b32 v%d, v%d' % (t, u)); I('v_rcp_f32 v%d, v%d' % (u, u))
            for j in range(2, 8): I('v_cvt_pk_bf16_f32 v%d, v%d, v%d' % (A + j, EP + 2 * j, EP + 2 * j + 1))
            I('v_mul_f32 v%d, v%d, v%d' % (u, u, t)); I('v_mov_b32 v%d, v%d' % (sreg, t))
            for j in range(0, 16, 2): I('v_pk_mul_f32 %s, %s, %s op_sel_hi:[1,0]' % (vr(EN + j, 2), vr(EN + j, 2), vr(u, 2)))
            for j in range(8): I('v_cvt_pk_bf16_f32 v%d, v%d, v%d' % (A + 8 + j, EN + 2 * j, EN + 2 * j + 1))

    def wphi_dma(self, n, head0_s):
        I = self.I; out = []
        I('s_mul_i32 s8, s%d, 1568' % head0_s); I('s_lshl_b32 s9, s%d, 10' % S_WAVE); I('s_add_u32 s8, s8, s9'); I('s_add_u32 s9, s9, %d' % L_WPHI)
        for i in range(n):
            I('s_add_u32 m0, s9, %d' % (8192 * i)); I('s_add_u32 s10, s8, %d' % (8192 * i))
            out.append(I('buffer_load_dwordx4 v%d, %s, s10 offen lds' % (VL16, sr(S_PHI, 4))))
        return out
    def wphi_read(self, nheads, hoff_s, WP):
        I = self.I; T = TMP + 9
        I('v_lshrrev_b32 v%d, 5, v%d' % (T, VLANE)); I('v_lshlrev_b32 v%d, 2, v%d' % (T, T)); I('v_bfe_u32 v%d, v%d, 2, 2' % (T + 1, VLANE)); I('v_add_u32 v%d, v%d, v%d' % (T, T, T + 1))
        I('v_mul_u32_u24 v%d, 56, v%d' % (T, T)); I('v_add_u32 v%d, s%d, v%d' % (T, hoff_s, T))
        I('v_bfe_u32 v%d, v%d, 4, 1' % (T + 1, VLANE)); I('v_lshlrev_b32 v%d, 2, v%d' % (T + 1, T + 1)); I('v_and_or_b32 v%d, v%d, 3, v%d' % (T + 1, VLANE, T + 1))
        I('v_min_u32 v%d, 6, v%d' % (T + 1, T + 1)); I('v_lshl_add_u32 v%d, v%d, 3, v%d' % (T, T + 1, T))
        for i in range(nheads):
            for s in range(2):
                for h in range(2):
                    I('ds_read_b64_tr_b16 %s, v%d offset:%d' % (ar(WP + 8 * i + 4 * s + 2 * h, 2), T, i * 1568 + (16 * s + 8 * h) * 56))

    def kv_common(self):
        I = self.I; g = self.g
        self.tagbase = 'k'
        self.srd(S_W, 18, 448 * 2688)
        I('s_lshl_b32 s8, s%d, 2' % S_IDX); I('s_lshr_b32 s9, 0xdb9630, s8'); I('s_and_b32 s9, s9, 15')
        I('s_lshr_b32 s10, 0x322333, s8'); I('s_and_b32 s10, s10, 15')
        I('s_mul_i32 s11, s9, 56'); I('s_and_b32 s%d, s11, -16' % S_WSO); I('s_and_b32 s11, s11, 8')
        I('s_mul_i32 s8, s10, 3'); I('s_add_u32 s8, s8, 1')
        I('v_cmp_lt_u32 vcc, 13, v7'); I('v_subrev_u32 v8, 14, v7'); I('v_cndmask_b32 v8, v7, v8, vcc'); I('v_min_u32 v8, s8, v8')
        I('v_mov_b32 v9, 896'); I('v_mov_b32 v10, 1792'); I('v_cndmask_b32 v9, v9, v10, vcc')
        I('v_mul_u32_u24 v6, 2688, v6'); I('v_add_u32 v6, v6, v9'); I('v_lshl_add_u32 v%d, v8, 4, v6' % DW)
        I('s_mov_b32 s0, s9'); I('s_mov_b32 s1, s10'); I('s_mov_b32 s%d, s11' % S_NONCE)
        dms = self.start_stream(2688)
        I('s_mul_i32 s10, s%d, 224' % S_CH); I('s_add_u32 s10, s10, s%d' % S_NONCE); I('s_add_u32 s10, s10, %d' % WPART)
        self.read_addrs(True)
        PW, HO, UA, VW, ZV = 48, 50, 51, 54, 58
        def kvx():
            I('s_mov_b32 s%d, s0' % S_H0); I('s_mov_b32 s%d, s1' % S_NH)
        def kvl():
            I('s_mov_b32 s%d, s%d' % (S_R0, S_H0))
            if ATOM:
                I('s_cmp_lg_u32 s%d, 0' % S_RB); I('s_cbranch_scc1 L_nozero')
                Z = 68
                for i in range(4): I('v_mov_b32 v%d, 0' % (Z + i))
                I('s_lshl_b32 s8, s%d, 13' % S_H0); I('s_lshl_b32 s9, s%d, 10' % S_WAVE); I('s_add_u32 s8, s8, s9'); I('s_add_u32 s8, s8, %d' % L.WS_KV)
                self.U('buffer_store_dwordx4 %s, v%d, %s, s8 offen sc1' % (vr(Z, 4), VL16, sr(S_WS, 4)))
                I('s_add_u32 s8, s8, 8192'); self.U('buffer_store_dwordx4 %s, v%d, %s, s8 offen sc1' % (vr(Z, 4), VL16, sr(S_WS, 4)))
                I('s_add_u32 s8, s8, 8192'); I('s_cmp_eq_u32 s%d, 3' % S_NH); I('s_cselect_b32 s8, s8, 0x7f000000')
                self.U('buffer_store_dwordx4 %s, v%d, %s, s8 offen sc1' % (vr(Z, 4), VL16, sr(S_WS, 4))); I('s_nop 1')
                self.g.label('L_nozero')
            for gp in post4(): g.extend(gp)
        kv_pre = lambda: self.pre_loop(True, 8, kvx, kvl)
        rot = lambda i: [((i + cc) % 3, AW + i, 56 * ((i + cc) % 3)) for cc in range(3)]
        tiles = [dict(t=rot(i), cs=(i < 3)) for i in range(4)]
        self.bdma, self.bread = {}, {}; self.nslot = 5
        def pre2():
            pass
        def post2():
            with g.capture() as a:
                I('s_mov_b32 s8, %d' % L_WPHI)
                self.wphi_read(3, 8, 88)
            return [a]
        def post3():
            with g.capture() as a:
                I('s_or_b32 s8, s%d, s%d' % (S_RB, S_WAVE)); I('s_cmp_lg_u32 s8, 0'); I('s_cbranch_scc1 L_nozf')
                I('s_lshl_b32 s8, s%d, 7' % S_IDX); I('s_add_u32 s8, s8, %d' % (L.WS_KVZ + 0x4000))
                self.publish(8, TMP + 8).kind = 'untracked'
                self.g.label('L_nozf')
            return [a]
        self.kvr = (PW, HO, UA, VW, ZV)
        def post4():
            A, B, C = 64, 65, 66; out = []
            with g.capture() as a:
                I('v_and_b32 v%d, 31, v%d' % (A, VLANE)); I('v_lshlrev_b32 v%d, 6, v%d' % (A, A)); I('s_lshl_b32 s8, s%d, 11' % S_RT); I('v_add_u32 v%d, s8, v%d' % (A, A))
                I('v_bfe_u32 v%d, v%d, 1, 2' % (B, VLANE)); I('v_lshl_add_u32 v%d, v%d, 4, v%d' % (A, B, A))
                I('v_lshrrev_b32 v%d, 5, v%d' % (B, VLANE))
                I('v_lshl_add_u32 v%d, v%d, 13, v%d' % (PW, B, A)); I('s_lshl_b32 s9, s%d, 5' % S_CH); I('v_xor_b32 v%d, s9, v%d' % (PW, PW)); I('v_xor_b32 v%d, 16, v%d' % (PW + 1, PW))
                I('s_add_u32 s8, s8, %d' % L_V); I('v_add_u32 v%d, s8, v%d' % (HO, VL16))
                I('v_lshl_add_u32 v%d, v%d, 3, v%d' % (VW, B, A)); I('v_add_u32 v%d, %d, v%d' % (VW, L_V, VW))
                for q in range(1, 4): I('v_xor_b32 v%d, %d, v%d' % (VW + q, 16 * q, VW))
                I('v_lshlrev_b32 v%d, 10, v%d' % (UA + 2, B)); I('v_and_b32 v%d, 31, v%d' % (A, VLANE)); I('v_lshl_add_u32 v%d, v%d, 2, v%d' % (UA + 2, A, UA + 2))
            out.append(a)
            with g.capture() as a:
                I('v_lshrrev_b32 v%d, 5, v%d' % (A, VLANE)); I('v_bfe_u32 v%d, v%d, 2, 2' % (B, VLANE)); I('v_lshl_add_u32 v%d, v%d, 2, v%d' % (A, A, B))
                I('v_bfe_u32 v%d, v%d, 4, 1' % (B, VLANE)); I('v_bfe_u32 v%d, v%d, 1, 1' % (C, VLANE)); I('v_lshl_add_u32 v%d, v%d, 1, v%d' % (B, B, C))
                I('v_lshrrev_b32 v%d, 1, v%d' % (C, A)); I('v_xor_b32 v%d, v%d, v%d' % (B, B, C)); I('v_lshlrev_b32 v%d, 6, v%d' % (A, A)); I('v_lshl_add_u32 v%d, v%d, 4, v%d' % (A, B, A))
                I('v_and_b32 v%d, 1, v%d' % (B, VLANE)); I('v_lshl_add_u32 v%d, v%d, 3, v%d' % (A, B, A))
                I('s_lshl_b32 s10, s%d, 13' % S_WAVE); I('v_add_u32 v%d, s10, v%d' % (UA + 1, A))
                I('s_lshr_b32 s9, s%d, 1' % S_WAVE); I('s_lshl_b32 s10, s9, 13'); I('s_add_u32 s10, s10, %d' % L_V); I('v_add_u32 v%d, s10, v%d' % (UA, A))
                I('s_add_u32 s10, s9, s%d' % S_H0); I('s_lshl_b32 s10, s10, 13'); I('s_and_b32 s8, s%d, 1' % S_WAVE); I('s_lshl_b32 s8, s8, 7'); I('s_add_u32 s10, s10, s8')
                I('s_add_u32 s0, s10, %d' % L.WS_KV)
                I('s_add_u32 s9, s9, 2'); I('s_cmp_lt_u32 s9, s%d' % S_NH); I('s_cselect_b32 s%d, 1, 0' % S_NH)
                I('s_lshl_b32 s8, s%d, 4' % S_IDX); I('s_add_u32 s8, s8, s%d' % S_RB); I('s_lshl_b32 s8, s8, 7'); I('s_add_u32 s1, s8, %d' % L.WS_KVZ)
                I('s_lshl_b32 s%d, s%d, 7' % (S_H0, S_IDX)); I('s_add_u32 s%d, s%d, %d' % (S_H0, S_H0, L.WS_KVZ + 0x4000)); I('v_mov_b32 v%d, 0' % ZV)
            out.append(a)
            return out
        kv_pre()
        def wpd():
            with g.capture() as a: self.wphi_dma(1, S_R0)
            return [a]
        self.pre_post = {2: wpd}
        hk = self.bhooks({4: post2, NST: post3})
        p6 = hk['post'][6]
        def post6():
            with g.capture() as a: self.poll_issue(ZV, S_H0, ZV + 1)
            return [a] + p6()
        hk['post'][6] = post6
        tl = [(c, 4, c) for c in range(3)]
        self.gemm(tiles, 2688, dms, 'k', hk, tl)
        def kb1():
            self.slot4_setup()
            I('v_mov_b32 v%d, %d' % (TMP, L_KC))
            return [I('ds_write_b32 v%d, v%d' % (TMP, ZV))]
        self.finish_stats(tl, L.LOG2E, 'k', kb1)
        I('s_cmp_eq_u32 s%d, 1' % S_CH); I('s_cbranch_scc1 L_kv_v')

    def kv_rest(self, tg, As, wr):
        I = self.I; g = self.g; PW, HO, U, VW, ZV = self.kvr
        self.with_bg(lambda: self.half_units(As, tg == 'v'), self.b_round1(), int(os.environ.get('KBG', '14')))
        for i, A in enumerate(As):
            wr += [I('ds_write_b128 v%d, %s offset:%d' % (PW + q, vr(A + 4 * q, 4), L_PHI + 16384 * i)) for q in range(2)]
        if tg == 'k': self.poll_check('z' + tg, ZV, S_H0, ZV + 1)
        for k in range(5, 9): g.extend(self.b_read(k))
        I('s_add_u32 s10, s0, 4096')
        I('s_waitcnt lgkmcnt(0)')
        I('s_barrier')
        self.stamp('bb')
        U_ = self.U
        if tg == 'k':
            def unit(j):
                def rd(s):
                    b = 64 + 8 * (s % 4)
                    for h in range(2):
                        I('ds_read_b64_tr_b16 %s, v%d offset:%d' % (vr(b + 2 * h, 2), U, 16384 * j + (16 * s + 8 * h) * 64))
                        I('ds_read_b64_tr_b16 %s, v%d offset:%d' % (vr(b + 4 + 2 * h, 2), U + 1, 32768 * j + (16 * s + 8 * h) * 64))
                D = ACC + 16 * j
                for s in range(3): rd(s)
                for s in range(8):
                    if s + 3 < 8: rd(s + 3)
                    b = 64 + 8 * (s % 4)
                    I('v_mfma_f32_32x32x16_bf16 %s, %s, %s, %s' % (vr(D, 16), vr(b, 4), vr(b + 4, 4), vr(D, 16) if s else '0'))
            def atom(j):
                for r in range(16):
                    d = (r & 3) + 8 * (r >> 2)
                    if r == 14: I('s_mov_b32 exec_hi, 0')
                    U_('buffer_atomic_add_f32 v%d, v%d, %s, s%d offen offset:%d' % (ACC + 16 * j + r, U + 2, sr(S_WS, 4), 0 if d < 16 else 10, (d % 16) * 256))
                I('s_mov_b64 exec, -1')
            I('s_setprio 2')
            unit(0)
            I('s_cmp_eq_u32 s%d, 0' % S_NH); I('s_cbranch_scc1 L_k_u1')
            unit(1)
            self.g.label('L_k_u1')
            I('s_barrier')
            I('s_nop 7'); I('s_nop 3')
            atom(0)
            I('s_cmp_eq_u32 s%d, 0' % S_NH); I('s_cbranch_scc1 L_k_a1')
            I('s_add_u32 s0, s0, 16384'); I('s_add_u32 s10, s10, 16384')
            atom(1)
            self.g.label('L_k_a1')
            I('v_mov_b32 v96, 1'); I('v_mov_b32 v97, %d' % L_KC)
            self.p2_enter()
            I('s_waitcnt vmcnt(0)')
            I('s_mov_b64 exec, 1'); I('ds_add_rtn_u32 v96, v97, v96'); I('s_mov_b64 exec, -1')
            I('v_readfirstlane_b32 s8, v96'); I('s_cmp_lg_u32 s8, 3'); I('s_cbranch_scc1 L_k_d')
            self.publish(1, 96).kind = 'untracked'
            self.g.label('L_k_d')
            I('s_setprio 0')
        else:
            I('s_sub_u32 s26, s%d, %d' % (S_BSO, 4 * 224 * 896)); I('s_sub_u32 s27, s%d, %d' % (S_STA, 4 * 4096))
            for (sb, lb) in ((26, 27), (S_BSO, S_STA)):
                for k in range(10, 14):
                    I('s_add_u32 m0, s%d, %d' % (lb, self.SLOTS[k % 5][0])); I('s_add_u32 s8, s%d, %d' % (sb, 16 * k * 896))
                    U_('buffer_load_dwordx4 v%d, %s, s8 offen lds' % (DB, sr(S_W2, 4))); U_('buffer_load_dwordx4 v%d, %s, s8 offen offset:1024 lds' % (DB2, sr(S_W2, 4)))
            I('s_barrier')
            for (sb, lo) in ((26, 4 * 2048), (S_BSO, 0)):
                I('s_sub_u32 m0, s%d, %d' % (S_ST4, lo)); I('s_add_u32 s8, s%d, %d' % (sb, 16 * 4 * 896))
                U_('buffer_load_dwordx4 v%d, %s, s8 offen lds' % (DB, sr(S_W2, 4))); U_('buffer_load_dwordx4 v%d, %s, s8 offen offset:1024 lds' % (DB2, sr(S_W2, 4)))
            I('s_mul_i32 s26, s%d, %d' % (S_RT, 112 * 896)); I('s_lshl_b32 s8, s%d, 7' % S_CG); I('s_add_u32 s26, s26, s8'); I('s_mul_i32 s27, s%d, %d' % (S_RT, 112 * 128)); I('s_mov_b32 s28, 7')
            self.g.label('L_ld3')
            I('s_mov_b32 m0, s27'); I('s_add_u32 s27, s27, 2048')
            U_('buffer_load_dwordx4 v%d, %s, s26 offen lds' % (DB, sr(S_WO, 4))); U_('buffer_load_dwordx4 v%d, %s, s26 offen offset:1024 lds' % (DB2, sr(S_WO, 4)))
            I('s_add_u32 s26, s26, %d' % (16 * 896)); I('s_sub_u32 s28, s28, 1'); I('s_cmp_lg_u32 s28, 0'); I('s_cbranch_scc1 L_ld3')
            self.p2_enter()
        self.stamp('kvdone')
        pa = self.poll_issue(P2T + 1, S_FA, P2T)
        I('s_waitcnt vmcnt(0)')
        I('s_barrier')
        self.bdma[4] = []
        for t in self.b_tasks(4, 5): g.extend(t)
        I('s_waitcnt lgkmcnt(0)')
        I('s_branch L_p2')

    def kv_k(self):
        I = self.I; g = self.g; PW, HO, U, VW, ZV = self.kvr
        wr = []
        for i in range(3):
            N = 80 + 8 * i
            self.pack_k(ACC + 16 * i, N)
            wr += [I('ds_write_b128 v%d, %s offset:%d' % (HO, vr(N + 4 * q, 4), 8192 * i + 1024 * q)) for q in range(2)]
        I('s_barrier', needs=wr)
        for i in range(3): self.phi_mfma(ACC + 16 * i, 80 + 8 * i, 88 + 8 * i)
        self.kv_rest('k', [ACC, ACC + 16, ACC + 32], [])

    def kv_v(self):
        I = self.I; g = self.g; PW, HO, U, VW, ZV = self.kvr
        I('v_cndmask_b32 v%d, v%d, 0, %s' % (CS, ST + 1, sr(S_HIM, 2))); I('v_cndmask_b32 v%d, 0, 1.0, %s' % (CS + 1, sr(S_HIM, 2)))
        PV = [88, 96, 112]
        def vpath(i):
            A = ACC + 16 * i
            for j in range(0, 12, 2): I('v_pk_mul_f32 %s, %s, %s op_sel:[0,1] op_sel_hi:[1,1]' % (vr(A + j, 2), vr(A + j, 2), vr(ST, 2)))
            for j in (12, 14): I('v_pk_fma_f32 %s, %s, %s, %s op_sel:[0,0,1] op_sel_hi:[1,0,1]' % (vr(A + j, 2), vr(A + j, 2), vr(CS, 2), vr(CS, 2)))
            for j in range(8): I('v_cvt_pk_bf16_f32 v%d, v%d, v%d' % (PV[i] + j, A + 2 * j, A + 2 * j + 1))
        vpath(0); vpath(1)
        I('s_barrier')
        rd = [I('ds_read_b128 %s, v%d offset:%d' % (vr(64 + 8 * i + 4 * q, 4), HO, 8192 * i + 1024 * q)) for i in range(3) for q in range(2)]
        vpath(2)
        wr = []
        for i in range(3):
            self.phi_mfma(ACC + 16 * i, 64 + 8 * i, 88 + 8 * i)
            wr += [I('ds_write_b64 v%d, %s offset:%d' % (VW + q, vr(PV[i] + 2 * q, 2), 8192 * i), needs=rd[2 * i:2 * i + 2]) for q in range(4)]
        self.kv_rest('v', [ACC, ACC + 16, ACC + 32], wr)
    _uid = 0
    def uid(self):
        K._uid += 1
        return str(K._uid)

    def q(self):
        I = self.I; g = self.g
        self.tagbase = 'q'
        self.srd(S_W, 18, 448 * 2688)
        I('v_mul_u32_u24 v6, 2688, v6'); I('v_lshl_add_u32 v%d, v7, 4, v6' % DW)
        I('s_mul_i32 s%d, s%d, 448' % (S_WSO, S_IDX))
        dms = self.start_stream(2688)
        I('s_mul_i32 s10, s%d, 224' % S_CH); I('s_add_u32 s10, s10, %d' % WPART)
        self.read_addrs(True)
        self.pre_loop(False, 14, lambda: I('s_lshl_b32 s%d, s%d, 3' % (S_H0, S_IDX)))
        def wpd():
            with g.capture() as a: self.wphi_dma(2, S_H0)
            return [a]
        self.pre_post = {2: wpd}
        tiles = [dict(t=[((i + cc) % 4, AW + i, 56 * ((i + cc) % 4)) for cc in range(4)], cs=True) for i in range(4)]
        def post2():
            with g.capture() as a:
                I('s_mul_i32 s8, s%d, %d' % (S_CH, 4 * 1568)); I('s_add_u32 s8, s8, %d' % L_WPHI)
                self.wphi_read(4, 8, 0)
            return [a]
        tl = [(c, 4, c) for c in range(4)]
        self.gemm(tiles, 2688, dms, 'q', dict(post={4: post2}), tl)
        self.finish_stats(tl, L.LOG2E, 'q')
        for i in range(4):
            self.pack_k(ACC + 16 * i, 80 + 8 * (i & 1)); self.phi_mfma(ACC + 16 * i, 80 + 8 * (i & 1), 8 * i)
        for i in range(4): self.softmax_unit(ACC + 16 * i, sreg=124 + i)
        self.stamp('soft')
        if 'noq' in EXP: return
        T = TMP
        if 'lat' in EXP:
            I('s_lshl_b32 s8, s2, 3'); I('s_add_u32 s8, s8, s%d' % S_WAVE); I('s_lshl_b32 s8, s8, 9'); I('s_add_u32 s8, s8, %d' % (15 << 20)); I('v_mov_b32 v%d, 0' % T)
            for rep_ in range(2):
                I('buffer_load_dword v%d, v%d, %s, s8 offen offset:%d sc1' % (T + 1, T, sr(S_WS, 4), 256 * rep_)); I('s_waitcnt vmcnt(0)'); self.stamp('miss')
                I('buffer_load_dword v%d, v%d, %s, s8 offen offset:%d sc1' % (T + 1, T, sr(S_WS, 4), 256 * rep_)); I('s_waitcnt vmcnt(0)'); self.stamp('l2hit')
                I('buffer_store_dword v%d, v%d, %s, s8 offen offset:%d sc1' % (T + 1, T, sr(S_WS, 4), 128 + 256 * rep_)); I('s_waitcnt vmcnt(0)'); self.stamp('st')
            self.nst = 15
        if 'qpf' in EXP:
            I('s_and_b32 s8, s2, 7'); I('s_lshl_b32 s8, s8, 2'); I('s_bfe_u32 s9, s2, 0x20003'); I('s_add_u32 s8, s8, s9')
            I('s_lshl_b32 s9, s8, 12'); I('s_lshl_b32 s10, s%d, 8' % S_WAVE); I('s_add_u32 s9, s9, s10'); I('s_add_u32 s11, s9, %d' % L.WS_FLAG)
            I('v_and_b32 v%d, 1, v%d' % (T, VLANE)); I('v_lshlrev_b32 v%d, 11, v%d' % (T, T)); I('v_and_b32 v%d, 2, v%d' % (T + 1, VLANE)); I('v_lshl_add_u32 v%d, v%d, 6, v%d' % (T, T + 1, T))
            I('s_mul_i32 s8, s8, 224'); I('s_mul_i32 s9, s%d, 14' % S_WAVE); I('s_add_u32 s8, s8, s9'); I('s_lshl_b32 s10, s8, 10'); I('s_add_u32 s9, s10, %d' % (112 * 1024))
            I('v_lshlrev_b32 v%d, 7, v%d' % (T + 2, VLANE)); I('v_add_u32 v%d, 8192, v%d' % (T + 3, T + 2))
            self.g.label('L_qpf')
            self.U('buffer_load_dword v%d, v%d, %s, s11 offen sc1' % (T + 1, T, sr(S_WS, 4))); self.U('s_waitcnt vmcnt(0)')
            I('v_cmp_ne_u32 vcc, s%d, v%d' % (S_NONCE, T + 1)); I('s_nop 1'); I('s_cbranch_vccz L_qpfd')
            self.spin_tail('L_qpf', QSL)
            self.g.label('L_qpfd')
            for so in (10, 9): I('buffer_load_dword a100, v%d, %s, s%d offen' % (T + 2, sr(S_WS, 4), so)).dst = set()
            I('s_mov_b32 exec_hi, 0xffff')
            for so in (10, 9): I('buffer_load_dword a100, v%d, %s, s%d offen' % (T + 3, sr(S_WS, 4), so)).dst = set()
            I('s_mov_b64 exec, -1')
        if ATOM:
            T = TMP
            I('v_lshrrev_b32 v%d, 4, v%d' % (T, VLANE)); I('s_lshl_b32 s8, s%d, 1' % S_IDX); I('v_add_u32 v%d, s8, v%d' % (T, T))
            I('s_mul_i32 s8, s%d, 3' % S_IDX); I('s_add_u32 s8, s8, 2'); I('v_min_u32 v%d, s8, v%d' % (T, T))
            I('v_and_b32 v%d, 15, v%d' % (T + 1, VLANE)); I('v_lshl_add_u32 v%d, v%d, 4, v%d' % (T, T, T + 1)); I('v_lshlrev_b32 v%d, 7, v%d' % (T, T))
            I('s_mov_b32 s11, %d' % L.WS_KVZ)
            I('v_lshrrev_b32 v%d, 3, v%d' % (T + 2, VLANE)); I('v_and_b32 v%d, 7, v%d' % (T + 3, VLANE)); I('v_lshlrev_b32 v%d, 4, v%d' % (T + 4, T + 3)); I('v_lshl_add_u32 v%d, v%d, 8, v%d' % (T + 4, T + 2, T + 4))
            I('s_add_u32 s8, s%d, s%d' % (S_H0, S_WAVE)); I('s_lshl_b32 s8, s8, 13'); I('s_add_u32 s0, s8, %d' % L.WS_KV); I('s_add_u32 s1, s0, 4096')
            I('v_lshrrev_b32 v%d, 1, v%d' % (T + 5, T + 3)); I('v_lshlrev_b32 v%d, 10, v%d' % (T + 5, T + 5)); I('v_and_b32 v%d, 1, v%d' % (T + 3, T + 3)); I('v_lshl_add_u32 v%d, v%d, 3, v%d' % (T + 5, T + 3, T + 5))
            I('s_lshl_b32 s8, s%d, 12' % S_WAVE); I('v_add_u32 v%d, s8, v%d' % (T + 5, T + 5))
            WA4 = 112
            for i in range(4):
                a, b, c_ = T + 6, T + 7, T + 3
                I('v_add_u32 v%d, %d, v%d' % (a, 8 * i, T + 2))
                I('v_cmp_lt_u32 vcc, 13, v%d' % a); I('v_subrev_u32 v%d, 14, v%d' % (b, a)); I('v_cndmask_b32 v%d, v%d, v%d, vcc' % (b, a, b)); I('v_cndmask_b32 v%d, 0, 4, vcc' % c_)
                if i == 3:
                    I('v_cmp_lt_u32 vcc, 27, v%d' % a); I('v_and_b32 v%d, 1, v%d' % (T + 8, a)); I('v_lshlrev_b32 v%d, 2, v%d' % (T + 8, T + 8)); I('v_cndmask_b32 v%d, v%d, v%d, vcc' % (c_, c_, T + 8))
                    I('v_bfe_u32 v%d, v%d, 1, 1' % (T + 8, a)); I('v_add_u32 v%d, 14, v%d' % (T + 8, T + 8)); I('v_cndmask_b32 v%d, v%d, v%d, vcc' % (b, b, T + 8))
                I('v_and_or_b32 v%d, v%d, 3, v%d' % (c_, b, c_)); I('v_lshrrev_b32 v%d, 2, v%d' % (b, b)); I('v_lshl_add_u32 v%d, v%d, 3, v%d' % (c_, b, c_))
                I('v_lshl_add_u32 v%d, v%d, 4, v%d' % (WA4 + i, c_, T + 5))
            I('s_lshl_b32 s8, s%d, 14' % S_CH); I('v_add_u32 v%d, s8, v%d' % (T + 2, VL16))
            self.q_scalars()
            I('s_cmp_lg_u32 s%d, 0' % S_WAVE); I('s_cbranch_scc1 L_polldkv')
            self.g.label('L_pollkv')
            self.U('buffer_load_dword v64, v%d, %s, s11 offen sc1' % (T, sr(S_WS, 4))); self.U('s_waitcnt vmcnt(0)')
            I('v_cmp_ne_u32 vcc, s%d, v64' % S_NONCE); I('s_nop 1'); I('s_cbranch_vccz L_polldkv')
            self.spin_tail('L_pollkv', QSL)
            self.g.label('L_polldkv')
            I('s_barrier')
            self.stamp('kvok')
            for i in range(8):
                I('buffer_load_dwordx4 %s, v%d, %s, s%d offen offset:%d sc1' % (vr(64 + 4 * i, 4), T + 4, sr(S_WS, 4), (i >> 1) & 1, (i & 1) * 2048 + (i >> 2) * 128))
            wr = []
            for i in range(8):
                I('v_cvt_pk_bf16_f32 v%d, v%d, v%d' % (64 + 4 * i, 64 + 4 * i, 65 + 4 * i)); I('v_cvt_pk_bf16_f32 v%d, v%d, v%d' % (65 + 4 * i, 66 + 4 * i, 67 + 4 * i))
                wr.append(I('ds_write_b64 v%d, %s offset:%d' % (WA4 + (i & 3), vr(64 + 4 * i, 2), 512 * (i >> 2))))
            self.stamp('kvld')
            qbar = lambda: (I('s_barrier', needs=wr), [I('ds_read_b128 %s, v%d offset:%d' % (ar(32 + 16 * i + 4 * s, 4), T + 2, 4096 * i + 1024 * s)) for i in range(4) for s in range(4)])
        else:
            I('v_bfe_u32 v%d, v%d, 3, 2' % (T + 2, VLANE)); I('v_lshlrev_b32 v%d, 2, v%d' % (T + 2, T + 2)); I('v_and_or_b32 v%d, v%d, 3, v%d' % (T + 2, VLANE, T + 2))
            I('v_bfe_u32 v%d, v%d, 2, 1' % (T + 3, VLANE)); I('v_mul_u32_u24 v%d, 14, v%d' % (T + 3, T + 3)); I('v_add_u32 v%d, v%d, v%d' % (T + 3, T + 3, T + 2))
            I('v_cmp_gt_u32 vcc, 14, v%d' % (T + 2)); I('v_cndmask_b32 v%d, 28, v%d, vcc' % (T + 3, T + 3))
            I('v_and_b32 v%d, 32, v%d' % (T + 2, VLANE)); I('v_lshlrev_b32 v%d, 6, v%d' % (T + 2, T + 2)); I('v_lshl_add_u32 v%d, v%d, 4, v%d' % (T + 2, T + 3, T + 2))
            I('s_lshl_b32 s8, s%d, 14' % S_CH); I('v_add_u32 v%d, s8, v%d' % (T + 2, T + 2))
            I('v_and_b32 v%d, 15, v%d' % (T, VLANE)); I('v_lshlrev_b32 v%d, 7, v%d' % (T, T))
            I('v_and_b32 v%d, 7, v%d' % (T + 3, VLANE)); I('v_lshlrev_b32 v%d, 7, v%d' % (T + 3, T + 3))
            I('s_cmp_lg_u32 s%d, 0' % S_CH); I('s_cbranch_scc1 L_noreduce')
            I('s_lshl_b32 s8, s%d, 1' % S_RB); I('s_add_u32 s8, s8, s%d' % S_IDX); I('s_lshl_b32 s8, s8, 2'); I('s_add_u32 s11, s8, s%d' % S_RT)
            I('s_lshl_b32 s0, s11, 14'); I('s_add_u32 s0, s0, %d' % L.WS_SL)
            I('s_mov_b32 s8, 0x22111000'); I('s_mov_b32 s9, 0x55544332'); I('s_lshl_b32 s10, s%d, 2' % S_RB); I('s_lshr_b64 s[8:9], s[8:9], s10'); I('s_and_b32 s8, s8, 15')
            I('s_lshl_b32 s8, s8, 11'); I('s_add_u32 s1, s8, %d' % L.WS_KVZ)
            self.g.label('L_red_poll')
            self.U('buffer_load_dword v%d, v%d, %s, s1 offen sc1' % (T + 1, T, sr(S_WS, 4))); self.U('s_waitcnt vmcnt(0)')
            I('v_cmp_ne_u32 vcc, s%d, v%d' % (S_NONCE, T + 1)); I('s_nop 1'); I('s_cbranch_vccz L_red_load')
            self.spin_tail('L_red_poll', QSL)
            self.g.label('L_red_load')
            R = 64
            def src(i): return (64 + 4 * i) if i < 15 else T + 4
            for i in range(16):
                if i % 4 == 0: I('s_add_u32 s8, s0, %d' % (1024 * i))
                I('buffer_load_dwordx4 %s, v%d, %s, s8 offen offset:%d' % (vr(src(i), 4), VL16, sr(S_WS, 4), 1024 * (i % 4)))
            I('s_lshl_b32 s8, s11, 9'); I('s_add_u32 s8, s8, %d' % L.WS_KF); I('s_lshl_b32 s9, s11, 7'); I('s_add_u32 s9, s9, %d' % L.WS_KVD)
            for i in range(2, 16):
                for j in (0, 2): I('v_pk_add_f32 %s, %s, %s' % (vr(R + 4 * (i & 1) + j, 2), vr(R + 4 * (i & 1) + j, 2), vr(src(i) + j, 2)))
            for j in (0, 2): I('v_pk_add_f32 %s, %s, %s' % (vr(R + j, 2), vr(R + j, 2), vr(R + 4 + j, 2)))
            I('v_cvt_pk_bf16_f32 v68, v64, v65'); I('v_cvt_pk_bf16_f32 v69, v66, v67')
            I('v_mov_b32 v72, v68'); I('v_mov_b32 v73, v69')
            I('v_permlane32_swap_b32 v72, v70'); I('v_permlane32_swap_b32 v73, v71')
            I('s_mov_b32 exec_hi, 0')
            I('buffer_store_dwordx4 v[68:71], v%d, %s, s8 offen sc1' % (VL16, sr(S_WS, 4)))
            I('s_mov_b64 exec, -1')
            self.stamp('red')
            I('s_waitcnt vmcnt(0)')
            self.publish(9, 72).kind = 'untracked'
            self.g.label('L_noreduce')
            I('s_add_u32 s10, s%d, s%d' % (S_H0, S_WAVE)); I('s_lshl_b32 s11, s10, 10'); I('s_add_u32 s11, s11, %d' % L.WS_KVD)
            I('s_lshl_b32 s10, s10, 12'); I('s_add_u32 s10, s10, %d' % L.WS_KF); I('s_lshl_b32 m0, s%d, 12' % S_WAVE)
            self.g.label('L_pollkv')
            self.U('buffer_load_dword v64, v%d, %s, s11 offen sc1' % (T + 3, sr(S_WS, 4))); self.U('s_waitcnt vmcnt(0)')
            I('v_cmp_ne_u32 vcc, s%d, v64' % S_NONCE); I('s_nop 1'); I('s_cbranch_vccz L_polldkv')
            self.spin_tail('L_pollkv', QSL)
            self.g.label('L_polldkv')
            self.nst = 7
            self.stamp('kvok')
            dm = [I('buffer_load_dwordx4 v%d, %s, s10 offen offset:%d lds' % (VL16, sr(S_WS, 4), 1024 * i)) for i in range(4)]
            qbar = lambda: (I('s_barrier', needs=dm), [I('ds_read_b128 %s, v%d offset:%d' % (ar(32 + 16 * i + 4 * sf, 4), T + 2, 4096 * i + 512 * sf)) for i in range(4) for sf in range(4)])
        qbar()
        N = [64, 80, ACC, ACC + 16]; O = 96
        def ost(f): I('buffer_store_dwordx4 %s, v%d, %s, s%d offen offset:%d sc1' % (vr(O + 4 * f, 4), VL16, sr(S_WS, 4), 20 if f < 4 else 21, (f % 4) * 1024))
        def mm(i):
            for s in range(4):
                I('v_mfma_f32_32x32x16_bf16 %s, %s, %s, %s' % (vr(N[i], 16), ar(32 + 16 * i + 4 * s, 4), vr(ACC + 16 * i + 4 * s, 4), vr(N[i], 16) if s else '0'))
        done = 0
        mm(0); mm(1)
        for i in range(4):
            with g.capture() as fin: self.o_fin(N[i], O + 7 * i, 124 + i)
            if i + 2 < 4:
                with g.capture() as m4: mm(i + 2)
                k = len(fin) // 4
                for j in range(4): g.extend([m4[j]] + fin[j * k:(j + 1) * k if j < 3 else None])
            else: g.extend(fin)
            while 4 * (done + 1) <= 7 * (i + 1): ost(done); done += 1
        self.stamp('ocomp')
        I('s_waitcnt vmcnt(0)')
        self.publish(22, TMP)
        self.stamp('opub')
        I('s_waitcnt vmcnt(0)')
    def q_scalars(self):
        I = self.I
        I('s_lshl_b32 s8, s%d, 2' % S_RB); I('s_add_u32 s10, s8, s%d' % S_RT); I('s_mul_i32 s8, s10, 28'); I('s_mul_i32 s9, s%d, 14' % S_IDX); I('s_add_u32 s8, s8, s9')
        I('s_mul_i32 s9, s%d, 7' % S_CH); I('s_add_u32 s8, s8, s9'); I('s_lshl_b32 s8, s8, 10'); I('s_add_u32 s20, s8, %d' % L.WS_O); I('s_add_u32 s21, s20, 4096')
        I('s_lshl_b32 s8, s10, 1'); I('s_add_u32 s8, s8, s%d' % S_IDX)
        I('s_lshl_b32 s8, s8, 1'); I('s_add_u32 s8, s8, s%d' % S_CH); I('s_lshl_b32 s8, s8, 7'); I('s_add_u32 s22, s8, %d' % L.WS_FO)
    def o_fin(self, N, O, sreg):
        I = self.I; t = TMP + 8
        I('v_fmac_f32 v%d, %s, v%d' % (N + 14, f32(1e-6), sreg)); I('v_rcp_f32 v%d, v%d' % (t, N + 14))
        for j in range(14): I('v_mul_f32 v%d, v%d, v%d' % (N + j, N + j, t))
        for j in range(7): I('v_cvt_pk_bf16_f32 v%d, v%d, v%d' % (O + j, N + 2 * j, N + 2 * j + 1))

    def p2_pre(self):
        I = self.I; g = self.g; A, B, C = 64, 65, 66; out = []
        def st(i, r): I('v_accvgpr_write_b32 a%d, v%d' % (STASH + i, r))
        with g.capture() as a:
            I('s_lshl_b32 s8, s%d, 1' % S_RG)
            I('s_mul_i32 s%d, s8, 112' % S_A0); I('s_mul_i32 s9, s%d, 14' % S_WAVE); I('s_add_u32 s%d, s%d, s9' % (S_A0, S_A0)); I('s_lshl_b32 s%d, s%d, 10' % (S_A0, S_A0))
            I('s_add_u32 s%d, s%d, %d' % (S_A1, S_A0, 112 * 1024))
            I('s_mul_i32 s%d, s8, 28' % S_OSO); I('s_mul_i32 s9, s%d, 7' % S_WAVE); I('s_add_u32 s%d, s%d, s9' % (S_OSO, S_OSO)); I('s_lshl_b32 s%d, s%d, 10' % (S_OSO, S_OSO))
            I('s_add_u32 s%d, s%d, %d' % (S_OSO, S_OSO, L.WS_O))
            I('v_lshrrev_b32 v%d, 3, v%d' % (A, VLANE)); I('v_mul_u32_u24 v%d, 896, v%d' % (A, A)); I('v_and_b32 v%d, 7, v%d' % (B, VLANE)); I('v_lshl_add_u32 v%d, v%d, 4, v%d' % (A, B, A))
            I('v_lshlrev_b32 v%d, 7, v%d' % (B, B)); st(1, A); st(2, B)
        out.append(a)
        with g.capture() as a:
            I('s_lshl_b32 s9, s%d, 3' % S_RG); I('s_add_u32 s9, s9, s%d' % S_WAVE); I('s_mul_i32 s9, s9, %d' % (8 * 896)); I('s_lshl_b32 s8, s%d, 7' % S_CG); I('s_add_u32 s%d, s9, s8' % S_XO)
            I('s_lshl_b32 s8, s%d, 12' % S_RG); I('s_lshl_b32 s9, s%d, 8' % S_WAVE); I('s_add_u32 s9, s9, s8'); I('s_add_u32 s%d, s9, %d' % (S_FA, L.WS_FLAG))
            I('s_lshl_b32 s8, s%d, 10' % S_RG); I('s_add_u32 s%d, s8, %d' % (S_FO, L.WS_FO))
            I('v_and_b32 v%d, 1, v%d' % (A, VLANE)); I('v_lshlrev_b32 v%d, 11, v%d' % (A, A)); I('v_and_b32 v%d, 2, v%d' % (B, VLANE)); I('v_lshl_add_u32 v%d, v%d, 6, v%d' % (A, B, A)); st(0, A)
        out.append(a)
        with g.capture() as a:
            I('v_lshrrev_b32 v%d, 5, v%d' % (C, VLANE)); I('v_bfe_u32 v%d, v%d, 3, 1' % (A, VLANE)); I('v_xor_b32 v%d, v%d, v%d' % (A, A, C))
            I('v_mul_u32_u24 v%d, 14, v%d' % (B, C)); I('v_bfe_u32 v%d, v%d, 2, 2' % (C, VLANE)); I('v_add_u32 v%d, v%d, v%d' % (B, B, C))
            I('v_lshlrev_b32 v%d, 7, v%d' % (B, B)); I('v_lshl_add_u32 v%d, v%d, 6, v%d' % (A, A, B))
            I('v_and_b32 v%d, 3, v%d' % (B, VLANE)); I('v_lshl_add_u32 v%d, v%d, 3, v%d' % (A, B, A))
            I('v_and_b32 v%d, 16, v%d' % (B, VLANE)); I('v_lshl_add_u32 v%d, v%d, 1, v%d' % (A, B, A))
            I('s_and_b32 s9, s%d, 1' % S_WAVE); I('s_lshl_b32 s9, s9, 6'); I('v_xor_b32 v%d, s9, v%d' % (A, A))
            I('s_mul_i32 s9, s%d, %d' % (S_CH, 224 * 128)); I('v_add_u32 v%d, s9, v%d' % (A, A))
            I('v_xor_b32 v%d, 64, v%d' % (B, A)); st(3, A); st(4, B)
            I('v_add_u32 v%d, %d, v%d' % (B, 14 * 128, B)); I('v_and_b32 v%d, 8, v%d' % (C, VLANE)); I('v_cmp_eq_u32 vcc, 0, v%d' % C); I('v_cndmask_b32 v%d, v%d, v%d, vcc' % (B, B, A)); st(5, B)
        out.append(a)
        return out
    def p2_enter(self):
        T = P2T
        for i, r in enumerate((T + 1, T + 2, T + 3, T + 8, T + 9, T + 10)): self.I('v_accvgpr_read_b32 v%d, a%d' % (r, STASH + i))

    def phase2(self):
        I = self.I; g = self.g; T = P2T
        XO, XR, WA = T + 2, T + 4, T + 8
        self.nst = 7
        if 'start' in EXP or 'stg' in EXP: self.nst = 15
        self.poll_check('A', T + 1, S_FA, T)
        self.stamp('hok')
        RING = 64; NR = 15
        self.bdma = {k: [] for k in range(14)}
        def load(n):
            k, a = divmod(n, 2); r = RING + 4 * (n % NR); base = S_A1 if a else S_A0
            I('buffer_load_dwordx4 %s, v%d, %s, s%d offen offset:%d' % (vr(r, 4), VL16, sr(S_WS, 4), base, (k % 4) * 1024))
            if k % 4 == 3: I('s_add_u32 s%d, s%d, 4096' % (base, base))
        def wo_read(kk, dst):
            G, f = divmod(kk, 7)
            for pp in range(2):
                p = 4 * f + 2 * pp; hl = 4 * G + p // 7; i = p % 7
                areg = WA + 2 if i == 6 else WA + (i & 1)
                I('ds_read_b64_tr_b16 %s, v%d offset:%d' % (ar(dst + 2 * pp, 2), areg, L_WO + (28 * hl + 2 * i) * 128))
        EWB, SWB, ORD, GRD, SRD_ = 124, 125, 126, 127, 139
        def tail_addr():
            A, B = 142, 143
            I('v_and_b32 v%d, 31, v%d' % (A, VLANE)); I('v_lshlrev_b32 v%d, 7, v%d' % (A, A)); I('v_and_b32 v%d, 7, v%d' % (B, VLANE)); I('v_lshl_add_u32 v%d, v%d, 4, v%d' % (A, B, A))
            I('v_lshrrev_b32 v%d, 5, v%d' % (B, VLANE)); I('v_lshl_add_u32 v%d, v%d, 3, v%d' % (A, B, A))
            I('s_lshl_b32 s8, s%d, 13' % S_WAVE); I('s_add_u32 s8, s8, %d' % L_XG); I('v_add_u32 v%d, s8, v%d' % (EWB, A))
            I('s_lshl_b32 s8, s%d, 13' % S_CH); I('s_bfe_u32 s9, s%d, 0x10001' % S_WAVE); I('s_lshl_b32 s10, s9, 12'); I('s_add_u32 s8, s8, s10'); I('s_add_u32 s8, s8, %d' % L_XS)
            I('v_add_u32 v%d, s8, v%d' % (SWB, A)); I('s_and_b32 s8, s%d, 1' % S_WAVE); I('s_lshl_b32 s8, s8, 6'); I('v_xor_b32 v%d, s8, v%d' % (SWB, SWB))
            I('s_mul_i32 s9, s9, 28'); I('s_mul_i32 s8, s%d, 14' % S_CH); I('s_add_u32 s9, s9, s8'); I('s_lshl_b32 s9, s9, 10')
            I('v_add_u32 v%d, s9, v%d' % (ORD, VL16))
            I('v_lshrrev_b32 v%d, 3, v%d' % (A, VLANE)); I('v_and_b32 v%d, 7, v%d' % (B, VLANE)); I('v_xor_b32 v%d, v%d, v%d' % (B, B, A))
            I('v_lshlrev_b32 v%d, 7, v%d' % (A, A)); I('v_lshl_add_u32 v%d, v%d, 4, v%d' % (A, B, A)); I('s_lshl_b32 s8, s%d, 10' % S_WAVE); I('s_add_u32 s8, s8, %d' % L_XG)
            I('v_add_u32 v%d, s8, v%d' % (GRD, A)); I('v_add_u32 v%d, %d, v%d' % (SRD_, L_XS - L_XG, GRD))
            I('s_mul_i32 s23, s%d, 7168' % S_WAVE); I('v_mov_b32 v142, %d' % L_CNT)
            I('s_mov_b32 s10, 0x00003f80'); I('s_mov_b32 s11, 0x3f800000'); I('s_mov_b32 s26, %s' % f32(-1.0 / L.LOG2E)); I('s_mov_b32 s27, s26')
        for n in range(NR): load(n)
        nl = NR
        for ki in range(14):
            for a in range(2):
                n = 2 * ki + a; r = RING + 4 * (n % NR)
                for b in range(2):
                    I('v_mfma_f32_32x32x16_bf16 %s, %s, %s, %s' % (vr(16 * (2 * a + b), 16), ar(8 * ki + 4 * b, 4), vr(r, 4), vr(16 * (2 * a + b), 16) if ki else '0'))
                if nl < 28:
                    load(nl); nl += 1
                    if nl == 28: I('buffer_load_dwordx4 %s, v%d, %s, s100 offen' % (vr(XR, 4), XO, sr(S_X, 4)))
            if ki == 0:
                for k in range(9, 14): g.extend(self.b_read(k))
            if ki == 2: tail_addr()
            if ki == 12:
                I('s_cmp_lg_u32 s%d, 0' % S_WAVE); I('s_cbranch_scc1 L_noe1')
                self.U('buffer_load_dword v%d, v%d, %s, s99 offen sc1' % (T, T + 3, sr(S_WS, 4)))
                self.g.label('L_noe1')
            if ki == 6: I('s_waitcnt lgkmcnt(0)'); I('s_barrier')
            if ki >= 7:
                for kk in (2 * (ki - 7), 2 * (ki - 7) + 1): wo_read(kk, 4 * kk)
        self.stamp('gdone')
        EW = 64
        wr = []
        for b in range(2):
            for Q in range(4):
                I('v_xor_b32 v%d, %d, v%d' % (EW + 4 * b + Q, 16 * (4 * b + Q), EWB))
                for a in range(2):
                    t = 16 * (2 * a + b)
                    for j in (2 * Q, 2 * Q + 1): I('v_cvt_pk_bf16_f32 v%d, v%d, v%d' % (t + j, t + 2 * j, t + 2 * j + 1))
                    wr.append(I('ds_write_b64 v%d, %s offset:%d' % (EW + 4 * b + Q, vr(t + 2 * Q, 2), 4096 * a)))
        I('s_cmp_lg_u32 s%d, 0' % S_WAVE); I('s_cbranch_scc1 L_noe2')
        self.U('s_waitcnt vmcnt(0)')
        I('v_cmp_ne_u32 vcc, s%d, v%d' % (S_NONCE, T)); I('s_nop 1'); I('s_cmp_eq_u64 vcc, 0'); I('s_cselect_b32 s8, 1, 0'); I('v_mov_b32 v143, s8')
        self.U('ds_write_b32 v142, v143')
        self.g.label('L_noe2')
        I('s_waitcnt lgkmcnt(0)')
        I('s_barrier')
        self.stamp('e2')
        I('ds_read_b32 v143, v142')
        for src in range(8): I('ds_read_b128 %s, v%d offset:%d' % (vr(8 + 4 * src, 4), GRD, 8192 * src))
        for j in range(4): I('v_lshlrev_b32 v%d, 16, v%d' % (76 + 2 * j, XR + j)); I('v_and_b32 v%d, s%d, v%d' % (77 + 2 * j, S_MASK, XR + j))
        I('s_add_u32 s24, s%d, 4096' % S_OSO)
        I('v_readfirstlane_b32 s9, v143')
        def odma():
            for i in range(7):
                if i == 0 or i == 4: I('s_add_u32 m0, s23, %d' % (L_O + 1024 * i)); I('s_nop 0')
                self.U('buffer_load_dwordx4 v%d, %s, s%d offen offset:%d lds' % (VL16, sr(S_WS, 4), S_OSO if i < 4 else 24, 1024 * (i % 4)))
        I('s_cmp_eq_u32 s9, 0'); I('s_cbranch_scc1 L_olate1')
        odma()
        self.g.label('L_olate1')
        for src in range(8):
            for j in range(4):
                I('v_dot2_f32_bf16 v%d, v%d, s10, %s' % (2 * j, 8 + 4 * src + j, 'v%d' % (2 * j) if src else '0'))
                I('v_dot2_f32_bf16 v%d, v%d, s11, %s' % (2 * j + 1, 8 + 4 * src + j, 'v%d' % (2 * j + 1) if src else '0'))
        I('s_cmp_lg_u32 s9, 0'); I('s_cbranch_scc1 L_oearly')
        I('s_cmp_lg_u32 s%d, %d' % (S_WAVE, 9 if 'noq' in EXP else 0)); I('s_cbranch_scc1 L_polldO')
        self.g.label('L_pollO')
        self.U('buffer_load_dword v%d, v%d, %s, s99 offen sc1' % (WA, T + 3, sr(S_WS, 4))); self.U('s_waitcnt vmcnt(0)')
        I('v_cmp_ne_u32 vcc, s%d, v%d' % (S_NONCE, WA)); I('s_nop 1'); I('s_cbranch_vccz L_polldO')
        self.spin_tail('L_pollO', 3)
        self.g.label('L_polldO')
        I('s_barrier')
        odma()
        self.g.label('L_oearly')
        self.stamp('ook')
        for j in range(8): I('v_exp_f32 v%d, v%d' % (8 + j, j))
        SW = 72
        for q in range(4): I('v_xor_b32 v%d, %d, v%d' % (SW + q, 16 * q, SWB))
        for j in range(0, 8, 2): I('v_pk_add_f32 %s, %s, 1.0 op_sel_hi:[1,0]' % (vr(8 + j, 2), vr(8 + j, 2)))
        for j in range(8): I('v_rcp_f32 v%d, v%d' % (8 + j, 8 + j))
        for j in range(0, 8, 2): I('v_pk_mul_f32 %s, %s, s[26:27]' % (vr(j, 2), vr(j, 2)))
        for j in range(0, 8, 2): I('v_pk_mul_f32 %s, %s, %s' % (vr(j, 2), vr(j, 2), vr(8 + j, 2)))
        I('s_waitcnt vmcnt(0)')
        I('s_barrier')
        self.stamp('e3')
        OF = 84; SA = 48
        def ord_(kk): I('ds_read_b128 %s, v%d offset:%d' % (vr(OF + 4 * (kk % 10), 4), ORD, 1024 * kk))
        for kk in range(8): ord_(kk)
        for kk in range(14):
            I('v_mfma_f32_32x32x16_bf16 %s, %s, %s, %s' % (vr(SA, 16), ar(4 * kk, 4), vr(OF + 4 * (kk % 10), 4), vr(SA, 16) if kk else '0'))
            if kk + 8 < 14: ord_(kk + 8)
        wr = []
        for q in range(4):
            for j in (2 * q, 2 * q + 1): I('v_cvt_pk_bf16_f32 v%d, v%d, v%d' % (SA + j, SA + 2 * j, SA + 2 * j + 1))
            wr.append(I('ds_write_b64 v%d, %s' % (SW + q, vr(SA + 2 * q, 2))))
        I('s_barrier', needs=wr)
        for h in range(2): I('ds_read_b128 %s, v%d offset:%d' % (vr(16 + 4 * h, 4), SRD_, 8192 * h))
        for h in range(2):
            for j in range(4):
                I('v_dot2_f32_bf16 v%d, v%d, s10, %s' % (24 + 2 * j, 16 + 4 * h + j, 'v%d' % (24 + 2 * j) if h else '0'))
                I('v_dot2_f32_bf16 v%d, v%d, s11, %s' % (25 + 2 * j, 16 + 4 * h + j, 'v%d' % (25 + 2 * j) if h else '0'))
        for j in range(0, 8, 2): I('v_pk_fma_f32 %s, %s, %s, %s' % (vr(j, 2), vr(j, 2), vr(24 + j, 2), vr(76 + j, 2)))
        for j in range(4): I('v_cvt_pk_bf16_f32 v%d, v%d, v%d' % (40 + j, 2 * j, 2 * j + 1))
        I('buffer_store_dwordx4 v[40:43], v%d, %s, s100 offen%s' % (XO, sr(S_OUT, 4), os.environ.get('OUTF', '')))
        self.stamp('final')

    def xfilter(self, body):
        out = []
        for x in body:
            if 'nosc1st' in EXP and x.op.startswith('buffer_store_dwordx4') and 'sc1' in x.text and 'v141' in x.text: x.text = x.text.replace(' sc1', '')
            if 'nost' in EXP and x.op.startswith('buffer_store_dwordx4') and 'v141' in x.text: x.text = 's_nop 0'
            if 'nob' in EXP and x.kind == 'dma' and 's[52:55]' in x.text: x.text = 's_nop 0'
            if 'sysp' in EXP and x.op == 'buffer_load_dword' and x.text.endswith('sc1') and 's[64:67]' in x.text: x.text = x.text.replace(' sc1', ' sc0 sc1')
            if 'nowo' in EXP and x.kind == 'dma' and 's[48:51]' in x.text: x.text = 's_nop 0'
            if 'noatom' in EXP and 'atomic' in x.op: x.text = 's_nop 0'
            if 'ntst' in EXP and x.op.startswith('buffer_store_dwordx4') and 'sc1' in x.text and 'v141' in x.text: x.text = x.text.replace(' sc1', ' sc0 sc1')
            out.append(x)
        return out
    def path(self, prefix, fn, label, keys):
        self.keys = keys
        if 'stamp' in self.__dict__: del self.__dict__['stamp']
        with self.g.capture() as body:
            if label: self.g.label(label)
            fn()
        self.xfilter(body)
        allp = [x for p in prefix for x in p]
        for x in allp: x.done = False
        full = self.g.finish(allp + body)
        if label:
            idx = next(i for i, x in enumerate(full) if x.kind == 'label' and x.text == label + ':')
            return full[idx:], body
        return full, body

    def build(self):
        I = self.I
        with self.g.capture() as pro:
            self.prologue()
            I('s_cmp_eq_u32 s%d, 1' % S_TYPE); I('s_cbranch_scc1 L_kv'); I('s_cmp_eq_u32 s%d, 2' % S_TYPE); I('s_cbranch_scc1 L_q')
        n0 = self.nst
        def endp():
            self.write_stamps(); I('s_endpgm')
        def ffn():
            self.ffn()
        out, _ = self.path([pro], ffn, None, ['0'])
        self.nst = n0
        code, kvc = self.path([pro], self.kv_common, 'L_kv', ['10', '11'])
        n1 = self.nst
        save = (dict(self.bdma), dict(self.bread))
        def kk():
            self.kv_k()
        def kvv():
            self.kv_v()
        c2, _ = self.path([pro, kvc], kk, 'L_kv_k', ['10'])
        self.nst = n1; self.bdma, self.bread = dict(save[0]), dict(save[1])
        c3, _ = self.path([pro, kvc], kvv, 'L_kv_v', ['11'])
        out += code + c2 + c3
        self.nst = n0
        def qq():
            self.q(); endp()
        c4, _ = self.path([pro], qq, 'L_q', ['2'])
        out += c4
        def p2():
            self.phase2(); endp()
        if 'nop2' not in EXP:
            c5, _ = self.path([], p2, 'L_p2', ['0', '10', '11'])
            out += c5
        with self.g.capture() as tail:
            self.g.label('L_end'); I('s_endpgm')
        return out + tail

HEADER = open('cdna_kernels/%s.s.ref' % NAME).read().split('; Override launch')[0]
def wrap(code, launch):
    return HEADER + launch + '''
.amdgcn_target "amdgcn-amd-amdhsa--gfx950"
.text
.globl %(n)s_kernel
.p2align 8
.type %(n)s_kernel,@function
%(n)s_kernel:
%(body)s
.section .rodata,"a"
.p2align 6
.amdhsa_kernel %(n)s_kernel
  .amdhsa_next_free_vgpr 256
  .amdhsa_next_free_sgpr 102
  .amdhsa_accum_offset %(nv)d
  .amdhsa_group_segment_fixed_size 0
  .amdhsa_kernarg_size 80
  .amdhsa_user_sgpr_count 2
  .amdhsa_user_sgpr_kernarg_segment_ptr 1
  .amdhsa_system_sgpr_workgroup_id_x 1
.end_amdhsa_kernel
''' % dict(n=NAME, body=render(code), nv=NV)

if __name__ == '__main__':
    stamps = '--stamps' in sys.argv
    k = K(stamps)
    code = k.build()
    open(sys.argv[1], 'w').write(wrap(code, '; @launch grid=(256,1,1) block=(512,1,1) lds=163840'))
    json.dump({t: [d.get(i, '') for i in range(16)] for t, d in k.names.items()} if stamps else {}, open(sys.argv[1][:-2] + '.json', 'w'))
    print('instructions', len(code), 'nops', sum(1 for i in code if i.kind == 'nop'))
```

```python
import sys, json, struct, os
from asmgen import *
import layout as L
EXP = os.environ.get('EXP', '').split(',')
SLEEP = int(os.environ.get('SLEEP', '4'))
BCHK = int(os.environ.get('BCHK', '7'))
W1K = int(os.environ.get('W1K', '3'))
PF0 = int(os.environ.get('PF0', '2'))
QSL = int(os.environ.get('QSL', '6'))
NST = int(os.environ.get('NST', '3')); MST = int(os.environ.get('MST', '1'))
ATOM = True
S_FA, S_FO, S_XO, S_SC, S_C1, S_C2, S_C3 = 98, 99, 100, 11, 96, 97, 25
RA, RB_ = [int(x) for x in os.environ.get('R1', '1,2').split(',')]
RC, RD = [int(x) for x in os.environ.get('R2', '2,4').split(',')]
STASH = 72; CSA = 32; DB2 = 125; S_CSB, S_R0 = 30, 101
TSCH = eval(os.environ.get('TSCH', '{1:0x7fc000}'))
T0M = int(os.environ.get('T0M', '0x3fff'), 0)
CST = int(os.environ.get('CST', '0'))
NAME = 'recurrent_scan__linear_kernel_hedgehog__dense_activation_silu__prompt'
def f32(x): return '0x%08x' % struct.unpack('<I', struct.pack('<f', x))[0]

S_X, S_W, S_PHI, S_WO, S_W2, S_OUT, S_DBG, S_WS = 36, 40, 44, 48, 52, 56, 60, 64
S_MASK, S_WAVE, S_IDX, S_RB, S_TYPE = 3, 4, 5, 6, 7
S_XS, S_WSO, S_EX56 = 12, 13, 14
S_MW, S_MX, S_ROW, S_NONCE = 32, 33, 34, 35
S_RT, S_CH = 68, 69
S_ST = 70
S_RG, S_CG, S_BSO, S_STA, S_A0, S_A1, S_OSO, S_NH, S_H0 = 16, 17, 18, 19, 20, 21, 22, 23, 24
S_ST4 = 25
S_L2E = 26
S_HIM = 28
STG = 45056; WPART = 16384
L_CNT = 3 * STG
L_CP = 136192
L_WPHI = 144384
L_SHX = L_WPHI
L_PHI = 0
L_V = 136192
L_STA = 57344
L_WO = 0
L_CX = 135168
L_KVQ = 0
L_KVF = 65536
L_XG = 65536
L_O = 0
L_XS = 131072
KORD = list(range(14))
NV = 144
ACC, WF, XF, ST, CS, AX, AW, AS, DX, DW = 0, 64, 96, 104, 108, 112, 116, 120, 122, 124
PFA = 132; TMP = 128; P2T = 128; BT2 = 126; DB = 139; VLANE = 140; VL16 = 141; BT = 142

class K:
    def __init__(self, stamps):
        self.g = Gen(); self.use_stamps = stamps; self.nst = 0; self.names = {}; self.keys = ['0', '10', '11', '2']
    def I(self, t, needs=()): return self.g.I(t, needs)
    def U(self, t):
        x = self.g.I(t); x.kind = 'untracked'; return x
    def stamp(self, name, real=False):
        if os.environ.get('DLY') == name and (not os.environ.get('DLK') or os.environ['DLK'] in self.keys): self.I('s_sleep %s' % os.environ.get('DLN', '32'))
        if 'dbgt' in EXP and name in ('bar0', 'loopend', 'gdone', 'opub', 'ook'):
            r = {'bar0': [78], 'loopend': [80], 'gdone': [82], 'ook': [84], 'opub': [82, 84]}[name]
            for x in r: self.I('s_memtime s[%d:%d]' % (x, x + 1))
        if not self.use_stamps: return
        i = self.nst
        if i >= 12: return
        self.nst += 1
        for k in self.keys: self.names.setdefault(k, {})[i] = name
        self.I('%s %s' % ('s_memrealtime' if real else 's_memtime', sr(S_ST + 2 * i, 2)))
    def write_stamps(self, total=13):
        if 'dbgt' in EXP:
            I = self.I
            I('s_memrealtime s[74:75]'); I('s_memtime s[76:77]'); I('s_waitcnt vmcnt(0) lgkmcnt(0)')
            I('s_mov_b64 exec, 1'); I('v_mov_b32 v2, 0')
            I('v_mov_b32 v0, s70'); I('buffer_atomic_umax v0, v2, %s, 0 offen offset:8' % sr(S_DBG, 4))
            I('s_not_b32 s8, s70'); I('v_mov_b32 v1, s8'); I('buffer_atomic_umax v1, v2, %s, 0 offen offset:12' % sr(S_DBG, 4))
            I('v_mov_b32 v3, s74'); I('buffer_atomic_umax v3, v2, %s, 0 offen offset:16' % sr(S_DBG, 4))
            I('s_sub_u32 s8, s76, s72'); I('v_mov_b32 v4, s8'); I('buffer_atomic_umax v4, v2, %s, 0 offen offset:20' % sr(S_DBG, 4))
            I('s_sub_u32 s8, s74, s70'); I('v_mov_b32 v5, s8'); I('buffer_atomic_umax v5, v2, %s, 0 offen offset:24' % sr(S_DBG, 4))
            for k, so in enumerate((78, 80, 82, 84)):
                I('s_sub_u32 s8, s%d, s72' % so); I('v_mov_b32 v%d, s8' % (6 + k)); I('buffer_atomic_umax v%d, v2, %s, 0 offen offset:%d' % (6 + k, sr(S_DBG, 4), 28 + 4 * k))
            I('s_waitcnt vmcnt(0)')
            return
        if not self.use_stamps: return
        I = self.I
        I('s_memrealtime %s' % sr(S_ST + 2 * (total - 1), 2))
        I('s_waitcnt lgkmcnt(0)')
        I('s_lshl_b32 s8, s2, 3'); I('s_add_u32 s8, s8, s%d' % S_WAVE); I('s_lshl_b32 s8, s8, 7')
        I('s_add_u32 s8, s8, %d' % L.WS_STAMP)
        I('v_mov_b32 v2, 0')
        I('s_mov_b64 exec, 1')
        for i in range(total):
            I('v_mov_b32 v0, s%d' % (S_ST + 2 * i)); I('v_mov_b32 v1, s%d' % (S_ST + 2 * i + 1))
            I('buffer_store_dwordx2 v[0:1], v2, %s, s8 offen offset:%d' % (sr(S_WS, 4), 8 * i))
        I('s_mov_b64 exec, -1')
    def srd(self, d, base, nbytes):
        I = self.I
        I('s_mov_b32 s%d, s%d' % (d, base)); I('s_and_b32 s%d, s%d, 0xffff' % (d + 1, base + 1))
        I('s_mov_b32 s%d, %d' % (d + 2, nbytes)); I('s_mov_b32 s%d, 0x20000' % (d + 3))

    def prologue(self):
        I = self.I
        I('s_cmp_ge_u32 s2, 256'); I('s_cbranch_scc1 L_end')
        I('s_load_dwordx16 s[16:31], s[0:1], 0'); I('s_load_dwordx4 s[32:35], s[0:1], 64')
        if 'anti' in EXP:
            I('s_lshr_b32 s8, s2, 5'); I('s_and_b32 s9, s2, 31'); I('s_lshl_b32 s9, s9, 3'); I('s_or_b32 s2, s8, s9')
        I('s_getpc_b64 s[8:9]')
        self.g.label('L_pc')
        I('v_cmp_le_u32 vcc, %d, v0' % (1024 if 'nocp0' in EXP else 448)); I('s_cbranch_vccz L_nopf')
        I('s_bfe_u32 s10, s2, 0x30003'); I('s_lshl_b32 s10, s10, 13')
        I('v_and_b32 v1, 63, v0'); I('v_lshlrev_b32 v1, 7, v1'); I('v_add_u32 v1, s10, v1')
        I('v_min_u32 v1, L_end-L_pc, v1')
        self.U('global_load_dword a80, v1, s[8:9]')
        self.g.label('L_nopf')
        if self.use_stamps:
            for i in range(13): I('s_mov_b64 %s, 0' % sr(S_ST + 2 * i, 2))
        self.stamp('rt0', True); self.stamp('t0')
        if 'dbgt' in EXP: I('s_memrealtime s[70:71]'); I('s_memtime s[72:73]')
        I('v_lshrrev_b32 v1, 6, v0'); I('v_and_b32 v0, 63, v0')
        I('v_readfirstlane_b32 s%d, v1' % S_WAVE)
        I('v_mov_b32 v%d, v0' % VLANE); I('v_lshlrev_b32 v%d, 4, v0' % VL16)
        I('s_and_b32 s8, s2, 7'); I('s_lshr_b32 s9, s2, 3')
        I('s_and_b32 s10, s8, 1'); I('s_lshl_b32 s10, s10, 3'); I('s_and_b32 s11, s9, 7'); I('s_add_u32 s%d, s10, s11' % S_RB)
        I('s_lshr_b32 s8, s8, 1'); I('s_lshr_b32 s10, s9, 3')
        I('s_lshl_b32 s11, s8, 2'); I('s_add_u32 s12, s11, s10')
        I('s_mov_b32 s%d, 0' % S_TYPE); I('s_lshl_b32 s%d, s8, 1' % S_IDX); I('s_add_u32 s%d, s%d, s10' % (S_IDX, S_IDX))
        I('s_cmp_lt_u32 s10, 2'); I('s_cbranch_scc1 L_role')
        I('s_mov_b32 s%d, 1' % S_TYPE); I('s_lshr_b32 s%d, 0x4210, s11' % S_IDX); I('s_and_b32 s%d, s%d, 15' % (S_IDX, S_IDX))
        I('s_cmp_eq_u32 s10, 2'); I('s_cbranch_scc1 L_role')
        I('s_and_b32 s13, s8, 1'); I('s_lshl_b32 s%d, s13, 1' % S_IDX); I('s_add_u32 s%d, s%d, 3' % (S_IDX, S_IDX))
        I('s_bfe_u32 s11, s9, 0x10002'); I('s_lshr_b32 s8, s8, 1'); I('s_cmp_lg_u32 s11, s8'); I('s_cbranch_scc1 L_role')
        I('s_mov_b32 s%d, 2' % S_TYPE); I('s_mov_b32 s%d, s13' % S_IDX)
        self.g.label('L_role')
        I('s_lshl_b32 s8, s%d, 4' % S_RB); I('s_add_u32 s8, s8, s12'); I('s_lshl_b32 s8, s8, 3'); I('s_add_u32 s11, s8, s%d' % S_WAVE)
        I('s_mov_b32 s%d, -1' % S_EX56); I('s_mov_b32 s%d, 0x00ffffff' % (S_EX56 + 1))
        I('s_and_b32 s%d, s%d, 3' % (S_RT, S_WAVE)); I('s_lshr_b32 s%d, s%d, 2' % (S_CH, S_WAVE))
        I('s_mov_b32 s%d, 0xffff0000' % S_MASK)
        I('v_lshrrev_b32 v2, 3, v0'); I('v_mul_u32_u24 v2, 896, v2')
        I('v_lshrrev_b32 v3, 4, v0'); I('v_and_b32 v4, 7, v0'); I('v_xor_b32 v4, v4, v3')
        I('v_lshl_add_u32 v%d, v4, 4, v2' % DX)
        I('v_xor_b32 v4, 4, v4'); I('v_lshl_add_u32 v%d, v4, 4, v2' % (DX + 1)); I('v_add_u32 v%d, %d, v%d' % (DX + 1, 8 * 896 - 1024, DX + 1))
        I('s_lshl_b32 s8, s%d, 3' % S_RB); I('s_add_u32 s8, s8, s%d' % S_WAVE); I('s_mul_i32 s%d, s8, %d' % (S_XS, 16 * 896))
        I('v_cmp_lt_u32 vcc, 27, v0'); I('v_subrev_u32 v7, 28, v0'); I('v_cndmask_b32 v7, v0, v7, vcc'); I('v_cndmask_b32 v6, 0, 1, vcc')
        I('v_cmp_gt_u32 vcc, 56, v0'); I('v_mov_b32 v5, 0x7fffffff'); I('v_cndmask_b32 v5, v5, v%d, vcc' % VL16)
        I('s_waitcnt lgkmcnt(0)')
        if 'start' in EXP: self.stamp('karg')
        self.srd(S_X, 16, 2048 * 896)
        self.srd(S_WS, 34, L.WS_BYTES); self.srd(S_DBG, 32, 256)
        I('s_mov_b32 s%d, s11' % S_ROW)
        I('s_lshl_b32 s%d, s%d, 11' % (S_MX, S_WAVE))
        I('s_mul_i32 s%d, s%d, %d' % (S_MW, S_WAVE, 8 * 448)); I('s_add_u32 s%d, s%d, %d' % (S_MW, S_MW, WPART))

    def start_stream(self, gpitch):
        I = self.I
        for i in range(1, 4): I('v_add_u32 v%d, %d, v%d' % (DW + i, i * (2 * gpitch - 896), DW))
        I('s_mul_i32 s8, s%d, %d' % (S_WAVE, 8 * gpitch)); I('s_add_u32 s%d, s%d, s8' % (S_WSO, S_WSO))
        self.gpitch = gpitch
        d = {}
        if 'start' in EXP: self.stamp('pre_s0')
        grps, d[0] = self.stage_dma(0, gpitch)
        for gp in grps: self.g.extend(gp)
        I('s_mul_i32 s8, s%d, 896' % S_ROW)
        I('buffer_load_dwordx4 %s, v5, %s, s8 offen' % (vr(XF, 4), sr(S_X, 4)))
        I('s_cmp_ge_u32 s%d, 7' % S_RB); I('s_cbranch_scc1 L_nocx%s' % self.tagbase)
        I('s_sub_u32 s8, s%d, 1' % S_RB); I('s_mul_i32 s8, s8, %d' % (64 * gpitch)); I('s_add_u32 s8, s8, s%d' % S_WSO)
        I('s_add_u32 m0, s%d, %d' % (S_MW, L_CX - WPART)); I('s_mov_b64 exec, %s' % sr(S_EX56, 2))
        for j in range(4): self.U('buffer_load_dwordx4 v%d, %s, s8 offen offset:%d lds' % (DW + j, sr(S_W, 4), 896 * j))
        I('s_mov_b64 exec, -1')
        self.g.label('L_nocx%s' % self.tagbase)
        lab = 'L_nonon' + self.tagbase
        I('s_or_b32 s8, s2, s%d' % S_WAVE); I('s_cmp_lg_u32 s8, 0'); I('s_cbranch_scc1 %s' % lab)
        self.U('s_memrealtime s[8:9]'); self.U('s_waitcnt lgkmcnt(0)'); I('s_or_b32 s8, s8, 1'); I('v_mov_b32 v8, s8'); I('v_mov_b32 v9, 0')
        I('s_mov_b64 exec, 1'); self.U('buffer_store_dword v8, v9, %s, 0 offen sc1' % sr(S_DBG, 4)); I('s_mov_b64 exec, -1')
        self.g.label(lab)
        if 'start' in EXP: self.stamp('s0iss')
        return d
    def mall_addr(self):
        I = self.I
        segs = [(16, 7, 2, 5, 2048 * 896), (18, 4, 128 * 21, 4, 448 * 2688), (26, 5, 128 * 28, 5, 448 * 3584), (28, 7, 0, 7, 1792 * 896), (22, 2, 0, 2, 448 * 896)]
        I('s_lshl_b32 s8, s2, 3'); I('s_add_u32 s8, s8, s%d' % S_WAVE)
        lo = 0
        for i, (sb, mul, first, n, size) in enumerate(segs):
            I('s_mul_i32 s9, s8, %d' % mul); I('s_add_i32 s9, s9, %d' % (first - lo))
            I('v_add_u32 v10, s9, v0'); I('v_lshlrev_b32 v10, 7, v10'); I('v_min_u32 v10, %d, v10' % (size - 4))
            if i == 0:
                I('v_mov_b32 v11, v10'); I('v_mov_b32 v8, s%d' % sb); I('v_mov_b32 v9, s%d' % (sb + 1))
            else:
                I('v_cmp_le_u32 vcc, %d, v0' % lo); I('v_mov_b32 v12, s%d' % sb); I('v_mov_b32 v13, s%d' % (sb + 1))
                I('v_cndmask_b32 v11, v11, v10, vcc'); I('v_cndmask_b32 v8, v8, v12, vcc'); I('v_cndmask_b32 v9, v9, v13, vcc')
            lo += n
        I('v_add_co_u32 v%d, vcc, v8, v11' % PFA); I('v_addc_co_u32 v%d, vcc, 0, v9, vcc' % (PFA + 1))
    def mall_issue(self, part, mask=None):
        if 'nomall' in EXP: return []
        I = self.I
        with self.g.capture() as a:
            I('s_mov_b64 exec, %d' % (mask or T0M))
            I('global_load_dword a%d, %s, off' % (80 + part, vr(PFA, 2))).dst = set()
            I('s_mov_b64 exec, -1')
        return [a]
    def pre_loop(self, p2, idx0, extra=None, late=None):
        I = self.I; g = self.g
        self.mall_addr()
        self.late_srds()
        if p2:
            self.p2_setup()
            for gp in self.p2_pre(): g.extend(gp)
        I('s_add_u32 s8, s%d, %d' % (S_IDX, idx0)); I('s_lshl_b32 s8, s8, 14'); I('s_add_u32 s%d, s8, %d' % (S_CSB, L.WS_CSG))
        if extra: extra()
        if 'start' in EXP: self.stamp('setup')
        self.s0pos = len(g.cur)
        if 'not0' not in EXP:
            for gp in self.mall_issue(0): g.extend(gp)
        if late: late()
        self.row_stats()
    def chunks(self, fn, n=10):
        with self.g.capture() as body:
            fn()
        out = []; cur = []
        for i, x in enumerate(body):
            cur.append(x)
            nxt = body[i + 1] if i + 1 < len(body) else None
            safe = nxt is not None and not (nxt.op.startswith(('s_cselect', 's_cbranch', 's_addc', 's_subb', 'v_cndmask', 'v_addc')) or nxt.kind in ('dma', 'label')) \
                and not x.op.startswith(('s_cmp', 'v_cmp')) and 'm0' not in x.dst
            if len(cur) >= n and safe: out.append(cur); cur = []
        if cur: out.append(cur)
        return out

    def late_srds(self):
        I = self.I
        self.srd(S_PHI, 20, 16 * 28 * 28 * 2); self.srd(S_WO, 22, 448 * 896); self.srd(S_W2, 28, 1792 * 896)
        self.srd(S_OUT, 30, 2048 * 896)
        I('s_mov_b32 s%d, %s' % (S_L2E, f32(L.LOG2E))); I('s_mov_b32 s%d, %s' % (S_L2E + 1, f32(L.LOG2E)))
        I('s_mov_b32 s%d, 0' % S_HIM); I('s_mov_b32 s%d, -1' % (S_HIM + 1))
        I('s_mov_b32 s31, 0')

    def late_group(self, p2, extra=None):
        with self.g.capture() as a:
            self.late_srds()
            if extra: extra()
        self.p2flag = p2
        return a
    def p2_setup(self):
        I = self.I; T = 64
        I('s_lshr_b32 s9, s2, 3'); I('s_and_b32 s8, s9, 3'); I('s_add_u32 s8, s8, 24'); I('s_cmp_lt_u32 s9, 24'); I('s_cselect_b32 s9, s9, s8')
        I('s_mul_i32 s8, s9, 37'); I('s_lshr_b32 s8, s8, 8'); I('s_mul_i32 s10, s8, 7'); I('s_sub_u32 s%d, s9, s10' % S_CG)
        I('s_and_b32 s10, s2, 7'); I('s_lshl_b32 s10, s10, 2'); I('s_add_u32 s%d, s10, s8' % S_RG)
        I('s_mul_i32 s%d, s%d, %d' % (S_BSO, S_WAVE, 224 * 896)); I('s_lshl_b32 s8, s%d, 7' % S_CG); I('s_add_u32 s%d, s%d, s8' % (S_BSO, S_BSO))
        I('s_lshl_b32 s%d, s%d, 12' % (S_STA, S_WAVE)); I('s_add_u32 s%d, s%d, %d' % (S_STA, S_STA, L_STA))
        I('v_lshrrev_b32 v%d, 3, v140' % T); I('v_mul_u32_u24 v%d, 896, v%d' % (T, T))
        I('v_lshrrev_b32 v%d, 2, v140' % (T + 1)); I('v_and_b32 v%d, 4, v%d' % (T + 1, T + 1)); I('v_and_b32 v%d, 7, v140' % (T + 2))
        I('v_xor_b32 v%d, v%d, v%d' % (T + 1, T + 1, T + 2)); I('v_lshl_add_u32 v%d, v%d, 4, v%d' % (DB, T + 1, T))
        I('v_lshrrev_b32 v%d, 5, v140' % T); I('v_lshlrev_b32 v%d, 2, v%d' % (T, T)); I('v_bfe_u32 v%d, v140, 2, 2' % (T + 1)); I('v_add_u32 v%d, v%d, v%d' % (T, T, T + 1))
        I('v_lshlrev_b32 v%d, 7, v%d' % (T, T)); I('v_add_u32 v%d, s%d, v%d' % (T, S_STA, T))
        I('v_and_b32 v%d, 3, v140' % (T + 1)); I('v_lshlrev_b32 v%d, 3, v%d' % (T + 1, T + 1))
        I('v_and_b32 v%d, 16, v140' % (T + 2)); I('v_lshl_add_u32 v%d, v%d, 1, v%d' % (T + 1, T + 2, T + 1))
        I('v_and_b32 v%d, 8, v140' % (T + 2)); I('v_lshlrev_b32 v%d, 3, v%d' % (T + 2, T + 2)); I('v_xor_b32 v%d, v%d, v%d' % (T + 1, T + 1, T + 2))
        I('v_add_u32 v%d, v%d, v%d' % (BT, T, T + 1))
        I('v_xor_b32 v%d, 64, v%d' % (T + 1, T + 1)); I('v_add_u32 v%d, v%d, v%d' % (BT + 1, T, T + 1))

    def slot4_setup(self):
        I = self.I
        I('s_lshl_b32 s%d, s%d, 11' % (S_ST4, S_WAVE)); I('s_add_u32 s%d, s%d, %d' % (S_ST4, S_ST4, L_SHX)); I('s_sub_u32 s8, s%d, s%d' % (S_ST4, S_STA))
        for b in range(2): I('v_add_u32 v%d, s8, v%d' % (BT2 + b, BT + b))
    def wo_dma(self):
        g = self.g; I = self.I; grps = []
        with g.capture() as a:
            I('s_mul_i32 s23, s%d, %d' % (S_WAVE, 56 * 896)); I('s_lshl_b32 s24, s%d, 7' % S_CG); I('s_add_u32 s23, s23, s24'); I('s_mul_i32 s24, s%d, %d' % (S_WAVE, 56 * 128))
        for i in range(0, 7, 2):
            with g.capture() as b:
                I('s_add_u32 m0, s24, %d' % (L_WO + 1024 * i)); I('s_add_u32 s8, s23, %d' % (8 * 896 * i))
                I('buffer_load_dwordx4 v%d, %s, s8 offen lds' % (DB, sr(S_WO, 4)))
                if i + 1 < 7: I('buffer_load_dwordx4 v%d, %s, s8 offen offset:1024 lds' % (DB2, sr(S_WO, 4)))
            grps.append((a if i == 0 else []) + b)
        return grps
    SLOTS = [(0, BT), (2048, BT), (32768, BT), (34816, BT), (None, BT2)]
    def b_dma(self, k, needs=()):
        g = self.g; I = self.I; so = self.SLOTS[k % self.nslot][0]; grps = []
        with g.capture() as a:
            I('s_add_u32 m0, s%d, %d' % (S_STA, so) if so is not None else 's_mov_b32 m0, s%d' % S_ST4)
            I('s_add_u32 s8, s%d, %d' % (S_BSO, 16 * k * 896))
            I('buffer_load_dwordx4 v%d, %s, s8 offen lds' % (DB, sr(S_W2, 4)), needs=needs)
            I('buffer_load_dwordx4 v%d, %s, s8 offen offset:1024 lds' % (DB2, sr(S_W2, 4)))
        grps.append(a)
        self.bdma[k] = [x for gp in grps for x in gp if x.kind == 'dma']
        return grps
    def b_read(self, k):
        so, reg = self.SLOTS[k % self.nslot]; out = []
        if so is None: so = 0
        for b in range(2):
            for h in range(2):
                out.append(Instr('ds_read_b64_tr_b16 %s, v%d offset:%d' % (ar(8 * k + 4 * b + 2 * h, 2), reg + b, so + 1024 * h), needs=self.bdma[k]))
        self.bread[k] = out
        return out
    def b_tasks(self, k0, k1):
        t = [self.b_read(k) for k in range(k0, k1)]
        for k in range(k0, k1):
            if k + self.nslot < 14: t += self.b_dma(k + self.nslot, needs=self.bread[k])
        return t

    def stage_dma(self, st, gpitch):
        g = self.g; I = self.I; base = (st % 3) * STG
        nt = ' nt' if st < int(os.environ.get('NT', '0')) else ''; ntx = ' nt' if st < int(os.environ.get('NTX', os.environ.get('NT', '0'))) else ''
        grps = []
        for i in range(0, 4, 2):
            with g.capture() as a:
                if i == 0: I('s_add_u32 m0, s%d, %d' % (S_MW, base))
                I('s_mov_b64 exec, %s' % sr(S_EX56, 2))
                for j in (i, i + 1): I('buffer_load_dwordx4 v%d, %s, s%d offen offset:%d%s lds' % (DW + j, sr(S_W, 4), S_WSO, 896 * j, nt))
                I('s_mov_b64 exec, -1')
            grps.append(a)
        with g.capture() as a:
            I('s_add_u32 m0, s%d, %d' % (S_MX, base)); I('s_add_u32 s%d, s%d, %d' % (S_WSO, S_WSO, 64 * gpitch))
            for i in range(2): I('buffer_load_dwordx4 v%d, %s, s%d offen offset:%d%s lds' % (DX + i, sr(S_X, 4), S_XS, 1024 * i, ntx))
            I('s_add_u32 s%d, s%d, 128' % (S_XS, S_XS))
        grps.append(a)
        return grps, [x for gp in grps for x in gp if x.kind == 'dma']

    def read_addrs(self, clamp, shared=False):
        I = self.I; T = TMP
        I('v_and_b32 v%d, 31, v0' % T); I('v_lshlrev_b32 v%d, 7, v%d' % (T, T)); I('s_lshl_b32 s8, s%d, 12' % S_RT); I('v_add_u32 v%d, s8, v%d' % (T, T))
        I('v_lshrrev_b32 v%d, 5, v0' % (T + 1)); I('v_bfe_u32 v%d, v0, 1, 3' % (T + 2)); I('v_xor_b32 v%d, v%d, v%d' % (T + 2, T + 2, T + 1))
        I('v_lshlrev_b32 v%d, 3, v%d' % (T + 3, T + 1)); I('v_bfe_u32 v%d, v0, 2, 2' % (T + 4)); I('v_add_u32 v%d, v%d, v%d' % (T + 3, T + 3, T + 4))
        I('v_mul_u32_u24 v%d, 448, v%d' % (T + 3, T + 3))
        I('v_bfe_u32 v%d, v0, 4, 1' % (T + 4)); I('v_and_b32 v%d, 3, v0' % (T + 5)); I('v_lshl_add_u32 v%d, v%d, 2, v%d' % (T + 4, T + 4, T + 5))
        if shared:
            I('s_lshl_b32 s8, s%d, 2' % S_CH); I('v_xor_b32 v%d, s8, v%d' % (T + 6, T + 4)); I('v_lshl_add_u32 v%d, v%d, 3, v%d' % (T + 6, T + 6, T + 3))
            I('v_add_u32 v%d, %d, v%d' % (T + 6, WPART + 384, T + 6))
        if clamp: I('v_min_u32 v%d, 6, v%d' % (T + 4, T + 4))
        if shared:
            I('s_cmp_eq_u32 s%d, 7' % S_WAVE); I('s_cselect_b32 s8, 4, 0'); I('v_xor_b32 v%d, s8, v%d' % (CS + 3, T + 4))
            I('s_min_u32 s9, s%d, 6' % S_WAVE); I('s_lshl_b32 s9, s9, 6'); I('s_add_u32 s9, s9, %d' % L_CX)
        else:
            I('v_mov_b32 v%d, v%d' % (CS + 3, T + 4)); I('s_mul_i32 s9, s%d, 56' % S_RT); I('s_add_u32 s9, s9, s10'); I('s_add_u32 s9, s9, %d' % (L_CX - WPART))
        I('v_lshl_add_u32 v%d, v%d, 3, v%d' % (CS + 3, CS + 3, T + 3)); I('v_add_u32 v%d, s9, v%d' % (CS + 3, CS + 3))
        I('v_lshl_add_u32 v%d, v%d, 3, v%d' % (T + 3, T + 4, T + 3))
        I('v_add_u32 v%d, s10, v%d' % (T + 3, T + 3))
        for i in range(4):
            I('s_add_u32 s8, s%d, s%d' % (S_RT, S_CH)); I('s_add_u32 s8, s8, %d' % i); I('s_and_b32 s8, s8, 3')
            I('s_lshl_b32 s9, s8, 1'); I('v_xor_b32 v%d, s9, v%d' % (T + 5, T + 2)); I('v_lshl_add_u32 v%d, v%d, 4, v%d' % (AX + i, T + 5, T))
            I('s_mul_i32 s9, s8, 7168'); I('v_add_u32 v%d, s9, v%d' % (AW + i, T + 3))
            if shared and i in (0, 2): I('v_add_u32 v%d, s9, v%d' % (AS + i // 2, T + 6))

    def row_stats(self):
        I = self.I; S, Q = ST, ST + 1
        I('s_mov_b32 s8, 0x3f803f80')
        I('v_dot2_f32_bf16 v%d, v%d, s8, 0' % (S, XF)); I('v_dot2_f32_bf16 v%d, v%d, v%d, 0' % (Q, XF, XF))
        for q in range(1, 4):
            I('v_dot2_f32_bf16 v%d, v%d, s8, v%d' % (S, XF + q, S)); I('v_dot2_f32_bf16 v%d, v%d, v%d, v%d' % (Q, XF + q, XF + q, Q))
        for m in ('row_shr:1', 'row_shr:2', 'row_shr:4', 'row_shr:8'):
            for r in (S, Q): I('v_add_f32_dpp v%d, v%d, v%d %s row_mask:0xf bank_mask:0xf bound_ctrl:0' % (r, r, r, m))
        for m, rm in (('row_bcast:15', '0xa'), ('row_bcast:31', '0xc')):
            for r in (S, Q): I('v_add_f32_dpp v%d, v%d, v%d %s row_mask:%s bank_mask:0xf' % (r, r, r, m, rm))
        I('v_mul_f32 v%d, %s, v%d' % (S, f32(1.0 / 448), S)); I('v_mul_f32 v%d, %s, v%d' % (Q, f32(1.0 / 448), Q))
        I('v_fma_f32 v%d, -v%d, v%d, v%d' % (Q, S, S, Q)); I('v_max_f32 v%d, 0, v%d' % (Q, Q))
        def rbf(r):
            I('v_cvt_pk_bf16_f32 v%d, v%d, v%d' % (r, r, r)); I('v_lshlrev_b32 v%d, 16, v%d' % (r, r))
        rbf(S); rbf(Q)
        I('v_add_f32 v%d, %s, v%d' % (Q, f32(1e-5), Q)); rbf(Q)
        I('v_sqrt_f32 v%d, v%d' % (Q, Q)); rbf(Q)
        I('v_rcp_f32 v%d, v%d' % (Q, Q))
        I('v_sub_f32 v%d, 0, v%d' % (S, S))

    def nonce_issue(self):
        self.I('v_mov_b32 v%d, 0' % (ST + 3))
        return self.I('buffer_load_dword v%d, v%d, %s, 0 offen sc1' % (ST + 2, ST + 3, sr(S_DBG, 4)))
    def nonce_get_publish(self, tag):
        I = self.I; U = self.U
        I('v_readfirstlane_b32 s%d, v%d' % (S_NONCE, ST + 2))
        I('s_cmp_lg_u32 s%d, 0' % S_NONCE); I('s_cbranch_scc1 L_gotn%s' % tag)
        self.g.label('L_spinn%s' % tag)
        U('buffer_load_dword v%d, v%d, %s, 0 offen sc1' % (ST + 2, ST + 3, sr(S_DBG, 4)))
        U('s_waitcnt vmcnt(0)')
        I('v_readfirstlane_b32 s%d, v%d' % (S_NONCE, ST + 2)); I('s_nop 1')
        I('s_cmp_lg_u32 s%d, 0' % S_NONCE); I('s_cbranch_scc1 L_gotn%s' % tag)
        self.spin_tail('L_spinn%s' % tag)
        self.g.label('L_gotn%s' % tag)
        I('v_mov_b32 v%d, s%d' % (ST + 2, S_NONCE)); I('v_mov_b32 v%d, s%d' % (ST + 3, S_NONCE))
        I('s_lshl_b32 s8, s%d, 4' % S_ROW); I('s_add_u32 s8, s8, %d' % L.WS_RS); I('v_mov_b32 v%d, 0' % (TMP + 8))
        I('s_mov_b32 exec_lo, 0'); I('s_mov_b32 exec_hi, 0x80000000')
        I('buffer_store_dwordx4 %s, v%d, %s, s8 offen sc1' % (vr(ST, 4), TMP + 8, sr(S_WS, 4)))
        I('s_mov_b64 exec, -1')
    def rs_issue(self):
        I = self.I
        I('s_lshl_b32 s8, s%d, 2' % S_RB); I('s_add_u32 s8, s8, s%d' % S_RT); I('s_lshl_b32 s8, s8, 9'); I('s_add_u32 s%d, s8, %d' % (S_ROW, L.WS_RS))
        I('v_and_b32 v%d, 31, v%d' % (DX, VLANE)); I('v_lshlrev_b32 v%d, 4, v%d' % (DX, DX))
        return I('buffer_load_dwordx4 %s, v%d, %s, s%d offen sc1' % (vr(ST, 4), DX, sr(S_WS, 4), S_ROW))
    def rs_get(self, tag, scale):
        I = self.I; U = self.U
        I('v_cmp_ne_u32 vcc, s%d, v%d' % (S_NONCE, ST + 2)); I('s_nop 1'); I('s_cbranch_vccz L_gotr%s' % tag)
        self.g.label('L_spinr%s' % tag)
        U('buffer_load_dwordx4 %s, v%d, %s, s%d offen sc1' % (vr(ST, 4), DX, sr(S_WS, 4), S_ROW))
        U('s_waitcnt vmcnt(0)')
        I('v_cmp_ne_u32 vcc, s%d, v%d' % (S_NONCE, ST + 2)); I('s_nop 1'); I('s_cbranch_vccz L_gotr%s' % tag)
        self.spin_tail('L_spinr%s' % tag)
        self.g.label('L_gotr%s' % tag)
        for q in range(4): I('v_cvt_pk_bf16_f32 v%d, v%d, v%d' % (XF + q, ST, ST))
        I('v_mul_f32 v%d, %s, v%d' % (ST, f32(scale), ST + 1))
    def publish(self, soff_s, tmp, needs=()):
        I = self.I
        I('v_mov_b32 v%d, s%d' % (tmp, S_NONCE)); I('v_mov_b32 v%d, 0' % (tmp + 1)); I('s_mov_b64 exec, 1')
        x = I('buffer_store_dword v%d, v%d, %s, s%d offen sc1' % (tmp, tmp + 1, sr(S_WS, 4), soff_s), needs=needs)
        I('s_mov_b64 exec, -1')
        return x
    def poll(self, tag, voff, soff_s, tmp):
        I = self.I; U = self.U
        self.g.label('L_poll%s' % tag)
        U('buffer_load_dword v%d, v%d, %s, s%d offen sc1' % (tmp, voff, sr(S_WS, 4), soff_s))
        I('s_waitcnt vmcnt(0)')
        I('v_cmp_ne_u32 vcc, s%d, v%d' % (S_NONCE, tmp)); I('s_nop 1'); I('s_cbranch_vccz L_polld%s' % tag)
        self.spin_tail('L_poll%s' % tag)
        self.g.label('L_polld%s' % tag)
    def poll_issue(self, voff, soff_s, tmp):
        return self.I('buffer_load_dword v%d, v%d, %s, s%d offen sc1' % (tmp, voff, sr(S_WS, 4), soff_s))
    def poll_check(self, tag, voff, soff_s, tmp):
        I = self.I; U = self.U
        if 'nopoll' in EXP and tag in 'AB': return
        I('v_cmp_ne_u32 vcc, s%d, v%d' % (S_NONCE, tmp)); I('s_nop 1'); I('s_cbranch_vccz L_polld%s' % tag)
        self.g.label('L_poll%s' % tag)
        U('buffer_load_dword v%d, v%d, %s, s%d offen sc1' % (tmp, voff, sr(S_WS, 4), soff_s)); U('s_waitcnt vmcnt(0)')
        I('v_cmp_ne_u32 vcc, s%d, v%d' % (S_NONCE, tmp)); I('s_nop 1'); I('s_cbranch_vccz L_polld%s' % tag)
        self.spin_tail('L_poll%s' % tag)
        self.g.label('L_polld%s' % tag)
    def spin_tail(self, lab, sl=None):
        I = self.I
        I('s_sleep %d' % (sl or SLEEP)); I('s_add_u32 s31, s31, 1'); I('s_cmp_lt_u32 s31, 0x8000'); I('s_cbranch_scc1 %s' % lab)

    def l2pf(self, st):
        if 'l2pf' not in EXP: return []
        I = self.I; lab = 'L_pf%s%d' % (self.tagbase, st)
        with self.g.capture() as a:
            I('s_lshr_b32 s8, s%d, 1' % S_WAVE); I('s_cmp_lg_u32 s8, %d' % (st - PF0)); I('s_cbranch_scc1 %s' % lab)
            I('s_lshr_b32 s8, s2, 3'); I('s_lshl_b32 s8, s8, 3'); I('s_add_u32 s8, s8, s%d' % S_WAVE); I('s_lshl_b32 s8, s8, 13')
            I('v_lshlrev_b32 v%d, 7, v%d' % (TMP + 8, VLANE))
            self.U('buffer_load_dword a80, v%d, %s, s8 offen' % (TMP + 8, sr(S_W2, 4)))
            I('s_sub_u32 s8, s8, %d' % (196 * 8192)); I('s_cbranch_scc1 %s' % lab)
            self.U('buffer_load_dword a80, v%d, %s, s8 offen' % (TMP + 8, sr(S_WO, 4)))
            self.g.label(lab)
        return [a]

    def code_pf(self, tg, tmp, dst):
        if 'nocpf' in EXP: return []
        I = self.I
        with self.g.capture() as a:
            I('s_getpc_b64 s[8:9]'); self.g.label('L_cpf%s' % tg)
            I('s_sub_u32 s8, s8, L_cpf%s-L_pc' % tg); I('s_subb_u32 s9, s9, 0')
            I('s_bfe_u32 s10, s2, 0x20003'); I('s_lshl_b32 s10, s10, 3'); I('s_add_u32 s10, s10, s%d' % S_WAVE); I('s_lshl_b32 s10, s10, 11')
            I('v_lshlrev_b32 v%d, 7, v%d' % (tmp, VLANE)); I('v_add_u32 v%d, s10, v%d' % (tmp, tmp)); I('v_min_u32 v%d, L_end-L_pc, v%d' % (tmp, tmp))
            I('s_mov_b64 exec, 0xffff')
            I('global_load_dword %s, v%d, s[8:9]' % (dst, tmp))
            I('s_mov_b64 exec, -1')
        return [a]

    def gemm(self, tiles, gpitch, dms, tag, hooks, tl):
        g = self.g; I = self.I
        dmas = dict(dms)
        NF, LOOK = 8, 4
        seq = [(ks, cc) for ks in range(28) for cc in range(len(tiles[ks & 3]['t']))]
        def wread(n):
            ks, cc = seq[n]; a = WF + 4 * (n % NF); c, areg, off = tiles[ks & 3]['t'][cc]
            return [Instr('ds_read_b64_tr_b16 %s, v%d offset:%d' % (vr(a + 2 * h, 2), areg, off + h * 4 * 448)) for h in range(2)]
        def xread(ks):
            return [Instr('ds_read_b128 %s, v%d' % (vr(XF + 4 * (ks % 2), 4), AX + (ks & 3)))]
        aregs = sorted(set(list(range(AX, AX + 4)) + [t[1] for p in tiles for t in p['t']]))
        def adv(st):
            d = STG if st % 3 else -2 * STG
            return [Instr('v_add_u32 v%d, %d, v%d' % (r, d, r)) if d > 0 else Instr('v_subrev_u32 v%d, %d, v%d' % (r, -d, r)) for r in aregs]
        tc = [0]
        def cs_ops(r, c):
            t = TMP + 2 * (tc[0] % 4); tc[0] += 1
            return [Instr('v_lshlrev_b32 v%d, 16, v%d' % (t, r)), Instr('v_and_b32 v%d, s%d, v%d' % (t + 1, S_MASK, r)),
                    Instr('v_add_f32 v%d, v%d, v%d' % (CS + c, CS + c, t)), Instr('v_add_f32 v%d, v%d, v%d' % (CS + c, CS + c, t + 1))]
        if 'start' in EXP:
            self.stamp('rowst'); I('s_nop 0', needs=dmas[0]); self.stamp('s0arr'); I('s_waitcnt lgkmcnt(0)')
        BAR0 = len(g.cur)
        I('s_barrier', needs=dmas[0])
        self.stamp('bar0')
        g.extend(xread(0))
        first = [wread(n) for n in range(LOOK)]
        for x in first: g.extend(x)
        g1, dmas[1] = self.stage_dma(1, gpitch)
        pend, dmas[2] = self.stage_dma(2, gpitch)
        g.cur[self.s0pos:self.s0pos] = [Instr('s_barrier')] + [x for gp in g1 for x in gp]
        wrd = {}
        cs = {}
        def cs_make():
            with g.capture() as a:
                T = TMP
                I('s_cmp_ge_u32 s%d, 7' % S_RB); I('s_cbranch_scc1 L_nocm%s' % tag)
                I('s_mov_b32 s9, 0x3f803f80'); CT = [128, 130, 134, 136]
                for half in range(2):
                    for k2 in range(2):
                        for h in range(2): self.U('ds_read_b64_tr_b16 %s, v%d offset:%d' % (vr(CT[2 * k2 + h], 2), CS + 3, (2 * half + k2) * 7168 + h * 1792))
                    self.U('s_waitcnt lgkmcnt(0)')
                    for q in range(8): I('v_dot2_f32_bf16 v%d, v%d, s9, %s' % (CS + (q & 1), CT[q >> 1] + (q & 1), 'v%d' % (CS + (q & 1)) if half or q > 1 else '0'))
                I('s_lshl_b32 s8, s%d, 11' % S_WAVE); I('s_add_u32 s8, s8, s%d' % S_CSB); I('s_lshr_b32 s9, s%d, 2' % S_RB); I('s_lshl_b32 s9, s9, 10'); I('s_add_u32 s8, s8, s9')
                I('s_and_b32 s9, s%d, 3' % S_RB); I('s_lshl_b32 s9, s9, 2'); I('s_add_u32 s8, s8, s9')
                I('v_add_f32 v%d, v%d, v%d' % (CS, CS, CS + 1))
                I('v_cvt_pk_bf16_f32 v%d, v%d, v%d' % (T, CS, CS)); I('v_and_b32 v%d, s%d, v%d' % (T, S_MASK, T))
                I('v_sub_f32 v%d, v%d, v%d' % (T, CS, T)); I('v_cvt_pk_bf16_f32 v%d, v%d, v%d' % (CS, T, CS))
                self.U('buffer_store_dword v%d, v%d, %s, s8 offen sc1' % (CS, VL16, sr(S_WS, 4)))
                self.g.label('L_nocm%s' % tag)
            return [a]
        def cs_flag():
            with g.capture() as a:
                I('s_cmp_lt_u32 s%d, 7' % S_RB); I('s_cselect_b32 s8, s%d, 1' % S_WAVE); I('s_cmp_lg_u32 s8, 0'); I('s_cbranch_scc1 L_nocf%s' % tag)
                I('s_sub_u32 s8, s%d, %d' % (S_CSB, L.WS_CSG)); I('s_lshr_b32 s8, s8, 4'); I('s_lshl_b32 s9, s%d, 7' % S_RB); I('s_add_u32 s8, s8, s9'); I('s_add_u32 s8, s8, %d' % L.WS_CSF)
                self.publish(8, TMP).kind = 'untracked'
                self.g.label('L_nocf%s' % tag)
            return [a]
        def cs_poll():
            with g.capture() as a:
                I('s_sub_u32 s10, s%d, %d' % (S_CSB, L.WS_CSG)); I('s_lshr_b32 s10, s10, 4'); I('s_add_u32 s%d, s10, %d' % (S_R0, L.WS_CSF))
                I('v_and_b32 v%d, 7, v%d' % (CS, VLANE)); I('v_min_u32 v%d, 6, v%d' % (CS, CS)); I('v_lshlrev_b32 v%d, 7, v%d' % (CS, CS))
                self.poll_issue(CS, S_R0, CS + 1)
            return [a]
        def cs_load():
            with g.capture() as a:
                for c, mul, add in tl:
                    I('s_mul_i32 s8, s%d, %d' % (S_CH, mul * 2048)); I('s_add_u32 s8, s8, s%d' % S_CSB); I('s_add_u32 s8, s8, %d' % (add * 2048))
                    for h in range(2): I('buffer_load_dwordx4 %s, v%d, %s, s8 offen offset:%d sc1' % (ar(CSA + 8 * c + 4 * h, 4), VL16, sr(S_WS, 4), 1024 * h))
            return [a]
        for n in range(LOOK): wrd[n] = first[n]
        started = set(); xr = 0; cfill = []
        for n, (ks, cc) in enumerate(seq):
            p = tiles[ks & 3]; c = p['t'][cc][0]; a = WF + 4 * (n % NF); xf = XF + 4 * (ks % 2)
            I('v_mfma_f32_32x32x16_bf16 %s, %s, %s, %s' % (vr(ACC + 16 * c, 16), vr(a, 4), vr(xf, 4), vr(ACC + 16 * c, 16) if c in started else '0'),
              needs=wrd.get(n + 1, []) if n % 2 == 0 else [])
            started.add(c)
            nn = n + LOOK
            if nn < len(seq):
                ks2, cc2 = seq[nn]
                if cc2 == 0 and ks2 & 3 == 0:
                    st2 = ks2 >> 2
                    assert xr == ks2 - 1
                    g.extend(adv(st2))
                    if st2 == NST: self.nonce_get_publish(tag)
                    if st2 == 6: self.poll_check('c' + tag, CS, S_R0, CS + 1); self.rs_issue()
                    if st2 in hooks.get('pre', {}): hooks['pre'][st2]()
                    if 'stg' in EXP and st2 in (2, 3, 6): self.stamp('preB%d' % st2)
                    I('s_waitcnt lgkmcnt(0)')
                    I('s_barrier', needs=dmas[st2])
                    if 'stg' in EXP: self.stamp('B%d' % st2)
                    if st2 == 1:
                        with g.capture() as grp_: self.nonce_issue()
                        pend += [grp_]
                    if st2 == 1: pend += cs_make()
                    if st2 == 3: pend += cs_flag()
                    if st2 == 5: pend += cs_poll()
                    if st2 == 6: pend += cs_load()
                    if st2 in self.pre_post: pend += self.pre_post[st2]()
                    if st2 + 2 < 7:
                        newg, dmas[st2 + 2] = self.stage_dma(st2 + 2, gpitch); pend += newg
                    if st2 in TSCH: pend += self.mall_issue(1, TSCH[st2])
                    if st2 in hooks.get('post', {}): pend += hooks['post'][st2]()
                wrd[nn] = wread(nn); g.extend(wrd[nn])
            if xr == ks and ks + 1 < 28 and (nn >= len(seq) or seq[min(nn, len(seq) - 1)][0] >= ks + 1):
                g.extend(xread(ks + 1)); xr = ks + 1
            if pend and (n % 3 == 0 or len(pend) > 3): g.extend(pend.pop(0))
        for x in pend: g.extend(x)
        self.stamp('loopend')

    def finish_stats(self, tl, scale, tag, before_b1=None, after_b1=None):
        I = self.I
        wr = []
        if before_b1: wr += before_b1() or []
        self.rs_get(tag, scale)
        for c, mul, add in tl: I('v_accvgpr_write_b32 a%d, 0' % (CSA + 8 * c + 7))
        for h in range(2):
            for c, mul, add in tl:
                I('v_mfma_f32_32x32x16_bf16 %s, %s, %s, %s' % (vr(ACC + 16 * c, 16), ar(CSA + 8 * c + 4 * h, 4), vr(XF, 4), vr(ACC + 16 * c, 16)))
        I('s_barrier', needs=wr)
        if after_b1: after_b1()
        if 'stg' in EXP: self.stamp = lambda *a, **k: None
        self.stamp('stats')

    def with_bg(self, fn, tasks, every):
        with self.g.capture() as body:
            fn()
        out = []; tasks = list(tasks); cnt = 0
        for x in body:
            out.append(x); cnt += 1
            if tasks and cnt >= every and x.kind in ('valu', 'trans') and not (x.dst & {'vcc'}):
                out += tasks.pop(0); cnt = 0
        for t in tasks: out += t
        self.g.extend(out)

    def ffn(self):
        I = self.I; g = self.g
        self.tagbase = 'f'
        self.srd(S_W, 26, 448 * 3584)
        I('v_mul_u32_u24 v6, 3584, v6'); I('v_lshl_add_u32 v%d, v7, 4, v6' % DW)
        I('s_mul_i32 s%d, s%d, 448' % (S_WSO, S_IDX))
        dms = self.start_stream(3584)
        I('s_mul_i32 s10, s%d, 192' % S_CH); I('s_add_u32 s10, s10, %d' % WPART)
        self.read_addrs(False, shared=True)
        self.pre_loop(True, 0); self.pre_post = {}
        own = lambda i, o: [(c, AW + i, 64 * c) for c in o]
        tiles = [dict(t=[(3, AS, 0)] + own(0, [0, 1, 2]), cs=True), dict(t=own(1, [0, 1, 2]), cs=True),
                 dict(t=own(2, [1, 2, 0]) + [(3, AS + 1, 0)], cs=True), dict(t=own(3, [2, 0, 1]), cs=True)]
        self.bdma, self.bread = {}, {}; self.nslot = 5
        tl = [(0, 3, 0), (1, 3, 1), (2, 3, 2), (3, 1, 6)]
        self.gemm(tiles, 3584, dms, 'f', self.bhooks(), tl)
        self.slot4_setup()
        SH = ACC + 48; X8 = 116
        def before_b1():
            I('s_xor_b32 s8, s%d, 4' % S_WAVE); I('s_lshl_b32 s8, s8, 11'); I('s_add_u32 s8, s8, %d' % L_SHX); I('v_add_u32 v%d, s8, v%d' % (AX, VL16))
            I('s_lshl_b32 s8, s%d, 11' % S_WAVE); I('s_add_u32 s8, s8, %d' % L_SHX); I('v_add_u32 v%d, s8, v%d' % (AX + 1, VL16))
            return [I('ds_write_b128 v%d, %s offset:%d' % (AX, vr(SH + 8 + 4 * q, 4), 1024 * q)) for q in range(2)]
        shr = []
        def after_b1():
            for q in range(2): shr.append(I('ds_read_b128 %s, v%d offset:%d' % (vr(X8 + 4 * q, 4), AX + 1, 1024 * q)))
        self.finish_stats(tl, -L.LOG2E, 'f', before_b1, after_b1)
        I('s_lshl_b32 s8, s%d, 2' % S_RB); I('s_add_u32 s8, s8, s%d' % S_RT); I('s_mul_i32 s9, s8, %d' % (112 * 1024))
        I('s_lshl_b32 s8, s8, 3'); I('s_add_u32 s8, s8, s%d' % S_IDX); I('s_lshl_b32 s8, s8, 1'); I('s_add_u32 s8, s8, s%d' % S_CH)
        I('s_lshl_b32 s8, s8, 7'); I('s_add_u32 s0, s8, %d' % L.WS_FLAG)
        I('s_mul_i32 s10, s%d, %d' % (S_IDX, 14 * 1024)); I('s_add_u32 s9, s9, s10')
        I('s_mul_i32 s10, s%d, 6144' % S_CH); I('s_add_u32 s10, s9, s10')
        I('s_lshl_b32 s11, s%d, 10' % S_CH); I('s_add_u32 s9, s9, s11'); I('s_add_u32 s1, s9, %d' % (12 * 1024))
        stores = []
        def unit(idx):
            c, u = divmod(idx, 2)
            A = ACC + 16 * c + 8 * u; T = [64, 72][idx & 1]; P = [80, 84][idx & 1]
            if 'noprio' not in EXP:
                lab = 'L_fp%d' % idx
                I('s_setprio 0'); I('s_cmp_eq_u32 s%d, %d' % (S_CH, idx & 1)); I('s_cbranch_scc1 %s' % lab); I('s_setprio 1'); self.g.label(lab)
            if c == 3:
                for j in range(0, 8, 2): I('v_pk_add_f32 %s, %s, %s' % (vr(A + j, 2), vr(A + j, 2), vr(X8 + j, 2)))
            for j in range(0, 8, 2): I('v_pk_mul_f32 %s, %s, %s op_sel_hi:[1,0]' % (vr(A + j, 2), vr(A + j, 2), vr(ST, 2)))
            for j in range(8): I('v_exp_f32 v%d, v%d' % (T + j, A + j))
            for j in range(0, 8, 2): I('v_pk_add_f32 %s, %s, 1.0 op_sel_hi:[1,0]' % (vr(T + j, 2), vr(T + j, 2)))
            for j in range(8): I('v_rcp_f32 v%d, v%d' % (T + j, T + j))
            for j in range(0, 8, 2): I('v_pk_mul_f32 %s, %s, %s' % (vr(T + j, 2), vr(T + j, 2), vr(A + j, 2)))
            for j in range(0, 8, 2): I('v_cvt_pk_bf16_f32 v%d, v%d, v%d' % (P + j // 2, T + j, T + j + 1))
            if idx == 4: I('s_add_u32 s10, s10, 4096')
            if c < 3: stores.append(I('buffer_store_dwordx4 %s, v%d, %s, s10 offen offset:%d sc1' % (vr(P, 4), VL16, sr(S_WS, 4), (idx % 4) * 1024)))
            else: stores.append(I('buffer_store_dwordx4 %s, v%d, %s, s1 offen sc1' % (vr(P, 4), VL16, sr(S_WS, 4))))
        self.with_bg(lambda: [unit(i) for i in range(6)], self.b_round1(shr) + ([] if 'wolate' in EXP else self.wo_dma()), int(os.environ.get('FBG', '11')))
        unit(6)
        I('s_setprio 0')
        self.stamp('epi')
        self.p2_enter()
        bt = self.b_tasks(4, 9)
        for t in bt[:5]: g.extend(t)
        self.publish(0, 96, needs=stores)
        self.stamp('pub')
        if 'nofh' not in EXP: I('s_barrier')
        for t in bt[5:8]: g.extend(t)
        pa = self.poll_issue(P2T + 1, S_FA, P2T)
        for t in bt[8:] + (self.wo_dma() if 'wolate' in EXP else []): g.extend(t)
        I('s_waitcnt lgkmcnt(0)'); I('s_nop 0', needs=[pa])
        I('s_branch L_p2')

    def b_round1(self, need4=None):
        t = [sum([self.b_read(k) for k in range(4)], [])]
        if need4 is not None: t += self.b_dma(4, needs=need4)
        for k in range(4): t += self.b_dma(k + 5, needs=self.bread[k])
        return t

    def bhooks(self, extra=None):
        post = {5: lambda: [[Instr('v_add_u32 v%d, %d, v%d' % (DB2, 8 * 896 - 1024, DB))]] + self.b_dma(0) + self.b_dma(1), 6: lambda: self.b_dma(2) + self.b_dma(3)}
        if extra: post.update(extra)
        return dict(post=post)

    def pack_k(self, A, K8):
        I = self.I
        for j in range(8): I('v_cvt_pk_bf16_f32 v%d, v%d, v%d' % (K8 + j, A + 2 * j, A + 2 * j + 1))
        for j in (6, 7): I('v_cndmask_b32 v%d, v%d, 0, %s' % (K8 + j, K8 + j, sr(S_HIM, 2)))
    def half_units(self, As, neg):
        I = self.I; M = 64; n = '-' if neg else ''; nm = ' neg_lo:[1,0,0] neg_hi:[1,0,0]' if neg else ''
        def each(f):
            for i, A in enumerate(As): f(A, M + 6 * i)
        I('v_mov_b32 v%d, 0xff800000' % (TMP + 10))
        each(lambda A, m: (I('v_max3_f32 v%d, %sv%d, %sv%d, %sv%d' % (m, n, A, n, A + 1, n, A + 2)), I('v_max3_f32 v%d, %sv%d, %sv%d, %sv%d' % (m + 1, n, A + 8, n, A + 9, n, A + 10))))
        for j in (3, 5): each(lambda A, m: (I('v_max3_f32 v%d, v%d, %sv%d, %sv%d' % (m, m, n, A + j, n, A + j + 1)), I('v_max3_f32 v%d, v%d, %sv%d, %sv%d' % (m + 1, m + 1, n, A + 8 + j, n, A + 9 + j))))
        each(lambda A, m: I('v_max3_f32 v%d, v%d, %sv%d, %sv%d' % (m + 1, m + 1, n, A + 7, n, A + 15)))
        each(lambda A, m: I('v_max_f32 v%d, v%d, v%d' % (m, m, m + 1)))
        each(lambda A, m: I('v_mov_b32 v%d, v%d' % (m + 1, m)))
        each(lambda A, m: I('v_permlane32_swap_b32 v%d, v%d' % (m, m + 1)))
        each(lambda A, m: I('v_max_f32 v%d, v%d, v%d' % (m, m, m + 1)))
        each(lambda A, m: I('v_mul_f32 v%d, -v%d, v%d' % (m, ST, m)))
        each(lambda A, m: I('v_cndmask_b32 v%d, v%d, v%d, %s' % (m + 1, m, TMP + 10, sr(S_HIM, 2))))
        for j in range(0, 16, 2):
            sel = 'op_sel_hi:[1,0,0]' if j < 12 else 'op_sel:[0,0,1] op_sel_hi:[1,0,1]'
            each(lambda A, m: I('v_pk_fma_f32 %s, %s, %s, %s %s%s' % (vr(A + j, 2), vr(A + j, 2), vr(ST, 2), vr(m, 2), sel, nm)))
        for j in range(16): each(lambda A, m: I('v_exp_f32 v%d, v%d' % (A + j, A + j)))
        each(lambda A, m: (I('v_pk_add_f32 %s, %s, %s' % (vr(m + 2, 2), vr(A, 2), vr(A + 2, 2))), I('v_pk_add_f32 %s, %s, %s' % (vr(m + 4, 2), vr(A + 8, 2), vr(A + 10, 2)))))
        for j in (4, 6): each(lambda A, m: (I('v_pk_add_f32 %s, %s, %s' % (vr(m + 2, 2), vr(m + 2, 2), vr(A + j, 2))), I('v_pk_add_f32 %s, %s, %s' % (vr(m + 4, 2), vr(m + 4, 2), vr(A + 8 + j, 2)))))
        each(lambda A, m: I('v_pk_add_f32 %s, %s, %s' % (vr(m + 2, 2), vr(m + 2, 2), vr(m + 4, 2))))
        each(lambda A, m: I('v_add_f32 v%d, v%d, v%d' % (m, m + 2, m + 3)))
        each(lambda A, m: I('v_mov_b32 v%d, v%d' % (m + 1, m)))
        each(lambda A, m: I('v_permlane32_swap_b32 v%d, v%d' % (m, m + 1)))
        each(lambda A, m: I('v_add_f32 v%d, v%d, v%d' % (m, m, m + 1)))
        each(lambda A, m: I('v_rcp_f32 v%d, v%d' % (m, m)))
        for j in range(0, 16, 2): each(lambda A, m: I('v_pk_mul_f32 %s, %s, %s op_sel_hi:[1,0]' % (vr(A + j, 2), vr(A + j, 2), vr(m, 2))))
        for j in range(8): each(lambda A, m: I('v_cvt_pk_bf16_f32 v%d, v%d, v%d' % (A + j, A + 2 * j, A + 2 * j + 1)))
    def phi_mfma(self, A, K8, WP):
        I = self.I
        I('v_mfma_f32_32x32x16_bf16 %s, %s, %s, 0' % (vr(A, 16), ar(WP, 4), vr(K8, 4)))
        I('v_mfma_f32_32x32x16_bf16 %s, %s, %s, %s' % (vr(A, 16), ar(WP + 4, 4), vr(K8 + 4, 4), vr(A, 16)))
    def softmax_unit(self, A, sreg=None):
        I = self.I
        EP, EN, M = 64, 80, TMP
        mx, nm, t, u = M, M + 1, M + 2, M + 4
        I('v_mov_b32 v%d, 0xff800000' % (M + 10))
        m2, n2 = M + 6, M + 7
        for (a, b, o) in ((mx, nm, 0), (m2, n2, 8)):
            I('v_max3_f32 v%d, v%d, v%d, v%d' % (a, A + o, A + o + 1, A + o + 2)); I('v_max3_f32 v%d, -v%d, -v%d, -v%d' % (b, A + o, A + o + 1, A + o + 2))
        for j in (3, 5):
            for (a, b, o) in ((mx, nm, 0), (m2, n2, 8)):
                I('v_max3_f32 v%d, v%d, v%d, v%d' % (a, a, A + o + j, A + o + j + 1)); I('v_max3_f32 v%d, v%d, -v%d, -v%d' % (b, b, A + o + j, A + o + j + 1))
        I('v_max3_f32 v%d, v%d, v%d, v%d' % (m2, m2, A + 7, A + 15)); I('v_max3_f32 v%d, v%d, -v%d, -v%d' % (n2, n2, A + 7, A + 15))
        I('v_max_f32 v%d, v%d, v%d' % (mx, mx, m2)); I('v_max_f32 v%d, v%d, v%d' % (nm, nm, n2))
        I('v_permlane32_swap_b32 v%d, v%d' % (mx, nm)); I('v_max_f32 v%d, v%d, v%d' % (t, mx, nm))
        I('v_mul_f32 v%d, -v%d, v%d' % (t, ST, t)); I('v_mov_b32 v%d, v%d' % (u, t)); I('v_permlane32_swap_b32 v%d, v%d' % (t, u))
        I('v_cndmask_b32 v%d, v%d, v%d, %s' % (t + 1, t, M + 10, sr(S_HIM, 2))); I('v_cndmask_b32 v%d, v%d, v%d, %s' % (u + 1, u, M + 10, sr(S_HIM, 2)))
        for j in range(0, 16, 2):
            sel = 'op_sel_hi:[1,0,0]' if j < 12 else 'op_sel:[0,0,1] op_sel_hi:[1,0,1]'
            I('v_pk_fma_f32 %s, %s, %s, %s %s' % (vr(EP + j, 2), vr(A + j, 2), vr(ST, 2), vr(t, 2), sel))
            I('v_pk_fma_f32 %s, %s, %s, %s %s neg_lo:[1,0,0] neg_hi:[1,0,0]' % (vr(EN + j, 2), vr(A + j, 2), vr(ST, 2), vr(u, 2), sel))
        for j in range(16): I('v_exp_f32 v%d, v%d' % (EP + j, EP + j)); I('v_exp_f32 v%d, v%d' % (EN + j, EN + j))
        sp, sn = M + 6, M + 8
        I('v_pk_add_f32 %s, %s, %s' % (vr(sp, 2), vr(EP, 2), vr(EP + 2, 2))); I('v_pk_add_f32 %s, %s, %s' % (vr(sn, 2), vr(EN, 2), vr(EN + 2, 2)))
        for j in range(4, 16, 2):
            I('v_pk_add_f32 %s, %s, %s' % (vr(sp, 2), vr(sp, 2), vr(EP + j, 2))); I('v_pk_add_f32 %s, %s, %s' % (vr(sn, 2), vr(sn, 2), vr(EN + j, 2)))
        I('v_add_f32 v%d, v%d, v%d' % (sp, sp, sp + 1)); I('v_add_f32 v%d, v%d, v%d' % (sn, sn, sn + 1))
        I('v_permlane32_swap_b32 v%d, v%d' % (sp, sn)); I('v_add_f32 v%d, v%d, v%d' % (t, sp, sn))
        if sreg is None:
            I('v_rcp_f32 v%d, v%d' % (t, t)); I('v_mov_b32 v%d, v%d' % (u, t)); I('v_permlane32_swap_b32 v%d, v%d' % (t, u))
            for j in range(0, 16, 2):
                I('v_pk_mul_f32 %s, %s, %s op_sel_hi:[1,0]' % (vr(EP + j, 2), vr(EP + j, 2), vr(t, 2)))
                I('v_pk_mul_f32 %s, %s, %s op_sel_hi:[1,0]' % (vr(EN + j, 2), vr(EN + j, 2), vr(u, 2)))
            for j in range(8):
                I('v_cvt_pk_bf16_f32 v%d, v%d, v%d' % (A + j, EP + 2 * j, EP + 2 * j + 1)); I('v_cvt_pk_bf16_f32 v%d, v%d, v%d' % (A + 8 + j, EN + 2 * j, EN + 2 * j + 1))
        else:
            I('v_mov_b32 v%d, v%d' % (u, t))
            for j in range(2): I('v_cvt_pk_bf16_f32 v%d, v%d, v%d' % (A + j, EP + 2 * j, EP + 2 * j + 1))
            I('v_permlane32_swap_b32 v%d, v%d' % (t, u)); I('v_rcp_f32 v%d, v%d' % (u, u))
            for j in range(2, 8): I('v_cvt_pk_bf16_f32 v%d, v%d, v%d' % (A + j, EP + 2 * j, EP + 2 * j + 1))
            I('v_mul_f32 v%d, v%d, v%d' % (u, u, t)); I('v_mov_b32 v%d, v%d' % (sreg, t))
            for j in range(0, 16, 2): I('v_pk_mul_f32 %s, %s, %s op_sel_hi:[1,0]' % (vr(EN + j, 2), vr(EN + j, 2), vr(u, 2)))
            for j in range(8): I('v_cvt_pk_bf16_f32 v%d, v%d, v%d' % (A + 8 + j, EN + 2 * j, EN + 2 * j + 1))

    def wphi_dma(self, n, head0_s):
        I = self.I; out = []
        I('s_mul_i32 s8, s%d, 1568' % head0_s); I('s_lshl_b32 s9, s%d, 10' % S_WAVE); I('s_add_u32 s8, s8, s9'); I('s_add_u32 s9, s9, %d' % L_WPHI)
        for i in range(n):
            I('s_add_u32 m0, s9, %d' % (8192 * i)); I('s_add_u32 s10, s8, %d' % (8192 * i))
            out.append(I('buffer_load_dwordx4 v%d, %s, s10 offen lds' % (VL16, sr(S_PHI, 4))))
        return out
    def wphi_read(self, nheads, hoff_s, WP):
        I = self.I; T = TMP + 9
        I('v_lshrrev_b32 v%d, 5, v%d' % (T, VLANE)); I('v_lshlrev_b32 v%d, 2, v%d' % (T, T)); I('v_bfe_u32 v%d, v%d, 2, 2' % (T + 1, VLANE)); I('v_add_u32 v%d, v%d, v%d' % (T, T, T + 1))
        I('v_mul_u32_u24 v%d, 56, v%d' % (T, T)); I('v_add_u32 v%d, s%d, v%d' % (T, hoff_s, T))
        I('v_bfe_u32 v%d, v%d, 4, 1' % (T + 1, VLANE)); I('v_lshlrev_b32 v%d, 2, v%d' % (T + 1, T + 1)); I('v_and_or_b32 v%d, v%d, 3, v%d' % (T + 1, VLANE, T + 1))
        I('v_min_u32 v%d, 6, v%d' % (T + 1, T + 1)); I('v_lshl_add_u32 v%d, v%d, 3, v%d' % (T, T + 1, T))
        for i in range(nheads):
            for s in range(2):
                for h in range(2):
                    I('ds_read_b64_tr_b16 %s, v%d offset:%d' % (ar(WP + 8 * i + 4 * s + 2 * h, 2), T, i * 1568 + (16 * s + 8 * h) * 56))

    def kv_common(self):
        I = self.I; g = self.g
        self.tagbase = 'k'
        self.srd(S_W, 18, 448 * 2688)
        I('s_lshl_b32 s8, s%d, 2' % S_IDX); I('s_lshr_b32 s9, 0xdb9630, s8'); I('s_and_b32 s9, s9, 15')
        I('s_lshr_b32 s10, 0x322333, s8'); I('s_and_b32 s10, s10, 15')
        I('s_mul_i32 s11, s9, 56'); I('s_and_b32 s%d, s11, -16' % S_WSO); I('s_and_b32 s11, s11, 8')
        I('s_mul_i32 s8, s10, 3'); I('s_add_u32 s8, s8, 1')
        I('v_cmp_lt_u32 vcc, 13, v7'); I('v_subrev_u32 v8, 14, v7'); I('v_cndmask_b32 v8, v7, v8, vcc'); I('v_min_u32 v8, s8, v8')
        I('v_mov_b32 v9, 896'); I('v_mov_b32 v10, 1792'); I('v_cndmask_b32 v9, v9, v10, vcc')
        I('v_mul_u32_u24 v6, 2688, v6'); I('v_add_u32 v6, v6, v9'); I('v_lshl_add_u32 v%d, v8, 4, v6' % DW)
        I('s_mov_b32 s0, s9'); I('s_mov_b32 s1, s10'); I('s_mov_b32 s%d, s11' % S_NONCE)
        dms = self.start_stream(2688)
        I('s_mul_i32 s10, s%d, 224' % S_CH); I('s_add_u32 s10, s10, s%d' % S_NONCE); I('s_add_u32 s10, s10, %d' % WPART)
        self.read_addrs(True)
        PW, HO, UA, VW, ZV = 48, 50, 51, 54, 58
        def kvx():
            I('s_mov_b32 s%d, s0' % S_H0); I('s_mov_b32 s%d, s1' % S_NH)
        def kvl():
            I('s_mov_b32 s%d, s%d' % (S_R0, S_H0))
            if ATOM:
                I('s_cmp_lg_u32 s%d, 0' % S_RB); I('s_cbranch_scc1 L_nozero')
                Z = 68
                for i in range(4): I('v_mov_b32 v%d, 0' % (Z + i))
                I('s_lshl_b32 s8, s%d, 13' % S_H0); I('s_lshl_b32 s9, s%d, 10' % S_WAVE); I('s_add_u32 s8, s8, s9'); I('s_add_u32 s8, s8, %d' % L.WS_KV)
                self.U('buffer_store_dwordx4 %s, v%d, %s, s8 offen sc1' % (vr(Z, 4), VL16, sr(S_WS, 4)))
                I('s_add_u32 s8, s8, 8192'); self.U('buffer_store_dwordx4 %s, v%d, %s, s8 offen sc1' % (vr(Z, 4), VL16, sr(S_WS, 4)))
                I('s_add_u32 s8, s8, 8192'); I('s_cmp_eq_u32 s%d, 3' % S_NH); I('s_cselect_b32 s8, s8, 0x7f000000')
                self.U('buffer_store_dwordx4 %s, v%d, %s, s8 offen sc1' % (vr(Z, 4), VL16, sr(S_WS, 4))); I('s_nop 1')
                self.g.label('L_nozero')
            for gp in post4(): g.extend(gp)
        kv_pre = lambda: self.pre_loop(True, 8, kvx, kvl)
        rot = lambda i: [((i + cc) % 3, AW + i, 56 * ((i + cc) % 3)) for cc in range(3)]
        tiles = [dict(t=rot(i), cs=(i < 3)) for i in range(4)]
        self.bdma, self.bread = {}, {}; self.nslot = 5
        def pre2():
            pass
        def post2():
            with g.capture() as a:
                I('s_mov_b32 s8, %d' % L_WPHI)
                self.wphi_read(3, 8, 88)
            return [a]
        def post3():
            with g.capture() as a:
                I('s_or_b32 s8, s%d, s%d' % (S_RB, S_WAVE)); I('s_cmp_lg_u32 s8, 0'); I('s_cbranch_scc1 L_nozf')
                I('s_lshl_b32 s8, s%d, 7' % S_IDX); I('s_add_u32 s8, s8, %d' % (L.WS_KVZ + 0x4000))
                self.publish(8, TMP + 8).kind = 'untracked'
                self.g.label('L_nozf')
            return [a]
        self.kvr = (PW, HO, UA, VW, ZV)
        def post4():
            A, B, C = 64, 65, 66; out = []
            with g.capture() as a:
                I('v_and_b32 v%d, 31, v%d' % (A, VLANE)); I('v_lshlrev_b32 v%d, 6, v%d' % (A, A)); I('s_lshl_b32 s8, s%d, 11' % S_RT); I('v_add_u32 v%d, s8, v%d' % (A, A))
                I('v_bfe_u32 v%d, v%d, 1, 2' % (B, VLANE)); I('v_lshl_add_u32 v%d, v%d, 4, v%d' % (A, B, A))
                I('v_lshrrev_b32 v%d, 5, v%d' % (B, VLANE))
                I('v_lshl_add_u32 v%d, v%d, 13, v%d' % (PW, B, A)); I('s_lshl_b32 s9, s%d, 5' % S_CH); I('v_xor_b32 v%d, s9, v%d' % (PW, PW)); I('v_xor_b32 v%d, 16, v%d' % (PW + 1, PW))
                I('s_add_u32 s8, s8, %d' % L_V); I('v_add_u32 v%d, s8, v%d' % (HO, VL16))
                I('v_lshl_add_u32 v%d, v%d, 3, v%d' % (VW, B, A)); I('v_add_u32 v%d, %d, v%d' % (VW, L_V, VW))
                for q in range(1, 4): I('v_xor_b32 v%d, %d, v%d' % (VW + q, 16 * q, VW))
                I('v_lshlrev_b32 v%d, 10, v%d' % (UA + 2, B)); I('v_and_b32 v%d, 31, v%d' % (A, VLANE)); I('v_lshl_add_u32 v%d, v%d, 2, v%d' % (UA + 2, A, UA + 2))
            out.append(a)
            with g.capture() as a:
                I('v_lshrrev_b32 v%d, 5, v%d' % (A, VLANE)); I('v_bfe_u32 v%d, v%d, 2, 2' % (B, VLANE)); I('v_lshl_add_u32 v%d, v%d, 2, v%d' % (A, A, B))
                I('v_bfe_u32 v%d, v%d, 4, 1' % (B, VLANE)); I('v_bfe_u32 v%d, v%d, 1, 1' % (C, VLANE)); I('v_lshl_add_u32 v%d, v%d, 1, v%d' % (B, B, C))
                I('v_lshrrev_b32 v%d, 1, v%d' % (C, A)); I('v_xor_b32 v%d, v%d, v%d' % (B, B, C)); I('v_lshlrev_b32 v%d, 6, v%d' % (A, A)); I('v_lshl_add_u32 v%d, v%d, 4, v%d' % (A, B, A))
                I('v_and_b32 v%d, 1, v%d' % (B, VLANE)); I('v_lshl_add_u32 v%d, v%d, 3, v%d' % (A, B, A))
                I('s_lshl_b32 s10, s%d, 13' % S_WAVE); I('v_add_u32 v%d, s10, v%d' % (UA + 1, A))
                I('s_lshr_b32 s9, s%d, 1' % S_WAVE); I('s_lshl_b32 s10, s9, 13'); I('s_add_u32 s10, s10, %d' % L_V); I('v_add_u32 v%d, s10, v%d' % (UA, A))
                I('s_add_u32 s10, s9, s%d' % S_H0); I('s_lshl_b32 s10, s10, 13'); I('s_and_b32 s8, s%d, 1' % S_WAVE); I('s_lshl_b32 s8, s8, 7'); I('s_add_u32 s10, s10, s8')
                I('s_add_u32 s0, s10, %d' % L.WS_KV)
                I('s_cmp_lt_u32 s9, s%d' % S_NH); I('s_cselect_b32 s%d, 1, 0' % S_NH)
                I('s_lshl_b32 s8, s%d, 4' % S_IDX); I('s_add_u32 s8, s8, s%d' % S_RB); I('s_lshl_b32 s8, s8, 7'); I('s_add_u32 s1, s8, %d' % L.WS_KVZ)
                I('s_lshl_b32 s%d, s%d, 7' % (S_H0, S_IDX)); I('s_add_u32 s%d, s%d, %d' % (S_H0, S_H0, L.WS_KVZ + 0x4000)); I('v_mov_b32 v%d, 0' % ZV)
            out.append(a)
            return out
        kv_pre()
        def wpd():
            with g.capture() as a: self.wphi_dma(1, S_R0)
            return [a]
        self.pre_post = {2: wpd}
        hk = self.bhooks({4: post2, NST: post3})
        p6 = hk['post'][6]
        def post6():
            with g.capture() as a: self.poll_issue(ZV, S_H0, ZV + 1)
            return [a] + p6()
        hk['post'][6] = post6
        tl = [(c, 4, c) for c in range(3)]
        self.gemm(tiles, 2688, dms, 'k', hk, tl)
        self.finish_stats(tl, L.LOG2E, 'k', self.slot4_setup)
        I('s_cmp_eq_u32 s%d, 1' % S_CH); I('s_cbranch_scc1 L_kv_v')

    def kv_rest(self, tg, As, wr):
        I = self.I; g = self.g; PW, HO, U, VW, ZV = self.kvr
        self.with_bg(lambda: self.half_units(As, tg == 'v'), self.b_round1(), int(os.environ.get('KBG', '14')))
        for i, A in enumerate(As):
            wr += [I('ds_write_b128 v%d, %s offset:%d' % (PW + q, vr(A + 4 * q, 4), L_PHI + 16384 * i)) for q in range(2)]
        self.poll_check('z' + tg, ZV, S_H0, ZV + 1)
        for k in range(5, 9): g.extend(self.b_read(k))
        I('s_add_u32 s10, s0, 4096')
        I('s_waitcnt lgkmcnt(0)')
        I('s_barrier')
        self.stamp('bb')
        I('s_cmp_eq_u32 s%d, 0' % S_NH); I('s_cbranch_scc1 L_nounit%s' % tg)
        if 'uprio' in EXP and tg == 'v': I('s_setprio 3')
        def rd(s):
            b = 64 + 8 * (s % 4)
            for h in range(2):
                I('ds_read_b64_tr_b16 %s, v%d offset:%d' % (vr(b + 2 * h, 2), U, (16 * s + 8 * h) * 64))
                I('ds_read_b64_tr_b16 %s, v%d offset:%d' % (vr(b + 4 + 2 * h, 2), U + 1, (16 * s + 8 * h) * 64))
        D = ACC
        for s in range(3): rd(s)
        for s in range(8):
            if s + 3 < 8: rd(s + 3)
            b = 64 + 8 * (s % 4)
            I('v_mfma_f32_32x32x16_bf16 %s, %s, %s, %s' % (vr(D, 16), vr(b, 4), vr(b + 4, 4), vr(D, 16) if s else '0'))
        I('s_nop 7'); I('s_nop 4')
        for r in range(16):
            d = (r & 3) + 8 * (r >> 2)
            if r == 14: I('s_mov_b32 exec_hi, 0')
            self.U('buffer_atomic_add_f32 v%d, v%d, %s, s%d offen offset:%d' % (D + r, U + 2, sr(S_WS, 4), 0 if d < 16 else 10, (d % 16) * 256))
        I('s_mov_b64 exec, -1')
        self.g.label('L_nounit%s' % tg)
        I('s_waitcnt vmcnt(0)')
        I('s_barrier')
        if True:
            I('s_cmp_lg_u32 s%d, 7' % S_WAVE); I('s_cbranch_scc1 L_nokf%s' % tg)
            self.publish(1, 96).kind = 'untracked'
            self.g.label('L_nokf%s' % tg)
            self.stamp('kvdone')
        I('s_setprio 0')
        bulk = self.b_dma(4)
        for k in range(5, 9): bulk += self.b_dma(k + 5)
        bulk += self.wo_dma()
        for t in bulk[:6]: g.extend(t)
        self.p2_enter()
        pa = self.poll_issue(P2T + 1, S_FA, P2T)
        for t in bulk[6:] + self.b_tasks(4, 5): g.extend(t)
        I('s_waitcnt lgkmcnt(0)'); I('s_nop 0', needs=[pa])
        I('s_branch L_p2')

    def kv_k(self):
        I = self.I; g = self.g; PW, HO, U, VW, ZV = self.kvr
        wr = []
        for i in range(3):
            N = 80 + 8 * i
            self.pack_k(ACC + 16 * i, N)
            wr += [I('ds_write_b128 v%d, %s offset:%d' % (HO, vr(N + 4 * q, 4), 8192 * i + 1024 * q)) for q in range(2)]
        I('s_barrier', needs=wr)
        for i in range(3): self.phi_mfma(ACC + 16 * i, 80 + 8 * i, 88 + 8 * i)
        self.kv_rest('k', [ACC, ACC + 16, ACC + 32], [])

    def kv_v(self):
        I = self.I; g = self.g; PW, HO, U, VW, ZV = self.kvr
        I('v_cndmask_b32 v%d, v%d, 0, %s' % (CS, ST + 1, sr(S_HIM, 2))); I('v_cndmask_b32 v%d, 0, 1.0, %s' % (CS + 1, sr(S_HIM, 2)))
        PV = [88, 96, 112]
        def vpath(i):
            A = ACC + 16 * i
            for j in range(0, 12, 2): I('v_pk_mul_f32 %s, %s, %s op_sel:[0,1] op_sel_hi:[1,1]' % (vr(A + j, 2), vr(A + j, 2), vr(ST, 2)))
            for j in (12, 14): I('v_pk_fma_f32 %s, %s, %s, %s op_sel:[0,0,1] op_sel_hi:[1,0,1]' % (vr(A + j, 2), vr(A + j, 2), vr(CS, 2), vr(CS, 2)))
            for j in range(8): I('v_cvt_pk_bf16_f32 v%d, v%d, v%d' % (PV[i] + j, A + 2 * j, A + 2 * j + 1))
        vpath(0); vpath(1)
        I('s_barrier')
        rd = [I('ds_read_b128 %s, v%d offset:%d' % (vr(64 + 8 * i + 4 * q, 4), HO, 8192 * i + 1024 * q)) for i in range(3) for q in range(2)]
        vpath(2)
        wr = []
        for i in range(3):
            self.phi_mfma(ACC + 16 * i, 64 + 8 * i, 88 + 8 * i)
            wr += [I('ds_write_b64 v%d, %s offset:%d' % (VW + q, vr(PV[i] + 2 * q, 2), 8192 * i), needs=rd[2 * i:2 * i + 2]) for q in range(4)]
        self.kv_rest('v', [ACC, ACC + 16, ACC + 32], wr)
    _uid = 0
    def uid(self):
        K._uid += 1
        return str(K._uid)

    def q(self):
        I = self.I; g = self.g
        self.tagbase = 'q'
        self.srd(S_W, 18, 448 * 2688)
        I('v_mul_u32_u24 v6, 2688, v6'); I('v_lshl_add_u32 v%d, v7, 4, v6' % DW)
        I('s_mul_i32 s%d, s%d, 448' % (S_WSO, S_IDX))
        dms = self.start_stream(2688)
        I('s_mul_i32 s10, s%d, 224' % S_CH); I('s_add_u32 s10, s10, %d' % WPART)
        self.read_addrs(True)
        self.pre_loop(False, 14, lambda: I('s_lshl_b32 s%d, s%d, 3' % (S_H0, S_IDX)))
        def wpd():
            with g.capture() as a: self.wphi_dma(2, S_H0)
            return [a]
        self.pre_post = {2: wpd}
        tiles = [dict(t=[((i + cc) % 4, AW + i, 56 * ((i + cc) % 4)) for cc in range(4)], cs=True) for i in range(4)]
        def post2():
            with g.capture() as a:
                I('s_mul_i32 s8, s%d, %d' % (S_CH, 4 * 1568)); I('s_add_u32 s8, s8, %d' % L_WPHI)
                self.wphi_read(4, 8, 0)
            return [a]
        tl = [(c, 4, c) for c in range(4)]
        self.gemm(tiles, 2688, dms, 'q', dict(post={4: post2}), tl)
        self.finish_stats(tl, L.LOG2E, 'q')
        for i in range(4):
            self.pack_k(ACC + 16 * i, 80 + 8 * (i & 1)); self.phi_mfma(ACC + 16 * i, 80 + 8 * (i & 1), 8 * i)
        for i in range(4): self.softmax_unit(ACC + 16 * i, sreg=124 + i)
        self.stamp('soft')
        if 'noq' in EXP: return
        T = TMP
        if 'lat' in EXP:
            I('s_lshl_b32 s8, s2, 3'); I('s_add_u32 s8, s8, s%d' % S_WAVE); I('s_lshl_b32 s8, s8, 9'); I('s_add_u32 s8, s8, %d' % (15 << 20)); I('v_mov_b32 v%d, 0' % T)
            for rep_ in range(2):
                I('buffer_load_dword v%d, v%d, %s, s8 offen offset:%d sc1' % (T + 1, T, sr(S_WS, 4), 256 * rep_)); I('s_waitcnt vmcnt(0)'); self.stamp('miss')
                I('buffer_load_dword v%d, v%d, %s, s8 offen offset:%d sc1' % (T + 1, T, sr(S_WS, 4), 256 * rep_)); I('s_waitcnt vmcnt(0)'); self.stamp('l2hit')
                I('buffer_store_dword v%d, v%d, %s, s8 offen offset:%d sc1' % (T + 1, T, sr(S_WS, 4), 128 + 256 * rep_)); I('s_waitcnt vmcnt(0)'); self.stamp('st')
            self.nst = 15
        if 'qpf' in EXP:
            I('s_and_b32 s8, s2, 7'); I('s_lshl_b32 s8, s8, 2'); I('s_bfe_u32 s9, s2, 0x20003'); I('s_add_u32 s8, s8, s9')
            I('s_lshl_b32 s9, s8, 12'); I('s_lshl_b32 s10, s%d, 8' % S_WAVE); I('s_add_u32 s9, s9, s10'); I('s_add_u32 s11, s9, %d' % L.WS_FLAG)
            I('v_and_b32 v%d, 1, v%d' % (T, VLANE)); I('v_lshlrev_b32 v%d, 11, v%d' % (T, T)); I('v_and_b32 v%d, 2, v%d' % (T + 1, VLANE)); I('v_lshl_add_u32 v%d, v%d, 6, v%d' % (T, T + 1, T))
            I('s_mul_i32 s8, s8, 224'); I('s_mul_i32 s9, s%d, 14' % S_WAVE); I('s_add_u32 s8, s8, s9'); I('s_lshl_b32 s10, s8, 10'); I('s_add_u32 s9, s10, %d' % (112 * 1024))
            I('v_lshlrev_b32 v%d, 7, v%d' % (T + 2, VLANE)); I('v_add_u32 v%d, 8192, v%d' % (T + 3, T + 2))
            self.g.label('L_qpf')
            self.U('buffer_load_dword v%d, v%d, %s, s11 offen sc1' % (T + 1, T, sr(S_WS, 4))); self.U('s_waitcnt vmcnt(0)')
            I('v_cmp_ne_u32 vcc, s%d, v%d' % (S_NONCE, T + 1)); I('s_nop 1'); I('s_cbranch_vccz L_qpfd')
            self.spin_tail('L_qpf', QSL)
            self.g.label('L_qpfd')
            for so in (10, 9): I('buffer_load_dword a100, v%d, %s, s%d offen' % (T + 2, sr(S_WS, 4), so)).dst = set()
            I('s_mov_b32 exec_hi, 0xffff')
            for so in (10, 9): I('buffer_load_dword a100, v%d, %s, s%d offen' % (T + 3, sr(S_WS, 4), so)).dst = set()
            I('s_mov_b64 exec, -1')
        if ATOM:
            T = TMP
            I('v_lshrrev_b32 v%d, 4, v%d' % (T, VLANE)); I('s_lshl_b32 s8, s%d, 1' % S_IDX); I('v_add_u32 v%d, s8, v%d' % (T, T))
            I('s_mul_i32 s8, s%d, 3' % S_IDX); I('s_add_u32 s8, s8, 2'); I('v_min_u32 v%d, s8, v%d' % (T, T))
            I('v_and_b32 v%d, 15, v%d' % (T + 1, VLANE)); I('v_lshl_add_u32 v%d, v%d, 4, v%d' % (T, T, T + 1)); I('v_lshlrev_b32 v%d, 7, v%d' % (T, T))
            I('s_mov_b32 s11, %d' % L.WS_KVZ)
            I('v_lshrrev_b32 v%d, 3, v%d' % (T + 2, VLANE)); I('v_and_b32 v%d, 7, v%d' % (T + 3, VLANE)); I('v_lshlrev_b32 v%d, 4, v%d' % (T + 4, T + 3)); I('v_lshl_add_u32 v%d, v%d, 8, v%d' % (T + 4, T + 2, T + 4))
            I('s_add_u32 s8, s%d, s%d' % (S_H0, S_WAVE)); I('s_lshl_b32 s8, s8, 13'); I('s_add_u32 s0, s8, %d' % L.WS_KV); I('s_add_u32 s1, s0, 4096')
            I('v_lshrrev_b32 v%d, 1, v%d' % (T + 5, T + 3)); I('v_lshlrev_b32 v%d, 10, v%d' % (T + 5, T + 5)); I('v_and_b32 v%d, 1, v%d' % (T + 3, T + 3)); I('v_lshl_add_u32 v%d, v%d, 3, v%d' % (T + 5, T + 3, T + 5))
            I('s_lshl_b32 s8, s%d, 12' % S_WAVE); I('v_add_u32 v%d, s8, v%d' % (T + 5, T + 5))
            WA4 = 112
            for i in range(4):
                a, b, c_ = T + 6, T + 7, T + 3
                I('v_add_u32 v%d, %d, v%d' % (a, 8 * i, T + 2))
                I('v_cmp_lt_u32 vcc, 13, v%d' % a); I('v_subrev_u32 v%d, 14, v%d' % (b, a)); I('v_cndmask_b32 v%d, v%d, v%d, vcc' % (b, a, b)); I('v_cndmask_b32 v%d, 0, 4, vcc' % c_)
                if i == 3:
                    I('v_cmp_lt_u32 vcc, 27, v%d' % a); I('v_and_b32 v%d, 1, v%d' % (T + 8, a)); I('v_lshlrev_b32 v%d, 2, v%d' % (T + 8, T + 8)); I('v_cndmask_b32 v%d, v%d, v%d, vcc' % (c_, c_, T + 8))
                    I('v_bfe_u32 v%d, v%d, 1, 1' % (T + 8, a)); I('v_add_u32 v%d, 14, v%d' % (T + 8, T + 8)); I('v_cndmask_b32 v%d, v%d, v%d, vcc' % (b, b, T + 8))
                I('v_and_or_b32 v%d, v%d, 3, v%d' % (c_, b, c_)); I('v_lshrrev_b32 v%d, 2, v%d' % (b, b)); I('v_lshl_add_u32 v%d, v%d, 3, v%d' % (c_, b, c_))
                I('v_lshl_add_u32 v%d, v%d, 4, v%d' % (WA4 + i, c_, T + 5))
            I('s_lshl_b32 s8, s%d, 14' % S_CH); I('v_add_u32 v%d, s8, v%d' % (T + 2, VL16))
            self.q_scalars()
            I('s_cmp_lg_u32 s%d, 0' % S_WAVE); I('s_cbranch_scc1 L_polldkv')
            self.g.label('L_pollkv')
            self.U('buffer_load_dword v64, v%d, %s, s11 offen sc1' % (T, sr(S_WS, 4))); self.U('s_waitcnt vmcnt(0)')
            I('v_cmp_ne_u32 vcc, s%d, v64' % S_NONCE); I('s_nop 1'); I('s_cbranch_vccz L_polldkv')
            self.spin_tail('L_pollkv', QSL)
            self.g.label('L_polldkv')
            I('s_barrier')
            self.stamp('kvok')
            for i in range(8):
                I('buffer_load_dwordx4 %s, v%d, %s, s%d offen offset:%d sc1' % (vr(64 + 4 * i, 4), T + 4, sr(S_WS, 4), (i >> 1) & 1, (i & 1) * 2048 + (i >> 2) * 128))
            wr = []
            for i in range(8):
                I('v_cvt_pk_bf16_f32 v%d, v%d, v%d' % (64 + 4 * i, 64 + 4 * i, 65 + 4 * i)); I('v_cvt_pk_bf16_f32 v%d, v%d, v%d' % (65 + 4 * i, 66 + 4 * i, 67 + 4 * i))
                wr.append(I('ds_write_b64 v%d, %s offset:%d' % (WA4 + (i & 3), vr(64 + 4 * i, 2), 512 * (i >> 2))))
            self.stamp('kvld')
            qbar = lambda: (I('s_barrier', needs=wr), [I('ds_read_b128 %s, v%d offset:%d' % (ar(32 + 16 * i + 4 * s, 4), T + 2, 4096 * i + 1024 * s)) for i in range(4) for s in range(4)])
        else:
            I('v_bfe_u32 v%d, v%d, 3, 2' % (T + 2, VLANE)); I('v_lshlrev_b32 v%d, 2, v%d' % (T + 2, T + 2)); I('v_and_or_b32 v%d, v%d, 3, v%d' % (T + 2, VLANE, T + 2))
            I('v_bfe_u32 v%d, v%d, 2, 1' % (T + 3, VLANE)); I('v_mul_u32_u24 v%d, 14, v%d' % (T + 3, T + 3)); I('v_add_u32 v%d, v%d, v%d' % (T + 3, T + 3, T + 2))
            I('v_cmp_gt_u32 vcc, 14, v%d' % (T + 2)); I('v_cndmask_b32 v%d, 28, v%d, vcc' % (T + 3, T + 3))
            I('v_and_b32 v%d, 32, v%d' % (T + 2, VLANE)); I('v_lshlrev_b32 v%d, 6, v%d' % (T + 2, T + 2)); I('v_lshl_add_u32 v%d, v%d, 4, v%d' % (T + 2, T + 3, T + 2))
            I('s_lshl_b32 s8, s%d, 14' % S_CH); I('v_add_u32 v%d, s8, v%d' % (T + 2, T + 2))
            I('v_and_b32 v%d, 15, v%d' % (T, VLANE)); I('v_lshlrev_b32 v%d, 7, v%d' % (T, T))
            I('v_and_b32 v%d, 7, v%d' % (T + 3, VLANE)); I('v_lshlrev_b32 v%d, 7, v%d' % (T + 3, T + 3))
            I('s_cmp_lg_u32 s%d, 0' % S_CH); I('s_cbranch_scc1 L_noreduce')
            I('s_lshl_b32 s8, s%d, 1' % S_RB); I('s_add_u32 s8, s8, s%d' % S_IDX); I('s_lshl_b32 s8, s8, 2'); I('s_add_u32 s11, s8, s%d' % S_RT)
            I('s_lshl_b32 s0, s11, 14'); I('s_add_u32 s0, s0, %d' % L.WS_SL)
            I('s_mov_b32 s8, 0x22111000'); I('s_mov_b32 s9, 0x55544332'); I('s_lshl_b32 s10, s%d, 2' % S_RB); I('s_lshr_b64 s[8:9], s[8:9], s10'); I('s_and_b32 s8, s8, 15')
            I('s_lshl_b32 s8, s8, 11'); I('s_add_u32 s1, s8, %d' % L.WS_KVZ)
            self.g.label('L_red_poll')
            self.U('buffer_load_dword v%d, v%d, %s, s1 offen sc1' % (T + 1, T, sr(S_WS, 4))); self.U('s_waitcnt vmcnt(0)')
            I('v_cmp_ne_u32 vcc, s%d, v%d' % (S_NONCE, T + 1)); I('s_nop 1'); I('s_cbranch_vccz L_red_load')
            self.spin_tail('L_red_poll', QSL)
            self.g.label('L_red_load')
            R = 64
            def src(i): return (64 + 4 * i) if i < 15 else T + 4
            for i in range(16):
                if i % 4 == 0: I('s_add_u32 s8, s0, %d' % (1024 * i))
                I('buffer_load_dwordx4 %s, v%d, %s, s8 offen offset:%d' % (vr(src(i), 4), VL16, sr(S_WS, 4), 1024 * (i % 4)))
            I('s_lshl_b32 s8, s11, 9'); I('s_add_u32 s8, s8, %d' % L.WS_KF); I('s_lshl_b32 s9, s11, 7'); I('s_add_u32 s9, s9, %d' % L.WS_KVD)
            for i in range(2, 16):
                for j in (0, 2): I('v_pk_add_f32 %s, %s, %s' % (vr(R + 4 * (i & 1) + j, 2), vr(R + 4 * (i & 1) + j, 2), vr(src(i) + j, 2)))
            for j in (0, 2): I('v_pk_add_f32 %s, %s, %s' % (vr(R + j, 2), vr(R + j, 2), vr(R + 4 + j, 2)))
            I('v_cvt_pk_bf16_f32 v68, v64, v65'); I('v_cvt_pk_bf16_f32 v69, v66, v67')
            I('v_mov_b32 v72, v68'); I('v_mov_b32 v73, v69')
            I('v_permlane32_swap_b32 v72, v70'); I('v_permlane32_swap_b32 v73, v71')
            I('s_mov_b32 exec_hi, 0')
            I('buffer_store_dwordx4 v[68:71], v%d, %s, s8 offen sc1' % (VL16, sr(S_WS, 4)))
            I('s_mov_b64 exec, -1')
            self.stamp('red')
            I('s_waitcnt vmcnt(0)')
            self.publish(9, 72).kind = 'untracked'
            self.g.label('L_noreduce')
            I('s_add_u32 s10, s%d, s%d' % (S_H0, S_WAVE)); I('s_lshl_b32 s11, s10, 10'); I('s_add_u32 s11, s11, %d' % L.WS_KVD)
            I('s_lshl_b32 s10, s10, 12'); I('s_add_u32 s10, s10, %d' % L.WS_KF); I('s_lshl_b32 m0, s%d, 12' % S_WAVE)
            self.g.label('L_pollkv')
            self.U('buffer_load_dword v64, v%d, %s, s11 offen sc1' % (T + 3, sr(S_WS, 4))); self.U('s_waitcnt vmcnt(0)')
            I('v_cmp_ne_u32 vcc, s%d, v64' % S_NONCE); I('s_nop 1'); I('s_cbranch_vccz L_polldkv')
            self.spin_tail('L_pollkv', QSL)
            self.g.label('L_polldkv')
            self.nst = 7
            self.stamp('kvok')
            dm = [I('buffer_load_dwordx4 v%d, %s, s10 offen offset:%d lds' % (VL16, sr(S_WS, 4), 1024 * i)) for i in range(4)]
            qbar = lambda: (I('s_barrier', needs=dm), [I('ds_read_b128 %s, v%d offset:%d' % (ar(32 + 16 * i + 4 * sf, 4), T + 2, 4096 * i + 512 * sf)) for i in range(4) for sf in range(4)])
        qbar()
        N = [64, 80, ACC, ACC + 16]; O = 96
        def ost(f): I('buffer_store_dwordx4 %s, v%d, %s, s%d offen offset:%d sc1' % (vr(O + 4 * f, 4), VL16, sr(S_WS, 4), 20 if f < 4 else 21, (f % 4) * 1024))
        def mm(i):
            for s in range(4):
                I('v_mfma_f32_32x32x16_bf16 %s, %s, %s, %s' % (vr(N[i], 16), ar(32 + 16 * i + 4 * s, 4), vr(ACC + 16 * i + 4 * s, 4), vr(N[i], 16) if s else '0'))
        done = 0
        mm(0); mm(1)
        for i in range(4):
            with g.capture() as fin: self.o_fin(N[i], O + 7 * i, 124 + i)
            if i + 2 < 4:
                with g.capture() as m4: mm(i + 2)
                k = len(fin) // 4
                for j in range(4): g.extend([m4[j]] + fin[j * k:(j + 1) * k if j < 3 else None])
            else: g.extend(fin)
            while 4 * (done + 1) <= 7 * (i + 1): ost(done); done += 1
        self.stamp('ocomp')
        I('s_waitcnt vmcnt(0)')
        self.publish(22, TMP)
        self.stamp('opub')
        I('s_waitcnt vmcnt(0)')
    def q_scalars(self):
        I = self.I
        I('s_lshl_b32 s8, s%d, 2' % S_RB); I('s_add_u32 s10, s8, s%d' % S_RT); I('s_mul_i32 s8, s10, 28'); I('s_mul_i32 s9, s%d, 14' % S_IDX); I('s_add_u32 s8, s8, s9')
        I('s_mul_i32 s9, s%d, 7' % S_CH); I('s_add_u32 s8, s8, s9'); I('s_lshl_b32 s8, s8, 10'); I('s_add_u32 s20, s8, %d' % L.WS_O); I('s_add_u32 s21, s20, 4096')
        I('s_lshl_b32 s8, s10, 1'); I('s_add_u32 s8, s8, s%d' % S_IDX)
        I('s_lshl_b32 s8, s8, 1'); I('s_add_u32 s8, s8, s%d' % S_CH); I('s_lshl_b32 s8, s8, 7'); I('s_add_u32 s22, s8, %d' % L.WS_FO)
    def o_fin(self, N, O, sreg):
        I = self.I; t = TMP + 8
        I('v_fmac_f32 v%d, %s, v%d' % (N + 14, f32(1e-6), sreg)); I('v_rcp_f32 v%d, v%d' % (t, N + 14))
        for j in range(14): I('v_mul_f32 v%d, v%d, v%d' % (N + j, N + j, t))
        for j in range(7): I('v_cvt_pk_bf16_f32 v%d, v%d, v%d' % (O + j, N + 2 * j, N + 2 * j + 1))

    def p2_pre(self):
        I = self.I; g = self.g; A, B, C = 64, 65, 66; out = []
        def st(i, r): I('v_accvgpr_write_b32 a%d, v%d' % (STASH + i, r))
        with g.capture() as a:
            I('s_lshl_b32 s8, s%d, 1' % S_RG)
            I('s_mul_i32 s%d, s8, 112' % S_A0); I('s_mul_i32 s9, s%d, 14' % S_WAVE); I('s_add_u32 s%d, s%d, s9' % (S_A0, S_A0)); I('s_lshl_b32 s%d, s%d, 10' % (S_A0, S_A0))
            I('s_add_u32 s%d, s%d, %d' % (S_A1, S_A0, 112 * 1024))
            I('s_mul_i32 s%d, s8, 28' % S_OSO); I('s_mul_i32 s9, s%d, 7' % S_WAVE); I('s_add_u32 s%d, s%d, s9' % (S_OSO, S_OSO)); I('s_lshl_b32 s%d, s%d, 10' % (S_OSO, S_OSO))
            I('s_add_u32 s%d, s%d, %d' % (S_OSO, S_OSO, L.WS_O))
            I('v_lshrrev_b32 v%d, 3, v%d' % (A, VLANE)); I('v_mul_u32_u24 v%d, 896, v%d' % (A, A)); I('v_and_b32 v%d, 7, v%d' % (B, VLANE)); I('v_lshl_add_u32 v%d, v%d, 4, v%d' % (A, B, A))
            I('v_lshlrev_b32 v%d, 7, v%d' % (B, B)); st(1, A); st(2, B)
        out.append(a)
        with g.capture() as a:
            I('s_lshl_b32 s9, s%d, 3' % S_RG); I('s_add_u32 s9, s9, s%d' % S_WAVE); I('s_mul_i32 s9, s9, %d' % (8 * 896)); I('s_lshl_b32 s8, s%d, 7' % S_CG); I('s_add_u32 s%d, s9, s8' % S_XO)
            I('s_lshl_b32 s8, s%d, 12' % S_RG); I('s_lshl_b32 s9, s%d, 8' % S_WAVE); I('s_add_u32 s9, s9, s8'); I('s_add_u32 s%d, s9, %d' % (S_FA, L.WS_FLAG))
            I('s_lshl_b32 s8, s%d, 10' % S_RG); I('s_add_u32 s%d, s8, %d' % (S_FO, L.WS_FO))
            I('v_and_b32 v%d, 1, v%d' % (A, VLANE)); I('v_lshlrev_b32 v%d, 11, v%d' % (A, A)); I('v_and_b32 v%d, 2, v%d' % (B, VLANE)); I('v_lshl_add_u32 v%d, v%d, 6, v%d' % (A, B, A)); st(0, A)
        out.append(a)
        with g.capture() as a:
            I('v_lshrrev_b32 v%d, 5, v%d' % (C, VLANE)); I('v_bfe_u32 v%d, v%d, 3, 1' % (A, VLANE)); I('v_xor_b32 v%d, v%d, v%d' % (A, A, C))
            I('v_mul_u32_u24 v%d, 14, v%d' % (B, C)); I('v_bfe_u32 v%d, v%d, 2, 2' % (C, VLANE)); I('v_add_u32 v%d, v%d, v%d' % (B, B, C))
            I('v_lshlrev_b32 v%d, 7, v%d' % (B, B)); I('v_lshl_add_u32 v%d, v%d, 6, v%d' % (A, A, B))
            I('v_and_b32 v%d, 3, v%d' % (B, VLANE)); I('v_lshl_add_u32 v%d, v%d, 3, v%d' % (A, B, A))
            I('v_and_b32 v%d, 16, v%d' % (B, VLANE)); I('v_lshl_add_u32 v%d, v%d, 1, v%d' % (A, B, A))
            I('s_and_b32 s9, s%d, 1' % S_WAVE); I('s_lshl_b32 s9, s9, 6'); I('v_xor_b32 v%d, s9, v%d' % (A, A))
            I('s_mul_i32 s9, s%d, %d' % (S_CH, 224 * 128)); I('v_add_u32 v%d, s9, v%d' % (A, A))
            I('v_xor_b32 v%d, 64, v%d' % (B, A)); st(3, A); st(4, B)
            I('v_add_u32 v%d, %d, v%d' % (B, 14 * 128, B)); I('v_and_b32 v%d, 8, v%d' % (C, VLANE)); I('v_cmp_eq_u32 vcc, 0, v%d' % C); I('v_cndmask_b32 v%d, v%d, v%d, vcc' % (B, B, A)); st(5, B)
        out.append(a)
        return out
    def p2_enter(self):
        T = P2T
        for i, r in enumerate((T + 1, T + 2, T + 3, T + 8, T + 9, T + 10)): self.I('v_accvgpr_read_b32 v%d, a%d' % (r, STASH + i))

    def phase2(self):
        I = self.I; g = self.g; T = P2T
        XO, XR, WA = T + 2, T + 4, T + 8
        self.nst = 7
        if 'start' in EXP or 'stg' in EXP: self.nst = 15
        self.poll_check('A', T + 1, S_FA, T)
        self.stamp('hok')
        RING = 64; NR = 15
        self.bdma = {k: [] for k in range(14)}
        def load(n):
            k, a = divmod(n, 2); r = RING + 4 * (n % NR); base = S_A1 if a else S_A0
            I('buffer_load_dwordx4 %s, v%d, %s, s%d offen offset:%d' % (vr(r, 4), VL16, sr(S_WS, 4), base, (k % 4) * 1024))
            if k % 4 == 3: I('s_add_u32 s%d, s%d, 4096' % (base, base))
        def wo_read(kk, dst):
            G, f = divmod(kk, 7)
            for pp in range(2):
                p = 4 * f + 2 * pp; hl = 4 * G + p // 7; i = p % 7
                areg = WA + 2 if i == 6 else WA + (i & 1)
                I('ds_read_b64_tr_b16 %s, v%d offset:%d' % (ar(dst + 2 * pp, 2), areg, L_WO + (28 * hl + 2 * i) * 128))
        EWB, SWB, ORD, GRD, SRD_ = 124, 125, 126, 127, 139
        def tail_addr():
            A, B = 142, 143
            I('v_and_b32 v%d, 31, v%d' % (A, VLANE)); I('v_lshlrev_b32 v%d, 7, v%d' % (A, A)); I('v_and_b32 v%d, 7, v%d' % (B, VLANE)); I('v_lshl_add_u32 v%d, v%d, 4, v%d' % (A, B, A))
            I('v_lshrrev_b32 v%d, 5, v%d' % (B, VLANE)); I('v_lshl_add_u32 v%d, v%d, 3, v%d' % (A, B, A))
            I('s_lshl_b32 s8, s%d, 13' % S_WAVE); I('s_add_u32 s8, s8, %d' % L_XG); I('v_add_u32 v%d, s8, v%d' % (EWB, A))
            I('s_lshl_b32 s8, s%d, 13' % S_CH); I('s_bfe_u32 s9, s%d, 0x10001' % S_WAVE); I('s_lshl_b32 s10, s9, 12'); I('s_add_u32 s8, s8, s10'); I('s_add_u32 s8, s8, %d' % L_XS)
            I('v_add_u32 v%d, s8, v%d' % (SWB, A)); I('s_and_b32 s8, s%d, 1' % S_WAVE); I('s_lshl_b32 s8, s8, 6'); I('v_xor_b32 v%d, s8, v%d' % (SWB, SWB))
            I('s_mul_i32 s9, s9, 28'); I('s_mul_i32 s8, s%d, 14' % S_CH); I('s_add_u32 s9, s9, s8'); I('s_lshl_b32 s9, s9, 10')
            I('v_add_u32 v%d, s9, v%d' % (ORD, VL16))
            I('v_lshrrev_b32 v%d, 3, v%d' % (A, VLANE)); I('v_and_b32 v%d, 7, v%d' % (B, VLANE)); I('v_xor_b32 v%d, v%d, v%d' % (B, B, A))
            I('v_lshlrev_b32 v%d, 7, v%d' % (A, A)); I('v_lshl_add_u32 v%d, v%d, 4, v%d' % (A, B, A)); I('s_lshl_b32 s8, s%d, 10' % S_WAVE); I('s_add_u32 s8, s8, %d' % L_XG)
            I('v_add_u32 v%d, s8, v%d' % (GRD, A)); I('v_add_u32 v%d, %d, v%d' % (SRD_, L_XS - L_XG, GRD))
            I('s_mul_i32 s23, s%d, 7168' % S_WAVE); I('v_mov_b32 v142, %d' % L_CNT)
            I('s_mov_b32 s10, 0x00003f80'); I('s_mov_b32 s11, 0x3f800000'); I('s_mov_b32 s26, %s' % f32(-1.0 / L.LOG2E)); I('s_mov_b32 s27, s26')
        for n in range(NR): load(n)
        nl = NR
        for ki in range(14):
            for a in range(2):
                n = 2 * ki + a; r = RING + 4 * (n % NR)
                for b in range(2):
                    I('v_mfma_f32_32x32x16_bf16 %s, %s, %s, %s' % (vr(16 * (2 * a + b), 16), ar(8 * ki + 4 * b, 4), vr(r, 4), vr(16 * (2 * a + b), 16) if ki else '0'))
                if nl < 28:
                    load(nl); nl += 1
                    if nl == 28: I('buffer_load_dwordx4 %s, v%d, %s, s100 offen' % (vr(XR, 4), XO, sr(S_X, 4)))
            if ki == 0:
                for k in range(9, 14): g.extend(self.b_read(k))
            if ki == 2: tail_addr()
            if ki == 12:
                I('s_cmp_lg_u32 s%d, 0' % S_WAVE); I('s_cbranch_scc1 L_noe1')
                self.U('buffer_load_dword v%d, v%d, %s, s99 offen sc1' % (T, T + 3, sr(S_WS, 4)))
                self.g.label('L_noe1')
            if ki == 6: I('s_waitcnt lgkmcnt(0)'); I('s_barrier')
            if ki >= 7:
                for kk in (2 * (ki - 7), 2 * (ki - 7) + 1): wo_read(kk, 4 * kk)
        self.stamp('gdone')
        EW = 64
        wr = []
        for b in range(2):
            for Q in range(4):
                I('v_xor_b32 v%d, %d, v%d' % (EW + 4 * b + Q, 16 * (4 * b + Q), EWB))
                for a in range(2):
                    t = 16 * (2 * a + b)
                    for j in (2 * Q, 2 * Q + 1): I('v_cvt_pk_bf16_f32 v%d, v%d, v%d' % (t + j, t + 2 * j, t + 2 * j + 1))
                    wr.append(I('ds_write_b64 v%d, %s offset:%d' % (EW + 4 * b + Q, vr(t + 2 * Q, 2), 4096 * a)))
        I('s_cmp_lg_u32 s%d, 0' % S_WAVE); I('s_cbranch_scc1 L_noe2')
        self.U('s_waitcnt vmcnt(0)')
        I('v_cmp_ne_u32 vcc, s%d, v%d' % (S_NONCE, T)); I('s_nop 1'); I('s_cmp_eq_u64 vcc, 0'); I('s_cselect_b32 s8, 1, 0'); I('v_mov_b32 v143, s8')
        self.U('ds_write_b32 v142, v143')
        self.g.label('L_noe2')
        I('s_waitcnt lgkmcnt(0)')
        I('s_barrier')
        self.stamp('e2')
        I('ds_read_b32 v143, v142')
        for src in range(8): I('ds_read_b128 %s, v%d offset:%d' % (vr(8 + 4 * src, 4), GRD, 8192 * src))
        for j in range(4): I('v_lshlrev_b32 v%d, 16, v%d' % (76 + 2 * j, XR + j)); I('v_and_b32 v%d, s%d, v%d' % (77 + 2 * j, S_MASK, XR + j))
        I('s_add_u32 s24, s%d, 4096' % S_OSO)
        I('v_readfirstlane_b32 s9, v143')
        def odma():
            for i in range(7):
                if i == 0 or i == 4: I('s_add_u32 m0, s23, %d' % (L_O + 1024 * i)); I('s_nop 0')
                self.U('buffer_load_dwordx4 v%d, %s, s%d offen offset:%d lds' % (VL16, sr(S_WS, 4), S_OSO if i < 4 else 24, 1024 * (i % 4)))
        I('s_cmp_eq_u32 s9, 0'); I('s_cbranch_scc1 L_olate1')
        odma()
        self.g.label('L_olate1')
        for src in range(8):
            for j in range(4):
                I('v_dot2_f32_bf16 v%d, v%d, s10, %s' % (2 * j, 8 + 4 * src + j, 'v%d' % (2 * j) if src else '0'))
                I('v_dot2_f32_bf16 v%d, v%d, s11, %s' % (2 * j + 1, 8 + 4 * src + j, 'v%d' % (2 * j + 1) if src else '0'))
        I('s_cmp_lg_u32 s9, 0'); I('s_cbranch_scc1 L_oearly')
        I('s_cmp_lg_u32 s%d, %d' % (S_WAVE, 9 if 'noq' in EXP else 0)); I('s_cbranch_scc1 L_polldO')
        self.g.label('L_pollO')
        self.U('buffer_load_dword v%d, v%d, %s, s99 offen sc1' % (WA, T + 3, sr(S_WS, 4))); self.U('s_waitcnt vmcnt(0)')
        I('v_cmp_ne_u32 vcc, s%d, v%d' % (S_NONCE, WA)); I('s_nop 1'); I('s_cbranch_vccz L_polldO')
        self.spin_tail('L_pollO', 3)
        self.g.label('L_polldO')
        I('s_barrier')
        odma()
        self.g.label('L_oearly')
        self.stamp('ook')
        for j in range(8): I('v_exp_f32 v%d, v%d' % (8 + j, j))
        SW = 72
        for q in range(4): I('v_xor_b32 v%d, %d, v%d' % (SW + q, 16 * q, SWB))
        for j in range(0, 8, 2): I('v_pk_add_f32 %s, %s, 1.0 op_sel_hi:[1,0]' % (vr(8 + j, 2), vr(8 + j, 2)))
        for j in range(8): I('v_rcp_f32 v%d, v%d' % (8 + j, 8 + j))
        for j in range(0, 8, 2): I('v_pk_mul_f32 %s, %s, s[26:27]' % (vr(j, 2), vr(j, 2)))
        for j in range(0, 8, 2): I('v_pk_mul_f32 %s, %s, %s' % (vr(j, 2), vr(j, 2), vr(8 + j, 2)))
        I('s_waitcnt vmcnt(0)')
        I('s_barrier')
        self.stamp('e3')
        OF = 84; SA = 48
        def ord_(kk): I('ds_read_b128 %s, v%d offset:%d' % (vr(OF + 4 * (kk % 10), 4), ORD, 1024 * kk))
        for kk in range(8): ord_(kk)
        for kk in range(14):
            I('v_mfma_f32_32x32x16_bf16 %s, %s, %s, %s' % (vr(SA, 16), ar(4 * kk, 4), vr(OF + 4 * (kk % 10), 4), vr(SA, 16) if kk else '0'))
            if kk + 8 < 14: ord_(kk + 8)
        wr = []
        for q in range(4):
            for j in (2 * q, 2 * q + 1): I('v_cvt_pk_bf16_f32 v%d, v%d, v%d' % (SA + j, SA + 2 * j, SA + 2 * j + 1))
            wr.append(I('ds_write_b64 v%d, %s' % (SW + q, vr(SA + 2 * q, 2))))
        I('s_barrier', needs=wr)
        for h in range(2): I('ds_read_b128 %s, v%d offset:%d' % (vr(16 + 4 * h, 4), SRD_, 8192 * h))
        for h in range(2):
            for j in range(4):
                I('v_dot2_f32_bf16 v%d, v%d, s10, %s' % (24 + 2 * j, 16 + 4 * h + j, 'v%d' % (24 + 2 * j) if h else '0'))
                I('v_dot2_f32_bf16 v%d, v%d, s11, %s' % (25 + 2 * j, 16 + 4 * h + j, 'v%d' % (25 + 2 * j) if h else '0'))
        for j in range(0, 8, 2): I('v_pk_fma_f32 %s, %s, %s, %s' % (vr(j, 2), vr(j, 2), vr(24 + j, 2), vr(76 + j, 2)))
        for j in range(4): I('v_cvt_pk_bf16_f32 v%d, v%d, v%d' % (40 + j, 2 * j, 2 * j + 1))
        I('buffer_store_dwordx4 v[40:43], v%d, %s, s100 offen%s' % (XO, sr(S_OUT, 4), os.environ.get('OUTF', '')))
        self.stamp('final')

    def xfilter(self, body):
        out = []
        for x in body:
            if 'nosc1st' in EXP and x.op.startswith('buffer_store_dwordx4') and 'sc1' in x.text and 'v141' in x.text: x.text = x.text.replace(' sc1', '')
            if 'nost' in EXP and x.op.startswith('buffer_store_dwordx4') and 'v141' in x.text: x.text = 's_nop 0'
            if 'nob' in EXP and x.kind == 'dma' and 's[52:55]' in x.text: x.text = 's_nop 0'
            if 'sysp' in EXP and x.op == 'buffer_load_dword' and x.text.endswith('sc1') and 's[64:67]' in x.text: x.text = x.text.replace(' sc1', ' sc0 sc1')
            if 'nowo' in EXP and x.kind == 'dma' and 's[48:51]' in x.text: x.text = 's_nop 0'
            if 'noatom' in EXP and 'atomic' in x.op: x.text = 's_nop 0'
            if 'ntst' in EXP and x.op.startswith('buffer_store_dwordx4') and 'sc1' in x.text and 'v141' in x.text: x.text = x.text.replace(' sc1', ' sc0 sc1')
            out.append(x)
        return out
    def path(self, prefix, fn, label, keys):
        self.keys = keys
        if 'stamp' in self.__dict__: del self.__dict__['stamp']
        with self.g.capture() as body:
            if label: self.g.label(label)
            fn()
        self.xfilter(body)
        allp = [x for p in prefix for x in p]
        for x in allp: x.done = False
        full = self.g.finish(allp + body)
        if label:
            idx = next(i for i, x in enumerate(full) if x.kind == 'label' and x.text == label + ':')
            return full[idx:], body
        return full, body

    def build(self):
        I = self.I
        with self.g.capture() as pro:
            self.prologue()
            I('s_cmp_eq_u32 s%d, 1' % S_TYPE); I('s_cbranch_scc1 L_kv'); I('s_cmp_eq_u32 s%d, 2' % S_TYPE); I('s_cbranch_scc1 L_q')
        n0 = self.nst
        def endp():
            self.write_stamps(); I('s_endpgm')
        def ffn():
            self.ffn()
        out, _ = self.path([pro], ffn, None, ['0'])
        self.nst = n0
        code, kvc = self.path([pro], self.kv_common, 'L_kv', ['10', '11'])
        n1 = self.nst
        save = (dict(self.bdma), dict(self.bread))
        def kk():
            self.kv_k()
        def kvv():
            self.kv_v()
        c2, _ = self.path([pro, kvc], kk, 'L_kv_k', ['10'])
        self.nst = n1; self.bdma, self.bread = dict(save[0]), dict(save[1])
        c3, _ = self.path([pro, kvc], kvv, 'L_kv_v', ['11'])
        out += code + c2 + c3
        self.nst = n0
        def qq():
            self.q(); endp()
        c4, _ = self.path([pro], qq, 'L_q', ['2'])
        out += c4
        def p2():
            self.phase2(); endp()
        if 'nop2' not in EXP:
            c5, _ = self.path([], p2, 'L_p2', ['0', '10', '11'])
            out += c5
        with self.g.capture() as tail:
            self.g.label('L_end'); I('s_endpgm')
        return out + tail

HEADER = open('cdna_kernels/%s.s.ref' % NAME).read().split('; Override launch')[0]
def wrap(code, launch):
    return HEADER + launch + '''
.amdgcn_target "amdgcn-amd-amdhsa--gfx950"
.text
.globl %(n)s_kernel
.p2align 8
.type %(n)s_kernel,@function
%(n)s_kernel:
%(body)s
.section .rodata,"a"
.p2align 6
.amdhsa_kernel %(n)s_kernel
  .amdhsa_next_free_vgpr 256
  .amdhsa_next_free_sgpr 102
  .amdhsa_accum_offset %(nv)d
  .amdhsa_group_segment_fixed_size 0
  .amdhsa_kernarg_size 80
  .amdhsa_user_sgpr_count 2
  .amdhsa_user_sgpr_kernarg_segment_ptr 1
  .amdhsa_system_sgpr_workgroup_id_x 1
.end_amdhsa_kernel
''' % dict(n=NAME, body=render(code), nv=NV)

if __name__ == '__main__':
    stamps = '--stamps' in sys.argv
    k = K(stamps)
    code = k.build()
    open(sys.argv[1], 'w').write(wrap(code, '; @launch grid=(256,1,1) block=(512,1,1) lds=163840'))
    json.dump({t: [d.get(i, '') for i in range(16)] for t, d in k.names.items()} if stamps else {}, open(sys.argv[1][:-2] + '.json', 'w'))
    print('instructions', len(code), 'nops', sum(1 for i in code if i.kind == 'nop'))
```

```python
import numpy as np
LOG2E = 1.4426950408889634
HSCALE = -LOG2E
WS_H = 0
WS_O = 8 << 20
WS_KV = 10 << 20
WS_FLAG = 11 << 20
FSTR = 4352
WS_FO = WS_FLAG + 0x48000
WS_KVD = WS_FLAG + 0x50000
WS_KVZ = WS_FLAG + 0x58000
WS_RS = WS_FLAG + 0x60000
WS_SL = 13 << 20
WS_KF = 10 << 20
WS_CSG = WS_FLAG + 0x80000
WS_CSF = WS_FLAG + 0x70000
WS_STAMP = 12 << 20
WS_BYTES = 16 << 20
KV_H0 = [0, 3, 6, 9, 11, 13]
KV_NH = [3, 3, 3, 2, 2, 3]
def role(b):
    import os
    if os.environ.get('XMAP'):
        sl = 2 * int(os.environ['XMAP'][b & 7]) + (b >> 7)
        return (0, sl, (b >> 3) & 15) if sl < 8 else (1, sl - 8, (b >> 3) & 15) if sl < 14 else (2, sl - 14, (b >> 3) & 15)
    xcd = b & 7; j = b >> 3; q = xcd >> 1; s4 = j >> 3
    rb = (xcd & 1) * 8 + (j & 7)
    if s4 < 2: return (0, 2 * q + s4, rb)
    if s4 == 2: return (1, [0, 1, 2, 4][q], rb)
    if ((j >> 2) & 1) == (q >> 1): return (2, q & 1, rb)
    return (1, [3, 5][q & 1], rb)
def print_stamps(st):
    import json, os
    names = json.load(open(os.environ.get('STN', os.path.join(os.path.dirname(__file__), 'stamp_names.json'))))
    it, nb, nw, n = st.shape
    typ = np.array([role(b)[0] for b in range(256)])
    rt0 = st[:, :, :, 0]; rt1 = st[:, :, :, n - 1]
    base = rt0.min(axis=(1, 2), keepdims=True)
    print('start skew ns: med %.0f max %.0f ; end: med %.0f max %.0f' % (
        np.median((rt0 - base).max(axis=(1, 2))) * 10, ((rt0 - base).max()) * 10,
        np.median(np.median(rt1 - base, axis=(1, 2))) * 10, np.median((rt1 - base).max(axis=(1, 2))) * 10))
    last = np.where(st[:, :, :, 2:n - 1] > 0, st[:, :, :, 2:n - 1], 0).max(axis=3)
    clk = (last - st[:, :, :, 1]) / np.maximum(rt1 - rt0, 1) / 10.0
    print('clock GHz (approx): med %.3f' % np.median(clk), ' per-xcd start offset ns:', ' '.join('%d' % (np.median((rt0 - base)[:, x::8]) * 10) for x in range(8)))
    xb = rt0.reshape(it, 32, 8, nw).min(axis=(1, 3), keepdims=True)
    print('start offset by j within xcd (ns):', ' '.join('%d' % v for v in np.median((rt0.reshape(it, 32, 8, nw) - xb).max(axis=3), axis=(0, 2)) * 10))
    for key in sorted(names):
        t = int(key[0]);
        sel = st[:, typ == t]
        if len(key) > 1:
            ch = int(key[1]); sel = sel[:, :, 4 * ch:4 * ch + 4]
        print('type', key)
        for i in range(2, n - 1):
            d = sel[:, :, :, i] - sel[:, :, :, 1]
            ok = sel[:, :, :, i] > 0
            if not ok.any(): continue
            dd = d[ok]
            nm = names[key][i] if i < len(names[key]) else ''
            dl = (sel[:, :, :, i] - sel[:, :, :, i - 1])[ok & (sel[:, :, :, i - 1] > 0)]
            print('   stamp %2d %-14s med %7.0f  p10 %7.0f  p90 %7.0f max %7.0f   delta med %6.0f' % (i, nm, np.median(dd), np.percentile(dd, 10), np.percentile(dd, 90), dd.max(), np.median(dl) if len(dl) else -1))

def print_detail(st, slots):
    it, nb, nw, n = st.shape
    base = st[:, :, :, 0].min(axis=(1, 2), keepdims=True)
    clk = 2.1
    off = (st[:, :, :, 0] - base) * 10 * clk
    for sl in slots:
        v = np.where(st[:, :, :, sl] > 0, st[:, :, :, sl] - st[:, :, :, 1] + off, np.nan)
        print('slot', sl, 'per-xcd median / max (last iter):', ' '.join('%d/%d' % (np.nanmedian(v[-1, x::8]), np.nanmax(v[-1, x::8])) for x in range(8)))
        w = np.nanmax(v[-1], axis=1)
        idx = np.argsort(-np.nan_to_num(w))[:12]
        print('   worst WGs:', ' '.join('b%d(x%d,%s,w%d):%d' % (b, b & 7, role(b), np.nanargmax(v[-1, b]), w[b]) for b in idx))
```

```python
import sys, json, struct, os
from asmgen import *
import layout as L
EXP = os.environ.get('EXP', '').split(',')
SLEEP = int(os.environ.get('SLEEP', '4'))
BCHK = int(os.environ.get('BCHK', '7'))
W1K = int(os.environ.get('W1K', '3'))
PF0 = int(os.environ.get('PF0', '2'))
QSL = int(os.environ.get('QSL', '6'))
NST = int(os.environ.get('NST', '3')); MST = int(os.environ.get('MST', '1'))
ATOM = True
S_FA, S_FO, S_XO, S_SC, S_C1, S_C2, S_C3 = 98, 99, 100, 11, 96, 97, 25
RA, RB_ = [int(x) for x in os.environ.get('R1', '1,2').split(',')]
RC, RD = [int(x) for x in os.environ.get('R2', '2,4').split(',')]
STASH = 72; CSA = 32; DB2 = 125; S_CSB, S_R0 = 30, 101
TSCH = eval(os.environ.get('TSCH', '{3:0x7fc000}'))
T0M = int(os.environ.get('T0M', '0x3fff'), 0)
CST = int(os.environ.get('CST', '0'))
XMAP = os.environ.get('XMAP', '45601723')
NAME = 'recurrent_scan__linear_kernel_hedgehog__dense_activation_silu__prompt'
def f32(x): return '0x%08x' % struct.unpack('<I', struct.pack('<f', x))[0]

S_X, S_W, S_PHI, S_WO, S_W2, S_OUT, S_DBG, S_WS = 36, 40, 44, 48, 52, 56, 60, 64
S_MASK, S_WAVE, S_IDX, S_RB, S_TYPE = 3, 4, 5, 6, 7
S_XS, S_WSO, S_EX56 = 12, 13, 14
S_MW, S_MX, S_ROW, S_NONCE = 32, 33, 34, 35
S_RT, S_CH = 68, 69
S_ST = 70
S_RG, S_CG, S_BSO, S_STA, S_A0, S_A1, S_OSO, S_NH, S_H0 = 16, 17, 18, 19, 20, 21, 22, 23, 24
S_ST4 = 25
S_L2E = 26
S_HIM = 28
STG = 45056; WPART = 16384
L_CNT = 3 * STG
L_CP = 136192
L_WPHI = 144384
L_SHX = L_WPHI
L_PHI = 0
L_V = 136192
L_STA = 57344
L_WO = 0
L_CX = 135168
L_KVQ = 0
L_KVF = 65536
L_XG = 65536
L_O = 0
L_XS = 131072
KORD = list(range(14))
NV = 144
ACC, WF, XF, ST, CS, AX, AW, AS, DX, DW = 0, 64, 96, 104, 108, 112, 116, 120, 122, 124
PFA = 132; TMP = 128; P2T = 128; BT2 = 126; DB = 139; VLANE = 140; VL16 = 141; BT = 142

class K:
    def __init__(self, stamps):
        self.g = Gen(); self.use_stamps = stamps; self.nst = 0; self.names = {}; self.keys = ['0', '10', '11', '2']
    def I(self, t, needs=()): return self.g.I(t, needs)
    def U(self, t):
        x = self.g.I(t); x.kind = 'untracked'; return x
    def stamp(self, name, real=False):
        if os.environ.get('DLY') == name and (not os.environ.get('DLK') or os.environ['DLK'] in self.keys): self.I('s_sleep %s' % os.environ.get('DLN', '32'))
        if 'dbgt' in EXP and name in ('bar0', 'loopend', 'gdone', 'opub', 'ook'):
            r = {'bar0': [78], 'loopend': [80], 'gdone': [82], 'ook': [84], 'opub': [82, 84]}[name]
            for x in r: self.I('s_memtime s[%d:%d]' % (x, x + 1))
        if not self.use_stamps: return
        i = self.nst
        if i >= 12: return
        self.nst += 1
        for k in self.keys: self.names.setdefault(k, {})[i] = name
        self.I('%s %s' % ('s_memrealtime' if real else 's_memtime', sr(S_ST + 2 * i, 2)))
    def write_stamps(self, total=13):
        if 'dbgt' in EXP:
            I = self.I
            I('s_memrealtime s[74:75]'); I('s_memtime s[76:77]'); I('s_waitcnt vmcnt(0) lgkmcnt(0)')
            I('s_mov_b64 exec, 1'); I('v_mov_b32 v2, 0')
            I('v_mov_b32 v0, s70'); I('buffer_atomic_umax v0, v2, %s, 0 offen offset:8' % sr(S_DBG, 4))
            I('s_not_b32 s8, s70'); I('v_mov_b32 v1, s8'); I('buffer_atomic_umax v1, v2, %s, 0 offen offset:12' % sr(S_DBG, 4))
            I('v_mov_b32 v3, s74'); I('buffer_atomic_umax v3, v2, %s, 0 offen offset:16' % sr(S_DBG, 4))
            I('s_sub_u32 s8, s76, s72'); I('v_mov_b32 v4, s8'); I('buffer_atomic_umax v4, v2, %s, 0 offen offset:20' % sr(S_DBG, 4))
            I('s_sub_u32 s8, s74, s70'); I('v_mov_b32 v5, s8'); I('buffer_atomic_umax v5, v2, %s, 0 offen offset:24' % sr(S_DBG, 4))
            for k, so in enumerate((78, 80, 82, 84)):
                I('s_sub_u32 s8, s%d, s72' % so); I('v_mov_b32 v%d, s8' % (6 + k)); I('buffer_atomic_umax v%d, v2, %s, 0 offen offset:%d' % (6 + k, sr(S_DBG, 4), 28 + 4 * k))
            I('s_waitcnt vmcnt(0)')
            return
        if not self.use_stamps: return
        I = self.I
        I('s_memrealtime %s' % sr(S_ST + 2 * (total - 1), 2))
        I('s_waitcnt lgkmcnt(0)')
        I('s_lshl_b32 s8, s2, 3'); I('s_add_u32 s8, s8, s%d' % S_WAVE); I('s_lshl_b32 s8, s8, 7')
        I('s_add_u32 s8, s8, %d' % L.WS_STAMP)
        I('v_mov_b32 v2, 0')
        I('s_mov_b64 exec, 1')
        for i in range(total):
            I('v_mov_b32 v0, s%d' % (S_ST + 2 * i)); I('v_mov_b32 v1, s%d' % (S_ST + 2 * i + 1))
            I('buffer_store_dwordx2 v[0:1], v2, %s, s8 offen offset:%d' % (sr(S_WS, 4), 8 * i))
        I('s_mov_b64 exec, -1')
    def srd(self, d, base, nbytes):
        I = self.I
        I('s_mov_b32 s%d, s%d' % (d, base)); I('s_and_b32 s%d, s%d, 0xffff' % (d + 1, base + 1))
        I('s_mov_b32 s%d, %d' % (d + 2, nbytes)); I('s_mov_b32 s%d, 0x20000' % (d + 3))

    def prologue(self):
        I = self.I
        I('s_cmp_ge_u32 s2, 256'); I('s_cbranch_scc1 L_end')
        I('s_load_dwordx16 s[16:31], s[0:1], 0'); I('s_load_dwordx4 s[32:35], s[0:1], 64')
        if 'anti' in EXP:
            I('s_lshr_b32 s8, s2, 5'); I('s_and_b32 s9, s2, 31'); I('s_lshl_b32 s9, s9, 3'); I('s_or_b32 s2, s8, s9')
        I('s_getpc_b64 s[8:9]')
        self.g.label('L_pc')
        I('v_cmp_le_u32 vcc, %d, v0' % (1024 if 'nocp0' in EXP else 448)); I('s_cbranch_vccz L_nopf')
        I('s_bfe_u32 s10, s2, 0x30003'); I('s_lshl_b32 s10, s10, 13')
        I('v_and_b32 v1, 63, v0'); I('v_lshlrev_b32 v1, 7, v1'); I('v_add_u32 v1, s10, v1')
        I('v_min_u32 v1, L_end-L_pc, v1')
        self.U('global_load_dword a80, v1, s[8:9]')
        self.g.label('L_nopf')
        if self.use_stamps:
            for i in range(13): I('s_mov_b64 %s, 0' % sr(S_ST + 2 * i, 2))
        self.stamp('rt0', True); self.stamp('t0')
        if 'dbgt' in EXP: I('s_memrealtime s[70:71]'); I('s_memtime s[72:73]')
        I('v_lshrrev_b32 v1, 6, v0'); I('v_and_b32 v0, 63, v0')
        I('v_readfirstlane_b32 s%d, v1' % S_WAVE)
        I('v_mov_b32 v%d, v0' % VLANE); I('v_lshlrev_b32 v%d, 4, v0' % VL16)
        I('s_and_b32 s8, s2, 7'); I('s_lshl_b32 s8, s8, 2'); I('s_lshr_b32 s8, 0x%s, s8' % XMAP[::-1]); I('s_and_b32 s8, s8, 7')
        I('s_bfe_u32 s%d, s2, 0x40003' % S_RB); I('s_lshr_b32 s9, s2, 7'); I('s_lshl_b32 s12, s8, 1'); I('s_add_u32 s12, s12, s9')
        I('s_cmp_ge_u32 s12, 8'); I('s_cselect_b32 s%d, 1, 0' % S_TYPE); I('s_cselect_b32 s9, 8, 0')
        I('s_cmp_ge_u32 s12, 14'); I('s_cselect_b32 s%d, 2, s%d' % (S_TYPE, S_TYPE)); I('s_cselect_b32 s9, 14, s9'); I('s_sub_u32 s%d, s12, s9' % S_IDX)
        I('s_lshl_b32 s8, s%d, 4' % S_RB); I('s_add_u32 s8, s8, s12'); I('s_lshl_b32 s8, s8, 3'); I('s_add_u32 s11, s8, s%d' % S_WAVE)
        I('s_mov_b32 s%d, -1' % S_EX56); I('s_mov_b32 s%d, 0x00ffffff' % (S_EX56 + 1))
        I('s_and_b32 s%d, s%d, 3' % (S_RT, S_WAVE)); I('s_lshr_b32 s%d, s%d, 2' % (S_CH, S_WAVE))
        I('s_mov_b32 s%d, 0xffff0000' % S_MASK)
        I('v_lshrrev_b32 v2, 3, v0'); I('v_mul_u32_u24 v2, 896, v2')
        I('v_lshrrev_b32 v3, 4, v0'); I('v_and_b32 v4, 7, v0'); I('v_xor_b32 v4, v4, v3')
        I('v_lshl_add_u32 v%d, v4, 4, v2' % DX)
        I('v_xor_b32 v4, 4, v4'); I('v_lshl_add_u32 v%d, v4, 4, v2' % (DX + 1)); I('v_add_u32 v%d, %d, v%d' % (DX + 1, 8 * 896 - 1024, DX + 1))
        I('s_lshl_b32 s8, s%d, 3' % S_RB); I('s_add_u32 s8, s8, s%d' % S_WAVE); I('s_mul_i32 s%d, s8, %d' % (S_XS, 16 * 896))
        I('v_cmp_lt_u32 vcc, 27, v0'); I('v_subrev_u32 v7, 28, v0'); I('v_cndmask_b32 v7, v0, v7, vcc'); I('v_cndmask_b32 v6, 0, 1, vcc')
        I('v_cmp_gt_u32 vcc, 56, v0'); I('v_mov_b32 v5, 0x7fffffff'); I('v_cndmask_b32 v5, v5, v%d, vcc' % VL16)
        I('s_waitcnt lgkmcnt(0)')
        if 'start' in EXP: self.stamp('karg')
        self.srd(S_X, 16, 2048 * 896)
        self.srd(S_WS, 34, L.WS_BYTES); self.srd(S_DBG, 32, 256)
        I('s_mov_b32 s%d, s11' % S_ROW)
        I('s_lshl_b32 s%d, s%d, 11' % (S_MX, S_WAVE))
        I('s_mul_i32 s%d, s%d, %d' % (S_MW, S_WAVE, 8 * 448)); I('s_add_u32 s%d, s%d, %d' % (S_MW, S_MW, WPART))

    def start_stream(self, gpitch):
        I = self.I
        for i in range(1, 4): I('v_add_u32 v%d, %d, v%d' % (DW + i, i * (2 * gpitch - 896), DW))
        I('s_mul_i32 s8, s%d, %d' % (S_WAVE, 8 * gpitch)); I('s_add_u32 s%d, s%d, s8' % (S_WSO, S_WSO))
        self.gpitch = gpitch
        d = {}
        if 'start' in EXP: self.stamp('pre_s0')
        grps, d[0] = self.stage_dma(0, gpitch)
        for gp in grps: self.g.extend(gp)
        I('s_mul_i32 s8, s%d, 896' % S_ROW)
        I('buffer_load_dwordx4 %s, v5, %s, s8 offen' % (vr(XF, 4), sr(S_X, 4)))
        I('s_cmp_ge_u32 s%d, 7' % S_RB); I('s_cbranch_scc1 L_nocx%s' % self.tagbase)
        I('s_sub_u32 s8, s%d, 1' % S_RB); I('s_mul_i32 s8, s8, %d' % (64 * gpitch)); I('s_add_u32 s8, s8, s%d' % S_WSO)
        I('s_add_u32 m0, s%d, %d' % (S_MW, L_CX - WPART)); I('s_mov_b64 exec, %s' % sr(S_EX56, 2))
        for j in range(4): self.U('buffer_load_dwordx4 v%d, %s, s8 offen offset:%d lds' % (DW + j, sr(S_W, 4), 896 * j))
        I('s_mov_b64 exec, -1')
        self.g.label('L_nocx%s' % self.tagbase)
        lab = 'L_nonon' + self.tagbase
        I('s_or_b32 s8, s2, s%d' % S_WAVE); I('s_cmp_lg_u32 s8, 0'); I('s_cbranch_scc1 %s' % lab)
        self.U('s_memrealtime s[8:9]'); self.U('s_waitcnt lgkmcnt(0)'); I('s_or_b32 s8, s8, 1'); I('v_mov_b32 v8, s8'); I('v_mov_b32 v9, 0')
        I('s_mov_b64 exec, 1'); self.U('buffer_store_dword v8, v9, %s, 0 offen sc1' % sr(S_DBG, 4)); I('s_mov_b64 exec, -1')
        self.g.label(lab)
        if 'start' in EXP: self.stamp('s0iss')
        return d
    def mall_addr(self):
        I = self.I
        segs = [(16, 7, 2, 5, 2048 * 896), (18, 4, 128 * 21, 4, 448 * 2688), (26, 5, 128 * 28, 5, 448 * 3584), (28, 7, 0, 7, 1792 * 896), (22, 2, 0, 2, 448 * 896)]
        I('s_lshl_b32 s8, s2, 3'); I('s_add_u32 s8, s8, s%d' % S_WAVE)
        lo = 0
        for i, (sb, mul, first, n, size) in enumerate(segs):
            I('s_mul_i32 s9, s8, %d' % mul); I('s_add_i32 s9, s9, %d' % (first - lo))
            I('v_add_u32 v10, s9, v0'); I('v_lshlrev_b32 v10, 7, v10'); I('v_min_u32 v10, %d, v10' % (size - 4))
            if i == 0:
                I('v_mov_b32 v11, v10'); I('v_mov_b32 v8, s%d' % sb); I('v_mov_b32 v9, s%d' % (sb + 1))
            else:
                I('v_cmp_le_u32 vcc, %d, v0' % lo); I('v_mov_b32 v12, s%d' % sb); I('v_mov_b32 v13, s%d' % (sb + 1))
                I('v_cndmask_b32 v11, v11, v10, vcc'); I('v_cndmask_b32 v8, v8, v12, vcc'); I('v_cndmask_b32 v9, v9, v13, vcc')
            lo += n
        I('v_add_co_u32 v%d, vcc, v8, v11' % PFA); I('v_addc_co_u32 v%d, vcc, 0, v9, vcc' % (PFA + 1))
    def mall_issue(self, part, mask=None):
        if 'nomall' in EXP: return []
        I = self.I
        with self.g.capture() as a:
            I('s_mov_b64 exec, %d' % (mask or T0M))
            I('global_load_dword a%d, %s, off' % (80 + part, vr(PFA, 2))).dst = set()
            I('s_mov_b64 exec, -1')
        return [a]
    def pre_loop(self, p2, idx0, extra=None, late=None):
        I = self.I; g = self.g
        self.mall_addr()
        if 't0early' in EXP:
            for gp in self.mall_issue(0): g.extend(gp)
        self.late_srds()
        if p2:
            self.p2_setup()
            for gp in self.p2_pre(): g.extend(gp)
        I('s_add_u32 s8, s%d, %d' % (S_IDX, idx0)); I('s_lshl_b32 s8, s8, 14'); I('s_add_u32 s%d, s8, %d' % (S_CSB, L.WS_CSG))
        if extra: extra()
        if 'start' in EXP: self.stamp('setup')
        self.s0pos = len(g.cur)
        if 'not0' not in EXP and 't0early' not in EXP:
            for gp in self.mall_issue(0): g.extend(gp)
        if late: late()
        self.row_stats()
    def chunks(self, fn, n=10):
        with self.g.capture() as body:
            fn()
        out = []; cur = []
        for i, x in enumerate(body):
            cur.append(x)
            nxt = body[i + 1] if i + 1 < len(body) else None
            safe = nxt is not None and not (nxt.op.startswith(('s_cselect', 's_cbranch', 's_addc', 's_subb', 'v_cndmask', 'v_addc')) or nxt.kind in ('dma', 'label')) \
                and not x.op.startswith(('s_cmp', 'v_cmp')) and 'm0' not in x.dst
            if len(cur) >= n and safe: out.append(cur); cur = []
        if cur: out.append(cur)
        return out

    def late_srds(self):
        I = self.I
        self.srd(S_PHI, 20, 16 * 28 * 28 * 2); self.srd(S_WO, 22, 448 * 896); self.srd(S_W2, 28, 1792 * 896)
        self.srd(S_OUT, 30, 2048 * 896)
        I('s_mov_b32 s%d, %s' % (S_L2E, f32(L.LOG2E))); I('s_mov_b32 s%d, %s' % (S_L2E + 1, f32(L.LOG2E)))
        I('s_mov_b32 s%d, 0' % S_HIM); I('s_mov_b32 s%d, -1' % (S_HIM + 1))
        I('s_mov_b32 s31, 0')

    def late_group(self, p2, extra=None):
        with self.g.capture() as a:
            self.late_srds()
            if extra: extra()
        self.p2flag = p2
        return a
    def p2_setup(self):
        I = self.I; T = 64
        I('s_and_b32 s8, s2, 7'); I('s_lshl_b32 s8, s8, 2'); I('s_lshr_b32 s8, 0x%s, s8' % XMAP[::-1]); I('s_and_b32 s8, s8, 7')
        I('s_lshl_b32 s8, s8, 5'); I('s_lshr_b32 s9, s2, 3'); I('s_add_u32 s9, s9, s8')
        I('s_mul_i32 s8, s9, 9363'); I('s_lshr_b32 s%d, s8, 16' % S_RG); I('s_mul_i32 s10, s%d, 7' % S_RG); I('s_sub_u32 s%d, s9, s10' % S_CG)
        I('s_mul_i32 s%d, s%d, %d' % (S_BSO, S_WAVE, 224 * 896)); I('s_lshl_b32 s8, s%d, 7' % S_CG); I('s_add_u32 s%d, s%d, s8' % (S_BSO, S_BSO))
        I('s_lshl_b32 s%d, s%d, 12' % (S_STA, S_WAVE)); I('s_add_u32 s%d, s%d, %d' % (S_STA, S_STA, L_STA))
        I('v_lshrrev_b32 v%d, 3, v140' % T); I('v_mul_u32_u24 v%d, 896, v%d' % (T, T))
        I('v_lshrrev_b32 v%d, 2, v140' % (T + 1)); I('v_and_b32 v%d, 4, v%d' % (T + 1, T + 1)); I('v_and_b32 v%d, 7, v140' % (T + 2))
        I('v_xor_b32 v%d, v%d, v%d' % (T + 1, T + 1, T + 2)); I('v_lshl_add_u32 v%d, v%d, 4, v%d' % (DB, T + 1, T))
        I('v_lshrrev_b32 v%d, 5, v140' % T); I('v_lshlrev_b32 v%d, 2, v%d' % (T, T)); I('v_bfe_u32 v%d, v140, 2, 2' % (T + 1)); I('v_add_u32 v%d, v%d, v%d' % (T, T, T + 1))
        I('v_lshlrev_b32 v%d, 7, v%d' % (T, T)); I('v_add_u32 v%d, s%d, v%d' % (T, S_STA, T))
        I('v_and_b32 v%d, 3, v140' % (T + 1)); I('v_lshlrev_b32 v%d, 3, v%d' % (T + 1, T + 1))
        I('v_and_b32 v%d, 16, v140' % (T + 2)); I('v_lshl_add_u32 v%d, v%d, 1, v%d' % (T + 1, T + 2, T + 1))
        I('v_and_b32 v%d, 8, v140' % (T + 2)); I('v_lshlrev_b32 v%d, 3, v%d' % (T + 2, T + 2)); I('v_xor_b32 v%d, v%d, v%d' % (T + 1, T + 1, T + 2))
        I('v_add_u32 v%d, v%d, v%d' % (BT, T, T + 1))
        I('v_xor_b32 v%d, 64, v%d' % (T + 1, T + 1)); I('v_add_u32 v%d, v%d, v%d' % (BT + 1, T, T + 1))

    def slot4_setup(self):
        I = self.I
        I('s_lshl_b32 s%d, s%d, 11' % (S_ST4, S_WAVE)); I('s_add_u32 s%d, s%d, %d' % (S_ST4, S_ST4, L_SHX)); I('s_sub_u32 s8, s%d, s%d' % (S_ST4, S_STA))
        for b in range(2): I('v_add_u32 v%d, s8, v%d' % (BT2 + b, BT + b))
    def wo_dma(self):
        g = self.g; I = self.I; grps = []
        with g.capture() as a:
            I('s_mul_i32 s23, s%d, %d' % (S_WAVE, 56 * 896)); I('s_lshl_b32 s24, s%d, 7' % S_CG); I('s_add_u32 s23, s23, s24'); I('s_mul_i32 s24, s%d, %d' % (S_WAVE, 56 * 128))
        for i in range(0, 7, 2):
            with g.capture() as b:
                I('s_add_u32 m0, s24, %d' % (L_WO + 1024 * i)); I('s_add_u32 s8, s23, %d' % (8 * 896 * i))
                I('buffer_load_dwordx4 v%d, %s, s8 offen lds' % (DB, sr(S_WO, 4)))
                if i + 1 < 7: I('buffer_load_dwordx4 v%d, %s, s8 offen offset:1024 lds' % (DB2, sr(S_WO, 4)))
            grps.append((a if i == 0 else []) + b)
        return grps
    SLOTS = [(0, BT), (2048, BT), (32768, BT), (34816, BT), (None, BT2)]
    def b_dma(self, k, needs=()):
        g = self.g; I = self.I; so = self.SLOTS[k % self.nslot][0]; grps = []
        with g.capture() as a:
            I('s_add_u32 m0, s%d, %d' % (S_STA, so) if so is not None else 's_mov_b32 m0, s%d' % S_ST4)
            I('s_add_u32 s8, s%d, %d' % (S_BSO, 16 * k * 896))
            I('buffer_load_dwordx4 v%d, %s, s8 offen lds' % (DB, sr(S_W2, 4)), needs=needs)
            I('buffer_load_dwordx4 v%d, %s, s8 offen offset:1024 lds' % (DB2, sr(S_W2, 4)))
        grps.append(a)
        self.bdma[k] = [x for gp in grps for x in gp if x.kind == 'dma']
        return grps
    def b_read(self, k):
        so, reg = self.SLOTS[k % self.nslot]; out = []
        if so is None: so = 0
        for b in range(2):
            for h in range(2):
                out.append(Instr('ds_read_b64_tr_b16 %s, v%d offset:%d' % (ar(8 * k + 4 * b + 2 * h, 2), reg + b, so + 1024 * h), needs=self.bdma[k]))
        self.bread[k] = out
        return out
    def b_tasks(self, k0, k1):
        t = [self.b_read(k) for k in range(k0, k1)]
        for k in range(k0, k1):
            if k + self.nslot < 14: t += self.b_dma(k + self.nslot, needs=self.bread[k])
        return t

    def stage_dma(self, st, gpitch):
        g = self.g; I = self.I; base = (st % 3) * STG
        nt = ' nt' if st < int(os.environ.get('NT', '0')) else ''; ntx = ' nt' if st < int(os.environ.get('NTX', os.environ.get('NT', '0'))) else ''
        grps = []
        for i in range(0, 4, 2):
            with g.capture() as a:
                if i == 0: I('s_add_u32 m0, s%d, %d' % (S_MW, base))
                I('s_mov_b64 exec, %s' % sr(S_EX56, 2))
                for j in (i, i + 1): I('buffer_load_dwordx4 v%d, %s, s%d offen offset:%d%s lds' % (DW + j, sr(S_W, 4), S_WSO, 896 * j, nt))
                I('s_mov_b64 exec, -1')
            grps.append(a)
        with g.capture() as a:
            I('s_add_u32 m0, s%d, %d' % (S_MX, base)); I('s_add_u32 s%d, s%d, %d' % (S_WSO, S_WSO, 64 * gpitch))
            for i in range(2): I('buffer_load_dwordx4 v%d, %s, s%d offen offset:%d%s lds' % (DX + i, sr(S_X, 4), S_XS, 1024 * i, ntx))
            I('s_add_u32 s%d, s%d, 128' % (S_XS, S_XS))
        grps.append(a)
        return grps, [x for gp in grps for x in gp if x.kind == 'dma']

    def read_addrs(self, clamp, shared=False):
        I = self.I; T = TMP
        I('v_and_b32 v%d, 31, v0' % T); I('v_lshlrev_b32 v%d, 7, v%d' % (T, T)); I('s_lshl_b32 s8, s%d, 12' % S_RT); I('v_add_u32 v%d, s8, v%d' % (T, T))
        I('v_lshrrev_b32 v%d, 5, v0' % (T + 1)); I('v_bfe_u32 v%d, v0, 1, 3' % (T + 2)); I('v_xor_b32 v%d, v%d, v%d' % (T + 2, T + 2, T + 1))
        I('v_lshlrev_b32 v%d, 3, v%d' % (T + 3, T + 1)); I('v_bfe_u32 v%d, v0, 2, 2' % (T + 4)); I('v_add_u32 v%d, v%d, v%d' % (T + 3, T + 3, T + 4))
        I('v_mul_u32_u24 v%d, 448, v%d' % (T + 3, T + 3))
        I('v_bfe_u32 v%d, v0, 4, 1' % (T + 4)); I('v_and_b32 v%d, 3, v0' % (T + 5)); I('v_lshl_add_u32 v%d, v%d, 2, v%d' % (T + 4, T + 4, T + 5))
        if shared:
            I('s_lshl_b32 s8, s%d, 2' % S_CH); I('v_xor_b32 v%d, s8, v%d' % (T + 6, T + 4)); I('v_lshl_add_u32 v%d, v%d, 3, v%d' % (T + 6, T + 6, T + 3))
            I('v_add_u32 v%d, %d, v%d' % (T + 6, WPART + 384, T + 6))
        if clamp: I('v_min_u32 v%d, 6, v%d' % (T + 4, T + 4))
        if shared:
            I('s_cmp_eq_u32 s%d, 7' % S_WAVE); I('s_cselect_b32 s8, 4, 0'); I('v_xor_b32 v%d, s8, v%d' % (CS + 3, T + 4))
            I('s_min_u32 s9, s%d, 6' % S_WAVE); I('s_lshl_b32 s9, s9, 6'); I('s_add_u32 s9, s9, %d' % L_CX)
        else:
            I('v_mov_b32 v%d, v%d' % (CS + 3, T + 4)); I('s_mul_i32 s9, s%d, 56' % S_RT); I('s_add_u32 s9, s9, s10'); I('s_add_u32 s9, s9, %d' % (L_CX - WPART))
        I('v_lshl_add_u32 v%d, v%d, 3, v%d' % (CS + 3, CS + 3, T + 3)); I('v_add_u32 v%d, s9, v%d' % (CS + 3, CS + 3))
        I('v_lshl_add_u32 v%d, v%d, 3, v%d' % (T + 3, T + 4, T + 3))
        I('v_add_u32 v%d, s10, v%d' % (T + 3, T + 3))
        for i in range(4):
            I('s_add_u32 s8, s%d, s%d' % (S_RT, S_CH)); I('s_add_u32 s8, s8, %d' % i); I('s_and_b32 s8, s8, 3')
            I('s_lshl_b32 s9, s8, 1'); I('v_xor_b32 v%d, s9, v%d' % (T + 5, T + 2)); I('v_lshl_add_u32 v%d, v%d, 4, v%d' % (AX + i, T + 5, T))
            I('s_mul_i32 s9, s8, 7168'); I('v_add_u32 v%d, s9, v%d' % (AW + i, T + 3))
            if shared and i in (0, 2): I('v_add_u32 v%d, s9, v%d' % (AS + i // 2, T + 6))

    def row_stats(self):
        I = self.I; S, Q = ST, ST + 1
        I('s_mov_b32 s8, 0x3f803f80')
        I('v_dot2_f32_bf16 v%d, v%d, s8, 0' % (S, XF)); I('v_dot2_f32_bf16 v%d, v%d, v%d, 0' % (Q, XF, XF))
        for q in range(1, 4):
            I('v_dot2_f32_bf16 v%d, v%d, s8, v%d' % (S, XF + q, S)); I('v_dot2_f32_bf16 v%d, v%d, v%d, v%d' % (Q, XF + q, XF + q, Q))
        for m in ('row_shr:1', 'row_shr:2', 'row_shr:4', 'row_shr:8'):
            for r in (S, Q): I('v_add_f32_dpp v%d, v%d, v%d %s row_mask:0xf bank_mask:0xf bound_ctrl:0' % (r, r, r, m))
        for m, rm in (('row_bcast:15', '0xa'), ('row_bcast:31', '0xc')):
            for r in (S, Q): I('v_add_f32_dpp v%d, v%d, v%d %s row_mask:%s bank_mask:0xf' % (r, r, r, m, rm))
        I('v_mul_f32 v%d, %s, v%d' % (S, f32(1.0 / 448), S)); I('v_mul_f32 v%d, %s, v%d' % (Q, f32(1.0 / 448), Q))
        I('v_fma_f32 v%d, -v%d, v%d, v%d' % (Q, S, S, Q)); I('v_max_f32 v%d, 0, v%d' % (Q, Q))
        def rbf(r):
            I('v_cvt_pk_bf16_f32 v%d, v%d, v%d' % (r, r, r)); I('v_lshlrev_b32 v%d, 16, v%d' % (r, r))
        rbf(S); rbf(Q)
        I('v_add_f32 v%d, %s, v%d' % (Q, f32(1e-5), Q)); rbf(Q)
        I('v_sqrt_f32 v%d, v%d' % (Q, Q)); rbf(Q)
        I('v_rcp_f32 v%d, v%d' % (Q, Q))
        I('v_sub_f32 v%d, 0, v%d' % (S, S))

    def nonce_issue(self):
        self.I('v_mov_b32 v%d, 0' % (ST + 3))
        return self.I('buffer_load_dword v%d, v%d, %s, 0 offen sc1' % (ST + 2, ST + 3, sr(S_DBG, 4)))
    def nonce_get_publish(self, tag):
        I = self.I; U = self.U
        I('v_readfirstlane_b32 s%d, v%d' % (S_NONCE, ST + 2))
        I('s_cmp_lg_u32 s%d, 0' % S_NONCE); I('s_cbranch_scc1 L_gotn%s' % tag)
        self.g.label('L_spinn%s' % tag)
        U('buffer_load_dword v%d, v%d, %s, 0 offen sc1' % (ST + 2, ST + 3, sr(S_DBG, 4)))
        U('s_waitcnt vmcnt(0)')
        I('v_readfirstlane_b32 s%d, v%d' % (S_NONCE, ST + 2)); I('s_nop 1')
        I('s_cmp_lg_u32 s%d, 0' % S_NONCE); I('s_cbranch_scc1 L_gotn%s' % tag)
        self.spin_tail('L_spinn%s' % tag)
        self.g.label('L_gotn%s' % tag)
        I('v_mov_b32 v%d, s%d' % (ST + 2, S_NONCE)); I('v_mov_b32 v%d, s%d' % (ST + 3, S_NONCE))
        I('s_lshl_b32 s8, s%d, 4' % S_ROW); I('s_add_u32 s8, s8, %d' % L.WS_RS); I('v_mov_b32 v%d, 0' % (TMP + 8))
        I('s_mov_b32 exec_lo, 0'); I('s_mov_b32 exec_hi, 0x80000000')
        I('buffer_store_dwordx4 %s, v%d, %s, s8 offen sc1' % (vr(ST, 4), TMP + 8, sr(S_WS, 4)))
        I('s_mov_b64 exec, -1')
    def rs_issue(self):
        I = self.I
        I('s_lshl_b32 s8, s%d, 2' % S_RB); I('s_add_u32 s8, s8, s%d' % S_RT); I('s_lshl_b32 s8, s8, 9'); I('s_add_u32 s%d, s8, %d' % (S_ROW, L.WS_RS))
        I('v_and_b32 v%d, 31, v%d' % (DX, VLANE)); I('v_lshlrev_b32 v%d, 4, v%d' % (DX, DX))
        return I('buffer_load_dwordx4 %s, v%d, %s, s%d offen sc1' % (vr(ST, 4), DX, sr(S_WS, 4), S_ROW))
    def rs_get(self, tag, scale):
        I = self.I; U = self.U
        I('v_cmp_ne_u32 vcc, s%d, v%d' % (S_NONCE, ST + 2)); I('s_nop 1'); I('s_cbranch_vccz L_gotr%s' % tag)
        self.g.label('L_spinr%s' % tag)
        U('buffer_load_dwordx4 %s, v%d, %s, s%d offen sc1' % (vr(ST, 4), DX, sr(S_WS, 4), S_ROW))
        U('s_waitcnt vmcnt(0)')
        I('v_cmp_ne_u32 vcc, s%d, v%d' % (S_NONCE, ST + 2)); I('s_nop 1'); I('s_cbranch_vccz L_gotr%s' % tag)
        self.spin_tail('L_spinr%s' % tag)
        self.g.label('L_gotr%s' % tag)
        for q in range(4): I('v_cvt_pk_bf16_f32 v%d, v%d, v%d' % (XF + q, ST, ST))
        I('v_mul_f32 v%d, %s, v%d' % (ST, f32(scale), ST + 1))
    def publish(self, soff_s, tmp, needs=()):
        I = self.I
        I('v_mov_b32 v%d, s%d' % (tmp, S_NONCE)); I('v_mov_b32 v%d, 0' % (tmp + 1)); I('s_mov_b64 exec, 1')
        x = I('buffer_store_dword v%d, v%d, %s, s%d offen sc1' % (tmp, tmp + 1, sr(S_WS, 4), soff_s), needs=needs)
        I('s_mov_b64 exec, -1')
        return x
    def poll(self, tag, voff, soff_s, tmp):
        I = self.I; U = self.U
        self.g.label('L_poll%s' % tag)
        U('buffer_load_dword v%d, v%d, %s, s%d offen sc1' % (tmp, voff, sr(S_WS, 4), soff_s))
        I('s_waitcnt vmcnt(0)')
        I('v_cmp_ne_u32 vcc, s%d, v%d' % (S_NONCE, tmp)); I('s_nop 1'); I('s_cbranch_vccz L_polld%s' % tag)
        self.spin_tail('L_poll%s' % tag)
        self.g.label('L_polld%s' % tag)
    def poll_issue(self, voff, soff_s, tmp):
        return self.I('buffer_load_dword v%d, v%d, %s, s%d offen sc1' % (tmp, voff, sr(S_WS, 4), soff_s))
    def poll_check(self, tag, voff, soff_s, tmp):
        I = self.I; U = self.U
        if 'nopoll' in EXP and tag in 'AB': return
        I('v_cmp_ne_u32 vcc, s%d, v%d' % (S_NONCE, tmp)); I('s_nop 1'); I('s_cbranch_vccz L_polld%s' % tag)
        self.g.label('L_poll%s' % tag)
        U('buffer_load_dword v%d, v%d, %s, s%d offen sc1' % (tmp, voff, sr(S_WS, 4), soff_s)); U('s_waitcnt vmcnt(0)')
        I('v_cmp_ne_u32 vcc, s%d, v%d' % (S_NONCE, tmp)); I('s_nop 1'); I('s_cbranch_vccz L_polld%s' % tag)
        self.spin_tail('L_poll%s' % tag)
        self.g.label('L_polld%s' % tag)
    def spin_tail(self, lab, sl=None):
        I = self.I
        I('s_sleep %d' % (sl or SLEEP)); I('s_add_u32 s31, s31, 1'); I('s_cmp_lt_u32 s31, 0x8000'); I('s_cbranch_scc1 %s' % lab)

    def l2pf(self, st):
        if 'l2pf' not in EXP: return []
        I = self.I; lab = 'L_pf%s%d' % (self.tagbase, st)
        with self.g.capture() as a:
            I('s_lshr_b32 s8, s%d, 1' % S_WAVE); I('s_cmp_lg_u32 s8, %d' % (st - PF0)); I('s_cbranch_scc1 %s' % lab)
            I('s_lshr_b32 s8, s2, 3'); I('s_lshl_b32 s8, s8, 3'); I('s_add_u32 s8, s8, s%d' % S_WAVE); I('s_lshl_b32 s8, s8, 13')
            I('v_lshlrev_b32 v%d, 7, v%d' % (TMP + 8, VLANE))
            self.U('buffer_load_dword a80, v%d, %s, s8 offen' % (TMP + 8, sr(S_W2, 4)))
            I('s_sub_u32 s8, s8, %d' % (196 * 8192)); I('s_cbranch_scc1 %s' % lab)
            self.U('buffer_load_dword a80, v%d, %s, s8 offen' % (TMP + 8, sr(S_WO, 4)))
            self.g.label(lab)
        return [a]

    def code_pf(self, tg, tmp, dst):
        if 'nocpf' in EXP: return []
        I = self.I
        with self.g.capture() as a:
            I('s_getpc_b64 s[8:9]'); self.g.label('L_cpf%s' % tg)
            I('s_sub_u32 s8, s8, L_cpf%s-L_pc' % tg); I('s_subb_u32 s9, s9, 0')
            I('s_bfe_u32 s10, s2, 0x20003'); I('s_lshl_b32 s10, s10, 3'); I('s_add_u32 s10, s10, s%d' % S_WAVE); I('s_lshl_b32 s10, s10, 11')
            I('v_lshlrev_b32 v%d, 7, v%d' % (tmp, VLANE)); I('v_add_u32 v%d, s10, v%d' % (tmp, tmp)); I('v_min_u32 v%d, L_end-L_pc, v%d' % (tmp, tmp))
            I('s_mov_b64 exec, 0xffff')
            I('global_load_dword %s, v%d, s[8:9]' % (dst, tmp))
            I('s_mov_b64 exec, -1')
        return [a]

    def gemm(self, tiles, gpitch, dms, tag, hooks, tl):
        g = self.g; I = self.I
        dmas = dict(dms)
        NF, LOOK = 8, 4
        seq = [(ks, cc) for ks in range(28) for cc in range(len(tiles[ks & 3]['t']))]
        def wread(n):
            ks, cc = seq[n]; a = WF + 4 * (n % NF); c, areg, off = tiles[ks & 3]['t'][cc]
            return [Instr('ds_read_b64_tr_b16 %s, v%d offset:%d' % (vr(a + 2 * h, 2), areg, off + h * 4 * 448)) for h in range(2)]
        def xread(ks):
            return [Instr('ds_read_b128 %s, v%d' % (vr(XF + 4 * (ks % 2), 4), AX + (ks & 3)))]
        aregs = sorted(set(list(range(AX, AX + 4)) + [t[1] for p in tiles for t in p['t']]))
        def adv(st):
            d = STG if st % 3 else -2 * STG
            return [Instr('v_add_u32 v%d, %d, v%d' % (r, d, r)) if d > 0 else Instr('v_subrev_u32 v%d, %d, v%d' % (r, -d, r)) for r in aregs]
        tc = [0]
        def cs_ops(r, c):
            t = TMP + 2 * (tc[0] % 4); tc[0] += 1
            return [Instr('v_lshlrev_b32 v%d, 16, v%d' % (t, r)), Instr('v_and_b32 v%d, s%d, v%d' % (t + 1, S_MASK, r)),
                    Instr('v_add_f32 v%d, v%d, v%d' % (CS + c, CS + c, t)), Instr('v_add_f32 v%d, v%d, v%d' % (CS + c, CS + c, t + 1))]
        if 'start' in EXP:
            self.stamp('rowst'); I('s_nop 0', needs=dmas[0]); self.stamp('s0arr'); I('s_waitcnt lgkmcnt(0)')
        BAR0 = len(g.cur)
        I('s_barrier', needs=dmas[0])
        self.stamp('bar0')
        g.extend(xread(0))
        first = [wread(n) for n in range(LOOK)]
        for x in first: g.extend(x)
        g1, dmas[1] = self.stage_dma(1, gpitch)
        pend, dmas[2] = self.stage_dma(2, gpitch)
        g.cur[self.s0pos:self.s0pos] = [Instr('s_barrier')] + [x for gp in g1 for x in gp]
        wrd = {}
        cs = {}
        def cs_make():
            with g.capture() as a:
                T = TMP
                I('s_cmp_ge_u32 s%d, 7' % S_RB); I('s_cbranch_scc1 L_nocm%s' % tag)
                I('s_mov_b32 s9, 0x3f803f80'); CT = [128, 130, 134, 136]
                for half in range(2):
                    for k2 in range(2):
                        for h in range(2): self.U('ds_read_b64_tr_b16 %s, v%d offset:%d' % (vr(CT[2 * k2 + h], 2), CS + 3, (2 * half + k2) * 7168 + h * 1792))
                    self.U('s_waitcnt lgkmcnt(0)')
                    for q in range(8): I('v_dot2_f32_bf16 v%d, v%d, s9, %s' % (CS + (q & 1), CT[q >> 1] + (q & 1), 'v%d' % (CS + (q & 1)) if half or q > 1 else '0'))
                I('s_lshl_b32 s8, s%d, 11' % S_WAVE); I('s_add_u32 s8, s8, s%d' % S_CSB); I('s_lshr_b32 s9, s%d, 2' % S_RB); I('s_lshl_b32 s9, s9, 10'); I('s_add_u32 s8, s8, s9')
                I('s_and_b32 s9, s%d, 3' % S_RB); I('s_lshl_b32 s9, s9, 2'); I('s_add_u32 s8, s8, s9')
                I('v_add_f32 v%d, v%d, v%d' % (CS, CS, CS + 1))
                I('v_cvt_pk_bf16_f32 v%d, v%d, v%d' % (T, CS, CS)); I('v_and_b32 v%d, s%d, v%d' % (T, S_MASK, T))
                I('v_sub_f32 v%d, v%d, v%d' % (T, CS, T)); I('v_cvt_pk_bf16_f32 v%d, v%d, v%d' % (CS, T, CS))
                self.U('buffer_store_dword v%d, v%d, %s, s8 offen sc1' % (CS, VL16, sr(S_WS, 4)))
                self.g.label('L_nocm%s' % tag)
            return [a]
        def cs_flag():
            with g.capture() as a:
                I('s_cmp_lt_u32 s%d, 7' % S_RB); I('s_cselect_b32 s8, s%d, 1' % S_WAVE); I('s_cmp_lg_u32 s8, 0'); I('s_cbranch_scc1 L_nocf%s' % tag)
                I('s_sub_u32 s8, s%d, %d' % (S_CSB, L.WS_CSG)); I('s_lshr_b32 s8, s8, 4'); I('s_lshl_b32 s9, s%d, 7' % S_RB); I('s_add_u32 s8, s8, s9'); I('s_add_u32 s8, s8, %d' % L.WS_CSF)
                self.publish(8, TMP).kind = 'untracked'
                self.g.label('L_nocf%s' % tag)
            return [a]
        def cs_poll():
            with g.capture() as a:
                I('s_sub_u32 s10, s%d, %d' % (S_CSB, L.WS_CSG)); I('s_lshr_b32 s10, s10, 4'); I('s_add_u32 s%d, s10, %d' % (S_R0, L.WS_CSF))
                I('v_and_b32 v%d, 7, v%d' % (CS, VLANE)); I('v_min_u32 v%d, 6, v%d' % (CS, CS)); I('v_lshlrev_b32 v%d, 7, v%d' % (CS, CS))
                self.poll_issue(CS, S_R0, CS + 1)
            return [a]
        def cs_load():
            with g.capture() as a:
                for c, mul, add in tl:
                    I('s_mul_i32 s8, s%d, %d' % (S_CH, mul * 2048)); I('s_add_u32 s8, s8, s%d' % S_CSB); I('s_add_u32 s8, s8, %d' % (add * 2048))
                    for h in range(2): I('buffer_load_dwordx4 %s, v%d, %s, s8 offen offset:%d sc1' % (ar(CSA + 8 * c + 4 * h, 4), VL16, sr(S_WS, 4), 1024 * h))
            return [a]
        for n in range(LOOK): wrd[n] = first[n]
        started = set(); xr = 0; cfill = []
        for n, (ks, cc) in enumerate(seq):
            p = tiles[ks & 3]; c = p['t'][cc][0]; a = WF + 4 * (n % NF); xf = XF + 4 * (ks % 2)
            I('v_mfma_f32_32x32x16_bf16 %s, %s, %s, %s' % (vr(ACC + 16 * c, 16), vr(a, 4), vr(xf, 4), vr(ACC + 16 * c, 16) if c in started else '0'),
              needs=wrd.get(n + 1, []) if n % 2 == 0 else [])
            started.add(c)
            nn = n + LOOK
            if nn < len(seq):
                ks2, cc2 = seq[nn]
                if cc2 == 0 and ks2 & 3 == 0:
                    st2 = ks2 >> 2
                    assert xr == ks2 - 1
                    g.extend(adv(st2))
                    if st2 == NST: self.nonce_get_publish(tag)
                    if st2 == 6: self.poll_check('c' + tag, CS, S_R0, CS + 1); self.rs_issue()
                    if st2 in hooks.get('pre', {}): hooks['pre'][st2]()
                    if 'stg' in EXP and st2 in (2, 3, 6): self.stamp('preB%d' % st2)
                    I('s_waitcnt lgkmcnt(0)')
                    I('s_barrier', needs=dmas[st2])
                    if 'stg' in EXP: self.stamp('B%d' % st2)
                    if st2 == 1:
                        with g.capture() as grp_: self.nonce_issue()
                        pend += [grp_]
                    if st2 == 1: pend += cs_make()
                    if st2 == 3: pend += cs_flag()
                    if st2 == 5: pend += cs_poll()
                    if st2 == 6: pend += cs_load()
                    if st2 in self.pre_post: pend += self.pre_post[st2]()
                    if st2 + 2 < 7:
                        newg, dmas[st2 + 2] = self.stage_dma(st2 + 2, gpitch); pend += newg
                    if st2 in TSCH: pend += self.mall_issue(1, TSCH[st2])
                    if st2 in hooks.get('post', {}): pend += hooks['post'][st2]()
                wrd[nn] = wread(nn); g.extend(wrd[nn])
            if xr == ks and ks + 1 < 28 and (nn >= len(seq) or seq[min(nn, len(seq) - 1)][0] >= ks + 1):
                g.extend(xread(ks + 1)); xr = ks + 1
            if pend and (n % 3 == 0 or len(pend) > 3): g.extend(pend.pop(0))
        for x in pend: g.extend(x)
        self.stamp('loopend')

    def finish_stats(self, tl, scale, tag, before_b1=None, after_b1=None):
        I = self.I
        wr = []
        if before_b1: wr += before_b1() or []
        self.rs_get(tag, scale)
        for c, mul, add in tl: I('v_accvgpr_write_b32 a%d, 0' % (CSA + 8 * c + 7))
        for h in range(2):
            for c, mul, add in tl:
                I('v_mfma_f32_32x32x16_bf16 %s, %s, %s, %s' % (vr(ACC + 16 * c, 16), ar(CSA + 8 * c + 4 * h, 4), vr(XF, 4), vr(ACC + 16 * c, 16)))
        I('s_barrier', needs=wr)
        if after_b1: after_b1()
        if 'stg' in EXP: self.stamp = lambda *a, **k: None
        self.stamp('stats')

    def with_bg(self, fn, tasks, every):
        with self.g.capture() as body:
            fn()
        out = []; tasks = list(tasks); cnt = 0
        for x in body:
            out.append(x); cnt += 1
            if tasks and cnt >= every and x.kind in ('valu', 'trans') and not (x.dst & {'vcc'}):
                out += tasks.pop(0); cnt = 0
        for t in tasks: out += t
        self.g.extend(out)

    def ffn(self):
        I = self.I; g = self.g
        self.tagbase = 'f'
        self.srd(S_W, 26, 448 * 3584)
        I('v_mul_u32_u24 v6, 3584, v6'); I('v_lshl_add_u32 v%d, v7, 4, v6' % DW)
        I('s_mul_i32 s%d, s%d, 448' % (S_WSO, S_IDX))
        dms = self.start_stream(3584)
        I('s_mul_i32 s10, s%d, 192' % S_CH); I('s_add_u32 s10, s10, %d' % WPART)
        self.read_addrs(False, shared=True)
        self.pre_loop(True, 0); self.pre_post = {}
        own = lambda i, o: [(c, AW + i, 64 * c) for c in o]
        tiles = [dict(t=[(3, AS, 0)] + own(0, [0, 1, 2]), cs=True), dict(t=own(1, [0, 1, 2]), cs=True),
                 dict(t=own(2, [1, 2, 0]) + [(3, AS + 1, 0)], cs=True), dict(t=own(3, [2, 0, 1]), cs=True)]
        self.bdma, self.bread = {}, {}; self.nslot = 5
        tl = [(0, 3, 0), (1, 3, 1), (2, 3, 2), (3, 1, 6)]
        self.gemm(tiles, 3584, dms, 'f', self.bhooks(), tl)
        self.slot4_setup()
        SH = ACC + 48; X8 = 116
        def before_b1():
            I('s_xor_b32 s8, s%d, 4' % S_WAVE); I('s_lshl_b32 s8, s8, 11'); I('s_add_u32 s8, s8, %d' % L_SHX); I('v_add_u32 v%d, s8, v%d' % (AX, VL16))
            I('s_lshl_b32 s8, s%d, 11' % S_WAVE); I('s_add_u32 s8, s8, %d' % L_SHX); I('v_add_u32 v%d, s8, v%d' % (AX + 1, VL16))
            return [I('ds_write_b128 v%d, %s offset:%d' % (AX, vr(SH + 8 + 4 * q, 4), 1024 * q)) for q in range(2)]
        shr = []
        def after_b1():
            for q in range(2): shr.append(I('ds_read_b128 %s, v%d offset:%d' % (vr(X8 + 4 * q, 4), AX + 1, 1024 * q)))
        self.finish_stats(tl, -L.LOG2E, 'f', before_b1, after_b1)
        I('s_lshl_b32 s8, s%d, 2' % S_RB); I('s_add_u32 s8, s8, s%d' % S_RT); I('s_mul_i32 s9, s8, %d' % (112 * 1024))
        I('s_lshl_b32 s8, s8, 3'); I('s_add_u32 s8, s8, s%d' % S_IDX); I('s_lshl_b32 s8, s8, 1'); I('s_add_u32 s8, s8, s%d' % S_CH)
        I('s_lshl_b32 s8, s8, 7'); I('s_add_u32 s0, s8, %d' % L.WS_FLAG)
        I('s_mul_i32 s10, s%d, %d' % (S_IDX, 14 * 1024)); I('s_add_u32 s9, s9, s10')
        I('s_mul_i32 s10, s%d, 6144' % S_CH); I('s_add_u32 s10, s9, s10')
        I('s_lshl_b32 s11, s%d, 10' % S_CH); I('s_add_u32 s9, s9, s11'); I('s_add_u32 s1, s9, %d' % (12 * 1024))
        stores = []
        def unit(idx):
            c, u = divmod(idx, 2)
            A = ACC + 16 * c + 8 * u; T = [64, 72][idx & 1]; P = [80, 84][idx & 1]
            if 'noprio' not in EXP:
                lab = 'L_fp%d' % idx
                I('s_setprio 0'); I('s_cmp_eq_u32 s%d, %d' % (S_CH, idx & 1)); I('s_cbranch_scc1 %s' % lab); I('s_setprio 1'); self.g.label(lab)
            if c == 3:
                for j in range(0, 8, 2): I('v_pk_add_f32 %s, %s, %s' % (vr(A + j, 2), vr(A + j, 2), vr(X8 + j, 2)))
            for j in range(0, 8, 2): I('v_pk_mul_f32 %s, %s, %s op_sel_hi:[1,0]' % (vr(A + j, 2), vr(A + j, 2), vr(ST, 2)))
            for j in range(8): I('v_exp_f32 v%d, v%d' % (T + j, A + j))
            for j in range(0, 8, 2): I('v_pk_add_f32 %s, %s, 1.0 op_sel_hi:[1,0]' % (vr(T + j, 2), vr(T + j, 2)))
            for j in range(8): I('v_rcp_f32 v%d, v%d' % (T + j, T + j))
            for j in range(0, 8, 2): I('v_pk_mul_f32 %s, %s, %s' % (vr(T + j, 2), vr(T + j, 2), vr(A + j, 2)))
            for j in range(0, 8, 2): I('v_cvt_pk_bf16_f32 v%d, v%d, v%d' % (P + j // 2, T + j, T + j + 1))
            if idx == 4: I('s_add_u32 s10, s10, 4096')
            if c < 3: stores.append(I('buffer_store_dwordx4 %s, v%d, %s, s10 offen offset:%d sc1' % (vr(P, 4), VL16, sr(S_WS, 4), (idx % 4) * 1024)))
            else: stores.append(I('buffer_store_dwordx4 %s, v%d, %s, s1 offen sc1' % (vr(P, 4), VL16, sr(S_WS, 4))))
        self.with_bg(lambda: [unit(i) for i in range(6)], self.b_round1(shr) + ([] if 'wolate' in EXP else self.wo_dma()), int(os.environ.get('FBG', '11')))
        unit(6)
        I('s_setprio 0')
        self.stamp('epi')
        self.p2_enter()
        bt = self.b_tasks(4, 9)
        for t in bt[:5]: g.extend(t)
        self.publish(0, 96, needs=stores)
        self.stamp('pub')
        if 'nofh' not in EXP: I('s_barrier')
        for t in bt[5:8]: g.extend(t)
        pa = self.poll_issue(P2T + 1, S_FA, P2T)
        for t in bt[8:] + (self.wo_dma() if 'wolate' in EXP else []): g.extend(t)
        I('s_waitcnt lgkmcnt(0)'); I('s_nop 0', needs=[pa])
        I('s_branch L_p2')

    def b_round1(self, need4=None):
        t = [sum([self.b_read(k) for k in range(4)], [])]
        if need4 is not None: t += self.b_dma(4, needs=need4)
        for k in range(4): t += self.b_dma(k + 5, needs=self.bread[k])
        return t

    def bhooks(self, extra=None):
        post = {5: lambda: [[Instr('v_add_u32 v%d, %d, v%d' % (DB2, 8 * 896 - 1024, DB))]] + self.b_dma(0) + self.b_dma(1), 6: lambda: self.b_dma(2) + self.b_dma(3)}
        if extra: post.update(extra)
        return dict(post=post)

    def pack_k(self, A, K8):
        I = self.I
        for j in range(8): I('v_cvt_pk_bf16_f32 v%d, v%d, v%d' % (K8 + j, A + 2 * j, A + 2 * j + 1))
        for j in (6, 7): I('v_cndmask_b32 v%d, v%d, 0, %s' % (K8 + j, K8 + j, sr(S_HIM, 2)))
    def half_units(self, As, neg):
        I = self.I; M = 64; n = '-' if neg else ''; nm = ' neg_lo:[1,0,0] neg_hi:[1,0,0]' if neg else ''
        def each(f):
            for i, A in enumerate(As): f(A, M + 6 * i)
        I('v_mov_b32 v%d, 0xff800000' % (TMP + 10))
        each(lambda A, m: (I('v_max3_f32 v%d, %sv%d, %sv%d, %sv%d' % (m, n, A, n, A + 1, n, A + 2)), I('v_max3_f32 v%d, %sv%d, %sv%d, %sv%d' % (m + 1, n, A + 8, n, A + 9, n, A + 10))))
        for j in (3, 5): each(lambda A, m: (I('v_max3_f32 v%d, v%d, %sv%d, %sv%d' % (m, m, n, A + j, n, A + j + 1)), I('v_max3_f32 v%d, v%d, %sv%d, %sv%d' % (m + 1, m + 1, n, A + 8 + j, n, A + 9 + j))))
        each(lambda A, m: I('v_max3_f32 v%d, v%d, %sv%d, %sv%d' % (m + 1, m + 1, n, A + 7, n, A + 15)))
        each(lambda A, m: I('v_max_f32 v%d, v%d, v%d' % (m, m, m + 1)))
        each(lambda A, m: I('v_mov_b32 v%d, v%d' % (m + 1, m)))
        each(lambda A, m: I('v_permlane32_swap_b32 v%d, v%d' % (m, m + 1)))
        each(lambda A, m: I('v_max_f32 v%d, v%d, v%d' % (m, m, m + 1)))
        each(lambda A, m: I('v_mul_f32 v%d, -v%d, v%d' % (m, ST, m)))
        each(lambda A, m: I('v_cndmask_b32 v%d, v%d, v%d, %s' % (m + 1, m, TMP + 10, sr(S_HIM, 2))))
        for j in range(0, 16, 2):
            sel = 'op_sel_hi:[1,0,0]' if j < 12 else 'op_sel:[0,0,1] op_sel_hi:[1,0,1]'
            each(lambda A, m: I('v_pk_fma_f32 %s, %s, %s, %s %s%s' % (vr(A + j, 2), vr(A + j, 2), vr(ST, 2), vr(m, 2), sel, nm)))
        for j in range(16): each(lambda A, m: I('v_exp_f32 v%d, v%d' % (A + j, A + j)))
        each(lambda A, m: (I('v_pk_add_f32 %s, %s, %s' % (vr(m + 2, 2), vr(A, 2), vr(A + 2, 2))), I('v_pk_add_f32 %s, %s, %s' % (vr(m + 4, 2), vr(A + 8, 2), vr(A + 10, 2)))))
        for j in (4, 6): each(lambda A, m: (I('v_pk_add_f32 %s, %s, %s' % (vr(m + 2, 2), vr(m + 2, 2), vr(A + j, 2))), I('v_pk_add_f32 %s, %s, %s' % (vr(m + 4, 2), vr(m + 4, 2), vr(A + 8 + j, 2)))))
        each(lambda A, m: I('v_pk_add_f32 %s, %s, %s' % (vr(m + 2, 2), vr(m + 2, 2), vr(m + 4, 2))))
        each(lambda A, m: I('v_add_f32 v%d, v%d, v%d' % (m, m + 2, m + 3)))
        each(lambda A, m: I('v_mov_b32 v%d, v%d' % (m + 1, m)))
        each(lambda A, m: I('v_permlane32_swap_b32 v%d, v%d' % (m, m + 1)))
        each(lambda A, m: I('v_add_f32 v%d, v%d, v%d' % (m, m, m + 1)))
        each(lambda A, m: I('v_rcp_f32 v%d, v%d' % (m, m)))
        for j in range(0, 16, 2): each(lambda A, m: I('v_pk_mul_f32 %s, %s, %s op_sel_hi:[1,0]' % (vr(A + j, 2), vr(A + j, 2), vr(m, 2))))
        for j in range(8): each(lambda A, m: I('v_cvt_pk_bf16_f32 v%d, v%d, v%d' % (A + j, A + 2 * j, A + 2 * j + 1)))
    def phi_mfma(self, A, K8, WP):
        I = self.I
        I('v_mfma_f32_32x32x16_bf16 %s, %s, %s, 0' % (vr(A, 16), ar(WP, 4), vr(K8, 4)))
        I('v_mfma_f32_32x32x16_bf16 %s, %s, %s, %s' % (vr(A, 16), ar(WP + 4, 4), vr(K8 + 4, 4), vr(A, 16)))
    def softmax_unit(self, A, sreg=None):
        I = self.I
        EP, EN, M = 64, 80, TMP
        mx, nm, t, u = M, M + 1, M + 2, M + 4
        I('v_mov_b32 v%d, 0xff800000' % (M + 10))
        m2, n2 = M + 6, M + 7
        for (a, b, o) in ((mx, nm, 0), (m2, n2, 8)):
            I('v_max3_f32 v%d, v%d, v%d, v%d' % (a, A + o, A + o + 1, A + o + 2)); I('v_max3_f32 v%d, -v%d, -v%d, -v%d' % (b, A + o, A + o + 1, A + o + 2))
        for j in (3, 5):
            for (a, b, o) in ((mx, nm, 0), (m2, n2, 8)):
                I('v_max3_f32 v%d, v%d, v%d, v%d' % (a, a, A + o + j, A + o + j + 1)); I('v_max3_f32 v%d, v%d, -v%d, -v%d' % (b, b, A + o + j, A + o + j + 1))
        I('v_max3_f32 v%d, v%d, v%d, v%d' % (m2, m2, A + 7, A + 15)); I('v_max3_f32 v%d, v%d, -v%d, -v%d' % (n2, n2, A + 7, A + 15))
        I('v_max_f32 v%d, v%d, v%d' % (mx, mx, m2)); I('v_max_f32 v%d, v%d, v%d' % (nm, nm, n2))
        I('v_permlane32_swap_b32 v%d, v%d' % (mx, nm)); I('v_max_f32 v%d, v%d, v%d' % (t, mx, nm))
        I('v_mul_f32 v%d, -v%d, v%d' % (t, ST, t)); I('v_mov_b32 v%d, v%d' % (u, t)); I('v_permlane32_swap_b32 v%d, v%d' % (t, u))
        I('v_cndmask_b32 v%d, v%d, v%d, %s' % (t + 1, t, M + 10, sr(S_HIM, 2))); I('v_cndmask_b32 v%d, v%d, v%d, %s' % (u + 1, u, M + 10, sr(S_HIM, 2)))
        for j in range(0, 16, 2):
            sel = 'op_sel_hi:[1,0,0]' if j < 12 else 'op_sel:[0,0,1] op_sel_hi:[1,0,1]'
            I('v_pk_fma_f32 %s, %s, %s, %s %s' % (vr(EP + j, 2), vr(A + j, 2), vr(ST, 2), vr(t, 2), sel))
            I('v_pk_fma_f32 %s, %s, %s, %s %s neg_lo:[1,0,0] neg_hi:[1,0,0]' % (vr(EN + j, 2), vr(A + j, 2), vr(ST, 2), vr(u, 2), sel))
        for j in range(16): I('v_exp_f32 v%d, v%d' % (EP + j, EP + j)); I('v_exp_f32 v%d, v%d' % (EN + j, EN + j))
        sp, sn = M + 6, M + 8
        I('v_pk_add_f32 %s, %s, %s' % (vr(sp, 2), vr(EP, 2), vr(EP + 2, 2))); I('v_pk_add_f32 %s, %s, %s' % (vr(sn, 2), vr(EN, 2), vr(EN + 2, 2)))
        for j in range(4, 16, 2):
            I('v_pk_add_f32 %s, %s, %s' % (vr(sp, 2), vr(sp, 2), vr(EP + j, 2))); I('v_pk_add_f32 %s, %s, %s' % (vr(sn, 2), vr(sn, 2), vr(EN + j, 2)))
        I('v_add_f32 v%d, v%d, v%d' % (sp, sp, sp + 1)); I('v_add_f32 v%d, v%d, v%d' % (sn, sn, sn + 1))
        I('v_permlane32_swap_b32 v%d, v%d' % (sp, sn)); I('v_add_f32 v%d, v%d, v%d' % (t, sp, sn))
        if sreg is None:
            I('v_rcp_f32 v%d, v%d' % (t, t)); I('v_mov_b32 v%d, v%d' % (u, t)); I('v_permlane32_swap_b32 v%d, v%d' % (t, u))
            for j in range(0, 16, 2):
                I('v_pk_mul_f32 %s, %s, %s op_sel_hi:[1,0]' % (vr(EP + j, 2), vr(EP + j, 2), vr(t, 2)))
                I('v_pk_mul_f32 %s, %s, %s op_sel_hi:[1,0]' % (vr(EN + j, 2), vr(EN + j, 2), vr(u, 2)))
            for j in range(8):
                I('v_cvt_pk_bf16_f32 v%d, v%d, v%d' % (A + j, EP + 2 * j, EP + 2 * j + 1)); I('v_cvt_pk_bf16_f32 v%d, v%d, v%d' % (A + 8 + j, EN + 2 * j, EN + 2 * j + 1))
        else:
            I('v_mov_b32 v%d, v%d' % (u, t))
            for j in range(2): I('v_cvt_pk_bf16_f32 v%d, v%d, v%d' % (A + j, EP + 2 * j, EP + 2 * j + 1))
            I('v_permlane32_swap_b32 v%d, v%d' % (t, u)); I('v_rcp_f32 v%d, v%d' % (u, u))
            for j in range(2, 8): I('v_cvt_pk_bf16_f32 v%d, v%d, v%d' % (A + j, EP + 2 * j, EP + 2 * j + 1))
            I('v_mul_f32 v%d, v%d, v%d' % (u, u, t)); I('v_mov_b32 v%d, v%d' % (sreg, t))
            for j in range(0, 16, 2): I('v_pk_mul_f32 %s, %s, %s op_sel_hi:[1,0]' % (vr(EN + j, 2), vr(EN + j, 2), vr(u, 2)))
            for j in range(8): I('v_cvt_pk_bf16_f32 v%d, v%d, v%d' % (A + 8 + j, EN + 2 * j, EN + 2 * j + 1))

    def wphi_dma(self, n, head0_s):
        I = self.I; out = []
        I('s_mul_i32 s8, s%d, 1568' % head0_s); I('s_lshl_b32 s9, s%d, 10' % S_WAVE); I('s_add_u32 s8, s8, s9'); I('s_add_u32 s9, s9, %d' % L_WPHI)
        for i in range(n):
            I('s_add_u32 m0, s9, %d' % (8192 * i)); I('s_add_u32 s10, s8, %d' % (8192 * i))
            out.append(I('buffer_load_dwordx4 v%d, %s, s10 offen lds' % (VL16, sr(S_PHI, 4))))
        return out
    def wphi_read(self, nheads, hoff_s, WP):
        I = self.I; T = TMP + 9
        I('v_lshrrev_b32 v%d, 5, v%d' % (T, VLANE)); I('v_lshlrev_b32 v%d, 2, v%d' % (T, T)); I('v_bfe_u32 v%d, v%d, 2, 2' % (T + 1, VLANE)); I('v_add_u32 v%d, v%d, v%d' % (T, T, T + 1))
        I('v_mul_u32_u24 v%d, 56, v%d' % (T, T)); I('v_add_u32 v%d, s%d, v%d' % (T, hoff_s, T))
        I('v_bfe_u32 v%d, v%d, 4, 1' % (T + 1, VLANE)); I('v_lshlrev_b32 v%d, 2, v%d' % (T + 1, T + 1)); I('v_and_or_b32 v%d, v%d, 3, v%d' % (T + 1, VLANE, T + 1))
        I('v_min_u32 v%d, 6, v%d' % (T + 1, T + 1)); I('v_lshl_add_u32 v%d, v%d, 3, v%d' % (T, T + 1, T))
        for i in range(nheads):
            for s in range(2):
                for h in range(2):
                    I('ds_read_b64_tr_b16 %s, v%d offset:%d' % (ar(WP + 8 * i + 4 * s + 2 * h, 2), T, i * 1568 + (16 * s + 8 * h) * 56))

    def kv_common(self):
        I = self.I; g = self.g
        self.tagbase = 'k'
        self.srd(S_W, 18, 448 * 2688)
        I('s_lshl_b32 s8, s%d, 2' % S_IDX); I('s_lshr_b32 s9, 0xdb9630, s8'); I('s_and_b32 s9, s9, 15')
        I('s_lshr_b32 s10, 0x322333, s8'); I('s_and_b32 s10, s10, 15')
        I('s_mul_i32 s11, s9, 56'); I('s_and_b32 s%d, s11, -16' % S_WSO); I('s_and_b32 s11, s11, 8')
        I('s_mul_i32 s8, s10, 3'); I('s_add_u32 s8, s8, 1')
        I('v_cmp_lt_u32 vcc, 13, v7'); I('v_subrev_u32 v8, 14, v7'); I('v_cndmask_b32 v8, v7, v8, vcc'); I('v_min_u32 v8, s8, v8')
        I('v_mov_b32 v9, 896'); I('v_mov_b32 v10, 1792'); I('v_cndmask_b32 v9, v9, v10, vcc')
        I('v_mul_u32_u24 v6, 2688, v6'); I('v_add_u32 v6, v6, v9'); I('v_lshl_add_u32 v%d, v8, 4, v6' % DW)
        I('s_mov_b32 s0, s9'); I('s_mov_b32 s1, s10'); I('s_mov_b32 s%d, s11' % S_NONCE)
        dms = self.start_stream(2688)
        I('s_mul_i32 s10, s%d, 224' % S_CH); I('s_add_u32 s10, s10, s%d' % S_NONCE); I('s_add_u32 s10, s10, %d' % WPART)
        self.read_addrs(True)
        PW, HO, UA, VW, ZV = 48, 50, 51, 54, 58
        def kvx():
            I('s_mov_b32 s%d, s0' % S_H0); I('s_mov_b32 s%d, s1' % S_NH)
        def kvl():
            I('s_mov_b32 s%d, s%d' % (S_R0, S_H0))
            if ATOM:
                I('s_cmp_lg_u32 s%d, 0' % S_RB); I('s_cbranch_scc1 L_nozero')
                Z = 68
                for i in range(4): I('v_mov_b32 v%d, 0' % (Z + i))
                I('s_lshl_b32 s8, s%d, 13' % S_H0); I('s_lshl_b32 s9, s%d, 10' % S_WAVE); I('s_add_u32 s8, s8, s9'); I('s_add_u32 s8, s8, %d' % L.WS_KV)
                self.U('buffer_store_dwordx4 %s, v%d, %s, s8 offen sc1' % (vr(Z, 4), VL16, sr(S_WS, 4)))
                I('s_add_u32 s8, s8, 8192'); self.U('buffer_store_dwordx4 %s, v%d, %s, s8 offen sc1' % (vr(Z, 4), VL16, sr(S_WS, 4)))
                I('s_add_u32 s8, s8, 8192'); I('s_cmp_eq_u32 s%d, 3' % S_NH); I('s_cselect_b32 s8, s8, 0x7f000000')
                self.U('buffer_store_dwordx4 %s, v%d, %s, s8 offen sc1' % (vr(Z, 4), VL16, sr(S_WS, 4))); I('s_nop 1')
                self.g.label('L_nozero')
            for gp in post4(): g.extend(gp)
        kv_pre = lambda: self.pre_loop(True, 8, kvx, kvl)
        rot = lambda i: [((i + cc) % 3, AW + i, 56 * ((i + cc) % 3)) for cc in range(3)]
        tiles = [dict(t=rot(i), cs=(i < 3)) for i in range(4)]
        self.bdma, self.bread = {}, {}; self.nslot = 5
        def pre2():
            pass
        def post2():
            with g.capture() as a:
                I('s_mov_b32 s8, %d' % L_WPHI)
                self.wphi_read(3, 8, 88)
            return [a]
        def post3():
            with g.capture() as a:
                I('s_or_b32 s8, s%d, s%d' % (S_RB, S_WAVE)); I('s_cmp_lg_u32 s8, 0'); I('s_cbranch_scc1 L_nozf')
                I('s_lshl_b32 s8, s%d, 7' % S_IDX); I('s_add_u32 s8, s8, %d' % (L.WS_KVZ + 0x4000))
                self.publish(8, TMP + 8).kind = 'untracked'
                self.g.label('L_nozf')
            return [a]
        self.kvr = (PW, HO, UA, VW, ZV)
        def post4():
            A, B, C = 64, 65, 66; out = []
            with g.capture() as a:
                I('v_and_b32 v%d, 31, v%d' % (A, VLANE)); I('v_lshlrev_b32 v%d, 6, v%d' % (A, A)); I('s_lshl_b32 s8, s%d, 11' % S_RT); I('v_add_u32 v%d, s8, v%d' % (A, A))
                I('v_bfe_u32 v%d, v%d, 1, 2' % (B, VLANE)); I('v_lshl_add_u32 v%d, v%d, 4, v%d' % (A, B, A))
                I('v_lshrrev_b32 v%d, 5, v%d' % (B, VLANE))
                I('v_lshl_add_u32 v%d, v%d, 13, v%d' % (PW, B, A)); I('s_lshl_b32 s9, s%d, 5' % S_CH); I('v_xor_b32 v%d, s9, v%d' % (PW, PW)); I('v_xor_b32 v%d, 16, v%d' % (PW + 1, PW))
                I('s_add_u32 s8, s8, %d' % L_V); I('v_add_u32 v%d, s8, v%d' % (HO, VL16))
                I('v_lshl_add_u32 v%d, v%d, 3, v%d' % (VW, B, A)); I('v_add_u32 v%d, %d, v%d' % (VW, L_V, VW))
                for q in range(1, 4): I('v_xor_b32 v%d, %d, v%d' % (VW + q, 16 * q, VW))
                I('v_lshlrev_b32 v%d, 10, v%d' % (UA + 2, B)); I('v_and_b32 v%d, 31, v%d' % (A, VLANE)); I('v_lshl_add_u32 v%d, v%d, 2, v%d' % (UA + 2, A, UA + 2))
            out.append(a)
            with g.capture() as a:
                I('v_lshrrev_b32 v%d, 5, v%d' % (A, VLANE)); I('v_bfe_u32 v%d, v%d, 2, 2' % (B, VLANE)); I('v_lshl_add_u32 v%d, v%d, 2, v%d' % (A, A, B))
                I('v_bfe_u32 v%d, v%d, 4, 1' % (B, VLANE)); I('v_bfe_u32 v%d, v%d, 1, 1' % (C, VLANE)); I('v_lshl_add_u32 v%d, v%d, 1, v%d' % (B, B, C))
                I('v_lshrrev_b32 v%d, 1, v%d' % (C, A)); I('v_xor_b32 v%d, v%d, v%d' % (B, B, C)); I('v_lshlrev_b32 v%d, 6, v%d' % (A, A)); I('v_lshl_add_u32 v%d, v%d, 4, v%d' % (A, B, A))
                I('v_and_b32 v%d, 1, v%d' % (B, VLANE)); I('v_lshl_add_u32 v%d, v%d, 3, v%d' % (A, B, A))
                I('s_lshl_b32 s10, s%d, 13' % S_WAVE); I('v_add_u32 v%d, s10, v%d' % (UA + 1, A))
                I('s_lshr_b32 s9, s%d, 1' % S_WAVE); I('s_lshl_b32 s10, s9, 13'); I('s_add_u32 s10, s10, %d' % L_V); I('v_add_u32 v%d, s10, v%d' % (UA, A))
                I('s_add_u32 s10, s9, s%d' % S_H0); I('s_lshl_b32 s10, s10, 13'); I('s_and_b32 s8, s%d, 1' % S_WAVE); I('s_lshl_b32 s8, s8, 7'); I('s_add_u32 s10, s10, s8')
                I('s_add_u32 s0, s10, %d' % L.WS_KV)
                I('s_cmp_lt_u32 s9, s%d' % S_NH); I('s_cselect_b32 s%d, 1, 0' % S_NH)
                I('s_lshl_b32 s8, s%d, 4' % S_IDX); I('s_add_u32 s8, s8, s%d' % S_RB); I('s_lshl_b32 s8, s8, 7'); I('s_add_u32 s1, s8, %d' % L.WS_KVZ)
                I('s_lshl_b32 s%d, s%d, 7' % (S_H0, S_IDX)); I('s_add_u32 s%d, s%d, %d' % (S_H0, S_H0, L.WS_KVZ + 0x4000)); I('v_mov_b32 v%d, 0' % ZV)
            out.append(a)
            return out
        kv_pre()
        def wpd():
            with g.capture() as a: self.wphi_dma(1, S_R0)
            return [a]
        self.pre_post = {2: wpd}
        hk = self.bhooks({4: post2, NST: post3})
        p6 = hk['post'][6]
        def post6():
            with g.capture() as a: self.poll_issue(ZV, S_H0, ZV + 1)
            return [a] + p6()
        hk['post'][6] = post6
        tl = [(c, 4, c) for c in range(3)]
        self.gemm(tiles, 2688, dms, 'k', hk, tl)
        self.finish_stats(tl, L.LOG2E, 'k', self.slot4_setup)
        I('s_cmp_eq_u32 s%d, 1' % S_CH); I('s_cbranch_scc1 L_kv_v')

    def kv_rest(self, tg, As, wr):
        I = self.I; g = self.g; PW, HO, U, VW, ZV = self.kvr
        self.with_bg(lambda: self.half_units(As, tg == 'v'), self.b_round1(), int(os.environ.get('KBG', '14')))
        for i, A in enumerate(As):
            wr += [I('ds_write_b128 v%d, %s offset:%d' % (PW + q, vr(A + 4 * q, 4), L_PHI + 16384 * i)) for q in range(2)]
        self.poll_check('z' + tg, ZV, S_H0, ZV + 1)
        for k in range(5, 9): g.extend(self.b_read(k))
        I('s_add_u32 s10, s0, 4096')
        I('s_waitcnt lgkmcnt(0)')
        I('s_barrier')
        self.stamp('bb')
        I('s_cmp_eq_u32 s%d, 0' % S_NH); I('s_cbranch_scc1 L_nounit%s' % tg)
        if 'uprio' in EXP and tg == 'v': I('s_setprio 3')
        def rd(s):
            b = 64 + 8 * (s % 4)
            for h in range(2):
                I('ds_read_b64_tr_b16 %s, v%d offset:%d' % (vr(b + 2 * h, 2), U, (16 * s + 8 * h) * 64))
                I('ds_read_b64_tr_b16 %s, v%d offset:%d' % (vr(b + 4 + 2 * h, 2), U + 1, (16 * s + 8 * h) * 64))
        D = ACC
        for s in range(3): rd(s)
        for s in range(8):
            if s + 3 < 8: rd(s + 3)
            b = 64 + 8 * (s % 4)
            I('v_mfma_f32_32x32x16_bf16 %s, %s, %s, %s' % (vr(D, 16), vr(b, 4), vr(b + 4, 4), vr(D, 16) if s else '0'))
        I('s_nop 7'); I('s_nop 4')
        for r in range(16):
            d = (r & 3) + 8 * (r >> 2)
            if r == 14: I('s_mov_b32 exec_hi, 0')
            self.U('buffer_atomic_add_f32 v%d, v%d, %s, s%d offen offset:%d' % (D + r, U + 2, sr(S_WS, 4), 0 if d < 16 else 10, (d % 16) * 256))
        I('s_mov_b64 exec, -1')
        self.g.label('L_nounit%s' % tg)
        I('s_waitcnt vmcnt(0)')
        I('s_barrier')
        if True:
            I('s_cmp_lg_u32 s%d, 7' % S_WAVE); I('s_cbranch_scc1 L_nokf%s' % tg)
            self.publish(1, 96).kind = 'untracked'
            self.g.label('L_nokf%s' % tg)
            self.stamp('kvdone')
        I('s_setprio 0')
        bulk = self.b_dma(4)
        for k in range(5, 9): bulk += self.b_dma(k + 5)
        bulk += self.wo_dma()
        for t in bulk[:6]: g.extend(t)
        self.p2_enter()
        pa = self.poll_issue(P2T + 1, S_FA, P2T)
        for t in bulk[6:] + self.b_tasks(4, 5): g.extend(t)
        I('s_waitcnt lgkmcnt(0)'); I('s_nop 0', needs=[pa])
        I('s_branch L_p2')

    def kv_k(self):
        I = self.I; g = self.g; PW, HO, U, VW, ZV = self.kvr
        wr = []
        for i in range(3):
            N = 80 + 8 * i
            self.pack_k(ACC + 16 * i, N)
            wr += [I('ds_write_b128 v%d, %s offset:%d' % (HO, vr(N + 4 * q, 4), 8192 * i + 1024 * q)) for q in range(2)]
        I('s_barrier', needs=wr)
        for i in range(3): self.phi_mfma(ACC + 16 * i, 80 + 8 * i, 88 + 8 * i)
        self.kv_rest('k', [ACC, ACC + 16, ACC + 32], [])

    def kv_v(self):
        I = self.I; g = self.g; PW, HO, U, VW, ZV = self.kvr
        I('v_cndmask_b32 v%d, v%d, 0, %s' % (CS, ST + 1, sr(S_HIM, 2))); I('v_cndmask_b32 v%d, 0, 1.0, %s' % (CS + 1, sr(S_HIM, 2)))
        PV = [88, 96, 112]
        def vpath(i):
            A = ACC + 16 * i
            for j in range(0, 12, 2): I('v_pk_mul_f32 %s, %s, %s op_sel:[0,1] op_sel_hi:[1,1]' % (vr(A + j, 2), vr(A + j, 2), vr(ST, 2)))
            for j in (12, 14): I('v_pk_fma_f32 %s, %s, %s, %s op_sel:[0,0,1] op_sel_hi:[1,0,1]' % (vr(A + j, 2), vr(A + j, 2), vr(CS, 2), vr(CS, 2)))
            for j in range(8): I('v_cvt_pk_bf16_f32 v%d, v%d, v%d' % (PV[i] + j, A + 2 * j, A + 2 * j + 1))
        vpath(0); vpath(1)
        I('s_barrier')
        rd = [I('ds_read_b128 %s, v%d offset:%d' % (vr(64 + 8 * i + 4 * q, 4), HO, 8192 * i + 1024 * q)) for i in range(3) for q in range(2)]
        vpath(2)
        wr = []
        for i in range(3):
            self.phi_mfma(ACC + 16 * i, 64 + 8 * i, 88 + 8 * i)
            wr += [I('ds_write_b64 v%d, %s offset:%d' % (VW + q, vr(PV[i] + 2 * q, 2), 8192 * i), needs=rd[2 * i:2 * i + 2]) for q in range(4)]
        self.kv_rest('v', [ACC, ACC + 16, ACC + 32], wr)
    _uid = 0
    def uid(self):
        K._uid += 1
        return str(K._uid)

    def q(self):
        I = self.I; g = self.g
        self.tagbase = 'q'
        self.srd(S_W, 18, 448 * 2688)
        I('v_mul_u32_u24 v6, 2688, v6'); I('v_lshl_add_u32 v%d, v7, 4, v6' % DW)
        I('s_mul_i32 s%d, s%d, 448' % (S_WSO, S_IDX))
        dms = self.start_stream(2688)
        I('s_mul_i32 s10, s%d, 224' % S_CH); I('s_add_u32 s10, s10, %d' % WPART)
        self.read_addrs(True)
        self.pre_loop(False, 14, lambda: I('s_lshl_b32 s%d, s%d, 3' % (S_H0, S_IDX)))
        def wpd():
            with g.capture() as a: self.wphi_dma(2, S_H0)
            return [a]
        self.pre_post = {2: wpd}
        tiles = [dict(t=[((i + cc) % 4, AW + i, 56 * ((i + cc) % 4)) for cc in range(4)], cs=True) for i in range(4)]
        def post2():
            with g.capture() as a:
                I('s_mul_i32 s8, s%d, %d' % (S_CH, 4 * 1568)); I('s_add_u32 s8, s8, %d' % L_WPHI)
                self.wphi_read(4, 8, 0)
            return [a]
        tl = [(c, 4, c) for c in range(4)]
        self.gemm(tiles, 2688, dms, 'q', dict(post={4: post2}), tl)
        self.finish_stats(tl, L.LOG2E, 'q')
        for i in range(4):
            self.pack_k(ACC + 16 * i, 80 + 8 * (i & 1)); self.phi_mfma(ACC + 16 * i, 80 + 8 * (i & 1), 8 * i)
        for i in range(4): self.softmax_unit(ACC + 16 * i, sreg=124 + i)
        self.stamp('soft')
        if 'noq' in EXP: return
        T = TMP
        if 'lat' in EXP:
            I('s_lshl_b32 s8, s2, 3'); I('s_add_u32 s8, s8, s%d' % S_WAVE); I('s_lshl_b32 s8, s8, 9'); I('s_add_u32 s8, s8, %d' % (15 << 20)); I('v_mov_b32 v%d, 0' % T)
            for rep_ in range(2):
                I('buffer_load_dword v%d, v%d, %s, s8 offen offset:%d sc1' % (T + 1, T, sr(S_WS, 4), 256 * rep_)); I('s_waitcnt vmcnt(0)'); self.stamp('miss')
                I('buffer_load_dword v%d, v%d, %s, s8 offen offset:%d sc1' % (T + 1, T, sr(S_WS, 4), 256 * rep_)); I('s_waitcnt vmcnt(0)'); self.stamp('l2hit')
                I('buffer_store_dword v%d, v%d, %s, s8 offen offset:%d sc1' % (T + 1, T, sr(S_WS, 4), 128 + 256 * rep_)); I('s_waitcnt vmcnt(0)'); self.stamp('st')
            self.nst = 15
        if 'qpf' in EXP:
            I('s_and_b32 s8, s2, 7'); I('s_lshl_b32 s8, s8, 2'); I('s_bfe_u32 s9, s2, 0x20003'); I('s_add_u32 s8, s8, s9')
            I('s_lshl_b32 s9, s8, 12'); I('s_lshl_b32 s10, s%d, 8' % S_WAVE); I('s_add_u32 s9, s9, s10'); I('s_add_u32 s11, s9, %d' % L.WS_FLAG)
            I('v_and_b32 v%d, 1, v%d' % (T, VLANE)); I('v_lshlrev_b32 v%d, 11, v%d' % (T, T)); I('v_and_b32 v%d, 2, v%d' % (T + 1, VLANE)); I('v_lshl_add_u32 v%d, v%d, 6, v%d' % (T, T + 1, T))
            I('s_mul_i32 s8, s8, 224'); I('s_mul_i32 s9, s%d, 14' % S_WAVE); I('s_add_u32 s8, s8, s9'); I('s_lshl_b32 s10, s8, 10'); I('s_add_u32 s9, s10, %d' % (112 * 1024))
            I('v_lshlrev_b32 v%d, 7, v%d' % (T + 2, VLANE)); I('v_add_u32 v%d, 8192, v%d' % (T + 3, T + 2))
            self.g.label('L_qpf')
            self.U('buffer_load_dword v%d, v%d, %s, s11 offen sc1' % (T + 1, T, sr(S_WS, 4))); self.U('s_waitcnt vmcnt(0)')
            I('v_cmp_ne_u32 vcc, s%d, v%d' % (S_NONCE, T + 1)); I('s_nop 1'); I('s_cbranch_vccz L_qpfd')
            self.spin_tail('L_qpf', QSL)
            self.g.label('L_qpfd')
            for so in (10, 9): I('buffer_load_dword a100, v%d, %s, s%d offen' % (T + 2, sr(S_WS, 4), so)).dst = set()
            I('s_mov_b32 exec_hi, 0xffff')
            for so in (10, 9): I('buffer_load_dword a100, v%d, %s, s%d offen' % (T + 3, sr(S_WS, 4), so)).dst = set()
            I('s_mov_b64 exec, -1')
        if ATOM:
            T = TMP
            I('v_lshrrev_b32 v%d, 4, v%d' % (T, VLANE)); I('s_lshl_b32 s8, s%d, 1' % S_IDX); I('v_add_u32 v%d, s8, v%d' % (T, T))
            I('s_mul_i32 s8, s%d, 3' % S_IDX); I('s_add_u32 s8, s8, 2'); I('v_min_u32 v%d, s8, v%d' % (T, T))
            I('v_and_b32 v%d, 15, v%d' % (T + 1, VLANE)); I('v_lshl_add_u32 v%d, v%d, 4, v%d' % (T, T, T + 1)); I('v_lshlrev_b32 v%d, 7, v%d' % (T, T))
            I('s_mov_b32 s11, %d' % L.WS_KVZ)
            I('v_lshrrev_b32 v%d, 3, v%d' % (T + 2, VLANE)); I('v_and_b32 v%d, 7, v%d' % (T + 3, VLANE)); I('v_lshlrev_b32 v%d, 4, v%d' % (T + 4, T + 3)); I('v_lshl_add_u32 v%d, v%d, 8, v%d' % (T + 4, T + 2, T + 4))
            I('s_add_u32 s8, s%d, s%d' % (S_H0, S_WAVE)); I('s_lshl_b32 s8, s8, 13'); I('s_add_u32 s0, s8, %d' % L.WS_KV); I('s_add_u32 s1, s0, 4096')
            I('v_lshrrev_b32 v%d, 1, v%d' % (T + 5, T + 3)); I('v_lshlrev_b32 v%d, 10, v%d' % (T + 5, T + 5)); I('v_and_b32 v%d, 1, v%d' % (T + 3, T + 3)); I('v_lshl_add_u32 v%d, v%d, 3, v%d' % (T + 5, T + 3, T + 5))
            I('s_lshl_b32 s8, s%d, 12' % S_WAVE); I('v_add_u32 v%d, s8, v%d' % (T + 5, T + 5))
            WA4 = 112
            for i in range(4):
                a, b, c_ = T + 6, T + 7, T + 3
                I('v_add_u32 v%d, %d, v%d' % (a, 8 * i, T + 2))
                I('v_cmp_lt_u32 vcc, 13, v%d' % a); I('v_subrev_u32 v%d, 14, v%d' % (b, a)); I('v_cndmask_b32 v%d, v%d, v%d, vcc' % (b, a, b)); I('v_cndmask_b32 v%d, 0, 4, vcc' % c_)
                if i == 3:
                    I('v_cmp_lt_u32 vcc, 27, v%d' % a); I('v_and_b32 v%d, 1, v%d' % (T + 8, a)); I('v_lshlrev_b32 v%d, 2, v%d' % (T + 8, T + 8)); I('v_cndmask_b32 v%d, v%d, v%d, vcc' % (c_, c_, T + 8))
                    I('v_bfe_u32 v%d, v%d, 1, 1' % (T + 8, a)); I('v_add_u32 v%d, 14, v%d' % (T + 8, T + 8)); I('v_cndmask_b32 v%d, v%d, v%d, vcc' % (b, b, T + 8))
                I('v_and_or_b32 v%d, v%d, 3, v%d' % (c_, b, c_)); I('v_lshrrev_b32 v%d, 2, v%d' % (b, b)); I('v_lshl_add_u32 v%d, v%d, 3, v%d' % (c_, b, c_))
                I('v_lshl_add_u32 v%d, v%d, 4, v%d' % (WA4 + i, c_, T + 5))
            I('s_lshl_b32 s8, s%d, 14' % S_CH); I('v_add_u32 v%d, s8, v%d' % (T + 2, VL16))
            self.q_scalars()
            I('s_cmp_lg_u32 s%d, 0' % S_WAVE); I('s_cbranch_scc1 L_polldkv')
            self.g.label('L_pollkv')
            self.U('buffer_load_dword v64, v%d, %s, s11 offen sc1' % (T, sr(S_WS, 4))); self.U('s_waitcnt vmcnt(0)')
            I('v_cmp_ne_u32 vcc, s%d, v64' % S_NONCE); I('s_nop 1'); I('s_cbranch_vccz L_polldkv')
            self.spin_tail('L_pollkv', QSL)
            self.g.label('L_polldkv')
            I('s_barrier')
            self.stamp('kvok')
            for i in range(8):
                I('buffer_load_dwordx4 %s, v%d, %s, s%d offen offset:%d sc1' % (vr(64 + 4 * i, 4), T + 4, sr(S_WS, 4), (i >> 1) & 1, (i & 1) * 2048 + (i >> 2) * 128))
            wr = []
            for i in range(8):
                I('v_cvt_pk_bf16_f32 v%d, v%d, v%d' % (64 + 4 * i, 64 + 4 * i, 65 + 4 * i)); I('v_cvt_pk_bf16_f32 v%d, v%d, v%d' % (65 + 4 * i, 66 + 4 * i, 67 + 4 * i))
                wr.append(I('ds_write_b64 v%d, %s offset:%d' % (WA4 + (i & 3), vr(64 + 4 * i, 2), 512 * (i >> 2))))
            self.stamp('kvld')
            qbar = lambda: (I('s_barrier', needs=wr), [I('ds_read_b128 %s, v%d offset:%d' % (ar(32 + 16 * i + 4 * s, 4), T + 2, 4096 * i + 1024 * s)) for i in range(4) for s in range(4)])
        else:
            I('v_bfe_u32 v%d, v%d, 3, 2' % (T + 2, VLANE)); I('v_lshlrev_b32 v%d, 2, v%d' % (T + 2, T + 2)); I('v_and_or_b32 v%d, v%d, 3, v%d' % (T + 2, VLANE, T + 2))
            I('v_bfe_u32 v%d, v%d, 2, 1' % (T + 3, VLANE)); I('v_mul_u32_u24 v%d, 14, v%d' % (T + 3, T + 3)); I('v_add_u32 v%d, v%d, v%d' % (T + 3, T + 3, T + 2))
            I('v_cmp_gt_u32 vcc, 14, v%d' % (T + 2)); I('v_cndmask_b32 v%d, 28, v%d, vcc' % (T + 3, T + 3))
            I('v_and_b32 v%d, 32, v%d' % (T + 2, VLANE)); I('v_lshlrev_b32 v%d, 6, v%d' % (T + 2, T + 2)); I('v_lshl_add_u32 v%d, v%d, 4, v%d' % (T + 2, T + 3, T + 2))
            I('s_lshl_b32 s8, s%d, 14' % S_CH); I('v_add_u32 v%d, s8, v%d' % (T + 2, T + 2))
            I('v_and_b32 v%d, 15, v%d' % (T, VLANE)); I('v_lshlrev_b32 v%d, 7, v%d' % (T, T))
            I('v_and_b32 v%d, 7, v%d' % (T + 3, VLANE)); I('v_lshlrev_b32 v%d, 7, v%d' % (T + 3, T + 3))
            I('s_cmp_lg_u32 s%d, 0' % S_CH); I('s_cbranch_scc1 L_noreduce')
            I('s_lshl_b32 s8, s%d, 1' % S_RB); I('s_add_u32 s8, s8, s%d' % S_IDX); I('s_lshl_b32 s8, s8, 2'); I('s_add_u32 s11, s8, s%d' % S_RT)
            I('s_lshl_b32 s0, s11, 14'); I('s_add_u32 s0, s0, %d' % L.WS_SL)
            I('s_mov_b32 s8, 0x22111000'); I('s_mov_b32 s9, 0x55544332'); I('s_lshl_b32 s10, s%d, 2' % S_RB); I('s_lshr_b64 s[8:9], s[8:9], s10'); I('s_and_b32 s8, s8, 15')
            I('s_lshl_b32 s8, s8, 11'); I('s_add_u32 s1, s8, %d' % L.WS_KVZ)
            self.g.label('L_red_poll')
            self.U('buffer_load_dword v%d, v%d, %s, s1 offen sc1' % (T + 1, T, sr(S_WS, 4))); self.U('s_waitcnt vmcnt(0)')
            I('v_cmp_ne_u32 vcc, s%d, v%d' % (S_NONCE, T + 1)); I('s_nop 1'); I('s_cbranch_vccz L_red_load')
            self.spin_tail('L_red_poll', QSL)
            self.g.label('L_red_load')
            R = 64
            def src(i): return (64 + 4 * i) if i < 15 else T + 4
            for i in range(16):
                if i % 4 == 0: I('s_add_u32 s8, s0, %d' % (1024 * i))
                I('buffer_load_dwordx4 %s, v%d, %s, s8 offen offset:%d' % (vr(src(i), 4), VL16, sr(S_WS, 4), 1024 * (i % 4)))
            I('s_lshl_b32 s8, s11, 9'); I('s_add_u32 s8, s8, %d' % L.WS_KF); I('s_lshl_b32 s9, s11, 7'); I('s_add_u32 s9, s9, %d' % L.WS_KVD)
            for i in range(2, 16):
                for j in (0, 2): I('v_pk_add_f32 %s, %s, %s' % (vr(R + 4 * (i & 1) + j, 2), vr(R + 4 * (i & 1) + j, 2), vr(src(i) + j, 2)))
            for j in (0, 2): I('v_pk_add_f32 %s, %s, %s' % (vr(R + j, 2), vr(R + j, 2), vr(R + 4 + j, 2)))
            I('v_cvt_pk_bf16_f32 v68, v64, v65'); I('v_cvt_pk_bf16_f32 v69, v66, v67')
            I('v_mov_b32 v72, v68'); I('v_mov_b32 v73, v69')
            I('v_permlane32_swap_b32 v72, v70'); I('v_permlane32_swap_b32 v73, v71')
            I('s_mov_b32 exec_hi, 0')
            I('buffer_store_dwordx4 v[68:71], v%d, %s, s8 offen sc1' % (VL16, sr(S_WS, 4)))
            I('s_mov_b64 exec, -1')
            self.stamp('red')
            I('s_waitcnt vmcnt(0)')
            self.publish(9, 72).kind = 'untracked'
            self.g.label('L_noreduce')
            I('s_add_u32 s10, s%d, s%d' % (S_H0, S_WAVE)); I('s_lshl_b32 s11, s10, 10'); I('s_add_u32 s11, s11, %d' % L.WS_KVD)
            I('s_lshl_b32 s10, s10, 12'); I('s_add_u32 s10, s10, %d' % L.WS_KF); I('s_lshl_b32 m0, s%d, 12' % S_WAVE)
            self.g.label('L_pollkv')
            self.U('buffer_load_dword v64, v%d, %s, s11 offen sc1' % (T + 3, sr(S_WS, 4))); self.U('s_waitcnt vmcnt(0)')
            I('v_cmp_ne_u32 vcc, s%d, v64' % S_NONCE); I('s_nop 1'); I('s_cbranch_vccz L_polldkv')
            self.spin_tail('L_pollkv', QSL)
            self.g.label('L_polldkv')
            self.nst = 7
            self.stamp('kvok')
            dm = [I('buffer_load_dwordx4 v%d, %s, s10 offen offset:%d lds' % (VL16, sr(S_WS, 4), 1024 * i)) for i in range(4)]
            qbar = lambda: (I('s_barrier', needs=dm), [I('ds_read_b128 %s, v%d offset:%d' % (ar(32 + 16 * i + 4 * sf, 4), T + 2, 4096 * i + 512 * sf)) for i in range(4) for sf in range(4)])
        qbar()
        N = [64, 80, ACC, ACC + 16]; O = 96
        def ost(f): I('buffer_store_dwordx4 %s, v%d, %s, s%d offen offset:%d sc1' % (vr(O + 4 * f, 4), VL16, sr(S_WS, 4), 20 if f < 4 else 21, (f % 4) * 1024))
        def mm(i):
            for s in range(4):
                I('v_mfma_f32_32x32x16_bf16 %s, %s, %s, %s' % (vr(N[i], 16), ar(32 + 16 * i + 4 * s, 4), vr(ACC + 16 * i + 4 * s, 4), vr(N[i], 16) if s else '0'))
        done = 0
        mm(0); mm(1)
        for i in range(4):
            with g.capture() as fin: self.o_fin(N[i], O + 7 * i, 124 + i)
            if i + 2 < 4:
                with g.capture() as m4: mm(i + 2)
                k = len(fin) // 4
                for j in range(4): g.extend([m4[j]] + fin[j * k:(j + 1) * k if j < 3 else None])
            else: g.extend(fin)
            while 4 * (done + 1) <= 7 * (i + 1): ost(done); done += 1
        self.stamp('ocomp')
        I('s_waitcnt vmcnt(0)')
        self.publish(22, TMP)
        self.stamp('opub')
        I('s_waitcnt vmcnt(0)')
    def q_scalars(self):
        I = self.I
        I('s_lshl_b32 s8, s%d, 2' % S_RB); I('s_add_u32 s10, s8, s%d' % S_RT); I('s_mul_i32 s8, s10, 28'); I('s_mul_i32 s9, s%d, 14' % S_IDX); I('s_add_u32 s8, s8, s9')
        I('s_mul_i32 s9, s%d, 7' % S_CH); I('s_add_u32 s8, s8, s9'); I('s_lshl_b32 s8, s8, 10'); I('s_add_u32 s20, s8, %d' % L.WS_O); I('s_add_u32 s21, s20, 4096')
        I('s_lshl_b32 s8, s10, 1'); I('s_add_u32 s8, s8, s%d' % S_IDX)
        I('s_lshl_b32 s8, s8, 1'); I('s_add_u32 s8, s8, s%d' % S_CH); I('s_lshl_b32 s8, s8, 7'); I('s_add_u32 s22, s8, %d' % L.WS_FO)
    def o_fin(self, N, O, sreg):
        I = self.I; t = TMP + 8
        I('v_fmac_f32 v%d, %s, v%d' % (N + 14, f32(1e-6), sreg)); I('v_rcp_f32 v%d, v%d' % (t, N + 14))
        for j in range(14): I('v_mul_f32 v%d, v%d, v%d' % (N + j, N + j, t))
        for j in range(7): I('v_cvt_pk_bf16_f32 v%d, v%d, v%d' % (O + j, N + 2 * j, N + 2 * j + 1))

    def p2_pre(self):
        I = self.I; g = self.g; A, B, C = 64, 65, 66; out = []
        def st(i, r): I('v_accvgpr_write_b32 a%d, v%d' % (STASH + i, r))
        with g.capture() as a:
            I('s_lshl_b32 s8, s%d, 1' % S_RG)
            I('s_mul_i32 s%d, s8, 112' % S_A0); I('s_mul_i32 s9, s%d, 14' % S_WAVE); I('s_add_u32 s%d, s%d, s9' % (S_A0, S_A0)); I('s_lshl_b32 s%d, s%d, 10' % (S_A0, S_A0))
            I('s_add_u32 s%d, s%d, %d' % (S_A1, S_A0, 112 * 1024))
            I('s_mul_i32 s%d, s8, 28' % S_OSO); I('s_mul_i32 s9, s%d, 7' % S_WAVE); I('s_add_u32 s%d, s%d, s9' % (S_OSO, S_OSO)); I('s_lshl_b32 s%d, s%d, 10' % (S_OSO, S_OSO))
            I('s_add_u32 s%d, s%d, %d' % (S_OSO, S_OSO, L.WS_O))
            I('v_lshrrev_b32 v%d, 3, v%d' % (A, VLANE)); I('v_mul_u32_u24 v%d, 896, v%d' % (A, A)); I('v_and_b32 v%d, 7, v%d' % (B, VLANE)); I('v_lshl_add_u32 v%d, v%d, 4, v%d' % (A, B, A))
            I('v_lshlrev_b32 v%d, 7, v%d' % (B, B)); st(1, A); st(2, B)
        out.append(a)
        with g.capture() as a:
            I('s_lshl_b32 s9, s%d, 3' % S_RG); I('s_add_u32 s9, s9, s%d' % S_WAVE); I('s_mul_i32 s9, s9, %d' % (8 * 896)); I('s_lshl_b32 s8, s%d, 7' % S_CG); I('s_add_u32 s%d, s9, s8' % S_XO)
            I('s_lshl_b32 s8, s%d, 12' % S_RG); I('s_lshl_b32 s9, s%d, 8' % S_WAVE); I('s_add_u32 s9, s9, s8'); I('s_add_u32 s%d, s9, %d' % (S_FA, L.WS_FLAG))
            I('s_lshl_b32 s8, s%d, 10' % S_RG); I('s_add_u32 s%d, s8, %d' % (S_FO, L.WS_FO))
            I('v_and_b32 v%d, 1, v%d' % (A, VLANE)); I('v_lshlrev_b32 v%d, 11, v%d' % (A, A)); I('v_and_b32 v%d, 2, v%d' % (B, VLANE)); I('v_lshl_add_u32 v%d, v%d, 6, v%d' % (A, B, A)); st(0, A)
        out.append(a)
        with g.capture() as a:
            I('v_lshrrev_b32 v%d, 5, v%d' % (C, VLANE)); I('v_bfe_u32 v%d, v%d, 3, 1' % (A, VLANE)); I('v_xor_b32 v%d, v%d, v%d' % (A, A, C))
            I('v_mul_u32_u24 v%d, 14, v%d' % (B, C)); I('v_bfe_u32 v%d, v%d, 2, 2' % (C, VLANE)); I('v_add_u32 v%d, v%d, v%d' % (B, B, C))
            I('v_lshlrev_b32 v%d, 7, v%d' % (B, B)); I('v_lshl_add_u32 v%d, v%d, 6, v%d' % (A, A, B))
            I('v_and_b32 v%d, 3, v%d' % (B, VLANE)); I('v_lshl_add_u32 v%d, v%d, 3, v%d' % (A, B, A))
            I('v_and_b32 v%d, 16, v%d' % (B, VLANE)); I('v_lshl_add_u32 v%d, v%d, 1, v%d' % (A, B, A))
            I('s_and_b32 s9, s%d, 1' % S_WAVE); I('s_lshl_b32 s9, s9, 6'); I('v_xor_b32 v%d, s9, v%d' % (A, A))
            I('s_mul_i32 s9, s%d, %d' % (S_CH, 224 * 128)); I('v_add_u32 v%d, s9, v%d' % (A, A))
            I('v_xor_b32 v%d, 64, v%d' % (B, A)); st(3, A); st(4, B)
            I('v_add_u32 v%d, %d, v%d' % (B, 14 * 128, B)); I('v_and_b32 v%d, 8, v%d' % (C, VLANE)); I('v_cmp_eq_u32 vcc, 0, v%d' % C); I('v_cndmask_b32 v%d, v%d, v%d, vcc' % (B, B, A)); st(5, B)
        out.append(a)
        return out
    def p2_enter(self):
        T = P2T
        for i, r in enumerate((T + 1, T + 2, T + 3, T + 8, T + 9, T + 10)): self.I('v_accvgpr_read_b32 v%d, a%d' % (r, STASH + i))

    def phase2(self):
        I = self.I; g = self.g; T = P2T
        XO, XR, WA = T + 2, T + 4, T + 8
        self.nst = 7
        if 'start' in EXP or 'stg' in EXP: self.nst = 15
        self.poll_check('A', T + 1, S_FA, T)
        self.stamp('hok')
        RING = 64; NR = 15
        self.bdma = {k: [] for k in range(14)}
        def load(n):
            k, a = divmod(n, 2); r = RING + 4 * (n % NR); base = S_A1 if a else S_A0
            I('buffer_load_dwordx4 %s, v%d, %s, s%d offen offset:%d' % (vr(r, 4), VL16, sr(S_WS, 4), base, (k % 4) * 1024))
            if k % 4 == 3: I('s_add_u32 s%d, s%d, 4096' % (base, base))
        def wo_read(kk, dst):
            G, f = divmod(kk, 7)
            for pp in range(2):
                p = 4 * f + 2 * pp; hl = 4 * G + p // 7; i = p % 7
                areg = WA + 2 if i == 6 else WA + (i & 1)
                I('ds_read_b64_tr_b16 %s, v%d offset:%d' % (ar(dst + 2 * pp, 2), areg, L_WO + (28 * hl + 2 * i) * 128))
        EWB, SWB, ORD, GRD, SRD_ = 124, 125, 126, 127, 139
        def tail_addr():
            A, B = 142, 143
            I('v_and_b32 v%d, 31, v%d' % (A, VLANE)); I('v_lshlrev_b32 v%d, 7, v%d' % (A, A)); I('v_and_b32 v%d, 7, v%d' % (B, VLANE)); I('v_lshl_add_u32 v%d, v%d, 4, v%d' % (A, B, A))
            I('v_lshrrev_b32 v%d, 5, v%d' % (B, VLANE)); I('v_lshl_add_u32 v%d, v%d, 3, v%d' % (A, B, A))
            I('s_lshl_b32 s8, s%d, 13' % S_WAVE); I('s_add_u32 s8, s8, %d' % L_XG); I('v_add_u32 v%d, s8, v%d' % (EWB, A))
            I('s_lshl_b32 s8, s%d, 13' % S_CH); I('s_bfe_u32 s9, s%d, 0x10001' % S_WAVE); I('s_lshl_b32 s10, s9, 12'); I('s_add_u32 s8, s8, s10'); I('s_add_u32 s8, s8, %d' % L_XS)
            I('v_add_u32 v%d, s8, v%d' % (SWB, A)); I('s_and_b32 s8, s%d, 1' % S_WAVE); I('s_lshl_b32 s8, s8, 6'); I('v_xor_b32 v%d, s8, v%d' % (SWB, SWB))
            I('s_mul_i32 s9, s9, 28'); I('s_mul_i32 s8, s%d, 14' % S_CH); I('s_add_u32 s9, s9, s8'); I('s_lshl_b32 s9, s9, 10')
            I('v_add_u32 v%d, s9, v%d' % (ORD, VL16))
            I('v_lshrrev_b32 v%d, 3, v%d' % (A, VLANE)); I('v_and_b32 v%d, 7, v%d' % (B, VLANE)); I('v_xor_b32 v%d, v%d, v%d' % (B, B, A))
            I('v_lshlrev_b32 v%d, 7, v%d' % (A, A)); I('v_lshl_add_u32 v%d, v%d, 4, v%d' % (A, B, A)); I('s_lshl_b32 s8, s%d, 10' % S_WAVE); I('s_add_u32 s8, s8, %d' % L_XG)
            I('v_add_u32 v%d, s8, v%d' % (GRD, A)); I('v_add_u32 v%d, %d, v%d' % (SRD_, L_XS - L_XG, GRD))
            I('s_mul_i32 s23, s%d, 7168' % S_WAVE); I('v_mov_b32 v142, %d' % L_CNT)
            I('s_mov_b32 s10, 0x00003f80'); I('s_mov_b32 s11, 0x3f800000'); I('s_mov_b32 s26, %s' % f32(-1.0 / L.LOG2E)); I('s_mov_b32 s27, s26')
        for n in range(NR): load(n)
        nl = NR
        for ki in range(14):
            for a in range(2):
                n = 2 * ki + a; r = RING + 4 * (n % NR)
                for b in range(2):
                    I('v_mfma_f32_32x32x16_bf16 %s, %s, %s, %s' % (vr(16 * (2 * a + b), 16), ar(8 * ki + 4 * b, 4), vr(r, 4), vr(16 * (2 * a + b), 16) if ki else '0'))
                if nl < 28:
                    load(nl); nl += 1
                    if nl == 28: I('buffer_load_dwordx4 %s, v%d, %s, s100 offen' % (vr(XR, 4), XO, sr(S_X, 4)))
            if ki == 0:
                for k in range(9, 14): g.extend(self.b_read(k))
            if ki == 2: tail_addr()
            if ki == 12:
                I('s_cmp_lg_u32 s%d, 0' % S_WAVE); I('s_cbranch_scc1 L_noe1')
                self.U('buffer_load_dword v%d, v%d, %s, s99 offen sc1' % (T, T + 3, sr(S_WS, 4)))
                self.g.label('L_noe1')
            if ki == 6: I('s_waitcnt lgkmcnt(0)'); I('s_barrier')
            if ki >= 7:
                for kk in (2 * (ki - 7), 2 * (ki - 7) + 1): wo_read(kk, 4 * kk)
        self.stamp('gdone')
        EW = 64
        wr = []
        for b in range(2):
            for Q in range(4):
                I('v_xor_b32 v%d, %d, v%d' % (EW + 4 * b + Q, 16 * (4 * b + Q), EWB))
                for a in range(2):
                    t = 16 * (2 * a + b)
                    for j in (2 * Q, 2 * Q + 1): I('v_cvt_pk_bf16_f32 v%d, v%d, v%d' % (t + j, t + 2 * j, t + 2 * j + 1))
                    wr.append(I('ds_write_b64 v%d, %s offset:%d' % (EW + 4 * b + Q, vr(t + 2 * Q, 2), 4096 * a)))
        I('s_cmp_lg_u32 s%d, 0' % S_WAVE); I('s_cbranch_scc1 L_noe2')
        self.U('s_waitcnt vmcnt(0)')
        I('v_cmp_ne_u32 vcc, s%d, v%d' % (S_NONCE, T)); I('s_nop 1'); I('s_cmp_eq_u64 vcc, 0'); I('s_cselect_b32 s8, 1, 0'); I('v_mov_b32 v143, s8')
        self.U('ds_write_b32 v142, v143')
        self.g.label('L_noe2')
        I('s_waitcnt lgkmcnt(0)')
        I('s_barrier')
        self.stamp('e2')
        I('ds_read_b32 v143, v142')
        for src in range(8): I('ds_read_b128 %s, v%d offset:%d' % (vr(8 + 4 * src, 4), GRD, 8192 * src))
        for j in range(4): I('v_lshlrev_b32 v%d, 16, v%d' % (76 + 2 * j, XR + j)); I('v_and_b32 v%d, s%d, v%d' % (77 + 2 * j, S_MASK, XR + j))
        I('s_add_u32 s24, s%d, 4096' % S_OSO)
        I('v_readfirstlane_b32 s9, v143')
        def odma():
            for i in range(7):
                if i == 0 or i == 4: I('s_add_u32 m0, s23, %d' % (L_O + 1024 * i)); I('s_nop 0')
                self.U('buffer_load_dwordx4 v%d, %s, s%d offen offset:%d lds' % (VL16, sr(S_WS, 4), S_OSO if i < 4 else 24, 1024 * (i % 4)))
        I('s_cmp_eq_u32 s9, 0'); I('s_cbranch_scc1 L_olate1')
        odma()
        self.g.label('L_olate1')
        for src in range(8):
            for j in range(4):
                I('v_dot2_f32_bf16 v%d, v%d, s10, %s' % (2 * j, 8 + 4 * src + j, 'v%d' % (2 * j) if src else '0'))
                I('v_dot2_f32_bf16 v%d, v%d, s11, %s' % (2 * j + 1, 8 + 4 * src + j, 'v%d' % (2 * j + 1) if src else '0'))
        I('s_cmp_lg_u32 s9, 0'); I('s_cbranch_scc1 L_oearly')
        I('s_cmp_lg_u32 s%d, %d' % (S_WAVE, 9 if 'noq' in EXP else 0)); I('s_cbranch_scc1 L_polldO')
        self.g.label('L_pollO')
        self.U('buffer_load_dword v%d, v%d, %s, s99 offen sc1' % (WA, T + 3, sr(S_WS, 4))); self.U('s_waitcnt vmcnt(0)')
        I('v_cmp_ne_u32 vcc, s%d, v%d' % (S_NONCE, WA)); I('s_nop 1'); I('s_cbranch_vccz L_polldO')
        self.spin_tail('L_pollO', 3)
        self.g.label('L_polldO')
        I('s_barrier')
        odma()
        self.g.label('L_oearly')
        self.stamp('ook')
        for j in range(8): I('v_exp_f32 v%d, v%d' % (8 + j, j))
        SW = 72
        for q in range(4): I('v_xor_b32 v%d, %d, v%d' % (SW + q, 16 * q, SWB))
        for j in range(0, 8, 2): I('v_pk_add_f32 %s, %s, 1.0 op_sel_hi:[1,0]' % (vr(8 + j, 2), vr(8 + j, 2)))
        for j in range(8): I('v_rcp_f32 v%d, v%d' % (8 + j, 8 + j))
        for j in range(0, 8, 2): I('v_pk_mul_f32 %s, %s, s[26:27]' % (vr(j, 2), vr(j, 2)))
        for j in range(0, 8, 2): I('v_pk_mul_f32 %s, %s, %s' % (vr(j, 2), vr(j, 2), vr(8 + j, 2)))
        I('s_waitcnt vmcnt(0)')
        I('s_barrier')
        self.stamp('e3')
        OF = 84; SA = 48
        def ord_(kk): I('ds_read_b128 %s, v%d offset:%d' % (vr(OF + 4 * (kk % 10), 4), ORD, 1024 * kk))
        for kk in range(8): ord_(kk)
        for kk in range(14):
            I('v_mfma_f32_32x32x16_bf16 %s, %s, %s, %s' % (vr(SA, 16), ar(4 * kk, 4), vr(OF + 4 * (kk % 10), 4), vr(SA, 16) if kk else '0'))
            if kk + 8 < 14: ord_(kk + 8)
        wr = []
        for q in range(4):
            for j in (2 * q, 2 * q + 1): I('v_cvt_pk_bf16_f32 v%d, v%d, v%d' % (SA + j, SA + 2 * j, SA + 2 * j + 1))
            wr.append(I('ds_write_b64 v%d, %s' % (SW + q, vr(SA + 2 * q, 2))))
        I('s_barrier', needs=wr)
        for h in range(2): I('ds_read_b128 %s, v%d offset:%d' % (vr(16 + 4 * h, 4), SRD_, 8192 * h))
        for h in range(2):
            for j in range(4):
                I('v_dot2_f32_bf16 v%d, v%d, s10, %s' % (24 + 2 * j, 16 + 4 * h + j, 'v%d' % (24 + 2 * j) if h else '0'))
                I('v_dot2_f32_bf16 v%d, v%d, s11, %s' % (25 + 2 * j, 16 + 4 * h + j, 'v%d' % (25 + 2 * j) if h else '0'))
        for j in range(0, 8, 2): I('v_pk_fma_f32 %s, %s, %s, %s' % (vr(j, 2), vr(j, 2), vr(24 + j, 2), vr(76 + j, 2)))
        for j in range(4): I('v_cvt_pk_bf16_f32 v%d, v%d, v%d' % (40 + j, 2 * j, 2 * j + 1))
        I('buffer_store_dwordx4 v[40:43], v%d, %s, s100 offen%s' % (XO, sr(S_OUT, 4), os.environ.get('OUTF', '')))
        self.stamp('final')

    def xfilter(self, body):
        out = []
        for x in body:
            if 'nosc1st' in EXP and x.op.startswith('buffer_store_dwordx4') and 'sc1' in x.text and 'v141' in x.text: x.text = x.text.replace(' sc1', '')
            if 'nost' in EXP and x.op.startswith('buffer_store_dwordx4') and 'v141' in x.text: x.text = 's_nop 0'
            if 'nob' in EXP and x.kind == 'dma' and 's[52:55]' in x.text: x.text = 's_nop 0'
            if 'sysp' in EXP and x.op == 'buffer_load_dword' and x.text.endswith('sc1') and 's[64:67]' in x.text: x.text = x.text.replace(' sc1', ' sc0 sc1')
            if 'nowo' in EXP and x.kind == 'dma' and 's[48:51]' in x.text: x.text = 's_nop 0'
            if 'noatom' in EXP and 'atomic' in x.op: x.text = 's_nop 0'
            if 'ntst' in EXP and x.op.startswith('buffer_store_dwordx4') and 'sc1' in x.text and 'v141' in x.text: x.text = x.text.replace(' sc1', ' sc0 sc1')
            out.append(x)
        return out
    def path(self, prefix, fn, label, keys):
        self.keys = keys
        if 'stamp' in self.__dict__: del self.__dict__['stamp']
        with self.g.capture() as body:
            if label: self.g.label(label)
            fn()
        self.xfilter(body)
        allp = [x for p in prefix for x in p]
        for x in allp: x.done = False
        full = self.g.finish(allp + body)
        if label:
            idx = next(i for i, x in enumerate(full) if x.kind == 'label' and x.text == label + ':')
            return full[idx:], body
        return full, body

    def build(self):
        I = self.I
        with self.g.capture() as pro:
            self.prologue()
            I('s_cmp_eq_u32 s%d, 1' % S_TYPE); I('s_cbranch_scc1 L_kv'); I('s_cmp_eq_u32 s%d, 2' % S_TYPE); I('s_cbranch_scc1 L_q')
        n0 = self.nst
        def endp():
            self.write_stamps(); I('s_endpgm')
        def ffn():
            self.ffn()
        out, _ = self.path([pro], ffn, None, ['0'])
        self.nst = n0
        code, kvc = self.path([pro], self.kv_common, 'L_kv', ['10', '11'])
        n1 = self.nst
        save = (dict(self.bdma), dict(self.bread))
        def kk():
            self.kv_k()
        def kvv():
            self.kv_v()
        c2, _ = self.path([pro, kvc], kk, 'L_kv_k', ['10'])
        self.nst = n1; self.bdma, self.bread = dict(save[0]), dict(save[1])
        c3, _ = self.path([pro, kvc], kvv, 'L_kv_v', ['11'])
        out += code + c2 + c3
        self.nst = n0
        def qq():
            self.q(); endp()
        c4, _ = self.path([pro], qq, 'L_q', ['2'])
        out += c4
        def p2():
            self.phase2(); endp()
        if 'nop2' not in EXP:
            c5, _ = self.path([], p2, 'L_p2', ['0', '10', '11'])
            out += c5
        with self.g.capture() as tail:
            self.g.label('L_end'); I('s_endpgm')
        return out + tail

HEADER = open('cdna_kernels/%s.s.ref' % NAME).read().split('; Override launch')[0]
def wrap(code, launch):
    return HEADER + launch + '''
.amdgcn_target "amdgcn-amd-amdhsa--gfx950"
.text
.globl %(n)s_kernel
.p2align 8
.type %(n)s_kernel,@function
%(n)s_kernel:
%(body)s
.section .rodata,"a"
.p2align 6
.amdhsa_kernel %(n)s_kernel
  .amdhsa_next_free_vgpr 256
  .amdhsa_next_free_sgpr 102
  .amdhsa_accum_offset %(nv)d
  .amdhsa_group_segment_fixed_size 0
  .amdhsa_kernarg_size 80
  .amdhsa_user_sgpr_count 2
  .amdhsa_user_sgpr_kernarg_segment_ptr 1
  .amdhsa_system_sgpr_workgroup_id_x 1
.end_amdhsa_kernel
''' % dict(n=NAME, body=render(code), nv=NV)

if __name__ == '__main__':
    stamps = '--stamps' in sys.argv
    k = K(stamps)
    code = k.build()
    open(sys.argv[1], 'w').write(wrap(code, '; @launch grid=(256,1,1) block=(512,1,1) lds=163840'))
    json.dump({t: [d.get(i, '') for i in range(16)] for t, d in k.names.items()} if stamps else {}, open(sys.argv[1][:-2] + '.json', 'w'))
    print('instructions', len(code), 'nops', sum(1 for i in code if i.kind == 'nop'))
```

```python
import sys, json, struct, os
from asmgen import *
import layout as L
EXP = os.environ.get('EXP', '').split(',')
SLEEP = int(os.environ.get('SLEEP', '4'))
BCHK = int(os.environ.get('BCHK', '7'))
W1K = int(os.environ.get('W1K', '3'))
PF0 = int(os.environ.get('PF0', '2'))
QSL = int(os.environ.get('QSL', '6'))
NST = int(os.environ.get('NST', '3')); MST = int(os.environ.get('MST', '1'))
ATOM = True
S_FA, S_FO, S_XO, S_SC, S_C1, S_C2, S_C3 = 98, 99, 100, 11, 96, 97, 25
RA, RB_ = [int(x) for x in os.environ.get('R1', '1,2').split(',')]
RC, RD = [int(x) for x in os.environ.get('R2', '2,4').split(',')]
STASH = 72; CSA = 32; DB2 = 125; S_CSB, S_R0 = 30, 101
TSCH = eval(os.environ.get('TSCH', '{3:0x7fc000}'))
T0M = int(os.environ.get('T0M', '0x3fff'), 0)
CST = int(os.environ.get('CST', '0'))
XMAP = os.environ.get('XMAP', '45601723')
NAME = 'recurrent_scan__linear_kernel_hedgehog__dense_activation_silu__prompt'
def f32(x): return '0x%08x' % struct.unpack('<I', struct.pack('<f', x))[0]

S_X, S_W, S_PHI, S_WO, S_W2, S_OUT, S_DBG, S_WS = 36, 40, 44, 48, 52, 56, 60, 64
S_MASK, S_WAVE, S_IDX, S_RB, S_TYPE = 3, 4, 5, 6, 7
S_XS, S_WSO, S_EX56 = 12, 13, 14
S_MW, S_MX, S_ROW, S_NONCE = 32, 33, 34, 35
S_RT, S_CH = 68, 69
S_ST = 70
S_RG, S_CG, S_BSO, S_STA, S_A0, S_A1, S_OSO, S_NH, S_H0 = 16, 17, 18, 19, 20, 21, 22, 23, 24
S_ST4 = 25
S_L2E = 26
S_HIM = 28
STG = 45056; WPART = 16384
L_CNT = 3 * STG
L_CP = 136192
L_WPHI = 144384
L_SHX = L_WPHI
L_PHI = 0
L_V = 136192
L_STA = 57344
L_WO = 0
L_KC = 131072
L_CX = 135168
L_KVQ = 0
L_KVF = 65536
L_XG = 65536
L_O = 0
L_XS = 131072
KORD = list(range(14))
NV = 144
ACC, WF, XF, ST, CS, AX, AW, AS, DX, DW = 0, 64, 96, 104, 108, 112, 116, 120, 122, 124
PFA = 132; TMP = 128; P2T = 128; BT2 = 126; DB = 139; VLANE = 140; VL16 = 141; BT = 142

class K:
    def __init__(self, stamps):
        self.g = Gen(); self.use_stamps = stamps; self.nst = 0; self.names = {}; self.keys = ['0', '10', '11', '2']
    def I(self, t, needs=()): return self.g.I(t, needs)
    def U(self, t):
        x = self.g.I(t); x.kind = 'untracked'; return x
    def stamp(self, name, real=False):
        if os.environ.get('DLY') == name and (not os.environ.get('DLK') or os.environ['DLK'] in self.keys): self.I('s_sleep %s' % os.environ.get('DLN', '32'))
        if 'dbgt' in EXP and name in ('bar0', 'loopend', 'gdone', 'opub', 'ook'):
            r = {'bar0': [78], 'loopend': [80], 'gdone': [82], 'ook': [84], 'opub': [82, 84]}[name]
            for x in r: self.I('s_memtime s[%d:%d]' % (x, x + 1))
        if not self.use_stamps: return
        i = self.nst
        if i >= 12: return
        self.nst += 1
        for k in self.keys: self.names.setdefault(k, {})[i] = name
        self.I('%s %s' % ('s_memrealtime' if real else 's_memtime', sr(S_ST + 2 * i, 2)))
    def write_stamps(self, total=13):
        if 'dbgt' in EXP:
            I = self.I
            I('s_memrealtime s[74:75]'); I('s_memtime s[76:77]'); I('s_waitcnt vmcnt(0) lgkmcnt(0)')
            I('s_mov_b64 exec, 1'); I('v_mov_b32 v2, 0')
            I('v_mov_b32 v0, s70'); I('buffer_atomic_umax v0, v2, %s, 0 offen offset:8' % sr(S_DBG, 4))
            I('s_not_b32 s8, s70'); I('v_mov_b32 v1, s8'); I('buffer_atomic_umax v1, v2, %s, 0 offen offset:12' % sr(S_DBG, 4))
            I('v_mov_b32 v3, s74'); I('buffer_atomic_umax v3, v2, %s, 0 offen offset:16' % sr(S_DBG, 4))
            I('s_sub_u32 s8, s76, s72'); I('v_mov_b32 v4, s8'); I('buffer_atomic_umax v4, v2, %s, 0 offen offset:20' % sr(S_DBG, 4))
            I('s_sub_u32 s8, s74, s70'); I('v_mov_b32 v5, s8'); I('buffer_atomic_umax v5, v2, %s, 0 offen offset:24' % sr(S_DBG, 4))
            for k, so in enumerate((78, 80, 82, 84)):
                I('s_sub_u32 s8, s%d, s72' % so); I('v_mov_b32 v%d, s8' % (6 + k)); I('buffer_atomic_umax v%d, v2, %s, 0 offen offset:%d' % (6 + k, sr(S_DBG, 4), 28 + 4 * k))
            I('s_waitcnt vmcnt(0)')
            return
        if not self.use_stamps: return
        I = self.I
        I('s_memrealtime %s' % sr(S_ST + 2 * (total - 1), 2))
        I('s_waitcnt lgkmcnt(0)')
        I('s_lshl_b32 s8, s2, 3'); I('s_add_u32 s8, s8, s%d' % S_WAVE); I('s_lshl_b32 s8, s8, 7')
        I('s_add_u32 s8, s8, %d' % L.WS_STAMP)
        I('v_mov_b32 v2, 0')
        I('s_mov_b64 exec, 1')
        for i in range(total):
            I('v_mov_b32 v0, s%d' % (S_ST + 2 * i)); I('v_mov_b32 v1, s%d' % (S_ST + 2 * i + 1))
            I('buffer_store_dwordx2 v[0:1], v2, %s, s8 offen offset:%d' % (sr(S_WS, 4), 8 * i))
        I('s_mov_b64 exec, -1')
    def srd(self, d, base, nbytes):
        I = self.I
        I('s_mov_b32 s%d, s%d' % (d, base)); I('s_and_b32 s%d, s%d, 0xffff' % (d + 1, base + 1))
        I('s_mov_b32 s%d, %d' % (d + 2, nbytes)); I('s_mov_b32 s%d, 0x20000' % (d + 3))

    def prologue(self):
        I = self.I
        I('s_cmp_ge_u32 s2, 256'); I('s_cbranch_scc1 L_end')
        I('s_load_dwordx16 s[16:31], s[0:1], 0'); I('s_load_dwordx4 s[32:35], s[0:1], 64')
        if 'anti' in EXP:
            I('s_lshr_b32 s8, s2, 5'); I('s_and_b32 s9, s2, 31'); I('s_lshl_b32 s9, s9, 3'); I('s_or_b32 s2, s8, s9')
        I('s_getpc_b64 s[8:9]')
        self.g.label('L_pc')
        I('v_cmp_le_u32 vcc, %d, v0' % (1024 if 'nocp0' in EXP else 448)); I('s_cbranch_vccz L_nopf')
        I('s_bfe_u32 s10, s2, 0x30003'); I('s_lshl_b32 s10, s10, 13')
        I('v_and_b32 v1, 63, v0'); I('v_lshlrev_b32 v1, 7, v1'); I('v_add_u32 v1, s10, v1')
        I('v_min_u32 v1, L_end-L_pc, v1')
        self.U('global_load_dword a80, v1, s[8:9]')
        self.g.label('L_nopf')
        if self.use_stamps:
            for i in range(13): I('s_mov_b64 %s, 0' % sr(S_ST + 2 * i, 2))
        self.stamp('rt0', True); self.stamp('t0')
        if 'dbgt' in EXP: I('s_memrealtime s[70:71]'); I('s_memtime s[72:73]')
        I('v_lshrrev_b32 v1, 6, v0'); I('v_and_b32 v0, 63, v0')
        I('v_readfirstlane_b32 s%d, v1' % S_WAVE)
        I('v_mov_b32 v%d, v0' % VLANE); I('v_lshlrev_b32 v%d, 4, v0' % VL16)
        I('s_and_b32 s8, s2, 7'); I('s_lshl_b32 s8, s8, 2'); I('s_lshr_b32 s8, 0x%s, s8' % XMAP[::-1]); I('s_and_b32 s8, s8, 7')
        I('s_bfe_u32 s%d, s2, 0x40003' % S_RB); I('s_lshr_b32 s9, s2, 7'); I('s_lshl_b32 s12, s8, 1'); I('s_add_u32 s12, s12, s9')
        I('s_cmp_ge_u32 s12, 8'); I('s_cselect_b32 s%d, 1, 0' % S_TYPE); I('s_cselect_b32 s9, 8, 0')
        I('s_cmp_ge_u32 s12, 14'); I('s_cselect_b32 s%d, 2, s%d' % (S_TYPE, S_TYPE)); I('s_cselect_b32 s9, 14, s9'); I('s_sub_u32 s%d, s12, s9' % S_IDX)
        I('s_lshl_b32 s8, s%d, 4' % S_RB); I('s_add_u32 s8, s8, s12'); I('s_lshl_b32 s8, s8, 3'); I('s_add_u32 s11, s8, s%d' % S_WAVE)
        I('s_mov_b32 s%d, -1' % S_EX56); I('s_mov_b32 s%d, 0x00ffffff' % (S_EX56 + 1))
        I('s_and_b32 s%d, s%d, 3' % (S_RT, S_WAVE)); I('s_lshr_b32 s%d, s%d, 2' % (S_CH, S_WAVE))
        I('s_mov_b32 s%d, 0xffff0000' % S_MASK)
        I('v_lshrrev_b32 v2, 3, v0'); I('v_mul_u32_u24 v2, 896, v2')
        I('v_lshrrev_b32 v3, 4, v0'); I('v_and_b32 v4, 7, v0'); I('v_xor_b32 v4, v4, v3')
        I('v_lshl_add_u32 v%d, v4, 4, v2' % DX)
        I('v_xor_b32 v4, 4, v4'); I('v_lshl_add_u32 v%d, v4, 4, v2' % (DX + 1)); I('v_add_u32 v%d, %d, v%d' % (DX + 1, 8 * 896 - 1024, DX + 1))
        I('s_lshl_b32 s8, s%d, 3' % S_RB); I('s_add_u32 s8, s8, s%d' % S_WAVE); I('s_mul_i32 s%d, s8, %d' % (S_XS, 16 * 896))
        I('v_cmp_lt_u32 vcc, 27, v0'); I('v_subrev_u32 v7, 28, v0'); I('v_cndmask_b32 v7, v0, v7, vcc'); I('v_cndmask_b32 v6, 0, 1, vcc')
        I('v_cmp_gt_u32 vcc, 56, v0'); I('v_mov_b32 v5, 0x7fffffff'); I('v_cndmask_b32 v5, v5, v%d, vcc' % VL16)
        I('s_waitcnt lgkmcnt(0)')
        if 'start' in EXP: self.stamp('karg')
        self.srd(S_X, 16, 2048 * 896)
        self.srd(S_WS, 34, L.WS_BYTES); self.srd(S_DBG, 32, 256)
        I('s_mov_b32 s%d, s11' % S_ROW)
        I('s_lshl_b32 s%d, s%d, 11' % (S_MX, S_WAVE))
        I('s_mul_i32 s%d, s%d, %d' % (S_MW, S_WAVE, 8 * 448)); I('s_add_u32 s%d, s%d, %d' % (S_MW, S_MW, WPART))

    def start_stream(self, gpitch):
        I = self.I
        for i in range(1, 4): I('v_add_u32 v%d, %d, v%d' % (DW + i, i * (2 * gpitch - 896), DW))
        I('s_mul_i32 s8, s%d, %d' % (S_WAVE, 8 * gpitch)); I('s_add_u32 s%d, s%d, s8' % (S_WSO, S_WSO))
        self.gpitch = gpitch
        d = {}
        if 'start' in EXP: self.stamp('pre_s0')
        grps, d[0] = self.stage_dma(0, gpitch)
        for gp in grps: self.g.extend(gp)
        I('s_mul_i32 s8, s%d, 896' % S_ROW)
        I('buffer_load_dwordx4 %s, v5, %s, s8 offen' % (vr(XF, 4), sr(S_X, 4)))
        I('s_cmp_ge_u32 s%d, 7' % S_RB); I('s_cbranch_scc1 L_nocx%s' % self.tagbase)
        I('s_sub_u32 s8, s%d, 1' % S_RB); I('s_mul_i32 s8, s8, %d' % (64 * gpitch)); I('s_add_u32 s8, s8, s%d' % S_WSO)
        I('s_add_u32 m0, s%d, %d' % (S_MW, L_CX - WPART)); I('s_mov_b64 exec, %s' % sr(S_EX56, 2))
        for j in range(4): self.U('buffer_load_dwordx4 v%d, %s, s8 offen offset:%d lds' % (DW + j, sr(S_W, 4), 896 * j))
        I('s_mov_b64 exec, -1')
        self.g.label('L_nocx%s' % self.tagbase)
        lab = 'L_nonon' + self.tagbase
        I('s_or_b32 s8, s2, s%d' % S_WAVE); I('s_cmp_lg_u32 s8, 0'); I('s_cbranch_scc1 %s' % lab)
        self.U('s_memrealtime s[8:9]'); self.U('s_waitcnt lgkmcnt(0)'); I('s_or_b32 s8, s8, 1'); I('v_mov_b32 v8, s8'); I('v_mov_b32 v9, 0')
        I('s_mov_b64 exec, 1'); self.U('buffer_store_dword v8, v9, %s, 0 offen sc1' % sr(S_DBG, 4)); I('s_mov_b64 exec, -1')
        self.g.label(lab)
        if 'start' in EXP: self.stamp('s0iss')
        return d
    def mall_addr(self):
        I = self.I
        segs = [(16, 7, 2, 5, 2048 * 896), (18, 4, 128 * 21, 4, 448 * 2688), (26, 5, 128 * 28, 5, 448 * 3584), (28, 7, 0, 7, 1792 * 896), (22, 2, 0, 2, 448 * 896)]
        I('s_lshl_b32 s8, s2, 3'); I('s_add_u32 s8, s8, s%d' % S_WAVE)
        lo = 0
        for i, (sb, mul, first, n, size) in enumerate(segs):
            I('s_mul_i32 s9, s8, %d' % mul); I('s_add_i32 s9, s9, %d' % (first - lo))
            I('v_add_u32 v10, s9, v0'); I('v_lshlrev_b32 v10, 7, v10'); I('v_min_u32 v10, %d, v10' % (size - 4))
            if i == 0:
                I('v_mov_b32 v11, v10'); I('v_mov_b32 v8, s%d' % sb); I('v_mov_b32 v9, s%d' % (sb + 1))
            else:
                I('v_cmp_le_u32 vcc, %d, v0' % lo); I('v_mov_b32 v12, s%d' % sb); I('v_mov_b32 v13, s%d' % (sb + 1))
                I('v_cndmask_b32 v11, v11, v10, vcc'); I('v_cndmask_b32 v8, v8, v12, vcc'); I('v_cndmask_b32 v9, v9, v13, vcc')
            lo += n
        I('v_add_co_u32 v%d, vcc, v8, v11' % PFA); I('v_addc_co_u32 v%d, vcc, 0, v9, vcc' % (PFA + 1))
    def mall_issue(self, part, mask=None):
        if 'nomall' in EXP: return []
        I = self.I
        with self.g.capture() as a:
            I('s_mov_b64 exec, %d' % (mask or T0M))
            I('global_load_dword a%d, %s, off' % (80 + part, vr(PFA, 2))).dst = set()
            I('s_mov_b64 exec, -1')
        return [a]
    def pre_loop(self, p2, idx0, extra=None, late=None):
        I = self.I; g = self.g
        self.mall_addr()
        if 't0early' in EXP:
            for gp in self.mall_issue(0): g.extend(gp)
        self.late_srds()
        if p2:
            self.p2_setup()
            for gp in self.p2_pre(): g.extend(gp)
        I('s_add_u32 s8, s%d, %d' % (S_IDX, idx0)); I('s_lshl_b32 s8, s8, 14'); I('s_add_u32 s%d, s8, %d' % (S_CSB, L.WS_CSG))
        if extra: extra()
        if 'start' in EXP: self.stamp('setup')
        self.s0pos = len(g.cur)
        if 'not0' not in EXP and 't0early' not in EXP:
            for gp in self.mall_issue(0): g.extend(gp)
        if late: late()
        self.row_stats()
    def chunks(self, fn, n=10):
        with self.g.capture() as body:
            fn()
        out = []; cur = []
        for i, x in enumerate(body):
            cur.append(x)
            nxt = body[i + 1] if i + 1 < len(body) else None
            safe = nxt is not None and not (nxt.op.startswith(('s_cselect', 's_cbranch', 's_addc', 's_subb', 'v_cndmask', 'v_addc')) or nxt.kind in ('dma', 'label')) \
                and not x.op.startswith(('s_cmp', 'v_cmp')) and 'm0' not in x.dst
            if len(cur) >= n and safe: out.append(cur); cur = []
        if cur: out.append(cur)
        return out

    def late_srds(self):
        I = self.I
        self.srd(S_PHI, 20, 16 * 28 * 28 * 2); self.srd(S_WO, 22, 448 * 896); self.srd(S_W2, 28, 1792 * 896)
        self.srd(S_OUT, 30, 2048 * 896)
        I('s_mov_b32 s%d, %s' % (S_L2E, f32(L.LOG2E))); I('s_mov_b32 s%d, %s' % (S_L2E + 1, f32(L.LOG2E)))
        I('s_mov_b32 s%d, 0' % S_HIM); I('s_mov_b32 s%d, -1' % (S_HIM + 1))
        I('s_mov_b32 s31, 0')

    def late_group(self, p2, extra=None):
        with self.g.capture() as a:
            self.late_srds()
            if extra: extra()
        self.p2flag = p2
        return a
    def p2_setup(self):
        I = self.I; T = 64
        I('s_and_b32 s8, s2, 7'); I('s_lshl_b32 s8, s8, 2'); I('s_lshr_b32 s8, 0x%s, s8' % XMAP[::-1]); I('s_and_b32 s8, s8, 7')
        I('s_lshl_b32 s8, s8, 5'); I('s_lshr_b32 s9, s2, 3'); I('s_add_u32 s9, s9, s8')
        I('s_mul_i32 s8, s9, 9363'); I('s_lshr_b32 s%d, s8, 16' % S_RG); I('s_mul_i32 s10, s%d, 7' % S_RG); I('s_sub_u32 s%d, s9, s10' % S_CG)
        I('s_mul_i32 s%d, s%d, %d' % (S_BSO, S_WAVE, 224 * 896)); I('s_lshl_b32 s8, s%d, 7' % S_CG); I('s_add_u32 s%d, s%d, s8' % (S_BSO, S_BSO))
        I('s_lshl_b32 s%d, s%d, 12' % (S_STA, S_WAVE)); I('s_add_u32 s%d, s%d, %d' % (S_STA, S_STA, L_STA))
        I('v_lshrrev_b32 v%d, 3, v140' % T); I('v_mul_u32_u24 v%d, 896, v%d' % (T, T))
        I('v_lshrrev_b32 v%d, 2, v140' % (T + 1)); I('v_and_b32 v%d, 4, v%d' % (T + 1, T + 1)); I('v_and_b32 v%d, 7, v140' % (T + 2))
        I('v_xor_b32 v%d, v%d, v%d' % (T + 1, T + 1, T + 2)); I('v_lshl_add_u32 v%d, v%d, 4, v%d' % (DB, T + 1, T))
        I('v_lshrrev_b32 v%d, 5, v140' % T); I('v_lshlrev_b32 v%d, 2, v%d' % (T, T)); I('v_bfe_u32 v%d, v140, 2, 2' % (T + 1)); I('v_add_u32 v%d, v%d, v%d' % (T, T, T + 1))
        I('v_lshlrev_b32 v%d, 7, v%d' % (T, T)); I('v_add_u32 v%d, s%d, v%d' % (T, S_STA, T))
        I('v_and_b32 v%d, 3, v140' % (T + 1)); I('v_lshlrev_b32 v%d, 3, v%d' % (T + 1, T + 1))
        I('v_and_b32 v%d, 16, v140' % (T + 2)); I('v_lshl_add_u32 v%d, v%d, 1, v%d' % (T + 1, T + 2, T + 1))
        I('v_and_b32 v%d, 8, v140' % (T + 2)); I('v_lshlrev_b32 v%d, 3, v%d' % (T + 2, T + 2)); I('v_xor_b32 v%d, v%d, v%d' % (T + 1, T + 1, T + 2))
        I('v_add_u32 v%d, v%d, v%d' % (BT, T, T + 1))
        I('v_xor_b32 v%d, 64, v%d' % (T + 1, T + 1)); I('v_add_u32 v%d, v%d, v%d' % (BT + 1, T, T + 1))

    def slot4_setup(self):
        I = self.I
        I('s_lshl_b32 s%d, s%d, 11' % (S_ST4, S_WAVE)); I('s_add_u32 s%d, s%d, %d' % (S_ST4, S_ST4, L_SHX)); I('s_sub_u32 s8, s%d, s%d' % (S_ST4, S_STA))
        for b in range(2): I('v_add_u32 v%d, s8, v%d' % (BT2 + b, BT + b))
    def wo_dma(self):
        g = self.g; I = self.I; grps = []
        with g.capture() as a:
            I('s_mul_i32 s23, s%d, %d' % (S_WAVE, 56 * 896)); I('s_lshl_b32 s24, s%d, 7' % S_CG); I('s_add_u32 s23, s23, s24'); I('s_mul_i32 s24, s%d, %d' % (S_WAVE, 56 * 128))
        for i in range(0, 7, 2):
            with g.capture() as b:
                I('s_add_u32 m0, s24, %d' % (L_WO + 1024 * i)); I('s_add_u32 s8, s23, %d' % (8 * 896 * i))
                I('buffer_load_dwordx4 v%d, %s, s8 offen lds' % (DB, sr(S_WO, 4)))
                if i + 1 < 7: I('buffer_load_dwordx4 v%d, %s, s8 offen offset:1024 lds' % (DB2, sr(S_WO, 4)))
            grps.append((a if i == 0 else []) + b)
        return grps
    SLOTS = [(0, BT), (2048, BT), (32768, BT), (34816, BT), (None, BT2)]
    def b_dma(self, k, needs=()):
        g = self.g; I = self.I; so = self.SLOTS[k % self.nslot][0]; grps = []
        with g.capture() as a:
            I('s_add_u32 m0, s%d, %d' % (S_STA, so) if so is not None else 's_mov_b32 m0, s%d' % S_ST4)
            I('s_add_u32 s8, s%d, %d' % (S_BSO, 16 * k * 896))
            I('buffer_load_dwordx4 v%d, %s, s8 offen lds' % (DB, sr(S_W2, 4)), needs=needs)
            I('buffer_load_dwordx4 v%d, %s, s8 offen offset:1024 lds' % (DB2, sr(S_W2, 4)))
        grps.append(a)
        self.bdma[k] = [x for gp in grps for x in gp if x.kind == 'dma']
        return grps
    def b_read(self, k):
        so, reg = self.SLOTS[k % self.nslot]; out = []
        if so is None: so = 0
        for b in range(2):
            for h in range(2):
                out.append(Instr('ds_read_b64_tr_b16 %s, v%d offset:%d' % (ar(8 * k + 4 * b + 2 * h, 2), reg + b, so + 1024 * h), needs=self.bdma[k]))
        self.bread[k] = out
        return out
    def b_tasks(self, k0, k1):
        t = [self.b_read(k) for k in range(k0, k1)]
        for k in range(k0, k1):
            if k + self.nslot < 14: t += self.b_dma(k + self.nslot, needs=self.bread[k])
        return t

    def stage_dma(self, st, gpitch):
        g = self.g; I = self.I; base = (st % 3) * STG
        nt = ' nt' if st < int(os.environ.get('NT', '0')) else ''; ntx = ' nt' if st < int(os.environ.get('NTX', os.environ.get('NT', '0'))) else ''
        grps = []
        for i in range(0, 4, 2):
            with g.capture() as a:
                if i == 0: I('s_add_u32 m0, s%d, %d' % (S_MW, base))
                I('s_mov_b64 exec, %s' % sr(S_EX56, 2))
                for j in (i, i + 1): I('buffer_load_dwordx4 v%d, %s, s%d offen offset:%d%s lds' % (DW + j, sr(S_W, 4), S_WSO, 896 * j, nt))
                I('s_mov_b64 exec, -1')
            grps.append(a)
        with g.capture() as a:
            I('s_add_u32 m0, s%d, %d' % (S_MX, base)); I('s_add_u32 s%d, s%d, %d' % (S_WSO, S_WSO, 64 * gpitch))
            for i in range(2): I('buffer_load_dwordx4 v%d, %s, s%d offen offset:%d%s lds' % (DX + i, sr(S_X, 4), S_XS, 1024 * i, ntx))
            I('s_add_u32 s%d, s%d, 128' % (S_XS, S_XS))
        grps.append(a)
        return grps, [x for gp in grps for x in gp if x.kind == 'dma']

    def read_addrs(self, clamp, shared=False):
        I = self.I; T = TMP
        I('v_and_b32 v%d, 31, v0' % T); I('v_lshlrev_b32 v%d, 7, v%d' % (T, T)); I('s_lshl_b32 s8, s%d, 12' % S_RT); I('v_add_u32 v%d, s8, v%d' % (T, T))
        I('v_lshrrev_b32 v%d, 5, v0' % (T + 1)); I('v_bfe_u32 v%d, v0, 1, 3' % (T + 2)); I('v_xor_b32 v%d, v%d, v%d' % (T + 2, T + 2, T + 1))
        I('v_lshlrev_b32 v%d, 3, v%d' % (T + 3, T + 1)); I('v_bfe_u32 v%d, v0, 2, 2' % (T + 4)); I('v_add_u32 v%d, v%d, v%d' % (T + 3, T + 3, T + 4))
        I('v_mul_u32_u24 v%d, 448, v%d' % (T + 3, T + 3))
        I('v_bfe_u32 v%d, v0, 4, 1' % (T + 4)); I('v_and_b32 v%d, 3, v0' % (T + 5)); I('v_lshl_add_u32 v%d, v%d, 2, v%d' % (T + 4, T + 4, T + 5))
        if shared:
            I('s_lshl_b32 s8, s%d, 2' % S_CH); I('v_xor_b32 v%d, s8, v%d' % (T + 6, T + 4)); I('v_lshl_add_u32 v%d, v%d, 3, v%d' % (T + 6, T + 6, T + 3))
            I('v_add_u32 v%d, %d, v%d' % (T + 6, WPART + 384, T + 6))
        if clamp: I('v_min_u32 v%d, 6, v%d' % (T + 4, T + 4))
        if shared:
            I('s_cmp_eq_u32 s%d, 7' % S_WAVE); I('s_cselect_b32 s8, 4, 0'); I('v_xor_b32 v%d, s8, v%d' % (CS + 3, T + 4))
            I('s_min_u32 s9, s%d, 6' % S_WAVE); I('s_lshl_b32 s9, s9, 6'); I('s_add_u32 s9, s9, %d' % L_CX)
        else:
            I('v_mov_b32 v%d, v%d' % (CS + 3, T + 4)); I('s_mul_i32 s9, s%d, 56' % S_RT); I('s_add_u32 s9, s9, s10'); I('s_add_u32 s9, s9, %d' % (L_CX - WPART))
        I('v_lshl_add_u32 v%d, v%d, 3, v%d' % (CS + 3, CS + 3, T + 3)); I('v_add_u32 v%d, s9, v%d' % (CS + 3, CS + 3))
        I('v_lshl_add_u32 v%d, v%d, 3, v%d' % (T + 3, T + 4, T + 3))
        I('v_add_u32 v%d, s10, v%d' % (T + 3, T + 3))
        for i in range(4):
            I('s_add_u32 s8, s%d, s%d' % (S_RT, S_CH)); I('s_add_u32 s8, s8, %d' % i); I('s_and_b32 s8, s8, 3')
            I('s_lshl_b32 s9, s8, 1'); I('v_xor_b32 v%d, s9, v%d' % (T + 5, T + 2)); I('v_lshl_add_u32 v%d, v%d, 4, v%d' % (AX + i, T + 5, T))
            I('s_mul_i32 s9, s8, 7168'); I('v_add_u32 v%d, s9, v%d' % (AW + i, T + 3))
            if shared and i in (0, 2): I('v_add_u32 v%d, s9, v%d' % (AS + i // 2, T + 6))

    def row_stats(self):
        I = self.I; S, Q = ST, ST + 1
        I('s_mov_b32 s8, 0x3f803f80')
        I('v_dot2_f32_bf16 v%d, v%d, s8, 0' % (S, XF)); I('v_dot2_f32_bf16 v%d, v%d, v%d, 0' % (Q, XF, XF))
        for q in range(1, 4):
            I('v_dot2_f32_bf16 v%d, v%d, s8, v%d' % (S, XF + q, S)); I('v_dot2_f32_bf16 v%d, v%d, v%d, v%d' % (Q, XF + q, XF + q, Q))
        for m in ('row_shr:1', 'row_shr:2', 'row_shr:4', 'row_shr:8'):
            for r in (S, Q): I('v_add_f32_dpp v%d, v%d, v%d %s row_mask:0xf bank_mask:0xf bound_ctrl:0' % (r, r, r, m))
        for m, rm in (('row_bcast:15', '0xa'), ('row_bcast:31', '0xc')):
            for r in (S, Q): I('v_add_f32_dpp v%d, v%d, v%d %s row_mask:%s bank_mask:0xf' % (r, r, r, m, rm))
        I('v_mul_f32 v%d, %s, v%d' % (S, f32(1.0 / 448), S)); I('v_mul_f32 v%d, %s, v%d' % (Q, f32(1.0 / 448), Q))
        I('v_fma_f32 v%d, -v%d, v%d, v%d' % (Q, S, S, Q)); I('v_max_f32 v%d, 0, v%d' % (Q, Q))
        def rbf(r):
            I('v_cvt_pk_bf16_f32 v%d, v%d, v%d' % (r, r, r)); I('v_lshlrev_b32 v%d, 16, v%d' % (r, r))
        rbf(S); rbf(Q)
        I('v_add_f32 v%d, %s, v%d' % (Q, f32(1e-5), Q)); rbf(Q)
        I('v_sqrt_f32 v%d, v%d' % (Q, Q)); rbf(Q)
        I('v_rcp_f32 v%d, v%d' % (Q, Q))
        I('v_sub_f32 v%d, 0, v%d' % (S, S))

    def nonce_issue(self):
        self.I('v_mov_b32 v%d, 0' % (ST + 3))
        return self.I('buffer_load_dword v%d, v%d, %s, 0 offen sc1' % (ST + 2, ST + 3, sr(S_DBG, 4)))
    def nonce_get_publish(self, tag):
        I = self.I; U = self.U
        I('v_readfirstlane_b32 s%d, v%d' % (S_NONCE, ST + 2))
        I('s_cmp_lg_u32 s%d, 0' % S_NONCE); I('s_cbranch_scc1 L_gotn%s' % tag)
        self.g.label('L_spinn%s' % tag)
        U('buffer_load_dword v%d, v%d, %s, 0 offen sc1' % (ST + 2, ST + 3, sr(S_DBG, 4)))
        U('s_waitcnt vmcnt(0)')
        I('v_readfirstlane_b32 s%d, v%d' % (S_NONCE, ST + 2)); I('s_nop 1')
        I('s_cmp_lg_u32 s%d, 0' % S_NONCE); I('s_cbranch_scc1 L_gotn%s' % tag)
        self.spin_tail('L_spinn%s' % tag)
        self.g.label('L_gotn%s' % tag)
        I('v_mov_b32 v%d, s%d' % (ST + 2, S_NONCE)); I('v_mov_b32 v%d, s%d' % (ST + 3, S_NONCE))
        I('s_lshl_b32 s8, s%d, 4' % S_ROW); I('s_add_u32 s8, s8, %d' % L.WS_RS); I('v_mov_b32 v%d, 0' % (TMP + 8))
        I('s_mov_b32 exec_lo, 0'); I('s_mov_b32 exec_hi, 0x80000000')
        I('buffer_store_dwordx4 %s, v%d, %s, s8 offen sc1' % (vr(ST, 4), TMP + 8, sr(S_WS, 4)))
        I('s_mov_b64 exec, -1')
    def rs_issue(self):
        I = self.I
        I('s_lshl_b32 s8, s%d, 2' % S_RB); I('s_add_u32 s8, s8, s%d' % S_RT); I('s_lshl_b32 s8, s8, 9'); I('s_add_u32 s%d, s8, %d' % (S_ROW, L.WS_RS))
        I('v_and_b32 v%d, 31, v%d' % (DX, VLANE)); I('v_lshlrev_b32 v%d, 4, v%d' % (DX, DX))
        return I('buffer_load_dwordx4 %s, v%d, %s, s%d offen sc1' % (vr(ST, 4), DX, sr(S_WS, 4), S_ROW))
    def rs_get(self, tag, scale):
        I = self.I; U = self.U
        I('v_cmp_ne_u32 vcc, s%d, v%d' % (S_NONCE, ST + 2)); I('s_nop 1'); I('s_cbranch_vccz L_gotr%s' % tag)
        self.g.label('L_spinr%s' % tag)
        U('buffer_load_dwordx4 %s, v%d, %s, s%d offen sc1' % (vr(ST, 4), DX, sr(S_WS, 4), S_ROW))
        U('s_waitcnt vmcnt(0)')
        I('v_cmp_ne_u32 vcc, s%d, v%d' % (S_NONCE, ST + 2)); I('s_nop 1'); I('s_cbranch_vccz L_gotr%s' % tag)
        self.spin_tail('L_spinr%s' % tag)
        self.g.label('L_gotr%s' % tag)
        for q in range(4): I('v_cvt_pk_bf16_f32 v%d, v%d, v%d' % (XF + q, ST, ST))
        I('v_mul_f32 v%d, %s, v%d' % (ST, f32(scale), ST + 1))
    def publish(self, soff_s, tmp, needs=()):
        I = self.I
        I('v_mov_b32 v%d, s%d' % (tmp, S_NONCE)); I('v_mov_b32 v%d, 0' % (tmp + 1)); I('s_mov_b64 exec, 1')
        x = I('buffer_store_dword v%d, v%d, %s, s%d offen sc1' % (tmp, tmp + 1, sr(S_WS, 4), soff_s), needs=needs)
        I('s_mov_b64 exec, -1')
        return x
    def poll(self, tag, voff, soff_s, tmp):
        I = self.I; U = self.U
        self.g.label('L_poll%s' % tag)
        U('buffer_load_dword v%d, v%d, %s, s%d offen sc1' % (tmp, voff, sr(S_WS, 4), soff_s))
        I('s_waitcnt vmcnt(0)')
        I('v_cmp_ne_u32 vcc, s%d, v%d' % (S_NONCE, tmp)); I('s_nop 1'); I('s_cbranch_vccz L_polld%s' % tag)
        self.spin_tail('L_poll%s' % tag)
        self.g.label('L_polld%s' % tag)
    def poll_issue(self, voff, soff_s, tmp):
        return self.I('buffer_load_dword v%d, v%d, %s, s%d offen sc1' % (tmp, voff, sr(S_WS, 4), soff_s))
    def poll_check(self, tag, voff, soff_s, tmp):
        I = self.I; U = self.U
        if 'nopoll' in EXP and tag in 'AB': return
        I('v_cmp_ne_u32 vcc, s%d, v%d' % (S_NONCE, tmp)); I('s_nop 1'); I('s_cbranch_vccz L_polld%s' % tag)
        self.g.label('L_poll%s' % tag)
        U('buffer_load_dword v%d, v%d, %s, s%d offen sc1' % (tmp, voff, sr(S_WS, 4), soff_s)); U('s_waitcnt vmcnt(0)')
        I('v_cmp_ne_u32 vcc, s%d, v%d' % (S_NONCE, tmp)); I('s_nop 1'); I('s_cbranch_vccz L_polld%s' % tag)
        self.spin_tail('L_poll%s' % tag)
        self.g.label('L_polld%s' % tag)
    def spin_tail(self, lab, sl=None):
        I = self.I
        I('s_sleep %d' % (sl or SLEEP)); I('s_add_u32 s31, s31, 1'); I('s_cmp_lt_u32 s31, 0x8000'); I('s_cbranch_scc1 %s' % lab)

    def l2pf(self, st):
        if 'l2pf' not in EXP: return []
        I = self.I; lab = 'L_pf%s%d' % (self.tagbase, st)
        with self.g.capture() as a:
            I('s_lshr_b32 s8, s%d, 1' % S_WAVE); I('s_cmp_lg_u32 s8, %d' % (st - PF0)); I('s_cbranch_scc1 %s' % lab)
            I('s_lshr_b32 s8, s2, 3'); I('s_lshl_b32 s8, s8, 3'); I('s_add_u32 s8, s8, s%d' % S_WAVE); I('s_lshl_b32 s8, s8, 13')
            I('v_lshlrev_b32 v%d, 7, v%d' % (TMP + 8, VLANE))
            self.U('buffer_load_dword a80, v%d, %s, s8 offen' % (TMP + 8, sr(S_W2, 4)))
            I('s_sub_u32 s8, s8, %d' % (196 * 8192)); I('s_cbranch_scc1 %s' % lab)
            self.U('buffer_load_dword a80, v%d, %s, s8 offen' % (TMP + 8, sr(S_WO, 4)))
            self.g.label(lab)
        return [a]

    def code_pf(self, tg, tmp, dst):
        if 'nocpf' in EXP: return []
        I = self.I
        with self.g.capture() as a:
            I('s_getpc_b64 s[8:9]'); self.g.label('L_cpf%s' % tg)
            I('s_sub_u32 s8, s8, L_cpf%s-L_pc' % tg); I('s_subb_u32 s9, s9, 0')
            I('s_bfe_u32 s10, s2, 0x20003'); I('s_lshl_b32 s10, s10, 3'); I('s_add_u32 s10, s10, s%d' % S_WAVE); I('s_lshl_b32 s10, s10, 11')
            I('v_lshlrev_b32 v%d, 7, v%d' % (tmp, VLANE)); I('v_add_u32 v%d, s10, v%d' % (tmp, tmp)); I('v_min_u32 v%d, L_end-L_pc, v%d' % (tmp, tmp))
            I('s_mov_b64 exec, 0xffff')
            I('global_load_dword %s, v%d, s[8:9]' % (dst, tmp))
            I('s_mov_b64 exec, -1')
        return [a]

    def gemm(self, tiles, gpitch, dms, tag, hooks, tl):
        g = self.g; I = self.I
        dmas = dict(dms)
        NF, LOOK = 8, 4
        seq = [(ks, cc) for ks in range(28) for cc in range(len(tiles[ks & 3]['t']))]
        def wread(n):
            ks, cc = seq[n]; a = WF + 4 * (n % NF); c, areg, off = tiles[ks & 3]['t'][cc]
            return [Instr('ds_read_b64_tr_b16 %s, v%d offset:%d' % (vr(a + 2 * h, 2), areg, off + h * 4 * 448)) for h in range(2)]
        def xread(ks):
            return [Instr('ds_read_b128 %s, v%d' % (vr(XF + 4 * (ks % 2), 4), AX + (ks & 3)))]
        aregs = sorted(set(list(range(AX, AX + 4)) + [t[1] for p in tiles for t in p['t']]))
        def adv(st):
            d = STG if st % 3 else -2 * STG
            return [Instr('v_add_u32 v%d, %d, v%d' % (r, d, r)) if d > 0 else Instr('v_subrev_u32 v%d, %d, v%d' % (r, -d, r)) for r in aregs]
        tc = [0]
        def cs_ops(r, c):
            t = TMP + 2 * (tc[0] % 4); tc[0] += 1
            return [Instr('v_lshlrev_b32 v%d, 16, v%d' % (t, r)), Instr('v_and_b32 v%d, s%d, v%d' % (t + 1, S_MASK, r)),
                    Instr('v_add_f32 v%d, v%d, v%d' % (CS + c, CS + c, t)), Instr('v_add_f32 v%d, v%d, v%d' % (CS + c, CS + c, t + 1))]
        if 'start' in EXP:
            self.stamp('rowst'); I('s_nop 0', needs=dmas[0]); self.stamp('s0arr'); I('s_waitcnt lgkmcnt(0)')
        BAR0 = len(g.cur)
        I('s_barrier', needs=dmas[0])
        self.stamp('bar0')
        g.extend(xread(0))
        first = [wread(n) for n in range(LOOK)]
        for x in first: g.extend(x)
        g1, dmas[1] = self.stage_dma(1, gpitch)
        pend, dmas[2] = self.stage_dma(2, gpitch)
        g.cur[self.s0pos:self.s0pos] = [Instr('s_barrier')] + [x for gp in g1 for x in gp]
        wrd = {}
        cs = {}
        def cs_make():
            with g.capture() as a:
                T = TMP
                I('s_cmp_ge_u32 s%d, 7' % S_RB); I('s_cbranch_scc1 L_nocm%s' % tag)
                I('s_mov_b32 s9, 0x3f803f80'); CT = [128, 130, 134, 136]
                for half in range(2):
                    for k2 in range(2):
                        for h in range(2): self.U('ds_read_b64_tr_b16 %s, v%d offset:%d' % (vr(CT[2 * k2 + h], 2), CS + 3, (2 * half + k2) * 7168 + h * 1792))
                    self.U('s_waitcnt lgkmcnt(0)')
                    for q in range(8): I('v_dot2_f32_bf16 v%d, v%d, s9, %s' % (CS + (q & 1), CT[q >> 1] + (q & 1), 'v%d' % (CS + (q & 1)) if half or q > 1 else '0'))
                I('s_lshl_b32 s8, s%d, 11' % S_WAVE); I('s_add_u32 s8, s8, s%d' % S_CSB); I('s_lshr_b32 s9, s%d, 2' % S_RB); I('s_lshl_b32 s9, s9, 10'); I('s_add_u32 s8, s8, s9')
                I('s_and_b32 s9, s%d, 3' % S_RB); I('s_lshl_b32 s9, s9, 2'); I('s_add_u32 s8, s8, s9')
                I('v_add_f32 v%d, v%d, v%d' % (CS, CS, CS + 1))
                I('v_cvt_pk_bf16_f32 v%d, v%d, v%d' % (T, CS, CS)); I('v_and_b32 v%d, s%d, v%d' % (T, S_MASK, T))
                I('v_sub_f32 v%d, v%d, v%d' % (T, CS, T)); I('v_cvt_pk_bf16_f32 v%d, v%d, v%d' % (CS, T, CS))
                self.U('buffer_store_dword v%d, v%d, %s, s8 offen sc1' % (CS, VL16, sr(S_WS, 4)))
                self.g.label('L_nocm%s' % tag)
            return [a]
        def cs_flag():
            with g.capture() as a:
                I('s_cmp_lt_u32 s%d, 7' % S_RB); I('s_cselect_b32 s8, s%d, 1' % S_WAVE); I('s_cmp_lg_u32 s8, 0'); I('s_cbranch_scc1 L_nocf%s' % tag)
                I('s_sub_u32 s8, s%d, %d' % (S_CSB, L.WS_CSG)); I('s_lshr_b32 s8, s8, 4'); I('s_lshl_b32 s9, s%d, 7' % S_RB); I('s_add_u32 s8, s8, s9'); I('s_add_u32 s8, s8, %d' % L.WS_CSF)
                self.publish(8, TMP).kind = 'untracked'
                self.g.label('L_nocf%s' % tag)
            return [a]
        def cs_poll():
            with g.capture() as a:
                I('s_sub_u32 s10, s%d, %d' % (S_CSB, L.WS_CSG)); I('s_lshr_b32 s10, s10, 4'); I('s_add_u32 s%d, s10, %d' % (S_R0, L.WS_CSF))
                I('v_and_b32 v%d, 7, v%d' % (CS, VLANE)); I('v_min_u32 v%d, 6, v%d' % (CS, CS)); I('v_lshlrev_b32 v%d, 7, v%d' % (CS, CS))
                self.poll_issue(CS, S_R0, CS + 1)
            return [a]
        def cs_load():
            with g.capture() as a:
                for c, mul, add in tl:
                    I('s_mul_i32 s8, s%d, %d' % (S_CH, mul * 2048)); I('s_add_u32 s8, s8, s%d' % S_CSB); I('s_add_u32 s8, s8, %d' % (add * 2048))
                    for h in range(2): I('buffer_load_dwordx4 %s, v%d, %s, s8 offen offset:%d sc1' % (ar(CSA + 8 * c + 4 * h, 4), VL16, sr(S_WS, 4), 1024 * h))
            return [a]
        for n in range(LOOK): wrd[n] = first[n]
        started = set(); xr = 0; cfill = []
        for n, (ks, cc) in enumerate(seq):
            p = tiles[ks & 3]; c = p['t'][cc][0]; a = WF + 4 * (n % NF); xf = XF + 4 * (ks % 2)
            I('v_mfma_f32_32x32x16_bf16 %s, %s, %s, %s' % (vr(ACC + 16 * c, 16), vr(a, 4), vr(xf, 4), vr(ACC + 16 * c, 16) if c in started else '0'),
              needs=wrd.get(n + 1, []) if n % 2 == 0 else [])
            started.add(c)
            nn = n + LOOK
            if nn < len(seq):
                ks2, cc2 = seq[nn]
                if cc2 == 0 and ks2 & 3 == 0:
                    st2 = ks2 >> 2
                    assert xr == ks2 - 1
                    g.extend(adv(st2))
                    if st2 == NST: self.nonce_get_publish(tag)
                    if st2 == 6: self.poll_check('c' + tag, CS, S_R0, CS + 1); self.rs_issue()
                    if st2 in hooks.get('pre', {}): hooks['pre'][st2]()
                    if 'stg' in EXP and st2 in (2, 3, 6): self.stamp('preB%d' % st2)
                    I('s_waitcnt lgkmcnt(0)')
                    I('s_barrier', needs=dmas[st2])
                    if 'stg' in EXP: self.stamp('B%d' % st2)
                    if st2 == 1:
                        with g.capture() as grp_: self.nonce_issue()
                        pend += [grp_]
                    if st2 == 1: pend += cs_make()
                    if st2 == 3: pend += cs_flag()
                    if st2 == 5: pend += cs_poll()
                    if st2 == 6: pend += cs_load()
                    if st2 in self.pre_post: pend += self.pre_post[st2]()
                    if st2 + 2 < 7:
                        newg, dmas[st2 + 2] = self.stage_dma(st2 + 2, gpitch); pend += newg
                    if st2 in TSCH: pend += self.mall_issue(1, TSCH[st2])
                    if st2 in hooks.get('post', {}): pend += hooks['post'][st2]()
                wrd[nn] = wread(nn); g.extend(wrd[nn])
            if xr == ks and ks + 1 < 28 and (nn >= len(seq) or seq[min(nn, len(seq) - 1)][0] >= ks + 1):
                g.extend(xread(ks + 1)); xr = ks + 1
            if pend and (n % 3 == 0 or len(pend) > 3): g.extend(pend.pop(0))
        for x in pend: g.extend(x)
        self.stamp('loopend')

    def finish_stats(self, tl, scale, tag, before_b1=None, after_b1=None):
        I = self.I
        wr = []
        if before_b1: wr += before_b1() or []
        self.rs_get(tag, scale)
        for c, mul, add in tl: I('v_accvgpr_write_b32 a%d, 0' % (CSA + 8 * c + 7))
        for h in range(2):
            for c, mul, add in tl:
                I('v_mfma_f32_32x32x16_bf16 %s, %s, %s, %s' % (vr(ACC + 16 * c, 16), ar(CSA + 8 * c + 4 * h, 4), vr(XF, 4), vr(ACC + 16 * c, 16)))
        I('s_barrier', needs=wr)
        if after_b1: after_b1()
        if 'stg' in EXP: self.stamp = lambda *a, **k: None
        self.stamp('stats')

    def with_bg(self, fn, tasks, every):
        with self.g.capture() as body:
            fn()
        out = []; tasks = list(tasks); cnt = 0
        for x in body:
            out.append(x); cnt += 1
            if tasks and cnt >= every and x.kind in ('valu', 'trans') and not (x.dst & {'vcc'}):
                out += tasks.pop(0); cnt = 0
        for t in tasks: out += t
        self.g.extend(out)

    def ffn(self):
        I = self.I; g = self.g
        self.tagbase = 'f'
        self.srd(S_W, 26, 448 * 3584)
        I('v_mul_u32_u24 v6, 3584, v6'); I('v_lshl_add_u32 v%d, v7, 4, v6' % DW)
        I('s_mul_i32 s%d, s%d, 448' % (S_WSO, S_IDX))
        dms = self.start_stream(3584)
        I('s_mul_i32 s10, s%d, 192' % S_CH); I('s_add_u32 s10, s10, %d' % WPART)
        self.read_addrs(False, shared=True)
        self.pre_loop(True, 0); self.pre_post = {}
        own = lambda i, o: [(c, AW + i, 64 * c) for c in o]
        tiles = [dict(t=[(3, AS, 0)] + own(0, [0, 1, 2]), cs=True), dict(t=own(1, [0, 1, 2]), cs=True),
                 dict(t=own(2, [1, 2, 0]) + [(3, AS + 1, 0)], cs=True), dict(t=own(3, [2, 0, 1]), cs=True)]
        self.bdma, self.bread = {}, {}; self.nslot = 5
        tl = [(0, 3, 0), (1, 3, 1), (2, 3, 2), (3, 1, 6)]
        self.gemm(tiles, 3584, dms, 'f', self.bhooks(), tl)
        self.slot4_setup()
        SH = ACC + 48; X8 = 116
        def before_b1():
            I('s_xor_b32 s8, s%d, 4' % S_WAVE); I('s_lshl_b32 s8, s8, 11'); I('s_add_u32 s8, s8, %d' % L_SHX); I('v_add_u32 v%d, s8, v%d' % (AX, VL16))
            I('s_lshl_b32 s8, s%d, 11' % S_WAVE); I('s_add_u32 s8, s8, %d' % L_SHX); I('v_add_u32 v%d, s8, v%d' % (AX + 1, VL16))
            return [I('ds_write_b128 v%d, %s offset:%d' % (AX, vr(SH + 8 + 4 * q, 4), 1024 * q)) for q in range(2)]
        shr = []
        def after_b1():
            for q in range(2): shr.append(I('ds_read_b128 %s, v%d offset:%d' % (vr(X8 + 4 * q, 4), AX + 1, 1024 * q)))
        self.finish_stats(tl, -L.LOG2E, 'f', before_b1, after_b1)
        I('s_lshl_b32 s8, s%d, 2' % S_RB); I('s_add_u32 s8, s8, s%d' % S_RT); I('s_mul_i32 s9, s8, %d' % (112 * 1024))
        I('s_lshl_b32 s8, s8, 3'); I('s_add_u32 s8, s8, s%d' % S_IDX); I('s_lshl_b32 s8, s8, 1'); I('s_add_u32 s8, s8, s%d' % S_CH)
        I('s_lshl_b32 s8, s8, 7'); I('s_add_u32 s0, s8, %d' % L.WS_FLAG)
        I('s_mul_i32 s10, s%d, %d' % (S_IDX, 14 * 1024)); I('s_add_u32 s9, s9, s10')
        I('s_mul_i32 s10, s%d, 6144' % S_CH); I('s_add_u32 s10, s9, s10')
        I('s_lshl_b32 s11, s%d, 10' % S_CH); I('s_add_u32 s9, s9, s11'); I('s_add_u32 s1, s9, %d' % (12 * 1024))
        stores = []
        def unit(idx):
            c, u = divmod(idx, 2)
            A = ACC + 16 * c + 8 * u; T = [64, 72][idx & 1]; P = [80, 84][idx & 1]
            if 'noprio' not in EXP:
                lab = 'L_fp%d' % idx
                I('s_setprio 0'); I('s_cmp_eq_u32 s%d, %d' % (S_CH, idx & 1)); I('s_cbranch_scc1 %s' % lab); I('s_setprio 1'); self.g.label(lab)
            if c == 3:
                for j in range(0, 8, 2): I('v_pk_add_f32 %s, %s, %s' % (vr(A + j, 2), vr(A + j, 2), vr(X8 + j, 2)))
            for j in range(0, 8, 2): I('v_pk_mul_f32 %s, %s, %s op_sel_hi:[1,0]' % (vr(A + j, 2), vr(A + j, 2), vr(ST, 2)))
            for j in range(8): I('v_exp_f32 v%d, v%d' % (T + j, A + j))
            for j in range(0, 8, 2): I('v_pk_add_f32 %s, %s, 1.0 op_sel_hi:[1,0]' % (vr(T + j, 2), vr(T + j, 2)))
            for j in range(8): I('v_rcp_f32 v%d, v%d' % (T + j, T + j))
            for j in range(0, 8, 2): I('v_pk_mul_f32 %s, %s, %s' % (vr(T + j, 2), vr(T + j, 2), vr(A + j, 2)))
            for j in range(0, 8, 2): I('v_cvt_pk_bf16_f32 v%d, v%d, v%d' % (P + j // 2, T + j, T + j + 1))
            if idx == 4: I('s_add_u32 s10, s10, 4096')
            if c < 3: stores.append(I('buffer_store_dwordx4 %s, v%d, %s, s10 offen offset:%d sc1' % (vr(P, 4), VL16, sr(S_WS, 4), (idx % 4) * 1024)))
            else: stores.append(I('buffer_store_dwordx4 %s, v%d, %s, s1 offen sc1' % (vr(P, 4), VL16, sr(S_WS, 4))))
        self.with_bg(lambda: [unit(i) for i in range(6)], self.b_round1(shr) + ([] if 'wolate' in EXP else self.wo_dma()), int(os.environ.get('FBG', '11')))
        unit(6)
        I('s_setprio 0')
        self.stamp('epi')
        self.p2_enter()
        bt = self.b_tasks(4, 9)
        for t in bt[:5]: g.extend(t)
        self.publish(0, 96, needs=stores)
        self.stamp('pub')
        if 'nofh' not in EXP: I('s_barrier')
        for t in bt[5:8]: g.extend(t)
        pa = self.poll_issue(P2T + 1, S_FA, P2T)
        for t in bt[8:] + (self.wo_dma() if 'wolate' in EXP else []): g.extend(t)
        I('s_waitcnt lgkmcnt(0)'); I('s_nop 0', needs=[pa])
        I('s_branch L_p2')

    def b_round1(self, need4=None):
        t = [sum([self.b_read(k) for k in range(4)], [])]
        if need4 is not None: t += self.b_dma(4, needs=need4)
        for k in range(4): t += self.b_dma(k + 5, needs=self.bread[k])
        return t

    def bhooks(self, extra=None):
        post = {5: lambda: [[Instr('v_add_u32 v%d, %d, v%d' % (DB2, 8 * 896 - 1024, DB))]] + self.b_dma(0) + self.b_dma(1), 6: lambda: self.b_dma(2) + self.b_dma(3)}
        if extra: post.update(extra)
        return dict(post=post)

    def pack_k(self, A, K8):
        I = self.I
        for j in range(8): I('v_cvt_pk_bf16_f32 v%d, v%d, v%d' % (K8 + j, A + 2 * j, A + 2 * j + 1))
        for j in (6, 7): I('v_cndmask_b32 v%d, v%d, 0, %s' % (K8 + j, K8 + j, sr(S_HIM, 2)))
    def half_units(self, As, neg):
        I = self.I; M = 64; n = '-' if neg else ''; nm = ' neg_lo:[1,0,0] neg_hi:[1,0,0]' if neg else ''
        def each(f):
            for i, A in enumerate(As): f(A, M + 6 * i)
        I('v_mov_b32 v%d, 0xff800000' % (TMP + 10))
        each(lambda A, m: (I('v_max3_f32 v%d, %sv%d, %sv%d, %sv%d' % (m, n, A, n, A + 1, n, A + 2)), I('v_max3_f32 v%d, %sv%d, %sv%d, %sv%d' % (m + 1, n, A + 8, n, A + 9, n, A + 10))))
        for j in (3, 5): each(lambda A, m: (I('v_max3_f32 v%d, v%d, %sv%d, %sv%d' % (m, m, n, A + j, n, A + j + 1)), I('v_max3_f32 v%d, v%d, %sv%d, %sv%d' % (m + 1, m + 1, n, A + 8 + j, n, A + 9 + j))))
        each(lambda A, m: I('v_max3_f32 v%d, v%d, %sv%d, %sv%d' % (m + 1, m + 1, n, A + 7, n, A + 15)))
        each(lambda A, m: I('v_max_f32 v%d, v%d, v%d' % (m, m, m + 1)))
        each(lambda A, m: I('v_mov_b32 v%d, v%d' % (m + 1, m)))
        each(lambda A, m: I('v_permlane32_swap_b32 v%d, v%d' % (m, m + 1)))
        each(lambda A, m: I('v_max_f32 v%d, v%d, v%d' % (m, m, m + 1)))
        each(lambda A, m: I('v_mul_f32 v%d, -v%d, v%d' % (m, ST, m)))
        each(lambda A, m: I('v_cndmask_b32 v%d, v%d, v%d, %s' % (m + 1, m, TMP + 10, sr(S_HIM, 2))))
        for j in range(0, 16, 2):
            sel = 'op_sel_hi:[1,0,0]' if j < 12 else 'op_sel:[0,0,1] op_sel_hi:[1,0,1]'
            each(lambda A, m: I('v_pk_fma_f32 %s, %s, %s, %s %s%s' % (vr(A + j, 2), vr(A + j, 2), vr(ST, 2), vr(m, 2), sel, nm)))
        for j in range(16): each(lambda A, m: I('v_exp_f32 v%d, v%d' % (A + j, A + j)))
        each(lambda A, m: (I('v_pk_add_f32 %s, %s, %s' % (vr(m + 2, 2), vr(A, 2), vr(A + 2, 2))), I('v_pk_add_f32 %s, %s, %s' % (vr(m + 4, 2), vr(A + 8, 2), vr(A + 10, 2)))))
        for j in (4, 6): each(lambda A, m: (I('v_pk_add_f32 %s, %s, %s' % (vr(m + 2, 2), vr(m + 2, 2), vr(A + j, 2))), I('v_pk_add_f32 %s, %s, %s' % (vr(m + 4, 2), vr(m + 4, 2), vr(A + 8 + j, 2)))))
        each(lambda A, m: I('v_pk_add_f32 %s, %s, %s' % (vr(m + 2, 2), vr(m + 2, 2), vr(m + 4, 2))))
        each(lambda A, m: I('v_add_f32 v%d, v%d, v%d' % (m, m + 2, m + 3)))
        each(lambda A, m: I('v_mov_b32 v%d, v%d' % (m + 1, m)))
        each(lambda A, m: I('v_permlane32_swap_b32 v%d, v%d' % (m, m + 1)))
        each(lambda A, m: I('v_add_f32 v%d, v%d, v%d' % (m, m, m + 1)))
        each(lambda A, m: I('v_rcp_f32 v%d, v%d' % (m, m)))
        for j in range(0, 16, 2): each(lambda A, m: I('v_pk_mul_f32 %s, %s, %s op_sel_hi:[1,0]' % (vr(A + j, 2), vr(A + j, 2), vr(m, 2))))
        for j in range(8): each(lambda A, m: I('v_cvt_pk_bf16_f32 v%d, v%d, v%d' % (A + j, A + 2 * j, A + 2 * j + 1)))
    def phi_mfma(self, A, K8, WP):
        I = self.I
        I('v_mfma_f32_32x32x16_bf16 %s, %s, %s, 0' % (vr(A, 16), ar(WP, 4), vr(K8, 4)))
        I('v_mfma_f32_32x32x16_bf16 %s, %s, %s, %s' % (vr(A, 16), ar(WP + 4, 4), vr(K8 + 4, 4), vr(A, 16)))
    def softmax_unit(self, A, sreg=None):
        I = self.I
        EP, EN, M = 64, 80, TMP
        mx, nm, t, u = M, M + 1, M + 2, M + 4
        I('v_mov_b32 v%d, 0xff800000' % (M + 10))
        m2, n2 = M + 6, M + 7
        for (a, b, o) in ((mx, nm, 0), (m2, n2, 8)):
            I('v_max3_f32 v%d, v%d, v%d, v%d' % (a, A + o, A + o + 1, A + o + 2)); I('v_max3_f32 v%d, -v%d, -v%d, -v%d' % (b, A + o, A + o + 1, A + o + 2))
        for j in (3, 5):
            for (a, b, o) in ((mx, nm, 0), (m2, n2, 8)):
                I('v_max3_f32 v%d, v%d, v%d, v%d' % (a, a, A + o + j, A + o + j + 1)); I('v_max3_f32 v%d, v%d, -v%d, -v%d' % (b, b, A + o + j, A + o + j + 1))
        I('v_max3_f32 v%d, v%d, v%d, v%d' % (m2, m2, A + 7, A + 15)); I('v_max3_f32 v%d, v%d, -v%d, -v%d' % (n2, n2, A + 7, A + 15))
        I('v_max_f32 v%d, v%d, v%d' % (mx, mx, m2)); I('v_max_f32 v%d, v%d, v%d' % (nm, nm, n2))
        I('v_permlane32_swap_b32 v%d, v%d' % (mx, nm)); I('v_max_f32 v%d, v%d, v%d' % (t, mx, nm))
        I('v_mul_f32 v%d, -v%d, v%d' % (t, ST, t)); I('v_mov_b32 v%d, v%d' % (u, t)); I('v_permlane32_swap_b32 v%d, v%d' % (t, u))
        I('v_cndmask_b32 v%d, v%d, v%d, %s' % (t + 1, t, M + 10, sr(S_HIM, 2))); I('v_cndmask_b32 v%d, v%d, v%d, %s' % (u + 1, u, M + 10, sr(S_HIM, 2)))
        for j in range(0, 16, 2):
            sel = 'op_sel_hi:[1,0,0]' if j < 12 else 'op_sel:[0,0,1] op_sel_hi:[1,0,1]'
            I('v_pk_fma_f32 %s, %s, %s, %s %s' % (vr(EP + j, 2), vr(A + j, 2), vr(ST, 2), vr(t, 2), sel))
            I('v_pk_fma_f32 %s, %s, %s, %s %s neg_lo:[1,0,0] neg_hi:[1,0,0]' % (vr(EN + j, 2), vr(A + j, 2), vr(ST, 2), vr(u, 2), sel))
        for j in range(16): I('v_exp_f32 v%d, v%d' % (EP + j, EP + j)); I('v_exp_f32 v%d, v%d' % (EN + j, EN + j))
        sp, sn = M + 6, M + 8
        I('v_pk_add_f32 %s, %s, %s' % (vr(sp, 2), vr(EP, 2), vr(EP + 2, 2))); I('v_pk_add_f32 %s, %s, %s' % (vr(sn, 2), vr(EN, 2), vr(EN + 2, 2)))
        for j in range(4, 16, 2):
            I('v_pk_add_f32 %s, %s, %s' % (vr(sp, 2), vr(sp, 2), vr(EP + j, 2))); I('v_pk_add_f32 %s, %s, %s' % (vr(sn, 2), vr(sn, 2), vr(EN + j, 2)))
        I('v_add_f32 v%d, v%d, v%d' % (sp, sp, sp + 1)); I('v_add_f32 v%d, v%d, v%d' % (sn, sn, sn + 1))
        I('v_permlane32_swap_b32 v%d, v%d' % (sp, sn)); I('v_add_f32 v%d, v%d, v%d' % (t, sp, sn))
        if sreg is None:
            I('v_rcp_f32 v%d, v%d' % (t, t)); I('v_mov_b32 v%d, v%d' % (u, t)); I('v_permlane32_swap_b32 v%d, v%d' % (t, u))
            for j in range(0, 16, 2):
                I('v_pk_mul_f32 %s, %s, %s op_sel_hi:[1,0]' % (vr(EP + j, 2), vr(EP + j, 2), vr(t, 2)))
                I('v_pk_mul_f32 %s, %s, %s op_sel_hi:[1,0]' % (vr(EN + j, 2), vr(EN + j, 2), vr(u, 2)))
            for j in range(8):
                I('v_cvt_pk_bf16_f32 v%d, v%d, v%d' % (A + j, EP + 2 * j, EP + 2 * j + 1)); I('v_cvt_pk_bf16_f32 v%d, v%d, v%d' % (A + 8 + j, EN + 2 * j, EN + 2 * j + 1))
        else:
            I('v_mov_b32 v%d, v%d' % (u, t))
            for j in range(2): I('v_cvt_pk_bf16_f32 v%d, v%d, v%d' % (A + j, EP + 2 * j, EP + 2 * j + 1))
            I('v_permlane32_swap_b32 v%d, v%d' % (t, u)); I('v_rcp_f32 v%d, v%d' % (u, u))
            for j in range(2, 8): I('v_cvt_pk_bf16_f32 v%d, v%d, v%d' % (A + j, EP + 2 * j, EP + 2 * j + 1))
            I('v_mul_f32 v%d, v%d, v%d' % (u, u, t)); I('v_mov_b32 v%d, v%d' % (sreg, t))
            for j in range(0, 16, 2): I('v_pk_mul_f32 %s, %s, %s op_sel_hi:[1,0]' % (vr(EN + j, 2), vr(EN + j, 2), vr(u, 2)))
            for j in range(8): I('v_cvt_pk_bf16_f32 v%d, v%d, v%d' % (A + 8 + j, EN + 2 * j, EN + 2 * j + 1))

    def wphi_dma(self, n, head0_s):
        I = self.I; out = []
        I('s_mul_i32 s8, s%d, 1568' % head0_s); I('s_lshl_b32 s9, s%d, 10' % S_WAVE); I('s_add_u32 s8, s8, s9'); I('s_add_u32 s9, s9, %d' % L_WPHI)
        for i in range(n):
            I('s_add_u32 m0, s9, %d' % (8192 * i)); I('s_add_u32 s10, s8, %d' % (8192 * i))
            out.append(I('buffer_load_dwordx4 v%d, %s, s10 offen lds' % (VL16, sr(S_PHI, 4))))
        return out
    def wphi_read(self, nheads, hoff_s, WP):
        I = self.I; T = TMP + 9
        I('v_lshrrev_b32 v%d, 5, v%d' % (T, VLANE)); I('v_lshlrev_b32 v%d, 2, v%d' % (T, T)); I('v_bfe_u32 v%d, v%d, 2, 2' % (T + 1, VLANE)); I('v_add_u32 v%d, v%d, v%d' % (T, T, T + 1))
        I('v_mul_u32_u24 v%d, 56, v%d' % (T, T)); I('v_add_u32 v%d, s%d, v%d' % (T, hoff_s, T))
        I('v_bfe_u32 v%d, v%d, 4, 1' % (T + 1, VLANE)); I('v_lshlrev_b32 v%d, 2, v%d' % (T + 1, T + 1)); I('v_and_or_b32 v%d, v%d, 3, v%d' % (T + 1, VLANE, T + 1))
        I('v_min_u32 v%d, 6, v%d' % (T + 1, T + 1)); I('v_lshl_add_u32 v%d, v%d, 3, v%d' % (T, T + 1, T))
        for i in range(nheads):
            for s in range(2):
                for h in range(2):
                    I('ds_read_b64_tr_b16 %s, v%d offset:%d' % (ar(WP + 8 * i + 4 * s + 2 * h, 2), T, i * 1568 + (16 * s + 8 * h) * 56))

    def kv_common(self):
        I = self.I; g = self.g
        self.tagbase = 'k'
        self.srd(S_W, 18, 448 * 2688)
        I('s_lshl_b32 s8, s%d, 2' % S_IDX); I('s_lshr_b32 s9, 0xdb9630, s8'); I('s_and_b32 s9, s9, 15')
        I('s_lshr_b32 s10, 0x322333, s8'); I('s_and_b32 s10, s10, 15')
        I('s_mul_i32 s11, s9, 56'); I('s_and_b32 s%d, s11, -16' % S_WSO); I('s_and_b32 s11, s11, 8')
        I('s_mul_i32 s8, s10, 3'); I('s_add_u32 s8, s8, 1')
        I('v_cmp_lt_u32 vcc, 13, v7'); I('v_subrev_u32 v8, 14, v7'); I('v_cndmask_b32 v8, v7, v8, vcc'); I('v_min_u32 v8, s8, v8')
        I('v_mov_b32 v9, 896'); I('v_mov_b32 v10, 1792'); I('v_cndmask_b32 v9, v9, v10, vcc')
        I('v_mul_u32_u24 v6, 2688, v6'); I('v_add_u32 v6, v6, v9'); I('v_lshl_add_u32 v%d, v8, 4, v6' % DW)
        I('s_mov_b32 s0, s9'); I('s_mov_b32 s1, s10'); I('s_mov_b32 s%d, s11' % S_NONCE)
        dms = self.start_stream(2688)
        I('s_mul_i32 s10, s%d, 224' % S_CH); I('s_add_u32 s10, s10, s%d' % S_NONCE); I('s_add_u32 s10, s10, %d' % WPART)
        self.read_addrs(True)
        PW, HO, UA, VW, ZV = 48, 50, 51, 54, 58
        def kvx():
            I('s_mov_b32 s%d, s0' % S_H0); I('s_mov_b32 s%d, s1' % S_NH)
        def kvl():
            I('s_mov_b32 s%d, s%d' % (S_R0, S_H0))
            if ATOM:
                I('s_cmp_lg_u32 s%d, 0' % S_RB); I('s_cbranch_scc1 L_nozero')
                Z = 68
                for i in range(4): I('v_mov_b32 v%d, 0' % (Z + i))
                I('s_lshl_b32 s8, s%d, 13' % S_H0); I('s_lshl_b32 s9, s%d, 10' % S_WAVE); I('s_add_u32 s8, s8, s9'); I('s_add_u32 s8, s8, %d' % L.WS_KV)
                self.U('buffer_store_dwordx4 %s, v%d, %s, s8 offen sc1' % (vr(Z, 4), VL16, sr(S_WS, 4)))
                I('s_add_u32 s8, s8, 8192'); self.U('buffer_store_dwordx4 %s, v%d, %s, s8 offen sc1' % (vr(Z, 4), VL16, sr(S_WS, 4)))
                I('s_add_u32 s8, s8, 8192'); I('s_cmp_eq_u32 s%d, 3' % S_NH); I('s_cselect_b32 s8, s8, 0x7f000000')
                self.U('buffer_store_dwordx4 %s, v%d, %s, s8 offen sc1' % (vr(Z, 4), VL16, sr(S_WS, 4))); I('s_nop 1')
                self.g.label('L_nozero')
            for gp in post4(): g.extend(gp)
        kv_pre = lambda: self.pre_loop(True, 8, kvx, kvl)
        rot = lambda i: [((i + cc) % 3, AW + i, 56 * ((i + cc) % 3)) for cc in range(3)]
        tiles = [dict(t=rot(i), cs=(i < 3)) for i in range(4)]
        self.bdma, self.bread = {}, {}; self.nslot = 5
        def pre2():
            pass
        def post2():
            with g.capture() as a:
                I('s_mov_b32 s8, %d' % L_WPHI)
                self.wphi_read(3, 8, 88)
            return [a]
        def post3():
            with g.capture() as a:
                I('s_or_b32 s8, s%d, s%d' % (S_RB, S_WAVE)); I('s_cmp_lg_u32 s8, 0'); I('s_cbranch_scc1 L_nozf')
                I('s_lshl_b32 s8, s%d, 7' % S_IDX); I('s_add_u32 s8, s8, %d' % (L.WS_KVZ + 0x4000))
                self.publish(8, TMP + 8).kind = 'untracked'
                self.g.label('L_nozf')
            return [a]
        self.kvr = (PW, HO, UA, VW, ZV)
        def post4():
            A, B, C = 64, 65, 66; out = []
            with g.capture() as a:
                I('v_and_b32 v%d, 31, v%d' % (A, VLANE)); I('v_lshlrev_b32 v%d, 6, v%d' % (A, A)); I('s_lshl_b32 s8, s%d, 11' % S_RT); I('v_add_u32 v%d, s8, v%d' % (A, A))
                I('v_bfe_u32 v%d, v%d, 1, 2' % (B, VLANE)); I('v_lshl_add_u32 v%d, v%d, 4, v%d' % (A, B, A))
                I('v_lshrrev_b32 v%d, 5, v%d' % (B, VLANE))
                I('v_lshl_add_u32 v%d, v%d, 13, v%d' % (PW, B, A)); I('s_lshl_b32 s9, s%d, 5' % S_CH); I('v_xor_b32 v%d, s9, v%d' % (PW, PW)); I('v_xor_b32 v%d, 16, v%d' % (PW + 1, PW))
                I('s_add_u32 s8, s8, %d' % L_V); I('v_add_u32 v%d, s8, v%d' % (HO, VL16))
                I('v_lshl_add_u32 v%d, v%d, 3, v%d' % (VW, B, A)); I('v_add_u32 v%d, %d, v%d' % (VW, L_V, VW))
                for q in range(1, 4): I('v_xor_b32 v%d, %d, v%d' % (VW + q, 16 * q, VW))
                I('v_lshlrev_b32 v%d, 10, v%d' % (UA + 2, B)); I('v_and_b32 v%d, 31, v%d' % (A, VLANE)); I('v_lshl_add_u32 v%d, v%d, 2, v%d' % (UA + 2, A, UA + 2))
            out.append(a)
            with g.capture() as a:
                I('v_lshrrev_b32 v%d, 5, v%d' % (A, VLANE)); I('v_bfe_u32 v%d, v%d, 2, 2' % (B, VLANE)); I('v_lshl_add_u32 v%d, v%d, 2, v%d' % (A, A, B))
                I('v_bfe_u32 v%d, v%d, 4, 1' % (B, VLANE)); I('v_bfe_u32 v%d, v%d, 1, 1' % (C, VLANE)); I('v_lshl_add_u32 v%d, v%d, 1, v%d' % (B, B, C))
                I('v_lshrrev_b32 v%d, 1, v%d' % (C, A)); I('v_xor_b32 v%d, v%d, v%d' % (B, B, C)); I('v_lshlrev_b32 v%d, 6, v%d' % (A, A)); I('v_lshl_add_u32 v%d, v%d, 4, v%d' % (A, B, A))
                I('v_and_b32 v%d, 1, v%d' % (B, VLANE)); I('v_lshl_add_u32 v%d, v%d, 3, v%d' % (A, B, A))
                I('s_lshl_b32 s10, s%d, 13' % S_WAVE); I('v_add_u32 v%d, s10, v%d' % (UA + 1, A))
                I('s_lshr_b32 s9, s%d, 1' % S_WAVE); I('s_lshl_b32 s10, s9, 13'); I('s_add_u32 s10, s10, %d' % L_V); I('v_add_u32 v%d, s10, v%d' % (UA, A))
                I('s_add_u32 s10, s9, s%d' % S_H0); I('s_lshl_b32 s10, s10, 13'); I('s_and_b32 s8, s%d, 1' % S_WAVE); I('s_lshl_b32 s8, s8, 7'); I('s_add_u32 s10, s10, s8')
                I('s_add_u32 s0, s10, %d' % L.WS_KV)
                I('s_cmp_lt_u32 s9, s%d' % S_NH); I('s_cselect_b32 s%d, 1, 0' % S_NH)
                I('s_lshl_b32 s8, s%d, 4' % S_IDX); I('s_add_u32 s8, s8, s%d' % S_RB); I('s_lshl_b32 s8, s8, 7'); I('s_add_u32 s1, s8, %d' % L.WS_KVZ)
                I('s_lshl_b32 s%d, s%d, 7' % (S_H0, S_IDX)); I('s_add_u32 s%d, s%d, %d' % (S_H0, S_H0, L.WS_KVZ + 0x4000)); I('v_mov_b32 v%d, 0' % ZV)
            out.append(a)
            return out
        kv_pre()
        def wpd():
            with g.capture() as a: self.wphi_dma(1, S_R0)
            return [a]
        self.pre_post = {2: wpd}
        hk = self.bhooks({4: post2, NST: post3})
        p6 = hk['post'][6]
        def post6():
            with g.capture() as a: self.poll_issue(ZV, S_H0, ZV + 1)
            return [a] + p6()
        hk['post'][6] = post6
        tl = [(c, 4, c) for c in range(3)]
        self.gemm(tiles, 2688, dms, 'k', hk, tl)
        def kb1():
            self.slot4_setup()
            I('v_mov_b32 v%d, %d' % (TMP, L_KC))
            return [I('ds_write_b32 v%d, v%d' % (TMP, ZV))]
        self.finish_stats(tl, L.LOG2E, 'k', kb1)
        I('s_cmp_eq_u32 s%d, 1' % S_CH); I('s_cbranch_scc1 L_kv_v')

    def kv_rest(self, tg, As, wr):
        I = self.I; g = self.g; PW, HO, U, VW, ZV = self.kvr
        self.with_bg(lambda: self.half_units(As, tg == 'v'), self.b_round1(), int(os.environ.get('KBG', '14')))
        for i, A in enumerate(As):
            wr += [I('ds_write_b128 v%d, %s offset:%d' % (PW + q, vr(A + 4 * q, 4), L_PHI + 16384 * i)) for q in range(2)]
        self.poll_check('z' + tg, ZV, S_H0, ZV + 1)
        for k in range(5, 9): g.extend(self.b_read(k))
        I('s_add_u32 s10, s0, 4096')
        I('s_waitcnt lgkmcnt(0)')
        I('s_barrier')
        self.stamp('bb')
        I('s_cmp_eq_u32 s%d, 0' % S_NH); I('s_cbranch_scc1 L_nounit%s' % tg)
        if 'uprio' in EXP and tg == 'v': I('s_setprio 3')
        def rd(s):
            b = 64 + 8 * (s % 4)
            for h in range(2):
                I('ds_read_b64_tr_b16 %s, v%d offset:%d' % (vr(b + 2 * h, 2), U, (16 * s + 8 * h) * 64))
                I('ds_read_b64_tr_b16 %s, v%d offset:%d' % (vr(b + 4 + 2 * h, 2), U + 1, (16 * s + 8 * h) * 64))
        D = ACC
        for s in range(3): rd(s)
        for s in range(8):
            if s + 3 < 8: rd(s + 3)
            b = 64 + 8 * (s % 4)
            I('v_mfma_f32_32x32x16_bf16 %s, %s, %s, %s' % (vr(D, 16), vr(b, 4), vr(b + 4, 4), vr(D, 16) if s else '0'))
        I('s_nop 7'); I('s_nop 4')
        for r in range(16):
            d = (r & 3) + 8 * (r >> 2)
            if r == 14: I('s_mov_b32 exec_hi, 0')
            self.U('buffer_atomic_add_f32 v%d, v%d, %s, s%d offen offset:%d' % (D + r, U + 2, sr(S_WS, 4), 0 if d < 16 else 10, (d % 16) * 256))
        I('s_mov_b64 exec, -1')
        self.g.label('L_nounit%s' % tg)
        nb = int(os.environ.get('KVB', '0'))
        bulk = self.b_dma(4)
        for k in range(5, 9): bulk += self.b_dma(k + 5)
        bulk += self.wo_dma()
        if 'kcnt' in EXP:
            I('s_barrier')
            for t in bulk[:nb]: g.extend(t)
            I('v_mov_b32 v96, 1'); I('v_mov_b32 v97, %d' % L_KC)
            I('s_waitcnt vmcnt(%d)' % sum(1 for t in bulk[:nb] for x in t if x.kind == 'dma'))
            I('s_mov_b64 exec, 1'); I('ds_add_rtn_u32 v96, v97, v96'); I('s_mov_b64 exec, -1')
            I('v_readfirstlane_b32 s8, v96'); I('s_cmp_lg_u32 s8, 7'); I('s_cbranch_scc1 L_nokf%s' % tg)
        else:
            nb = 0
            I('s_waitcnt vmcnt(0)')
            I('s_barrier')
            I('s_cmp_lg_u32 s%d, 7' % S_WAVE); I('s_cbranch_scc1 L_nokf%s' % tg)
        self.publish(1, 96).kind = 'untracked'
        self.g.label('L_nokf%s' % tg)
        self.stamp('kvdone')
        I('s_setprio 0')
        m = max(nb, 6)
        for t in bulk[nb:m]: g.extend(t)
        self.p2_enter()
        pa = self.poll_issue(P2T + 1, S_FA, P2T)
        for t in bulk[m:] + self.b_tasks(4, 5): g.extend(t)
        I('s_waitcnt lgkmcnt(0)'); I('s_nop 0', needs=[pa])
        I('s_branch L_p2')

    def kv_k(self):
        I = self.I; g = self.g; PW, HO, U, VW, ZV = self.kvr
        wr = []
        for i in range(3):
            N = 80 + 8 * i
            self.pack_k(ACC + 16 * i, N)
            wr += [I('ds_write_b128 v%d, %s offset:%d' % (HO, vr(N + 4 * q, 4), 8192 * i + 1024 * q)) for q in range(2)]
        I('s_barrier', needs=wr)
        for i in range(3): self.phi_mfma(ACC + 16 * i, 80 + 8 * i, 88 + 8 * i)
        self.kv_rest('k', [ACC, ACC + 16, ACC + 32], [])

    def kv_v(self):
        I = self.I; g = self.g; PW, HO, U, VW, ZV = self.kvr
        I('v_cndmask_b32 v%d, v%d, 0, %s' % (CS, ST + 1, sr(S_HIM, 2))); I('v_cndmask_b32 v%d, 0, 1.0, %s' % (CS + 1, sr(S_HIM, 2)))
        PV = [88, 96, 112]
        def vpath(i):
            A = ACC + 16 * i
            for j in range(0, 12, 2): I('v_pk_mul_f32 %s, %s, %s op_sel:[0,1] op_sel_hi:[1,1]' % (vr(A + j, 2), vr(A + j, 2), vr(ST, 2)))
            for j in (12, 14): I('v_pk_fma_f32 %s, %s, %s, %s op_sel:[0,0,1] op_sel_hi:[1,0,1]' % (vr(A + j, 2), vr(A + j, 2), vr(CS, 2), vr(CS, 2)))
            for j in range(8): I('v_cvt_pk_bf16_f32 v%d, v%d, v%d' % (PV[i] + j, A + 2 * j, A + 2 * j + 1))
        vpath(0); vpath(1)
        I('s_barrier')
        rd = [I('ds_read_b128 %s, v%d offset:%d' % (vr(64 + 8 * i + 4 * q, 4), HO, 8192 * i + 1024 * q)) for i in range(3) for q in range(2)]
        vpath(2)
        wr = []
        for i in range(3):
            self.phi_mfma(ACC + 16 * i, 64 + 8 * i, 88 + 8 * i)
            wr += [I('ds_write_b64 v%d, %s offset:%d' % (VW + q, vr(PV[i] + 2 * q, 2), 8192 * i), needs=rd[2 * i:2 * i + 2]) for q in range(4)]
        self.kv_rest('v', [ACC, ACC + 16, ACC + 32], wr)
    _uid = 0
    def uid(self):
        K._uid += 1
        return str(K._uid)

    def q(self):
        I = self.I; g = self.g
        self.tagbase = 'q'
        self.srd(S_W, 18, 448 * 2688)
        I('v_mul_u32_u24 v6, 2688, v6'); I('v_lshl_add_u32 v%d, v7, 4, v6' % DW)
        I('s_mul_i32 s%d, s%d, 448' % (S_WSO, S_IDX))
        dms = self.start_stream(2688)
        I('s_mul_i32 s10, s%d, 224' % S_CH); I('s_add_u32 s10, s10, %d' % WPART)
        self.read_addrs(True)
        self.pre_loop(False, 14, lambda: I('s_lshl_b32 s%d, s%d, 3' % (S_H0, S_IDX)))
        def wpd():
            with g.capture() as a: self.wphi_dma(2, S_H0)
            return [a]
        self.pre_post = {2: wpd}
        tiles = [dict(t=[((i + cc) % 4, AW + i, 56 * ((i + cc) % 4)) for cc in range(4)], cs=True) for i in range(4)]
        def post2():
            with g.capture() as a:
                I('s_mul_i32 s8, s%d, %d' % (S_CH, 4 * 1568)); I('s_add_u32 s8, s8, %d' % L_WPHI)
                self.wphi_read(4, 8, 0)
            return [a]
        tl = [(c, 4, c) for c in range(4)]
        self.gemm(tiles, 2688, dms, 'q', dict(post={4: post2}), tl)
        self.finish_stats(tl, L.LOG2E, 'q')
        for i in range(4):
            self.pack_k(ACC + 16 * i, 80 + 8 * (i & 1)); self.phi_mfma(ACC + 16 * i, 80 + 8 * (i & 1), 8 * i)
        for i in range(4): self.softmax_unit(ACC + 16 * i, sreg=124 + i)
        self.stamp('soft')
        if 'noq' in EXP: return
        T = TMP
        if 'lat' in EXP:
            I('s_lshl_b32 s8, s2, 3'); I('s_add_u32 s8, s8, s%d' % S_WAVE); I('s_lshl_b32 s8, s8, 9'); I('s_add_u32 s8, s8, %d' % (15 << 20)); I('v_mov_b32 v%d, 0' % T)
            for rep_ in range(2):
                I('buffer_load_dword v%d, v%d, %s, s8 offen offset:%d sc1' % (T + 1, T, sr(S_WS, 4), 256 * rep_)); I('s_waitcnt vmcnt(0)'); self.stamp('miss')
                I('buffer_load_dword v%d, v%d, %s, s8 offen offset:%d sc1' % (T + 1, T, sr(S_WS, 4), 256 * rep_)); I('s_waitcnt vmcnt(0)'); self.stamp('l2hit')
                I('buffer_store_dword v%d, v%d, %s, s8 offen offset:%d sc1' % (T + 1, T, sr(S_WS, 4), 128 + 256 * rep_)); I('s_waitcnt vmcnt(0)'); self.stamp('st')
            self.nst = 15
        if 'qpf' in EXP:
            I('s_and_b32 s8, s2, 7'); I('s_lshl_b32 s8, s8, 2'); I('s_bfe_u32 s9, s2, 0x20003'); I('s_add_u32 s8, s8, s9')
            I('s_lshl_b32 s9, s8, 12'); I('s_lshl_b32 s10, s%d, 8' % S_WAVE); I('s_add_u32 s9, s9, s10'); I('s_add_u32 s11, s9, %d' % L.WS_FLAG)
            I('v_and_b32 v%d, 1, v%d' % (T, VLANE)); I('v_lshlrev_b32 v%d, 11, v%d' % (T, T)); I('v_and_b32 v%d, 2, v%d' % (T + 1, VLANE)); I('v_lshl_add_u32 v%d, v%d, 6, v%d' % (T, T + 1, T))
            I('s_mul_i32 s8, s8, 224'); I('s_mul_i32 s9, s%d, 14' % S_WAVE); I('s_add_u32 s8, s8, s9'); I('s_lshl_b32 s10, s8, 10'); I('s_add_u32 s9, s10, %d' % (112 * 1024))
            I('v_lshlrev_b32 v%d, 7, v%d' % (T + 2, VLANE)); I('v_add_u32 v%d, 8192, v%d' % (T + 3, T + 2))
            self.g.label('L_qpf')
            self.U('buffer_load_dword v%d, v%d, %s, s11 offen sc1' % (T + 1, T, sr(S_WS, 4))); self.U('s_waitcnt vmcnt(0)')
            I('v_cmp_ne_u32 vcc, s%d, v%d' % (S_NONCE, T + 1)); I('s_nop 1'); I('s_cbranch_vccz L_qpfd')
            self.spin_tail('L_qpf', QSL)
            self.g.label('L_qpfd')
            for so in (10, 9): I('buffer_load_dword a100, v%d, %s, s%d offen' % (T + 2, sr(S_WS, 4), so)).dst = set()
            I('s_mov_b32 exec_hi, 0xffff')
            for so in (10, 9): I('buffer_load_dword a100, v%d, %s, s%d offen' % (T + 3, sr(S_WS, 4), so)).dst = set()
            I('s_mov_b64 exec, -1')
        if ATOM:
            T = TMP
            I('v_lshrrev_b32 v%d, 4, v%d' % (T, VLANE)); I('s_lshl_b32 s8, s%d, 1' % S_IDX); I('v_add_u32 v%d, s8, v%d' % (T, T))
            I('s_mul_i32 s8, s%d, 3' % S_IDX); I('s_add_u32 s8, s8, 2'); I('v_min_u32 v%d, s8, v%d' % (T, T))
            I('v_and_b32 v%d, 15, v%d' % (T + 1, VLANE)); I('v_lshl_add_u32 v%d, v%d, 4, v%d' % (T, T, T + 1)); I('v_lshlrev_b32 v%d, 7, v%d' % (T, T))
            I('s_mov_b32 s11, %d' % L.WS_KVZ)
            I('v_lshrrev_b32 v%d, 3, v%d' % (T + 2, VLANE)); I('v_and_b32 v%d, 7, v%d' % (T + 3, VLANE)); I('v_lshlrev_b32 v%d, 4, v%d' % (T + 4, T + 3)); I('v_lshl_add_u32 v%d, v%d, 8, v%d' % (T + 4, T + 2, T + 4))
            I('s_add_u32 s8, s%d, s%d' % (S_H0, S_WAVE)); I('s_lshl_b32 s8, s8, 13'); I('s_add_u32 s0, s8, %d' % L.WS_KV); I('s_add_u32 s1, s0, 4096')
            I('v_lshrrev_b32 v%d, 1, v%d' % (T + 5, T + 3)); I('v_lshlrev_b32 v%d, 10, v%d' % (T + 5, T + 5)); I('v_and_b32 v%d, 1, v%d' % (T + 3, T + 3)); I('v_lshl_add_u32 v%d, v%d, 3, v%d' % (T + 5, T + 3, T + 5))
            I('s_lshl_b32 s8, s%d, 12' % S_WAVE); I('v_add_u32 v%d, s8, v%d' % (T + 5, T + 5))
            WA4 = 112
            for i in range(4):
                a, b, c_ = T + 6, T + 7, T + 3
                I('v_add_u32 v%d, %d, v%d' % (a, 8 * i, T + 2))
                I('v_cmp_lt_u32 vcc, 13, v%d' % a); I('v_subrev_u32 v%d, 14, v%d' % (b, a)); I('v_cndmask_b32 v%d, v%d, v%d, vcc' % (b, a, b)); I('v_cndmask_b32 v%d, 0, 4, vcc' % c_)
                if i == 3:
                    I('v_cmp_lt_u32 vcc, 27, v%d' % a); I('v_and_b32 v%d, 1, v%d' % (T + 8, a)); I('v_lshlrev_b32 v%d, 2, v%d' % (T + 8, T + 8)); I('v_cndmask_b32 v%d, v%d, v%d, vcc' % (c_, c_, T + 8))
                    I('v_bfe_u32 v%d, v%d, 1, 1' % (T + 8, a)); I('v_add_u32 v%d, 14, v%d' % (T + 8, T + 8)); I('v_cndmask_b32 v%d, v%d, v%d, vcc' % (b, b, T + 8))
                I('v_and_or_b32 v%d, v%d, 3, v%d' % (c_, b, c_)); I('v_lshrrev_b32 v%d, 2, v%d' % (b, b)); I('v_lshl_add_u32 v%d, v%d, 3, v%d' % (c_, b, c_))
                I('v_lshl_add_u32 v%d, v%d, 4, v%d' % (WA4 + i, c_, T + 5))
            I('s_lshl_b32 s8, s%d, 14' % S_CH); I('v_add_u32 v%d, s8, v%d' % (T + 2, VL16))
            self.q_scalars()
            I('s_cmp_lg_u32 s%d, 0' % S_WAVE); I('s_cbranch_scc1 L_polldkv')
            self.g.label('L_pollkv')
            self.U('buffer_load_dword v64, v%d, %s, s11 offen sc1' % (T, sr(S_WS, 4))); self.U('s_waitcnt vmcnt(0)')
            I('v_cmp_ne_u32 vcc, s%d, v64' % S_NONCE); I('s_nop 1'); I('s_cbranch_vccz L_polldkv')
            self.spin_tail('L_pollkv', QSL)
            self.g.label('L_polldkv')
            I('s_barrier')
            self.stamp('kvok')
            for i in range(8):
                I('buffer_load_dwordx4 %s, v%d, %s, s%d offen offset:%d sc1' % (vr(64 + 4 * i, 4), T + 4, sr(S_WS, 4), (i >> 1) & 1, (i & 1) * 2048 + (i >> 2) * 128))
            wr = []
            for i in range(8):
                I('v_cvt_pk_bf16_f32 v%d, v%d, v%d' % (64 + 4 * i, 64 + 4 * i, 65 + 4 * i)); I('v_cvt_pk_bf16_f32 v%d, v%d, v%d' % (65 + 4 * i, 66 + 4 * i, 67 + 4 * i))
                wr.append(I('ds_write_b64 v%d, %s offset:%d' % (WA4 + (i & 3), vr(64 + 4 * i, 2), 512 * (i >> 2))))
            self.stamp('kvld')
            qbar = lambda: (I('s_barrier', needs=wr), [I('ds_read_b128 %s, v%d offset:%d' % (ar(32 + 16 * i + 4 * s, 4), T + 2, 4096 * i + 1024 * s)) for i in range(4) for s in range(4)])
        else:
            I('v_bfe_u32 v%d, v%d, 3, 2' % (T + 2, VLANE)); I('v_lshlrev_b32 v%d, 2, v%d' % (T + 2, T + 2)); I('v_and_or_b32 v%d, v%d, 3, v%d' % (T + 2, VLANE, T + 2))
            I('v_bfe_u32 v%d, v%d, 2, 1' % (T + 3, VLANE)); I('v_mul_u32_u24 v%d, 14, v%d' % (T + 3, T + 3)); I('v_add_u32 v%d, v%d, v%d' % (T + 3, T + 3, T + 2))
            I('v_cmp_gt_u32 vcc, 14, v%d' % (T + 2)); I('v_cndmask_b32 v%d, 28, v%d, vcc' % (T + 3, T + 3))
            I('v_and_b32 v%d, 32, v%d' % (T + 2, VLANE)); I('v_lshlrev_b32 v%d, 6, v%d' % (T + 2, T + 2)); I('v_lshl_add_u32 v%d, v%d, 4, v%d' % (T + 2, T + 3, T + 2))
            I('s_lshl_b32 s8, s%d, 14' % S_CH); I('v_add_u32 v%d, s8, v%d' % (T + 2, T + 2))
            I('v_and_b32 v%d, 15, v%d' % (T, VLANE)); I('v_lshlrev_b32 v%d, 7, v%d' % (T, T))
            I('v_and_b32 v%d, 7, v%d' % (T + 3, VLANE)); I('v_lshlrev_b32 v%d, 7, v%d' % (T + 3, T + 3))
            I('s_cmp_lg_u32 s%d, 0' % S_CH); I('s_cbranch_scc1 L_noreduce')
            I('s_lshl_b32 s8, s%d, 1' % S_RB); I('s_add_u32 s8, s8, s%d' % S_IDX); I('s_lshl_b32 s8, s8, 2'); I('s_add_u32 s11, s8, s%d' % S_RT)
            I('s_lshl_b32 s0, s11, 14'); I('s_add_u32 s0, s0, %d' % L.WS_SL)
            I('s_mov_b32 s8, 0x22111000'); I('s_mov_b32 s9, 0x55544332'); I('s_lshl_b32 s10, s%d, 2' % S_RB); I('s_lshr_b64 s[8:9], s[8:9], s10'); I('s_and_b32 s8, s8, 15')
            I('s_lshl_b32 s8, s8, 11'); I('s_add_u32 s1, s8, %d' % L.WS_KVZ)
            self.g.label('L_red_poll')
            self.U('buffer_load_dword v%d, v%d, %s, s1 offen sc1' % (T + 1, T, sr(S_WS, 4))); self.U('s_waitcnt vmcnt(0)')
            I('v_cmp_ne_u32 vcc, s%d, v%d' % (S_NONCE, T + 1)); I('s_nop 1'); I('s_cbranch_vccz L_red_load')
            self.spin_tail('L_red_poll', QSL)
            self.g.label('L_red_load')
            R = 64
            def src(i): return (64 + 4 * i) if i < 15 else T + 4
            for i in range(16):
                if i % 4 == 0: I('s_add_u32 s8, s0, %d' % (1024 * i))
                I('buffer_load_dwordx4 %s, v%d, %s, s8 offen offset:%d' % (vr(src(i), 4), VL16, sr(S_WS, 4), 1024 * (i % 4)))
            I('s_lshl_b32 s8, s11, 9'); I('s_add_u32 s8, s8, %d' % L.WS_KF); I('s_lshl_b32 s9, s11, 7'); I('s_add_u32 s9, s9, %d' % L.WS_KVD)
            for i in range(2, 16):
                for j in (0, 2): I('v_pk_add_f32 %s, %s, %s' % (vr(R + 4 * (i & 1) + j, 2), vr(R + 4 * (i & 1) + j, 2), vr(src(i) + j, 2)))
            for j in (0, 2): I('v_pk_add_f32 %s, %s, %s' % (vr(R + j, 2), vr(R + j, 2), vr(R + 4 + j, 2)))
            I('v_cvt_pk_bf16_f32 v68, v64, v65'); I('v_cvt_pk_bf16_f32 v69, v66, v67')
            I('v_mov_b32 v72, v68'); I('v_mov_b32 v73, v69')
            I('v_permlane32_swap_b32 v72, v70'); I('v_permlane32_swap_b32 v73, v71')
            I('s_mov_b32 exec_hi, 0')
            I('buffer_store_dwordx4 v[68:71], v%d, %s, s8 offen sc1' % (VL16, sr(S_WS, 4)))
            I('s_mov_b64 exec, -1')
            self.stamp('red')
            I('s_waitcnt vmcnt(0)')
            self.publish(9, 72).kind = 'untracked'
            self.g.label('L_noreduce')
            I('s_add_u32 s10, s%d, s%d' % (S_H0, S_WAVE)); I('s_lshl_b32 s11, s10, 10'); I('s_add_u32 s11, s11, %d' % L.WS_KVD)
            I('s_lshl_b32 s10, s10, 12'); I('s_add_u32 s10, s10, %d' % L.WS_KF); I('s_lshl_b32 m0, s%d, 12' % S_WAVE)
            self.g.label('L_pollkv')
            self.U('buffer_load_dword v64, v%d, %s, s11 offen sc1' % (T + 3, sr(S_WS, 4))); self.U('s_waitcnt vmcnt(0)')
            I('v_cmp_ne_u32 vcc, s%d, v64' % S_NONCE); I('s_nop 1'); I('s_cbranch_vccz L_polldkv')
            self.spin_tail('L_pollkv', QSL)
            self.g.label('L_polldkv')
            self.nst = 7
            self.stamp('kvok')
            dm = [I('buffer_load_dwordx4 v%d, %s, s10 offen offset:%d lds' % (VL16, sr(S_WS, 4), 1024 * i)) for i in range(4)]
            qbar = lambda: (I('s_barrier', needs=dm), [I('ds_read_b128 %s, v%d offset:%d' % (ar(32 + 16 * i + 4 * sf, 4), T + 2, 4096 * i + 512 * sf)) for i in range(4) for sf in range(4)])
        qbar()
        N = [64, 80, ACC, ACC + 16]; O = 96
        def ost(f): I('buffer_store_dwordx4 %s, v%d, %s, s%d offen offset:%d sc1' % (vr(O + 4 * f, 4), VL16, sr(S_WS, 4), 20 if f < 4 else 21, (f % 4) * 1024))
        def mm(i):
            for s in range(4):
                I('v_mfma_f32_32x32x16_bf16 %s, %s, %s, %s' % (vr(N[i], 16), ar(32 + 16 * i + 4 * s, 4), vr(ACC + 16 * i + 4 * s, 4), vr(N[i], 16) if s else '0'))
        done = 0
        mm(0); mm(1)
        for i in range(4):
            with g.capture() as fin: self.o_fin(N[i], O + 7 * i, 124 + i)
            if i + 2 < 4:
                with g.capture() as m4: mm(i + 2)
                k = len(fin) // 4
                for j in range(4): g.extend([m4[j]] + fin[j * k:(j + 1) * k if j < 3 else None])
            else: g.extend(fin)
            while 4 * (done + 1) <= 7 * (i + 1): ost(done); done += 1
        self.stamp('ocomp')
        I('s_waitcnt vmcnt(0)')
        self.publish(22, TMP)
        self.stamp('opub')
        I('s_waitcnt vmcnt(0)')
    def q_scalars(self):
        I = self.I
        I('s_lshl_b32 s8, s%d, 2' % S_RB); I('s_add_u32 s10, s8, s%d' % S_RT); I('s_mul_i32 s8, s10, 28'); I('s_mul_i32 s9, s%d, 14' % S_IDX); I('s_add_u32 s8, s8, s9')
        I('s_mul_i32 s9, s%d, 7' % S_CH); I('s_add_u32 s8, s8, s9'); I('s_lshl_b32 s8, s8, 10'); I('s_add_u32 s20, s8, %d' % L.WS_O); I('s_add_u32 s21, s20, 4096')
        I('s_lshl_b32 s8, s10, 1'); I('s_add_u32 s8, s8, s%d' % S_IDX)
        I('s_lshl_b32 s8, s8, 1'); I('s_add_u32 s8, s8, s%d' % S_CH); I('s_lshl_b32 s8, s8, 7'); I('s_add_u32 s22, s8, %d' % L.WS_FO)
    def o_fin(self, N, O, sreg):
        I = self.I; t = TMP + 8
        I('v_fmac_f32 v%d, %s, v%d' % (N + 14, f32(1e-6), sreg)); I('v_rcp_f32 v%d, v%d' % (t, N + 14))
        for j in range(14): I('v_mul_f32 v%d, v%d, v%d' % (N + j, N + j, t))
        for j in range(7): I('v_cvt_pk_bf16_f32 v%d, v%d, v%d' % (O + j, N + 2 * j, N + 2 * j + 1))

    def p2_pre(self):
        I = self.I; g = self.g; A, B, C = 64, 65, 66; out = []
        def st(i, r): I('v_accvgpr_write_b32 a%d, v%d' % (STASH + i, r))
        with g.capture() as a:
            I('s_lshl_b32 s8, s%d, 1' % S_RG)
            I('s_mul_i32 s%d, s8, 112' % S_A0); I('s_mul_i32 s9, s%d, 14' % S_WAVE); I('s_add_u32 s%d, s%d, s9' % (S_A0, S_A0)); I('s_lshl_b32 s%d, s%d, 10' % (S_A0, S_A0))
            I('s_add_u32 s%d, s%d, %d' % (S_A1, S_A0, 112 * 1024))
            I('s_mul_i32 s%d, s8, 28' % S_OSO); I('s_mul_i32 s9, s%d, 7' % S_WAVE); I('s_add_u32 s%d, s%d, s9' % (S_OSO, S_OSO)); I('s_lshl_b32 s%d, s%d, 10' % (S_OSO, S_OSO))
            I('s_add_u32 s%d, s%d, %d' % (S_OSO, S_OSO, L.WS_O))
            I('v_lshrrev_b32 v%d, 3, v%d' % (A, VLANE)); I('v_mul_u32_u24 v%d, 896, v%d' % (A, A)); I('v_and_b32 v%d, 7, v%d' % (B, VLANE)); I('v_lshl_add_u32 v%d, v%d, 4, v%d' % (A, B, A))
            I('v_lshlrev_b32 v%d, 7, v%d' % (B, B)); st(1, A); st(2, B)
        out.append(a)
        with g.capture() as a:
            I('s_lshl_b32 s9, s%d, 3' % S_RG); I('s_add_u32 s9, s9, s%d' % S_WAVE); I('s_mul_i32 s9, s9, %d' % (8 * 896)); I('s_lshl_b32 s8, s%d, 7' % S_CG); I('s_add_u32 s%d, s9, s8' % S_XO)
            I('s_lshl_b32 s8, s%d, 12' % S_RG); I('s_lshl_b32 s9, s%d, 8' % S_WAVE); I('s_add_u32 s9, s9, s8'); I('s_add_u32 s%d, s9, %d' % (S_FA, L.WS_FLAG))
            I('s_lshl_b32 s8, s%d, 10' % S_RG); I('s_add_u32 s%d, s8, %d' % (S_FO, L.WS_FO))
            I('v_and_b32 v%d, 1, v%d' % (A, VLANE)); I('v_lshlrev_b32 v%d, 11, v%d' % (A, A)); I('v_and_b32 v%d, 2, v%d' % (B, VLANE)); I('v_lshl_add_u32 v%d, v%d, 6, v%d' % (A, B, A)); st(0, A)
        out.append(a)
        with g.capture() as a:
            I('v_lshrrev_b32 v%d, 5, v%d' % (C, VLANE)); I('v_bfe_u32 v%d, v%d, 3, 1' % (A, VLANE)); I('v_xor_b32 v%d, v%d, v%d' % (A, A, C))
            I('v_mul_u32_u24 v%d, 14, v%d' % (B, C)); I('v_bfe_u32 v%d, v%d, 2, 2' % (C, VLANE)); I('v_add_u32 v%d, v%d, v%d' % (B, B, C))
            I('v_lshlrev_b32 v%d, 7, v%d' % (B, B)); I('v_lshl_add_u32 v%d, v%d, 6, v%d' % (A, A, B))
            I('v_and_b32 v%d, 3, v%d' % (B, VLANE)); I('v_lshl_add_u32 v%d, v%d, 3, v%d' % (A, B, A))
            I('v_and_b32 v%d, 16, v%d' % (B, VLANE)); I('v_lshl_add_u32 v%d, v%d, 1, v%d' % (A, B, A))
            I('s_and_b32 s9, s%d, 1' % S_WAVE); I('s_lshl_b32 s9, s9, 6'); I('v_xor_b32 v%d, s9, v%d' % (A, A))
            I('s_mul_i32 s9, s%d, %d' % (S_CH, 224 * 128)); I('v_add_u32 v%d, s9, v%d' % (A, A))
            I('v_xor_b32 v%d, 64, v%d' % (B, A)); st(3, A); st(4, B)
            I('v_add_u32 v%d, %d, v%d' % (B, 14 * 128, B)); I('v_and_b32 v%d, 8, v%d' % (C, VLANE)); I('v_cmp_eq_u32 vcc, 0, v%d' % C); I('v_cndmask_b32 v%d, v%d, v%d, vcc' % (B, B, A)); st(5, B)
        out.append(a)
        return out
    def p2_enter(self):
        T = P2T
        for i, r in enumerate((T + 1, T + 2, T + 3, T + 8, T + 9, T + 10)): self.I('v_accvgpr_read_b32 v%d, a%d' % (r, STASH + i))

    def phase2(self):
        I = self.I; g = self.g; T = P2T
        XO, XR, WA = T + 2, T + 4, T + 8
        self.nst = 7
        if 'start' in EXP or 'stg' in EXP: self.nst = 15
        self.poll_check('A', T + 1, S_FA, T)
        self.stamp('hok')
        RING = 64; NR = 15
        self.bdma = {k: [] for k in range(14)}
        def load(n):
            k, a = divmod(n, 2); r = RING + 4 * (n % NR); base = S_A1 if a else S_A0
            I('buffer_load_dwordx4 %s, v%d, %s, s%d offen offset:%d' % (vr(r, 4), VL16, sr(S_WS, 4), base, (k % 4) * 1024))
            if k % 4 == 3: I('s_add_u32 s%d, s%d, 4096' % (base, base))
        def wo_read(kk, dst):
            G, f = divmod(kk, 7)
            for pp in range(2):
                p = 4 * f + 2 * pp; hl = 4 * G + p // 7; i = p % 7
                areg = WA + 2 if i == 6 else WA + (i & 1)
                I('ds_read_b64_tr_b16 %s, v%d offset:%d' % (ar(dst + 2 * pp, 2), areg, L_WO + (28 * hl + 2 * i) * 128))
        EWB, SWB, ORD, GRD, SRD_ = 124, 125, 126, 127, 139
        def tail_addr():
            A, B = 142, 143
            I('v_and_b32 v%d, 31, v%d' % (A, VLANE)); I('v_lshlrev_b32 v%d, 7, v%d' % (A, A)); I('v_and_b32 v%d, 7, v%d' % (B, VLANE)); I('v_lshl_add_u32 v%d, v%d, 4, v%d' % (A, B, A))
            I('v_lshrrev_b32 v%d, 5, v%d' % (B, VLANE)); I('v_lshl_add_u32 v%d, v%d, 3, v%d' % (A, B, A))
            I('s_lshl_b32 s8, s%d, 13' % S_WAVE); I('s_add_u32 s8, s8, %d' % L_XG); I('v_add_u32 v%d, s8, v%d' % (EWB, A))
            I('s_lshl_b32 s8, s%d, 13' % S_CH); I('s_bfe_u32 s9, s%d, 0x10001' % S_WAVE); I('s_lshl_b32 s10, s9, 12'); I('s_add_u32 s8, s8, s10'); I('s_add_u32 s8, s8, %d' % L_XS)
            I('v_add_u32 v%d, s8, v%d' % (SWB, A)); I('s_and_b32 s8, s%d, 1' % S_WAVE); I('s_lshl_b32 s8, s8, 6'); I('v_xor_b32 v%d, s8, v%d' % (SWB, SWB))
            I('s_mul_i32 s9, s9, 28'); I('s_mul_i32 s8, s%d, 14' % S_CH); I('s_add_u32 s9, s9, s8'); I('s_lshl_b32 s9, s9, 10')
            I('v_add_u32 v%d, s9, v%d' % (ORD, VL16))
            I('v_lshrrev_b32 v%d, 3, v%d' % (A, VLANE)); I('v_and_b32 v%d, 7, v%d' % (B, VLANE)); I('v_xor_b32 v%d, v%d, v%d' % (B, B, A))
            I('v_lshlrev_b32 v%d, 7, v%d' % (A, A)); I('v_lshl_add_u32 v%d, v%d, 4, v%d' % (A, B, A)); I('s_lshl_b32 s8, s%d, 10' % S_WAVE); I('s_add_u32 s8, s8, %d' % L_XG)
            I('v_add_u32 v%d, s8, v%d' % (GRD, A)); I('v_add_u32 v%d, %d, v%d' % (SRD_, L_XS - L_XG, GRD))
            I('s_mul_i32 s23, s%d, 7168' % S_WAVE); I('v_mov_b32 v142, %d' % L_CNT)
            I('s_mov_b32 s10, 0x00003f80'); I('s_mov_b32 s11, 0x3f800000'); I('s_mov_b32 s26, %s' % f32(-1.0 / L.LOG2E)); I('s_mov_b32 s27, s26')
        for n in range(NR): load(n)
        nl = NR
        for ki in range(14):
            for a in range(2):
                n = 2 * ki + a; r = RING + 4 * (n % NR)
                for b in range(2):
                    I('v_mfma_f32_32x32x16_bf16 %s, %s, %s, %s' % (vr(16 * (2 * a + b), 16), ar(8 * ki + 4 * b, 4), vr(r, 4), vr(16 * (2 * a + b), 16) if ki else '0'))
                if nl < 28:
                    load(nl); nl += 1
                    if nl == 28: I('buffer_load_dwordx4 %s, v%d, %s, s100 offen' % (vr(XR, 4), XO, sr(S_X, 4)))
            if ki == 0:
                for k in range(9, 14): g.extend(self.b_read(k))
            if ki == 2: tail_addr()
            if ki == 12:
                I('s_cmp_lg_u32 s%d, 0' % S_WAVE); I('s_cbranch_scc1 L_noe1')
                self.U('buffer_load_dword v%d, v%d, %s, s99 offen sc1' % (T, T + 3, sr(S_WS, 4)))
                self.g.label('L_noe1')
            if ki == 6: I('s_waitcnt lgkmcnt(0)'); I('s_barrier')
            if ki >= 7:
                for kk in (2 * (ki - 7), 2 * (ki - 7) + 1): wo_read(kk, 4 * kk)
        self.stamp('gdone')
        EW = 64
        wr = []
        for b in range(2):
            for Q in range(4):
                I('v_xor_b32 v%d, %d, v%d' % (EW + 4 * b + Q, 16 * (4 * b + Q), EWB))
                for a in range(2):
                    t = 16 * (2 * a + b)
                    for j in (2 * Q, 2 * Q + 1): I('v_cvt_pk_bf16_f32 v%d, v%d, v%d' % (t + j, t + 2 * j, t + 2 * j + 1))
                    wr.append(I('ds_write_b64 v%d, %s offset:%d' % (EW + 4 * b + Q, vr(t + 2 * Q, 2), 4096 * a)))
        I('s_cmp_lg_u32 s%d, 0' % S_WAVE); I('s_cbranch_scc1 L_noe2')
        self.U('s_waitcnt vmcnt(0)')
        I('v_cmp_ne_u32 vcc, s%d, v%d' % (S_NONCE, T)); I('s_nop 1'); I('s_cmp_eq_u64 vcc, 0'); I('s_cselect_b32 s8, 1, 0'); I('v_mov_b32 v143, s8')
        self.U('ds_write_b32 v142, v143')
        self.g.label('L_noe2')
        I('s_waitcnt lgkmcnt(0)')
        I('s_barrier')
        self.stamp('e2')
        I('ds_read_b32 v143, v142')
        for src in range(8): I('ds_read_b128 %s, v%d offset:%d' % (vr(8 + 4 * src, 4), GRD, 8192 * src))
        for j in range(4): I('v_lshlrev_b32 v%d, 16, v%d' % (76 + 2 * j, XR + j)); I('v_and_b32 v%d, s%d, v%d' % (77 + 2 * j, S_MASK, XR + j))
        I('s_add_u32 s24, s%d, 4096' % S_OSO)
        I('v_readfirstlane_b32 s9, v143')
        def odma():
            for i in range(7):
                if i == 0 or i == 4: I('s_add_u32 m0, s23, %d' % (L_O + 1024 * i)); I('s_nop 0')
                self.U('buffer_load_dwordx4 v%d, %s, s%d offen offset:%d lds' % (VL16, sr(S_WS, 4), S_OSO if i < 4 else 24, 1024 * (i % 4)))
        I('s_cmp_eq_u32 s9, 0'); I('s_cbranch_scc1 L_olate1')
        odma()
        self.g.label('L_olate1')
        for src in range(8):
            for j in range(4):
                I('v_dot2_f32_bf16 v%d, v%d, s10, %s' % (2 * j, 8 + 4 * src + j, 'v%d' % (2 * j) if src else '0'))
                I('v_dot2_f32_bf16 v%d, v%d, s11, %s' % (2 * j + 1, 8 + 4 * src + j, 'v%d' % (2 * j + 1) if src else '0'))
        I('s_cmp_lg_u32 s9, 0'); I('s_cbranch_scc1 L_oearly')
        I('s_cmp_lg_u32 s%d, %d' % (S_WAVE, 9 if 'noq' in EXP else 0)); I('s_cbranch_scc1 L_polldO')
        self.g.label('L_pollO')
        self.U('buffer_load_dword v%d, v%d, %s, s99 offen sc1' % (WA, T + 3, sr(S_WS, 4))); self.U('s_waitcnt vmcnt(0)')
        I('v_cmp_ne_u32 vcc, s%d, v%d' % (S_NONCE, WA)); I('s_nop 1'); I('s_cbranch_vccz L_polldO')
        self.spin_tail('L_pollO', 3)
        self.g.label('L_polldO')
        I('s_barrier')
        odma()
        self.g.label('L_oearly')
        self.stamp('ook')
        for j in range(8): I('v_exp_f32 v%d, v%d' % (8 + j, j))
        SW = 72
        for q in range(4): I('v_xor_b32 v%d, %d, v%d' % (SW + q, 16 * q, SWB))
        for j in range(0, 8, 2): I('v_pk_add_f32 %s, %s, 1.0 op_sel_hi:[1,0]' % (vr(8 + j, 2), vr(8 + j, 2)))
        for j in range(8): I('v_rcp_f32 v%d, v%d' % (8 + j, 8 + j))
        for j in range(0, 8, 2): I('v_pk_mul_f32 %s, %s, s[26:27]' % (vr(j, 2), vr(j, 2)))
        for j in range(0, 8, 2): I('v_pk_mul_f32 %s, %s, %s' % (vr(j, 2), vr(j, 2), vr(8 + j, 2)))
        I('s_waitcnt vmcnt(0)')
        I('s_barrier')
        self.stamp('e3')
        OF = 84; SA = 48
        def ord_(kk): I('ds_read_b128 %s, v%d offset:%d' % (vr(OF + 4 * (kk % 10), 4), ORD, 1024 * kk))
        for kk in range(8): ord_(kk)
        for kk in range(14):
            I('v_mfma_f32_32x32x16_bf16 %s, %s, %s, %s' % (vr(SA, 16), ar(4 * kk, 4), vr(OF + 4 * (kk % 10), 4), vr(SA, 16) if kk else '0'))
            if kk + 8 < 14: ord_(kk + 8)
        wr = []
        for q in range(4):
            for j in (2 * q, 2 * q + 1): I('v_cvt_pk_bf16_f32 v%d, v%d, v%d' % (SA + j, SA + 2 * j, SA + 2 * j + 1))
            wr.append(I('ds_write_b64 v%d, %s' % (SW + q, vr(SA + 2 * q, 2))))
        I('s_barrier', needs=wr)
        for h in range(2): I('ds_read_b128 %s, v%d offset:%d' % (vr(16 + 4 * h, 4), SRD_, 8192 * h))
        for h in range(2):
            for j in range(4):
                I('v_dot2_f32_bf16 v%d, v%d, s10, %s' % (24 + 2 * j, 16 + 4 * h + j, 'v%d' % (24 + 2 * j) if h else '0'))
                I('v_dot2_f32_bf16 v%d, v%d, s11, %s' % (25 + 2 * j, 16 + 4 * h + j, 'v%d' % (25 + 2 * j) if h else '0'))
        for j in range(0, 8, 2): I('v_pk_fma_f32 %s, %s, %s, %s' % (vr(j, 2), vr(j, 2), vr(24 + j, 2), vr(76 + j, 2)))
        for j in range(4): I('v_cvt_pk_bf16_f32 v%d, v%d, v%d' % (40 + j, 2 * j, 2 * j + 1))
        I('buffer_store_dwordx4 v[40:43], v%d, %s, s100 offen%s' % (XO, sr(S_OUT, 4), os.environ.get('OUTF', '')))
        self.stamp('final')

    def xfilter(self, body):
        out = []
        for x in body:
            if 'nosc1st' in EXP and x.op.startswith('buffer_store_dwordx4') and 'sc1' in x.text and 'v141' in x.text: x.text = x.text.replace(' sc1', '')
            if 'nost' in EXP and x.op.startswith('buffer_store_dwordx4') and 'v141' in x.text: x.text = 's_nop 0'
            if 'nob' in EXP and x.kind == 'dma' and 's[52:55]' in x.text: x.text = 's_nop 0'
            if 'sysp' in EXP and x.op == 'buffer_load_dword' and x.text.endswith('sc1') and 's[64:67]' in x.text: x.text = x.text.replace(' sc1', ' sc0 sc1')
            if 'nowo' in EXP and x.kind == 'dma' and 's[48:51]' in x.text: x.text = 's_nop 0'
            if 'noatom' in EXP and 'atomic' in x.op: x.text = 's_nop 0'
            if 'ntst' in EXP and x.op.startswith('buffer_store_dwordx4') and 'sc1' in x.text and 'v141' in x.text: x.text = x.text.replace(' sc1', ' sc0 sc1')
            out.append(x)
        return out
    def path(self, prefix, fn, label, keys):
        self.keys = keys
        if 'stamp' in self.__dict__: del self.__dict__['stamp']
        with self.g.capture() as body:
            if label: self.g.label(label)
            fn()
        self.xfilter(body)
        allp = [x for p in prefix for x in p]
        for x in allp: x.done = False
        full = self.g.finish(allp + body)
        if label:
            idx = next(i for i, x in enumerate(full) if x.kind == 'label' and x.text == label + ':')
            return full[idx:], body
        return full, body

    def build(self):
        I = self.I
        with self.g.capture() as pro:
            self.prologue()
            I('s_cmp_eq_u32 s%d, 1' % S_TYPE); I('s_cbranch_scc1 L_kv'); I('s_cmp_eq_u32 s%d, 2' % S_TYPE); I('s_cbranch_scc1 L_q')
        n0 = self.nst
        def endp():
            self.write_stamps(); I('s_endpgm')
        def ffn():
            self.ffn()
        out, _ = self.path([pro], ffn, None, ['0'])
        self.nst = n0
        code, kvc = self.path([pro], self.kv_common, 'L_kv', ['10', '11'])
        n1 = self.nst
        save = (dict(self.bdma), dict(self.bread))
        def kk():
            self.kv_k()
        def kvv():
            self.kv_v()
        c2, _ = self.path([pro, kvc], kk, 'L_kv_k', ['10'])
        self.nst = n1; self.bdma, self.bread = dict(save[0]), dict(save[1])
        c3, _ = self.path([pro, kvc], kvv, 'L_kv_v', ['11'])
        out += code + c2 + c3
        self.nst = n0
        def qq():
            self.q(); endp()
        c4, _ = self.path([pro], qq, 'L_q', ['2'])
        out += c4
        def p2():
            self.phase2(); endp()
        if 'nop2' not in EXP:
            c5, _ = self.path([], p2, 'L_p2', ['0', '10', '11'])
            out += c5
        with self.g.capture() as tail:
            self.g.label('L_end'); I('s_endpgm')
        return out + tail

HEADER = open('cdna_kernels/%s.s.ref' % NAME).read().split('; Override launch')[0]
def wrap(code, launch):
    return HEADER + launch + '''
.amdgcn_target "amdgcn-amd-amdhsa--gfx950"
.text
.globl %(n)s_kernel
.p2align 8
.type %(n)s_kernel,@function
%(n)s_kernel:
%(body)s
.section .rodata,"a"
.p2align 6
.amdhsa_kernel %(n)s_kernel
  .amdhsa_next_free_vgpr 256
  .amdhsa_next_free_sgpr 102
  .amdhsa_accum_offset %(nv)d
  .amdhsa_group_segment_fixed_size 0
  .amdhsa_kernarg_size 80
  .amdhsa_user_sgpr_count 2
  .amdhsa_user_sgpr_kernarg_segment_ptr 1
  .amdhsa_system_sgpr_workgroup_id_x 1
.end_amdhsa_kernel
''' % dict(n=NAME, body=render(code), nv=NV)

if __name__ == '__main__':
    stamps = '--stamps' in sys.argv
    k = K(stamps)
    code = k.build()
    open(sys.argv[1], 'w').write(wrap(code, '; @launch grid=(256,1,1) block=(512,1,1) lds=163840'))
    json.dump({t: [d.get(i, '') for i in range(16)] for t, d in k.names.items()} if stamps else {}, open(sys.argv[1][:-2] + '.json', 'w'))
    print('instructions', len(code), 'nops', sum(1 for i in code if i.kind == 'nop'))
```

```python
import sys, json, struct, os
from asmgen import *
import layout as L
EXP = os.environ.get('EXP', '').split(',')
SLEEP = int(os.environ.get('SLEEP', '4'))
BCHK = int(os.environ.get('BCHK', '7'))
W1K = int(os.environ.get('W1K', '3'))
PF0 = int(os.environ.get('PF0', '2'))
QSL = int(os.environ.get('QSL', '6'))
NST = int(os.environ.get('NST', '3')); MST = int(os.environ.get('MST', '1'))
ATOM = True
S_FA, S_FO, S_XO, S_SC, S_C1, S_C2, S_C3 = 98, 99, 100, 11, 96, 97, 25
RA, RB_ = [int(x) for x in os.environ.get('R1', '1,2').split(',')]
RC, RD = [int(x) for x in os.environ.get('R2', '2,4').split(',')]
STASH = 72; CSA = 32; DB2 = 125; S_CSB, S_R0 = 30, 101
TSCH = eval(os.environ.get('TSCH', '{3:0x7fc000}'))
T0M = int(os.environ.get('T0M', '0x3fff'), 0)
CST = int(os.environ.get('CST', '0'))
NAME = 'recurrent_scan__linear_kernel_hedgehog__dense_activation_silu__prompt'
def f32(x): return '0x%08x' % struct.unpack('<I', struct.pack('<f', x))[0]

S_X, S_W, S_PHI, S_WO, S_W2, S_OUT, S_DBG, S_WS = 36, 40, 44, 48, 52, 56, 60, 64
S_MASK, S_WAVE, S_IDX, S_RB, S_TYPE = 3, 4, 5, 6, 7
S_XS, S_WSO, S_EX56 = 12, 13, 14
S_MW, S_MX, S_ROW, S_NONCE = 32, 33, 34, 35
S_RT, S_CH = 68, 69
S_ST = 70
S_RG, S_CG, S_BSO, S_STA, S_A0, S_A1, S_OSO, S_NH, S_H0 = 16, 17, 18, 19, 20, 21, 22, 23, 24
S_ST4 = 25
S_L2E = 26
S_HIM = 28
STG = 45056; WPART = 16384
L_CNT = 3 * STG
L_CP = 136192
L_WPHI = 144384
L_SHX = L_WPHI
L_PHI = 0
L_V = 136192
L_STA = 57344
L_WO = 0
L_CX = 135168
L_KVQ = 0
L_KVF = 65536
L_XG = 65536
L_O = 0
L_XS = 131072
KORD = list(range(14))
NV = 144
ACC, WF, XF, ST, CS, AX, AW, AS, DX, DW = 0, 64, 96, 104, 108, 112, 116, 120, 122, 124
PFA = 132; TMP = 128; P2T = 128; BT2 = 126; DB = 139; VLANE = 140; VL16 = 141; BT = 142

class K:
    def __init__(self, stamps):
        self.g = Gen(); self.use_stamps = stamps; self.nst = 0; self.names = {}; self.keys = ['0', '10', '11', '2']
    def I(self, t, needs=()): return self.g.I(t, needs)
    def U(self, t):
        x = self.g.I(t); x.kind = 'untracked'; return x
    def stamp(self, name, real=False):
        if os.environ.get('DLY') == name and (not os.environ.get('DLK') or os.environ['DLK'] in self.keys): self.I('s_sleep %s' % os.environ.get('DLN', '32'))
        if 'dbgt' in EXP and name in ('bar0', 'loopend', 'gdone', 'opub', 'ook'):
            r = {'bar0': [78], 'loopend': [80], 'gdone': [82], 'ook': [84], 'opub': [82, 84]}[name]
            for x in r: self.I('s_memtime s[%d:%d]' % (x, x + 1))
        if not self.use_stamps: return
        i = self.nst
        if i >= 12: return
        self.nst += 1
        for k in self.keys: self.names.setdefault(k, {})[i] = name
        self.I('%s %s' % ('s_memrealtime' if real else 's_memtime', sr(S_ST + 2 * i, 2)))
    def write_stamps(self, total=13):
        if 'dbgt' in EXP:
            I = self.I
            I('s_memrealtime s[74:75]'); I('s_memtime s[76:77]'); I('s_waitcnt vmcnt(0) lgkmcnt(0)')
            I('s_mov_b64 exec, 1'); I('v_mov_b32 v2, 0')
            I('v_mov_b32 v0, s70'); I('buffer_atomic_umax v0, v2, %s, 0 offen offset:8' % sr(S_DBG, 4))
            I('s_not_b32 s8, s70'); I('v_mov_b32 v1, s8'); I('buffer_atomic_umax v1, v2, %s, 0 offen offset:12' % sr(S_DBG, 4))
            I('v_mov_b32 v3, s74'); I('buffer_atomic_umax v3, v2, %s, 0 offen offset:16' % sr(S_DBG, 4))
            I('s_sub_u32 s8, s76, s72'); I('v_mov_b32 v4, s8'); I('buffer_atomic_umax v4, v2, %s, 0 offen offset:20' % sr(S_DBG, 4))
            I('s_sub_u32 s8, s74, s70'); I('v_mov_b32 v5, s8'); I('buffer_atomic_umax v5, v2, %s, 0 offen offset:24' % sr(S_DBG, 4))
            for k, so in enumerate((78, 80, 82, 84)):
                I('s_sub_u32 s8, s%d, s72' % so); I('v_mov_b32 v%d, s8' % (6 + k)); I('buffer_atomic_umax v%d, v2, %s, 0 offen offset:%d' % (6 + k, sr(S_DBG, 4), 28 + 4 * k))
            I('s_waitcnt vmcnt(0)')
            return
        if not self.use_stamps: return
        I = self.I
        I('s_memrealtime %s' % sr(S_ST + 2 * (total - 1), 2))
        I('s_waitcnt lgkmcnt(0)')
        I('s_lshl_b32 s8, s2, 3'); I('s_add_u32 s8, s8, s%d' % S_WAVE); I('s_lshl_b32 s8, s8, 7')
        I('s_add_u32 s8, s8, %d' % L.WS_STAMP)
        I('v_mov_b32 v2, 0')
        I('s_mov_b64 exec, 1')
        for i in range(total):
            I('v_mov_b32 v0, s%d' % (S_ST + 2 * i)); I('v_mov_b32 v1, s%d' % (S_ST + 2 * i + 1))
            I('buffer_store_dwordx2 v[0:1], v2, %s, s8 offen offset:%d' % (sr(S_WS, 4), 8 * i))
        I('s_mov_b64 exec, -1')
    def srd(self, d, base, nbytes):
        I = self.I
        I('s_mov_b32 s%d, s%d' % (d, base)); I('s_and_b32 s%d, s%d, 0xffff' % (d + 1, base + 1))
        I('s_mov_b32 s%d, %d' % (d + 2, nbytes)); I('s_mov_b32 s%d, 0x20000' % (d + 3))

    def prologue(self):
        I = self.I
        I('s_cmp_ge_u32 s2, 256'); I('s_cbranch_scc1 L_end')
        I('s_load_dwordx16 s[16:31], s[0:1], 0'); I('s_load_dwordx4 s[32:35], s[0:1], 64')
        if 'anti' in EXP:
            I('s_lshr_b32 s8, s2, 5'); I('s_and_b32 s9, s2, 31'); I('s_lshl_b32 s9, s9, 3'); I('s_or_b32 s2, s8, s9')
        I('s_getpc_b64 s[8:9]')
        self.g.label('L_pc')
        I('v_cmp_le_u32 vcc, %d, v0' % (1024 if 'nocp0' in EXP else 448)); I('s_cbranch_vccz L_nopf')
        I('s_bfe_u32 s10, s2, 0x30003'); I('s_lshl_b32 s10, s10, 13')
        I('v_and_b32 v1, 63, v0'); I('v_lshlrev_b32 v1, 7, v1'); I('v_add_u32 v1, s10, v1')
        I('v_min_u32 v1, L_end-L_pc, v1')
        self.U('global_load_dword a80, v1, s[8:9]')
        self.g.label('L_nopf')
        if self.use_stamps:
            for i in range(13): I('s_mov_b64 %s, 0' % sr(S_ST + 2 * i, 2))
        self.stamp('rt0', True); self.stamp('t0')
        if 'dbgt' in EXP: I('s_memrealtime s[70:71]'); I('s_memtime s[72:73]')
        I('v_lshrrev_b32 v1, 6, v0'); I('v_and_b32 v0, 63, v0')
        I('v_readfirstlane_b32 s%d, v1' % S_WAVE)
        I('v_mov_b32 v%d, v0' % VLANE); I('v_lshlrev_b32 v%d, 4, v0' % VL16)
        I('s_and_b32 s8, s2, 7'); I('s_lshr_b32 s9, s2, 3')
        I('s_and_b32 s10, s8, 1'); I('s_lshl_b32 s10, s10, 3'); I('s_and_b32 s11, s9, 7'); I('s_add_u32 s%d, s10, s11' % S_RB)
        I('s_lshr_b32 s8, s8, 1'); I('s_lshr_b32 s10, s9, 3')
        I('s_lshl_b32 s11, s8, 2'); I('s_add_u32 s12, s11, s10')
        I('s_mov_b32 s%d, 0' % S_TYPE); I('s_lshl_b32 s%d, s8, 1' % S_IDX); I('s_add_u32 s%d, s%d, s10' % (S_IDX, S_IDX))
        I('s_cmp_lt_u32 s10, 2'); I('s_cbranch_scc1 L_role')
        I('s_mov_b32 s%d, 1' % S_TYPE); I('s_lshr_b32 s%d, 0x4210, s11' % S_IDX); I('s_and_b32 s%d, s%d, 15' % (S_IDX, S_IDX))
        I('s_cmp_eq_u32 s10, 2'); I('s_cbranch_scc1 L_role')
        I('s_and_b32 s13, s8, 1'); I('s_lshl_b32 s%d, s13, 1' % S_IDX); I('s_add_u32 s%d, s%d, 3' % (S_IDX, S_IDX))
        I('s_bfe_u32 s11, s9, 0x10002'); I('s_lshr_b32 s8, s8, 1'); I('s_cmp_lg_u32 s11, s8'); I('s_cbranch_scc1 L_role')
        I('s_mov_b32 s%d, 2' % S_TYPE); I('s_mov_b32 s%d, s13' % S_IDX)
        self.g.label('L_role')
        I('s_lshl_b32 s8, s%d, 4' % S_RB); I('s_add_u32 s8, s8, s12'); I('s_lshl_b32 s8, s8, 3'); I('s_add_u32 s11, s8, s%d' % S_WAVE)
        I('s_mov_b32 s%d, -1' % S_EX56); I('s_mov_b32 s%d, 0x00ffffff' % (S_EX56 + 1))
        I('s_and_b32 s%d, s%d, 3' % (S_RT, S_WAVE)); I('s_lshr_b32 s%d, s%d, 2' % (S_CH, S_WAVE))
        I('s_mov_b32 s%d, 0xffff0000' % S_MASK)
        I('v_lshrrev_b32 v2, 3, v0'); I('v_mul_u32_u24 v2, 896, v2')
        I('v_lshrrev_b32 v3, 4, v0'); I('v_and_b32 v4, 7, v0'); I('v_xor_b32 v4, v4, v3')
        I('v_lshl_add_u32 v%d, v4, 4, v2' % DX)
        I('v_xor_b32 v4, 4, v4'); I('v_lshl_add_u32 v%d, v4, 4, v2' % (DX + 1)); I('v_add_u32 v%d, %d, v%d' % (DX + 1, 8 * 896 - 1024, DX + 1))
        I('s_lshl_b32 s8, s%d, 3' % S_RB); I('s_add_u32 s8, s8, s%d' % S_WAVE); I('s_mul_i32 s%d, s8, %d' % (S_XS, 16 * 896))
        I('v_cmp_lt_u32 vcc, 27, v0'); I('v_subrev_u32 v7, 28, v0'); I('v_cndmask_b32 v7, v0, v7, vcc'); I('v_cndmask_b32 v6, 0, 1, vcc')
        I('v_cmp_gt_u32 vcc, 56, v0'); I('v_mov_b32 v5, 0x7fffffff'); I('v_cndmask_b32 v5, v5, v%d, vcc' % VL16)
        I('s_waitcnt lgkmcnt(0)')
        if 'start' in EXP: self.stamp('karg')
        self.srd(S_X, 16, 2048 * 896)
        self.srd(S_WS, 34, L.WS_BYTES); self.srd(S_DBG, 32, 256)
        I('s_mov_b32 s%d, s11' % S_ROW)
        I('s_lshl_b32 s%d, s%d, 11' % (S_MX, S_WAVE))
        I('s_mul_i32 s%d, s%d, %d' % (S_MW, S_WAVE, 8 * 448)); I('s_add_u32 s%d, s%d, %d' % (S_MW, S_MW, WPART))

    def start_stream(self, gpitch):
        I = self.I
        for i in range(1, 4): I('v_add_u32 v%d, %d, v%d' % (DW + i, i * (2 * gpitch - 896), DW))
        I('s_mul_i32 s8, s%d, %d' % (S_WAVE, 8 * gpitch)); I('s_add_u32 s%d, s%d, s8' % (S_WSO, S_WSO))
        self.gpitch = gpitch
        d = {}
        if 'start' in EXP: self.stamp('pre_s0')
        grps, d[0] = self.stage_dma(0, gpitch)
        for gp in grps: self.g.extend(gp)
        I('s_mul_i32 s8, s%d, 896' % S_ROW)
        I('buffer_load_dwordx4 %s, v5, %s, s8 offen' % (vr(XF, 4), sr(S_X, 4)))
        I('s_cmp_ge_u32 s%d, 7' % S_RB); I('s_cbranch_scc1 L_nocx%s' % self.tagbase)
        I('s_sub_u32 s8, s%d, 1' % S_RB); I('s_mul_i32 s8, s8, %d' % (64 * gpitch)); I('s_add_u32 s8, s8, s%d' % S_WSO)
        I('s_add_u32 m0, s%d, %d' % (S_MW, L_CX - WPART)); I('s_mov_b64 exec, %s' % sr(S_EX56, 2))
        for j in range(4): self.U('buffer_load_dwordx4 v%d, %s, s8 offen offset:%d lds' % (DW + j, sr(S_W, 4), 896 * j))
        I('s_mov_b64 exec, -1')
        self.g.label('L_nocx%s' % self.tagbase)
        lab = 'L_nonon' + self.tagbase
        I('s_or_b32 s8, s2, s%d' % S_WAVE); I('s_cmp_lg_u32 s8, 0'); I('s_cbranch_scc1 %s' % lab)
        self.U('s_memrealtime s[8:9]'); self.U('s_waitcnt lgkmcnt(0)'); I('s_or_b32 s8, s8, 1'); I('v_mov_b32 v8, s8'); I('v_mov_b32 v9, 0')
        I('s_mov_b64 exec, 1'); self.U('buffer_store_dword v8, v9, %s, 0 offen sc1' % sr(S_DBG, 4)); I('s_mov_b64 exec, -1')
        self.g.label(lab)
        if 'start' in EXP: self.stamp('s0iss')
        return d
    def mall_addr(self):
        I = self.I
        segs = [(16, 7, 2, 5, 2048 * 896), (18, 4, 128 * 21, 4, 448 * 2688), (26, 5, 128 * 28, 5, 448 * 3584), (28, 7, 0, 7, 1792 * 896), (22, 2, 0, 2, 448 * 896)]
        I('s_lshl_b32 s8, s2, 3'); I('s_add_u32 s8, s8, s%d' % S_WAVE)
        lo = 0
        for i, (sb, mul, first, n, size) in enumerate(segs):
            I('s_mul_i32 s9, s8, %d' % mul); I('s_add_i32 s9, s9, %d' % (first - lo))
            I('v_add_u32 v10, s9, v0'); I('v_lshlrev_b32 v10, 7, v10'); I('v_min_u32 v10, %d, v10' % (size - 4))
            if i == 0:
                I('v_mov_b32 v11, v10'); I('v_mov_b32 v8, s%d' % sb); I('v_mov_b32 v9, s%d' % (sb + 1))
            else:
                I('v_cmp_le_u32 vcc, %d, v0' % lo); I('v_mov_b32 v12, s%d' % sb); I('v_mov_b32 v13, s%d' % (sb + 1))
                I('v_cndmask_b32 v11, v11, v10, vcc'); I('v_cndmask_b32 v8, v8, v12, vcc'); I('v_cndmask_b32 v9, v9, v13, vcc')
            lo += n
        I('v_add_co_u32 v%d, vcc, v8, v11' % PFA); I('v_addc_co_u32 v%d, vcc, 0, v9, vcc' % (PFA + 1))
    def mall_issue(self, part, mask=None):
        if 'nomall' in EXP: return []
        I = self.I
        with self.g.capture() as a:
            I('s_mov_b64 exec, %d' % (mask or T0M))
            I('global_load_dword a%d, %s, off' % (80 + part, vr(PFA, 2))).dst = set()
            I('s_mov_b64 exec, -1')
        return [a]
    def pre_loop(self, p2, idx0, extra=None, late=None):
        I = self.I; g = self.g
        self.mall_addr()
        if 't0early' in EXP:
            for gp in self.mall_issue(0): g.extend(gp)
        self.late_srds()
        if p2:
            self.p2_setup()
            for gp in self.p2_pre(): g.extend(gp)
        I('s_add_u32 s8, s%d, %d' % (S_IDX, idx0)); I('s_lshl_b32 s8, s8, 14'); I('s_add_u32 s%d, s8, %d' % (S_CSB, L.WS_CSG))
        if extra: extra()
        if 'start' in EXP: self.stamp('setup')
        self.s0pos = len(g.cur)
        if 'not0' not in EXP and 't0early' not in EXP:
            for gp in self.mall_issue(0): g.extend(gp)
        if late: late()
        self.row_stats()
    def chunks(self, fn, n=10):
        with self.g.capture() as body:
            fn()
        out = []; cur = []
        for i, x in enumerate(body):
            cur.append(x)
            nxt = body[i + 1] if i + 1 < len(body) else None
            safe = nxt is not None and not (nxt.op.startswith(('s_cselect', 's_cbranch', 's_addc', 's_subb', 'v_cndmask', 'v_addc')) or nxt.kind in ('dma', 'label')) \
                and not x.op.startswith(('s_cmp', 'v_cmp')) and 'm0' not in x.dst
            if len(cur) >= n and safe: out.append(cur); cur = []
        if cur: out.append(cur)
        return out

    def late_srds(self):
        I = self.I
        self.srd(S_PHI, 20, 16 * 28 * 28 * 2); self.srd(S_WO, 22, 448 * 896); self.srd(S_W2, 28, 1792 * 896)
        self.srd(S_OUT, 30, 2048 * 896)
        I('s_mov_b32 s%d, %s' % (S_L2E, f32(L.LOG2E))); I('s_mov_b32 s%d, %s' % (S_L2E + 1, f32(L.LOG2E)))
        I('s_mov_b32 s%d, 0' % S_HIM); I('s_mov_b32 s%d, -1' % (S_HIM + 1))
        I('s_mov_b32 s31, 0')

    def late_group(self, p2, extra=None):
        with self.g.capture() as a:
            self.late_srds()
            if extra: extra()
        self.p2flag = p2
        return a
    def p2_setup(self):
        I = self.I; T = 64
        I('s_lshr_b32 s9, s2, 3'); I('s_and_b32 s8, s9, 3'); I('s_add_u32 s8, s8, 24'); I('s_cmp_lt_u32 s9, 24'); I('s_cselect_b32 s9, s9, s8')
        I('s_mul_i32 s8, s9, 37'); I('s_lshr_b32 s8, s8, 8'); I('s_mul_i32 s10, s8, 7'); I('s_sub_u32 s%d, s9, s10' % S_CG)
        I('s_and_b32 s10, s2, 7'); I('s_lshl_b32 s10, s10, 2'); I('s_add_u32 s%d, s10, s8' % S_RG)
        I('s_mul_i32 s%d, s%d, %d' % (S_BSO, S_WAVE, 224 * 896)); I('s_lshl_b32 s8, s%d, 7' % S_CG); I('s_add_u32 s%d, s%d, s8' % (S_BSO, S_BSO))
        I('s_lshl_b32 s%d, s%d, 12' % (S_STA, S_WAVE)); I('s_add_u32 s%d, s%d, %d' % (S_STA, S_STA, L_STA))
        I('v_lshrrev_b32 v%d, 3, v140' % T); I('v_mul_u32_u24 v%d, 896, v%d' % (T, T))
        I('v_lshrrev_b32 v%d, 2, v140' % (T + 1)); I('v_and_b32 v%d, 4, v%d' % (T + 1, T + 1)); I('v_and_b32 v%d, 7, v140' % (T + 2))
        I('v_xor_b32 v%d, v%d, v%d' % (T + 1, T + 1, T + 2)); I('v_lshl_add_u32 v%d, v%d, 4, v%d' % (DB, T + 1, T))
        I('v_lshrrev_b32 v%d, 5, v140' % T); I('v_lshlrev_b32 v%d, 2, v%d' % (T, T)); I('v_bfe_u32 v%d, v140, 2, 2' % (T + 1)); I('v_add_u32 v%d, v%d, v%d' % (T, T, T + 1))
        I('v_lshlrev_b32 v%d, 7, v%d' % (T, T)); I('v_add_u32 v%d, s%d, v%d' % (T, S_STA, T))
        I('v_and_b32 v%d, 3, v140' % (T + 1)); I('v_lshlrev_b32 v%d, 3, v%d' % (T + 1, T + 1))
        I('v_and_b32 v%d, 16, v140' % (T + 2)); I('v_lshl_add_u32 v%d, v%d, 1, v%d' % (T + 1, T + 2, T + 1))
        I('v_and_b32 v%d, 8, v140' % (T + 2)); I('v_lshlrev_b32 v%d, 3, v%d' % (T + 2, T + 2)); I('v_xor_b32 v%d, v%d, v%d' % (T + 1, T + 1, T + 2))
        I('v_add_u32 v%d, v%d, v%d' % (BT, T, T + 1))
        I('v_xor_b32 v%d, 64, v%d' % (T + 1, T + 1)); I('v_add_u32 v%d, v%d, v%d' % (BT + 1, T, T + 1))

    def slot4_setup(self):
        I = self.I
        I('s_lshl_b32 s%d, s%d, 11' % (S_ST4, S_WAVE)); I('s_add_u32 s%d, s%d, %d' % (S_ST4, S_ST4, L_SHX)); I('s_sub_u32 s8, s%d, s%d' % (S_ST4, S_STA))
        for b in range(2): I('v_add_u32 v%d, s8, v%d' % (BT2 + b, BT + b))
    def wo_dma(self):
        g = self.g; I = self.I; grps = []
        with g.capture() as a:
            I('s_mul_i32 s23, s%d, %d' % (S_WAVE, 56 * 896)); I('s_lshl_b32 s24, s%d, 7' % S_CG); I('s_add_u32 s23, s23, s24'); I('s_mul_i32 s24, s%d, %d' % (S_WAVE, 56 * 128))
        for i in range(0, 7, 2):
            with g.capture() as b:
                I('s_add_u32 m0, s24, %d' % (L_WO + 1024 * i)); I('s_add_u32 s8, s23, %d' % (8 * 896 * i))
                I('buffer_load_dwordx4 v%d, %s, s8 offen lds' % (DB, sr(S_WO, 4)))
                if i + 1 < 7: I('buffer_load_dwordx4 v%d, %s, s8 offen offset:1024 lds' % (DB2, sr(S_WO, 4)))
            grps.append((a if i == 0 else []) + b)
        return grps
    SLOTS = [(0, BT), (2048, BT), (32768, BT), (34816, BT), (None, BT2)]
    def b_dma(self, k, needs=()):
        g = self.g; I = self.I; so = self.SLOTS[k % self.nslot][0]; grps = []
        with g.capture() as a:
            I('s_add_u32 m0, s%d, %d' % (S_STA, so) if so is not None else 's_mov_b32 m0, s%d' % S_ST4)
            I('s_add_u32 s8, s%d, %d' % (S_BSO, 16 * k * 896))
            I('buffer_load_dwordx4 v%d, %s, s8 offen lds' % (DB, sr(S_W2, 4)), needs=needs)
            I('buffer_load_dwordx4 v%d, %s, s8 offen offset:1024 lds' % (DB2, sr(S_W2, 4)))
        grps.append(a)
        self.bdma[k] = [x for gp in grps for x in gp if x.kind == 'dma']
        return grps
    def b_read(self, k):
        so, reg = self.SLOTS[k % self.nslot]; out = []
        if so is None: so = 0
        for b in range(2):
            for h in range(2):
                out.append(Instr('ds_read_b64_tr_b16 %s, v%d offset:%d' % (ar(8 * k + 4 * b + 2 * h, 2), reg + b, so + 1024 * h), needs=self.bdma[k]))
        self.bread[k] = out
        return out
    def b_tasks(self, k0, k1):
        t = [self.b_read(k) for k in range(k0, k1)]
        for k in range(k0, k1):
            if k + self.nslot < 14: t += self.b_dma(k + self.nslot, needs=self.bread[k])
        return t

    def stage_dma(self, st, gpitch):
        g = self.g; I = self.I; base = (st % 3) * STG
        nt = ' nt' if st < int(os.environ.get('NT', '0')) else ''; ntx = ' nt' if st < int(os.environ.get('NTX', os.environ.get('NT', '0'))) else ''
        grps = []
        for i in range(0, 4, 2):
            with g.capture() as a:
                if i == 0: I('s_add_u32 m0, s%d, %d' % (S_MW, base))
                I('s_mov_b64 exec, %s' % sr(S_EX56, 2))
                for j in (i, i + 1): I('buffer_load_dwordx4 v%d, %s, s%d offen offset:%d%s lds' % (DW + j, sr(S_W, 4), S_WSO, 896 * j, nt))
                I('s_mov_b64 exec, -1')
            grps.append(a)
        with g.capture() as a:
            I('s_add_u32 m0, s%d, %d' % (S_MX, base)); I('s_add_u32 s%d, s%d, %d' % (S_WSO, S_WSO, 64 * gpitch))
            for i in range(2): I('buffer_load_dwordx4 v%d, %s, s%d offen offset:%d%s lds' % (DX + i, sr(S_X, 4), S_XS, 1024 * i, ntx))
            I('s_add_u32 s%d, s%d, 128' % (S_XS, S_XS))
        grps.append(a)
        return grps, [x for gp in grps for x in gp if x.kind == 'dma']

    def read_addrs(self, clamp, shared=False):
        I = self.I; T = TMP
        I('v_and_b32 v%d, 31, v0' % T); I('v_lshlrev_b32 v%d, 7, v%d' % (T, T)); I('s_lshl_b32 s8, s%d, 12' % S_RT); I('v_add_u32 v%d, s8, v%d' % (T, T))
        I('v_lshrrev_b32 v%d, 5, v0' % (T + 1)); I('v_bfe_u32 v%d, v0, 1, 3' % (T + 2)); I('v_xor_b32 v%d, v%d, v%d' % (T + 2, T + 2, T + 1))
        I('v_lshlrev_b32 v%d, 3, v%d' % (T + 3, T + 1)); I('v_bfe_u32 v%d, v0, 2, 2' % (T + 4)); I('v_add_u32 v%d, v%d, v%d' % (T + 3, T + 3, T + 4))
        I('v_mul_u32_u24 v%d, 448, v%d' % (T + 3, T + 3))
        I('v_bfe_u32 v%d, v0, 4, 1' % (T + 4)); I('v_and_b32 v%d, 3, v0' % (T + 5)); I('v_lshl_add_u32 v%d, v%d, 2, v%d' % (T + 4, T + 4, T + 5))
        if shared:
            I('s_lshl_b32 s8, s%d, 2' % S_CH); I('v_xor_b32 v%d, s8, v%d' % (T + 6, T + 4)); I('v_lshl_add_u32 v%d, v%d, 3, v%d' % (T + 6, T + 6, T + 3))
            I('v_add_u32 v%d, %d, v%d' % (T + 6, WPART + 384, T + 6))
        if clamp: I('v_min_u32 v%d, 6, v%d' % (T + 4, T + 4))
        if shared:
            I('s_cmp_eq_u32 s%d, 7' % S_WAVE); I('s_cselect_b32 s8, 4, 0'); I('v_xor_b32 v%d, s8, v%d' % (CS + 3, T + 4))
            I('s_min_u32 s9, s%d, 6' % S_WAVE); I('s_lshl_b32 s9, s9, 6'); I('s_add_u32 s9, s9, %d' % L_CX)
        else:
            I('v_mov_b32 v%d, v%d' % (CS + 3, T + 4)); I('s_mul_i32 s9, s%d, 56' % S_RT); I('s_add_u32 s9, s9, s10'); I('s_add_u32 s9, s9, %d' % (L_CX - WPART))
        I('v_lshl_add_u32 v%d, v%d, 3, v%d' % (CS + 3, CS + 3, T + 3)); I('v_add_u32 v%d, s9, v%d' % (CS + 3, CS + 3))
        I('v_lshl_add_u32 v%d, v%d, 3, v%d' % (T + 3, T + 4, T + 3))
        I('v_add_u32 v%d, s10, v%d' % (T + 3, T + 3))
        for i in range(4):
            I('s_add_u32 s8, s%d, s%d' % (S_RT, S_CH)); I('s_add_u32 s8, s8, %d' % i); I('s_and_b32 s8, s8, 3')
            I('s_lshl_b32 s9, s8, 1'); I('v_xor_b32 v%d, s9, v%d' % (T + 5, T + 2)); I('v_lshl_add_u32 v%d, v%d, 4, v%d' % (AX + i, T + 5, T))
            I('s_mul_i32 s9, s8, 7168'); I('v_add_u32 v%d, s9, v%d' % (AW + i, T + 3))
            if shared and i in (0, 2): I('v_add_u32 v%d, s9, v%d' % (AS + i // 2, T + 6))

    def row_stats(self):
        I = self.I; S, Q = ST, ST + 1
        I('s_mov_b32 s8, 0x3f803f80')
        I('v_dot2_f32_bf16 v%d, v%d, s8, 0' % (S, XF)); I('v_dot2_f32_bf16 v%d, v%d, v%d, 0' % (Q, XF, XF))
        for q in range(1, 4):
            I('v_dot2_f32_bf16 v%d, v%d, s8, v%d' % (S, XF + q, S)); I('v_dot2_f32_bf16 v%d, v%d, v%d, v%d' % (Q, XF + q, XF + q, Q))
        for m in ('row_shr:1', 'row_shr:2', 'row_shr:4', 'row_shr:8'):
            for r in (S, Q): I('v_add_f32_dpp v%d, v%d, v%d %s row_mask:0xf bank_mask:0xf bound_ctrl:0' % (r, r, r, m))
        for m, rm in (('row_bcast:15', '0xa'), ('row_bcast:31', '0xc')):
            for r in (S, Q): I('v_add_f32_dpp v%d, v%d, v%d %s row_mask:%s bank_mask:0xf' % (r, r, r, m, rm))
        I('v_mul_f32 v%d, %s, v%d' % (S, f32(1.0 / 448), S)); I('v_mul_f32 v%d, %s, v%d' % (Q, f32(1.0 / 448), Q))
        I('v_fma_f32 v%d, -v%d, v%d, v%d' % (Q, S, S, Q)); I('v_max_f32 v%d, 0, v%d' % (Q, Q))
        def rbf(r):
            I('v_cvt_pk_bf16_f32 v%d, v%d, v%d' % (r, r, r)); I('v_lshlrev_b32 v%d, 16, v%d' % (r, r))
        rbf(S); rbf(Q)
        I('v_add_f32 v%d, %s, v%d' % (Q, f32(1e-5), Q)); rbf(Q)
        I('v_sqrt_f32 v%d, v%d' % (Q, Q)); rbf(Q)
        I('v_rcp_f32 v%d, v%d' % (Q, Q))
        I('v_sub_f32 v%d, 0, v%d' % (S, S))

    def nonce_issue(self):
        self.I('v_mov_b32 v%d, 0' % (ST + 3))
        return self.I('buffer_load_dword v%d, v%d, %s, 0 offen sc1' % (ST + 2, ST + 3, sr(S_DBG, 4)))
    def nonce_get_publish(self, tag):
        I = self.I; U = self.U
        I('v_readfirstlane_b32 s%d, v%d' % (S_NONCE, ST + 2))
        I('s_cmp_lg_u32 s%d, 0' % S_NONCE); I('s_cbranch_scc1 L_gotn%s' % tag)
        self.g.label('L_spinn%s' % tag)
        U('buffer_load_dword v%d, v%d, %s, 0 offen sc1' % (ST + 2, ST + 3, sr(S_DBG, 4)))
        U('s_waitcnt vmcnt(0)')
        I('v_readfirstlane_b32 s%d, v%d' % (S_NONCE, ST + 2)); I('s_nop 1')
        I('s_cmp_lg_u32 s%d, 0' % S_NONCE); I('s_cbranch_scc1 L_gotn%s' % tag)
        self.spin_tail('L_spinn%s' % tag)
        self.g.label('L_gotn%s' % tag)
        I('v_mov_b32 v%d, s%d' % (ST + 2, S_NONCE)); I('v_mov_b32 v%d, s%d' % (ST + 3, S_NONCE))
        I('s_lshl_b32 s8, s%d, 4' % S_ROW); I('s_add_u32 s8, s8, %d' % L.WS_RS); I('v_mov_b32 v%d, 0' % (TMP + 8))
        I('s_mov_b32 exec_lo, 0'); I('s_mov_b32 exec_hi, 0x80000000')
        I('buffer_store_dwordx4 %s, v%d, %s, s8 offen sc1' % (vr(ST, 4), TMP + 8, sr(S_WS, 4)))
        I('s_mov_b64 exec, -1')
    def rs_issue(self):
        I = self.I
        I('s_lshl_b32 s8, s%d, 2' % S_RB); I('s_add_u32 s8, s8, s%d' % S_RT); I('s_lshl_b32 s8, s8, 9'); I('s_add_u32 s%d, s8, %d' % (S_ROW, L.WS_RS))
        I('v_and_b32 v%d, 31, v%d' % (DX, VLANE)); I('v_lshlrev_b32 v%d, 4, v%d' % (DX, DX))
        return I('buffer_load_dwordx4 %s, v%d, %s, s%d offen sc1' % (vr(ST, 4), DX, sr(S_WS, 4), S_ROW))
    def rs_get(self, tag, scale):
        I = self.I; U = self.U
        I('v_cmp_ne_u32 vcc, s%d, v%d' % (S_NONCE, ST + 2)); I('s_nop 1'); I('s_cbranch_vccz L_gotr%s' % tag)
        self.g.label('L_spinr%s' % tag)
        U('buffer_load_dwordx4 %s, v%d, %s, s%d offen sc1' % (vr(ST, 4), DX, sr(S_WS, 4), S_ROW))
        U('s_waitcnt vmcnt(0)')
        I('v_cmp_ne_u32 vcc, s%d, v%d' % (S_NONCE, ST + 2)); I('s_nop 1'); I('s_cbranch_vccz L_gotr%s' % tag)
        self.spin_tail('L_spinr%s' % tag)
        self.g.label('L_gotr%s' % tag)
        for q in range(4): I('v_cvt_pk_bf16_f32 v%d, v%d, v%d' % (XF + q, ST, ST))
        I('v_mul_f32 v%d, %s, v%d' % (ST, f32(scale), ST + 1))
    def publish(self, soff_s, tmp, needs=()):
        I = self.I
        I('v_mov_b32 v%d, s%d' % (tmp, S_NONCE)); I('v_mov_b32 v%d, 0' % (tmp + 1)); I('s_mov_b64 exec, 1')
        x = I('buffer_store_dword v%d, v%d, %s, s%d offen sc1' % (tmp, tmp + 1, sr(S_WS, 4), soff_s), needs=needs)
        I('s_mov_b64 exec, -1')
        return x
    def poll(self, tag, voff, soff_s, tmp):
        I = self.I; U = self.U
        self.g.label('L_poll%s' % tag)
        U('buffer_load_dword v%d, v%d, %s, s%d offen sc1' % (tmp, voff, sr(S_WS, 4), soff_s))
        I('s_waitcnt vmcnt(0)')
        I('v_cmp_ne_u32 vcc, s%d, v%d' % (S_NONCE, tmp)); I('s_nop 1'); I('s_cbranch_vccz L_polld%s' % tag)
        self.spin_tail('L_poll%s' % tag)
        self.g.label('L_polld%s' % tag)
    def poll_issue(self, voff, soff_s, tmp):
        return self.I('buffer_load_dword v%d, v%d, %s, s%d offen sc1' % (tmp, voff, sr(S_WS, 4), soff_s))
    def poll_check(self, tag, voff, soff_s, tmp):
        I = self.I; U = self.U
        if 'nopoll' in EXP and tag in 'AB': return
        I('v_cmp_ne_u32 vcc, s%d, v%d' % (S_NONCE, tmp)); I('s_nop 1'); I('s_cbranch_vccz L_polld%s' % tag)
        self.g.label('L_poll%s' % tag)
        U('buffer_load_dword v%d, v%d, %s, s%d offen sc1' % (tmp, voff, sr(S_WS, 4), soff_s)); U('s_waitcnt vmcnt(0)')
        I('v_cmp_ne_u32 vcc, s%d, v%d' % (S_NONCE, tmp)); I('s_nop 1'); I('s_cbranch_vccz L_polld%s' % tag)
        self.spin_tail('L_poll%s' % tag)
        self.g.label('L_polld%s' % tag)
    def spin_tail(self, lab, sl=None):
        I = self.I
        if (SLEEP if sl is None else sl): I('s_sleep %d' % (SLEEP if sl is None else sl))
        else: I('s_nop 0')
        pass; I('s_add_u32 s31, s31, 1'); I('s_cmp_lt_u32 s31, 0x8000'); I('s_cbranch_scc1 %s' % lab)

    def l2pf(self, st):
        if 'l2pf' not in EXP: return []
        I = self.I; lab = 'L_pf%s%d' % (self.tagbase, st)
        with self.g.capture() as a:
            I('s_lshr_b32 s8, s%d, 1' % S_WAVE); I('s_cmp_lg_u32 s8, %d' % (st - PF0)); I('s_cbranch_scc1 %s' % lab)
            I('s_lshr_b32 s8, s2, 3'); I('s_lshl_b32 s8, s8, 3'); I('s_add_u32 s8, s8, s%d' % S_WAVE); I('s_lshl_b32 s8, s8, 13')
            I('v_lshlrev_b32 v%d, 7, v%d' % (TMP + 8, VLANE))
            self.U('buffer_load_dword a80, v%d, %s, s8 offen' % (TMP + 8, sr(S_W2, 4)))
            I('s_sub_u32 s8, s8, %d' % (196 * 8192)); I('s_cbranch_scc1 %s' % lab)
            self.U('buffer_load_dword a80, v%d, %s, s8 offen' % (TMP + 8, sr(S_WO, 4)))
            self.g.label(lab)
        return [a]

    def code_pf(self, tg, tmp, dst):
        if 'nocpf' in EXP: return []
        I = self.I
        with self.g.capture() as a:
            I('s_getpc_b64 s[8:9]'); self.g.label('L_cpf%s' % tg)
            I('s_sub_u32 s8, s8, L_cpf%s-L_pc' % tg); I('s_subb_u32 s9, s9, 0')
            I('s_bfe_u32 s10, s2, 0x20003'); I('s_lshl_b32 s10, s10, 3'); I('s_add_u32 s10, s10, s%d' % S_WAVE); I('s_lshl_b32 s10, s10, 11')
            I('v_lshlrev_b32 v%d, 7, v%d' % (tmp, VLANE)); I('v_add_u32 v%d, s10, v%d' % (tmp, tmp)); I('v_min_u32 v%d, L_end-L_pc, v%d' % (tmp, tmp))
            I('s_mov_b64 exec, 0xffff')
            I('global_load_dword %s, v%d, s[8:9]' % (dst, tmp))
            I('s_mov_b64 exec, -1')
        return [a]

    def gemm(self, tiles, gpitch, dms, tag, hooks, tl):
        g = self.g; I = self.I
        dmas = dict(dms)
        NF, LOOK = 8, 4
        seq = [(ks, cc) for ks in range(28) for cc in range(len(tiles[ks & 3]['t']))]
        def wread(n):
            ks, cc = seq[n]; a = WF + 4 * (n % NF); c, areg, off = tiles[ks & 3]['t'][cc]
            return [Instr('ds_read_b64_tr_b16 %s, v%d offset:%d' % (vr(a + 2 * h, 2), areg, off + h * 4 * 448)) for h in range(2)]
        def xread(ks):
            return [Instr('ds_read_b128 %s, v%d' % (vr(XF + 4 * (ks % 2), 4), AX + (ks & 3)))]
        aregs = sorted(set(list(range(AX, AX + 4)) + [t[1] for p in tiles for t in p['t']]))
        def adv(st):
            d = STG if st % 3 else -2 * STG
            return [Instr('v_add_u32 v%d, %d, v%d' % (r, d, r)) if d > 0 else Instr('v_subrev_u32 v%d, %d, v%d' % (r, -d, r)) for r in aregs]
        tc = [0]
        def cs_ops(r, c):
            t = TMP + 2 * (tc[0] % 4); tc[0] += 1
            return [Instr('v_lshlrev_b32 v%d, 16, v%d' % (t, r)), Instr('v_and_b32 v%d, s%d, v%d' % (t + 1, S_MASK, r)),
                    Instr('v_add_f32 v%d, v%d, v%d' % (CS + c, CS + c, t)), Instr('v_add_f32 v%d, v%d, v%d' % (CS + c, CS + c, t + 1))]
        if 'start' in EXP:
            self.stamp('rowst'); I('s_nop 0', needs=dmas[0]); self.stamp('s0arr'); I('s_waitcnt lgkmcnt(0)')
        BAR0 = len(g.cur)
        I('s_barrier', needs=dmas[0])
        self.stamp('bar0')
        g.extend(xread(0))
        first = [wread(n) for n in range(LOOK)]
        for x in first: g.extend(x)
        g1, dmas[1] = self.stage_dma(1, gpitch)
        pend, dmas[2] = self.stage_dma(2, gpitch)
        g.cur[self.s0pos:self.s0pos] = [Instr('s_barrier')] + [x for gp in g1 for x in gp]
        wrd = {}
        cs = {}
        def cs_make():
            with g.capture() as a:
                T = TMP
                I('s_cmp_ge_u32 s%d, 7' % S_RB); I('s_cbranch_scc1 L_nocm%s' % tag)
                I('s_mov_b32 s9, 0x3f803f80'); CT = [128, 130, 134, 136]
                for half in range(2):
                    for k2 in range(2):
                        for h in range(2): self.U('ds_read_b64_tr_b16 %s, v%d offset:%d' % (vr(CT[2 * k2 + h], 2), CS + 3, (2 * half + k2) * 7168 + h * 1792))
                    self.U('s_waitcnt lgkmcnt(0)')
                    for q in range(8): I('v_dot2_f32_bf16 v%d, v%d, s9, %s' % (CS + (q & 1), CT[q >> 1] + (q & 1), 'v%d' % (CS + (q & 1)) if half or q > 1 else '0'))
                I('s_lshl_b32 s8, s%d, 11' % S_WAVE); I('s_add_u32 s8, s8, s%d' % S_CSB); I('s_lshr_b32 s9, s%d, 2' % S_RB); I('s_lshl_b32 s9, s9, 10'); I('s_add_u32 s8, s8, s9')
                I('s_and_b32 s9, s%d, 3' % S_RB); I('s_lshl_b32 s9, s9, 2'); I('s_add_u32 s8, s8, s9')
                I('v_add_f32 v%d, v%d, v%d' % (CS, CS, CS + 1))
                I('v_cvt_pk_bf16_f32 v%d, v%d, v%d' % (T, CS, CS)); I('v_and_b32 v%d, s%d, v%d' % (T, S_MASK, T))
                I('v_sub_f32 v%d, v%d, v%d' % (T, CS, T)); I('v_cvt_pk_bf16_f32 v%d, v%d, v%d' % (CS, T, CS))
                self.U('buffer_store_dword v%d, v%d, %s, s8 offen sc1' % (CS, VL16, sr(S_WS, 4)))
                self.g.label('L_nocm%s' % tag)
            return [a]
        def cs_flag():
            with g.capture() as a:
                I('s_cmp_lt_u32 s%d, 7' % S_RB); I('s_cselect_b32 s8, s%d, 1' % S_WAVE); I('s_cmp_lg_u32 s8, 0'); I('s_cbranch_scc1 L_nocf%s' % tag)
                I('s_sub_u32 s8, s%d, %d' % (S_CSB, L.WS_CSG)); I('s_lshr_b32 s8, s8, 4'); I('s_lshl_b32 s9, s%d, 7' % S_RB); I('s_add_u32 s8, s8, s9'); I('s_add_u32 s8, s8, %d' % L.WS_CSF)
                self.publish(8, TMP).kind = 'untracked'
                self.g.label('L_nocf%s' % tag)
            return [a]
        def cs_poll():
            with g.capture() as a:
                I('s_sub_u32 s10, s%d, %d' % (S_CSB, L.WS_CSG)); I('s_lshr_b32 s10, s10, 4'); I('s_add_u32 s%d, s10, %d' % (S_R0, L.WS_CSF))
                I('v_and_b32 v%d, 7, v%d' % (CS, VLANE)); I('v_min_u32 v%d, 6, v%d' % (CS, CS)); I('v_lshlrev_b32 v%d, 7, v%d' % (CS, CS))
                self.poll_issue(CS, S_R0, CS + 1)
            return [a]
        def cs_load():
            with g.capture() as a:
                for c, mul, add in tl:
                    I('s_mul_i32 s8, s%d, %d' % (S_CH, mul * 2048)); I('s_add_u32 s8, s8, s%d' % S_CSB); I('s_add_u32 s8, s8, %d' % (add * 2048))
                    for h in range(2): I('buffer_load_dwordx4 %s, v%d, %s, s8 offen offset:%d sc1' % (ar(CSA + 8 * c + 4 * h, 4), VL16, sr(S_WS, 4), 1024 * h))
            return [a]
        for n in range(LOOK): wrd[n] = first[n]
        started = set(); xr = 0; cfill = []
        for n, (ks, cc) in enumerate(seq):
            p = tiles[ks & 3]; c = p['t'][cc][0]; a = WF + 4 * (n % NF); xf = XF + 4 * (ks % 2)
            I('v_mfma_f32_32x32x16_bf16 %s, %s, %s, %s' % (vr(ACC + 16 * c, 16), vr(a, 4), vr(xf, 4), vr(ACC + 16 * c, 16) if c in started else '0'),
              needs=wrd.get(n + 1, []) if n % 2 == 0 else [])
            started.add(c)
            nn = n + LOOK
            if nn < len(seq):
                ks2, cc2 = seq[nn]
                if cc2 == 0 and ks2 & 3 == 0:
                    st2 = ks2 >> 2
                    assert xr == ks2 - 1
                    g.extend(adv(st2))
                    if st2 == NST: self.nonce_get_publish(tag)
                    if st2 == 6: self.poll_check('c' + tag, CS, S_R0, CS + 1); self.rs_issue()
                    if st2 in hooks.get('pre', {}): hooks['pre'][st2]()
                    if 'stg' in EXP and st2 in (2, 3, 6): self.stamp('preB%d' % st2)
                    I('s_waitcnt lgkmcnt(0)')
                    I('s_barrier', needs=dmas[st2])
                    if 'stg' in EXP: self.stamp('B%d' % st2)
                    if st2 == 1:
                        with g.capture() as grp_: self.nonce_issue()
                        pend += [grp_]
                    if st2 == 1: pend += cs_make()
                    if st2 == 3: pend += cs_flag()
                    if st2 == 5: pend += cs_poll()
                    if st2 == 6: pend += cs_load()
                    if st2 in self.pre_post: pend += self.pre_post[st2]()
                    if st2 + 2 < 7:
                        newg, dmas[st2 + 2] = self.stage_dma(st2 + 2, gpitch); pend += newg
                    if st2 in TSCH: pend += self.mall_issue(1, TSCH[st2])
                    if st2 in hooks.get('post', {}): pend += hooks['post'][st2]()
                wrd[nn] = wread(nn); g.extend(wrd[nn])
            if xr == ks and ks + 1 < 28 and (nn >= len(seq) or seq[min(nn, len(seq) - 1)][0] >= ks + 1):
                g.extend(xread(ks + 1)); xr = ks + 1
            if pend and (n % 3 == 0 or len(pend) > 3): g.extend(pend.pop(0))
        for x in pend: g.extend(x)
        self.stamp('loopend')

    def finish_stats(self, tl, scale, tag, before_b1=None, after_b1=None):
        I = self.I
        wr = []
        if before_b1: wr += before_b1() or []
        self.rs_get(tag, scale)
        for c, mul, add in tl: I('v_accvgpr_write_b32 a%d, 0' % (CSA + 8 * c + 7))
        for h in range(2):
            for c, mul, add in tl:
                I('v_mfma_f32_32x32x16_bf16 %s, %s, %s, %s' % (vr(ACC + 16 * c, 16), ar(CSA + 8 * c + 4 * h, 4), vr(XF, 4), vr(ACC + 16 * c, 16)))
        I('s_barrier', needs=wr)
        if after_b1: after_b1()
        if 'stg' in EXP: self.stamp = lambda *a, **k: None
        self.stamp('stats')

    def with_bg(self, fn, tasks, every):
        with self.g.capture() as body:
            fn()
        out = []; tasks = list(tasks); cnt = 0
        for x in body:
            out.append(x); cnt += 1
            if tasks and cnt >= every and x.kind in ('valu', 'trans') and not (x.dst & {'vcc'}):
                out += tasks.pop(0); cnt = 0
        for t in tasks: out += t
        self.g.extend(out)

    def ffn(self):
        I = self.I; g = self.g
        self.tagbase = 'f'
        self.srd(S_W, 26, 448 * 3584)
        I('v_mul_u32_u24 v6, 3584, v6'); I('v_lshl_add_u32 v%d, v7, 4, v6' % DW)
        I('s_mul_i32 s%d, s%d, 448' % (S_WSO, S_IDX))
        dms = self.start_stream(3584)
        I('s_mul_i32 s10, s%d, 192' % S_CH); I('s_add_u32 s10, s10, %d' % WPART)
        self.read_addrs(False, shared=True)
        self.pre_loop(True, 0); self.pre_post = {}
        own = lambda i, o: [(c, AW + i, 64 * c) for c in o]
        tiles = [dict(t=[(3, AS, 0)] + own(0, [0, 1, 2]), cs=True), dict(t=own(1, [0, 1, 2]), cs=True),
                 dict(t=own(2, [1, 2, 0]) + [(3, AS + 1, 0)], cs=True), dict(t=own(3, [2, 0, 1]), cs=True)]
        self.bdma, self.bread = {}, {}; self.nslot = 5
        tl = [(0, 3, 0), (1, 3, 1), (2, 3, 2), (3, 1, 6)]
        self.gemm(tiles, 3584, dms, 'f', self.bhooks(), tl)
        self.slot4_setup()
        SH = ACC + 48; X8 = 116
        def before_b1():
            I('s_xor_b32 s8, s%d, 4' % S_WAVE); I('s_lshl_b32 s8, s8, 11'); I('s_add_u32 s8, s8, %d' % L_SHX); I('v_add_u32 v%d, s8, v%d' % (AX, VL16))
            I('s_lshl_b32 s8, s%d, 11' % S_WAVE); I('s_add_u32 s8, s8, %d' % L_SHX); I('v_add_u32 v%d, s8, v%d' % (AX + 1, VL16))
            return [I('ds_write_b128 v%d, %s offset:%d' % (AX, vr(SH + 8 + 4 * q, 4), 1024 * q)) for q in range(2)]
        shr = []
        def after_b1():
            for q in range(2): shr.append(I('ds_read_b128 %s, v%d offset:%d' % (vr(X8 + 4 * q, 4), AX + 1, 1024 * q)))
        self.finish_stats(tl, -L.LOG2E, 'f', before_b1, after_b1)
        I('s_lshl_b32 s8, s%d, 2' % S_RB); I('s_add_u32 s8, s8, s%d' % S_RT); I('s_mul_i32 s9, s8, %d' % (112 * 1024))
        I('s_lshl_b32 s8, s8, 3'); I('s_add_u32 s8, s8, s%d' % S_IDX); I('s_lshl_b32 s8, s8, 1'); I('s_add_u32 s8, s8, s%d' % S_CH)
        I('s_lshl_b32 s8, s8, 7'); I('s_add_u32 s0, s8, %d' % L.WS_FLAG)
        I('s_mul_i32 s10, s%d, %d' % (S_IDX, 14 * 1024)); I('s_add_u32 s9, s9, s10')
        I('s_mul_i32 s10, s%d, 6144' % S_CH); I('s_add_u32 s10, s9, s10')
        I('s_lshl_b32 s11, s%d, 10' % S_CH); I('s_add_u32 s9, s9, s11'); I('s_add_u32 s1, s9, %d' % (12 * 1024))
        stores = []
        def unit(idx):
            c, u = divmod(idx, 2)
            A = ACC + 16 * c + 8 * u; T = [64, 72][idx & 1]; P = [80, 84][idx & 1]
            if 'noprio' not in EXP:
                lab = 'L_fp%d' % idx
                I('s_setprio 0'); I('s_cmp_eq_u32 s%d, %d' % (S_CH, idx & 1)); I('s_cbranch_scc1 %s' % lab); I('s_setprio 1'); self.g.label(lab)
            if c == 3:
                for j in range(0, 8, 2): I('v_pk_add_f32 %s, %s, %s' % (vr(A + j, 2), vr(A + j, 2), vr(X8 + j, 2)))
            for j in range(0, 8, 2): I('v_pk_mul_f32 %s, %s, %s op_sel_hi:[1,0]' % (vr(A + j, 2), vr(A + j, 2), vr(ST, 2)))
            for j in range(8): I('v_exp_f32 v%d, v%d' % (T + j, A + j))
            for j in range(0, 8, 2): I('v_pk_add_f32 %s, %s, 1.0 op_sel_hi:[1,0]' % (vr(T + j, 2), vr(T + j, 2)))
            for j in range(8): I('v_rcp_f32 v%d, v%d' % (T + j, T + j))
            for j in range(0, 8, 2): I('v_pk_mul_f32 %s, %s, %s' % (vr(T + j, 2), vr(T + j, 2), vr(A + j, 2)))
            for j in range(0, 8, 2): I('v_cvt_pk_bf16_f32 v%d, v%d, v%d' % (P + j // 2, T + j, T + j + 1))
            if idx == 4: I('s_add_u32 s10, s10, 4096')
            if c < 3: stores.append(I('buffer_store_dwordx4 %s, v%d, %s, s10 offen offset:%d sc1' % (vr(P, 4), VL16, sr(S_WS, 4), (idx % 4) * 1024)))
            else: stores.append(I('buffer_store_dwordx4 %s, v%d, %s, s1 offen sc1' % (vr(P, 4), VL16, sr(S_WS, 4))))
        self.with_bg(lambda: [unit(i) for i in range(6)], self.b_round1(shr) + ([] if 'wolate' in EXP else self.wo_dma()), int(os.environ.get('FBG', '11')))
        unit(6)
        I('s_setprio 0')
        self.stamp('epi')
        self.p2_enter()
        bt = self.b_tasks(4, 9)
        for t in bt[:5]: g.extend(t)
        self.publish(0, 96, needs=stores)
        self.stamp('pub')
        if 'nofh' not in EXP: I('s_barrier')
        for t in bt[5:8]: g.extend(t)
        pa = self.poll_issue(P2T + 1, S_FA, P2T)
        for t in bt[8:] + (self.wo_dma() if 'wolate' in EXP else []): g.extend(t)
        I('s_waitcnt lgkmcnt(0)'); I('s_nop 0', needs=[pa])
        I('s_branch L_p2')

    def b_round1(self, need4=None):
        t = [sum([self.b_read(k) for k in range(4)], [])]
        if need4 is not None: t += self.b_dma(4, needs=need4)
        for k in range(4): t += self.b_dma(k + 5, needs=self.bread[k])
        return t

    def bhooks(self, extra=None):
        post = {5: lambda: [[Instr('v_add_u32 v%d, %d, v%d' % (DB2, 8 * 896 - 1024, DB))]] + self.b_dma(0) + self.b_dma(1), 6: lambda: self.b_dma(2) + self.b_dma(3)}
        if extra: post.update(extra)
        return dict(post=post)

    def pack_k(self, A, K8):
        I = self.I
        for j in range(8): I('v_cvt_pk_bf16_f32 v%d, v%d, v%d' % (K8 + j, A + 2 * j, A + 2 * j + 1))
        for j in (6, 7): I('v_cndmask_b32 v%d, v%d, 0, %s' % (K8 + j, K8 + j, sr(S_HIM, 2)))
    def half_units(self, As, neg):
        I = self.I; M = 64; n = '-' if neg else ''; nm = ' neg_lo:[1,0,0] neg_hi:[1,0,0]' if neg else ''
        def each(f):
            for i, A in enumerate(As): f(A, M + 6 * i)
        I('v_mov_b32 v%d, 0xff800000' % (TMP + 10))
        each(lambda A, m: (I('v_max3_f32 v%d, %sv%d, %sv%d, %sv%d' % (m, n, A, n, A + 1, n, A + 2)), I('v_max3_f32 v%d, %sv%d, %sv%d, %sv%d' % (m + 1, n, A + 8, n, A + 9, n, A + 10))))
        for j in (3, 5): each(lambda A, m: (I('v_max3_f32 v%d, v%d, %sv%d, %sv%d' % (m, m, n, A + j, n, A + j + 1)), I('v_max3_f32 v%d, v%d, %sv%d, %sv%d' % (m + 1, m + 1, n, A + 8 + j, n, A + 9 + j))))
        each(lambda A, m: I('v_max3_f32 v%d, v%d, %sv%d, %sv%d' % (m + 1, m + 1, n, A + 7, n, A + 15)))
        each(lambda A, m: I('v_max_f32 v%d, v%d, v%d' % (m, m, m + 1)))
        each(lambda A, m: I('v_mov_b32 v%d, v%d' % (m + 1, m)))
        each(lambda A, m: I('v_permlane32_swap_b32 v%d, v%d' % (m, m + 1)))
        each(lambda A, m: I('v_max_f32 v%d, v%d, v%d' % (m, m, m + 1)))
        each(lambda A, m: I('v_mul_f32 v%d, -v%d, v%d' % (m, ST, m)))
        each(lambda A, m: I('v_cndmask_b32 v%d, v%d, v%d, %s' % (m + 1, m, TMP + 10, sr(S_HIM, 2))))
        for j in range(0, 16, 2):
            sel = 'op_sel_hi:[1,0,0]' if j < 12 else 'op_sel:[0,0,1] op_sel_hi:[1,0,1]'
            each(lambda A, m: I('v_pk_fma_f32 %s, %s, %s, %s %s%s' % (vr(A + j, 2), vr(A + j, 2), vr(ST, 2), vr(m, 2), sel, nm)))
        for j in range(16): each(lambda A, m: I('v_exp_f32 v%d, v%d' % (A + j, A + j)))
        each(lambda A, m: (I('v_pk_add_f32 %s, %s, %s' % (vr(m + 2, 2), vr(A, 2), vr(A + 2, 2))), I('v_pk_add_f32 %s, %s, %s' % (vr(m + 4, 2), vr(A + 8, 2), vr(A + 10, 2)))))
        for j in (4, 6): each(lambda A, m: (I('v_pk_add_f32 %s, %s, %s' % (vr(m + 2, 2), vr(m + 2, 2), vr(A + j, 2))), I('v_pk_add_f32 %s, %s, %s' % (vr(m + 4, 2), vr(m + 4, 2), vr(A + 8 + j, 2)))))
        each(lambda A, m: I('v_pk_add_f32 %s, %s, %s' % (vr(m + 2, 2), vr(m + 2, 2), vr(m + 4, 2))))
        each(lambda A, m: I('v_add_f32 v%d, v%d, v%d' % (m, m + 2, m + 3)))
        each(lambda A, m: I('v_mov_b32 v%d, v%d' % (m + 1, m)))
        each(lambda A, m: I('v_permlane32_swap_b32 v%d, v%d' % (m, m + 1)))
        each(lambda A, m: I('v_add_f32 v%d, v%d, v%d' % (m, m, m + 1)))
        each(lambda A, m: I('v_rcp_f32 v%d, v%d' % (m, m)))
        for j in range(0, 16, 2): each(lambda A, m: I('v_pk_mul_f32 %s, %s, %s op_sel_hi:[1,0]' % (vr(A + j, 2), vr(A + j, 2), vr(m, 2))))
        for j in range(8): each(lambda A, m: I('v_cvt_pk_bf16_f32 v%d, v%d, v%d' % (A + j, A + 2 * j, A + 2 * j + 1)))
    def phi_mfma(self, A, K8, WP):
        I = self.I
        I('v_mfma_f32_32x32x16_bf16 %s, %s, %s, 0' % (vr(A, 16), ar(WP, 4), vr(K8, 4)))
        I('v_mfma_f32_32x32x16_bf16 %s, %s, %s, %s' % (vr(A, 16), ar(WP + 4, 4), vr(K8 + 4, 4), vr(A, 16)))
    def softmax_unit(self, A, sreg=None):
        I = self.I
        EP, EN, M = 64, 80, TMP
        mx, nm, t, u = M, M + 1, M + 2, M + 4
        I('v_mov_b32 v%d, 0xff800000' % (M + 10))
        m2, n2 = M + 6, M + 7
        for (a, b, o) in ((mx, nm, 0), (m2, n2, 8)):
            I('v_max3_f32 v%d, v%d, v%d, v%d' % (a, A + o, A + o + 1, A + o + 2)); I('v_max3_f32 v%d, -v%d, -v%d, -v%d' % (b, A + o, A + o + 1, A + o + 2))
        for j in (3, 5):
            for (a, b, o) in ((mx, nm, 0), (m2, n2, 8)):
                I('v_max3_f32 v%d, v%d, v%d, v%d' % (a, a, A + o + j, A + o + j + 1)); I('v_max3_f32 v%d, v%d, -v%d, -v%d' % (b, b, A + o + j, A + o + j + 1))
        I('v_max3_f32 v%d, v%d, v%d, v%d' % (m2, m2, A + 7, A + 15)); I('v_max3_f32 v%d, v%d, -v%d, -v%d' % (n2, n2, A + 7, A + 15))
        I('v_max_f32 v%d, v%d, v%d' % (mx, mx, m2)); I('v_max_f32 v%d, v%d, v%d' % (nm, nm, n2))
        I('v_permlane32_swap_b32 v%d, v%d' % (mx, nm)); I('v_max_f32 v%d, v%d, v%d' % (t, mx, nm))
        I('v_mul_f32 v%d, -v%d, v%d' % (t, ST, t)); I('v_mov_b32 v%d, v%d' % (u, t)); I('v_permlane32_swap_b32 v%d, v%d' % (t, u))
        I('v_cndmask_b32 v%d, v%d, v%d, %s' % (t + 1, t, M + 10, sr(S_HIM, 2))); I('v_cndmask_b32 v%d, v%d, v%d, %s' % (u + 1, u, M + 10, sr(S_HIM, 2)))
        for j in range(0, 16, 2):
            sel = 'op_sel_hi:[1,0,0]' if j < 12 else 'op_sel:[0,0,1] op_sel_hi:[1,0,1]'
            I('v_pk_fma_f32 %s, %s, %s, %s %s' % (vr(EP + j, 2), vr(A + j, 2), vr(ST, 2), vr(t, 2), sel))
            I('v_pk_fma_f32 %s, %s, %s, %s %s neg_lo:[1,0,0] neg_hi:[1,0,0]' % (vr(EN + j, 2), vr(A + j, 2), vr(ST, 2), vr(u, 2), sel))
        for j in range(16): I('v_exp_f32 v%d, v%d' % (EP + j, EP + j)); I('v_exp_f32 v%d, v%d' % (EN + j, EN + j))
        sp, sn = M + 6, M + 8
        I('v_pk_add_f32 %s, %s, %s' % (vr(sp, 2), vr(EP, 2), vr(EP + 2, 2))); I('v_pk_add_f32 %s, %s, %s' % (vr(sn, 2), vr(EN, 2), vr(EN + 2, 2)))
        for j in range(4, 16, 2):
            I('v_pk_add_f32 %s, %s, %s' % (vr(sp, 2), vr(sp, 2), vr(EP + j, 2))); I('v_pk_add_f32 %s, %s, %s' % (vr(sn, 2), vr(sn, 2), vr(EN + j, 2)))
        I('v_add_f32 v%d, v%d, v%d' % (sp, sp, sp + 1)); I('v_add_f32 v%d, v%d, v%d' % (sn, sn, sn + 1))
        I('v_permlane32_swap_b32 v%d, v%d' % (sp, sn)); I('v_add_f32 v%d, v%d, v%d' % (t, sp, sn))
        if sreg is None:
            I('v_rcp_f32 v%d, v%d' % (t, t)); I('v_mov_b32 v%d, v%d' % (u, t)); I('v_permlane32_swap_b32 v%d, v%d' % (t, u))
            for j in range(0, 16, 2):
                I('v_pk_mul_f32 %s, %s, %s op_sel_hi:[1,0]' % (vr(EP + j, 2), vr(EP + j, 2), vr(t, 2)))
                I('v_pk_mul_f32 %s, %s, %s op_sel_hi:[1,0]' % (vr(EN + j, 2), vr(EN + j, 2), vr(u, 2)))
            for j in range(8):
                I('v_cvt_pk_bf16_f32 v%d, v%d, v%d' % (A + j, EP + 2 * j, EP + 2 * j + 1)); I('v_cvt_pk_bf16_f32 v%d, v%d, v%d' % (A + 8 + j, EN + 2 * j, EN + 2 * j + 1))
        else:
            I('v_mov_b32 v%d, v%d' % (u, t))
            for j in range(2): I('v_cvt_pk_bf16_f32 v%d, v%d, v%d' % (A + j, EP + 2 * j, EP + 2 * j + 1))
            I('v_permlane32_swap_b32 v%d, v%d' % (t, u)); I('v_rcp_f32 v%d, v%d' % (u, u))
            for j in range(2, 8): I('v_cvt_pk_bf16_f32 v%d, v%d, v%d' % (A + j, EP + 2 * j, EP + 2 * j + 1))
            I('v_mul_f32 v%d, v%d, v%d' % (u, u, t)); I('v_mov_b32 v%d, v%d' % (sreg, t))
            for j in range(0, 16, 2): I('v_pk_mul_f32 %s, %s, %s op_sel_hi:[1,0]' % (vr(EN + j, 2), vr(EN + j, 2), vr(u, 2)))
            for j in range(8): I('v_cvt_pk_bf16_f32 v%d, v%d, v%d' % (A + 8 + j, EN + 2 * j, EN + 2 * j + 1))

    def wphi_dma(self, n, head0_s):
        I = self.I; out = []
        I('s_mul_i32 s8, s%d, 1568' % head0_s); I('s_lshl_b32 s9, s%d, 10' % S_WAVE); I('s_add_u32 s8, s8, s9'); I('s_add_u32 s9, s9, %d' % L_WPHI)
        for i in range(n):
            I('s_add_u32 m0, s9, %d' % (8192 * i)); I('s_add_u32 s10, s8, %d' % (8192 * i))
            out.append(I('buffer_load_dwordx4 v%d, %s, s10 offen lds' % (VL16, sr(S_PHI, 4))))
        return out
    def wphi_read(self, nheads, hoff_s, WP):
        I = self.I; T = TMP + 9
        I('v_lshrrev_b32 v%d, 5, v%d' % (T, VLANE)); I('v_lshlrev_b32 v%d, 2, v%d' % (T, T)); I('v_bfe_u32 v%d, v%d, 2, 2' % (T + 1, VLANE)); I('v_add_u32 v%d, v%d, v%d' % (T, T, T + 1))
        I('v_mul_u32_u24 v%d, 56, v%d' % (T, T)); I('v_add_u32 v%d, s%d, v%d' % (T, hoff_s, T))
        I('v_bfe_u32 v%d, v%d, 4, 1' % (T + 1, VLANE)); I('v_lshlrev_b32 v%d, 2, v%d' % (T + 1, T + 1)); I('v_and_or_b32 v%d, v%d, 3, v%d' % (T + 1, VLANE, T + 1))
        I('v_min_u32 v%d, 6, v%d' % (T + 1, T + 1)); I('v_lshl_add_u32 v%d, v%d, 3, v%d' % (T, T + 1, T))
        for i in range(nheads):
            for s in range(2):
                for h in range(2):
                    I('ds_read_b64_tr_b16 %s, v%d offset:%d' % (ar(WP + 8 * i + 4 * s + 2 * h, 2), T, i * 1568 + (16 * s + 8 * h) * 56))

    def kv_common(self):
        I = self.I; g = self.g
        self.tagbase = 'k'
        self.srd(S_W, 18, 448 * 2688)
        I('s_lshl_b32 s8, s%d, 2' % S_IDX); I('s_lshr_b32 s9, 0xdb9630, s8'); I('s_and_b32 s9, s9, 15')
        I('s_lshr_b32 s10, 0x322333, s8'); I('s_and_b32 s10, s10, 15')
        I('s_mul_i32 s11, s9, 56'); I('s_and_b32 s%d, s11, -16' % S_WSO); I('s_and_b32 s11, s11, 8')
        I('s_mul_i32 s8, s10, 3'); I('s_add_u32 s8, s8, 1')
        I('v_cmp_lt_u32 vcc, 13, v7'); I('v_subrev_u32 v8, 14, v7'); I('v_cndmask_b32 v8, v7, v8, vcc'); I('v_min_u32 v8, s8, v8')
        I('v_mov_b32 v9, 896'); I('v_mov_b32 v10, 1792'); I('v_cndmask_b32 v9, v9, v10, vcc')
        I('v_mul_u32_u24 v6, 2688, v6'); I('v_add_u32 v6, v6, v9'); I('v_lshl_add_u32 v%d, v8, 4, v6' % DW)
        I('s_mov_b32 s0, s9'); I('s_mov_b32 s1, s10'); I('s_mov_b32 s%d, s11' % S_NONCE)
        dms = self.start_stream(2688)
        I('s_mul_i32 s10, s%d, 224' % S_CH); I('s_add_u32 s10, s10, s%d' % S_NONCE); I('s_add_u32 s10, s10, %d' % WPART)
        self.read_addrs(True)
        PW, HO, UA, VW, ZV = 48, 50, 51, 54, 58
        def kvx():
            I('s_mov_b32 s%d, s0' % S_H0); I('s_mov_b32 s%d, s1' % S_NH)
        def kvl():
            I('s_mov_b32 s%d, s%d' % (S_R0, S_H0))
            if ATOM:
                I('s_cmp_lg_u32 s%d, 0' % S_RB); I('s_cbranch_scc1 L_nozero')
                Z = 68
                for i in range(4): I('v_mov_b32 v%d, 0' % (Z + i))
                I('s_lshl_b32 s8, s%d, 13' % S_H0); I('s_lshl_b32 s9, s%d, 10' % S_WAVE); I('s_add_u32 s8, s8, s9'); I('s_add_u32 s8, s8, %d' % L.WS_KV)
                self.U('buffer_store_dwordx4 %s, v%d, %s, s8 offen sc1' % (vr(Z, 4), VL16, sr(S_WS, 4)))
                I('s_add_u32 s8, s8, 8192'); self.U('buffer_store_dwordx4 %s, v%d, %s, s8 offen sc1' % (vr(Z, 4), VL16, sr(S_WS, 4)))
                I('s_add_u32 s8, s8, 8192'); I('s_cmp_eq_u32 s%d, 3' % S_NH); I('s_cselect_b32 s8, s8, 0x7f000000')
                self.U('buffer_store_dwordx4 %s, v%d, %s, s8 offen sc1' % (vr(Z, 4), VL16, sr(S_WS, 4))); I('s_nop 1')
                self.g.label('L_nozero')
            for gp in post4(): g.extend(gp)
        kv_pre = lambda: self.pre_loop(True, 8, kvx, kvl)
        rot = lambda i: [((i + cc) % 3, AW + i, 56 * ((i + cc) % 3)) for cc in range(3)]
        tiles = [dict(t=rot(i), cs=(i < 3)) for i in range(4)]
        self.bdma, self.bread = {}, {}; self.nslot = 5
        def pre2():
            pass
        def post2():
            with g.capture() as a:
                I('s_mov_b32 s8, %d' % L_WPHI)
                self.wphi_read(3, 8, 88)
            return [a]
        def post3():
            with g.capture() as a:
                I('s_or_b32 s8, s%d, s%d' % (S_RB, S_WAVE)); I('s_cmp_lg_u32 s8, 0'); I('s_cbranch_scc1 L_nozf')
                I('s_lshl_b32 s8, s%d, 7' % S_IDX); I('s_add_u32 s8, s8, %d' % (L.WS_KVZ + 0x4000))
                self.publish(8, TMP + 8).kind = 'untracked'
                self.g.label('L_nozf')
            return [a]
        self.kvr = (PW, HO, UA, VW, ZV)
        def post4():
            A, B, C = 64, 65, 66; out = []
            with g.capture() as a:
                I('v_and_b32 v%d, 31, v%d' % (A, VLANE)); I('v_lshlrev_b32 v%d, 6, v%d' % (A, A)); I('s_lshl_b32 s8, s%d, 11' % S_RT); I('v_add_u32 v%d, s8, v%d' % (A, A))
                I('v_bfe_u32 v%d, v%d, 1, 2' % (B, VLANE)); I('v_lshl_add_u32 v%d, v%d, 4, v%d' % (A, B, A))
                I('v_lshrrev_b32 v%d, 5, v%d' % (B, VLANE))
                I('v_lshl_add_u32 v%d, v%d, 13, v%d' % (PW, B, A)); I('s_lshl_b32 s9, s%d, 5' % S_CH); I('v_xor_b32 v%d, s9, v%d' % (PW, PW)); I('v_xor_b32 v%d, 16, v%d' % (PW + 1, PW))
                I('s_add_u32 s8, s8, %d' % L_V); I('v_add_u32 v%d, s8, v%d' % (HO, VL16))
                I('v_lshl_add_u32 v%d, v%d, 3, v%d' % (VW, B, A)); I('v_add_u32 v%d, %d, v%d' % (VW, L_V, VW))
                for q in range(1, 4): I('v_xor_b32 v%d, %d, v%d' % (VW + q, 16 * q, VW))
                I('v_lshlrev_b32 v%d, 10, v%d' % (UA + 2, B)); I('v_and_b32 v%d, 31, v%d' % (A, VLANE)); I('v_lshl_add_u32 v%d, v%d, 2, v%d' % (UA + 2, A, UA + 2))
            out.append(a)
            with g.capture() as a:
                I('v_lshrrev_b32 v%d, 5, v%d' % (A, VLANE)); I('v_bfe_u32 v%d, v%d, 2, 2' % (B, VLANE)); I('v_lshl_add_u32 v%d, v%d, 2, v%d' % (A, A, B))
                I('v_bfe_u32 v%d, v%d, 4, 1' % (B, VLANE)); I('v_bfe_u32 v%d, v%d, 1, 1' % (C, VLANE)); I('v_lshl_add_u32 v%d, v%d, 1, v%d' % (B, B, C))
                I('v_lshrrev_b32 v%d, 1, v%d' % (C, A)); I('v_xor_b32 v%d, v%d, v%d' % (B, B, C)); I('v_lshlrev_b32 v%d, 6, v%d' % (A, A)); I('v_lshl_add_u32 v%d, v%d, 4, v%d' % (A, B, A))
                I('v_and_b32 v%d, 1, v%d' % (B, VLANE)); I('v_lshl_add_u32 v%d, v%d, 3, v%d' % (A, B, A))
                I('s_lshl_b32 s10, s%d, 13' % S_WAVE); I('v_add_u32 v%d, s10, v%d' % (UA + 1, A))
                I('s_lshr_b32 s9, s%d, 1' % S_WAVE); I('s_lshl_b32 s10, s9, 13'); I('s_add_u32 s10, s10, %d' % L_V); I('v_add_u32 v%d, s10, v%d' % (UA, A))
                I('s_add_u32 s10, s9, s%d' % S_H0); I('s_lshl_b32 s10, s10, 13'); I('s_and_b32 s8, s%d, 1' % S_WAVE); I('s_lshl_b32 s8, s8, 7'); I('s_add_u32 s10, s10, s8')
                I('s_add_u32 s0, s10, %d' % L.WS_KV)
                I('s_cmp_lt_u32 s9, s%d' % S_NH); I('s_cselect_b32 s%d, 1, 0' % S_NH)
                I('s_lshl_b32 s8, s%d, 4' % S_IDX); I('s_add_u32 s8, s8, s%d' % S_RB); I('s_lshl_b32 s8, s8, 7'); I('s_add_u32 s1, s8, %d' % L.WS_KVZ)
                I('s_lshl_b32 s%d, s%d, 7' % (S_H0, S_IDX)); I('s_add_u32 s%d, s%d, %d' % (S_H0, S_H0, L.WS_KVZ + 0x4000)); I('v_mov_b32 v%d, 0' % ZV)
            out.append(a)
            return out
        kv_pre()
        def wpd():
            with g.capture() as a: self.wphi_dma(1, S_R0)
            return [a]
        self.pre_post = {2: wpd}
        hk = self.bhooks({4: post2, NST: post3})
        p6 = hk['post'][6]
        def post6():
            with g.capture() as a: self.poll_issue(ZV, S_H0, ZV + 1)
            return [a] + p6()
        hk['post'][6] = post6
        tl = [(c, 4, c) for c in range(3)]
        self.gemm(tiles, 2688, dms, 'k', hk, tl)
        self.finish_stats(tl, L.LOG2E, 'k', self.slot4_setup)
        I('s_cmp_eq_u32 s%d, 1' % S_CH); I('s_cbranch_scc1 L_kv_v')

    def kv_rest(self, tg, As, wr):
        I = self.I; g = self.g; PW, HO, U, VW, ZV = self.kvr
        def hu():
            with g.capture() as body: self.half_units(As, tg == 'v')
            if 'vhalf' in EXP and tg == 'v':
                k = int(len(body) * float(os.environ.get('VH', '0.5')))
                body = body[:k] + [Instr('s_setprio 0')] + body[k:]
            g.extend(body)
        self.with_bg(hu, self.b_round1(), int(os.environ.get('KBG', '14')))
        for i, A in enumerate(As):
            wr += [I('ds_write_b128 v%d, %s offset:%d' % (PW + q, vr(A + 4 * q, 4), L_PHI + 16384 * i)) for q in range(2)]
        self.poll_check('z' + tg, ZV, S_H0, ZV + 1)
        for k in range(5, 9): g.extend(self.b_read(k))
        I('s_add_u32 s10, s0, 4096')
        I('s_waitcnt lgkmcnt(0)')
        I('s_barrier')
        self.stamp('bb')
        I('s_cmp_eq_u32 s%d, 0' % S_NH); I('s_cbranch_scc1 L_nounit%s' % tg)
        if 'uprio' in EXP and tg == 'v': I('s_setprio 3')
        def rd(s):
            b = 64 + 8 * (s % 4)
            for h in range(2):
                I('ds_read_b64_tr_b16 %s, v%d offset:%d' % (vr(b + 2 * h, 2), U, (16 * s + 8 * h) * 64))
                I('ds_read_b64_tr_b16 %s, v%d offset:%d' % (vr(b + 4 + 2 * h, 2), U + 1, (16 * s + 8 * h) * 64))
        D = ACC
        for s in range(3): rd(s)
        for s in range(8):
            if s + 3 < 8: rd(s + 3)
            b = 64 + 8 * (s % 4)
            I('v_mfma_f32_32x32x16_bf16 %s, %s, %s, %s' % (vr(D, 16), vr(b, 4), vr(b + 4, 4), vr(D, 16) if s else '0'))
        I('s_nop 7'); I('s_nop 4')
        for r in range(16):
            d = (r & 3) + 8 * (r >> 2)
            if r == 14: I('s_mov_b32 exec_hi, 0')
            self.U('buffer_atomic_add_f32 v%d, v%d, %s, s%d offen offset:%d' % (D + r, U + 2, sr(S_WS, 4), 0 if d < 16 else 10, (d % 16) * 256))
        I('s_mov_b64 exec, -1')
        self.g.label('L_nounit%s' % tg)
        I('s_waitcnt vmcnt(0)')
        I('s_barrier')
        if True:
            I('s_cmp_lg_u32 s%d, 7' % S_WAVE); I('s_cbranch_scc1 L_nokf%s' % tg)
            self.publish(1, 96).kind = 'untracked'
            self.g.label('L_nokf%s' % tg)
            self.stamp('kvdone')
        I('s_setprio 0')
        bulk = self.b_dma(4)
        for k in range(5, 9): bulk += self.b_dma(k + 5)
        bulk += self.wo_dma()
        for t in bulk[:6]: g.extend(t)
        self.p2_enter()
        pa = self.poll_issue(P2T + 1, S_FA, P2T)
        for t in bulk[6:] + self.b_tasks(4, 5): g.extend(t)
        I('s_waitcnt lgkmcnt(0)'); I('s_nop 0', needs=[pa])
        I('s_branch L_p2')

    def kv_k(self):
        I = self.I; g = self.g; PW, HO, U, VW, ZV = self.kvr
        wr = []
        for i in range(3):
            N = 80 + 8 * i
            self.pack_k(ACC + 16 * i, N)
            wr += [I('ds_write_b128 v%d, %s offset:%d' % (HO, vr(N + 4 * q, 4), 8192 * i + 1024 * q)) for q in range(2)]
        I('s_barrier', needs=wr)
        for i in range(3): self.phi_mfma(ACC + 16 * i, 80 + 8 * i, 88 + 8 * i)
        self.kv_rest('k', [ACC, ACC + 16, ACC + 32], [])

    def kv_v(self):
        I = self.I; g = self.g; PW, HO, U, VW, ZV = self.kvr
        if 'vprio' in EXP: I('s_setprio 1')
        I('v_cndmask_b32 v%d, v%d, 0, %s' % (CS, ST + 1, sr(S_HIM, 2))); I('v_cndmask_b32 v%d, 0, 1.0, %s' % (CS + 1, sr(S_HIM, 2)))
        PV = [88, 96, 112]
        def vpath(i):
            A = ACC + 16 * i
            for j in range(0, 12, 2): I('v_pk_mul_f32 %s, %s, %s op_sel:[0,1] op_sel_hi:[1,1]' % (vr(A + j, 2), vr(A + j, 2), vr(ST, 2)))
            for j in (12, 14): I('v_pk_fma_f32 %s, %s, %s, %s op_sel:[0,0,1] op_sel_hi:[1,0,1]' % (vr(A + j, 2), vr(A + j, 2), vr(CS, 2), vr(CS, 2)))
            for j in range(8): I('v_cvt_pk_bf16_f32 v%d, v%d, v%d' % (PV[i] + j, A + 2 * j, A + 2 * j + 1))
        vpath(0); vpath(1)
        I('s_barrier')
        rd = [I('ds_read_b128 %s, v%d offset:%d' % (vr(64 + 8 * i + 4 * q, 4), HO, 8192 * i + 1024 * q)) for i in range(3) for q in range(2)]
        vpath(2)
        wr = []
        for i in range(3):
            self.phi_mfma(ACC + 16 * i, 64 + 8 * i, 88 + 8 * i)
            wr += [I('ds_write_b64 v%d, %s offset:%d' % (VW + q, vr(PV[i] + 2 * q, 2), 8192 * i), needs=rd[2 * i:2 * i + 2]) for q in range(4)]
        self.kv_rest('v', [ACC, ACC + 16, ACC + 32], wr)
    _uid = 0
    def uid(self):
        K._uid += 1
        return str(K._uid)

    def q(self):
        I = self.I; g = self.g
        self.tagbase = 'q'
        self.srd(S_W, 18, 448 * 2688)
        I('v_mul_u32_u24 v6, 2688, v6'); I('v_lshl_add_u32 v%d, v7, 4, v6' % DW)
        I('s_mul_i32 s%d, s%d, 448' % (S_WSO, S_IDX))
        dms = self.start_stream(2688)
        I('s_mul_i32 s10, s%d, 224' % S_CH); I('s_add_u32 s10, s10, %d' % WPART)
        self.read_addrs(True)
        self.pre_loop(False, 14, lambda: I('s_lshl_b32 s%d, s%d, 3' % (S_H0, S_IDX)))
        def wpd():
            with g.capture() as a: self.wphi_dma(2, S_H0)
            return [a]
        self.pre_post = {2: wpd}
        tiles = [dict(t=[((i + cc) % 4, AW + i, 56 * ((i + cc) % 4)) for cc in range(4)], cs=True) for i in range(4)]
        def post2():
            with g.capture() as a:
                I('s_mul_i32 s8, s%d, %d' % (S_CH, 4 * 1568)); I('s_add_u32 s8, s8, %d' % L_WPHI)
                self.wphi_read(4, 8, 0)
            return [a]
        tl = [(c, 4, c) for c in range(4)]
        self.gemm(tiles, 2688, dms, 'q', dict(post={4: post2}), tl)
        self.finish_stats(tl, L.LOG2E, 'q')
        for i in range(4):
            self.pack_k(ACC + 16 * i, 80 + 8 * (i & 1)); self.phi_mfma(ACC + 16 * i, 80 + 8 * (i & 1), 8 * i)
        for i in range(4): self.softmax_unit(ACC + 16 * i, sreg=124 + i)
        self.stamp('soft')
        if 'noq' in EXP: return
        T = TMP
        if 'lat' in EXP:
            I('s_lshl_b32 s8, s2, 3'); I('s_add_u32 s8, s8, s%d' % S_WAVE); I('s_lshl_b32 s8, s8, 9'); I('s_add_u32 s8, s8, %d' % (15 << 20)); I('v_mov_b32 v%d, 0' % T)
            for rep_ in range(2):
                I('buffer_load_dword v%d, v%d, %s, s8 offen offset:%d sc1' % (T + 1, T, sr(S_WS, 4), 256 * rep_)); I('s_waitcnt vmcnt(0)'); self.stamp('miss')
                I('buffer_load_dword v%d, v%d, %s, s8 offen offset:%d sc1' % (T + 1, T, sr(S_WS, 4), 256 * rep_)); I('s_waitcnt vmcnt(0)'); self.stamp('l2hit')
                I('buffer_store_dword v%d, v%d, %s, s8 offen offset:%d sc1' % (T + 1, T, sr(S_WS, 4), 128 + 256 * rep_)); I('s_waitcnt vmcnt(0)'); self.stamp('st')
            self.nst = 15
        if 'qpf' in EXP:
            I('s_and_b32 s8, s2, 7'); I('s_lshl_b32 s8, s8, 2'); I('s_bfe_u32 s9, s2, 0x20003'); I('s_add_u32 s8, s8, s9')
            I('s_lshl_b32 s9, s8, 12'); I('s_lshl_b32 s10, s%d, 8' % S_WAVE); I('s_add_u32 s9, s9, s10'); I('s_add_u32 s11, s9, %d' % L.WS_FLAG)
            I('v_and_b32 v%d, 1, v%d' % (T, VLANE)); I('v_lshlrev_b32 v%d, 11, v%d' % (T, T)); I('v_and_b32 v%d, 2, v%d' % (T + 1, VLANE)); I('v_lshl_add_u32 v%d, v%d, 6, v%d' % (T, T + 1, T))
            I('s_mul_i32 s8, s8, 224'); I('s_mul_i32 s9, s%d, 14' % S_WAVE); I('s_add_u32 s8, s8, s9'); I('s_lshl_b32 s10, s8, 10'); I('s_add_u32 s9, s10, %d' % (112 * 1024))
            I('v_lshlrev_b32 v%d, 7, v%d' % (T + 2, VLANE)); I('v_add_u32 v%d, 8192, v%d' % (T + 3, T + 2))
            self.g.label('L_qpf')
            self.U('buffer_load_dword v%d, v%d, %s, s11 offen sc1' % (T + 1, T, sr(S_WS, 4))); self.U('s_waitcnt vmcnt(0)')
            I('v_cmp_ne_u32 vcc, s%d, v%d' % (S_NONCE, T + 1)); I('s_nop 1'); I('s_cbranch_vccz L_qpfd')
            self.spin_tail('L_qpf', QSL)
            self.g.label('L_qpfd')
            for so in (10, 9): I('buffer_load_dword a100, v%d, %s, s%d offen' % (T + 2, sr(S_WS, 4), so)).dst = set()
            I('s_mov_b32 exec_hi, 0xffff')
            for so in (10, 9): I('buffer_load_dword a100, v%d, %s, s%d offen' % (T + 3, sr(S_WS, 4), so)).dst = set()
            I('s_mov_b64 exec, -1')
        if ATOM:
            T = TMP
            I('v_lshrrev_b32 v%d, 4, v%d' % (T, VLANE)); I('s_lshl_b32 s8, s%d, 1' % S_IDX); I('v_add_u32 v%d, s8, v%d' % (T, T))
            I('s_mul_i32 s8, s%d, 3' % S_IDX); I('s_add_u32 s8, s8, 2'); I('v_min_u32 v%d, s8, v%d' % (T, T))
            I('v_and_b32 v%d, 15, v%d' % (T + 1, VLANE)); I('v_lshl_add_u32 v%d, v%d, 4, v%d' % (T, T, T + 1)); I('v_lshlrev_b32 v%d, 7, v%d' % (T, T))
            I('s_mov_b32 s11, %d' % L.WS_KVZ)
            I('v_lshrrev_b32 v%d, 3, v%d' % (T + 2, VLANE)); I('v_and_b32 v%d, 7, v%d' % (T + 3, VLANE)); I('v_lshlrev_b32 v%d, 4, v%d' % (T + 4, T + 3)); I('v_lshl_add_u32 v%d, v%d, 8, v%d' % (T + 4, T + 2, T + 4))
            I('s_add_u32 s8, s%d, s%d' % (S_H0, S_WAVE)); I('s_lshl_b32 s8, s8, 13'); I('s_add_u32 s0, s8, %d' % L.WS_KV); I('s_add_u32 s1, s0, 4096')
            I('v_lshrrev_b32 v%d, 1, v%d' % (T + 5, T + 3)); I('v_lshlrev_b32 v%d, 10, v%d' % (T + 5, T + 5)); I('v_and_b32 v%d, 1, v%d' % (T + 3, T + 3)); I('v_lshl_add_u32 v%d, v%d, 3, v%d' % (T + 5, T + 3, T + 5))
            I('s_lshl_b32 s8, s%d, 12' % S_WAVE); I('v_add_u32 v%d, s8, v%d' % (T + 5, T + 5))
            WA4 = 112
            for i in range(4):
                a, b, c_ = T + 6, T + 7, T + 3
                I('v_add_u32 v%d, %d, v%d' % (a, 8 * i, T + 2))
                I('v_cmp_lt_u32 vcc, 13, v%d' % a); I('v_subrev_u32 v%d, 14, v%d' % (b, a)); I('v_cndmask_b32 v%d, v%d, v%d, vcc' % (b, a, b)); I('v_cndmask_b32 v%d, 0, 4, vcc' % c_)
                if i == 3:
                    I('v_cmp_lt_u32 vcc, 27, v%d' % a); I('v_and_b32 v%d, 1, v%d' % (T + 8, a)); I('v_lshlrev_b32 v%d, 2, v%d' % (T + 8, T + 8)); I('v_cndmask_b32 v%d, v%d, v%d, vcc' % (c_, c_, T + 8))
                    I('v_bfe_u32 v%d, v%d, 1, 1' % (T + 8, a)); I('v_add_u32 v%d, 14, v%d' % (T + 8, T + 8)); I('v_cndmask_b32 v%d, v%d, v%d, vcc' % (b, b, T + 8))
                I('v_and_or_b32 v%d, v%d, 3, v%d' % (c_, b, c_)); I('v_lshrrev_b32 v%d, 2, v%d' % (b, b)); I('v_lshl_add_u32 v%d, v%d, 3, v%d' % (c_, b, c_))
                I('v_lshl_add_u32 v%d, v%d, 4, v%d' % (WA4 + i, c_, T + 5))
            I('s_lshl_b32 s8, s%d, 14' % S_CH); I('v_add_u32 v%d, s8, v%d' % (T + 2, VL16))
            self.q_scalars()
            I('s_cmp_lg_u32 s%d, 0' % S_WAVE); I('s_cbranch_scc1 L_polldkv')
            self.g.label('L_pollkv')
            self.U('buffer_load_dword v64, v%d, %s, s11 offen sc1' % (T, sr(S_WS, 4))); self.U('s_waitcnt vmcnt(0)')
            I('v_cmp_ne_u32 vcc, s%d, v64' % S_NONCE); I('s_nop 1'); I('s_cbranch_vccz L_polldkv')
            self.spin_tail('L_pollkv', QSL)
            self.g.label('L_polldkv')
            I('s_barrier')
            self.stamp('kvok')
            for i in range(8):
                I('buffer_load_dwordx4 %s, v%d, %s, s%d offen offset:%d sc1' % (vr(64 + 4 * i, 4), T + 4, sr(S_WS, 4), (i >> 1) & 1, (i & 1) * 2048 + (i >> 2) * 128))
            wr = []
            for i in range(8):
                I('v_cvt_pk_bf16_f32 v%d, v%d, v%d' % (64 + 4 * i, 64 + 4 * i, 65 + 4 * i)); I('v_cvt_pk_bf16_f32 v%d, v%d, v%d' % (65 + 4 * i, 66 + 4 * i, 67 + 4 * i))
                wr.append(I('ds_write_b64 v%d, %s offset:%d' % (WA4 + (i & 3), vr(64 + 4 * i, 2), 512 * (i >> 2))))
            self.stamp('kvld')
            qbar = lambda: (I('s_barrier', needs=wr), [I('ds_read_b128 %s, v%d offset:%d' % (ar(32 + 16 * i + 4 * s, 4), T + 2, 4096 * i + 1024 * s)) for i in range(4) for s in range(4)])
        else:
            I('v_bfe_u32 v%d, v%d, 3, 2' % (T + 2, VLANE)); I('v_lshlrev_b32 v%d, 2, v%d' % (T + 2, T + 2)); I('v_and_or_b32 v%d, v%d, 3, v%d' % (T + 2, VLANE, T + 2))
            I('v_bfe_u32 v%d, v%d, 2, 1' % (T + 3, VLANE)); I('v_mul_u32_u24 v%d, 14, v%d' % (T + 3, T + 3)); I('v_add_u32 v%d, v%d, v%d' % (T + 3, T + 3, T + 2))
            I('v_cmp_gt_u32 vcc, 14, v%d' % (T + 2)); I('v_cndmask_b32 v%d, 28, v%d, vcc' % (T + 3, T + 3))
            I('v_and_b32 v%d, 32, v%d' % (T + 2, VLANE)); I('v_lshlrev_b32 v%d, 6, v%d' % (T + 2, T + 2)); I('v_lshl_add_u32 v%d, v%d, 4, v%d' % (T + 2, T + 3, T + 2))
            I('s_lshl_b32 s8, s%d, 14' % S_CH); I('v_add_u32 v%d, s8, v%d' % (T + 2, T + 2))
            I('v_and_b32 v%d, 15, v%d' % (T, VLANE)); I('v_lshlrev_b32 v%d, 7, v%d' % (T, T))
            I('v_and_b32 v%d, 7, v%d' % (T + 3, VLANE)); I('v_lshlrev_b32 v%d, 7, v%d' % (T + 3, T + 3))
            I('s_cmp_lg_u32 s%d, 0' % S_CH); I('s_cbranch_scc1 L_noreduce')
            I('s_lshl_b32 s8, s%d, 1' % S_RB); I('s_add_u32 s8, s8, s%d' % S_IDX); I('s_lshl_b32 s8, s8, 2'); I('s_add_u32 s11, s8, s%d' % S_RT)
            I('s_lshl_b32 s0, s11, 14'); I('s_add_u32 s0, s0, %d' % L.WS_SL)
            I('s_mov_b32 s8, 0x22111000'); I('s_mov_b32 s9, 0x55544332'); I('s_lshl_b32 s10, s%d, 2' % S_RB); I('s_lshr_b64 s[8:9], s[8:9], s10'); I('s_and_b32 s8, s8, 15')
            I('s_lshl_b32 s8, s8, 11'); I('s_add_u32 s1, s8, %d' % L.WS_KVZ)
            self.g.label('L_red_poll')
            self.U('buffer_load_dword v%d, v%d, %s, s1 offen sc1' % (T + 1, T, sr(S_WS, 4))); self.U('s_waitcnt vmcnt(0)')
            I('v_cmp_ne_u32 vcc, s%d, v%d' % (S_NONCE, T + 1)); I('s_nop 1'); I('s_cbranch_vccz L_red_load')
            self.spin_tail('L_red_poll', QSL)
            self.g.label('L_red_load')
            R = 64
            def src(i): return (64 + 4 * i) if i < 15 else T + 4
            for i in range(16):
                if i % 4 == 0: I('s_add_u32 s8, s0, %d' % (1024 * i))
                I('buffer_load_dwordx4 %s, v%d, %s, s8 offen offset:%d' % (vr(src(i), 4), VL16, sr(S_WS, 4), 1024 * (i % 4)))
            I('s_lshl_b32 s8, s11, 9'); I('s_add_u32 s8, s8, %d' % L.WS_KF); I('s_lshl_b32 s9, s11, 7'); I('s_add_u32 s9, s9, %d' % L.WS_KVD)
            for i in range(2, 16):
                for j in (0, 2): I('v_pk_add_f32 %s, %s, %s' % (vr(R + 4 * (i & 1) + j, 2), vr(R + 4 * (i & 1) + j, 2), vr(src(i) + j, 2)))
            for j in (0, 2): I('v_pk_add_f32 %s, %s, %s' % (vr(R + j, 2), vr(R + j, 2), vr(R + 4 + j, 2)))
            I('v_cvt_pk_bf16_f32 v68, v64, v65'); I('v_cvt_pk_bf16_f32 v69, v66, v67')
            I('v_mov_b32 v72, v68'); I('v_mov_b32 v73, v69')
            I('v_permlane32_swap_b32 v72, v70'); I('v_permlane32_swap_b32 v73, v71')
            I('s_mov_b32 exec_hi, 0')
            I('buffer_store_dwordx4 v[68:71], v%d, %s, s8 offen sc1' % (VL16, sr(S_WS, 4)))
            I('s_mov_b64 exec, -1')
            self.stamp('red')
            I('s_waitcnt vmcnt(0)')
            self.publish(9, 72).kind = 'untracked'
            self.g.label('L_noreduce')
            I('s_add_u32 s10, s%d, s%d' % (S_H0, S_WAVE)); I('s_lshl_b32 s11, s10, 10'); I('s_add_u32 s11, s11, %d' % L.WS_KVD)
            I('s_lshl_b32 s10, s10, 12'); I('s_add_u32 s10, s10, %d' % L.WS_KF); I('s_lshl_b32 m0, s%d, 12' % S_WAVE)
            self.g.label('L_pollkv')
            self.U('buffer_load_dword v64, v%d, %s, s11 offen sc1' % (T + 3, sr(S_WS, 4))); self.U('s_waitcnt vmcnt(0)')
            I('v_cmp_ne_u32 vcc, s%d, v64' % S_NONCE); I('s_nop 1'); I('s_cbranch_vccz L_polldkv')
            self.spin_tail('L_pollkv', QSL)
            self.g.label('L_polldkv')
            self.nst = 7
            self.stamp('kvok')
            dm = [I('buffer_load_dwordx4 v%d, %s, s10 offen offset:%d lds' % (VL16, sr(S_WS, 4), 1024 * i)) for i in range(4)]
            qbar = lambda: (I('s_barrier', needs=dm), [I('ds_read_b128 %s, v%d offset:%d' % (ar(32 + 16 * i + 4 * sf, 4), T + 2, 4096 * i + 512 * sf)) for i in range(4) for sf in range(4)])
        qbar()
        N = [64, 80, ACC, ACC + 16]; O = 96
        def ost(f): I('buffer_store_dwordx4 %s, v%d, %s, s%d offen offset:%d sc1' % (vr(O + 4 * f, 4), VL16, sr(S_WS, 4), 20 if f < 4 else 21, (f % 4) * 1024))
        def mm(i):
            for s in range(4):
                I('v_mfma_f32_32x32x16_bf16 %s, %s, %s, %s' % (vr(N[i], 16), ar(32 + 16 * i + 4 * s, 4), vr(ACC + 16 * i + 4 * s, 4), vr(N[i], 16) if s else '0'))
        done = 0
        mm(0); mm(1)
        for i in range(4):
            with g.capture() as fin: self.o_fin(N[i], O + 7 * i, 124 + i)
            if i + 2 < 4:
                with g.capture() as m4: mm(i + 2)
                k = len(fin) // 4
                for j in range(4): g.extend([m4[j]] + fin[j * k:(j + 1) * k if j < 3 else None])
            else: g.extend(fin)
            while 4 * (done + 1) <= 7 * (i + 1): ost(done); done += 1
        self.stamp('ocomp')
        I('s_waitcnt vmcnt(0)')
        self.publish(22, TMP)
        self.stamp('opub')
        I('s_waitcnt vmcnt(0)')
    def q_scalars(self):
        I = self.I
        I('s_lshl_b32 s8, s%d, 2' % S_RB); I('s_add_u32 s10, s8, s%d' % S_RT); I('s_mul_i32 s8, s10, 28'); I('s_mul_i32 s9, s%d, 14' % S_IDX); I('s_add_u32 s8, s8, s9')
        I('s_mul_i32 s9, s%d, 7' % S_CH); I('s_add_u32 s8, s8, s9'); I('s_lshl_b32 s8, s8, 10'); I('s_add_u32 s20, s8, %d' % L.WS_O); I('s_add_u32 s21, s20, 4096')
        I('s_lshl_b32 s8, s10, 1'); I('s_add_u32 s8, s8, s%d' % S_IDX)
        I('s_lshl_b32 s8, s8, 1'); I('s_add_u32 s8, s8, s%d' % S_CH); I('s_lshl_b32 s8, s8, 7'); I('s_add_u32 s22, s8, %d' % L.WS_FO)
    def o_fin(self, N, O, sreg):
        I = self.I; t = TMP + 8
        I('v_fmac_f32 v%d, %s, v%d' % (N + 14, f32(1e-6), sreg)); I('v_rcp_f32 v%d, v%d' % (t, N + 14))
        for j in range(14): I('v_mul_f32 v%d, v%d, v%d' % (N + j, N + j, t))
        for j in range(7): I('v_cvt_pk_bf16_f32 v%d, v%d, v%d' % (O + j, N + 2 * j, N + 2 * j + 1))

    def p2_pre(self):
        I = self.I; g = self.g; A, B, C = 64, 65, 66; out = []
        def st(i, r): I('v_accvgpr_write_b32 a%d, v%d' % (STASH + i, r))
        with g.capture() as a:
            I('s_lshl_b32 s8, s%d, 1' % S_RG)
            I('s_mul_i32 s%d, s8, 112' % S_A0); I('s_mul_i32 s9, s%d, 14' % S_WAVE); I('s_add_u32 s%d, s%d, s9' % (S_A0, S_A0)); I('s_lshl_b32 s%d, s%d, 10' % (S_A0, S_A0))
            I('s_add_u32 s%d, s%d, %d' % (S_A1, S_A0, 112 * 1024))
            I('s_mul_i32 s%d, s8, 28' % S_OSO); I('s_mul_i32 s9, s%d, 7' % S_WAVE); I('s_add_u32 s%d, s%d, s9' % (S_OSO, S_OSO)); I('s_lshl_b32 s%d, s%d, 10' % (S_OSO, S_OSO))
            I('s_add_u32 s%d, s%d, %d' % (S_OSO, S_OSO, L.WS_O))
            I('v_lshrrev_b32 v%d, 3, v%d' % (A, VLANE)); I('v_mul_u32_u24 v%d, 896, v%d' % (A, A)); I('v_and_b32 v%d, 7, v%d' % (B, VLANE)); I('v_lshl_add_u32 v%d, v%d, 4, v%d' % (A, B, A))
            I('v_lshlrev_b32 v%d, 7, v%d' % (B, B)); st(1, A); st(2, B)
        out.append(a)
        with g.capture() as a:
            I('s_lshl_b32 s9, s%d, 3' % S_RG); I('s_add_u32 s9, s9, s%d' % S_WAVE); I('s_mul_i32 s9, s9, %d' % (8 * 896)); I('s_lshl_b32 s8, s%d, 7' % S_CG); I('s_add_u32 s%d, s9, s8' % S_XO)
            I('s_lshl_b32 s8, s%d, 12' % S_RG); I('s_lshl_b32 s9, s%d, 8' % S_WAVE); I('s_add_u32 s9, s9, s8'); I('s_add_u32 s%d, s9, %d' % (S_FA, L.WS_FLAG))
            I('s_lshl_b32 s8, s%d, 10' % S_RG); I('s_add_u32 s%d, s8, %d' % (S_FO, L.WS_FO))
            I('v_and_b32 v%d, 1, v%d' % (A, VLANE)); I('v_lshlrev_b32 v%d, 11, v%d' % (A, A)); I('v_and_b32 v%d, 2, v%d' % (B, VLANE)); I('v_lshl_add_u32 v%d, v%d, 6, v%d' % (A, B, A)); st(0, A)
        out.append(a)
        with g.capture() as a:
            I('v_lshrrev_b32 v%d, 5, v%d' % (C, VLANE)); I('v_bfe_u32 v%d, v%d, 3, 1' % (A, VLANE)); I('v_xor_b32 v%d, v%d, v%d' % (A, A, C))
            I('v_mul_u32_u24 v%d, 14, v%d' % (B, C)); I('v_bfe_u32 v%d, v%d, 2, 2' % (C, VLANE)); I('v_add_u32 v%d, v%d, v%d' % (B, B, C))
            I('v_lshlrev_b32 v%d, 7, v%d' % (B, B)); I('v_lshl_add_u32 v%d, v%d, 6, v%d' % (A, A, B))
            I('v_and_b32 v%d, 3, v%d' % (B, VLANE)); I('v_lshl_add_u32 v%d, v%d, 3, v%d' % (A, B, A))
            I('v_and_b32 v%d, 16, v%d' % (B, VLANE)); I('v_lshl_add_u32 v%d, v%d, 1, v%d' % (A, B, A))
            I('s_and_b32 s9, s%d, 1' % S_WAVE); I('s_lshl_b32 s9, s9, 6'); I('v_xor_b32 v%d, s9, v%d' % (A, A))
            I('s_mul_i32 s9, s%d, %d' % (S_CH, 224 * 128)); I('v_add_u32 v%d, s9, v%d' % (A, A))
            I('v_xor_b32 v%d, 64, v%d' % (B, A)); st(3, A); st(4, B)
            I('v_add_u32 v%d, %d, v%d' % (B, 14 * 128, B)); I('v_and_b32 v%d, 8, v%d' % (C, VLANE)); I('v_cmp_eq_u32 vcc, 0, v%d' % C); I('v_cndmask_b32 v%d, v%d, v%d, vcc' % (B, B, A)); st(5, B)
        out.append(a)
        return out
    def p2_enter(self):
        T = P2T
        for i, r in enumerate((T + 1, T + 2, T + 3, T + 8, T + 9, T + 10)): self.I('v_accvgpr_read_b32 v%d, a%d' % (r, STASH + i))

    def phase2(self):
        I = self.I; g = self.g; T = P2T
        XO, XR, WA = T + 2, T + 4, T + 8
        self.nst = 7
        if 'start' in EXP or 'stg' in EXP: self.nst = 15
        self.poll_check('A', T + 1, S_FA, T)
        self.stamp('hok')
        RING = 64; NR = 15
        self.bdma = {k: [] for k in range(14)}
        def load(n):
            k, a = divmod(n, 2); r = RING + 4 * (n % NR); base = S_A1 if a else S_A0
            I('buffer_load_dwordx4 %s, v%d, %s, s%d offen offset:%d' % (vr(r, 4), VL16, sr(S_WS, 4), base, (k % 4) * 1024))
            if k % 4 == 3: I('s_add_u32 s%d, s%d, 4096' % (base, base))
        def wo_read(kk, dst):
            G, f = divmod(kk, 7)
            for pp in range(2):
                p = 4 * f + 2 * pp; hl = 4 * G + p // 7; i = p % 7
                areg = WA + 2 if i == 6 else WA + (i & 1)
                I('ds_read_b64_tr_b16 %s, v%d offset:%d' % (ar(dst + 2 * pp, 2), areg, L_WO + (28 * hl + 2 * i) * 128))
        EWB, SWB, ORD, GRD, SRD_ = 124, 125, 126, 127, 139
        def tail_addr():
            A, B = 142, 143
            I('v_and_b32 v%d, 31, v%d' % (A, VLANE)); I('v_lshlrev_b32 v%d, 7, v%d' % (A, A)); I('v_and_b32 v%d, 7, v%d' % (B, VLANE)); I('v_lshl_add_u32 v%d, v%d, 4, v%d' % (A, B, A))
            I('v_lshrrev_b32 v%d, 5, v%d' % (B, VLANE)); I('v_lshl_add_u32 v%d, v%d, 3, v%d' % (A, B, A))
            I('s_lshl_b32 s8, s%d, 13' % S_WAVE); I('s_add_u32 s8, s8, %d' % L_XG); I('v_add_u32 v%d, s8, v%d' % (EWB, A))
            I('s_lshl_b32 s8, s%d, 13' % S_CH); I('s_bfe_u32 s9, s%d, 0x10001' % S_WAVE); I('s_lshl_b32 s10, s9, 12'); I('s_add_u32 s8, s8, s10'); I('s_add_u32 s8, s8, %d' % L_XS)
            I('v_add_u32 v%d, s8, v%d' % (SWB, A)); I('s_and_b32 s8, s%d, 1' % S_WAVE); I('s_lshl_b32 s8, s8, 6'); I('v_xor_b32 v%d, s8, v%d' % (SWB, SWB))
            I('s_mul_i32 s9, s9, 28'); I('s_mul_i32 s8, s%d, 14' % S_CH); I('s_add_u32 s9, s9, s8'); I('s_lshl_b32 s9, s9, 10')
            I('v_add_u32 v%d, s9, v%d' % (ORD, VL16))
            I('v_lshrrev_b32 v%d, 3, v%d' % (A, VLANE)); I('v_and_b32 v%d, 7, v%d' % (B, VLANE)); I('v_xor_b32 v%d, v%d, v%d' % (B, B, A))
            I('v_lshlrev_b32 v%d, 7, v%d' % (A, A)); I('v_lshl_add_u32 v%d, v%d, 4, v%d' % (A, B, A)); I('s_lshl_b32 s8, s%d, 10' % S_WAVE); I('s_add_u32 s8, s8, %d' % L_XG)
            I('v_add_u32 v%d, s8, v%d' % (GRD, A)); I('v_add_u32 v%d, %d, v%d' % (SRD_, L_XS - L_XG, GRD))
            I('s_mul_i32 s23, s%d, 7168' % S_WAVE); I('v_mov_b32 v142, %d' % L_CNT)
            I('s_mov_b32 s10, 0x00003f80'); I('s_mov_b32 s11, 0x3f800000'); I('s_mov_b32 s26, %s' % f32(-1.0 / L.LOG2E)); I('s_mov_b32 s27, s26')
        for n in range(NR): load(n)
        nl = NR
        for ki in range(14):
            for a in range(2):
                n = 2 * ki + a; r = RING + 4 * (n % NR)
                for b in range(2):
                    I('v_mfma_f32_32x32x16_bf16 %s, %s, %s, %s' % (vr(16 * (2 * a + b), 16), ar(8 * ki + 4 * b, 4), vr(r, 4), vr(16 * (2 * a + b), 16) if ki else '0'))
                if nl < 28:
                    load(nl); nl += 1
                    if nl == 28: I('buffer_load_dwordx4 %s, v%d, %s, s100 offen' % (vr(XR, 4), XO, sr(S_X, 4)))
            if ki == 0:
                for k in range(9, 14): g.extend(self.b_read(k))
            if ki == 2: tail_addr()
            if ki == int(os.environ.get('EOK', '12')):
                I('s_cmp_lg_u32 s%d, 0' % S_WAVE); I('s_cbranch_scc1 L_noe1')
                self.U('buffer_load_dword v%d, v%d, %s, s99 offen sc1' % (T, T + 3, sr(S_WS, 4)))
                self.g.label('L_noe1')
            if ki == 6: I('s_waitcnt lgkmcnt(0)'); I('s_barrier')
            if ki >= 7:
                for kk in (2 * (ki - 7), 2 * (ki - 7) + 1): wo_read(kk, 4 * kk)
        self.stamp('gdone')
        EW = 64
        wr = []
        for b in range(2):
            for Q in range(4):
                I('v_xor_b32 v%d, %d, v%d' % (EW + 4 * b + Q, 16 * (4 * b + Q), EWB))
                for a in range(2):
                    t = 16 * (2 * a + b)
                    for j in (2 * Q, 2 * Q + 1): I('v_cvt_pk_bf16_f32 v%d, v%d, v%d' % (t + j, t + 2 * j, t + 2 * j + 1))
                    wr.append(I('ds_write_b64 v%d, %s offset:%d' % (EW + 4 * b + Q, vr(t + 2 * Q, 2), 4096 * a)))
        I('s_cmp_lg_u32 s%d, 0' % S_WAVE); I('s_cbranch_scc1 L_noe2')
        self.U('s_waitcnt vmcnt(0)')
        I('v_cmp_ne_u32 vcc, s%d, v%d' % (S_NONCE, T)); I('s_nop 1'); I('s_cmp_eq_u64 vcc, 0'); I('s_cselect_b32 s8, 1, 0'); I('v_mov_b32 v143, s8')
        self.U('ds_write_b32 v142, v143')
        self.g.label('L_noe2')
        I('s_waitcnt lgkmcnt(0)')
        I('s_barrier')
        self.stamp('e2')
        I('ds_read_b32 v143, v142')
        for src in range(8): I('ds_read_b128 %s, v%d offset:%d' % (vr(8 + 4 * src, 4), GRD, 8192 * src))
        for j in range(4): I('v_lshlrev_b32 v%d, 16, v%d' % (76 + 2 * j, XR + j)); I('v_and_b32 v%d, s%d, v%d' % (77 + 2 * j, S_MASK, XR + j))
        I('s_add_u32 s24, s%d, 4096' % S_OSO)
        I('v_readfirstlane_b32 s9, v143')
        def odma():
            for i in range(7):
                if i == 0 or i == 4: I('s_add_u32 m0, s23, %d' % (L_O + 1024 * i)); I('s_nop 0')
                self.U('buffer_load_dwordx4 v%d, %s, s%d offen offset:%d lds' % (VL16, sr(S_WS, 4), S_OSO if i < 4 else 24, 1024 * (i % 4)))
        I('s_cmp_eq_u32 s9, 0'); I('s_cbranch_scc1 L_olate1')
        odma()
        self.g.label('L_olate1')
        for src in range(8):
            for j in range(4):
                I('v_dot2_f32_bf16 v%d, v%d, s10, %s' % (2 * j, 8 + 4 * src + j, 'v%d' % (2 * j) if src else '0'))
                I('v_dot2_f32_bf16 v%d, v%d, s11, %s' % (2 * j + 1, 8 + 4 * src + j, 'v%d' % (2 * j + 1) if src else '0'))
        I('s_cmp_lg_u32 s9, 0'); I('s_cbranch_scc1 L_oearly')
        I('s_cmp_lg_u32 s%d, %d' % (S_WAVE, 9 if 'noq' in EXP else 0)); I('s_cbranch_scc1 L_polldO')
        self.g.label('L_pollO')
        self.U('buffer_load_dword v%d, v%d, %s, s99 offen sc1' % (WA, T + 3, sr(S_WS, 4))); self.U('s_waitcnt vmcnt(0)')
        I('v_cmp_ne_u32 vcc, s%d, v%d' % (S_NONCE, WA)); I('s_nop 1'); I('s_cbranch_vccz L_polldO')
        self.spin_tail('L_pollO', int(os.environ.get('OSL', '3')))
        self.g.label('L_polldO')
        I('s_barrier')
        odma()
        self.g.label('L_oearly')
        self.stamp('ook')
        for j in range(8): I('v_exp_f32 v%d, v%d' % (8 + j, j))
        SW = 72
        for q in range(4): I('v_xor_b32 v%d, %d, v%d' % (SW + q, 16 * q, SWB))
        for j in range(0, 8, 2): I('v_pk_add_f32 %s, %s, 1.0 op_sel_hi:[1,0]' % (vr(8 + j, 2), vr(8 + j, 2)))
        for j in range(8): I('v_rcp_f32 v%d, v%d' % (8 + j, 8 + j))
        for j in range(0, 8, 2): I('v_pk_mul_f32 %s, %s, s[26:27]' % (vr(j, 2), vr(j, 2)))
        for j in range(0, 8, 2): I('v_pk_mul_f32 %s, %s, %s' % (vr(j, 2), vr(j, 2), vr(8 + j, 2)))
        I('s_waitcnt vmcnt(0)')
        I('s_barrier')
        self.stamp('e3')
        OF = 84; SA = 48
        def ord_(kk): I('ds_read_b128 %s, v%d offset:%d' % (vr(OF + 4 * (kk % 10), 4), ORD, 1024 * kk))
        for kk in range(8): ord_(kk)
        for kk in range(14):
            I('v_mfma_f32_32x32x16_bf16 %s, %s, %s, %s' % (vr(SA, 16), ar(4 * kk, 4), vr(OF + 4 * (kk % 10), 4), vr(SA, 16) if kk else '0'))
            if kk + 8 < 14: ord_(kk + 8)
        wr = []
        for q in range(4):
            for j in (2 * q, 2 * q + 1): I('v_cvt_pk_bf16_f32 v%d, v%d, v%d' % (SA + j, SA + 2 * j, SA + 2 * j + 1))
            wr.append(I('ds_write_b64 v%d, %s' % (SW + q, vr(SA + 2 * q, 2))))
        I('s_barrier', needs=wr)
        for h in range(2): I('ds_read_b128 %s, v%d offset:%d' % (vr(16 + 4 * h, 4), SRD_, 8192 * h))
        for h in range(2):
            for j in range(4):
                I('v_dot2_f32_bf16 v%d, v%d, s10, %s' % (24 + 2 * j, 16 + 4 * h + j, 'v%d' % (24 + 2 * j) if h else '0'))
                I('v_dot2_f32_bf16 v%d, v%d, s11, %s' % (25 + 2 * j, 16 + 4 * h + j, 'v%d' % (25 + 2 * j) if h else '0'))
        for j in range(0, 8, 2): I('v_pk_fma_f32 %s, %s, %s, %s' % (vr(j, 2), vr(j, 2), vr(24 + j, 2), vr(76 + j, 2)))
        for j in range(4): I('v_cvt_pk_bf16_f32 v%d, v%d, v%d' % (40 + j, 2 * j, 2 * j + 1))
        I('buffer_store_dwordx4 v[40:43], v%d, %s, s100 offen%s' % (XO, sr(S_OUT, 4), os.environ.get('OUTF', '')))
        self.stamp('final')

    def xfilter(self, body):
        out = []
        for x in body:
            if 'nosc1st' in EXP and x.op.startswith('buffer_store_dwordx4') and 'sc1' in x.text and 'v141' in x.text: x.text = x.text.replace(' sc1', '')
            if 'nost' in EXP and x.op.startswith('buffer_store_dwordx4') and 'v141' in x.text: x.text = 's_nop 0'
            if 'nob' in EXP and x.kind == 'dma' and 's[52:55]' in x.text: x.text = 's_nop 0'
            if 'sysp' in EXP and x.op == 'buffer_load_dword' and x.text.endswith('sc1') and 's[64:67]' in x.text: x.text = x.text.replace(' sc1', ' sc0 sc1')
            if 'nowo' in EXP and x.kind == 'dma' and 's[48:51]' in x.text: x.text = 's_nop 0'
            if 'noatom' in EXP and 'atomic' in x.op: x.text = 's_nop 0'
            if 'ntst' in EXP and x.op.startswith('buffer_store_dwordx4') and 'sc1' in x.text and 'v141' in x.text: x.text = x.text.replace(' sc1', ' sc0 sc1')
            out.append(x)
        return out
    def path(self, prefix, fn, label, keys):
        self.keys = keys
        if 'stamp' in self.__dict__: del self.__dict__['stamp']
        with self.g.capture() as body:
            if label: self.g.label(label)
            fn()
        self.xfilter(body)
        allp = [x for p in prefix for x in p]
        for x in allp: x.done = False
        full = self.g.finish(allp + body)
        if label:
            idx = next(i for i, x in enumerate(full) if x.kind == 'label' and x.text == label + ':')
            return full[idx:], body
        return full, body

    def build(self):
        I = self.I
        with self.g.capture() as pro:
            self.prologue()
            I('s_cmp_eq_u32 s%d, 1' % S_TYPE); I('s_cbranch_scc1 L_kv'); I('s_cmp_eq_u32 s%d, 2' % S_TYPE); I('s_cbranch_scc1 L_q')
        n0 = self.nst
        def endp():
            self.write_stamps(); I('s_endpgm')
        def ffn():
            self.ffn()
        out, _ = self.path([pro], ffn, None, ['0'])
        self.nst = n0
        code, kvc = self.path([pro], self.kv_common, 'L_kv', ['10', '11'])
        n1 = self.nst
        save = (dict(self.bdma), dict(self.bread))
        def kk():
            self.kv_k()
        def kvv():
            self.kv_v()
        c2, _ = self.path([pro, kvc], kk, 'L_kv_k', ['10'])
        self.nst = n1; self.bdma, self.bread = dict(save[0]), dict(save[1])
        c3, _ = self.path([pro, kvc], kvv, 'L_kv_v', ['11'])
        out += code + c2 + c3
        self.nst = n0
        def qq():
            self.q(); endp()
        c4, _ = self.path([pro], qq, 'L_q', ['2'])
        out += c4
        def p2():
            self.phase2(); endp()
        if 'nop2' not in EXP:
            c5, _ = self.path([], p2, 'L_p2', ['0', '10', '11'])
            out += c5
        with self.g.capture() as tail:
            self.g.label('L_end'); I('s_endpgm')
        return out + tail

HEADER = open('cdna_kernels/%s.s.ref' % NAME).read().split('; Override launch')[0]
def wrap(code, launch):
    return HEADER + launch + '''
.amdgcn_target "amdgcn-amd-amdhsa--gfx950"
.text
.globl %(n)s_kernel
.p2align 8
.type %(n)s_kernel,@function
%(n)s_kernel:
%(body)s
.section .rodata,"a"
.p2align 6
.amdhsa_kernel %(n)s_kernel
  .amdhsa_next_free_vgpr 256
  .amdhsa_next_free_sgpr 102
  .amdhsa_accum_offset %(nv)d
  .amdhsa_group_segment_fixed_size 0
  .amdhsa_kernarg_size 80
  .amdhsa_user_sgpr_count 2
  .amdhsa_user_sgpr_kernarg_segment_ptr 1
  .amdhsa_system_sgpr_workgroup_id_x 1
.end_amdhsa_kernel
''' % dict(n=NAME, body=render(code), nv=NV)

if __name__ == '__main__':
    stamps = '--stamps' in sys.argv
    k = K(stamps)
    code = k.build()
    if 'noal' not in EXP:
        import align
        code = align.align(code)
    open(sys.argv[1], 'w').write(wrap(code, '; @launch grid=(256,1,1) block=(512,1,1) lds=163840'))
    json.dump({t: [d.get(i, '') for i in range(16)] for t, d in k.names.items()} if stamps else {}, open(sys.argv[1][:-2] + '.json', 'w'))
    print('instructions', len(code), 'nops', sum(1 for i in code if i.kind == 'nop'))
```

```python
import sys, json, struct, os
from asmgen import *
import layout as L
EXP = os.environ.get('EXP', '').split(',')
SLEEP = int(os.environ.get('SLEEP', '4'))
BCHK = int(os.environ.get('BCHK', '7'))
W1K = int(os.environ.get('W1K', '3'))
PF0 = int(os.environ.get('PF0', '2'))
QSL = int(os.environ.get('QSL', '6'))
NST = int(os.environ.get('NST', '3')); MST = int(os.environ.get('MST', '1'))
ATOM = True
S_FA, S_FO, S_XO, S_SC, S_C1, S_C2, S_C3 = 98, 99, 100, 11, 96, 97, 25
RA, RB_ = [int(x) for x in os.environ.get('R1', '1,2').split(',')]
RC, RD = [int(x) for x in os.environ.get('R2', '2,4').split(',')]
STASH = 72; CSA = 32; DB2 = 125; S_CSB, S_R0 = 30, 101
TSCH = eval(os.environ.get('TSCH', '{3:0x7fc000}'))
T0M = int(os.environ.get('T0M', '0x3fff'), 0)
CST = int(os.environ.get('CST', '0'))
NAME = 'recurrent_scan__linear_kernel_hedgehog__dense_activation_silu__prompt'
def f32(x): return '0x%08x' % struct.unpack('<I', struct.pack('<f', x))[0]

S_X, S_W, S_PHI, S_WO, S_W2, S_OUT, S_DBG, S_WS = 36, 40, 44, 48, 52, 56, 60, 64
S_MASK, S_WAVE, S_IDX, S_RB, S_TYPE = 3, 4, 5, 6, 7
S_XS, S_WSO, S_EX56 = 12, 13, 14
S_MW, S_MX, S_ROW, S_NONCE = 32, 33, 34, 35
S_RT, S_CH = 68, 69
S_ST = 70
S_RG, S_CG, S_BSO, S_STA, S_A0, S_A1, S_OSO, S_NH, S_H0 = 16, 17, 18, 19, 20, 21, 22, 23, 24
S_ST4 = 25
S_L2E = 26
S_HIM = 28
STG = 45056; WPART = 16384
L_CNT = 3 * STG
L_CP = 136192
L_WPHI = 144384
L_SHX = L_WPHI
L_PHI = 0
L_V = 136192
L_STA = 57344
L_WO = 0
L_CX = 135168
L_KVQ = 0
L_KVF = 65536
L_XG = 65536
L_O = 0
L_XS = 131072
KORD = list(range(14))
NV = 144
ACC, WF, XF, ST, CS, AX, AW, AS, DX, DW = 0, 64, 96, 104, 108, 112, 116, 120, 122, 124
PFA = 132; TMP = 128; P2T = 128; BT2 = 126; DB = 139; VLANE = 140; VL16 = 141; BT = 142

class K:
    def __init__(self, stamps):
        self.g = Gen(); self.use_stamps = stamps; self.nst = 0; self.names = {}; self.keys = ['0', '10', '11', '2']
    def I(self, t, needs=()): return self.g.I(t, needs)
    def U(self, t):
        x = self.g.I(t); x.kind = 'untracked'; return x
    def stamp(self, name, real=False):
        if os.environ.get('DLY') == name and (not os.environ.get('DLK') or os.environ['DLK'] in self.keys): self.I('s_sleep %s' % os.environ.get('DLN', '32'))
        if 'dbgt' in EXP and name in ('bar0', 'loopend', 'gdone', 'opub', 'ook'):
            r = {'bar0': [78], 'loopend': [80], 'gdone': [82], 'ook': [84], 'opub': [82, 84]}[name]
            for x in r: self.I('s_memtime s[%d:%d]' % (x, x + 1))
        if not self.use_stamps: return
        i = self.nst
        if i >= 12: return
        self.nst += 1
        for k in self.keys: self.names.setdefault(k, {})[i] = name
        self.I('%s %s' % ('s_memrealtime' if real else 's_memtime', sr(S_ST + 2 * i, 2)))
    def write_stamps(self, total=13):
        if 'dbgt' in EXP:
            I = self.I
            I('s_memrealtime s[74:75]'); I('s_memtime s[76:77]'); I('s_waitcnt vmcnt(0) lgkmcnt(0)')
            I('s_mov_b64 exec, 1'); I('v_mov_b32 v2, 0')
            I('v_mov_b32 v0, s70'); I('buffer_atomic_umax v0, v2, %s, 0 offen offset:8' % sr(S_DBG, 4))
            I('s_not_b32 s8, s70'); I('v_mov_b32 v1, s8'); I('buffer_atomic_umax v1, v2, %s, 0 offen offset:12' % sr(S_DBG, 4))
            I('v_mov_b32 v3, s74'); I('buffer_atomic_umax v3, v2, %s, 0 offen offset:16' % sr(S_DBG, 4))
            I('s_sub_u32 s8, s76, s72'); I('v_mov_b32 v4, s8'); I('buffer_atomic_umax v4, v2, %s, 0 offen offset:20' % sr(S_DBG, 4))
            I('s_sub_u32 s8, s74, s70'); I('v_mov_b32 v5, s8'); I('buffer_atomic_umax v5, v2, %s, 0 offen offset:24' % sr(S_DBG, 4))
            for k, so in enumerate((78, 80, 82, 84)):
                I('s_sub_u32 s8, s%d, s72' % so); I('v_mov_b32 v%d, s8' % (6 + k)); I('buffer_atomic_umax v%d, v2, %s, 0 offen offset:%d' % (6 + k, sr(S_DBG, 4), 28 + 4 * k))
            I('s_waitcnt vmcnt(0)')
            return
        if not self.use_stamps: return
        I = self.I
        I('s_memrealtime %s' % sr(S_ST + 2 * (total - 1), 2))
        I('s_waitcnt lgkmcnt(0)')
        I('s_lshl_b32 s8, s2, 3'); I('s_add_u32 s8, s8, s%d' % S_WAVE); I('s_lshl_b32 s8, s8, 7')
        I('s_add_u32 s8, s8, %d' % L.WS_STAMP)
        I('v_mov_b32 v2, 0')
        I('s_mov_b64 exec, 1')
        for i in range(total):
            I('v_mov_b32 v0, s%d' % (S_ST + 2 * i)); I('v_mov_b32 v1, s%d' % (S_ST + 2 * i + 1))
            I('buffer_store_dwordx2 v[0:1], v2, %s, s8 offen offset:%d' % (sr(S_WS, 4), 8 * i))
        I('s_mov_b64 exec, -1')
    def srd(self, d, base, nbytes):
        I = self.I
        I('s_mov_b32 s%d, s%d' % (d, base)); I('s_and_b32 s%d, s%d, 0xffff' % (d + 1, base + 1))
        I('s_mov_b32 s%d, %d' % (d + 2, nbytes)); I('s_mov_b32 s%d, 0x20000' % (d + 3))

    def prologue(self):
        I = self.I
        I('s_cmp_ge_u32 s2, 256'); I('s_cbranch_scc1 L_end')
        I('s_load_dwordx16 s[16:31], s[0:1], 0'); I('s_load_dwordx4 s[32:35], s[0:1], 64')
        if 'anti' in EXP:
            I('s_lshr_b32 s8, s2, 5'); I('s_and_b32 s9, s2, 31'); I('s_lshl_b32 s9, s9, 3'); I('s_or_b32 s2, s8, s9')
        I('s_getpc_b64 s[8:9]')
        self.g.label('L_pc')
        I('v_cmp_le_u32 vcc, %d, v0' % (1024 if 'nocp0' in EXP else 448)); I('s_cbranch_vccz L_nopf')
        I('s_bfe_u32 s10, s2, 0x30003'); I('s_lshl_b32 s10, s10, 13')
        I('v_and_b32 v1, 63, v0'); I('v_lshlrev_b32 v1, 7, v1'); I('v_add_u32 v1, s10, v1')
        I('v_min_u32 v1, L_end-L_pc, v1')
        self.U('global_load_dword a80, v1, s[8:9]')
        self.g.label('L_nopf')
        if self.use_stamps:
            for i in range(13): I('s_mov_b64 %s, 0' % sr(S_ST + 2 * i, 2))
        self.stamp('rt0', True); self.stamp('t0')
        if 'dbgt' in EXP: I('s_memrealtime s[70:71]'); I('s_memtime s[72:73]')
        I('v_lshrrev_b32 v1, 6, v0'); I('v_and_b32 v0, 63, v0')
        I('v_readfirstlane_b32 s%d, v1' % S_WAVE)
        I('v_mov_b32 v%d, v0' % VLANE); I('v_lshlrev_b32 v%d, 4, v0' % VL16)
        I('s_and_b32 s8, s2, 7'); I('s_lshr_b32 s9, s2, 3')
        I('s_and_b32 s10, s8, 1'); I('s_lshl_b32 s10, s10, 3'); I('s_and_b32 s11, s9, 7'); I('s_add_u32 s%d, s10, s11' % S_RB)
        I('s_lshr_b32 s8, s8, 1'); I('s_lshr_b32 s10, s9, 3')
        I('s_lshl_b32 s11, s8, 2'); I('s_add_u32 s12, s11, s10')
        I('s_mov_b32 s%d, 0' % S_TYPE); I('s_lshl_b32 s%d, s8, 1' % S_IDX); I('s_add_u32 s%d, s%d, s10' % (S_IDX, S_IDX))
        I('s_cmp_lt_u32 s10, 2'); I('s_cbranch_scc1 L_role')
        I('s_mov_b32 s%d, 1' % S_TYPE); I('s_lshr_b32 s%d, 0x4210, s11' % S_IDX); I('s_and_b32 s%d, s%d, 15' % (S_IDX, S_IDX))
        I('s_cmp_eq_u32 s10, 2'); I('s_cbranch_scc1 L_role')
        I('s_and_b32 s13, s8, 1'); I('s_lshl_b32 s%d, s13, 1' % S_IDX); I('s_add_u32 s%d, s%d, 3' % (S_IDX, S_IDX))
        I('s_bfe_u32 s11, s9, 0x10002'); I('s_lshr_b32 s8, s8, 1'); I('s_cmp_lg_u32 s11, s8'); I('s_cbranch_scc1 L_role')
        I('s_mov_b32 s%d, 2' % S_TYPE); I('s_mov_b32 s%d, s13' % S_IDX)
        self.g.label('L_role')
        I('s_lshl_b32 s8, s%d, 4' % S_RB); I('s_add_u32 s8, s8, s12'); I('s_lshl_b32 s8, s8, 3'); I('s_add_u32 s11, s8, s%d' % S_WAVE)
        I('s_mov_b32 s%d, -1' % S_EX56); I('s_mov_b32 s%d, 0x00ffffff' % (S_EX56 + 1))
        I('s_and_b32 s%d, s%d, 3' % (S_RT, S_WAVE)); I('s_lshr_b32 s%d, s%d, 2' % (S_CH, S_WAVE))
        I('s_mov_b32 s%d, 0xffff0000' % S_MASK)
        I('v_lshrrev_b32 v2, 3, v0'); I('v_mul_u32_u24 v2, 896, v2')
        I('v_lshrrev_b32 v3, 4, v0'); I('v_and_b32 v4, 7, v0'); I('v_xor_b32 v4, v4, v3')
        I('v_lshl_add_u32 v%d, v4, 4, v2' % DX)
        I('v_xor_b32 v4, 4, v4'); I('v_lshl_add_u32 v%d, v4, 4, v2' % (DX + 1)); I('v_add_u32 v%d, %d, v%d' % (DX + 1, 8 * 896 - 1024, DX + 1))
        I('s_lshl_b32 s8, s%d, 3' % S_RB); I('s_add_u32 s8, s8, s%d' % S_WAVE); I('s_mul_i32 s%d, s8, %d' % (S_XS, 16 * 896))
        I('v_cmp_lt_u32 vcc, 27, v0'); I('v_subrev_u32 v7, 28, v0'); I('v_cndmask_b32 v7, v0, v7, vcc'); I('v_cndmask_b32 v6, 0, 1, vcc')
        I('v_cmp_gt_u32 vcc, 56, v0'); I('v_mov_b32 v5, 0x7fffffff'); I('v_cndmask_b32 v5, v5, v%d, vcc' % VL16)
        I('s_waitcnt lgkmcnt(0)')
        if 'start' in EXP: self.stamp('karg')
        self.srd(S_X, 16, 2048 * 896)
        self.srd(S_WS, 34, L.WS_BYTES); self.srd(S_DBG, 32, 256)
        I('s_mov_b32 s%d, s11' % S_ROW)
        I('s_lshl_b32 s%d, s%d, 11' % (S_MX, S_WAVE))
        I('s_mul_i32 s%d, s%d, %d' % (S_MW, S_WAVE, 8 * 448)); I('s_add_u32 s%d, s%d, %d' % (S_MW, S_MW, WPART))

    def start_stream(self, gpitch):
        I = self.I
        for i in range(1, 4): I('v_add_u32 v%d, %d, v%d' % (DW + i, i * (2 * gpitch - 896), DW))
        I('s_mul_i32 s8, s%d, %d' % (S_WAVE, 8 * gpitch)); I('s_add_u32 s%d, s%d, s8' % (S_WSO, S_WSO))
        self.gpitch = gpitch
        d = {}
        if 'start' in EXP: self.stamp('pre_s0')
        grps, d[0] = self.stage_dma(0, gpitch)
        for gp in grps: self.g.extend(gp)
        I('s_mul_i32 s8, s%d, 896' % S_ROW)
        I('buffer_load_dwordx4 %s, v5, %s, s8 offen' % (vr(XF, 4), sr(S_X, 4)))
        I('s_cmp_ge_u32 s%d, 7' % S_RB); I('s_cbranch_scc1 L_nocx%s' % self.tagbase)
        I('s_sub_u32 s8, s%d, 1' % S_RB); I('s_mul_i32 s8, s8, %d' % (64 * gpitch)); I('s_add_u32 s8, s8, s%d' % S_WSO)
        I('s_add_u32 m0, s%d, %d' % (S_MW, L_CX - WPART)); I('s_mov_b64 exec, %s' % sr(S_EX56, 2))
        for j in range(4): self.U('buffer_load_dwordx4 v%d, %s, s8 offen offset:%d lds' % (DW + j, sr(S_W, 4), 896 * j))
        I('s_mov_b64 exec, -1')
        self.g.label('L_nocx%s' % self.tagbase)
        lab = 'L_nonon' + self.tagbase
        I('s_or_b32 s8, s2, s%d' % S_WAVE); I('s_cmp_lg_u32 s8, 0'); I('s_cbranch_scc1 %s' % lab)
        self.U('s_memrealtime s[8:9]'); self.U('s_waitcnt lgkmcnt(0)'); I('s_or_b32 s8, s8, 1'); I('v_mov_b32 v8, s8'); I('v_mov_b32 v9, 0')
        I('s_mov_b64 exec, 1'); self.U('buffer_store_dword v8, v9, %s, 0 offen sc1' % sr(S_DBG, 4)); I('s_mov_b64 exec, -1')
        self.g.label(lab)
        if 'start' in EXP: self.stamp('s0iss')
        return d
    def mall_addr(self):
        I = self.I
        segs = [(16, 7, 2, 5, 2048 * 896), (18, 4, 128 * 21, 4, 448 * 2688), (26, 5, 128 * 28, 5, 448 * 3584), (28, 7, 0, 7, 1792 * 896), (22, 2, 0, 2, 448 * 896)]
        I('s_lshl_b32 s8, s2, 3'); I('s_add_u32 s8, s8, s%d' % S_WAVE)
        lo = 0
        for i, (sb, mul, first, n, size) in enumerate(segs):
            I('s_mul_i32 s9, s8, %d' % mul); I('s_add_i32 s9, s9, %d' % (first - lo))
            I('v_add_u32 v10, s9, v0'); I('v_lshlrev_b32 v10, 7, v10'); I('v_min_u32 v10, %d, v10' % (size - 4))
            if i == 0:
                I('v_mov_b32 v11, v10'); I('v_mov_b32 v8, s%d' % sb); I('v_mov_b32 v9, s%d' % (sb + 1))
            else:
                I('v_cmp_le_u32 vcc, %d, v0' % lo); I('v_mov_b32 v12, s%d' % sb); I('v_mov_b32 v13, s%d' % (sb + 1))
                I('v_cndmask_b32 v11, v11, v10, vcc'); I('v_cndmask_b32 v8, v8, v12, vcc'); I('v_cndmask_b32 v9, v9, v13, vcc')
            lo += n
        I('v_add_co_u32 v%d, vcc, v8, v11' % PFA); I('v_addc_co_u32 v%d, vcc, 0, v9, vcc' % (PFA + 1))
    def mall_issue(self, part, mask=None):
        if 'nomall' in EXP: return []
        I = self.I
        with self.g.capture() as a:
            I('s_mov_b64 exec, %d' % (mask or T0M))
            I('global_load_dword a%d, %s, off' % (80 + part, vr(PFA, 2))).dst = set()
            I('s_mov_b64 exec, -1')
        return [a]
    def pre_loop(self, p2, idx0, extra=None, late=None):
        I = self.I; g = self.g
        self.mall_addr()
        if 't0early' in EXP:
            for gp in self.mall_issue(0): g.extend(gp)
        self.late_srds()
        if p2:
            self.p2_setup()
            for gp in self.p2_pre(): g.extend(gp)
        I('s_add_u32 s8, s%d, %d' % (S_IDX, idx0)); I('s_lshl_b32 s8, s8, 14'); I('s_add_u32 s%d, s8, %d' % (S_CSB, L.WS_CSG))
        if extra: extra()
        if 'start' in EXP: self.stamp('setup')
        self.s0pos = len(g.cur)
        if 'not0' not in EXP and 't0early' not in EXP:
            for gp in self.mall_issue(0): g.extend(gp)
        if late: late()
        self.row_stats()
    def chunks(self, fn, n=10):
        with self.g.capture() as body:
            fn()
        out = []; cur = []
        for i, x in enumerate(body):
            cur.append(x)
            nxt = body[i + 1] if i + 1 < len(body) else None
            safe = nxt is not None and not (nxt.op.startswith(('s_cselect', 's_cbranch', 's_addc', 's_subb', 'v_cndmask', 'v_addc')) or nxt.kind in ('dma', 'label')) \
                and not x.op.startswith(('s_cmp', 'v_cmp')) and 'm0' not in x.dst
            if len(cur) >= n and safe: out.append(cur); cur = []
        if cur: out.append(cur)
        return out

    def late_srds(self):
        I = self.I
        self.srd(S_PHI, 20, 16 * 28 * 28 * 2); self.srd(S_WO, 22, 448 * 896); self.srd(S_W2, 28, 1792 * 896)
        self.srd(S_OUT, 30, 2048 * 896)
        I('s_mov_b32 s%d, %s' % (S_L2E, f32(L.LOG2E))); I('s_mov_b32 s%d, %s' % (S_L2E + 1, f32(L.LOG2E)))
        I('s_mov_b32 s%d, 0' % S_HIM); I('s_mov_b32 s%d, -1' % (S_HIM + 1))
        I('s_mov_b32 s31, 0')

    def late_group(self, p2, extra=None):
        with self.g.capture() as a:
            self.late_srds()
            if extra: extra()
        self.p2flag = p2
        return a
    def p2_setup(self):
        I = self.I; T = 64
        I('s_lshr_b32 s9, s2, 3'); I('s_and_b32 s8, s9, 3'); I('s_add_u32 s8, s8, 24'); I('s_cmp_lt_u32 s9, 24'); I('s_cselect_b32 s9, s9, s8')
        I('s_mul_i32 s8, s9, 37'); I('s_lshr_b32 s8, s8, 8'); I('s_mul_i32 s10, s8, 7'); I('s_sub_u32 s%d, s9, s10' % S_CG)
        I('s_and_b32 s10, s2, 7'); I('s_lshl_b32 s10, s10, 2'); I('s_add_u32 s%d, s10, s8' % S_RG)
        I('s_mul_i32 s%d, s%d, %d' % (S_BSO, S_WAVE, 224 * 896)); I('s_lshl_b32 s8, s%d, 7' % S_CG); I('s_add_u32 s%d, s%d, s8' % (S_BSO, S_BSO))
        I('s_lshl_b32 s%d, s%d, 12' % (S_STA, S_WAVE)); I('s_add_u32 s%d, s%d, %d' % (S_STA, S_STA, L_STA))
        I('v_lshrrev_b32 v%d, 3, v140' % T); I('v_mul_u32_u24 v%d, 896, v%d' % (T, T))
        I('v_lshrrev_b32 v%d, 2, v140' % (T + 1)); I('v_and_b32 v%d, 4, v%d' % (T + 1, T + 1)); I('v_and_b32 v%d, 7, v140' % (T + 2))
        I('v_xor_b32 v%d, v%d, v%d' % (T + 1, T + 1, T + 2)); I('v_lshl_add_u32 v%d, v%d, 4, v%d' % (DB, T + 1, T))
        I('v_lshrrev_b32 v%d, 5, v140' % T); I('v_lshlrev_b32 v%d, 2, v%d' % (T, T)); I('v_bfe_u32 v%d, v140, 2, 2' % (T + 1)); I('v_add_u32 v%d, v%d, v%d' % (T, T, T + 1))
        I('v_lshlrev_b32 v%d, 7, v%d' % (T, T)); I('v_add_u32 v%d, s%d, v%d' % (T, S_STA, T))
        I('v_and_b32 v%d, 3, v140' % (T + 1)); I('v_lshlrev_b32 v%d, 3, v%d' % (T + 1, T + 1))
        I('v_and_b32 v%d, 16, v140' % (T + 2)); I('v_lshl_add_u32 v%d, v%d, 1, v%d' % (T + 1, T + 2, T + 1))
        I('v_and_b32 v%d, 8, v140' % (T + 2)); I('v_lshlrev_b32 v%d, 3, v%d' % (T + 2, T + 2)); I('v_xor_b32 v%d, v%d, v%d' % (T + 1, T + 1, T + 2))
        I('v_add_u32 v%d, v%d, v%d' % (BT, T, T + 1))
        I('v_xor_b32 v%d, 64, v%d' % (T + 1, T + 1)); I('v_add_u32 v%d, v%d, v%d' % (BT + 1, T, T + 1))

    def slot4_setup(self):
        I = self.I
        I('s_lshl_b32 s%d, s%d, 11' % (S_ST4, S_WAVE)); I('s_add_u32 s%d, s%d, %d' % (S_ST4, S_ST4, L_SHX)); I('s_sub_u32 s8, s%d, s%d' % (S_ST4, S_STA))
        for b in range(2): I('v_add_u32 v%d, s8, v%d' % (BT2 + b, BT + b))
    def wo_dma(self):
        g = self.g; I = self.I; grps = []
        with g.capture() as a:
            I('s_mul_i32 s23, s%d, %d' % (S_WAVE, 56 * 896)); I('s_lshl_b32 s24, s%d, 7' % S_CG); I('s_add_u32 s23, s23, s24'); I('s_mul_i32 s24, s%d, %d' % (S_WAVE, 56 * 128))
        for i in range(0, 7, 2):
            with g.capture() as b:
                I('s_add_u32 m0, s24, %d' % (L_WO + 1024 * i)); I('s_add_u32 s8, s23, %d' % (8 * 896 * i))
                I('buffer_load_dwordx4 v%d, %s, s8 offen lds' % (DB, sr(S_WO, 4)))
                if i + 1 < 7: I('buffer_load_dwordx4 v%d, %s, s8 offen offset:1024 lds' % (DB2, sr(S_WO, 4)))
            grps.append((a if i == 0 else []) + b)
        return grps
    SLOTS = [(0, BT), (2048, BT), (32768, BT), (34816, BT), (None, BT2)]
    def b_dma(self, k, needs=()):
        g = self.g; I = self.I; so = self.SLOTS[k % self.nslot][0]; grps = []
        with g.capture() as a:
            I('s_add_u32 m0, s%d, %d' % (S_STA, so) if so is not None else 's_mov_b32 m0, s%d' % S_ST4)
            I('s_add_u32 s8, s%d, %d' % (S_BSO, 16 * k * 896))
            I('buffer_load_dwordx4 v%d, %s, s8 offen lds' % (DB, sr(S_W2, 4)), needs=needs)
            I('buffer_load_dwordx4 v%d, %s, s8 offen offset:1024 lds' % (DB2, sr(S_W2, 4)))
        grps.append(a)
        self.bdma[k] = [x for gp in grps for x in gp if x.kind == 'dma']
        return grps
    def b_read(self, k):
        so, reg = self.SLOTS[k % self.nslot]; out = []
        if so is None: so = 0
        for b in range(2):
            for h in range(2):
                out.append(Instr('ds_read_b64_tr_b16 %s, v%d offset:%d' % (ar(8 * k + 4 * b + 2 * h, 2), reg + b, so + 1024 * h), needs=self.bdma[k]))
        self.bread[k] = out
        return out
    def b_tasks(self, k0, k1):
        t = [self.b_read(k) for k in range(k0, k1)]
        for k in range(k0, k1):
            if k + self.nslot < 14: t += self.b_dma(k + self.nslot, needs=self.bread[k])
        return t

    def stage_dma(self, st, gpitch):
        g = self.g; I = self.I; base = (st % 3) * STG
        nt = ' nt' if st < int(os.environ.get('NT', '0')) else ''; ntx = ' nt' if st < int(os.environ.get('NTX', os.environ.get('NT', '0'))) else ''
        grps = []
        for i in range(0, 4, 2):
            with g.capture() as a:
                if i == 0: I('s_add_u32 m0, s%d, %d' % (S_MW, base))
                I('s_mov_b64 exec, %s' % sr(S_EX56, 2))
                for j in (i, i + 1): I('buffer_load_dwordx4 v%d, %s, s%d offen offset:%d%s lds' % (DW + j, sr(S_W, 4), S_WSO, 896 * j, nt))
                I('s_mov_b64 exec, -1')
            grps.append(a)
        with g.capture() as a:
            I('s_add_u32 m0, s%d, %d' % (S_MX, base)); I('s_add_u32 s%d, s%d, %d' % (S_WSO, S_WSO, 64 * gpitch))
            for i in range(2): I('buffer_load_dwordx4 v%d, %s, s%d offen offset:%d%s lds' % (DX + i, sr(S_X, 4), S_XS, 1024 * i, ntx))
            I('s_add_u32 s%d, s%d, 128' % (S_XS, S_XS))
        grps.append(a)
        return grps, [x for gp in grps for x in gp if x.kind == 'dma']

    def read_addrs(self, clamp, shared=False):
        I = self.I; T = TMP
        I('v_and_b32 v%d, 31, v0' % T); I('v_lshlrev_b32 v%d, 7, v%d' % (T, T)); I('s_lshl_b32 s8, s%d, 12' % S_RT); I('v_add_u32 v%d, s8, v%d' % (T, T))
        I('v_lshrrev_b32 v%d, 5, v0' % (T + 1)); I('v_bfe_u32 v%d, v0, 1, 3' % (T + 2)); I('v_xor_b32 v%d, v%d, v%d' % (T + 2, T + 2, T + 1))
        I('v_lshlrev_b32 v%d, 3, v%d' % (T + 3, T + 1)); I('v_bfe_u32 v%d, v0, 2, 2' % (T + 4)); I('v_add_u32 v%d, v%d, v%d' % (T + 3, T + 3, T + 4))
        I('v_mul_u32_u24 v%d, 448, v%d' % (T + 3, T + 3))
        I('v_bfe_u32 v%d, v0, 4, 1' % (T + 4)); I('v_and_b32 v%d, 3, v0' % (T + 5)); I('v_lshl_add_u32 v%d, v%d, 2, v%d' % (T + 4, T + 4, T + 5))
        if shared:
            I('s_lshl_b32 s8, s%d, 2' % S_CH); I('v_xor_b32 v%d, s8, v%d' % (T + 6, T + 4)); I('v_lshl_add_u32 v%d, v%d, 3, v%d' % (T + 6, T + 6, T + 3))
            I('v_add_u32 v%d, %d, v%d' % (T + 6, WPART + 384, T + 6))
        if clamp: I('v_min_u32 v%d, 6, v%d' % (T + 4, T + 4))
        if shared:
            I('s_cmp_eq_u32 s%d, 7' % S_WAVE); I('s_cselect_b32 s8, 4, 0'); I('v_xor_b32 v%d, s8, v%d' % (CS + 3, T + 4))
            I('s_min_u32 s9, s%d, 6' % S_WAVE); I('s_lshl_b32 s9, s9, 6'); I('s_add_u32 s9, s9, %d' % L_CX)
        else:
            I('v_mov_b32 v%d, v%d' % (CS + 3, T + 4)); I('s_mul_i32 s9, s%d, 56' % S_RT); I('s_add_u32 s9, s9, s10'); I('s_add_u32 s9, s9, %d' % (L_CX - WPART))
        I('v_lshl_add_u32 v%d, v%d, 3, v%d' % (CS + 3, CS + 3, T + 3)); I('v_add_u32 v%d, s9, v%d' % (CS + 3, CS + 3))
        I('v_lshl_add_u32 v%d, v%d, 3, v%d' % (T + 3, T + 4, T + 3))
        I('v_add_u32 v%d, s10, v%d' % (T + 3, T + 3))
        for i in range(4):
            I('s_add_u32 s8, s%d, s%d' % (S_RT, S_CH)); I('s_add_u32 s8, s8, %d' % i); I('s_and_b32 s8, s8, 3')
            I('s_lshl_b32 s9, s8, 1'); I('v_xor_b32 v%d, s9, v%d' % (T + 5, T + 2)); I('v_lshl_add_u32 v%d, v%d, 4, v%d' % (AX + i, T + 5, T))
            I('s_mul_i32 s9, s8, 7168'); I('v_add_u32 v%d, s9, v%d' % (AW + i, T + 3))
            if shared and i in (0, 2): I('v_add_u32 v%d, s9, v%d' % (AS + i // 2, T + 6))

    def row_stats(self):
        I = self.I; S, Q = ST, ST + 1
        I('s_mov_b32 s8, 0x3f803f80')
        I('v_dot2_f32_bf16 v%d, v%d, s8, 0' % (S, XF)); I('v_dot2_f32_bf16 v%d, v%d, v%d, 0' % (Q, XF, XF))
        for q in range(1, 4):
            I('v_dot2_f32_bf16 v%d, v%d, s8, v%d' % (S, XF + q, S)); I('v_dot2_f32_bf16 v%d, v%d, v%d, v%d' % (Q, XF + q, XF + q, Q))
        for m in ('row_shr:1', 'row_shr:2', 'row_shr:4', 'row_shr:8'):
            for r in (S, Q): I('v_add_f32_dpp v%d, v%d, v%d %s row_mask:0xf bank_mask:0xf bound_ctrl:0' % (r, r, r, m))
        for m, rm in (('row_bcast:15', '0xa'), ('row_bcast:31', '0xc')):
            for r in (S, Q): I('v_add_f32_dpp v%d, v%d, v%d %s row_mask:%s bank_mask:0xf' % (r, r, r, m, rm))
        I('v_mul_f32 v%d, %s, v%d' % (S, f32(1.0 / 448), S)); I('v_mul_f32 v%d, %s, v%d' % (Q, f32(1.0 / 448), Q))
        I('v_fma_f32 v%d, -v%d, v%d, v%d' % (Q, S, S, Q)); I('v_max_f32 v%d, 0, v%d' % (Q, Q))
        def rbf(r):
            I('v_cvt_pk_bf16_f32 v%d, v%d, v%d' % (r, r, r)); I('v_lshlrev_b32 v%d, 16, v%d' % (r, r))
        rbf(S); rbf(Q)
        I('v_add_f32 v%d, %s, v%d' % (Q, f32(1e-5), Q)); rbf(Q)
        I('v_sqrt_f32 v%d, v%d' % (Q, Q)); rbf(Q)
        I('v_rcp_f32 v%d, v%d' % (Q, Q))
        I('v_sub_f32 v%d, 0, v%d' % (S, S))

    def nonce_issue(self):
        self.I('v_mov_b32 v%d, 0' % (ST + 3))
        return self.I('buffer_load_dword v%d, v%d, %s, 0 offen sc1' % (ST + 2, ST + 3, sr(S_DBG, 4)))
    def nonce_get_publish(self, tag):
        I = self.I; U = self.U
        I('v_readfirstlane_b32 s%d, v%d' % (S_NONCE, ST + 2))
        I('s_cmp_lg_u32 s%d, 0' % S_NONCE); I('s_cbranch_scc1 L_gotn%s' % tag)
        self.g.label('L_spinn%s' % tag)
        U('buffer_load_dword v%d, v%d, %s, 0 offen sc1' % (ST + 2, ST + 3, sr(S_DBG, 4)))
        U('s_waitcnt vmcnt(0)')
        I('v_readfirstlane_b32 s%d, v%d' % (S_NONCE, ST + 2)); I('s_nop 1')
        I('s_cmp_lg_u32 s%d, 0' % S_NONCE); I('s_cbranch_scc1 L_gotn%s' % tag)
        self.spin_tail('L_spinn%s' % tag)
        self.g.label('L_gotn%s' % tag)
        I('v_mov_b32 v%d, s%d' % (ST + 2, S_NONCE)); I('v_mov_b32 v%d, s%d' % (ST + 3, S_NONCE))
        I('s_lshl_b32 s8, s%d, 4' % S_ROW); I('s_add_u32 s8, s8, %d' % L.WS_RS); I('v_mov_b32 v%d, 0' % (TMP + 8))
        I('s_mov_b32 exec_lo, 0'); I('s_mov_b32 exec_hi, 0x80000000')
        I('buffer_store_dwordx4 %s, v%d, %s, s8 offen sc1' % (vr(ST, 4), TMP + 8, sr(S_WS, 4)))
        I('s_mov_b64 exec, -1')
    def rs_issue(self):
        I = self.I
        I('s_lshl_b32 s8, s%d, 2' % S_RB); I('s_add_u32 s8, s8, s%d' % S_RT); I('s_lshl_b32 s8, s8, 9'); I('s_add_u32 s%d, s8, %d' % (S_ROW, L.WS_RS))
        I('v_and_b32 v%d, 31, v%d' % (DX, VLANE)); I('v_lshlrev_b32 v%d, 4, v%d' % (DX, DX))
        return I('buffer_load_dwordx4 %s, v%d, %s, s%d offen sc1' % (vr(ST, 4), DX, sr(S_WS, 4), S_ROW))
    def rs_get(self, tag, scale):
        I = self.I; U = self.U
        I('v_cmp_ne_u32 vcc, s%d, v%d' % (S_NONCE, ST + 2)); I('s_nop 1'); I('s_cbranch_vccz L_gotr%s' % tag)
        self.g.label('L_spinr%s' % tag)
        U('buffer_load_dwordx4 %s, v%d, %s, s%d offen sc1' % (vr(ST, 4), DX, sr(S_WS, 4), S_ROW))
        U('s_waitcnt vmcnt(0)')
        I('v_cmp_ne_u32 vcc, s%d, v%d' % (S_NONCE, ST + 2)); I('s_nop 1'); I('s_cbranch_vccz L_gotr%s' % tag)
        self.spin_tail('L_spinr%s' % tag)
        self.g.label('L_gotr%s' % tag)
        for q in range(4): I('v_cvt_pk_bf16_f32 v%d, v%d, v%d' % (XF + q, ST, ST))
        I('v_mul_f32 v%d, %s, v%d' % (ST, f32(scale), ST + 1))
    def publish(self, soff_s, tmp, needs=()):
        I = self.I
        I('v_mov_b32 v%d, s%d' % (tmp, S_NONCE)); I('v_mov_b32 v%d, 0' % (tmp + 1)); I('s_mov_b64 exec, 1')
        x = I('buffer_store_dword v%d, v%d, %s, s%d offen sc1' % (tmp, tmp + 1, sr(S_WS, 4), soff_s), needs=needs)
        I('s_mov_b64 exec, -1')
        return x
    def poll(self, tag, voff, soff_s, tmp):
        I = self.I; U = self.U
        self.g.label('L_poll%s' % tag)
        U('buffer_load_dword v%d, v%d, %s, s%d offen sc1' % (tmp, voff, sr(S_WS, 4), soff_s))
        I('s_waitcnt vmcnt(0)')
        I('v_cmp_ne_u32 vcc, s%d, v%d' % (S_NONCE, tmp)); I('s_nop 1'); I('s_cbranch_vccz L_polld%s' % tag)
        self.spin_tail('L_poll%s' % tag)
        self.g.label('L_polld%s' % tag)
    def poll_issue(self, voff, soff_s, tmp):
        return self.I('buffer_load_dword v%d, v%d, %s, s%d offen sc1' % (tmp, voff, sr(S_WS, 4), soff_s))
    def poll_check(self, tag, voff, soff_s, tmp):
        I = self.I; U = self.U
        if 'nopoll' in EXP and tag in 'AB': return
        I('v_cmp_ne_u32 vcc, s%d, v%d' % (S_NONCE, tmp)); I('s_nop 1'); I('s_cbranch_vccz L_polld%s' % tag)
        self.g.label('L_poll%s' % tag)
        U('buffer_load_dword v%d, v%d, %s, s%d offen sc1' % (tmp, voff, sr(S_WS, 4), soff_s)); U('s_waitcnt vmcnt(0)')
        I('v_cmp_ne_u32 vcc, s%d, v%d' % (S_NONCE, tmp)); I('s_nop 1'); I('s_cbranch_vccz L_polld%s' % tag)
        self.spin_tail('L_poll%s' % tag)
        self.g.label('L_polld%s' % tag)
    def spin_tail(self, lab, sl=None):
        I = self.I
        if (SLEEP if sl is None else sl): I('s_sleep %d' % (SLEEP if sl is None else sl))
        else: I('s_nop 0')
        pass; I('s_add_u32 s31, s31, 1'); I('s_cmp_lt_u32 s31, 0x8000'); I('s_cbranch_scc1 %s' % lab)

    def l2pf(self, st):
        if 'l2pf' not in EXP: return []
        I = self.I; lab = 'L_pf%s%d' % (self.tagbase, st)
        with self.g.capture() as a:
            I('s_lshr_b32 s8, s%d, 1' % S_WAVE); I('s_cmp_lg_u32 s8, %d' % (st - PF0)); I('s_cbranch_scc1 %s' % lab)
            I('s_lshr_b32 s8, s2, 3'); I('s_lshl_b32 s8, s8, 3'); I('s_add_u32 s8, s8, s%d' % S_WAVE); I('s_lshl_b32 s8, s8, 13')
            I('v_lshlrev_b32 v%d, 7, v%d' % (TMP + 8, VLANE))
            self.U('buffer_load_dword a80, v%d, %s, s8 offen' % (TMP + 8, sr(S_W2, 4)))
            I('s_sub_u32 s8, s8, %d' % (196 * 8192)); I('s_cbranch_scc1 %s' % lab)
            self.U('buffer_load_dword a80, v%d, %s, s8 offen' % (TMP + 8, sr(S_WO, 4)))
            self.g.label(lab)
        return [a]

    def code_pf(self, tg, tmp, dst):
        if 'nocpf' in EXP: return []
        I = self.I
        with self.g.capture() as a:
            I('s_getpc_b64 s[8:9]'); self.g.label('L_cpf%s' % tg)
            I('s_sub_u32 s8, s8, L_cpf%s-L_pc' % tg); I('s_subb_u32 s9, s9, 0')
            I('s_bfe_u32 s10, s2, 0x20003'); I('s_lshl_b32 s10, s10, 3'); I('s_add_u32 s10, s10, s%d' % S_WAVE); I('s_lshl_b32 s10, s10, 11')
            I('v_lshlrev_b32 v%d, 7, v%d' % (tmp, VLANE)); I('v_add_u32 v%d, s10, v%d' % (tmp, tmp)); I('v_min_u32 v%d, L_end-L_pc, v%d' % (tmp, tmp))
            I('s_mov_b64 exec, 0xffff')
            I('global_load_dword %s, v%d, s[8:9]' % (dst, tmp))
            I('s_mov_b64 exec, -1')
        return [a]

    def gemm(self, tiles, gpitch, dms, tag, hooks, tl):
        g = self.g; I = self.I
        dmas = dict(dms)
        NF, LOOK = 8, 4
        seq = [(ks, cc) for ks in range(28) for cc in range(len(tiles[ks & 3]['t']))]
        def wread(n):
            ks, cc = seq[n]; a = WF + 4 * (n % NF); c, areg, off = tiles[ks & 3]['t'][cc]
            return [Instr('ds_read_b64_tr_b16 %s, v%d offset:%d' % (vr(a + 2 * h, 2), areg, off + h * 4 * 448)) for h in range(2)]
        def xread(ks):
            return [Instr('ds_read_b128 %s, v%d' % (vr(XF + 4 * (ks % 2), 4), AX + (ks & 3)))]
        aregs = sorted(set(list(range(AX, AX + 4)) + [t[1] for p in tiles for t in p['t']]))
        def adv(st):
            d = STG if st % 3 else -2 * STG
            return [Instr('v_add_u32 v%d, %d, v%d' % (r, d, r)) if d > 0 else Instr('v_subrev_u32 v%d, %d, v%d' % (r, -d, r)) for r in aregs]
        tc = [0]
        def cs_ops(r, c):
            t = TMP + 2 * (tc[0] % 4); tc[0] += 1
            return [Instr('v_lshlrev_b32 v%d, 16, v%d' % (t, r)), Instr('v_and_b32 v%d, s%d, v%d' % (t + 1, S_MASK, r)),
                    Instr('v_add_f32 v%d, v%d, v%d' % (CS + c, CS + c, t)), Instr('v_add_f32 v%d, v%d, v%d' % (CS + c, CS + c, t + 1))]
        if 'start' in EXP:
            self.stamp('rowst'); I('s_nop 0', needs=dmas[0]); self.stamp('s0arr'); I('s_waitcnt lgkmcnt(0)')
        BAR0 = len(g.cur)
        I('s_barrier', needs=dmas[0])
        self.stamp('bar0')
        g.extend(xread(0))
        first = [wread(n) for n in range(LOOK)]
        for x in first: g.extend(x)
        g1, dmas[1] = self.stage_dma(1, gpitch)
        pend, dmas[2] = self.stage_dma(2, gpitch)
        g.cur[self.s0pos:self.s0pos] = [Instr('s_barrier')] + [x for gp in g1 for x in gp]
        wrd = {}
        cs = {}
        def cs_make():
            with g.capture() as a:
                T = TMP
                I('s_cmp_ge_u32 s%d, 7' % S_RB); I('s_cbranch_scc1 L_nocm%s' % tag)
                I('s_mov_b32 s9, 0x3f803f80'); CT = [128, 130, 134, 136]
                for half in range(2):
                    for k2 in range(2):
                        for h in range(2): self.U('ds_read_b64_tr_b16 %s, v%d offset:%d' % (vr(CT[2 * k2 + h], 2), CS + 3, (2 * half + k2) * 7168 + h * 1792))
                    self.U('s_waitcnt lgkmcnt(0)')
                    for q in range(8): I('v_dot2_f32_bf16 v%d, v%d, s9, %s' % (CS + (q & 1), CT[q >> 1] + (q & 1), 'v%d' % (CS + (q & 1)) if half or q > 1 else '0'))
                I('s_lshl_b32 s8, s%d, 11' % S_WAVE); I('s_add_u32 s8, s8, s%d' % S_CSB); I('s_lshr_b32 s9, s%d, 2' % S_RB); I('s_lshl_b32 s9, s9, 10'); I('s_add_u32 s8, s8, s9')
                I('s_and_b32 s9, s%d, 3' % S_RB); I('s_lshl_b32 s9, s9, 2'); I('s_add_u32 s8, s8, s9')
                I('v_add_f32 v%d, v%d, v%d' % (CS, CS, CS + 1))
                I('v_cvt_pk_bf16_f32 v%d, v%d, v%d' % (T, CS, CS)); I('v_and_b32 v%d, s%d, v%d' % (T, S_MASK, T))
                I('v_sub_f32 v%d, v%d, v%d' % (T, CS, T)); I('v_cvt_pk_bf16_f32 v%d, v%d, v%d' % (CS, T, CS))
                self.U('buffer_store_dword v%d, v%d, %s, s8 offen sc1' % (CS, VL16, sr(S_WS, 4)))
                self.g.label('L_nocm%s' % tag)
            return [a]
        def cs_flag():
            with g.capture() as a:
                I('s_cmp_lt_u32 s%d, 7' % S_RB); I('s_cselect_b32 s8, s%d, 1' % S_WAVE); I('s_cmp_lg_u32 s8, 0'); I('s_cbranch_scc1 L_nocf%s' % tag)
                I('s_sub_u32 s8, s%d, %d' % (S_CSB, L.WS_CSG)); I('s_lshr_b32 s8, s8, 4'); I('s_lshl_b32 s9, s%d, 7' % S_RB); I('s_add_u32 s8, s8, s9'); I('s_add_u32 s8, s8, %d' % L.WS_CSF)
                self.publish(8, TMP).kind = 'untracked'
                self.g.label('L_nocf%s' % tag)
            return [a]
        def cs_poll():
            with g.capture() as a:
                I('s_sub_u32 s10, s%d, %d' % (S_CSB, L.WS_CSG)); I('s_lshr_b32 s10, s10, 4'); I('s_add_u32 s%d, s10, %d' % (S_R0, L.WS_CSF))
                I('v_and_b32 v%d, 7, v%d' % (CS, VLANE)); I('v_min_u32 v%d, 6, v%d' % (CS, CS)); I('v_lshlrev_b32 v%d, 7, v%d' % (CS, CS))
                self.poll_issue(CS, S_R0, CS + 1)
            return [a]
        def cs_load():
            with g.capture() as a:
                for c, mul, add in tl:
                    I('s_mul_i32 s8, s%d, %d' % (S_CH, mul * 2048)); I('s_add_u32 s8, s8, s%d' % S_CSB); I('s_add_u32 s8, s8, %d' % (add * 2048))
                    for h in range(2): I('buffer_load_dwordx4 %s, v%d, %s, s8 offen offset:%d sc1' % (ar(CSA + 8 * c + 4 * h, 4), VL16, sr(S_WS, 4), 1024 * h))
            return [a]
        for n in range(LOOK): wrd[n] = first[n]
        started = set(); xr = 0; cfill = []
        for n, (ks, cc) in enumerate(seq):
            p = tiles[ks & 3]; c = p['t'][cc][0]; a = WF + 4 * (n % NF); xf = XF + 4 * (ks % 2)
            I('v_mfma_f32_32x32x16_bf16 %s, %s, %s, %s' % (vr(ACC + 16 * c, 16), vr(a, 4), vr(xf, 4), vr(ACC + 16 * c, 16) if c in started else '0'),
              needs=wrd.get(n + 1, []) if n % 2 == 0 else [])
            started.add(c)
            nn = n + LOOK
            if nn < len(seq):
                ks2, cc2 = seq[nn]
                if cc2 == 0 and ks2 & 3 == 0:
                    st2 = ks2 >> 2
                    assert xr == ks2 - 1
                    g.extend(adv(st2))
                    if st2 == NST: self.nonce_get_publish(tag)
                    if st2 == 6: self.poll_check('c' + tag, CS, S_R0, CS + 1); self.rs_issue()
                    if st2 in hooks.get('pre', {}): hooks['pre'][st2]()
                    if 'stg' in EXP and st2 in (2, 3, 6): self.stamp('preB%d' % st2)
                    I('s_waitcnt lgkmcnt(0)')
                    I('s_barrier', needs=dmas[st2])
                    if 'stg' in EXP: self.stamp('B%d' % st2)
                    if st2 == 1:
                        with g.capture() as grp_: self.nonce_issue()
                        pend += [grp_]
                    if st2 == 1: pend += cs_make()
                    if st2 == 3: pend += cs_flag()
                    if st2 == 5: pend += cs_poll()
                    if st2 == 6: pend += cs_load()
                    if st2 in self.pre_post: pend += self.pre_post[st2]()
                    if st2 + 2 < 7:
                        newg, dmas[st2 + 2] = self.stage_dma(st2 + 2, gpitch); pend += newg
                    if st2 in TSCH: pend += self.mall_issue(1, TSCH[st2])
                    if st2 in hooks.get('post', {}): pend += hooks['post'][st2]()
                wrd[nn] = wread(nn); g.extend(wrd[nn])
            if xr == ks and ks + 1 < 28 and (nn >= len(seq) or seq[min(nn, len(seq) - 1)][0] >= ks + 1):
                g.extend(xread(ks + 1)); xr = ks + 1
            if pend and (n % 3 == 0 or len(pend) > 3): g.extend(pend.pop(0))
        for x in pend: g.extend(x)
        self.stamp('loopend')

    def finish_stats(self, tl, scale, tag, before_b1=None, after_b1=None):
        I = self.I
        wr = []
        if before_b1: wr += before_b1() or []
        self.rs_get(tag, scale)
        for c, mul, add in tl: I('v_accvgpr_write_b32 a%d, 0' % (CSA + 8 * c + 7))
        for h in range(2):
            for c, mul, add in tl:
                I('v_mfma_f32_32x32x16_bf16 %s, %s, %s, %s' % (vr(ACC + 16 * c, 16), ar(CSA + 8 * c + 4 * h, 4), vr(XF, 4), vr(ACC + 16 * c, 16)))
        I('s_barrier', needs=wr)
        if after_b1: after_b1()
        if 'stg' in EXP: self.stamp = lambda *a, **k: None
        self.stamp('stats')

    def with_bg(self, fn, tasks, every):
        with self.g.capture() as body:
            fn()
        out = []; tasks = list(tasks); cnt = 0
        for x in body:
            out.append(x); cnt += 1
            if tasks and cnt >= every and x.kind in ('valu', 'trans') and not (x.dst & {'vcc'}):
                out += tasks.pop(0); cnt = 0
        for t in tasks: out += t
        self.g.extend(out)

    def ffn(self):
        I = self.I; g = self.g
        self.tagbase = 'f'
        self.srd(S_W, 26, 448 * 3584)
        I('v_mul_u32_u24 v6, 3584, v6'); I('v_lshl_add_u32 v%d, v7, 4, v6' % DW)
        I('s_mul_i32 s%d, s%d, 448' % (S_WSO, S_IDX))
        dms = self.start_stream(3584)
        I('s_mul_i32 s10, s%d, 192' % S_CH); I('s_add_u32 s10, s10, %d' % WPART)
        self.read_addrs(False, shared=True)
        self.pre_loop(True, 0); self.pre_post = {}
        own = lambda i, o: [(c, AW + i, 64 * c) for c in o]
        tiles = [dict(t=[(3, AS, 0)] + own(0, [0, 1, 2]), cs=True), dict(t=own(1, [0, 1, 2]), cs=True),
                 dict(t=own(2, [1, 2, 0]) + [(3, AS + 1, 0)], cs=True), dict(t=own(3, [2, 0, 1]), cs=True)]
        self.bdma, self.bread = {}, {}; self.nslot = 5
        tl = [(0, 3, 0), (1, 3, 1), (2, 3, 2), (3, 1, 6)]
        self.gemm(tiles, 3584, dms, 'f', self.bhooks(), tl)
        self.slot4_setup()
        SH = ACC + 48; X8 = 116
        def before_b1():
            I('s_xor_b32 s8, s%d, 4' % S_WAVE); I('s_lshl_b32 s8, s8, 11'); I('s_add_u32 s8, s8, %d' % L_SHX); I('v_add_u32 v%d, s8, v%d' % (AX, VL16))
            I('s_lshl_b32 s8, s%d, 11' % S_WAVE); I('s_add_u32 s8, s8, %d' % L_SHX); I('v_add_u32 v%d, s8, v%d' % (AX + 1, VL16))
            return [I('ds_write_b128 v%d, %s offset:%d' % (AX, vr(SH + 8 + 4 * q, 4), 1024 * q)) for q in range(2)]
        shr = []
        def after_b1():
            for q in range(2): shr.append(I('ds_read_b128 %s, v%d offset:%d' % (vr(X8 + 4 * q, 4), AX + 1, 1024 * q)))
        self.finish_stats(tl, -L.LOG2E, 'f', before_b1, after_b1)
        I('s_lshl_b32 s8, s%d, 2' % S_RB); I('s_add_u32 s8, s8, s%d' % S_RT); I('s_mul_i32 s9, s8, %d' % (112 * 1024))
        I('s_lshl_b32 s8, s8, 3'); I('s_add_u32 s8, s8, s%d' % S_IDX); I('s_lshl_b32 s8, s8, 1'); I('s_add_u32 s8, s8, s%d' % S_CH)
        I('s_lshl_b32 s8, s8, 7'); I('s_add_u32 s0, s8, %d' % L.WS_FLAG)
        I('s_mul_i32 s10, s%d, %d' % (S_IDX, 14 * 1024)); I('s_add_u32 s9, s9, s10')
        I('s_mul_i32 s10, s%d, 6144' % S_CH); I('s_add_u32 s10, s9, s10')
        I('s_lshl_b32 s11, s%d, 10' % S_CH); I('s_add_u32 s9, s9, s11'); I('s_add_u32 s1, s9, %d' % (12 * 1024))
        stores = []
        def unit(idx):
            c, u = divmod(idx, 2)
            A = ACC + 16 * c + 8 * u; T = [64, 72][idx & 1]; P = [80, 84][idx & 1]
            if 'noprio' not in EXP:
                lab = 'L_fp%d' % idx
                I('s_setprio 0'); I('s_cmp_eq_u32 s%d, %d' % (S_CH, idx & 1)); I('s_cbranch_scc1 %s' % lab); I('s_setprio 1'); self.g.label(lab)
            if c == 3:
                for j in range(0, 8, 2): I('v_pk_add_f32 %s, %s, %s' % (vr(A + j, 2), vr(A + j, 2), vr(X8 + j, 2)))
            for j in range(0, 8, 2): I('v_pk_mul_f32 %s, %s, %s op_sel_hi:[1,0]' % (vr(A + j, 2), vr(A + j, 2), vr(ST, 2)))
            for j in range(8): I('v_exp_f32 v%d, v%d' % (T + j, A + j))
            for j in range(0, 8, 2): I('v_pk_add_f32 %s, %s, 1.0 op_sel_hi:[1,0]' % (vr(T + j, 2), vr(T + j, 2)))
            for j in range(8): I('v_rcp_f32 v%d, v%d' % (T + j, T + j))
            for j in range(0, 8, 2): I('v_pk_mul_f32 %s, %s, %s' % (vr(T + j, 2), vr(T + j, 2), vr(A + j, 2)))
            for j in range(0, 8, 2): I('v_cvt_pk_bf16_f32 v%d, v%d, v%d' % (P + j // 2, T + j, T + j + 1))
            if idx == 4: I('s_add_u32 s10, s10, 4096')
            if c < 3: stores.append(I('buffer_store_dwordx4 %s, v%d, %s, s10 offen offset:%d sc1' % (vr(P, 4), VL16, sr(S_WS, 4), (idx % 4) * 1024)))
            else: stores.append(I('buffer_store_dwordx4 %s, v%d, %s, s1 offen sc1' % (vr(P, 4), VL16, sr(S_WS, 4))))
        self.with_bg(lambda: [unit(i) for i in range(6)], self.b_round1(shr), int(os.environ.get('FBG', '11')))
        unit(6)
        I('s_setprio 0')
        self.stamp('epi')
        self.p2_enter()
        bt = self.b_tasks(4, 9)
        for t in bt[:5]: g.extend(t)
        self.publish(0, 96, needs=stores)
        self.stamp('pub')
        if 'nofh' not in EXP: I('s_barrier')
        for t in bt[5:8]: g.extend(t)
        pa = self.poll_issue(P2T + 1, S_FA, P2T)
        for t in bt[8:]: g.extend(t)
        I('s_waitcnt lgkmcnt(0)'); I('s_nop 0', needs=[pa])
        I('s_branch L_p2')

    def b_round1(self, need4=None):
        t = [sum([self.b_read(k) for k in range(4)], [])]
        if need4 is not None: t += self.b_dma(4, needs=need4)
        for k in range(4): t += self.b_dma(k + 5, needs=self.bread[k])
        return t

    def bhooks(self, extra=None):
        post = {5: lambda: [[Instr('v_add_u32 v%d, %d, v%d' % (DB2, 8 * 896 - 1024, DB))]] + self.b_dma(0) + self.b_dma(1), 6: lambda: self.b_dma(2) + self.b_dma(3)}
        if extra: post.update(extra)
        return dict(post=post)

    def pack_k(self, A, K8):
        I = self.I
        for j in range(8): I('v_cvt_pk_bf16_f32 v%d, v%d, v%d' % (K8 + j, A + 2 * j, A + 2 * j + 1))
        for j in (6, 7): I('v_cndmask_b32 v%d, v%d, 0, %s' % (K8 + j, K8 + j, sr(S_HIM, 2)))
    def half_units(self, As, neg):
        I = self.I; M = 64; n = '-' if neg else ''; nm = ' neg_lo:[1,0,0] neg_hi:[1,0,0]' if neg else ''
        def each(f):
            for i, A in enumerate(As): f(A, M + 6 * i)
        I('v_mov_b32 v%d, 0xff800000' % (TMP + 10))
        each(lambda A, m: (I('v_max3_f32 v%d, %sv%d, %sv%d, %sv%d' % (m, n, A, n, A + 1, n, A + 2)), I('v_max3_f32 v%d, %sv%d, %sv%d, %sv%d' % (m + 1, n, A + 8, n, A + 9, n, A + 10))))
        for j in (3, 5): each(lambda A, m: (I('v_max3_f32 v%d, v%d, %sv%d, %sv%d' % (m, m, n, A + j, n, A + j + 1)), I('v_max3_f32 v%d, v%d, %sv%d, %sv%d' % (m + 1, m + 1, n, A + 8 + j, n, A + 9 + j))))
        each(lambda A, m: I('v_max3_f32 v%d, v%d, %sv%d, %sv%d' % (m + 1, m + 1, n, A + 7, n, A + 15)))
        each(lambda A, m: I('v_max_f32 v%d, v%d, v%d' % (m, m, m + 1)))
        each(lambda A, m: I('v_mov_b32 v%d, v%d' % (m + 1, m)))
        each(lambda A, m: I('v_permlane32_swap_b32 v%d, v%d' % (m, m + 1)))
        each(lambda A, m: I('v_max_f32 v%d, v%d, v%d' % (m, m, m + 1)))
        each(lambda A, m: I('v_mul_f32 v%d, -v%d, v%d' % (m, ST, m)))
        each(lambda A, m: I('v_cndmask_b32 v%d, v%d, v%d, %s' % (m + 1, m, TMP + 10, sr(S_HIM, 2))))
        for j in range(0, 16, 2):
            sel = 'op_sel_hi:[1,0,0]' if j < 12 else 'op_sel:[0,0,1] op_sel_hi:[1,0,1]'
            each(lambda A, m: I('v_pk_fma_f32 %s, %s, %s, %s %s%s' % (vr(A + j, 2), vr(A + j, 2), vr(ST, 2), vr(m, 2), sel, nm)))
        for j in range(16): each(lambda A, m: I('v_exp_f32 v%d, v%d' % (A + j, A + j)))
        each(lambda A, m: (I('v_pk_add_f32 %s, %s, %s' % (vr(m + 2, 2), vr(A, 2), vr(A + 2, 2))), I('v_pk_add_f32 %s, %s, %s' % (vr(m + 4, 2), vr(A + 8, 2), vr(A + 10, 2)))))
        for j in (4, 6): each(lambda A, m: (I('v_pk_add_f32 %s, %s, %s' % (vr(m + 2, 2), vr(m + 2, 2), vr(A + j, 2))), I('v_pk_add_f32 %s, %s, %s' % (vr(m + 4, 2), vr(m + 4, 2), vr(A + 8 + j, 2)))))
        each(lambda A, m: I('v_pk_add_f32 %s, %s, %s' % (vr(m + 2, 2), vr(m + 2, 2), vr(m + 4, 2))))
        each(lambda A, m: I('v_add_f32 v%d, v%d, v%d' % (m, m + 2, m + 3)))
        each(lambda A, m: I('v_mov_b32 v%d, v%d' % (m + 1, m)))
        each(lambda A, m: I('v_permlane32_swap_b32 v%d, v%d' % (m, m + 1)))
        each(lambda A, m: I('v_add_f32 v%d, v%d, v%d' % (m, m, m + 1)))
        each(lambda A, m: I('v_rcp_f32 v%d, v%d' % (m, m)))
        for j in range(0, 16, 2): each(lambda A, m: I('v_pk_mul_f32 %s, %s, %s op_sel_hi:[1,0]' % (vr(A + j, 2), vr(A + j, 2), vr(m, 2))))
        for j in range(8): each(lambda A, m: I('v_cvt_pk_bf16_f32 v%d, v%d, v%d' % (A + j, A + 2 * j, A + 2 * j + 1)))
    def phi_mfma(self, A, K8, WP):
        I = self.I
        I('v_mfma_f32_32x32x16_bf16 %s, %s, %s, 0' % (vr(A, 16), ar(WP, 4), vr(K8, 4)))
        I('v_mfma_f32_32x32x16_bf16 %s, %s, %s, %s' % (vr(A, 16), ar(WP + 4, 4), vr(K8 + 4, 4), vr(A, 16)))
    def softmax_unit(self, A, sreg=None):
        I = self.I
        EP, EN, M = 64, 80, TMP
        mx, nm, t, u = M, M + 1, M + 2, M + 4
        I('v_mov_b32 v%d, 0xff800000' % (M + 10))
        m2, n2 = M + 6, M + 7
        for (a, b, o) in ((mx, nm, 0), (m2, n2, 8)):
            I('v_max3_f32 v%d, v%d, v%d, v%d' % (a, A + o, A + o + 1, A + o + 2)); I('v_max3_f32 v%d, -v%d, -v%d, -v%d' % (b, A + o, A + o + 1, A + o + 2))
        for j in (3, 5):
            for (a, b, o) in ((mx, nm, 0), (m2, n2, 8)):
                I('v_max3_f32 v%d, v%d, v%d, v%d' % (a, a, A + o + j, A + o + j + 1)); I('v_max3_f32 v%d, v%d, -v%d, -v%d' % (b, b, A + o + j, A + o + j + 1))
        I('v_max3_f32 v%d, v%d, v%d, v%d' % (m2, m2, A + 7, A + 15)); I('v_max3_f32 v%d, v%d, -v%d, -v%d' % (n2, n2, A + 7, A + 15))
        I('v_max_f32 v%d, v%d, v%d' % (mx, mx, m2)); I('v_max_f32 v%d, v%d, v%d' % (nm, nm, n2))
        I('v_permlane32_swap_b32 v%d, v%d' % (mx, nm)); I('v_max_f32 v%d, v%d, v%d' % (t, mx, nm))
        I('v_mul_f32 v%d, -v%d, v%d' % (t, ST, t)); I('v_mov_b32 v%d, v%d' % (u, t)); I('v_permlane32_swap_b32 v%d, v%d' % (t, u))
        I('v_cndmask_b32 v%d, v%d, v%d, %s' % (t + 1, t, M + 10, sr(S_HIM, 2))); I('v_cndmask_b32 v%d, v%d, v%d, %s' % (u + 1, u, M + 10, sr(S_HIM, 2)))
        for j in range(0, 16, 2):
            sel = 'op_sel_hi:[1,0,0]' if j < 12 else 'op_sel:[0,0,1] op_sel_hi:[1,0,1]'
            I('v_pk_fma_f32 %s, %s, %s, %s %s' % (vr(EP + j, 2), vr(A + j, 2), vr(ST, 2), vr(t, 2), sel))
            I('v_pk_fma_f32 %s, %s, %s, %s %s neg_lo:[1,0,0] neg_hi:[1,0,0]' % (vr(EN + j, 2), vr(A + j, 2), vr(ST, 2), vr(u, 2), sel))
        for j in range(16): I('v_exp_f32 v%d, v%d' % (EP + j, EP + j)); I('v_exp_f32 v%d, v%d' % (EN + j, EN + j))
        sp, sn = M + 6, M + 8
        I('v_pk_add_f32 %s, %s, %s' % (vr(sp, 2), vr(EP, 2), vr(EP + 2, 2))); I('v_pk_add_f32 %s, %s, %s' % (vr(sn, 2), vr(EN, 2), vr(EN + 2, 2)))
        for j in range(4, 16, 2):
            I('v_pk_add_f32 %s, %s, %s' % (vr(sp, 2), vr(sp, 2), vr(EP + j, 2))); I('v_pk_add_f32 %s, %s, %s' % (vr(sn, 2), vr(sn, 2), vr(EN + j, 2)))
        I('v_add_f32 v%d, v%d, v%d' % (sp, sp, sp + 1)); I('v_add_f32 v%d, v%d, v%d' % (sn, sn, sn + 1))
        I('v_permlane32_swap_b32 v%d, v%d' % (sp, sn)); I('v_add_f32 v%d, v%d, v%d' % (t, sp, sn))
        if sreg is None:
            I('v_rcp_f32 v%d, v%d' % (t, t)); I('v_mov_b32 v%d, v%d' % (u, t)); I('v_permlane32_swap_b32 v%d, v%d' % (t, u))
            for j in range(0, 16, 2):
                I('v_pk_mul_f32 %s, %s, %s op_sel_hi:[1,0]' % (vr(EP + j, 2), vr(EP + j, 2), vr(t, 2)))
                I('v_pk_mul_f32 %s, %s, %s op_sel_hi:[1,0]' % (vr(EN + j, 2), vr(EN + j, 2), vr(u, 2)))
            for j in range(8):
                I('v_cvt_pk_bf16_f32 v%d, v%d, v%d' % (A + j, EP + 2 * j, EP + 2 * j + 1)); I('v_cvt_pk_bf16_f32 v%d, v%d, v%d' % (A + 8 + j, EN + 2 * j, EN + 2 * j + 1))
        else:
            I('v_mov_b32 v%d, v%d' % (u, t))
            for j in range(2): I('v_cvt_pk_bf16_f32 v%d, v%d, v%d' % (A + j, EP + 2 * j, EP + 2 * j + 1))
            I('v_permlane32_swap_b32 v%d, v%d' % (t, u)); I('v_rcp_f32 v%d, v%d' % (u, u))
            for j in range(2, 8): I('v_cvt_pk_bf16_f32 v%d, v%d, v%d' % (A + j, EP + 2 * j, EP + 2 * j + 1))
            I('v_mul_f32 v%d, v%d, v%d' % (u, u, t)); I('v_mov_b32 v%d, v%d' % (sreg, t))
            for j in range(0, 16, 2): I('v_pk_mul_f32 %s, %s, %s op_sel_hi:[1,0]' % (vr(EN + j, 2), vr(EN + j, 2), vr(u, 2)))
            for j in range(8): I('v_cvt_pk_bf16_f32 v%d, v%d, v%d' % (A + 8 + j, EN + 2 * j, EN + 2 * j + 1))

    def wphi_dma(self, n, head0_s):
        I = self.I; out = []
        I('s_mul_i32 s8, s%d, 1568' % head0_s); I('s_lshl_b32 s9, s%d, 10' % S_WAVE); I('s_add_u32 s8, s8, s9'); I('s_add_u32 s9, s9, %d' % L_WPHI)
        for i in range(n):
            I('s_add_u32 m0, s9, %d' % (8192 * i)); I('s_add_u32 s10, s8, %d' % (8192 * i))
            out.append(I('buffer_load_dwordx4 v%d, %s, s10 offen lds' % (VL16, sr(S_PHI, 4))))
        return out
    def wphi_read(self, nheads, hoff_s, WP):
        I = self.I; T = TMP + 9
        I('v_lshrrev_b32 v%d, 5, v%d' % (T, VLANE)); I('v_lshlrev_b32 v%d, 2, v%d' % (T, T)); I('v_bfe_u32 v%d, v%d, 2, 2' % (T + 1, VLANE)); I('v_add_u32 v%d, v%d, v%d' % (T, T, T + 1))
        I('v_mul_u32_u24 v%d, 56, v%d' % (T, T)); I('v_add_u32 v%d, s%d, v%d' % (T, hoff_s, T))
        I('v_bfe_u32 v%d, v%d, 4, 1' % (T + 1, VLANE)); I('v_lshlrev_b32 v%d, 2, v%d' % (T + 1, T + 1)); I('v_and_or_b32 v%d, v%d, 3, v%d' % (T + 1, VLANE, T + 1))
        I('v_min_u32 v%d, 6, v%d' % (T + 1, T + 1)); I('v_lshl_add_u32 v%d, v%d, 3, v%d' % (T, T + 1, T))
        for i in range(nheads):
            for s in range(2):
                for h in range(2):
                    I('ds_read_b64_tr_b16 %s, v%d offset:%d' % (ar(WP + 8 * i + 4 * s + 2 * h, 2), T, i * 1568 + (16 * s + 8 * h) * 56))

    def kv_common(self):
        I = self.I; g = self.g
        self.tagbase = 'k'
        self.srd(S_W, 18, 448 * 2688)
        I('s_lshl_b32 s8, s%d, 2' % S_IDX); I('s_lshr_b32 s9, 0xdb9630, s8'); I('s_and_b32 s9, s9, 15')
        I('s_lshr_b32 s10, 0x322333, s8'); I('s_and_b32 s10, s10, 15')
        I('s_mul_i32 s11, s9, 56'); I('s_and_b32 s%d, s11, -16' % S_WSO); I('s_and_b32 s11, s11, 8')
        I('s_mul_i32 s8, s10, 3'); I('s_add_u32 s8, s8, 1')
        I('v_cmp_lt_u32 vcc, 13, v7'); I('v_subrev_u32 v8, 14, v7'); I('v_cndmask_b32 v8, v7, v8, vcc'); I('v_min_u32 v8, s8, v8')
        I('v_mov_b32 v9, 896'); I('v_mov_b32 v10, 1792'); I('v_cndmask_b32 v9, v9, v10, vcc')
        I('v_mul_u32_u24 v6, 2688, v6'); I('v_add_u32 v6, v6, v9'); I('v_lshl_add_u32 v%d, v8, 4, v6' % DW)
        I('s_mov_b32 s0, s9'); I('s_mov_b32 s1, s10'); I('s_mov_b32 s%d, s11' % S_NONCE)
        dms = self.start_stream(2688)
        I('s_mul_i32 s10, s%d, 224' % S_CH); I('s_add_u32 s10, s10, s%d' % S_NONCE); I('s_add_u32 s10, s10, %d' % WPART)
        self.read_addrs(True)
        PW, HO, UA, VW, ZV = 48, 50, 51, 54, 58
        def kvx():
            I('s_mov_b32 s%d, s0' % S_H0); I('s_mov_b32 s%d, s1' % S_NH)
        def kvl():
            I('s_mov_b32 s%d, s%d' % (S_R0, S_H0))
            if ATOM:
                I('s_cmp_lg_u32 s%d, 0' % S_RB); I('s_cbranch_scc1 L_nozero')
                Z = 68
                for i in range(4): I('v_mov_b32 v%d, 0' % (Z + i))
                I('s_lshl_b32 s8, s%d, 13' % S_H0); I('s_lshl_b32 s9, s%d, 10' % S_WAVE); I('s_add_u32 s8, s8, s9'); I('s_add_u32 s8, s8, %d' % L.WS_KV)
                self.U('buffer_store_dwordx4 %s, v%d, %s, s8 offen sc1' % (vr(Z, 4), VL16, sr(S_WS, 4)))
                I('s_add_u32 s8, s8, 8192'); self.U('buffer_store_dwordx4 %s, v%d, %s, s8 offen sc1' % (vr(Z, 4), VL16, sr(S_WS, 4)))
                I('s_add_u32 s8, s8, 8192'); I('s_cmp_eq_u32 s%d, 3' % S_NH); I('s_cselect_b32 s8, s8, 0x7f000000')
                self.U('buffer_store_dwordx4 %s, v%d, %s, s8 offen sc1' % (vr(Z, 4), VL16, sr(S_WS, 4))); I('s_nop 1')
                self.g.label('L_nozero')
            for gp in post4(): g.extend(gp)
        kv_pre = lambda: self.pre_loop(True, 8, kvx, kvl)
        rot = lambda i: [((i + cc) % 3, AW + i, 56 * ((i + cc) % 3)) for cc in range(3)]
        tiles = [dict(t=rot(i), cs=(i < 3)) for i in range(4)]
        self.bdma, self.bread = {}, {}; self.nslot = 5
        def pre2():
            pass
        def post2():
            with g.capture() as a:
                I('s_mov_b32 s8, %d' % L_WPHI)
                self.wphi_read(3, 8, 88)
            return [a]
        def post3():
            with g.capture() as a:
                I('s_or_b32 s8, s%d, s%d' % (S_RB, S_WAVE)); I('s_cmp_lg_u32 s8, 0'); I('s_cbranch_scc1 L_nozf')
                I('s_lshl_b32 s8, s%d, 7' % S_IDX); I('s_add_u32 s8, s8, %d' % (L.WS_KVZ + 0x4000))
                self.publish(8, TMP + 8).kind = 'untracked'
                self.g.label('L_nozf')
            return [a]
        self.kvr = (PW, HO, UA, VW, ZV)
        def post4():
            A, B, C = 64, 65, 66; out = []
            with g.capture() as a:
                I('v_and_b32 v%d, 31, v%d' % (A, VLANE)); I('v_lshlrev_b32 v%d, 6, v%d' % (A, A)); I('s_lshl_b32 s8, s%d, 11' % S_RT); I('v_add_u32 v%d, s8, v%d' % (A, A))
                I('v_bfe_u32 v%d, v%d, 1, 2' % (B, VLANE)); I('v_lshl_add_u32 v%d, v%d, 4, v%d' % (A, B, A))
                I('v_lshrrev_b32 v%d, 5, v%d' % (B, VLANE))
                I('v_lshl_add_u32 v%d, v%d, 13, v%d' % (PW, B, A)); I('s_lshl_b32 s9, s%d, 5' % S_CH); I('v_xor_b32 v%d, s9, v%d' % (PW, PW)); I('v_xor_b32 v%d, 16, v%d' % (PW + 1, PW))
                I('s_add_u32 s8, s8, %d' % L_V); I('v_add_u32 v%d, s8, v%d' % (HO, VL16))
                I('v_lshl_add_u32 v%d, v%d, 3, v%d' % (VW, B, A)); I('v_add_u32 v%d, %d, v%d' % (VW, L_V, VW))
                for q in range(1, 4): I('v_xor_b32 v%d, %d, v%d' % (VW + q, 16 * q, VW))
                I('v_lshlrev_b32 v%d, 10, v%d' % (UA + 2, B)); I('v_and_b32 v%d, 31, v%d' % (A, VLANE)); I('v_lshl_add_u32 v%d, v%d, 2, v%d' % (UA + 2, A, UA + 2))
            out.append(a)
            with g.capture() as a:
                I('v_lshrrev_b32 v%d, 5, v%d' % (A, VLANE)); I('v_bfe_u32 v%d, v%d, 2, 2' % (B, VLANE)); I('v_lshl_add_u32 v%d, v%d, 2, v%d' % (A, A, B))
                I('v_bfe_u32 v%d, v%d, 4, 1' % (B, VLANE)); I('v_bfe_u32 v%d, v%d, 1, 1' % (C, VLANE)); I('v_lshl_add_u32 v%d, v%d, 1, v%d' % (B, B, C))
                I('v_lshrrev_b32 v%d, 1, v%d' % (C, A)); I('v_xor_b32 v%d, v%d, v%d' % (B, B, C)); I('v_lshlrev_b32 v%d, 6, v%d' % (A, A)); I('v_lshl_add_u32 v%d, v%d, 4, v%d' % (A, B, A))
                I('v_and_b32 v%d, 1, v%d' % (B, VLANE)); I('v_lshl_add_u32 v%d, v%d, 3, v%d' % (A, B, A))
                I('s_lshl_b32 s10, s%d, 13' % S_WAVE); I('v_add_u32 v%d, s10, v%d' % (UA + 1, A))
                I('s_lshr_b32 s9, s%d, 1' % S_WAVE); I('s_lshl_b32 s10, s9, 13'); I('s_add_u32 s10, s10, %d' % L_V); I('v_add_u32 v%d, s10, v%d' % (UA, A))
                I('s_add_u32 s10, s9, s%d' % S_H0); I('s_lshl_b32 s10, s10, 13'); I('s_and_b32 s8, s%d, 1' % S_WAVE); I('s_lshl_b32 s8, s8, 7'); I('s_add_u32 s10, s10, s8')
                I('s_add_u32 s0, s10, %d' % L.WS_KV)
                I('s_cmp_lt_u32 s9, s%d' % S_NH); I('s_cselect_b32 s%d, 1, 0' % S_NH)
                I('s_lshl_b32 s8, s%d, 4' % S_IDX); I('s_add_u32 s8, s8, s%d' % S_RB); I('s_lshl_b32 s8, s8, 7'); I('s_add_u32 s1, s8, %d' % L.WS_KVZ)
                I('s_lshl_b32 s%d, s%d, 7' % (S_H0, S_IDX)); I('s_add_u32 s%d, s%d, %d' % (S_H0, S_H0, L.WS_KVZ + 0x4000)); I('v_mov_b32 v%d, 0' % ZV)
            out.append(a)
            return out
        kv_pre()
        def wpd():
            with g.capture() as a: self.wphi_dma(1, S_R0)
            return [a]
        self.pre_post = {2: wpd}
        hk = self.bhooks({4: post2, NST: post3})
        p6 = hk['post'][6]
        def post6():
            with g.capture() as a: self.poll_issue(ZV, S_H0, ZV + 1)
            return [a] + p6()
        hk['post'][6] = post6
        tl = [(c, 4, c) for c in range(3)]
        self.gemm(tiles, 2688, dms, 'k', hk, tl)
        self.finish_stats(tl, L.LOG2E, 'k', self.slot4_setup)
        I('s_cmp_eq_u32 s%d, 1' % S_CH); I('s_cbranch_scc1 L_kv_v')

    def kv_rest(self, tg, As, wr):
        I = self.I; g = self.g; PW, HO, U, VW, ZV = self.kvr
        def hu():
            with g.capture() as body: self.half_units(As, tg == 'v')
            if 'vhalf' in EXP and tg == 'v':
                k = int(len(body) * float(os.environ.get('VH', '0.5')))
                body = body[:k] + [Instr('s_setprio 0')] + body[k:]
            g.extend(body)
        self.with_bg(hu, self.b_round1(), int(os.environ.get('KBG', '14')))
        for i, A in enumerate(As):
            wr += [I('ds_write_b128 v%d, %s offset:%d' % (PW + q, vr(A + 4 * q, 4), L_PHI + 16384 * i)) for q in range(2)]
        self.poll_check('z' + tg, ZV, S_H0, ZV + 1)
        for k in range(5, 9): g.extend(self.b_read(k))
        I('s_add_u32 s10, s0, 4096')
        I('s_waitcnt lgkmcnt(0)')
        I('s_barrier')
        self.stamp('bb')
        I('s_cmp_eq_u32 s%d, 0' % S_NH); I('s_cbranch_scc1 L_nounit%s' % tg)
        if 'uprio' in EXP and tg == 'v': I('s_setprio 3')
        def rd(s):
            b = 64 + 8 * (s % 4)
            for h in range(2):
                I('ds_read_b64_tr_b16 %s, v%d offset:%d' % (vr(b + 2 * h, 2), U, (16 * s + 8 * h) * 64))
                I('ds_read_b64_tr_b16 %s, v%d offset:%d' % (vr(b + 4 + 2 * h, 2), U + 1, (16 * s + 8 * h) * 64))
        D = ACC
        for s in range(3): rd(s)
        for s in range(8):
            if s + 3 < 8: rd(s + 3)
            b = 64 + 8 * (s % 4)
            I('v_mfma_f32_32x32x16_bf16 %s, %s, %s, %s' % (vr(D, 16), vr(b, 4), vr(b + 4, 4), vr(D, 16) if s else '0'))
        I('s_nop 7'); I('s_nop 4')
        for r in range(16):
            d = (r & 3) + 8 * (r >> 2)
            if r == 14: I('s_mov_b32 exec_hi, 0')
            self.U('buffer_atomic_add_f32 v%d, v%d, %s, s%d offen offset:%d' % (D + r, U + 2, sr(S_WS, 4), 0 if d < 16 else 10, (d % 16) * 256))
        I('s_mov_b64 exec, -1')
        self.g.label('L_nounit%s' % tg)
        I('s_waitcnt vmcnt(0)')
        I('s_barrier')
        if True:
            I('s_cmp_lg_u32 s%d, 7' % S_WAVE); I('s_cbranch_scc1 L_nokf%s' % tg)
            self.publish(1, 96).kind = 'untracked'
            self.g.label('L_nokf%s' % tg)
            self.stamp('kvdone')
        I('s_setprio 0')
        bulk = self.b_dma(4)
        for k in range(5, 9): bulk += self.b_dma(k + 5)
        for t in bulk[:3]: g.extend(t)
        self.p2_enter()
        pa = self.poll_issue(P2T + 1, S_FA, P2T)
        for t in bulk[3:] + self.b_tasks(4, 5): g.extend(t)
        I('s_waitcnt lgkmcnt(0)'); I('s_nop 0', needs=[pa])
        I('s_branch L_p2')

    def kv_k(self):
        I = self.I; g = self.g; PW, HO, U, VW, ZV = self.kvr
        wr = []
        for i in range(3):
            N = 80 + 8 * i
            self.pack_k(ACC + 16 * i, N)
            wr += [I('ds_write_b128 v%d, %s offset:%d' % (HO, vr(N + 4 * q, 4), 8192 * i + 1024 * q)) for q in range(2)]
        I('s_barrier', needs=wr)
        for i in range(3): self.phi_mfma(ACC + 16 * i, 80 + 8 * i, 88 + 8 * i)
        self.kv_rest('k', [ACC, ACC + 16, ACC + 32], [])

    def kv_v(self):
        I = self.I; g = self.g; PW, HO, U, VW, ZV = self.kvr
        if 'vprio' in EXP: I('s_setprio 1')
        I('v_cndmask_b32 v%d, v%d, 0, %s' % (CS, ST + 1, sr(S_HIM, 2))); I('v_cndmask_b32 v%d, 0, 1.0, %s' % (CS + 1, sr(S_HIM, 2)))
        PV = [88, 96, 112]
        def vpath(i):
            A = ACC + 16 * i
            for j in range(0, 12, 2): I('v_pk_mul_f32 %s, %s, %s op_sel:[0,1] op_sel_hi:[1,1]' % (vr(A + j, 2), vr(A + j, 2), vr(ST, 2)))
            for j in (12, 14): I('v_pk_fma_f32 %s, %s, %s, %s op_sel:[0,0,1] op_sel_hi:[1,0,1]' % (vr(A + j, 2), vr(A + j, 2), vr(CS, 2), vr(CS, 2)))
            for j in range(8): I('v_cvt_pk_bf16_f32 v%d, v%d, v%d' % (PV[i] + j, A + 2 * j, A + 2 * j + 1))
        vpath(0); vpath(1)
        I('s_barrier')
        rd = [I('ds_read_b128 %s, v%d offset:%d' % (vr(64 + 8 * i + 4 * q, 4), HO, 8192 * i + 1024 * q)) for i in range(3) for q in range(2)]
        vpath(2)
        wr = []
        for i in range(3):
            self.phi_mfma(ACC + 16 * i, 64 + 8 * i, 88 + 8 * i)
            wr += [I('ds_write_b64 v%d, %s offset:%d' % (VW + q, vr(PV[i] + 2 * q, 2), 8192 * i), needs=rd[2 * i:2 * i + 2]) for q in range(4)]
        self.kv_rest('v', [ACC, ACC + 16, ACC + 32], wr)
    _uid = 0
    def uid(self):
        K._uid += 1
        return str(K._uid)

    def q(self):
        I = self.I; g = self.g
        self.tagbase = 'q'
        self.srd(S_W, 18, 448 * 2688)
        I('v_mul_u32_u24 v6, 2688, v6'); I('v_lshl_add_u32 v%d, v7, 4, v6' % DW)
        I('s_mul_i32 s%d, s%d, 448' % (S_WSO, S_IDX))
        dms = self.start_stream(2688)
        I('s_mul_i32 s10, s%d, 224' % S_CH); I('s_add_u32 s10, s10, %d' % WPART)
        self.read_addrs(True)
        self.pre_loop(False, 14, lambda: I('s_lshl_b32 s%d, s%d, 3' % (S_H0, S_IDX)))
        def wpd():
            with g.capture() as a: self.wphi_dma(2, S_H0)
            return [a]
        self.pre_post = {2: wpd}
        tiles = [dict(t=[((i + cc) % 4, AW + i, 56 * ((i + cc) % 4)) for cc in range(4)], cs=True) for i in range(4)]
        def post2():
            with g.capture() as a:
                I('s_mul_i32 s8, s%d, %d' % (S_CH, 4 * 1568)); I('s_add_u32 s8, s8, %d' % L_WPHI)
                self.wphi_read(4, 8, 0)
            return [a]
        tl = [(c, 4, c) for c in range(4)]
        self.gemm(tiles, 2688, dms, 'q', dict(post={4: post2}), tl)
        self.finish_stats(tl, L.LOG2E, 'q')
        for i in range(4):
            self.pack_k(ACC + 16 * i, 80 + 8 * (i & 1)); self.phi_mfma(ACC + 16 * i, 80 + 8 * (i & 1), 8 * i)
        for i in range(4): self.softmax_unit(ACC + 16 * i, sreg=124 + i)
        self.stamp('soft')
        if 'noq' in EXP: return
        T = TMP
        if 'lat' in EXP:
            I('s_lshl_b32 s8, s2, 3'); I('s_add_u32 s8, s8, s%d' % S_WAVE); I('s_lshl_b32 s8, s8, 9'); I('s_add_u32 s8, s8, %d' % (15 << 20)); I('v_mov_b32 v%d, 0' % T)
            for rep_ in range(2):
                I('buffer_load_dword v%d, v%d, %s, s8 offen offset:%d sc1' % (T + 1, T, sr(S_WS, 4), 256 * rep_)); I('s_waitcnt vmcnt(0)'); self.stamp('miss')
                I('buffer_load_dword v%d, v%d, %s, s8 offen offset:%d sc1' % (T + 1, T, sr(S_WS, 4), 256 * rep_)); I('s_waitcnt vmcnt(0)'); self.stamp('l2hit')
                I('buffer_store_dword v%d, v%d, %s, s8 offen offset:%d sc1' % (T + 1, T, sr(S_WS, 4), 128 + 256 * rep_)); I('s_waitcnt vmcnt(0)'); self.stamp('st')
            self.nst = 15
        if 'qpf' in EXP:
            I('s_and_b32 s8, s2, 7'); I('s_lshl_b32 s8, s8, 2'); I('s_bfe_u32 s9, s2, 0x20003'); I('s_add_u32 s8, s8, s9')
            I('s_lshl_b32 s9, s8, 12'); I('s_lshl_b32 s10, s%d, 8' % S_WAVE); I('s_add_u32 s9, s9, s10'); I('s_add_u32 s11, s9, %d' % L.WS_FLAG)
            I('v_and_b32 v%d, 1, v%d' % (T, VLANE)); I('v_lshlrev_b32 v%d, 11, v%d' % (T, T)); I('v_and_b32 v%d, 2, v%d' % (T + 1, VLANE)); I('v_lshl_add_u32 v%d, v%d, 6, v%d' % (T, T + 1, T))
            I('s_mul_i32 s8, s8, 224'); I('s_mul_i32 s9, s%d, 14' % S_WAVE); I('s_add_u32 s8, s8, s9'); I('s_lshl_b32 s10, s8, 10'); I('s_add_u32 s9, s10, %d' % (112 * 1024))
            I('v_lshlrev_b32 v%d, 7, v%d' % (T + 2, VLANE)); I('v_add_u32 v%d, 8192, v%d' % (T + 3, T + 2))
            self.g.label('L_qpf')
            self.U('buffer_load_dword v%d, v%d, %s, s11 offen sc1' % (T + 1, T, sr(S_WS, 4))); self.U('s_waitcnt vmcnt(0)')
            I('v_cmp_ne_u32 vcc, s%d, v%d' % (S_NONCE, T + 1)); I('s_nop 1'); I('s_cbranch_vccz L_qpfd')
            self.spin_tail('L_qpf', QSL)
            self.g.label('L_qpfd')
            for so in (10, 9): I('buffer_load_dword a100, v%d, %s, s%d offen' % (T + 2, sr(S_WS, 4), so)).dst = set()
            I('s_mov_b32 exec_hi, 0xffff')
            for so in (10, 9): I('buffer_load_dword a100, v%d, %s, s%d offen' % (T + 3, sr(S_WS, 4), so)).dst = set()
            I('s_mov_b64 exec, -1')
        if ATOM:
            T = TMP
            I('v_lshrrev_b32 v%d, 4, v%d' % (T, VLANE)); I('s_lshl_b32 s8, s%d, 1' % S_IDX); I('v_add_u32 v%d, s8, v%d' % (T, T))
            I('s_mul_i32 s8, s%d, 3' % S_IDX); I('s_add_u32 s8, s8, 2'); I('v_min_u32 v%d, s8, v%d' % (T, T))
            I('v_and_b32 v%d, 15, v%d' % (T + 1, VLANE)); I('v_lshl_add_u32 v%d, v%d, 4, v%d' % (T, T, T + 1)); I('v_lshlrev_b32 v%d, 7, v%d' % (T, T))
            I('s_mov_b32 s11, %d' % L.WS_KVZ)
            I('v_lshrrev_b32 v%d, 3, v%d' % (T + 2, VLANE)); I('v_and_b32 v%d, 7, v%d' % (T + 3, VLANE)); I('v_lshlrev_b32 v%d, 4, v%d' % (T + 4, T + 3)); I('v_lshl_add_u32 v%d, v%d, 8, v%d' % (T + 4, T + 2, T + 4))
            I('s_add_u32 s8, s%d, s%d' % (S_H0, S_WAVE)); I('s_lshl_b32 s8, s8, 13'); I('s_add_u32 s0, s8, %d' % L.WS_KV); I('s_add_u32 s1, s0, 4096')
            I('v_lshrrev_b32 v%d, 1, v%d' % (T + 5, T + 3)); I('v_lshlrev_b32 v%d, 10, v%d' % (T + 5, T + 5)); I('v_and_b32 v%d, 1, v%d' % (T + 3, T + 3)); I('v_lshl_add_u32 v%d, v%d, 3, v%d' % (T + 5, T + 3, T + 5))
            I('s_lshl_b32 s8, s%d, 12' % S_WAVE); I('v_add_u32 v%d, s8, v%d' % (T + 5, T + 5))
            WA4 = 112
            for i in range(4):
                a, b, c_ = T + 6, T + 7, T + 3
                I('v_add_u32 v%d, %d, v%d' % (a, 8 * i, T + 2))
                I('v_cmp_lt_u32 vcc, 13, v%d' % a); I('v_subrev_u32 v%d, 14, v%d' % (b, a)); I('v_cndmask_b32 v%d, v%d, v%d, vcc' % (b, a, b)); I('v_cndmask_b32 v%d, 0, 4, vcc' % c_)
                if i == 3:
                    I('v_cmp_lt_u32 vcc, 27, v%d' % a); I('v_and_b32 v%d, 1, v%d' % (T + 8, a)); I('v_lshlrev_b32 v%d, 2, v%d' % (T + 8, T + 8)); I('v_cndmask_b32 v%d, v%d, v%d, vcc' % (c_, c_, T + 8))
                    I('v_bfe_u32 v%d, v%d, 1, 1' % (T + 8, a)); I('v_add_u32 v%d, 14, v%d' % (T + 8, T + 8)); I('v_cndmask_b32 v%d, v%d, v%d, vcc' % (b, b, T + 8))
                I('v_and_or_b32 v%d, v%d, 3, v%d' % (c_, b, c_)); I('v_lshrrev_b32 v%d, 2, v%d' % (b, b)); I('v_lshl_add_u32 v%d, v%d, 3, v%d' % (c_, b, c_))
                I('v_lshl_add_u32 v%d, v%d, 4, v%d' % (WA4 + i, c_, T + 5))
            I('s_lshl_b32 s8, s%d, 14' % S_CH); I('v_add_u32 v%d, s8, v%d' % (T + 2, VL16))
            self.q_scalars()
            I('s_cmp_lg_u32 s%d, 0' % S_WAVE); I('s_cbranch_scc1 L_polldkv')
            self.g.label('L_pollkv')
            self.U('buffer_load_dword v64, v%d, %s, s11 offen sc1' % (T, sr(S_WS, 4))); self.U('s_waitcnt vmcnt(0)')
            I('v_cmp_ne_u32 vcc, s%d, v64' % S_NONCE); I('s_nop 1'); I('s_cbranch_vccz L_polldkv')
            self.spin_tail('L_pollkv', QSL)
            self.g.label('L_polldkv')
            I('s_barrier')
            self.stamp('kvok')
            for i in range(8):
                I('buffer_load_dwordx4 %s, v%d, %s, s%d offen offset:%d sc1' % (vr(64 + 4 * i, 4), T + 4, sr(S_WS, 4), (i >> 1) & 1, (i & 1) * 2048 + (i >> 2) * 128))
            wr = []
            for i in range(8):
                I('v_cvt_pk_bf16_f32 v%d, v%d, v%d' % (64 + 4 * i, 64 + 4 * i, 65 + 4 * i)); I('v_cvt_pk_bf16_f32 v%d, v%d, v%d' % (65 + 4 * i, 66 + 4 * i, 67 + 4 * i))
                wr.append(I('ds_write_b64 v%d, %s offset:%d' % (WA4 + (i & 3), vr(64 + 4 * i, 2), 512 * (i >> 2))))
            self.stamp('kvld')
            qbar = lambda: (I('s_barrier', needs=wr), [I('ds_read_b128 %s, v%d offset:%d' % (ar(32 + 16 * i + 4 * s, 4), T + 2, 4096 * i + 1024 * s)) for i in range(4) for s in range(4)])
        else:
            I('v_bfe_u32 v%d, v%d, 3, 2' % (T + 2, VLANE)); I('v_lshlrev_b32 v%d, 2, v%d' % (T + 2, T + 2)); I('v_and_or_b32 v%d, v%d, 3, v%d' % (T + 2, VLANE, T + 2))
            I('v_bfe_u32 v%d, v%d, 2, 1' % (T + 3, VLANE)); I('v_mul_u32_u24 v%d, 14, v%d' % (T + 3, T + 3)); I('v_add_u32 v%d, v%d, v%d' % (T + 3, T + 3, T + 2))
            I('v_cmp_gt_u32 vcc, 14, v%d' % (T + 2)); I('v_cndmask_b32 v%d, 28, v%d, vcc' % (T + 3, T + 3))
            I('v_and_b32 v%d, 32, v%d' % (T + 2, VLANE)); I('v_lshlrev_b32 v%d, 6, v%d' % (T + 2, T + 2)); I('v_lshl_add_u32 v%d, v%d, 4, v%d' % (T + 2, T + 3, T + 2))
            I('s_lshl_b32 s8, s%d, 14' % S_CH); I('v_add_u32 v%d, s8, v%d' % (T + 2, T + 2))
            I('v_and_b32 v%d, 15, v%d' % (T, VLANE)); I('v_lshlrev_b32 v%d, 7, v%d' % (T, T))
            I('v_and_b32 v%d, 7, v%d' % (T + 3, VLANE)); I('v_lshlrev_b32 v%d, 7, v%d' % (T + 3, T + 3))
            I('s_cmp_lg_u32 s%d, 0' % S_CH); I('s_cbranch_scc1 L_noreduce')
            I('s_lshl_b32 s8, s%d, 1' % S_RB); I('s_add_u32 s8, s8, s%d' % S_IDX); I('s_lshl_b32 s8, s8, 2'); I('s_add_u32 s11, s8, s%d' % S_RT)
            I('s_lshl_b32 s0, s11, 14'); I('s_add_u32 s0, s0, %d' % L.WS_SL)
            I('s_mov_b32 s8, 0x22111000'); I('s_mov_b32 s9, 0x55544332'); I('s_lshl_b32 s10, s%d, 2' % S_RB); I('s_lshr_b64 s[8:9], s[8:9], s10'); I('s_and_b32 s8, s8, 15')
            I('s_lshl_b32 s8, s8, 11'); I('s_add_u32 s1, s8, %d' % L.WS_KVZ)
            self.g.label('L_red_poll')
            self.U('buffer_load_dword v%d, v%d, %s, s1 offen sc1' % (T + 1, T, sr(S_WS, 4))); self.U('s_waitcnt vmcnt(0)')
            I('v_cmp_ne_u32 vcc, s%d, v%d' % (S_NONCE, T + 1)); I('s_nop 1'); I('s_cbranch_vccz L_red_load')
            self.spin_tail('L_red_poll', QSL)
            self.g.label('L_red_load')
            R = 64
            def src(i): return (64 + 4 * i) if i < 15 else T + 4
            for i in range(16):
                if i % 4 == 0: I('s_add_u32 s8, s0, %d' % (1024 * i))
                I('buffer_load_dwordx4 %s, v%d, %s, s8 offen offset:%d' % (vr(src(i), 4), VL16, sr(S_WS, 4), 1024 * (i % 4)))
            I('s_lshl_b32 s8, s11, 9'); I('s_add_u32 s8, s8, %d' % L.WS_KF); I('s_lshl_b32 s9, s11, 7'); I('s_add_u32 s9, s9, %d' % L.WS_KVD)
            for i in range(2, 16):
                for j in (0, 2): I('v_pk_add_f32 %s, %s, %s' % (vr(R + 4 * (i & 1) + j, 2), vr(R + 4 * (i & 1) + j, 2), vr(src(i) + j, 2)))
            for j in (0, 2): I('v_pk_add_f32 %s, %s, %s' % (vr(R + j, 2), vr(R + j, 2), vr(R + 4 + j, 2)))
            I('v_cvt_pk_bf16_f32 v68, v64, v65'); I('v_cvt_pk_bf16_f32 v69, v66, v67')
            I('v_mov_b32 v72, v68'); I('v_mov_b32 v73, v69')
            I('v_permlane32_swap_b32 v72, v70'); I('v_permlane32_swap_b32 v73, v71')
            I('s_mov_b32 exec_hi, 0')
            I('buffer_store_dwordx4 v[68:71], v%d, %s, s8 offen sc1' % (VL16, sr(S_WS, 4)))
            I('s_mov_b64 exec, -1')
            self.stamp('red')
            I('s_waitcnt vmcnt(0)')
            self.publish(9, 72).kind = 'untracked'
            self.g.label('L_noreduce')
            I('s_add_u32 s10, s%d, s%d' % (S_H0, S_WAVE)); I('s_lshl_b32 s11, s10, 10'); I('s_add_u32 s11, s11, %d' % L.WS_KVD)
            I('s_lshl_b32 s10, s10, 12'); I('s_add_u32 s10, s10, %d' % L.WS_KF); I('s_lshl_b32 m0, s%d, 12' % S_WAVE)
            self.g.label('L_pollkv')
            self.U('buffer_load_dword v64, v%d, %s, s11 offen sc1' % (T + 3, sr(S_WS, 4))); self.U('s_waitcnt vmcnt(0)')
            I('v_cmp_ne_u32 vcc, s%d, v64' % S_NONCE); I('s_nop 1'); I('s_cbranch_vccz L_polldkv')
            self.spin_tail('L_pollkv', QSL)
            self.g.label('L_polldkv')
            self.nst = 7
            self.stamp('kvok')
            dm = [I('buffer_load_dwordx4 v%d, %s, s10 offen offset:%d lds' % (VL16, sr(S_WS, 4), 1024 * i)) for i in range(4)]
            qbar = lambda: (I('s_barrier', needs=dm), [I('ds_read_b128 %s, v%d offset:%d' % (ar(32 + 16 * i + 4 * sf, 4), T + 2, 4096 * i + 512 * sf)) for i in range(4) for sf in range(4)])
        qbar()
        N = [64, 80, ACC, ACC + 16]; O = 96
        def ost(f): I('buffer_store_dwordx4 %s, v%d, %s, s%d offen offset:%d sc1' % (vr(O + 4 * f, 4), VL16, sr(S_WS, 4), 20 if f < 4 else 21, (f % 4) * 1024))
        def mm(i):
            for s in range(4):
                I('v_mfma_f32_32x32x16_bf16 %s, %s, %s, %s' % (vr(N[i], 16), ar(32 + 16 * i + 4 * s, 4), vr(ACC + 16 * i + 4 * s, 4), vr(N[i], 16) if s else '0'))
        done = 0
        mm(0); mm(1)
        for i in range(4):
            with g.capture() as fin: self.o_fin(N[i], O + 7 * i, 124 + i)
            if i + 2 < 4:
                with g.capture() as m4: mm(i + 2)
                k = len(fin) // 4
                for j in range(4): g.extend([m4[j]] + fin[j * k:(j + 1) * k if j < 3 else None])
            else: g.extend(fin)
            while 4 * (done + 1) <= 7 * (i + 1): ost(done); done += 1
        self.stamp('ocomp')
        I('s_waitcnt vmcnt(0)')
        self.publish(22, TMP)
        self.stamp('opub')
        I('s_waitcnt vmcnt(0)')
    def q_scalars(self):
        I = self.I
        I('s_lshl_b32 s8, s%d, 2' % S_RB); I('s_add_u32 s10, s8, s%d' % S_RT); I('s_mul_i32 s8, s10, 28'); I('s_mul_i32 s9, s%d, 14' % S_IDX); I('s_add_u32 s8, s8, s9')
        I('s_mul_i32 s9, s%d, 7' % S_CH); I('s_add_u32 s8, s8, s9'); I('s_lshl_b32 s8, s8, 10'); I('s_add_u32 s20, s8, %d' % L.WS_O); I('s_add_u32 s21, s20, 4096')
        I('s_lshl_b32 s8, s10, 1'); I('s_add_u32 s8, s8, s%d' % S_IDX)
        I('s_lshl_b32 s8, s8, 1'); I('s_add_u32 s8, s8, s%d' % S_CH); I('s_lshl_b32 s8, s8, 7'); I('s_add_u32 s22, s8, %d' % L.WS_FO)
    def o_fin(self, N, O, sreg):
        I = self.I; t = TMP + 8
        I('v_fmac_f32 v%d, %s, v%d' % (N + 14, f32(1e-6), sreg)); I('v_rcp_f32 v%d, v%d' % (t, N + 14))
        for j in range(14): I('v_mul_f32 v%d, v%d, v%d' % (N + j, N + j, t))
        for j in range(7): I('v_cvt_pk_bf16_f32 v%d, v%d, v%d' % (O + j, N + 2 * j, N + 2 * j + 1))

    def p2_pre(self):
        I = self.I; g = self.g; A, B, C = 64, 65, 66; out = []
        def st(i, r): I('v_accvgpr_write_b32 a%d, v%d' % (STASH + i, r))
        with g.capture() as a:
            I('s_lshl_b32 s8, s%d, 1' % S_RG)
            I('s_mul_i32 s%d, s8, 112' % S_A0); I('s_mul_i32 s9, s%d, 14' % S_WAVE); I('s_add_u32 s%d, s%d, s9' % (S_A0, S_A0)); I('s_lshl_b32 s%d, s%d, 10' % (S_A0, S_A0))
            I('s_add_u32 s%d, s%d, %d' % (S_A1, S_A0, 112 * 1024))
            I('s_mul_i32 s%d, s8, 28' % S_OSO); I('s_mul_i32 s9, s%d, 7' % S_WAVE); I('s_add_u32 s%d, s%d, s9' % (S_OSO, S_OSO)); I('s_lshl_b32 s%d, s%d, 10' % (S_OSO, S_OSO))
            I('s_add_u32 s%d, s%d, %d' % (S_OSO, S_OSO, L.WS_O))
            I('v_lshrrev_b32 v%d, 3, v%d' % (A, VLANE)); I('v_mul_u32_u24 v%d, 896, v%d' % (A, A)); I('v_and_b32 v%d, 7, v%d' % (B, VLANE)); I('v_lshl_add_u32 v%d, v%d, 4, v%d' % (A, B, A))
            I('v_lshlrev_b32 v%d, 7, v%d' % (B, B)); st(1, A); st(2, B)
        out.append(a)
        with g.capture() as a:
            I('s_lshl_b32 s9, s%d, 3' % S_RG); I('s_add_u32 s9, s9, s%d' % S_WAVE); I('s_mul_i32 s9, s9, %d' % (8 * 896)); I('s_lshl_b32 s8, s%d, 7' % S_CG); I('s_add_u32 s%d, s9, s8' % S_XO)
            I('s_lshl_b32 s8, s%d, 12' % S_RG); I('s_lshl_b32 s9, s%d, 8' % S_WAVE); I('s_add_u32 s9, s9, s8'); I('s_add_u32 s%d, s9, %d' % (S_FA, L.WS_FLAG))
            I('s_lshl_b32 s8, s%d, 10' % S_RG); I('s_add_u32 s%d, s8, %d' % (S_FO, L.WS_FO))
            I('v_and_b32 v%d, 1, v%d' % (A, VLANE)); I('v_lshlrev_b32 v%d, 11, v%d' % (A, A)); I('v_and_b32 v%d, 2, v%d' % (B, VLANE)); I('v_lshl_add_u32 v%d, v%d, 6, v%d' % (A, B, A)); st(0, A)
        out.append(a)
        with g.capture() as a:
            I('v_lshrrev_b32 v%d, 5, v%d' % (C, VLANE)); I('v_bfe_u32 v%d, v%d, 3, 1' % (A, VLANE)); I('v_xor_b32 v%d, v%d, v%d' % (A, A, C))
            I('v_mul_u32_u24 v%d, 14, v%d' % (B, C)); I('v_bfe_u32 v%d, v%d, 2, 2' % (C, VLANE)); I('v_add_u32 v%d, v%d, v%d' % (B, B, C))
            I('v_lshlrev_b32 v%d, 7, v%d' % (B, B)); I('v_lshl_add_u32 v%d, v%d, 6, v%d' % (A, A, B))
            I('v_and_b32 v%d, 3, v%d' % (B, VLANE)); I('v_lshl_add_u32 v%d, v%d, 3, v%d' % (A, B, A))
            I('v_and_b32 v%d, 16, v%d' % (B, VLANE)); I('v_lshl_add_u32 v%d, v%d, 1, v%d' % (A, B, A))
            I('s_and_b32 s9, s%d, 1' % S_WAVE); I('s_lshl_b32 s9, s9, 6'); I('v_xor_b32 v%d, s9, v%d' % (A, A))
            I('s_mul_i32 s9, s%d, %d' % (S_CH, 224 * 128)); I('v_add_u32 v%d, s9, v%d' % (A, A))
            I('v_xor_b32 v%d, 64, v%d' % (B, A)); st(3, A); st(4, B)
            I('v_add_u32 v%d, %d, v%d' % (B, 14 * 128, B)); I('v_and_b32 v%d, 8, v%d' % (C, VLANE)); I('v_cmp_eq_u32 vcc, 0, v%d' % C); I('v_cndmask_b32 v%d, v%d, v%d, vcc' % (B, B, A)); st(5, B)
        out.append(a)
        return out
    def p2_enter(self):
        T = P2T
        for i, r in enumerate((T + 1, T + 2, T + 3, T + 8, T + 9, T + 10)): self.I('v_accvgpr_read_b32 v%d, a%d' % (r, STASH + i))

    def phase2(self):
        I = self.I; g = self.g; T = P2T
        XO, XR, WA = T + 2, T + 4, T + 8
        self.nst = 7
        if 'start' in EXP or 'stg' in EXP: self.nst = 15
        self.poll_check('A', T + 1, S_FA, T)
        self.stamp('hok')
        RING = 64; NR = 15
        self.bdma = {k: [] for k in range(14)}
        def load(n):
            k, a = divmod(n, 2); r = RING + 4 * (n % NR); base = S_A1 if a else S_A0
            I('buffer_load_dwordx4 %s, v%d, %s, s%d offen offset:%d' % (vr(r, 4), VL16, sr(S_WS, 4), base, (k % 4) * 1024))
            if k % 4 == 3: I('s_add_u32 s%d, s%d, 4096' % (base, base))
        def wo_read(kk, dst):
            G, f = divmod(kk, 7)
            for pp in range(2):
                p = 4 * f + 2 * pp; hl = 4 * G + p // 7; i = p % 7
                areg = WA + 2 if i == 6 else WA + (i & 1)
                I('ds_read_b64_tr_b16 %s, v%d offset:%d' % (ar(dst + 2 * pp, 2), areg, L_WO + (28 * hl + 2 * i) * 128))
        EWB, SWB, ORD, GRD, SRD_ = 124, 142, 126, 127, 143
        def tail_addr():
            A, B = XR, XR + 1
            I('v_and_b32 v%d, 31, v%d' % (A, VLANE)); I('v_lshlrev_b32 v%d, 7, v%d' % (A, A)); I('v_and_b32 v%d, 7, v%d' % (B, VLANE)); I('v_lshl_add_u32 v%d, v%d, 4, v%d' % (A, B, A))
            I('v_lshrrev_b32 v%d, 5, v%d' % (B, VLANE)); I('v_lshl_add_u32 v%d, v%d, 3, v%d' % (A, B, A))
            I('v_add_u32 v%d, s%d, v%d' % (EWB, S_STA, A))
            I('s_lshl_b32 s8, s%d, 13' % S_CH); I('s_bfe_u32 s9, s%d, 0x10001' % S_WAVE); I('s_lshl_b32 s10, s9, 12'); I('s_add_u32 s8, s8, s10'); I('s_add_u32 s8, s8, %d' % L_XS)
            I('v_add_u32 v%d, s8, v%d' % (SWB, A)); I('s_and_b32 s8, s%d, 1' % S_WAVE); I('s_lshl_b32 s8, s8, 6'); I('v_xor_b32 v%d, s8, v%d' % (SWB, SWB))
            I('s_mul_i32 s9, s9, 28'); I('s_mul_i32 s8, s%d, 14' % S_CH); I('s_add_u32 s9, s9, s8'); I('s_lshl_b32 s9, s9, 10')
            I('v_add_u32 v%d, s9, v%d' % (ORD, VL16))
            I('v_lshrrev_b32 v%d, 3, v%d' % (A, VLANE)); I('v_and_b32 v%d, 7, v%d' % (B, VLANE)); I('v_xor_b32 v%d, v%d, v%d' % (B, B, A))
            I('v_lshlrev_b32 v%d, 7, v%d' % (A, A)); I('v_lshl_add_u32 v%d, v%d, 4, v%d' % (A, B, A)); I('s_lshl_b32 s8, s%d, 10' % S_WAVE); I('s_add_u32 s8, s8, %d' % L_XS); I('v_add_u32 v%d, s8, v%d' % (SRD_, A))
            I('s_lshl_b32 s8, s%d, 10' % S_RT); I('s_lshl_b32 s9, s%d, 15' % S_CH); I('s_add_u32 s8, s8, s9'); I('s_add_u32 s8, s8, %d' % L_STA); I('v_add_u32 v%d, s8, v%d' % (GRD, A))
            I('s_mul_i32 s25, s%d, 7168' % S_WAVE)
            I('s_mov_b32 s10, 0x00003f80'); I('s_mov_b32 s11, 0x3f800000'); I('s_mov_b32 s26, %s' % f32(-1.0 / L.LOG2E)); I('s_mov_b32 s27, s26')
        for n in range(NR): load(n)
        nl = NR; wog = []; WOK = int(os.environ.get('WOK', '6'))
        for ki in range(14):
            for a in range(2):
                n = 2 * ki + a; r = RING + 4 * (n % NR)
                for b in range(2):
                    I('v_mfma_f32_32x32x16_bf16 %s, %s, %s, %s' % (vr(16 * (2 * a + b), 16), ar(8 * ki + 4 * b, 4), vr(r, 4), vr(16 * (2 * a + b), 16) if ki else '0'))
                if nl < 28:
                    load(nl); nl += 1
                    if nl == 28: I('buffer_load_dwordx4 %s, v%d, %s, s100 offen' % (vr(XR, 4), XO, sr(S_X, 4)))
            if ki == 0:
                for k in range(9, 14): g.extend(self.b_read(k))
            if ki == 2: tail_addr()
            if ki == WOK: wog = self.wo_dma()
            if wog: g.extend(wog.pop(0))
        self.stamp('gdone')
        EW = 64
        wr = []
        for b in range(2):
            for Q in range(4):
                I('v_xor_b32 v%d, %d, v%d' % (EW + 4 * b + Q, 16 * (4 * b + Q), EWB))
                for a in range(2):
                    t = 16 * (2 * a + b)
                    for j in (2 * Q, 2 * Q + 1): I('v_cvt_pk_bf16_f32 v%d, v%d, v%d' % (t + j, t + 2 * j, t + 2 * j + 1))
                    wr.append(I('ds_write_b64 v%d, %s offset:%d' % (EW + 4 * b + Q, vr(t + 2 * Q, 2), 32768 * a)))
        I('s_cmp_lg_u32 s%d, 0' % S_WAVE); I('s_cbranch_scc1 L_noe1')
        self.U('buffer_load_dword v%d, v%d, %s, s99 offen sc1' % (T, T + 3, sr(S_WS, 4)))
        self.g.label('L_noe1')
        I('s_waitcnt vmcnt(1) lgkmcnt(0)')
        I('s_cmp_eq_u32 s%d, 0' % S_WAVE); I('s_cbranch_scc1 L_noe2'); self.U('s_waitcnt vmcnt(0)'); self.g.label('L_noe2')
        I('s_barrier')
        self.stamp('e2')
        for src in range(8): I('ds_read_b128 %s, v%d offset:%d' % (vr(8 + 4 * src, 4), GRD, 4096 * src))
        for j in range(4): I('v_lshlrev_b32 v%d, 16, v%d' % (76 + 2 * j, XR + j)); I('v_and_b32 v%d, s%d, v%d' % (77 + 2 * j, S_MASK, XR + j))
        I('s_add_u32 s24, s%d, 4096' % S_OSO)
        for src in range(8):
            for kk in ((2 * src, 2 * src + 1) if src < 7 else ()): wo_read(kk, 4 * kk)
            for j in range(4):
                I('v_dot2_f32_bf16 v%d, v%d, s10, %s' % (2 * j, 8 + 4 * src + j, 'v%d' % (2 * j) if src else '0'))
                I('v_dot2_f32_bf16 v%d, v%d, s11, %s' % (2 * j + 1, 8 + 4 * src + j, 'v%d' % (2 * j + 1) if src else '0'))
        I('s_cmp_lg_u32 s%d, 0' % S_WAVE); I('s_cbranch_scc1 L_polldO')
        self.U('s_waitcnt vmcnt(0)')
        I('v_cmp_ne_u32 vcc, s%d, v%d' % (S_NONCE, T)); I('s_nop 1'); I('s_cbranch_vccz L_polldO')
        self.g.label('L_pollO')
        self.U('buffer_load_dword v%d, v%d, %s, s99 offen sc1' % (T, T + 3, sr(S_WS, 4))); self.U('s_waitcnt vmcnt(0)')
        I('v_cmp_ne_u32 vcc, s%d, v%d' % (S_NONCE, T)); I('s_nop 1'); I('s_cbranch_vccz L_polldO')
        self.spin_tail('L_pollO', int(os.environ.get('OSL', '2')))
        self.g.label('L_polldO')
        I('s_waitcnt lgkmcnt(0)')
        I('s_barrier')
        for i in range(7):
            if i == 0 or i == 4: I('s_add_u32 m0, s25, %d' % (L_O + 1024 * i)); I('s_nop 0')
            I('buffer_load_dwordx4 v%d, %s, s%d offen offset:%d lds' % (VL16, sr(S_WS, 4), S_OSO if i < 4 else 24, 1024 * (i % 4)))
        self.stamp('ook')
        for j in range(8): I('v_exp_f32 v%d, v%d' % (8 + j, j))
        SW = 72
        for q in range(4): I('v_xor_b32 v%d, %d, v%d' % (SW + q, 16 * q, SWB))
        for j in range(0, 8, 2): I('v_pk_add_f32 %s, %s, 1.0 op_sel_hi:[1,0]' % (vr(8 + j, 2), vr(8 + j, 2)))
        for j in range(8): I('v_rcp_f32 v%d, v%d' % (8 + j, 8 + j))
        for j in range(0, 8, 2): I('v_pk_mul_f32 %s, %s, s[26:27]' % (vr(j, 2), vr(j, 2)))
        for j in range(0, 8, 2): I('v_pk_mul_f32 %s, %s, %s' % (vr(j, 2), vr(j, 2), vr(8 + j, 2)))
        I('s_waitcnt vmcnt(0)')
        I('s_barrier')
        self.stamp('e3')
        OF = 84; SA = 48
        def ord_(kk): I('ds_read_b128 %s, v%d offset:%d' % (vr(OF + 4 * (kk % 10), 4), ORD, 1024 * kk))
        for kk in range(8): ord_(kk)
        for kk in range(14):
            I('v_mfma_f32_32x32x16_bf16 %s, %s, %s, %s' % (vr(SA, 16), ar(4 * kk, 4), vr(OF + 4 * (kk % 10), 4), vr(SA, 16) if kk else '0'))
            if kk + 8 < 14: ord_(kk + 8)
        wr = []
        for q in range(4):
            for j in (2 * q, 2 * q + 1): I('v_cvt_pk_bf16_f32 v%d, v%d, v%d' % (SA + j, SA + 2 * j, SA + 2 * j + 1))
            wr.append(I('ds_write_b64 v%d, %s' % (SW + q, vr(SA + 2 * q, 2))))
        I('s_barrier', needs=wr)
        for h in range(2): I('ds_read_b128 %s, v%d offset:%d' % (vr(16 + 4 * h, 4), SRD_, 8192 * h))
        for h in range(2):
            for j in range(4):
                I('v_dot2_f32_bf16 v%d, v%d, s10, %s' % (24 + 2 * j, 16 + 4 * h + j, 'v%d' % (24 + 2 * j) if h else '0'))
                I('v_dot2_f32_bf16 v%d, v%d, s11, %s' % (25 + 2 * j, 16 + 4 * h + j, 'v%d' % (25 + 2 * j) if h else '0'))
        for j in range(0, 8, 2): I('v_pk_fma_f32 %s, %s, %s, %s' % (vr(j, 2), vr(j, 2), vr(24 + j, 2), vr(76 + j, 2)))
        for j in range(4): I('v_cvt_pk_bf16_f32 v%d, v%d, v%d' % (40 + j, 2 * j, 2 * j + 1))
        I('buffer_store_dwordx4 v[40:43], v%d, %s, s100 offen%s' % (XO, sr(S_OUT, 4), os.environ.get('OUTF', '')))
        self.stamp('final')

    def xfilter(self, body):
        out = []
        for x in body:
            if 'nosc1st' in EXP and x.op.startswith('buffer_store_dwordx4') and 'sc1' in x.text and 'v141' in x.text: x.text = x.text.replace(' sc1', '')
            if 'nost' in EXP and x.op.startswith('buffer_store_dwordx4') and 'v141' in x.text: x.text = 's_nop 0'
            if 'nob' in EXP and x.kind == 'dma' and 's[52:55]' in x.text: x.text = 's_nop 0'
            if 'sysp' in EXP and x.op == 'buffer_load_dword' and x.text.endswith('sc1') and 's[64:67]' in x.text: x.text = x.text.replace(' sc1', ' sc0 sc1')
            if 'nowo' in EXP and x.kind == 'dma' and 's[48:51]' in x.text: x.text = 's_nop 0'
            if 'noatom' in EXP and 'atomic' in x.op: x.text = 's_nop 0'
            if 'ntst' in EXP and x.op.startswith('buffer_store_dwordx4') and 'sc1' in x.text and 'v141' in x.text: x.text = x.text.replace(' sc1', ' sc0 sc1')
            out.append(x)
        return out
    def path(self, prefix, fn, label, keys):
        self.keys = keys
        if 'stamp' in self.__dict__: del self.__dict__['stamp']
        with self.g.capture() as body:
            if label: self.g.label(label)
            fn()
        self.xfilter(body)
        allp = [x for p in prefix for x in p]
        for x in allp: x.done = False
        full = self.g.finish(allp + body)
        if label:
            idx = next(i for i, x in enumerate(full) if x.kind == 'label' and x.text == label + ':')
            return full[idx:], body
        return full, body

    def build(self):
        I = self.I
        with self.g.capture() as pro:
            self.prologue()
            I('s_cmp_eq_u32 s%d, 1' % S_TYPE); I('s_cbranch_scc1 L_kv'); I('s_cmp_eq_u32 s%d, 2' % S_TYPE); I('s_cbranch_scc1 L_q')
        n0 = self.nst
        def endp():
            self.write_stamps(); I('s_endpgm')
        def ffn():
            self.ffn()
        out, _ = self.path([pro], ffn, None, ['0'])
        self.nst = n0
        code, kvc = self.path([pro], self.kv_common, 'L_kv', ['10', '11'])
        n1 = self.nst
        save = (dict(self.bdma), dict(self.bread))
        def kk():
            self.kv_k()
        def kvv():
            self.kv_v()
        c2, _ = self.path([pro, kvc], kk, 'L_kv_k', ['10'])
        self.nst = n1; self.bdma, self.bread = dict(save[0]), dict(save[1])
        c3, _ = self.path([pro, kvc], kvv, 'L_kv_v', ['11'])
        out += code + c2 + c3
        self.nst = n0
        def qq():
            self.q(); endp()
        c4, _ = self.path([pro], qq, 'L_q', ['2'])
        out += c4
        def p2():
            self.phase2(); endp()
        if 'nop2' not in EXP:
            c5, _ = self.path([], p2, 'L_p2', ['0', '10', '11'])
            out += c5
        with self.g.capture() as tail:
            self.g.label('L_end'); I('s_endpgm')
        return out + tail

HEADER = open('cdna_kernels/%s.s.ref' % NAME).read().split('; Override launch')[0]
def wrap(code, launch):
    return HEADER + launch + '''
.amdgcn_target "amdgcn-amd-amdhsa--gfx950"
.text
.globl %(n)s_kernel
.p2align 8
.type %(n)s_kernel,@function
%(n)s_kernel:
%(body)s
.section .rodata,"a"
.p2align 6
.amdhsa_kernel %(n)s_kernel
  .amdhsa_next_free_vgpr 256
  .amdhsa_next_free_sgpr 102
  .amdhsa_accum_offset %(nv)d
  .amdhsa_group_segment_fixed_size 0
  .amdhsa_kernarg_size 80
  .amdhsa_user_sgpr_count 2
  .amdhsa_user_sgpr_kernarg_segment_ptr 1
  .amdhsa_system_sgpr_workgroup_id_x 1
.end_amdhsa_kernel
''' % dict(n=NAME, body=render(code), nv=NV)

if __name__ == '__main__':
    stamps = '--stamps' in sys.argv
    k = K(stamps)
    code = k.build()
    if 'noal' not in EXP:
        import align
        code = align.align(code)
    open(sys.argv[1], 'w').write(wrap(code, '; @launch grid=(256,1,1) block=(512,1,1) lds=163840'))
    json.dump({t: [d.get(i, '') for i in range(16)] for t, d in k.names.items()} if stamps else {}, open(sys.argv[1][:-2] + '.json', 'w'))
    print('instructions', len(code), 'nops', sum(1 for i in code if i.kind == 'nop'))
```

```python
import numpy as np
LOG2E = 1.4426950408889634
HSCALE = -LOG2E
WS_H = 0
WS_O = 8 << 20
WS_KV = 10 << 20
WS_FLAG = 11 << 20
FSTR = 4352
WS_FO = WS_FLAG + 0x48000
WS_KVD = WS_FLAG + 0x50000
WS_KVZ = WS_FLAG + 0x58000
WS_RS = WS_FLAG + 0x60000
WS_SL = 13 << 20
WS_KF = 10 << 20
WS_CSG = WS_FLAG + 0x80000
WS_CSF = WS_FLAG + 0x70000
WS_STAMP = 12 << 20
WS_BYTES = 16 << 20
KV_H0 = [0, 3, 6, 9, 11, 13]
KV_NH = [3, 3, 3, 2, 2, 3]
def role(b):
    import os
    if os.environ.get('XMAP'):
        sl = 2 * int(os.environ['XMAP'][b & 7]) + (b >> 7)
        return (0, sl, (b >> 3) & 15) if sl < 8 else (1, sl - 8, (b >> 3) & 15) if sl < 14 else (2, sl - 14, (b >> 3) & 15)
    xcd = b & 7; j = b >> 3; q = xcd >> 1; s4 = j >> 3
    rb = (xcd & 1) * 8 + (j & 7)
    if os.environ.get('HX'): q = xcd & 3; rb = (xcd >> 2) * 8 + (j & 7)
    if s4 < 2: return (0, 2 * q + s4, rb)
    if s4 == 2: return (1, [0, 1, 2, 4][q], rb)
    if ((j >> 2) & 1) == (q >> 1): return (2, q & 1, rb)
    return (1, [3, 5][q & 1], rb)
def print_stamps(st):
    import json, os
    names = json.load(open(os.environ.get('STN', os.path.join(os.path.dirname(__file__), 'stamp_names.json'))))
    it, nb, nw, n = st.shape
    typ = np.array([role(b)[0] for b in range(256)])
    rt0 = st[:, :, :, 0]; rt1 = st[:, :, :, n - 1]
    base = rt0.min(axis=(1, 2), keepdims=True)
    print('start skew ns: med %.0f max %.0f ; end: med %.0f max %.0f' % (
        np.median((rt0 - base).max(axis=(1, 2))) * 10, ((rt0 - base).max()) * 10,
        np.median(np.median(rt1 - base, axis=(1, 2))) * 10, np.median((rt1 - base).max(axis=(1, 2))) * 10))
    last = np.where(st[:, :, :, 2:n - 1] > 0, st[:, :, :, 2:n - 1], 0).max(axis=3)
    clk = (last - st[:, :, :, 1]) / np.maximum(rt1 - rt0, 1) / 10.0
    print('clock GHz (approx): med %.3f' % np.median(clk), ' per-xcd start offset ns:', ' '.join('%d' % (np.median((rt0 - base)[:, x::8]) * 10) for x in range(8)))
    xb = rt0.reshape(it, 32, 8, nw).min(axis=(1, 3), keepdims=True)
    print('start offset by j within xcd (ns):', ' '.join('%d' % v for v in np.median((rt0.reshape(it, 32, 8, nw) - xb).max(axis=3), axis=(0, 2)) * 10))
    for key in sorted(names):
        t = int(key[0]);
        sel = st[:, typ == t]
        if len(key) > 1:
            ch = int(key[1]); sel = sel[:, :, 4 * ch:4 * ch + 4]
        print('type', key)
        for i in range(2, n - 1):
            d = sel[:, :, :, i] - sel[:, :, :, 1]
            ok = sel[:, :, :, i] > 0
            if not ok.any(): continue
            dd = d[ok]
            nm = names[key][i] if i < len(names[key]) else ''
            dl = (sel[:, :, :, i] - sel[:, :, :, i - 1])[ok & (sel[:, :, :, i - 1] > 0)]
            print('   stamp %2d %-14s med %7.0f  p10 %7.0f  p90 %7.0f max %7.0f   delta med %6.0f' % (i, nm, np.median(dd), np.percentile(dd, 10), np.percentile(dd, 90), dd.max(), np.median(dl) if len(dl) else -1))

def print_detail(st, slots):
    it, nb, nw, n = st.shape
    base = st[:, :, :, 0].min(axis=(1, 2), keepdims=True)
    clk = 2.1
    off = (st[:, :, :, 0] - base) * 10 * clk
    for sl in slots:
        v = np.where(st[:, :, :, sl] > 0, st[:, :, :, sl] - st[:, :, :, 1] + off, np.nan)
        print('slot', sl, 'per-xcd median / max (last iter):', ' '.join('%d/%d' % (np.nanmedian(v[-1, x::8]), np.nanmax(v[-1, x::8])) for x in range(8)))
        w = np.nanmax(v[-1], axis=1)
        idx = np.argsort(-np.nan_to_num(w))[:12]
        print('   worst WGs:', ' '.join('b%d(x%d,%s,w%d):%d' % (b, b & 7, role(b), np.nanargmax(v[-1, b]), w[b]) for b in idx))

def print_split(st):
    import json, os
    names = json.load(open(os.environ['STN']))
    it, nb, nw, n = st.shape
    typ = np.array([role(b)[0] for b in range(256)])
    rt0 = st[:, :, :, 0]; base = rt0.min(axis=(1, 2), keepdims=True)
    end = (st[:, :, :, n - 1] - base).max(axis=(1, 2)) * 10
    print('END per iter:', ' '.join('%d' % x for x in np.sort(end)))
    order = np.argsort(end); groups = {'fast': order[:it // 3], 'slow': order[-(it // 3):]}
    off = (rt0 - base) * 10 * 2.1
    print('skew fast %.0f slow %.0f' % tuple(np.median(off[g].max(axis=(1, 2))) for g in groups.values()))
    v = (st[:, :, :, 4] - st[:, :, :, 1] + off).max(axis=2)
    print('stats by xcd:', ' '.join('%d' % np.median(v[:, x::8]) for x in range(8)), ' by rb:', ' '.join('%d' % np.median(v[:, [b for b in range(256) if role(b)[2] == r]]) for r in range(16)))
    print('start by xcd:', ' '.join('%d' % np.median(off[:, x::8]) for x in range(8)))
    for key in sorted(names):
        t = int(key[0]); line = 'T%s ' % key
        for i in range(2, n - 1):
            v = np.where(st[:, :, :, i] > 0, st[:, :, :, i] - st[:, :, :, 1] + off, np.nan)[:, typ == t]
            if len(key) > 1: v = v[:, :, 4 * int(key[1]):4 * int(key[1]) + 4]
            if np.isnan(v).all(): continue
            line += '%s ' % names[key][i] + '/'.join('%d:%d' % (np.median(np.nanmedian(v[g], axis=(1, 2))), np.median(np.nanmax(v[g], axis=(1, 2)))) for g in groups.values()) + ' | '
        print(line)
```

```python
import sys, json, struct, os
from asmgen import *
import layout as L
EXP = os.environ.get('EXP', '').split(',')
SLEEP = int(os.environ.get('SLEEP', '4'))
BCHK = int(os.environ.get('BCHK', '7'))
W1K = int(os.environ.get('W1K', '3'))
PF0 = int(os.environ.get('PF0', '2'))
QSL = int(os.environ.get('QSL', '6'))
NST = int(os.environ.get('NST', '3')); MST = int(os.environ.get('MST', '1'))
ATOM = True
S_FA, S_FO, S_XO, S_SC, S_C1, S_C2, S_C3 = 98, 99, 100, 11, 96, 97, 25
RA, RB_ = [int(x) for x in os.environ.get('R1', '1,2').split(',')]
RC, RD = [int(x) for x in os.environ.get('R2', '2,4').split(',')]
STASH = 72; CSA = 32; DB2 = 125; S_CSB, S_R0 = 30, 101
TSCH = eval(os.environ.get('TSCH', '{3:0x7fc000}'))
T0M = int(os.environ.get('T0M', '0x1f'), 0)
CST = int(os.environ.get('CST', '0'))
NAME = 'recurrent_scan__linear_kernel_hedgehog__dense_activation_silu__prompt'
def f32(x): return '0x%08x' % struct.unpack('<I', struct.pack('<f', x))[0]

S_X, S_W, S_PHI, S_WO, S_W2, S_OUT, S_DBG, S_WS = 36, 40, 44, 48, 52, 56, 60, 64
S_MASK, S_WAVE, S_IDX, S_RB, S_TYPE = 3, 4, 5, 6, 7
S_XS, S_WSO, S_EX56 = 12, 13, 14
S_MW, S_MX, S_ROW, S_NONCE = 32, 33, 34, 35
S_RT, S_CH = 68, 69
S_ST = 70
S_RG, S_CG, S_BSO, S_STA, S_A0, S_A1, S_OSO, S_NH, S_H0 = 16, 17, 18, 19, 20, 21, 22, 23, 24
S_ST4 = 25
S_L2E = 26
S_HIM = 28
STG = 45056; WPART = 16384
L_CNT = 3 * STG
L_CP = 136192
L_WPHI = 144384
L_SHX = L_WPHI
L_PHI = 0
L_V = 136192
L_STA = 57344
L_WO = 0
L_CX = 135168
L_KVQ = 0
L_KVF = 65536
L_XG = 65536
L_O = 0
L_XS = 131072
KORD = list(range(14))
NV = 144
ACC, WF, XF, ST, CS, AX, AW, AS, DX, DW = 0, 64, 96, 104, 108, 112, 116, 120, 122, 124
PFA = 132; TMP = 128; P2T = 128; BT2 = 126; DB = 139; VLANE = 140; VL16 = 141; BT = 142

class K:
    def __init__(self, stamps):
        self.g = Gen(); self.use_stamps = stamps; self.nst = 0; self.names = {}; self.keys = ['0', '10', '11', '2']
    def I(self, t, needs=()): return self.g.I(t, needs)
    def U(self, t):
        x = self.g.I(t); x.kind = 'untracked'; return x
    def stamp(self, name, real=False):
        if os.environ.get('DLY') == name and (not os.environ.get('DLK') or os.environ['DLK'] in self.keys): self.I('s_sleep %s' % os.environ.get('DLN', '32'))
        if 'dbgt' in EXP and name in ('bar0', 'loopend', 'gdone', 'opub', 'ook'):
            r = {'bar0': [78], 'loopend': [80], 'gdone': [82], 'ook': [84], 'opub': [82, 84]}[name]
            for x in r: self.I('s_memtime s[%d:%d]' % (x, x + 1))
        if not self.use_stamps: return
        i = self.nst
        if i >= 12: return
        self.nst += 1
        for k in self.keys: self.names.setdefault(k, {})[i] = name
        self.I('%s %s' % ('s_memrealtime' if real else 's_memtime', sr(S_ST + 2 * i, 2)))
    def write_stamps(self, total=13):
        if 'dbgt' in EXP:
            I = self.I
            I('s_memrealtime s[74:75]'); I('s_memtime s[76:77]'); I('s_waitcnt vmcnt(0) lgkmcnt(0)')
            I('s_mov_b64 exec, 1'); I('v_mov_b32 v2, 0')
            I('v_mov_b32 v0, s70'); I('buffer_atomic_umax v0, v2, %s, 0 offen offset:8' % sr(S_DBG, 4))
            I('s_not_b32 s8, s70'); I('v_mov_b32 v1, s8'); I('buffer_atomic_umax v1, v2, %s, 0 offen offset:12' % sr(S_DBG, 4))
            I('v_mov_b32 v3, s74'); I('buffer_atomic_umax v3, v2, %s, 0 offen offset:16' % sr(S_DBG, 4))
            I('s_sub_u32 s8, s76, s72'); I('v_mov_b32 v4, s8'); I('buffer_atomic_umax v4, v2, %s, 0 offen offset:20' % sr(S_DBG, 4))
            I('s_sub_u32 s8, s74, s70'); I('v_mov_b32 v5, s8'); I('buffer_atomic_umax v5, v2, %s, 0 offen offset:24' % sr(S_DBG, 4))
            for k, so in enumerate((78, 80, 82, 84)):
                I('s_sub_u32 s8, s%d, s72' % so); I('v_mov_b32 v%d, s8' % (6 + k)); I('buffer_atomic_umax v%d, v2, %s, 0 offen offset:%d' % (6 + k, sr(S_DBG, 4), 28 + 4 * k))
            I('s_waitcnt vmcnt(0)')
            return
        if not self.use_stamps: return
        I = self.I
        I('s_memrealtime %s' % sr(S_ST + 2 * (total - 1), 2))
        I('s_waitcnt lgkmcnt(0)')
        I('s_lshl_b32 s8, s2, 3'); I('s_add_u32 s8, s8, s%d' % S_WAVE); I('s_lshl_b32 s8, s8, 7')
        I('s_add_u32 s8, s8, %d' % L.WS_STAMP)
        I('v_mov_b32 v2, 0')
        I('s_mov_b64 exec, 1')
        for i in range(total):
            I('v_mov_b32 v0, s%d' % (S_ST + 2 * i)); I('v_mov_b32 v1, s%d' % (S_ST + 2 * i + 1))
            I('buffer_store_dwordx2 v[0:1], v2, %s, s8 offen offset:%d' % (sr(S_WS, 4), 8 * i))
        I('s_mov_b64 exec, -1')
    def srd(self, d, base, nbytes):
        I = self.I
        I('s_mov_b32 s%d, s%d' % (d, base)); I('s_and_b32 s%d, s%d, 0xffff' % (d + 1, base + 1))
        I('s_mov_b32 s%d, %d' % (d + 2, nbytes)); I('s_mov_b32 s%d, 0x20000' % (d + 3))

    def prologue(self):
        I = self.I
        I('s_cmp_ge_u32 s2, 256'); I('s_cbranch_scc1 L_end')
        I('s_load_dwordx16 s[16:31], s[0:1], 0'); I('s_load_dwordx4 s[32:35], s[0:1], 64')
        if 'anti' in EXP:
            I('s_lshr_b32 s8, s2, 5'); I('s_and_b32 s9, s2, 31'); I('s_lshl_b32 s9, s9, 3'); I('s_or_b32 s2, s8, s9')
        I('s_getpc_b64 s[8:9]')
        self.g.label('L_pc')
        I('v_cmp_le_u32 vcc, %d, v0' % (1024 if 'nocp0' in EXP else 448)); I('s_cbranch_vccz L_nopf')
        I('s_bfe_u32 s10, s2, 0x30003'); I('s_lshl_b32 s10, s10, 13')
        I('v_and_b32 v1, 63, v0'); I('v_lshlrev_b32 v1, 7, v1'); I('v_add_u32 v1, s10, v1')
        I('v_min_u32 v1, L_end-L_pc, v1')
        self.U('global_load_dword a80, v1, s[8:9]')
        self.g.label('L_nopf')
        if self.use_stamps:
            for i in range(13): I('s_mov_b64 %s, 0' % sr(S_ST + 2 * i, 2))
        self.stamp('rt0', True); self.stamp('t0')
        if 'dbgt' in EXP: I('s_memrealtime s[70:71]'); I('s_memtime s[72:73]')
        I('v_lshrrev_b32 v1, 6, v0'); I('v_and_b32 v0, 63, v0')
        I('v_readfirstlane_b32 s%d, v1' % S_WAVE)
        I('v_mov_b32 v%d, v0' % VLANE); I('v_lshlrev_b32 v%d, 4, v0' % VL16)
        I('s_and_b32 s8, s2, 7'); I('s_lshr_b32 s9, s2, 3')
        if 'hx' in EXP:
            I('s_and_b32 s10, s8, 4'); I('s_lshl_b32 s10, s10, 1'); I('s_and_b32 s11, s9, 7'); I('s_add_u32 s%d, s10, s11' % S_RB)
            I('s_and_b32 s8, s8, 3'); I('s_lshr_b32 s10, s9, 3')
        else:
            I('s_and_b32 s10, s8, 1'); I('s_lshl_b32 s10, s10, 3'); I('s_and_b32 s11, s9, 7'); I('s_add_u32 s%d, s10, s11' % S_RB)
            I('s_lshr_b32 s8, s8, 1'); I('s_lshr_b32 s10, s9, 3')
        I('s_lshl_b32 s11, s8, 2'); I('s_add_u32 s12, s11, s10')
        I('s_mov_b32 s%d, 0' % S_TYPE); I('s_lshl_b32 s%d, s8, 1' % S_IDX); I('s_add_u32 s%d, s%d, s10' % (S_IDX, S_IDX))
        I('s_cmp_lt_u32 s10, 2'); I('s_cbranch_scc1 L_role')
        I('s_mov_b32 s%d, 1' % S_TYPE); I('s_lshr_b32 s%d, 0x4210, s11' % S_IDX); I('s_and_b32 s%d, s%d, 15' % (S_IDX, S_IDX))
        I('s_cmp_eq_u32 s10, 2'); I('s_cbranch_scc1 L_role')
        I('s_and_b32 s13, s8, 1'); I('s_lshl_b32 s%d, s13, 1' % S_IDX); I('s_add_u32 s%d, s%d, 3' % (S_IDX, S_IDX))
        I('s_bfe_u32 s11, s9, 0x10002'); I('s_lshr_b32 s8, s8, 1'); I('s_cmp_lg_u32 s11, s8'); I('s_cbranch_scc1 L_role')
        I('s_mov_b32 s%d, 2' % S_TYPE); I('s_mov_b32 s%d, s13' % S_IDX)
        self.g.label('L_role')
        I('s_lshl_b32 s8, s%d, 4' % S_RB); I('s_add_u32 s8, s8, s12'); I('s_lshl_b32 s8, s8, 3'); I('s_add_u32 s11, s8, s%d' % S_WAVE)
        I('s_mov_b32 s%d, -1' % S_EX56); I('s_mov_b32 s%d, 0x00ffffff' % (S_EX56 + 1))
        I('s_and_b32 s%d, s%d, 3' % (S_RT, S_WAVE)); I('s_lshr_b32 s%d, s%d, 2' % (S_CH, S_WAVE))
        I('s_mov_b32 s%d, 0xffff0000' % S_MASK)
        I('v_lshrrev_b32 v2, 3, v0'); I('v_mul_u32_u24 v2, 896, v2')
        I('v_lshrrev_b32 v3, 4, v0'); I('v_and_b32 v4, 7, v0'); I('v_xor_b32 v4, v4, v3')
        I('v_lshl_add_u32 v%d, v4, 4, v2' % DX)
        I('v_xor_b32 v4, 4, v4'); I('v_lshl_add_u32 v%d, v4, 4, v2' % (DX + 1)); I('v_add_u32 v%d, %d, v%d' % (DX + 1, 8 * 896 - 1024, DX + 1))
        I('s_lshl_b32 s8, s%d, 3' % S_RB); I('s_add_u32 s8, s8, s%d' % S_WAVE); I('s_mul_i32 s%d, s8, %d' % (S_XS, 16 * 896))
        I('v_cmp_lt_u32 vcc, 27, v0'); I('v_subrev_u32 v7, 28, v0'); I('v_cndmask_b32 v7, v0, v7, vcc'); I('v_cndmask_b32 v6, 0, 1, vcc')
        I('v_cmp_gt_u32 vcc, 56, v0'); I('v_mov_b32 v5, 0x7fffffff'); I('v_cndmask_b32 v5, v5, v%d, vcc' % VL16)
        I('s_waitcnt lgkmcnt(0)')
        if 'start' in EXP: self.stamp('karg')
        self.srd(S_X, 16, 2048 * 896)
        self.srd(S_WS, 34, L.WS_BYTES); self.srd(S_DBG, 32, 256)
        I('s_mov_b32 s%d, s11' % S_ROW)
        I('s_lshl_b32 s%d, s%d, 11' % (S_MX, S_WAVE))
        I('s_mul_i32 s%d, s%d, %d' % (S_MW, S_WAVE, 8 * 448)); I('s_add_u32 s%d, s%d, %d' % (S_MW, S_MW, WPART))

    def start_stream(self, gpitch):
        I = self.I
        for i in range(1, 4): I('v_add_u32 v%d, %d, v%d' % (DW + i, i * (2 * gpitch - 896), DW))
        I('s_mul_i32 s8, s%d, %d' % (S_WAVE, 8 * gpitch)); I('s_add_u32 s%d, s%d, s8' % (S_WSO, S_WSO))
        self.gpitch = gpitch
        d = {}
        if 'start' in EXP: self.stamp('pre_s0')
        grps, d[0] = self.stage_dma(0, gpitch)
        for gp in grps: self.g.extend(gp)
        I('s_mul_i32 s8, s%d, 896' % S_ROW)
        I('buffer_load_dwordx4 %s, v5, %s, s8 offen' % (vr(XF, 4), sr(S_X, 4)))
        lab = 'L_nonon' + self.tagbase
        I('s_or_b32 s8, s2, s%d' % S_WAVE); I('s_cmp_lg_u32 s8, 0'); I('s_cbranch_scc1 %s' % lab)
        self.U('s_memrealtime s[8:9]'); self.U('s_waitcnt lgkmcnt(0)'); I('s_or_b32 s8, s8, 1'); I('v_mov_b32 v8, s8'); I('v_mov_b32 v9, 0')
        I('s_mov_b64 exec, 1'); self.U('buffer_store_dword v8, v9, %s, 0 offen sc1' % sr(S_DBG, 4)); I('s_mov_b64 exec, -1')
        self.g.label(lab)
        if 'start' in EXP: self.stamp('s0iss')
        return d
    def mall_addr(self):
        I = self.I
        segs = [(16, 7, 2, 5, 2048 * 896), (18, 4, 128 * 21, 4, 448 * 2688), (26, 5, 128 * 28, 5, 448 * 3584), (28, 7, 0, 7, 1792 * 896), (22, 2, 0, 2, 448 * 896)]
        I('s_lshl_b32 s8, s2, 3'); I('s_add_u32 s8, s8, s%d' % S_WAVE)
        lo = 0
        for i, (sb, mul, first, n, size) in enumerate(segs):
            I('s_mul_i32 s9, s8, %d' % mul); I('s_add_i32 s9, s9, %d' % (first - lo))
            I('v_add_u32 v10, s9, v0'); I('v_lshlrev_b32 v10, 7, v10'); I('v_min_u32 v10, %d, v10' % (size - 4))
            if i == 0:
                I('v_mov_b32 v11, v10'); I('v_mov_b32 v8, s%d' % sb); I('v_mov_b32 v9, s%d' % (sb + 1))
            else:
                I('v_cmp_le_u32 vcc, %d, v0' % lo); I('v_mov_b32 v12, s%d' % sb); I('v_mov_b32 v13, s%d' % (sb + 1))
                I('v_cndmask_b32 v11, v11, v10, vcc'); I('v_cndmask_b32 v8, v8, v12, vcc'); I('v_cndmask_b32 v9, v9, v13, vcc')
            lo += n
        I('v_add_co_u32 v%d, vcc, v8, v11' % PFA); I('v_addc_co_u32 v%d, vcc, 0, v9, vcc' % (PFA + 1))
    def mall_issue(self, part, mask=None):
        if 'nomall' in EXP: return []
        I = self.I
        with self.g.capture() as a:
            I('s_mov_b64 exec, %d' % (mask or T0M))
            I('global_load_dword a%d, %s, off' % (80 + part, vr(PFA, 2))).dst = set()
            I('s_mov_b64 exec, -1')
        return [a]
    def pre_loop(self, p2, idx0, extra=None, late=None):
        I = self.I; g = self.g
        self.mall_addr()
        if 't0early' in EXP:
            for gp in self.mall_issue(0): g.extend(gp)
        self.late_srds()
        if p2:
            self.p2_setup()
            for gp in self.p2_pre(): g.extend(gp)
        if extra: extra()
        I('v_and_b32 v64, 31, v%d' % VLANE); I('v_mov_b32 v66, 0x7f000000')
        if idx0:
            I('v_subrev_u32 v65, 4, v64'); I('v_cmp_lt_u32 vcc, 27, v64'); I('v_cndmask_b32 v64, v64, v65, vcc')
        else:
            I('s_lshl_b32 s8, s%d, 4' % S_CH); I('v_xor_b32 v65, s8, v64'); I('v_lshlrev_b32 v65, 4, v65')
            I('s_mul_i32 s8, s%d, %d' % (S_CH, 96 * 16)); I('s_sub_u32 s8, %d, s8' % (192 * 16)); I('v_add_u32 v65, s8, v65')
            I('v_cndmask_b32 v%d, v65, v66, %s' % (CS + 1, sr(S_HIM, 2)))
        I('v_lshlrev_b32 v64, 4, v64'); I('v_cndmask_b32 v%d, v64, v66, %s' % (CS, sr(S_HIM, 2)))
        I('v_and_b32 v64, 31, v%d' % VLANE); I('v_lshlrev_b32 v%d, 7, v64' % (CS + 2))
        if idx0 == 0: I('s_mul_i32 s8, s%d, 224' % S_IDX); I('s_mul_i32 s9, s%d, 96' % S_CH); I('s_add_u32 s8, s8, s9')
        elif idx0 == 8: I('s_mul_i32 s8, s%d, 28' % S_H0); I('s_mul_i32 s9, s%d, 448' % S_CH); I('s_add_u32 s8, s8, s9'); I('s_add_u32 s8, s8, %d' % (1792 + 448))
        else: I('s_mul_i32 s8, s%d, 224' % S_IDX); I('s_mul_i32 s9, s%d, 112' % S_CH); I('s_add_u32 s8, s8, s9'); I('s_add_u32 s8, s8, 1792')
        I('s_lshl_b32 s8, s8, 4'); I('s_add_u32 s%d, s8, %d' % (S_CSB, L.WS_CSG))
        if 'start' in EXP: self.stamp('setup')
        if getattr(self, 'pre_s1', None): self.pre_s1()
        self.s0pos = len(g.cur)
        if 'not0' not in EXP and 't0early' not in EXP:
            for gp in self.mall_issue(0): g.extend(gp)
        if late: late()
        self.row_stats()
    def chunks(self, fn, n=10):
        with self.g.capture() as body:
            fn()
        out = []; cur = []
        for i, x in enumerate(body):
            cur.append(x)
            nxt = body[i + 1] if i + 1 < len(body) else None
            safe = nxt is not None and not (nxt.op.startswith(('s_cselect', 's_cbranch', 's_addc', 's_subb', 'v_cndmask', 'v_addc')) or nxt.kind in ('dma', 'label')) \
                and not x.op.startswith(('s_cmp', 'v_cmp')) and 'm0' not in x.dst
            if len(cur) >= n and safe: out.append(cur); cur = []
        if cur: out.append(cur)
        return out

    def late_srds(self):
        I = self.I
        self.srd(S_PHI, 20, 16 * 28 * 28 * 2); self.srd(S_WO, 22, 448 * 896); self.srd(S_W2, 28, 1792 * 896)
        self.srd(S_OUT, 30, 2048 * 896)
        I('s_mov_b32 s%d, %s' % (S_L2E, f32(L.LOG2E))); I('s_mov_b32 s%d, %s' % (S_L2E + 1, f32(L.LOG2E)))
        I('s_mov_b32 s%d, 0' % S_HIM); I('s_mov_b32 s%d, -1' % (S_HIM + 1))
        I('s_mov_b32 s31, 0')

    def late_group(self, p2, extra=None):
        with self.g.capture() as a:
            self.late_srds()
            if extra: extra()
        self.p2flag = p2
        return a
    def p2_setup(self):
        I = self.I; T = 64
        I('s_lshr_b32 s9, s2, 3'); I('s_and_b32 s8, s9, 3'); I('s_add_u32 s8, s8, 24'); I('s_cmp_lt_u32 s9, 24'); I('s_cselect_b32 s9, s9, s8')
        I('s_mul_i32 s8, s9, 37'); I('s_lshr_b32 s8, s8, 8'); I('s_mul_i32 s10, s8, 7'); I('s_sub_u32 s%d, s9, s10' % S_CG)
        I('s_and_b32 s10, s2, 7'); I('s_lshl_b32 s10, s10, 2'); I('s_add_u32 s%d, s10, s8' % S_RG)
        I('s_mul_i32 s%d, s%d, %d' % (S_BSO, S_WAVE, 224 * 896)); I('s_lshl_b32 s8, s%d, 7' % S_CG); I('s_add_u32 s%d, s%d, s8' % (S_BSO, S_BSO))
        I('s_lshl_b32 s%d, s%d, 12' % (S_STA, S_WAVE)); I('s_add_u32 s%d, s%d, %d' % (S_STA, S_STA, L_STA))
        I('v_lshrrev_b32 v%d, 3, v140' % T); I('v_mul_u32_u24 v%d, 896, v%d' % (T, T))
        I('v_lshrrev_b32 v%d, 2, v140' % (T + 1)); I('v_and_b32 v%d, 4, v%d' % (T + 1, T + 1)); I('v_and_b32 v%d, 7, v140' % (T + 2))
        I('v_xor_b32 v%d, v%d, v%d' % (T + 1, T + 1, T + 2)); I('v_lshl_add_u32 v%d, v%d, 4, v%d' % (DB, T + 1, T))
        I('v_lshrrev_b32 v%d, 5, v140' % T); I('v_lshlrev_b32 v%d, 2, v%d' % (T, T)); I('v_bfe_u32 v%d, v140, 2, 2' % (T + 1)); I('v_add_u32 v%d, v%d, v%d' % (T, T, T + 1))
        I('v_lshlrev_b32 v%d, 7, v%d' % (T, T)); I('v_add_u32 v%d, s%d, v%d' % (T, S_STA, T))
        I('v_and_b32 v%d, 3, v140' % (T + 1)); I('v_lshlrev_b32 v%d, 3, v%d' % (T + 1, T + 1))
        I('v_and_b32 v%d, 16, v140' % (T + 2)); I('v_lshl_add_u32 v%d, v%d, 1, v%d' % (T + 1, T + 2, T + 1))
        I('v_and_b32 v%d, 8, v140' % (T + 2)); I('v_lshlrev_b32 v%d, 3, v%d' % (T + 2, T + 2)); I('v_xor_b32 v%d, v%d, v%d' % (T + 1, T + 1, T + 2))
        I('v_add_u32 v%d, v%d, v%d' % (BT, T, T + 1))
        I('v_xor_b32 v%d, 64, v%d' % (T + 1, T + 1)); I('v_add_u32 v%d, v%d, v%d' % (BT + 1, T, T + 1))

    def slot4_setup(self):
        I = self.I
        I('s_lshl_b32 s%d, s%d, 11' % (S_ST4, S_WAVE)); I('s_add_u32 s%d, s%d, %d' % (S_ST4, S_ST4, L_SHX)); I('s_sub_u32 s8, s%d, s%d' % (S_ST4, S_STA))
        for b in range(2): I('v_add_u32 v%d, s8, v%d' % (BT2 + b, BT + b))
    def wo_dma(self):
        g = self.g; I = self.I; grps = []
        with g.capture() as a:
            I('s_mul_i32 s23, s%d, %d' % (S_WAVE, 56 * 896)); I('s_lshl_b32 s24, s%d, 7' % S_CG); I('s_add_u32 s23, s23, s24'); I('s_mul_i32 s24, s%d, %d' % (S_WAVE, 56 * 128))
        for i in range(0, 7, 2):
            with g.capture() as b:
                I('s_add_u32 m0, s24, %d' % (L_WO + 1024 * i)); I('s_add_u32 s8, s23, %d' % (8 * 896 * i))
                I('buffer_load_dwordx4 v%d, %s, s8 offen lds' % (DB, sr(S_WO, 4)))
                if i + 1 < 7: I('buffer_load_dwordx4 v%d, %s, s8 offen offset:1024 lds' % (DB2, sr(S_WO, 4)))
            grps.append((a if i == 0 else []) + b)
        return grps
    SLOTS = [(0, BT), (2048, BT), (32768, BT), (34816, BT), (None, BT2)]
    def b_dma(self, k, needs=()):
        g = self.g; I = self.I; so = self.SLOTS[k % self.nslot][0]; grps = []
        with g.capture() as a:
            I('s_add_u32 m0, s%d, %d' % (S_STA, so) if so is not None else 's_mov_b32 m0, s%d' % S_ST4)
            I('s_add_u32 s8, s%d, %d' % (S_BSO, 16 * k * 896))
            I('buffer_load_dwordx4 v%d, %s, s8 offen lds' % (DB, sr(S_W2, 4)), needs=needs)
            I('buffer_load_dwordx4 v%d, %s, s8 offen offset:1024 lds' % (DB2, sr(S_W2, 4)))
        grps.append(a)
        self.bdma[k] = [x for gp in grps for x in gp if x.kind == 'dma']
        return grps
    def b_read(self, k):
        so, reg = self.SLOTS[k % self.nslot]; out = []
        if so is None: so = 0
        for b in range(2):
            for h in range(2):
                out.append(Instr('ds_read_b64_tr_b16 %s, v%d offset:%d' % (ar(8 * k + 4 * b + 2 * h, 2), reg + b, so + 1024 * h), needs=self.bdma[k]))
        self.bread[k] = out
        return out
    def b_tasks(self, k0, k1):
        t = [self.b_read(k) for k in range(k0, k1)]
        for k in range(k0, k1):
            if k + self.nslot < 14: t += self.b_dma(k + self.nslot, needs=self.bread[k])
        return t

    def stage_dma(self, st, gpitch):
        g = self.g; I = self.I; base = (st % 3) * STG
        nt = ' nt' if st < int(os.environ.get('NT', '0')) else ''; ntx = ' nt' if st < int(os.environ.get('NTX', os.environ.get('NT', '0'))) else ''
        grps = []
        for i in range(0, 4, 2):
            with g.capture() as a:
                if i == 0: I('s_add_u32 m0, s%d, %d' % (S_MW, base))
                I('s_mov_b64 exec, %s' % sr(S_EX56, 2))
                for j in (i, i + 1): I('buffer_load_dwordx4 v%d, %s, s%d offen offset:%d%s lds' % (DW + j, sr(S_W, 4), S_WSO, 896 * j, nt))
                I('s_mov_b64 exec, -1')
            grps.append(a)
        with g.capture() as a:
            I('s_add_u32 m0, s%d, %d' % (S_MX, base)); I('s_add_u32 s%d, s%d, %d' % (S_WSO, S_WSO, 64 * gpitch))
            for i in range(2): I('buffer_load_dwordx4 v%d, %s, s%d offen offset:%d%s lds' % (DX + i, sr(S_X, 4), S_XS, 1024 * i, ntx))
            I('s_add_u32 s%d, s%d, 128' % (S_XS, S_XS))
        grps.append(a)
        return grps, [x for gp in grps for x in gp if x.kind == 'dma']

    def read_addrs(self, clamp, shared=False):
        I = self.I; T = TMP
        I('v_and_b32 v%d, 31, v0' % T); I('v_lshlrev_b32 v%d, 7, v%d' % (T, T)); I('s_lshl_b32 s8, s%d, 12' % S_RT); I('v_add_u32 v%d, s8, v%d' % (T, T))
        I('v_lshrrev_b32 v%d, 5, v0' % (T + 1)); I('v_bfe_u32 v%d, v0, 1, 3' % (T + 2)); I('v_xor_b32 v%d, v%d, v%d' % (T + 2, T + 2, T + 1))
        I('v_lshlrev_b32 v%d, 3, v%d' % (T + 3, T + 1)); I('v_bfe_u32 v%d, v0, 2, 2' % (T + 4)); I('v_add_u32 v%d, v%d, v%d' % (T + 3, T + 3, T + 4))
        I('v_mul_u32_u24 v%d, 448, v%d' % (T + 3, T + 3))
        I('v_bfe_u32 v%d, v0, 4, 1' % (T + 4)); I('v_and_b32 v%d, 3, v0' % (T + 5)); I('v_lshl_add_u32 v%d, v%d, 2, v%d' % (T + 4, T + 4, T + 5))
        if shared:
            I('s_lshl_b32 s8, s%d, 2' % S_CH); I('v_xor_b32 v%d, s8, v%d' % (T + 6, T + 4)); I('v_lshl_add_u32 v%d, v%d, 3, v%d' % (T + 6, T + 6, T + 3))
            I('v_add_u32 v%d, %d, v%d' % (T + 6, WPART + 384, T + 6))
        if clamp: I('v_min_u32 v%d, 6, v%d' % (T + 4, T + 4))
        I('v_lshl_add_u32 v%d, v%d, 3, v%d' % (T + 3, T + 4, T + 3))
        I('v_add_u32 v%d, s10, v%d' % (T + 3, T + 3))
        for i in range(4):
            I('s_add_u32 s8, s%d, s%d' % (S_RT, S_CH)); I('s_add_u32 s8, s8, %d' % i); I('s_and_b32 s8, s8, 3')
            I('s_lshl_b32 s9, s8, 1'); I('v_xor_b32 v%d, s9, v%d' % (T + 5, T + 2)); I('v_lshl_add_u32 v%d, v%d, 4, v%d' % (AX + i, T + 5, T))
            I('s_mul_i32 s9, s8, 7168'); I('v_add_u32 v%d, s9, v%d' % (AW + i, T + 3))
            if shared and i in (0, 2): I('v_add_u32 v%d, s9, v%d' % (AS + i // 2, T + 6))

    def row_stats(self):
        I = self.I; S, Q = ST, ST + 1
        I('s_mov_b32 s8, 0x3f803f80')
        I('v_dot2_f32_bf16 v%d, v%d, s8, 0' % (S, XF)); I('v_dot2_f32_bf16 v%d, v%d, v%d, 0' % (Q, XF, XF))
        for q in range(1, 4):
            I('v_dot2_f32_bf16 v%d, v%d, s8, v%d' % (S, XF + q, S)); I('v_dot2_f32_bf16 v%d, v%d, v%d, v%d' % (Q, XF + q, XF + q, Q))
        for m in ('row_shr:1', 'row_shr:2', 'row_shr:4', 'row_shr:8'):
            for r in (S, Q): I('v_add_f32_dpp v%d, v%d, v%d %s row_mask:0xf bank_mask:0xf bound_ctrl:0' % (r, r, r, m))
        for m, rm in (('row_bcast:15', '0xa'), ('row_bcast:31', '0xc')):
            for r in (S, Q): I('v_add_f32_dpp v%d, v%d, v%d %s row_mask:%s bank_mask:0xf' % (r, r, r, m, rm))
        I('v_mul_f32 v%d, %s, v%d' % (S, f32(1.0 / 448), S)); I('v_mul_f32 v%d, %s, v%d' % (Q, f32(1.0 / 448), Q))
        I('v_fma_f32 v%d, -v%d, v%d, v%d' % (Q, S, S, Q)); I('v_max_f32 v%d, 0, v%d' % (Q, Q))
        def rbf(r):
            I('v_cvt_pk_bf16_f32 v%d, v%d, v%d' % (r, r, r)); I('v_lshlrev_b32 v%d, 16, v%d' % (r, r))
        rbf(S); rbf(Q)
        I('v_add_f32 v%d, %s, v%d' % (Q, f32(1e-5), Q)); rbf(Q)
        I('v_sqrt_f32 v%d, v%d' % (Q, Q)); rbf(Q)
        I('v_rcp_f32 v%d, v%d' % (Q, Q))
        I('v_sub_f32 v%d, 0, v%d' % (S, S))

    def nonce_issue(self):
        self.I('v_mov_b32 v%d, 0' % (ST + 3))
        return self.I('buffer_load_dword v%d, v%d, %s, 0 offen sc1' % (ST + 2, ST + 3, sr(S_DBG, 4)))
    def nonce_get_publish(self, tag):
        if tag != 'q': self.nonce_get(tag)
        self.row_publish()
    def nonce_get(self, tag):
        I = self.I; U = self.U
        I('v_readfirstlane_b32 s%d, v%d' % (S_NONCE, ST + 2))
        I('s_cmp_lg_u32 s%d, 0' % S_NONCE); I('s_cbranch_scc1 L_gotn%s' % tag)
        self.g.label('L_spinn%s' % tag)
        U('buffer_load_dword v%d, v%d, %s, 0 offen sc1' % (ST + 2, ST + 3, sr(S_DBG, 4)))
        U('s_waitcnt vmcnt(0)')
        I('v_readfirstlane_b32 s%d, v%d' % (S_NONCE, ST + 2)); I('s_nop 1')
        I('s_cmp_lg_u32 s%d, 0' % S_NONCE); I('s_cbranch_scc1 L_gotn%s' % tag)
        self.spin_tail('L_spinn%s' % tag)
        self.g.label('L_gotn%s' % tag)
    def row_publish(self):
        I = self.I
        I('v_mov_b32 v%d, s%d' % (ST + 2, S_NONCE)); I('v_mov_b32 v%d, s%d' % (ST + 3, S_NONCE))
        I('s_lshl_b32 s8, s%d, 4' % S_ROW); I('s_add_u32 s8, s8, %d' % L.WS_RS); I('v_mov_b32 v%d, 0' % (TMP + 8))
        I('s_mov_b32 exec_lo, 0'); I('s_mov_b32 exec_hi, 0x80000000')
        I('buffer_store_dwordx4 %s, v%d, %s, s8 offen sc1' % (vr(ST, 4), TMP + 8, sr(S_WS, 4)))
        I('s_mov_b64 exec, -1')
    def rs_issue(self):
        I = self.I
        I('s_lshl_b32 s8, s%d, 2' % S_RB); I('s_add_u32 s8, s8, s%d' % S_RT); I('s_lshl_b32 s8, s8, 9'); I('s_add_u32 s%d, s8, %d' % (S_ROW, L.WS_RS))
        I('v_and_b32 v%d, 31, v%d' % (DX, VLANE)); I('v_lshlrev_b32 v%d, 4, v%d' % (DX, DX))
        return I('buffer_load_dwordx4 %s, v%d, %s, s%d offen sc1' % (vr(ST, 4), DX, sr(S_WS, 4), S_ROW))
    def rs_get(self, tag, scale):
        I = self.I; U = self.U
        I('v_cmp_ne_u32 vcc, s%d, v%d' % (S_NONCE, ST + 2)); I('s_nop 1'); I('s_cbranch_vccz L_gotr%s' % tag)
        self.g.label('L_spinr%s' % tag)
        U('buffer_load_dwordx4 %s, v%d, %s, s%d offen sc1' % (vr(ST, 4), DX, sr(S_WS, 4), S_ROW))
        U('s_waitcnt vmcnt(0)')
        I('v_cmp_ne_u32 vcc, s%d, v%d' % (S_NONCE, ST + 2)); I('s_nop 1'); I('s_cbranch_vccz L_gotr%s' % tag)
        self.spin_tail('L_spinr%s' % tag)
        self.g.label('L_gotr%s' % tag)
        for q in range(4): I('v_cvt_pk_bf16_f32 v%d, v%d, v%d' % (XF + q, ST, ST))
        I('v_mul_f32 v%d, %s, v%d' % (ST, f32(scale), ST + 1))
    def publish(self, soff_s, tmp, needs=()):
        I = self.I
        I('v_mov_b32 v%d, s%d' % (tmp, S_NONCE)); I('v_mov_b32 v%d, 0' % (tmp + 1)); I('s_mov_b64 exec, 1')
        x = I('buffer_store_dword v%d, v%d, %s, s%d offen sc1' % (tmp, tmp + 1, sr(S_WS, 4), soff_s), needs=needs)
        I('s_mov_b64 exec, -1')
        return x
    def poll(self, tag, voff, soff_s, tmp):
        I = self.I; U = self.U
        self.g.label('L_poll%s' % tag)
        U('buffer_load_dword v%d, v%d, %s, s%d offen sc1' % (tmp, voff, sr(S_WS, 4), soff_s))
        I('s_waitcnt vmcnt(0)')
        I('v_cmp_ne_u32 vcc, s%d, v%d' % (S_NONCE, tmp)); I('s_nop 1'); I('s_cbranch_vccz L_polld%s' % tag)
        self.spin_tail('L_poll%s' % tag)
        self.g.label('L_polld%s' % tag)
    def poll_issue(self, voff, soff_s, tmp):
        return self.I('buffer_load_dword v%d, v%d, %s, s%d offen sc1' % (tmp, voff, sr(S_WS, 4), soff_s))
    def poll_check(self, tag, voff, soff_s, tmp):
        I = self.I; U = self.U
        if 'nopoll' in EXP and tag in 'AB': return
        I('v_cmp_ne_u32 vcc, s%d, v%d' % (S_NONCE, tmp)); I('s_nop 1'); I('s_cbranch_vccz L_polld%s' % tag)
        self.g.label('L_poll%s' % tag)
        U('buffer_load_dword v%d, v%d, %s, s%d offen sc1' % (tmp, voff, sr(S_WS, 4), soff_s)); U('s_waitcnt vmcnt(0)')
        I('v_cmp_ne_u32 vcc, s%d, v%d' % (S_NONCE, tmp)); I('s_nop 1'); I('s_cbranch_vccz L_polld%s' % tag)
        self.spin_tail('L_poll%s' % tag)
        self.g.label('L_polld%s' % tag)
    def spin_tail(self, lab, sl=None):
        I = self.I
        if (SLEEP if sl is None else sl): I('s_sleep %d' % (SLEEP if sl is None else sl))
        else: I('s_nop 0')
        pass; I('s_add_u32 s31, s31, 1'); I('s_cmp_lt_u32 s31, 0x8000'); I('s_cbranch_scc1 %s' % lab)

    def l2pf(self, st):
        if 'l2pf' not in EXP: return []
        I = self.I; lab = 'L_pf%s%d' % (self.tagbase, st)
        with self.g.capture() as a:
            I('s_lshr_b32 s8, s%d, 1' % S_WAVE); I('s_cmp_lg_u32 s8, %d' % (st - PF0)); I('s_cbranch_scc1 %s' % lab)
            I('s_lshr_b32 s8, s2, 3'); I('s_lshl_b32 s8, s8, 3'); I('s_add_u32 s8, s8, s%d' % S_WAVE); I('s_lshl_b32 s8, s8, 13')
            I('v_lshlrev_b32 v%d, 7, v%d' % (TMP + 8, VLANE))
            self.U('buffer_load_dword a80, v%d, %s, s8 offen' % (TMP + 8, sr(S_W2, 4)))
            I('s_sub_u32 s8, s8, %d' % (196 * 8192)); I('s_cbranch_scc1 %s' % lab)
            self.U('buffer_load_dword a80, v%d, %s, s8 offen' % (TMP + 8, sr(S_WO, 4)))
            self.g.label(lab)
        return [a]

    def code_pf(self, tg, tmp, dst):
        if 'nocpf' in EXP: return []
        I = self.I
        with self.g.capture() as a:
            I('s_getpc_b64 s[8:9]'); self.g.label('L_cpf%s' % tg)
            I('s_sub_u32 s8, s8, L_cpf%s-L_pc' % tg); I('s_subb_u32 s9, s9, 0')
            I('s_bfe_u32 s10, s2, 0x20003'); I('s_lshl_b32 s10, s10, 3'); I('s_add_u32 s10, s10, s%d' % S_WAVE); I('s_lshl_b32 s10, s10, 11')
            I('v_lshlrev_b32 v%d, 7, v%d' % (tmp, VLANE)); I('v_add_u32 v%d, s10, v%d' % (tmp, tmp)); I('v_min_u32 v%d, L_end-L_pc, v%d' % (tmp, tmp))
            I('s_mov_b64 exec, 0xffff')
            I('global_load_dword %s, v%d, s[8:9]' % (dst, tmp))
            I('s_mov_b64 exec, -1')
        return [a]

    def gemm(self, tiles, gpitch, dms, tag, hooks, tl):
        g = self.g; I = self.I
        dmas = dict(dms)
        NF, LOOK = 8, 4
        seq = [(ks, cc) for ks in range(28) for cc in range(len(tiles[ks & 3]['t']))]
        def wread(n):
            ks, cc = seq[n]; a = WF + 4 * (n % NF); c, areg, off = tiles[ks & 3]['t'][cc]
            return [Instr('ds_read_b64_tr_b16 %s, v%d offset:%d' % (vr(a + 2 * h, 2), areg, off + h * 4 * 448)) for h in range(2)]
        def xread(ks):
            return [Instr('ds_read_b128 %s, v%d' % (vr(XF + 4 * (ks % 2), 4), AX + (ks & 3)))]
        aregs = sorted(set(list(range(AX, AX + 4)) + [t[1] for p in tiles for t in p['t']]))
        def adv(st):
            d = STG if st % 3 else -2 * STG
            return [Instr('v_add_u32 v%d, %d, v%d' % (r, d, r)) if d > 0 else Instr('v_subrev_u32 v%d, %d, v%d' % (r, -d, r)) for r in aregs]
        tc = [0]
        def cs_ops(r, c):
            t = TMP + 2 * (tc[0] % 4); tc[0] += 1
            return [Instr('v_lshlrev_b32 v%d, 16, v%d' % (t, r)), Instr('v_and_b32 v%d, s%d, v%d' % (t + 1, S_MASK, r)),
                    Instr('v_add_f32 v%d, v%d, v%d' % (CS + c, CS + c, t)), Instr('v_add_f32 v%d, v%d, v%d' % (CS + c, CS + c, t + 1))]
        if 'start' in EXP:
            self.stamp('rowst'); I('s_nop 0', needs=dmas[0]); self.stamp('s0arr'); I('s_waitcnt lgkmcnt(0)')
        BAR0 = len(g.cur)
        I('s_barrier', needs=dmas[0])
        self.stamp('bar0')
        g.extend(xread(0))
        first = [wread(n) for n in range(LOOK)]
        for x in first: g.extend(x)
        g1, dmas[1] = self.stage_dma(1, gpitch)
        pend, dmas[2] = self.stage_dma(2, gpitch)
        g.cur[self.s0pos:self.s0pos] = ([] if tag == 'q' else [Instr('s_barrier')]) + [x for gp in g1 for x in gp]
        wrd = {}
        cs = {}
        def cs_poll():
            with g.capture() as a:
                I('s_mov_b32 s%d, %d' % (S_R0, L.WS_CSF))
                self.poll_issue(CS + 2, S_R0, CS + 3)
            return [a]
        def cs_load():
            with g.capture() as a:
                for c, vo, off in tl: I('buffer_load_dwordx4 %s, v%d, %s, s%d offen offset:%d sc1' % (ar(CSA + 4 * c, 4), vo, sr(S_WS, 4), S_CSB, off))
            return [a]
        for n in range(LOOK): wrd[n] = first[n]
        started = set(); xr = 0; cfill = []
        for n, (ks, cc) in enumerate(seq):
            p = tiles[ks & 3]; c = p['t'][cc][0]; a = WF + 4 * (n % NF); xf = XF + 4 * (ks % 2)
            I('v_mfma_f32_32x32x16_bf16 %s, %s, %s, %s' % (vr(ACC + 16 * c, 16), vr(a, 4), vr(xf, 4), vr(ACC + 16 * c, 16) if c in started else '0'),
              needs=wrd.get(n + 1, []) if n % 2 == 0 else [])
            started.add(c)
            nn = n + LOOK
            if nn < len(seq):
                ks2, cc2 = seq[nn]
                if cc2 == 0 and ks2 & 3 == 0:
                    st2 = ks2 >> 2
                    assert xr == ks2 - 1
                    g.extend(adv(st2))
                    if st2 == (1 if tag == 'q' else NST): self.nonce_get_publish(tag)
                    if st2 == 6: self.poll_check('c' + tag, CS + 2, S_R0, CS + 3); self.rs_issue()
                    if st2 in hooks.get('pre', {}): hooks['pre'][st2]()
                    if 'stg' in EXP and st2 in (2, 3, 6): self.stamp('preB%d' % st2)
                    I('s_waitcnt lgkmcnt(0)')
                    I('s_barrier', needs=dmas[st2])
                    if 'stg' in EXP: self.stamp('B%d' % st2)
                    if st2 == 1 and tag != 'q':
                        with g.capture() as grp_: self.nonce_issue()
                        pend += [grp_]
                    if st2 == 5: pend += cs_poll()
                    if st2 == 6: pend += cs_load()
                    if st2 in self.pre_post: pend += self.pre_post[st2]()
                    if st2 + 2 < 7:
                        newg, dmas[st2 + 2] = self.stage_dma(st2 + 2, gpitch); pend += newg
                    if st2 in TSCH: pend += self.mall_issue(1, TSCH[st2])
                    if st2 in hooks.get('post', {}): pend += hooks['post'][st2]()
                wrd[nn] = wread(nn); g.extend(wrd[nn])
            if xr == ks and ks + 1 < 28 and (nn >= len(seq) or seq[min(nn, len(seq) - 1)][0] >= ks + 1):
                g.extend(xread(ks + 1)); xr = ks + 1
            if pend and (n % 3 == 0 or len(pend) > 3): g.extend(pend.pop(0))
        for x in pend: g.extend(x)
        self.stamp('loopend')

    def finish_stats(self, tl, scale, tag, before_b1=None, after_b1=None):
        I = self.I
        wr = []
        if before_b1: wr += before_b1() or []
        self.rs_get(tag, scale)
        for c, vo, off in tl:
            I('v_mfma_f32_32x32x16_bf16 %s, %s, %s, %s' % (vr(ACC + 16 * c, 16), ar(CSA + 4 * c, 4), vr(XF, 4), vr(ACC + 16 * c, 16)))
        I('s_barrier', needs=wr)
        if after_b1: after_b1()
        if 'stg' in EXP: self.stamp = lambda *a, **k: None
        self.stamp('stats')

    def with_bg(self, fn, tasks, every):
        with self.g.capture() as body:
            fn()
        out = []; tasks = list(tasks); cnt = 0
        for x in body:
            out.append(x); cnt += 1
            if tasks and cnt >= every and x.kind in ('valu', 'trans') and not (x.dst & {'vcc'}):
                out += tasks.pop(0); cnt = 0
        for t in tasks: out += t
        self.g.extend(out)

    def ffn(self):
        I = self.I; g = self.g
        self.tagbase = 'f'
        self.srd(S_W, 26, 448 * 3584)
        I('v_mul_u32_u24 v6, 3584, v6'); I('v_lshl_add_u32 v%d, v7, 4, v6' % DW)
        I('s_mul_i32 s%d, s%d, 448' % (S_WSO, S_IDX))
        dms = self.start_stream(3584)
        I('s_mul_i32 s10, s%d, 192' % S_CH); I('s_add_u32 s10, s10, %d' % WPART)
        self.read_addrs(False, shared=True)
        self.pre_loop(True, 0); self.pre_post = {}
        own = lambda i, o: [(c, AW + i, 64 * c) for c in o]
        tiles = [dict(t=[(3, AS, 0)] + own(0, [0, 1, 2]), cs=True), dict(t=own(1, [0, 1, 2]), cs=True),
                 dict(t=own(2, [1, 2, 0]) + [(3, AS + 1, 0)], cs=True), dict(t=own(3, [2, 0, 1]), cs=True)]
        self.bdma, self.bread = {}, {}; self.nslot = 5
        tl = [(0, CS, 0), (1, CS, 512), (2, CS, 1024), (3, CS + 1, 0)]
        self.gemm(tiles, 3584, dms, 'f', self.bhooks(), tl)
        self.slot4_setup()
        SH = ACC + 48; X8 = 116
        def before_b1():
            I('s_xor_b32 s8, s%d, 4' % S_WAVE); I('s_lshl_b32 s8, s8, 11'); I('s_add_u32 s8, s8, %d' % L_SHX); I('v_add_u32 v%d, s8, v%d' % (AX, VL16))
            I('s_lshl_b32 s8, s%d, 11' % S_WAVE); I('s_add_u32 s8, s8, %d' % L_SHX); I('v_add_u32 v%d, s8, v%d' % (AX + 1, VL16))
            return [I('ds_write_b128 v%d, %s offset:%d' % (AX, vr(SH + 8 + 4 * q, 4), 1024 * q)) for q in range(2)]
        shr = []
        def after_b1():
            for q in range(2): shr.append(I('ds_read_b128 %s, v%d offset:%d' % (vr(X8 + 4 * q, 4), AX + 1, 1024 * q)))
        self.finish_stats(tl, -L.LOG2E, 'f', before_b1, after_b1)
        I('s_lshl_b32 s8, s%d, 2' % S_RB); I('s_add_u32 s8, s8, s%d' % S_RT); I('s_mul_i32 s9, s8, %d' % (112 * 1024))
        I('s_lshl_b32 s8, s8, 3'); I('s_add_u32 s8, s8, s%d' % S_IDX); I('s_lshl_b32 s8, s8, 1'); I('s_add_u32 s8, s8, s%d' % S_CH)
        I('s_lshl_b32 s8, s8, 7'); I('s_add_u32 s0, s8, %d' % L.WS_FLAG)
        I('s_mul_i32 s10, s%d, %d' % (S_IDX, 14 * 1024)); I('s_add_u32 s9, s9, s10')
        I('s_mul_i32 s10, s%d, 6144' % S_CH); I('s_add_u32 s10, s9, s10')
        I('s_lshl_b32 s11, s%d, 10' % S_CH); I('s_add_u32 s9, s9, s11'); I('s_add_u32 s1, s9, %d' % (12 * 1024))
        stores = []
        def unit(idx):
            c, u = divmod(idx, 2)
            A = ACC + 16 * c + 8 * u; T = [64, 72][idx & 1]; P = [80, 84][idx & 1]
            if 'noprio' not in EXP:
                lab = 'L_fp%d' % idx
                I('s_setprio 0'); I('s_cmp_eq_u32 s%d, %d' % (S_CH, idx & 1)); I('s_cbranch_scc1 %s' % lab); I('s_setprio 1'); self.g.label(lab)
            if c == 3:
                for j in range(0, 8, 2): I('v_pk_add_f32 %s, %s, %s' % (vr(A + j, 2), vr(A + j, 2), vr(X8 + j, 2)))
            for j in range(0, 8, 2): I('v_pk_mul_f32 %s, %s, %s op_sel_hi:[1,0]' % (vr(A + j, 2), vr(A + j, 2), vr(ST, 2)))
            for j in range(8): I('v_exp_f32 v%d, v%d' % (T + j, A + j))
            for j in range(0, 8, 2): I('v_pk_add_f32 %s, %s, 1.0 op_sel_hi:[1,0]' % (vr(T + j, 2), vr(T + j, 2)))
            for j in range(8): I('v_rcp_f32 v%d, v%d' % (T + j, T + j))
            for j in range(0, 8, 2): I('v_pk_mul_f32 %s, %s, %s' % (vr(T + j, 2), vr(T + j, 2), vr(A + j, 2)))
            for j in range(0, 8, 2): I('v_cvt_pk_bf16_f32 v%d, v%d, v%d' % (P + j // 2, T + j, T + j + 1))
            if idx == 4: I('s_add_u32 s10, s10, 4096')
            if c < 3: stores.append(I('buffer_store_dwordx4 %s, v%d, %s, s10 offen offset:%d sc1' % (vr(P, 4), VL16, sr(S_WS, 4), (idx % 4) * 1024)))
            else: stores.append(I('buffer_store_dwordx4 %s, v%d, %s, s1 offen sc1' % (vr(P, 4), VL16, sr(S_WS, 4))))
        self.with_bg(lambda: [unit(i) for i in range(6)], self.b_round1(shr), int(os.environ.get('FBG', '11')))
        unit(6)
        I('s_setprio 0')
        self.stamp('epi')
        self.p2_enter()
        bt = self.b_tasks(4, 9)
        for t in bt[:5]: g.extend(t)
        self.publish(0, 96, needs=stores)
        self.stamp('pub')
        if 'nofh' not in EXP: I('s_barrier')
        for t in bt[5:8]: g.extend(t)
        pa = self.poll_issue(P2T + 1, S_FA, P2T)
        for t in bt[8:]: g.extend(t)
        I('s_waitcnt lgkmcnt(0)'); I('s_nop 0', needs=[pa])
        I('s_branch L_p2')

    def b_round1(self, need4=None):
        t = [sum([self.b_read(k) for k in range(4)], [])]
        if need4 is not None: t += self.b_dma(4, needs=need4)
        for k in range(4): t += self.b_dma(k + 5, needs=self.bread[k])
        return t

    def bhooks(self, extra=None):
        post = {5: lambda: [[Instr('v_add_u32 v%d, %d, v%d' % (DB2, 8 * 896 - 1024, DB))]] + self.b_dma(0) + self.b_dma(1), 6: lambda: self.b_dma(2) + self.b_dma(3)}
        if extra: post.update(extra)
        return dict(post=post)

    def pack_k(self, A, K8):
        I = self.I
        for j in range(8): I('v_cvt_pk_bf16_f32 v%d, v%d, v%d' % (K8 + j, A + 2 * j, A + 2 * j + 1))
        for j in (6, 7): I('v_cndmask_b32 v%d, v%d, 0, %s' % (K8 + j, K8 + j, sr(S_HIM, 2)))
    def half_units(self, As, neg):
        I = self.I; M = 64; n = '-' if neg else ''; nm = ' neg_lo:[1,0,0] neg_hi:[1,0,0]' if neg else ''
        def each(f):
            for i, A in enumerate(As): f(A, M + 6 * i)
        I('v_mov_b32 v%d, 0xff800000' % (TMP + 10))
        each(lambda A, m: (I('v_max3_f32 v%d, %sv%d, %sv%d, %sv%d' % (m, n, A, n, A + 1, n, A + 2)), I('v_max3_f32 v%d, %sv%d, %sv%d, %sv%d' % (m + 1, n, A + 8, n, A + 9, n, A + 10))))
        for j in (3, 5): each(lambda A, m: (I('v_max3_f32 v%d, v%d, %sv%d, %sv%d' % (m, m, n, A + j, n, A + j + 1)), I('v_max3_f32 v%d, v%d, %sv%d, %sv%d' % (m + 1, m + 1, n, A + 8 + j, n, A + 9 + j))))
        each(lambda A, m: I('v_max3_f32 v%d, v%d, %sv%d, %sv%d' % (m + 1, m + 1, n, A + 7, n, A + 15)))
        each(lambda A, m: I('v_max_f32 v%d, v%d, v%d' % (m, m, m + 1)))
        each(lambda A, m: I('v_mov_b32 v%d, v%d' % (m + 1, m)))
        each(lambda A, m: I('v_permlane32_swap_b32 v%d, v%d' % (m, m + 1)))
        each(lambda A, m: I('v_max_f32 v%d, v%d, v%d' % (m, m, m + 1)))
        each(lambda A, m: I('v_mul_f32 v%d, -v%d, v%d' % (m, ST, m)))
        each(lambda A, m: I('v_cndmask_b32 v%d, v%d, v%d, %s' % (m + 1, m, TMP + 10, sr(S_HIM, 2))))
        for j in range(0, 16, 2):
            sel = 'op_sel_hi:[1,0,0]' if j < 12 else 'op_sel:[0,0,1] op_sel_hi:[1,0,1]'
            each(lambda A, m: I('v_pk_fma_f32 %s, %s, %s, %s %s%s' % (vr(A + j, 2), vr(A + j, 2), vr(ST, 2), vr(m, 2), sel, nm)))
        for j in range(16): each(lambda A, m: I('v_exp_f32 v%d, v%d' % (A + j, A + j)))
        each(lambda A, m: (I('v_pk_add_f32 %s, %s, %s' % (vr(m + 2, 2), vr(A, 2), vr(A + 2, 2))), I('v_pk_add_f32 %s, %s, %s' % (vr(m + 4, 2), vr(A + 8, 2), vr(A + 10, 2)))))
        for j in (4, 6): each(lambda A, m: (I('v_pk_add_f32 %s, %s, %s' % (vr(m + 2, 2), vr(m + 2, 2), vr(A + j, 2))), I('v_pk_add_f32 %s, %s, %s' % (vr(m + 4, 2), vr(m + 4, 2), vr(A + 8 + j, 2)))))
        each(lambda A, m: I('v_pk_add_f32 %s, %s, %s' % (vr(m + 2, 2), vr(m + 2, 2), vr(m + 4, 2))))
        each(lambda A, m: I('v_add_f32 v%d, v%d, v%d' % (m, m + 2, m + 3)))
        each(lambda A, m: I('v_mov_b32 v%d, v%d' % (m + 1, m)))
        each(lambda A, m: I('v_permlane32_swap_b32 v%d, v%d' % (m, m + 1)))
        each(lambda A, m: I('v_add_f32 v%d, v%d, v%d' % (m, m, m + 1)))
        each(lambda A, m: I('v_rcp_f32 v%d, v%d' % (m, m)))
        for j in range(0, 16, 2): each(lambda A, m: I('v_pk_mul_f32 %s, %s, %s op_sel_hi:[1,0]' % (vr(A + j, 2), vr(A + j, 2), vr(m, 2))))
        for j in range(8): each(lambda A, m: I('v_cvt_pk_bf16_f32 v%d, v%d, v%d' % (A + j, A + 2 * j, A + 2 * j + 1)))
    def phi_mfma(self, A, K8, WP):
        I = self.I
        I('v_mfma_f32_32x32x16_bf16 %s, %s, %s, 0' % (vr(A, 16), ar(WP, 4), vr(K8, 4)))
        I('v_mfma_f32_32x32x16_bf16 %s, %s, %s, %s' % (vr(A, 16), ar(WP + 4, 4), vr(K8 + 4, 4), vr(A, 16)))
    def softmax_unit(self, A, sreg=None):
        I = self.I
        EP, EN, M = 64, 80, TMP
        mx, nm, t, u = M, M + 1, M + 2, M + 4
        I('v_mov_b32 v%d, 0xff800000' % (M + 10))
        m2, n2 = M + 6, M + 7
        for (a, b, o) in ((mx, nm, 0), (m2, n2, 8)):
            I('v_max3_f32 v%d, v%d, v%d, v%d' % (a, A + o, A + o + 1, A + o + 2)); I('v_max3_f32 v%d, -v%d, -v%d, -v%d' % (b, A + o, A + o + 1, A + o + 2))
        for j in (3, 5):
            for (a, b, o) in ((mx, nm, 0), (m2, n2, 8)):
                I('v_max3_f32 v%d, v%d, v%d, v%d' % (a, a, A + o + j, A + o + j + 1)); I('v_max3_f32 v%d, v%d, -v%d, -v%d' % (b, b, A + o + j, A + o + j + 1))
        I('v_max3_f32 v%d, v%d, v%d, v%d' % (m2, m2, A + 7, A + 15)); I('v_max3_f32 v%d, v%d, -v%d, -v%d' % (n2, n2, A + 7, A + 15))
        I('v_max_f32 v%d, v%d, v%d' % (mx, mx, m2)); I('v_max_f32 v%d, v%d, v%d' % (nm, nm, n2))
        I('v_permlane32_swap_b32 v%d, v%d' % (mx, nm)); I('v_max_f32 v%d, v%d, v%d' % (t, mx, nm))
        I('v_mul_f32 v%d, -v%d, v%d' % (t, ST, t)); I('v_mov_b32 v%d, v%d' % (u, t)); I('v_permlane32_swap_b32 v%d, v%d' % (t, u))
        I('v_cndmask_b32 v%d, v%d, v%d, %s' % (t + 1, t, M + 10, sr(S_HIM, 2))); I('v_cndmask_b32 v%d, v%d, v%d, %s' % (u + 1, u, M + 10, sr(S_HIM, 2)))
        for j in range(0, 16, 2):
            sel = 'op_sel_hi:[1,0,0]' if j < 12 else 'op_sel:[0,0,1] op_sel_hi:[1,0,1]'
            I('v_pk_fma_f32 %s, %s, %s, %s %s' % (vr(EP + j, 2), vr(A + j, 2), vr(ST, 2), vr(t, 2), sel))
            I('v_pk_fma_f32 %s, %s, %s, %s %s neg_lo:[1,0,0] neg_hi:[1,0,0]' % (vr(EN + j, 2), vr(A + j, 2), vr(ST, 2), vr(u, 2), sel))
        for j in range(16): I('v_exp_f32 v%d, v%d' % (EP + j, EP + j)); I('v_exp_f32 v%d, v%d' % (EN + j, EN + j))
        sp, sn = M + 6, M + 8
        I('v_pk_add_f32 %s, %s, %s' % (vr(sp, 2), vr(EP, 2), vr(EP + 2, 2))); I('v_pk_add_f32 %s, %s, %s' % (vr(sn, 2), vr(EN, 2), vr(EN + 2, 2)))
        for j in range(4, 16, 2):
            I('v_pk_add_f32 %s, %s, %s' % (vr(sp, 2), vr(sp, 2), vr(EP + j, 2))); I('v_pk_add_f32 %s, %s, %s' % (vr(sn, 2), vr(sn, 2), vr(EN + j, 2)))
        I('v_add_f32 v%d, v%d, v%d' % (sp, sp, sp + 1)); I('v_add_f32 v%d, v%d, v%d' % (sn, sn, sn + 1))
        I('v_permlane32_swap_b32 v%d, v%d' % (sp, sn)); I('v_add_f32 v%d, v%d, v%d' % (t, sp, sn))
        if sreg is None:
            I('v_rcp_f32 v%d, v%d' % (t, t)); I('v_mov_b32 v%d, v%d' % (u, t)); I('v_permlane32_swap_b32 v%d, v%d' % (t, u))
            for j in range(0, 16, 2):
                I('v_pk_mul_f32 %s, %s, %s op_sel_hi:[1,0]' % (vr(EP + j, 2), vr(EP + j, 2), vr(t, 2)))
                I('v_pk_mul_f32 %s, %s, %s op_sel_hi:[1,0]' % (vr(EN + j, 2), vr(EN + j, 2), vr(u, 2)))
            for j in range(8):
                I('v_cvt_pk_bf16_f32 v%d, v%d, v%d' % (A + j, EP + 2 * j, EP + 2 * j + 1)); I('v_cvt_pk_bf16_f32 v%d, v%d, v%d' % (A + 8 + j, EN + 2 * j, EN + 2 * j + 1))
        else:
            I('v_mov_b32 v%d, v%d' % (u, t))
            for j in range(2): I('v_cvt_pk_bf16_f32 v%d, v%d, v%d' % (A + j, EP + 2 * j, EP + 2 * j + 1))
            I('v_permlane32_swap_b32 v%d, v%d' % (t, u)); I('v_rcp_f32 v%d, v%d' % (u, u))
            for j in range(2, 8): I('v_cvt_pk_bf16_f32 v%d, v%d, v%d' % (A + j, EP + 2 * j, EP + 2 * j + 1))
            I('v_mul_f32 v%d, v%d, v%d' % (u, u, t)); I('v_mov_b32 v%d, v%d' % (sreg, t))
            for j in range(0, 16, 2): I('v_pk_mul_f32 %s, %s, %s op_sel_hi:[1,0]' % (vr(EN + j, 2), vr(EN + j, 2), vr(u, 2)))
            for j in range(8): I('v_cvt_pk_bf16_f32 v%d, v%d, v%d' % (A + 8 + j, EN + 2 * j, EN + 2 * j + 1))

    def wphi_dma(self, n, head0_s):
        I = self.I; out = []
        I('s_mul_i32 s8, s%d, 1568' % head0_s); I('s_lshl_b32 s9, s%d, 10' % S_WAVE); I('s_add_u32 s8, s8, s9'); I('s_add_u32 s9, s9, %d' % L_WPHI)
        for i in range(n):
            I('s_add_u32 m0, s9, %d' % (8192 * i)); I('s_add_u32 s10, s8, %d' % (8192 * i))
            out.append(I('buffer_load_dwordx4 v%d, %s, s10 offen lds' % (VL16, sr(S_PHI, 4))))
        return out
    def wphi_read(self, nheads, hoff_s, WP):
        I = self.I; T = TMP + 9
        I('v_lshrrev_b32 v%d, 5, v%d' % (T, VLANE)); I('v_lshlrev_b32 v%d, 2, v%d' % (T, T)); I('v_bfe_u32 v%d, v%d, 2, 2' % (T + 1, VLANE)); I('v_add_u32 v%d, v%d, v%d' % (T, T, T + 1))
        I('v_mul_u32_u24 v%d, 56, v%d' % (T, T)); I('v_add_u32 v%d, s%d, v%d' % (T, hoff_s, T))
        I('v_bfe_u32 v%d, v%d, 4, 1' % (T + 1, VLANE)); I('v_lshlrev_b32 v%d, 2, v%d' % (T + 1, T + 1)); I('v_and_or_b32 v%d, v%d, 3, v%d' % (T + 1, VLANE, T + 1))
        I('v_min_u32 v%d, 6, v%d' % (T + 1, T + 1)); I('v_lshl_add_u32 v%d, v%d, 3, v%d' % (T, T + 1, T))
        for i in range(nheads):
            for s in range(2):
                for h in range(2):
                    I('ds_read_b64_tr_b16 %s, v%d offset:%d' % (ar(WP + 8 * i + 4 * s + 2 * h, 2), T, i * 1568 + (16 * s + 8 * h) * 56))

    def kv_common(self):
        I = self.I; g = self.g
        self.tagbase = 'k'
        self.srd(S_W, 18, 448 * 2688)
        I('s_lshl_b32 s8, s%d, 2' % S_IDX); I('s_lshr_b32 s9, 0xdb9630, s8'); I('s_and_b32 s9, s9, 15')
        I('s_lshr_b32 s10, 0x322333, s8'); I('s_and_b32 s10, s10, 15')
        I('s_mul_i32 s11, s9, 56'); I('s_and_b32 s%d, s11, -16' % S_WSO); I('s_and_b32 s11, s11, 8')
        I('s_mul_i32 s8, s10, 3'); I('s_add_u32 s8, s8, 1')
        I('v_cmp_lt_u32 vcc, 13, v7'); I('v_subrev_u32 v8, 14, v7'); I('v_cndmask_b32 v8, v7, v8, vcc'); I('v_min_u32 v8, s8, v8')
        I('v_mov_b32 v9, 896'); I('v_mov_b32 v10, 1792'); I('v_cndmask_b32 v9, v9, v10, vcc')
        I('v_mul_u32_u24 v6, 2688, v6'); I('v_add_u32 v6, v6, v9'); I('v_lshl_add_u32 v%d, v8, 4, v6' % DW)
        I('s_mov_b32 s0, s9'); I('s_mov_b32 s1, s10'); I('s_mov_b32 s%d, s11' % S_NONCE)
        dms = self.start_stream(2688)
        I('s_mul_i32 s10, s%d, 224' % S_CH); I('s_add_u32 s10, s10, s%d' % S_NONCE); I('s_add_u32 s10, s10, %d' % WPART)
        self.read_addrs(True)
        PW, HO, UA, VW, ZV = 48, 50, 51, 54, 58
        def kvx():
            I('s_mov_b32 s%d, s0' % S_H0); I('s_mov_b32 s%d, s1' % S_NH)
        def kvl():
            I('s_mov_b32 s%d, s%d' % (S_R0, S_H0))
            if ATOM:
                I('s_cmp_lg_u32 s%d, 0' % S_RB); I('s_cbranch_scc1 L_nozero')
                Z = 68
                for i in range(4): I('v_mov_b32 v%d, 0' % (Z + i))
                I('s_lshl_b32 s8, s%d, 13' % S_H0); I('s_lshl_b32 s9, s%d, 10' % S_WAVE); I('s_add_u32 s8, s8, s9'); I('s_add_u32 s8, s8, %d' % L.WS_KV)
                self.U('buffer_store_dwordx4 %s, v%d, %s, s8 offen sc1' % (vr(Z, 4), VL16, sr(S_WS, 4)))
                I('s_add_u32 s8, s8, 8192'); self.U('buffer_store_dwordx4 %s, v%d, %s, s8 offen sc1' % (vr(Z, 4), VL16, sr(S_WS, 4)))
                I('s_add_u32 s8, s8, 8192'); I('s_cmp_eq_u32 s%d, 3' % S_NH); I('s_cselect_b32 s8, s8, 0x7f000000')
                self.U('buffer_store_dwordx4 %s, v%d, %s, s8 offen sc1' % (vr(Z, 4), VL16, sr(S_WS, 4))); I('s_nop 1')
                self.g.label('L_nozero')
            for gp in post4(): g.extend(gp)
        kv_pre = lambda: self.pre_loop(True, 8, kvx, kvl)
        rot = lambda i: [((i + cc) % 3, AW + i, 56 * ((i + cc) % 3)) for cc in range(3)]
        tiles = [dict(t=rot(i), cs=(i < 3)) for i in range(4)]
        self.bdma, self.bread = {}, {}; self.nslot = 5
        def pre2():
            pass
        def post2():
            with g.capture() as a:
                I('s_mov_b32 s8, %d' % L_WPHI)
                self.wphi_read(3, 8, 88)
            return [a]
        def post3():
            with g.capture() as a:
                I('s_or_b32 s8, s%d, s%d' % (S_RB, S_WAVE)); I('s_cmp_lg_u32 s8, 0'); I('s_cbranch_scc1 L_nozf')
                I('s_lshl_b32 s8, s%d, 7' % S_IDX); I('s_add_u32 s8, s8, %d' % (L.WS_KVZ + 0x4000))
                self.publish(8, TMP + 8).kind = 'untracked'
                self.g.label('L_nozf')
            return [a]
        self.kvr = (PW, HO, UA, VW, ZV)
        def post4():
            A, B, C = 64, 65, 66; out = []
            with g.capture() as a:
                I('v_and_b32 v%d, 31, v%d' % (A, VLANE)); I('v_lshlrev_b32 v%d, 6, v%d' % (A, A)); I('s_lshl_b32 s8, s%d, 11' % S_RT); I('v_add_u32 v%d, s8, v%d' % (A, A))
                I('v_bfe_u32 v%d, v%d, 1, 2' % (B, VLANE)); I('v_lshl_add_u32 v%d, v%d, 4, v%d' % (A, B, A))
                I('v_lshrrev_b32 v%d, 5, v%d' % (B, VLANE))
                I('v_lshl_add_u32 v%d, v%d, 13, v%d' % (PW, B, A)); I('s_lshl_b32 s9, s%d, 5' % S_CH); I('v_xor_b32 v%d, s9, v%d' % (PW, PW)); I('v_xor_b32 v%d, 16, v%d' % (PW + 1, PW))
                I('s_add_u32 s8, s8, %d' % L_V); I('v_add_u32 v%d, s8, v%d' % (HO, VL16))
                I('v_lshl_add_u32 v%d, v%d, 3, v%d' % (VW, B, A)); I('v_add_u32 v%d, %d, v%d' % (VW, L_V, VW))
                for q in range(1, 4): I('v_xor_b32 v%d, %d, v%d' % (VW + q, 16 * q, VW))
                I('v_lshlrev_b32 v%d, 10, v%d' % (UA + 2, B)); I('v_and_b32 v%d, 31, v%d' % (A, VLANE)); I('v_lshl_add_u32 v%d, v%d, 2, v%d' % (UA + 2, A, UA + 2))
            out.append(a)
            with g.capture() as a:
                I('v_lshrrev_b32 v%d, 5, v%d' % (A, VLANE)); I('v_bfe_u32 v%d, v%d, 2, 2' % (B, VLANE)); I('v_lshl_add_u32 v%d, v%d, 2, v%d' % (A, A, B))
                I('v_bfe_u32 v%d, v%d, 4, 1' % (B, VLANE)); I('v_bfe_u32 v%d, v%d, 1, 1' % (C, VLANE)); I('v_lshl_add_u32 v%d, v%d, 1, v%d' % (B, B, C))
                I('v_lshrrev_b32 v%d, 1, v%d' % (C, A)); I('v_xor_b32 v%d, v%d, v%d' % (B, B, C)); I('v_lshlrev_b32 v%d, 6, v%d' % (A, A)); I('v_lshl_add_u32 v%d, v%d, 4, v%d' % (A, B, A))
                I('v_and_b32 v%d, 1, v%d' % (B, VLANE)); I('v_lshl_add_u32 v%d, v%d, 3, v%d' % (A, B, A))
                I('s_lshl_b32 s10, s%d, 13' % S_WAVE); I('v_add_u32 v%d, s10, v%d' % (UA + 1, A))
                I('s_lshr_b32 s9, s%d, 1' % S_WAVE); I('s_lshl_b32 s10, s9, 13'); I('s_add_u32 s10, s10, %d' % L_V); I('v_add_u32 v%d, s10, v%d' % (UA, A))
                I('s_add_u32 s10, s9, s%d' % S_H0); I('s_lshl_b32 s10, s10, 13'); I('s_and_b32 s8, s%d, 1' % S_WAVE); I('s_lshl_b32 s8, s8, 7'); I('s_add_u32 s10, s10, s8')
                I('s_add_u32 s0, s10, %d' % L.WS_KV)
                I('s_cmp_lt_u32 s9, s%d' % S_NH); I('s_cselect_b32 s%d, 1, 0' % S_NH)
                I('s_lshl_b32 s8, s%d, 4' % S_IDX); I('s_add_u32 s8, s8, s%d' % S_RB); I('s_lshl_b32 s8, s8, 7'); I('s_add_u32 s1, s8, %d' % L.WS_KVZ)
                I('s_lshl_b32 s%d, s%d, 7' % (S_H0, S_IDX)); I('s_add_u32 s%d, s%d, %d' % (S_H0, S_H0, L.WS_KVZ + 0x4000)); I('v_mov_b32 v%d, 0' % ZV)
            out.append(a)
            return out
        kv_pre()
        def wpd():
            with g.capture() as a: self.wphi_dma(1, S_R0)
            return [a]
        self.pre_post = {2: wpd}
        hk = self.bhooks({4: post2, NST: post3})
        p6 = hk['post'][6]
        def post6():
            with g.capture() as a: self.poll_issue(ZV, S_H0, ZV + 1)
            return [a] + p6()
        hk['post'][6] = post6
        tl = [(c, CS, 448 * c) for c in range(3)]
        self.gemm(tiles, 2688, dms, 'k', hk, tl)
        self.finish_stats(tl, L.LOG2E, 'k', self.slot4_setup)
        I('s_cmp_eq_u32 s%d, 1' % S_CH); I('s_cbranch_scc1 L_kv_v')

    def kv_rest(self, tg, As, wr):
        I = self.I; g = self.g; PW, HO, U, VW, ZV = self.kvr
        self.poll_check('z' + tg, ZV, S_H0, ZV + 1)
        I('s_add_u32 s10, s0, 4096'); I('s_lshr_b32 s11, s%d, 1' % S_WAVE)
        def unit(lab, cond):
            cond();
            def rd(s):
                b = 64 + 24 + 8 * (s % 2) if False else (84, 92, 112, 120)[s % 4] - 0
                return b
            B = [80, 88, 96, 112]
            def rd(s):
                b = B[s % 4]
                for h in range(2):
                    I('ds_read_b64_tr_b16 %s, v%d offset:%d' % (vr(b + 2 * h, 2), U, (16 * s + 8 * h) * 64))
                    I('ds_read_b64_tr_b16 %s, v%d offset:%d' % (vr(b + 4 + 2 * h, 2), U + 1, (16 * s + 8 * h) * 64))
            D = ACC
            for s in range(3): rd(s)
            for s in range(8):
                if s + 3 < 8: rd(s + 3)
                b = B[s % 4]
                I('v_mfma_f32_32x32x16_bf16 %s, %s, %s, %s' % (vr(D, 16), vr(b, 4), vr(b + 4, 4), vr(D, 16) if s else '0'))
            I('s_nop 7'); I('s_nop 4')
            for r in range(16):
                d = (r & 3) + 8 * (r >> 2)
                if r == 14: I('s_mov_b32 exec_hi, 0')
                self.U('buffer_atomic_add_f32 v%d, v%d, %s, s%d offen offset:%d' % (D + r, U + 2, sr(S_WS, 4), 0 if d < 16 else 10, (d % 16) * 256))
            I('s_mov_b64 exec, -1')
            if lab: self.g.label(lab)
        r1 = self.b_round1(); KB = int(os.environ.get('KBG', '14'))
        bg = [r1[:3], r1[3:], []]
        for i, A in enumerate(As):
            self.with_bg(lambda: self.half_units([A], tg == 'v'), bg[i], KB)
            wr += [I('ds_write_b128 v%d, %s offset:%d' % (PW + q, vr(A + 4 * q, 4), L_PHI + 16384 * i)) for q in range(2)]
            I('s_waitcnt lgkmcnt(0)')
            I('s_barrier')
            if tg == 'k' and i < 2:
                unit('L_ku%d' % i, lambda: (I('s_cmp_lg_u32 s11, %d' % i), I('s_cbranch_scc1 L_ku%d' % i)))
        self.stamp('bb')
        if tg == 'v':
            unit(None, lambda: (I('s_cmp_eq_u32 s%d, 0' % S_NH), I('s_cbranch_scc1 L_nounitv'), I('s_setprio 3')))
        self.g.label('L_nounit%s' % tg)
        I('s_waitcnt vmcnt(0)')
        I('s_barrier')
        if True:
            I('s_cmp_lg_u32 s%d, 7' % S_WAVE); I('s_cbranch_scc1 L_nokf%s' % tg)
            self.publish(1, 96).kind = 'untracked'
            self.g.label('L_nokf%s' % tg)
            self.stamp('kvdone')
        I('s_setprio 0')
        for k in range(5, 9): g.extend(self.b_read(k))
        bulk = self.b_dma(4)
        for k in range(5, 9): bulk += self.b_dma(k + 5, needs=self.bread[k])
        for t in bulk[:3]: g.extend(t)
        self.p2_enter()
        pa = self.poll_issue(P2T + 1, S_FA, P2T)
        for t in bulk[3:] + self.b_tasks(4, 5): g.extend(t)
        I('s_waitcnt lgkmcnt(0)'); I('s_nop 0', needs=[pa])
        I('s_branch L_p2')

    def kv_k(self):
        I = self.I; g = self.g; PW, HO, U, VW, ZV = self.kvr
        wr = []
        for i in range(3):
            N = 80 + 8 * i
            self.pack_k(ACC + 16 * i, N)
            wr += [I('ds_write_b128 v%d, %s offset:%d' % (HO, vr(N + 4 * q, 4), 8192 * i + 1024 * q)) for q in range(2)]
        I('s_barrier', needs=wr)
        for i in range(3): self.phi_mfma(ACC + 16 * i, 80 + 8 * i, 88 + 8 * i)
        self.kv_rest('k', [ACC, ACC + 16, ACC + 32], [])

    def kv_v(self):
        I = self.I; g = self.g; PW, HO, U, VW, ZV = self.kvr
        if 'vprio' in EXP: I('s_setprio 1')
        I('v_cndmask_b32 v%d, v%d, 0, %s' % (CS, ST + 1, sr(S_HIM, 2))); I('v_cndmask_b32 v%d, 0, 1.0, %s' % (CS + 1, sr(S_HIM, 2)))
        PV = [88, 96, 112]
        def vpath(i):
            A = ACC + 16 * i
            for j in range(0, 12, 2): I('v_pk_mul_f32 %s, %s, %s op_sel:[0,1] op_sel_hi:[1,1]' % (vr(A + j, 2), vr(A + j, 2), vr(ST, 2)))
            for j in (12, 14): I('v_pk_fma_f32 %s, %s, %s, %s op_sel:[0,0,1] op_sel_hi:[1,0,1]' % (vr(A + j, 2), vr(A + j, 2), vr(CS, 2), vr(CS, 2)))
            for j in range(8): I('v_cvt_pk_bf16_f32 v%d, v%d, v%d' % (PV[i] + j, A + 2 * j, A + 2 * j + 1))
        vpath(0); vpath(1)
        I('s_barrier')
        rd = [I('ds_read_b128 %s, v%d offset:%d' % (vr(64 + 8 * i + 4 * q, 4), HO, 8192 * i + 1024 * q)) for i in range(3) for q in range(2)]
        vpath(2)
        wr = []
        for i in range(3):
            self.phi_mfma(ACC + 16 * i, 64 + 8 * i, 88 + 8 * i)
            wr += [I('ds_write_b64 v%d, %s offset:%d' % (VW + q, vr(PV[i] + 2 * q, 2), 8192 * i), needs=rd[2 * i:2 * i + 2]) for q in range(4)]
        self.kv_rest('v', [ACC, ACC + 16, ACC + 32], wr)
    _uid = 0
    def uid(self):
        K._uid += 1
        return str(K._uid)

    def q(self):
        I = self.I; g = self.g
        self.tagbase = 'q'
        CR = lambda i: 16 + 4 * i if i < 12 else 32 + 4 * i
        I('s_lshl_b32 s8, s%d, 1' % S_RB); I('s_add_u32 s8, s8, s%d' % S_IDX); I('s_lshl_b32 s0, s%d, 5' % S_WAVE); I('s_add_u32 s0, s0, s8')
        I('s_cmp_ge_u32 s0, 196'); I('s_cbranch_scc1 L_nocl')
        I('s_lshr_b32 s9, s0, 2'); I('s_mov_b32 s1, 2688'); I('s_cmp_lt_u32 s9, 28'); I('s_cselect_b64 s[10:11], s[26:27], s[18:19]'); I('s_cselect_b32 s1, 3584, s1'); I('s_cselect_b32 s8, 0, 28')
        I('s_sub_u32 s9, s9, s8'); I('s_lshl_b32 s9, s9, 7'); I('s_and_b32 s8, s0, 3'); I('s_mul_i32 s8, s8, 112'); I('s_mul_i32 s8, s8, s1'); I('s_add_u32 s9, s9, s8')
        I('v_lshrrev_b32 v8, 3, v0'); I('v_mul_lo_u32 v8, v8, s1'); I('v_and_b32 v9, 7, v0'); I('v_lshl_add_u32 v8, v9, 4, v8'); I('v_add_u32 v8, s9, v8'); I('s_lshl_b32 s8, s1, 3')
        for i in range(14):
            self.U('global_load_dwordx4 %s, v8, s[10:11]' % vr(CR(i), 4))
            if i < 13: I('v_add_u32 v8, s8, v8')
        self.g.label('L_nocl')
        self.nonce_issue()
        self.srd(S_W, 18, 448 * 2688)
        I('v_mul_u32_u24 v6, 2688, v6'); I('v_lshl_add_u32 v%d, v7, 4, v6' % DW)
        I('s_mul_i32 s%d, s%d, 448' % (S_WSO, S_IDX))
        dms = {}
        I('s_mul_i32 s10, s%d, 224' % S_CH); I('s_add_u32 s10, s10, %d' % WPART)
        self.read_addrs(True)
        def qcs():
            A = 88
            I('s_mov_b32 s8, 0x00003f80'); I('s_mov_b32 s9, 0x3f800000')
            I('s_cmp_ge_u32 s0, 196'); I('s_cbranch_scc1 L_nocs0')
            for i in range(14):
                if i % 2 == 0: self.U('s_waitcnt vmcnt(%d)' % (13 - i))
                for j in range(4):
                    I('v_dot2_f32_bf16 v%d, v%d, s8, %s' % (A + 2 * j, CR(i) + j, 'v%d' % (A + 2 * j) if i else '0'))
                    I('v_dot2_f32_bf16 v%d, v%d, s9, %s' % (A + 2 * j + 1, CR(i) + j, 'v%d' % (A + 2 * j + 1) if i else '0'))
            self.g.label('L_nocs0')
            self.nonce_get('q')
            I('s_cmp_ge_u32 s0, 196'); I('s_cbranch_scc1 L_nocs')
            for j in range(4): I('v_permlane32_swap_b32 v%d, v%d' % (A + j, A + 4 + j))
            for j in range(4): I('v_add_f32 v%d, v%d, v%d' % (A + j, A + j, A + 4 + j))
            for j in range(2): I('v_permlane16_swap_b32 v%d, v%d' % (A + j, A + 2 + j))
            for j in range(2): I('v_add_f32 v%d, v%d, v%d' % (A + j, A + j, A + 2 + j))
            for j in range(2): I('v_add_f32_dpp v%d, v%d, v%d row_ror:8 row_mask:0xf bank_mask:0xf' % (A + j, A + j, A + j))
            I('v_and_b32 v%d, 8, v0' % (A + 2)); I('v_cmp_ne_u32 vcc, 0, v%d' % (A + 2)); I('v_cndmask_b32 v%d, v%d, v%d, vcc' % (A, A, A + 1))
            I('v_cvt_pk_bf16_f32 v%d, v%d, v%d' % (A + 1, A, A)); I('v_and_b32 v%d, s%d, v%d' % (A + 1, S_MASK, A + 1))
            I('v_sub_f32 v%d, v%d, v%d' % (A + 1, A, A + 1)); I('v_cvt_pk_bf16_f32 v%d, v%d, v%d' % (A, A + 1, A))
            I('v_and_b32 v%d, 7, v0' % (A + 1)); I('v_lshlrev_b32 v%d, 3, v%d' % (A + 1, A + 1)); I('v_lshrrev_b32 v%d, 3, v0' % (A + 2)); I('v_add_u32 v%d, v%d, v%d' % (A + 1, A + 1, A + 2))
            I('v_lshlrev_b32 v%d, 4, v%d' % (A + 1, A + 1))
            I('s_lshr_b32 s8, s0, 2'); I('s_lshl_b32 s8, s8, 10'); I('s_and_b32 s9, s0, 3'); I('s_lshl_b32 s9, s9, 2'); I('s_add_u32 s8, s8, s9'); I('s_add_u32 s8, s8, %d' % L.WS_CSG)
            self.U('buffer_store_dword v%d, v%d, %s, s8 offen sc1' % (A, A + 1, sr(S_WS, 4)))
            self.g.label('L_nocs')
            dms.update(self.start_stream(2688))
            I('s_waitcnt vmcnt(7)')
            I('s_barrier')
            I('s_cmp_lg_u32 s%d, 0' % S_WAVE); I('s_cbranch_scc1 L_nocf')
            I('s_lshl_b32 s8, s0, 7'); I('s_add_u32 s8, s8, %d' % L.WS_CSF)
            self.publish(8, A).kind = 'untracked'
            self.g.label('L_nocf')
            self.stamp('cspub')
        self.pre_s1 = qcs
        self.pre_loop(False, 14, lambda: I('s_lshl_b32 s%d, s%d, 3' % (S_H0, S_IDX)))
        self.pre_s1 = None
        def wpd():
            with g.capture() as a: self.wphi_dma(2, S_H0)
            return [a]
        self.pre_post = {2: wpd}
        tiles = [dict(t=[((i + cc) % 4, AW + i, 56 * ((i + cc) % 4)) for cc in range(4)], cs=True) for i in range(4)]
        def post2():
            with g.capture() as a:
                I('s_mul_i32 s8, s%d, %d' % (S_CH, 4 * 1568)); I('s_add_u32 s8, s8, %d' % L_WPHI)
                self.wphi_read(4, 8, 0)
            return [a]
        tl = [(c, CS, 448 * c) for c in range(4)]
        self.gemm(tiles, 2688, dms, 'q', dict(post={4: post2}), tl)
        self.finish_stats(tl, L.LOG2E, 'q')
        for i in range(4):
            self.pack_k(ACC + 16 * i, 80 + 8 * (i & 1)); self.phi_mfma(ACC + 16 * i, 80 + 8 * (i & 1), 8 * i)
        for i in range(4): self.softmax_unit(ACC + 16 * i, sreg=124 + i)
        self.stamp('soft')
        if 'noq' in EXP: return
        T = TMP
        if 'lat' in EXP:
            I('s_lshl_b32 s8, s2, 3'); I('s_add_u32 s8, s8, s%d' % S_WAVE); I('s_lshl_b32 s8, s8, 9'); I('s_add_u32 s8, s8, %d' % (15 << 20)); I('v_mov_b32 v%d, 0' % T)
            for rep_ in range(2):
                I('buffer_load_dword v%d, v%d, %s, s8 offen offset:%d sc1' % (T + 1, T, sr(S_WS, 4), 256 * rep_)); I('s_waitcnt vmcnt(0)'); self.stamp('miss')
                I('buffer_load_dword v%d, v%d, %s, s8 offen offset:%d sc1' % (T + 1, T, sr(S_WS, 4), 256 * rep_)); I('s_waitcnt vmcnt(0)'); self.stamp('l2hit')
                I('buffer_store_dword v%d, v%d, %s, s8 offen offset:%d sc1' % (T + 1, T, sr(S_WS, 4), 128 + 256 * rep_)); I('s_waitcnt vmcnt(0)'); self.stamp('st')
            self.nst = 15
        if 'qpf' in EXP:
            I('s_and_b32 s8, s2, 7'); I('s_lshl_b32 s8, s8, 2'); I('s_bfe_u32 s9, s2, 0x20003'); I('s_add_u32 s8, s8, s9')
            I('s_lshl_b32 s9, s8, 12'); I('s_lshl_b32 s10, s%d, 8' % S_WAVE); I('s_add_u32 s9, s9, s10'); I('s_add_u32 s11, s9, %d' % L.WS_FLAG)
            I('v_and_b32 v%d, 1, v%d' % (T, VLANE)); I('v_lshlrev_b32 v%d, 11, v%d' % (T, T)); I('v_and_b32 v%d, 2, v%d' % (T + 1, VLANE)); I('v_lshl_add_u32 v%d, v%d, 6, v%d' % (T, T + 1, T))
            I('s_mul_i32 s8, s8, 224'); I('s_mul_i32 s9, s%d, 14' % S_WAVE); I('s_add_u32 s8, s8, s9'); I('s_lshl_b32 s10, s8, 10'); I('s_add_u32 s9, s10, %d' % (112 * 1024))
            I('v_lshlrev_b32 v%d, 7, v%d' % (T + 2, VLANE)); I('v_add_u32 v%d, 8192, v%d' % (T + 3, T + 2))
            self.g.label('L_qpf')
            self.U('buffer_load_dword v%d, v%d, %s, s11 offen sc1' % (T + 1, T, sr(S_WS, 4))); self.U('s_waitcnt vmcnt(0)')
            I('v_cmp_ne_u32 vcc, s%d, v%d' % (S_NONCE, T + 1)); I('s_nop 1'); I('s_cbranch_vccz L_qpfd')
            self.spin_tail('L_qpf', QSL)
            self.g.label('L_qpfd')
            for so in (10, 9): I('buffer_load_dword a100, v%d, %s, s%d offen' % (T + 2, sr(S_WS, 4), so)).dst = set()
            I('s_mov_b32 exec_hi, 0xffff')
            for so in (10, 9): I('buffer_load_dword a100, v%d, %s, s%d offen' % (T + 3, sr(S_WS, 4), so)).dst = set()
            I('s_mov_b64 exec, -1')
        if ATOM:
            T = TMP
            I('v_lshrrev_b32 v%d, 4, v%d' % (T, VLANE)); I('s_lshl_b32 s8, s%d, 1' % S_IDX); I('v_add_u32 v%d, s8, v%d' % (T, T))
            I('s_mul_i32 s8, s%d, 3' % S_IDX); I('s_add_u32 s8, s8, 2'); I('v_min_u32 v%d, s8, v%d' % (T, T))
            I('v_and_b32 v%d, 15, v%d' % (T + 1, VLANE)); I('v_lshl_add_u32 v%d, v%d, 4, v%d' % (T, T, T + 1)); I('v_lshlrev_b32 v%d, 7, v%d' % (T, T))
            I('s_mov_b32 s11, %d' % L.WS_KVZ)
            I('v_lshrrev_b32 v%d, 3, v%d' % (T + 2, VLANE)); I('v_and_b32 v%d, 7, v%d' % (T + 3, VLANE)); I('v_lshlrev_b32 v%d, 4, v%d' % (T + 4, T + 3)); I('v_lshl_add_u32 v%d, v%d, 8, v%d' % (T + 4, T + 2, T + 4))
            I('s_add_u32 s8, s%d, s%d' % (S_H0, S_WAVE)); I('s_lshl_b32 s8, s8, 13'); I('s_add_u32 s0, s8, %d' % L.WS_KV); I('s_add_u32 s1, s0, 4096')
            I('v_lshrrev_b32 v%d, 1, v%d' % (T + 5, T + 3)); I('v_lshlrev_b32 v%d, 10, v%d' % (T + 5, T + 5)); I('v_and_b32 v%d, 1, v%d' % (T + 3, T + 3)); I('v_lshl_add_u32 v%d, v%d, 3, v%d' % (T + 5, T + 3, T + 5))
            I('s_lshl_b32 s8, s%d, 12' % S_WAVE); I('v_add_u32 v%d, s8, v%d' % (T + 5, T + 5))
            WA4 = 112
            for i in range(4):
                a, b, c_ = T + 6, T + 7, T + 3
                I('v_add_u32 v%d, %d, v%d' % (a, 8 * i, T + 2))
                I('v_cmp_lt_u32 vcc, 13, v%d' % a); I('v_subrev_u32 v%d, 14, v%d' % (b, a)); I('v_cndmask_b32 v%d, v%d, v%d, vcc' % (b, a, b)); I('v_cndmask_b32 v%d, 0, 4, vcc' % c_)
                if i == 3:
                    I('v_cmp_lt_u32 vcc, 27, v%d' % a); I('v_and_b32 v%d, 1, v%d' % (T + 8, a)); I('v_lshlrev_b32 v%d, 2, v%d' % (T + 8, T + 8)); I('v_cndmask_b32 v%d, v%d, v%d, vcc' % (c_, c_, T + 8))
                    I('v_bfe_u32 v%d, v%d, 1, 1' % (T + 8, a)); I('v_add_u32 v%d, 14, v%d' % (T + 8, T + 8)); I('v_cndmask_b32 v%d, v%d, v%d, vcc' % (b, b, T + 8))
                I('v_and_or_b32 v%d, v%d, 3, v%d' % (c_, b, c_)); I('v_lshrrev_b32 v%d, 2, v%d' % (b, b)); I('v_lshl_add_u32 v%d, v%d, 3, v%d' % (c_, b, c_))
                I('v_lshl_add_u32 v%d, v%d, 4, v%d' % (WA4 + i, c_, T + 5))
            I('s_lshl_b32 s8, s%d, 14' % S_CH); I('v_add_u32 v%d, s8, v%d' % (T + 2, VL16))
            self.q_scalars()
            I('s_cmp_lg_u32 s%d, 0' % S_WAVE); I('s_cbranch_scc1 L_polldkv')
            self.g.label('L_pollkv')
            self.U('buffer_load_dword v64, v%d, %s, s11 offen sc1' % (T, sr(S_WS, 4))); self.U('s_waitcnt vmcnt(0)')
            I('v_cmp_ne_u32 vcc, s%d, v64' % S_NONCE); I('s_nop 1'); I('s_cbranch_vccz L_polldkv')
            self.spin_tail('L_pollkv', QSL)
            self.g.label('L_polldkv')
            I('s_barrier')
            self.stamp('kvok')
            for i in range(8):
                I('buffer_load_dwordx4 %s, v%d, %s, s%d offen offset:%d sc1' % (vr(64 + 4 * i, 4), T + 4, sr(S_WS, 4), (i >> 1) & 1, (i & 1) * 2048 + (i >> 2) * 128))
            wr = []
            for i in range(8):
                I('v_cvt_pk_bf16_f32 v%d, v%d, v%d' % (64 + 4 * i, 64 + 4 * i, 65 + 4 * i)); I('v_cvt_pk_bf16_f32 v%d, v%d, v%d' % (65 + 4 * i, 66 + 4 * i, 67 + 4 * i))
                wr.append(I('ds_write_b64 v%d, %s offset:%d' % (WA4 + (i & 3), vr(64 + 4 * i, 2), 512 * (i >> 2))))
            self.stamp('kvld')
            qbar = lambda: (I('s_barrier', needs=wr), [I('ds_read_b128 %s, v%d offset:%d' % (ar(32 + 16 * i + 4 * s, 4), T + 2, 4096 * i + 1024 * s)) for i in range(4) for s in range(4)])
        else:
            I('v_bfe_u32 v%d, v%d, 3, 2' % (T + 2, VLANE)); I('v_lshlrev_b32 v%d, 2, v%d' % (T + 2, T + 2)); I('v_and_or_b32 v%d, v%d, 3, v%d' % (T + 2, VLANE, T + 2))
            I('v_bfe_u32 v%d, v%d, 2, 1' % (T + 3, VLANE)); I('v_mul_u32_u24 v%d, 14, v%d' % (T + 3, T + 3)); I('v_add_u32 v%d, v%d, v%d' % (T + 3, T + 3, T + 2))
            I('v_cmp_gt_u32 vcc, 14, v%d' % (T + 2)); I('v_cndmask_b32 v%d, 28, v%d, vcc' % (T + 3, T + 3))
            I('v_and_b32 v%d, 32, v%d' % (T + 2, VLANE)); I('v_lshlrev_b32 v%d, 6, v%d' % (T + 2, T + 2)); I('v_lshl_add_u32 v%d, v%d, 4, v%d' % (T + 2, T + 3, T + 2))
            I('s_lshl_b32 s8, s%d, 14' % S_CH); I('v_add_u32 v%d, s8, v%d' % (T + 2, T + 2))
            I('v_and_b32 v%d, 15, v%d' % (T, VLANE)); I('v_lshlrev_b32 v%d, 7, v%d' % (T, T))
            I('v_and_b32 v%d, 7, v%d' % (T + 3, VLANE)); I('v_lshlrev_b32 v%d, 7, v%d' % (T + 3, T + 3))
            I('s_cmp_lg_u32 s%d, 0' % S_CH); I('s_cbranch_scc1 L_noreduce')
            I('s_lshl_b32 s8, s%d, 1' % S_RB); I('s_add_u32 s8, s8, s%d' % S_IDX); I('s_lshl_b32 s8, s8, 2'); I('s_add_u32 s11, s8, s%d' % S_RT)
            I('s_lshl_b32 s0, s11, 14'); I('s_add_u32 s0, s0, %d' % L.WS_SL)
            I('s_mov_b32 s8, 0x22111000'); I('s_mov_b32 s9, 0x55544332'); I('s_lshl_b32 s10, s%d, 2' % S_RB); I('s_lshr_b64 s[8:9], s[8:9], s10'); I('s_and_b32 s8, s8, 15')
            I('s_lshl_b32 s8, s8, 11'); I('s_add_u32 s1, s8, %d' % L.WS_KVZ)
            self.g.label('L_red_poll')
            self.U('buffer_load_dword v%d, v%d, %s, s1 offen sc1' % (T + 1, T, sr(S_WS, 4))); self.U('s_waitcnt vmcnt(0)')
            I('v_cmp_ne_u32 vcc, s%d, v%d' % (S_NONCE, T + 1)); I('s_nop 1'); I('s_cbranch_vccz L_red_load')
            self.spin_tail('L_red_poll', QSL)
            self.g.label('L_red_load')
            R = 64
            def src(i): return (64 + 4 * i) if i < 15 else T + 4
            for i in range(16):
                if i % 4 == 0: I('s_add_u32 s8, s0, %d' % (1024 * i))
                I('buffer_load_dwordx4 %s, v%d, %s, s8 offen offset:%d' % (vr(src(i), 4), VL16, sr(S_WS, 4), 1024 * (i % 4)))
            I('s_lshl_b32 s8, s11, 9'); I('s_add_u32 s8, s8, %d' % L.WS_KF); I('s_lshl_b32 s9, s11, 7'); I('s_add_u32 s9, s9, %d' % L.WS_KVD)
            for i in range(2, 16):
                for j in (0, 2): I('v_pk_add_f32 %s, %s, %s' % (vr(R + 4 * (i & 1) + j, 2), vr(R + 4 * (i & 1) + j, 2), vr(src(i) + j, 2)))
            for j in (0, 2): I('v_pk_add_f32 %s, %s, %s' % (vr(R + j, 2), vr(R + j, 2), vr(R + 4 + j, 2)))
            I('v_cvt_pk_bf16_f32 v68, v64, v65'); I('v_cvt_pk_bf16_f32 v69, v66, v67')
            I('v_mov_b32 v72, v68'); I('v_mov_b32 v73, v69')
            I('v_permlane32_swap_b32 v72, v70'); I('v_permlane32_swap_b32 v73, v71')
            I('s_mov_b32 exec_hi, 0')
            I('buffer_store_dwordx4 v[68:71], v%d, %s, s8 offen sc1' % (VL16, sr(S_WS, 4)))
            I('s_mov_b64 exec, -1')
            self.stamp('red')
            I('s_waitcnt vmcnt(0)')
            self.publish(9, 72).kind = 'untracked'
            self.g.label('L_noreduce')
            I('s_add_u32 s10, s%d, s%d' % (S_H0, S_WAVE)); I('s_lshl_b32 s11, s10, 10'); I('s_add_u32 s11, s11, %d' % L.WS_KVD)
            I('s_lshl_b32 s10, s10, 12'); I('s_add_u32 s10, s10, %d' % L.WS_KF); I('s_lshl_b32 m0, s%d, 12' % S_WAVE)
            self.g.label('L_pollkv')
            self.U('buffer_load_dword v64, v%d, %s, s11 offen sc1' % (T + 3, sr(S_WS, 4))); self.U('s_waitcnt vmcnt(0)')
            I('v_cmp_ne_u32 vcc, s%d, v64' % S_NONCE); I('s_nop 1'); I('s_cbranch_vccz L_polldkv')
            self.spin_tail('L_pollkv', QSL)
            self.g.label('L_polldkv')
            self.nst = 7
            self.stamp('kvok')
            dm = [I('buffer_load_dwordx4 v%d, %s, s10 offen offset:%d lds' % (VL16, sr(S_WS, 4), 1024 * i)) for i in range(4)]
            qbar = lambda: (I('s_barrier', needs=dm), [I('ds_read_b128 %s, v%d offset:%d' % (ar(32 + 16 * i + 4 * sf, 4), T + 2, 4096 * i + 512 * sf)) for i in range(4) for sf in range(4)])
        qbar()
        N = [64, 80, ACC, ACC + 16]; O = 96
        def ost(f): I('buffer_store_dwordx4 %s, v%d, %s, s%d offen offset:%d sc1' % (vr(O + 4 * f, 4), VL16, sr(S_WS, 4), 20 if f < 4 else 21, (f % 4) * 1024))
        def mm(i):
            for s in range(4):
                I('v_mfma_f32_32x32x16_bf16 %s, %s, %s, %s' % (vr(N[i], 16), ar(32 + 16 * i + 4 * s, 4), vr(ACC + 16 * i + 4 * s, 4), vr(N[i], 16) if s else '0'))
        done = 0
        mm(0); mm(1)
        for i in range(4):
            with g.capture() as fin: self.o_fin(N[i], O + 7 * i, 124 + i)
            if i + 2 < 4:
                with g.capture() as m4: mm(i + 2)
                k = len(fin) // 4
                for j in range(4): g.extend([m4[j]] + fin[j * k:(j + 1) * k if j < 3 else None])
            else: g.extend(fin)
            while 4 * (done + 1) <= 7 * (i + 1): ost(done); done += 1
        self.stamp('ocomp')
        I('s_waitcnt vmcnt(0)')
        self.publish(22, TMP)
        self.stamp('opub')
        I('s_waitcnt vmcnt(0)')
    def q_scalars(self):
        I = self.I
        I('s_lshl_b32 s8, s%d, 2' % S_RB); I('s_add_u32 s10, s8, s%d' % S_RT); I('s_mul_i32 s8, s10, 28'); I('s_mul_i32 s9, s%d, 14' % S_IDX); I('s_add_u32 s8, s8, s9')
        I('s_mul_i32 s9, s%d, 7' % S_CH); I('s_add_u32 s8, s8, s9'); I('s_lshl_b32 s8, s8, 10'); I('s_add_u32 s20, s8, %d' % L.WS_O); I('s_add_u32 s21, s20, 4096')
        I('s_lshl_b32 s8, s10, 1'); I('s_add_u32 s8, s8, s%d' % S_IDX)
        I('s_lshl_b32 s8, s8, 1'); I('s_add_u32 s8, s8, s%d' % S_CH); I('s_lshl_b32 s8, s8, 7'); I('s_add_u32 s22, s8, %d' % L.WS_FO)
    def o_fin(self, N, O, sreg):
        I = self.I; t = TMP + 8
        I('v_fmac_f32 v%d, %s, v%d' % (N + 14, f32(1e-6), sreg)); I('v_rcp_f32 v%d, v%d' % (t, N + 14))
        for j in range(14): I('v_mul_f32 v%d, v%d, v%d' % (N + j, N + j, t))
        for j in range(7): I('v_cvt_pk_bf16_f32 v%d, v%d, v%d' % (O + j, N + 2 * j, N + 2 * j + 1))

    def p2_pre(self):
        I = self.I; g = self.g; A, B, C = 64, 65, 66; out = []
        def st(i, r): I('v_accvgpr_write_b32 a%d, v%d' % (STASH + i, r))
        with g.capture() as a:
            I('s_lshl_b32 s8, s%d, 1' % S_RG)
            I('s_mul_i32 s%d, s8, 112' % S_A0); I('s_mul_i32 s9, s%d, 14' % S_WAVE); I('s_add_u32 s%d, s%d, s9' % (S_A0, S_A0)); I('s_lshl_b32 s%d, s%d, 10' % (S_A0, S_A0))
            I('s_add_u32 s%d, s%d, %d' % (S_A1, S_A0, 112 * 1024))
            I('s_bfe_u32 s9, s%d, 0x10001' % S_WAVE); I('s_add_u32 s10, s8, s9'); I('s_mul_i32 s%d, s10, 28' % S_OSO); I('s_mul_i32 s9, s%d, 14' % S_CH); I('s_add_u32 s%d, s%d, s9' % (S_OSO, S_OSO))
            I('s_lshl_b32 s10, s10, 1'); I('s_add_u32 s10, s10, s%d' % S_CH); I('s_lshl_b32 s10, s10, 8'); I('s_add_u32 s%d, s10, %d' % (S_FO, L.WS_FO))
            pass; I('s_lshl_b32 s%d, s%d, 10' % (S_OSO, S_OSO))
            I('s_add_u32 s%d, s%d, %d' % (S_OSO, S_OSO, L.WS_O))
            I('v_lshrrev_b32 v%d, 3, v%d' % (A, VLANE)); I('v_mul_u32_u24 v%d, 896, v%d' % (A, A)); I('v_and_b32 v%d, 7, v%d' % (B, VLANE)); I('v_lshl_add_u32 v%d, v%d, 4, v%d' % (A, B, A))
            I('v_and_b32 v%d, 1, v%d' % (B, B)); I('v_lshlrev_b32 v%d, 7, v%d' % (B, B)); st(1, A); st(2, B)
        out.append(a)
        with g.capture() as a:
            I('s_lshl_b32 s9, s%d, 3' % S_RG); I('s_add_u32 s9, s9, s%d' % S_WAVE); I('s_mul_i32 s9, s9, %d' % (8 * 896)); I('s_lshl_b32 s8, s%d, 7' % S_CG); I('s_add_u32 s%d, s9, s8' % S_XO)
            I('s_lshl_b32 s8, s%d, 12' % S_RG); I('s_lshl_b32 s9, s%d, 8' % S_WAVE); I('s_add_u32 s9, s9, s8'); I('s_add_u32 s%d, s9, %d' % (S_FA, L.WS_FLAG))
            I('v_and_b32 v%d, 1, v%d' % (A, VLANE)); I('v_lshlrev_b32 v%d, 11, v%d' % (A, A)); I('v_and_b32 v%d, 2, v%d' % (B, VLANE)); I('v_lshl_add_u32 v%d, v%d, 6, v%d' % (A, B, A)); st(0, A)
        out.append(a)
        with g.capture() as a:
            I('v_lshrrev_b32 v%d, 5, v%d' % (C, VLANE)); I('v_bfe_u32 v%d, v%d, 3, 1' % (A, VLANE)); I('v_xor_b32 v%d, v%d, v%d' % (A, A, C))
            I('v_mul_u32_u24 v%d, 14, v%d' % (B, C)); I('v_bfe_u32 v%d, v%d, 2, 2' % (C, VLANE)); I('v_add_u32 v%d, v%d, v%d' % (B, B, C))
            I('v_lshlrev_b32 v%d, 7, v%d' % (B, B)); I('v_lshl_add_u32 v%d, v%d, 6, v%d' % (A, A, B))
            I('v_and_b32 v%d, 3, v%d' % (B, VLANE)); I('v_lshl_add_u32 v%d, v%d, 3, v%d' % (A, B, A))
            I('v_and_b32 v%d, 16, v%d' % (B, VLANE)); I('v_lshl_add_u32 v%d, v%d, 1, v%d' % (A, B, A))
            I('s_and_b32 s9, s%d, 1' % S_WAVE); I('s_lshl_b32 s9, s9, 6'); I('v_xor_b32 v%d, s9, v%d' % (A, A))
            I('s_mul_i32 s9, s%d, %d' % (S_CH, 224 * 128)); I('v_add_u32 v%d, s9, v%d' % (A, A))
            I('v_xor_b32 v%d, 64, v%d' % (B, A)); st(3, A); st(4, B)
            I('v_add_u32 v%d, %d, v%d' % (B, 14 * 128, B)); I('v_and_b32 v%d, 8, v%d' % (C, VLANE)); I('v_cmp_eq_u32 vcc, 0, v%d' % C); I('v_cndmask_b32 v%d, v%d, v%d, vcc' % (B, B, A)); st(5, B)
        out.append(a)
        return out
    def p2_enter(self):
        T = P2T
        for i, r in enumerate((T + 1, T + 2, T + 3, T + 8, T + 9, T + 10)): self.I('v_accvgpr_read_b32 v%d, a%d' % (r, STASH + i))

    def phase2(self):
        I = self.I; g = self.g; T = P2T
        XO, XR, WA = T + 2, T + 4, T + 8
        self.nst = 7
        if 'start' in EXP or 'stg' in EXP: self.nst = 15
        self.poll_check('A', T + 1, S_FA, T)
        self.stamp('hok')
        RING = 64; NR = 15
        self.bdma = {k: [] for k in range(14)}
        def load(n):
            k, a = divmod(n, 2); r = RING + 4 * (n % NR); base = S_A1 if a else S_A0
            I('buffer_load_dwordx4 %s, v%d, %s, s%d offen offset:%d' % (vr(r, 4), VL16, sr(S_WS, 4), base, (k % 4) * 1024))
            if k % 4 == 3: I('s_add_u32 s%d, s%d, 4096' % (base, base))
        def wo_read(kk, dst):
            G, f = divmod(kk, 7)
            for pp in range(2):
                p = 4 * f + 2 * pp; hl = 4 * G + p // 7; i = p % 7
                areg = WA + 2 if i == 6 else WA + (i & 1)
                I('ds_read_b64_tr_b16 %s, v%d offset:%d' % (ar(dst + 2 * pp, 2), areg, L_WO + (28 * hl + 2 * i) * 128))
        EWB, SWB, ORD, GRD, SRD_ = 124, 142, 126, 127, 143
        def tail_addr():
            A, B = XR, XR + 1
            I('v_and_b32 v%d, 31, v%d' % (A, VLANE)); I('v_lshlrev_b32 v%d, 7, v%d' % (A, A)); I('v_and_b32 v%d, 7, v%d' % (B, VLANE)); I('v_lshl_add_u32 v%d, v%d, 4, v%d' % (A, B, A))
            I('v_lshrrev_b32 v%d, 5, v%d' % (B, VLANE)); I('v_lshl_add_u32 v%d, v%d, 3, v%d' % (A, B, A))
            I('v_add_u32 v%d, s%d, v%d' % (EWB, S_STA, A))
            I('s_lshl_b32 s8, s%d, 13' % S_CH); I('s_bfe_u32 s9, s%d, 0x10001' % S_WAVE); I('s_lshl_b32 s10, s9, 12'); I('s_add_u32 s8, s8, s10'); I('s_add_u32 s8, s8, %d' % L_XS)
            I('v_add_u32 v%d, s8, v%d' % (SWB, A)); I('s_and_b32 s8, s%d, 1' % S_WAVE); I('s_lshl_b32 s8, s8, 6'); I('v_xor_b32 v%d, s8, v%d' % (SWB, SWB))
            I('v_lshrrev_b32 v%d, 3, v%d' % (A, VLANE)); I('v_and_b32 v%d, 7, v%d' % (B, VLANE)); I('v_xor_b32 v%d, v%d, v%d' % (B, B, A))
            I('v_lshlrev_b32 v%d, 7, v%d' % (A, A)); I('v_lshl_add_u32 v%d, v%d, 4, v%d' % (A, B, A)); I('s_lshl_b32 s8, s%d, 10' % S_WAVE); I('s_add_u32 s8, s8, %d' % L_XS); I('v_add_u32 v%d, s8, v%d' % (SRD_, A))
            I('s_lshl_b32 s8, s%d, 10' % S_RT); I('s_lshl_b32 s9, s%d, 15' % S_CH); I('s_add_u32 s8, s8, s9'); I('s_add_u32 s8, s8, %d' % L_STA); I('v_add_u32 v%d, s8, v%d' % (GRD, A))
            I('s_add_u32 s25, s%d, 4096' % S_OSO); I('s_add_u32 s28, s%d, 8192' % S_OSO); I('s_add_u32 s29, s%d, 12288' % S_OSO)
            I('s_mov_b32 s10, 0x00003f80'); I('s_mov_b32 s11, 0x3f800000'); I('s_mov_b32 s26, %s' % f32(-1.0 / L.LOG2E)); I('s_mov_b32 s27, s26')
        for n in range(NR): load(n)
        nl = NR; wog = []; WOK = int(os.environ.get('WOK', '6'))
        for ki in range(14):
            for a in range(2):
                n = 2 * ki + a; r = RING + 4 * (n % NR)
                for b in range(2):
                    I('v_mfma_f32_32x32x16_bf16 %s, %s, %s, %s' % (vr(16 * (2 * a + b), 16), ar(8 * ki + 4 * b, 4), vr(r, 4), vr(16 * (2 * a + b), 16) if ki else '0'))
                if nl < 28:
                    load(nl); nl += 1
                    if nl == 28: I('buffer_load_dwordx4 %s, v%d, %s, s100 offen' % (vr(XR, 4), XO, sr(S_X, 4)))
            if ki == 0:
                for k in range(9, 14): g.extend(self.b_read(k))
            if ki == 2: tail_addr()
            if ki == WOK: wog = self.wo_dma()
            if wog: g.extend(wog.pop(0))
        self.stamp('gdone')
        EW = 112
        po = self.poll_issue(T + 3, S_FO, T)
        for b in range(2):
            for Q in range(4):
                I('v_xor_b32 v%d, %d, v%d' % (EW + 4 * b + Q, 16 * (4 * b + Q), EWB))
                for a in range(2):
                    t = 16 * (2 * a + b)
                    for j in (2 * Q, 2 * Q + 1): I('v_cvt_pk_bf16_f32 v%d, v%d, v%d' % (t + j, t + 2 * j, t + 2 * j + 1))
                    I('ds_write_b64 v%d, %s offset:%d' % (EW + 4 * b + Q, vr(t + 2 * Q, 2), 32768 * a))
        OF = 64
        def oload():
            for kk in range(14):
                self.U('buffer_load_dwordx4 %s, v%d, %s, s%d offen offset:%d' % (vr(OF + 4 * kk, 4), VL16, sr(S_WS, 4), (S_OSO, 25, 28, 29)[kk // 4], 1024 * (kk % 4)))
        XU = 40
        I('s_waitcnt vmcnt(0)')
        I('v_cmp_ne_u32 vcc, s%d, v%d' % (S_NONCE, T)); I('s_waitcnt lgkmcnt(0)'); I('s_mov_b64 s[8:9], vcc'); I('s_cbranch_vccnz L_olate1')
        oload()
        self.g.label('L_olate1')
        I('s_barrier')
        self.stamp('e2')
        for src in range(8): I('ds_read_b128 %s, v%d offset:%d' % (vr(8 + 4 * src, 4), GRD, 4096 * src))
        for j in range(4): I('v_lshlrev_b32 v%d, 16, v%d' % (XU + 2 * j, XR + j)); I('v_and_b32 v%d, s%d, v%d' % (XU + 1 + 2 * j, S_MASK, XR + j))
        for src in range(8):
            for kk in ((2 * src, 2 * src + 1) if src < 7 else ()): wo_read(kk, 4 * kk)
            for j in range(4):
                I('v_dot2_f32_bf16 v%d, v%d, s10, %s' % (2 * j, 8 + 4 * src + j, 'v%d' % (2 * j) if src else '0'))
                I('v_dot2_f32_bf16 v%d, v%d, s11, %s' % (2 * j + 1, 8 + 4 * src + j, 'v%d' % (2 * j + 1) if src else '0'))
        I('s_cmp_eq_u64 s[8:9], 0'); I('s_cbranch_scc1 L_oearly')
        self.g.label('L_pollO')
        self.U('buffer_load_dword v%d, v%d, %s, s%d offen sc1' % (T, T + 3, sr(S_WS, 4), S_FO)); self.U('s_waitcnt vmcnt(0)')
        I('v_cmp_ne_u32 vcc, s%d, v%d' % (S_NONCE, T)); I('s_nop 1'); I('s_cbranch_vccz L_polldO')
        self.spin_tail('L_pollO', int(os.environ.get('OSL', '2')))
        self.g.label('L_polldO')
        oload()
        self.g.label('L_oearly')
        self.stamp('ook')
        for j in range(8): I('v_exp_f32 v%d, v%d' % (8 + j, j))
        SW = 120
        for q in range(4): I('v_xor_b32 v%d, %d, v%d' % (SW + q, 16 * q, SWB))
        for j in range(0, 8, 2): I('v_pk_add_f32 %s, %s, 1.0 op_sel_hi:[1,0]' % (vr(8 + j, 2), vr(8 + j, 2)))
        for j in range(8): I('v_rcp_f32 v%d, v%d' % (8 + j, 8 + j))
        for j in range(0, 8, 2): I('v_pk_mul_f32 %s, %s, s[26:27]' % (vr(j, 2), vr(j, 2)))
        for j in range(0, 8, 2): I('v_pk_mul_f32 %s, %s, %s' % (vr(j, 2), vr(j, 2), vr(8 + j, 2)))
        SA = 48
        for kk in range(14):
            if kk % 2 == 0: self.U('s_waitcnt vmcnt(%d)' % (12 - kk))
            I('v_mfma_f32_32x32x16_bf16 %s, %s, %s, %s' % (vr(SA, 16), ar(4 * kk, 4), vr(OF + 4 * kk, 4), vr(SA, 16) if kk else '0'))
        self.stamp('e3')
        wr = []
        for q in range(4):
            for j in (2 * q, 2 * q + 1): I('v_cvt_pk_bf16_f32 v%d, v%d, v%d' % (SA + j, SA + 2 * j, SA + 2 * j + 1))
            wr.append(I('ds_write_b64 v%d, %s' % (SW + q, vr(SA + 2 * q, 2))))
        I('s_barrier', needs=wr)
        for h in range(2): I('ds_read_b128 %s, v%d offset:%d' % (vr(16 + 4 * h, 4), SRD_, 8192 * h))
        for h in range(2):
            for j in range(4):
                I('v_dot2_f32_bf16 v%d, v%d, s10, %s' % (24 + 2 * j, 16 + 4 * h + j, 'v%d' % (24 + 2 * j) if h else '0'))
                I('v_dot2_f32_bf16 v%d, v%d, s11, %s' % (25 + 2 * j, 16 + 4 * h + j, 'v%d' % (25 + 2 * j) if h else '0'))
        for j in range(0, 8, 2): I('v_pk_fma_f32 %s, %s, %s, %s' % (vr(j, 2), vr(j, 2), vr(24 + j, 2), vr(XU + j, 2)))
        for j in range(4): I('v_cvt_pk_bf16_f32 v%d, v%d, v%d' % (8 + j, 2 * j, 2 * j + 1))
        I('buffer_store_dwordx4 v[8:11], v%d, %s, s100 offen%s' % (XO, sr(S_OUT, 4), os.environ.get('OUTF', '')))
        self.stamp('final')

    def xfilter(self, body):
        out = []
        for x in body:
            if 'nosc1st' in EXP and x.op.startswith('buffer_store_dwordx4') and 'sc1' in x.text and 'v141' in x.text: x.text = x.text.replace(' sc1', '')
            if 'nost' in EXP and x.op.startswith('buffer_store_dwordx4') and 'v141' in x.text: x.text = 's_nop 0'
            if 'nob' in EXP and x.kind == 'dma' and 's[52:55]' in x.text: x.text = 's_nop 0'
            if 'sysp' in EXP and x.op == 'buffer_load_dword' and x.text.endswith('sc1') and 's[64:67]' in x.text: x.text = x.text.replace(' sc1', ' sc0 sc1')
            if 'nowo' in EXP and x.kind == 'dma' and 's[48:51]' in x.text: x.text = 's_nop 0'
            if 'noatom' in EXP and 'atomic' in x.op: x.text = 's_nop 0'
            if 'ntst' in EXP and x.op.startswith('buffer_store_dwordx4') and 'sc1' in x.text and 'v141' in x.text: x.text = x.text.replace(' sc1', ' sc0 sc1')
            out.append(x)
        return out
    def path(self, prefix, fn, label, keys):
        self.keys = keys
        if 'stamp' in self.__dict__: del self.__dict__['stamp']
        with self.g.capture() as body:
            if label: self.g.label(label)
            fn()
        self.xfilter(body)
        allp = [x for p in prefix for x in p]
        for x in allp: x.done = False
        full = self.g.finish(allp + body)
        if label:
            idx = next(i for i, x in enumerate(full) if x.kind == 'label' and x.text == label + ':')
            return full[idx:], body
        return full, body

    def build(self):
        I = self.I
        with self.g.capture() as pro:
            self.prologue()
            I('s_cmp_eq_u32 s%d, 1' % S_TYPE); I('s_cbranch_scc1 L_kv'); I('s_cmp_eq_u32 s%d, 2' % S_TYPE); I('s_cbranch_scc1 L_q')
        n0 = self.nst
        def endp():
            self.write_stamps(); I('s_endpgm')
        def ffn():
            self.ffn()
        out, _ = self.path([pro], ffn, None, ['0'])
        self.nst = n0
        code, kvc = self.path([pro], self.kv_common, 'L_kv', ['10', '11'])
        n1 = self.nst
        save = (dict(self.bdma), dict(self.bread))
        def kk():
            self.kv_k()
        def kvv():
            self.kv_v()
        c2, _ = self.path([pro, kvc], kk, 'L_kv_k', ['10'])
        self.nst = n1; self.bdma, self.bread = dict(save[0]), dict(save[1])
        c3, _ = self.path([pro, kvc], kvv, 'L_kv_v', ['11'])
        out += code + c2 + c3
        self.nst = n0
        def qq():
            self.q(); endp()
        c4, _ = self.path([pro], qq, 'L_q', ['2'])
        out += c4
        def p2():
            self.phase2(); endp()
        if 'nop2' not in EXP:
            c5, _ = self.path([], p2, 'L_p2', ['0', '10', '11'])
            out += c5
        with self.g.capture() as tail:
            self.g.label('L_end'); I('s_endpgm')
        return out + tail

HEADER = open('cdna_kernels/%s.s.ref' % NAME).read().split('; Override launch')[0]
def wrap(code, launch):
    return HEADER + launch + '''
.amdgcn_target "amdgcn-amd-amdhsa--gfx950"
.text
.globl %(n)s_kernel
.p2align 8
.type %(n)s_kernel,@function
%(n)s_kernel:
%(body)s
.section .rodata,"a"
.p2align 6
.amdhsa_kernel %(n)s_kernel
  .amdhsa_next_free_vgpr 256
  .amdhsa_next_free_sgpr 102
  .amdhsa_accum_offset %(nv)d
  .amdhsa_group_segment_fixed_size 0
  .amdhsa_kernarg_size 80
  .amdhsa_user_sgpr_count 2
  .amdhsa_user_sgpr_kernarg_segment_ptr 1
  .amdhsa_system_sgpr_workgroup_id_x 1
.end_amdhsa_kernel
''' % dict(n=NAME, body=render(code), nv=NV)

if __name__ == '__main__':
    stamps = '--stamps' in sys.argv
    k = K(stamps)
    code = k.build()
    if 'noal' not in EXP:
        import align
        code = align.align(code)
    open(sys.argv[1], 'w').write(wrap(code, '; @launch grid=(256,1,1) block=(512,1,1) lds=163840'))
    json.dump({t: [d.get(i, '') for i in range(16)] for t, d in k.names.items()} if stamps else {}, open(sys.argv[1][:-2] + '.json', 'w'))
    print('instructions', len(code), 'nops', sum(1 for i in code if i.kind == 'nop'))
```

```python
import sys, json, struct, os
from asmgen import *
import layout as L
EXP = os.environ.get('EXP', '').split(',')
SLEEP = int(os.environ.get('SLEEP', '4'))
BCHK = int(os.environ.get('BCHK', '7'))
W1K = int(os.environ.get('W1K', '3'))
PF0 = int(os.environ.get('PF0', '2'))
QSL = int(os.environ.get('QSL', '6'))
NST = int(os.environ.get('NST', '3')); MST = int(os.environ.get('MST', '1'))
ATOM = True
S_FA, S_FO, S_XO, S_SC, S_C1, S_C2, S_C3 = 98, 99, 100, 11, 96, 97, 25
RA, RB_ = [int(x) for x in os.environ.get('R1', '1,2').split(',')]
RC, RD = [int(x) for x in os.environ.get('R2', '2,4').split(',')]
STASH = 72; CSA = 32; DB2 = 125; S_CSB, S_R0 = 30, 101
TSCH = eval(os.environ.get('TSCH', '{3:0x7fc000}'))
T0M = int(os.environ.get('T0M', '0x1f'), 0)
CST = int(os.environ.get('CST', '0'))
NAME = 'recurrent_scan__linear_kernel_hedgehog__dense_activation_silu__prompt'
def f32(x): return '0x%08x' % struct.unpack('<I', struct.pack('<f', x))[0]

S_X, S_W, S_PHI, S_WO, S_W2, S_OUT, S_DBG, S_WS = 36, 40, 44, 48, 52, 56, 60, 64
S_MASK, S_WAVE, S_IDX, S_RB, S_TYPE = 3, 4, 5, 6, 7
S_XS, S_WSO, S_EX56 = 12, 13, 14
S_MW, S_MX, S_ROW, S_NONCE = 32, 33, 34, 35
S_RT, S_CH = 68, 69
S_ST = 70
S_RG, S_CG, S_BSO, S_STA, S_A0, S_A1, S_OSO, S_NH, S_H0 = 16, 17, 18, 19, 20, 21, 22, 23, 24
S_ST4 = 25
S_L2E = 26
S_HIM = 28
STG = 45056; WPART = 16384
L_CNT = 3 * STG
L_CP = 136192
L_WPHI = 144384
L_SHX = L_WPHI
L_PHI = 0
L_V = 136192
L_STA = 57344
L_WO = 0
L_CX = 135168
L_KVQ = 0
L_KVF = 65536
L_XG = 65536
L_O = 0
L_XS = 131072
KORD = list(range(14))
NV = 144
ACC, WF, XF, ST, CS, AX, AW, AS, DX, DW = 0, 64, 96, 104, 108, 112, 116, 120, 122, 124
PFA = 132; TMP = 128; P2T = 128; BT2 = 126; DB = 139; VLANE = 140; VL16 = 141; BT = 142

class K:
    def __init__(self, stamps):
        self.g = Gen(); self.use_stamps = stamps; self.nst = 0; self.names = {}; self.keys = ['0', '10', '11', '2']
    def I(self, t, needs=()): return self.g.I(t, needs)
    def U(self, t):
        x = self.g.I(t); x.kind = 'untracked'; return x
    def stamp(self, name, real=False):
        if os.environ.get('DLY') == name and (not os.environ.get('DLK') or os.environ['DLK'] in self.keys): self.I('s_sleep %s' % os.environ.get('DLN', '32'))
        if 'dbgt' in EXP and name in ('bar0', 'loopend', 'gdone', 'opub', 'ook'):
            r = {'bar0': [78], 'loopend': [80], 'gdone': [82], 'ook': [84], 'opub': [82, 84]}[name]
            for x in r: self.I('s_memtime s[%d:%d]' % (x, x + 1))
        if not self.use_stamps: return
        i = self.nst
        if i >= 12: return
        self.nst += 1
        for k in self.keys: self.names.setdefault(k, {})[i] = name
        self.I('%s %s' % ('s_memrealtime' if real else 's_memtime', sr(S_ST + 2 * i, 2)))
    def write_stamps(self, total=13):
        if 'dbgt' in EXP:
            I = self.I
            I('s_memrealtime s[74:75]'); I('s_memtime s[76:77]'); I('s_waitcnt vmcnt(0) lgkmcnt(0)')
            I('s_mov_b64 exec, 1'); I('v_mov_b32 v2, 0')
            I('v_mov_b32 v0, s70'); I('buffer_atomic_umax v0, v2, %s, 0 offen offset:8' % sr(S_DBG, 4))
            I('s_not_b32 s8, s70'); I('v_mov_b32 v1, s8'); I('buffer_atomic_umax v1, v2, %s, 0 offen offset:12' % sr(S_DBG, 4))
            I('v_mov_b32 v3, s74'); I('buffer_atomic_umax v3, v2, %s, 0 offen offset:16' % sr(S_DBG, 4))
            I('s_sub_u32 s8, s76, s72'); I('v_mov_b32 v4, s8'); I('buffer_atomic_umax v4, v2, %s, 0 offen offset:20' % sr(S_DBG, 4))
            I('s_sub_u32 s8, s74, s70'); I('v_mov_b32 v5, s8'); I('buffer_atomic_umax v5, v2, %s, 0 offen offset:24' % sr(S_DBG, 4))
            for k, so in enumerate((78, 80, 82, 84)):
                I('s_sub_u32 s8, s%d, s72' % so); I('v_mov_b32 v%d, s8' % (6 + k)); I('buffer_atomic_umax v%d, v2, %s, 0 offen offset:%d' % (6 + k, sr(S_DBG, 4), 28 + 4 * k))
            I('s_waitcnt vmcnt(0)')
            return
        if not self.use_stamps: return
        I = self.I
        I('s_memrealtime %s' % sr(S_ST + 2 * (total - 1), 2))
        I('s_waitcnt lgkmcnt(0)')
        I('s_lshl_b32 s8, s2, 3'); I('s_add_u32 s8, s8, s%d' % S_WAVE); I('s_lshl_b32 s8, s8, 7')
        I('s_add_u32 s8, s8, %d' % L.WS_STAMP)
        I('v_mov_b32 v2, 0')
        I('s_mov_b64 exec, 1')
        for i in range(total):
            I('v_mov_b32 v0, s%d' % (S_ST + 2 * i)); I('v_mov_b32 v1, s%d' % (S_ST + 2 * i + 1))
            I('buffer_store_dwordx2 v[0:1], v2, %s, s8 offen offset:%d' % (sr(S_WS, 4), 8 * i))
        I('s_mov_b64 exec, -1')
    def srd(self, d, base, nbytes):
        I = self.I
        I('s_mov_b32 s%d, s%d' % (d, base)); I('s_and_b32 s%d, s%d, 0xffff' % (d + 1, base + 1))
        I('s_mov_b32 s%d, %d' % (d + 2, nbytes)); I('s_mov_b32 s%d, 0x20000' % (d + 3))

    def prologue(self):
        I = self.I
        I('s_cmp_ge_u32 s2, 256'); I('s_cbranch_scc1 L_end')
        I('s_load_dwordx16 s[16:31], s[0:1], 0'); I('s_load_dwordx4 s[32:35], s[0:1], 64')
        if 'anti' in EXP:
            I('s_lshr_b32 s8, s2, 5'); I('s_and_b32 s9, s2, 31'); I('s_lshl_b32 s9, s9, 3'); I('s_or_b32 s2, s8, s9')
        I('s_getpc_b64 s[8:9]')
        self.g.label('L_pc')
        I('v_cmp_le_u32 vcc, %d, v0' % (1024 if 'nocp0' in EXP else 448)); I('s_cbranch_vccz L_nopf')
        I('s_bfe_u32 s10, s2, 0x30003'); I('s_lshl_b32 s10, s10, 13')
        I('v_and_b32 v1, 63, v0'); I('v_lshlrev_b32 v1, 7, v1'); I('v_add_u32 v1, s10, v1')
        I('v_min_u32 v1, L_end-L_pc, v1')
        self.U('global_load_dword a80, v1, s[8:9]')
        self.g.label('L_nopf')
        if self.use_stamps:
            for i in range(13): I('s_mov_b64 %s, 0' % sr(S_ST + 2 * i, 2))
        self.stamp('rt0', True); self.stamp('t0')
        if 'dbgt' in EXP: I('s_memrealtime s[70:71]'); I('s_memtime s[72:73]')
        I('v_lshrrev_b32 v1, 6, v0'); I('v_and_b32 v0, 63, v0')
        I('v_readfirstlane_b32 s%d, v1' % S_WAVE)
        I('v_mov_b32 v%d, v0' % VLANE); I('v_lshlrev_b32 v%d, 4, v0' % VL16)
        I('s_and_b32 s8, s2, 7'); I('s_lshr_b32 s9, s2, 3')
        if 'hx' in EXP:
            I('s_and_b32 s10, s8, 4'); I('s_lshl_b32 s10, s10, 1'); I('s_and_b32 s11, s9, 7'); I('s_add_u32 s%d, s10, s11' % S_RB)
            I('s_and_b32 s8, s8, 3'); I('s_lshr_b32 s10, s9, 3')
        else:
            I('s_and_b32 s10, s8, 1'); I('s_lshl_b32 s10, s10, 3'); I('s_and_b32 s11, s9, 7'); I('s_add_u32 s%d, s10, s11' % S_RB)
            I('s_lshr_b32 s8, s8, 1'); I('s_lshr_b32 s10, s9, 3')
        I('s_lshl_b32 s11, s8, 2'); I('s_add_u32 s12, s11, s10')
        I('s_mov_b32 s%d, 0' % S_TYPE); I('s_lshl_b32 s%d, s8, 1' % S_IDX); I('s_add_u32 s%d, s%d, s10' % (S_IDX, S_IDX))
        I('s_cmp_lt_u32 s10, 2'); I('s_cbranch_scc1 L_role')
        I('s_mov_b32 s%d, 1' % S_TYPE); I('s_lshr_b32 s%d, 0x4210, s11' % S_IDX); I('s_and_b32 s%d, s%d, 15' % (S_IDX, S_IDX))
        I('s_cmp_eq_u32 s10, 2'); I('s_cbranch_scc1 L_role')
        I('s_and_b32 s13, s8, 1'); I('s_lshl_b32 s%d, s13, 1' % S_IDX); I('s_add_u32 s%d, s%d, 3' % (S_IDX, S_IDX))
        I('s_bfe_u32 s11, s9, 0x10002'); I('s_lshr_b32 s8, s8, 1'); I('s_cmp_lg_u32 s11, s8'); I('s_cbranch_scc1 L_role')
        I('s_mov_b32 s%d, 2' % S_TYPE); I('s_mov_b32 s%d, s13' % S_IDX)
        self.g.label('L_role')
        I('s_lshl_b32 s8, s%d, 4' % S_RB); I('s_add_u32 s8, s8, s12'); I('s_lshl_b32 s8, s8, 3'); I('s_add_u32 s11, s8, s%d' % S_WAVE)
        I('s_mov_b32 s%d, -1' % S_EX56); I('s_mov_b32 s%d, 0x00ffffff' % (S_EX56 + 1))
        I('s_and_b32 s%d, s%d, 3' % (S_RT, S_WAVE)); I('s_lshr_b32 s%d, s%d, 2' % (S_CH, S_WAVE))
        I('s_mov_b32 s%d, 0xffff0000' % S_MASK)
        I('v_lshrrev_b32 v2, 3, v0'); I('v_mul_u32_u24 v2, 896, v2')
        I('v_lshrrev_b32 v3, 4, v0'); I('v_and_b32 v4, 7, v0'); I('v_xor_b32 v4, v4, v3')
        I('v_lshl_add_u32 v%d, v4, 4, v2' % DX)
        I('v_xor_b32 v4, 4, v4'); I('v_lshl_add_u32 v%d, v4, 4, v2' % (DX + 1)); I('v_add_u32 v%d, %d, v%d' % (DX + 1, 8 * 896 - 1024, DX + 1))
        I('s_lshl_b32 s8, s%d, 3' % S_RB); I('s_add_u32 s8, s8, s%d' % S_WAVE); I('s_mul_i32 s%d, s8, %d' % (S_XS, 16 * 896))
        I('v_cmp_lt_u32 vcc, 27, v0'); I('v_subrev_u32 v7, 28, v0'); I('v_cndmask_b32 v7, v0, v7, vcc'); I('v_cndmask_b32 v6, 0, 1, vcc')
        I('v_cmp_gt_u32 vcc, 56, v0'); I('v_mov_b32 v5, 0x7fffffff'); I('v_cndmask_b32 v5, v5, v%d, vcc' % VL16)
        I('s_waitcnt lgkmcnt(0)')
        if 'start' in EXP: self.stamp('karg')
        self.srd(S_X, 16, 2048 * 896)
        self.srd(S_WS, 34, L.WS_BYTES); self.srd(S_DBG, 32, 256)
        I('s_mov_b32 s%d, s11' % S_ROW)
        I('s_lshl_b32 s%d, s%d, 11' % (S_MX, S_WAVE))
        I('s_mul_i32 s%d, s%d, %d' % (S_MW, S_WAVE, 8 * 448)); I('s_add_u32 s%d, s%d, %d' % (S_MW, S_MW, WPART))

    def start_stream(self, gpitch):
        I = self.I
        for i in range(1, 4): I('v_add_u32 v%d, %d, v%d' % (DW + i, i * (2 * gpitch - 896), DW))
        I('s_mul_i32 s8, s%d, %d' % (S_WAVE, 8 * gpitch)); I('s_add_u32 s%d, s%d, s8' % (S_WSO, S_WSO))
        self.gpitch = gpitch
        d = {}
        if 'start' in EXP: self.stamp('pre_s0')
        grps, d[0] = self.stage_dma(0, gpitch)
        for gp in grps: self.g.extend(gp)
        I('s_mul_i32 s8, s%d, 896' % S_ROW)
        I('buffer_load_dwordx4 %s, v5, %s, s8 offen' % (vr(XF, 4), sr(S_X, 4)))
        lab = 'L_nonon' + self.tagbase
        I('s_or_b32 s8, s2, s%d' % S_WAVE); I('s_cmp_lg_u32 s8, 0'); I('s_cbranch_scc1 %s' % lab)
        self.U('s_memrealtime s[8:9]'); self.U('s_waitcnt lgkmcnt(0)'); I('s_or_b32 s8, s8, 1'); I('v_mov_b32 v8, s8'); I('v_mov_b32 v9, 0')
        I('s_mov_b64 exec, 1'); self.U('buffer_store_dword v8, v9, %s, 0 offen sc1' % sr(S_DBG, 4)); I('s_mov_b64 exec, -1')
        self.g.label(lab)
        if 'start' in EXP: self.stamp('s0iss')
        return d
    def mall_issue(self, part, mask=None):
        if 'nomall' in EXP: return []
        I = self.I
        with self.g.capture() as a:
            I('s_lshl_b32 s8, s2, 3'); I('s_add_u32 s8, s8, s%d' % S_WAVE); I('s_mul_i32 s9, s8, 896'); I('s_lshl_b32 s8, s8, 8')
            I('v_lshlrev_b32 v%d, 7, v%d' % (TMP + 4, VLANE)); I('s_mov_b64 exec, 0x7f')
            I('buffer_load_dword a80, v%d, %s, s9 offen' % (TMP + 4, sr(S_W2, 4))).dst = set()
            I('s_mov_b64 exec, 3')
            I('buffer_load_dword a80, v%d, %s, s8 offen' % (TMP + 4, sr(S_WO, 4))).dst = set()
            I('s_mov_b64 exec, -1')
        return [a]
    def pre_loop(self, p2, idx0, extra=None, late=None):
        I = self.I; g = self.g
        self.late_srds()
        if p2:
            self.p2_setup()
            for gp in self.p2_pre(): g.extend(gp)
        if extra: extra()
        I('v_and_b32 v64, 31, v%d' % VLANE); I('v_mov_b32 v66, 0x7f000000')
        if idx0:
            I('v_subrev_u32 v65, 4, v64'); I('v_cmp_lt_u32 vcc, 27, v64'); I('v_cndmask_b32 v64, v64, v65, vcc')
        else:
            I('s_lshl_b32 s8, s%d, 4' % S_CH); I('v_xor_b32 v65, s8, v64'); I('v_lshlrev_b32 v65, 4, v65')
            I('s_mul_i32 s8, s%d, %d' % (S_CH, 96 * 16)); I('s_sub_u32 s8, %d, s8' % (192 * 16)); I('v_add_u32 v65, s8, v65')
            I('v_cndmask_b32 v%d, v65, v66, %s' % (CS + 1, sr(S_HIM, 2)))
        I('v_lshlrev_b32 v64, 4, v64'); I('v_cndmask_b32 v%d, v64, v66, %s' % (CS, sr(S_HIM, 2)))
        I('v_and_b32 v64, 31, v%d' % VLANE); I('v_lshlrev_b32 v%d, 7, v64' % (CS + 2))
        if idx0 == 0: I('s_mul_i32 s8, s%d, 224' % S_IDX); I('s_mul_i32 s9, s%d, 96' % S_CH); I('s_add_u32 s8, s8, s9')
        elif idx0 == 8: I('s_mul_i32 s8, s%d, 28' % S_H0); I('s_mul_i32 s9, s%d, 448' % S_CH); I('s_add_u32 s8, s8, s9'); I('s_add_u32 s8, s8, %d' % (1792 + 448))
        else: I('s_mul_i32 s8, s%d, 224' % S_IDX); I('s_mul_i32 s9, s%d, 112' % S_CH); I('s_add_u32 s8, s8, s9'); I('s_add_u32 s8, s8, 1792')
        I('s_lshl_b32 s8, s8, 4'); I('s_add_u32 s%d, s8, %d' % (S_CSB, L.WS_CSG))
        if 'start' in EXP: self.stamp('setup')
        if getattr(self, 'pre_s1', None): self.pre_s1()
        if getattr(self, 'pre_s1k', None): self.pre_s1k(); self.pre_s1k = None
        if 'rs1' in EXP: self.row_stats()
        self.s0pos = len(g.cur)
        if late: late()
        if 'rs1' not in EXP: self.row_stats()
    def chunks(self, fn, n=10):
        with self.g.capture() as body:
            fn()
        out = []; cur = []
        for i, x in enumerate(body):
            cur.append(x)
            nxt = body[i + 1] if i + 1 < len(body) else None
            safe = nxt is not None and not (nxt.op.startswith(('s_cselect', 's_cbranch', 's_addc', 's_subb', 'v_cndmask', 'v_addc')) or nxt.kind in ('dma', 'label')) \
                and not x.op.startswith(('s_cmp', 'v_cmp')) and 'm0' not in x.dst
            if len(cur) >= n and safe: out.append(cur); cur = []
        if cur: out.append(cur)
        return out

    def late_srds(self):
        I = self.I
        self.srd(S_PHI, 20, 16 * 28 * 28 * 2); self.srd(S_WO, 22, 448 * 896); self.srd(S_W2, 28, 1792 * 896)
        self.srd(S_OUT, 30, 2048 * 896)
        I('s_mov_b32 s%d, %s' % (S_L2E, f32(L.LOG2E))); I('s_mov_b32 s%d, %s' % (S_L2E + 1, f32(L.LOG2E)))
        I('s_mov_b32 s%d, 0' % S_HIM); I('s_mov_b32 s%d, -1' % (S_HIM + 1))
        I('s_mov_b32 s31, 0')

    def late_group(self, p2, extra=None):
        with self.g.capture() as a:
            self.late_srds()
            if extra: extra()
        self.p2flag = p2
        return a
    def p2_setup(self):
        I = self.I; T = 64
        I('s_lshr_b32 s9, s2, 3'); I('s_and_b32 s8, s9, 3'); I('s_add_u32 s8, s8, 24'); I('s_cmp_lt_u32 s9, 24'); I('s_cselect_b32 s9, s9, s8')
        I('s_mul_i32 s8, s9, 37'); I('s_lshr_b32 s8, s8, 8'); I('s_mul_i32 s10, s8, 7'); I('s_sub_u32 s%d, s9, s10' % S_CG)
        I('s_and_b32 s10, s2, 7'); I('s_lshl_b32 s10, s10, 2'); I('s_add_u32 s%d, s10, s8' % S_RG)
        I('s_mul_i32 s%d, s%d, %d' % (S_BSO, S_WAVE, 224 * 896)); I('s_lshl_b32 s8, s%d, 7' % S_CG); I('s_add_u32 s%d, s%d, s8' % (S_BSO, S_BSO))
        I('s_lshl_b32 s%d, s%d, 12' % (S_STA, S_WAVE)); I('s_add_u32 s%d, s%d, %d' % (S_STA, S_STA, L_STA))
        I('v_lshrrev_b32 v%d, 3, v140' % T); I('v_mul_u32_u24 v%d, 896, v%d' % (T, T))
        I('v_lshrrev_b32 v%d, 2, v140' % (T + 1)); I('v_and_b32 v%d, 4, v%d' % (T + 1, T + 1)); I('v_and_b32 v%d, 7, v140' % (T + 2))
        I('v_xor_b32 v%d, v%d, v%d' % (T + 1, T + 1, T + 2)); I('v_lshl_add_u32 v%d, v%d, 4, v%d' % (DB, T + 1, T))
        I('v_lshrrev_b32 v%d, 5, v140' % T); I('v_lshlrev_b32 v%d, 2, v%d' % (T, T)); I('v_bfe_u32 v%d, v140, 2, 2' % (T + 1)); I('v_add_u32 v%d, v%d, v%d' % (T, T, T + 1))
        I('v_lshlrev_b32 v%d, 7, v%d' % (T, T)); I('v_add_u32 v%d, s%d, v%d' % (T, S_STA, T))
        I('v_and_b32 v%d, 3, v140' % (T + 1)); I('v_lshlrev_b32 v%d, 3, v%d' % (T + 1, T + 1))
        I('v_and_b32 v%d, 16, v140' % (T + 2)); I('v_lshl_add_u32 v%d, v%d, 1, v%d' % (T + 1, T + 2, T + 1))
        I('v_and_b32 v%d, 8, v140' % (T + 2)); I('v_lshlrev_b32 v%d, 3, v%d' % (T + 2, T + 2)); I('v_xor_b32 v%d, v%d, v%d' % (T + 1, T + 1, T + 2))
        I('v_add_u32 v%d, v%d, v%d' % (BT, T, T + 1))
        I('v_xor_b32 v%d, 64, v%d' % (T + 1, T + 1)); I('v_add_u32 v%d, v%d, v%d' % (BT + 1, T, T + 1))

    def slot4_setup(self):
        I = self.I
        I('s_lshl_b32 s%d, s%d, 11' % (S_ST4, S_WAVE)); I('s_add_u32 s%d, s%d, %d' % (S_ST4, S_ST4, L_SHX)); I('s_sub_u32 s8, s%d, s%d' % (S_ST4, S_STA))
        for b in range(2): I('v_add_u32 v%d, s8, v%d' % (BT2 + b, BT + b))
    def wo_dma(self):
        g = self.g; I = self.I; grps = []
        with g.capture() as a:
            I('s_mul_i32 s23, s%d, %d' % (S_WAVE, 56 * 896)); I('s_lshl_b32 s24, s%d, 7' % S_CG); I('s_add_u32 s23, s23, s24'); I('s_mul_i32 s24, s%d, %d' % (S_WAVE, 56 * 128))
        for i in range(0, 7, 2):
            with g.capture() as b:
                I('s_add_u32 m0, s24, %d' % (L_WO + 1024 * i)); I('s_add_u32 s8, s23, %d' % (8 * 896 * i))
                I('buffer_load_dwordx4 v%d, %s, s8 offen lds' % (DB, sr(S_WO, 4)))
                if i + 1 < 7: I('buffer_load_dwordx4 v%d, %s, s8 offen offset:1024 lds' % (DB2, sr(S_WO, 4)))
            grps.append((a if i == 0 else []) + b)
        return grps
    SLOTS = [(0, BT), (2048, BT), (32768, BT), (34816, BT), (None, BT2)]
    def b_dma(self, k, needs=()):
        g = self.g; I = self.I; so = self.SLOTS[k % self.nslot][0]; grps = []
        with g.capture() as a:
            I('s_add_u32 m0, s%d, %d' % (S_STA, so) if so is not None else 's_mov_b32 m0, s%d' % S_ST4)
            I('s_add_u32 s8, s%d, %d' % (S_BSO, 16 * k * 896))
            I('buffer_load_dwordx4 v%d, %s, s8 offen lds' % (DB, sr(S_W2, 4)), needs=needs)
            I('buffer_load_dwordx4 v%d, %s, s8 offen offset:1024 lds' % (DB2, sr(S_W2, 4)))
        grps.append(a)
        self.bdma[k] = [x for gp in grps for x in gp if x.kind == 'dma']
        return grps
    def b_read(self, k):
        so, reg = self.SLOTS[k % self.nslot]; out = []
        if so is None: so = 0
        for b in range(2):
            for h in range(2):
                out.append(Instr('ds_read_b64_tr_b16 %s, v%d offset:%d' % (ar(8 * k + 4 * b + 2 * h, 2), reg + b, so + 1024 * h), needs=self.bdma[k]))
        self.bread[k] = out
        return out
    def b_tasks(self, k0, k1):
        t = [self.b_read(k) for k in range(k0, k1)]
        for k in range(k0, k1):
            if k + self.nslot < 14: t += self.b_dma(k + self.nslot, needs=self.bread[k])
        return t

    def stage_dma(self, st, gpitch):
        g = self.g; I = self.I; base = (st % 3) * STG
        nt = ' nt' if st < int(os.environ.get('NT', '0')) else ''; ntx = ' nt' if st < int(os.environ.get('NTX', os.environ.get('NT', '0'))) else ''
        grps = []
        for i in range(0, 4, 2):
            with g.capture() as a:
                if i == 0: I('s_add_u32 m0, s%d, %d' % (S_MW, base))
                I('s_mov_b64 exec, %s' % sr(S_EX56, 2))
                for j in (i, i + 1): I('buffer_load_dwordx4 v%d, %s, s%d offen offset:%d%s lds' % (DW + j, sr(S_W, 4), S_WSO, 896 * j, nt))
                I('s_mov_b64 exec, -1')
            grps.append(a)
        with g.capture() as a:
            I('s_add_u32 m0, s%d, %d' % (S_MX, base)); I('s_add_u32 s%d, s%d, %d' % (S_WSO, S_WSO, 64 * gpitch))
            for i in range(2): I('buffer_load_dwordx4 v%d, %s, s%d offen offset:%d%s lds' % (DX + i, sr(S_X, 4), S_XS, 1024 * i, ntx))
            I('s_add_u32 s%d, s%d, 128' % (S_XS, S_XS))
        grps.append(a)
        return grps, [x for gp in grps for x in gp if x.kind == 'dma']

    def read_addrs(self, clamp, shared=False):
        I = self.I; T = TMP
        I('v_and_b32 v%d, 31, v0' % T); I('v_lshlrev_b32 v%d, 7, v%d' % (T, T)); I('s_lshl_b32 s8, s%d, 12' % S_RT); I('v_add_u32 v%d, s8, v%d' % (T, T))
        I('v_lshrrev_b32 v%d, 5, v0' % (T + 1)); I('v_bfe_u32 v%d, v0, 1, 3' % (T + 2)); I('v_xor_b32 v%d, v%d, v%d' % (T + 2, T + 2, T + 1))
        I('v_lshlrev_b32 v%d, 3, v%d' % (T + 3, T + 1)); I('v_bfe_u32 v%d, v0, 2, 2' % (T + 4)); I('v_add_u32 v%d, v%d, v%d' % (T + 3, T + 3, T + 4))
        I('v_mul_u32_u24 v%d, 448, v%d' % (T + 3, T + 3))
        I('v_bfe_u32 v%d, v0, 4, 1' % (T + 4)); I('v_and_b32 v%d, 3, v0' % (T + 5)); I('v_lshl_add_u32 v%d, v%d, 2, v%d' % (T + 4, T + 4, T + 5))
        if shared:
            I('s_lshl_b32 s8, s%d, 2' % S_CH); I('v_xor_b32 v%d, s8, v%d' % (T + 6, T + 4)); I('v_lshl_add_u32 v%d, v%d, 3, v%d' % (T + 6, T + 6, T + 3))
            I('v_add_u32 v%d, %d, v%d' % (T + 6, WPART + 384, T + 6))
        if clamp: I('v_min_u32 v%d, 6, v%d' % (T + 4, T + 4))
        I('v_lshl_add_u32 v%d, v%d, 3, v%d' % (T + 3, T + 4, T + 3))
        I('v_add_u32 v%d, s10, v%d' % (T + 3, T + 3))
        for i in range(4):
            I('s_add_u32 s8, s%d, s%d' % (S_RT, S_CH)); I('s_add_u32 s8, s8, %d' % i); I('s_and_b32 s8, s8, 3')
            I('s_lshl_b32 s9, s8, 1'); I('v_xor_b32 v%d, s9, v%d' % (T + 5, T + 2)); I('v_lshl_add_u32 v%d, v%d, 4, v%d' % (AX + i, T + 5, T))
            I('s_mul_i32 s9, s8, 7168'); I('v_add_u32 v%d, s9, v%d' % (AW + i, T + 3))
            if shared and i in (0, 2): I('v_add_u32 v%d, s9, v%d' % (AS + i // 2, T + 6))

    def row_stats(self):
        I = self.I; S, Q = ST, ST + 1
        I('s_mov_b32 s8, 0x3f803f80')
        I('v_dot2_f32_bf16 v%d, v%d, s8, 0' % (S, XF)); I('v_dot2_f32_bf16 v%d, v%d, v%d, 0' % (Q, XF, XF))
        for q in range(1, 4):
            I('v_dot2_f32_bf16 v%d, v%d, s8, v%d' % (S, XF + q, S)); I('v_dot2_f32_bf16 v%d, v%d, v%d, v%d' % (Q, XF + q, XF + q, Q))
        for m in ('row_shr:1', 'row_shr:2', 'row_shr:4', 'row_shr:8'):
            for r in (S, Q): I('v_add_f32_dpp v%d, v%d, v%d %s row_mask:0xf bank_mask:0xf bound_ctrl:0' % (r, r, r, m))
        for m, rm in (('row_bcast:15', '0xa'), ('row_bcast:31', '0xc')):
            for r in (S, Q): I('v_add_f32_dpp v%d, v%d, v%d %s row_mask:%s bank_mask:0xf' % (r, r, r, m, rm))
        I('v_mul_f32 v%d, %s, v%d' % (S, f32(1.0 / 448), S)); I('v_mul_f32 v%d, %s, v%d' % (Q, f32(1.0 / 448), Q))
        I('v_fma_f32 v%d, -v%d, v%d, v%d' % (Q, S, S, Q)); I('v_max_f32 v%d, 0, v%d' % (Q, Q))
        def rbf(r):
            I('v_cvt_pk_bf16_f32 v%d, v%d, v%d' % (r, r, r)); I('v_lshlrev_b32 v%d, 16, v%d' % (r, r))
        rbf(S); rbf(Q)
        I('v_add_f32 v%d, %s, v%d' % (Q, f32(1e-5), Q)); rbf(Q)
        I('v_sqrt_f32 v%d, v%d' % (Q, Q)); rbf(Q)
        I('v_rcp_f32 v%d, v%d' % (Q, Q))
        I('v_sub_f32 v%d, 0, v%d' % (S, S))

    def nonce_issue(self):
        self.I('v_mov_b32 v%d, 0' % (ST + 3))
        return self.I('buffer_load_dword v%d, v%d, %s, 0 offen sc1' % (ST + 2, ST + 3, sr(S_DBG, 4)))
    def nonce_get_publish(self, tag):
        self.nonce_get(tag)
        self.row_publish()
    def nonce_get(self, tag):
        I = self.I; U = self.U
        I('v_readfirstlane_b32 s%d, v%d' % (S_NONCE, ST + 2))
        I('s_cmp_lg_u32 s%d, 0' % S_NONCE); I('s_cbranch_scc1 L_gotn%s' % tag)
        self.g.label('L_spinn%s' % tag)
        U('buffer_load_dword v%d, v%d, %s, 0 offen sc1' % (ST + 2, ST + 3, sr(S_DBG, 4)))
        U('s_waitcnt vmcnt(0)')
        I('v_readfirstlane_b32 s%d, v%d' % (S_NONCE, ST + 2)); I('s_nop 1')
        I('s_cmp_lg_u32 s%d, 0' % S_NONCE); I('s_cbranch_scc1 L_gotn%s' % tag)
        self.spin_tail('L_spinn%s' % tag)
        self.g.label('L_gotn%s' % tag)
    def row_publish(self):
        I = self.I
        I('v_mov_b32 v%d, s%d' % (ST + 2, S_NONCE)); I('v_mov_b32 v%d, s%d' % (ST + 3, S_NONCE))
        I('s_lshl_b32 s8, s%d, 4' % S_ROW); I('s_add_u32 s8, s8, %d' % L.WS_RS); I('v_mov_b32 v%d, 0' % (TMP + 8))
        I('s_mov_b32 exec_lo, 0'); I('s_mov_b32 exec_hi, 0x80000000')
        I('buffer_store_dwordx4 %s, v%d, %s, s8 offen sc1' % (vr(ST, 4), TMP + 8, sr(S_WS, 4)))
        I('s_mov_b64 exec, -1')
    def rs_issue(self):
        I = self.I
        I('s_lshl_b32 s8, s%d, 2' % S_RB); I('s_add_u32 s8, s8, s%d' % S_RT); I('s_lshl_b32 s8, s8, 9'); I('s_add_u32 s%d, s8, %d' % (S_ROW, L.WS_RS))
        I('v_and_b32 v%d, 31, v%d' % (DX, VLANE)); I('v_lshlrev_b32 v%d, 4, v%d' % (DX, DX))
        return I('buffer_load_dwordx4 %s, v%d, %s, s%d offen sc1' % (vr(ST, 4), DX, sr(S_WS, 4), S_ROW))
    def rs_get(self, tag, scale):
        I = self.I; U = self.U
        I('v_cmp_ne_u32 vcc, s%d, v%d' % (S_NONCE, ST + 2)); I('s_nop 1'); I('s_cbranch_vccz L_gotr%s' % tag)
        self.g.label('L_spinr%s' % tag)
        U('buffer_load_dwordx4 %s, v%d, %s, s%d offen sc1' % (vr(ST, 4), DX, sr(S_WS, 4), S_ROW))
        U('s_waitcnt vmcnt(0)')
        I('v_cmp_ne_u32 vcc, s%d, v%d' % (S_NONCE, ST + 2)); I('s_nop 1'); I('s_cbranch_vccz L_gotr%s' % tag)
        self.spin_tail('L_spinr%s' % tag)
        self.g.label('L_gotr%s' % tag)
        for q in range(4): I('v_cvt_pk_bf16_f32 v%d, v%d, v%d' % (XF + q, ST, ST))
        I('v_mul_f32 v%d, %s, v%d' % (ST, f32(scale), ST + 1))
    def publish(self, soff_s, tmp, needs=()):
        I = self.I
        I('v_mov_b32 v%d, s%d' % (tmp, S_NONCE)); I('v_mov_b32 v%d, 0' % (tmp + 1)); I('s_mov_b64 exec, 1')
        x = I('buffer_store_dword v%d, v%d, %s, s%d offen sc1' % (tmp, tmp + 1, sr(S_WS, 4), soff_s), needs=needs)
        I('s_mov_b64 exec, -1')
        return x
    def poll(self, tag, voff, soff_s, tmp):
        I = self.I; U = self.U
        self.g.label('L_poll%s' % tag)
        U('buffer_load_dword v%d, v%d, %s, s%d offen sc1' % (tmp, voff, sr(S_WS, 4), soff_s))
        I('s_waitcnt vmcnt(0)')
        I('v_cmp_ne_u32 vcc, s%d, v%d' % (S_NONCE, tmp)); I('s_nop 1'); I('s_cbranch_vccz L_polld%s' % tag)
        self.spin_tail('L_poll%s' % tag)
        self.g.label('L_polld%s' % tag)
    def poll_issue(self, voff, soff_s, tmp):
        return self.I('buffer_load_dword v%d, v%d, %s, s%d offen sc1' % (tmp, voff, sr(S_WS, 4), soff_s))
    def poll_check(self, tag, voff, soff_s, tmp):
        I = self.I; U = self.U
        if 'nopoll' in EXP and tag in 'AB': return
        I('v_cmp_ne_u32 vcc, s%d, v%d' % (S_NONCE, tmp)); I('s_nop 1'); I('s_cbranch_vccz L_polld%s' % tag)
        self.g.label('L_poll%s' % tag)
        U('buffer_load_dword v%d, v%d, %s, s%d offen sc1' % (tmp, voff, sr(S_WS, 4), soff_s)); U('s_waitcnt vmcnt(0)')
        I('v_cmp_ne_u32 vcc, s%d, v%d' % (S_NONCE, tmp)); I('s_nop 1'); I('s_cbranch_vccz L_polld%s' % tag)
        self.spin_tail('L_poll%s' % tag)
        self.g.label('L_polld%s' % tag)
    def spin_tail(self, lab, sl=None):
        I = self.I
        if (SLEEP if sl is None else sl): I('s_sleep %d' % (SLEEP if sl is None else sl))
        else: I('s_nop 0')
        pass; I('s_add_u32 s31, s31, 1'); I('s_cmp_lt_u32 s31, 0x8000'); I('s_cbranch_scc1 %s' % lab)

    def l2pf(self, st):
        if 'l2pf' not in EXP: return []
        I = self.I; lab = 'L_pf%s%d' % (self.tagbase, st)
        with self.g.capture() as a:
            I('s_lshr_b32 s8, s%d, 1' % S_WAVE); I('s_cmp_lg_u32 s8, %d' % (st - PF0)); I('s_cbranch_scc1 %s' % lab)
            I('s_lshr_b32 s8, s2, 3'); I('s_lshl_b32 s8, s8, 3'); I('s_add_u32 s8, s8, s%d' % S_WAVE); I('s_lshl_b32 s8, s8, 13')
            I('v_lshlrev_b32 v%d, 7, v%d' % (TMP + 8, VLANE))
            self.U('buffer_load_dword a80, v%d, %s, s8 offen' % (TMP + 8, sr(S_W2, 4)))
            I('s_sub_u32 s8, s8, %d' % (196 * 8192)); I('s_cbranch_scc1 %s' % lab)
            self.U('buffer_load_dword a80, v%d, %s, s8 offen' % (TMP + 8, sr(S_WO, 4)))
            self.g.label(lab)
        return [a]

    def code_pf(self, tg, tmp, dst):
        if 'nocpf' in EXP: return []
        I = self.I
        with self.g.capture() as a:
            I('s_getpc_b64 s[8:9]'); self.g.label('L_cpf%s' % tg)
            I('s_sub_u32 s8, s8, L_cpf%s-L_pc' % tg); I('s_subb_u32 s9, s9, 0')
            I('s_bfe_u32 s10, s2, 0x20003'); I('s_lshl_b32 s10, s10, 3'); I('s_add_u32 s10, s10, s%d' % S_WAVE); I('s_lshl_b32 s10, s10, 11')
            I('v_lshlrev_b32 v%d, 7, v%d' % (tmp, VLANE)); I('v_add_u32 v%d, s10, v%d' % (tmp, tmp)); I('v_min_u32 v%d, L_end-L_pc, v%d' % (tmp, tmp))
            I('s_mov_b64 exec, 0xffff')
            I('global_load_dword %s, v%d, s[8:9]' % (dst, tmp))
            I('s_mov_b64 exec, -1')
        return [a]

    def gemm(self, tiles, gpitch, dms, tag, hooks, tl):
        g = self.g; I = self.I
        dmas = dict(dms)
        NF, LOOK = 8, 4
        seq = [(ks, cc) for ks in range(28) for cc in range(len(tiles[ks & 3]['t']))]
        def wread(n):
            ks, cc = seq[n]; a = WF + 4 * (n % NF); c, areg, off = tiles[ks & 3]['t'][cc]
            return [Instr('ds_read_b64_tr_b16 %s, v%d offset:%d' % (vr(a + 2 * h, 2), areg, off + h * 4 * 448)) for h in range(2)]
        def xread(ks):
            return [Instr('ds_read_b128 %s, v%d' % (vr(XF + 4 * (ks % 2), 4), AX + (ks & 3)))]
        aregs = sorted(set(list(range(AX, AX + 4)) + [t[1] for p in tiles for t in p['t']]))
        def adv(st):
            d = STG if st % 3 else -2 * STG
            return [Instr('v_add_u32 v%d, %d, v%d' % (r, d, r)) if d > 0 else Instr('v_subrev_u32 v%d, %d, v%d' % (r, -d, r)) for r in aregs]
        tc = [0]
        def cs_ops(r, c):
            t = TMP + 2 * (tc[0] % 4); tc[0] += 1
            return [Instr('v_lshlrev_b32 v%d, 16, v%d' % (t, r)), Instr('v_and_b32 v%d, s%d, v%d' % (t + 1, S_MASK, r)),
                    Instr('v_add_f32 v%d, v%d, v%d' % (CS + c, CS + c, t)), Instr('v_add_f32 v%d, v%d, v%d' % (CS + c, CS + c, t + 1))]
        if 'start' in EXP:
            self.stamp('rowst'); I('s_nop 0', needs=dmas[0]); self.stamp('s0arr'); I('s_waitcnt lgkmcnt(0)')
        BAR0 = len(g.cur)
        I('s_barrier', needs=dmas[0])
        self.stamp('bar0')
        g.extend(xread(0))
        first = [wread(n) for n in range(LOOK)]
        for x in first: g.extend(x)
        g1, dmas[1] = self.stage_dma(1, gpitch)
        pend, dmas[2] = self.stage_dma(2, gpitch)
        g.cur[self.s0pos:self.s0pos] = ([] if tag == 'q' else [Instr('s_barrier')]) + [x for gp in g1 for x in gp]
        if tag == 'q':
            with g.capture() as grp_: self.nonce_issue()
            pend = [grp_] + pend
        wrd = {}
        cs = {}
        def cs_poll():
            with g.capture() as a:
                I('s_mov_b32 s%d, %d' % (S_R0, L.WS_CSF))
                self.poll_issue(CS + 2, S_R0, CS + 3)
            return [a]
        def cs_load():
            with g.capture() as a:
                for c, vo, off in tl: I('buffer_load_dwordx4 %s, v%d, %s, s%d offen offset:%d sc1' % (ar(CSA + 4 * c, 4), vo, sr(S_WS, 4), S_CSB, off))
            return [a]
        for n in range(LOOK): wrd[n] = first[n]
        started = set(); xr = 0; cfill = []
        for n, (ks, cc) in enumerate(seq):
            p = tiles[ks & 3]; c = p['t'][cc][0]; a = WF + 4 * (n % NF); xf = XF + 4 * (ks % 2)
            I('v_mfma_f32_32x32x16_bf16 %s, %s, %s, %s' % (vr(ACC + 16 * c, 16), vr(a, 4), vr(xf, 4), vr(ACC + 16 * c, 16) if c in started else '0'),
              needs=wrd.get(n + 1, []) if n % 2 == 0 else [])
            started.add(c)
            nn = n + LOOK
            if nn < len(seq):
                ks2, cc2 = seq[nn]
                if cc2 == 0 and ks2 & 3 == 0:
                    st2 = ks2 >> 2
                    assert xr == ks2 - 1
                    g.extend(adv(st2))
                    if st2 == (1 if tag == 'q' else NST): self.nonce_get_publish(tag)
                    if st2 == 6: self.poll_check('c' + tag, CS + 2, S_R0, CS + 3); self.rs_issue()
                    if st2 in hooks.get('pre', {}): hooks['pre'][st2]()
                    if 'stg' in EXP and st2 in (2, 3, 6): self.stamp('preB%d' % st2)
                    I('s_waitcnt lgkmcnt(0)')
                    I('s_barrier', needs=dmas[st2])
                    if 'stg' in EXP: self.stamp('B%d' % st2)
                    if st2 == 1 and tag != 'q':
                        with g.capture() as grp_: self.nonce_issue()
                        pend += [grp_]
                    if st2 == 5: pend += cs_poll()
                    if st2 == 6: pend += cs_load()
                    if st2 in self.pre_post: pend += self.pre_post[st2]()
                    if st2 + 2 < 7:
                        newg, dmas[st2 + 2] = self.stage_dma(st2 + 2, gpitch); pend += newg
                    if st2 in TSCH: pend += self.mall_issue(1, TSCH[st2])
                    if st2 in hooks.get('post', {}): pend += hooks['post'][st2]()
                wrd[nn] = wread(nn); g.extend(wrd[nn])
            if xr == ks and ks + 1 < 28 and (nn >= len(seq) or seq[min(nn, len(seq) - 1)][0] >= ks + 1):
                g.extend(xread(ks + 1)); xr = ks + 1
            if pend and (n % 3 == 0 or len(pend) > 3): g.extend(pend.pop(0))
        for x in pend: g.extend(x)
        self.stamp('loopend')

    def finish_stats(self, tl, scale, tag, before_b1=None, after_b1=None):
        I = self.I
        wr = []
        if before_b1: wr += before_b1() or []
        self.rs_get(tag, scale)
        for c, vo, off in tl:
            I('v_mfma_f32_32x32x16_bf16 %s, %s, %s, %s' % (vr(ACC + 16 * c, 16), ar(CSA + 4 * c, 4), vr(XF, 4), vr(ACC + 16 * c, 16)))
        I('s_barrier', needs=wr)
        if after_b1: after_b1()
        if 'stg' in EXP: self.stamp = lambda *a, **k: None
        self.stamp('stats')

    def with_bg(self, fn, tasks, every):
        with self.g.capture() as body:
            fn()
        out = []; tasks = list(tasks); cnt = 0
        for x in body:
            out.append(x); cnt += 1
            if tasks and cnt >= every and x.kind in ('valu', 'trans') and not (x.dst & {'vcc'}):
                out += tasks.pop(0); cnt = 0
        for t in tasks: out += t
        self.g.extend(out)

    def ffn(self):
        I = self.I; g = self.g
        self.tagbase = 'f'
        self.srd(S_W, 26, 448 * 3584)
        I('v_mul_u32_u24 v6, 3584, v6'); I('v_lshl_add_u32 v%d, v7, 4, v6' % DW)
        I('s_mul_i32 s%d, s%d, 448' % (S_WSO, S_IDX))
        dms = self.start_stream(3584)
        I('s_mul_i32 s10, s%d, 192' % S_CH); I('s_add_u32 s10, s10, %d' % WPART)
        self.read_addrs(False, shared=True)
        self.pre_loop(True, 0); self.pre_post = {}
        own = lambda i, o: [(c, AW + i, 64 * c) for c in o]
        tiles = [dict(t=[(3, AS, 0)] + own(0, [0, 1, 2]), cs=True), dict(t=own(1, [0, 1, 2]), cs=True),
                 dict(t=own(2, [1, 2, 0]) + [(3, AS + 1, 0)], cs=True), dict(t=own(3, [2, 0, 1]), cs=True)]
        self.bdma, self.bread = {}, {}; self.nslot = 5
        tl = [(0, CS, 0), (1, CS, 512), (2, CS, 1024), (3, CS + 1, 0)]
        self.gemm(tiles, 3584, dms, 'f', self.bhooks(), tl)
        self.slot4_setup()
        SH = ACC + 48; X8 = 116
        def before_b1():
            I('s_xor_b32 s8, s%d, 4' % S_WAVE); I('s_lshl_b32 s8, s8, 11'); I('s_add_u32 s8, s8, %d' % L_SHX); I('v_add_u32 v%d, s8, v%d' % (AX, VL16))
            I('s_lshl_b32 s8, s%d, 11' % S_WAVE); I('s_add_u32 s8, s8, %d' % L_SHX); I('v_add_u32 v%d, s8, v%d' % (AX + 1, VL16))
            return [I('ds_write_b128 v%d, %s offset:%d' % (AX, vr(SH + 8 + 4 * q, 4), 1024 * q)) for q in range(2)]
        shr = []
        def after_b1():
            for q in range(2): shr.append(I('ds_read_b128 %s, v%d offset:%d' % (vr(X8 + 4 * q, 4), AX + 1, 1024 * q)))
        self.finish_stats(tl, -L.LOG2E, 'f', before_b1, after_b1)
        I('s_lshl_b32 s8, s%d, 2' % S_RB); I('s_add_u32 s8, s8, s%d' % S_RT); I('s_mul_i32 s9, s8, %d' % (112 * 1024))
        I('s_lshl_b32 s8, s8, 3'); I('s_add_u32 s8, s8, s%d' % S_IDX); I('s_lshl_b32 s8, s8, 1'); I('s_add_u32 s8, s8, s%d' % S_CH)
        I('s_lshl_b32 s8, s8, 7'); I('s_add_u32 s0, s8, %d' % L.WS_FLAG)
        I('s_mul_i32 s10, s%d, %d' % (S_IDX, 14 * 1024)); I('s_add_u32 s9, s9, s10')
        I('s_mul_i32 s10, s%d, 6144' % S_CH); I('s_add_u32 s10, s9, s10')
        I('s_lshl_b32 s11, s%d, 10' % S_CH); I('s_add_u32 s9, s9, s11'); I('s_add_u32 s1, s9, %d' % (12 * 1024))
        stores = []
        def unit(idx):
            c, u = divmod(idx, 2)
            A = ACC + 16 * c + 8 * u; T = [64, 72][idx & 1]; P = [80, 84][idx & 1]
            if 'noprio' not in EXP:
                lab = 'L_fp%d' % idx
                I('s_setprio 0'); I('s_cmp_eq_u32 s%d, %d' % (S_CH, idx & 1)); I('s_cbranch_scc1 %s' % lab); I('s_setprio 1'); self.g.label(lab)
            if c == 3:
                for j in range(0, 8, 2): I('v_pk_add_f32 %s, %s, %s' % (vr(A + j, 2), vr(A + j, 2), vr(X8 + j, 2)))
            for j in range(0, 8, 2): I('v_pk_mul_f32 %s, %s, %s op_sel_hi:[1,0]' % (vr(A + j, 2), vr(A + j, 2), vr(ST, 2)))
            for j in range(8): I('v_exp_f32 v%d, v%d' % (T + j, A + j))
            for j in range(0, 8, 2): I('v_pk_add_f32 %s, %s, 1.0 op_sel_hi:[1,0]' % (vr(T + j, 2), vr(T + j, 2)))
            for j in range(8): I('v_rcp_f32 v%d, v%d' % (T + j, T + j))
            for j in range(0, 8, 2): I('v_pk_mul_f32 %s, %s, %s' % (vr(T + j, 2), vr(T + j, 2), vr(A + j, 2)))
            for j in range(0, 8, 2): I('v_cvt_pk_bf16_f32 v%d, v%d, v%d' % (P + j // 2, T + j, T + j + 1))
            if idx == 4: I('s_add_u32 s10, s10, 4096')
            if c < 3: stores.append(I('buffer_store_dwordx4 %s, v%d, %s, s10 offen offset:%d sc1' % (vr(P, 4), VL16, sr(S_WS, 4), (idx % 4) * 1024)))
            else: stores.append(I('buffer_store_dwordx4 %s, v%d, %s, s1 offen sc1' % (vr(P, 4), VL16, sr(S_WS, 4))))
        self.with_bg(lambda: [unit(i) for i in range(6)], self.b_round1(shr), int(os.environ.get('FBG', '11')))
        unit(6)
        I('s_setprio 0')
        self.stamp('epi')
        self.p2_enter()
        bt = self.b_tasks(4, 9)
        for t in bt[:5]: g.extend(t)
        self.publish(0, 96, needs=stores)
        self.stamp('pub')
        if 'nofh' not in EXP: I('s_barrier')
        FP = 5 + int(os.environ.get('FP', '3'))
        for t in bt[5:FP]: g.extend(t)
        pa = self.poll_issue(P2T + 1, S_FA, P2T)
        for t in bt[FP:] + (self.wo_dma() if 'fwo' in EXP else []): g.extend(t)
        I('s_waitcnt lgkmcnt(0)'); I('s_nop 0', needs=[pa])
        I('s_branch L_p2')

    def b_round1(self, need4=None):
        t = [sum([self.b_read(k) for k in range(4)], [])]
        if need4 is not None: t += self.b_dma(4, needs=need4)
        for k in range(4): t += self.b_dma(k + 5, needs=self.bread[k])
        return t

    def bhooks(self, extra=None):
        post = {5: lambda: [[Instr('v_add_u32 v%d, %d, v%d' % (DB2, 8 * 896 - 1024, DB))]] + self.b_dma(0) + self.b_dma(1), 6: lambda: self.b_dma(2) + self.b_dma(3)}
        if extra: post.update(extra)
        return dict(post=post)

    def pack_k(self, A, K8):
        I = self.I
        for j in range(8): I('v_cvt_pk_bf16_f32 v%d, v%d, v%d' % (K8 + j, A + 2 * j, A + 2 * j + 1))
        for j in (6, 7): I('v_cndmask_b32 v%d, v%d, 0, %s' % (K8 + j, K8 + j, sr(S_HIM, 2)))
    def half_units(self, As, neg):
        I = self.I; M = 64; n = '-' if neg else ''; nm = ' neg_lo:[1,0,0] neg_hi:[1,0,0]' if neg else ''
        def each(f):
            for i, A in enumerate(As): f(A, M + 6 * i)
        I('v_mov_b32 v%d, 0xff800000' % (TMP + 10))
        each(lambda A, m: (I('v_max3_f32 v%d, %sv%d, %sv%d, %sv%d' % (m, n, A, n, A + 1, n, A + 2)), I('v_max3_f32 v%d, %sv%d, %sv%d, %sv%d' % (m + 1, n, A + 8, n, A + 9, n, A + 10))))
        for j in (3, 5): each(lambda A, m: (I('v_max3_f32 v%d, v%d, %sv%d, %sv%d' % (m, m, n, A + j, n, A + j + 1)), I('v_max3_f32 v%d, v%d, %sv%d, %sv%d' % (m + 1, m + 1, n, A + 8 + j, n, A + 9 + j))))
        each(lambda A, m: I('v_max3_f32 v%d, v%d, %sv%d, %sv%d' % (m + 1, m + 1, n, A + 7, n, A + 15)))
        each(lambda A, m: I('v_max_f32 v%d, v%d, v%d' % (m, m, m + 1)))
        each(lambda A, m: I('v_mov_b32 v%d, v%d' % (m + 1, m)))
        each(lambda A, m: I('v_permlane32_swap_b32 v%d, v%d' % (m, m + 1)))
        each(lambda A, m: I('v_max_f32 v%d, v%d, v%d' % (m, m, m + 1)))
        each(lambda A, m: I('v_mul_f32 v%d, -v%d, v%d' % (m, ST, m)))
        each(lambda A, m: I('v_cndmask_b32 v%d, v%d, v%d, %s' % (m + 1, m, TMP + 10, sr(S_HIM, 2))))
        for j in range(0, 16, 2):
            sel = 'op_sel_hi:[1,0,0]' if j < 12 else 'op_sel:[0,0,1] op_sel_hi:[1,0,1]'
            each(lambda A, m: I('v_pk_fma_f32 %s, %s, %s, %s %s%s' % (vr(A + j, 2), vr(A + j, 2), vr(ST, 2), vr(m, 2), sel, nm)))
        for j in range(16): each(lambda A, m: I('v_exp_f32 v%d, v%d' % (A + j, A + j)))
        each(lambda A, m: (I('v_pk_add_f32 %s, %s, %s' % (vr(m + 2, 2), vr(A, 2), vr(A + 2, 2))), I('v_pk_add_f32 %s, %s, %s' % (vr(m + 4, 2), vr(A + 8, 2), vr(A + 10, 2)))))
        for j in (4, 6): each(lambda A, m: (I('v_pk_add_f32 %s, %s, %s' % (vr(m + 2, 2), vr(m + 2, 2), vr(A + j, 2))), I('v_pk_add_f32 %s, %s, %s' % (vr(m + 4, 2), vr(m + 4, 2), vr(A + 8 + j, 2)))))
        each(lambda A, m: I('v_pk_add_f32 %s, %s, %s' % (vr(m + 2, 2), vr(m + 2, 2), vr(m + 4, 2))))
        each(lambda A, m: I('v_add_f32 v%d, v%d, v%d' % (m, m + 2, m + 3)))
        each(lambda A, m: I('v_mov_b32 v%d, v%d' % (m + 1, m)))
        each(lambda A, m: I('v_permlane32_swap_b32 v%d, v%d' % (m, m + 1)))
        each(lambda A, m: I('v_add_f32 v%d, v%d, v%d' % (m, m, m + 1)))
        each(lambda A, m: I('v_rcp_f32 v%d, v%d' % (m, m)))
        for j in range(0, 16, 2): each(lambda A, m: I('v_pk_mul_f32 %s, %s, %s op_sel_hi:[1,0]' % (vr(A + j, 2), vr(A + j, 2), vr(m, 2))))
        for j in range(8): each(lambda A, m: I('v_cvt_pk_bf16_f32 v%d, v%d, v%d' % (A + j, A + 2 * j, A + 2 * j + 1)))
    def phi_mfma(self, A, K8, WP):
        I = self.I
        I('v_mfma_f32_32x32x16_bf16 %s, %s, %s, 0' % (vr(A, 16), ar(WP, 4), vr(K8, 4)))
        I('v_mfma_f32_32x32x16_bf16 %s, %s, %s, %s' % (vr(A, 16), ar(WP + 4, 4), vr(K8 + 4, 4), vr(A, 16)))
    def softmax_unit(self, A, sreg=None):
        I = self.I
        EP, EN, M = 64, 80, TMP
        mx, nm, t, u = M, M + 1, M + 2, M + 4
        I('v_mov_b32 v%d, 0xff800000' % (M + 10))
        m2, n2 = M + 6, M + 7
        for (a, b, o) in ((mx, nm, 0), (m2, n2, 8)):
            I('v_max3_f32 v%d, v%d, v%d, v%d' % (a, A + o, A + o + 1, A + o + 2)); I('v_max3_f32 v%d, -v%d, -v%d, -v%d' % (b, A + o, A + o + 1, A + o + 2))
        for j in (3, 5):
            for (a, b, o) in ((mx, nm, 0), (m2, n2, 8)):
                I('v_max3_f32 v%d, v%d, v%d, v%d' % (a, a, A + o + j, A + o + j + 1)); I('v_max3_f32 v%d, v%d, -v%d, -v%d' % (b, b, A + o + j, A + o + j + 1))
        I('v_max3_f32 v%d, v%d, v%d, v%d' % (m2, m2, A + 7, A + 15)); I('v_max3_f32 v%d, v%d, -v%d, -v%d' % (n2, n2, A + 7, A + 15))
        I('v_max_f32 v%d, v%d, v%d' % (mx, mx, m2)); I('v_max_f32 v%d, v%d, v%d' % (nm, nm, n2))
        I('v_permlane32_swap_b32 v%d, v%d' % (mx, nm)); I('v_max_f32 v%d, v%d, v%d' % (t, mx, nm))
        I('v_mul_f32 v%d, -v%d, v%d' % (t, ST, t)); I('v_mov_b32 v%d, v%d' % (u, t)); I('v_permlane32_swap_b32 v%d, v%d' % (t, u))
        I('v_cndmask_b32 v%d, v%d, v%d, %s' % (t + 1, t, M + 10, sr(S_HIM, 2))); I('v_cndmask_b32 v%d, v%d, v%d, %s' % (u + 1, u, M + 10, sr(S_HIM, 2)))
        for j in range(0, 16, 2):
            sel = 'op_sel_hi:[1,0,0]' if j < 12 else 'op_sel:[0,0,1] op_sel_hi:[1,0,1]'
            I('v_pk_fma_f32 %s, %s, %s, %s %s' % (vr(EP + j, 2), vr(A + j, 2), vr(ST, 2), vr(t, 2), sel))
            I('v_pk_fma_f32 %s, %s, %s, %s %s neg_lo:[1,0,0] neg_hi:[1,0,0]' % (vr(EN + j, 2), vr(A + j, 2), vr(ST, 2), vr(u, 2), sel))
        for j in range(16): I('v_exp_f32 v%d, v%d' % (EP + j, EP + j)); I('v_exp_f32 v%d, v%d' % (EN + j, EN + j))
        sp, sn = M + 6, M + 8
        I('v_pk_add_f32 %s, %s, %s' % (vr(sp, 2), vr(EP, 2), vr(EP + 2, 2))); I('v_pk_add_f32 %s, %s, %s' % (vr(sn, 2), vr(EN, 2), vr(EN + 2, 2)))
        for j in range(4, 16, 2):
            I('v_pk_add_f32 %s, %s, %s' % (vr(sp, 2), vr(sp, 2), vr(EP + j, 2))); I('v_pk_add_f32 %s, %s, %s' % (vr(sn, 2), vr(sn, 2), vr(EN + j, 2)))
        I('v_add_f32 v%d, v%d, v%d' % (sp, sp, sp + 1)); I('v_add_f32 v%d, v%d, v%d' % (sn, sn, sn + 1))
        I('v_permlane32_swap_b32 v%d, v%d' % (sp, sn)); I('v_add_f32 v%d, v%d, v%d' % (t, sp, sn))
        if sreg is None:
            I('v_rcp_f32 v%d, v%d' % (t, t)); I('v_mov_b32 v%d, v%d' % (u, t)); I('v_permlane32_swap_b32 v%d, v%d' % (t, u))
            for j in range(0, 16, 2):
                I('v_pk_mul_f32 %s, %s, %s op_sel_hi:[1,0]' % (vr(EP + j, 2), vr(EP + j, 2), vr(t, 2)))
                I('v_pk_mul_f32 %s, %s, %s op_sel_hi:[1,0]' % (vr(EN + j, 2), vr(EN + j, 2), vr(u, 2)))
            for j in range(8):
                I('v_cvt_pk_bf16_f32 v%d, v%d, v%d' % (A + j, EP + 2 * j, EP + 2 * j + 1)); I('v_cvt_pk_bf16_f32 v%d, v%d, v%d' % (A + 8 + j, EN + 2 * j, EN + 2 * j + 1))
        else:
            I('v_mov_b32 v%d, v%d' % (u, t))
            for j in range(2): I('v_cvt_pk_bf16_f32 v%d, v%d, v%d' % (A + j, EP + 2 * j, EP + 2 * j + 1))
            I('v_permlane32_swap_b32 v%d, v%d' % (t, u)); I('v_rcp_f32 v%d, v%d' % (u, u))
            for j in range(2, 8): I('v_cvt_pk_bf16_f32 v%d, v%d, v%d' % (A + j, EP + 2 * j, EP + 2 * j + 1))
            I('v_mul_f32 v%d, v%d, v%d' % (u, u, t)); I('v_mov_b32 v%d, v%d' % (sreg, t))
            for j in range(0, 16, 2): I('v_pk_mul_f32 %s, %s, %s op_sel_hi:[1,0]' % (vr(EN + j, 2), vr(EN + j, 2), vr(u, 2)))
            for j in range(8): I('v_cvt_pk_bf16_f32 v%d, v%d, v%d' % (A + 8 + j, EN + 2 * j, EN + 2 * j + 1))

    def wphi_dma(self, n, head0_s):
        I = self.I; out = []
        I('s_mul_i32 s8, s%d, 1568' % head0_s); I('s_lshl_b32 s9, s%d, 10' % S_WAVE); I('s_add_u32 s8, s8, s9'); I('s_add_u32 s9, s9, %d' % L_WPHI)
        for i in range(n):
            I('s_add_u32 m0, s9, %d' % (8192 * i)); I('s_add_u32 s10, s8, %d' % (8192 * i))
            out.append(I('buffer_load_dwordx4 v%d, %s, s10 offen lds' % (VL16, sr(S_PHI, 4))))
        return out
    def wphi_read(self, nheads, hoff_s, WP):
        I = self.I; T = TMP + 9
        I('v_lshrrev_b32 v%d, 5, v%d' % (T, VLANE)); I('v_lshlrev_b32 v%d, 2, v%d' % (T, T)); I('v_bfe_u32 v%d, v%d, 2, 2' % (T + 1, VLANE)); I('v_add_u32 v%d, v%d, v%d' % (T, T, T + 1))
        I('v_mul_u32_u24 v%d, 56, v%d' % (T, T)); I('v_add_u32 v%d, s%d, v%d' % (T, hoff_s, T))
        I('v_bfe_u32 v%d, v%d, 4, 1' % (T + 1, VLANE)); I('v_lshlrev_b32 v%d, 2, v%d' % (T + 1, T + 1)); I('v_and_or_b32 v%d, v%d, 3, v%d' % (T + 1, VLANE, T + 1))
        I('v_min_u32 v%d, 6, v%d' % (T + 1, T + 1)); I('v_lshl_add_u32 v%d, v%d, 3, v%d' % (T, T + 1, T))
        for i in range(nheads):
            for s in range(2):
                for h in range(2):
                    I('ds_read_b64_tr_b16 %s, v%d offset:%d' % (ar(WP + 8 * i + 4 * s + 2 * h, 2), T, i * 1568 + (16 * s + 8 * h) * 56))

    def kv_common(self):
        I = self.I; g = self.g
        self.tagbase = 'k'
        self.srd(S_W, 18, 448 * 2688)
        I('s_lshl_b32 s8, s%d, 2' % S_IDX); I('s_lshr_b32 s9, 0xdb9630, s8'); I('s_and_b32 s9, s9, 15')
        I('s_lshr_b32 s10, 0x322333, s8'); I('s_and_b32 s10, s10, 15')
        I('s_mul_i32 s11, s9, 56'); I('s_and_b32 s%d, s11, -16' % S_WSO); I('s_and_b32 s11, s11, 8')
        I('s_mul_i32 s8, s10, 3'); I('s_add_u32 s8, s8, 1')
        I('v_cmp_lt_u32 vcc, 13, v7'); I('v_subrev_u32 v8, 14, v7'); I('v_cndmask_b32 v8, v7, v8, vcc'); I('v_min_u32 v8, s8, v8')
        I('v_mov_b32 v9, 896'); I('v_mov_b32 v10, 1792'); I('v_cndmask_b32 v9, v9, v10, vcc')
        I('v_mul_u32_u24 v6, 2688, v6'); I('v_add_u32 v6, v6, v9'); I('v_lshl_add_u32 v%d, v8, 4, v6' % DW)
        I('s_mov_b32 s0, s9'); I('s_mov_b32 s1, s10'); I('s_mov_b32 s%d, s11' % S_NONCE)
        dms = self.start_stream(2688)
        I('s_mul_i32 s10, s%d, 224' % S_CH); I('s_add_u32 s10, s10, s%d' % S_NONCE); I('s_add_u32 s10, s10, %d' % WPART)
        self.read_addrs(True)
        PW, HO, UA, VW, ZV = 48, 50, 51, 54, 58
        def kvx():
            I('s_mov_b32 s%d, s0' % S_H0); I('s_mov_b32 s%d, s1' % S_NH)
        def kvp():
            I('s_mov_b32 s%d, s%d' % (S_R0, S_H0))
            I('s_lshl_b32 s8, s%d, 13' % S_H0); I('s_lshl_b32 s9, s%d, 10' % S_WAVE); I('s_add_u32 s8, s8, s9'); I('s_add_u32 s96, s8, %d' % L.WS_KV)
            I('s_add_u32 s97, s96, 16384'); I('s_cmp_eq_u32 s%d, 3' % S_NH); I('s_cselect_b32 s97, s97, 0x7f000000')
            for i in range(4): I('v_mov_b32 v%d, 0' % (68 + i))
            for gp in post4(): g.extend(gp)
        self.pre_s1k = kvp
        def kvl():
            I('s_cmp_lg_u32 s%d, 0' % S_RB); I('s_cbranch_scc1 L_nozero')
            self.U('buffer_store_dwordx4 v[68:71], v%d, %s, s96 offen sc1' % (VL16, sr(S_WS, 4))); I('s_add_u32 s96, s96, 8192')
            self.U('buffer_store_dwordx4 v[68:71], v%d, %s, s96 offen sc1' % (VL16, sr(S_WS, 4)))
            self.U('buffer_store_dwordx4 v[68:71], v%d, %s, s97 offen sc1' % (VL16, sr(S_WS, 4))); I('s_nop 1')
            self.g.label('L_nozero')
        kv_pre = lambda: self.pre_loop(True, 8, kvx, kvl)
        rot = lambda i: [((i + cc) % 3, AW + i, 56 * ((i + cc) % 3)) for cc in range(3)]
        tiles = [dict(t=rot(i), cs=(i < 3)) for i in range(4)]
        self.bdma, self.bread = {}, {}; self.nslot = 5
        def pre2():
            pass
        def post2():
            with g.capture() as a:
                I('s_mov_b32 s8, %d' % L_WPHI)
                self.wphi_read(3, 8, 88)
            return [a]
        def post3():
            with g.capture() as a:
                I('s_or_b32 s8, s%d, s%d' % (S_RB, S_WAVE)); I('s_cmp_lg_u32 s8, 0'); I('s_cbranch_scc1 L_nozf')
                I('s_lshl_b32 s8, s%d, 7' % S_IDX); I('s_add_u32 s8, s8, %d' % (L.WS_KVZ + 0x4000))
                self.publish(8, TMP + 8).kind = 'untracked'
                self.g.label('L_nozf')
            return [a]
        self.kvr = (PW, HO, UA, VW, ZV)
        def post4():
            A, B, C = 64, 65, 66; out = []
            with g.capture() as a:
                I('v_and_b32 v%d, 31, v%d' % (A, VLANE)); I('v_lshlrev_b32 v%d, 6, v%d' % (A, A)); I('s_lshl_b32 s8, s%d, 11' % S_RT); I('v_add_u32 v%d, s8, v%d' % (A, A))
                I('v_bfe_u32 v%d, v%d, 1, 2' % (B, VLANE)); I('v_lshl_add_u32 v%d, v%d, 4, v%d' % (A, B, A))
                I('v_lshrrev_b32 v%d, 5, v%d' % (B, VLANE))
                I('v_lshl_add_u32 v%d, v%d, 13, v%d' % (PW, B, A)); I('s_lshl_b32 s9, s%d, 5' % S_CH); I('v_xor_b32 v%d, s9, v%d' % (PW, PW)); I('v_xor_b32 v%d, 16, v%d' % (PW + 1, PW))
                I('s_add_u32 s8, s8, %d' % L_V); I('v_add_u32 v%d, s8, v%d' % (HO, VL16))
                I('v_lshl_add_u32 v%d, v%d, 3, v%d' % (VW, B, A)); I('v_add_u32 v%d, %d, v%d' % (VW, L_V, VW))
                for q in range(1, 4): I('v_xor_b32 v%d, %d, v%d' % (VW + q, 16 * q, VW))
                I('v_lshlrev_b32 v%d, 10, v%d' % (UA + 2, B)); I('v_and_b32 v%d, 31, v%d' % (A, VLANE)); I('v_lshl_add_u32 v%d, v%d, 2, v%d' % (UA + 2, A, UA + 2))
            out.append(a)
            with g.capture() as a:
                I('v_lshrrev_b32 v%d, 5, v%d' % (A, VLANE)); I('v_bfe_u32 v%d, v%d, 2, 2' % (B, VLANE)); I('v_lshl_add_u32 v%d, v%d, 2, v%d' % (A, A, B))
                I('v_bfe_u32 v%d, v%d, 4, 1' % (B, VLANE)); I('v_bfe_u32 v%d, v%d, 1, 1' % (C, VLANE)); I('v_lshl_add_u32 v%d, v%d, 1, v%d' % (B, B, C))
                I('v_lshrrev_b32 v%d, 1, v%d' % (C, A)); I('v_xor_b32 v%d, v%d, v%d' % (B, B, C)); I('v_lshlrev_b32 v%d, 6, v%d' % (A, A)); I('v_lshl_add_u32 v%d, v%d, 4, v%d' % (A, B, A))
                I('v_and_b32 v%d, 1, v%d' % (B, VLANE)); I('v_lshl_add_u32 v%d, v%d, 3, v%d' % (A, B, A))
                I('s_lshl_b32 s10, s%d, 13' % S_WAVE); I('v_add_u32 v%d, s10, v%d' % (UA + 1, A))
                I('s_lshr_b32 s9, s%d, 1' % S_WAVE); I('s_lshl_b32 s10, s9, 13'); I('s_add_u32 s10, s10, %d' % L_V); I('v_add_u32 v%d, s10, v%d' % (UA, A))
                I('s_add_u32 s10, s9, s%d' % S_H0); I('s_lshl_b32 s10, s10, 13'); I('s_and_b32 s8, s%d, 1' % S_WAVE); I('s_lshl_b32 s8, s8, 7'); I('s_add_u32 s10, s10, s8')
                I('s_add_u32 s0, s10, %d' % L.WS_KV)
                I('s_cmp_lt_u32 s9, s%d' % S_NH); I('s_cselect_b32 s%d, 1, 0' % S_NH)
                I('s_lshl_b32 s8, s%d, 4' % S_IDX); I('s_add_u32 s8, s8, s%d' % S_RB); I('s_lshl_b32 s8, s8, 7'); I('s_add_u32 s1, s8, %d' % L.WS_KVZ)
                I('s_lshl_b32 s%d, s%d, 7' % (S_H0, S_IDX)); I('s_add_u32 s%d, s%d, %d' % (S_H0, S_H0, L.WS_KVZ + 0x4000)); I('v_mov_b32 v%d, 0' % ZV)
            out.append(a)
            return out
        kv_pre()
        def wpd():
            with g.capture() as a: self.wphi_dma(1, S_R0)
            return [a]
        self.pre_post = {2: wpd}
        hk = self.bhooks({4: post2, NST: post3})
        p6 = hk['post'][6]
        def post6():
            with g.capture() as a: self.poll_issue(ZV, S_H0, ZV + 1)
            return [a] + p6()
        hk['post'][6] = post6
        tl = [(c, CS, 448 * c) for c in range(3)]
        self.gemm(tiles, 2688, dms, 'k', hk, tl)
        self.finish_stats(tl, L.LOG2E, 'k', self.slot4_setup)
        I('s_cmp_eq_u32 s%d, 1' % S_CH); I('s_cbranch_scc1 L_kv_v')

    def kv_rest(self, tg, As, wr):
        I = self.I; g = self.g; PW, HO, U, VW, ZV = self.kvr
        self.poll_check('z' + tg, ZV, S_H0, ZV + 1)
        I('s_add_u32 s10, s0, 4096'); I('s_lshr_b32 s11, s%d, 1' % S_WAVE)
        D = ACC
        def unit():
            B = [80, 88, 96, 112]
            def rd(s):
                b = B[s % 4]
                for h in range(2):
                    I('ds_read_b64_tr_b16 %s, v%d offset:%d' % (vr(b + 2 * h, 2), U, (16 * s + 8 * h) * 64))
                    I('ds_read_b64_tr_b16 %s, v%d offset:%d' % (vr(b + 4 + 2 * h, 2), U + 1, (16 * s + 8 * h) * 64))
            for s in range(3): rd(s)
            for s in range(8):
                if s + 3 < 8: rd(s + 3)
                b = B[s % 4]
                I('v_mfma_f32_32x32x16_bf16 %s, %s, %s, %s' % (vr(D, 16), vr(b, 4), vr(b + 4, 4), vr(D, 16) if s else '0'))
        def atoms():
            out = []
            for r in range(15):
                with g.capture() as a:
                    if r == 14: I('s_mov_b32 exec_hi, 0')
                    for rr in ((r,) if r < 14 else (14, 15)):
                        d = (rr & 3) + 8 * (rr >> 2)
                        I('buffer_atomic_add_f32 v%d, v%d, %s, s%d offen offset:%d' % (D + rr, U + 2, sr(S_WS, 4), 0 if d < 16 else 10, (d % 16) * 256))
                    if r == 14: I('s_mov_b64 exec, -1')
                out.append(a)
            return out
        def pw(i): return [I('ds_write_b128 v%d, %s offset:%d' % (PW + q, vr(As[i] + 4 * q, 4), L_PHI + 16384 * i)) for q in range(2)]
        self.with_bg(lambda: self.half_units(As[:2], tg == 'v'), self.b_round1(), int(os.environ.get('KBG', '14')))
        pw(0); pw(1)
        I('s_waitcnt lgkmcnt(0)'); I('s_barrier')
        if tg == 'k':
            unit()
            self.with_bg(lambda: self.half_units(As[2:], False), atoms(), int(os.environ.get('ABG', '4')))
        else: self.half_units(As[2:], True)
        pw(2)
        I('s_waitcnt lgkmcnt(0)'); I('s_barrier')
        self.stamp('bb')
        if tg == 'v':
            I('s_cmp_eq_u32 s%d, 0' % S_NH); I('s_cbranch_scc1 L_nounitv'); I('s_setprio 3')
            unit()
            I('s_nop 7'); I('s_nop 4')
            for a in atoms():
                for x in a:
                    if x.kind == 'vstore': x.kind = 'untracked'
                g.extend(a)
        self.g.label('L_nounit%s' % tg)
        I('s_waitcnt vmcnt(0)')
        I('s_barrier')
        if True:
            I('s_cmp_lg_u32 s%d, 7' % S_WAVE); I('s_cbranch_scc1 L_nokf%s' % tg)
            self.publish(1, 96).kind = 'untracked'
            self.g.label('L_nokf%s' % tg)
            self.stamp('kvdone')
        I('s_setprio 0')
        for k in range(5, 9): g.extend(self.b_read(k))
        bulk = self.b_dma(4)
        for k in range(5, 9): bulk += self.b_dma(k + 5, needs=self.bread[k])
        KP = int(os.environ.get('KP', '3'))
        for t in bulk[:KP]: g.extend(t)
        self.p2_enter()
        pa = self.poll_issue(P2T + 1, S_FA, P2T)
        for t in bulk[KP:] + self.b_tasks(4, 5): g.extend(t)
        I('s_waitcnt lgkmcnt(0)'); I('s_nop 0', needs=[pa])
        I('s_branch L_p2')

    def kv_k(self):
        I = self.I; g = self.g; PW, HO, U, VW, ZV = self.kvr
        wr = []
        for i in range(3):
            N = 80 + 8 * i
            self.pack_k(ACC + 16 * i, N)
            wr += [I('ds_write_b128 v%d, %s offset:%d' % (HO, vr(N + 4 * q, 4), 8192 * i + 1024 * q)) for q in range(2)]
        I('s_barrier', needs=wr)
        for i in range(3): self.phi_mfma(ACC + 16 * i, 80 + 8 * i, 88 + 8 * i)
        self.kv_rest('k', [ACC, ACC + 16, ACC + 32], [])

    def kv_v(self):
        I = self.I; g = self.g; PW, HO, U, VW, ZV = self.kvr
        if 'vprio' in EXP: I('s_setprio 1')
        I('v_cndmask_b32 v%d, v%d, 0, %s' % (CS, ST + 1, sr(S_HIM, 2))); I('v_cndmask_b32 v%d, 0, 1.0, %s' % (CS + 1, sr(S_HIM, 2)))
        PV = [88, 96, 112]
        def vpath(i):
            A = ACC + 16 * i
            for j in range(0, 12, 2): I('v_pk_mul_f32 %s, %s, %s op_sel:[0,1] op_sel_hi:[1,1]' % (vr(A + j, 2), vr(A + j, 2), vr(ST, 2)))
            for j in (12, 14): I('v_pk_fma_f32 %s, %s, %s, %s op_sel:[0,0,1] op_sel_hi:[1,0,1]' % (vr(A + j, 2), vr(A + j, 2), vr(CS, 2), vr(CS, 2)))
            for j in range(8): I('v_cvt_pk_bf16_f32 v%d, v%d, v%d' % (PV[i] + j, A + 2 * j, A + 2 * j + 1))
        vpath(0); vpath(1)
        I('s_barrier')
        rd = [I('ds_read_b128 %s, v%d offset:%d' % (vr(64 + 8 * i + 4 * q, 4), HO, 8192 * i + 1024 * q)) for i in range(3) for q in range(2)]
        vpath(2)
        wr = []
        for i in range(3):
            self.phi_mfma(ACC + 16 * i, 64 + 8 * i, 88 + 8 * i)
            wr += [I('ds_write_b64 v%d, %s offset:%d' % (VW + q, vr(PV[i] + 2 * q, 2), 8192 * i), needs=rd[2 * i:2 * i + 2]) for q in range(4)]
        self.kv_rest('v', [ACC, ACC + 16, ACC + 32], wr)
    _uid = 0
    def uid(self):
        K._uid += 1
        return str(K._uid)

    def q(self):
        I = self.I; g = self.g
        self.tagbase = 'q'
        CR = lambda i: 16 + 4 * i if i < 12 else 32 + 4 * i
        I('s_lshl_b32 s8, s%d, 1' % S_RB); I('s_add_u32 s8, s8, s%d' % S_IDX); I('s_lshl_b32 s0, s%d, 5' % S_WAVE); I('s_add_u32 s0, s0, s8')
        I('s_cmp_ge_u32 s0, 196'); I('s_cbranch_scc1 L_nocl')
        I('s_lshr_b32 s9, s0, 2'); I('s_mov_b32 s1, 2688'); I('s_cmp_lt_u32 s9, 28'); I('s_cselect_b64 s[10:11], s[26:27], s[18:19]'); I('s_cselect_b32 s1, 3584, s1'); I('s_cselect_b32 s8, 0, 28')
        I('s_sub_u32 s9, s9, s8'); I('s_lshl_b32 s9, s9, 7'); I('s_and_b32 s8, s0, 3'); I('s_mul_i32 s8, s8, 112'); I('s_mul_i32 s8, s8, s1'); I('s_add_u32 s9, s9, s8')
        I('v_lshrrev_b32 v8, 3, v0'); I('v_mul_lo_u32 v8, v8, s1'); I('v_and_b32 v9, 7, v0'); I('v_lshl_add_u32 v8, v9, 4, v8'); I('v_add_u32 v8, s9, v8'); I('s_lshl_b32 s8, s1, 3')
        for i in range(14):
            self.U('global_load_dwordx4 %s, v8, s[10:11]' % vr(CR(i), 4))
            if i < 13: I('v_add_u32 v8, s8, v8')
        self.g.label('L_nocl')
        self.srd(S_W, 18, 448 * 2688)
        I('v_mul_u32_u24 v6, 2688, v6'); I('v_lshl_add_u32 v%d, v7, 4, v6' % DW)
        I('s_mul_i32 s%d, s%d, 448' % (S_WSO, S_IDX))
        dms = {}
        I('s_mul_i32 s10, s%d, 224' % S_CH); I('s_add_u32 s10, s10, %d' % WPART)
        self.read_addrs(True)
        def qcs():
            A = 88
            I('s_mov_b32 s8, 0x00003f80'); I('s_mov_b32 s9, 0x3f800000')
            I('s_cmp_ge_u32 s0, 196'); I('s_cbranch_scc1 L_nocs')
            for i in range(14):
                if i % 2 == 0: self.U('s_waitcnt vmcnt(%d)' % (12 - i + (i > 6)))
                if i == 6: self.nonce_issue().kind = 'untracked'
                for j in range(4):
                    I('v_dot2_f32_bf16 v%d, v%d, s8, %s' % (A + 2 * j, CR(i) + j, 'v%d' % (A + 2 * j) if i else '0'))
                    I('v_dot2_f32_bf16 v%d, v%d, s9, %s' % (A + 2 * j + 1, CR(i) + j, 'v%d' % (A + 2 * j + 1) if i else '0'))
            self.U('s_waitcnt vmcnt(0)')
            self.nonce_get('q0')
            for j in range(4): I('v_permlane32_swap_b32 v%d, v%d' % (A + j, A + 4 + j))
            for j in range(4): I('v_add_f32 v%d, v%d, v%d' % (A + j, A + j, A + 4 + j))
            for j in range(2): I('v_permlane16_swap_b32 v%d, v%d' % (A + j, A + 2 + j))
            for j in range(2): I('v_add_f32 v%d, v%d, v%d' % (A + j, A + j, A + 2 + j))
            for j in range(2): I('v_add_f32_dpp v%d, v%d, v%d row_ror:8 row_mask:0xf bank_mask:0xf' % (A + j, A + j, A + j))
            I('v_and_b32 v%d, 8, v0' % (A + 2)); I('v_cmp_ne_u32 vcc, 0, v%d' % (A + 2)); I('v_cndmask_b32 v%d, v%d, v%d, vcc' % (A, A, A + 1))
            I('v_cvt_pk_bf16_f32 v%d, v%d, v%d' % (A + 1, A, A)); I('v_and_b32 v%d, s%d, v%d' % (A + 1, S_MASK, A + 1))
            I('v_sub_f32 v%d, v%d, v%d' % (A + 1, A, A + 1)); I('v_cvt_pk_bf16_f32 v%d, v%d, v%d' % (A, A + 1, A))
            I('v_and_b32 v%d, 7, v0' % (A + 1)); I('v_lshlrev_b32 v%d, 3, v%d' % (A + 1, A + 1)); I('v_lshrrev_b32 v%d, 3, v0' % (A + 2)); I('v_add_u32 v%d, v%d, v%d' % (A + 1, A + 1, A + 2))
            I('v_lshlrev_b32 v%d, 4, v%d' % (A + 1, A + 1))
            I('s_lshr_b32 s8, s0, 2'); I('s_lshl_b32 s8, s8, 10'); I('s_and_b32 s9, s0, 3'); I('s_lshl_b32 s9, s9, 2'); I('s_add_u32 s8, s8, s9'); I('s_add_u32 s8, s8, %d' % L.WS_CSG)
            self.U('buffer_store_dword v%d, v%d, %s, s8 offen sc1' % (A, A + 1, sr(S_WS, 4)))
            self.g.label('L_nocs')
            dms.update(self.start_stream(2688))
            I('s_waitcnt vmcnt(7)')
            I('s_barrier')
            I('s_cmp_lg_u32 s%d, 0' % S_WAVE); I('s_cbranch_scc1 L_nocf')
            I('s_lshl_b32 s8, s0, 7'); I('s_add_u32 s8, s8, %d' % L.WS_CSF)
            self.publish(8, A).kind = 'untracked'
            self.g.label('L_nocf')
            self.stamp('cspub')
        self.pre_s1 = qcs
        self.pre_loop(False, 14, lambda: I('s_lshl_b32 s%d, s%d, 3' % (S_H0, S_IDX)))
        self.pre_s1 = None
        def wpd():
            with g.capture() as a: self.wphi_dma(2, S_H0)
            return [a]
        self.pre_post = {2: wpd}
        tiles = [dict(t=[((i + cc) % 4, AW + i, 56 * ((i + cc) % 4)) for cc in range(4)], cs=True) for i in range(4)]
        def post2():
            with g.capture() as a:
                I('s_mul_i32 s8, s%d, %d' % (S_CH, 4 * 1568)); I('s_add_u32 s8, s8, %d' % L_WPHI)
                self.wphi_read(4, 8, 0)
            return [a]
        tl = [(c, CS, 448 * c) for c in range(4)]
        self.gemm(tiles, 2688, dms, 'q', dict(post={4: post2}), tl)
        self.finish_stats(tl, L.LOG2E, 'q')
        for i in range(4):
            self.pack_k(ACC + 16 * i, 80 + 8 * (i & 1)); self.phi_mfma(ACC + 16 * i, 80 + 8 * (i & 1), 8 * i)
        for i in range(4): self.softmax_unit(ACC + 16 * i, sreg=124 + i)
        self.stamp('soft')
        if 'noq' in EXP: return
        T = TMP
        if 'lat' in EXP:
            I('s_lshl_b32 s8, s2, 3'); I('s_add_u32 s8, s8, s%d' % S_WAVE); I('s_lshl_b32 s8, s8, 9'); I('s_add_u32 s8, s8, %d' % (15 << 20)); I('v_mov_b32 v%d, 0' % T)
            for rep_ in range(2):
                I('buffer_load_dword v%d, v%d, %s, s8 offen offset:%d sc1' % (T + 1, T, sr(S_WS, 4), 256 * rep_)); I('s_waitcnt vmcnt(0)'); self.stamp('miss')
                I('buffer_load_dword v%d, v%d, %s, s8 offen offset:%d sc1' % (T + 1, T, sr(S_WS, 4), 256 * rep_)); I('s_waitcnt vmcnt(0)'); self.stamp('l2hit')
                I('buffer_store_dword v%d, v%d, %s, s8 offen offset:%d sc1' % (T + 1, T, sr(S_WS, 4), 128 + 256 * rep_)); I('s_waitcnt vmcnt(0)'); self.stamp('st')
            self.nst = 15
        if 'qpf' in EXP:
            I('s_and_b32 s8, s2, 7'); I('s_lshl_b32 s8, s8, 2'); I('s_bfe_u32 s9, s2, 0x20003'); I('s_add_u32 s8, s8, s9')
            I('s_lshl_b32 s9, s8, 12'); I('s_lshl_b32 s10, s%d, 8' % S_WAVE); I('s_add_u32 s9, s9, s10'); I('s_add_u32 s11, s9, %d' % L.WS_FLAG)
            I('v_and_b32 v%d, 1, v%d' % (T, VLANE)); I('v_lshlrev_b32 v%d, 11, v%d' % (T, T)); I('v_and_b32 v%d, 2, v%d' % (T + 1, VLANE)); I('v_lshl_add_u32 v%d, v%d, 6, v%d' % (T, T + 1, T))
            I('s_mul_i32 s8, s8, 224'); I('s_mul_i32 s9, s%d, 14' % S_WAVE); I('s_add_u32 s8, s8, s9'); I('s_lshl_b32 s10, s8, 10'); I('s_add_u32 s9, s10, %d' % (112 * 1024))
            I('v_lshlrev_b32 v%d, 7, v%d' % (T + 2, VLANE)); I('v_add_u32 v%d, 8192, v%d' % (T + 3, T + 2))
            self.g.label('L_qpf')
            self.U('buffer_load_dword v%d, v%d, %s, s11 offen sc1' % (T + 1, T, sr(S_WS, 4))); self.U('s_waitcnt vmcnt(0)')
            I('v_cmp_ne_u32 vcc, s%d, v%d' % (S_NONCE, T + 1)); I('s_nop 1'); I('s_cbranch_vccz L_qpfd')
            self.spin_tail('L_qpf', QSL)
            self.g.label('L_qpfd')
            for so in (10, 9): I('buffer_load_dword a100, v%d, %s, s%d offen' % (T + 2, sr(S_WS, 4), so)).dst = set()
            I('s_mov_b32 exec_hi, 0xffff')
            for so in (10, 9): I('buffer_load_dword a100, v%d, %s, s%d offen' % (T + 3, sr(S_WS, 4), so)).dst = set()
            I('s_mov_b64 exec, -1')
        if ATOM:
            T = TMP
            I('v_lshrrev_b32 v%d, 4, v%d' % (T, VLANE)); I('s_lshl_b32 s8, s%d, 1' % S_IDX); I('v_add_u32 v%d, s8, v%d' % (T, T))
            I('s_mul_i32 s8, s%d, 3' % S_IDX); I('s_add_u32 s8, s8, 2'); I('v_min_u32 v%d, s8, v%d' % (T, T))
            I('v_and_b32 v%d, 15, v%d' % (T + 1, VLANE)); I('v_lshl_add_u32 v%d, v%d, 4, v%d' % (T, T, T + 1)); I('v_lshlrev_b32 v%d, 7, v%d' % (T, T))
            I('s_mov_b32 s11, %d' % L.WS_KVZ)
            I('v_lshrrev_b32 v%d, 3, v%d' % (T + 2, VLANE)); I('v_and_b32 v%d, 7, v%d' % (T + 3, VLANE)); I('v_lshlrev_b32 v%d, 4, v%d' % (T + 4, T + 3)); I('v_lshl_add_u32 v%d, v%d, 8, v%d' % (T + 4, T + 2, T + 4))
            I('s_add_u32 s8, s%d, s%d' % (S_H0, S_WAVE)); I('s_lshl_b32 s8, s8, 13'); I('s_add_u32 s0, s8, %d' % L.WS_KV); I('s_add_u32 s1, s0, 4096')
            I('v_lshrrev_b32 v%d, 1, v%d' % (T + 5, T + 3)); I('v_lshlrev_b32 v%d, 10, v%d' % (T + 5, T + 5)); I('v_and_b32 v%d, 1, v%d' % (T + 3, T + 3)); I('v_lshl_add_u32 v%d, v%d, 3, v%d' % (T + 5, T + 3, T + 5))
            I('s_lshl_b32 s8, s%d, 12' % S_WAVE); I('v_add_u32 v%d, s8, v%d' % (T + 5, T + 5))
            WA4 = 112
            for i in range(4):
                a, b, c_ = T + 6, T + 7, T + 3
                I('v_add_u32 v%d, %d, v%d' % (a, 8 * i, T + 2))
                I('v_cmp_lt_u32 vcc, 13, v%d' % a); I('v_subrev_u32 v%d, 14, v%d' % (b, a)); I('v_cndmask_b32 v%d, v%d, v%d, vcc' % (b, a, b)); I('v_cndmask_b32 v%d, 0, 4, vcc' % c_)
                if i == 3:
                    I('v_cmp_lt_u32 vcc, 27, v%d' % a); I('v_and_b32 v%d, 1, v%d' % (T + 8, a)); I('v_lshlrev_b32 v%d, 2, v%d' % (T + 8, T + 8)); I('v_cndmask_b32 v%d, v%d, v%d, vcc' % (c_, c_, T + 8))
                    I('v_bfe_u32 v%d, v%d, 1, 1' % (T + 8, a)); I('v_add_u32 v%d, 14, v%d' % (T + 8, T + 8)); I('v_cndmask_b32 v%d, v%d, v%d, vcc' % (b, b, T + 8))
                I('v_and_or_b32 v%d, v%d, 3, v%d' % (c_, b, c_)); I('v_lshrrev_b32 v%d, 2, v%d' % (b, b)); I('v_lshl_add_u32 v%d, v%d, 3, v%d' % (c_, b, c_))
                I('v_lshl_add_u32 v%d, v%d, 4, v%d' % (WA4 + i, c_, T + 5))
            I('s_lshl_b32 s8, s%d, 14' % S_CH); I('v_add_u32 v%d, s8, v%d' % (T + 2, VL16))
            self.q_scalars()
            I('s_cmp_lg_u32 s%d, 0' % S_WAVE); I('s_cbranch_scc1 L_polldkv')
            self.g.label('L_pollkv')
            self.U('buffer_load_dword v64, v%d, %s, s11 offen sc1' % (T, sr(S_WS, 4))); self.U('s_waitcnt vmcnt(0)')
            I('v_cmp_ne_u32 vcc, s%d, v64' % S_NONCE); I('s_nop 1'); I('s_cbranch_vccz L_polldkv')
            self.spin_tail('L_pollkv', QSL)
            self.g.label('L_polldkv')
            I('s_barrier')
            self.stamp('kvok')
            for i in range(8):
                I('buffer_load_dwordx4 %s, v%d, %s, s%d offen offset:%d sc1' % (vr(64 + 4 * i, 4), T + 4, sr(S_WS, 4), (i >> 1) & 1, (i & 1) * 2048 + (i >> 2) * 128))
            wr = []
            for i in range(8):
                I('v_cvt_pk_bf16_f32 v%d, v%d, v%d' % (64 + 4 * i, 64 + 4 * i, 65 + 4 * i)); I('v_cvt_pk_bf16_f32 v%d, v%d, v%d' % (65 + 4 * i, 66 + 4 * i, 67 + 4 * i))
                wr.append(I('ds_write_b64 v%d, %s offset:%d' % (WA4 + (i & 3), vr(64 + 4 * i, 2), 512 * (i >> 2))))
            self.stamp('kvld')
            qbar = lambda: (I('s_barrier', needs=wr), [I('ds_read_b128 %s, v%d offset:%d' % (ar(32 + 16 * i + 4 * s, 4), T + 2, 4096 * i + 1024 * s)) for i in range(4) for s in range(4)])
        else:
            I('v_bfe_u32 v%d, v%d, 3, 2' % (T + 2, VLANE)); I('v_lshlrev_b32 v%d, 2, v%d' % (T + 2, T + 2)); I('v_and_or_b32 v%d, v%d, 3, v%d' % (T + 2, VLANE, T + 2))
            I('v_bfe_u32 v%d, v%d, 2, 1' % (T + 3, VLANE)); I('v_mul_u32_u24 v%d, 14, v%d' % (T + 3, T + 3)); I('v_add_u32 v%d, v%d, v%d' % (T + 3, T + 3, T + 2))
            I('v_cmp_gt_u32 vcc, 14, v%d' % (T + 2)); I('v_cndmask_b32 v%d, 28, v%d, vcc' % (T + 3, T + 3))
            I('v_and_b32 v%d, 32, v%d' % (T + 2, VLANE)); I('v_lshlrev_b32 v%d, 6, v%d' % (T + 2, T + 2)); I('v_lshl_add_u32 v%d, v%d, 4, v%d' % (T + 2, T + 3, T + 2))
            I('s_lshl_b32 s8, s%d, 14' % S_CH); I('v_add_u32 v%d, s8, v%d' % (T + 2, T + 2))
            I('v_and_b32 v%d, 15, v%d' % (T, VLANE)); I('v_lshlrev_b32 v%d, 7, v%d' % (T, T))
            I('v_and_b32 v%d, 7, v%d' % (T + 3, VLANE)); I('v_lshlrev_b32 v%d, 7, v%d' % (T + 3, T + 3))
            I('s_cmp_lg_u32 s%d, 0' % S_CH); I('s_cbranch_scc1 L_noreduce')
            I('s_lshl_b32 s8, s%d, 1' % S_RB); I('s_add_u32 s8, s8, s%d' % S_IDX); I('s_lshl_b32 s8, s8, 2'); I('s_add_u32 s11, s8, s%d' % S_RT)
            I('s_lshl_b32 s0, s11, 14'); I('s_add_u32 s0, s0, %d' % L.WS_SL)
            I('s_mov_b32 s8, 0x22111000'); I('s_mov_b32 s9, 0x55544332'); I('s_lshl_b32 s10, s%d, 2' % S_RB); I('s_lshr_b64 s[8:9], s[8:9], s10'); I('s_and_b32 s8, s8, 15')
            I('s_lshl_b32 s8, s8, 11'); I('s_add_u32 s1, s8, %d' % L.WS_KVZ)
            self.g.label('L_red_poll')
            self.U('buffer_load_dword v%d, v%d, %s, s1 offen sc1' % (T + 1, T, sr(S_WS, 4))); self.U('s_waitcnt vmcnt(0)')
            I('v_cmp_ne_u32 vcc, s%d, v%d' % (S_NONCE, T + 1)); I('s_nop 1'); I('s_cbranch_vccz L_red_load')
            self.spin_tail('L_red_poll', QSL)
            self.g.label('L_red_load')
            R = 64
            def src(i): return (64 + 4 * i) if i < 15 else T + 4
            for i in range(16):
                if i % 4 == 0: I('s_add_u32 s8, s0, %d' % (1024 * i))
                I('buffer_load_dwordx4 %s, v%d, %s, s8 offen offset:%d' % (vr(src(i), 4), VL16, sr(S_WS, 4), 1024 * (i % 4)))
            I('s_lshl_b32 s8, s11, 9'); I('s_add_u32 s8, s8, %d' % L.WS_KF); I('s_lshl_b32 s9, s11, 7'); I('s_add_u32 s9, s9, %d' % L.WS_KVD)
            for i in range(2, 16):
                for j in (0, 2): I('v_pk_add_f32 %s, %s, %s' % (vr(R + 4 * (i & 1) + j, 2), vr(R + 4 * (i & 1) + j, 2), vr(src(i) + j, 2)))
            for j in (0, 2): I('v_pk_add_f32 %s, %s, %s' % (vr(R + j, 2), vr(R + j, 2), vr(R + 4 + j, 2)))
            I('v_cvt_pk_bf16_f32 v68, v64, v65'); I('v_cvt_pk_bf16_f32 v69, v66, v67')
            I('v_mov_b32 v72, v68'); I('v_mov_b32 v73, v69')
            I('v_permlane32_swap_b32 v72, v70'); I('v_permlane32_swap_b32 v73, v71')
            I('s_mov_b32 exec_hi, 0')
            I('buffer_store_dwordx4 v[68:71], v%d, %s, s8 offen sc1' % (VL16, sr(S_WS, 4)))
            I('s_mov_b64 exec, -1')
            self.stamp('red')
            I('s_waitcnt vmcnt(0)')
            self.publish(9, 72).kind = 'untracked'
            self.g.label('L_noreduce')
            I('s_add_u32 s10, s%d, s%d' % (S_H0, S_WAVE)); I('s_lshl_b32 s11, s10, 10'); I('s_add_u32 s11, s11, %d' % L.WS_KVD)
            I('s_lshl_b32 s10, s10, 12'); I('s_add_u32 s10, s10, %d' % L.WS_KF); I('s_lshl_b32 m0, s%d, 12' % S_WAVE)
            self.g.label('L_pollkv')
            self.U('buffer_load_dword v64, v%d, %s, s11 offen sc1' % (T + 3, sr(S_WS, 4))); self.U('s_waitcnt vmcnt(0)')
            I('v_cmp_ne_u32 vcc, s%d, v64' % S_NONCE); I('s_nop 1'); I('s_cbranch_vccz L_polldkv')
            self.spin_tail('L_pollkv', QSL)
            self.g.label('L_polldkv')
            self.nst = 7
            self.stamp('kvok')
            dm = [I('buffer_load_dwordx4 v%d, %s, s10 offen offset:%d lds' % (VL16, sr(S_WS, 4), 1024 * i)) for i in range(4)]
            qbar = lambda: (I('s_barrier', needs=dm), [I('ds_read_b128 %s, v%d offset:%d' % (ar(32 + 16 * i + 4 * sf, 4), T + 2, 4096 * i + 512 * sf)) for i in range(4) for sf in range(4)])
        qbar()
        N = [64, 80, ACC, ACC + 16]; O = 96
        def ost(f): I('buffer_store_dwordx4 %s, v%d, %s, s%d offen offset:%d sc1' % (vr(O + 4 * f, 4), VL16, sr(S_WS, 4), 20 if f < 4 else 21, (f % 4) * 1024))
        def mm(i):
            for s in range(4):
                I('v_mfma_f32_32x32x16_bf16 %s, %s, %s, %s' % (vr(N[i], 16), ar(32 + 16 * i + 4 * s, 4), vr(ACC + 16 * i + 4 * s, 4), vr(N[i], 16) if s else '0'))
        done = 0
        mm(0); mm(1)
        for i in range(4):
            with g.capture() as fin: self.o_fin(N[i], O + 7 * i, 124 + i)
            if i + 2 < 4:
                with g.capture() as m4: mm(i + 2)
                k = len(fin) // 4
                for j in range(4): g.extend([m4[j]] + fin[j * k:(j + 1) * k if j < 3 else None])
            else: g.extend(fin)
            while 4 * (done + 1) <= 7 * (i + 1): ost(done); done += 1
        self.stamp('ocomp')
        I('s_waitcnt vmcnt(0)')
        self.publish(22, TMP)
        self.stamp('opub')
        I('s_waitcnt vmcnt(0)')
    def q_scalars(self):
        I = self.I
        I('s_lshl_b32 s8, s%d, 2' % S_RB); I('s_add_u32 s10, s8, s%d' % S_RT); I('s_mul_i32 s8, s10, 28'); I('s_mul_i32 s9, s%d, 14' % S_IDX); I('s_add_u32 s8, s8, s9')
        I('s_mul_i32 s9, s%d, 7' % S_CH); I('s_add_u32 s8, s8, s9'); I('s_lshl_b32 s8, s8, 10'); I('s_add_u32 s20, s8, %d' % L.WS_O); I('s_add_u32 s21, s20, 4096')
        I('s_lshl_b32 s8, s10, 1'); I('s_add_u32 s8, s8, s%d' % S_IDX)
        I('s_lshl_b32 s8, s8, 1'); I('s_add_u32 s8, s8, s%d' % S_CH); I('s_lshl_b32 s8, s8, 7'); I('s_add_u32 s22, s8, %d' % L.WS_FO)
    def o_fin(self, N, O, sreg):
        I = self.I; t = TMP + 8
        I('v_fmac_f32 v%d, %s, v%d' % (N + 14, f32(1e-6), sreg)); I('v_rcp_f32 v%d, v%d' % (t, N + 14))
        for j in range(14): I('v_mul_f32 v%d, v%d, v%d' % (N + j, N + j, t))
        for j in range(7): I('v_cvt_pk_bf16_f32 v%d, v%d, v%d' % (O + j, N + 2 * j, N + 2 * j + 1))

    def p2_pre(self):
        I = self.I; g = self.g; A, B, C = 64, 65, 66; out = []
        def st(i, r): I('v_accvgpr_write_b32 a%d, v%d' % (STASH + i, r))
        with g.capture() as a:
            I('s_lshl_b32 s8, s%d, 1' % S_RG)
            I('s_mul_i32 s%d, s8, 112' % S_A0); I('s_mul_i32 s9, s%d, 14' % S_WAVE); I('s_add_u32 s%d, s%d, s9' % (S_A0, S_A0)); I('s_lshl_b32 s%d, s%d, 10' % (S_A0, S_A0))
            I('s_add_u32 s%d, s%d, %d' % (S_A1, S_A0, 112 * 1024))
            I('s_bfe_u32 s9, s%d, 0x10001' % S_WAVE); I('s_add_u32 s10, s8, s9'); I('s_mul_i32 s%d, s10, 28' % S_OSO); I('s_mul_i32 s9, s%d, 14' % S_CH); I('s_add_u32 s%d, s%d, s9' % (S_OSO, S_OSO))
            I('s_lshl_b32 s10, s10, 1'); I('s_add_u32 s10, s10, s%d' % S_CH); I('s_lshl_b32 s10, s10, 8'); I('s_add_u32 s%d, s10, %d' % (S_FO, L.WS_FO))
            pass; I('s_lshl_b32 s%d, s%d, 10' % (S_OSO, S_OSO))
            I('s_add_u32 s%d, s%d, %d' % (S_OSO, S_OSO, L.WS_O))
            I('v_lshrrev_b32 v%d, 3, v%d' % (A, VLANE)); I('v_mul_u32_u24 v%d, 896, v%d' % (A, A)); I('v_and_b32 v%d, 7, v%d' % (B, VLANE)); I('v_lshl_add_u32 v%d, v%d, 4, v%d' % (A, B, A))
            I('v_and_b32 v%d, 1, v%d' % (B, B)); I('v_lshlrev_b32 v%d, 7, v%d' % (B, B)); st(1, A); st(2, B)
        out.append(a)
        with g.capture() as a:
            I('s_lshl_b32 s9, s%d, 3' % S_RG); I('s_add_u32 s9, s9, s%d' % S_WAVE); I('s_mul_i32 s9, s9, %d' % (8 * 896)); I('s_lshl_b32 s8, s%d, 7' % S_CG); I('s_add_u32 s%d, s9, s8' % S_XO)
            I('s_lshl_b32 s8, s%d, 12' % S_RG); I('s_lshl_b32 s9, s%d, 8' % S_WAVE); I('s_add_u32 s9, s9, s8'); I('s_add_u32 s%d, s9, %d' % (S_FA, L.WS_FLAG))
            I('v_and_b32 v%d, 1, v%d' % (A, VLANE)); I('v_lshlrev_b32 v%d, 11, v%d' % (A, A)); I('v_and_b32 v%d, 2, v%d' % (B, VLANE)); I('v_lshl_add_u32 v%d, v%d, 6, v%d' % (A, B, A)); st(0, A)
        out.append(a)
        with g.capture() as a:
            I('v_lshrrev_b32 v%d, 5, v%d' % (C, VLANE)); I('v_bfe_u32 v%d, v%d, 3, 1' % (A, VLANE)); I('v_xor_b32 v%d, v%d, v%d' % (A, A, C))
            I('v_mul_u32_u24 v%d, 14, v%d' % (B, C)); I('v_bfe_u32 v%d, v%d, 2, 2' % (C, VLANE)); I('v_add_u32 v%d, v%d, v%d' % (B, B, C))
            I('v_lshlrev_b32 v%d, 7, v%d' % (B, B)); I('v_lshl_add_u32 v%d, v%d, 6, v%d' % (A, A, B))
            I('v_and_b32 v%d, 3, v%d' % (B, VLANE)); I('v_lshl_add_u32 v%d, v%d, 3, v%d' % (A, B, A))
            I('v_and_b32 v%d, 16, v%d' % (B, VLANE)); I('v_lshl_add_u32 v%d, v%d, 1, v%d' % (A, B, A))
            I('s_and_b32 s9, s%d, 1' % S_WAVE); I('s_lshl_b32 s9, s9, 6'); I('v_xor_b32 v%d, s9, v%d' % (A, A))
            I('s_mul_i32 s9, s%d, %d' % (S_CH, 224 * 128)); I('v_add_u32 v%d, s9, v%d' % (A, A))
            I('v_xor_b32 v%d, 64, v%d' % (B, A)); st(3, A); st(4, B)
            I('v_add_u32 v%d, %d, v%d' % (B, 14 * 128, B)); I('v_and_b32 v%d, 8, v%d' % (C, VLANE)); I('v_cmp_eq_u32 vcc, 0, v%d' % C); I('v_cndmask_b32 v%d, v%d, v%d, vcc' % (B, B, A)); st(5, B)
        out.append(a)
        return out
    def p2_enter(self):
        T = P2T
        for i, r in enumerate((T + 1, T + 2, T + 3, T + 8, T + 9, T + 10)): self.I('v_accvgpr_read_b32 v%d, a%d' % (r, STASH + i))

    def phase2(self):
        I = self.I; g = self.g; T = P2T
        XO, XR, WA = T + 2, T + 4, T + 8
        self.nst = 7
        if 'start' in EXP or 'stg' in EXP: self.nst = 15
        self.poll_check('A', T + 1, S_FA, T)
        self.stamp('hok')
        RING = 64; NR = 15
        self.bdma = {k: [] for k in range(14)}
        def load(n):
            k, a = divmod(n, 2); r = RING + 4 * (n % NR); base = S_A1 if a else S_A0
            I('buffer_load_dwordx4 %s, v%d, %s, s%d offen offset:%d' % (vr(r, 4), VL16, sr(S_WS, 4), base, (k % 4) * 1024))
            if k % 4 == 3: I('s_add_u32 s%d, s%d, 4096' % (base, base))
        def wo_read(kk, dst):
            G, f = divmod(kk, 7)
            for pp in range(2):
                p = 4 * f + 2 * pp; hl = 4 * G + p // 7; i = p % 7
                areg = WA + 2 if i == 6 else WA + (i & 1)
                I('ds_read_b64_tr_b16 %s, v%d offset:%d' % (ar(dst + 2 * pp, 2), areg, L_WO + (28 * hl + 2 * i) * 128))
        EWB, SWB, ORD, GRD, SRD_ = 124, 142, 126, 127, 143
        def tail_addr():
            A, B = XR, XR + 1
            I('v_and_b32 v%d, 31, v%d' % (A, VLANE)); I('v_lshlrev_b32 v%d, 7, v%d' % (A, A)); I('v_and_b32 v%d, 7, v%d' % (B, VLANE)); I('v_lshl_add_u32 v%d, v%d, 4, v%d' % (A, B, A))
            I('v_lshrrev_b32 v%d, 5, v%d' % (B, VLANE)); I('v_lshl_add_u32 v%d, v%d, 3, v%d' % (A, B, A))
            I('v_add_u32 v%d, s%d, v%d' % (EWB, S_STA, A))
            I('s_lshl_b32 s8, s%d, 13' % S_CH); I('s_bfe_u32 s9, s%d, 0x10001' % S_WAVE); I('s_lshl_b32 s10, s9, 12'); I('s_add_u32 s8, s8, s10'); I('s_add_u32 s8, s8, %d' % L_XS)
            I('v_add_u32 v%d, s8, v%d' % (SWB, A)); I('s_and_b32 s8, s%d, 1' % S_WAVE); I('s_lshl_b32 s8, s8, 6'); I('v_xor_b32 v%d, s8, v%d' % (SWB, SWB))
            I('v_lshrrev_b32 v%d, 3, v%d' % (A, VLANE)); I('v_and_b32 v%d, 7, v%d' % (B, VLANE)); I('v_xor_b32 v%d, v%d, v%d' % (B, B, A))
            I('v_lshlrev_b32 v%d, 7, v%d' % (A, A)); I('v_lshl_add_u32 v%d, v%d, 4, v%d' % (A, B, A)); I('s_lshl_b32 s8, s%d, 10' % S_WAVE); I('s_add_u32 s8, s8, %d' % L_XS); I('v_add_u32 v%d, s8, v%d' % (SRD_, A))
            I('s_lshl_b32 s8, s%d, 10' % S_RT); I('s_lshl_b32 s9, s%d, 15' % S_CH); I('s_add_u32 s8, s8, s9'); I('s_add_u32 s8, s8, %d' % L_STA); I('v_add_u32 v%d, s8, v%d' % (GRD, A))
            I('s_add_u32 s25, s%d, 4096' % S_OSO); I('s_add_u32 s28, s%d, 8192' % S_OSO); I('s_add_u32 s29, s%d, 12288' % S_OSO)
            I('s_mov_b32 s10, 0x00003f80'); I('s_mov_b32 s11, 0x3f800000'); I('s_mov_b32 s26, %s' % f32(-1.0 / L.LOG2E)); I('s_mov_b32 s27, s26')
        for n in range(NR): load(n)
        nl = NR; wog = []; WOK = int(os.environ.get('WOK', '6'))
        for ki in range(14):
            for a in range(2):
                n = 2 * ki + a; r = RING + 4 * (n % NR)
                for b in range(2):
                    I('v_mfma_f32_32x32x16_bf16 %s, %s, %s, %s' % (vr(16 * (2 * a + b), 16), ar(8 * ki + 4 * b, 4), vr(r, 4), vr(16 * (2 * a + b), 16) if ki else '0'))
                if nl < 28:
                    load(nl); nl += 1
                    if nl == 28: I('buffer_load_dwordx4 %s, v%d, %s, s100 offen' % (vr(XR, 4), XO, sr(S_X, 4)))
            if ki == 0:
                for k in range(9, 14): g.extend(self.b_read(k))
            if ki == 2: tail_addr()
            if ki == WOK: wog = self.wo_dma()
            if wog:
                grp = wog.pop(0)
                if 'fwo' in EXP:
                    for x in grp:
                        if x.kind == 'dma': x.kind = 'untracked'
                    I('s_cmp_eq_u32 s%d, 0' % S_TYPE); I('s_cbranch_scc1 L_nwo%d' % ki); g.extend(grp); self.g.label('L_nwo%d' % ki)
                else: g.extend(grp)
        self.stamp('gdone')
        EW = 112
        po = self.poll_issue(T + 3, S_FO, T)
        for b in range(2):
            for Q in range(4):
                I('v_xor_b32 v%d, %d, v%d' % (EW + 4 * b + Q, 16 * (4 * b + Q), EWB))
                for a in range(2):
                    t = 16 * (2 * a + b)
                    for j in (2 * Q, 2 * Q + 1): I('v_cvt_pk_bf16_f32 v%d, v%d, v%d' % (t + j, t + 2 * j, t + 2 * j + 1))
                    I('ds_write_b64 v%d, %s offset:%d' % (EW + 4 * b + Q, vr(t + 2 * Q, 2), 32768 * a))
        OF = 64
        def oload():
            for kk in range(14):
                self.U('buffer_load_dwordx4 %s, v%d, %s, s%d offen offset:%d' % (vr(OF + 4 * kk, 4), VL16, sr(S_WS, 4), (S_OSO, 25, 28, 29)[kk // 4], 1024 * (kk % 4)))
        XU = 40
        I('s_waitcnt vmcnt(0)')
        I('v_cmp_ne_u32 vcc, s%d, v%d' % (S_NONCE, T)); I('s_waitcnt lgkmcnt(0)'); I('s_mov_b64 s[8:9], vcc')
        if 'oafter' in EXP:
            I('s_barrier'); self.stamp('e2')
            for src in range(8): I('ds_read_b128 %s, v%d offset:%d' % (vr(8 + 4 * src, 4), GRD, 4096 * src))
        I('s_cbranch_vccnz L_olate1')
        oload()
        self.g.label('L_olate1')
        if 'oafter' not in EXP:
            I('s_barrier')
            self.stamp('e2')
        for src in range(0 if 'oafter' in EXP else 8): I('ds_read_b128 %s, v%d offset:%d' % (vr(8 + 4 * src, 4), GRD, 4096 * src))
        for j in range(4): I('v_lshlrev_b32 v%d, 16, v%d' % (XU + 2 * j, XR + j)); I('v_and_b32 v%d, s%d, v%d' % (XU + 1 + 2 * j, S_MASK, XR + j))
        for src in range(8):
            for kk in ((2 * src, 2 * src + 1) if src < 7 else ()): wo_read(kk, 4 * kk)
            for j in range(4):
                I('v_dot2_f32_bf16 v%d, v%d, s10, %s' % (2 * j, 8 + 4 * src + j, 'v%d' % (2 * j) if src else '0'))
                I('v_dot2_f32_bf16 v%d, v%d, s11, %s' % (2 * j + 1, 8 + 4 * src + j, 'v%d' % (2 * j + 1) if src else '0'))
        I('s_cmp_eq_u64 s[8:9], 0'); I('s_cbranch_scc1 L_oearly')
        self.g.label('L_pollO')
        self.U('buffer_load_dword v%d, v%d, %s, s%d offen sc1' % (T, T + 3, sr(S_WS, 4), S_FO)); self.U('s_waitcnt vmcnt(0)')
        I('v_cmp_ne_u32 vcc, s%d, v%d' % (S_NONCE, T)); I('s_nop 1'); I('s_cbranch_vccz L_polldO')
        self.spin_tail('L_pollO', int(os.environ.get('OSL', '2')))
        self.g.label('L_polldO')
        oload()
        self.g.label('L_oearly')
        self.stamp('ook')
        for j in range(8): I('v_exp_f32 v%d, v%d' % (8 + j, j))
        SW = 120
        for q in range(4): I('v_xor_b32 v%d, %d, v%d' % (SW + q, 16 * q, SWB))
        for j in range(0, 8, 2): I('v_pk_add_f32 %s, %s, 1.0 op_sel_hi:[1,0]' % (vr(8 + j, 2), vr(8 + j, 2)))
        for j in range(8): I('v_rcp_f32 v%d, v%d' % (8 + j, 8 + j))
        for j in range(0, 8, 2): I('v_pk_mul_f32 %s, %s, s[26:27]' % (vr(j, 2), vr(j, 2)))
        for j in range(0, 8, 2): I('v_pk_mul_f32 %s, %s, %s' % (vr(j, 2), vr(j, 2), vr(8 + j, 2)))
        SA = 48
        for kk in range(14):
            if kk % 2 == 0: self.U('s_waitcnt vmcnt(%d)' % (12 - kk))
            I('v_mfma_f32_32x32x16_bf16 %s, %s, %s, %s' % (vr(SA, 16), ar(4 * kk, 4), vr(OF + 4 * kk, 4), vr(SA, 16) if kk else '0'))
        self.stamp('e3')
        wr = []
        for q in range(4):
            for j in (2 * q, 2 * q + 1): I('v_cvt_pk_bf16_f32 v%d, v%d, v%d' % (SA + j, SA + 2 * j, SA + 2 * j + 1))
            wr.append(I('ds_write_b64 v%d, %s' % (SW + q, vr(SA + 2 * q, 2))))
        I('s_barrier', needs=wr)
        for h in range(2): I('ds_read_b128 %s, v%d offset:%d' % (vr(16 + 4 * h, 4), SRD_, 8192 * h))
        for h in range(2):
            for j in range(4):
                I('v_dot2_f32_bf16 v%d, v%d, s10, %s' % (24 + 2 * j, 16 + 4 * h + j, 'v%d' % (24 + 2 * j) if h else '0'))
                I('v_dot2_f32_bf16 v%d, v%d, s11, %s' % (25 + 2 * j, 16 + 4 * h + j, 'v%d' % (25 + 2 * j) if h else '0'))
        for j in range(0, 8, 2): I('v_pk_fma_f32 %s, %s, %s, %s' % (vr(j, 2), vr(j, 2), vr(24 + j, 2), vr(XU + j, 2)))
        for j in range(4): I('v_cvt_pk_bf16_f32 v%d, v%d, v%d' % (8 + j, 2 * j, 2 * j + 1))
        I('buffer_store_dwordx4 v[8:11], v%d, %s, s100 offen%s' % (XO, sr(S_OUT, 4), os.environ.get('OUTF', '')))
        self.stamp('final')

    def xfilter(self, body):
        out = []
        for x in body:
            if 'nosc1st' in EXP and x.op.startswith('buffer_store_dwordx4') and 'sc1' in x.text and 'v141' in x.text: x.text = x.text.replace(' sc1', '')
            if 'nost' in EXP and x.op.startswith('buffer_store_dwordx4') and 'v141' in x.text: x.text = 's_nop 0'
            if 'nob' in EXP and x.kind == 'dma' and 's[52:55]' in x.text: x.text = 's_nop 0'
            if 'sysp' in EXP and x.op == 'buffer_load_dword' and x.text.endswith('sc1') and 's[64:67]' in x.text: x.text = x.text.replace(' sc1', ' sc0 sc1')
            if 'nowo' in EXP and x.kind == 'dma' and 's[48:51]' in x.text: x.text = 's_nop 0'
            if 'noatom' in EXP and 'atomic' in x.op: x.text = 's_nop 0'
            if 'ntst' in EXP and x.op.startswith('buffer_store_dwordx4') and 'sc1' in x.text and 'v141' in x.text: x.text = x.text.replace(' sc1', ' sc0 sc1')
            out.append(x)
        return out
    def path(self, prefix, fn, label, keys):
        self.keys = keys
        if 'stamp' in self.__dict__: del self.__dict__['stamp']
        with self.g.capture() as body:
            if label: self.g.label(label)
            fn()
        self.xfilter(body)
        allp = [x for p in prefix for x in p]
        for x in allp: x.done = False
        full = self.g.finish(allp + body)
        if label:
            idx = next(i for i, x in enumerate(full) if x.kind == 'label' and x.text == label + ':')
            return full[idx:], body
        return full, body

    def build(self):
        I = self.I
        with self.g.capture() as pro:
            self.prologue()
            I('s_cmp_eq_u32 s%d, 1' % S_TYPE); I('s_cbranch_scc1 L_kv'); I('s_cmp_eq_u32 s%d, 2' % S_TYPE); I('s_cbranch_scc1 L_q')
        n0 = self.nst
        def endp():
            self.write_stamps(); I('s_endpgm')
        def ffn():
            self.ffn()
        out, _ = self.path([pro], ffn, None, ['0'])
        self.nst = n0
        code, kvc = self.path([pro], self.kv_common, 'L_kv', ['10', '11'])
        n1 = self.nst
        save = (dict(self.bdma), dict(self.bread))
        def kk():
            self.kv_k()
        def kvv():
            self.kv_v()
        c2, _ = self.path([pro, kvc], kk, 'L_kv_k', ['10'])
        self.nst = n1; self.bdma, self.bread = dict(save[0]), dict(save[1])
        c3, _ = self.path([pro, kvc], kvv, 'L_kv_v', ['11'])
        out += code + c2 + c3
        self.nst = n0
        def qq():
            self.q(); endp()
        c4, _ = self.path([pro], qq, 'L_q', ['2'])
        out += c4
        def p2():
            self.phase2(); endp()
        if 'nop2' not in EXP:
            c5, _ = self.path([], p2, 'L_p2', ['0', '10', '11'])
            out += c5
        with self.g.capture() as tail:
            self.g.label('L_end'); I('s_endpgm')
        return out + tail

HEADER = open('cdna_kernels/%s.s.ref' % NAME).read().split('; Override launch')[0]
def wrap(code, launch):
    return HEADER + launch + '''
.amdgcn_target "amdgcn-amd-amdhsa--gfx950"
.text
.globl %(n)s_kernel
.p2align 8
.type %(n)s_kernel,@function
%(n)s_kernel:
%(body)s
.section .rodata,"a"
.p2align 6
.amdhsa_kernel %(n)s_kernel
  .amdhsa_next_free_vgpr 256
  .amdhsa_next_free_sgpr 102
  .amdhsa_accum_offset %(nv)d
  .amdhsa_group_segment_fixed_size 0
  .amdhsa_kernarg_size 80
  .amdhsa_user_sgpr_count 2
  .amdhsa_user_sgpr_kernarg_segment_ptr 1
  .amdhsa_system_sgpr_workgroup_id_x 1
.end_amdhsa_kernel
''' % dict(n=NAME, body=render(code), nv=NV)

if __name__ == '__main__':
    stamps = '--stamps' in sys.argv
    k = K(stamps)
    code = k.build()
    if 'noal' not in EXP:
        import align
        code = align.align(code)
    open(sys.argv[1], 'w').write(wrap(code, '; @launch grid=(256,1,1) block=(512,1,1) lds=163840'))
    json.dump({t: [d.get(i, '') for i in range(16)] for t, d in k.names.items()} if stamps else {}, open(sys.argv[1][:-2] + '.json', 'w'))
    print('instructions', len(code), 'nops', sum(1 for i in code if i.kind == 'nop'))
```

```python
import sys, json, struct, os
from asmgen import *
import layout as L
EXP = os.environ.get('EXP', '').split(',')
SLEEP = int(os.environ.get('SLEEP', '4'))
BCHK = int(os.environ.get('BCHK', '7'))
W1K = int(os.environ.get('W1K', '3'))
PF0 = int(os.environ.get('PF0', '2'))
QSL = int(os.environ.get('QSL', '6'))
NST = int(os.environ.get('NST', '3')); MST = int(os.environ.get('MST', '1'))
ATOM = True
S_FA, S_FO, S_XO, S_SC, S_C1, S_C2, S_C3 = 98, 99, 100, 11, 96, 97, 25
RA, RB_ = [int(x) for x in os.environ.get('R1', '1,2').split(',')]
RC, RD = [int(x) for x in os.environ.get('R2', '2,4').split(',')]
STASH = 72; CSA = 32; DB2 = 125; S_CSB, S_R0 = 30, 101
TSCH = eval(os.environ.get('TSCH', '{3:0x7fc000}'))
T0M = int(os.environ.get('T0M', '0x1f'), 0)
CST = int(os.environ.get('CST', '0'))
HSC = '' if 'plainh' in EXP else ' sc1'
NAME = 'recurrent_scan__linear_kernel_hedgehog__dense_activation_silu__prompt'
def f32(x): return '0x%08x' % struct.unpack('<I', struct.pack('<f', x))[0]

S_X, S_W, S_PHI, S_WO, S_W2, S_OUT, S_DBG, S_WS = 36, 40, 44, 48, 52, 56, 60, 64
S_MASK, S_WAVE, S_IDX, S_RB, S_TYPE = 3, 4, 5, 6, 7
S_XS, S_WSO, S_EX56 = 12, 13, 14
S_MW, S_MX, S_ROW, S_NONCE = 97, 96, 34, 35
S_RT, S_CH = 68, 69
S_ST = 70
S_RG, S_CG, S_BSO, S_STA, S_A0, S_A1, S_OSO, S_NH, S_H0 = 16, 17, 18, 19, 20, 21, 22, 23, 24
S_ST4 = 25
S_L2E = 26
S_HIM = 28
STG = 45056; WPART = 16384
L_CNT = 3 * STG
L_CP = 136192
L_WPHI = 144384
L_SHX = L_WPHI
L_PHI = 0
L_V = 136192
L_STA = 57344
L_WO = 0
L_CX = 135168
L_KVQ = 0
L_KVF = 65536
L_XG = 65536
L_O = 0
L_XS = 131072
KORD = list(range(14))
NV = 144
ACC, WF, XF, ST, CS, AX, AW, AS, DX, DW = 0, 64, 96, 104, 108, 112, 116, 120, 122, 124
PFA = 132; TMP = 128; P2T = 128; BT2 = 126; DB = 139; VLANE = 140; VL16 = 141; BT = 142

class K:
    def __init__(self, stamps):
        self.g = Gen(); self.use_stamps = stamps; self.nst = 0; self.names = {}; self.keys = ['0', '10', '11', '2']
    def I(self, t, needs=()): return self.g.I(t, needs)
    def U(self, t):
        x = self.g.I(t); x.kind = 'untracked'; return x
    def stamp(self, name, real=False):
        if os.environ.get('DLY') == name and (not os.environ.get('DLK') or os.environ['DLK'] in self.keys): self.I('s_sleep %s' % os.environ.get('DLN', '32'))
        if 'dbgt' in EXP and name in ('bar0', 'loopend', 'gdone', 'opub', 'ook'):
            r = {'bar0': [78], 'loopend': [80], 'gdone': [82], 'ook': [84], 'opub': [82, 84]}[name]
            for x in r: self.I('s_memtime s[%d:%d]' % (x, x + 1))
        if not self.use_stamps: return
        i = self.nst
        if i >= 12: return
        self.nst += 1
        for k in self.keys: self.names.setdefault(k, {})[i] = name
        self.I('%s %s' % ('s_memrealtime' if real else 's_memtime', sr(S_ST + 2 * i, 2)))
    def write_stamps(self, total=13):
        if 'dbgt' in EXP:
            I = self.I
            I('s_memrealtime s[74:75]'); I('s_memtime s[76:77]'); I('s_waitcnt vmcnt(0) lgkmcnt(0)')
            I('s_mov_b64 exec, 1'); I('v_mov_b32 v2, 0')
            I('v_mov_b32 v0, s70'); I('buffer_atomic_umax v0, v2, %s, 0 offen offset:8' % sr(S_DBG, 4))
            I('s_not_b32 s8, s70'); I('v_mov_b32 v1, s8'); I('buffer_atomic_umax v1, v2, %s, 0 offen offset:12' % sr(S_DBG, 4))
            I('v_mov_b32 v3, s74'); I('buffer_atomic_umax v3, v2, %s, 0 offen offset:16' % sr(S_DBG, 4))
            I('s_sub_u32 s8, s76, s72'); I('v_mov_b32 v4, s8'); I('buffer_atomic_umax v4, v2, %s, 0 offen offset:20' % sr(S_DBG, 4))
            I('s_sub_u32 s8, s74, s70'); I('v_mov_b32 v5, s8'); I('buffer_atomic_umax v5, v2, %s, 0 offen offset:24' % sr(S_DBG, 4))
            for k, so in enumerate((78, 80, 82, 84)):
                I('s_sub_u32 s8, s%d, s72' % so); I('v_mov_b32 v%d, s8' % (6 + k)); I('buffer_atomic_umax v%d, v2, %s, 0 offen offset:%d' % (6 + k, sr(S_DBG, 4), 28 + 4 * k))
            I('s_waitcnt vmcnt(0)')
            return
        if not self.use_stamps: return
        I = self.I
        I('s_memrealtime %s' % sr(S_ST + 2 * (total - 1), 2))
        I('s_waitcnt lgkmcnt(0)')
        I('s_lshl_b32 s8, s2, 3'); I('s_add_u32 s8, s8, s%d' % S_WAVE); I('s_lshl_b32 s8, s8, 7')
        I('s_add_u32 s8, s8, %d' % L.WS_STAMP)
        I('v_mov_b32 v2, 0')
        I('s_mov_b64 exec, 1')
        for i in range(total):
            I('v_mov_b32 v0, s%d' % (S_ST + 2 * i)); I('v_mov_b32 v1, s%d' % (S_ST + 2 * i + 1))
            I('buffer_store_dwordx2 v[0:1], v2, %s, s8 offen offset:%d' % (sr(S_WS, 4), 8 * i))
        I('s_mov_b64 exec, -1')
    def srd(self, d, base, nbytes):
        I = self.I
        I('s_mov_b32 s%d, s%d' % (d, base)); I('s_and_b32 s%d, s%d, 0xffff' % (d + 1, base + 1))
        I('s_mov_b32 s%d, %d' % (d + 2, nbytes)); I('s_mov_b32 s%d, 0x20000' % (d + 3))

    def prologue(self):
        I = self.I
        I('s_cmp_ge_u32 s2, 256'); I('s_cbranch_scc1 L_end')
        I('s_load_dwordx16 s[16:31], s[0:1], 0'); I('s_load_dwordx4 s[32:35], s[0:1], 64')
        if 'anti' in EXP:
            I('s_lshr_b32 s8, s2, 5'); I('s_and_b32 s9, s2, 31'); I('s_lshl_b32 s9, s9, 3'); I('s_or_b32 s2, s8, s9')
        I('s_getpc_b64 s[8:9]')
        self.g.label('L_pc')
        I('v_cmp_le_u32 vcc, %d, v0' % (1024 if 'nocp0' in EXP else 448)); I('s_cbranch_vccz L_nopf')
        I('s_bfe_u32 s10, s2, 0x30003'); I('s_lshl_b32 s10, s10, 13')
        I('v_and_b32 v1, 63, v0'); I('v_lshlrev_b32 v1, 7, v1'); I('v_add_u32 v1, s10, v1')
        I('v_min_u32 v1, L_end-L_pc, v1')
        self.U('global_load_dword a80, v1, s[8:9]')
        self.g.label('L_nopf')
        if self.use_stamps:
            for i in range(13): I('s_mov_b64 %s, 0' % sr(S_ST + 2 * i, 2))
        self.stamp('rt0', True); self.stamp('t0')
        if 'dbgt' in EXP: I('s_memrealtime s[70:71]'); I('s_memtime s[72:73]')
        I('v_lshrrev_b32 v1, 6, v0'); I('v_and_b32 v0, 63, v0')
        I('v_readfirstlane_b32 s%d, v1' % S_WAVE)
        I('v_mov_b32 v%d, v0' % VLANE); I('v_lshlrev_b32 v%d, 4, v0' % VL16)
        I('s_and_b32 s8, s2, 7'); I('s_lshr_b32 s9, s2, 3')
        if 'hx' in EXP:
            I('s_and_b32 s10, s8, 4'); I('s_lshl_b32 s10, s10, 1'); I('s_and_b32 s11, s9, 7'); I('s_add_u32 s%d, s10, s11' % S_RB)
            I('s_and_b32 s8, s8, 3'); I('s_lshr_b32 s10, s9, 3')
        else:
            I('s_and_b32 s10, s8, 1'); I('s_lshl_b32 s10, s10, 3'); I('s_and_b32 s11, s9, 7'); I('s_add_u32 s%d, s10, s11' % S_RB)
            I('s_lshr_b32 s8, s8, 1'); I('s_lshr_b32 s10, s9, 3')
        I('s_lshl_b32 s11, s8, 2'); I('s_add_u32 s12, s11, s10')
        I('s_mov_b32 s%d, 0' % S_TYPE); I('s_lshl_b32 s%d, s8, 1' % S_IDX); I('s_add_u32 s%d, s%d, s10' % (S_IDX, S_IDX))
        I('s_cmp_lt_u32 s10, 2'); I('s_cbranch_scc1 L_role')
        I('s_mov_b32 s%d, 1' % S_TYPE); I('s_lshr_b32 s%d, 0x4210, s11' % S_IDX); I('s_and_b32 s%d, s%d, 15' % (S_IDX, S_IDX))
        I('s_cmp_eq_u32 s10, 2'); I('s_cbranch_scc1 L_role')
        I('s_and_b32 s13, s8, 1'); I('s_lshl_b32 s%d, s13, 1' % S_IDX); I('s_add_u32 s%d, s%d, 3' % (S_IDX, S_IDX))
        I('s_bfe_u32 s11, s9, 0x10002'); I('s_lshr_b32 s8, s8, 1'); I('s_cmp_lg_u32 s11, s8'); I('s_cbranch_scc1 L_role')
        I('s_mov_b32 s%d, 2' % S_TYPE); I('s_mov_b32 s%d, s13' % S_IDX)
        self.g.label('L_role')
        I('s_lshl_b32 s8, s%d, 4' % S_RB); I('s_add_u32 s8, s8, s12'); I('s_lshl_b32 s8, s8, 3'); I('s_add_u32 s11, s8, s%d' % S_WAVE)
        I('s_mov_b32 s%d, -1' % S_EX56); I('s_mov_b32 s%d, 0x00ffffff' % (S_EX56 + 1))
        I('s_and_b32 s%d, s%d, 3' % (S_RT, S_WAVE)); I('s_lshr_b32 s%d, s%d, 2' % (S_CH, S_WAVE))
        I('s_mov_b32 s%d, 0xffff0000' % S_MASK)
        I('v_lshrrev_b32 v2, 3, v0'); I('v_mul_u32_u24 v2, 896, v2')
        I('v_lshrrev_b32 v3, 4, v0'); I('v_and_b32 v4, 7, v0'); I('v_xor_b32 v4, v4, v3')
        I('v_lshl_add_u32 v%d, v4, 4, v2' % DX)
        I('v_xor_b32 v4, 4, v4'); I('v_lshl_add_u32 v%d, v4, 4, v2' % (DX + 1)); I('v_add_u32 v%d, %d, v%d' % (DX + 1, 8 * 896 - 1024, DX + 1))
        I('s_lshl_b32 s8, s%d, 3' % S_RB); I('s_add_u32 s8, s8, s%d' % S_WAVE); I('s_mul_i32 s%d, s8, %d' % (S_XS, 16 * 896))
        I('v_cmp_lt_u32 vcc, 27, v0'); I('v_subrev_u32 v7, 28, v0'); I('v_cndmask_b32 v7, v0, v7, vcc'); I('v_cndmask_b32 v6, 0, 1, vcc')
        I('v_cmp_gt_u32 vcc, 56, v0'); I('v_mov_b32 v5, 0x7fffffff'); I('v_cndmask_b32 v5, v5, v%d, vcc' % VL16)
        I('s_mov_b32 s%d, s11' % S_R0)
        I('s_lshl_b32 s96, s%d, 11' % S_WAVE)
        I('s_mul_i32 s97, s%d, %d' % (S_WAVE, 8 * 448)); I('s_add_u32 s97, s97, %d' % WPART)

    def karg(self, wbase, wbytes):
        I = self.I
        I('s_mov_b32 s%d, %d' % (S_X + 2, 2048 * 896)); I('s_mov_b32 s%d, 0x20000' % (S_X + 3)); I('s_mov_b32 s%d, %d' % (S_W + 2, wbytes)); I('s_mov_b32 s%d, 0x20000' % (S_W + 3))
        I('s_waitcnt lgkmcnt(0)')
        if 'start' in EXP: self.stamp('karg')
        I('s_mov_b32 s%d, s%d' % (S_W, wbase)); I('s_and_b32 s%d, s%d, 0xffff' % (S_W + 1, wbase + 1))
        I('s_mov_b32 s%d, s16' % S_X); I('s_and_b32 s%d, s17, 0xffff' % (S_X + 1))
    def rest_srds(self):
        I = self.I
        self.srd(S_WS, 34, L.WS_BYTES); self.srd(S_DBG, 32, 256)
        I('s_mov_b32 s%d, s%d' % (S_ROW, S_R0))

    def start_stream(self, gpitch, kw=None):
        I = self.I
        for i in range(1, 4): I('v_add_u32 v%d, %d, v%d' % (DW + i, i * (2 * gpitch - 896), DW))
        I('s_mul_i32 s8, s%d, %d' % (S_WAVE, 8 * gpitch)); I('s_add_u32 s%d, s%d, s8' % (S_WSO, S_WSO))
        self.gpitch = gpitch
        if kw: self.karg(*kw)
        d = {}
        if 'start' in EXP: self.stamp('pre_s0')
        grps, d[0] = self.stage_dma(0, gpitch)
        for gp in grps: self.g.extend(gp)
        if kw: self.rest_srds()
        I('s_mul_i32 s8, s%d, 896' % S_ROW)
        I('buffer_load_dwordx4 %s, v5, %s, s8 offen' % (vr(XF, 4), sr(S_X, 4)))
        lab = 'L_nonon' + self.tagbase
        I('s_or_b32 s8, s2, s%d' % S_WAVE); I('s_cmp_lg_u32 s8, 0'); I('s_cbranch_scc1 %s' % lab)
        self.U('s_memrealtime s[8:9]'); self.U('s_waitcnt lgkmcnt(0)'); I('s_or_b32 s8, s8, 1'); I('v_mov_b32 v8, s8'); I('v_mov_b32 v9, 0')
        I('s_mov_b64 exec, 1'); self.U('buffer_store_dword v8, v9, %s, 0 offen sc1' % sr(S_DBG, 4)); I('s_mov_b64 exec, -1')
        self.g.label(lab)
        if 'start' in EXP: self.stamp('s0iss')
        return d
    def mall_issue(self, part, mask=None):
        if 'nomall' in EXP: return []
        I = self.I
        with self.g.capture() as a:
            I('s_lshl_b32 s8, s2, 3'); I('s_add_u32 s8, s8, s%d' % S_WAVE); I('s_mul_i32 s9, s8, 896'); I('s_lshl_b32 s8, s8, 8')
            I('v_lshlrev_b32 v%d, 7, v%d' % (TMP + 4, VLANE)); I('s_mov_b64 exec, 0x7f')
            I('buffer_load_dword a80, v%d, %s, s9 offen' % (TMP + 4, sr(S_W2, 4))).dst = set()
            I('s_mov_b64 exec, 3')
            I('buffer_load_dword a80, v%d, %s, s8 offen' % (TMP + 4, sr(S_WO, 4))).dst = set()
            I('s_mov_b64 exec, -1')
        return [a]
    def pre_loop(self, p2, idx0, extra=None, late=None):
        I = self.I; g = self.g
        self.late_srds()
        if p2:
            self.p2_setup()
            for gp in self.p2_pre(): g.extend(gp)
        if extra: extra()
        I('v_and_b32 v64, 31, v%d' % VLANE); I('v_mov_b32 v66, 0x7f000000')
        if idx0:
            I('v_subrev_u32 v65, 4, v64'); I('v_cmp_lt_u32 vcc, 27, v64'); I('v_cndmask_b32 v64, v64, v65, vcc')
        else:
            I('s_lshl_b32 s8, s%d, 4' % S_CH); I('v_xor_b32 v65, s8, v64'); I('v_lshlrev_b32 v65, 4, v65')
            I('s_mul_i32 s8, s%d, %d' % (S_CH, 96 * 16)); I('s_sub_u32 s8, %d, s8' % (192 * 16)); I('v_add_u32 v65, s8, v65')
            I('v_cndmask_b32 v%d, v65, v66, %s' % (CS + 1, sr(S_HIM, 2)))
        I('v_lshlrev_b32 v64, 4, v64'); I('v_cndmask_b32 v%d, v64, v66, %s' % (CS, sr(S_HIM, 2)))
        I('v_and_b32 v64, 31, v%d' % VLANE); I('v_lshlrev_b32 v%d, 7, v64' % (CS + 2))
        if idx0 == 0: I('s_mul_i32 s8, s%d, 224' % S_IDX); I('s_mul_i32 s9, s%d, 96' % S_CH); I('s_add_u32 s8, s8, s9')
        elif idx0 == 8: I('s_mul_i32 s8, s%d, 28' % S_H0); I('s_mul_i32 s9, s%d, 448' % S_CH); I('s_add_u32 s8, s8, s9'); I('s_add_u32 s8, s8, %d' % (1792 + 448))
        else: I('s_mul_i32 s8, s%d, 224' % S_IDX); I('s_mul_i32 s9, s%d, 112' % S_CH); I('s_add_u32 s8, s8, s9'); I('s_add_u32 s8, s8, 1792')
        I('s_lshl_b32 s8, s8, 4'); I('s_add_u32 s%d, s8, %d' % (S_CSB, L.WS_CSG))
        if 'start' in EXP: self.stamp('setup')
        if getattr(self, 'pre_s1', None): self.pre_s1()
        if getattr(self, 'pre_s1k', None): self.pre_s1k(); self.pre_s1k = None
        if 'rs1' in EXP: self.row_stats()
        self.s0pos = len(g.cur)
        if late: late()
        if getattr(self, 'qpos', None): self.s0pos = self.qpos; self.qpos = None
        elif 'rs1' not in EXP: self.row_stats()
    def chunks(self, fn, n=10):
        with self.g.capture() as body:
            fn()
        out = []; cur = []
        for i, x in enumerate(body):
            cur.append(x)
            nxt = body[i + 1] if i + 1 < len(body) else None
            safe = nxt is not None and not (nxt.op.startswith(('s_cselect', 's_cbranch', 's_addc', 's_subb', 'v_cndmask', 'v_addc')) or nxt.kind in ('dma', 'label')) \
                and not x.op.startswith(('s_cmp', 'v_cmp')) and 'm0' not in x.dst
            if len(cur) >= n and safe: out.append(cur); cur = []
        if cur: out.append(cur)
        return out

    def late_srds(self):
        I = self.I
        self.srd(S_PHI, 20, 16 * 28 * 28 * 2); self.srd(S_WO, 22, 448 * 896); self.srd(S_W2, 28, 1792 * 896)
        self.srd(S_OUT, 30, 2048 * 896)
        I('s_mov_b32 s%d, 0' % S_HIM); I('s_mov_b32 s%d, -1' % (S_HIM + 1))
        I('s_mov_b32 s31, 0')

    def late_group(self, p2, extra=None):
        with self.g.capture() as a:
            self.late_srds()
            if extra: extra()
        self.p2flag = p2
        return a
    def p2_setup(self):
        I = self.I; T = 64
        I('s_lshr_b32 s9, s2, 3'); I('s_and_b32 s8, s9, 3'); I('s_add_u32 s8, s8, 24'); I('s_cmp_lt_u32 s9, 24'); I('s_cselect_b32 s9, s9, s8')
        I('s_mul_i32 s8, s9, 37'); I('s_lshr_b32 s8, s8, 8'); I('s_mul_i32 s10, s8, 7'); I('s_sub_u32 s%d, s9, s10' % S_CG)
        I('s_and_b32 s10, s2, 7'); I('s_lshl_b32 s10, s10, 2'); I('s_add_u32 s%d, s10, s8' % S_RG)
        I('s_mul_i32 s%d, s%d, %d' % (S_BSO, S_WAVE, 224 * 896)); I('s_lshl_b32 s8, s%d, 7' % S_CG); I('s_add_u32 s%d, s%d, s8' % (S_BSO, S_BSO))
        I('s_lshl_b32 s%d, s%d, 12' % (S_STA, S_WAVE)); I('s_add_u32 s%d, s%d, %d' % (S_STA, S_STA, L_STA))
        I('v_lshrrev_b32 v%d, 3, v140' % T); I('v_mul_u32_u24 v%d, 896, v%d' % (T, T))
        I('v_lshrrev_b32 v%d, 2, v140' % (T + 1)); I('v_and_b32 v%d, 4, v%d' % (T + 1, T + 1)); I('v_and_b32 v%d, 7, v140' % (T + 2))
        I('v_xor_b32 v%d, v%d, v%d' % (T + 1, T + 1, T + 2)); I('v_lshl_add_u32 v%d, v%d, 4, v%d' % (DB, T + 1, T))
        I('v_lshrrev_b32 v%d, 5, v140' % T); I('v_lshlrev_b32 v%d, 2, v%d' % (T, T)); I('v_bfe_u32 v%d, v140, 2, 2' % (T + 1)); I('v_add_u32 v%d, v%d, v%d' % (T, T, T + 1))
        I('v_lshlrev_b32 v%d, 7, v%d' % (T, T)); I('v_add_u32 v%d, s%d, v%d' % (T, S_STA, T))
        I('v_and_b32 v%d, 3, v140' % (T + 1)); I('v_lshlrev_b32 v%d, 3, v%d' % (T + 1, T + 1))
        I('v_and_b32 v%d, 16, v140' % (T + 2)); I('v_lshl_add_u32 v%d, v%d, 1, v%d' % (T + 1, T + 2, T + 1))
        I('v_and_b32 v%d, 8, v140' % (T + 2)); I('v_lshlrev_b32 v%d, 3, v%d' % (T + 2, T + 2)); I('v_xor_b32 v%d, v%d, v%d' % (T + 1, T + 1, T + 2))
        I('v_add_u32 v%d, v%d, v%d' % (BT, T, T + 1))
        I('v_xor_b32 v%d, 64, v%d' % (T + 1, T + 1)); I('v_add_u32 v%d, v%d, v%d' % (BT + 1, T, T + 1))

    def slot4_setup(self):
        I = self.I
        I('s_lshl_b32 s%d, s%d, 11' % (S_ST4, S_WAVE)); I('s_add_u32 s%d, s%d, %d' % (S_ST4, S_ST4, L_SHX)); I('s_sub_u32 s8, s%d, s%d' % (S_ST4, S_STA))
        for b in range(2): I('v_add_u32 v%d, s8, v%d' % (BT2 + b, BT + b))
    def wo_dma(self):
        g = self.g; I = self.I; grps = []
        with g.capture() as a:
            I('s_mul_i32 s23, s%d, %d' % (S_WAVE, 56 * 896)); I('s_lshl_b32 s24, s%d, 7' % S_CG); I('s_add_u32 s23, s23, s24'); I('s_mul_i32 s24, s%d, %d' % (S_WAVE, 56 * 128))
        for i in range(0, 7, 2):
            with g.capture() as b:
                I('s_add_u32 m0, s24, %d' % (L_WO + 1024 * i)); I('s_add_u32 s8, s23, %d' % (8 * 896 * i))
                I('buffer_load_dwordx4 v%d, %s, s8 offen lds' % (DB, sr(S_WO, 4)))
                if i + 1 < 7: I('buffer_load_dwordx4 v%d, %s, s8 offen offset:1024 lds' % (DB2, sr(S_WO, 4)))
            grps.append((a if i == 0 else []) + b)
        return grps
    SLOTS = [(0, BT), (2048, BT), (32768, BT), (34816, BT), (None, BT2)]
    def b_dma(self, k, needs=()):
        g = self.g; I = self.I; so = self.SLOTS[k % self.nslot][0]; grps = []
        with g.capture() as a:
            I('s_add_u32 m0, s%d, %d' % (S_STA, so) if so is not None else 's_mov_b32 m0, s%d' % S_ST4)
            I('s_add_u32 s8, s%d, %d' % (S_BSO, 16 * k * 896))
            I('buffer_load_dwordx4 v%d, %s, s8 offen lds' % (DB, sr(S_W2, 4)), needs=needs)
            I('buffer_load_dwordx4 v%d, %s, s8 offen offset:1024 lds' % (DB2, sr(S_W2, 4)))
        grps.append(a)
        self.bdma[k] = [x for gp in grps for x in gp if x.kind == 'dma']
        return grps
    def b_read(self, k):
        so, reg = self.SLOTS[k % self.nslot]; out = []
        if so is None: so = 0
        for b in range(2):
            for h in range(2):
                out.append(Instr('ds_read_b64_tr_b16 %s, v%d offset:%d' % (ar(8 * k + 4 * b + 2 * h, 2), reg + b, so + 1024 * h), needs=self.bdma[k]))
        self.bread[k] = out
        return out
    def b_tasks(self, k0, k1):
        t = [self.b_read(k) for k in range(k0, k1)]
        for k in range(k0, k1):
            if k + self.nslot < 14: t += self.b_dma(k + self.nslot, needs=self.bread[k])
        return t

    def stage_dma(self, st, gpitch):
        g = self.g; I = self.I; base = (st % 3) * STG
        nt = ' nt' if st < int(os.environ.get('NT', '0')) else ''; ntx = ' nt' if st < int(os.environ.get('NTX', os.environ.get('NT', '0'))) else ''
        grps = []
        for i in range(0, 4, 2):
            with g.capture() as a:
                if i == 0: I('s_add_u32 m0, s%d, %d' % (S_MW, base))
                I('s_mov_b64 exec, %s' % sr(S_EX56, 2))
                for j in (i, i + 1): I('buffer_load_dwordx4 v%d, %s, s%d offen offset:%d%s lds' % (DW + j, sr(S_W, 4), S_WSO, 896 * j, nt))
                I('s_mov_b64 exec, -1')
            grps.append(a)
        with g.capture() as a:
            I('s_add_u32 m0, s%d, %d' % (S_MX, base)); I('s_add_u32 s%d, s%d, %d' % (S_WSO, S_WSO, 64 * gpitch))
            for i in range(2): I('buffer_load_dwordx4 v%d, %s, s%d offen offset:%d%s lds' % (DX + i, sr(S_X, 4), S_XS, 1024 * i, ntx))
            I('s_add_u32 s%d, s%d, 128' % (S_XS, S_XS))
        grps.append(a)
        return grps, [x for gp in grps for x in gp if x.kind == 'dma']

    def read_addrs(self, clamp, shared=False):
        I = self.I; T = TMP
        I('v_and_b32 v%d, 31, v0' % T); I('v_lshlrev_b32 v%d, 7, v%d' % (T, T)); I('s_lshl_b32 s8, s%d, 12' % S_RT); I('v_add_u32 v%d, s8, v%d' % (T, T))
        I('v_lshrrev_b32 v%d, 5, v0' % (T + 1)); I('v_bfe_u32 v%d, v0, 1, 3' % (T + 2)); I('v_xor_b32 v%d, v%d, v%d' % (T + 2, T + 2, T + 1))
        I('v_lshlrev_b32 v%d, 3, v%d' % (T + 3, T + 1)); I('v_bfe_u32 v%d, v0, 2, 2' % (T + 4)); I('v_add_u32 v%d, v%d, v%d' % (T + 3, T + 3, T + 4))
        I('v_mul_u32_u24 v%d, 448, v%d' % (T + 3, T + 3))
        I('v_bfe_u32 v%d, v0, 4, 1' % (T + 4)); I('v_and_b32 v%d, 3, v0' % (T + 5)); I('v_lshl_add_u32 v%d, v%d, 2, v%d' % (T + 4, T + 4, T + 5))
        if shared:
            I('s_lshl_b32 s8, s%d, 2' % S_CH); I('v_xor_b32 v%d, s8, v%d' % (T + 6, T + 4)); I('v_lshl_add_u32 v%d, v%d, 3, v%d' % (T + 6, T + 6, T + 3))
            I('v_add_u32 v%d, %d, v%d' % (T + 6, WPART + 384, T + 6))
        if clamp: I('v_min_u32 v%d, 6, v%d' % (T + 4, T + 4))
        I('v_lshl_add_u32 v%d, v%d, 3, v%d' % (T + 3, T + 4, T + 3))
        I('v_add_u32 v%d, s10, v%d' % (T + 3, T + 3))
        for i in range(4):
            I('s_add_u32 s8, s%d, s%d' % (S_RT, S_CH)); I('s_add_u32 s8, s8, %d' % i); I('s_and_b32 s8, s8, 3')
            I('s_lshl_b32 s9, s8, 1'); I('v_xor_b32 v%d, s9, v%d' % (T + 5, T + 2)); I('v_lshl_add_u32 v%d, v%d, 4, v%d' % (AX + i, T + 5, T))
            I('s_mul_i32 s9, s8, 7168'); I('v_add_u32 v%d, s9, v%d' % (AW + i, T + 3))
            if shared and i in (0, 2): I('v_add_u32 v%d, s9, v%d' % (AS + i // 2, T + 6))

    def row_stats(self):
        I = self.I; S, Q = ST, ST + 1
        I('s_mov_b32 s8, 0x3f803f80')
        I('v_dot2_f32_bf16 v%d, v%d, s8, 0' % (S, XF)); I('v_dot2_f32_bf16 v%d, v%d, v%d, 0' % (Q, XF, XF))
        for q in range(1, 4):
            I('v_dot2_f32_bf16 v%d, v%d, s8, v%d' % (S, XF + q, S)); I('v_dot2_f32_bf16 v%d, v%d, v%d, v%d' % (Q, XF + q, XF + q, Q))
        for m in ('row_shr:1', 'row_shr:2', 'row_shr:4', 'row_shr:8'):
            for r in (S, Q): I('v_add_f32_dpp v%d, v%d, v%d %s row_mask:0xf bank_mask:0xf bound_ctrl:0' % (r, r, r, m))
        for m, rm in (('row_bcast:15', '0xa'), ('row_bcast:31', '0xc')):
            for r in (S, Q): I('v_add_f32_dpp v%d, v%d, v%d %s row_mask:%s bank_mask:0xf' % (r, r, r, m, rm))
        I('v_mul_f32 v%d, %s, v%d' % (S, f32(1.0 / 448), S)); I('v_mul_f32 v%d, %s, v%d' % (Q, f32(1.0 / 448), Q))
        I('v_fma_f32 v%d, -v%d, v%d, v%d' % (Q, S, S, Q)); I('v_max_f32 v%d, 0, v%d' % (Q, Q))
        def rbf(r):
            I('v_cvt_pk_bf16_f32 v%d, v%d, v%d' % (r, r, r)); I('v_lshlrev_b32 v%d, 16, v%d' % (r, r))
        rbf(S); rbf(Q)
        I('v_add_f32 v%d, %s, v%d' % (Q, f32(1e-5), Q)); rbf(Q)
        I('v_sqrt_f32 v%d, v%d' % (Q, Q)); rbf(Q)
        I('v_rcp_f32 v%d, v%d' % (Q, Q))
        I('v_sub_f32 v%d, 0, v%d' % (S, S))

    def nonce_issue(self):
        self.I('v_mov_b32 v%d, 0' % (ST + 3))
        return self.I('buffer_load_dword v%d, v%d, %s, 0 offen sc1' % (ST + 2, ST + 3, sr(S_DBG, 4)))
    def nonce_get_publish(self, tag):
        self.nonce_get(tag)
        self.row_publish()
    def nonce_get(self, tag):
        I = self.I; U = self.U
        I('v_readfirstlane_b32 s%d, v%d' % (S_NONCE, ST + 2))
        I('s_cmp_lg_u32 s%d, 0' % S_NONCE); I('s_cbranch_scc1 L_gotn%s' % tag)
        self.g.label('L_spinn%s' % tag)
        U('buffer_load_dword v%d, v%d, %s, 0 offen sc1' % (ST + 2, ST + 3, sr(S_DBG, 4)))
        U('s_waitcnt vmcnt(0)')
        I('v_readfirstlane_b32 s%d, v%d' % (S_NONCE, ST + 2)); I('s_nop 1')
        I('s_cmp_lg_u32 s%d, 0' % S_NONCE); I('s_cbranch_scc1 L_gotn%s' % tag)
        self.spin_tail('L_spinn%s' % tag)
        self.g.label('L_gotn%s' % tag)
    def row_publish(self):
        I = self.I
        I('v_mov_b32 v%d, s%d' % (ST + 2, S_NONCE)); I('v_mov_b32 v%d, s%d' % (ST + 3, S_NONCE))
        I('s_lshl_b32 s8, s%d, 4' % S_ROW); I('s_add_u32 s8, s8, %d' % L.WS_RS); I('v_mov_b32 v%d, 0' % (TMP + 8))
        I('s_mov_b32 exec_lo, 0'); I('s_mov_b32 exec_hi, 0x80000000')
        I('buffer_store_dwordx4 %s, v%d, %s, s8 offen sc1' % (vr(ST, 4), TMP + 8, sr(S_WS, 4)))
        I('s_mov_b64 exec, -1')
    def rs_issue(self):
        I = self.I
        I('s_lshl_b32 s8, s%d, 2' % S_RB); I('s_add_u32 s8, s8, s%d' % S_RT); I('s_lshl_b32 s8, s8, 9'); I('s_add_u32 s%d, s8, %d' % (S_ROW, L.WS_RS))
        I('v_and_b32 v%d, 31, v%d' % (DX, VLANE)); I('v_lshlrev_b32 v%d, 4, v%d' % (DX, DX))
        return I('buffer_load_dwordx4 %s, v%d, %s, s%d offen sc1' % (vr(ST, 4), DX, sr(S_WS, 4), S_ROW))
    def rs_get(self, tag, scale):
        I = self.I; U = self.U
        I('v_cmp_ne_u32 vcc, s%d, v%d' % (S_NONCE, ST + 2)); I('s_nop 1'); I('s_cbranch_vccz L_gotr%s' % tag)
        self.g.label('L_spinr%s' % tag)
        U('buffer_load_dwordx4 %s, v%d, %s, s%d offen sc1' % (vr(ST, 4), DX, sr(S_WS, 4), S_ROW))
        U('s_waitcnt vmcnt(0)')
        I('v_cmp_ne_u32 vcc, s%d, v%d' % (S_NONCE, ST + 2)); I('s_nop 1'); I('s_cbranch_vccz L_gotr%s' % tag)
        self.spin_tail('L_spinr%s' % tag)
        self.g.label('L_gotr%s' % tag)
        for q in range(4): I('v_cvt_pk_bf16_f32 v%d, v%d, v%d' % (XF + q, ST, ST))
        I('v_mul_f32 v%d, %s, v%d' % (ST, f32(scale), ST + 1))
    def publish(self, soff_s, tmp, needs=()):
        I = self.I
        I('v_mov_b32 v%d, s%d' % (tmp, S_NONCE)); I('v_mov_b32 v%d, 0' % (tmp + 1)); I('s_mov_b64 exec, 1')
        x = I('buffer_store_dword v%d, v%d, %s, s%d offen sc1' % (tmp, tmp + 1, sr(S_WS, 4), soff_s), needs=needs)
        I('s_mov_b64 exec, -1')
        return x
    def poll(self, tag, voff, soff_s, tmp):
        I = self.I; U = self.U
        self.g.label('L_poll%s' % tag)
        U('buffer_load_dword v%d, v%d, %s, s%d offen sc1' % (tmp, voff, sr(S_WS, 4), soff_s))
        I('s_waitcnt vmcnt(0)')
        I('v_cmp_ne_u32 vcc, s%d, v%d' % (S_NONCE, tmp)); I('s_nop 1'); I('s_cbranch_vccz L_polld%s' % tag)
        self.spin_tail('L_poll%s' % tag)
        self.g.label('L_polld%s' % tag)
    def poll_issue(self, voff, soff_s, tmp):
        return self.I('buffer_load_dword v%d, v%d, %s, s%d offen sc1' % (tmp, voff, sr(S_WS, 4), soff_s))
    def poll_check(self, tag, voff, soff_s, tmp):
        I = self.I; U = self.U
        if 'nopoll' in EXP and tag in 'AB': return
        I('v_cmp_ne_u32 vcc, s%d, v%d' % (S_NONCE, tmp)); I('s_nop 1'); I('s_cbranch_vccz L_polld%s' % tag)
        self.g.label('L_poll%s' % tag)
        U('buffer_load_dword v%d, v%d, %s, s%d offen sc1' % (tmp, voff, sr(S_WS, 4), soff_s)); U('s_waitcnt vmcnt(0)')
        I('v_cmp_ne_u32 vcc, s%d, v%d' % (S_NONCE, tmp)); I('s_nop 1'); I('s_cbranch_vccz L_polld%s' % tag)
        self.spin_tail('L_poll%s' % tag)
        self.g.label('L_polld%s' % tag)
    def spin_tail(self, lab, sl=None):
        I = self.I
        if (SLEEP if sl is None else sl): I('s_sleep %d' % (SLEEP if sl is None else sl))
        else: I('s_nop 0')
        pass; I('s_add_u32 s31, s31, 1'); I('s_cmp_lt_u32 s31, 0x8000'); I('s_cbranch_scc1 %s' % lab)

    def l2pf(self, st):
        if 'l2pf' not in EXP: return []
        I = self.I; lab = 'L_pf%s%d' % (self.tagbase, st)
        with self.g.capture() as a:
            I('s_lshr_b32 s8, s%d, 1' % S_WAVE); I('s_cmp_lg_u32 s8, %d' % (st - PF0)); I('s_cbranch_scc1 %s' % lab)
            I('s_lshr_b32 s8, s2, 3'); I('s_lshl_b32 s8, s8, 3'); I('s_add_u32 s8, s8, s%d' % S_WAVE); I('s_lshl_b32 s8, s8, 13')
            I('v_lshlrev_b32 v%d, 7, v%d' % (TMP + 8, VLANE))
            self.U('buffer_load_dword a80, v%d, %s, s8 offen' % (TMP + 8, sr(S_W2, 4)))
            I('s_sub_u32 s8, s8, %d' % (196 * 8192)); I('s_cbranch_scc1 %s' % lab)
            self.U('buffer_load_dword a80, v%d, %s, s8 offen' % (TMP + 8, sr(S_WO, 4)))
            self.g.label(lab)
        return [a]

    def code_pf(self, tg, tmp, dst):
        if 'nocpf' in EXP: return []
        I = self.I
        with self.g.capture() as a:
            I('s_getpc_b64 s[8:9]'); self.g.label('L_cpf%s' % tg)
            I('s_sub_u32 s8, s8, L_cpf%s-L_pc' % tg); I('s_subb_u32 s9, s9, 0')
            I('s_bfe_u32 s10, s2, 0x20003'); I('s_lshl_b32 s10, s10, 3'); I('s_add_u32 s10, s10, s%d' % S_WAVE); I('s_lshl_b32 s10, s10, 11')
            I('v_lshlrev_b32 v%d, 7, v%d' % (tmp, VLANE)); I('v_add_u32 v%d, s10, v%d' % (tmp, tmp)); I('v_min_u32 v%d, L_end-L_pc, v%d' % (tmp, tmp))
            I('s_mov_b64 exec, 0xffff')
            I('global_load_dword %s, v%d, s[8:9]' % (dst, tmp))
            I('s_mov_b64 exec, -1')
        return [a]

    def gemm(self, tiles, gpitch, dms, tag, hooks, tl):
        g = self.g; I = self.I
        dmas = dict(dms)
        NF, LOOK = 8, 4
        seq = [(ks, cc) for ks in range(28) for cc in range(len(tiles[ks & 3]['t']))]
        def wread(n):
            ks, cc = seq[n]; a = WF + 4 * (n % NF); c, areg, off = tiles[ks & 3]['t'][cc]
            return [Instr('ds_read_b64_tr_b16 %s, v%d offset:%d' % (vr(a + 2 * h, 2), areg, off + h * 4 * 448)) for h in range(2)]
        def xread(ks):
            return [Instr('ds_read_b128 %s, v%d' % (vr(XF + 4 * (ks % 2), 4), AX + (ks & 3)))]
        aregs = sorted(set(list(range(AX, AX + 4)) + [t[1] for p in tiles for t in p['t']]))
        def adv(st):
            d = STG if st % 3 else -2 * STG
            return [Instr('v_add_u32 v%d, %d, v%d' % (r, d, r)) if d > 0 else Instr('v_subrev_u32 v%d, %d, v%d' % (r, -d, r)) for r in aregs]
        tc = [0]
        def cs_ops(r, c):
            t = TMP + 2 * (tc[0] % 4); tc[0] += 1
            return [Instr('v_lshlrev_b32 v%d, 16, v%d' % (t, r)), Instr('v_and_b32 v%d, s%d, v%d' % (t + 1, S_MASK, r)),
                    Instr('v_add_f32 v%d, v%d, v%d' % (CS + c, CS + c, t)), Instr('v_add_f32 v%d, v%d, v%d' % (CS + c, CS + c, t + 1))]
        if 'start' in EXP:
            self.stamp('rowst'); I('s_nop 0', needs=dmas[0]); self.stamp('s0arr'); I('s_waitcnt lgkmcnt(0)')
        BAR0 = len(g.cur)
        I('s_barrier', needs=dmas[0])
        self.stamp('bar0')
        g.extend(xread(0))
        first = [wread(n) for n in range(LOOK)]
        for x in first: g.extend(x)
        g1, dmas[1] = self.stage_dma(1, gpitch)
        pend, dmas[2] = self.stage_dma(2, gpitch)
        g.cur[self.s0pos:self.s0pos] = ([] if tag == 'q' else [Instr('s_barrier')]) + [x for gp in g1 for x in gp]
        if tag == 'q':
            with g.capture() as grp_: self.nonce_issue()
            pend = [grp_] + pend
        wrd = {}
        cs = {}
        def cs_poll():
            with g.capture() as a:
                I('s_mov_b32 s%d, %d' % (S_R0, L.WS_CSF))
                self.poll_issue(CS + 2, S_R0, CS + 3)
            return [a]
        def cs_load():
            with g.capture() as a:
                for c, vo, off in tl: I('buffer_load_dwordx4 %s, v%d, %s, s%d offen offset:%d sc1' % (ar(CSA + 4 * c, 4), vo, sr(S_WS, 4), S_CSB, off))
            return [a]
        for n in range(LOOK): wrd[n] = first[n]
        started = set(); xr = 0; cfill = []
        for n, (ks, cc) in enumerate(seq):
            p = tiles[ks & 3]; c = p['t'][cc][0]; a = WF + 4 * (n % NF); xf = XF + 4 * (ks % 2)
            I('v_mfma_f32_32x32x16_bf16 %s, %s, %s, %s' % (vr(ACC + 16 * c, 16), vr(a, 4), vr(xf, 4), vr(ACC + 16 * c, 16) if c in started else '0'),
              needs=wrd.get(n + 1, []) if n % 2 == 0 else [])
            started.add(c)
            nn = n + LOOK
            if nn < len(seq):
                ks2, cc2 = seq[nn]
                if cc2 == 0 and ks2 & 3 == 0:
                    st2 = ks2 >> 2
                    assert xr == ks2 - 1
                    g.extend(adv(st2))
                    if st2 == (1 if tag == 'q' else NST): self.nonce_get_publish(tag)
                    if st2 == 6: self.poll_check('c' + tag, CS + 2, S_R0, CS + 3); self.rs_issue()
                    if st2 in hooks.get('pre', {}): hooks['pre'][st2]()
                    if 'stg' in EXP and st2 in (2, 3, 6): self.stamp('preB%d' % st2)
                    I('s_waitcnt lgkmcnt(0)')
                    I('s_barrier', needs=dmas[st2])
                    if 'stg' in EXP: self.stamp('B%d' % st2)
                    if st2 == 1 and tag != 'q':
                        with g.capture() as grp_: self.nonce_issue()
                        pend += [grp_]
                    if st2 == 5: pend += cs_poll()
                    if st2 == 6: pend += cs_load()
                    if st2 in self.pre_post: pend += self.pre_post[st2]()
                    if st2 + 2 < 7:
                        newg, dmas[st2 + 2] = self.stage_dma(st2 + 2, gpitch); pend += newg
                    if st2 in TSCH: pend += self.mall_issue(1, TSCH[st2])
                    if st2 in hooks.get('post', {}): pend += hooks['post'][st2]()
                wrd[nn] = wread(nn); g.extend(wrd[nn])
            if xr == ks and ks + 1 < 28 and (nn >= len(seq) or seq[min(nn, len(seq) - 1)][0] >= ks + 1):
                g.extend(xread(ks + 1)); xr = ks + 1
            if pend and (n % 3 == 0 or len(pend) > 3): g.extend(pend.pop(0))
        for x in pend: g.extend(x)
        self.stamp('loopend')

    def finish_stats(self, tl, scale, tag, before_b1=None, after_b1=None):
        I = self.I
        wr = []
        if before_b1: wr += before_b1() or []
        self.rs_get(tag, scale)
        for c, vo, off in tl:
            I('v_mfma_f32_32x32x16_bf16 %s, %s, %s, %s' % (vr(ACC + 16 * c, 16), ar(CSA + 4 * c, 4), vr(XF, 4), vr(ACC + 16 * c, 16)))
        if tag == 'f' or 'sb' in EXP: I('s_barrier', needs=wr)
        if after_b1: after_b1()
        if 'stg' in EXP: self.stamp = lambda *a, **k: None
        self.stamp('stats')

    def with_bg(self, fn, tasks, every):
        with self.g.capture() as body:
            fn()
        out = []; tasks = list(tasks); cnt = 0
        for x in body:
            out.append(x); cnt += 1
            if tasks and cnt >= every and x.kind in ('valu', 'trans') and not (x.dst & {'vcc'}):
                out += tasks.pop(0); cnt = 0
        for t in tasks: out += t
        self.g.extend(out)

    def ffn(self):
        I = self.I; g = self.g
        self.tagbase = 'f'
        I('v_mul_u32_u24 v6, 3584, v6'); I('v_lshl_add_u32 v%d, v7, 4, v6' % DW)
        I('s_mul_i32 s%d, s%d, 448' % (S_WSO, S_IDX))
        dms = self.start_stream(3584, (26, 448 * 3584))
        I('s_mul_i32 s10, s%d, 192' % S_CH); I('s_add_u32 s10, s10, %d' % WPART)
        self.read_addrs(False, shared=True)
        self.pre_loop(True, 0); self.pre_post = {}
        own = lambda i, o: [(c, AW + i, 64 * c) for c in o]
        tiles = [dict(t=[(3, AS, 0)] + own(0, [0, 1, 2]), cs=True), dict(t=own(1, [0, 1, 2]), cs=True),
                 dict(t=own(2, [1, 2, 0]) + [(3, AS + 1, 0)], cs=True), dict(t=own(3, [2, 0, 1]), cs=True)]
        self.bdma, self.bread = {}, {}; self.nslot = 5
        tl = [(0, CS, 0), (1, CS, 512), (2, CS, 1024), (3, CS + 1, 0)]
        self.gemm(tiles, 3584, dms, 'f', self.bhooks(), tl)
        self.slot4_setup()
        SH = ACC + 48; X8 = 116
        def before_b1():
            I('s_xor_b32 s8, s%d, 4' % S_WAVE); I('s_lshl_b32 s8, s8, 11'); I('s_add_u32 s8, s8, %d' % L_SHX); I('v_add_u32 v%d, s8, v%d' % (AX, VL16))
            I('s_lshl_b32 s8, s%d, 11' % S_WAVE); I('s_add_u32 s8, s8, %d' % L_SHX); I('v_add_u32 v%d, s8, v%d' % (AX + 1, VL16))
            return [I('ds_write_b128 v%d, %s offset:%d' % (AX, vr(SH + 8 + 4 * q, 4), 1024 * q)) for q in range(2)]
        shr = []
        def after_b1():
            for q in range(2): shr.append(I('ds_read_b128 %s, v%d offset:%d' % (vr(X8 + 4 * q, 4), AX + 1, 1024 * q)))
        self.finish_stats(tl, -L.LOG2E, 'f', before_b1, after_b1)
        I('s_lshl_b32 s8, s%d, 2' % S_RB); I('s_add_u32 s8, s8, s%d' % S_RT); I('s_mul_i32 s9, s8, %d' % (112 * 1024))
        I('s_lshl_b32 s8, s8, 3'); I('s_add_u32 s8, s8, s%d' % S_IDX); I('s_lshl_b32 s8, s8, 1'); I('s_add_u32 s8, s8, s%d' % S_CH)
        I('s_lshl_b32 s8, s8, 7'); I('s_add_u32 s0, s8, %d' % L.WS_FLAG)
        I('s_mul_i32 s10, s%d, %d' % (S_IDX, 14 * 1024)); I('s_add_u32 s9, s9, s10')
        I('s_mul_i32 s10, s%d, 6144' % S_CH); I('s_add_u32 s10, s9, s10')
        I('s_lshl_b32 s11, s%d, 10' % S_CH); I('s_add_u32 s9, s9, s11'); I('s_add_u32 s1, s9, %d' % (12 * 1024))
        stores = []
        def unit(idx):
            c, u = divmod(idx, 2)
            A = ACC + 16 * c + 8 * u; T = [64, 72][idx & 1]; P = [80, 84][idx & 1]
            if 'noprio' not in EXP:
                lab = 'L_fp%d' % idx
                I('s_setprio 0'); I('s_cmp_eq_u32 s%d, %d' % (S_CH, idx & 1)); I('s_cbranch_scc1 %s' % lab); I('s_setprio 1'); self.g.label(lab)
            if c == 3:
                for j in range(0, 8, 2): I('v_pk_add_f32 %s, %s, %s' % (vr(A + j, 2), vr(A + j, 2), vr(X8 + j, 2)))
            for j in range(0, 8, 2): I('v_pk_mul_f32 %s, %s, %s op_sel_hi:[1,0]' % (vr(A + j, 2), vr(A + j, 2), vr(ST, 2)))
            for j in range(8): I('v_exp_f32 v%d, v%d' % (T + j, A + j))
            for j in range(0, 8, 2): I('v_pk_add_f32 %s, %s, 1.0 op_sel_hi:[1,0]' % (vr(T + j, 2), vr(T + j, 2)))
            for j in range(8): I('v_rcp_f32 v%d, v%d' % (T + j, T + j))
            for j in range(0, 8, 2): I('v_pk_mul_f32 %s, %s, %s' % (vr(T + j, 2), vr(T + j, 2), vr(A + j, 2)))
            for j in range(0, 8, 2): I('v_cvt_pk_bf16_f32 v%d, v%d, v%d' % (P + j // 2, T + j, T + j + 1))
            if idx == 4: I('s_add_u32 s10, s10, 4096')
            if c < 3: stores.append(I('buffer_store_dwordx4 %s, v%d, %s, s10 offen offset:%d sc1' % (vr(P, 4), VL16, sr(S_WS, 4), (idx % 4) * 1024)))
            else: stores.append(I('buffer_store_dwordx4 %s, v%d, %s, s1 offen sc1' % (vr(P, 4), VL16, sr(S_WS, 4))))
        self.with_bg(lambda: [unit(i) for i in range(6)], self.b_round1(shr), int(os.environ.get('FBG', '11')))
        unit(6)
        I('s_setprio 0')
        self.stamp('epi')
        self.p2_enter()
        bt = self.b_tasks(4, 9)
        for t in bt[:5]: g.extend(t)
        self.publish(0, 96, needs=stores)
        self.stamp('pub')
        if 'nofh' not in EXP: I('s_barrier')
        FP = 5 + int(os.environ.get('FP', '3'))
        for t in bt[5:FP]: g.extend(t)
        pa = self.poll_issue(P2T + 1, S_FA, P2T)
        for t in bt[FP:] + (self.wo_dma() if 'fwo' in EXP else []): g.extend(t)
        I('s_waitcnt lgkmcnt(0)'); I('s_nop 0', needs=[pa])
        I('s_branch L_p2')

    def b_round1(self, need4=None):
        t = [sum([self.b_read(k) for k in range(4)], [])]
        if need4 is not None: t += self.b_dma(4, needs=need4)
        for k in range(4): t += self.b_dma(k + 5, needs=self.bread[k])
        return t

    def bhooks(self, extra=None):
        post = {5: lambda: [[Instr('v_add_u32 v%d, %d, v%d' % (DB2, 8 * 896 - 1024, DB))]] + self.b_dma(0) + self.b_dma(1), 6: lambda: self.b_dma(2) + self.b_dma(3)}
        if extra: post.update(extra)
        return dict(post=post)

    def pack_k(self, A, K8):
        I = self.I
        for j in range(8): I('v_cvt_pk_bf16_f32 v%d, v%d, v%d' % (K8 + j, A + 2 * j, A + 2 * j + 1))
        for j in (6, 7): I('v_cndmask_b32 v%d, v%d, 0, %s' % (K8 + j, K8 + j, sr(S_HIM, 2)))
    def half_units(self, As, neg):
        I = self.I; M = 64; n = '-' if neg else ''; nm = ' neg_lo:[1,0,0] neg_hi:[1,0,0]' if neg else ''
        def each(f):
            for i, A in enumerate(As): f(A, M + 6 * i)
        I('v_mov_b32 v%d, 0xff800000' % (TMP + 10))
        each(lambda A, m: (I('v_max3_f32 v%d, %sv%d, %sv%d, %sv%d' % (m, n, A, n, A + 1, n, A + 2)), I('v_max3_f32 v%d, %sv%d, %sv%d, %sv%d' % (m + 1, n, A + 8, n, A + 9, n, A + 10))))
        for j in (3, 5): each(lambda A, m: (I('v_max3_f32 v%d, v%d, %sv%d, %sv%d' % (m, m, n, A + j, n, A + j + 1)), I('v_max3_f32 v%d, v%d, %sv%d, %sv%d' % (m + 1, m + 1, n, A + 8 + j, n, A + 9 + j))))
        each(lambda A, m: I('v_max3_f32 v%d, v%d, %sv%d, %sv%d' % (m + 1, m + 1, n, A + 7, n, A + 15)))
        each(lambda A, m: I('v_max_f32 v%d, v%d, v%d' % (m, m, m + 1)))
        each(lambda A, m: I('v_mov_b32 v%d, v%d' % (m + 1, m)))
        each(lambda A, m: I('v_permlane32_swap_b32 v%d, v%d' % (m, m + 1)))
        each(lambda A, m: I('v_max_f32 v%d, v%d, v%d' % (m, m, m + 1)))
        each(lambda A, m: I('v_mul_f32 v%d, -v%d, v%d' % (m, ST, m)))
        each(lambda A, m: I('v_cndmask_b32 v%d, v%d, v%d, %s' % (m + 1, m, TMP + 10, sr(S_HIM, 2))))
        for j in range(0, 16, 2):
            sel = 'op_sel_hi:[1,0,0]' if j < 12 else 'op_sel:[0,0,1] op_sel_hi:[1,0,1]'
            each(lambda A, m: I('v_pk_fma_f32 %s, %s, %s, %s %s%s' % (vr(A + j, 2), vr(A + j, 2), vr(ST, 2), vr(m, 2), sel, nm)))
        for j in range(16): each(lambda A, m: I('v_exp_f32 v%d, v%d' % (A + j, A + j)))
        each(lambda A, m: (I('v_pk_add_f32 %s, %s, %s' % (vr(m + 2, 2), vr(A, 2), vr(A + 2, 2))), I('v_pk_add_f32 %s, %s, %s' % (vr(m + 4, 2), vr(A + 8, 2), vr(A + 10, 2)))))
        for j in (4, 6): each(lambda A, m: (I('v_pk_add_f32 %s, %s, %s' % (vr(m + 2, 2), vr(m + 2, 2), vr(A + j, 2))), I('v_pk_add_f32 %s, %s, %s' % (vr(m + 4, 2), vr(m + 4, 2), vr(A + 8 + j, 2)))))
        each(lambda A, m: I('v_pk_add_f32 %s, %s, %s' % (vr(m + 2, 2), vr(m + 2, 2), vr(m + 4, 2))))
        each(lambda A, m: I('v_add_f32 v%d, v%d, v%d' % (m, m + 2, m + 3)))
        each(lambda A, m: I('v_mov_b32 v%d, v%d' % (m + 1, m)))
        each(lambda A, m: I('v_permlane32_swap_b32 v%d, v%d' % (m, m + 1)))
        each(lambda A, m: I('v_add_f32 v%d, v%d, v%d' % (m, m, m + 1)))
        each(lambda A, m: I('v_rcp_f32 v%d, v%d' % (m, m)))
        for j in range(0, 16, 2): each(lambda A, m: I('v_pk_mul_f32 %s, %s, %s op_sel_hi:[1,0]' % (vr(A + j, 2), vr(A + j, 2), vr(m, 2))))
        for j in range(8): each(lambda A, m: I('v_cvt_pk_bf16_f32 v%d, v%d, v%d' % (A + j, A + 2 * j, A + 2 * j + 1)))
    def phi_mfma(self, A, K8, WP):
        I = self.I
        I('v_mfma_f32_32x32x16_bf16 %s, %s, %s, 0' % (vr(A, 16), ar(WP, 4), vr(K8, 4)))
        I('v_mfma_f32_32x32x16_bf16 %s, %s, %s, %s' % (vr(A, 16), ar(WP + 4, 4), vr(K8 + 4, 4), vr(A, 16)))
    def softmax_unit(self, A, sreg=None):
        I = self.I
        EP, EN, M = 64, 80, TMP
        mx, nm, t, u = M, M + 1, M + 2, M + 4
        I('v_mov_b32 v%d, 0xff800000' % (M + 10))
        m2, n2 = M + 6, M + 7
        for (a, b, o) in ((mx, nm, 0), (m2, n2, 8)):
            I('v_max3_f32 v%d, v%d, v%d, v%d' % (a, A + o, A + o + 1, A + o + 2)); I('v_max3_f32 v%d, -v%d, -v%d, -v%d' % (b, A + o, A + o + 1, A + o + 2))
        for j in (3, 5):
            for (a, b, o) in ((mx, nm, 0), (m2, n2, 8)):
                I('v_max3_f32 v%d, v%d, v%d, v%d' % (a, a, A + o + j, A + o + j + 1)); I('v_max3_f32 v%d, v%d, -v%d, -v%d' % (b, b, A + o + j, A + o + j + 1))
        I('v_max3_f32 v%d, v%d, v%d, v%d' % (m2, m2, A + 7, A + 15)); I('v_max3_f32 v%d, v%d, -v%d, -v%d' % (n2, n2, A + 7, A + 15))
        I('v_max_f32 v%d, v%d, v%d' % (mx, mx, m2)); I('v_max_f32 v%d, v%d, v%d' % (nm, nm, n2))
        I('v_permlane32_swap_b32 v%d, v%d' % (mx, nm)); I('v_max_f32 v%d, v%d, v%d' % (t, mx, nm))
        I('v_mul_f32 v%d, -v%d, v%d' % (t, ST, t)); I('v_mov_b32 v%d, v%d' % (u, t)); I('v_permlane32_swap_b32 v%d, v%d' % (t, u))
        I('v_cndmask_b32 v%d, v%d, v%d, %s' % (t + 1, t, M + 10, sr(S_HIM, 2))); I('v_cndmask_b32 v%d, v%d, v%d, %s' % (u + 1, u, M + 10, sr(S_HIM, 2)))
        for j in range(0, 16, 2):
            sel = 'op_sel_hi:[1,0,0]' if j < 12 else 'op_sel:[0,0,1] op_sel_hi:[1,0,1]'
            I('v_pk_fma_f32 %s, %s, %s, %s %s' % (vr(EP + j, 2), vr(A + j, 2), vr(ST, 2), vr(t, 2), sel))
            I('v_pk_fma_f32 %s, %s, %s, %s %s neg_lo:[1,0,0] neg_hi:[1,0,0]' % (vr(EN + j, 2), vr(A + j, 2), vr(ST, 2), vr(u, 2), sel))
        for j in range(16): I('v_exp_f32 v%d, v%d' % (EP + j, EP + j)); I('v_exp_f32 v%d, v%d' % (EN + j, EN + j))
        sp, sn = M + 6, M + 8
        I('v_pk_add_f32 %s, %s, %s' % (vr(sp, 2), vr(EP, 2), vr(EP + 2, 2))); I('v_pk_add_f32 %s, %s, %s' % (vr(sn, 2), vr(EN, 2), vr(EN + 2, 2)))
        for j in range(4, 16, 2):
            I('v_pk_add_f32 %s, %s, %s' % (vr(sp, 2), vr(sp, 2), vr(EP + j, 2))); I('v_pk_add_f32 %s, %s, %s' % (vr(sn, 2), vr(sn, 2), vr(EN + j, 2)))
        I('v_add_f32 v%d, v%d, v%d' % (sp, sp, sp + 1)); I('v_add_f32 v%d, v%d, v%d' % (sn, sn, sn + 1))
        I('v_permlane32_swap_b32 v%d, v%d' % (sp, sn)); I('v_add_f32 v%d, v%d, v%d' % (t, sp, sn))
        if sreg is None:
            I('v_rcp_f32 v%d, v%d' % (t, t)); I('v_mov_b32 v%d, v%d' % (u, t)); I('v_permlane32_swap_b32 v%d, v%d' % (t, u))
            for j in range(0, 16, 2):
                I('v_pk_mul_f32 %s, %s, %s op_sel_hi:[1,0]' % (vr(EP + j, 2), vr(EP + j, 2), vr(t, 2)))
                I('v_pk_mul_f32 %s, %s, %s op_sel_hi:[1,0]' % (vr(EN + j, 2), vr(EN + j, 2), vr(u, 2)))
            for j in range(8):
                I('v_cvt_pk_bf16_f32 v%d, v%d, v%d' % (A + j, EP + 2 * j, EP + 2 * j + 1)); I('v_cvt_pk_bf16_f32 v%d, v%d, v%d' % (A + 8 + j, EN + 2 * j, EN + 2 * j + 1))
        else:
            I('v_mov_b32 v%d, v%d' % (u, t))
            for j in range(2): I('v_cvt_pk_bf16_f32 v%d, v%d, v%d' % (A + j, EP + 2 * j, EP + 2 * j + 1))
            I('v_permlane32_swap_b32 v%d, v%d' % (t, u)); I('v_rcp_f32 v%d, v%d' % (u, u))
            for j in range(2, 8): I('v_cvt_pk_bf16_f32 v%d, v%d, v%d' % (A + j, EP + 2 * j, EP + 2 * j + 1))
            I('v_mul_f32 v%d, v%d, v%d' % (u, u, t)); I('v_mov_b32 v%d, v%d' % (sreg, t))
            for j in range(0, 16, 2): I('v_pk_mul_f32 %s, %s, %s op_sel_hi:[1,0]' % (vr(EN + j, 2), vr(EN + j, 2), vr(u, 2)))
            for j in range(8): I('v_cvt_pk_bf16_f32 v%d, v%d, v%d' % (A + 8 + j, EN + 2 * j, EN + 2 * j + 1))

    def wphi_dma(self, n, head0_s):
        I = self.I; out = []
        I('s_mul_i32 s8, s%d, 1568' % head0_s); I('s_lshl_b32 s9, s%d, 10' % S_WAVE); I('s_add_u32 s8, s8, s9'); I('s_add_u32 s9, s9, %d' % L_WPHI)
        for i in range(n):
            I('s_add_u32 m0, s9, %d' % (8192 * i)); I('s_add_u32 s10, s8, %d' % (8192 * i))
            out.append(I('buffer_load_dwordx4 v%d, %s, s10 offen lds' % (VL16, sr(S_PHI, 4))))
        return out
    def wphi_read(self, nheads, hoff_s, WP):
        I = self.I; T = TMP + 9
        I('v_lshrrev_b32 v%d, 5, v%d' % (T, VLANE)); I('v_lshlrev_b32 v%d, 2, v%d' % (T, T)); I('v_bfe_u32 v%d, v%d, 2, 2' % (T + 1, VLANE)); I('v_add_u32 v%d, v%d, v%d' % (T, T, T + 1))
        I('v_mul_u32_u24 v%d, 56, v%d' % (T, T)); I('v_add_u32 v%d, s%d, v%d' % (T, hoff_s, T))
        I('v_bfe_u32 v%d, v%d, 4, 1' % (T + 1, VLANE)); I('v_lshlrev_b32 v%d, 2, v%d' % (T + 1, T + 1)); I('v_and_or_b32 v%d, v%d, 3, v%d' % (T + 1, VLANE, T + 1))
        I('v_min_u32 v%d, 6, v%d' % (T + 1, T + 1)); I('v_lshl_add_u32 v%d, v%d, 3, v%d' % (T, T + 1, T))
        for i in range(nheads):
            for s in range(2):
                for h in range(2):
                    I('ds_read_b64_tr_b16 %s, v%d offset:%d' % (ar(WP + 8 * i + 4 * s + 2 * h, 2), T, i * 1568 + (16 * s + 8 * h) * 56))

    def kv_common(self):
        I = self.I; g = self.g
        self.tagbase = 'k'
        I('s_lshl_b32 s8, s%d, 2' % S_IDX); I('s_lshr_b32 s9, 0xdb9630, s8'); I('s_and_b32 s9, s9, 15')
        I('s_lshr_b32 s10, 0x322333, s8'); I('s_and_b32 s10, s10, 15')
        I('s_mul_i32 s11, s9, 56'); I('s_and_b32 s%d, s11, -16' % S_WSO); I('s_and_b32 s11, s11, 8')
        I('s_mul_i32 s8, s10, 3'); I('s_add_u32 s8, s8, 1')
        I('v_cmp_lt_u32 vcc, 13, v7'); I('v_subrev_u32 v8, 14, v7'); I('v_cndmask_b32 v8, v7, v8, vcc'); I('v_min_u32 v8, s8, v8')
        I('v_mov_b32 v9, 896'); I('v_mov_b32 v10, 1792'); I('v_cndmask_b32 v9, v9, v10, vcc')
        I('v_mul_u32_u24 v6, 2688, v6'); I('v_add_u32 v6, v6, v9'); I('v_lshl_add_u32 v%d, v8, 4, v6' % DW)
        I('s_mov_b32 s98, s9'); I('s_mov_b32 s99, s10'); I('s_mov_b32 s100, s11')
        dms = self.start_stream(2688, (18, 448 * 2688))
        I('s_mov_b32 s0, s98'); I('s_mov_b32 s1, s99')
        I('s_mul_i32 s10, s%d, 224' % S_CH); I('s_add_u32 s10, s10, s100'); I('s_add_u32 s10, s10, %d' % WPART)
        self.read_addrs(True)
        PW, HO, UA, VW, ZV = 48, 50, 51, 54, 58
        def kvx():
            I('s_mov_b32 s%d, s0' % S_H0); I('s_mov_b32 s%d, s1' % S_NH)
        def kvp():
            I('s_mov_b32 s%d, s%d' % (S_R0, S_H0))
            I('s_lshl_b32 s8, s%d, 13' % S_H0); I('s_lshl_b32 s9, s%d, 10' % S_WAVE); I('s_add_u32 s8, s8, s9'); I('s_add_u32 s26, s8, %d' % L.WS_KV)
            I('s_add_u32 s27, s26, 16384'); I('s_cmp_eq_u32 s%d, 3' % S_NH); I('s_cselect_b32 s27, s27, 0x7f000000')
            for i in range(4): I('v_mov_b32 v%d, 0' % (60 + i))
            for gp in post4(): g.extend(gp)
        self.pre_s1k = kvp
        def kvl():
            I('s_cmp_lg_u32 s%d, 0' % S_RB); I('s_cbranch_scc1 L_nozero')
            self.U('buffer_store_dwordx4 v[60:63], v%d, %s, s26 offen sc1' % (VL16, sr(S_WS, 4))); I('s_add_u32 s26, s26, 8192')
            self.U('buffer_store_dwordx4 v[60:63], v%d, %s, s26 offen sc1' % (VL16, sr(S_WS, 4)))
            self.U('buffer_store_dwordx4 v[60:63], v%d, %s, s27 offen sc1' % (VL16, sr(S_WS, 4))); I('s_nop 1')
            self.g.label('L_nozero')
        kv_pre = lambda: self.pre_loop(True, 8, kvx)
        def zpost():
            with g.capture() as a: kvl()
            return [a]
        rot = lambda i: [((i + cc) % 3, AW + i, 56 * ((i + cc) % 3)) for cc in range(3)]
        tiles = [dict(t=rot(i), cs=(i < 3)) for i in range(4)]
        self.bdma, self.bread = {}, {}; self.nslot = 5
        def pre2():
            pass
        def post2():
            with g.capture() as a:
                I('s_mov_b32 s8, %d' % L_WPHI)
                self.wphi_read(3, 8, 88)
            return [a]
        def post3():
            with g.capture() as a:
                I('s_or_b32 s8, s%d, s%d' % (S_RB, S_WAVE)); I('s_cmp_lg_u32 s8, 0'); I('s_cbranch_scc1 L_nozf')
                I('s_lshl_b32 s8, s%d, 7' % S_IDX); I('s_add_u32 s8, s8, %d' % (L.WS_KVZ + 0x4000))
                self.publish(8, TMP + 8).kind = 'untracked'
                self.g.label('L_nozf')
            return [a]
        self.kvr = (PW, HO, UA, VW, ZV)
        def post4():
            A, B, C = 64, 65, 66; out = []
            with g.capture() as a:
                I('v_and_b32 v%d, 31, v%d' % (A, VLANE)); I('v_lshlrev_b32 v%d, 6, v%d' % (A, A)); I('s_lshl_b32 s8, s%d, 11' % S_RT); I('v_add_u32 v%d, s8, v%d' % (A, A))
                I('v_bfe_u32 v%d, v%d, 1, 2' % (B, VLANE)); I('v_lshl_add_u32 v%d, v%d, 4, v%d' % (A, B, A))
                I('v_lshrrev_b32 v%d, 5, v%d' % (B, VLANE))
                I('v_lshl_add_u32 v%d, v%d, 13, v%d' % (PW, B, A)); I('s_lshl_b32 s9, s%d, 5' % S_CH); I('v_xor_b32 v%d, s9, v%d' % (PW, PW)); I('v_xor_b32 v%d, 16, v%d' % (PW + 1, PW))
                I('s_add_u32 s8, s8, %d' % L_V); I('v_add_u32 v%d, s8, v%d' % (HO, VL16))
                I('v_lshl_add_u32 v%d, v%d, 3, v%d' % (VW, B, A)); I('v_add_u32 v%d, %d, v%d' % (VW, L_V, VW))
                for q in range(1, 4): I('v_xor_b32 v%d, %d, v%d' % (VW + q, 16 * q, VW))
                I('v_lshlrev_b32 v%d, 10, v%d' % (UA + 2, B)); I('v_and_b32 v%d, 31, v%d' % (A, VLANE)); I('v_lshl_add_u32 v%d, v%d, 2, v%d' % (UA + 2, A, UA + 2))
            out.append(a)
            with g.capture() as a:
                I('v_lshrrev_b32 v%d, 5, v%d' % (A, VLANE)); I('v_bfe_u32 v%d, v%d, 2, 2' % (B, VLANE)); I('v_lshl_add_u32 v%d, v%d, 2, v%d' % (A, A, B))
                I('v_bfe_u32 v%d, v%d, 4, 1' % (B, VLANE)); I('v_bfe_u32 v%d, v%d, 1, 1' % (C, VLANE)); I('v_lshl_add_u32 v%d, v%d, 1, v%d' % (B, B, C))
                I('v_lshrrev_b32 v%d, 1, v%d' % (C, A)); I('v_xor_b32 v%d, v%d, v%d' % (B, B, C)); I('v_lshlrev_b32 v%d, 6, v%d' % (A, A)); I('v_lshl_add_u32 v%d, v%d, 4, v%d' % (A, B, A))
                I('v_and_b32 v%d, 1, v%d' % (B, VLANE)); I('v_lshl_add_u32 v%d, v%d, 3, v%d' % (A, B, A))
                I('s_lshl_b32 s10, s%d, 13' % S_WAVE); I('v_add_u32 v%d, s10, v%d' % (UA + 1, A))
                I('s_lshr_b32 s9, s%d, 1' % S_WAVE); I('s_lshl_b32 s10, s9, 13'); I('s_add_u32 s10, s10, %d' % L_V); I('v_add_u32 v%d, s10, v%d' % (UA, A))
                I('s_add_u32 s10, s9, s%d' % S_H0); I('s_lshl_b32 s10, s10, 13'); I('s_and_b32 s8, s%d, 1' % S_WAVE); I('s_lshl_b32 s8, s8, 7'); I('s_add_u32 s10, s10, s8')
                I('s_add_u32 s0, s10, %d' % L.WS_KV)
                I('s_cmp_lt_u32 s9, s%d' % S_NH); I('s_cselect_b32 s%d, 1, 0' % S_NH)
                I('s_lshl_b32 s8, s%d, 4' % S_IDX); I('s_add_u32 s8, s8, s%d' % S_RB); I('s_lshl_b32 s8, s8, 7'); I('s_add_u32 s1, s8, %d' % L.WS_KVZ)
                I('s_lshl_b32 s%d, s%d, 7' % (S_H0, S_IDX)); I('s_add_u32 s%d, s%d, %d' % (S_H0, S_H0, L.WS_KVZ + 0x4000)); I('v_mov_b32 v%d, 0' % ZV)
            out.append(a)
            return out
        kv_pre()
        def wpd():
            with g.capture() as a: self.wphi_dma(1, S_R0)
            return [a]
        self.pre_post = {2: wpd, 1: zpost}
        hk = self.bhooks({4: post2, NST: post3})
        p6 = hk['post'][6]
        def post6():
            with g.capture() as a: self.poll_issue(ZV, S_H0, ZV + 1)
            return [a] + p6() + (self.b_tasks(0, 2) if 'kb2' in EXP else [])
        hk['post'][6] = post6
        tl = [(c, CS, 448 * c) for c in range(3)]
        self.gemm(tiles, 2688, dms, 'k', hk, tl)
        self.finish_stats(tl, L.LOG2E, 'k', self.slot4_setup)
        I('s_cmp_eq_u32 s%d, 1' % S_CH); I('s_cbranch_scc1 L_kv_v')

    def kv_rest(self, tg, As, wr):
        I = self.I; g = self.g; PW, HO, U, VW, ZV = self.kvr
        self.poll_check('z' + tg, ZV, S_H0, ZV + 1)
        I('s_add_u32 s10, s0, 4096'); I('s_lshr_b32 s11, s%d, 1' % S_WAVE)
        D = ACC
        def unit():
            B = [80, 88, 96, 112]
            def rd(s):
                b = B[s % 4]
                for h in range(2):
                    I('ds_read_b64_tr_b16 %s, v%d offset:%d' % (vr(b + 2 * h, 2), U, (16 * s + 8 * h) * 64))
                    I('ds_read_b64_tr_b16 %s, v%d offset:%d' % (vr(b + 4 + 2 * h, 2), U + 1, (16 * s + 8 * h) * 64))
            for s in range(3): rd(s)
            for s in range(8):
                if s + 3 < 8: rd(s + 3)
                b = B[s % 4]
                I('v_mfma_f32_32x32x16_bf16 %s, %s, %s, %s' % (vr(D, 16), vr(b, 4), vr(b + 4, 4), vr(D, 16) if s else '0'))
        def atoms():
            out = []
            for r in range(15):
                with g.capture() as a:
                    if r == 14: I('s_mov_b32 exec_hi, 0')
                    for rr in ((r,) if r < 14 else (14, 15)):
                        d = (rr & 3) + 8 * (rr >> 2)
                        I('buffer_atomic_add_f32 v%d, v%d, %s, s%d offen offset:%d' % (D + rr, U + 2, sr(S_WS, 4), 0 if d < 16 else 10, (d % 16) * 256))
                    if r == 14: I('s_mov_b64 exec, -1')
                out.append(a)
            return out
        def pw(i): return [I('ds_write_b128 v%d, %s offset:%d' % (PW + q, vr(As[i] + 4 * q, 4), L_PHI + 16384 * i)) for q in range(2)]
        IL = False
        if 'seq' in EXP:
            ng = tg == 'v'
            self.with_bg(lambda: self.half_units(As[:1], ng), self.b_round1(), int(os.environ.get('KBG', '14')) // 2)
            pw(0); I('s_waitcnt lgkmcnt(0)'); I('s_barrier')
            for i in (1, 2):
                if tg == 'k':
                    I('s_cmp_lg_u32 s11, %d' % (i - 1)); I('s_cbranch_scc1 L_kp%d' % i)
                    unit()
                    at = atoms()
                    for a in at:
                        for x in a:
                            if x.kind == 'vstore': x.kind = 'untracked'; x.src = set(x.src)
                    I('s_nop 7'); I('s_nop 3')
                    self.with_bg(lambda: self.half_units(As[i:i + 1], False), at, int(os.environ.get('ABG', '4')))
                    I('s_branch L_kq%d' % i); self.g.label('L_kp%d' % i)
                    self.half_units(As[i:i + 1], False)
                    self.g.label('L_kq%d' % i)
                else: self.half_units(As[i:i + 1], True)
                pw(i); I('s_waitcnt lgkmcnt(0)'); I('s_barrier')
        else:
            if 'kb2' in EXP:
                bg = self.b_tasks(2, 4) + self.b_tasks(5, 7) + self.b_tasks(7, 9)
                bg = [bg[0] + bg[1], bg[2], bg[3], bg[4] + bg[5], bg[6], bg[7], [], bg[8] + bg[9], bg[10], bg[11]]
                self.with_bg(lambda: self.half_units(As[:2], tg == 'v'), bg, int(os.environ.get('KB2', '13')))
            else: self.with_bg(lambda: self.half_units(As[:2], tg == 'v'), self.b_round1(), int(os.environ.get('KBG', '14')))
            pw(0); pw(1)
            I('s_waitcnt lgkmcnt(0)'); I('s_barrier')
            IL = 'il' in EXP
            def mix(at, bt):
                out = []; k = max(1, len(at) // max(1, len(bt)))
                while at or bt:
                    out += at[:k]; at = at[k:]
                    if bt: out.append(bt.pop(0))
                return out
            at = []
            if tg == 'k':
                unit()
                at = atoms(); n1 = int(os.environ.get('AN1', '7')) if IL else 15
                self.with_bg(lambda: self.half_units(As[2:], False), at[:n1], int(os.environ.get('ABG', '4'))); at = at[n1:]
            else: self.half_units(As[2:], True)
            pw(2)
            if IL:
                for k in range(5, 9): g.extend(self.b_read(k))
            I('s_waitcnt lgkmcnt(0)'); I('s_barrier')
        self.stamp('bb')
        if IL: bt = sum([self.b_dma(k + 5) for k in range(5, 9)], [])
        if tg == 'k' and IL:
            for t in mix(at, bt): g.extend(t)
        if tg == 'v':
            I('s_cmp_eq_u32 s%d, 0' % S_NH); I('s_cbranch_scc1 L_nounitv%s' % ('2' if IL else '')); I('s_setprio 3')
            unit()
            I('s_nop 7'); I('s_nop 4')
            for a in (mix(atoms(), list(bt)) if IL else atoms()):
                for x in a:
                    if x.kind in ('vstore', 'dma'): x.kind = 'untracked'
                g.extend(a)
            if IL:
                I('s_branch L_nounitv'); self.g.label('L_nounitv2')
                for t in sum([self.b_dma(k + 5) for k in range(5, 9)], []): g.extend(t)
        self.g.label('L_nounit%s' % tg)
        I('s_waitcnt vmcnt(0)')
        I('s_barrier')
        if True:
            I('s_cmp_lg_u32 s%d, 7' % S_WAVE); I('s_cbranch_scc1 L_nokf%s' % tg)
            self.publish(1, 96).kind = 'untracked'
            self.g.label('L_nokf%s' % tg)
            self.stamp('kvdone')
        I('s_setprio 0')
        bulk = self.b_dma(4)
        if 'il' not in EXP and 'kb2' not in EXP:
            for k in range(5, 9): g.extend(self.b_read(k))
            for k in range(5, 9): bulk += self.b_dma(k + 5, needs=self.bread[k])
        KP = int(os.environ.get('KP', '3'))
        for t in bulk[:KP]: g.extend(t)
        self.p2_enter()
        pa = self.poll_issue(P2T + 1, S_FA, P2T)
        for t in bulk[KP:] + self.b_tasks(4, 5): g.extend(t)
        I('s_waitcnt lgkmcnt(0)'); I('s_nop 0', needs=[pa])
        I('s_branch L_p2')

    def kv_k(self):
        I = self.I; g = self.g; PW, HO, U, VW, ZV = self.kvr
        wr = []
        for i in range(3):
            N = 80 + 8 * i
            self.pack_k(ACC + 16 * i, N)
            wr += [I('ds_write_b128 v%d, %s offset:%d' % (HO, vr(N + 4 * q, 4), 8192 * i + 1024 * q)) for q in range(2)]
        I('s_barrier', needs=wr)
        for i in range(3): self.phi_mfma(ACC + 16 * i, 80 + 8 * i, 88 + 8 * i)
        self.kv_rest('k', [ACC, ACC + 16, ACC + 32], [])

    def kv_v(self):
        I = self.I; g = self.g; PW, HO, U, VW, ZV = self.kvr
        if 'vprio' in EXP: I('s_setprio 1')
        I('v_cndmask_b32 v%d, v%d, 0, %s' % (CS, ST + 1, sr(S_HIM, 2))); I('v_cndmask_b32 v%d, 0, 1.0, %s' % (CS + 1, sr(S_HIM, 2)))
        PV = [88, 96, 112]
        def vpath(i):
            A = ACC + 16 * i
            for j in range(0, 12, 2): I('v_pk_mul_f32 %s, %s, %s op_sel:[0,1] op_sel_hi:[1,1]' % (vr(A + j, 2), vr(A + j, 2), vr(ST, 2)))
            for j in (12, 14): I('v_pk_fma_f32 %s, %s, %s, %s op_sel:[0,0,1] op_sel_hi:[1,0,1]' % (vr(A + j, 2), vr(A + j, 2), vr(CS, 2), vr(CS, 2)))
            for j in range(8): I('v_cvt_pk_bf16_f32 v%d, v%d, v%d' % (PV[i] + j, A + 2 * j, A + 2 * j + 1))
        vpath(0); vpath(1)
        I('s_barrier')
        rd = [I('ds_read_b128 %s, v%d offset:%d' % (vr(64 + 8 * i + 4 * q, 4), HO, 8192 * i + 1024 * q)) for i in range(3) for q in range(2)]
        vpath(2)
        wr = []
        for i in range(3):
            self.phi_mfma(ACC + 16 * i, 64 + 8 * i, 88 + 8 * i)
            wr += [I('ds_write_b64 v%d, %s offset:%d' % (VW + q, vr(PV[i] + 2 * q, 2), 8192 * i), needs=rd[2 * i:2 * i + 2]) for q in range(4)]
        self.kv_rest('v', [ACC, ACC + 16, ACC + 32], wr)
    _uid = 0
    def uid(self):
        K._uid += 1
        return str(K._uid)

    def q(self):
        I = self.I; g = self.g
        self.tagbase = 'q'
        CR = lambda i: 16 + 4 * i if i < 12 else 32 + 4 * i
        I('s_lshl_b32 s8, s%d, 1' % S_RB); I('s_add_u32 s8, s8, s%d' % S_IDX); I('s_lshl_b32 s98, s%d, 5' % S_WAVE); I('s_add_u32 s98, s98, s8')
        I('s_lshr_b32 s9, s98, 2'); I('s_mov_b32 s99, 2688'); I('s_cmp_lt_u32 s9, 28'); I('s_cselect_b32 s99, 3584, s99'); I('s_cselect_b32 s8, 0, 28')
        I('s_sub_u32 s9, s9, s8'); I('s_lshl_b32 s9, s9, 7'); I('s_and_b32 s8, s98, 3'); I('s_mul_i32 s8, s8, 112'); I('s_mul_i32 s8, s8, s99'); I('s_add_u32 s9, s9, s8')
        I('v_lshrrev_b32 v8, 3, v0'); I('v_mul_lo_u32 v8, v8, s99'); I('v_and_b32 v9, 7, v0'); I('v_lshl_add_u32 v8, v9, 4, v8'); I('v_add_u32 v8, s9, v8'); I('s_lshl_b32 s8, s99, 3')
        self.karg(18, 448 * 2688)
        I('s_mov_b32 s0, s98'); I('s_cmp_ge_u32 s0, 196'); I('s_cbranch_scc1 L_nocl')
        I('s_cmp_lt_u32 s0, 112'); I('s_cselect_b64 s[10:11], s[26:27], s[18:19]')
        for i in range(14):
            self.U('global_load_dwordx4 %s, v8, s[10:11]%s' % (vr(CR(i), 4), ' nt' if 'qnt' in EXP else ''))
            if i < 13: I('v_add_u32 v8, s8, v8')
        self.g.label('L_nocl')
        self.rest_srds()
        I('v_mul_u32_u24 v6, 2688, v6'); I('v_lshl_add_u32 v%d, v7, 4, v6' % DW)
        I('s_mul_i32 s%d, s%d, 448' % (S_WSO, S_IDX))
        dms = self.start_stream(2688) if 'qmid' in EXP else {}
        I('s_mul_i32 s10, s%d, 224' % S_CH); I('s_add_u32 s10, s10, %d' % WPART)
        self.read_addrs(True)
        def qcs():
            A = 88
            I('s_mov_b32 s8, 0x00003f80'); I('s_mov_b32 s9, 0x3f800000')
            I('s_cmp_ge_u32 s0, 196'); I('s_cbranch_scc1 L_nocs')
            for i in range(14):
                if i % 2 == 0: self.U('s_waitcnt vmcnt(%d)' % (12 - i + (i > 6) + 7 * ('qmid' in EXP)))
                if i == 6: self.nonce_issue().kind = 'untracked'
                for j in range(4):
                    I('v_dot2_f32_bf16 v%d, v%d, s8, %s' % (A + 2 * j, CR(i) + j, 'v%d' % (A + 2 * j) if i else '0'))
                    I('v_dot2_f32_bf16 v%d, v%d, s9, %s' % (A + 2 * j + 1, CR(i) + j, 'v%d' % (A + 2 * j + 1) if i else '0'))
            self.U('s_waitcnt vmcnt(0)')
            self.nonce_get('q0')
            for j in range(4): I('v_permlane32_swap_b32 v%d, v%d' % (A + j, A + 4 + j))
            for j in range(4): I('v_add_f32 v%d, v%d, v%d' % (A + j, A + j, A + 4 + j))
            for j in range(2): I('v_permlane16_swap_b32 v%d, v%d' % (A + j, A + 2 + j))
            for j in range(2): I('v_add_f32 v%d, v%d, v%d' % (A + j, A + j, A + 2 + j))
            for j in range(2): I('v_add_f32_dpp v%d, v%d, v%d row_ror:8 row_mask:0xf bank_mask:0xf' % (A + j, A + j, A + j))
            I('v_and_b32 v%d, 8, v0' % (A + 2)); I('v_cmp_ne_u32 vcc, 0, v%d' % (A + 2)); I('v_cndmask_b32 v%d, v%d, v%d, vcc' % (A, A, A + 1))
            I('v_cvt_pk_bf16_f32 v%d, v%d, v%d' % (A + 1, A, A)); I('v_and_b32 v%d, s%d, v%d' % (A + 1, S_MASK, A + 1))
            I('v_sub_f32 v%d, v%d, v%d' % (A + 1, A, A + 1)); I('v_cvt_pk_bf16_f32 v%d, v%d, v%d' % (A, A + 1, A))
            I('v_and_b32 v%d, 7, v0' % (A + 1)); I('v_lshlrev_b32 v%d, 3, v%d' % (A + 1, A + 1)); I('v_lshrrev_b32 v%d, 3, v0' % (A + 2)); I('v_add_u32 v%d, v%d, v%d' % (A + 1, A + 1, A + 2))
            I('v_lshlrev_b32 v%d, 4, v%d' % (A + 1, A + 1))
            I('s_lshr_b32 s8, s0, 2'); I('s_lshl_b32 s8, s8, 10'); I('s_and_b32 s9, s0, 3'); I('s_lshl_b32 s9, s9, 2'); I('s_add_u32 s8, s8, s9'); I('s_add_u32 s8, s8, %d' % L.WS_CSG)
            self.U('buffer_store_dword v%d, v%d, %s, s8 offen sc1' % (A, A + 1, sr(S_WS, 4)))
            self.g.label('L_nocs')
            if 'qmid' in EXP:
                self.qpos = len(g.cur)
                self.row_stats()
                I('s_waitcnt vmcnt(6)')
            else:
                dms.update(self.start_stream(2688))
                I('s_waitcnt vmcnt(7)')
            I('s_barrier')
            I('s_cmp_lg_u32 s%d, 0' % S_WAVE); I('s_cbranch_scc1 L_nocf')
            I('s_lshl_b32 s8, s0, 7'); I('s_add_u32 s8, s8, %d' % L.WS_CSF)
            self.publish(8, A).kind = 'untracked'
            self.g.label('L_nocf')
            self.stamp('cspub')
        self.pre_s1 = qcs
        self.pre_loop(False, 14, lambda: I('s_lshl_b32 s%d, s%d, 3' % (S_H0, S_IDX)))
        self.pre_s1 = None
        def wpd():
            with g.capture() as a: self.wphi_dma(2, S_H0)
            return [a]
        self.pre_post = {2: wpd}
        tiles = [dict(t=[((i + cc) % 4, AW + i, 56 * ((i + cc) % 4)) for cc in range(4)], cs=True) for i in range(4)]
        def post2():
            with g.capture() as a:
                I('s_mul_i32 s8, s%d, %d' % (S_CH, 4 * 1568)); I('s_add_u32 s8, s8, %d' % L_WPHI)
                self.wphi_read(4, 8, 0)
            return [a]
        tl = [(c, CS, 448 * c) for c in range(4)]
        self.gemm(tiles, 2688, dms, 'q', dict(post={4: post2}), tl)
        self.finish_stats(tl, L.LOG2E, 'q')
        for i in range(4):
            self.pack_k(ACC + 16 * i, 80 + 8 * (i & 1)); self.phi_mfma(ACC + 16 * i, 80 + 8 * (i & 1), 8 * i)
        for i in range(4):
            if 'qalt' in EXP:
                I('s_setprio 0'); I('s_cmp_eq_u32 s%d, %d' % (S_CH, i & 1)); I('s_cbranch_scc1 L_qa%d' % i); I('s_setprio 1'); self.g.label('L_qa%d' % i)
            self.softmax_unit(ACC + 16 * i, sreg=124 + i)
        if 'qalt' in EXP: I('s_setprio 0')
        self.stamp('soft')
        if 'noq' in EXP: return
        T = TMP
        if 'lat' in EXP:
            I('s_lshl_b32 s8, s2, 3'); I('s_add_u32 s8, s8, s%d' % S_WAVE); I('s_lshl_b32 s8, s8, 9'); I('s_add_u32 s8, s8, %d' % (15 << 20)); I('v_mov_b32 v%d, 0' % T)
            for rep_ in range(2):
                I('buffer_load_dword v%d, v%d, %s, s8 offen offset:%d sc1' % (T + 1, T, sr(S_WS, 4), 256 * rep_)); I('s_waitcnt vmcnt(0)'); self.stamp('miss')
                I('buffer_load_dword v%d, v%d, %s, s8 offen offset:%d sc1' % (T + 1, T, sr(S_WS, 4), 256 * rep_)); I('s_waitcnt vmcnt(0)'); self.stamp('l2hit')
                I('buffer_store_dword v%d, v%d, %s, s8 offen offset:%d sc1' % (T + 1, T, sr(S_WS, 4), 128 + 256 * rep_)); I('s_waitcnt vmcnt(0)'); self.stamp('st')
            self.nst = 15
        if 'qpf' in EXP:
            I('s_and_b32 s8, s2, 7'); I('s_lshl_b32 s8, s8, 2'); I('s_bfe_u32 s9, s2, 0x20003'); I('s_add_u32 s8, s8, s9')
            I('s_lshl_b32 s9, s8, 12'); I('s_lshl_b32 s10, s%d, 8' % S_WAVE); I('s_add_u32 s9, s9, s10'); I('s_add_u32 s11, s9, %d' % L.WS_FLAG)
            I('v_and_b32 v%d, 1, v%d' % (T, VLANE)); I('v_lshlrev_b32 v%d, 11, v%d' % (T, T)); I('v_and_b32 v%d, 2, v%d' % (T + 1, VLANE)); I('v_lshl_add_u32 v%d, v%d, 6, v%d' % (T, T + 1, T))
            I('s_mul_i32 s8, s8, 224'); I('s_mul_i32 s9, s%d, 14' % S_WAVE); I('s_add_u32 s8, s8, s9'); I('s_lshl_b32 s10, s8, 10'); I('s_add_u32 s9, s10, %d' % (112 * 1024))
            I('v_lshlrev_b32 v%d, 7, v%d' % (T + 2, VLANE)); I('v_add_u32 v%d, 8192, v%d' % (T + 3, T + 2))
            self.g.label('L_qpf')
            self.U('buffer_load_dword v%d, v%d, %s, s11 offen sc1' % (T + 1, T, sr(S_WS, 4))); self.U('s_waitcnt vmcnt(0)')
            I('v_cmp_ne_u32 vcc, s%d, v%d' % (S_NONCE, T + 1)); I('s_nop 1'); I('s_cbranch_vccz L_qpfd')
            self.spin_tail('L_qpf', QSL)
            self.g.label('L_qpfd')
            for so in (10, 9): I('buffer_load_dword a100, v%d, %s, s%d offen' % (T + 2, sr(S_WS, 4), so)).dst = set()
            I('s_mov_b32 exec_hi, 0xffff')
            for so in (10, 9): I('buffer_load_dword a100, v%d, %s, s%d offen' % (T + 3, sr(S_WS, 4), so)).dst = set()
            I('s_mov_b64 exec, -1')
        if ATOM:
            T = TMP
            I('v_lshrrev_b32 v%d, 4, v%d' % (T, VLANE)); I('s_lshl_b32 s8, s%d, 1' % S_IDX); I('v_add_u32 v%d, s8, v%d' % (T, T))
            I('s_mul_i32 s8, s%d, 3' % S_IDX); I('s_add_u32 s8, s8, 2'); I('v_min_u32 v%d, s8, v%d' % (T, T))
            I('v_and_b32 v%d, 15, v%d' % (T + 1, VLANE)); I('v_lshl_add_u32 v%d, v%d, 4, v%d' % (T, T, T + 1)); I('v_lshlrev_b32 v%d, 7, v%d' % (T, T))
            I('s_mov_b32 s11, %d' % L.WS_KVZ)
            I('v_lshrrev_b32 v%d, 3, v%d' % (T + 2, VLANE)); I('v_and_b32 v%d, 7, v%d' % (T + 3, VLANE)); I('v_lshlrev_b32 v%d, 4, v%d' % (T + 4, T + 3)); I('v_lshl_add_u32 v%d, v%d, 8, v%d' % (T + 4, T + 2, T + 4))
            I('s_add_u32 s8, s%d, s%d' % (S_H0, S_WAVE)); I('s_lshl_b32 s8, s8, 13'); I('s_add_u32 s0, s8, %d' % L.WS_KV); I('s_add_u32 s1, s0, 4096')
            I('v_lshrrev_b32 v%d, 1, v%d' % (T + 5, T + 3)); I('v_lshlrev_b32 v%d, 10, v%d' % (T + 5, T + 5)); I('v_and_b32 v%d, 1, v%d' % (T + 3, T + 3)); I('v_lshl_add_u32 v%d, v%d, 3, v%d' % (T + 5, T + 3, T + 5))
            I('s_lshl_b32 s8, s%d, 12' % S_WAVE); I('v_add_u32 v%d, s8, v%d' % (T + 5, T + 5))
            WA4 = 112
            for i in range(4):
                a, b, c_ = T + 6, T + 7, T + 3
                I('v_add_u32 v%d, %d, v%d' % (a, 8 * i, T + 2))
                I('v_cmp_lt_u32 vcc, 13, v%d' % a); I('v_subrev_u32 v%d, 14, v%d' % (b, a)); I('v_cndmask_b32 v%d, v%d, v%d, vcc' % (b, a, b)); I('v_cndmask_b32 v%d, 0, 4, vcc' % c_)
                if i == 3:
                    I('v_cmp_lt_u32 vcc, 27, v%d' % a); I('v_and_b32 v%d, 1, v%d' % (T + 8, a)); I('v_lshlrev_b32 v%d, 2, v%d' % (T + 8, T + 8)); I('v_cndmask_b32 v%d, v%d, v%d, vcc' % (c_, c_, T + 8))
                    I('v_bfe_u32 v%d, v%d, 1, 1' % (T + 8, a)); I('v_add_u32 v%d, 14, v%d' % (T + 8, T + 8)); I('v_cndmask_b32 v%d, v%d, v%d, vcc' % (b, b, T + 8))
                I('v_and_or_b32 v%d, v%d, 3, v%d' % (c_, b, c_)); I('v_lshrrev_b32 v%d, 2, v%d' % (b, b)); I('v_lshl_add_u32 v%d, v%d, 3, v%d' % (c_, b, c_))
                I('v_lshl_add_u32 v%d, v%d, 4, v%d' % (WA4 + i, c_, T + 5))
            I('s_lshl_b32 s8, s%d, 14' % S_CH); I('v_add_u32 v%d, s8, v%d' % (T + 2, VL16))
            self.q_scalars()
            I('s_cmp_lg_u32 s%d, 0' % S_WAVE); I('s_cbranch_scc1 L_polldkv')
            self.g.label('L_pollkv')
            self.U('buffer_load_dword v64, v%d, %s, s11 offen sc1' % (T, sr(S_WS, 4))); self.U('s_waitcnt vmcnt(0)')
            I('v_cmp_ne_u32 vcc, s%d, v64' % S_NONCE); I('s_nop 1'); I('s_cbranch_vccz L_polldkv')
            self.spin_tail('L_pollkv', QSL)
            self.g.label('L_polldkv')
            I('s_barrier')
            self.stamp('kvok')
            for i in range(8):
                I('buffer_load_dwordx4 %s, v%d, %s, s%d offen offset:%d sc1' % (vr(64 + 4 * i, 4), T + 4, sr(S_WS, 4), (i >> 1) & 1, (i & 1) * 2048 + (i >> 2) * 128))
            wr = []
            for i in range(8):
                I('v_cvt_pk_bf16_f32 v%d, v%d, v%d' % (64 + 4 * i, 64 + 4 * i, 65 + 4 * i)); I('v_cvt_pk_bf16_f32 v%d, v%d, v%d' % (65 + 4 * i, 66 + 4 * i, 67 + 4 * i))
                wr.append(I('ds_write_b64 v%d, %s offset:%d' % (WA4 + (i & 3), vr(64 + 4 * i, 2), 512 * (i >> 2))))
            self.stamp('kvld')
            qbar = lambda: (I('s_barrier', needs=wr), [I('ds_read_b128 %s, v%d offset:%d' % (ar(32 + 16 * i + 4 * s, 4), T + 2, 4096 * i + 1024 * s)) for i in range(4) for s in range(4)])
        else:
            I('v_bfe_u32 v%d, v%d, 3, 2' % (T + 2, VLANE)); I('v_lshlrev_b32 v%d, 2, v%d' % (T + 2, T + 2)); I('v_and_or_b32 v%d, v%d, 3, v%d' % (T + 2, VLANE, T + 2))
            I('v_bfe_u32 v%d, v%d, 2, 1' % (T + 3, VLANE)); I('v_mul_u32_u24 v%d, 14, v%d' % (T + 3, T + 3)); I('v_add_u32 v%d, v%d, v%d' % (T + 3, T + 3, T + 2))
            I('v_cmp_gt_u32 vcc, 14, v%d' % (T + 2)); I('v_cndmask_b32 v%d, 28, v%d, vcc' % (T + 3, T + 3))
            I('v_and_b32 v%d, 32, v%d' % (T + 2, VLANE)); I('v_lshlrev_b32 v%d, 6, v%d' % (T + 2, T + 2)); I('v_lshl_add_u32 v%d, v%d, 4, v%d' % (T + 2, T + 3, T + 2))
            I('s_lshl_b32 s8, s%d, 14' % S_CH); I('v_add_u32 v%d, s8, v%d' % (T + 2, T + 2))
            I('v_and_b32 v%d, 15, v%d' % (T, VLANE)); I('v_lshlrev_b32 v%d, 7, v%d' % (T, T))
            I('v_and_b32 v%d, 7, v%d' % (T + 3, VLANE)); I('v_lshlrev_b32 v%d, 7, v%d' % (T + 3, T + 3))
            I('s_cmp_lg_u32 s%d, 0' % S_CH); I('s_cbranch_scc1 L_noreduce')
            I('s_lshl_b32 s8, s%d, 1' % S_RB); I('s_add_u32 s8, s8, s%d' % S_IDX); I('s_lshl_b32 s8, s8, 2'); I('s_add_u32 s11, s8, s%d' % S_RT)
            I('s_lshl_b32 s0, s11, 14'); I('s_add_u32 s0, s0, %d' % L.WS_SL)
            I('s_mov_b32 s8, 0x22111000'); I('s_mov_b32 s9, 0x55544332'); I('s_lshl_b32 s10, s%d, 2' % S_RB); I('s_lshr_b64 s[8:9], s[8:9], s10'); I('s_and_b32 s8, s8, 15')
            I('s_lshl_b32 s8, s8, 11'); I('s_add_u32 s1, s8, %d' % L.WS_KVZ)
            self.g.label('L_red_poll')
            self.U('buffer_load_dword v%d, v%d, %s, s1 offen sc1' % (T + 1, T, sr(S_WS, 4))); self.U('s_waitcnt vmcnt(0)')
            I('v_cmp_ne_u32 vcc, s%d, v%d' % (S_NONCE, T + 1)); I('s_nop 1'); I('s_cbranch_vccz L_red_load')
            self.spin_tail('L_red_poll', QSL)
            self.g.label('L_red_load')
            R = 64
            def src(i): return (64 + 4 * i) if i < 15 else T + 4
            for i in range(16):
                if i % 4 == 0: I('s_add_u32 s8, s0, %d' % (1024 * i))
                I('buffer_load_dwordx4 %s, v%d, %s, s8 offen offset:%d' % (vr(src(i), 4), VL16, sr(S_WS, 4), 1024 * (i % 4)))
            I('s_lshl_b32 s8, s11, 9'); I('s_add_u32 s8, s8, %d' % L.WS_KF); I('s_lshl_b32 s9, s11, 7'); I('s_add_u32 s9, s9, %d' % L.WS_KVD)
            for i in range(2, 16):
                for j in (0, 2): I('v_pk_add_f32 %s, %s, %s' % (vr(R + 4 * (i & 1) + j, 2), vr(R + 4 * (i & 1) + j, 2), vr(src(i) + j, 2)))
            for j in (0, 2): I('v_pk_add_f32 %s, %s, %s' % (vr(R + j, 2), vr(R + j, 2), vr(R + 4 + j, 2)))
            I('v_cvt_pk_bf16_f32 v68, v64, v65'); I('v_cvt_pk_bf16_f32 v69, v66, v67')
            I('v_mov_b32 v72, v68'); I('v_mov_b32 v73, v69')
            I('v_permlane32_swap_b32 v72, v70'); I('v_permlane32_swap_b32 v73, v71')
            I('s_mov_b32 exec_hi, 0')
            I('buffer_store_dwordx4 v[68:71], v%d, %s, s8 offen sc1' % (VL16, sr(S_WS, 4)))
            I('s_mov_b64 exec, -1')
            self.stamp('red')
            I('s_waitcnt vmcnt(0)')
            self.publish(9, 72).kind = 'untracked'
            self.g.label('L_noreduce')
            I('s_add_u32 s10, s%d, s%d' % (S_H0, S_WAVE)); I('s_lshl_b32 s11, s10, 10'); I('s_add_u32 s11, s11, %d' % L.WS_KVD)
            I('s_lshl_b32 s10, s10, 12'); I('s_add_u32 s10, s10, %d' % L.WS_KF); I('s_lshl_b32 m0, s%d, 12' % S_WAVE)
            self.g.label('L_pollkv')
            self.U('buffer_load_dword v64, v%d, %s, s11 offen sc1' % (T + 3, sr(S_WS, 4))); self.U('s_waitcnt vmcnt(0)')
            I('v_cmp_ne_u32 vcc, s%d, v64' % S_NONCE); I('s_nop 1'); I('s_cbranch_vccz L_polldkv')
            self.spin_tail('L_pollkv', QSL)
            self.g.label('L_polldkv')
            self.nst = 7
            self.stamp('kvok')
            dm = [I('buffer_load_dwordx4 v%d, %s, s10 offen offset:%d lds' % (VL16, sr(S_WS, 4), 1024 * i)) for i in range(4)]
            qbar = lambda: (I('s_barrier', needs=dm), [I('ds_read_b128 %s, v%d offset:%d' % (ar(32 + 16 * i + 4 * sf, 4), T + 2, 4096 * i + 512 * sf)) for i in range(4) for sf in range(4)])
        qbar()
        N = [64, 80, ACC, ACC + 16]; O = 96
        def ost(f): I('buffer_store_dwordx4 %s, v%d, %s, s%d offen offset:%d sc1' % (vr(O + 4 * f, 4), VL16, sr(S_WS, 4), 20 if f < 4 else 21, (f % 4) * 1024))
        def mm(i):
            for s in range(4):
                I('v_mfma_f32_32x32x16_bf16 %s, %s, %s, %s' % (vr(N[i], 16), ar(32 + 16 * i + 4 * s, 4), vr(ACC + 16 * i + 4 * s, 4), vr(N[i], 16) if s else '0'))
        done = 0
        mm(0); mm(1)
        for i in range(4):
            with g.capture() as fin: self.o_fin(N[i], O + 7 * i, 124 + i)
            if i + 2 < 4:
                with g.capture() as m4: mm(i + 2)
                k = len(fin) // 4
                for j in range(4): g.extend([m4[j]] + fin[j * k:(j + 1) * k if j < 3 else None])
            else: g.extend(fin)
            while 4 * (done + 1) <= 7 * (i + 1): ost(done); done += 1
        self.stamp('ocomp')
        I('s_waitcnt vmcnt(0)')
        self.publish(22, TMP)
        self.stamp('opub')
        I('s_waitcnt vmcnt(0)')
    def q_scalars(self):
        I = self.I
        I('s_lshl_b32 s8, s%d, 2' % S_RB); I('s_add_u32 s10, s8, s%d' % S_RT); I('s_mul_i32 s8, s10, 28'); I('s_mul_i32 s9, s%d, 14' % S_IDX); I('s_add_u32 s8, s8, s9')
        I('s_mul_i32 s9, s%d, 7' % S_CH); I('s_add_u32 s8, s8, s9'); I('s_lshl_b32 s8, s8, 10'); I('s_add_u32 s20, s8, %d' % L.WS_O); I('s_add_u32 s21, s20, 4096')
        I('s_lshl_b32 s8, s10, 1'); I('s_add_u32 s8, s8, s%d' % S_IDX)
        I('s_lshl_b32 s8, s8, 1'); I('s_add_u32 s8, s8, s%d' % S_CH); I('s_lshl_b32 s8, s8, 7'); I('s_add_u32 s22, s8, %d' % L.WS_FO)
    def o_fin(self, N, O, sreg):
        I = self.I; t = TMP + 8
        I('v_fmac_f32 v%d, %s, v%d' % (N + 14, f32(1e-6), sreg)); I('v_rcp_f32 v%d, v%d' % (t, N + 14))
        for j in range(14): I('v_mul_f32 v%d, v%d, v%d' % (N + j, N + j, t))
        for j in range(7): I('v_cvt_pk_bf16_f32 v%d, v%d, v%d' % (O + j, N + 2 * j, N + 2 * j + 1))

    def p2_pre(self):
        I = self.I; g = self.g; A, B, C = 64, 65, 66; out = []
        def st(i, r): I('v_accvgpr_write_b32 a%d, v%d' % (STASH + i, r))
        with g.capture() as a:
            I('s_lshl_b32 s8, s%d, 1' % S_RG)
            I('s_mul_i32 s%d, s8, 112' % S_A0); I('s_mul_i32 s9, s%d, 14' % S_WAVE); I('s_add_u32 s%d, s%d, s9' % (S_A0, S_A0)); I('s_lshl_b32 s%d, s%d, 10' % (S_A0, S_A0))
            I('s_add_u32 s%d, s%d, %d' % (S_A1, S_A0, 112 * 1024))
            I('s_bfe_u32 s9, s%d, 0x10001' % S_WAVE); I('s_add_u32 s10, s8, s9'); I('s_mul_i32 s%d, s10, 28' % S_OSO); I('s_mul_i32 s9, s%d, 14' % S_CH); I('s_add_u32 s%d, s%d, s9' % (S_OSO, S_OSO))
            I('s_lshl_b32 s10, s10, 1'); I('s_add_u32 s10, s10, s%d' % S_CH); I('s_lshl_b32 s10, s10, 8'); I('s_add_u32 s%d, s10, %d' % (S_FO, L.WS_FO))
            pass; I('s_lshl_b32 s%d, s%d, 10' % (S_OSO, S_OSO))
            I('s_add_u32 s%d, s%d, %d' % (S_OSO, S_OSO, L.WS_O))
            I('v_lshrrev_b32 v%d, 3, v%d' % (A, VLANE)); I('v_mul_u32_u24 v%d, 896, v%d' % (A, A)); I('v_and_b32 v%d, 7, v%d' % (B, VLANE)); I('v_lshl_add_u32 v%d, v%d, 4, v%d' % (A, B, A))
            I('v_and_b32 v%d, 1, v%d' % (B, B)); I('v_lshlrev_b32 v%d, 7, v%d' % (B, B)); st(1, A); st(2, B)
        out.append(a)
        with g.capture() as a:
            I('s_lshl_b32 s9, s%d, 3' % S_RG); I('s_add_u32 s9, s9, s%d' % S_WAVE); I('s_mul_i32 s9, s9, %d' % (8 * 896)); I('s_lshl_b32 s8, s%d, 7' % S_CG); I('s_add_u32 s%d, s9, s8' % S_XO)
            I('s_lshl_b32 s8, s%d, 12' % S_RG); I('s_lshl_b32 s9, s%d, 8' % S_WAVE); I('s_add_u32 s9, s9, s8'); I('s_add_u32 s%d, s9, %d' % (S_FA, L.WS_FLAG))
            I('v_and_b32 v%d, 1, v%d' % (A, VLANE)); I('v_lshlrev_b32 v%d, 11, v%d' % (A, A)); I('v_and_b32 v%d, 2, v%d' % (B, VLANE)); I('v_lshl_add_u32 v%d, v%d, 6, v%d' % (A, B, A)); st(0, A)
        out.append(a)
        with g.capture() as a:
            I('v_lshrrev_b32 v%d, 5, v%d' % (C, VLANE)); I('v_bfe_u32 v%d, v%d, 3, 1' % (A, VLANE)); I('v_xor_b32 v%d, v%d, v%d' % (A, A, C))
            I('v_mul_u32_u24 v%d, 14, v%d' % (B, C)); I('v_bfe_u32 v%d, v%d, 2, 2' % (C, VLANE)); I('v_add_u32 v%d, v%d, v%d' % (B, B, C))
            I('v_lshlrev_b32 v%d, 7, v%d' % (B, B)); I('v_lshl_add_u32 v%d, v%d, 6, v%d' % (A, A, B))
            I('v_and_b32 v%d, 3, v%d' % (B, VLANE)); I('v_lshl_add_u32 v%d, v%d, 3, v%d' % (A, B, A))
            I('v_and_b32 v%d, 16, v%d' % (B, VLANE)); I('v_lshl_add_u32 v%d, v%d, 1, v%d' % (A, B, A))
            I('s_and_b32 s9, s%d, 1' % S_WAVE); I('s_lshl_b32 s9, s9, 6'); I('v_xor_b32 v%d, s9, v%d' % (A, A))
            I('s_mul_i32 s9, s%d, %d' % (S_CH, 224 * 128)); I('v_add_u32 v%d, s9, v%d' % (A, A))
            I('v_xor_b32 v%d, 64, v%d' % (B, A)); st(3, A); st(4, B)
            I('v_add_u32 v%d, %d, v%d' % (B, 14 * 128, B)); I('v_and_b32 v%d, 8, v%d' % (C, VLANE)); I('v_cmp_eq_u32 vcc, 0, v%d' % C); I('v_cndmask_b32 v%d, v%d, v%d, vcc' % (B, B, A)); st(5, B)
        out.append(a)
        return out
    def p2_enter(self):
        T = P2T
        for i, r in enumerate((T + 1, T + 2, T + 3, T + 8, T + 9, T + 10)): self.I('v_accvgpr_read_b32 v%d, a%d' % (r, STASH + i))

    def phase2(self):
        I = self.I; g = self.g; T = P2T
        XO, XR, WA = T + 2, T + 4, T + 8
        self.nst = 7
        if 'start' in EXP or 'stg' in EXP: self.nst = 15
        self.poll_check('A', T + 1, S_FA, T)
        self.stamp('hok')
        RING = 64; NR = 15
        self.bdma = {k: [] for k in range(14)}
        def load(n):
            k, a = divmod(n, 2); r = RING + 4 * (n % NR); base = S_A1 if a else S_A0
            I('buffer_load_dwordx4 %s, v%d, %s, s%d offen offset:%d%s' % (vr(r, 4), VL16, sr(S_WS, 4), base, (k % 4) * 1024, HSC))
            if k % 4 == 3: I('s_add_u32 s%d, s%d, 4096' % (base, base))
        def wo_read(kk, dst):
            G, f = divmod(kk, 7)
            for pp in range(2):
                p = 4 * f + 2 * pp; hl = 4 * G + p // 7; i = p % 7
                areg = WA + 2 if i == 6 else WA + (i & 1)
                I('ds_read_b64_tr_b16 %s, v%d offset:%d' % (ar(dst + 2 * pp, 2), areg, L_WO + (28 * hl + 2 * i) * 128))
        EWB, SWB, ORD, GRD, SRD_ = 124, 142, 126, 127, 143
        def tail_addr():
            A, B = XR, XR + 1
            I('v_and_b32 v%d, 31, v%d' % (A, VLANE)); I('v_lshlrev_b32 v%d, 7, v%d' % (A, A)); I('v_and_b32 v%d, 7, v%d' % (B, VLANE)); I('v_lshl_add_u32 v%d, v%d, 4, v%d' % (A, B, A))
            I('v_lshrrev_b32 v%d, 5, v%d' % (B, VLANE)); I('v_lshl_add_u32 v%d, v%d, 3, v%d' % (A, B, A))
            I('v_add_u32 v%d, s%d, v%d' % (EWB, S_STA, A))
            I('s_lshl_b32 s8, s%d, 13' % S_CH); I('s_bfe_u32 s9, s%d, 0x10001' % S_WAVE); I('s_lshl_b32 s10, s9, 12'); I('s_add_u32 s8, s8, s10'); I('s_add_u32 s8, s8, %d' % L_XS)
            I('v_add_u32 v%d, s8, v%d' % (SWB, A)); I('s_and_b32 s8, s%d, 1' % S_WAVE); I('s_lshl_b32 s8, s8, 6'); I('v_xor_b32 v%d, s8, v%d' % (SWB, SWB))
            I('v_lshrrev_b32 v%d, 3, v%d' % (A, VLANE)); I('v_and_b32 v%d, 7, v%d' % (B, VLANE)); I('v_xor_b32 v%d, v%d, v%d' % (B, B, A))
            I('v_lshlrev_b32 v%d, 7, v%d' % (A, A)); I('v_lshl_add_u32 v%d, v%d, 4, v%d' % (A, B, A)); I('s_lshl_b32 s8, s%d, 10' % S_WAVE); I('s_add_u32 s8, s8, %d' % L_XS); I('v_add_u32 v%d, s8, v%d' % (SRD_, A))
            I('s_lshl_b32 s8, s%d, 10' % S_RT); I('s_lshl_b32 s9, s%d, 15' % S_CH); I('s_add_u32 s8, s8, s9'); I('s_add_u32 s8, s8, %d' % L_STA); I('v_add_u32 v%d, s8, v%d' % (GRD, A))
            I('s_add_u32 s25, s%d, 4096' % S_OSO); I('s_add_u32 s28, s%d, 8192' % S_OSO); I('s_add_u32 s29, s%d, 12288' % S_OSO)
            I('s_mov_b32 s10, 0x00003f80'); I('s_mov_b32 s11, 0x3f800000'); I('s_mov_b32 s26, %s' % f32(-1.0 / L.LOG2E)); I('s_mov_b32 s27, s26')
        for n in range(NR): load(n)
        nl = NR; wog = []; WOK = int(os.environ.get('WOK', '6'))
        for ki in range(14):
            for a in range(2):
                n = 2 * ki + a; r = RING + 4 * (n % NR)
                for b in range(2):
                    I('v_mfma_f32_32x32x16_bf16 %s, %s, %s, %s' % (vr(16 * (2 * a + b), 16), ar(8 * ki + 4 * b, 4), vr(r, 4), vr(16 * (2 * a + b), 16) if ki else '0'))
                if nl < 28:
                    load(nl); nl += 1
                    if nl == 28: I('buffer_load_dwordx4 %s, v%d, %s, s100 offen' % (vr(XR, 4), XO, sr(S_X, 4)))
            if ki == 0:
                for k in range(9, 14): g.extend(self.b_read(k))
            if ki == 2: tail_addr()
            if ki == WOK: wog = self.wo_dma()
            if wog:
                grp = wog.pop(0)
                if 'fwo' in EXP:
                    for x in grp:
                        if x.kind == 'dma': x.kind = 'untracked'
                    I('s_cmp_eq_u32 s%d, 0' % S_TYPE); I('s_cbranch_scc1 L_nwo%d' % ki); g.extend(grp); self.g.label('L_nwo%d' % ki)
                else: g.extend(grp)
        self.stamp('gdone')
        EW = 112
        po = self.poll_issue(T + 3, S_FO, T)
        for b in range(2):
            for Q in range(4):
                I('v_xor_b32 v%d, %d, v%d' % (EW + 4 * b + Q, 16 * (4 * b + Q), EWB))
                for a in range(2):
                    t = 16 * (2 * a + b)
                    for j in (2 * Q, 2 * Q + 1): I('v_cvt_pk_bf16_f32 v%d, v%d, v%d' % (t + j, t + 2 * j, t + 2 * j + 1))
                    I('ds_write_b64 v%d, %s offset:%d' % (EW + 4 * b + Q, vr(t + 2 * Q, 2), 32768 * a))
        OF = 64
        def oload():
            for kk in range(14):
                self.U('buffer_load_dwordx4 %s, v%d, %s, s%d offen offset:%d%s' % (vr(OF + 4 * kk, 4), VL16, sr(S_WS, 4), (S_OSO, 25, 28, 29)[kk // 4], 1024 * (kk % 4), HSC))
        XU = 40
        I('s_waitcnt vmcnt(0)')
        I('v_cmp_ne_u32 vcc, s%d, v%d' % (S_NONCE, T)); I('s_waitcnt lgkmcnt(0)'); I('s_mov_b64 s[8:9], vcc')
        if 'oafter' in EXP:
            I('s_barrier'); self.stamp('e2')
            for src in range(8): I('ds_read_b128 %s, v%d offset:%d' % (vr(8 + 4 * src, 4), GRD, 4096 * src))
        I('s_cbranch_vccnz L_olate1')
        oload()
        self.g.label('L_olate1')
        if 'oafter' not in EXP:
            I('s_barrier')
            self.stamp('e2')
        for src in range(0 if 'oafter' in EXP else 8): I('ds_read_b128 %s, v%d offset:%d' % (vr(8 + 4 * src, 4), GRD, 4096 * src))
        for j in range(4): I('v_lshlrev_b32 v%d, 16, v%d' % (XU + 2 * j, XR + j)); I('v_and_b32 v%d, s%d, v%d' % (XU + 1 + 2 * j, S_MASK, XR + j))
        for src in range(8):
            for kk in ((2 * src, 2 * src + 1) if src < 7 else ()): wo_read(kk, 4 * kk)
            for j in range(4):
                I('v_dot2_f32_bf16 v%d, v%d, s10, %s' % (2 * j, 8 + 4 * src + j, 'v%d' % (2 * j) if src else '0'))
                I('v_dot2_f32_bf16 v%d, v%d, s11, %s' % (2 * j + 1, 8 + 4 * src + j, 'v%d' % (2 * j + 1) if src else '0'))
        I('s_cmp_eq_u64 s[8:9], 0'); I('s_cbranch_scc1 L_oearly')
        self.g.label('L_pollO')
        self.U('buffer_load_dword v%d, v%d, %s, s%d offen sc1' % (T, T + 3, sr(S_WS, 4), S_FO)); self.U('s_waitcnt vmcnt(0)')
        I('v_cmp_ne_u32 vcc, s%d, v%d' % (S_NONCE, T)); I('s_nop 1'); I('s_cbranch_vccz L_polldO')
        self.spin_tail('L_pollO', int(os.environ.get('OSL', '2')))
        self.g.label('L_polldO')
        oload()
        self.g.label('L_oearly')
        self.stamp('ook')
        for j in range(8): I('v_exp_f32 v%d, v%d' % (8 + j, j))
        SW = 120
        for q in range(4): I('v_xor_b32 v%d, %d, v%d' % (SW + q, 16 * q, SWB))
        for j in range(0, 8, 2): I('v_pk_add_f32 %s, %s, 1.0 op_sel_hi:[1,0]' % (vr(8 + j, 2), vr(8 + j, 2)))
        for j in range(8): I('v_rcp_f32 v%d, v%d' % (8 + j, 8 + j))
        for j in range(0, 8, 2): I('v_pk_mul_f32 %s, %s, s[26:27]' % (vr(j, 2), vr(j, 2)))
        for j in range(0, 8, 2): I('v_pk_mul_f32 %s, %s, %s' % (vr(j, 2), vr(j, 2), vr(8 + j, 2)))
        SA = 48
        for kk in range(14):
            if kk % 2 == 0: self.U('s_waitcnt vmcnt(%d)' % (12 - kk))
            I('v_mfma_f32_32x32x16_bf16 %s, %s, %s, %s' % (vr(SA, 16), ar(4 * kk, 4), vr(OF + 4 * kk, 4), vr(SA, 16) if kk else '0'))
        self.stamp('e3')
        wr = []
        for q in range(4):
            for j in (2 * q, 2 * q + 1): I('v_cvt_pk_bf16_f32 v%d, v%d, v%d' % (SA + j, SA + 2 * j, SA + 2 * j + 1))
            wr.append(I('ds_write_b64 v%d, %s' % (SW + q, vr(SA + 2 * q, 2))))
        I('s_barrier', needs=wr)
        for h in range(2): I('ds_read_b128 %s, v%d offset:%d' % (vr(16 + 4 * h, 4), SRD_, 8192 * h))
        for h in range(2):
            for j in range(4):
                I('v_dot2_f32_bf16 v%d, v%d, s10, %s' % (24 + 2 * j, 16 + 4 * h + j, 'v%d' % (24 + 2 * j) if h else '0'))
                I('v_dot2_f32_bf16 v%d, v%d, s11, %s' % (25 + 2 * j, 16 + 4 * h + j, 'v%d' % (25 + 2 * j) if h else '0'))
        for j in range(0, 8, 2): I('v_pk_fma_f32 %s, %s, %s, %s' % (vr(j, 2), vr(j, 2), vr(24 + j, 2), vr(XU + j, 2)))
        for j in range(4): I('v_cvt_pk_bf16_f32 v%d, v%d, v%d' % (8 + j, 2 * j, 2 * j + 1))
        I('buffer_store_dwordx4 v[8:11], v%d, %s, s100 offen%s' % (XO, sr(S_OUT, 4), os.environ.get('OUTF', '')))
        self.stamp('final')

    def xfilter(self, body):
        out = []
        for x in body:
            if 'nosc1st' in EXP and x.op.startswith('buffer_store_dwordx4') and 'sc1' in x.text and 'v141' in x.text: x.text = x.text.replace(' sc1', '')
            if 'nost' in EXP and x.op.startswith('buffer_store_dwordx4') and 'v141' in x.text: x.text = 's_nop 0'
            if 'nob' in EXP and x.kind == 'dma' and 's[52:55]' in x.text: x.text = 's_nop 0'
            if 'sysp' in EXP and x.op == 'buffer_load_dword' and x.text.endswith('sc1') and 's[64:67]' in x.text: x.text = x.text.replace(' sc1', ' sc0 sc1')
            if 'nowo' in EXP and x.kind == 'dma' and 's[48:51]' in x.text: x.text = 's_nop 0'
            if 'noatom' in EXP and 'atomic' in x.op: x.text = 's_nop 0'
            if 'ntst' in EXP and x.op.startswith('buffer_store_dwordx4') and 'sc1' in x.text and 'v141' in x.text: x.text = x.text.replace(' sc1', ' sc0 sc1')
            out.append(x)
        return out
    def path(self, prefix, fn, label, keys):
        self.keys = keys
        if 'stamp' in self.__dict__: del self.__dict__['stamp']
        with self.g.capture() as body:
            if label: self.g.label(label)
            fn()
        self.xfilter(body)
        allp = [x for p in prefix for x in p]
        for x in allp: x.done = False
        full = self.g.finish(allp + body)
        if label:
            idx = next(i for i, x in enumerate(full) if x.kind == 'label' and x.text == label + ':')
            return full[idx:], body
        return full, body

    def build(self):
        I = self.I
        with self.g.capture() as pro:
            self.prologue()
            I('s_cmp_eq_u32 s%d, 0' % S_TYPE); I('s_cbranch_scc1 L_ffn'); I('s_cmp_eq_u32 s%d, 2' % S_TYPE); I('s_cbranch_scc1 L_q')
        n0 = self.nst
        def endp():
            self.write_stamps(); I('s_endpgm')
        def ffn():
            self.ffn()
        outf, _ = self.path([pro], ffn, 'L_ffn', ['0'])
        out, _ = self.path([pro], lambda: None, None, ['0'])
        self.nst = n0
        code, kvc = self.path([pro], self.kv_common, 'L_kv', ['10', '11'])
        n1 = self.nst
        save = (dict(self.bdma), dict(self.bread))
        def kk():
            self.kv_k()
        def kvv():
            self.kv_v()
        c2, _ = self.path([pro, kvc], kk, 'L_kv_k', ['10'])
        self.nst = n1; self.bdma, self.bread = dict(save[0]), dict(save[1])
        c3, _ = self.path([pro, kvc], kvv, 'L_kv_v', ['11'])
        out += code + c2 + c3 + outf
        self.nst = n0
        def qq():
            self.q(); endp()
        c4, _ = self.path([pro], qq, 'L_q', ['2'])
        out += c4
        def p2():
            self.phase2(); endp()
        if 'nop2' not in EXP:
            c5, _ = self.path([], p2, 'L_p2', ['0', '10', '11'])
            out += c5
        with self.g.capture() as tail:
            self.g.label('L_end'); I('s_endpgm')
        return out + tail

HEADER = open('cdna_kernels/%s.s.ref' % NAME).read().split('; Override launch')[0]
def wrap(code, launch):
    return HEADER + launch + '''
.amdgcn_target "amdgcn-amd-amdhsa--gfx950"
.text
.globl %(n)s_kernel
.p2align 8
.type %(n)s_kernel,@function
%(n)s_kernel:
%(body)s
.section .rodata,"a"
.p2align 6
.amdhsa_kernel %(n)s_kernel
  .amdhsa_next_free_vgpr 256
  .amdhsa_next_free_sgpr 102
  .amdhsa_accum_offset %(nv)d
  .amdhsa_group_segment_fixed_size 0
  .amdhsa_kernarg_size 80
  .amdhsa_user_sgpr_count 2
  .amdhsa_user_sgpr_kernarg_segment_ptr 1
  .amdhsa_system_sgpr_workgroup_id_x 1
.end_amdhsa_kernel
''' % dict(n=NAME, body=render(code), nv=NV)

if __name__ == '__main__':
    stamps = '--stamps' in sys.argv
    k = K(stamps)
    code = k.build()
    if 'noal' not in EXP:
        import align
        code = align.align(code)
    open(sys.argv[1], 'w').write(wrap(code, '; @launch grid=(256,1,1) block=(512,1,1) lds=163840'))
    json.dump({t: [d.get(i, '') for i in range(16)] for t, d in k.names.items()} if stamps else {}, open(sys.argv[1][:-2] + '.json', 'w'))
    print('instructions', len(code), 'nops', sum(1 for i in code if i.kind == 'nop'))
```
